```python
import torch

def _softmax(x, axis=-1):
    return torch.softmax(x, dim=axis)
def _gelu(x):
    return torch.nn.functional.gelu(x, approximate="tanh")
def _silu(x):
    return torch.nn.functional.silu(x)
def _sigmoid(x):
    return torch.sigmoid(x)
def _layernorm(x, axis=-1, eps=1e-5):
    m = x.mean(dim=axis, keepdim=True)
    v = x.var(dim=axis, keepdim=True, unbiased=False)
    return (x - m) / torch.sqrt(v + eps)
def _scatter_add(tgt, idx, src, axis=0):
    return tgt.clone().index_add_(axis, idx, src)
def _segment_sum(src, seg, n):
    out = torch.zeros((n,) + src.shape[1:], dtype=src.dtype)
    return out.index_add_(0, seg, src)
def _pad(x, pw):
    flat = tuple(v for pair in reversed(pw) for v in pair)
    return torch.nn.functional.pad(x, flat)

kernel_name = 'concat_heads__mha_block_cached__mha_block_cached__near_ridge'

def setup_inputs():

    _w = (lambda a: (lambda t: t.to(torch.bfloat16) if t.is_floating_point() else t)(torch.as_tensor(a)))
    def _A_setup():
        B, Sq, D = 16, 224, 640
        H, Sk, Dh = 32, 1024, 128
        return {
            "x": _w((lambda *s: torch.randn(*s, dtype=torch.bfloat16) * 0.8)(B, Sq, D)),
            "k_cache": _w((lambda *s: torch.randn(*s, dtype=torch.bfloat16) * 0.8)(B, H, Sk, Dh)),
            "v_cache": _w((lambda *s: torch.randn(*s, dtype=torch.bfloat16) * 0.05)(B, H, Sk, Dh)),
            "wq": _w((lambda *s: torch.randn(*s, dtype=torch.bfloat16) * 0.8)(D, H * Dh) * (D ** -0.5)),
            "wo": _w((lambda *s: torch.randn(*s, dtype=torch.bfloat16) * 0.05)(H * Dh, D) * ((H * Dh) ** -0.5)),
        }
    _A_in = _A_setup()

    def _B_setup():
        B, Sq, D = 16, 224, 640
        H, Sk, Dh = 32, 1024, 128
        return {
            "x": _w((lambda *s: torch.randn(*s, dtype=torch.bfloat16) * 0.8)(B, Sq, D)),
            "k_cache": _w((lambda *s: torch.randn(*s, dtype=torch.bfloat16) * 0.8)(B, H, Sk, Dh)),
            "v_cache": _w((lambda *s: torch.randn(*s, dtype=torch.bfloat16) * 0.05)(B, H, Sk, Dh)),
            "wq": _w((lambda *s: torch.randn(*s, dtype=torch.bfloat16) * 0.8)(D, H * Dh) * (D ** -0.5)),
            "wo": _w((lambda *s: torch.randn(*s, dtype=torch.bfloat16) * 0.05)(H * Dh, D) * ((H * Dh) ** -0.5)),
        }
    _B_in = _B_setup()

    return {
        "A_x": _A_in["x"],
        "A_k_cache": _A_in["k_cache"],
        "A_v_cache": _A_in["v_cache"],
        "A_wq": _A_in["wq"],
        "A_wo": _A_in["wo"],
        "B_x": _B_in["x"],
        "B_k_cache": _B_in["k_cache"],
        "B_v_cache": _B_in["v_cache"],
        "B_wq": _B_in["wq"],
        "B_wo": _B_in["wo"],
    }

def reference(A_x, A_k_cache, A_v_cache, A_wq, A_wo, B_x, B_k_cache, B_v_cache, B_wq, B_wo):
    def _A_ref(x, k_cache, v_cache, wq, wo):
        B, Sq, D = x.shape
        H, Dh = 32, 128
        q = (lambda x, *d: x.permute(*d))((x @ wq).reshape(B, Sq, H, Dh), 0, 2, 1, 3)
        scores = torch.einsum("bhqd,bhkd->bhqk", q, k_cache) * (Dh ** -0.5)
        p = _softmax(scores, axis=-1)
        o = torch.einsum("bhqk,bhkd->bhqd", p, v_cache)
        return (lambda x, *d: x.permute(*d))(o, 0, 2, 1, 3).reshape(B, Sq, H * Dh) @ wo

    def _B_ref(x, k_cache, v_cache, wq, wo):
        B, Sq, D = x.shape
        H, Dh = 32, 128
        q = (lambda x, *d: x.permute(*d))((x @ wq).reshape(B, Sq, H, Dh), 0, 2, 1, 3)
        scores = torch.einsum("bhqd,bhkd->bhqk", q, k_cache) * (Dh ** -0.5)
        p = _softmax(scores, axis=-1)
        o = torch.einsum("bhqk,bhkd->bhqd", p, v_cache)
        return (lambda x, *d: x.permute(*d))(o, 0, 2, 1, 3).reshape(B, Sq, H * Dh) @ wo

    a = _A_ref(A_x, A_k_cache, A_v_cache, A_wq, A_wo)
    b = _B_ref(B_x, B_k_cache, B_v_cache, B_wq, B_wo)
    return torch.concatenate([a, b], axis=-1)
```

```python
class Asm:
    def __init__(self):
        self.lines = []
        self.lds_q = []
    def __call__(self, s):
        self.lines.append("    " + s)
    def label(self, l):
        self.lines.append(l + ":")
    def comment(self, s):
        self.lines.append("    ; " + s)
    def lds(self, s, tag):
        self(s); self.lds_q.append(tag)
    def lds_wait(self, tags):
        last = -1
        for i, t in enumerate(self.lds_q):
            if t in tags: last = i
        if last < 0: return
        n = len(self.lds_q) - 1 - last
        n = min(n, 15)
        self(f"s_waitcnt lgkmcnt({n})")
        self.lds_q = self.lds_q[len(self.lds_q) - n:] if n > 0 else []
    def lds_wait_all(self):
        self("s_waitcnt lgkmcnt(0)"); self.lds_q = []
    def text(self):
        return "\n".join(self.lines) + "\n"

def vr(a, n=1):
    return f"v{a}" if n == 1 else f"v[{a}:{a+n-1}]"
def sr(a, n=1):
    return f"s{a}" if n == 1 else f"s[{a}:{a+n-1}]"

def kernel_header(name):
    return f""".globl {name}
.p2align 8
.type {name},@function
{name}:
"""
def kernel_desc(name, vgpr, sgpr=102, accum=None):
    if accum is None: accum = (vgpr + 3) // 4 * 4
    return f""".amdhsa_kernel {name}
  .amdhsa_next_free_vgpr {vgpr}
  .amdhsa_next_free_sgpr {sgpr}
  .amdhsa_accum_offset {accum}
  .amdhsa_group_segment_fixed_size 0
  .amdhsa_kernarg_size 104
  .amdhsa_user_sgpr_count 2
  .amdhsa_user_sgpr_kernarg_segment_ptr 1
  .amdhsa_system_sgpr_workgroup_id_x 1
.end_amdhsa_kernel
"""
```

```python
from gen_common import *

NQB = 3584 * 4096 * 2
WS_O = 2 * NQB
WS_W = 4 * NQB
WS_BYTES = 4 * NQB + 2 * 4096 * 640 * 2
PAIRB = 224 * 128 * 2

TILE = 8448
RING = 4
AREA = RING * TILE
LDS_BYTES = 163840
LDS_FLAG = 2 * AREA + 1024
LDS_FLAG = 2 * AREA + 8416

def kpad(i): return 1024 * i + 16 * ((i & 1) + 4 * (i >> 1))

V_LANE, V_T0, V_T1, V_T2, V_T3, V_LIN, V_DMA = 1, 2, 3, 4, 5, 6, 7
V_KA, V_VA, V_XA, V_WA = 8, 9, 10, 11
V_L = 12
V_QD, V_BA = 26, 27
V_CI = 28
V_KF = 56
V_S = 88
V_P = 104
V_VF = 112
V_OK = 144
A_Q = 0
A_OS = 112
A_LS = 224
A_ONE = 252
S_LD, S_K, S_W, S_QP = 4, 8, 12, 16
S_WAVE, S_T, S_CNT, S_NOFB, S_OOFF, S_MP, S_T0 = 20, 21, 22, 23, 24, 25, 27
S_A, S_B, S_C, S_D = 28, 29, 30, 31
S_THR, S_LDB, S_DJ, S_PJ, S_QH, S_DOFF = 32, 33, 34, 35, 48, 49
S_QS, S_QSTEP, S_QRND, S_MSTEP, S_CS = 50, 51, 52, 53, 54
S_TAB = 88
S_AS, S_TY, S_PRE, S_WO = 68, 69, 70, 71
MFMA = "v_mfma_f32_16x16x32_bf16"
def ar(a, n=1):
    return f"a{a}" if n == 1 else f"a[{a}:{a+n-1}]"

def gen_fused(name, nt=True, stamp=False, nofb=False, noload=False, nost=False, nox=False, now=False, st0=False, touch=False, kvt=False, kvtnt=False, nowo=False, tnt=False, qnt=False, wont=False, trace=False, DBO=64, ones=False, strace=False, xmem=0, xmfma=0, delay=0, tymask=1, stwg=4, roll=False, bulk0=True, wsbase=0, rot=True, rsh=1, dupst=False, allst=False, align=0, roles=False, fakex=False, early=False, qdelay=0, adelay=0, kvpol=None, xf=False, pst=False, kvl2=False, xq=False, pstl=False, kv0=False, qpnl=False, cpf=0, cpflate=False, qps=False, tymode=0, tyinv=False, xswap=False, qnrd=False, qnbar=False, qbar=7, qd0=9, qdstep=6):
    a = Asm()
    NT = " nt" if nt else ""
    if kvpol: NT = " " + kvpol
    a("s_cmp_ge_u32 s2, 256")
    a("s_cbranch_scc1 L_at_end")
    if cpf:
        a("s_getpc_b64 s[72:73]")
        a.label("L_pc0")
        a(f"s_mov_b32 s74, L_code_end - L_pc0")
        a("s_mov_b32 s75, 0x20000")
        a("v_lshlrev_b32 v105, 6, v0")
        if not cpflate:
          for k in range(cpf // 16):
            a(f"s_mov_b32 s76, {k*16384}")
            a("buffer_load_dword v104, v105, s[72:75], s76 offen")
    a("s_and_b32 s3, s2, 7")
    a("s_lshl_b32 s3, s3, 5")
    a("s_lshr_b32 s36, s2, 6")
    a("s_lshl_b32 s36, s36, 3")
    a("s_or_b32 s3, s3, s36")
    a("s_bfe_u32 s36, s2, 0x30003")
    a("s_or_b32 s2, s3, s36")
    if xswap: a("s_xor_b32 s2, s2, 32"); a("s_nop 0")
    a("s_load_dwordx8 s[36:43], s[0:1], 0")
    a("s_load_dwordx8 s[56:63], s[0:1], 40")
    a("s_load_dwordx2 s[44:45], s[0:1], 96")
    a("s_load_dwordx2 s[84:85], s[0:1], 32")
    a("s_load_dwordx2 s[86:87], s[0:1], 72")
    a(f"v_and_b32 v{V_LANE}, 63, v0")
    a(f"v_lshrrev_b32 v{V_T0}, 6, v0")
    a("s_nop 0")
    a(f"v_readfirstlane_b32 s{S_WAVE}, v{V_T0}")
    a("s_waitcnt lgkmcnt(0)")
    a(f"s_and_b32 s{S_QH}, s{S_WAVE}, 1")
    a(f"s_lshr_b32 s{S_PJ}, s{S_WAVE}, 1")
    a("s_cmp_ge_u32 s2, 128")
    for k in range(8):
        a(f"s_cselect_b32 s{36+k}, s{56+k}, s{36+k}")
    a("s_cselect_b32 s84, s86, s84")
    a("s_cselect_b32 s85, s87, s85")
    a(f"s_mov_b32 s86, {4096*640*2}")
    a("s_mov_b32 s87, 0x20000")
    a(f"s_and_b32 s{S_A}, s2, 127")
    a(f"s_lshl_b32 s{S_B}, s{S_A}, 20")
    a(f"s_lshl_b32 s{S_C}, s{S_PJ}, 18")
    a(f"s_add_u32 s{S_B}, s{S_B}, s{S_C}")
    a(f"s_add_u32 s38, s38, s{S_B}")
    a("s_addc_u32 s39, s39, 0")
    a(f"s_add_u32 s40, s40, s{S_B}")
    a("s_addc_u32 s41, s41, 0")
    a(f"s_sub_u32 s{S_C}, 0x100000, s{S_C}")
    a(f"s_mov_b32 s{S_K}, s38")
    a(f"s_mov_b32 s{S_K+1}, s39")
    a(f"s_mov_b32 s{S_K+2}, s{S_C}")
    a(f"s_mov_b32 s{S_K+3}, 0x20000")
    a(f"s_cmp_eq_u32 s{S_QH}, 0")
    a(f"s_cselect_b32 s{S_LD}, s38, s40")
    a(f"s_cselect_b32 s{S_LD+1}, s39, s41")
    a(f"s_mov_b32 s{S_LD+2}, {'0' if kv0 else 's'+str(S_C)}")
    a(f"s_mov_b32 s{S_LD+3}, 0x20000")
    if xf:
        a(f"s_add_u32 s36, s44, {4*NQB + 2*4096*640*2}")
        a("s_addc_u32 s37, s45, 0")
        a(f"s_cmp_eq_u32 s{S_QH}, 0")
    a(f"s_cselect_b32 s{S_QP}, s42, s36")
    a(f"s_cselect_b32 s{S_QP+1}, s43, s37")
    a(f"s_mov_b32 s{S_A}, {0 if now else 640*4096*2}")
    a(f"s_mov_b32 s{S_B}, {0 if nox else (2*3584*640*2 if xf else 3584*640*2)}")
    a(f"s_cselect_b32 s{S_QP+2}, s{S_A}, s{S_B}")
    a(f"s_mov_b32 s{S_QP+3}, 0x20000")
    a(f"s_mov_b32 s{S_A}, {32*8192}")
    a(f"s_mov_b32 s{S_B}, {7168 if (fakex or xf) else 64}")
    a(f"s_cselect_b32 s{S_QSTEP}, s{S_A}, s{S_B}")
    a(f"s_cselect_b32 s{S_QRND}, 512, 0")
    a(f"s_mov_b32 s{S_A}, 1056")
    a(f"s_mov_b32 s{S_B}, 1024")
    a(f"s_cselect_b32 s{S_MSTEP}, s{S_A}, s{S_B}")
    for i in range(8):
        a(f"s_mov_b32 s{S_A}, {((i&3)+8*(i>>2))*8192}")
        a(f"s_mov_b32 s{S_B}, {(1024*i if (fakex or xf) else 20480*i) if i < 7 else 0x40000000}")
        a(f"s_cselect_b32 s{S_TAB+i}, s{S_A}, s{S_B}")
    a(f"s_and_b32 s{S_A}, s2, 7")
    a(f"s_lshl_b32 s{S_A}, s{S_A}, 2")
    a(f"s_add_u32 s{S_A}, s{S_A}, s{S_PJ}")
    a(f"s_lshl_b32 s{S_A}, s{S_A}, 8")
    a(f"s_bfe_u32 s{S_B}, s2, {0x50003 if xf else 0x40003}")
    a(f"s_lshl_b32 s{S_B}, s{S_B}, 1")
    a(f"s_add_u32 s{S_B}, s{S_B}, s{S_PJ}")
    a(f"s_mul_i32 s{S_B}, s{S_B}, {112*1280}")
    a(f"s_cmp_eq_u32 s{S_QH}, 0")
    a(f"s_cselect_b32 s55, s{S_A}, s{S_B}")
    a(f"s_add_u32 s{S_W}, s44, {wsbase}")
    a(f"s_addc_u32 s{S_W+1}, s45, 0")
    a(f"s_mov_b32 s{S_W+2}, {WS_BYTES}")
    a(f"s_mov_b32 s{S_W+3}, 0x20000")
    a(f"s_lshl_b32 s{S_A}, s2, 2")
    a(f"s_add_u32 s{S_A}, s{S_A}, s{S_PJ}")
    a(f"s_mul_i32 s{S_OOFF}, s{S_A}, {PAIRB}")
    a(f"s_mul_i32 s{S_A}, s{S_QH}, {7*4096}")
    a(f"s_add_u32 s{S_OOFF}, s{S_OOFF}, s{S_A}")
    a(f"s_add_u32 s{S_OOFF}, s{S_OOFF}, {WS_O}")
    a(f"s_mov_b32 s{S_NOFB}, -1")
    a("s_mov_b32 s60, s42"); a("s_mov_b32 s61, s43"); a(f"s_mov_b32 s62, {640*4096*2}"); a("s_mov_b32 s63, 0x20000")
    a(f"s_mov_b32 s{S_T0}, 0")
    a(f"s_mov_b32 s{S_MP}, 0")
    a(f"s_mov_b32 s{S_AS}, 0")
    a(f"s_mov_b32 s{S_WO}, 0")
    a(f"s_lshr_b32 s26, s2, 3")
    a(f"s_lshr_b32 s{S_A}, s2, {rsh}")
    a(f"s_add_u32 s26, s26, s{S_A}")
    a("s_and_b32 s26, s26, 3")
    a("s_mul_i32 s26, s26, 5")
    a(f"s_mul_i32 s83, s{S_QSTEP}, 20")
    a(f"s_and_b32 s{S_TY}, s2, {tymask}")
    a(f"s_min_u32 s{S_TY}, s{S_TY}, 1")
    if tyinv: a(f"s_xor_b32 s{S_TY}, s{S_TY}, 1"); a("s_nop 0")
    if tymode == 1:
        a("s_bfe_u32 s3, s2, 0x10005"); a("s_xor_b32 s3, s3, 1"); a(f"s_and_b32 s{S_TY}, s2, s3"); a("s_nop 0")
    if tymode == 2:
        a("s_bfe_u32 s3, s2, 0x10005"); a("s_xor_b32 s3, s3, 1"); a(f"s_and_b32 s{S_TY}, s2, 3"); a(f"s_min_u32 s{S_TY}, s{S_TY}, 1"); a(f"s_and_b32 s{S_TY}, s{S_TY}, s3")
    if tymode == 3:
        a("s_bfe_u32 s3, s2, 0x10005"); a("s_xor_b32 s3, s3, 1"); a(f"s_and_b32 s{S_TY}, s2, 3"); a(f"s_cmp_eq_u32 s{S_TY}, 0"); a(f"s_cselect_b32 s{S_TY}, 1, 0"); a(f"s_or_b32 s{S_TY}, s{S_TY}, s3")
    a(f"s_mov_b32 s{S_PRE}, s{S_TY}")
    a(f"s_mov_b32 s{S_THR}, 0x4e800000")
    import struct
    cs = struct.unpack("<I", struct.pack("<f", (128 ** -0.5) * 1.4426950408889634))[0]
    a(f"s_mov_b32 s{S_CS}, {cs:#x}")
    a(f"s_lshl_b32 s{S_A}, s{S_QH}, 1")
    a(f"s_add_u32 s{S_A}, s{S_A}, s{S_PJ}")
    a(f"s_mul_i32 s{S_LDB}, s{S_A}, {AREA}")
    if stamp:
        a("s_memtime s[64:65]")
        a("s_memrealtime s[66:67]")
        a("s_load_dwordx2 s[46:47], s[0:1], 88")
        a("s_waitcnt lgkmcnt(0)")
    G, N = V_T0, V_T1
    a(f"v_lshlrev_b32 v{V_LIN}, 4, v{V_LANE}")
    a(f"v_lshrrev_b32 v{G}, 4, v{V_LANE}")
    a(f"v_and_b32 v{N}, 15, v{V_LANE}")
    a(f"v_lshlrev_b32 v{V_T2}, 4, v{N}")
    a(f"v_lshl_add_u32 v{V_DMA}, v{G}, 11, v{V_T2}")
    a(f"v_bfe_u32 v{V_T3}, v{V_LANE}, 4, 1")
    a(f"v_lshl_add_u32 v{V_QD}, v{V_T3}, 15, v{V_T2}")
    a(f"v_bfe_u32 v{V_T3}, v{V_LANE}, 5, 1")
    a(f"v_lshl_add_u32 v{V_QD}, v{V_T3}, 17, v{V_QD}")
    a(f"v_mul_u32_u24 v{V_BA}, 1280, v{N}")
    a(f"v_lshl_add_u32 v{V_BA}, v{G}, 4, v{V_BA}")
    if fakex or xf: a(f"v_mov_b32 v{V_BA}, v{V_LIN}")
    if xq:
        a(f"v_lshrrev_b32 v{V_T3}, 4, v{V_LANE}")
        a(f"v_and_b32 v{V_BA}, 1, v{V_T3}")
        a(f"v_lshlrev_b32 v{V_BA}, 1, v{V_BA}")
        a(f"v_lshrrev_b32 v{V_T3}, 1, v{V_T3}")
        a(f"v_mul_u32_u24 v{V_T3}, 3, v{V_T3}")
        a(f"v_xor_b32 v{V_BA}, v{V_BA}, v{V_T3}")
        a(f"v_and_b32 v{V_T3}, 3, v{V_LANE}")
        a(f"v_xor_b32 v{V_BA}, v{V_BA}, v{V_T3}")
        a(f"v_lshlrev_b32 v{V_BA}, 4, v{V_BA}")
        a(f"v_lshrrev_b32 v{V_T3}, 2, v{V_LANE}")
        a(f"v_mul_u32_u24 v{V_T3}, 1280, v{V_T3}")
        a(f"v_add_u32 v{V_BA}, v{V_BA}, v{V_T3}")
    a(f"s_cmp_eq_u32 s{S_QH}, 0")
    a("s_cselect_b64 vcc, -1, 0")
    a("s_nop 1")
    a(f"v_cndmask_b32 v{V_QD}, v{V_BA}, v{V_QD}, vcc")
    a(f"s_add_u32 s{S_A}, s{S_QH}, 2")
    a(f"s_mul_i32 s{S_A}, s{S_A}, {AREA}")
    if xq:
        a(f"v_bfe_u32 v{V_T3}, v{V_LANE}, 2, 2")
        a(f"v_and_b32 v{V_BA}, 1, v{V_T3}")
        a(f"v_lshlrev_b32 v{V_BA}, 1, v{V_BA}")
        a(f"v_lshrrev_b32 v{V_T3}, 1, v{V_T3}")
        a(f"v_mul_u32_u24 v{V_T3}, 3, v{V_T3}")
        a(f"v_xor_b32 v{V_BA}, v{V_BA}, v{V_T3}")
        a(f"v_xor_b32 v{V_BA}, v{V_BA}, v{G}")
        a(f"v_lshlrev_b32 v{V_BA}, 4, v{V_BA}")
        a(f"v_lshl_add_u32 v{V_BA}, v{N}, 6, v{V_BA}")
        a(f"v_add_u32 v{V_BA}, s{S_A}, v{V_BA}")
    else:
        a(f"v_add_u32 v{V_BA}, s{S_A}, v{V_LIN}")
    a(f"v_bfe_u32 v{V_T3}, v{V_LANE}, 4, 1")
    a(f"v_lshl_add_u32 v{V_T2}, v{V_T3}, 9, v{V_T2}")
    a(f"v_bfe_u32 v{V_T3}, v{V_LANE}, 5, 1")
    a(f"v_lshl_add_u32 v{V_XA}, v{V_T3}, 8, v{V_T2}")
    a(f"v_and_b32 v{V_T2}, 7, v{N}")
    a(f"v_lshlrev_b32 v{V_KA}, 10, v{V_T2}")
    a(f"v_and_b32 v{V_T3}, 1, v{N}")
    a(f"v_lshl_add_u32 v{V_KA}, v{V_T3}, 4, v{V_KA}")
    a(f"v_bfe_u32 v{V_T3}, v{N}, 1, 2")
    a(f"v_lshl_add_u32 v{V_KA}, v{V_T3}, 6, v{V_KA}")
    a(f"v_lshrrev_b32 v{V_T3}, 3, v{N}")
    a(f"v_lshl_add_u32 v{V_KA}, v{V_T3}, 8, v{V_KA}")
    a(f"v_bfe_u32 v{V_T3}, v{V_LANE}, 4, 1")
    a(f"v_lshl_add_u32 v{V_KA}, v{V_T3}, 5, v{V_KA}")
    a(f"v_bfe_u32 v{V_T3}, v{V_LANE}, 5, 1")
    a(f"v_lshl_add_u32 v{V_KA}, v{V_T3}, 4, v{V_KA}")
    a(f"s_mul_i32 s{S_A}, s{S_PJ}, {AREA}")
    a(f"v_add_u32 v{V_KA}, s{S_A}, v{V_KA}")
    a(f"v_bfe_u32 v{N}, v{V_LANE}, 2, 2")
    a(f"v_bfe_u32 v{V_T3}, v{V_LANE}, 4, 1")
    a(f"v_lshl_add_u32 v{V_T2}, v{V_T3}, 2, v{N}")
    a(f"v_mul_u32_u24 v{V_T2}, 1056, v{V_T2}")
    a(f"v_bfe_u32 v{V_T3}, v{V_LANE}, 5, 1")
    a(f"v_lshl_add_u32 v{V_T2}, v{V_T3}, 9, v{V_T2}")
    a(f"v_and_b32 v{V_T3}, 3, v{V_LANE}")
    a(f"v_lshl_add_u32 v{V_T2}, v{V_T3}, 3, v{V_T2}")
    a(f"v_add_u32 v{V_WA}, s{S_A}, v{V_T2}")
    a(f"v_lshl_add_u32 v{N}, v{G}, 2, v{N}")
    a(f"v_and_b32 v{V_T2}, 7, v{N}")
    a(f"v_mul_u32_u24 v{V_T2}, 1056, v{V_T2}")
    a(f"v_lshrrev_b32 v{V_T3}, 3, v{N}")
    a(f"v_lshl_add_u32 v{V_T2}, v{V_T3}, 8, v{V_T2}")
    a(f"v_and_b32 v{V_T3}, 3, v{V_LANE}")
    a(f"v_lshl_add_u32 v{V_T2}, v{V_T3}, 3, v{V_T2}")
    a(f"s_add_u32 s{S_A}, s{S_A}, {2*AREA}")
    a(f"v_add_u32 v{V_VA}, s{S_A}, v{V_T2}")
    for i in range(7):
        a(f"v_mov_b32 v{V_L+2*i}, 0xff800000")
    a(f"v_mov_b32 v{V_T0}, 0x3f803f80")
    for i in range(4): a(f"v_accvgpr_write_b32 a{A_ONE+i}, v{V_T0}")
    a(f"v_and_b32 v{V_T0}, 3, v{V_LANE}")
    a(f"v_lshlrev_b32 v{V_T0}, 2, v{V_T0}")
    a(f"v_add_u32 v{V_T0}, {LDS_FLAG}, v{V_T0}")
    a(f"v_mov_b32 v{V_T1}, 0")
    a(f"ds_write_b32 v{V_T0}, v{V_T1}")
    a(f"s_cmp_eq_u32 s{S_QH}, 0")
    a(f"s_mov_b32 s{S_A}, {kpad(1)-kpad(0)-256}")
    a(f"s_mov_b32 s{S_B}, 800")
    a(f"s_cselect_b32 s96, s{S_A}, s{S_B}")
    a(f"s_mov_b32 s{S_A}, {kpad(2)-kpad(1)-256}")
    a(f"s_cselect_b32 s97, s{S_A}, s{S_B}")

    a(f"v_lshrrev_b32 v{V_T0}, 1, v{V_LANE}")
    a(f"v_lshlrev_b32 v{V_T0}, 13, v{V_T0}")
    a(f"v_and_b32 v{V_T1}, 1, v{V_LANE}")
    a(f"v_lshl_add_u32 v{V_T0}, v{V_T1}, 7, v{V_T0}")
    a(f"v_lshlrev_b32 v{V_T1}, 7, v{V_LANE}")
    a(f"s_bfe_u32 s{S_A}, s2, 0x20003")
    a(f"s_lshl_b32 s{S_A}, s{S_A}, 18")
    a(f"s_and_b32 s{S_B}, s2, 7")
    a(f"s_mul_i32 s{S_B}, s{S_B}, 17920")
    a(f"s_cmp_eq_u32 s{S_QH}, 0")
    a("s_cselect_b64 vcc, -1, 0")
    a(f"s_cselect_b32 s100, s{S_A}, s{S_B}")
    a(f"s_add_u32 s100, s100, s55")
    a(f"s_cmp_eq_u32 s{S_QH}, 0")
    a(f"s_mov_b32 s{S_A}, {4*32*8192}")
    a(f"s_mov_b32 s{S_B}, 8192")
    a(f"s_cselect_b32 s99, s{S_A}, s{S_B}")
    a(f"v_cndmask_b32 v{V_LIN}, v{V_T1}, v{V_T0}, vcc")
    tstate = {"t": 0}
    def touch_one():
        if not touch: return
        a(f"buffer_load_dword v0, v{V_LIN}, s[{S_QP}:{S_QP+3}], s98 offen{' nt' if tnt else ''}")
        a(f"s_add_u32 s98, s98, s99")
        tstate["t"] += 1
    if xmem or dupst:
        a("s_add_u32 s72, s44, 0x8000000"); a("s_addc_u32 s73, s45, 0"); a("s_mov_b32 s74, 0x18000000"); a("s_mov_b32 s75, 0x20000")
        a("s_lshl_b32 s76, s2, 2"); a(f"s_add_u32 s76, s76, s{S_WAVE}"); a("s_mul_i32 s76, s76, 0x60000")
    dstate = {"i": 0, "kind": None}
    def dma_setup(slot, kind):
        if kind == "KV":
            a(f"s_lshr_b32 s{S_A}, s{S_DJ}, 5")
            a(f"s_lshl_b32 s{S_A}, s{S_A}, 18")
            a(f"s_lshl_b32 s{S_B}, s{S_DJ}, 13")
            a(f"s_add_u32 s{S_DOFF}, s{S_A}, s{S_B}")
            if kvl2: a(f"s_and_b32 s{S_DOFF}, s{S_DOFF}, 0x7fff")
            a(f"s_add_u32 m0, s{S_LDB}, {slot*TILE}")
            a(f"s_add_u32 s{S_DJ}, s{S_DJ}, 1")
        else:
            a(f"s_add_u32 m0, s{S_LDB}, {slot*TILE}")
            a(f"s_mov_b32 s{S_DOFF}, s{S_QS}")
            a(f"s_add_u32 s{S_QS}, s{S_QS}, s{S_QSTEP}")
            if rot:
                a("s_add_u32 s82, s82, 1")
                a("s_cmp_eq_u32 s82, 20")
                a(f"s_cselect_b32 s{S_B}, s83, 0")
                a(f"s_sub_u32 s{S_QS}, s{S_QS}, s{S_B}")
        dstate["i"] = 0; dstate["kind"] = kind
    def dma_one(pad=False):
        i = dstate["i"]
        if dstate["kind"] == "KV":
            if pad: a("s_nop 0")
            if not noload:
                a(f"buffer_load_dwordx4 v{V_DMA}, s[{S_LD}:{S_LD+3}], s{S_DOFF} offen offset:{256*i}{NT} lds")
            if i < 7: a(f"s_add_u32 m0, m0, s{96+(i&1)}")
        else:
            a(f"s_add_u32 s{S_A}, s{S_DOFF}, s{S_TAB+i}")
            if not qpnl: a(f"buffer_load_dwordx4 v{V_QD}, s[{S_QP}:{S_QP+3}], s{S_A} offen{' nt' if qnt else ''} lds")
            if i < 7: a(f"s_add_u32 m0, m0, s{S_MSTEP}")
        dstate["i"] = i + 1
    def qs_init(rnd_sgpr):
        a(f"s_mul_i32 s{S_QS}, s{rnd_sgpr}, s{S_QRND}")
        a(f"s_mov_b32 s101, s{rnd_sgpr}")
        a(f"s_add_u32 s{S_QS}, s{S_QS}, s55")
        a(f"s_cmp_ge_u32 s{rnd_sgpr}, 2")
        a(f"s_cselect_b32 s{S_A}, 0x40000000, 0")
        a(f"s_add_u32 s{S_QS}, s{S_QS}, s{S_A}")
        if rot:
            a("s_mov_b32 s82, s26")
            a(f"s_mul_i32 s{S_A}, s26, s{S_QSTEP}")
            a(f"s_add_u32 s{S_QS}, s{S_QS}, s{S_A}")

    def touch_init(rnd_sgpr):
        a(f"s_mul_i32 s98, s{rnd_sgpr}, s{S_QRND}")
        a(f"s_add_u32 s98, s98, s100")
        a(f"s_cmp_ge_u32 s{rnd_sgpr}, 2")
        a(f"s_cselect_b32 s{S_A}, 0x40000000, 0")
        a(f"s_add_u32 s98, s98, s{S_A}")
        tstate["t"] = 0
    def kread(f, slot):
        kt, s = f >> 2, f & 3
        a.lds(f"ds_read_b128 {vr(V_KF+4*f,4)}, v{V_KA} offset:{slot*TILE+kt*512+s*64}", "K")
    def vread(l, slot):
        for v in range(2):
            a.lds(f"ds_read_b64_tr_b16 {vr(V_VF+4*l+2*v,2)}, v{V_VA} offset:{slot*TILE+v*512+l*32}", "V")
    def wread(l, slot):
        for v in range(2):
            a.lds(f"ds_read_b64_tr_b16 {vr(V_VF+4*l+2*v,2)}, v{V_WA} offset:{slot*TILE+v*256+l*32}", "W")
    def bbuf(buf, qt): return (V_KF if buf == 0 else V_CI) + 4 * qt
    def bread(buf, qt, slot):
        a.lds(f"ds_read_b128 {vr(bbuf(buf,qt),4)}, v{V_BA} offset:{slot*TILE+qt*1024}", "B")
    def oreg(l, qt):
        return vr(V_OK + 28 * l + 4 * qt, 4) if l < 4 else ar(A_OS + 28 * (l - 4) + 4 * qt, 4)

    def barrier(dyn=False, vn=16):
        if dyn:
            n = len(a.lines)
            a(f"s_cmp_eq_u32 s{S_AS}, 0")
            a(f"s_cbranch_scc1 L_bw1_{n}")
            a(f"s_sub_u32 s{S_AS}, s{S_AS}, 1")
            a("s_waitcnt vmcnt(44) lgkmcnt(0)")
            a(f"s_branch L_bw2_{n}")
            a.label(f"L_bw1_{n}")
            a(f"s_waitcnt vmcnt({vn}) lgkmcnt(0)")
            a.label(f"L_bw2_{n}")
        else:
            a(f"s_waitcnt vmcnt({vn}) lgkmcnt(0)")
        a.lds_q = []
        a("s_barrier")

    def cap(fn):
        n0 = len(a.lines); q0 = list(a.lds_q)
        fn()
        ls = a.lines[n0:]; del a.lines[n0:]; a.lds_q = q0
        return ls
    def is_scalar(ln):
        return ln.strip().startswith("s_")
    class Gaps:
        def __init__(self, n):
            self.n = n; self.S = [[] for _ in range(n)]; self.V = [[] for _ in range(n)]; self.c = [0] * n
        def putS(self, ln, lo, hi=None):
            for g in range(lo, self.n):
                if len(self.S[g]) == 0:
                    self.S[g].append(ln); return g
            self.S[self.n - 1].append(ln); return self.n - 1
        def putV(self, ln, lo, cost=1, cap_=2):
            for g in range(lo, self.n):
                if self.c[g] + cost <= cap_:
                    self.V[g].append(ln); self.c[g] += cost; return g
            self.V[self.n - 1].append(ln); self.c[self.n - 1] += cost; return self.n - 1
        def atV(self, ln, g, cost=1):
            self.V[g].append(ln); self.c[g] += cost
        def atS(self, ln, g):
            self.S[g].append(ln)
    def qp_stage2(sm, first, dma, last, chk, after_store, vn, nok):
        buf = sm & 1; nslot = (sm + 1) & 3
        BAR = qbar
        G = Gaps(56)
        su = cap(lambda: dma_setup(sm, dma))
        g = BAR - 1
        g = 0
        for ln in su:
            g = G.putS(ln, g) + 1
        prev = g
        for i in range(8):
            ls = cap(lambda: dma_one(False))
            tg = max(qd0 + qdstep * i, prev)
            pre_ = [l for l in ls if is_scalar(l) and "m0" not in l]
            ld = [l for l in ls if not is_scalar(l)]
            post = [l for l in ls if is_scalar(l) and "m0" in l]
            for l in pre_: tg = G.putS(l, tg)
            for l in ld: G.atV(l, tg)
            prev = tg + 1
            for l in post: prev = G.putS(l, tg + 1) + 1
        dstate["i"] = 8
        if qnrd: pass
        elif not last:
            lo = BAR - 1
            for ln in cap(lambda: wread(0, nslot)): lo = G.putV(ln, lo, cap_=1)
            for qt in range(7):
                for ln in cap(lambda: bread(buf ^ 1, qt, nslot)): lo = G.putV(ln, lo, cap_=1)
            for l in range(1, 8):
                lo = max(lo, min(7 * (l + 1) - 1, 55))
                for ln in cap(lambda: wread(l, nslot)): lo = G.putV(ln, lo, cap_=(1 if l < 7 else 2))
        elif not nok:
            lo = BAR - 1
            for f in range(8):
                for ln in cap(lambda: kread(f, nslot)): lo = G.putV(ln, lo, cap_=1)
        a("s_waitcnt lgkmcnt(14)")
        j = 0
        for l in range(8):
            for qt in range(7):
                c = "0" if first else oreg(l, qt)
                if qt == 0 and l > 0 and j < BAR: a(f"s_waitcnt lgkmcnt({14-2*l})")
                a(f"{MFMA} {oreg(l, qt)}, {vr(V_VF+4*l,4)}, {vr(bbuf(buf,qt),4)}, {c}")
                for ln in G.S[j]: a.lines.append(ln)
                if j == BAR - 1:
                    if not qnbar: barrier(after_store, 16)
                    if chk: flagcheck()
                for ln in G.V[j]: a.lines.append(ln)
                j += 1
    def qp_stage(sm, first=False, dma="QP", last=False, chk=False, after_store=False, kt_=False, vn=16, nok=False, role=None, ntouch=0):
        buf = sm & 1; nslot = (sm + 1) & 3
        if qps:
            return qp_stage2(sm, first, dma, last, chk, after_store, vn, nok)
        a("s_waitcnt lgkmcnt(14)")
        fq = []
        def cap(fn):
            n0 = len(a.lines); q0 = len(a.lds_q)
            fn()
            ls = a.lines[n0:]; del a.lines[n0:]; del a.lds_q[q0:]
            return ls
        BAR = 7
        if role != "T":
            for ln in cap(lambda: dma_setup(sm, dma)): fq.append((BAR, ln))
        if dma == "QP" and roll:
            fq.append((BAR, f"    s_lshl2_add_u32 s{S_B}, s{S_QSTEP}, s{S_DOFF}"))
            fq.append((BAR, f"    buffer_load_dword v0, v{V_T0}, s[{S_QP}:{S_QP+3}], s{S_B} offen{' nt' if tnt else ''}"))
        if kvt and kt_:
            fq.append((BAR, f"    buffer_load_dword v0, v{V_T3}, s[{S_LD}:{S_LD+3}], s101 offen{' nt' if kvtnt else ''}"))
            fq.append((BAR, f"    s_add_u32 s101, s101, 8192"))
        if not last:
            for ln in cap(lambda: wread(0, nslot)): fq.append((BAR, ln))
            for qt in range(7):
                for ln in cap(lambda: bread(buf ^ 1, qt, nslot)): fq.append((BAR, ln))
        elif not nok:
            for f in range(8):
                for ln in cap(lambda: kread(f, nslot)): fq.append((BAR, ln))
        for l in range(1, 8):
            if not last:
                for ln in cap(lambda: wread(l, nslot)): fq.append((7 * (l + 1), ln))
            if role == "T":
                if l == 1:
                    for _ in range(ntouch):
                        fq.append((BAR, f"    buffer_load_dword v0, v{V_T0}, s[60:63], s98 offen"))
                        fq.append((BAR, f"    s_add_u32 s98, s98, {32*8192}"))
                        fq.append((BAR, f"    buffer_load_dword v0, v{V_T1}, s[{S_QP}:{S_QP+3}], s99 offen"))
                        fq.append((BAR, f"    s_add_u32 s99, s99, 64"))
                continue
            for ln in cap(lambda: dma_one(True)): fq.append((BAR, ln))
            if role == "X":
                if l == 7:
                    fq.append((BAR, f"    s_add_u32 m0, s{S_LDB}, {AREA+sm*TILE}"))
                    fq.append((BAR, f"    s_add_u32 s{S_DOFF}, s{S_DOFF}, {112*1280}"))
                    for i in range(7):
                        fq.append((BAR, f"    s_add_u32 s{S_A}, s{S_DOFF}, s{S_TAB+i}"))
                        fq.append((BAR, f"    buffer_load_dwordx4 v{V_QD}, s[{S_QP}:{S_QP+3}], s{S_A} offen{' nt' if qnt else ''} lds"))
                        if i < 6: fq.append((BAR, f"    s_add_u32 m0, m0, 1024"))
            elif l == 7:
                for ln in cap(lambda: dma_one(True)): fq.append((BAR, ln))
        j = 0
        for l in range(8):
            for qt in range(7):
                c = "0" if first else oreg(l, qt)
                a(f"{MFMA} {oreg(l, qt)}, {vr(V_VF+4*l,4)}, {vr(bbuf(buf,qt),4)}, {c}")
                j += 1
                if j == BAR:
                    barrier(after_store, vn if (roll or role) else 16)
                    if chk: flagcheck()
                    if trace:
                        a("s_memtime s[78:79]")
                        a("s_waitcnt lgkmcnt(0)")
                        a(f"v_cmp_eq_u32 vcc, s77, v{V_LANE}")
                        a(f"v_mov_b32 v{V_T2}, s78")
                        a("s_nop 1")
                        a(f"v_cndmask_b32 v{V_T3}, v{V_T3}, v{V_T2}, vcc")
                        a("s_add_u32 s77, s77, 1")
                k = 0; idx = 0
                rem_gaps = 56 - j + 1
                quota = 1 if len(fq) <= rem_gaps else 2
                while k < quota and idx < len(fq):
                    if fq[idx][0] <= j and (idx == 0 or "ds_read" in fq[idx][1] or all("ds_read" in x[1] for x in fq[:idx])):
                        a.lines.append(fq[idx][1]); del fq[idx]; k += 1
                    else:
                        idx += 1
        for _, ln in fq: a.lines.append(ln)
        assert role in ("X", "T") or dstate["i"] == 8

    def sm_ops(par, i, first):
        S = V_S + 8 * par; P = V_P + 4 * par; L = V_L + 2 * i
        ops = []
        if first:
            T0, T1 = V_T0, V_T1
            ops += [f"v_max3_f32 v{T0}, v{S}, v{S+1}, v{L}", f"v_max3_f32 v{T1}, v{S+2}, v{S+3}, v{S+4}",
                    f"v_max3_f32 v{T0}, v{S+5}, v{S+6}, v{T0}", f"v_max3_f32 v{T0}, v{S+7}, v{T0}, v{T1}",
                    f"v_mov_b32 v{T1}, v{T0}", "s_nop 1", f"v_permlane16_swap_b32 v{T0}, v{T1}", "s_nop 1", f"v_max_f32 v{T0}, v{T0}, v{T1}",
                    f"v_mov_b32 v{T1}, v{T0}", "s_nop 1", f"v_permlane32_swap_b32 v{T0}, v{T1}", "s_nop 1", f"v_max_f32 v{T0}, v{T0}, v{T1}",
                    f"v_mov_b32 v{L}, 0", f"v_mov_b32 v{L+1}, 0"]
            ops += [f"v_sub_f32 v{S+r}, v{S+r}, v{T0}" for r in range(8)]
            ops += [f"v_sub_f32 v{V_CI+4*i+r}, 0, v{T0}" for r in range(4)]
        e = lambda r: ops.append(f"v_exp_f32 v{S+r}, v{S+r}")
        e(0); e(1)
        for r in range(0, 8, 2):
            if r + 2 < 8: e(r + 2); e(r + 3)
            if not ones:
                ops.append(f"v_add_f32 v{L}, v{L}, v{S+r}")
                ops.append(f"v_add_f32 v{L+1}, v{L+1}, v{S+r+1}")
            ops.append(f"v_cvt_pk_bf16_f32 v{P+r//2}, v{S+r}, v{S+r+1}")
        return ops

    def qk_items(qt, par, czero, kr):
        it = []
        for f in range(8):
            kt, s = f >> 2, f & 3
            D = vr(V_S + 8 * par + 4 * kt, 4)
            c = ("0" if czero else vr(V_CI + 4 * qt, 4)) if s == 0 else D
            it.append(("K" if f == 0 else None, f"{MFMA} {D}, {vr(V_KF+4*f,4)}, {ar(A_Q+16*qt+4*s,4)}, {c}",
                       (lambda f=f: kread(f, kr)) if kr is not None else None))
        return it
    def pv_items(qt, par, czero, vrd):
        it = []
        for l in range(8):
            c = "0" if czero else oreg(l, qt)
            it.append(("V" if l == 0 else None, f"{MFMA} {oreg(l, qt)}, {vr(V_VF+4*l,4)}, {vr(V_P+4*par,4)}, {c}",
                       (lambda l=l: vread(l, vrd)) if vrd is not None else None))
        for _ in range(xmfma):
            D = ar(A_LS + 4 * qt, 4)
            it.append((None, f"{MFMA} {D}, {vr(V_VF,4)}, {vr(V_P+4*par,4)}, {D}", None))
        if ones:
            D = ar(A_LS + 4 * qt, 4)
            it.append((None, f"{MFMA} {D}, {ar(A_ONE,4)}, {vr(V_P+4*par,4)}, {'0' if czero else D}", None))
        return it

    def capture(fn):
        n0 = len(a.lines)
        fn()
        ls = a.lines[n0:]; del a.lines[n0:]
        return ls
    def emit(items, va, fill=None, nfill=0):
        cost = lambda op: 2 if "v_exp" in op else 1
        tot = sum(cost(o) for o in va); acc = 0; k = 0; ng = len(items)
        pos = [int((i + 0.5) * ng / max(nfill, 1)) for i in range(nfill)]
        for j, (need, m, post) in enumerate(items):
            if m:
                if need: a.lds_wait({need})
                a(m)
            if post: post()
            for _ in range(pos.count(j)):
                if fill: a.lines.append(fill.pop(0))
            while k < len(va) and acc + cost(va[k]) <= tot * (j + 1) / ng + 0.01:
                a(va[k]); acc += cost(va[k]); k += 1
        assert k == len(va)

    state = {"n": 0}
    def dma_lines(slot, kind, pad=False):
        def f():
            dma_setup(slot, kind)
            for _ in range(8): dma_one(pad)
            if xmem and kind == "KV":
                a(f"s_mul_i32 s{S_A}, s{S_WAVE}, 7168")
                a(f"s_add_u32 m0, s{S_A}, {4*AREA+5120}")
                a(f"s_add_u32 s{S_A}, s{S_DOFF}, s76")
                for i in range(xmem):
                    a(f"buffer_load_dwordx4 v{V_DMA}, s[72:75], s{S_A} offen offset:{256*i} nt lds")
        return capture(f)
    def step(jm, first=False, last=False, dma="KV", nt_=0, tr_=False, dyn=False):
        fill = [] if (first or early) else dma_lines((jm + 3) & 3, dma)
        nf = (len(fill) + 3) // 4
        for i in range(7):
            if strace and tr_:
                pr = [36, 38, 40, 42, 56, 58, 60, 62]
                a(f"s_memtime s[{pr[i]}:{pr[i]+1}]")
            if i in (1, 2, 3)[:nt_]: touch_one()
            n = state["n"]; par = n & 1
            items = []
            nfill = nf if 1 <= i <= 4 else 0
            if i == 5:
                assert not fill
                barrier(dyn)
                if first: flagcheck()
                if last or early:
                    fill = dma_lines(jm, dma, True if last else False); nf = (len(fill) + 1) // 2
            if (last or early) and i >= 5: nfill = nf
            if i < 6:
                items += qk_items(i + 1, par ^ 1, first, ((jm + 1) & 3) if (i == 5 and (not last or dma == "KV")) else None)
            elif not last:
                items += qk_items(0, par ^ 1, False, None)
            else:
                if dma == "KV": qreload()
                a("s_nop 1")
            if i > 0:
                items += pv_items(i - 1, par ^ 1, first, None)
            elif not first:
                items += pv_items(6, par ^ 1, False, jm)
            else:
                items += [(None, None, (lambda l=l: vread(l, jm))) for l in range(8)]
            emit(items, sm_ops(par, i, first), fill, nfill)
            state["n"] = n + 1
        assert not fill

    def qstash_off():
        a(f"s_lshl_b32 s{S_C}, s2, 2")
        a(f"s_add_u32 s{S_C}, s{S_C}, s{S_WAVE}")
        a(f"s_mul_i32 s{S_C}, s{S_C}, 28672")
        a(f"v_lshlrev_b32 v{V_T2}, 4, v{V_LANE}")
    def qreload():
        qstash_off()
        for i in range(7):
            for s_ in range(4):
                a(f"buffer_load_dwordx4 {ar(A_Q+16*i+4*s_,4)}, v{V_T2}, s[{S_W}:{S_W+3}], s{S_C} offen offset:{1024*s_}")
            if i < 6: a(f"s_add_u32 s{S_C}, s{S_C}, 4096")

    def flagcheck():
        lab = f"L_at_nofb_{len(a.lines)}"
        a(f"s_cmp_le_u32 s{S_T}, s{S_T0}")
        a(f"s_cbranch_scc1 {lab}")
        a(f"s_sub_u32 s{S_A}, s{S_T}, 1")
        a(f"s_cmp_eq_u32 s{S_A}, s{S_NOFB}")
        a(f"s_cbranch_scc1 {lab}")
        a(f"s_lshl_b32 s{S_B}, s{S_A}, 2")
        a(f"s_add_u32 s{S_B}, s{S_B}, {LDS_FLAG}")
        a(f"v_mov_b32 v{V_T2}, s{S_B}")
        a(f"ds_read_b32 v{V_T2}, v{V_T2}")
        a("s_waitcnt lgkmcnt(0)")
        a(f"v_readfirstlane_b32 s{S_B}, v{V_T2}")
        a("s_nop 3")
        a(f"s_cmp_lg_u32 s{S_B}, 0")
        a(f"s_cbranch_scc1 L_at_fallback")
        a.label(lab)

    def wo_issue(ps):
        D = V_S
        a(f"s_mov_b32 s{S_A}, 6554")
        for i in range(5):
            a(f"v_add_u32 v{V_T0}, {64*i}, v{V_LANE}")
            a(f"v_mul_u32_u24 v{V_T1}, s{S_A}, v{V_T0}")
            a(f"v_lshrrev_b32 v{V_T1}, 16, v{V_T1}")
            a(f"v_mul_u32_u24 v{V_T2}, 10, v{V_T1}")
            a(f"v_sub_u32 v{V_T2}, v{V_T0}, v{V_T2}")
            a(f"v_mul_u32_u24 v{V_T1}, 1280, v{V_T1}")
            a(f"v_lshl_add_u32 v{D+i}, v{V_T2}, 4, v{V_T1}")
        a(f"s_and_b32 s{S_A}, s2, 127")
        a(f"s_mul_i32 s{S_A}, s{S_A}, {32*1280}")
        a(f"s_mul_i32 s{S_B}, s{S_WAVE}, 320")
        a(f"s_add_u32 s{S_A}, s{S_A}, s{S_B}")
        a(f"s_add_u32 s{S_A}, s{S_A}, {160*ps}")
        a(f"s_mul_i32 s{S_D}, s{S_WAVE}, 7168")
        a(f"s_add_u32 s{S_D}, s{S_D}, {4*AREA}")
        for i in range(5):
            a(f"s_add_u32 m0, s{S_D}, {1024*i}")
            a("s_nop 0")
            a(f"buffer_load_dwordx4 v{D+i}, s[84:87], s{S_A} offen{' nt' if wont else ''} lds")
    def wo_finish(ps):
        a(f"v_lshrrev_b32 v{V_T0}, 4, v{V_LANE}")
        a(f"v_bfe_u32 v{V_T1}, v{V_LANE}, 2, 2")
        a(f"v_lshl_add_u32 v{V_T1}, v{V_T0}, 3, v{V_T1}")
        a(f"v_mul_u32_u24 v{V_T1}, 160, v{V_T1}")
        a(f"v_and_b32 v{V_T2}, 3, v{V_LANE}")
        a(f"v_lshl_add_u32 v{V_T1}, v{V_T2}, 3, v{V_T1}")
        a(f"s_mul_i32 s{S_D}, s{S_WAVE}, 7168")
        a(f"s_add_u32 s{S_D}, s{S_D}, {4*AREA}")
        a(f"v_add_u32 v{V_T1}, s{S_D}, v{V_T1}")
        a(f"v_lshlrev_b32 v{V_T2}, 4, v{V_LANE}")
        a(f"s_mul_i32 s{S_A}, s2, {40*1024}")
        a(f"s_mul_i32 s{S_B}, s{S_WAVE}, {10*1024}")
        a(f"s_add_u32 s{S_A}, s{S_A}, s{S_B}")
        a(f"s_add_u32 s{S_A}, s{S_A}, {WS_W+5120*ps}")
        R = V_VF
        for t in range(5):
            for v in range(2):
                a(f"ds_read_b64_tr_b16 {vr(R+4*t+2*v,2)}, v{V_T1} offset:{v*640+t*32}")
        a("s_waitcnt lgkmcnt(0)")
        for f in range(5):
            if f == 4: a(f"s_add_u32 s{S_A}, s{S_A}, 4096")
            a(f"buffer_store_dwordx4 {vr(R+4*f,4)}, v{V_T2}, s[{S_W}:{S_W+3}], s{S_A} offen offset:{1024*(f&3)}")
        a("s_nop 1")

    def rt_setup():
        a(f"s_bfe_u32 s{S_A}, s2, 0x20003")
        a(f"s_lshl_b32 s{S_A}, s{S_A}, 3")
        a(f"v_lshrrev_b32 v{V_T0}, 3, v{V_LANE}")
        a(f"v_add_u32 v{V_T0}, s{S_A}, v{V_T0}")
        a(f"v_lshlrev_b32 v{V_T0}, 13, v{V_T0}")
        a(f"v_and_b32 v{V_T2}, 7, v{V_LANE}")
        a(f"v_lshl_add_u32 v{V_T0}, v{V_T2}, 5, v{V_T0}")
        a(f"v_bfe_u32 v{V_T1}, v{V_LANE}, 1, 4")
        a(f"v_min_u32 v{V_T1}, 13, v{V_T1}")
        a(f"s_and_b32 s{S_A}, s2, 7")
        a(f"s_mul_i32 s{S_A}, s{S_A}, 14")
        a(f"v_add_u32 v{V_T1}, s{S_A}, v{V_T1}")
        a(f"v_mul_u32_u24 v{V_T1}, 1280, v{V_T1}")
        a(f"v_and_b32 v{V_T2}, 1, v{V_LANE}")
        a(f"v_lshl_add_u32 v{V_T1}, v{V_T2}, 5, v{V_T1}")
        a(f"s_cmp_eq_u32 s{S_QH}, 0")
        a("s_cselect_b64 vcc, -1, 0")
        a("s_nop 1")
        a(f"v_cndmask_b32 v{V_T0}, v{V_T1}, v{V_T0}, vcc")
    def dly(us, tag):
        a("s_memrealtime s[78:79]")
        a("s_waitcnt lgkmcnt(0)")
        a(f"s_add_u32 s77, s78, {us*100}")
        a.label(f"L_dl{tag}")
        a("s_sleep 4")
        a("s_memrealtime s[78:79]")
        a("s_waitcnt lgkmcnt(0)")
        a("s_sub_u32 s79, s78, s77")
        a("s_cmp_lt_i32 s79, 0")
        a(f"s_cbranch_scc1 L_dl{tag}")
    def st(k):
        if pst:
            a("s_memrealtime s[78:79]")
            a("s_memtime s[80:81]")
            a("s_waitcnt lgkmcnt(0)")
            a("s_mov_b32 m0, s77"); a("s_nop 0"); a("v_writelane_b32 v0, s78, m0")
            a("s_add_u32 m0, s77, 30"); a("s_nop 0"); a("v_writelane_b32 v0, s80, m0")
            a("s_add_u32 s77, s77, 1")
        if stamp:
            if st0:
                n = len(a.lines)
                a(f"s_cmp_ge_u32 s{S_T}, {1 if k < 3 else 2}")
                a(f"s_cbranch_scc1 L_st_{n}")
            a(f"s_memtime s[{72+2*k}:{73+2*k}]")
            if st0: a.label(f"L_st_{n}")
    if pst:
        a("s_memrealtime s[78:79]")
        a("s_memtime s[80:81]")
        a("s_waitcnt lgkmcnt(0)")
        a("v_mov_b32 v0, 0")
        a("v_writelane_b32 v0, s78, 0")
        a("v_writelane_b32 v0, s80, 30")
        a("s_mov_b32 s77, 1")
    if delay:
        a("s_bitcmp1_b32 s2, 0")
        a("s_cbranch_scc0 L_nodelay")
        a("s_memrealtime s[78:79]")
        a("s_waitcnt lgkmcnt(0)")
        a(f"s_add_u32 s77, s78, {delay*100}")
        a.label("L_dl")
        a("s_sleep 8")
        a("s_memrealtime s[78:79]")
        a("s_waitcnt lgkmcnt(0)")
        a("s_sub_u32 s79, s78, s77")
        a("s_cmp_lt_i32 s79, 0")
        a("s_cbranch_scc1 L_dl")
        a.label("L_nodelay")
    a.label("L_at_start")
    if trace:
        a("s_mov_b32 s77, 1")
        a(f"v_mov_b32 v{V_T3}, s64")
        a("s_memtime s[78:79]")
        a("s_waitcnt lgkmcnt(0)")
        a(f"v_cmp_eq_u32 vcc, s77, v{V_LANE}")
        a(f"v_mov_b32 v{V_T2}, s78")
        a("s_nop 1")
        a(f"v_cndmask_b32 v{V_T3}, v{V_T3}, v{V_T2}, vcc")
        a("s_add_u32 s77, s77, 1")
    a(f"s_mov_b32 s{S_T}, s{S_T0}")
    a(f"s_lshl_b32 s{S_DJ}, s{S_T0}, 5")
    a(f"s_add_u32 s{S_D}, s{S_T}, s{S_PRE}")
    qs_init(S_D)
    if roll:
        rt_setup()
        for sl in range(2):
            dma_setup(sl, "QP")
            for _ in range(8): dma_one(True)
        a(f"s_mov_b32 s{S_B}, s{S_QS}")
        for _ in range(6):
            a(f"buffer_load_dword v0, v{V_T0}, s[{S_QP}:{S_QP+3}], s{S_B} offen{' nt' if tnt else ''}")
            a(f"s_add_u32 s{S_B}, s{S_B}, s{S_QSTEP}")
        for sl in range(2, 4):
            dma_setup(sl, "QP")
            for _ in range(8): dma_one(True)
        a(f"s_waitcnt vmcnt(30) lgkmcnt(0)")
    else:
        for sl in range(4):
            dma_setup(sl, "QP")
            for _ in range(8): dma_one(True)
        if bulk0 and touch:
            touch_init(S_D)
            for _ in range(5): touch_one()
        if cpf and cpflate:
            for k in range(cpf // 16):
                a(f"s_mov_b32 s76, {k*16384}")
                a("buffer_load_dword v104, v105, s[72:75], s76 offen")
        a(f"s_waitcnt vmcnt({(29 if (bulk0 and touch) else 24) + (cpf // 16 if cpflate else 0)}) lgkmcnt(0)")
    a("s_barrier")
    a.label("L_at_round")
    st(0)
    if roll: rt_setup()
    for l in range(8): wread(l, 0)
    for qt in range(7): bread(0, qt, 0)
    a.lds_wait_all()
    def qp_body(role):
        sfx = role or ""
        vns = {None: (22, 17, 18, 18, 18), "W": (16, 16, 16, 16, 16), "X": (16, 22, 28, 28, 28), "T": (16, 20, 20, 63, 63)}[role]
        nts = (6, 4, 4, 2)
        qp_stage(0, first=True, chk=True, after_store=True, vn=vns[0], role=role, ntouch=nts[0])
        qp_stage(1, after_store=True, vn=vns[1], role=role, ntouch=nts[1])
        qp_stage(2, after_store=True, vn=vns[2], role=role, ntouch=nts[2])
        qp_stage(3, vn=vns[3], role=role, ntouch=nts[3])
        a(f"s_cmp_lg_u32 s{S_WO}, 0")
        a(f"s_cbranch_scc1 L_at_nowo0{sfx}")
        a(f"s_mov_b32 s{S_WO}, 1")
        wo_issue(0)
        if roll: rt_setup()
        a.label(f"L_at_nowo0{sfx}")
        a(f"s_mov_b32 s{S_CNT}, 0")
        a.label(f"L_at_qploop{sfx}")
        a.lds_q = []
        for sm in range(4): qp_stage(sm, vn=vns[4], role=role)
        a(f"s_add_u32 s{S_CNT}, s{S_CNT}, 1")
        a(f"s_cmp_lt_u32 s{S_CNT}, 3")
        a(f"s_cbranch_scc1 L_at_qploop{sfx}")
    if not roles:
        qp_body(None)
    else:
        a(f"s_cmp_eq_u32 s{S_WAVE}, 1")
        a("s_cbranch_scc1 L_at_qpX")
        a(f"s_cmp_eq_u32 s{S_WAVE}, 3")
        a("s_cbranch_scc1 L_at_qpT")
        qp_body("W")
        a("s_branch L_at_qpjoin")
        a.label("L_at_qpX")
        qp_body("X")
        a("s_branch L_at_qpjoin")
        a.label("L_at_qpT")
        a(f"s_bfe_u32 s{S_A}, s2, 0x20003")
        a(f"s_lshl_b32 s{S_A}, s{S_A}, 3")
        a(f"v_lshrrev_b32 v{V_T0}, 3, v{V_LANE}")
        a(f"v_add_u32 v{V_T0}, s{S_A}, v{V_T0}")
        a(f"v_lshlrev_b32 v{V_T0}, 13, v{V_T0}")
        a(f"v_and_b32 v{V_T1}, 7, v{V_LANE}")
        a(f"v_lshl_add_u32 v{V_T0}, v{V_T1}, 6, v{V_T0}")
        a(f"v_min_u32 v{V_T1}, 27, v{V_LANE}")
        a(f"s_and_b32 s{S_A}, s2, 7")
        a(f"s_mul_i32 s{S_B}, s{S_A}, 28")
        a(f"v_add_u32 v{V_T1}, s{S_B}, v{V_T1}")
        a(f"v_mul_u32_u24 v{V_T1}, 1280, v{V_T1}")
        a(f"s_lshl_b32 s{S_A}, s{S_A}, 10")
        a(f"s_lshl_b32 s{S_B}, s101, 9")
        a(f"s_add_u32 s98, s{S_A}, s{S_B}")
        a(f"s_add_u32 s98, s98, {4*32*8192}")
        a(f"s_bfe_u32 s{S_A}, s2, 0x40003")
        a(f"s_mul_i32 s99, s{S_A}, {224*1280}")
        a(f"s_add_u32 s99, s99, {4*64}")
        qp_body("T")
        a.label("L_at_qpjoin")
    a(f"s_cmp_lg_u32 s{S_PRE}, 0")
    a("s_cbranch_scc1 L_at_qptailB")
    for sm in range(4): qp_stage(sm, dma="KV", last=(sm == 3), vn=(18, 17, 16, 16)[sm])
    a("s_branch L_at_qpepi")
    a.label("L_at_qptailB")
    qs_init(S_T)
    a.lds_q = []
    for sm in range(4): qp_stage(sm, dma="QP", last=(sm == 3), vn=18, nok=True)
    a.label("L_at_qpepi")
    if qdelay: dly(qdelay, "q")
    st(1)
    if trace:
        a("s_cmp_lg_u32 s2, 5")
        a("s_cbranch_scc1 L_tr_skip")
        a(f"s_cmp_lg_u32 s{S_T}, 0")
        a("s_cbranch_scc1 L_tr_skip")
        a(f"s_cmp_lg_u32 s{S_WAVE}, 0")
        a("s_cbranch_scc1 L_tr_skip")
        a("s_mov_b32 s80, s46"); a("s_mov_b32 s81, s47"); a("s_mov_b32 s82, 256"); a("s_mov_b32 s83, 0x20000")
        a(f"v_lshlrev_b32 v{V_T2}, 2, v{V_LANE}")
        a(f"v_add_u32 v{V_T2}, 128, v{V_T2}")
        a(f"buffer_store_dword v{V_T3}, v{V_T2}, s[80:83], 0 offen")
        a.label("L_tr_skip")
    a(f"v_mov_b32 v{V_T2}, s{S_CS}")
    a(f"v_mov_b32 v{V_T3}, s{S_CS}")
    a("s_nop 6")
    TMP = V_S
    for T in range(4):
        if T < 2:
            base = lambda e, qt: V_OK + 28 * (2 * T + e) + 4 * qt
        else:
            base = lambda e, qt: V_OK + 28 * (2 * (T - 2) + e) + 4 * qt
            for e in range(2):
                for qt in range(7):
                    for r in range(4):
                        a(f"v_accvgpr_read_b32 v{base(e,qt)+r}, a{A_OS+28*(2*(T-2)+e)+4*qt+r}")
        for e in range(2):
            for qt in range(7):
                o = base(e, qt)
                for h in range(2):
                    a(f"v_pk_mul_f32 {vr(o+2*h,2)}, {vr(o+2*h,2)}, {vr(V_T2,2)}")
        pk = lambda qt: TMP + 28 * (T & 1) + 4 * qt
        for qt in range(7):
            oe = base(0, qt); oo = base(1, qt); p = pk(qt)
            a(f"v_cvt_pk_bf16_f32 v{p}, v{oe}, v{oe+1}")
            a(f"v_cvt_pk_bf16_f32 v{p+1}, v{oe+2}, v{oe+3}")
            a(f"v_cvt_pk_bf16_f32 v{p+2}, v{oo}, v{oo+1}")
            a(f"v_cvt_pk_bf16_f32 v{p+3}, v{oo+2}, v{oo+3}")
        a("s_nop 1")
        for qt in range(7):
            p = pk(qt)
            a(f"v_permlane16_swap_b32 v{p}, v{p+2}")
            a(f"v_permlane16_swap_b32 v{p+1}, v{p+3}")
        for qt in range(7):
            for r in range(4):
                a(f"v_accvgpr_write_b32 a{A_Q+16*qt+4*T+r}, v{pk(qt)+r}")
    a(f"s_cmp_eq_u32 s{S_PRE}, 0")
    a("s_cbranch_scc1 L_at_nostash")
    a(f"s_mov_b32 s{S_PRE}, 0")
    qstash_off()
    for i in range(7):
        for s_ in range(4):
            a(f"buffer_store_dwordx4 {ar(A_Q+16*i+4*s_,4)}, v{V_T2}, s[{S_W}:{S_W+3}], s{S_C} offen offset:{1024*s_}")
        if i < 6: a(f"s_add_u32 s{S_C}, s{S_C}, 4096")
    a(f"s_mov_b32 s{S_AS}, 3")
    a("s_branch L_at_round")
    a.label("L_at_nostash")
    a(f"s_cmp_lg_u32 s{S_MP}, 0")
    a("s_cbranch_scc1 L_at_maxpass")
    a.label("L_at_pre")
    a(f"s_cmp_lg_u32 s{S_WO}, 1")
    a("s_cbranch_scc1 L_at_nowo1")
    a(f"s_mov_b32 s{S_WO}, 2")
    wo_finish(0)
    wo_issue(1)
    a.label("L_at_nowo1")
    st(2)
    a.lds_q = ["K"]
    state["n"] = 0
    z = []
    for l in range(8):
        for r in range(4):
            z.append(f"v_mov_b32 v{V_OK+28*l+24+r}, 0" if l < 4 else f"v_accvgpr_write_b32 a{A_OS+28*(l-4)+24+r}, 0")
    if ones: z += [f"v_accvgpr_write_b32 a{A_LS+24+r}, 0" for r in range(4)]
    emit(qk_items(0, 0, True, None), z[:16])
    for o in z[16:]: a(o)
    step(0, first=True, dyn=True)
    a(f"s_mov_b32 s{S_CNT}, 0")
    if align:
        a.lines.append(".p2align 6")
        if align == 2: a("s_nop 0")
    a.label("L_at_loop")
    q0 = list(a.lds_q)
    for jm in (1, 2, 3, 0): step(jm, dyn=(jm in (1, 2)))
    assert q0 == a.lds_q, (q0, a.lds_q)
    if pstl:
        a("s_memrealtime s[78:79]")
        a("s_memtime s[80:81]")
        a("s_waitcnt lgkmcnt(0)")
        a("s_mov_b32 s76, m0")
        a("s_mov_b32 m0, s77"); a("s_nop 0"); a("v_writelane_b32 v0, s78, m0")
        a("s_add_u32 m0, s77, 30"); a("s_nop 0"); a("v_writelane_b32 v0, s80, m0")
        a("s_add_u32 s77, s77, 1")
        a("s_mov_b32 m0, s76")
    a(f"s_add_u32 s{S_CNT}, s{S_CNT}, 1")
    a(f"s_cmp_lt_u32 s{S_CNT}, 6")
    a("s_cbranch_scc1 L_at_loop")
    a(f"s_add_u32 s{S_T}, s{S_T}, 1")
    touch_init(S_T)
    step(1, nt_=3); step(2, nt_=2); step(3, tr_=True)
    if strace: a("s_memtime s[62:63]")
    qs_init(S_T)
    if not early: step(0)
    a(f"s_cmp_lg_u32 s{S_TY}, 0")
    a("s_cbranch_scc1 L_at_atailB")
    n0 = state["n"]; q0 = list(a.lds_q)
    if early: step(0, dma="QP")
    step(1, dma="QP"); step(2, dma="QP"); step(3, dma="QP", last=True)
    a("s_branch L_at_aepi")
    a.label("L_at_atailB")
    state["n"] = n0; a.lds_q = q0
    if early: step(0)
    step(1); step(2); step(3, last=True)
    a.label("L_at_aepi")
    if adelay: dly(adelay, "a")
    a.lds_q = ["V"]
    st(3)
    E = V_S
    red = [f"v_add_f32 v{V_L+2*i}, v{V_L+2*i}, v{V_L+2*i+1}" for i in range(7)]
    red += [f"v_mov_b32 v{E+i}, v{V_L+2*i}" for i in range(7)]
    red += [f"v_permlane16_swap_b32 v{V_L+2*i}, v{E+i}" for i in range(7)]
    red += [f"v_add_f32 v{V_L+2*i}, v{V_L+2*i}, v{E+i}" for i in range(7)]
    red += [f"v_mov_b32 v{E+i}, v{V_L+2*i}" for i in range(7)]
    red += [f"v_permlane32_swap_b32 v{V_L+2*i}, v{E+i}" for i in range(7)]
    red += [f"v_add_f32 v{V_L+2*i}, v{V_L+2*i}, v{E+i}" for i in range(7)]
    a("s_nop 1")
    if ones:
        emit(pv_items(6, 1, False, None), [])
        a("s_nop 7")
        for i in range(7): a(f"v_accvgpr_read_b32 v{V_L+2*i}, a{A_LS+4*i}")
    else:
        emit(pv_items(6, 1, False, None), red)
    for i in range(7): a(f"v_rcp_f32 v{V_CI+4*i}, v{V_L+2*i}")
    a(f"v_add_f32 v{E+2}, v{V_L}, v{V_L+2}")
    a(f"v_add_f32 v{E+3}, v{V_L+4}, v{V_L+6}")
    a(f"v_add_f32 v{E+4}, v{V_L+8}, v{V_L+10}")
    a(f"v_add_f32 v{E+2}, v{E+2}, v{V_L+12}")
    a(f"v_add_f32 v{E+3}, v{E+3}, v{E+4}")
    a(f"v_add_f32 v{E+2}, v{E+2}, v{E+3}")
    a(f"v_cmp_nge_f32 vcc, s{S_THR}, v{E+2}")
    for i in range(7): a(f"v_mov_b32 v{V_L+2*i}, 0xff800000")
    a("s_cmp_eq_u64 vcc, 0")
    a("s_cbranch_scc1 L_at_noflag")
    if nofb: a("s_branch L_at_noflag")
    a(f"s_lshl_b32 s{S_B}, s{S_T}, 2")
    a(f"s_add_u32 s{S_B}, s{S_B}, {LDS_FLAG-4}")
    a(f"v_mov_b32 v{E+2}, s{S_B}")
    a(f"v_mov_b32 v{E+3}, 1")
    a(f"ds_write_b32 v{E+2}, v{E+3}")
    a.label("L_at_noflag")
    a(f"s_mul_i32 s{S_D}, s{S_T}, {2*PAIRB}")
    a(f"s_add_u32 s{S_D}, s{S_D}, s{S_OOFF}")
    a(f"s_sub_u32 s{S_D}, s{S_D}, {2*PAIRB}")
    for T in range(4):
        if T < 2:
            base = lambda e, qt: V_OK + 28 * (2 * T + e) + 4 * qt
        else:
            base = lambda e, qt: V_OK + 28 * (2 * (T - 2) + e) + 4 * qt
            for e in range(2):
                for qt in range(7):
                    for r in range(4):
                        a(f"v_accvgpr_read_b32 v{base(e,qt)+r}, a{A_OS+28*(2*(T-2)+e)+4*qt+r}")
        for e in range(2):
            for qt in range(7):
                o = base(e, qt)
                for h in range(2):
                    a(f"v_pk_mul_f32 {vr(o+2*h,2)}, {vr(o+2*h,2)}, {vr(V_CI+4*qt,2)} op_sel_hi:[1,0]")
        pk = lambda qt: V_S + 28 * (T & 1) + 4 * qt
        for qt in range(7):
            oe = base(0, qt); oo = base(1, qt); p = pk(qt)
            a(f"v_cvt_pk_bf16_f32 v{p}, v{oe}, v{oe+1}")
            a(f"v_cvt_pk_bf16_f32 v{p+1}, v{oe+2}, v{oe+3}")
            a(f"v_cvt_pk_bf16_f32 v{p+2}, v{oo}, v{oo+1}")
            a(f"v_cvt_pk_bf16_f32 v{p+3}, v{oo+2}, v{oo+3}")
        a("s_nop 1")
        for qt in range(7):
            p = pk(qt)
            a(f"v_permlane16_swap_b32 v{p}, v{p+2}")
            a(f"v_permlane16_swap_b32 v{p+1}, v{p+3}")
        a(f"s_mov_b32 s{S_A}, s{S_D}")
        for qt in range(7):
            if not nost: a(f"buffer_store_dwordx4 {vr(pk(qt),4)}, v{V_XA}, s[{S_W}:{S_W+3}], s{S_A} offen offset:{1024*T}")
            if dupst:
                a(f"s_sub_u32 s{S_B}, s{S_A}, {WS_O - 30000000}")
                a(f"buffer_store_dwordx4 {vr(pk(qt),4)}, v{V_XA}, s[72:75], s{S_B} offen offset:{1024*T}")
            if qt < 6: a(f"s_add_u32 s{S_A}, s{S_A}, 4096")
    a("s_nop 1")
    a(f"s_cmp_lg_u32 s{S_WO}, 2")
    a("s_cbranch_scc1 L_at_nowo2")
    a(f"s_mov_b32 s{S_WO}, 3")
    wo_finish(1)
    a.label("L_at_nowo2")
    a(f"s_mov_b32 s{S_AS}, 3")
    st(4)
    a.lds_q = []
    a(f"s_cmp_ge_u32 s{S_T}, 2")
    a("s_cbranch_scc1 L_at_fin")
    a(f"s_cmp_eq_u32 s{S_TY}, 0")
    a("s_cbranch_scc1 L_at_round")
    a(f"s_waitcnt vmcnt({56 if dupst else 28})")
    a("s_branch L_at_pre")
    a.label("L_at_fin")
    a("s_waitcnt lgkmcnt(0)")
    a("s_barrier")
    flagcheck()
    if pst:
        a("s_memrealtime s[78:79]")
        a("s_memtime s[80:81]")
        a("s_waitcnt lgkmcnt(0)")
        a("s_mov_b32 m0, s77"); a("s_nop 0"); a("v_writelane_b32 v0, s78, m0")
        a("s_add_u32 m0, s77, 30"); a("s_nop 0"); a("v_writelane_b32 v0, s80, m0")
        a("s_getreg_b32 s62, hwreg(HW_REG_XCC_ID)")
        a("v_writelane_b32 v0, s62, 63")
        a(f"v_writelane_b32 v0, s{S_TY}, 62")
        a(f"s_cmp_lg_u32 s{S_WAVE}, 0")
        a("s_cbranch_scc1 L_at_end")
        a("s_lshl_b32 s62, s2, 8"); a("s_add_u32 s62, s62, 50000000")
        a(f"v_lshlrev_b32 v2, 2, v{V_LANE}")
        a(f"buffer_store_dword v0, v2, s[{S_W}:{S_W+3}], s62 offen")
    if stamp:
        a("s_memtime s[56:57]")
        a("s_memrealtime s[58:59]")
        a("s_waitcnt lgkmcnt(0)")
        if allst:
            a("v_mov_b32 v2, s66"); a("v_mov_b32 v3, s58")
            a("s_sub_u32 s62, s56, s64"); a("v_mov_b32 v4, s62")
            a("s_getreg_b32 s62, hwreg(HW_REG_XCC_ID)"); a("v_mov_b32 v5, s62")
            a("s_lshl_b32 s62, s2, 4"); a("s_add_u32 s62, s62, 50000000"); a("v_mov_b32 v6, s62")
            a(f"buffer_store_dwordx4 v[2:5], v6, s[{S_W}:{S_W+3}], 0 offen")
        a(f"s_cmp_lg_u32 s2, {stwg}")
        a("s_cbranch_scc1 L_at_end")
        a("s_sub_u32 s56, s56, s64")
        a("s_sub_u32 s58, s58, s66")
        a("s_mov_b32 s84, s46")
        a("s_mov_b32 s85, s47")
        a("s_mov_b32 s86, 256")
        a("s_mov_b32 s87, 0x20000")
        a("v_mov_b32 v2, s56")
        a("v_mov_b32 v3, s58")
        a(f"s_lshl_b32 s62, s{S_WAVE}, 3")
        a("v_mov_b32 v4, s62")
        a("buffer_store_dwordx2 v[2:3], v4, s[84:87], 0 offen")
        if strace:
            pr = [36, 38, 40, 42, 56, 58, 60, 62]
            for i in range(7):
                a(f"s_sub_u32 s78, s{pr[i+1]}, s{pr[i]}")
                a("v_mov_b32 v2, s78")
                a(f"v_mov_b32 v4, {160+4*i}")
                a("buffer_store_dword v2, v4, s[84:87], 0 offen")
        a("s_sub_u32 s62, s72, s64")
        a("v_mov_b32 v2, s62")
        a(f"v_mov_b32 v4, {DBO+4*5}")
        a("buffer_store_dword v2, v4, s[84:87], 0 offen")
        for k in range(1, 5):
            a(f"s_sub_u32 s62, s{72+2*k}, s{70+2*k}")
            a("v_mov_b32 v2, s62")
            a(f"v_mov_b32 v4, {DBO+4*k}")
            a("buffer_store_dword v2, v4, s[84:87], 0 offen")
    a("s_branch L_at_end")

    a.label("L_at_fallback")
    a(f"s_sub_u32 s{S_T0}, s{S_T}, 1")
    a(f"s_mov_b32 s{S_NOFB}, s{S_T0}")
    a(f"s_mov_b32 s{S_MP}, 1")
    a(f"s_mov_b32 s{S_TY}, 0")
    a(f"s_mov_b32 s{S_PRE}, 0")
    a(f"s_mov_b32 s{S_AS}, 0")
    for i in range(7): a(f"v_mov_b32 v{V_L+2*i}, 0xff800000")
    a("s_waitcnt vmcnt(0) lgkmcnt(0)")
    a("s_barrier")
    a("s_branch L_at_start")
    a.label("L_at_maxpass")
    a(f"s_mov_b32 s{S_MP}, 0")
    a("s_waitcnt lgkmcnt(0)")
    a(f"v_and_b32 v{V_T0}, 15, v{V_LANE}")
    a(f"v_lshlrev_b32 v{V_T0}, 8, v{V_T0}")
    a(f"v_bfe_u32 v{V_T1}, v{V_LANE}, 4, 1")
    a(f"v_lshl_add_u32 v{V_T0}, v{V_T1}, 5, v{V_T0}")
    a(f"v_bfe_u32 v{V_T1}, v{V_LANE}, 5, 1")
    a(f"v_lshl_add_u32 v{V_T2}, v{V_T1}, 4, v{V_T0}")
    a(f"v_add_u32 v{V_T3}, 4096, v{V_T2}")
    a(f"s_lshl_b32 s{S_B}, s{S_T}, 19")
    a(f"s_mov_b32 s{S_CNT}, 0")
    a.label("L_at_mp")
    for f in range(8):
        a(f"buffer_load_dwordx4 {vr(V_VF+4*f,4)}, v{V_T2 + (f>>2)}, s[{S_K}:{S_K+3}], s{S_B} offen offset:{64*(f&3)}")
    a("s_waitcnt vmcnt(0)")
    for i in range(7):
        for f in range(8):
            kt, s = f >> 2, f & 3
            D = vr(V_S + 4 * kt, 4)
            a(f"{MFMA} {D}, {vr(V_VF+4*f,4)}, {ar(A_Q+16*i+4*s,4)}, {'0' if s == 0 else D}")
        a("s_nop 9")
        for r in range(0, 8, 2):
            a(f"v_max3_f32 v{V_L+2*i}, v{V_S+r}, v{V_S+r+1}, v{V_L+2*i}")
        a("s_nop 3")
    a(f"s_add_u32 s{S_B}, s{S_B}, 8192")
    a(f"s_add_u32 s{S_CNT}, s{S_CNT}, 1")
    a(f"s_cmp_lt_u32 s{S_CNT}, 32")
    a("s_cbranch_scc1 L_at_mp")
    a("s_branch L_at_pre")
    a.label("L_at_end")
    a("s_endpgm")
    return a.text()

if __name__ == "__main__":
    import sys
    name = "fused_kernel"
    opts = dict(x.split("=") for x in sys.argv[2:])
    opts = {k: bool(int(v)) for k, v in opts.items()}
    body = gen_fused(name, **opts)
    out = f"; @launch kernel={name} grid=(256,1,1) block=(256,1,1) lds={LDS_BYTES}\n"
    out += '.amdgcn_target "amdgcn-amd-amdhsa--gfx950"\n.text\n' + kernel_header(name) + body
    out += '.section .rodata,"a"\n.p2align 6\n' + kernel_desc(name, 512, accum=256)
    open(sys.argv[1], "w").write(out)
```

```python
from gen_common import *
NQB = 3584 * 4096 * 2
WS_O = 2 * NQB
WS_W = 4 * NQB
WS_BYTES = 4 * NQB + 2 * 4096 * 640 * 2
PAIRB = 224 * 128 * 2
LDS_BYTES = 163840
BUF = 10240
MFMA = "v_mfma_f32_16x16x32_bf16"
V_LANE, V_T0, V_T1, V_T2, V_T3, V_LIN, V_AE, V_AO, V_ST = 1, 2, 3, 4, 5, 6, 7, 8, 9
V_D = 10
V_ACC = 20
V_A = 44
V_B = 84
V_R = 196
S_O, S_WO, S_OUT = 4, 8, 12
S_WAVE, S_CNT, S_A, S_B, S_C, S_BOFF, S_WOFF, S_LDB = 20, 21, 22, 23, 24, 25, 26, 27
def ar(a, n=1):
    return f"a{a}" if n == 1 else f"a[{a}:{a+n-1}]"
def acc(nt, qt):
    i = nt * 7 + qt
    return ar(4 * i, 4) if i < 64 else vr(V_ACC + 4 * (i - 64), 4)

def gen_op(name, stamp=False, ont=False, wnt=False, noo=False, now=False, wsbase=0, skipb=False, skipd=False, pst=False, cpf=0, opol=''):
    a = Asm()
    a("s_cmp_ge_u32 s2, 256")
    a("s_cbranch_scc1 L_op_end")
    if cpf:
        a("s_getpc_b64 s[72:73]")
        a.label("L_pc1")
        a(f"s_mov_b32 s74, L_code_end - L_pc1")
        a("s_mov_b32 s75, 0x20000")
        a("v_lshlrev_b32 v201, 6, v0")
        for k in range(cpf // 16):
            a(f"s_mov_b32 s76, {k*16384}")
            a("buffer_load_dword v200, v201, s[72:75], s76 offen")
    def pstamp(i):
        if pst:
            a("s_memrealtime s[78:79]")
            a("s_memtime s[80:81]")
            a("s_waitcnt lgkmcnt(0)")
            a(f"v_writelane_b32 v252, s78, {i}")
            a(f"v_writelane_b32 v252, s80, {16+i}")
    if pst: a("v_mov_b32 v252, 0")
    pstamp(0)
    a("s_load_dwordx2 s[36:37], s[0:1], 32")
    a("s_load_dwordx2 s[38:39], s[0:1], 72")
    a("s_load_dwordx2 s[40:41], s[0:1], 80")
    a("s_load_dwordx2 s[44:45], s[0:1], 96")
    a(f"v_and_b32 v{V_LANE}, 63, v0")
    a(f"v_lshrrev_b32 v{V_T0}, 6, v0")
    a("s_nop 0")
    a(f"v_readfirstlane_b32 s{S_WAVE}, v{V_T0}")
    a("s_and_b32 s3, s2, 7")
    a("s_lshl_b32 s3, s3, 3")
    a("s_lshr_b32 s30, s2, 5")
    a("s_add_u32 s3, s3, s30")
    a("s_bfe_u32 s31, s2, 0x20003")
    a("s_waitcnt lgkmcnt(0)")
    a("s_cmp_ge_u32 s3, 32")
    a(f"s_add_u32 s44, s44, {wsbase}")
    a(f"s_addc_u32 s45, s45, 0")
    a(f"s_mov_b32 s{S_WO}, s44")
    a(f"s_mov_b32 s{S_WO+1}, s45")
    a(f"s_mov_b32 s{S_WO+2}, {0 if now else WS_BYTES}")
    a(f"s_mov_b32 s{S_WO+3}, 0x20000")
    a(f"s_mov_b32 s{S_O}, s44")
    a(f"s_mov_b32 s{S_O+1}, s45")
    a(f"s_mov_b32 s{S_O+2}, {0 if noo else WS_BYTES}")
    a(f"s_mov_b32 s{S_O+3}, 0x20000")
    a(f"s_mov_b32 s{S_OUT}, s40")
    a(f"s_mov_b32 s{S_OUT+1}, s41")
    a(f"s_mov_b32 s{S_OUT+2}, {3584*1280*2}")
    a(f"s_mov_b32 s{S_OUT+3}, 0x20000")
    a(f"s_lshr_b32 s{S_A}, s3, 1")
    a(f"s_mul_i32 s{S_A}, s{S_A}, {32*PAIRB}")
    a(f"s_and_b32 s{S_B}, s3, 1")
    a(f"s_mul_i32 s{S_B}, s{S_B}, {7*4096}")
    a(f"s_add_u32 s{S_A}, s{S_A}, s{S_B}")
    a(f"s_lshl_b32 s{S_B}, s{S_WAVE}, 10")
    a(f"s_add_u32 s{S_A}, s{S_A}, s{S_B}")
    a(f"s_add_u32 s{S_BOFF}, s{S_A}, {WS_O}")
    a(f"s_lshr_b32 s{S_A}, s3, 5")
    a(f"s_lshl_b32 s{S_A}, s{S_A}, 7")
    a(f"s_add_u32 s{S_A}, s{S_A}, s{S_WAVE}")
    a(f"s_mul_i32 s{S_A}, s{S_A}, 40960")
    a(f"s_mul_i32 s{S_B}, s31, 10240")
    a(f"s_add_u32 s{S_A}, s{S_A}, s{S_B}")
    a(f"s_add_u32 s{S_WOFF}, s{S_A}, {WS_W}")
    a(f"s_mul_i32 s{S_LDB}, s{S_WAVE}, {4*BUF}")
    if stamp:
        a("s_memtime s[64:65]")
        a("s_memrealtime s[66:67]")
        a("s_load_dwordx2 s[46:47], s[0:1], 88")
        a("s_waitcnt lgkmcnt(0)")
    a(f"v_lshlrev_b32 v{V_LIN}, 4, v{V_LANE}")
    a(f"v_add_u32 v{V_AE}, s{S_LDB}, v{V_LIN}")
    a(f"v_bfe_u32 v{V_T2}, v{V_LANE}, 4, 1")
    a(f"v_lshlrev_b32 v{V_T2}, 5, v{V_T2}")
    a(f"v_and_b32 v{V_T0}, 15, v{V_LANE}")
    a(f"v_mul_u32_u24 v{V_T0}, 2560, v{V_T0}")
    a(f"v_add_u32 v{V_T0}, v{V_T0}, v{V_T2}")
    a(f"v_bfe_u32 v{V_T2}, v{V_LANE}, 5, 1")
    a(f"v_lshl_add_u32 v{V_ST}, v{V_T2}, 4, v{V_T0}")

    def bloads(buf):
        ls = []
        ls.append(f"s_mov_b32 s{S_A}, s{S_BOFF}")
        for qt in range(7):
            if not skipb: ls.append(f"buffer_load_dwordx4 {vr(V_B+28*buf+4*qt,4)}, v{V_LIN}, s[{S_O}:{S_O+3}], s{S_A} offen{' nt' if ont else ''}")
            if qt < 6: ls.append(f"s_add_u32 s{S_A}, s{S_A}, 4096")
        ls.append(f"s_add_u32 s{S_BOFF}, s{S_BOFF}, {PAIRB}")
        return ls
    def dmas(buf):
        ls = []
        for i in range(10):
            if i & 3 == 0:
                ls.append(f"s_add_u32 m0, s{S_LDB}, {buf*BUF+4096*(i>>2)}")
                if i == 0: ls.append(f"s_mov_b32 s{S_B}, s{S_WOFF}")
                else: ls.append(f"s_add_u32 s{S_B}, s{S_B}, 4096")
            if not skipd: ls.append(f"buffer_load_dwordx4 v{V_LIN}, s[{S_WO}:{S_WO+3}], s{S_B} offen offset:{1024*(i&3)}{' nt' if wnt else ''} lds")
        ls.append(f"s_add_u32 s{S_WOFF}, s{S_WOFF}, {4*40960}")
        return ls
    def areads(nt, buf):
        return [f"ds_read_b128 {vr(V_A+4*nt,4)}, v{V_AE} offset:{buf*BUF+nt*1024}"]

    for ln in dmas(0): a(ln)
    for ln in bloads(0): a(ln)
    for ln in dmas(1): a(ln)
    a(f"s_lshl_b32 s{S_A}, s{S_WAVE}, 11")
    a(f"v_add_u32 v{V_T0}, s{S_A}, v{V_LIN}")
    a(f"v_add_u32 v{V_T1}, {40960}, v{V_T0}")
    a(f"v_add_u32 v{V_T2}, {2*40960}, v{V_T0}")
    a(f"v_add_u32 v{V_T3}, {3*40960}, v{V_T0}")
    a(f"s_and_b32 s{S_A}, s3, 31")
    a(f"s_mul_i32 s{S_A}, s{S_A}, {112*2560}")
    a(f"s_lshr_b32 s32, s3, 5")
    a(f"s_mul_i32 s32, s32, 1280")
    a(f"s_add_u32 s{S_A}, s{S_A}, s32")
    a(f"s_mul_i32 s32, s31, 320")
    a(f"s_add_u32 s{S_C}, s{S_A}, s32")
    a("s_waitcnt vmcnt(17)")
    for nt in range(10):
        for ln in areads(nt, 0): a(ln)

    def uwrite(u, ul):
        P, qt = u // 7, u % 7
        return [f"ds_write_b128 v{V_AE}, {acc(2*P+e, qt)} offset:{ul*2048+1024*e}" for e in range(2)]

    def iteration(im, first=False, groups=None, vn=34, last=False):
        a(f"s_waitcnt vmcnt({vn}) lgkmcnt(7)")
        if groups is None: groups = [("B", (im + 3) & 3), ("D", im)]
        fq = []
        for kind, buf in groups:
            fq += [(1 if kind == "B" else 15, ln) for ln in (bloads(buf) if kind == "B" else dmas(buf))]
        if last:
            for u in range(20):
                P, qt = u // 7, u % 7
                for ln in uwrite(u, u): fq.append(((2 * P + 1) * 7 + qt + 1 + 8, ln))
        j = 0
        for nt in range(10):
            for qt in range(7):
                if nt == 2 and qt == 0: a(f"s_waitcnt lgkmcnt({0 if last else 2})")
                c = "0" if first else acc(nt, qt)
                a(f"{MFMA} {acc(nt, qt)}, {vr(V_A+4*nt,4)}, {vr(V_B+28*im+4*qt,4)}, {c}")
                j += 1
                if qt == 6 and not last:
                    for ln in areads(nt, (im + 1) & 3): a(ln)
                elif fq and fq[0][0] <= j:
                    a(fq.pop(0)[1])
        for _, ln in fq: a(ln)
    if stamp: a("s_memtime s[68:69]")
    pstamp(1)
    iteration(0, first=True, groups=[("B", 1), ("D", 2), ("B", 2)], vn=0)
    iteration(1, groups=[("D", 3), ("B", 3), ("D", 0)], vn=7)
    iteration(2, groups=[("B", 0), ("D", 1), ("B", 1)], vn=17)
    iteration(3, groups=[("D", 2), ("B", 2), ("D", 3)], vn=24)
    a(f"s_mov_b32 s{S_CNT}, 0")
    a.label("L_op_loop")
    for im in range(4): iteration(im)
    a(f"s_add_u32 s{S_CNT}, s{S_CNT}, 1")
    a(f"s_cmp_lt_u32 s{S_CNT}, 6")
    a("s_cbranch_scc1 L_op_loop")
    iteration(0, groups=[("B", 3)])
    iteration(1, groups=[], vn=24)
    iteration(2, groups=[], vn=7)
    iteration(3, groups=[], vn=0, last=True)
    if stamp: a("s_memtime s[70:71]")
    pstamp(2)
    R0 = V_A
    def rreads(nk):
        for k in range(nk):
            for src in range(4):
                va = V_T0 + src
                for e in range(2):
                    a(f"ds_read_b128 {vr(R0+32*k+8*src+4*e,4)}, v{va} offset:{k*8192+1024*e}")
    def rproc(k, ubase, nunits, tag):
        R = R0 + 32 * k
        ls = []
        for h in range(4):
            ls.append(f"v_pk_add_f32 {vr(R+2*h,2)}, {vr(R+2*h,2)}, {vr(R+8+2*h,2)}")
            ls.append(f"v_pk_add_f32 {vr(R+16+2*h,2)}, {vr(R+16+2*h,2)}, {vr(R+24+2*h,2)}")
        for h in range(4):
            ls.append(f"v_pk_add_f32 {vr(R+2*h,2)}, {vr(R+2*h,2)}, {vr(R+16+2*h,2)}")
        for h in range(4):
            ls.append(f"v_cvt_pk_bf16_f32 v{R+8+h}, v{R+2*h}, v{R+2*h+1}")
        ls.append(f"s_add_u32 s{S_A}, s{S_WAVE}, {ubase+4*k}")
        ls.append(f"s_mul_i32 s{S_B}, s{S_A}, 9363")
        ls.append(f"s_lshr_b32 s{S_B}, s{S_B}, 16")
        ls.append(f"v_permlane16_swap_b32 v{R+8}, v{R+10}")
        ls.append(f"v_permlane16_swap_b32 v{R+9}, v{R+11}")
        ls.append(f"s_mul_i32 s30, s{S_B}, 7")
        ls.append(f"s_sub_u32 s30, s{S_A}, s30")
        ls.append(f"s_mul_i32 s30, s30, {16*2560}")
        ls.append(f"s_lshl_b32 s{S_B}, s{S_B}, 6")
        ls.append(f"s_add_u32 s30, s30, s{S_B}")
        ls.append(f"s_add_u32 s30, s30, s{S_C}")
        if 4 * k + 3 >= nunits:
            ls.append(f"s_cmp_ge_u32 s{S_A}, {ubase+nunits}")
            ls.append(f"s_cselect_b32 s{S_B}, 0x40000000, 0")
            ls.append(f"s_add_u32 s30, s30, s{S_B}")
        ls.append(f"buffer_store_dwordx4 {vr(R+8,4)}, v{V_ST}, s[{S_OUT}:{S_OUT+3}], s30 offen {opol}".rstrip())
        return ls
    a("s_waitcnt lgkmcnt(0)")
    a("s_barrier")
    rreads(5)
    a("s_waitcnt lgkmcnt(0)")
    a("s_barrier")
    wr = []
    for u in range(20, 35): wr += uwrite(u, u - 20)
    pr = []
    for k in range(5): pr += rproc(k, 0, 20, "a")
    step = max(1, len(pr) // len(wr))
    for i, ln in enumerate(pr):
        if i % step == 0 and wr: a(wr.pop(0))
        a(ln)
    for ln in wr: a(ln)
    a("s_waitcnt lgkmcnt(0)")
    a("s_barrier")
    rreads(4)
    for k in range(4):
        a(f"s_waitcnt lgkmcnt({min(15, 8*(3-k))})")
        for ln in rproc(k, 20, 15, "b"): a(ln)
    if pst:
        pstamp(3)
        a("s_getreg_b32 s62, hwreg(HW_REG_XCC_ID)")
        a("v_writelane_b32 v252, s62, 63")
        a(f"s_cmp_lg_u32 s{S_WAVE}, 0")
        a("s_cbranch_scc1 L_op_end")
        a("s_lshl_b32 s62, s2, 8"); a("s_add_u32 s62, s62, 50065536")
        a(f"v_lshlrev_b32 v2, 2, v{V_LANE}")
        a(f"buffer_store_dword v252, v2, s[{S_O}:{S_O+3}], s62 offen")
    if stamp:
        a("s_memtime s[80:81]")
        a("s_memrealtime s[82:83]")
        a("s_waitcnt lgkmcnt(0)")
        a("s_cmp_lg_u32 s2, 5")
        a("s_cbranch_scc1 L_op_end")
        a("s_sub_u32 s72, s80, s70")
        a("s_sub_u32 s70, s70, s68")
        a("s_sub_u32 s68, s68, s64")
        a("s_sub_u32 s80, s80, s64")
        a("s_sub_u32 s82, s82, s66")
        a("s_mov_b32 s84, s46"); a("s_mov_b32 s85, s47"); a("s_mov_b32 s86, 256"); a("s_mov_b32 s87, 0x20000")
        a("v_mov_b32 v2, s80"); a("v_mov_b32 v3, s82")
        a(f"s_lshl_b32 s78, s{S_WAVE}, 3")
        a("v_mov_b32 v4, s78")
        a("buffer_store_dwordx2 v[2:3], v4, s[84:87], 0 offen")
        for k, r in enumerate((68, 70, 72)):
            a(f"v_mov_b32 v2, s{r}"); a(f"v_mov_b32 v4, {68+4*k}")
            a("buffer_store_dword v2, v4, s[84:87], 0 offen")
    a.label("L_op_end")
    a("s_endpgm")
    return a.text()

if __name__ == "__main__":
    import sys
    name = "op_kernel"
    opts = dict(x.split("=") for x in sys.argv[2:])
    opts = {k: bool(int(v)) for k, v in opts.items()}
    body = gen_op(name, **opts)
    out = f"; @launch kernel={name} grid=(256,1,1) block=(256,1,1) lds={LDS_BYTES}\n"
    out += '.amdgcn_target "amdgcn-amd-amdhsa--gfx950"\n.text\n' + kernel_header(name) + body
    out += '.section .rodata,"a"\n.p2align 6\n' + kernel_desc(name, 512, accum=256)
    open(sys.argv[1], "w").write(out)
```

```python
from gen_common import *
NQB = 3584 * 4096 * 2
WS_X = 4 * NQB + 2 * 4096 * 640 * 2
XB = 2 * 3584 * 640 * 2
def gen_xf(name):
    a = Asm()
    a("s_cmp_ge_u32 s2, 112")
    a("s_cbranch_scc1 L_xf_end")
    a("s_load_dwordx2 s[36:37], s[0:1], 0")
    a("s_load_dwordx2 s[38:39], s[0:1], 40")
    a("s_load_dwordx2 s[44:45], s[0:1], 96")
    a("v_and_b32 v1, 63, v0")
    a("v_lshrrev_b32 v2, 6, v0")
    a("s_nop 0")
    a("v_readfirstlane_b32 s20, v2")
    a("v_and_b32 v3, 15, v1")
    a("v_mul_u32_u24 v3, 1280, v3")
    a("v_lshrrev_b32 v4, 4, v1")
    a("v_lshl_add_u32 v3, v4, 4, v3")
    a("v_lshlrev_b32 v4, 4, v1")
    a("s_lshl_b32 s21, s2, 2")
    a("s_add_u32 s21, s21, s20")
    a("s_waitcnt lgkmcnt(0)")
    a("s_cmp_ge_u32 s21, 224")
    a("s_cselect_b32 s4, s38, s36"); a("s_cselect_b32 s5, s39, s37")
    a("s_cselect_b32 s22, 224, 0")
    a(f"s_mov_b32 s6, {3584*640*2}"); a("s_mov_b32 s7, 0x20000")
    a(f"s_add_u32 s8, s44, {WS_X}"); a("s_addc_u32 s9, s45, 0"); a(f"s_mov_b32 s10, {XB}"); a("s_mov_b32 s11, 0x20000")
    a("s_sub_u32 s22, s21, s22")
    a(f"s_mul_i32 s23, s22, {16*1280}")
    for ks in range(20):
        a(f"buffer_load_dwordx4 v[{8+4*ks}:{11+4*ks}], v3, s[4:7], s23 offen offset:{64*ks}")
    a("s_mul_i32 s24, s21, 9363")
    a("s_lshr_b32 s24, s24, 16")
    a("s_mul_i32 s25, s24, 7")
    a("s_sub_u32 s25, s21, s25")
    a(f"s_mul_i32 s24, s24, {20*7168}")
    a("s_lshl_b32 s25, s25, 10")
    a("s_add_u32 s24, s24, s25")
    for ks in range(20):
        a(f"s_waitcnt vmcnt({19})" if ks == 0 else f"s_waitcnt vmcnt(19)")
        a(f"buffer_store_dwordx4 v[{8+4*ks}:{11+4*ks}], v4, s[8:11], s24 offen")
        a("s_add_u32 s24, s24, 7168")
    a.label("L_xf_end")
    a("s_endpgm")
    return a.text()
```

```python
import sys
sys.path.insert(0, "dev")
from gen_common import *
import gen_fused, gen_op, gen_op2, gen_xf
import json
FO = json.loads(sys.argv[2]) if len(sys.argv) > 2 else {}
OO = json.loads(sys.argv[3]) if len(sys.argv) > 3 else {}
out_path = sys.argv[1] if len(sys.argv) > 1 else "concat_heads__mha_block_cached__mha_block_cached__near_ridge.s"
hdr = open("concat_heads__mha_block_cached__mha_block_cached__near_ridge.s.ref").read().split("; Override launch geometry")[0]
o = hdr
XF = FO.get("xf", False)
if XF: o += "; @launch kernel=xf_kernel grid=(112,1,1) block=(256,1,1) lds=0\n"
o += f"; @launch kernel=fused_kernel grid=(256,1,1) block=(256,1,1) lds={gen_fused.LDS_BYTES}\n"
o += f"; @launch kernel=op_kernel grid=(256,1,1) block=(256,1,1) lds={gen_op.LDS_BYTES}\n"
o += '.amdgcn_target "amdgcn-amd-amdhsa--gfx950"\n.text\n'
o += kernel_header("fused_kernel") + gen_fused.gen_fused("fused_kernel", **FO)
if XF: o += kernel_header("xf_kernel") + gen_xf.gen_xf("xf_kernel")
V2 = OO.pop("v2", False)
o += kernel_header("op_kernel") + (gen_op2.gen_op2("op_kernel", **OO) if V2 else gen_op.gen_op("op_kernel", **OO))
o += "L_code_end:\n"
o += '.section .rodata,"a"\n.p2align 6\n' + kernel_desc("fused_kernel", 512, accum=256)
o += '.p2align 6\n' + kernel_desc("op_kernel", 512, accum=256)
if XF: o += '.p2align 6\n' + kernel_desc("xf_kernel", 96)
open(out_path, "w").write(o)
print("wrote", out_path, len(o))
```

```python
from gen_common import *
import math

NQB = 3584 * 4096 * 2
WS_O = 2 * NQB
WS_W = 4 * NQB
WS_BYTES = 4 * NQB + 2 * 4096 * 640 * 2
PAIRB = 224 * 128 * 2

TILE = 8448
RING = 4
AREA = RING * TILE
LDS_BYTES = 163840
LDS_FLAG = 2 * AREA + 1024
LDS_FLAG = 2 * AREA + 8416

def kpad(i): return 1024 * i + 16 * ((i & 1) + 4 * (i >> 1))

V_LANE, V_T0, V_T1, V_T2, V_T3, V_LIN, V_DMA = 1, 2, 3, 4, 5, 6, 7
V_KA, V_VA, V_XA, V_WA = 8, 9, 10, 11
V_L = 12
V_QD, V_BA = 26, 27
V_CI = 28
V_KF = 56
V_S = 88
V_P = 104
V_VF = 112
V_OK = 144
A_Q = 0
A_OS = 112
A_LS = 224
A_ONE = 252
S_LD, S_K, S_W, S_QP = 4, 8, 12, 16
S_WAVE, S_T, S_CNT, S_NOFB, S_OOFF, S_MP, S_T0 = 20, 21, 22, 23, 24, 25, 27
S_A, S_B, S_C, S_D = 28, 29, 30, 31
S_THR, S_LDB, S_DJ, S_PJ, S_QH, S_DOFF = 32, 33, 34, 35, 48, 49
S_QS, S_QSTEP, S_QRND, S_MSTEP, S_CS = 50, 51, 52, 53, 54
S_TAB = 88
S_AS, S_TY, S_PRE, S_WO = 68, 69, 70, 71
MFMA = "v_mfma_f32_16x16x32_bf16"
def ar(a, n=1):
    return f"a{a}" if n == 1 else f"a[{a}:{a+n-1}]"

def gen_fused(name, nt=True, stamp=False, nofb=False, noload=False, nost=False, nox=False, now=False, st0=False, touch=False, kvt=False, kvtnt=False, nowo=False, tnt=False, qnt=False, wont=False, trace=False, DBO=64, ones=False, strace=False, xmem=0, xmfma=0, delay=0, tymask=1, stwg=4, roll=False, bulk0=True, wsbase=0, rot=True, rsh=1, dupst=False, allst=False, align=0, roles=False, fakex=False, early=False, qdelay=0, adelay=0, kvpol=None, xf=False, pst=False, kvl2=False, xq=False, pstl=False, kv0=False, qpnl=False, cpf=0, cpflate=False, qps=False, tymode=0, tyinv=False, xswap=False, qnrd=False, qnbar=False, qbar=7, qd0=9, qdstep=6, kvrot=0, kvgs=11, kvt2=0, kvts=64, tper=1, tpol='', tlbw=0, rflip=0, stpol=''):
    a = Asm()
    NT = " nt" if nt else ""
    if kvpol: NT = " " + kvpol
    a("s_cmp_ge_u32 s2, 256")
    a("s_cbranch_scc1 L_at_end")
    if cpf:
        a("s_getpc_b64 s[72:73]")
        a.label("L_pc0")
        a(f"s_mov_b32 s74, L_code_end - L_pc0")
        a("s_mov_b32 s75, 0x20000")
        a("v_lshlrev_b32 v105, 6, v0")
        if not cpflate:
          for k in range(cpf // 16):
            a(f"s_mov_b32 s76, {k*16384}")
            a("buffer_load_dword v104, v105, s[72:75], s76 offen")
    a("s_and_b32 s3, s2, 7")
    a("s_lshl_b32 s3, s3, 5")
    a("s_lshr_b32 s36, s2, 6")
    a("s_lshl_b32 s36, s36, 3")
    a("s_or_b32 s3, s3, s36")
    a("s_bfe_u32 s36, s2, 0x30003")
    a("s_or_b32 s2, s3, s36")
    if xswap: a("s_xor_b32 s2, s2, 32"); a("s_nop 0")
    a("s_load_dwordx8 s[36:43], s[0:1], 0")
    a("s_load_dwordx8 s[56:63], s[0:1], 40")
    a("s_load_dwordx2 s[44:45], s[0:1], 96")
    a("s_load_dwordx2 s[84:85], s[0:1], 32")
    a("s_load_dwordx2 s[86:87], s[0:1], 72")
    a(f"v_and_b32 v{V_LANE}, 63, v0")
    a(f"v_lshrrev_b32 v{V_T0}, 6, v0")
    a("s_nop 0")
    a(f"v_readfirstlane_b32 s{S_WAVE}, v{V_T0}")
    a("s_waitcnt lgkmcnt(0)")
    a(f"s_and_b32 s{S_QH}, s{S_WAVE}, 1")
    a(f"s_lshr_b32 s{S_PJ}, s{S_WAVE}, 1")
    a("s_cmp_ge_u32 s2, 128")
    for k in range(8):
        a(f"s_cselect_b32 s{36+k}, s{56+k}, s{36+k}")
    a("s_cselect_b32 s84, s86, s84")
    a("s_cselect_b32 s85, s87, s85")
    a(f"s_mov_b32 s86, {4096*640*2}")
    a("s_mov_b32 s87, 0x20000")
    a(f"s_and_b32 s{S_A}, s2, 127")
    a(f"s_lshl_b32 s{S_B}, s{S_A}, 20")
    a(f"s_lshl_b32 s{S_C}, s{S_PJ}, 18")
    a(f"s_add_u32 s{S_B}, s{S_B}, s{S_C}")
    a(f"s_add_u32 s38, s38, s{S_B}")
    a("s_addc_u32 s39, s39, 0")
    a(f"s_add_u32 s40, s40, s{S_B}")
    a("s_addc_u32 s41, s41, 0")
    a(f"s_sub_u32 s{S_C}, 0x100000, s{S_C}")
    a(f"s_mov_b32 s{S_K}, s38")
    a(f"s_mov_b32 s{S_K+1}, s39")
    a(f"s_mov_b32 s{S_K+2}, s{S_C}")
    a(f"s_mov_b32 s{S_K+3}, 0x20000")
    a(f"s_cmp_eq_u32 s{S_QH}, 0")
    a(f"s_cselect_b32 s{S_LD}, s38, s40")
    a(f"s_cselect_b32 s{S_LD+1}, s39, s41")
    a(f"s_mov_b32 s{S_LD+2}, {'0' if kv0 else 's'+str(S_C)}")
    a(f"s_mov_b32 s{S_LD+3}, 0x20000")
    if xf:
        a(f"s_add_u32 s36, s44, {4*NQB + 2*4096*640*2}")
        a("s_addc_u32 s37, s45, 0")
        a(f"s_cmp_eq_u32 s{S_QH}, 0")
    a(f"s_cselect_b32 s{S_QP}, s42, s36")
    a(f"s_cselect_b32 s{S_QP+1}, s43, s37")
    a(f"s_mov_b32 s{S_A}, {0 if now else 640*4096*2}")
    a(f"s_mov_b32 s{S_B}, {0 if nox else (2*3584*640*2 if xf else 3584*640*2)}")
    a(f"s_cselect_b32 s{S_QP+2}, s{S_A}, s{S_B}")
    a(f"s_mov_b32 s{S_QP+3}, 0x20000")
    a(f"s_mov_b32 s{S_A}, {32*8192}")
    a(f"s_mov_b32 s{S_B}, {7168 if (fakex or xf) else 64}")
    a(f"s_cselect_b32 s{S_QSTEP}, s{S_A}, s{S_B}")
    a(f"s_cselect_b32 s{S_QRND}, 512, 0")
    a(f"s_mov_b32 s{S_A}, 1056")
    a(f"s_mov_b32 s{S_B}, 1024")
    a(f"s_cselect_b32 s{S_MSTEP}, s{S_A}, s{S_B}")
    for i in range(8):
        a(f"s_mov_b32 s{S_A}, {((i&3)+8*(i>>2))*8192}")
        a(f"s_mov_b32 s{S_B}, {(1024*i if (fakex or xf) else 20480*i) if i < 7 else 0x40000000}")
        a(f"s_cselect_b32 s{S_TAB+i}, s{S_A}, s{S_B}")
    a(f"s_and_b32 s{S_A}, s2, 7")
    a(f"s_lshl_b32 s{S_A}, s{S_A}, 2")
    a(f"s_add_u32 s{S_A}, s{S_A}, s{S_PJ}")
    a(f"s_lshl_b32 s{S_A}, s{S_A}, 8")
    a(f"s_bfe_u32 s{S_B}, s2, {0x50003 if xf else 0x40003}")
    a(f"s_lshl_b32 s{S_B}, s{S_B}, 1")
    a(f"s_add_u32 s{S_B}, s{S_B}, s{S_PJ}")
    a(f"s_mul_i32 s{S_B}, s{S_B}, {112*1280}")
    a(f"s_cmp_eq_u32 s{S_QH}, 0")
    a(f"s_cselect_b32 s55, s{S_A}, s{S_B}")
    a(f"s_add_u32 s{S_W}, s44, {wsbase}")
    a(f"s_addc_u32 s{S_W+1}, s45, 0")
    a(f"s_mov_b32 s{S_W+2}, {WS_BYTES}")
    a(f"s_mov_b32 s{S_W+3}, 0x20000")
    a(f"s_lshl_b32 s{S_A}, s2, 2")
    a(f"s_add_u32 s{S_A}, s{S_A}, s{S_PJ}")
    a(f"s_mul_i32 s{S_OOFF}, s{S_A}, {PAIRB}")
    a(f"s_mul_i32 s{S_A}, s{S_QH}, {7*4096}")
    a(f"s_add_u32 s{S_OOFF}, s{S_OOFF}, s{S_A}")
    a(f"s_add_u32 s{S_OOFF}, s{S_OOFF}, {WS_O}")
    a(f"s_mov_b32 s{S_NOFB}, -1")
    a("s_mov_b32 s60, s42"); a("s_mov_b32 s61, s43"); a(f"s_mov_b32 s62, {640*4096*2}"); a("s_mov_b32 s63, 0x20000")
    a(f"s_mov_b32 s{S_T0}, 0")
    a(f"s_mov_b32 s{S_MP}, 0")
    a(f"s_mov_b32 s{S_AS}, 0")
    a(f"s_mov_b32 s{S_WO}, {3 if nowo else 0}")
    a(f"s_lshr_b32 s26, s2, 3")
    a(f"s_lshr_b32 s{S_A}, s2, {rsh}")
    a(f"s_add_u32 s26, s26, s{S_A}")
    a("s_and_b32 s26, s26, 3")
    a("s_mul_i32 s26, s26, 5")
    a(f"s_mul_i32 s83, s{S_QSTEP}, 20")
    a(f"s_and_b32 s{S_TY}, s2, {tymask}")
    a(f"s_min_u32 s{S_TY}, s{S_TY}, 1")
    if tyinv: a(f"s_xor_b32 s{S_TY}, s{S_TY}, 1"); a("s_nop 0")
    if tymode == 1:
        a("s_bfe_u32 s3, s2, 0x10005"); a("s_xor_b32 s3, s3, 1"); a(f"s_and_b32 s{S_TY}, s2, s3"); a("s_nop 0")
    if tymode == 2:
        a("s_bfe_u32 s3, s2, 0x10005"); a("s_xor_b32 s3, s3, 1"); a(f"s_and_b32 s{S_TY}, s2, 3"); a(f"s_min_u32 s{S_TY}, s{S_TY}, 1"); a(f"s_and_b32 s{S_TY}, s{S_TY}, s3")
    if tymode == 3:
        a("s_bfe_u32 s3, s2, 0x10005"); a("s_xor_b32 s3, s3, 1"); a(f"s_and_b32 s{S_TY}, s2, 3"); a(f"s_cmp_eq_u32 s{S_TY}, 0"); a(f"s_cselect_b32 s{S_TY}, 1, 0"); a(f"s_or_b32 s{S_TY}, s{S_TY}, s3")
    a(f"s_mov_b32 s{S_PRE}, s{S_TY}")
    a(f"s_mov_b32 s{S_THR}, 0x4e800000")
    import struct
    cs = struct.unpack("<I", struct.pack("<f", (128 ** -0.5) * 1.4426950408889634))[0]
    a(f"s_mov_b32 s{S_CS}, {cs:#x}")
    a(f"s_lshl_b32 s{S_A}, s{S_QH}, 1")
    a(f"s_add_u32 s{S_A}, s{S_A}, s{S_PJ}")
    a(f"s_mul_i32 s{S_LDB}, s{S_A}, {AREA}")
    if stamp:
        a("s_memtime s[64:65]")
        a("s_memrealtime s[66:67]")
        a("s_load_dwordx2 s[46:47], s[0:1], 88")
        a("s_waitcnt lgkmcnt(0)")
    G, N = V_T0, V_T1
    a(f"v_lshlrev_b32 v{V_LIN}, 4, v{V_LANE}")
    a(f"v_lshrrev_b32 v{G}, 4, v{V_LANE}")
    a(f"v_and_b32 v{N}, 15, v{V_LANE}")
    a(f"v_lshlrev_b32 v{V_T2}, 4, v{N}")
    a(f"v_lshl_add_u32 v{V_DMA}, v{G}, {kvgs}, v{V_T2}")
    a(f"v_bfe_u32 v{V_T3}, v{V_LANE}, 4, 1")
    a(f"v_lshl_add_u32 v{V_QD}, v{V_T3}, 15, v{V_T2}")
    a(f"v_bfe_u32 v{V_T3}, v{V_LANE}, 5, 1")
    a(f"v_lshl_add_u32 v{V_QD}, v{V_T3}, 17, v{V_QD}")
    a(f"v_mul_u32_u24 v{V_BA}, 1280, v{N}")
    a(f"v_lshl_add_u32 v{V_BA}, v{G}, 4, v{V_BA}")
    if fakex or xf: a(f"v_mov_b32 v{V_BA}, v{V_LIN}")
    if xq:
        a(f"v_lshrrev_b32 v{V_T3}, 4, v{V_LANE}")
        a(f"v_and_b32 v{V_BA}, 1, v{V_T3}")
        a(f"v_lshlrev_b32 v{V_BA}, 1, v{V_BA}")
        a(f"v_lshrrev_b32 v{V_T3}, 1, v{V_T3}")
        a(f"v_mul_u32_u24 v{V_T3}, 3, v{V_T3}")
        a(f"v_xor_b32 v{V_BA}, v{V_BA}, v{V_T3}")
        a(f"v_and_b32 v{V_T3}, 3, v{V_LANE}")
        a(f"v_xor_b32 v{V_BA}, v{V_BA}, v{V_T3}")
        a(f"v_lshlrev_b32 v{V_BA}, 4, v{V_BA}")
        a(f"v_lshrrev_b32 v{V_T3}, 2, v{V_LANE}")
        a(f"v_mul_u32_u24 v{V_T3}, 1280, v{V_T3}")
        a(f"v_add_u32 v{V_BA}, v{V_BA}, v{V_T3}")
    a(f"s_cmp_eq_u32 s{S_QH}, 0")
    a("s_cselect_b64 vcc, -1, 0")
    a("s_nop 1")
    a(f"v_cndmask_b32 v{V_QD}, v{V_BA}, v{V_QD}, vcc")
    a(f"s_add_u32 s{S_A}, s{S_QH}, 2")
    a(f"s_mul_i32 s{S_A}, s{S_A}, {AREA}")
    if xq:
        a(f"v_bfe_u32 v{V_T3}, v{V_LANE}, 2, 2")
        a(f"v_and_b32 v{V_BA}, 1, v{V_T3}")
        a(f"v_lshlrev_b32 v{V_BA}, 1, v{V_BA}")
        a(f"v_lshrrev_b32 v{V_T3}, 1, v{V_T3}")
        a(f"v_mul_u32_u24 v{V_T3}, 3, v{V_T3}")
        a(f"v_xor_b32 v{V_BA}, v{V_BA}, v{V_T3}")
        a(f"v_xor_b32 v{V_BA}, v{V_BA}, v{G}")
        a(f"v_lshlrev_b32 v{V_BA}, 4, v{V_BA}")
        a(f"v_lshl_add_u32 v{V_BA}, v{N}, 6, v{V_BA}")
        a(f"v_add_u32 v{V_BA}, s{S_A}, v{V_BA}")
    else:
        a(f"v_add_u32 v{V_BA}, s{S_A}, v{V_LIN}")
    a(f"v_bfe_u32 v{V_T3}, v{V_LANE}, 4, 1")
    a(f"v_lshl_add_u32 v{V_T2}, v{V_T3}, 9, v{V_T2}")
    a(f"v_bfe_u32 v{V_T3}, v{V_LANE}, 5, 1")
    a(f"v_lshl_add_u32 v{V_XA}, v{V_T3}, 8, v{V_T2}")
    a(f"v_and_b32 v{V_T2}, 7, v{N}")
    a(f"v_lshlrev_b32 v{V_KA}, 10, v{V_T2}")
    a(f"v_and_b32 v{V_T3}, 1, v{N}")
    a(f"v_lshl_add_u32 v{V_KA}, v{V_T3}, 4, v{V_KA}")
    a(f"v_bfe_u32 v{V_T3}, v{N}, 1, 2")
    a(f"v_lshl_add_u32 v{V_KA}, v{V_T3}, 6, v{V_KA}")
    a(f"v_lshrrev_b32 v{V_T3}, 3, v{N}")
    a(f"v_lshl_add_u32 v{V_KA}, v{V_T3}, 8, v{V_KA}")
    a(f"v_bfe_u32 v{V_T3}, v{V_LANE}, 4, 1")
    a(f"v_lshl_add_u32 v{V_KA}, v{V_T3}, 5, v{V_KA}")
    a(f"v_bfe_u32 v{V_T3}, v{V_LANE}, 5, 1")
    a(f"v_lshl_add_u32 v{V_KA}, v{V_T3}, 4, v{V_KA}")
    a(f"s_mul_i32 s{S_A}, s{S_PJ}, {AREA}")
    a(f"v_add_u32 v{V_KA}, s{S_A}, v{V_KA}")
    a(f"v_bfe_u32 v{N}, v{V_LANE}, 2, 2")
    a(f"v_bfe_u32 v{V_T3}, v{V_LANE}, 4, 1")
    a(f"v_lshl_add_u32 v{V_T2}, v{V_T3}, 2, v{N}")
    a(f"v_mul_u32_u24 v{V_T2}, 1056, v{V_T2}")
    a(f"v_bfe_u32 v{V_T3}, v{V_LANE}, 5, 1")
    a(f"v_lshl_add_u32 v{V_T2}, v{V_T3}, 9, v{V_T2}")
    a(f"v_and_b32 v{V_T3}, 3, v{V_LANE}")
    a(f"v_lshl_add_u32 v{V_T2}, v{V_T3}, 3, v{V_T2}")
    a(f"v_add_u32 v{V_WA}, s{S_A}, v{V_T2}")
    a(f"v_lshl_add_u32 v{N}, v{G}, 2, v{N}")
    a(f"v_and_b32 v{V_T2}, 7, v{N}")
    a(f"v_mul_u32_u24 v{V_T2}, 1056, v{V_T2}")
    a(f"v_lshrrev_b32 v{V_T3}, 3, v{N}")
    a(f"v_lshl_add_u32 v{V_T2}, v{V_T3}, 8, v{V_T2}")
    a(f"v_and_b32 v{V_T3}, 3, v{V_LANE}")
    a(f"v_lshl_add_u32 v{V_T2}, v{V_T3}, 3, v{V_T2}")
    a(f"s_add_u32 s{S_A}, s{S_A}, {2*AREA}")
    a(f"v_add_u32 v{V_VA}, s{S_A}, v{V_T2}")
    for i in range(7):
        a(f"v_mov_b32 v{V_L+2*i}, 0xff800000")
    a(f"v_mov_b32 v{V_T0}, 0x3f803f80")
    for i in range(4): a(f"v_accvgpr_write_b32 a{A_ONE+i}, v{V_T0}")
    a(f"v_and_b32 v{V_T0}, 3, v{V_LANE}")
    a(f"v_lshlrev_b32 v{V_T0}, 2, v{V_T0}")
    a(f"v_add_u32 v{V_T0}, {LDS_FLAG}, v{V_T0}")
    a(f"v_mov_b32 v{V_T1}, 0")
    a(f"ds_write_b32 v{V_T0}, v{V_T1}")
    a(f"s_cmp_eq_u32 s{S_QH}, 0")
    a(f"s_mov_b32 s{S_A}, {kpad(1)-kpad(0)-256}")
    a(f"s_mov_b32 s{S_B}, 800")
    a(f"s_cselect_b32 s96, s{S_A}, s{S_B}")
    a(f"s_mov_b32 s{S_A}, {kpad(2)-kpad(1)-256}")
    a(f"s_cselect_b32 s97, s{S_A}, s{S_B}")

    a(f"v_lshrrev_b32 v{V_T0}, 1, v{V_LANE}")
    a(f"v_lshlrev_b32 v{V_T0}, 13, v{V_T0}")
    a(f"v_and_b32 v{V_T1}, 1, v{V_LANE}")
    a(f"v_lshl_add_u32 v{V_T0}, v{V_T1}, 7, v{V_T0}")
    a(f"v_lshlrev_b32 v{V_T1}, 7, v{V_LANE}")
    a(f"s_bfe_u32 s{S_A}, s2, 0x20003")
    a(f"s_lshl_b32 s{S_A}, s{S_A}, 18")
    a(f"s_and_b32 s{S_B}, s2, 7")
    a(f"s_mul_i32 s{S_B}, s{S_B}, 17920")
    a(f"s_cmp_eq_u32 s{S_QH}, 0")
    a("s_cselect_b64 vcc, -1, 0")
    a(f"s_cselect_b32 s100, s{S_A}, s{S_B}")
    a(f"s_add_u32 s100, s100, s55")
    a(f"s_cmp_eq_u32 s{S_QH}, 0")
    a(f"s_mov_b32 s{S_A}, {4*32*8192}")
    a(f"s_mov_b32 s{S_B}, 8192")
    a(f"s_cselect_b32 s99, s{S_A}, s{S_B}")
    a(f"v_cndmask_b32 v{V_LIN}, v{V_T1}, v{V_T0}, vcc")
    def tf0(u): return (u & ((1 << kvgs) - 1)) | ((u >> kvgs) << (kvgs + 2))
    if kvt2:
        lb = kvgs - int(math.log2(kvts))
        if lb >= 6:
            a(f"v_mul_u32_u24 v{V_LIN}, {kvts}, v{V_LANE}")
        else:
            a(f"v_and_b32 v{V_T0}, {(1 << lb) - 1}, v{V_LANE}")
            a(f"v_mul_u32_u24 v{V_T0}, {kvts}, v{V_T0}")
            a(f"v_lshrrev_b32 v{V_T1}, {lb}, v{V_LANE}")
            a(f"v_lshl_add_u32 v{V_LIN}, v{V_T1}, {kvgs + 2}, v{V_T0}")
    def tch(s_): return bool(kvt2) and s_ < 16 and s_ % tper == 0
    def tvn(s_): return sum(1 for t in range(max(0, s_ - 3), s_) if tch(t))
    def tinc(k): return tf0((k + 1) * 64 * kvts) - tf0(k * 64 * kvts)
    if kvrot == 0 and kvgs != 11: a("s_mov_b32 s100, 0")
    if kvrot == 1:
        a("s_and_b32 s100, s2, 31")
    if kvrot == 2:
        a("s_mul_i32 s100, s2, 11"); a(f"s_lshr_b32 s{S_A}, s2, 5"); a(f"s_mul_i32 s{S_A}, s{S_A}, 7"); a(f"s_add_u32 s100, s100, s{S_A}")
        a(f"s_lshl_b32 s{S_A}, s{S_PJ}, 4"); a(f"s_add_u32 s100, s100, s{S_A}"); a("s_and_b32 s100, s100, 31")
    if kvrot == 3:
        a("s_lshr_b32 s100, s2, 5"); a("s_lshl_b32 s100, s100, 2")
    if rflip:
        if rflip == 1: a(f"s_bfe_u32 s{S_A}, s2, 0x10005")
        if rflip == 2: a(f"s_bfe_u32 s{S_A}, s2, 0x10006")
        if rflip == 3: a(f"s_bfe_u32 s{S_A}, s2, 0x10007")
        if rflip == 4: a(f"s_bfe_u32 s{S_A}, s2, 0x10003")
        a(f"s_lshl_b32 s101, s{S_A}, 19")
        a(f"s_mul_i32 s{S_B}, s{S_A}, s{S_QRND}")
        a(f"s_add_u32 s55, s55, s{S_B}")
        a(f"s_sub_u32 s{S_B}, 0, s{S_QRND}")
        a(f"s_cmp_lg_u32 s{S_A}, 0")
        a(f"s_cselect_b32 s{S_QRND}, s{S_B}, s{S_QRND}")
        a(f"s_mov_b32 s99, {2*PAIRB}")
        a(f"s_cselect_b32 s99, {-2*PAIRB & 0xffffffff:#x}, s99")
        a(f"s_mul_i32 s{S_B}, s{S_A}, {2*PAIRB}")
        a(f"s_add_u32 s{S_OOFF}, s{S_OOFF}, s{S_B}")
    tstate = {"t": 0}
    def touch_one():
        if not touch: return
        a(f"buffer_load_dword v0, v{V_LIN}, s[{S_QP}:{S_QP+3}], s98 offen{' nt' if tnt else ''}")
        a(f"s_add_u32 s98, s98, s99")
        tstate["t"] += 1
    if xmem or dupst:
        a("s_add_u32 s72, s44, 0x8000000"); a("s_addc_u32 s73, s45, 0"); a("s_mov_b32 s74, 0x18000000"); a("s_mov_b32 s75, 0x20000")
        a("s_lshl_b32 s76, s2, 2"); a(f"s_add_u32 s76, s76, s{S_WAVE}"); a("s_mul_i32 s76, s76, 0x60000")
    dstate = {"i": 0, "kind": None}
    def dma_setup(slot, kind):
        if kind == "KV":
            if kvgs != 11:
                ln_ = kvgs - 11
                a(f"s_add_u32 s{S_B}, s{S_DJ}, s100")
                a(f"s_bfe_u32 s{S_A}, s{S_B}, {((5 - ln_) << 16) | ln_:#x}")
                a(f"s_lshl_b32 s{S_A}, s{S_A}, {kvgs + 2}")
                a(f"s_and_b32 s{S_B}, s{S_B}, {(1 << ln_) - 1}")
                a(f"s_lshl_b32 s{S_B}, s{S_B}, 11")
                a(f"s_add_u32 s{S_B}, s{S_A}, s{S_B}")
                a(f"s_lshr_b32 s{S_A}, s{S_DJ}, 5")
                a(f"s_lshl_b32 s{S_A}, s{S_A}, 19")
                if rflip: a(f"s_xor_b32 s{S_A}, s{S_A}, s101")
                a(f"s_add_u32 s{S_DOFF}, s{S_A}, s{S_B}")
            elif kvrot:
                a(f"s_lshr_b32 s{S_A}, s{S_DJ}, 5")
                a(f"s_lshl_b32 s{S_A}, s{S_A}, 19")
                if rflip: a(f"s_xor_b32 s{S_A}, s{S_A}, s101")
                a(f"s_add_u32 s{S_B}, s{S_DJ}, s100")
                a(f"s_and_b32 s{S_B}, s{S_B}, 31")
                a(f"s_lshl_b32 s{S_B}, s{S_B}, 13")
                a(f"s_add_u32 s{S_DOFF}, s{S_A}, s{S_B}")
            else:
                a(f"s_lshr_b32 s{S_A}, s{S_DJ}, 5")
                a(f"s_lshl_b32 s{S_A}, s{S_A}, 18")
                a(f"s_lshl_b32 s{S_B}, s{S_DJ}, 13")
                a(f"s_add_u32 s{S_DOFF}, s{S_A}, s{S_B}")
            if kvl2: a(f"s_and_b32 s{S_DOFF}, s{S_DOFF}, {0x7fff if kvl2 is True else kvl2 - 1}")
            a(f"s_add_u32 m0, s{S_LDB}, {slot*TILE}")
            a(f"s_add_u32 s{S_DJ}, s{S_DJ}, 1")
        else:
            a(f"s_add_u32 m0, s{S_LDB}, {slot*TILE}")
            a(f"s_mov_b32 s{S_DOFF}, s{S_QS}")
            a(f"s_add_u32 s{S_QS}, s{S_QS}, s{S_QSTEP}")
            if rot:
                a("s_add_u32 s82, s82, 1")
                a("s_cmp_eq_u32 s82, 20")
                a(f"s_cselect_b32 s{S_B}, s83, 0")
                a(f"s_sub_u32 s{S_QS}, s{S_QS}, s{S_B}")
        dstate["i"] = 0; dstate["kind"] = kind
    def dma_one(pad=False):
        i = dstate["i"]
        if dstate["kind"] == "KV":
            if pad: a("s_nop 0")
            if not noload:
                a(f"buffer_load_dwordx4 v{V_DMA}, s[{S_LD}:{S_LD+3}], s{S_DOFF} offen offset:{256*i}{NT} lds")
            if i < 7: a(f"s_add_u32 m0, m0, s{96+(i&1)}")
        else:
            a(f"s_add_u32 s{S_A}, s{S_DOFF}, s{S_TAB+i}")
            if not qpnl: a(f"buffer_load_dwordx4 v{V_QD}, s[{S_QP}:{S_QP+3}], s{S_A} offen{' nt' if qnt else ''} lds")
            if i < 7: a(f"s_add_u32 m0, m0, s{S_MSTEP}")
        dstate["i"] = i + 1
    def qs_init(rnd_sgpr, q=3):
        if kvt2:
            a(f"s_lshl_b32 s98, s{S_T}, 19")
            if q == "pre":
                a(f"s_lshl_b32 s{S_A}, s{S_PRE}, {kvgs}"); a(f"s_sub_u32 s98, s98, s{S_A}"); q = 3
            a(f"s_add_u32 s98, s98, {q << kvgs}")
        a(f"s_mul_i32 s{S_QS}, s{rnd_sgpr}, s{S_QRND}")
        if not rflip: a(f"s_mov_b32 s101, s{rnd_sgpr}")
        a(f"s_add_u32 s{S_QS}, s{S_QS}, s55")
        a(f"s_cmp_ge_u32 s{rnd_sgpr}, 2")
        a(f"s_cselect_b32 s{S_A}, 0x40000000, 0")
        a(f"s_add_u32 s{S_QS}, s{S_QS}, s{S_A}")
        if rot:
            a("s_mov_b32 s82, s26")
            a(f"s_mul_i32 s{S_A}, s26, s{S_QSTEP}")
            a(f"s_add_u32 s{S_QS}, s{S_QS}, s{S_A}")

    def touch_init(rnd_sgpr):
        if not touch: return
        a(f"s_mul_i32 s98, s{rnd_sgpr}, s{S_QRND}")
        a(f"s_add_u32 s98, s98, s100")
        a(f"s_cmp_ge_u32 s{rnd_sgpr}, 2")
        a(f"s_cselect_b32 s{S_A}, 0x40000000, 0")
        a(f"s_add_u32 s98, s98, s{S_A}")
        tstate["t"] = 0
    def kread(f, slot):
        kt, s = f >> 2, f & 3
        a.lds(f"ds_read_b128 {vr(V_KF+4*f,4)}, v{V_KA} offset:{slot*TILE+kt*512+s*64}", "K")
    def vread(l, slot):
        for v in range(2):
            a.lds(f"ds_read_b64_tr_b16 {vr(V_VF+4*l+2*v,2)}, v{V_VA} offset:{slot*TILE+v*512+l*32}", "V")
    def wread(l, slot):
        for v in range(2):
            a.lds(f"ds_read_b64_tr_b16 {vr(V_VF+4*l+2*v,2)}, v{V_WA} offset:{slot*TILE+v*256+l*32}", "W")
    def bbuf(buf, qt): return (V_KF if buf == 0 else V_CI) + 4 * qt
    def bread(buf, qt, slot):
        a.lds(f"ds_read_b128 {vr(bbuf(buf,qt),4)}, v{V_BA} offset:{slot*TILE+qt*1024}", "B")
    def oreg(l, qt):
        return vr(V_OK + 28 * l + 4 * qt, 4) if l < 4 else ar(A_OS + 28 * (l - 4) + 4 * qt, 4)

    def barrier(dyn=False, vn=16, xt=0):
        vn += xt
        if dyn:
            n = len(a.lines)
            a(f"s_cmp_eq_u32 s{S_AS}, 0")
            a(f"s_cbranch_scc1 L_bw1_{n}")
            a(f"s_sub_u32 s{S_AS}, s{S_AS}, 1")
            a(f"s_waitcnt vmcnt({44 + xt}) lgkmcnt(0)")
            a(f"s_branch L_bw2_{n}")
            a.label(f"L_bw1_{n}")
            a(f"s_waitcnt vmcnt({vn}) lgkmcnt(0)")
            a.label(f"L_bw2_{n}")
        else:
            a(f"s_waitcnt vmcnt({vn}) lgkmcnt(0)")
        a.lds_q = []
        a("s_barrier")

    def cap(fn):
        n0 = len(a.lines); q0 = list(a.lds_q)
        fn()
        ls = a.lines[n0:]; del a.lines[n0:]; a.lds_q = q0
        return ls
    def is_scalar(ln):
        return ln.strip().startswith("s_")
    class Gaps:
        def __init__(self, n):
            self.n = n; self.S = [[] for _ in range(n)]; self.V = [[] for _ in range(n)]; self.c = [0] * n
        def putS(self, ln, lo, hi=None):
            for g in range(lo, self.n):
                if len(self.S[g]) == 0:
                    self.S[g].append(ln); return g
            self.S[self.n - 1].append(ln); return self.n - 1
        def putV(self, ln, lo, cost=1, cap_=2):
            for g in range(lo, self.n):
                if self.c[g] + cost <= cap_:
                    self.V[g].append(ln); self.c[g] += cost; return g
            self.V[self.n - 1].append(ln); self.c[self.n - 1] += cost; return self.n - 1
        def atV(self, ln, g, cost=1):
            self.V[g].append(ln); self.c[g] += cost
        def atS(self, ln, g):
            self.S[g].append(ln)
    def qp_stage2(sm, first, dma, last, chk, after_store, vn, nok, sidx):
        buf = sm & 1; nslot = (sm + 1) & 3
        BAR = qbar
        G = Gaps(56)
        su = cap(lambda: dma_setup(sm, dma))
        g = BAR - 1
        g = 0
        for ln in su:
            g = G.putS(ln, g) + 1
        prev = g
        for i in range(8):
            ls = cap(lambda: dma_one(False))
            tg = max(qd0 + qdstep * i, prev)
            pre_ = [l for l in ls if is_scalar(l) and "m0" not in l]
            ld = [l for l in ls if not is_scalar(l)]
            post = [l for l in ls if is_scalar(l) and "m0" in l]
            for l in pre_: tg = G.putS(l, tg)
            for l in ld: G.atV(l, tg)
            prev = tg + 1
            for l in post: prev = G.putS(l, tg + 1) + 1
        dstate["i"] = 8
        if tch(sidx):
            k_ = sidx // tper
            tg = min(prev + 1, 54)
            G.atV(f"    buffer_load_dword v{V_S+12}, v{V_LIN}, s[{S_LD}:{S_LD+3}], s98 offen {tpol}".rstrip(), tg)
            G.putS(f"    s_add_u32 s98, s98, {tinc(k_)}", tg + 1)
        if qnrd: pass
        elif not last:
            lo = BAR - 1
            for ln in cap(lambda: wread(0, nslot)): lo = G.putV(ln, lo, cap_=1)
            for qt in range(7):
                for ln in cap(lambda: bread(buf ^ 1, qt, nslot)): lo = G.putV(ln, lo, cap_=1)
            for l in range(1, 8):
                lo = max(lo, min(7 * (l + 1) - 1, 55))
                for ln in cap(lambda: wread(l, nslot)): lo = G.putV(ln, lo, cap_=(1 if l < 7 else 2))
        elif not nok:
            lo = BAR - 1
            for f in range(8):
                for ln in cap(lambda: kread(f, nslot)): lo = G.putV(ln, lo, cap_=1)
        a("s_waitcnt lgkmcnt(14)")
        j = 0
        for l in range(8):
            for qt in range(7):
                c = "0" if first else oreg(l, qt)
                if qt == 0 and l > 0 and j < BAR: a(f"s_waitcnt lgkmcnt({14-2*l})")
                a(f"{MFMA} {oreg(l, qt)}, {vr(V_VF+4*l,4)}, {vr(bbuf(buf,qt),4)}, {c}")
                for ln in G.S[j]: a.lines.append(ln)
                if j == BAR - 1:
                    if not qnbar: barrier(after_store, 16, tvn(sidx))
                    if chk: flagcheck()
                for ln in G.V[j]: a.lines.append(ln)
                j += 1
    def qp_stage(sm, first=False, dma="QP", last=False, chk=False, after_store=False, kt_=False, vn=16, nok=False, role=None, ntouch=0, sidx=None):
        buf = sm & 1; nslot = (sm + 1) & 3
        if qps:
            return qp_stage2(sm, first, dma, last, chk, after_store, vn, nok, sidx)
        a("s_waitcnt lgkmcnt(14)")
        fq = []
        def cap(fn):
            n0 = len(a.lines); q0 = len(a.lds_q)
            fn()
            ls = a.lines[n0:]; del a.lines[n0:]; del a.lds_q[q0:]
            return ls
        BAR = 7
        if role != "T":
            for ln in cap(lambda: dma_setup(sm, dma)): fq.append((BAR, ln))
        if dma == "QP" and roll:
            fq.append((BAR, f"    s_lshl2_add_u32 s{S_B}, s{S_QSTEP}, s{S_DOFF}"))
            fq.append((BAR, f"    buffer_load_dword v0, v{V_T0}, s[{S_QP}:{S_QP+3}], s{S_B} offen{' nt' if tnt else ''}"))
        if kvt and kt_:
            fq.append((BAR, f"    buffer_load_dword v0, v{V_T3}, s[{S_LD}:{S_LD+3}], s101 offen{' nt' if kvtnt else ''}"))
            fq.append((BAR, f"    s_add_u32 s101, s101, 8192"))
        if not last:
            for ln in cap(lambda: wread(0, nslot)): fq.append((BAR, ln))
            for qt in range(7):
                for ln in cap(lambda: bread(buf ^ 1, qt, nslot)): fq.append((BAR, ln))
        elif not nok:
            for f in range(8):
                for ln in cap(lambda: kread(f, nslot)): fq.append((BAR, ln))
        for l in range(1, 8):
            if not last:
                for ln in cap(lambda: wread(l, nslot)): fq.append((7 * (l + 1), ln))
            if role == "T":
                if l == 1:
                    for _ in range(ntouch):
                        fq.append((BAR, f"    buffer_load_dword v0, v{V_T0}, s[60:63], s98 offen"))
                        fq.append((BAR, f"    s_add_u32 s98, s98, {32*8192}"))
                        fq.append((BAR, f"    buffer_load_dword v0, v{V_T1}, s[{S_QP}:{S_QP+3}], s99 offen"))
                        fq.append((BAR, f"    s_add_u32 s99, s99, 64"))
                continue
            for ln in cap(lambda: dma_one(True)): fq.append((BAR, ln))
            if role == "X":
                if l == 7:
                    fq.append((BAR, f"    s_add_u32 m0, s{S_LDB}, {AREA+sm*TILE}"))
                    fq.append((BAR, f"    s_add_u32 s{S_DOFF}, s{S_DOFF}, {112*1280}"))
                    for i in range(7):
                        fq.append((BAR, f"    s_add_u32 s{S_A}, s{S_DOFF}, s{S_TAB+i}"))
                        fq.append((BAR, f"    buffer_load_dwordx4 v{V_QD}, s[{S_QP}:{S_QP+3}], s{S_A} offen{' nt' if qnt else ''} lds"))
                        if i < 6: fq.append((BAR, f"    s_add_u32 m0, m0, 1024"))
            elif l == 7:
                for ln in cap(lambda: dma_one(True)): fq.append((BAR, ln))
        j = 0
        for l in range(8):
            for qt in range(7):
                c = "0" if first else oreg(l, qt)
                a(f"{MFMA} {oreg(l, qt)}, {vr(V_VF+4*l,4)}, {vr(bbuf(buf,qt),4)}, {c}")
                j += 1
                if j == BAR:
                    barrier(after_store, vn if (roll or role) else 16)
                    if chk: flagcheck()
                    if trace:
                        a("s_memtime s[78:79]")
                        a("s_waitcnt lgkmcnt(0)")
                        a(f"v_cmp_eq_u32 vcc, s77, v{V_LANE}")
                        a(f"v_mov_b32 v{V_T2}, s78")
                        a("s_nop 1")
                        a(f"v_cndmask_b32 v{V_T3}, v{V_T3}, v{V_T2}, vcc")
                        a("s_add_u32 s77, s77, 1")
                k = 0; idx = 0
                rem_gaps = 56 - j + 1
                quota = 1 if len(fq) <= rem_gaps else 2
                while k < quota and idx < len(fq):
                    if fq[idx][0] <= j and (idx == 0 or "ds_read" in fq[idx][1] or all("ds_read" in x[1] for x in fq[:idx])):
                        a.lines.append(fq[idx][1]); del fq[idx]; k += 1
                    else:
                        idx += 1
        for _, ln in fq: a.lines.append(ln)
        assert role in ("X", "T") or dstate["i"] == 8

    def sm_ops(par, i, first):
        S = V_S + 8 * par; P = V_P + 4 * par; L = V_L + 2 * i
        ops = []
        if first:
            T0, T1 = V_T0, V_T1
            ops += [f"v_max3_f32 v{T0}, v{S}, v{S+1}, v{L}", f"v_max3_f32 v{T1}, v{S+2}, v{S+3}, v{S+4}",
                    f"v_max3_f32 v{T0}, v{S+5}, v{S+6}, v{T0}", f"v_max3_f32 v{T0}, v{S+7}, v{T0}, v{T1}",
                    f"v_mov_b32 v{T1}, v{T0}", "s_nop 1", f"v_permlane16_swap_b32 v{T0}, v{T1}", "s_nop 1", f"v_max_f32 v{T0}, v{T0}, v{T1}",
                    f"v_mov_b32 v{T1}, v{T0}", "s_nop 1", f"v_permlane32_swap_b32 v{T0}, v{T1}", "s_nop 1", f"v_max_f32 v{T0}, v{T0}, v{T1}",
                    f"v_mov_b32 v{L}, 0", f"v_mov_b32 v{L+1}, 0"]
            ops += [f"v_sub_f32 v{S+r}, v{S+r}, v{T0}" for r in range(8)]
            ops += [f"v_sub_f32 v{V_CI+4*i+r}, 0, v{T0}" for r in range(4)]
        e = lambda r: ops.append(f"v_exp_f32 v{S+r}, v{S+r}")
        e(0); e(1)
        for r in range(0, 8, 2):
            if r + 2 < 8: e(r + 2); e(r + 3)
            if not ones:
                ops.append(f"v_add_f32 v{L}, v{L}, v{S+r}")
                ops.append(f"v_add_f32 v{L+1}, v{L+1}, v{S+r+1}")
            ops.append(f"v_cvt_pk_bf16_f32 v{P+r//2}, v{S+r}, v{S+r+1}")
        return ops

    def qk_items(qt, par, czero, kr):
        it = []
        for f in range(8):
            kt, s = f >> 2, f & 3
            D = vr(V_S + 8 * par + 4 * kt, 4)
            c = ("0" if czero else vr(V_CI + 4 * qt, 4)) if s == 0 else D
            it.append(("K" if f == 0 else None, f"{MFMA} {D}, {vr(V_KF+4*f,4)}, {ar(A_Q+16*qt+4*s,4)}, {c}",
                       (lambda f=f: kread(f, kr)) if kr is not None else None))
        return it
    def pv_items(qt, par, czero, vrd):
        it = []
        for l in range(8):
            c = "0" if czero else oreg(l, qt)
            it.append(("V" if l == 0 else None, f"{MFMA} {oreg(l, qt)}, {vr(V_VF+4*l,4)}, {vr(V_P+4*par,4)}, {c}",
                       (lambda l=l: vread(l, vrd)) if vrd is not None else None))
        for _ in range(xmfma):
            D = ar(A_LS + 4 * qt, 4)
            it.append((None, f"{MFMA} {D}, {vr(V_VF,4)}, {vr(V_P+4*par,4)}, {D}", None))
        if ones:
            D = ar(A_LS + 4 * qt, 4)
            it.append((None, f"{MFMA} {D}, {ar(A_ONE,4)}, {vr(V_P+4*par,4)}, {'0' if czero else D}", None))
        return it

    def capture(fn):
        n0 = len(a.lines)
        fn()
        ls = a.lines[n0:]; del a.lines[n0:]
        return ls
    def emit(items, va, fill=None, nfill=0):
        cost = lambda op: 2 if "v_exp" in op else 1
        tot = sum(cost(o) for o in va); acc = 0; k = 0; ng = len(items)
        pos = [int((i + 0.5) * ng / max(nfill, 1)) for i in range(nfill)]
        for j, (need, m, post) in enumerate(items):
            if m:
                if need: a.lds_wait({need})
                a(m)
            if post: post()
            for _ in range(pos.count(j)):
                if fill: a.lines.append(fill.pop(0))
            while k < len(va) and acc + cost(va[k]) <= tot * (j + 1) / ng + 0.01:
                a(va[k]); acc += cost(va[k]); k += 1
        assert k == len(va)

    state = {"n": 0}
    def dma_lines(slot, kind, pad=False):
        def f():
            dma_setup(slot, kind)
            for _ in range(8): dma_one(pad)
            if xmem and kind == "KV":
                a(f"s_mul_i32 s{S_A}, s{S_WAVE}, 7168")
                a(f"s_add_u32 m0, s{S_A}, {4*AREA+5120}")
                a(f"s_add_u32 s{S_A}, s{S_DOFF}, s76")
                for i in range(xmem):
                    a(f"buffer_load_dwordx4 v{V_DMA}, s[72:75], s{S_A} offen offset:{256*i} nt lds")
        return capture(f)
    def step(jm, first=False, last=False, dma="KV", nt_=0, tr_=False, dyn=False):
        fill = [] if (first or early) else dma_lines((jm + 3) & 3, dma)
        nf = (len(fill) + 3) // 4
        for i in range(7):
            if strace and tr_:
                pr = [36, 38, 40, 42, 56, 58, 60, 62]
                a(f"s_memtime s[{pr[i]}:{pr[i]+1}]")
            if i in (1, 2, 3)[:nt_]: touch_one()
            n = state["n"]; par = n & 1
            items = []
            nfill = nf if 1 <= i <= 4 else 0
            if i == 5:
                assert not fill
                barrier(dyn)
                if first: flagcheck()
                if last or early:
                    fill = dma_lines(jm, dma, True if last else False); nf = (len(fill) + 1) // 2
            if (last or early) and i >= 5: nfill = nf
            if i < 6:
                items += qk_items(i + 1, par ^ 1, first, ((jm + 1) & 3) if (i == 5 and (not last or dma == "KV")) else None)
            elif not last:
                items += qk_items(0, par ^ 1, False, None)
            else:
                if dma == "KV": qreload()
                a("s_nop 1")
            if i > 0:
                items += pv_items(i - 1, par ^ 1, first, None)
            elif not first:
                items += pv_items(6, par ^ 1, False, jm)
            else:
                items += [(None, None, (lambda l=l: vread(l, jm))) for l in range(8)]
            emit(items, sm_ops(par, i, first), fill, nfill)
            state["n"] = n + 1
        assert not fill

    def qstash_off():
        a(f"s_lshl_b32 s{S_C}, s2, 2")
        a(f"s_add_u32 s{S_C}, s{S_C}, s{S_WAVE}")
        a(f"s_mul_i32 s{S_C}, s{S_C}, 28672")
        a(f"v_lshlrev_b32 v{V_T2}, 4, v{V_LANE}")
    def qreload():
        qstash_off()
        for i in range(7):
            for s_ in range(4):
                a(f"buffer_load_dwordx4 {ar(A_Q+16*i+4*s_,4)}, v{V_T2}, s[{S_W}:{S_W+3}], s{S_C} offen offset:{1024*s_}")
            if i < 6: a(f"s_add_u32 s{S_C}, s{S_C}, 4096")

    def flagcheck():
        lab = f"L_at_nofb_{len(a.lines)}"
        a(f"s_cmp_le_u32 s{S_T}, s{S_T0}")
        a(f"s_cbranch_scc1 {lab}")
        a(f"s_sub_u32 s{S_A}, s{S_T}, 1")
        a(f"s_cmp_eq_u32 s{S_A}, s{S_NOFB}")
        a(f"s_cbranch_scc1 {lab}")
        a(f"s_lshl_b32 s{S_B}, s{S_A}, 2")
        a(f"s_add_u32 s{S_B}, s{S_B}, {LDS_FLAG}")
        a(f"v_mov_b32 v{V_T2}, s{S_B}")
        a(f"ds_read_b32 v{V_T2}, v{V_T2}")
        a("s_waitcnt lgkmcnt(0)")
        a(f"v_readfirstlane_b32 s{S_B}, v{V_T2}")
        a("s_nop 3")
        a(f"s_cmp_lg_u32 s{S_B}, 0")
        a(f"s_cbranch_scc1 L_at_fallback")
        a.label(lab)

    def wo_issue(ps):
        D = V_S
        a(f"s_mov_b32 s{S_A}, 6554")
        for i in range(5):
            a(f"v_add_u32 v{V_T0}, {64*i}, v{V_LANE}")
            a(f"v_mul_u32_u24 v{V_T1}, s{S_A}, v{V_T0}")
            a(f"v_lshrrev_b32 v{V_T1}, 16, v{V_T1}")
            a(f"v_mul_u32_u24 v{V_T2}, 10, v{V_T1}")
            a(f"v_sub_u32 v{V_T2}, v{V_T0}, v{V_T2}")
            a(f"v_mul_u32_u24 v{V_T1}, 1280, v{V_T1}")
            a(f"v_lshl_add_u32 v{D+i}, v{V_T2}, 4, v{V_T1}")
        a(f"s_and_b32 s{S_A}, s2, 127")
        a(f"s_mul_i32 s{S_A}, s{S_A}, {32*1280}")
        a(f"s_mul_i32 s{S_B}, s{S_WAVE}, 320")
        a(f"s_add_u32 s{S_A}, s{S_A}, s{S_B}")
        a(f"s_add_u32 s{S_A}, s{S_A}, {160*ps}")
        a(f"s_mul_i32 s{S_D}, s{S_WAVE}, 7168")
        a(f"s_add_u32 s{S_D}, s{S_D}, {4*AREA}")
        for i in range(5):
            a(f"s_add_u32 m0, s{S_D}, {1024*i}")
            a("s_nop 0")
            a(f"buffer_load_dwordx4 v{D+i}, s[84:87], s{S_A} offen{' nt' if wont else ''} lds")
    def wo_finish(ps):
        a(f"v_lshrrev_b32 v{V_T0}, 4, v{V_LANE}")
        a(f"v_bfe_u32 v{V_T1}, v{V_LANE}, 2, 2")
        a(f"v_lshl_add_u32 v{V_T1}, v{V_T0}, 3, v{V_T1}")
        a(f"v_mul_u32_u24 v{V_T1}, 160, v{V_T1}")
        a(f"v_and_b32 v{V_T2}, 3, v{V_LANE}")
        a(f"v_lshl_add_u32 v{V_T1}, v{V_T2}, 3, v{V_T1}")
        a(f"s_mul_i32 s{S_D}, s{S_WAVE}, 7168")
        a(f"s_add_u32 s{S_D}, s{S_D}, {4*AREA}")
        a(f"v_add_u32 v{V_T1}, s{S_D}, v{V_T1}")
        a(f"v_lshlrev_b32 v{V_T2}, 4, v{V_LANE}")
        a(f"s_mul_i32 s{S_A}, s2, {40*1024}")
        a(f"s_mul_i32 s{S_B}, s{S_WAVE}, {10*1024}")
        a(f"s_add_u32 s{S_A}, s{S_A}, s{S_B}")
        a(f"s_add_u32 s{S_A}, s{S_A}, {WS_W+5120*ps}")
        R = V_VF
        for t in range(5):
            for v in range(2):
                a(f"ds_read_b64_tr_b16 {vr(R+4*t+2*v,2)}, v{V_T1} offset:{v*640+t*32}")
        a("s_waitcnt lgkmcnt(0)")
        for f in range(5):
            if f == 4: a(f"s_add_u32 s{S_A}, s{S_A}, 4096")
            a(f"buffer_store_dwordx4 {vr(R+4*f,4)}, v{V_T2}, s[{S_W}:{S_W+3}], s{S_A} offen offset:{1024*(f&3)}")
        a("s_nop 1")

    def rt_setup():
        a(f"s_bfe_u32 s{S_A}, s2, 0x20003")
        a(f"s_lshl_b32 s{S_A}, s{S_A}, 3")
        a(f"v_lshrrev_b32 v{V_T0}, 3, v{V_LANE}")
        a(f"v_add_u32 v{V_T0}, s{S_A}, v{V_T0}")
        a(f"v_lshlrev_b32 v{V_T0}, 13, v{V_T0}")
        a(f"v_and_b32 v{V_T2}, 7, v{V_LANE}")
        a(f"v_lshl_add_u32 v{V_T0}, v{V_T2}, 5, v{V_T0}")
        a(f"v_bfe_u32 v{V_T1}, v{V_LANE}, 1, 4")
        a(f"v_min_u32 v{V_T1}, 13, v{V_T1}")
        a(f"s_and_b32 s{S_A}, s2, 7")
        a(f"s_mul_i32 s{S_A}, s{S_A}, 14")
        a(f"v_add_u32 v{V_T1}, s{S_A}, v{V_T1}")
        a(f"v_mul_u32_u24 v{V_T1}, 1280, v{V_T1}")
        a(f"v_and_b32 v{V_T2}, 1, v{V_LANE}")
        a(f"v_lshl_add_u32 v{V_T1}, v{V_T2}, 5, v{V_T1}")
        a(f"s_cmp_eq_u32 s{S_QH}, 0")
        a("s_cselect_b64 vcc, -1, 0")
        a("s_nop 1")
        a(f"v_cndmask_b32 v{V_T0}, v{V_T1}, v{V_T0}, vcc")
    def dly(us, tag):
        a("s_memrealtime s[78:79]")
        a("s_waitcnt lgkmcnt(0)")
        a(f"s_add_u32 s77, s78, {us*100}")
        a.label(f"L_dl{tag}")
        a("s_sleep 4")
        a("s_memrealtime s[78:79]")
        a("s_waitcnt lgkmcnt(0)")
        a("s_sub_u32 s79, s78, s77")
        a("s_cmp_lt_i32 s79, 0")
        a(f"s_cbranch_scc1 L_dl{tag}")
    def st(k):
        if pst:
            a("s_memrealtime s[78:79]")
            a("s_memtime s[80:81]")
            a("s_waitcnt lgkmcnt(0)")
            a("s_mov_b32 m0, s77"); a("s_nop 0"); a("v_writelane_b32 v0, s78, m0")
            a("s_add_u32 m0, s77, 30"); a("s_nop 0"); a("v_writelane_b32 v0, s80, m0")
            a("s_add_u32 s77, s77, 1")
        if stamp:
            if st0:
                n = len(a.lines)
                a(f"s_cmp_ge_u32 s{S_T}, {1 if k < 3 else 2}")
                a(f"s_cbranch_scc1 L_st_{n}")
            a(f"s_memtime s[{72+2*k}:{73+2*k}]")
            if st0: a.label(f"L_st_{n}")
    if pst:
        a("s_memrealtime s[78:79]")
        a("s_memtime s[80:81]")
        a("s_waitcnt lgkmcnt(0)")
        a("v_mov_b32 v0, 0")
        a("v_writelane_b32 v0, s78, 0")
        a("v_writelane_b32 v0, s80, 30")
        a("s_mov_b32 s77, 1")
    if delay:
        a("s_bitcmp1_b32 s2, 0")
        a("s_cbranch_scc0 L_nodelay")
        a("s_memrealtime s[78:79]")
        a("s_waitcnt lgkmcnt(0)")
        a(f"s_add_u32 s77, s78, {delay*100}")
        a.label("L_dl")
        a("s_sleep 8")
        a("s_memrealtime s[78:79]")
        a("s_waitcnt lgkmcnt(0)")
        a("s_sub_u32 s79, s78, s77")
        a("s_cmp_lt_i32 s79, 0")
        a("s_cbranch_scc1 L_dl")
        a.label("L_nodelay")
    a.label("L_at_start")
    if trace:
        a("s_mov_b32 s77, 1")
        a(f"v_mov_b32 v{V_T3}, s64")
        a("s_memtime s[78:79]")
        a("s_waitcnt lgkmcnt(0)")
        a(f"v_cmp_eq_u32 vcc, s77, v{V_LANE}")
        a(f"v_mov_b32 v{V_T2}, s78")
        a("s_nop 1")
        a(f"v_cndmask_b32 v{V_T3}, v{V_T3}, v{V_T2}, vcc")
        a("s_add_u32 s77, s77, 1")
    a(f"s_mov_b32 s{S_T}, s{S_T0}")
    a(f"s_lshl_b32 s{S_DJ}, s{S_T0}, 5")
    a(f"s_add_u32 s{S_D}, s{S_T}, s{S_PRE}")
    qs_init(S_D, "pre")
    if roll:
        rt_setup()
        for sl in range(2):
            dma_setup(sl, "QP")
            for _ in range(8): dma_one(True)
        a(f"s_mov_b32 s{S_B}, s{S_QS}")
        for _ in range(6):
            a(f"buffer_load_dword v0, v{V_T0}, s[{S_QP}:{S_QP+3}], s{S_B} offen{' nt' if tnt else ''}")
            a(f"s_add_u32 s{S_B}, s{S_B}, s{S_QSTEP}")
        for sl in range(2, 4):
            dma_setup(sl, "QP")
            for _ in range(8): dma_one(True)
        a(f"s_waitcnt vmcnt(30) lgkmcnt(0)")
    else:
        for sl in range(4):
            dma_setup(sl, "QP")
            for _ in range(8): dma_one(True)
        if tlbw:
            a(f"v_lshlrev_b32 v{V_S+13}, 12, v{V_LANE}")
            a(f"buffer_load_dword v{V_S+12}, v{V_S+13}, s[{S_LD}:{S_LD+3}], 0 offen nt")
            if tlbw > 1:
                a(f"s_mov_b32 s{S_A}, 0x80000")
                a(f"buffer_load_dword v{V_S+12}, v{V_S+13}, s[{S_LD}:{S_LD+3}], s{S_A} offen nt")
        if bulk0 and touch:
            touch_init(S_D)
            for _ in range(5): touch_one()
        if cpf and cpflate:
            for k in range(cpf // 16):
                a(f"s_mov_b32 s76, {k*16384}")
                a("buffer_load_dword v104, v105, s[72:75], s76 offen")
        a(f"s_waitcnt vmcnt({(29 if (bulk0 and touch) else 24) + (cpf // 16 if cpflate else 0)}) lgkmcnt(0)")
    a("s_barrier")
    a.label("L_at_round")
    st(0)
    if roll: rt_setup()
    for l in range(8): wread(l, 0)
    for qt in range(7): bread(0, qt, 0)
    a.lds_wait_all()
    def qp_body(role):
        sfx = role or ""
        vns = {None: (22, 17, 18, 18, 18), "W": (16, 16, 16, 16, 16), "X": (16, 22, 28, 28, 28), "T": (16, 20, 20, 63, 63)}[role]
        nts = (6, 4, 4, 2)
        qp_stage(0, first=True, chk=True, after_store=True, vn=vns[0], role=role, ntouch=nts[0], sidx=0)
        qp_stage(1, after_store=True, vn=vns[1], role=role, ntouch=nts[1], sidx=1)
        qp_stage(2, after_store=True, vn=vns[2], role=role, ntouch=nts[2], sidx=2)
        qp_stage(3, vn=vns[3], role=role, ntouch=nts[3], sidx=3)
        a(f"s_cmp_lg_u32 s{S_WO}, 0")
        a(f"s_cbranch_scc1 L_at_nowo0{sfx}")
        a(f"s_mov_b32 s{S_WO}, 1")
        wo_issue(0)
        if roll: rt_setup()
        a.label(f"L_at_nowo0{sfx}")
        a(f"s_mov_b32 s{S_CNT}, 0")
        a.label(f"L_at_qploop{sfx}")
        a.lds_q = []
        for sm in range(4): qp_stage(sm, vn=vns[4], role=role, sidx=4+sm)
        a(f"s_add_u32 s{S_CNT}, s{S_CNT}, 1")
        a(f"s_cmp_lt_u32 s{S_CNT}, 3")
        a(f"s_cbranch_scc1 L_at_qploop{sfx}")
    if not roles:
        qp_body(None)
    else:
        a(f"s_cmp_eq_u32 s{S_WAVE}, 1")
        a("s_cbranch_scc1 L_at_qpX")
        a(f"s_cmp_eq_u32 s{S_WAVE}, 3")
        a("s_cbranch_scc1 L_at_qpT")
        qp_body("W")
        a("s_branch L_at_qpjoin")
        a.label("L_at_qpX")
        qp_body("X")
        a("s_branch L_at_qpjoin")
        a.label("L_at_qpT")
        a(f"s_bfe_u32 s{S_A}, s2, 0x20003")
        a(f"s_lshl_b32 s{S_A}, s{S_A}, 3")
        a(f"v_lshrrev_b32 v{V_T0}, 3, v{V_LANE}")
        a(f"v_add_u32 v{V_T0}, s{S_A}, v{V_T0}")
        a(f"v_lshlrev_b32 v{V_T0}, 13, v{V_T0}")
        a(f"v_and_b32 v{V_T1}, 7, v{V_LANE}")
        a(f"v_lshl_add_u32 v{V_T0}, v{V_T1}, 6, v{V_T0}")
        a(f"v_min_u32 v{V_T1}, 27, v{V_LANE}")
        a(f"s_and_b32 s{S_A}, s2, 7")
        a(f"s_mul_i32 s{S_B}, s{S_A}, 28")
        a(f"v_add_u32 v{V_T1}, s{S_B}, v{V_T1}")
        a(f"v_mul_u32_u24 v{V_T1}, 1280, v{V_T1}")
        a(f"s_lshl_b32 s{S_A}, s{S_A}, 10")
        a(f"s_lshl_b32 s{S_B}, s101, 9")
        a(f"s_add_u32 s98, s{S_A}, s{S_B}")
        a(f"s_add_u32 s98, s98, {4*32*8192}")
        a(f"s_bfe_u32 s{S_A}, s2, 0x40003")
        a(f"s_mul_i32 s99, s{S_A}, {224*1280}")
        a(f"s_add_u32 s99, s99, {4*64}")
        qp_body("T")
        a.label("L_at_qpjoin")
    a(f"s_cmp_lg_u32 s{S_PRE}, 0")
    a("s_cbranch_scc1 L_at_qptailB")
    for sm in range(4): qp_stage(sm, dma="KV", last=(sm == 3), vn=(18, 17, 16, 16)[sm], sidx=16+sm)
    a("s_branch L_at_qpepi")
    a.label("L_at_qptailB")
    qs_init(S_T)
    a.lds_q = []
    for sm in range(4): qp_stage(sm, dma="QP", last=(sm == 3), vn=18, nok=True, sidx=16+sm)
    a.label("L_at_qpepi")
    if qdelay: dly(qdelay, "q")
    st(1)
    if trace:
        a("s_cmp_lg_u32 s2, 5")
        a("s_cbranch_scc1 L_tr_skip")
        a(f"s_cmp_lg_u32 s{S_T}, 0")
        a("s_cbranch_scc1 L_tr_skip")
        a(f"s_cmp_lg_u32 s{S_WAVE}, 0")
        a("s_cbranch_scc1 L_tr_skip")
        a("s_mov_b32 s80, s46"); a("s_mov_b32 s81, s47"); a("s_mov_b32 s82, 256"); a("s_mov_b32 s83, 0x20000")
        a(f"v_lshlrev_b32 v{V_T2}, 2, v{V_LANE}")
        a(f"v_add_u32 v{V_T2}, 128, v{V_T2}")
        a(f"buffer_store_dword v{V_T3}, v{V_T2}, s[80:83], 0 offen")
        a.label("L_tr_skip")
    a(f"v_mov_b32 v{V_T2}, s{S_CS}")
    a(f"v_mov_b32 v{V_T3}, s{S_CS}")
    a("s_nop 6")
    TMP = V_S
    for T in range(4):
        if T < 2:
            base = lambda e, qt: V_OK + 28 * (2 * T + e) + 4 * qt
        else:
            base = lambda e, qt: V_OK + 28 * (2 * (T - 2) + e) + 4 * qt
            for e in range(2):
                for qt in range(7):
                    for r in range(4):
                        a(f"v_accvgpr_read_b32 v{base(e,qt)+r}, a{A_OS+28*(2*(T-2)+e)+4*qt+r}")
        for e in range(2):
            for qt in range(7):
                o = base(e, qt)
                for h in range(2):
                    a(f"v_pk_mul_f32 {vr(o+2*h,2)}, {vr(o+2*h,2)}, {vr(V_T2,2)}")
        pk = lambda qt: TMP + 28 * (T & 1) + 4 * qt
        for qt in range(7):
            oe = base(0, qt); oo = base(1, qt); p = pk(qt)
            a(f"v_cvt_pk_bf16_f32 v{p}, v{oe}, v{oe+1}")
            a(f"v_cvt_pk_bf16_f32 v{p+1}, v{oe+2}, v{oe+3}")
            a(f"v_cvt_pk_bf16_f32 v{p+2}, v{oo}, v{oo+1}")
            a(f"v_cvt_pk_bf16_f32 v{p+3}, v{oo+2}, v{oo+3}")
        a("s_nop 1")
        for qt in range(7):
            p = pk(qt)
            a(f"v_permlane16_swap_b32 v{p}, v{p+2}")
            a(f"v_permlane16_swap_b32 v{p+1}, v{p+3}")
        for qt in range(7):
            for r in range(4):
                a(f"v_accvgpr_write_b32 a{A_Q+16*qt+4*T+r}, v{pk(qt)+r}")
    a(f"s_cmp_eq_u32 s{S_PRE}, 0")
    a("s_cbranch_scc1 L_at_nostash")
    a(f"s_mov_b32 s{S_PRE}, 0")
    qstash_off()
    for i in range(7):
        for s_ in range(4):
            a(f"buffer_store_dwordx4 {ar(A_Q+16*i+4*s_,4)}, v{V_T2}, s[{S_W}:{S_W+3}], s{S_C} offen offset:{1024*s_}")
        if i < 6: a(f"s_add_u32 s{S_C}, s{S_C}, 4096")
    a(f"s_mov_b32 s{S_AS}, 3")
    a("s_branch L_at_round")
    a.label("L_at_nostash")
    a(f"s_cmp_lg_u32 s{S_MP}, 0")
    a("s_cbranch_scc1 L_at_maxpass")
    a.label("L_at_pre")
    a(f"s_cmp_lg_u32 s{S_WO}, 1")
    a("s_cbranch_scc1 L_at_nowo1")
    a(f"s_mov_b32 s{S_WO}, 2")
    wo_finish(0)
    wo_issue(1)
    a.label("L_at_nowo1")
    st(2)
    a.lds_q = ["K"]
    state["n"] = 0
    z = []
    for l in range(8):
        for r in range(4):
            z.append(f"v_mov_b32 v{V_OK+28*l+24+r}, 0" if l < 4 else f"v_accvgpr_write_b32 a{A_OS+28*(l-4)+24+r}, 0")
    if ones: z += [f"v_accvgpr_write_b32 a{A_LS+24+r}, 0" for r in range(4)]
    emit(qk_items(0, 0, True, None), z[:16])
    for o in z[16:]: a(o)
    step(0, first=True, dyn=True)
    a(f"s_mov_b32 s{S_CNT}, 0")
    if align:
        a.lines.append(".p2align 6")
        if align == 2: a("s_nop 0")
    a.label("L_at_loop")
    q0 = list(a.lds_q)
    for jm in (1, 2, 3, 0): step(jm, dyn=(jm in (1, 2)))
    assert q0 == a.lds_q, (q0, a.lds_q)
    if pstl:
        a("s_memrealtime s[78:79]")
        a("s_memtime s[80:81]")
        a("s_waitcnt lgkmcnt(0)")
        a("s_mov_b32 s76, m0")
        a("s_mov_b32 m0, s77"); a("s_nop 0"); a("v_writelane_b32 v0, s78, m0")
        a("s_add_u32 m0, s77, 30"); a("s_nop 0"); a("v_writelane_b32 v0, s80, m0")
        a("s_add_u32 s77, s77, 1")
        a("s_mov_b32 m0, s76")
    a(f"s_add_u32 s{S_CNT}, s{S_CNT}, 1")
    a(f"s_cmp_lt_u32 s{S_CNT}, 6")
    a("s_cbranch_scc1 L_at_loop")
    a(f"s_add_u32 s{S_T}, s{S_T}, 1")
    touch_init(S_T)
    step(1, nt_=3); step(2, nt_=2); step(3, tr_=True)
    if strace: a("s_memtime s[62:63]")
    qs_init(S_T)
    if not early: step(0)
    a(f"s_cmp_lg_u32 s{S_TY}, 0")
    a("s_cbranch_scc1 L_at_atailB")
    n0 = state["n"]; q0 = list(a.lds_q)
    if early: step(0, dma="QP")
    step(1, dma="QP"); step(2, dma="QP"); step(3, dma="QP", last=True)
    a("s_branch L_at_aepi")
    a.label("L_at_atailB")
    state["n"] = n0; a.lds_q = q0
    if early: step(0)
    step(1); step(2); step(3, last=True)
    a.label("L_at_aepi")
    if adelay: dly(adelay, "a")
    a.lds_q = ["V"]
    st(3)
    E = V_S
    red = [f"v_add_f32 v{V_L+2*i}, v{V_L+2*i}, v{V_L+2*i+1}" for i in range(7)]
    red += [f"v_mov_b32 v{E+i}, v{V_L+2*i}" for i in range(7)]
    red += [f"v_permlane16_swap_b32 v{V_L+2*i}, v{E+i}" for i in range(7)]
    red += [f"v_add_f32 v{V_L+2*i}, v{V_L+2*i}, v{E+i}" for i in range(7)]
    red += [f"v_mov_b32 v{E+i}, v{V_L+2*i}" for i in range(7)]
    red += [f"v_permlane32_swap_b32 v{V_L+2*i}, v{E+i}" for i in range(7)]
    red += [f"v_add_f32 v{V_L+2*i}, v{V_L+2*i}, v{E+i}" for i in range(7)]
    a("s_nop 1")
    if ones:
        emit(pv_items(6, 1, False, None), [])
        a("s_nop 7")
        for i in range(7): a(f"v_accvgpr_read_b32 v{V_L+2*i}, a{A_LS+4*i}")
    else:
        emit(pv_items(6, 1, False, None), red)
    for i in range(7): a(f"v_rcp_f32 v{V_CI+4*i}, v{V_L+2*i}")
    a(f"v_add_f32 v{E+2}, v{V_L}, v{V_L+2}")
    a(f"v_add_f32 v{E+3}, v{V_L+4}, v{V_L+6}")
    a(f"v_add_f32 v{E+4}, v{V_L+8}, v{V_L+10}")
    a(f"v_add_f32 v{E+2}, v{E+2}, v{V_L+12}")
    a(f"v_add_f32 v{E+3}, v{E+3}, v{E+4}")
    a(f"v_add_f32 v{E+2}, v{E+2}, v{E+3}")
    a(f"v_cmp_nge_f32 vcc, s{S_THR}, v{E+2}")
    for i in range(7): a(f"v_mov_b32 v{V_L+2*i}, 0xff800000")
    a("s_cmp_eq_u64 vcc, 0")
    a("s_cbranch_scc1 L_at_noflag")
    if nofb: a("s_branch L_at_noflag")
    a(f"s_lshl_b32 s{S_B}, s{S_T}, 2")
    a(f"s_add_u32 s{S_B}, s{S_B}, {LDS_FLAG-4}")
    a(f"v_mov_b32 v{E+2}, s{S_B}")
    a(f"v_mov_b32 v{E+3}, 1")
    a(f"ds_write_b32 v{E+2}, v{E+3}")
    a.label("L_at_noflag")
    if rflip:
        a(f"s_sub_u32 s{S_D}, s{S_T}, 1")
        a(f"s_mul_i32 s{S_D}, s{S_D}, s99")
        a(f"s_add_u32 s{S_D}, s{S_D}, s{S_OOFF}")
    else:
        a(f"s_mul_i32 s{S_D}, s{S_T}, {2*PAIRB}")
        a(f"s_add_u32 s{S_D}, s{S_D}, s{S_OOFF}")
        a(f"s_sub_u32 s{S_D}, s{S_D}, {2*PAIRB}")
    for T in range(4):
        if T < 2:
            base = lambda e, qt: V_OK + 28 * (2 * T + e) + 4 * qt
        else:
            base = lambda e, qt: V_OK + 28 * (2 * (T - 2) + e) + 4 * qt
            for e in range(2):
                for qt in range(7):
                    for r in range(4):
                        a(f"v_accvgpr_read_b32 v{base(e,qt)+r}, a{A_OS+28*(2*(T-2)+e)+4*qt+r}")
        for e in range(2):
            for qt in range(7):
                o = base(e, qt)
                for h in range(2):
                    a(f"v_pk_mul_f32 {vr(o+2*h,2)}, {vr(o+2*h,2)}, {vr(V_CI+4*qt,2)} op_sel_hi:[1,0]")
        pk = lambda qt: V_S + 28 * (T & 1) + 4 * qt
        for qt in range(7):
            oe = base(0, qt); oo = base(1, qt); p = pk(qt)
            a(f"v_cvt_pk_bf16_f32 v{p}, v{oe}, v{oe+1}")
            a(f"v_cvt_pk_bf16_f32 v{p+1}, v{oe+2}, v{oe+3}")
            a(f"v_cvt_pk_bf16_f32 v{p+2}, v{oo}, v{oo+1}")
            a(f"v_cvt_pk_bf16_f32 v{p+3}, v{oo+2}, v{oo+3}")
        a("s_nop 1")
        for qt in range(7):
            p = pk(qt)
            a(f"v_permlane16_swap_b32 v{p}, v{p+2}")
            a(f"v_permlane16_swap_b32 v{p+1}, v{p+3}")
        a(f"s_mov_b32 s{S_A}, s{S_D}")
        for qt in range(7):
            if not nost: a(f"buffer_store_dwordx4 {vr(pk(qt),4)}, v{V_XA}, s[{S_W}:{S_W+3}], s{S_A} offen offset:{1024*T} {stpol}".rstrip())
            if dupst:
                a(f"s_sub_u32 s{S_B}, s{S_A}, {WS_O - 30000000}")
                a(f"buffer_store_dwordx4 {vr(pk(qt),4)}, v{V_XA}, s[72:75], s{S_B} offen offset:{1024*T}")
            if qt < 6: a(f"s_add_u32 s{S_A}, s{S_A}, 4096")
    a("s_nop 1")
    a(f"s_cmp_lg_u32 s{S_WO}, 2")
    a("s_cbranch_scc1 L_at_nowo2")
    a(f"s_mov_b32 s{S_WO}, 3")
    wo_finish(1)
    a.label("L_at_nowo2")
    a(f"s_mov_b32 s{S_AS}, 3")
    st(4)
    a.lds_q = []
    a(f"s_cmp_ge_u32 s{S_T}, 2")
    a("s_cbranch_scc1 L_at_fin")
    a(f"s_cmp_eq_u32 s{S_TY}, 0")
    a("s_cbranch_scc1 L_at_round")
    a(f"s_waitcnt vmcnt({56 if dupst else 28})")
    a("s_branch L_at_pre")
    a.label("L_at_fin")
    a("s_waitcnt lgkmcnt(0)")
    a("s_barrier")
    flagcheck()
    if pst:
        a("s_memrealtime s[78:79]")
        a("s_memtime s[80:81]")
        a("s_waitcnt lgkmcnt(0)")
        a("s_mov_b32 m0, s77"); a("s_nop 0"); a("v_writelane_b32 v0, s78, m0")
        a("s_add_u32 m0, s77, 30"); a("s_nop 0"); a("v_writelane_b32 v0, s80, m0")
        a("s_getreg_b32 s62, hwreg(HW_REG_XCC_ID)")
        a("v_writelane_b32 v0, s62, 63")
        a(f"v_writelane_b32 v0, s{S_TY}, 62")
        a(f"s_cmp_lg_u32 s{S_WAVE}, 0")
        a("s_cbranch_scc1 L_at_end")
        a("s_lshl_b32 s62, s2, 8"); a("s_add_u32 s62, s62, 50000000")
        a(f"v_lshlrev_b32 v2, 2, v{V_LANE}")
        a(f"buffer_store_dword v0, v2, s[{S_W}:{S_W+3}], s62 offen")
    if stamp:
        a("s_memtime s[56:57]")
        a("s_memrealtime s[58:59]")
        a("s_waitcnt lgkmcnt(0)")
        if allst:
            a("v_mov_b32 v2, s66"); a("v_mov_b32 v3, s58")
            a("s_sub_u32 s62, s56, s64"); a("v_mov_b32 v4, s62")
            a("s_getreg_b32 s62, hwreg(HW_REG_XCC_ID)"); a("v_mov_b32 v5, s62")
            a("s_lshl_b32 s62, s2, 4"); a("s_add_u32 s62, s62, 50000000"); a("v_mov_b32 v6, s62")
            a(f"buffer_store_dwordx4 v[2:5], v6, s[{S_W}:{S_W+3}], 0 offen")
        a(f"s_cmp_lg_u32 s2, {stwg}")
        a("s_cbranch_scc1 L_at_end")
        a("s_sub_u32 s56, s56, s64")
        a("s_sub_u32 s58, s58, s66")
        a("s_mov_b32 s84, s46")
        a("s_mov_b32 s85, s47")
        a("s_mov_b32 s86, 256")
        a("s_mov_b32 s87, 0x20000")
        a("v_mov_b32 v2, s56")
        a("v_mov_b32 v3, s58")
        a(f"s_lshl_b32 s62, s{S_WAVE}, 3")
        a("v_mov_b32 v4, s62")
        a("buffer_store_dwordx2 v[2:3], v4, s[84:87], 0 offen")
        if strace:
            pr = [36, 38, 40, 42, 56, 58, 60, 62]
            for i in range(7):
                a(f"s_sub_u32 s78, s{pr[i+1]}, s{pr[i]}")
                a("v_mov_b32 v2, s78")
                a(f"v_mov_b32 v4, {160+4*i}")
                a("buffer_store_dword v2, v4, s[84:87], 0 offen")
        a("s_sub_u32 s62, s72, s64")
        a("v_mov_b32 v2, s62")
        a(f"v_mov_b32 v4, {DBO+4*5}")
        a("buffer_store_dword v2, v4, s[84:87], 0 offen")
        for k in range(1, 5):
            a(f"s_sub_u32 s62, s{72+2*k}, s{70+2*k}")
            a("v_mov_b32 v2, s62")
            a(f"v_mov_b32 v4, {DBO+4*k}")
            a("buffer_store_dword v2, v4, s[84:87], 0 offen")
    a("s_branch L_at_end")

    a.label("L_at_fallback")
    a(f"s_sub_u32 s{S_T0}, s{S_T}, 1")
    a(f"s_mov_b32 s{S_NOFB}, s{S_T0}")
    a(f"s_mov_b32 s{S_MP}, 1")
    a(f"s_mov_b32 s{S_TY}, 0")
    a(f"s_mov_b32 s{S_PRE}, 0")
    a(f"s_mov_b32 s{S_AS}, 0")
    for i in range(7): a(f"v_mov_b32 v{V_L+2*i}, 0xff800000")
    a("s_waitcnt vmcnt(0) lgkmcnt(0)")
    a("s_barrier")
    a("s_branch L_at_start")
    a.label("L_at_maxpass")
    a(f"s_mov_b32 s{S_MP}, 0")
    a("s_waitcnt lgkmcnt(0)")
    a(f"v_and_b32 v{V_T0}, 15, v{V_LANE}")
    a(f"v_lshlrev_b32 v{V_T0}, 8, v{V_T0}")
    a(f"v_bfe_u32 v{V_T1}, v{V_LANE}, 4, 1")
    a(f"v_lshl_add_u32 v{V_T0}, v{V_T1}, 5, v{V_T0}")
    a(f"v_bfe_u32 v{V_T1}, v{V_LANE}, 5, 1")
    a(f"v_lshl_add_u32 v{V_T2}, v{V_T1}, 4, v{V_T0}")
    a(f"v_add_u32 v{V_T3}, 4096, v{V_T2}")
    a(f"s_lshl_b32 s{S_B}, s{S_T}, 19")
    if rflip: a(f"s_xor_b32 s{S_B}, s{S_B}, s101")
    a(f"s_mov_b32 s{S_CNT}, 0")
    a.label("L_at_mp")
    for f in range(8):
        a(f"buffer_load_dwordx4 {vr(V_VF+4*f,4)}, v{V_T2 + (f>>2)}, s[{S_K}:{S_K+3}], s{S_B} offen offset:{64*(f&3)}")
    a("s_waitcnt vmcnt(0)")
    for i in range(7):
        for f in range(8):
            kt, s = f >> 2, f & 3
            D = vr(V_S + 4 * kt, 4)
            a(f"{MFMA} {D}, {vr(V_VF+4*f,4)}, {ar(A_Q+16*i+4*s,4)}, {'0' if s == 0 else D}")
        a("s_nop 9")
        for r in range(0, 8, 2):
            a(f"v_max3_f32 v{V_L+2*i}, v{V_S+r}, v{V_S+r+1}, v{V_L+2*i}")
        a("s_nop 3")
    a(f"s_add_u32 s{S_B}, s{S_B}, 8192")
    a(f"s_add_u32 s{S_CNT}, s{S_CNT}, 1")
    a(f"s_cmp_lt_u32 s{S_CNT}, 32")
    a("s_cbranch_scc1 L_at_mp")
    a("s_branch L_at_pre")
    a.label("L_at_end")
    a("s_endpgm")
    return a.text()

if __name__ == "__main__":
    import sys
    name = "fused_kernel"
    opts = dict(x.split("=") for x in sys.argv[2:])
    opts = {k: bool(int(v)) for k, v in opts.items()}
    body = gen_fused(name, **opts)
    out = f"; @launch kernel={name} grid=(256,1,1) block=(256,1,1) lds={LDS_BYTES}\n"
    out += '.amdgcn_target "amdgcn-amd-amdhsa--gfx950"\n.text\n' + kernel_header(name) + body
    out += '.section .rodata,"a"\n.p2align 6\n' + kernel_desc(name, 512, accum=256)
    open(sys.argv[1], "w").write(out)
```

```python
from gen_common import *
import math

NQB = 3584 * 4096 * 2
WS_O = 2 * NQB
WS_W = 4 * NQB
WS_BYTES = 4 * NQB + 2 * 4096 * 640 * 2
PAIRB = 224 * 128 * 2

TILE = 8448
RING = 4
AREA = RING * TILE
LDS_BYTES = 163840
LDS_FLAG = 2 * AREA + 1024
LDS_FLAG = 2 * AREA + 8416

def kpad(i): return 1024 * i + 16 * ((i & 1) + 4 * (i >> 1))

V_LANE, V_T0, V_T1, V_T2, V_T3, V_LIN, V_DMA = 1, 2, 3, 4, 5, 6, 7
V_KA, V_VA, V_XA, V_WA = 8, 9, 10, 11
V_L = 12
V_QD, V_BA = 26, 27
V_CI = 28
V_KF = 56
V_S = 88
V_P = 104
V_VF = 112
V_OK = 144
A_Q = 0
A_OS = 112
A_LS = 224
A_ONE = 252
S_LD, S_K, S_W, S_QP = 4, 8, 12, 16
S_WAVE, S_T, S_CNT, S_NOFB, S_OOFF, S_MP, S_T0 = 20, 21, 22, 23, 24, 25, 27
S_A, S_B, S_C, S_D = 28, 29, 30, 31
S_THR, S_LDB, S_DJ, S_PJ, S_QH, S_DOFF = 32, 33, 34, 35, 48, 49
S_QS, S_QSTEP, S_QRND, S_MSTEP, S_CS = 50, 51, 52, 53, 54
S_TAB = 88
S_AS, S_TY, S_PRE, S_WO = 68, 69, 70, 71
MFMA = "v_mfma_f32_16x16x32_bf16"
def ar(a, n=1):
    return f"a{a}" if n == 1 else f"a[{a}:{a+n-1}]"

def gen_fused(name, nt=True, stamp=False, nofb=False, noload=False, nost=False, nox=False, now=False, st0=False, touch=False, kvt=False, kvtnt=False, nowo=False, tnt=False, qnt=False, wont=False, trace=False, DBO=64, ones=False, strace=False, xmem=0, xmfma=0, delay=0, tymask=1, stwg=4, roll=False, bulk0=True, wsbase=0, rot=True, rsh=1, dupst=False, allst=False, align=0, roles=False, fakex=False, early=False, qdelay=0, adelay=0, kvpol=None, xf=False, pst=False, kvl2=False, xq=False, pstl=False, kv0=False, qpnl=False, cpf=0, cpflate=False, qps=False, tymode=0, tyinv=False, xswap=False, qnrd=False, qnbar=False, qbar=7, qd0=9, qdstep=6, kvrot=0, kvgs=11, kvt2=0, kvts=64, tper=1, tpol='', tlbw=0, rflip=0, stpol='', defer=False, dpol='', dnp=3, wpol='', qpol=''):
    a = Asm()
    NT = " nt" if nt else ""
    if kvpol: NT = " " + kvpol
    a("s_cmp_ge_u32 s2, 256")
    a("s_cbranch_scc1 L_at_end")
    if cpf:
        a("s_getpc_b64 s[72:73]")
        a.label("L_pc0")
        a(f"s_mov_b32 s74, L_code_end - L_pc0")
        a("s_mov_b32 s75, 0x20000")
        a("v_lshlrev_b32 v105, 6, v0")
        if not cpflate:
          for k in range(cpf // 16):
            a(f"s_mov_b32 s76, {k*16384}")
            a("buffer_load_dword v104, v105, s[72:75], s76 offen")
    a("s_and_b32 s3, s2, 7")
    a("s_lshl_b32 s3, s3, 5")
    a("s_lshr_b32 s36, s2, 6")
    a("s_lshl_b32 s36, s36, 3")
    a("s_or_b32 s3, s3, s36")
    a("s_bfe_u32 s36, s2, 0x30003")
    a("s_or_b32 s2, s3, s36")
    if xswap: a("s_xor_b32 s2, s2, 32"); a("s_nop 0")
    a("s_load_dwordx8 s[36:43], s[0:1], 0")
    a("s_load_dwordx8 s[56:63], s[0:1], 40")
    a("s_load_dwordx2 s[44:45], s[0:1], 96")
    a("s_load_dwordx2 s[84:85], s[0:1], 32")
    a("s_load_dwordx2 s[86:87], s[0:1], 72")
    a(f"v_and_b32 v{V_LANE}, 63, v0")
    a(f"v_lshrrev_b32 v{V_T0}, 6, v0")
    a("s_nop 0")
    a(f"v_readfirstlane_b32 s{S_WAVE}, v{V_T0}")
    a("s_waitcnt lgkmcnt(0)")
    a(f"s_and_b32 s{S_QH}, s{S_WAVE}, 1")
    a(f"s_lshr_b32 s{S_PJ}, s{S_WAVE}, 1")
    a("s_cmp_ge_u32 s2, 128")
    for k in range(8):
        a(f"s_cselect_b32 s{36+k}, s{56+k}, s{36+k}")
    a("s_cselect_b32 s84, s86, s84")
    a("s_cselect_b32 s85, s87, s85")
    a(f"s_mov_b32 s86, {4096*640*2}")
    a("s_mov_b32 s87, 0x20000")
    a(f"s_and_b32 s{S_A}, s2, 127")
    a(f"s_lshl_b32 s{S_B}, s{S_A}, 20")
    a(f"s_lshl_b32 s{S_C}, s{S_PJ}, 18")
    a(f"s_add_u32 s{S_B}, s{S_B}, s{S_C}")
    a(f"s_add_u32 s38, s38, s{S_B}")
    a("s_addc_u32 s39, s39, 0")
    a(f"s_add_u32 s40, s40, s{S_B}")
    a("s_addc_u32 s41, s41, 0")
    a(f"s_sub_u32 s{S_C}, 0x100000, s{S_C}")
    a(f"s_mov_b32 s{S_K}, s38")
    a(f"s_mov_b32 s{S_K+1}, s39")
    a(f"s_mov_b32 s{S_K+2}, s{S_C}")
    a(f"s_mov_b32 s{S_K+3}, 0x20000")
    a(f"s_cmp_eq_u32 s{S_QH}, 0")
    a(f"s_cselect_b32 s{S_LD}, s38, s40")
    a(f"s_cselect_b32 s{S_LD+1}, s39, s41")
    a(f"s_mov_b32 s{S_LD+2}, {'0' if kv0 else 's'+str(S_C)}")
    a(f"s_mov_b32 s{S_LD+3}, 0x20000")
    if xf:
        a(f"s_add_u32 s36, s44, {4*NQB + 2*4096*640*2}")
        a("s_addc_u32 s37, s45, 0")
        a(f"s_cmp_eq_u32 s{S_QH}, 0")
    a(f"s_cselect_b32 s{S_QP}, s42, s36")
    a(f"s_cselect_b32 s{S_QP+1}, s43, s37")
    a(f"s_mov_b32 s{S_A}, {0 if now else 640*4096*2}")
    a(f"s_mov_b32 s{S_B}, {0 if nox else (2*3584*640*2 if xf else 3584*640*2)}")
    a(f"s_cselect_b32 s{S_QP+2}, s{S_A}, s{S_B}")
    a(f"s_mov_b32 s{S_QP+3}, 0x20000")
    a(f"s_mov_b32 s{S_A}, {32*8192}")
    a(f"s_mov_b32 s{S_B}, {7168 if (fakex or xf) else 64}")
    a(f"s_cselect_b32 s{S_QSTEP}, s{S_A}, s{S_B}")
    a(f"s_cselect_b32 s{S_QRND}, 512, 0")
    a(f"s_mov_b32 s{S_A}, 1056")
    a(f"s_mov_b32 s{S_B}, 1024")
    a(f"s_cselect_b32 s{S_MSTEP}, s{S_A}, s{S_B}")
    for i in range(8):
        a(f"s_mov_b32 s{S_A}, {((i&3)+8*(i>>2))*8192}")
        a(f"s_mov_b32 s{S_B}, {(1024*i if (fakex or xf) else 20480*i) if i < 7 else 0x40000000}")
        a(f"s_cselect_b32 s{S_TAB+i}, s{S_A}, s{S_B}")
    a(f"s_and_b32 s{S_A}, s2, 7")
    a(f"s_lshl_b32 s{S_A}, s{S_A}, 2")
    a(f"s_add_u32 s{S_A}, s{S_A}, s{S_PJ}")
    a(f"s_lshl_b32 s{S_A}, s{S_A}, 8")
    a(f"s_bfe_u32 s{S_B}, s2, {0x50003 if xf else 0x40003}")
    a(f"s_lshl_b32 s{S_B}, s{S_B}, 1")
    a(f"s_add_u32 s{S_B}, s{S_B}, s{S_PJ}")
    a(f"s_mul_i32 s{S_B}, s{S_B}, {112*1280}")
    a(f"s_cmp_eq_u32 s{S_QH}, 0")
    a(f"s_cselect_b32 s55, s{S_A}, s{S_B}")
    a(f"s_add_u32 s{S_W}, s44, {wsbase}")
    a(f"s_addc_u32 s{S_W+1}, s45, 0")
    a(f"s_mov_b32 s{S_W+2}, {WS_BYTES}")
    a(f"s_mov_b32 s{S_W+3}, 0x20000")
    a(f"s_lshl_b32 s{S_A}, s2, 2")
    a(f"s_add_u32 s{S_A}, s{S_A}, s{S_PJ}")
    a(f"s_mul_i32 s{S_OOFF}, s{S_A}, {PAIRB}")
    a(f"s_mul_i32 s{S_A}, s{S_QH}, {7*4096}")
    a(f"s_add_u32 s{S_OOFF}, s{S_OOFF}, s{S_A}")
    a(f"s_add_u32 s{S_OOFF}, s{S_OOFF}, {WS_O}")
    a(f"s_mov_b32 s{S_NOFB}, -1")
    a("s_mov_b32 s60, s42"); a("s_mov_b32 s61, s43"); a(f"s_mov_b32 s62, {640*4096*2}"); a("s_mov_b32 s63, 0x20000")
    a(f"s_mov_b32 s{S_T0}, 0")
    a(f"s_mov_b32 s{S_MP}, 0")
    a(f"s_mov_b32 s{S_AS}, 0")
    if defer: a("s_mov_b32 s98, 0x40000000")
    a(f"s_mov_b32 s{S_WO}, {3 if nowo else 0}")
    a(f"s_lshr_b32 s26, s2, 3")
    a(f"s_lshr_b32 s{S_A}, s2, {rsh}")
    a(f"s_add_u32 s26, s26, s{S_A}")
    a("s_and_b32 s26, s26, 3")
    a("s_mul_i32 s26, s26, 5")
    a(f"s_mul_i32 s83, s{S_QSTEP}, 20")
    a(f"s_and_b32 s{S_TY}, s2, {tymask}")
    a(f"s_min_u32 s{S_TY}, s{S_TY}, 1")
    if tyinv: a(f"s_xor_b32 s{S_TY}, s{S_TY}, 1"); a("s_nop 0")
    if tymode == 1:
        a("s_bfe_u32 s3, s2, 0x10005"); a("s_xor_b32 s3, s3, 1"); a(f"s_and_b32 s{S_TY}, s2, s3"); a("s_nop 0")
    if tymode == 2:
        a("s_bfe_u32 s3, s2, 0x10005"); a("s_xor_b32 s3, s3, 1"); a(f"s_and_b32 s{S_TY}, s2, 3"); a(f"s_min_u32 s{S_TY}, s{S_TY}, 1"); a(f"s_and_b32 s{S_TY}, s{S_TY}, s3")
    if tymode == 3:
        a("s_bfe_u32 s3, s2, 0x10005"); a("s_xor_b32 s3, s3, 1"); a(f"s_and_b32 s{S_TY}, s2, 3"); a(f"s_cmp_eq_u32 s{S_TY}, 0"); a(f"s_cselect_b32 s{S_TY}, 1, 0"); a(f"s_or_b32 s{S_TY}, s{S_TY}, s3")
    a(f"s_mov_b32 s{S_PRE}, s{S_TY}")
    a(f"s_mov_b32 s{S_THR}, 0x4e800000")
    import struct
    cs = struct.unpack("<I", struct.pack("<f", (128 ** -0.5) * 1.4426950408889634))[0]
    a(f"s_mov_b32 s{S_CS}, {cs:#x}")
    a(f"s_lshl_b32 s{S_A}, s{S_QH}, 1")
    a(f"s_add_u32 s{S_A}, s{S_A}, s{S_PJ}")
    a(f"s_mul_i32 s{S_LDB}, s{S_A}, {AREA}")
    if stamp:
        a("s_memtime s[64:65]")
        a("s_memrealtime s[66:67]")
        a("s_load_dwordx2 s[46:47], s[0:1], 88")
        a("s_waitcnt lgkmcnt(0)")
    G, N = V_T0, V_T1
    a(f"v_lshlrev_b32 v{V_LIN}, 4, v{V_LANE}")
    a(f"v_lshrrev_b32 v{G}, 4, v{V_LANE}")
    a(f"v_and_b32 v{N}, 15, v{V_LANE}")
    a(f"v_lshlrev_b32 v{V_T2}, 4, v{N}")
    a(f"v_lshl_add_u32 v{V_DMA}, v{G}, {kvgs}, v{V_T2}")
    a(f"v_bfe_u32 v{V_T3}, v{V_LANE}, 4, 1")
    a(f"v_lshl_add_u32 v{V_QD}, v{V_T3}, 15, v{V_T2}")
    a(f"v_bfe_u32 v{V_T3}, v{V_LANE}, 5, 1")
    a(f"v_lshl_add_u32 v{V_QD}, v{V_T3}, 17, v{V_QD}")
    a(f"v_mul_u32_u24 v{V_BA}, 1280, v{N}")
    a(f"v_lshl_add_u32 v{V_BA}, v{G}, 4, v{V_BA}")
    if fakex or xf: a(f"v_mov_b32 v{V_BA}, v{V_LIN}")
    if xq:
        a(f"v_lshrrev_b32 v{V_T3}, 4, v{V_LANE}")
        a(f"v_and_b32 v{V_BA}, 1, v{V_T3}")
        a(f"v_lshlrev_b32 v{V_BA}, 1, v{V_BA}")
        a(f"v_lshrrev_b32 v{V_T3}, 1, v{V_T3}")
        a(f"v_mul_u32_u24 v{V_T3}, 3, v{V_T3}")
        a(f"v_xor_b32 v{V_BA}, v{V_BA}, v{V_T3}")
        a(f"v_and_b32 v{V_T3}, 3, v{V_LANE}")
        a(f"v_xor_b32 v{V_BA}, v{V_BA}, v{V_T3}")
        a(f"v_lshlrev_b32 v{V_BA}, 4, v{V_BA}")
        a(f"v_lshrrev_b32 v{V_T3}, 2, v{V_LANE}")
        a(f"v_mul_u32_u24 v{V_T3}, 1280, v{V_T3}")
        a(f"v_add_u32 v{V_BA}, v{V_BA}, v{V_T3}")
    a(f"s_cmp_eq_u32 s{S_QH}, 0")
    a("s_cselect_b64 vcc, -1, 0")
    a("s_nop 1")
    a(f"v_cndmask_b32 v{V_QD}, v{V_BA}, v{V_QD}, vcc")
    a(f"s_add_u32 s{S_A}, s{S_QH}, 2")
    a(f"s_mul_i32 s{S_A}, s{S_A}, {AREA}")
    if xq:
        a(f"v_bfe_u32 v{V_T3}, v{V_LANE}, 2, 2")
        a(f"v_and_b32 v{V_BA}, 1, v{V_T3}")
        a(f"v_lshlrev_b32 v{V_BA}, 1, v{V_BA}")
        a(f"v_lshrrev_b32 v{V_T3}, 1, v{V_T3}")
        a(f"v_mul_u32_u24 v{V_T3}, 3, v{V_T3}")
        a(f"v_xor_b32 v{V_BA}, v{V_BA}, v{V_T3}")
        a(f"v_xor_b32 v{V_BA}, v{V_BA}, v{G}")
        a(f"v_lshlrev_b32 v{V_BA}, 4, v{V_BA}")
        a(f"v_lshl_add_u32 v{V_BA}, v{N}, 6, v{V_BA}")
        a(f"v_add_u32 v{V_BA}, s{S_A}, v{V_BA}")
    else:
        a(f"v_add_u32 v{V_BA}, s{S_A}, v{V_LIN}")
    a(f"v_bfe_u32 v{V_T3}, v{V_LANE}, 4, 1")
    a(f"v_lshl_add_u32 v{V_T2}, v{V_T3}, 9, v{V_T2}")
    a(f"v_bfe_u32 v{V_T3}, v{V_LANE}, 5, 1")
    a(f"v_lshl_add_u32 v{V_XA}, v{V_T3}, 8, v{V_T2}")
    a(f"v_and_b32 v{V_T2}, 7, v{N}")
    a(f"v_lshlrev_b32 v{V_KA}, 10, v{V_T2}")
    a(f"v_and_b32 v{V_T3}, 1, v{N}")
    a(f"v_lshl_add_u32 v{V_KA}, v{V_T3}, 4, v{V_KA}")
    a(f"v_bfe_u32 v{V_T3}, v{N}, 1, 2")
    a(f"v_lshl_add_u32 v{V_KA}, v{V_T3}, 6, v{V_KA}")
    a(f"v_lshrrev_b32 v{V_T3}, 3, v{N}")
    a(f"v_lshl_add_u32 v{V_KA}, v{V_T3}, 8, v{V_KA}")
    a(f"v_bfe_u32 v{V_T3}, v{V_LANE}, 4, 1")
    a(f"v_lshl_add_u32 v{V_KA}, v{V_T3}, 5, v{V_KA}")
    a(f"v_bfe_u32 v{V_T3}, v{V_LANE}, 5, 1")
    a(f"v_lshl_add_u32 v{V_KA}, v{V_T3}, 4, v{V_KA}")
    a(f"s_mul_i32 s{S_A}, s{S_PJ}, {AREA}")
    a(f"v_add_u32 v{V_KA}, s{S_A}, v{V_KA}")
    a(f"v_bfe_u32 v{N}, v{V_LANE}, 2, 2")
    a(f"v_bfe_u32 v{V_T3}, v{V_LANE}, 4, 1")
    a(f"v_lshl_add_u32 v{V_T2}, v{V_T3}, 2, v{N}")
    a(f"v_mul_u32_u24 v{V_T2}, 1056, v{V_T2}")
    a(f"v_bfe_u32 v{V_T3}, v{V_LANE}, 5, 1")
    a(f"v_lshl_add_u32 v{V_T2}, v{V_T3}, 9, v{V_T2}")
    a(f"v_and_b32 v{V_T3}, 3, v{V_LANE}")
    a(f"v_lshl_add_u32 v{V_T2}, v{V_T3}, 3, v{V_T2}")
    a(f"v_add_u32 v{V_WA}, s{S_A}, v{V_T2}")
    a(f"v_lshl_add_u32 v{N}, v{G}, 2, v{N}")
    a(f"v_and_b32 v{V_T2}, 7, v{N}")
    a(f"v_mul_u32_u24 v{V_T2}, 1056, v{V_T2}")
    a(f"v_lshrrev_b32 v{V_T3}, 3, v{N}")
    a(f"v_lshl_add_u32 v{V_T2}, v{V_T3}, 8, v{V_T2}")
    a(f"v_and_b32 v{V_T3}, 3, v{V_LANE}")
    a(f"v_lshl_add_u32 v{V_T2}, v{V_T3}, 3, v{V_T2}")
    a(f"s_add_u32 s{S_A}, s{S_A}, {2*AREA}")
    a(f"v_add_u32 v{V_VA}, s{S_A}, v{V_T2}")
    for i in range(7):
        a(f"v_mov_b32 v{V_L+2*i}, 0xff800000")
    a(f"v_mov_b32 v{V_T0}, 0x3f803f80")
    for i in range(4): a(f"v_accvgpr_write_b32 a{A_ONE+i}, v{V_T0}")
    a(f"v_and_b32 v{V_T0}, 3, v{V_LANE}")
    a(f"v_lshlrev_b32 v{V_T0}, 2, v{V_T0}")
    a(f"v_add_u32 v{V_T0}, {LDS_FLAG}, v{V_T0}")
    a(f"v_mov_b32 v{V_T1}, 0")
    a(f"ds_write_b32 v{V_T0}, v{V_T1}")
    a(f"s_cmp_eq_u32 s{S_QH}, 0")
    a(f"s_mov_b32 s{S_A}, {kpad(1)-kpad(0)-256}")
    a(f"s_mov_b32 s{S_B}, 800")
    a(f"s_cselect_b32 s96, s{S_A}, s{S_B}")
    a(f"s_mov_b32 s{S_A}, {kpad(2)-kpad(1)-256}")
    a(f"s_cselect_b32 s97, s{S_A}, s{S_B}")

    a(f"v_lshrrev_b32 v{V_T0}, 1, v{V_LANE}")
    a(f"v_lshlrev_b32 v{V_T0}, 13, v{V_T0}")
    a(f"v_and_b32 v{V_T1}, 1, v{V_LANE}")
    a(f"v_lshl_add_u32 v{V_T0}, v{V_T1}, 7, v{V_T0}")
    a(f"v_lshlrev_b32 v{V_T1}, 7, v{V_LANE}")
    a(f"s_bfe_u32 s{S_A}, s2, 0x20003")
    a(f"s_lshl_b32 s{S_A}, s{S_A}, 18")
    a(f"s_and_b32 s{S_B}, s2, 7")
    a(f"s_mul_i32 s{S_B}, s{S_B}, 17920")
    a(f"s_cmp_eq_u32 s{S_QH}, 0")
    a("s_cselect_b64 vcc, -1, 0")
    a(f"s_cselect_b32 s100, s{S_A}, s{S_B}")
    a(f"s_add_u32 s100, s100, s55")
    a(f"s_cmp_eq_u32 s{S_QH}, 0")
    a(f"s_mov_b32 s{S_A}, {4*32*8192}")
    a(f"s_mov_b32 s{S_B}, 8192")
    a(f"s_cselect_b32 s99, s{S_A}, s{S_B}")
    a(f"v_cndmask_b32 v{V_LIN}, v{V_T1}, v{V_T0}, vcc")
    def tf0(u): return (u & ((1 << kvgs) - 1)) | ((u >> kvgs) << (kvgs + 2))
    if kvt2:
        lb = kvgs - int(math.log2(kvts))
        if lb >= 6:
            a(f"v_mul_u32_u24 v{V_LIN}, {kvts}, v{V_LANE}")
        else:
            a(f"v_and_b32 v{V_T0}, {(1 << lb) - 1}, v{V_LANE}")
            a(f"v_mul_u32_u24 v{V_T0}, {kvts}, v{V_T0}")
            a(f"v_lshrrev_b32 v{V_T1}, {lb}, v{V_LANE}")
            a(f"v_lshl_add_u32 v{V_LIN}, v{V_T1}, {kvgs + 2}, v{V_T0}")
    def tch(s_): return bool(kvt2) and s_ < 16 and s_ % tper == 0
    def tvn(s_): return sum(1 for t in range(max(0, s_ - 3), s_) if tch(t))
    def tinc(k): return tf0((k + 1) * 64 * kvts) - tf0(k * 64 * kvts)
    if kvrot == 0 and kvgs != 11: a("s_mov_b32 s100, 0")
    if kvrot == 1:
        a("s_and_b32 s100, s2, 31")
    if kvrot == 2:
        a("s_mul_i32 s100, s2, 11"); a(f"s_lshr_b32 s{S_A}, s2, 5"); a(f"s_mul_i32 s{S_A}, s{S_A}, 7"); a(f"s_add_u32 s100, s100, s{S_A}")
        a(f"s_lshl_b32 s{S_A}, s{S_PJ}, 4"); a(f"s_add_u32 s100, s100, s{S_A}"); a("s_and_b32 s100, s100, 31")
    if kvrot == 3:
        a("s_lshr_b32 s100, s2, 5"); a("s_lshl_b32 s100, s100, 2")
    if rflip:
        if rflip == 1: a(f"s_bfe_u32 s{S_A}, s2, 0x10005")
        if rflip == 2: a(f"s_bfe_u32 s{S_A}, s2, 0x10006")
        if rflip == 3: a(f"s_bfe_u32 s{S_A}, s2, 0x10007")
        if rflip == 4: a(f"s_bfe_u32 s{S_A}, s2, 0x10003")
        a(f"s_lshl_b32 s101, s{S_A}, 19")
        a(f"s_mul_i32 s{S_B}, s{S_A}, s{S_QRND}")
        a(f"s_add_u32 s55, s55, s{S_B}")
        a(f"s_sub_u32 s{S_B}, 0, s{S_QRND}")
        a(f"s_cmp_lg_u32 s{S_A}, 0")
        a(f"s_cselect_b32 s{S_QRND}, s{S_B}, s{S_QRND}")
        a(f"s_mov_b32 s99, {2*PAIRB}")
        a(f"s_cselect_b32 s99, {-2*PAIRB & 0xffffffff:#x}, s99")
        a(f"s_mul_i32 s{S_B}, s{S_A}, {2*PAIRB}")
        a(f"s_add_u32 s{S_OOFF}, s{S_OOFF}, s{S_B}")
    tstate = {"t": 0}
    def touch_one():
        if not touch: return
        a(f"buffer_load_dword v0, v{V_LIN}, s[{S_QP}:{S_QP+3}], s98 offen{' nt' if tnt else ''}")
        a(f"s_add_u32 s98, s98, s99")
        tstate["t"] += 1
    if xmem or dupst:
        a("s_add_u32 s72, s44, 0x8000000"); a("s_addc_u32 s73, s45, 0"); a("s_mov_b32 s74, 0x18000000"); a("s_mov_b32 s75, 0x20000")
        a("s_lshl_b32 s76, s2, 2"); a(f"s_add_u32 s76, s76, s{S_WAVE}"); a("s_mul_i32 s76, s76, 0x60000")
    dstate = {"i": 0, "kind": None}
    def dma_setup(slot, kind):
        if kind == "KV":
            if kvgs != 11:
                ln_ = kvgs - 11
                a(f"s_add_u32 s{S_B}, s{S_DJ}, s100")
                a(f"s_bfe_u32 s{S_A}, s{S_B}, {((5 - ln_) << 16) | ln_:#x}")
                a(f"s_lshl_b32 s{S_A}, s{S_A}, {kvgs + 2}")
                a(f"s_and_b32 s{S_B}, s{S_B}, {(1 << ln_) - 1}")
                a(f"s_lshl_b32 s{S_B}, s{S_B}, 11")
                a(f"s_add_u32 s{S_B}, s{S_A}, s{S_B}")
                a(f"s_lshr_b32 s{S_A}, s{S_DJ}, 5")
                a(f"s_lshl_b32 s{S_A}, s{S_A}, 19")
                if rflip: a(f"s_xor_b32 s{S_A}, s{S_A}, s101")
                a(f"s_add_u32 s{S_DOFF}, s{S_A}, s{S_B}")
            elif kvrot:
                a(f"s_lshr_b32 s{S_A}, s{S_DJ}, 5")
                a(f"s_lshl_b32 s{S_A}, s{S_A}, 19")
                if rflip: a(f"s_xor_b32 s{S_A}, s{S_A}, s101")
                a(f"s_add_u32 s{S_B}, s{S_DJ}, s100")
                a(f"s_and_b32 s{S_B}, s{S_B}, 31")
                a(f"s_lshl_b32 s{S_B}, s{S_B}, 13")
                a(f"s_add_u32 s{S_DOFF}, s{S_A}, s{S_B}")
            else:
                a(f"s_lshr_b32 s{S_A}, s{S_DJ}, 5")
                a(f"s_lshl_b32 s{S_A}, s{S_A}, 18")
                a(f"s_lshl_b32 s{S_B}, s{S_DJ}, 13")
                a(f"s_add_u32 s{S_DOFF}, s{S_A}, s{S_B}")
            if kvl2: a(f"s_and_b32 s{S_DOFF}, s{S_DOFF}, {0x7fff if kvl2 is True else kvl2 - 1}")
            a(f"s_add_u32 m0, s{S_LDB}, {slot*TILE}")
            a(f"s_add_u32 s{S_DJ}, s{S_DJ}, 1")
        else:
            a(f"s_add_u32 m0, s{S_LDB}, {slot*TILE}")
            a(f"s_mov_b32 s{S_DOFF}, s{S_QS}")
            a(f"s_add_u32 s{S_QS}, s{S_QS}, s{S_QSTEP}")
            if rot:
                a("s_add_u32 s82, s82, 1")
                a("s_cmp_eq_u32 s82, 20")
                a(f"s_cselect_b32 s{S_B}, s83, 0")
                a(f"s_sub_u32 s{S_QS}, s{S_QS}, s{S_B}")
        dstate["i"] = 0; dstate["kind"] = kind
    def dma_one(pad=False):
        i = dstate["i"]
        if dstate["kind"] == "KV":
            if pad: a("s_nop 0")
            if not noload:
                a(f"buffer_load_dwordx4 v{V_DMA}, s[{S_LD}:{S_LD+3}], s{S_DOFF} offen offset:{256*i}{NT} lds")
            if i < 7: a(f"s_add_u32 m0, m0, s{96+(i&1)}")
        else:
            a(f"s_add_u32 s{S_A}, s{S_DOFF}, s{S_TAB+i}")
            if not qpnl: a(f"buffer_load_dwordx4 v{V_QD}, s[{S_QP}:{S_QP+3}], s{S_A} offen{' nt' if qnt else ''} lds")
            if i < 7: a(f"s_add_u32 m0, m0, s{S_MSTEP}")
        dstate["i"] = i + 1
    def qs_init(rnd_sgpr, q=3):
        if kvt2:
            a(f"s_lshl_b32 s98, s{S_T}, 19")
            if q == "pre":
                a(f"s_lshl_b32 s{S_A}, s{S_PRE}, {kvgs}"); a(f"s_sub_u32 s98, s98, s{S_A}"); q = 3
            a(f"s_add_u32 s98, s98, {q << kvgs}")
        a(f"s_mul_i32 s{S_QS}, s{rnd_sgpr}, s{S_QRND}")
        if not rflip: a(f"s_mov_b32 s101, s{rnd_sgpr}")
        a(f"s_add_u32 s{S_QS}, s{S_QS}, s55")
        a(f"s_cmp_ge_u32 s{rnd_sgpr}, 2")
        a(f"s_cselect_b32 s{S_A}, 0x40000000, 0")
        a(f"s_add_u32 s{S_QS}, s{S_QS}, s{S_A}")
        if rot:
            a("s_mov_b32 s82, s26")
            a(f"s_mul_i32 s{S_A}, s26, s{S_QSTEP}")
            a(f"s_add_u32 s{S_QS}, s{S_QS}, s{S_A}")

    def touch_init(rnd_sgpr):
        if not touch: return
        a(f"s_mul_i32 s98, s{rnd_sgpr}, s{S_QRND}")
        a(f"s_add_u32 s98, s98, s100")
        a(f"s_cmp_ge_u32 s{rnd_sgpr}, 2")
        a(f"s_cselect_b32 s{S_A}, 0x40000000, 0")
        a(f"s_add_u32 s98, s98, s{S_A}")
        tstate["t"] = 0
    def kread(f, slot):
        kt, s = f >> 2, f & 3
        a.lds(f"ds_read_b128 {vr(V_KF+4*f,4)}, v{V_KA} offset:{slot*TILE+kt*512+s*64}", "K")
    def vread(l, slot):
        for v in range(2):
            a.lds(f"ds_read_b64_tr_b16 {vr(V_VF+4*l+2*v,2)}, v{V_VA} offset:{slot*TILE+v*512+l*32}", "V")
    def wread(l, slot):
        for v in range(2):
            a.lds(f"ds_read_b64_tr_b16 {vr(V_VF+4*l+2*v,2)}, v{V_WA} offset:{slot*TILE+v*256+l*32}", "W")
    def bbuf(buf, qt): return (V_KF if buf == 0 else V_CI) + 4 * qt
    def bread(buf, qt, slot):
        a.lds(f"ds_read_b128 {vr(bbuf(buf,qt),4)}, v{V_BA} offset:{slot*TILE+qt*1024}", "B")
    def oreg(l, qt):
        return vr(V_OK + 28 * l + 4 * qt, 4) if l < 4 else ar(A_OS + 28 * (l - 4) + 4 * qt, 4)

    def barrier(dyn=False, vn=16, xt=0):
        vn += xt
        if dyn:
            n = len(a.lines)
            a(f"s_cmp_eq_u32 s{S_AS}, 0")
            a(f"s_cbranch_scc1 L_bw1_{n}")
            a(f"s_sub_u32 s{S_AS}, s{S_AS}, 1")
            a(f"s_waitcnt vmcnt({44 + xt}) lgkmcnt(0)")
            a(f"s_branch L_bw2_{n}")
            a.label(f"L_bw1_{n}")
            a(f"s_waitcnt vmcnt({vn}) lgkmcnt(0)")
            a.label(f"L_bw2_{n}")
        else:
            a(f"s_waitcnt vmcnt({vn}) lgkmcnt(0)")
        a.lds_q = []
        a("s_barrier")

    def cap(fn):
        n0 = len(a.lines); q0 = list(a.lds_q)
        fn()
        ls = a.lines[n0:]; del a.lines[n0:]; a.lds_q = q0
        return ls
    def is_scalar(ln):
        return ln.strip().startswith("s_")
    class Gaps:
        def __init__(self, n):
            self.n = n; self.S = [[] for _ in range(n)]; self.V = [[] for _ in range(n)]; self.c = [0] * n
        def putS(self, ln, lo, hi=None):
            for g in range(lo, self.n):
                if len(self.S[g]) == 0:
                    self.S[g].append(ln); return g
            self.S[self.n - 1].append(ln); return self.n - 1
        def putV(self, ln, lo, cost=1, cap_=2):
            for g in range(lo, self.n):
                if self.c[g] + cost <= cap_:
                    self.V[g].append(ln); self.c[g] += cost; return g
            self.V[self.n - 1].append(ln); self.c[self.n - 1] += cost; return self.n - 1
        def atV(self, ln, g, cost=1):
            self.V[g].append(ln); self.c[g] += cost
        def atS(self, ln, g):
            self.S[g].append(ln)
    DITEMS = [(qt, T) for qt in range(7) for T in range(4)]
    DS = {}
    if defer:
        ntl = (28 - 8 - 4 * dnp) // 4
        assert 4 * dnp + 8 + 4 * ntl == 28
        k_ = 0
        for i in range(4): DS[("P", i)] = DITEMS[k_:k_ + dnp]; k_ += dnp
        for i in (1, 0, 3, 2): DS[("L", i)] = DITEMS[k_:k_ + 2]; k_ += 2
        for i in range(4): DS[("T", i)] = DITEMS[k_:k_ + ntl]; k_ += ntl
    DLIVE = {1: 0, 0: 1, 3: 1, 2: 2}
    def dcount(code):
        if not defer or code is None: return 0
        kind, i = code
        n = lambda c: len(DS.get(c, []))
        if kind == "P": return sum(n(("P", t)) for t in (i - 2, i - 1) if t >= 0)
        prev = lambda k, t: (k, t) if t >= 0 else None
        if kind == "L":
            if i >= 2: return n(("L", i - 2)) + n(("L", i - 1))
            if i == 1: return min(n(("P", 3)), n(("L", 3))) + n(("L", 0))
            return min(n(("P", 2)) + n(("P", 3)), n(("L", 2)) + n(("L", 3)))
        if kind in ("T", "B"):
            m = lambda t: n((kind, t)) if t >= 0 else n(("L", 4 + t))
            return m(i - 2) + m(i - 1)
    def qp_stage2(sm, first, dma, last, chk, after_store, vn, nok, sidx, code=None):
        buf = sm & 1; nslot = (sm + 1) & 3
        BAR = qbar
        G = Gaps(56)
        su = cap(lambda: dma_setup(sm, dma))
        g = BAR - 1
        g = 0
        for ln in su:
            g = G.putS(ln, g) + 1
        prev = g
        for i in range(8):
            ls = cap(lambda: dma_one(False))
            tg = max(qd0 + qdstep * i, prev)
            pre_ = [l for l in ls if is_scalar(l) and "m0" not in l]
            ld = [l for l in ls if not is_scalar(l)]
            post = [l for l in ls if is_scalar(l) and "m0" in l]
            for l in pre_: tg = G.putS(l, tg)
            for l in ld: G.atV(l, tg)
            prev = tg + 1
            for l in post: prev = G.putS(l, tg + 1) + 1
        dstate["i"] = 8
        if code in DS:
            its = DS[code]; lastq = None
            for n_, (qt_, T_) in enumerate(its):
                tg = qd0 + 3 + n_ * 2 * qdstep
                if qt_ != lastq:
                    if code[0] == "L":
                        G.atS(f"    s_cmp_eq_u32 s{S_CNT}, {DLIVE[code[1]]}", tg - 2)
                        G.atS(f"    s_cselect_b32 s99, s98, 0x40000000", tg - 2)
                        G.atS(f"    s_add_u32 s99, s99, {qt_*4096}", tg - 1)
                    else:
                        G.atS(f"    s_add_u32 s99, s98, {qt_*4096}", tg - 1)
                    lastq = qt_
                G.atV(f"    buffer_store_dwordx4 {ar(A_Q+16*qt_+4*T_,4)}, v{V_XA}, s[{S_W}:{S_W+3}], s99 offen offset:{1024*T_} {dpol}".rstrip(), tg)
        if tch(sidx):
            k_ = sidx // tper
            tg = min(prev + 1, 54)
            G.atV(f"    buffer_load_dword v{V_S+12}, v{V_LIN}, s[{S_LD}:{S_LD+3}], s98 offen {tpol}".rstrip(), tg)
            G.putS(f"    s_add_u32 s98, s98, {tinc(k_)}", tg + 1)
        if qnrd: pass
        elif not last:
            lo = BAR - 1
            for ln in cap(lambda: wread(0, nslot)): lo = G.putV(ln, lo, cap_=1)
            for qt in range(7):
                for ln in cap(lambda: bread(buf ^ 1, qt, nslot)): lo = G.putV(ln, lo, cap_=1)
            for l in range(1, 8):
                lo = max(lo, min(7 * (l + 1) - 1, 55))
                for ln in cap(lambda: wread(l, nslot)): lo = G.putV(ln, lo, cap_=(1 if l < 7 else 2))
        elif not nok:
            lo = BAR - 1
            for f in range(8):
                for ln in cap(lambda: kread(f, nslot)): lo = G.putV(ln, lo, cap_=1)
        a("s_waitcnt lgkmcnt(14)")
        j = 0
        for l in range(8):
            for qt in range(7):
                c = "0" if first else oreg(l, qt)
                if qt == 0 and l > 0 and j < BAR: a(f"s_waitcnt lgkmcnt({14-2*l})")
                a(f"{MFMA} {oreg(l, qt)}, {vr(V_VF+4*l,4)}, {vr(bbuf(buf,qt),4)}, {c}")
                for ln in G.S[j]: a.lines.append(ln)
                if j == BAR - 1:
                    if not qnbar: barrier(after_store, 16, tvn(sidx) + dcount(code))
                    if chk: flagcheck()
                for ln in G.V[j]: a.lines.append(ln)
                j += 1
    def qp_stage(sm, first=False, dma="QP", last=False, chk=False, after_store=False, kt_=False, vn=16, nok=False, role=None, ntouch=0, sidx=None, code=None):
        buf = sm & 1; nslot = (sm + 1) & 3
        if qps:
            return qp_stage2(sm, first, dma, last, chk, after_store, vn, nok, sidx, code)
        a("s_waitcnt lgkmcnt(14)")
        fq = []
        def cap(fn):
            n0 = len(a.lines); q0 = len(a.lds_q)
            fn()
            ls = a.lines[n0:]; del a.lines[n0:]; del a.lds_q[q0:]
            return ls
        BAR = 7
        if role != "T":
            for ln in cap(lambda: dma_setup(sm, dma)): fq.append((BAR, ln))
        if dma == "QP" and roll:
            fq.append((BAR, f"    s_lshl2_add_u32 s{S_B}, s{S_QSTEP}, s{S_DOFF}"))
            fq.append((BAR, f"    buffer_load_dword v0, v{V_T0}, s[{S_QP}:{S_QP+3}], s{S_B} offen{' nt' if tnt else ''}"))
        if kvt and kt_:
            fq.append((BAR, f"    buffer_load_dword v0, v{V_T3}, s[{S_LD}:{S_LD+3}], s101 offen{' nt' if kvtnt else ''}"))
            fq.append((BAR, f"    s_add_u32 s101, s101, 8192"))
        if not last:
            for ln in cap(lambda: wread(0, nslot)): fq.append((BAR, ln))
            for qt in range(7):
                for ln in cap(lambda: bread(buf ^ 1, qt, nslot)): fq.append((BAR, ln))
        elif not nok:
            for f in range(8):
                for ln in cap(lambda: kread(f, nslot)): fq.append((BAR, ln))
        for l in range(1, 8):
            if not last:
                for ln in cap(lambda: wread(l, nslot)): fq.append((7 * (l + 1), ln))
            if role == "T":
                if l == 1:
                    for _ in range(ntouch):
                        fq.append((BAR, f"    buffer_load_dword v0, v{V_T0}, s[60:63], s98 offen"))
                        fq.append((BAR, f"    s_add_u32 s98, s98, {32*8192}"))
                        fq.append((BAR, f"    buffer_load_dword v0, v{V_T1}, s[{S_QP}:{S_QP+3}], s99 offen"))
                        fq.append((BAR, f"    s_add_u32 s99, s99, 64"))
                continue
            for ln in cap(lambda: dma_one(True)): fq.append((BAR, ln))
            if role == "X":
                if l == 7:
                    fq.append((BAR, f"    s_add_u32 m0, s{S_LDB}, {AREA+sm*TILE}"))
                    fq.append((BAR, f"    s_add_u32 s{S_DOFF}, s{S_DOFF}, {112*1280}"))
                    for i in range(7):
                        fq.append((BAR, f"    s_add_u32 s{S_A}, s{S_DOFF}, s{S_TAB+i}"))
                        fq.append((BAR, f"    buffer_load_dwordx4 v{V_QD}, s[{S_QP}:{S_QP+3}], s{S_A} offen{' nt' if qnt else ''} lds"))
                        if i < 6: fq.append((BAR, f"    s_add_u32 m0, m0, 1024"))
            elif l == 7:
                for ln in cap(lambda: dma_one(True)): fq.append((BAR, ln))
        j = 0
        for l in range(8):
            for qt in range(7):
                c = "0" if first else oreg(l, qt)
                a(f"{MFMA} {oreg(l, qt)}, {vr(V_VF+4*l,4)}, {vr(bbuf(buf,qt),4)}, {c}")
                j += 1
                if j == BAR:
                    barrier(after_store, vn if (roll or role) else 16)
                    if chk: flagcheck()
                    if trace:
                        a("s_memtime s[78:79]")
                        a("s_waitcnt lgkmcnt(0)")
                        a(f"v_cmp_eq_u32 vcc, s77, v{V_LANE}")
                        a(f"v_mov_b32 v{V_T2}, s78")
                        a("s_nop 1")
                        a(f"v_cndmask_b32 v{V_T3}, v{V_T3}, v{V_T2}, vcc")
                        a("s_add_u32 s77, s77, 1")
                k = 0; idx = 0
                rem_gaps = 56 - j + 1
                quota = 1 if len(fq) <= rem_gaps else 2
                while k < quota and idx < len(fq):
                    if fq[idx][0] <= j and (idx == 0 or "ds_read" in fq[idx][1] or all("ds_read" in x[1] for x in fq[:idx])):
                        a.lines.append(fq[idx][1]); del fq[idx]; k += 1
                    else:
                        idx += 1
        for _, ln in fq: a.lines.append(ln)
        assert role in ("X", "T") or dstate["i"] == 8

    def sm_ops(par, i, first):
        S = V_S + 8 * par; P = V_P + 4 * par; L = V_L + 2 * i
        ops = []
        if first:
            T0, T1 = V_T0, V_T1
            ops += [f"v_max3_f32 v{T0}, v{S}, v{S+1}, v{L}", f"v_max3_f32 v{T1}, v{S+2}, v{S+3}, v{S+4}",
                    f"v_max3_f32 v{T0}, v{S+5}, v{S+6}, v{T0}", f"v_max3_f32 v{T0}, v{S+7}, v{T0}, v{T1}",
                    f"v_mov_b32 v{T1}, v{T0}", "s_nop 1", f"v_permlane16_swap_b32 v{T0}, v{T1}", "s_nop 1", f"v_max_f32 v{T0}, v{T0}, v{T1}",
                    f"v_mov_b32 v{T1}, v{T0}", "s_nop 1", f"v_permlane32_swap_b32 v{T0}, v{T1}", "s_nop 1", f"v_max_f32 v{T0}, v{T0}, v{T1}",
                    f"v_mov_b32 v{L}, 0", f"v_mov_b32 v{L+1}, 0"]
            ops += [f"v_sub_f32 v{S+r}, v{S+r}, v{T0}" for r in range(8)]
            ops += [f"v_sub_f32 v{V_CI+4*i+r}, 0, v{T0}" for r in range(4)]
        e = lambda r: ops.append(f"v_exp_f32 v{S+r}, v{S+r}")
        e(0); e(1)
        for r in range(0, 8, 2):
            if r + 2 < 8: e(r + 2); e(r + 3)
            if not ones:
                ops.append(f"v_add_f32 v{L}, v{L}, v{S+r}")
                ops.append(f"v_add_f32 v{L+1}, v{L+1}, v{S+r+1}")
            ops.append(f"v_cvt_pk_bf16_f32 v{P+r//2}, v{S+r}, v{S+r+1}")
        return ops

    def qk_items(qt, par, czero, kr):
        it = []
        for f in range(8):
            kt, s = f >> 2, f & 3
            D = vr(V_S + 8 * par + 4 * kt, 4)
            c = ("0" if czero else vr(V_CI + 4 * qt, 4)) if s == 0 else D
            it.append(("K" if f == 0 else None, f"{MFMA} {D}, {vr(V_KF+4*f,4)}, {ar(A_Q+16*qt+4*s,4)}, {c}",
                       (lambda f=f: kread(f, kr)) if kr is not None else None))
        return it
    def pv_items(qt, par, czero, vrd):
        it = []
        for l in range(8):
            c = "0" if czero else oreg(l, qt)
            it.append(("V" if l == 0 else None, f"{MFMA} {oreg(l, qt)}, {vr(V_VF+4*l,4)}, {vr(V_P+4*par,4)}, {c}",
                       (lambda l=l: vread(l, vrd)) if vrd is not None else None))
        for _ in range(xmfma):
            D = ar(A_LS + 4 * qt, 4)
            it.append((None, f"{MFMA} {D}, {vr(V_VF,4)}, {vr(V_P+4*par,4)}, {D}", None))
        if ones:
            D = ar(A_LS + 4 * qt, 4)
            it.append((None, f"{MFMA} {D}, {ar(A_ONE,4)}, {vr(V_P+4*par,4)}, {'0' if czero else D}", None))
        return it

    def capture(fn):
        n0 = len(a.lines)
        fn()
        ls = a.lines[n0:]; del a.lines[n0:]
        return ls
    def emit(items, va, fill=None, nfill=0):
        cost = lambda op: 2 if "v_exp" in op else 1
        tot = sum(cost(o) for o in va); acc = 0; k = 0; ng = len(items)
        pos = [int((i + 0.5) * ng / max(nfill, 1)) for i in range(nfill)]
        for j, (need, m, post) in enumerate(items):
            if m:
                if need: a.lds_wait({need})
                a(m)
            if post: post()
            for _ in range(pos.count(j)):
                if fill: a.lines.append(fill.pop(0))
            while k < len(va) and acc + cost(va[k]) <= tot * (j + 1) / ng + 0.01:
                a(va[k]); acc += cost(va[k]); k += 1
        assert k == len(va)

    state = {"n": 0}
    def dma_lines(slot, kind, pad=False):
        def f():
            dma_setup(slot, kind)
            for _ in range(8): dma_one(pad)
            if xmem and kind == "KV":
                a(f"s_mul_i32 s{S_A}, s{S_WAVE}, 7168")
                a(f"s_add_u32 m0, s{S_A}, {4*AREA+5120}")
                a(f"s_add_u32 s{S_A}, s{S_DOFF}, s76")
                for i in range(xmem):
                    a(f"buffer_load_dwordx4 v{V_DMA}, s[72:75], s{S_A} offen offset:{256*i} nt lds")
        return capture(f)
    def step(jm, first=False, last=False, dma="KV", nt_=0, tr_=False, dyn=False):
        fill = [] if (first or early) else dma_lines((jm + 3) & 3, dma)
        nf = (len(fill) + 3) // 4
        for i in range(7):
            if strace and tr_:
                pr = [36, 38, 40, 42, 56, 58, 60, 62]
                a(f"s_memtime s[{pr[i]}:{pr[i]+1}]")
            if i in (1, 2, 3)[:nt_]: touch_one()
            n = state["n"]; par = n & 1
            items = []
            nfill = nf if 1 <= i <= 4 else 0
            if i == 5:
                assert not fill
                barrier(dyn)
                if first: flagcheck()
                if last or early:
                    fill = dma_lines(jm, dma, True if last else False); nf = (len(fill) + 1) // 2
            if (last or early) and i >= 5: nfill = nf
            if i < 6:
                items += qk_items(i + 1, par ^ 1, first, ((jm + 1) & 3) if (i == 5 and (not last or dma == "KV")) else None)
            elif not last:
                items += qk_items(0, par ^ 1, False, None)
            else:
                if dma == "KV": qreload()
                a("s_nop 1")
            if i > 0:
                items += pv_items(i - 1, par ^ 1, first, None)
            elif not first:
                items += pv_items(6, par ^ 1, False, jm)
            else:
                items += [(None, None, (lambda l=l: vread(l, jm))) for l in range(8)]
            emit(items, sm_ops(par, i, first), fill, nfill)
            state["n"] = n + 1
        assert not fill

    def qstash_off():
        a(f"s_lshl_b32 s{S_C}, s2, 2")
        a(f"s_add_u32 s{S_C}, s{S_C}, s{S_WAVE}")
        a(f"s_mul_i32 s{S_C}, s{S_C}, 28672")
        a(f"v_lshlrev_b32 v{V_T2}, 4, v{V_LANE}")
    def qreload():
        qstash_off()
        for i in range(7):
            for s_ in range(4):
                a(f"buffer_load_dwordx4 {ar(A_Q+16*i+4*s_,4)}, v{V_T2}, s[{S_W}:{S_W+3}], s{S_C} offen offset:{1024*s_}")
            if i < 6: a(f"s_add_u32 s{S_C}, s{S_C}, 4096")

    def flagcheck():
        lab = f"L_at_nofb_{len(a.lines)}"
        a(f"s_cmp_le_u32 s{S_T}, s{S_T0}")
        a(f"s_cbranch_scc1 {lab}")
        a(f"s_sub_u32 s{S_A}, s{S_T}, 1")
        a(f"s_cmp_eq_u32 s{S_A}, s{S_NOFB}")
        a(f"s_cbranch_scc1 {lab}")
        a(f"s_lshl_b32 s{S_B}, s{S_A}, 2")
        a(f"s_add_u32 s{S_B}, s{S_B}, {LDS_FLAG}")
        a(f"v_mov_b32 v{V_T2}, s{S_B}")
        a(f"ds_read_b32 v{V_T2}, v{V_T2}")
        a("s_waitcnt lgkmcnt(0)")
        a(f"v_readfirstlane_b32 s{S_B}, v{V_T2}")
        a("s_nop 3")
        a(f"s_cmp_lg_u32 s{S_B}, 0")
        a(f"s_cbranch_scc1 L_at_fallback")
        a.label(lab)

    def wo_issue(ps):
        D = V_S
        a(f"s_mov_b32 s{S_A}, 6554")
        for i in range(5):
            a(f"v_add_u32 v{V_T0}, {64*i}, v{V_LANE}")
            a(f"v_mul_u32_u24 v{V_T1}, s{S_A}, v{V_T0}")
            a(f"v_lshrrev_b32 v{V_T1}, 16, v{V_T1}")
            a(f"v_mul_u32_u24 v{V_T2}, 10, v{V_T1}")
            a(f"v_sub_u32 v{V_T2}, v{V_T0}, v{V_T2}")
            a(f"v_mul_u32_u24 v{V_T1}, 1280, v{V_T1}")
            a(f"v_lshl_add_u32 v{D+i}, v{V_T2}, 4, v{V_T1}")
        a(f"s_and_b32 s{S_A}, s2, 127")
        a(f"s_mul_i32 s{S_A}, s{S_A}, {32*1280}")
        a(f"s_mul_i32 s{S_B}, s{S_WAVE}, 320")
        a(f"s_add_u32 s{S_A}, s{S_A}, s{S_B}")
        a(f"s_add_u32 s{S_A}, s{S_A}, {160*ps}")
        a(f"s_mul_i32 s{S_D}, s{S_WAVE}, 7168")
        a(f"s_add_u32 s{S_D}, s{S_D}, {4*AREA}")
        for i in range(5):
            a(f"s_add_u32 m0, s{S_D}, {1024*i}")
            a("s_nop 0")
            a(f"buffer_load_dwordx4 v{D+i}, s[84:87], s{S_A} offen{' nt' if wont else ''} lds")
    def wo_finish(ps):
        a(f"v_lshrrev_b32 v{V_T0}, 4, v{V_LANE}")
        a(f"v_bfe_u32 v{V_T1}, v{V_LANE}, 2, 2")
        a(f"v_lshl_add_u32 v{V_T1}, v{V_T0}, 3, v{V_T1}")
        a(f"v_mul_u32_u24 v{V_T1}, 160, v{V_T1}")
        a(f"v_and_b32 v{V_T2}, 3, v{V_LANE}")
        a(f"v_lshl_add_u32 v{V_T1}, v{V_T2}, 3, v{V_T1}")
        a(f"s_mul_i32 s{S_D}, s{S_WAVE}, 7168")
        a(f"s_add_u32 s{S_D}, s{S_D}, {4*AREA}")
        a(f"v_add_u32 v{V_T1}, s{S_D}, v{V_T1}")
        a(f"v_lshlrev_b32 v{V_T2}, 4, v{V_LANE}")
        a(f"s_mul_i32 s{S_A}, s2, {40*1024}")
        a(f"s_mul_i32 s{S_B}, s{S_WAVE}, {10*1024}")
        a(f"s_add_u32 s{S_A}, s{S_A}, s{S_B}")
        a(f"s_add_u32 s{S_A}, s{S_A}, {WS_W+5120*ps}")
        R = V_VF
        for t in range(5):
            for v in range(2):
                a(f"ds_read_b64_tr_b16 {vr(R+4*t+2*v,2)}, v{V_T1} offset:{v*640+t*32}")
        a("s_waitcnt lgkmcnt(0)")
        for f in range(5):
            if f == 4: a(f"s_add_u32 s{S_A}, s{S_A}, 4096")
            a(f"buffer_store_dwordx4 {vr(R+4*f,4)}, v{V_T2}, s[{S_W}:{S_W+3}], s{S_A} offen offset:{1024*(f&3)} {wpol}".rstrip())
        a("s_nop 1")

    def rt_setup():
        a(f"s_bfe_u32 s{S_A}, s2, 0x20003")
        a(f"s_lshl_b32 s{S_A}, s{S_A}, 3")
        a(f"v_lshrrev_b32 v{V_T0}, 3, v{V_LANE}")
        a(f"v_add_u32 v{V_T0}, s{S_A}, v{V_T0}")
        a(f"v_lshlrev_b32 v{V_T0}, 13, v{V_T0}")
        a(f"v_and_b32 v{V_T2}, 7, v{V_LANE}")
        a(f"v_lshl_add_u32 v{V_T0}, v{V_T2}, 5, v{V_T0}")
        a(f"v_bfe_u32 v{V_T1}, v{V_LANE}, 1, 4")
        a(f"v_min_u32 v{V_T1}, 13, v{V_T1}")
        a(f"s_and_b32 s{S_A}, s2, 7")
        a(f"s_mul_i32 s{S_A}, s{S_A}, 14")
        a(f"v_add_u32 v{V_T1}, s{S_A}, v{V_T1}")
        a(f"v_mul_u32_u24 v{V_T1}, 1280, v{V_T1}")
        a(f"v_and_b32 v{V_T2}, 1, v{V_LANE}")
        a(f"v_lshl_add_u32 v{V_T1}, v{V_T2}, 5, v{V_T1}")
        a(f"s_cmp_eq_u32 s{S_QH}, 0")
        a("s_cselect_b64 vcc, -1, 0")
        a("s_nop 1")
        a(f"v_cndmask_b32 v{V_T0}, v{V_T1}, v{V_T0}, vcc")
    def dly(us, tag):
        a("s_memrealtime s[78:79]")
        a("s_waitcnt lgkmcnt(0)")
        a(f"s_add_u32 s77, s78, {us*100}")
        a.label(f"L_dl{tag}")
        a("s_sleep 4")
        a("s_memrealtime s[78:79]")
        a("s_waitcnt lgkmcnt(0)")
        a("s_sub_u32 s79, s78, s77")
        a("s_cmp_lt_i32 s79, 0")
        a(f"s_cbranch_scc1 L_dl{tag}")
    def st(k):
        if pst:
            a("s_memrealtime s[78:79]")
            a("s_memtime s[80:81]")
            a("s_waitcnt lgkmcnt(0)")
            a("s_mov_b32 m0, s77"); a("s_nop 0"); a("v_writelane_b32 v0, s78, m0")
            a("s_add_u32 m0, s77, 30"); a("s_nop 0"); a("v_writelane_b32 v0, s80, m0")
            a("s_add_u32 s77, s77, 1")
        if stamp:
            if st0:
                n = len(a.lines)
                a(f"s_cmp_ge_u32 s{S_T}, {1 if k < 3 else 2}")
                a(f"s_cbranch_scc1 L_st_{n}")
            a(f"s_memtime s[{72+2*k}:{73+2*k}]")
            if st0: a.label(f"L_st_{n}")
    if pst:
        a("s_memrealtime s[78:79]")
        a("s_memtime s[80:81]")
        a("s_waitcnt lgkmcnt(0)")
        a("v_mov_b32 v0, 0")
        a("v_writelane_b32 v0, s78, 0")
        a("v_writelane_b32 v0, s80, 30")
        a("s_mov_b32 s77, 1")
    if delay:
        a("s_bitcmp1_b32 s2, 0")
        a("s_cbranch_scc0 L_nodelay")
        a("s_memrealtime s[78:79]")
        a("s_waitcnt lgkmcnt(0)")
        a(f"s_add_u32 s77, s78, {delay*100}")
        a.label("L_dl")
        a("s_sleep 8")
        a("s_memrealtime s[78:79]")
        a("s_waitcnt lgkmcnt(0)")
        a("s_sub_u32 s79, s78, s77")
        a("s_cmp_lt_i32 s79, 0")
        a("s_cbranch_scc1 L_dl")
        a.label("L_nodelay")
    a.label("L_at_start")
    if trace:
        a("s_mov_b32 s77, 1")
        a(f"v_mov_b32 v{V_T3}, s64")
        a("s_memtime s[78:79]")
        a("s_waitcnt lgkmcnt(0)")
        a(f"v_cmp_eq_u32 vcc, s77, v{V_LANE}")
        a(f"v_mov_b32 v{V_T2}, s78")
        a("s_nop 1")
        a(f"v_cndmask_b32 v{V_T3}, v{V_T3}, v{V_T2}, vcc")
        a("s_add_u32 s77, s77, 1")
    a(f"s_mov_b32 s{S_T}, s{S_T0}")
    a(f"s_lshl_b32 s{S_DJ}, s{S_T0}, 5")
    a(f"s_add_u32 s{S_D}, s{S_T}, s{S_PRE}")
    qs_init(S_D, "pre")
    if roll:
        rt_setup()
        for sl in range(2):
            dma_setup(sl, "QP")
            for _ in range(8): dma_one(True)
        a(f"s_mov_b32 s{S_B}, s{S_QS}")
        for _ in range(6):
            a(f"buffer_load_dword v0, v{V_T0}, s[{S_QP}:{S_QP+3}], s{S_B} offen{' nt' if tnt else ''}")
            a(f"s_add_u32 s{S_B}, s{S_B}, s{S_QSTEP}")
        for sl in range(2, 4):
            dma_setup(sl, "QP")
            for _ in range(8): dma_one(True)
        a(f"s_waitcnt vmcnt(30) lgkmcnt(0)")
    else:
        for sl in range(4):
            dma_setup(sl, "QP")
            for _ in range(8): dma_one(True)
        if tlbw:
            a(f"v_lshlrev_b32 v{V_S+13}, 12, v{V_LANE}")
            a(f"buffer_load_dword v{V_S+12}, v{V_S+13}, s[{S_LD}:{S_LD+3}], 0 offen nt")
            if tlbw > 1:
                a(f"s_mov_b32 s{S_A}, 0x80000")
                a(f"buffer_load_dword v{V_S+12}, v{V_S+13}, s[{S_LD}:{S_LD+3}], s{S_A} offen nt")
        if bulk0 and touch:
            touch_init(S_D)
            for _ in range(5): touch_one()
        if cpf and cpflate:
            for k in range(cpf // 16):
                a(f"s_mov_b32 s76, {k*16384}")
                a("buffer_load_dword v104, v105, s[72:75], s76 offen")
        a(f"s_waitcnt vmcnt({(29 if (bulk0 and touch) else 24) + (cpf // 16 if cpflate else 0)}) lgkmcnt(0)")
    a("s_barrier")
    a.label("L_at_round")
    st(0)
    if roll: rt_setup()
    for l in range(8): wread(l, 0)
    for qt in range(7): bread(0, qt, 0)
    a.lds_wait_all()
    def qp_body(role):
        sfx = role or ""
        vns = {None: (22, 17, 18, 18, 18), "W": (16, 16, 16, 16, 16), "X": (16, 22, 28, 28, 28), "T": (16, 20, 20, 63, 63)}[role]
        nts = (6, 4, 4, 2)
        qp_stage(0, first=True, chk=True, after_store=True, vn=vns[0], role=role, ntouch=nts[0], sidx=0, code=("P", 0))
        qp_stage(1, after_store=True, vn=vns[1], role=role, ntouch=nts[1], sidx=1, code=("P", 1))
        qp_stage(2, after_store=True, vn=vns[2], role=role, ntouch=nts[2], sidx=2, code=("P", 2))
        qp_stage(3, vn=vns[3], role=role, ntouch=nts[3], sidx=3, code=("P", 3))
        a(f"s_cmp_lg_u32 s{S_WO}, 0")
        a(f"s_cbranch_scc1 L_at_nowo0{sfx}")
        a(f"s_mov_b32 s{S_WO}, 1")
        wo_issue(0)
        if roll: rt_setup()
        a.label(f"L_at_nowo0{sfx}")
        a(f"s_mov_b32 s{S_CNT}, 0")
        a.label(f"L_at_qploop{sfx}")
        a.lds_q = []
        for sm in range(4): qp_stage(sm, vn=vns[4], role=role, sidx=4+sm, code=("L", sm))
        a(f"s_add_u32 s{S_CNT}, s{S_CNT}, 1")
        a(f"s_cmp_lt_u32 s{S_CNT}, 3")
        a(f"s_cbranch_scc1 L_at_qploop{sfx}")
    if not roles:
        qp_body(None)
    else:
        a(f"s_cmp_eq_u32 s{S_WAVE}, 1")
        a("s_cbranch_scc1 L_at_qpX")
        a(f"s_cmp_eq_u32 s{S_WAVE}, 3")
        a("s_cbranch_scc1 L_at_qpT")
        qp_body("W")
        a("s_branch L_at_qpjoin")
        a.label("L_at_qpX")
        qp_body("X")
        a("s_branch L_at_qpjoin")
        a.label("L_at_qpT")
        a(f"s_bfe_u32 s{S_A}, s2, 0x20003")
        a(f"s_lshl_b32 s{S_A}, s{S_A}, 3")
        a(f"v_lshrrev_b32 v{V_T0}, 3, v{V_LANE}")
        a(f"v_add_u32 v{V_T0}, s{S_A}, v{V_T0}")
        a(f"v_lshlrev_b32 v{V_T0}, 13, v{V_T0}")
        a(f"v_and_b32 v{V_T1}, 7, v{V_LANE}")
        a(f"v_lshl_add_u32 v{V_T0}, v{V_T1}, 6, v{V_T0}")
        a(f"v_min_u32 v{V_T1}, 27, v{V_LANE}")
        a(f"s_and_b32 s{S_A}, s2, 7")
        a(f"s_mul_i32 s{S_B}, s{S_A}, 28")
        a(f"v_add_u32 v{V_T1}, s{S_B}, v{V_T1}")
        a(f"v_mul_u32_u24 v{V_T1}, 1280, v{V_T1}")
        a(f"s_lshl_b32 s{S_A}, s{S_A}, 10")
        a(f"s_lshl_b32 s{S_B}, s101, 9")
        a(f"s_add_u32 s98, s{S_A}, s{S_B}")
        a(f"s_add_u32 s98, s98, {4*32*8192}")
        a(f"s_bfe_u32 s{S_A}, s2, 0x40003")
        a(f"s_mul_i32 s99, s{S_A}, {224*1280}")
        a(f"s_add_u32 s99, s99, {4*64}")
        qp_body("T")
        a.label("L_at_qpjoin")
    a(f"s_cmp_lg_u32 s{S_PRE}, 0")
    a("s_cbranch_scc1 L_at_qptailB")
    for sm in range(4): qp_stage(sm, dma="KV", last=(sm == 3), vn=(18, 17, 16, 16)[sm], sidx=16+sm, code=("T", sm))
    a("s_branch L_at_qpepi")
    a.label("L_at_qptailB")
    qs_init(S_T)
    a.lds_q = []
    for sm in range(4): qp_stage(sm, dma="QP", last=(sm == 3), vn=18, nok=True, sidx=16+sm, code=("B", sm))
    a.label("L_at_qpepi")
    if qdelay: dly(qdelay, "q")
    st(1)
    if trace:
        a("s_cmp_lg_u32 s2, 5")
        a("s_cbranch_scc1 L_tr_skip")
        a(f"s_cmp_lg_u32 s{S_T}, 0")
        a("s_cbranch_scc1 L_tr_skip")
        a(f"s_cmp_lg_u32 s{S_WAVE}, 0")
        a("s_cbranch_scc1 L_tr_skip")
        a("s_mov_b32 s80, s46"); a("s_mov_b32 s81, s47"); a("s_mov_b32 s82, 256"); a("s_mov_b32 s83, 0x20000")
        a(f"v_lshlrev_b32 v{V_T2}, 2, v{V_LANE}")
        a(f"v_add_u32 v{V_T2}, 128, v{V_T2}")
        a(f"buffer_store_dword v{V_T3}, v{V_T2}, s[80:83], 0 offen")
        a.label("L_tr_skip")
    if defer: a("s_mov_b32 s98, 0x40000000")
    a(f"v_mov_b32 v{V_T2}, s{S_CS}")
    a(f"v_mov_b32 v{V_T3}, s{S_CS}")
    a("s_nop 6")
    TMP = V_S
    for T in range(4):
        if T < 2:
            base = lambda e, qt: V_OK + 28 * (2 * T + e) + 4 * qt
        else:
            base = lambda e, qt: V_OK + 28 * (2 * (T - 2) + e) + 4 * qt
            for e in range(2):
                for qt in range(7):
                    for r in range(4):
                        a(f"v_accvgpr_read_b32 v{base(e,qt)+r}, a{A_OS+28*(2*(T-2)+e)+4*qt+r}")
        for e in range(2):
            for qt in range(7):
                o = base(e, qt)
                for h in range(2):
                    a(f"v_pk_mul_f32 {vr(o+2*h,2)}, {vr(o+2*h,2)}, {vr(V_T2,2)}")
        pk = lambda qt: TMP + 28 * (T & 1) + 4 * qt
        for qt in range(7):
            oe = base(0, qt); oo = base(1, qt); p = pk(qt)
            a(f"v_cvt_pk_bf16_f32 v{p}, v{oe}, v{oe+1}")
            a(f"v_cvt_pk_bf16_f32 v{p+1}, v{oe+2}, v{oe+3}")
            a(f"v_cvt_pk_bf16_f32 v{p+2}, v{oo}, v{oo+1}")
            a(f"v_cvt_pk_bf16_f32 v{p+3}, v{oo+2}, v{oo+3}")
        a("s_nop 1")
        for qt in range(7):
            p = pk(qt)
            a(f"v_permlane16_swap_b32 v{p}, v{p+2}")
            a(f"v_permlane16_swap_b32 v{p+1}, v{p+3}")
        for qt in range(7):
            for r in range(4):
                a(f"v_accvgpr_write_b32 a{A_Q+16*qt+4*T+r}, v{pk(qt)+r}")
    a(f"s_cmp_eq_u32 s{S_PRE}, 0")
    a("s_cbranch_scc1 L_at_nostash")
    a(f"s_mov_b32 s{S_PRE}, 0")
    qstash_off()
    for i in range(7):
        for s_ in range(4):
            a(f"buffer_store_dwordx4 {ar(A_Q+16*i+4*s_,4)}, v{V_T2}, s[{S_W}:{S_W+3}], s{S_C} offen offset:{1024*s_} {qpol}".rstrip())
        if i < 6: a(f"s_add_u32 s{S_C}, s{S_C}, 4096")
    a(f"s_mov_b32 s{S_AS}, 3")
    a("s_branch L_at_round")
    a.label("L_at_nostash")
    a(f"s_cmp_lg_u32 s{S_MP}, 0")
    a("s_cbranch_scc1 L_at_maxpass")
    a.label("L_at_pre")
    a(f"s_cmp_lg_u32 s{S_WO}, 1")
    a("s_cbranch_scc1 L_at_nowo1")
    a(f"s_mov_b32 s{S_WO}, 2")
    wo_finish(0)
    wo_issue(1)
    a.label("L_at_nowo1")
    st(2)
    a.lds_q = ["K"]
    state["n"] = 0
    z = []
    for l in range(8):
        for r in range(4):
            z.append(f"v_mov_b32 v{V_OK+28*l+24+r}, 0" if l < 4 else f"v_accvgpr_write_b32 a{A_OS+28*(l-4)+24+r}, 0")
    if ones: z += [f"v_accvgpr_write_b32 a{A_LS+24+r}, 0" for r in range(4)]
    emit(qk_items(0, 0, True, None), z[:16])
    for o in z[16:]: a(o)
    step(0, first=True, dyn=True)
    a(f"s_mov_b32 s{S_CNT}, 0")
    if align:
        a.lines.append(".p2align 6")
        if align == 2: a("s_nop 0")
    a.label("L_at_loop")
    q0 = list(a.lds_q)
    for jm in (1, 2, 3, 0): step(jm, dyn=(jm in (1, 2)))
    assert q0 == a.lds_q, (q0, a.lds_q)
    if pstl:
        a("s_memrealtime s[78:79]")
        a("s_memtime s[80:81]")
        a("s_waitcnt lgkmcnt(0)")
        a("s_mov_b32 s76, m0")
        a("s_mov_b32 m0, s77"); a("s_nop 0"); a("v_writelane_b32 v0, s78, m0")
        a("s_add_u32 m0, s77, 30"); a("s_nop 0"); a("v_writelane_b32 v0, s80, m0")
        a("s_add_u32 s77, s77, 1")
        a("s_mov_b32 m0, s76")
    a(f"s_add_u32 s{S_CNT}, s{S_CNT}, 1")
    a(f"s_cmp_lt_u32 s{S_CNT}, 6")
    a("s_cbranch_scc1 L_at_loop")
    a(f"s_add_u32 s{S_T}, s{S_T}, 1")
    touch_init(S_T)
    step(1, nt_=3); step(2, nt_=2); step(3, tr_=True)
    if strace: a("s_memtime s[62:63]")
    qs_init(S_T)
    if not early: step(0)
    a(f"s_cmp_lg_u32 s{S_TY}, 0")
    a("s_cbranch_scc1 L_at_atailB")
    n0 = state["n"]; q0 = list(a.lds_q)
    if early: step(0, dma="QP")
    step(1, dma="QP"); step(2, dma="QP"); step(3, dma="QP", last=True)
    a("s_branch L_at_aepi")
    a.label("L_at_atailB")
    state["n"] = n0; a.lds_q = q0
    if early: step(0)
    step(1); step(2); step(3, last=True)
    a.label("L_at_aepi")
    if adelay: dly(adelay, "a")
    a.lds_q = ["V"]
    st(3)
    E = V_S
    red = [f"v_add_f32 v{V_L+2*i}, v{V_L+2*i}, v{V_L+2*i+1}" for i in range(7)]
    red += [f"v_mov_b32 v{E+i}, v{V_L+2*i}" for i in range(7)]
    red += [f"v_permlane16_swap_b32 v{V_L+2*i}, v{E+i}" for i in range(7)]
    red += [f"v_add_f32 v{V_L+2*i}, v{V_L+2*i}, v{E+i}" for i in range(7)]
    red += [f"v_mov_b32 v{E+i}, v{V_L+2*i}" for i in range(7)]
    red += [f"v_permlane32_swap_b32 v{V_L+2*i}, v{E+i}" for i in range(7)]
    red += [f"v_add_f32 v{V_L+2*i}, v{V_L+2*i}, v{E+i}" for i in range(7)]
    a("s_nop 1")
    if ones:
        emit(pv_items(6, 1, False, None), [])
        a("s_nop 7")
        for i in range(7): a(f"v_accvgpr_read_b32 v{V_L+2*i}, a{A_LS+4*i}")
    else:
        emit(pv_items(6, 1, False, None), red)
    for i in range(7): a(f"v_rcp_f32 v{V_CI+4*i}, v{V_L+2*i}")
    a(f"v_add_f32 v{E+2}, v{V_L}, v{V_L+2}")
    a(f"v_add_f32 v{E+3}, v{V_L+4}, v{V_L+6}")
    a(f"v_add_f32 v{E+4}, v{V_L+8}, v{V_L+10}")
    a(f"v_add_f32 v{E+2}, v{E+2}, v{V_L+12}")
    a(f"v_add_f32 v{E+3}, v{E+3}, v{E+4}")
    a(f"v_add_f32 v{E+2}, v{E+2}, v{E+3}")
    a(f"v_cmp_nge_f32 vcc, s{S_THR}, v{E+2}")
    for i in range(7): a(f"v_mov_b32 v{V_L+2*i}, 0xff800000")
    a("s_cmp_eq_u64 vcc, 0")
    a("s_cbranch_scc1 L_at_noflag")
    if nofb: a("s_branch L_at_noflag")
    a(f"s_lshl_b32 s{S_B}, s{S_T}, 2")
    a(f"s_add_u32 s{S_B}, s{S_B}, {LDS_FLAG-4}")
    a(f"v_mov_b32 v{E+2}, s{S_B}")
    a(f"v_mov_b32 v{E+3}, 1")
    a(f"ds_write_b32 v{E+2}, v{E+3}")
    a.label("L_at_noflag")
    if rflip:
        a(f"s_sub_u32 s{S_D}, s{S_T}, 1")
        a(f"s_mul_i32 s{S_D}, s{S_D}, s99")
        a(f"s_add_u32 s{S_D}, s{S_D}, s{S_OOFF}")
    else:
        a(f"s_mul_i32 s{S_D}, s{S_T}, {2*PAIRB}")
        a(f"s_add_u32 s{S_D}, s{S_D}, s{S_OOFF}")
        a(f"s_sub_u32 s{S_D}, s{S_D}, {2*PAIRB}")
    if defer:
        a(f"s_cmp_lt_u32 s{S_T}, 2")
        a(f"s_cselect_b32 s99, 1, 0")
        a(f"s_cmp_eq_u32 s{S_TY}, 0")
        a(f"s_cselect_b32 s99, s99, 0")
        a(f"s_cmp_lg_u32 s99, 0")
        a(f"s_cselect_b32 s98, s{S_D}, s98")
    for T in range(4):
        if T < 2:
            base = lambda e, qt: V_OK + 28 * (2 * T + e) + 4 * qt
        else:
            base = lambda e, qt: V_OK + 28 * (2 * (T - 2) + e) + 4 * qt
            for e in range(2):
                for qt in range(7):
                    for r in range(4):
                        a(f"v_accvgpr_read_b32 v{base(e,qt)+r}, a{A_OS+28*(2*(T-2)+e)+4*qt+r}")
        for e in range(2):
            for qt in range(7):
                o = base(e, qt)
                for h in range(2):
                    a(f"v_pk_mul_f32 {vr(o+2*h,2)}, {vr(o+2*h,2)}, {vr(V_CI+4*qt,2)} op_sel_hi:[1,0]")
        pk = lambda qt: V_S + 28 * (T & 1) + 4 * qt
        for qt in range(7):
            oe = base(0, qt); oo = base(1, qt); p = pk(qt)
            a(f"v_cvt_pk_bf16_f32 v{p}, v{oe}, v{oe+1}")
            a(f"v_cvt_pk_bf16_f32 v{p+1}, v{oe+2}, v{oe+3}")
            a(f"v_cvt_pk_bf16_f32 v{p+2}, v{oo}, v{oo+1}")
            a(f"v_cvt_pk_bf16_f32 v{p+3}, v{oo+2}, v{oo+3}")
        a("s_nop 1")
        for qt in range(7):
            p = pk(qt)
            a(f"v_permlane16_swap_b32 v{p}, v{p+2}")
            a(f"v_permlane16_swap_b32 v{p+1}, v{p+3}")
        if defer:
            a(f"s_cmp_lg_u32 s99, 0")
            a(f"s_cbranch_scc1 L_at_dfr{T}")
        a(f"s_mov_b32 s{S_A}, s{S_D}")
        for qt in range(7):
            if not nost: a(f"buffer_store_dwordx4 {vr(pk(qt),4)}, v{V_XA}, s[{S_W}:{S_W+3}], s{S_A} offen offset:{1024*T} {stpol}".rstrip())
            if dupst:
                a(f"s_sub_u32 s{S_B}, s{S_A}, {WS_O - 30000000}")
                a(f"buffer_store_dwordx4 {vr(pk(qt),4)}, v{V_XA}, s[72:75], s{S_B} offen offset:{1024*T}")
            if qt < 6: a(f"s_add_u32 s{S_A}, s{S_A}, 4096")
        if defer:
            a(f"s_branch L_at_dfj{T}")
            a.label(f"L_at_dfr{T}")
            for qt in range(7):
                for r in range(4):
                    a(f"v_accvgpr_write_b32 a{A_Q+16*qt+4*T+r}, v{pk(qt)+r}")
            a.label(f"L_at_dfj{T}")
    a("s_nop 1")
    a(f"s_cmp_lg_u32 s{S_WO}, 2")
    a("s_cbranch_scc1 L_at_nowo2")
    a(f"s_mov_b32 s{S_WO}, 3")
    wo_finish(1)
    a.label("L_at_nowo2")
    a(f"s_mov_b32 s{S_AS}, 3")
    if defer:
        a("s_cmp_lg_u32 s99, 0")
        a(f"s_cselect_b32 s{S_AS}, 0, 3")
    st(4)
    a.lds_q = []
    a(f"s_cmp_ge_u32 s{S_T}, 2")
    a("s_cbranch_scc1 L_at_fin")
    a(f"s_cmp_eq_u32 s{S_TY}, 0")
    a("s_cbranch_scc1 L_at_round")
    a(f"s_waitcnt vmcnt({56 if dupst else 28})")
    a("s_branch L_at_pre")
    a.label("L_at_fin")
    a("s_waitcnt lgkmcnt(0)")
    a("s_barrier")
    flagcheck()
    if pst:
        a("s_memrealtime s[78:79]")
        a("s_memtime s[80:81]")
        a("s_waitcnt lgkmcnt(0)")
        a("s_mov_b32 m0, s77"); a("s_nop 0"); a("v_writelane_b32 v0, s78, m0")
        a("s_add_u32 m0, s77, 30"); a("s_nop 0"); a("v_writelane_b32 v0, s80, m0")
        a("s_getreg_b32 s62, hwreg(HW_REG_XCC_ID)")
        a("v_writelane_b32 v0, s62, 63")
        a(f"v_writelane_b32 v0, s{S_TY}, 62")
        a(f"s_cmp_lg_u32 s{S_WAVE}, 0")
        a("s_cbranch_scc1 L_at_end")
        a("s_lshl_b32 s62, s2, 8"); a("s_add_u32 s62, s62, 50000000")
        a(f"v_lshlrev_b32 v2, 2, v{V_LANE}")
        a(f"buffer_store_dword v0, v2, s[{S_W}:{S_W+3}], s62 offen")
    if stamp:
        a("s_memtime s[56:57]")
        a("s_memrealtime s[58:59]")
        a("s_waitcnt lgkmcnt(0)")
        if allst:
            a("v_mov_b32 v2, s66"); a("v_mov_b32 v3, s58")
            a("s_sub_u32 s62, s56, s64"); a("v_mov_b32 v4, s62")
            a("s_getreg_b32 s62, hwreg(HW_REG_XCC_ID)"); a("v_mov_b32 v5, s62")
            a("s_lshl_b32 s62, s2, 4"); a("s_add_u32 s62, s62, 50000000"); a("v_mov_b32 v6, s62")
            a(f"buffer_store_dwordx4 v[2:5], v6, s[{S_W}:{S_W+3}], 0 offen")
        a(f"s_cmp_lg_u32 s2, {stwg}")
        a("s_cbranch_scc1 L_at_end")
        a("s_sub_u32 s56, s56, s64")
        a("s_sub_u32 s58, s58, s66")
        a("s_mov_b32 s84, s46")
        a("s_mov_b32 s85, s47")
        a("s_mov_b32 s86, 256")
        a("s_mov_b32 s87, 0x20000")
        a("v_mov_b32 v2, s56")
        a("v_mov_b32 v3, s58")
        a(f"s_lshl_b32 s62, s{S_WAVE}, 3")
        a("v_mov_b32 v4, s62")
        a("buffer_store_dwordx2 v[2:3], v4, s[84:87], 0 offen")
        if strace:
            pr = [36, 38, 40, 42, 56, 58, 60, 62]
            for i in range(7):
                a(f"s_sub_u32 s78, s{pr[i+1]}, s{pr[i]}")
                a("v_mov_b32 v2, s78")
                a(f"v_mov_b32 v4, {160+4*i}")
                a("buffer_store_dword v2, v4, s[84:87], 0 offen")
        a("s_sub_u32 s62, s72, s64")
        a("v_mov_b32 v2, s62")
        a(f"v_mov_b32 v4, {DBO+4*5}")
        a("buffer_store_dword v2, v4, s[84:87], 0 offen")
        for k in range(1, 5):
            a(f"s_sub_u32 s62, s{72+2*k}, s{70+2*k}")
            a("v_mov_b32 v2, s62")
            a(f"v_mov_b32 v4, {DBO+4*k}")
            a("buffer_store_dword v2, v4, s[84:87], 0 offen")
    a("s_branch L_at_end")

    a.label("L_at_fallback")
    a(f"s_sub_u32 s{S_T0}, s{S_T}, 1")
    a(f"s_mov_b32 s{S_NOFB}, s{S_T0}")
    a(f"s_mov_b32 s{S_MP}, 1")
    a(f"s_mov_b32 s{S_TY}, 0")
    a(f"s_mov_b32 s{S_PRE}, 0")
    a(f"s_mov_b32 s{S_AS}, 0")
    if defer: a("s_mov_b32 s98, 0x40000000")
    for i in range(7): a(f"v_mov_b32 v{V_L+2*i}, 0xff800000")
    a("s_waitcnt vmcnt(0) lgkmcnt(0)")
    a("s_barrier")
    a("s_branch L_at_start")
    a.label("L_at_maxpass")
    a(f"s_mov_b32 s{S_MP}, 0")
    a("s_waitcnt lgkmcnt(0)")
    a(f"v_and_b32 v{V_T0}, 15, v{V_LANE}")
    a(f"v_lshlrev_b32 v{V_T0}, 8, v{V_T0}")
    a(f"v_bfe_u32 v{V_T1}, v{V_LANE}, 4, 1")
    a(f"v_lshl_add_u32 v{V_T0}, v{V_T1}, 5, v{V_T0}")
    a(f"v_bfe_u32 v{V_T1}, v{V_LANE}, 5, 1")
    a(f"v_lshl_add_u32 v{V_T2}, v{V_T1}, 4, v{V_T0}")
    a(f"v_add_u32 v{V_T3}, 4096, v{V_T2}")
    a(f"s_lshl_b32 s{S_B}, s{S_T}, 19")
    if rflip: a(f"s_xor_b32 s{S_B}, s{S_B}, s101")
    a(f"s_mov_b32 s{S_CNT}, 0")
    a.label("L_at_mp")
    for f in range(8):
        a(f"buffer_load_dwordx4 {vr(V_VF+4*f,4)}, v{V_T2 + (f>>2)}, s[{S_K}:{S_K+3}], s{S_B} offen offset:{64*(f&3)}")
    a("s_waitcnt vmcnt(0)")
    for i in range(7):
        for f in range(8):
            kt, s = f >> 2, f & 3
            D = vr(V_S + 4 * kt, 4)
            a(f"{MFMA} {D}, {vr(V_VF+4*f,4)}, {ar(A_Q+16*i+4*s,4)}, {'0' if s == 0 else D}")
        a("s_nop 9")
        for r in range(0, 8, 2):
            a(f"v_max3_f32 v{V_L+2*i}, v{V_S+r}, v{V_S+r+1}, v{V_L+2*i}")
        a("s_nop 3")
    a(f"s_add_u32 s{S_B}, s{S_B}, 8192")
    a(f"s_add_u32 s{S_CNT}, s{S_CNT}, 1")
    a(f"s_cmp_lt_u32 s{S_CNT}, 32")
    a("s_cbranch_scc1 L_at_mp")
    a("s_branch L_at_pre")
    a.label("L_at_end")
    a("s_endpgm")
    return a.text()

if __name__ == "__main__":
    import sys
    name = "fused_kernel"
    opts = dict(x.split("=") for x in sys.argv[2:])
    opts = {k: bool(int(v)) for k, v in opts.items()}
    body = gen_fused(name, **opts)
    out = f"; @launch kernel={name} grid=(256,1,1) block=(256,1,1) lds={LDS_BYTES}\n"
    out += '.amdgcn_target "amdgcn-amd-amdhsa--gfx950"\n.text\n' + kernel_header(name) + body
    out += '.section .rodata,"a"\n.p2align 6\n' + kernel_desc(name, 512, accum=256)
    open(sys.argv[1], "w").write(out)
```

```python
from gen_common import *
import math

NQB = 3584 * 4096 * 2
WS_O = 2 * NQB
WS_W = 4 * NQB
WS_BYTES = 4 * NQB + 2 * 4096 * 640 * 2
PAIRB = 224 * 128 * 2

TILE = 8448
RING = 4
AREA = RING * TILE
LDS_BYTES = 163840
LDS_FLAG = 2 * AREA + 1024
LDS_FLAG = 2 * AREA + 8416

def kpad(i): return 1024 * i + 16 * ((i & 1) + 4 * (i >> 1))

V_LANE, V_T0, V_T1, V_T2, V_T3, V_LIN, V_DMA = 1, 2, 3, 4, 5, 6, 7
V_KA, V_VA, V_XA, V_WA = 8, 9, 10, 11
V_L = 12
V_QD, V_BA = 26, 27
V_CI = 28
V_KF = 56
V_S = 88
V_P = 104
V_VF = 112
V_OK = 144
A_Q = 0
A_OS = 112
A_LS = 224
A_ONE = 252
S_LD, S_K, S_W, S_QP = 4, 8, 12, 16
S_WAVE, S_T, S_CNT, S_NOFB, S_OOFF, S_MP, S_T0 = 20, 21, 22, 23, 24, 25, 27
S_A, S_B, S_C, S_D = 28, 29, 30, 31
S_THR, S_LDB, S_DJ, S_PJ, S_QH, S_DOFF = 32, 33, 34, 35, 48, 49
S_QS, S_QSTEP, S_QRND, S_MSTEP, S_CS = 50, 51, 52, 53, 54
S_TAB = 88
S_AS, S_TY, S_PRE, S_WO = 68, 69, 70, 71
MFMA = "v_mfma_f32_16x16x32_bf16"
def ar(a, n=1):
    return f"a{a}" if n == 1 else f"a[{a}:{a+n-1}]"

def gen_fused(name, nt=True, stamp=False, nofb=False, noload=False, nost=False, nox=False, now=False, st0=False, touch=False, kvt=False, kvtnt=False, nowo=False, tnt=False, qnt=False, wont=False, trace=False, DBO=64, ones=False, strace=False, xmem=0, xmfma=0, delay=0, tymask=1, stwg=4, roll=False, bulk0=True, wsbase=0, rot=True, rsh=1, dupst=False, allst=False, align=0, roles=False, fakex=False, early=False, qdelay=0, adelay=0, kvpol=None, xf=False, pst=False, kvl2=False, xq=False, pstl=False, kv0=False, qpnl=False, cpf=0, cpflate=False, qps=False, tymode=0, tyinv=False, xswap=False, qnrd=False, qnbar=False, qbar=7, qd0=9, qdstep=6, kvrot=0, kvgs=11, kvt2=0, kvts=64, tper=1, tpol='', tlbw=0, rflip=0, stpol='', defer=False, dpol='', dnp=3, wpol='', qpol='', anbar=False, anrd=False, anva='', ansu=False):
    a = Asm()
    NT = " nt" if nt else ""
    if kvpol: NT = " " + kvpol
    a("s_cmp_ge_u32 s2, 256")
    a("s_cbranch_scc1 L_at_end")
    if cpf:
        a("s_getpc_b64 s[72:73]")
        a.label("L_pc0")
        a(f"s_mov_b32 s74, L_code_end - L_pc0")
        a("s_mov_b32 s75, 0x20000")
        a("v_lshlrev_b32 v105, 6, v0")
        if not cpflate:
          for k in range(cpf // 16):
            a(f"s_mov_b32 s76, {k*16384}")
            a("buffer_load_dword v104, v105, s[72:75], s76 offen")
    a("s_and_b32 s3, s2, 7")
    a("s_lshl_b32 s3, s3, 5")
    a("s_lshr_b32 s36, s2, 6")
    a("s_lshl_b32 s36, s36, 3")
    a("s_or_b32 s3, s3, s36")
    a("s_bfe_u32 s36, s2, 0x30003")
    a("s_or_b32 s2, s3, s36")
    if xswap: a("s_xor_b32 s2, s2, 32"); a("s_nop 0")
    a("s_load_dwordx8 s[36:43], s[0:1], 0")
    a("s_load_dwordx8 s[56:63], s[0:1], 40")
    a("s_load_dwordx2 s[44:45], s[0:1], 96")
    a("s_load_dwordx2 s[84:85], s[0:1], 32")
    a("s_load_dwordx2 s[86:87], s[0:1], 72")
    a(f"v_and_b32 v{V_LANE}, 63, v0")
    a(f"v_lshrrev_b32 v{V_T0}, 6, v0")
    a("s_nop 0")
    a(f"v_readfirstlane_b32 s{S_WAVE}, v{V_T0}")
    a("s_waitcnt lgkmcnt(0)")
    a(f"s_and_b32 s{S_QH}, s{S_WAVE}, 1")
    a(f"s_lshr_b32 s{S_PJ}, s{S_WAVE}, 1")
    a("s_cmp_ge_u32 s2, 128")
    for k in range(8):
        a(f"s_cselect_b32 s{36+k}, s{56+k}, s{36+k}")
    a("s_cselect_b32 s84, s86, s84")
    a("s_cselect_b32 s85, s87, s85")
    a(f"s_mov_b32 s86, {4096*640*2}")
    a("s_mov_b32 s87, 0x20000")
    a(f"s_and_b32 s{S_A}, s2, 127")
    a(f"s_lshl_b32 s{S_B}, s{S_A}, 20")
    a(f"s_lshl_b32 s{S_C}, s{S_PJ}, 18")
    a(f"s_add_u32 s{S_B}, s{S_B}, s{S_C}")
    a(f"s_add_u32 s38, s38, s{S_B}")
    a("s_addc_u32 s39, s39, 0")
    a(f"s_add_u32 s40, s40, s{S_B}")
    a("s_addc_u32 s41, s41, 0")
    a(f"s_sub_u32 s{S_C}, 0x100000, s{S_C}")
    a(f"s_mov_b32 s{S_K}, s38")
    a(f"s_mov_b32 s{S_K+1}, s39")
    a(f"s_mov_b32 s{S_K+2}, s{S_C}")
    a(f"s_mov_b32 s{S_K+3}, 0x20000")
    a(f"s_cmp_eq_u32 s{S_QH}, 0")
    a(f"s_cselect_b32 s{S_LD}, s38, s40")
    a(f"s_cselect_b32 s{S_LD+1}, s39, s41")
    a(f"s_mov_b32 s{S_LD+2}, {'0' if kv0 else 's'+str(S_C)}")
    a(f"s_mov_b32 s{S_LD+3}, 0x20000")
    if xf:
        a(f"s_add_u32 s36, s44, {4*NQB + 2*4096*640*2}")
        a("s_addc_u32 s37, s45, 0")
        a(f"s_cmp_eq_u32 s{S_QH}, 0")
    a(f"s_cselect_b32 s{S_QP}, s42, s36")
    a(f"s_cselect_b32 s{S_QP+1}, s43, s37")
    a(f"s_mov_b32 s{S_A}, {0 if now else 640*4096*2}")
    a(f"s_mov_b32 s{S_B}, {0 if nox else (2*3584*640*2 if xf else 3584*640*2)}")
    a(f"s_cselect_b32 s{S_QP+2}, s{S_A}, s{S_B}")
    a(f"s_mov_b32 s{S_QP+3}, 0x20000")
    a(f"s_mov_b32 s{S_A}, {32*8192}")
    a(f"s_mov_b32 s{S_B}, {7168 if (fakex or xf) else 64}")
    a(f"s_cselect_b32 s{S_QSTEP}, s{S_A}, s{S_B}")
    a(f"s_cselect_b32 s{S_QRND}, 512, 0")
    a(f"s_mov_b32 s{S_A}, 1056")
    a(f"s_mov_b32 s{S_B}, 1024")
    a(f"s_cselect_b32 s{S_MSTEP}, s{S_A}, s{S_B}")
    for i in range(8):
        a(f"s_mov_b32 s{S_A}, {((i&3)+8*(i>>2))*8192}")
        a(f"s_mov_b32 s{S_B}, {(1024*i if (fakex or xf) else 20480*i) if i < 7 else 0x40000000}")
        a(f"s_cselect_b32 s{S_TAB+i}, s{S_A}, s{S_B}")
    a(f"s_and_b32 s{S_A}, s2, 7")
    a(f"s_lshl_b32 s{S_A}, s{S_A}, 2")
    a(f"s_add_u32 s{S_A}, s{S_A}, s{S_PJ}")
    a(f"s_lshl_b32 s{S_A}, s{S_A}, 8")
    a(f"s_bfe_u32 s{S_B}, s2, {0x50003 if xf else 0x40003}")
    a(f"s_lshl_b32 s{S_B}, s{S_B}, 1")
    a(f"s_add_u32 s{S_B}, s{S_B}, s{S_PJ}")
    a(f"s_mul_i32 s{S_B}, s{S_B}, {112*1280}")
    a(f"s_cmp_eq_u32 s{S_QH}, 0")
    a(f"s_cselect_b32 s55, s{S_A}, s{S_B}")
    a(f"s_add_u32 s{S_W}, s44, {wsbase}")
    a(f"s_addc_u32 s{S_W+1}, s45, 0")
    a(f"s_mov_b32 s{S_W+2}, {WS_BYTES}")
    a(f"s_mov_b32 s{S_W+3}, 0x20000")
    a(f"s_lshl_b32 s{S_A}, s2, 2")
    a(f"s_add_u32 s{S_A}, s{S_A}, s{S_PJ}")
    a(f"s_mul_i32 s{S_OOFF}, s{S_A}, {PAIRB}")
    a(f"s_mul_i32 s{S_A}, s{S_QH}, {7*4096}")
    a(f"s_add_u32 s{S_OOFF}, s{S_OOFF}, s{S_A}")
    a(f"s_add_u32 s{S_OOFF}, s{S_OOFF}, {WS_O}")
    a(f"s_mov_b32 s{S_NOFB}, -1")
    a("s_mov_b32 s60, s42"); a("s_mov_b32 s61, s43"); a(f"s_mov_b32 s62, {640*4096*2}"); a("s_mov_b32 s63, 0x20000")
    a(f"s_mov_b32 s{S_T0}, 0")
    a(f"s_mov_b32 s{S_MP}, 0")
    a(f"s_mov_b32 s{S_AS}, 0")
    if defer: a("s_mov_b32 s98, 0x40000000")
    a(f"s_mov_b32 s{S_WO}, {3 if nowo else 0}")
    a(f"s_lshr_b32 s26, s2, 3")
    a(f"s_lshr_b32 s{S_A}, s2, {rsh}")
    a(f"s_add_u32 s26, s26, s{S_A}")
    a("s_and_b32 s26, s26, 3")
    a("s_mul_i32 s26, s26, 5")
    a(f"s_mul_i32 s83, s{S_QSTEP}, 20")
    a(f"s_and_b32 s{S_TY}, s2, {tymask}")
    a(f"s_min_u32 s{S_TY}, s{S_TY}, 1")
    if tyinv: a(f"s_xor_b32 s{S_TY}, s{S_TY}, 1"); a("s_nop 0")
    if tymode == 1:
        a("s_bfe_u32 s3, s2, 0x10005"); a("s_xor_b32 s3, s3, 1"); a(f"s_and_b32 s{S_TY}, s2, s3"); a("s_nop 0")
    if tymode == 2:
        a("s_bfe_u32 s3, s2, 0x10005"); a("s_xor_b32 s3, s3, 1"); a(f"s_and_b32 s{S_TY}, s2, 3"); a(f"s_min_u32 s{S_TY}, s{S_TY}, 1"); a(f"s_and_b32 s{S_TY}, s{S_TY}, s3")
    if tymode == 3:
        a("s_bfe_u32 s3, s2, 0x10005"); a("s_xor_b32 s3, s3, 1"); a(f"s_and_b32 s{S_TY}, s2, 3"); a(f"s_cmp_eq_u32 s{S_TY}, 0"); a(f"s_cselect_b32 s{S_TY}, 1, 0"); a(f"s_or_b32 s{S_TY}, s{S_TY}, s3")
    a(f"s_mov_b32 s{S_PRE}, s{S_TY}")
    a(f"s_mov_b32 s{S_THR}, 0x4e800000")
    import struct
    cs = struct.unpack("<I", struct.pack("<f", (128 ** -0.5) * 1.4426950408889634))[0]
    a(f"s_mov_b32 s{S_CS}, {cs:#x}")
    a(f"s_lshl_b32 s{S_A}, s{S_QH}, 1")
    a(f"s_add_u32 s{S_A}, s{S_A}, s{S_PJ}")
    a(f"s_mul_i32 s{S_LDB}, s{S_A}, {AREA}")
    if stamp:
        a("s_memtime s[64:65]")
        a("s_memrealtime s[66:67]")
        a("s_load_dwordx2 s[46:47], s[0:1], 88")
        a("s_waitcnt lgkmcnt(0)")
    G, N = V_T0, V_T1
    a(f"v_lshlrev_b32 v{V_LIN}, 4, v{V_LANE}")
    a(f"v_lshrrev_b32 v{G}, 4, v{V_LANE}")
    a(f"v_and_b32 v{N}, 15, v{V_LANE}")
    a(f"v_lshlrev_b32 v{V_T2}, 4, v{N}")
    a(f"v_lshl_add_u32 v{V_DMA}, v{G}, {kvgs}, v{V_T2}")
    a(f"v_bfe_u32 v{V_T3}, v{V_LANE}, 4, 1")
    a(f"v_lshl_add_u32 v{V_QD}, v{V_T3}, 15, v{V_T2}")
    a(f"v_bfe_u32 v{V_T3}, v{V_LANE}, 5, 1")
    a(f"v_lshl_add_u32 v{V_QD}, v{V_T3}, 17, v{V_QD}")
    a(f"v_mul_u32_u24 v{V_BA}, 1280, v{N}")
    a(f"v_lshl_add_u32 v{V_BA}, v{G}, 4, v{V_BA}")
    if fakex or xf: a(f"v_mov_b32 v{V_BA}, v{V_LIN}")
    if xq:
        a(f"v_lshrrev_b32 v{V_T3}, 4, v{V_LANE}")
        a(f"v_and_b32 v{V_BA}, 1, v{V_T3}")
        a(f"v_lshlrev_b32 v{V_BA}, 1, v{V_BA}")
        a(f"v_lshrrev_b32 v{V_T3}, 1, v{V_T3}")
        a(f"v_mul_u32_u24 v{V_T3}, 3, v{V_T3}")
        a(f"v_xor_b32 v{V_BA}, v{V_BA}, v{V_T3}")
        a(f"v_and_b32 v{V_T3}, 3, v{V_LANE}")
        a(f"v_xor_b32 v{V_BA}, v{V_BA}, v{V_T3}")
        a(f"v_lshlrev_b32 v{V_BA}, 4, v{V_BA}")
        a(f"v_lshrrev_b32 v{V_T3}, 2, v{V_LANE}")
        a(f"v_mul_u32_u24 v{V_T3}, 1280, v{V_T3}")
        a(f"v_add_u32 v{V_BA}, v{V_BA}, v{V_T3}")
    a(f"s_cmp_eq_u32 s{S_QH}, 0")
    a("s_cselect_b64 vcc, -1, 0")
    a("s_nop 1")
    a(f"v_cndmask_b32 v{V_QD}, v{V_BA}, v{V_QD}, vcc")
    a(f"s_add_u32 s{S_A}, s{S_QH}, 2")
    a(f"s_mul_i32 s{S_A}, s{S_A}, {AREA}")
    if xq:
        a(f"v_bfe_u32 v{V_T3}, v{V_LANE}, 2, 2")
        a(f"v_and_b32 v{V_BA}, 1, v{V_T3}")
        a(f"v_lshlrev_b32 v{V_BA}, 1, v{V_BA}")
        a(f"v_lshrrev_b32 v{V_T3}, 1, v{V_T3}")
        a(f"v_mul_u32_u24 v{V_T3}, 3, v{V_T3}")
        a(f"v_xor_b32 v{V_BA}, v{V_BA}, v{V_T3}")
        a(f"v_xor_b32 v{V_BA}, v{V_BA}, v{G}")
        a(f"v_lshlrev_b32 v{V_BA}, 4, v{V_BA}")
        a(f"v_lshl_add_u32 v{V_BA}, v{N}, 6, v{V_BA}")
        a(f"v_add_u32 v{V_BA}, s{S_A}, v{V_BA}")
    else:
        a(f"v_add_u32 v{V_BA}, s{S_A}, v{V_LIN}")
    a(f"v_bfe_u32 v{V_T3}, v{V_LANE}, 4, 1")
    a(f"v_lshl_add_u32 v{V_T2}, v{V_T3}, 9, v{V_T2}")
    a(f"v_bfe_u32 v{V_T3}, v{V_LANE}, 5, 1")
    a(f"v_lshl_add_u32 v{V_XA}, v{V_T3}, 8, v{V_T2}")
    a(f"v_and_b32 v{V_T2}, 7, v{N}")
    a(f"v_lshlrev_b32 v{V_KA}, 10, v{V_T2}")
    a(f"v_and_b32 v{V_T3}, 1, v{N}")
    a(f"v_lshl_add_u32 v{V_KA}, v{V_T3}, 4, v{V_KA}")
    a(f"v_bfe_u32 v{V_T3}, v{N}, 1, 2")
    a(f"v_lshl_add_u32 v{V_KA}, v{V_T3}, 6, v{V_KA}")
    a(f"v_lshrrev_b32 v{V_T3}, 3, v{N}")
    a(f"v_lshl_add_u32 v{V_KA}, v{V_T3}, 8, v{V_KA}")
    a(f"v_bfe_u32 v{V_T3}, v{V_LANE}, 4, 1")
    a(f"v_lshl_add_u32 v{V_KA}, v{V_T3}, 5, v{V_KA}")
    a(f"v_bfe_u32 v{V_T3}, v{V_LANE}, 5, 1")
    a(f"v_lshl_add_u32 v{V_KA}, v{V_T3}, 4, v{V_KA}")
    a(f"s_mul_i32 s{S_A}, s{S_PJ}, {AREA}")
    a(f"v_add_u32 v{V_KA}, s{S_A}, v{V_KA}")
    a(f"v_bfe_u32 v{N}, v{V_LANE}, 2, 2")
    a(f"v_bfe_u32 v{V_T3}, v{V_LANE}, 4, 1")
    a(f"v_lshl_add_u32 v{V_T2}, v{V_T3}, 2, v{N}")
    a(f"v_mul_u32_u24 v{V_T2}, 1056, v{V_T2}")
    a(f"v_bfe_u32 v{V_T3}, v{V_LANE}, 5, 1")
    a(f"v_lshl_add_u32 v{V_T2}, v{V_T3}, 9, v{V_T2}")
    a(f"v_and_b32 v{V_T3}, 3, v{V_LANE}")
    a(f"v_lshl_add_u32 v{V_T2}, v{V_T3}, 3, v{V_T2}")
    a(f"v_add_u32 v{V_WA}, s{S_A}, v{V_T2}")
    a(f"v_lshl_add_u32 v{N}, v{G}, 2, v{N}")
    a(f"v_and_b32 v{V_T2}, 7, v{N}")
    a(f"v_mul_u32_u24 v{V_T2}, 1056, v{V_T2}")
    a(f"v_lshrrev_b32 v{V_T3}, 3, v{N}")
    a(f"v_lshl_add_u32 v{V_T2}, v{V_T3}, 8, v{V_T2}")
    a(f"v_and_b32 v{V_T3}, 3, v{V_LANE}")
    a(f"v_lshl_add_u32 v{V_T2}, v{V_T3}, 3, v{V_T2}")
    a(f"s_add_u32 s{S_A}, s{S_A}, {2*AREA}")
    a(f"v_add_u32 v{V_VA}, s{S_A}, v{V_T2}")
    for i in range(7):
        a(f"v_mov_b32 v{V_L+2*i}, 0xff800000")
    a(f"v_mov_b32 v{V_T0}, 0x3f803f80")
    for i in range(4): a(f"v_accvgpr_write_b32 a{A_ONE+i}, v{V_T0}")
    a(f"v_and_b32 v{V_T0}, 3, v{V_LANE}")
    a(f"v_lshlrev_b32 v{V_T0}, 2, v{V_T0}")
    a(f"v_add_u32 v{V_T0}, {LDS_FLAG}, v{V_T0}")
    a(f"v_mov_b32 v{V_T1}, 0")
    a(f"ds_write_b32 v{V_T0}, v{V_T1}")
    a(f"s_cmp_eq_u32 s{S_QH}, 0")
    a(f"s_mov_b32 s{S_A}, {kpad(1)-kpad(0)-256}")
    a(f"s_mov_b32 s{S_B}, 800")
    a(f"s_cselect_b32 s96, s{S_A}, s{S_B}")
    a(f"s_mov_b32 s{S_A}, {kpad(2)-kpad(1)-256}")
    a(f"s_cselect_b32 s97, s{S_A}, s{S_B}")

    a(f"v_lshrrev_b32 v{V_T0}, 1, v{V_LANE}")
    a(f"v_lshlrev_b32 v{V_T0}, 13, v{V_T0}")
    a(f"v_and_b32 v{V_T1}, 1, v{V_LANE}")
    a(f"v_lshl_add_u32 v{V_T0}, v{V_T1}, 7, v{V_T0}")
    a(f"v_lshlrev_b32 v{V_T1}, 7, v{V_LANE}")
    a(f"s_bfe_u32 s{S_A}, s2, 0x20003")
    a(f"s_lshl_b32 s{S_A}, s{S_A}, 18")
    a(f"s_and_b32 s{S_B}, s2, 7")
    a(f"s_mul_i32 s{S_B}, s{S_B}, 17920")
    a(f"s_cmp_eq_u32 s{S_QH}, 0")
    a("s_cselect_b64 vcc, -1, 0")
    a(f"s_cselect_b32 s100, s{S_A}, s{S_B}")
    a(f"s_add_u32 s100, s100, s55")
    a(f"s_cmp_eq_u32 s{S_QH}, 0")
    a(f"s_mov_b32 s{S_A}, {4*32*8192}")
    a(f"s_mov_b32 s{S_B}, 8192")
    a(f"s_cselect_b32 s99, s{S_A}, s{S_B}")
    a(f"v_cndmask_b32 v{V_LIN}, v{V_T1}, v{V_T0}, vcc")
    def tf0(u): return (u & ((1 << kvgs) - 1)) | ((u >> kvgs) << (kvgs + 2))
    if kvt2:
        lb = kvgs - int(math.log2(kvts))
        if lb >= 6:
            a(f"v_mul_u32_u24 v{V_LIN}, {kvts}, v{V_LANE}")
        else:
            a(f"v_and_b32 v{V_T0}, {(1 << lb) - 1}, v{V_LANE}")
            a(f"v_mul_u32_u24 v{V_T0}, {kvts}, v{V_T0}")
            a(f"v_lshrrev_b32 v{V_T1}, {lb}, v{V_LANE}")
            a(f"v_lshl_add_u32 v{V_LIN}, v{V_T1}, {kvgs + 2}, v{V_T0}")
    def tch(s_): return bool(kvt2) and s_ < 16 and s_ % tper == 0
    def tvn(s_): return sum(1 for t in range(max(0, s_ - 3), s_) if tch(t))
    def tinc(k): return tf0((k + 1) * 64 * kvts) - tf0(k * 64 * kvts)
    if kvrot == 0 and kvgs != 11: a("s_mov_b32 s100, 0")
    if kvrot == 1:
        a("s_and_b32 s100, s2, 31")
    if kvrot == 2:
        a("s_mul_i32 s100, s2, 11"); a(f"s_lshr_b32 s{S_A}, s2, 5"); a(f"s_mul_i32 s{S_A}, s{S_A}, 7"); a(f"s_add_u32 s100, s100, s{S_A}")
        a(f"s_lshl_b32 s{S_A}, s{S_PJ}, 4"); a(f"s_add_u32 s100, s100, s{S_A}"); a("s_and_b32 s100, s100, 31")
    if kvrot == 3:
        a("s_lshr_b32 s100, s2, 5"); a("s_lshl_b32 s100, s100, 2")
    if rflip:
        if rflip == 1: a(f"s_bfe_u32 s{S_A}, s2, 0x10005")
        if rflip == 2: a(f"s_bfe_u32 s{S_A}, s2, 0x10006")
        if rflip == 3: a(f"s_bfe_u32 s{S_A}, s2, 0x10007")
        if rflip == 4: a(f"s_bfe_u32 s{S_A}, s2, 0x10003")
        a(f"s_lshl_b32 s101, s{S_A}, 19")
        a(f"s_mul_i32 s{S_B}, s{S_A}, s{S_QRND}")
        a(f"s_add_u32 s55, s55, s{S_B}")
        a(f"s_sub_u32 s{S_B}, 0, s{S_QRND}")
        a(f"s_cmp_lg_u32 s{S_A}, 0")
        a(f"s_cselect_b32 s{S_QRND}, s{S_B}, s{S_QRND}")
        a(f"s_mov_b32 s99, {2*PAIRB}")
        a(f"s_cselect_b32 s99, {-2*PAIRB & 0xffffffff:#x}, s99")
        a(f"s_mul_i32 s{S_B}, s{S_A}, {2*PAIRB}")
        a(f"s_add_u32 s{S_OOFF}, s{S_OOFF}, s{S_B}")
    tstate = {"t": 0}
    def touch_one():
        if not touch: return
        a(f"buffer_load_dword v0, v{V_LIN}, s[{S_QP}:{S_QP+3}], s98 offen{' nt' if tnt else ''}")
        a(f"s_add_u32 s98, s98, s99")
        tstate["t"] += 1
    if xmem or dupst:
        a("s_add_u32 s72, s44, 0x8000000"); a("s_addc_u32 s73, s45, 0"); a("s_mov_b32 s74, 0x18000000"); a("s_mov_b32 s75, 0x20000")
        a("s_lshl_b32 s76, s2, 2"); a(f"s_add_u32 s76, s76, s{S_WAVE}"); a("s_mul_i32 s76, s76, 0x60000")
    dstate = {"i": 0, "kind": None}
    state = {"n": 0}
    def dma_setup(slot, kind):
        if kind == "KV":
            if kvgs != 11:
                ln_ = kvgs - 11
                a(f"s_add_u32 s{S_B}, s{S_DJ}, s100")
                a(f"s_bfe_u32 s{S_A}, s{S_B}, {((5 - ln_) << 16) | ln_:#x}")
                a(f"s_lshl_b32 s{S_A}, s{S_A}, {kvgs + 2}")
                a(f"s_and_b32 s{S_B}, s{S_B}, {(1 << ln_) - 1}")
                a(f"s_lshl_b32 s{S_B}, s{S_B}, 11")
                a(f"s_add_u32 s{S_B}, s{S_A}, s{S_B}")
                a(f"s_lshr_b32 s{S_A}, s{S_DJ}, 5")
                a(f"s_lshl_b32 s{S_A}, s{S_A}, 19")
                if rflip: a(f"s_xor_b32 s{S_A}, s{S_A}, s101")
                a(f"s_add_u32 s{S_DOFF}, s{S_A}, s{S_B}")
            elif kvrot:
                a(f"s_lshr_b32 s{S_A}, s{S_DJ}, 5")
                a(f"s_lshl_b32 s{S_A}, s{S_A}, 19")
                if rflip: a(f"s_xor_b32 s{S_A}, s{S_A}, s101")
                a(f"s_add_u32 s{S_B}, s{S_DJ}, s100")
                a(f"s_and_b32 s{S_B}, s{S_B}, 31")
                a(f"s_lshl_b32 s{S_B}, s{S_B}, 13")
                a(f"s_add_u32 s{S_DOFF}, s{S_A}, s{S_B}")
            else:
                a(f"s_lshr_b32 s{S_A}, s{S_DJ}, 5")
                a(f"s_lshl_b32 s{S_A}, s{S_A}, 18")
                a(f"s_lshl_b32 s{S_B}, s{S_DJ}, 13")
                a(f"s_add_u32 s{S_DOFF}, s{S_A}, s{S_B}")
            if kvl2: a(f"s_and_b32 s{S_DOFF}, s{S_DOFF}, {0x7fff if kvl2 is True else kvl2 - 1}")
            a(f"s_add_u32 m0, s{S_LDB}, {slot*TILE}")
            a(f"s_add_u32 s{S_DJ}, s{S_DJ}, 1")
        else:
            a(f"s_add_u32 m0, s{S_LDB}, {slot*TILE}")
            a(f"s_mov_b32 s{S_DOFF}, s{S_QS}")
            a(f"s_add_u32 s{S_QS}, s{S_QS}, s{S_QSTEP}")
            if rot:
                a("s_add_u32 s82, s82, 1")
                a("s_cmp_eq_u32 s82, 20")
                a(f"s_cselect_b32 s{S_B}, s83, 0")
                a(f"s_sub_u32 s{S_QS}, s{S_QS}, s{S_B}")
        dstate["i"] = 0; dstate["kind"] = kind
    def dma_one(pad=False):
        i = dstate["i"]
        if dstate["kind"] == "KV":
            if pad: a("s_nop 0")
            if not noload:
                a(f"buffer_load_dwordx4 v{V_DMA}, s[{S_LD}:{S_LD+3}], s{S_DOFF} offen offset:{256*i}{NT} lds")
            if i < 7: a(f"s_add_u32 m0, m0, s{96+(i&1)}")
        else:
            a(f"s_add_u32 s{S_A}, s{S_DOFF}, s{S_TAB+i}")
            if not qpnl: a(f"buffer_load_dwordx4 v{V_QD}, s[{S_QP}:{S_QP+3}], s{S_A} offen{' nt' if qnt else ''} lds")
            if i < 7: a(f"s_add_u32 m0, m0, s{S_MSTEP}")
        dstate["i"] = i + 1
    def qs_init(rnd_sgpr, q=3):
        if kvt2:
            a(f"s_lshl_b32 s98, s{S_T}, 19")
            if q == "pre":
                a(f"s_lshl_b32 s{S_A}, s{S_PRE}, {kvgs}"); a(f"s_sub_u32 s98, s98, s{S_A}"); q = 3
            a(f"s_add_u32 s98, s98, {q << kvgs}")
        a(f"s_mul_i32 s{S_QS}, s{rnd_sgpr}, s{S_QRND}")
        if not rflip: a(f"s_mov_b32 s101, s{rnd_sgpr}")
        a(f"s_add_u32 s{S_QS}, s{S_QS}, s55")
        a(f"s_cmp_ge_u32 s{rnd_sgpr}, 2")
        a(f"s_cselect_b32 s{S_A}, 0x40000000, 0")
        a(f"s_add_u32 s{S_QS}, s{S_QS}, s{S_A}")
        if rot:
            a("s_mov_b32 s82, s26")
            a(f"s_mul_i32 s{S_A}, s26, s{S_QSTEP}")
            a(f"s_add_u32 s{S_QS}, s{S_QS}, s{S_A}")

    def touch_init(rnd_sgpr):
        if not touch: return
        a(f"s_mul_i32 s98, s{rnd_sgpr}, s{S_QRND}")
        a(f"s_add_u32 s98, s98, s100")
        a(f"s_cmp_ge_u32 s{rnd_sgpr}, 2")
        a(f"s_cselect_b32 s{S_A}, 0x40000000, 0")
        a(f"s_add_u32 s98, s98, s{S_A}")
        tstate["t"] = 0
    def kread(f, slot):
        if anrd and state.get("inat"): return
        kt, s = f >> 2, f & 3
        a.lds(f"ds_read_b128 {vr(V_KF+4*f,4)}, v{V_KA} offset:{slot*TILE+kt*512+s*64}", "K")
    def vread(l, slot):
        if anrd and state.get("inat"): return
        for v in range(2):
            a.lds(f"ds_read_b64_tr_b16 {vr(V_VF+4*l+2*v,2)}, v{V_VA} offset:{slot*TILE+v*512+l*32}", "V")
    def wread(l, slot):
        for v in range(2):
            a.lds(f"ds_read_b64_tr_b16 {vr(V_VF+4*l+2*v,2)}, v{V_WA} offset:{slot*TILE+v*256+l*32}", "W")
    def bbuf(buf, qt): return (V_KF if buf == 0 else V_CI) + 4 * qt
    def bread(buf, qt, slot):
        a.lds(f"ds_read_b128 {vr(bbuf(buf,qt),4)}, v{V_BA} offset:{slot*TILE+qt*1024}", "B")
    def oreg(l, qt):
        return vr(V_OK + 28 * l + 4 * qt, 4) if l < 4 else ar(A_OS + 28 * (l - 4) + 4 * qt, 4)

    def barrier(dyn=False, vn=16, xt=0):
        vn += xt
        if dyn:
            n = len(a.lines)
            a(f"s_cmp_eq_u32 s{S_AS}, 0")
            a(f"s_cbranch_scc1 L_bw1_{n}")
            a(f"s_sub_u32 s{S_AS}, s{S_AS}, 1")
            a(f"s_waitcnt vmcnt({44 + xt}) lgkmcnt(0)")
            a(f"s_branch L_bw2_{n}")
            a.label(f"L_bw1_{n}")
            a(f"s_waitcnt vmcnt({vn}) lgkmcnt(0)")
            a.label(f"L_bw2_{n}")
        else:
            a(f"s_waitcnt vmcnt({vn}) lgkmcnt(0)")
        a.lds_q = []
        a("s_barrier")

    def cap(fn):
        n0 = len(a.lines); q0 = list(a.lds_q)
        fn()
        ls = a.lines[n0:]; del a.lines[n0:]; a.lds_q = q0
        return ls
    def is_scalar(ln):
        return ln.strip().startswith("s_")
    class Gaps:
        def __init__(self, n):
            self.n = n; self.S = [[] for _ in range(n)]; self.V = [[] for _ in range(n)]; self.c = [0] * n
        def putS(self, ln, lo, hi=None):
            for g in range(lo, self.n):
                if len(self.S[g]) == 0:
                    self.S[g].append(ln); return g
            self.S[self.n - 1].append(ln); return self.n - 1
        def putV(self, ln, lo, cost=1, cap_=2):
            for g in range(lo, self.n):
                if self.c[g] + cost <= cap_:
                    self.V[g].append(ln); self.c[g] += cost; return g
            self.V[self.n - 1].append(ln); self.c[self.n - 1] += cost; return self.n - 1
        def atV(self, ln, g, cost=1):
            self.V[g].append(ln); self.c[g] += cost
        def atS(self, ln, g):
            self.S[g].append(ln)
    DITEMS = [(qt, T) for qt in range(7) for T in range(4)]
    DS = {}
    if defer:
        ntl = (28 - 8 - 4 * dnp) // 4
        assert 4 * dnp + 8 + 4 * ntl == 28
        k_ = 0
        for i in range(4): DS[("P", i)] = DITEMS[k_:k_ + dnp]; k_ += dnp
        for i in (1, 0, 3, 2): DS[("L", i)] = DITEMS[k_:k_ + 2]; k_ += 2
        for i in range(4): DS[("T", i)] = DITEMS[k_:k_ + ntl]; k_ += ntl
    DLIVE = {1: 0, 0: 1, 3: 1, 2: 2}
    def dcount(code):
        if not defer or code is None: return 0
        kind, i = code
        n = lambda c: len(DS.get(c, []))
        if kind == "P": return sum(n(("P", t)) for t in (i - 2, i - 1) if t >= 0)
        prev = lambda k, t: (k, t) if t >= 0 else None
        if kind == "L":
            if i >= 2: return n(("L", i - 2)) + n(("L", i - 1))
            if i == 1: return min(n(("P", 3)), n(("L", 3))) + n(("L", 0))
            return min(n(("P", 2)) + n(("P", 3)), n(("L", 2)) + n(("L", 3)))
        if kind in ("T", "B"):
            m = lambda t: n((kind, t)) if t >= 0 else n(("L", 4 + t))
            return m(i - 2) + m(i - 1)
    def qp_stage2(sm, first, dma, last, chk, after_store, vn, nok, sidx, code=None):
        buf = sm & 1; nslot = (sm + 1) & 3
        BAR = qbar
        G = Gaps(56)
        su = cap(lambda: dma_setup(sm, dma))
        g = BAR - 1
        g = 0
        for ln in su:
            g = G.putS(ln, g) + 1
        prev = g
        for i in range(8):
            ls = cap(lambda: dma_one(False))
            tg = max(qd0 + qdstep * i, prev)
            pre_ = [l for l in ls if is_scalar(l) and "m0" not in l]
            ld = [l for l in ls if not is_scalar(l)]
            post = [l for l in ls if is_scalar(l) and "m0" in l]
            for l in pre_: tg = G.putS(l, tg)
            for l in ld: G.atV(l, tg)
            prev = tg + 1
            for l in post: prev = G.putS(l, tg + 1) + 1
        dstate["i"] = 8
        if code in DS:
            its = DS[code]; lastq = None
            for n_, (qt_, T_) in enumerate(its):
                tg = qd0 + 3 + n_ * 2 * qdstep
                if qt_ != lastq:
                    if code[0] == "L":
                        G.atS(f"    s_cmp_eq_u32 s{S_CNT}, {DLIVE[code[1]]}", tg - 2)
                        G.atS(f"    s_cselect_b32 s99, s98, 0x40000000", tg - 2)
                        G.atS(f"    s_add_u32 s99, s99, {qt_*4096}", tg - 1)
                    else:
                        G.atS(f"    s_add_u32 s99, s98, {qt_*4096}", tg - 1)
                    lastq = qt_
                G.atV(f"    buffer_store_dwordx4 {ar(A_Q+16*qt_+4*T_,4)}, v{V_XA}, s[{S_W}:{S_W+3}], s99 offen offset:{1024*T_} {dpol}".rstrip(), tg)
        if tch(sidx):
            k_ = sidx // tper
            tg = min(prev + 1, 54)
            G.atV(f"    buffer_load_dword v{V_S+12}, v{V_LIN}, s[{S_LD}:{S_LD+3}], s98 offen {tpol}".rstrip(), tg)
            G.putS(f"    s_add_u32 s98, s98, {tinc(k_)}", tg + 1)
        if qnrd: pass
        elif not last:
            lo = BAR - 1
            for ln in cap(lambda: wread(0, nslot)): lo = G.putV(ln, lo, cap_=1)
            for qt in range(7):
                for ln in cap(lambda: bread(buf ^ 1, qt, nslot)): lo = G.putV(ln, lo, cap_=1)
            for l in range(1, 8):
                lo = max(lo, min(7 * (l + 1) - 1, 55))
                for ln in cap(lambda: wread(l, nslot)): lo = G.putV(ln, lo, cap_=(1 if l < 7 else 2))
        elif not nok:
            lo = BAR - 1
            for f in range(8):
                for ln in cap(lambda: kread(f, nslot)): lo = G.putV(ln, lo, cap_=1)
        a("s_waitcnt lgkmcnt(14)")
        j = 0
        for l in range(8):
            for qt in range(7):
                c = "0" if first else oreg(l, qt)
                if qt == 0 and l > 0 and j < BAR: a(f"s_waitcnt lgkmcnt({14-2*l})")
                a(f"{MFMA} {oreg(l, qt)}, {vr(V_VF+4*l,4)}, {vr(bbuf(buf,qt),4)}, {c}")
                for ln in G.S[j]: a.lines.append(ln)
                if j == BAR - 1:
                    if not qnbar: barrier(after_store, 16, tvn(sidx) + dcount(code))
                    if chk: flagcheck()
                for ln in G.V[j]: a.lines.append(ln)
                j += 1
    def qp_stage(sm, first=False, dma="QP", last=False, chk=False, after_store=False, kt_=False, vn=16, nok=False, role=None, ntouch=0, sidx=None, code=None):
        buf = sm & 1; nslot = (sm + 1) & 3
        if qps:
            return qp_stage2(sm, first, dma, last, chk, after_store, vn, nok, sidx, code)
        a("s_waitcnt lgkmcnt(14)")
        fq = []
        def cap(fn):
            n0 = len(a.lines); q0 = len(a.lds_q)
            fn()
            ls = a.lines[n0:]; del a.lines[n0:]; del a.lds_q[q0:]
            return ls
        BAR = 7
        if role != "T":
            for ln in cap(lambda: dma_setup(sm, dma)): fq.append((BAR, ln))
        if dma == "QP" and roll:
            fq.append((BAR, f"    s_lshl2_add_u32 s{S_B}, s{S_QSTEP}, s{S_DOFF}"))
            fq.append((BAR, f"    buffer_load_dword v0, v{V_T0}, s[{S_QP}:{S_QP+3}], s{S_B} offen{' nt' if tnt else ''}"))
        if kvt and kt_:
            fq.append((BAR, f"    buffer_load_dword v0, v{V_T3}, s[{S_LD}:{S_LD+3}], s101 offen{' nt' if kvtnt else ''}"))
            fq.append((BAR, f"    s_add_u32 s101, s101, 8192"))
        if not last:
            for ln in cap(lambda: wread(0, nslot)): fq.append((BAR, ln))
            for qt in range(7):
                for ln in cap(lambda: bread(buf ^ 1, qt, nslot)): fq.append((BAR, ln))
        elif not nok:
            for f in range(8):
                for ln in cap(lambda: kread(f, nslot)): fq.append((BAR, ln))
        for l in range(1, 8):
            if not last:
                for ln in cap(lambda: wread(l, nslot)): fq.append((7 * (l + 1), ln))
            if role == "T":
                if l == 1:
                    for _ in range(ntouch):
                        fq.append((BAR, f"    buffer_load_dword v0, v{V_T0}, s[60:63], s98 offen"))
                        fq.append((BAR, f"    s_add_u32 s98, s98, {32*8192}"))
                        fq.append((BAR, f"    buffer_load_dword v0, v{V_T1}, s[{S_QP}:{S_QP+3}], s99 offen"))
                        fq.append((BAR, f"    s_add_u32 s99, s99, 64"))
                continue
            for ln in cap(lambda: dma_one(True)): fq.append((BAR, ln))
            if role == "X":
                if l == 7:
                    fq.append((BAR, f"    s_add_u32 m0, s{S_LDB}, {AREA+sm*TILE}"))
                    fq.append((BAR, f"    s_add_u32 s{S_DOFF}, s{S_DOFF}, {112*1280}"))
                    for i in range(7):
                        fq.append((BAR, f"    s_add_u32 s{S_A}, s{S_DOFF}, s{S_TAB+i}"))
                        fq.append((BAR, f"    buffer_load_dwordx4 v{V_QD}, s[{S_QP}:{S_QP+3}], s{S_A} offen{' nt' if qnt else ''} lds"))
                        if i < 6: fq.append((BAR, f"    s_add_u32 m0, m0, 1024"))
            elif l == 7:
                for ln in cap(lambda: dma_one(True)): fq.append((BAR, ln))
        j = 0
        for l in range(8):
            for qt in range(7):
                c = "0" if first else oreg(l, qt)
                a(f"{MFMA} {oreg(l, qt)}, {vr(V_VF+4*l,4)}, {vr(bbuf(buf,qt),4)}, {c}")
                j += 1
                if j == BAR:
                    barrier(after_store, vn if (roll or role) else 16)
                    if chk: flagcheck()
                    if trace:
                        a("s_memtime s[78:79]")
                        a("s_waitcnt lgkmcnt(0)")
                        a(f"v_cmp_eq_u32 vcc, s77, v{V_LANE}")
                        a(f"v_mov_b32 v{V_T2}, s78")
                        a("s_nop 1")
                        a(f"v_cndmask_b32 v{V_T3}, v{V_T3}, v{V_T2}, vcc")
                        a("s_add_u32 s77, s77, 1")
                k = 0; idx = 0
                rem_gaps = 56 - j + 1
                quota = 1 if len(fq) <= rem_gaps else 2
                while k < quota and idx < len(fq):
                    if fq[idx][0] <= j and (idx == 0 or "ds_read" in fq[idx][1] or all("ds_read" in x[1] for x in fq[:idx])):
                        a.lines.append(fq[idx][1]); del fq[idx]; k += 1
                    else:
                        idx += 1
        for _, ln in fq: a.lines.append(ln)
        assert role in ("X", "T") or dstate["i"] == 8

    def sm_ops(par, i, first):
        S = V_S + 8 * par; P = V_P + 4 * par; L = V_L + 2 * i
        ops = []
        if first:
            T0, T1 = V_T0, V_T1
            ops += [f"v_max3_f32 v{T0}, v{S}, v{S+1}, v{L}", f"v_max3_f32 v{T1}, v{S+2}, v{S+3}, v{S+4}",
                    f"v_max3_f32 v{T0}, v{S+5}, v{S+6}, v{T0}", f"v_max3_f32 v{T0}, v{S+7}, v{T0}, v{T1}",
                    f"v_mov_b32 v{T1}, v{T0}", "s_nop 1", f"v_permlane16_swap_b32 v{T0}, v{T1}", "s_nop 1", f"v_max_f32 v{T0}, v{T0}, v{T1}",
                    f"v_mov_b32 v{T1}, v{T0}", "s_nop 1", f"v_permlane32_swap_b32 v{T0}, v{T1}", "s_nop 1", f"v_max_f32 v{T0}, v{T0}, v{T1}",
                    f"v_mov_b32 v{L}, 0", f"v_mov_b32 v{L+1}, 0"]
            ops += [f"v_sub_f32 v{S+r}, v{S+r}, v{T0}" for r in range(8)]
            ops += [f"v_sub_f32 v{V_CI+4*i+r}, 0, v{T0}" for r in range(4)]
        e = lambda r: ops.append(f"v_exp_f32 v{S+r}, v{S+r}")
        e(0); e(1)
        for r in range(0, 8, 2):
            if r + 2 < 8: e(r + 2); e(r + 3)
            if not ones:
                ops.append(f"v_add_f32 v{L}, v{L}, v{S+r}")
                ops.append(f"v_add_f32 v{L+1}, v{L+1}, v{S+r+1}")
            ops.append(f"v_cvt_pk_bf16_f32 v{P+r//2}, v{S+r}, v{S+r+1}")
        return ops

    def qk_items(qt, par, czero, kr):
        it = []
        for f in range(8):
            kt, s = f >> 2, f & 3
            D = vr(V_S + 8 * par + 4 * kt, 4)
            c = ("0" if czero else vr(V_CI + 4 * qt, 4)) if s == 0 else D
            it.append(("K" if f == 0 else None, f"{MFMA} {D}, {vr(V_KF+4*f,4)}, {ar(A_Q+16*qt+4*s,4)}, {c}",
                       (lambda f=f: kread(f, kr)) if kr is not None else None))
        return it
    def pv_items(qt, par, czero, vrd):
        it = []
        for l in range(8):
            c = "0" if czero else oreg(l, qt)
            it.append(("V" if l == 0 else None, f"{MFMA} {oreg(l, qt)}, {vr(V_VF+4*l,4)}, {vr(V_P+4*par,4)}, {c}",
                       (lambda l=l: vread(l, vrd)) if vrd is not None else None))
        for _ in range(xmfma):
            D = ar(A_LS + 4 * qt, 4)
            it.append((None, f"{MFMA} {D}, {vr(V_VF,4)}, {vr(V_P+4*par,4)}, {D}", None))
        if ones:
            D = ar(A_LS + 4 * qt, 4)
            it.append((None, f"{MFMA} {D}, {ar(A_ONE,4)}, {vr(V_P+4*par,4)}, {'0' if czero else D}", None))
        return it

    def capture(fn):
        n0 = len(a.lines)
        fn()
        ls = a.lines[n0:]; del a.lines[n0:]
        return ls
    def emit(items, va, fill=None, nfill=0):
        cost = lambda op: 2 if "v_exp" in op else 1
        tot = sum(cost(o) for o in va); acc = 0; k = 0; ng = len(items)
        pos = [int((i + 0.5) * ng / max(nfill, 1)) for i in range(nfill)]
        for j, (need, m, post) in enumerate(items):
            if m:
                if need: a.lds_wait({need})
                a(m)
            if post: post()
            for _ in range(pos.count(j)):
                if fill: a.lines.append(fill.pop(0))
            while k < len(va) and acc + cost(va[k]) <= tot * (j + 1) / ng + 0.01:
                a(va[k]); acc += cost(va[k]); k += 1
        assert k == len(va)

    def dma_lines(slot, kind, pad=False):
        def f():
            dma_setup(slot, kind)
            for _ in range(8): dma_one(pad)
            if xmem and kind == "KV":
                a(f"s_mul_i32 s{S_A}, s{S_WAVE}, 7168")
                a(f"s_add_u32 m0, s{S_A}, {4*AREA+5120}")
                a(f"s_add_u32 s{S_A}, s{S_DOFF}, s76")
                for i in range(xmem):
                    a(f"buffer_load_dwordx4 v{V_DMA}, s[72:75], s{S_A} offen offset:{256*i} nt lds")
        return capture(f)
    def step(jm, first=False, last=False, dma="KV", nt_=0, tr_=False, dyn=False):
        fill = [] if (first or early) else dma_lines((jm + 3) & 3, dma)
        nf = (len(fill) + 3) // 4
        for i in range(7):
            if strace and tr_:
                pr = [36, 38, 40, 42, 56, 58, 60, 62]
                a(f"s_memtime s[{pr[i]}:{pr[i]+1}]")
            if i in (1, 2, 3)[:nt_]: touch_one()
            n = state["n"]; par = n & 1
            items = []
            nfill = nf if 1 <= i <= 4 else 0
            if i == 5:
                assert not fill
                if not (anbar and state.get("inat")): barrier(dyn)
                if first: flagcheck()
                if last or early:
                    fill = dma_lines(jm, dma, True if last else False); nf = (len(fill) + 1) // 2
            if (last or early) and i >= 5: nfill = nf
            if i < 6:
                items += qk_items(i + 1, par ^ 1, first, ((jm + 1) & 3) if (i == 5 and (not last or dma == "KV")) else None)
            elif not last:
                items += qk_items(0, par ^ 1, False, None)
            else:
                if dma == "KV": qreload()
                a("s_nop 1")
            if i > 0:
                items += pv_items(i - 1, par ^ 1, first, None)
            elif not first:
                items += pv_items(6, par ^ 1, False, jm)
            else:
                items += [(None, None, (lambda l=l: vread(l, jm))) for l in range(8)]
            ops_ = sm_ops(par, i, first)
            if state.get("inat") and anva:
                ops_ = [o for o in ops_ if not any(o.startswith(x) for x in anva.split(","))]
            emit(items, ops_, fill, nfill)
            state["n"] = n + 1
        assert not fill

    def qstash_off():
        a(f"s_lshl_b32 s{S_C}, s2, 2")
        a(f"s_add_u32 s{S_C}, s{S_C}, s{S_WAVE}")
        a(f"s_mul_i32 s{S_C}, s{S_C}, 28672")
        a(f"v_lshlrev_b32 v{V_T2}, 4, v{V_LANE}")
    def qreload():
        qstash_off()
        for i in range(7):
            for s_ in range(4):
                a(f"buffer_load_dwordx4 {ar(A_Q+16*i+4*s_,4)}, v{V_T2}, s[{S_W}:{S_W+3}], s{S_C} offen offset:{1024*s_}")
            if i < 6: a(f"s_add_u32 s{S_C}, s{S_C}, 4096")

    def flagcheck():
        lab = f"L_at_nofb_{len(a.lines)}"
        a(f"s_cmp_le_u32 s{S_T}, s{S_T0}")
        a(f"s_cbranch_scc1 {lab}")
        a(f"s_sub_u32 s{S_A}, s{S_T}, 1")
        a(f"s_cmp_eq_u32 s{S_A}, s{S_NOFB}")
        a(f"s_cbranch_scc1 {lab}")
        a(f"s_lshl_b32 s{S_B}, s{S_A}, 2")
        a(f"s_add_u32 s{S_B}, s{S_B}, {LDS_FLAG}")
        a(f"v_mov_b32 v{V_T2}, s{S_B}")
        a(f"ds_read_b32 v{V_T2}, v{V_T2}")
        a("s_waitcnt lgkmcnt(0)")
        a(f"v_readfirstlane_b32 s{S_B}, v{V_T2}")
        a("s_nop 3")
        a(f"s_cmp_lg_u32 s{S_B}, 0")
        a(f"s_cbranch_scc1 L_at_fallback")
        a.label(lab)

    def wo_issue(ps):
        D = V_S
        a(f"s_mov_b32 s{S_A}, 6554")
        for i in range(5):
            a(f"v_add_u32 v{V_T0}, {64*i}, v{V_LANE}")
            a(f"v_mul_u32_u24 v{V_T1}, s{S_A}, v{V_T0}")
            a(f"v_lshrrev_b32 v{V_T1}, 16, v{V_T1}")
            a(f"v_mul_u32_u24 v{V_T2}, 10, v{V_T1}")
            a(f"v_sub_u32 v{V_T2}, v{V_T0}, v{V_T2}")
            a(f"v_mul_u32_u24 v{V_T1}, 1280, v{V_T1}")
            a(f"v_lshl_add_u32 v{D+i}, v{V_T2}, 4, v{V_T1}")
        a(f"s_and_b32 s{S_A}, s2, 127")
        a(f"s_mul_i32 s{S_A}, s{S_A}, {32*1280}")
        a(f"s_mul_i32 s{S_B}, s{S_WAVE}, 320")
        a(f"s_add_u32 s{S_A}, s{S_A}, s{S_B}")
        a(f"s_add_u32 s{S_A}, s{S_A}, {160*ps}")
        a(f"s_mul_i32 s{S_D}, s{S_WAVE}, 7168")
        a(f"s_add_u32 s{S_D}, s{S_D}, {4*AREA}")
        for i in range(5):
            a(f"s_add_u32 m0, s{S_D}, {1024*i}")
            a("s_nop 0")
            a(f"buffer_load_dwordx4 v{D+i}, s[84:87], s{S_A} offen{' nt' if wont else ''} lds")
    def wo_finish(ps):
        a(f"v_lshrrev_b32 v{V_T0}, 4, v{V_LANE}")
        a(f"v_bfe_u32 v{V_T1}, v{V_LANE}, 2, 2")
        a(f"v_lshl_add_u32 v{V_T1}, v{V_T0}, 3, v{V_T1}")
        a(f"v_mul_u32_u24 v{V_T1}, 160, v{V_T1}")
        a(f"v_and_b32 v{V_T2}, 3, v{V_LANE}")
        a(f"v_lshl_add_u32 v{V_T1}, v{V_T2}, 3, v{V_T1}")
        a(f"s_mul_i32 s{S_D}, s{S_WAVE}, 7168")
        a(f"s_add_u32 s{S_D}, s{S_D}, {4*AREA}")
        a(f"v_add_u32 v{V_T1}, s{S_D}, v{V_T1}")
        a(f"v_lshlrev_b32 v{V_T2}, 4, v{V_LANE}")
        a(f"s_mul_i32 s{S_A}, s2, {40*1024}")
        a(f"s_mul_i32 s{S_B}, s{S_WAVE}, {10*1024}")
        a(f"s_add_u32 s{S_A}, s{S_A}, s{S_B}")
        a(f"s_add_u32 s{S_A}, s{S_A}, {WS_W+5120*ps}")
        R = V_VF
        for t in range(5):
            for v in range(2):
                a(f"ds_read_b64_tr_b16 {vr(R+4*t+2*v,2)}, v{V_T1} offset:{v*640+t*32}")
        a("s_waitcnt lgkmcnt(0)")
        for f in range(5):
            if f == 4: a(f"s_add_u32 s{S_A}, s{S_A}, 4096")
            a(f"buffer_store_dwordx4 {vr(R+4*f,4)}, v{V_T2}, s[{S_W}:{S_W+3}], s{S_A} offen offset:{1024*(f&3)} {wpol}".rstrip())
        a("s_nop 1")

    def rt_setup():
        a(f"s_bfe_u32 s{S_A}, s2, 0x20003")
        a(f"s_lshl_b32 s{S_A}, s{S_A}, 3")
        a(f"v_lshrrev_b32 v{V_T0}, 3, v{V_LANE}")
        a(f"v_add_u32 v{V_T0}, s{S_A}, v{V_T0}")
        a(f"v_lshlrev_b32 v{V_T0}, 13, v{V_T0}")
        a(f"v_and_b32 v{V_T2}, 7, v{V_LANE}")
        a(f"v_lshl_add_u32 v{V_T0}, v{V_T2}, 5, v{V_T0}")
        a(f"v_bfe_u32 v{V_T1}, v{V_LANE}, 1, 4")
        a(f"v_min_u32 v{V_T1}, 13, v{V_T1}")
        a(f"s_and_b32 s{S_A}, s2, 7")
        a(f"s_mul_i32 s{S_A}, s{S_A}, 14")
        a(f"v_add_u32 v{V_T1}, s{S_A}, v{V_T1}")
        a(f"v_mul_u32_u24 v{V_T1}, 1280, v{V_T1}")
        a(f"v_and_b32 v{V_T2}, 1, v{V_LANE}")
        a(f"v_lshl_add_u32 v{V_T1}, v{V_T2}, 5, v{V_T1}")
        a(f"s_cmp_eq_u32 s{S_QH}, 0")
        a("s_cselect_b64 vcc, -1, 0")
        a("s_nop 1")
        a(f"v_cndmask_b32 v{V_T0}, v{V_T1}, v{V_T0}, vcc")
    def dly(us, tag):
        a("s_memrealtime s[78:79]")
        a("s_waitcnt lgkmcnt(0)")
        a(f"s_add_u32 s77, s78, {us*100}")
        a.label(f"L_dl{tag}")
        a("s_sleep 4")
        a("s_memrealtime s[78:79]")
        a("s_waitcnt lgkmcnt(0)")
        a("s_sub_u32 s79, s78, s77")
        a("s_cmp_lt_i32 s79, 0")
        a(f"s_cbranch_scc1 L_dl{tag}")
    def st(k):
        if pst:
            a("s_memrealtime s[78:79]")
            a("s_memtime s[80:81]")
            a("s_waitcnt lgkmcnt(0)")
            a("s_mov_b32 m0, s77"); a("s_nop 0"); a("v_writelane_b32 v0, s78, m0")
            a("s_add_u32 m0, s77, 30"); a("s_nop 0"); a("v_writelane_b32 v0, s80, m0")
            a("s_add_u32 s77, s77, 1")
        if stamp:
            if st0:
                n = len(a.lines)
                a(f"s_cmp_ge_u32 s{S_T}, {1 if k < 3 else 2}")
                a(f"s_cbranch_scc1 L_st_{n}")
            a(f"s_memtime s[{72+2*k}:{73+2*k}]")
            if st0: a.label(f"L_st_{n}")
    if pst:
        a("s_memrealtime s[78:79]")
        a("s_memtime s[80:81]")
        a("s_waitcnt lgkmcnt(0)")
        a("v_mov_b32 v0, 0")
        a("v_writelane_b32 v0, s78, 0")
        a("v_writelane_b32 v0, s80, 30")
        a("s_mov_b32 s77, 1")
    if delay:
        a("s_bitcmp1_b32 s2, 0")
        a("s_cbranch_scc0 L_nodelay")
        a("s_memrealtime s[78:79]")
        a("s_waitcnt lgkmcnt(0)")
        a(f"s_add_u32 s77, s78, {delay*100}")
        a.label("L_dl")
        a("s_sleep 8")
        a("s_memrealtime s[78:79]")
        a("s_waitcnt lgkmcnt(0)")
        a("s_sub_u32 s79, s78, s77")
        a("s_cmp_lt_i32 s79, 0")
        a("s_cbranch_scc1 L_dl")
        a.label("L_nodelay")
    a.label("L_at_start")
    if trace:
        a("s_mov_b32 s77, 1")
        a(f"v_mov_b32 v{V_T3}, s64")
        a("s_memtime s[78:79]")
        a("s_waitcnt lgkmcnt(0)")
        a(f"v_cmp_eq_u32 vcc, s77, v{V_LANE}")
        a(f"v_mov_b32 v{V_T2}, s78")
        a("s_nop 1")
        a(f"v_cndmask_b32 v{V_T3}, v{V_T3}, v{V_T2}, vcc")
        a("s_add_u32 s77, s77, 1")
    a(f"s_mov_b32 s{S_T}, s{S_T0}")
    a(f"s_lshl_b32 s{S_DJ}, s{S_T0}, 5")
    a(f"s_add_u32 s{S_D}, s{S_T}, s{S_PRE}")
    qs_init(S_D, "pre")
    if roll:
        rt_setup()
        for sl in range(2):
            dma_setup(sl, "QP")
            for _ in range(8): dma_one(True)
        a(f"s_mov_b32 s{S_B}, s{S_QS}")
        for _ in range(6):
            a(f"buffer_load_dword v0, v{V_T0}, s[{S_QP}:{S_QP+3}], s{S_B} offen{' nt' if tnt else ''}")
            a(f"s_add_u32 s{S_B}, s{S_B}, s{S_QSTEP}")
        for sl in range(2, 4):
            dma_setup(sl, "QP")
            for _ in range(8): dma_one(True)
        a(f"s_waitcnt vmcnt(30) lgkmcnt(0)")
    else:
        for sl in range(4):
            dma_setup(sl, "QP")
            for _ in range(8): dma_one(True)
        if tlbw:
            a(f"v_lshlrev_b32 v{V_S+13}, 12, v{V_LANE}")
            a(f"buffer_load_dword v{V_S+12}, v{V_S+13}, s[{S_LD}:{S_LD+3}], 0 offen nt")
            if tlbw > 1:
                a(f"s_mov_b32 s{S_A}, 0x80000")
                a(f"buffer_load_dword v{V_S+12}, v{V_S+13}, s[{S_LD}:{S_LD+3}], s{S_A} offen nt")
        if bulk0 and touch:
            touch_init(S_D)
            for _ in range(5): touch_one()
        if cpf and cpflate:
            for k in range(cpf // 16):
                a(f"s_mov_b32 s76, {k*16384}")
                a("buffer_load_dword v104, v105, s[72:75], s76 offen")
        a(f"s_waitcnt vmcnt({(29 if (bulk0 and touch) else 24) + (cpf // 16 if cpflate else 0)}) lgkmcnt(0)")
    a("s_barrier")
    a.label("L_at_round")
    st(0)
    if roll: rt_setup()
    for l in range(8): wread(l, 0)
    for qt in range(7): bread(0, qt, 0)
    a.lds_wait_all()
    def qp_body(role):
        sfx = role or ""
        vns = {None: (22, 17, 18, 18, 18), "W": (16, 16, 16, 16, 16), "X": (16, 22, 28, 28, 28), "T": (16, 20, 20, 63, 63)}[role]
        nts = (6, 4, 4, 2)
        qp_stage(0, first=True, chk=True, after_store=True, vn=vns[0], role=role, ntouch=nts[0], sidx=0, code=("P", 0))
        qp_stage(1, after_store=True, vn=vns[1], role=role, ntouch=nts[1], sidx=1, code=("P", 1))
        qp_stage(2, after_store=True, vn=vns[2], role=role, ntouch=nts[2], sidx=2, code=("P", 2))
        qp_stage(3, vn=vns[3], role=role, ntouch=nts[3], sidx=3, code=("P", 3))
        a(f"s_cmp_lg_u32 s{S_WO}, 0")
        a(f"s_cbranch_scc1 L_at_nowo0{sfx}")
        a(f"s_mov_b32 s{S_WO}, 1")
        wo_issue(0)
        if roll: rt_setup()
        a.label(f"L_at_nowo0{sfx}")
        a(f"s_mov_b32 s{S_CNT}, 0")
        a.label(f"L_at_qploop{sfx}")
        a.lds_q = []
        for sm in range(4): qp_stage(sm, vn=vns[4], role=role, sidx=4+sm, code=("L", sm))
        a(f"s_add_u32 s{S_CNT}, s{S_CNT}, 1")
        a(f"s_cmp_lt_u32 s{S_CNT}, 3")
        a(f"s_cbranch_scc1 L_at_qploop{sfx}")
    if not roles:
        qp_body(None)
    else:
        a(f"s_cmp_eq_u32 s{S_WAVE}, 1")
        a("s_cbranch_scc1 L_at_qpX")
        a(f"s_cmp_eq_u32 s{S_WAVE}, 3")
        a("s_cbranch_scc1 L_at_qpT")
        qp_body("W")
        a("s_branch L_at_qpjoin")
        a.label("L_at_qpX")
        qp_body("X")
        a("s_branch L_at_qpjoin")
        a.label("L_at_qpT")
        a(f"s_bfe_u32 s{S_A}, s2, 0x20003")
        a(f"s_lshl_b32 s{S_A}, s{S_A}, 3")
        a(f"v_lshrrev_b32 v{V_T0}, 3, v{V_LANE}")
        a(f"v_add_u32 v{V_T0}, s{S_A}, v{V_T0}")
        a(f"v_lshlrev_b32 v{V_T0}, 13, v{V_T0}")
        a(f"v_and_b32 v{V_T1}, 7, v{V_LANE}")
        a(f"v_lshl_add_u32 v{V_T0}, v{V_T1}, 6, v{V_T0}")
        a(f"v_min_u32 v{V_T1}, 27, v{V_LANE}")
        a(f"s_and_b32 s{S_A}, s2, 7")
        a(f"s_mul_i32 s{S_B}, s{S_A}, 28")
        a(f"v_add_u32 v{V_T1}, s{S_B}, v{V_T1}")
        a(f"v_mul_u32_u24 v{V_T1}, 1280, v{V_T1}")
        a(f"s_lshl_b32 s{S_A}, s{S_A}, 10")
        a(f"s_lshl_b32 s{S_B}, s101, 9")
        a(f"s_add_u32 s98, s{S_A}, s{S_B}")
        a(f"s_add_u32 s98, s98, {4*32*8192}")
        a(f"s_bfe_u32 s{S_A}, s2, 0x40003")
        a(f"s_mul_i32 s99, s{S_A}, {224*1280}")
        a(f"s_add_u32 s99, s99, {4*64}")
        qp_body("T")
        a.label("L_at_qpjoin")
    a(f"s_cmp_lg_u32 s{S_PRE}, 0")
    a("s_cbranch_scc1 L_at_qptailB")
    for sm in range(4): qp_stage(sm, dma="KV", last=(sm == 3), vn=(18, 17, 16, 16)[sm], sidx=16+sm, code=("T", sm))
    a("s_branch L_at_qpepi")
    a.label("L_at_qptailB")
    qs_init(S_T)
    a.lds_q = []
    for sm in range(4): qp_stage(sm, dma="QP", last=(sm == 3), vn=18, nok=True, sidx=16+sm, code=("B", sm))
    a.label("L_at_qpepi")
    if qdelay: dly(qdelay, "q")
    st(1)
    if trace:
        a("s_cmp_lg_u32 s2, 5")
        a("s_cbranch_scc1 L_tr_skip")
        a(f"s_cmp_lg_u32 s{S_T}, 0")
        a("s_cbranch_scc1 L_tr_skip")
        a(f"s_cmp_lg_u32 s{S_WAVE}, 0")
        a("s_cbranch_scc1 L_tr_skip")
        a("s_mov_b32 s80, s46"); a("s_mov_b32 s81, s47"); a("s_mov_b32 s82, 256"); a("s_mov_b32 s83, 0x20000")
        a(f"v_lshlrev_b32 v{V_T2}, 2, v{V_LANE}")
        a(f"v_add_u32 v{V_T2}, 128, v{V_T2}")
        a(f"buffer_store_dword v{V_T3}, v{V_T2}, s[80:83], 0 offen")
        a.label("L_tr_skip")
    if defer: a("s_mov_b32 s98, 0x40000000")
    a(f"v_mov_b32 v{V_T2}, s{S_CS}")
    a(f"v_mov_b32 v{V_T3}, s{S_CS}")
    a("s_nop 6")
    TMP = V_S
    for T in range(4):
        if T < 2:
            base = lambda e, qt: V_OK + 28 * (2 * T + e) + 4 * qt
        else:
            base = lambda e, qt: V_OK + 28 * (2 * (T - 2) + e) + 4 * qt
            for e in range(2):
                for qt in range(7):
                    for r in range(4):
                        a(f"v_accvgpr_read_b32 v{base(e,qt)+r}, a{A_OS+28*(2*(T-2)+e)+4*qt+r}")
        for e in range(2):
            for qt in range(7):
                o = base(e, qt)
                for h in range(2):
                    a(f"v_pk_mul_f32 {vr(o+2*h,2)}, {vr(o+2*h,2)}, {vr(V_T2,2)}")
        pk = lambda qt: TMP + 28 * (T & 1) + 4 * qt
        for qt in range(7):
            oe = base(0, qt); oo = base(1, qt); p = pk(qt)
            a(f"v_cvt_pk_bf16_f32 v{p}, v{oe}, v{oe+1}")
            a(f"v_cvt_pk_bf16_f32 v{p+1}, v{oe+2}, v{oe+3}")
            a(f"v_cvt_pk_bf16_f32 v{p+2}, v{oo}, v{oo+1}")
            a(f"v_cvt_pk_bf16_f32 v{p+3}, v{oo+2}, v{oo+3}")
        a("s_nop 1")
        for qt in range(7):
            p = pk(qt)
            a(f"v_permlane16_swap_b32 v{p}, v{p+2}")
            a(f"v_permlane16_swap_b32 v{p+1}, v{p+3}")
        for qt in range(7):
            for r in range(4):
                a(f"v_accvgpr_write_b32 a{A_Q+16*qt+4*T+r}, v{pk(qt)+r}")
    a(f"s_cmp_eq_u32 s{S_PRE}, 0")
    a("s_cbranch_scc1 L_at_nostash")
    a(f"s_mov_b32 s{S_PRE}, 0")
    qstash_off()
    for i in range(7):
        for s_ in range(4):
            a(f"buffer_store_dwordx4 {ar(A_Q+16*i+4*s_,4)}, v{V_T2}, s[{S_W}:{S_W+3}], s{S_C} offen offset:{1024*s_} {qpol}".rstrip())
        if i < 6: a(f"s_add_u32 s{S_C}, s{S_C}, 4096")
    a(f"s_mov_b32 s{S_AS}, 3")
    a("s_branch L_at_round")
    a.label("L_at_nostash")
    a(f"s_cmp_lg_u32 s{S_MP}, 0")
    a("s_cbranch_scc1 L_at_maxpass")
    a.label("L_at_pre")
    a(f"s_cmp_lg_u32 s{S_WO}, 1")
    a("s_cbranch_scc1 L_at_nowo1")
    a(f"s_mov_b32 s{S_WO}, 2")
    wo_finish(0)
    wo_issue(1)
    a.label("L_at_nowo1")
    st(2)
    a.lds_q = ["K"]
    state["n"] = 0
    z = []
    for l in range(8):
        for r in range(4):
            z.append(f"v_mov_b32 v{V_OK+28*l+24+r}, 0" if l < 4 else f"v_accvgpr_write_b32 a{A_OS+28*(l-4)+24+r}, 0")
    if ones: z += [f"v_accvgpr_write_b32 a{A_LS+24+r}, 0" for r in range(4)]
    emit(qk_items(0, 0, True, None), z[:16])
    for o in z[16:]: a(o)
    step(0, first=True, dyn=True)
    a(f"s_mov_b32 s{S_CNT}, 0")
    if align:
        a.lines.append(".p2align 6")
        if align == 2: a("s_nop 0")
    a.label("L_at_loop")
    q0 = list(a.lds_q)
    state["inat"] = True
    for jm in (1, 2, 3, 0): step(jm, dyn=(jm in (1, 2)))
    state["inat"] = False
    assert q0 == a.lds_q, (q0, a.lds_q)
    if pstl:
        a("s_memrealtime s[78:79]")
        a("s_memtime s[80:81]")
        a("s_waitcnt lgkmcnt(0)")
        a("s_mov_b32 s76, m0")
        a("s_mov_b32 m0, s77"); a("s_nop 0"); a("v_writelane_b32 v0, s78, m0")
        a("s_add_u32 m0, s77, 30"); a("s_nop 0"); a("v_writelane_b32 v0, s80, m0")
        a("s_add_u32 s77, s77, 1")
        a("s_mov_b32 m0, s76")
    a(f"s_add_u32 s{S_CNT}, s{S_CNT}, 1")
    a(f"s_cmp_lt_u32 s{S_CNT}, 6")
    a("s_cbranch_scc1 L_at_loop")
    a(f"s_add_u32 s{S_T}, s{S_T}, 1")
    touch_init(S_T)
    step(1, nt_=3); step(2, nt_=2); step(3, tr_=True)
    if strace: a("s_memtime s[62:63]")
    qs_init(S_T)
    if not early: step(0)
    a(f"s_cmp_lg_u32 s{S_TY}, 0")
    a("s_cbranch_scc1 L_at_atailB")
    n0 = state["n"]; q0 = list(a.lds_q)
    if early: step(0, dma="QP")
    step(1, dma="QP"); step(2, dma="QP"); step(3, dma="QP", last=True)
    a("s_branch L_at_aepi")
    a.label("L_at_atailB")
    state["n"] = n0; a.lds_q = q0
    if early: step(0)
    step(1); step(2); step(3, last=True)
    a.label("L_at_aepi")
    if adelay: dly(adelay, "a")
    a.lds_q = ["V"]
    st(3)
    E = V_S
    red = [f"v_add_f32 v{V_L+2*i}, v{V_L+2*i}, v{V_L+2*i+1}" for i in range(7)]
    red += [f"v_mov_b32 v{E+i}, v{V_L+2*i}" for i in range(7)]
    red += [f"v_permlane16_swap_b32 v{V_L+2*i}, v{E+i}" for i in range(7)]
    red += [f"v_add_f32 v{V_L+2*i}, v{V_L+2*i}, v{E+i}" for i in range(7)]
    red += [f"v_mov_b32 v{E+i}, v{V_L+2*i}" for i in range(7)]
    red += [f"v_permlane32_swap_b32 v{V_L+2*i}, v{E+i}" for i in range(7)]
    red += [f"v_add_f32 v{V_L+2*i}, v{V_L+2*i}, v{E+i}" for i in range(7)]
    a("s_nop 1")
    if ones:
        emit(pv_items(6, 1, False, None), [])
        a("s_nop 7")
        for i in range(7): a(f"v_accvgpr_read_b32 v{V_L+2*i}, a{A_LS+4*i}")
    else:
        emit(pv_items(6, 1, False, None), red)
    for i in range(7): a(f"v_rcp_f32 v{V_CI+4*i}, v{V_L+2*i}")
    a(f"v_add_f32 v{E+2}, v{V_L}, v{V_L+2}")
    a(f"v_add_f32 v{E+3}, v{V_L+4}, v{V_L+6}")
    a(f"v_add_f32 v{E+4}, v{V_L+8}, v{V_L+10}")
    a(f"v_add_f32 v{E+2}, v{E+2}, v{V_L+12}")
    a(f"v_add_f32 v{E+3}, v{E+3}, v{E+4}")
    a(f"v_add_f32 v{E+2}, v{E+2}, v{E+3}")
    a(f"v_cmp_nge_f32 vcc, s{S_THR}, v{E+2}")
    for i in range(7): a(f"v_mov_b32 v{V_L+2*i}, 0xff800000")
    a("s_cmp_eq_u64 vcc, 0")
    a("s_cbranch_scc1 L_at_noflag")
    if nofb: a("s_branch L_at_noflag")
    a(f"s_lshl_b32 s{S_B}, s{S_T}, 2")
    a(f"s_add_u32 s{S_B}, s{S_B}, {LDS_FLAG-4}")
    a(f"v_mov_b32 v{E+2}, s{S_B}")
    a(f"v_mov_b32 v{E+3}, 1")
    a(f"ds_write_b32 v{E+2}, v{E+3}")
    a.label("L_at_noflag")
    if rflip:
        a(f"s_sub_u32 s{S_D}, s{S_T}, 1")
        a(f"s_mul_i32 s{S_D}, s{S_D}, s99")
        a(f"s_add_u32 s{S_D}, s{S_D}, s{S_OOFF}")
    else:
        a(f"s_mul_i32 s{S_D}, s{S_T}, {2*PAIRB}")
        a(f"s_add_u32 s{S_D}, s{S_D}, s{S_OOFF}")
        a(f"s_sub_u32 s{S_D}, s{S_D}, {2*PAIRB}")
    if defer:
        a(f"s_cmp_lt_u32 s{S_T}, 2")
        a(f"s_cselect_b32 s99, 1, 0")
        a(f"s_cmp_eq_u32 s{S_TY}, 0")
        a(f"s_cselect_b32 s99, s99, 0")
        a(f"s_cmp_lg_u32 s99, 0")
        a(f"s_cselect_b32 s98, s{S_D}, s98")
    for T in range(4):
        if T < 2:
            base = lambda e, qt: V_OK + 28 * (2 * T + e) + 4 * qt
        else:
            base = lambda e, qt: V_OK + 28 * (2 * (T - 2) + e) + 4 * qt
            for e in range(2):
                for qt in range(7):
                    for r in range(4):
                        a(f"v_accvgpr_read_b32 v{base(e,qt)+r}, a{A_OS+28*(2*(T-2)+e)+4*qt+r}")
        for e in range(2):
            for qt in range(7):
                o = base(e, qt)
                for h in range(2):
                    a(f"v_pk_mul_f32 {vr(o+2*h,2)}, {vr(o+2*h,2)}, {vr(V_CI+4*qt,2)} op_sel_hi:[1,0]")
        pk = lambda qt: V_S + 28 * (T & 1) + 4 * qt
        for qt in range(7):
            oe = base(0, qt); oo = base(1, qt); p = pk(qt)
            a(f"v_cvt_pk_bf16_f32 v{p}, v{oe}, v{oe+1}")
            a(f"v_cvt_pk_bf16_f32 v{p+1}, v{oe+2}, v{oe+3}")
            a(f"v_cvt_pk_bf16_f32 v{p+2}, v{oo}, v{oo+1}")
            a(f"v_cvt_pk_bf16_f32 v{p+3}, v{oo+2}, v{oo+3}")
        a("s_nop 1")
        for qt in range(7):
            p = pk(qt)
            a(f"v_permlane16_swap_b32 v{p}, v{p+2}")
            a(f"v_permlane16_swap_b32 v{p+1}, v{p+3}")
        if defer:
            a(f"s_cmp_lg_u32 s99, 0")
            a(f"s_cbranch_scc1 L_at_dfr{T}")
        a(f"s_mov_b32 s{S_A}, s{S_D}")
        for qt in range(7):
            if not nost: a(f"buffer_store_dwordx4 {vr(pk(qt),4)}, v{V_XA}, s[{S_W}:{S_W+3}], s{S_A} offen offset:{1024*T} {stpol}".rstrip())
            if dupst:
                a(f"s_sub_u32 s{S_B}, s{S_A}, {WS_O - 30000000}")
                a(f"buffer_store_dwordx4 {vr(pk(qt),4)}, v{V_XA}, s[72:75], s{S_B} offen offset:{1024*T}")
            if qt < 6: a(f"s_add_u32 s{S_A}, s{S_A}, 4096")
        if defer:
            a(f"s_branch L_at_dfj{T}")
            a.label(f"L_at_dfr{T}")
            for qt in range(7):
                for r in range(4):
                    a(f"v_accvgpr_write_b32 a{A_Q+16*qt+4*T+r}, v{pk(qt)+r}")
            a.label(f"L_at_dfj{T}")
    a("s_nop 1")
    a(f"s_cmp_lg_u32 s{S_WO}, 2")
    a("s_cbranch_scc1 L_at_nowo2")
    a(f"s_mov_b32 s{S_WO}, 3")
    wo_finish(1)
    a.label("L_at_nowo2")
    a(f"s_mov_b32 s{S_AS}, 3")
    if defer:
        a("s_cmp_lg_u32 s99, 0")
        a(f"s_cselect_b32 s{S_AS}, 0, 3")
    st(4)
    a.lds_q = []
    a(f"s_cmp_ge_u32 s{S_T}, 2")
    a("s_cbranch_scc1 L_at_fin")
    a(f"s_cmp_eq_u32 s{S_TY}, 0")
    a("s_cbranch_scc1 L_at_round")
    a(f"s_waitcnt vmcnt({56 if dupst else 28})")
    a("s_branch L_at_pre")
    a.label("L_at_fin")
    a("s_waitcnt lgkmcnt(0)")
    a("s_barrier")
    flagcheck()
    if pst:
        a("s_memrealtime s[78:79]")
        a("s_memtime s[80:81]")
        a("s_waitcnt lgkmcnt(0)")
        a("s_mov_b32 m0, s77"); a("s_nop 0"); a("v_writelane_b32 v0, s78, m0")
        a("s_add_u32 m0, s77, 30"); a("s_nop 0"); a("v_writelane_b32 v0, s80, m0")
        a("s_getreg_b32 s62, hwreg(HW_REG_XCC_ID)")
        a("v_writelane_b32 v0, s62, 63")
        a(f"v_writelane_b32 v0, s{S_TY}, 62")
        a(f"s_cmp_lg_u32 s{S_WAVE}, 0")
        a("s_cbranch_scc1 L_at_end")
        a("s_lshl_b32 s62, s2, 8"); a("s_add_u32 s62, s62, 50000000")
        a(f"v_lshlrev_b32 v2, 2, v{V_LANE}")
        a(f"buffer_store_dword v0, v2, s[{S_W}:{S_W+3}], s62 offen")
    if stamp:
        a("s_memtime s[56:57]")
        a("s_memrealtime s[58:59]")
        a("s_waitcnt lgkmcnt(0)")
        if allst:
            a("v_mov_b32 v2, s66"); a("v_mov_b32 v3, s58")
            a("s_sub_u32 s62, s56, s64"); a("v_mov_b32 v4, s62")
            a("s_getreg_b32 s62, hwreg(HW_REG_XCC_ID)"); a("v_mov_b32 v5, s62")
            a("s_lshl_b32 s62, s2, 4"); a("s_add_u32 s62, s62, 50000000"); a("v_mov_b32 v6, s62")
            a(f"buffer_store_dwordx4 v[2:5], v6, s[{S_W}:{S_W+3}], 0 offen")
        a(f"s_cmp_lg_u32 s2, {stwg}")
        a("s_cbranch_scc1 L_at_end")
        a("s_sub_u32 s56, s56, s64")
        a("s_sub_u32 s58, s58, s66")
        a("s_mov_b32 s84, s46")
        a("s_mov_b32 s85, s47")
        a("s_mov_b32 s86, 256")
        a("s_mov_b32 s87, 0x20000")
        a("v_mov_b32 v2, s56")
        a("v_mov_b32 v3, s58")
        a(f"s_lshl_b32 s62, s{S_WAVE}, 3")
        a("v_mov_b32 v4, s62")
        a("buffer_store_dwordx2 v[2:3], v4, s[84:87], 0 offen")
        if strace:
            pr = [36, 38, 40, 42, 56, 58, 60, 62]
            for i in range(7):
                a(f"s_sub_u32 s78, s{pr[i+1]}, s{pr[i]}")
                a("v_mov_b32 v2, s78")
                a(f"v_mov_b32 v4, {160+4*i}")
                a("buffer_store_dword v2, v4, s[84:87], 0 offen")
        a("s_sub_u32 s62, s72, s64")
        a("v_mov_b32 v2, s62")
        a(f"v_mov_b32 v4, {DBO+4*5}")
        a("buffer_store_dword v2, v4, s[84:87], 0 offen")
        for k in range(1, 5):
            a(f"s_sub_u32 s62, s{72+2*k}, s{70+2*k}")
            a("v_mov_b32 v2, s62")
            a(f"v_mov_b32 v4, {DBO+4*k}")
            a("buffer_store_dword v2, v4, s[84:87], 0 offen")
    a("s_branch L_at_end")

    a.label("L_at_fallback")
    a(f"s_sub_u32 s{S_T0}, s{S_T}, 1")
    a(f"s_mov_b32 s{S_NOFB}, s{S_T0}")
    a(f"s_mov_b32 s{S_MP}, 1")
    a(f"s_mov_b32 s{S_TY}, 0")
    a(f"s_mov_b32 s{S_PRE}, 0")
    a(f"s_mov_b32 s{S_AS}, 0")
    if defer: a("s_mov_b32 s98, 0x40000000")
    for i in range(7): a(f"v_mov_b32 v{V_L+2*i}, 0xff800000")
    a("s_waitcnt vmcnt(0) lgkmcnt(0)")
    a("s_barrier")
    a("s_branch L_at_start")
    a.label("L_at_maxpass")
    a(f"s_mov_b32 s{S_MP}, 0")
    a("s_waitcnt lgkmcnt(0)")
    a(f"v_and_b32 v{V_T0}, 15, v{V_LANE}")
    a(f"v_lshlrev_b32 v{V_T0}, 8, v{V_T0}")
    a(f"v_bfe_u32 v{V_T1}, v{V_LANE}, 4, 1")
    a(f"v_lshl_add_u32 v{V_T0}, v{V_T1}, 5, v{V_T0}")
    a(f"v_bfe_u32 v{V_T1}, v{V_LANE}, 5, 1")
    a(f"v_lshl_add_u32 v{V_T2}, v{V_T1}, 4, v{V_T0}")
    a(f"v_add_u32 v{V_T3}, 4096, v{V_T2}")
    a(f"s_lshl_b32 s{S_B}, s{S_T}, 19")
    if rflip: a(f"s_xor_b32 s{S_B}, s{S_B}, s101")
    a(f"s_mov_b32 s{S_CNT}, 0")
    a.label("L_at_mp")
    for f in range(8):
        a(f"buffer_load_dwordx4 {vr(V_VF+4*f,4)}, v{V_T2 + (f>>2)}, s[{S_K}:{S_K+3}], s{S_B} offen offset:{64*(f&3)}")
    a("s_waitcnt vmcnt(0)")
    for i in range(7):
        for f in range(8):
            kt, s = f >> 2, f & 3
            D = vr(V_S + 4 * kt, 4)
            a(f"{MFMA} {D}, {vr(V_VF+4*f,4)}, {ar(A_Q+16*i+4*s,4)}, {'0' if s == 0 else D}")
        a("s_nop 9")
        for r in range(0, 8, 2):
            a(f"v_max3_f32 v{V_L+2*i}, v{V_S+r}, v{V_S+r+1}, v{V_L+2*i}")
        a("s_nop 3")
    a(f"s_add_u32 s{S_B}, s{S_B}, 8192")
    a(f"s_add_u32 s{S_CNT}, s{S_CNT}, 1")
    a(f"s_cmp_lt_u32 s{S_CNT}, 32")
    a("s_cbranch_scc1 L_at_mp")
    a("s_branch L_at_pre")
    a.label("L_at_end")
    a("s_endpgm")
    return a.text()

if __name__ == "__main__":
    import sys
    name = "fused_kernel"
    opts = dict(x.split("=") for x in sys.argv[2:])
    opts = {k: bool(int(v)) for k, v in opts.items()}
    body = gen_fused(name, **opts)
    out = f"; @launch kernel={name} grid=(256,1,1) block=(256,1,1) lds={LDS_BYTES}\n"
    out += '.amdgcn_target "amdgcn-amd-amdhsa--gfx950"\n.text\n' + kernel_header(name) + body
    out += '.section .rodata,"a"\n.p2align 6\n' + kernel_desc(name, 512, accum=256)
    open(sys.argv[1], "w").write(out)
```

```python
from gen_common import *
import math

NQB = 3584 * 4096 * 2
WS_O = 2 * NQB
WS_W = 4 * NQB
WS_BYTES = 4 * NQB + 2 * 4096 * 640 * 2
PAIRB = 224 * 128 * 2

TILE = 8448
RING = 4
AREA = RING * TILE
LDS_BYTES = 163840
LDS_FLAG = 2 * AREA + 1024
LDS_FLAG = 2 * AREA + 8416

def kpad(i): return 1024 * i + 16 * ((i & 1) + 4 * (i >> 1))

V_LANE, V_T0, V_T1, V_T2, V_T3, V_LIN, V_DMA = 1, 2, 3, 4, 5, 6, 7
V_KA, V_VA, V_XA, V_WA = 8, 9, 10, 11
V_L = 12
V_QD, V_BA = 26, 27
V_CI = 28
V_KF = 56
V_S = 88
V_P = 104
V_VF = 112
V_OK = 144
A_Q = 0
A_OS = 112
A_LS = 224
A_ONE = 252
S_LD, S_K, S_W, S_QP = 4, 8, 12, 16
S_WAVE, S_T, S_CNT, S_NOFB, S_OOFF, S_MP, S_T0 = 20, 21, 22, 23, 24, 25, 27
S_A, S_B, S_C, S_D = 28, 29, 30, 31
S_THR, S_LDB, S_DJ, S_PJ, S_QH, S_DOFF = 32, 33, 34, 35, 48, 49
S_QS, S_QSTEP, S_QRND, S_MSTEP, S_CS = 50, 51, 52, 53, 54
S_TAB = 88
S_AS, S_TY, S_PRE, S_WO = 68, 69, 70, 71
MFMA = "v_mfma_f32_16x16x32_bf16"
def ar(a, n=1):
    return f"a{a}" if n == 1 else f"a[{a}:{a+n-1}]"

def gen_fused(name, nt=True, stamp=False, nofb=False, noload=False, nost=False, nox=False, now=False, st0=False, touch=False, kvt=False, kvtnt=False, nowo=False, tnt=False, qnt=False, wont=False, trace=False, DBO=64, ones=False, strace=False, xmem=0, xmfma=0, delay=0, tymask=1, stwg=4, roll=False, bulk0=True, wsbase=0, rot=True, rsh=1, dupst=False, allst=False, align=0, roles=False, fakex=False, early=False, qdelay=0, adelay=0, kvpol=None, xf=False, pst=False, kvl2=False, xq=False, pstl=False, kv0=False, qpnl=False, cpf=0, cpflate=False, qps=False, tymode=0, tyinv=False, xswap=False, qnrd=False, qnbar=False, qbar=7, qd0=9, qdstep=6, kvrot=0, kvgs=11, kvt2=0, kvts=64, tper=1, tpol='', tlbw=0, rflip=0, stpol='', defer=False, dpol='', dnp=3, wpol='', qpol='', anbar=False, anrd=False, anva='', ansu=False, cpf2=0, cpfo=0):
    a = Asm()
    NT = " nt" if nt else ""
    if kvpol: NT = " " + kvpol
    a("s_cmp_ge_u32 s2, 256")
    a("s_cbranch_scc1 L_at_end")
    if cpf:
        a("s_getpc_b64 s[72:73]")
        a.label("L_pc0")
        a(f"s_mov_b32 s74, L_code_end - L_pc0")
        a("s_mov_b32 s75, 0x20000")
        a("v_lshlrev_b32 v105, 6, v0")
        if not cpflate:
          for k in range(cpf // 16):
            a(f"s_mov_b32 s76, {k*16384}")
            a("buffer_load_dword v104, v105, s[72:75], s76 offen")
    a("s_and_b32 s3, s2, 7")
    a("s_lshl_b32 s3, s3, 5")
    a("s_lshr_b32 s36, s2, 6")
    a("s_lshl_b32 s36, s36, 3")
    a("s_or_b32 s3, s3, s36")
    a("s_bfe_u32 s36, s2, 0x30003")
    a("s_or_b32 s2, s3, s36")
    if xswap: a("s_xor_b32 s2, s2, 32"); a("s_nop 0")
    a("s_load_dwordx8 s[36:43], s[0:1], 0")
    a("s_load_dwordx8 s[56:63], s[0:1], 40")
    a("s_load_dwordx2 s[44:45], s[0:1], 96")
    a("s_load_dwordx2 s[84:85], s[0:1], 32")
    a("s_load_dwordx2 s[86:87], s[0:1], 72")
    if cpf2:
        a("s_getpc_b64 s[72:73]")
        a.label("L_pc0")
        a("v_lshlrev_b32 v105, 7, v0")
        for k in range(cpf2):
            a(f"v_add_u32 v104, {cpfo + k*32768}, v105")
            a("v_min_u32 v104, L_code_end - L_pc0 - 4, v104")
            a("v_mov_b32 v107, s73")
            a("v_add_co_u32 v106, vcc, s72, v104")
            a("v_addc_co_u32 v107, vcc, 0, v107, vcc")
            a(f"global_load_dword v108, v[106:107], off")
    a(f"v_and_b32 v{V_LANE}, 63, v0")
    a(f"v_lshrrev_b32 v{V_T0}, 6, v0")
    a("s_nop 0")
    a(f"v_readfirstlane_b32 s{S_WAVE}, v{V_T0}")
    a("s_waitcnt lgkmcnt(0)")
    a(f"s_and_b32 s{S_QH}, s{S_WAVE}, 1")
    a(f"s_lshr_b32 s{S_PJ}, s{S_WAVE}, 1")
    a("s_cmp_ge_u32 s2, 128")
    for k in range(8):
        a(f"s_cselect_b32 s{36+k}, s{56+k}, s{36+k}")
    a("s_cselect_b32 s84, s86, s84")
    a("s_cselect_b32 s85, s87, s85")
    a(f"s_mov_b32 s86, {4096*640*2}")
    a("s_mov_b32 s87, 0x20000")
    a(f"s_and_b32 s{S_A}, s2, 127")
    a(f"s_lshl_b32 s{S_B}, s{S_A}, 20")
    a(f"s_lshl_b32 s{S_C}, s{S_PJ}, 18")
    a(f"s_add_u32 s{S_B}, s{S_B}, s{S_C}")
    a(f"s_add_u32 s38, s38, s{S_B}")
    a("s_addc_u32 s39, s39, 0")
    a(f"s_add_u32 s40, s40, s{S_B}")
    a("s_addc_u32 s41, s41, 0")
    a(f"s_sub_u32 s{S_C}, 0x100000, s{S_C}")
    a(f"s_mov_b32 s{S_K}, s38")
    a(f"s_mov_b32 s{S_K+1}, s39")
    a(f"s_mov_b32 s{S_K+2}, s{S_C}")
    a(f"s_mov_b32 s{S_K+3}, 0x20000")
    a(f"s_cmp_eq_u32 s{S_QH}, 0")
    a(f"s_cselect_b32 s{S_LD}, s38, s40")
    a(f"s_cselect_b32 s{S_LD+1}, s39, s41")
    a(f"s_mov_b32 s{S_LD+2}, {'0' if kv0 else 's'+str(S_C)}")
    a(f"s_mov_b32 s{S_LD+3}, 0x20000")
    if xf:
        a(f"s_add_u32 s36, s44, {4*NQB + 2*4096*640*2}")
        a("s_addc_u32 s37, s45, 0")
        a(f"s_cmp_eq_u32 s{S_QH}, 0")
    a(f"s_cselect_b32 s{S_QP}, s42, s36")
    a(f"s_cselect_b32 s{S_QP+1}, s43, s37")
    a(f"s_mov_b32 s{S_A}, {0 if now else 640*4096*2}")
    a(f"s_mov_b32 s{S_B}, {0 if nox else (2*3584*640*2 if xf else 3584*640*2)}")
    a(f"s_cselect_b32 s{S_QP+2}, s{S_A}, s{S_B}")
    a(f"s_mov_b32 s{S_QP+3}, 0x20000")
    a(f"s_mov_b32 s{S_A}, {32*8192}")
    a(f"s_mov_b32 s{S_B}, {7168 if (fakex or xf) else 64}")
    a(f"s_cselect_b32 s{S_QSTEP}, s{S_A}, s{S_B}")
    a(f"s_cselect_b32 s{S_QRND}, 512, 0")
    a(f"s_mov_b32 s{S_A}, 1056")
    a(f"s_mov_b32 s{S_B}, 1024")
    a(f"s_cselect_b32 s{S_MSTEP}, s{S_A}, s{S_B}")
    for i in range(8):
        a(f"s_mov_b32 s{S_A}, {((i&3)+8*(i>>2))*8192}")
        a(f"s_mov_b32 s{S_B}, {(1024*i if (fakex or xf) else 20480*i) if i < 7 else 0x40000000}")
        a(f"s_cselect_b32 s{S_TAB+i}, s{S_A}, s{S_B}")
    a(f"s_and_b32 s{S_A}, s2, 7")
    a(f"s_lshl_b32 s{S_A}, s{S_A}, 2")
    a(f"s_add_u32 s{S_A}, s{S_A}, s{S_PJ}")
    a(f"s_lshl_b32 s{S_A}, s{S_A}, 8")
    a(f"s_bfe_u32 s{S_B}, s2, {0x50003 if xf else 0x40003}")
    a(f"s_lshl_b32 s{S_B}, s{S_B}, 1")
    a(f"s_add_u32 s{S_B}, s{S_B}, s{S_PJ}")
    a(f"s_mul_i32 s{S_B}, s{S_B}, {112*1280}")
    a(f"s_cmp_eq_u32 s{S_QH}, 0")
    a(f"s_cselect_b32 s55, s{S_A}, s{S_B}")
    a(f"s_add_u32 s{S_W}, s44, {wsbase}")
    a(f"s_addc_u32 s{S_W+1}, s45, 0")
    a(f"s_mov_b32 s{S_W+2}, {WS_BYTES}")
    a(f"s_mov_b32 s{S_W+3}, 0x20000")
    a(f"s_lshl_b32 s{S_A}, s2, 2")
    a(f"s_add_u32 s{S_A}, s{S_A}, s{S_PJ}")
    a(f"s_mul_i32 s{S_OOFF}, s{S_A}, {PAIRB}")
    a(f"s_mul_i32 s{S_A}, s{S_QH}, {7*4096}")
    a(f"s_add_u32 s{S_OOFF}, s{S_OOFF}, s{S_A}")
    a(f"s_add_u32 s{S_OOFF}, s{S_OOFF}, {WS_O}")
    a(f"s_mov_b32 s{S_NOFB}, -1")
    a("s_mov_b32 s60, s42"); a("s_mov_b32 s61, s43"); a(f"s_mov_b32 s62, {640*4096*2}"); a("s_mov_b32 s63, 0x20000")
    a(f"s_mov_b32 s{S_T0}, 0")
    a(f"s_mov_b32 s{S_MP}, 0")
    a(f"s_mov_b32 s{S_AS}, 0")
    if defer: a("s_mov_b32 s98, 0x40000000")
    a(f"s_mov_b32 s{S_WO}, {3 if nowo else 0}")
    a(f"s_lshr_b32 s26, s2, 3")
    a(f"s_lshr_b32 s{S_A}, s2, {rsh}")
    a(f"s_add_u32 s26, s26, s{S_A}")
    a("s_and_b32 s26, s26, 3")
    a("s_mul_i32 s26, s26, 5")
    a(f"s_mul_i32 s83, s{S_QSTEP}, 20")
    a(f"s_and_b32 s{S_TY}, s2, {tymask}")
    a(f"s_min_u32 s{S_TY}, s{S_TY}, 1")
    if tyinv: a(f"s_xor_b32 s{S_TY}, s{S_TY}, 1"); a("s_nop 0")
    if tymode == 1:
        a("s_bfe_u32 s3, s2, 0x10005"); a("s_xor_b32 s3, s3, 1"); a(f"s_and_b32 s{S_TY}, s2, s3"); a("s_nop 0")
    if tymode == 2:
        a("s_bfe_u32 s3, s2, 0x10005"); a("s_xor_b32 s3, s3, 1"); a(f"s_and_b32 s{S_TY}, s2, 3"); a(f"s_min_u32 s{S_TY}, s{S_TY}, 1"); a(f"s_and_b32 s{S_TY}, s{S_TY}, s3")
    if tymode == 3:
        a("s_bfe_u32 s3, s2, 0x10005"); a("s_xor_b32 s3, s3, 1"); a(f"s_and_b32 s{S_TY}, s2, 3"); a(f"s_cmp_eq_u32 s{S_TY}, 0"); a(f"s_cselect_b32 s{S_TY}, 1, 0"); a(f"s_or_b32 s{S_TY}, s{S_TY}, s3")
    a(f"s_mov_b32 s{S_PRE}, s{S_TY}")
    a(f"s_mov_b32 s{S_THR}, 0x4e800000")
    import struct
    cs = struct.unpack("<I", struct.pack("<f", (128 ** -0.5) * 1.4426950408889634))[0]
    a(f"s_mov_b32 s{S_CS}, {cs:#x}")
    a(f"s_lshl_b32 s{S_A}, s{S_QH}, 1")
    a(f"s_add_u32 s{S_A}, s{S_A}, s{S_PJ}")
    a(f"s_mul_i32 s{S_LDB}, s{S_A}, {AREA}")
    if stamp:
        a("s_memtime s[64:65]")
        a("s_memrealtime s[66:67]")
        a("s_load_dwordx2 s[46:47], s[0:1], 88")
        a("s_waitcnt lgkmcnt(0)")
    G, N = V_T0, V_T1
    a(f"v_lshlrev_b32 v{V_LIN}, 4, v{V_LANE}")
    a(f"v_lshrrev_b32 v{G}, 4, v{V_LANE}")
    a(f"v_and_b32 v{N}, 15, v{V_LANE}")
    a(f"v_lshlrev_b32 v{V_T2}, 4, v{N}")
    a(f"v_lshl_add_u32 v{V_DMA}, v{G}, {kvgs}, v{V_T2}")
    a(f"v_bfe_u32 v{V_T3}, v{V_LANE}, 4, 1")
    a(f"v_lshl_add_u32 v{V_QD}, v{V_T3}, 15, v{V_T2}")
    a(f"v_bfe_u32 v{V_T3}, v{V_LANE}, 5, 1")
    a(f"v_lshl_add_u32 v{V_QD}, v{V_T3}, 17, v{V_QD}")
    a(f"v_mul_u32_u24 v{V_BA}, 1280, v{N}")
    a(f"v_lshl_add_u32 v{V_BA}, v{G}, 4, v{V_BA}")
    if fakex or xf: a(f"v_mov_b32 v{V_BA}, v{V_LIN}")
    if xq:
        a(f"v_lshrrev_b32 v{V_T3}, 4, v{V_LANE}")
        a(f"v_and_b32 v{V_BA}, 1, v{V_T3}")
        a(f"v_lshlrev_b32 v{V_BA}, 1, v{V_BA}")
        a(f"v_lshrrev_b32 v{V_T3}, 1, v{V_T3}")
        a(f"v_mul_u32_u24 v{V_T3}, 3, v{V_T3}")
        a(f"v_xor_b32 v{V_BA}, v{V_BA}, v{V_T3}")
        a(f"v_and_b32 v{V_T3}, 3, v{V_LANE}")
        a(f"v_xor_b32 v{V_BA}, v{V_BA}, v{V_T3}")
        a(f"v_lshlrev_b32 v{V_BA}, 4, v{V_BA}")
        a(f"v_lshrrev_b32 v{V_T3}, 2, v{V_LANE}")
        a(f"v_mul_u32_u24 v{V_T3}, 1280, v{V_T3}")
        a(f"v_add_u32 v{V_BA}, v{V_BA}, v{V_T3}")
    a(f"s_cmp_eq_u32 s{S_QH}, 0")
    a("s_cselect_b64 vcc, -1, 0")
    a("s_nop 1")
    a(f"v_cndmask_b32 v{V_QD}, v{V_BA}, v{V_QD}, vcc")
    a(f"s_add_u32 s{S_A}, s{S_QH}, 2")
    a(f"s_mul_i32 s{S_A}, s{S_A}, {AREA}")
    if xq:
        a(f"v_bfe_u32 v{V_T3}, v{V_LANE}, 2, 2")
        a(f"v_and_b32 v{V_BA}, 1, v{V_T3}")
        a(f"v_lshlrev_b32 v{V_BA}, 1, v{V_BA}")
        a(f"v_lshrrev_b32 v{V_T3}, 1, v{V_T3}")
        a(f"v_mul_u32_u24 v{V_T3}, 3, v{V_T3}")
        a(f"v_xor_b32 v{V_BA}, v{V_BA}, v{V_T3}")
        a(f"v_xor_b32 v{V_BA}, v{V_BA}, v{G}")
        a(f"v_lshlrev_b32 v{V_BA}, 4, v{V_BA}")
        a(f"v_lshl_add_u32 v{V_BA}, v{N}, 6, v{V_BA}")
        a(f"v_add_u32 v{V_BA}, s{S_A}, v{V_BA}")
    else:
        a(f"v_add_u32 v{V_BA}, s{S_A}, v{V_LIN}")
    a(f"v_bfe_u32 v{V_T3}, v{V_LANE}, 4, 1")
    a(f"v_lshl_add_u32 v{V_T2}, v{V_T3}, 9, v{V_T2}")
    a(f"v_bfe_u32 v{V_T3}, v{V_LANE}, 5, 1")
    a(f"v_lshl_add_u32 v{V_XA}, v{V_T3}, 8, v{V_T2}")
    a(f"v_and_b32 v{V_T2}, 7, v{N}")
    a(f"v_lshlrev_b32 v{V_KA}, 10, v{V_T2}")
    a(f"v_and_b32 v{V_T3}, 1, v{N}")
    a(f"v_lshl_add_u32 v{V_KA}, v{V_T3}, 4, v{V_KA}")
    a(f"v_bfe_u32 v{V_T3}, v{N}, 1, 2")
    a(f"v_lshl_add_u32 v{V_KA}, v{V_T3}, 6, v{V_KA}")
    a(f"v_lshrrev_b32 v{V_T3}, 3, v{N}")
    a(f"v_lshl_add_u32 v{V_KA}, v{V_T3}, 8, v{V_KA}")
    a(f"v_bfe_u32 v{V_T3}, v{V_LANE}, 4, 1")
    a(f"v_lshl_add_u32 v{V_KA}, v{V_T3}, 5, v{V_KA}")
    a(f"v_bfe_u32 v{V_T3}, v{V_LANE}, 5, 1")
    a(f"v_lshl_add_u32 v{V_KA}, v{V_T3}, 4, v{V_KA}")
    a(f"s_mul_i32 s{S_A}, s{S_PJ}, {AREA}")
    a(f"v_add_u32 v{V_KA}, s{S_A}, v{V_KA}")
    a(f"v_bfe_u32 v{N}, v{V_LANE}, 2, 2")
    a(f"v_bfe_u32 v{V_T3}, v{V_LANE}, 4, 1")
    a(f"v_lshl_add_u32 v{V_T2}, v{V_T3}, 2, v{N}")
    a(f"v_mul_u32_u24 v{V_T2}, 1056, v{V_T2}")
    a(f"v_bfe_u32 v{V_T3}, v{V_LANE}, 5, 1")
    a(f"v_lshl_add_u32 v{V_T2}, v{V_T3}, 9, v{V_T2}")
    a(f"v_and_b32 v{V_T3}, 3, v{V_LANE}")
    a(f"v_lshl_add_u32 v{V_T2}, v{V_T3}, 3, v{V_T2}")
    a(f"v_add_u32 v{V_WA}, s{S_A}, v{V_T2}")
    a(f"v_lshl_add_u32 v{N}, v{G}, 2, v{N}")
    a(f"v_and_b32 v{V_T2}, 7, v{N}")
    a(f"v_mul_u32_u24 v{V_T2}, 1056, v{V_T2}")
    a(f"v_lshrrev_b32 v{V_T3}, 3, v{N}")
    a(f"v_lshl_add_u32 v{V_T2}, v{V_T3}, 8, v{V_T2}")
    a(f"v_and_b32 v{V_T3}, 3, v{V_LANE}")
    a(f"v_lshl_add_u32 v{V_T2}, v{V_T3}, 3, v{V_T2}")
    a(f"s_add_u32 s{S_A}, s{S_A}, {2*AREA}")
    a(f"v_add_u32 v{V_VA}, s{S_A}, v{V_T2}")
    for i in range(7):
        a(f"v_mov_b32 v{V_L+2*i}, 0xff800000")
    a(f"v_mov_b32 v{V_T0}, 0x3f803f80")
    for i in range(4): a(f"v_accvgpr_write_b32 a{A_ONE+i}, v{V_T0}")
    a(f"v_and_b32 v{V_T0}, 3, v{V_LANE}")
    a(f"v_lshlrev_b32 v{V_T0}, 2, v{V_T0}")
    a(f"v_add_u32 v{V_T0}, {LDS_FLAG}, v{V_T0}")
    a(f"v_mov_b32 v{V_T1}, 0")
    a(f"ds_write_b32 v{V_T0}, v{V_T1}")
    a(f"s_cmp_eq_u32 s{S_QH}, 0")
    a(f"s_mov_b32 s{S_A}, {kpad(1)-kpad(0)-256}")
    a(f"s_mov_b32 s{S_B}, 800")
    a(f"s_cselect_b32 s96, s{S_A}, s{S_B}")
    a(f"s_mov_b32 s{S_A}, {kpad(2)-kpad(1)-256}")
    a(f"s_cselect_b32 s97, s{S_A}, s{S_B}")

    a(f"v_lshrrev_b32 v{V_T0}, 1, v{V_LANE}")
    a(f"v_lshlrev_b32 v{V_T0}, 13, v{V_T0}")
    a(f"v_and_b32 v{V_T1}, 1, v{V_LANE}")
    a(f"v_lshl_add_u32 v{V_T0}, v{V_T1}, 7, v{V_T0}")
    a(f"v_lshlrev_b32 v{V_T1}, 7, v{V_LANE}")
    a(f"s_bfe_u32 s{S_A}, s2, 0x20003")
    a(f"s_lshl_b32 s{S_A}, s{S_A}, 18")
    a(f"s_and_b32 s{S_B}, s2, 7")
    a(f"s_mul_i32 s{S_B}, s{S_B}, 17920")
    a(f"s_cmp_eq_u32 s{S_QH}, 0")
    a("s_cselect_b64 vcc, -1, 0")
    a(f"s_cselect_b32 s100, s{S_A}, s{S_B}")
    a(f"s_add_u32 s100, s100, s55")
    a(f"s_cmp_eq_u32 s{S_QH}, 0")
    a(f"s_mov_b32 s{S_A}, {4*32*8192}")
    a(f"s_mov_b32 s{S_B}, 8192")
    a(f"s_cselect_b32 s99, s{S_A}, s{S_B}")
    a(f"v_cndmask_b32 v{V_LIN}, v{V_T1}, v{V_T0}, vcc")
    def tf0(u): return (u & ((1 << kvgs) - 1)) | ((u >> kvgs) << (kvgs + 2))
    if kvt2:
        lb = kvgs - int(math.log2(kvts))
        if lb >= 6:
            a(f"v_mul_u32_u24 v{V_LIN}, {kvts}, v{V_LANE}")
        else:
            a(f"v_and_b32 v{V_T0}, {(1 << lb) - 1}, v{V_LANE}")
            a(f"v_mul_u32_u24 v{V_T0}, {kvts}, v{V_T0}")
            a(f"v_lshrrev_b32 v{V_T1}, {lb}, v{V_LANE}")
            a(f"v_lshl_add_u32 v{V_LIN}, v{V_T1}, {kvgs + 2}, v{V_T0}")
    def tch(s_): return bool(kvt2) and s_ < 16 and s_ % tper == 0
    def tvn(s_): return sum(1 for t in range(max(0, s_ - 3), s_) if tch(t))
    def tinc(k): return tf0((k + 1) * 64 * kvts) - tf0(k * 64 * kvts)
    if kvrot == 0 and kvgs != 11: a("s_mov_b32 s100, 0")
    if kvrot == 1:
        a("s_and_b32 s100, s2, 31")
    if kvrot == 2:
        a("s_mul_i32 s100, s2, 11"); a(f"s_lshr_b32 s{S_A}, s2, 5"); a(f"s_mul_i32 s{S_A}, s{S_A}, 7"); a(f"s_add_u32 s100, s100, s{S_A}")
        a(f"s_lshl_b32 s{S_A}, s{S_PJ}, 4"); a(f"s_add_u32 s100, s100, s{S_A}"); a("s_and_b32 s100, s100, 31")
    if kvrot == 3:
        a("s_lshr_b32 s100, s2, 5"); a("s_lshl_b32 s100, s100, 2")
    if rflip:
        if rflip == 1: a(f"s_bfe_u32 s{S_A}, s2, 0x10005")
        if rflip == 2: a(f"s_bfe_u32 s{S_A}, s2, 0x10006")
        if rflip == 3: a(f"s_bfe_u32 s{S_A}, s2, 0x10007")
        if rflip == 4: a(f"s_bfe_u32 s{S_A}, s2, 0x10003")
        a(f"s_lshl_b32 s101, s{S_A}, 19")
        a(f"s_mul_i32 s{S_B}, s{S_A}, s{S_QRND}")
        a(f"s_add_u32 s55, s55, s{S_B}")
        a(f"s_sub_u32 s{S_B}, 0, s{S_QRND}")
        a(f"s_cmp_lg_u32 s{S_A}, 0")
        a(f"s_cselect_b32 s{S_QRND}, s{S_B}, s{S_QRND}")
        a(f"s_mov_b32 s99, {2*PAIRB}")
        a(f"s_cselect_b32 s99, {-2*PAIRB & 0xffffffff:#x}, s99")
        a(f"s_mul_i32 s{S_B}, s{S_A}, {2*PAIRB}")
        a(f"s_add_u32 s{S_OOFF}, s{S_OOFF}, s{S_B}")
    tstate = {"t": 0}
    def touch_one():
        if not touch: return
        a(f"buffer_load_dword v0, v{V_LIN}, s[{S_QP}:{S_QP+3}], s98 offen{' nt' if tnt else ''}")
        a(f"s_add_u32 s98, s98, s99")
        tstate["t"] += 1
    if xmem or dupst:
        a("s_add_u32 s72, s44, 0x8000000"); a("s_addc_u32 s73, s45, 0"); a("s_mov_b32 s74, 0x18000000"); a("s_mov_b32 s75, 0x20000")
        a("s_lshl_b32 s76, s2, 2"); a(f"s_add_u32 s76, s76, s{S_WAVE}"); a("s_mul_i32 s76, s76, 0x60000")
    dstate = {"i": 0, "kind": None}
    state = {"n": 0}
    def dma_setup(slot, kind):
        if kind == "KV":
            if kvgs != 11:
                ln_ = kvgs - 11
                a(f"s_add_u32 s{S_B}, s{S_DJ}, s100")
                a(f"s_bfe_u32 s{S_A}, s{S_B}, {((5 - ln_) << 16) | ln_:#x}")
                a(f"s_lshl_b32 s{S_A}, s{S_A}, {kvgs + 2}")
                a(f"s_and_b32 s{S_B}, s{S_B}, {(1 << ln_) - 1}")
                a(f"s_lshl_b32 s{S_B}, s{S_B}, 11")
                a(f"s_add_u32 s{S_B}, s{S_A}, s{S_B}")
                a(f"s_lshr_b32 s{S_A}, s{S_DJ}, 5")
                a(f"s_lshl_b32 s{S_A}, s{S_A}, 19")
                if rflip: a(f"s_xor_b32 s{S_A}, s{S_A}, s101")
                a(f"s_add_u32 s{S_DOFF}, s{S_A}, s{S_B}")
            elif kvrot:
                a(f"s_lshr_b32 s{S_A}, s{S_DJ}, 5")
                a(f"s_lshl_b32 s{S_A}, s{S_A}, 19")
                if rflip: a(f"s_xor_b32 s{S_A}, s{S_A}, s101")
                a(f"s_add_u32 s{S_B}, s{S_DJ}, s100")
                a(f"s_and_b32 s{S_B}, s{S_B}, 31")
                a(f"s_lshl_b32 s{S_B}, s{S_B}, 13")
                a(f"s_add_u32 s{S_DOFF}, s{S_A}, s{S_B}")
            else:
                a(f"s_lshr_b32 s{S_A}, s{S_DJ}, 5")
                a(f"s_lshl_b32 s{S_A}, s{S_A}, 18")
                a(f"s_lshl_b32 s{S_B}, s{S_DJ}, 13")
                a(f"s_add_u32 s{S_DOFF}, s{S_A}, s{S_B}")
            if kvl2: a(f"s_and_b32 s{S_DOFF}, s{S_DOFF}, {0x7fff if kvl2 is True else kvl2 - 1}")
            a(f"s_add_u32 m0, s{S_LDB}, {slot*TILE}")
            a(f"s_add_u32 s{S_DJ}, s{S_DJ}, 1")
        else:
            a(f"s_add_u32 m0, s{S_LDB}, {slot*TILE}")
            a(f"s_mov_b32 s{S_DOFF}, s{S_QS}")
            a(f"s_add_u32 s{S_QS}, s{S_QS}, s{S_QSTEP}")
            if rot:
                a("s_add_u32 s82, s82, 1")
                a("s_cmp_eq_u32 s82, 20")
                a(f"s_cselect_b32 s{S_B}, s83, 0")
                a(f"s_sub_u32 s{S_QS}, s{S_QS}, s{S_B}")
        dstate["i"] = 0; dstate["kind"] = kind
    def dma_one(pad=False):
        i = dstate["i"]
        if dstate["kind"] == "KV":
            if pad: a("s_nop 0")
            if not noload:
                a(f"buffer_load_dwordx4 v{V_DMA}, s[{S_LD}:{S_LD+3}], s{S_DOFF} offen offset:{256*i}{NT} lds")
            if i < 7: a(f"s_add_u32 m0, m0, s{96+(i&1)}")
        else:
            a(f"s_add_u32 s{S_A}, s{S_DOFF}, s{S_TAB+i}")
            if not qpnl: a(f"buffer_load_dwordx4 v{V_QD}, s[{S_QP}:{S_QP+3}], s{S_A} offen{' nt' if qnt else ''} lds")
            if i < 7: a(f"s_add_u32 m0, m0, s{S_MSTEP}")
        dstate["i"] = i + 1
    def qs_init(rnd_sgpr, q=3):
        if kvt2:
            a(f"s_lshl_b32 s98, s{S_T}, 19")
            if q == "pre":
                a(f"s_lshl_b32 s{S_A}, s{S_PRE}, {kvgs}"); a(f"s_sub_u32 s98, s98, s{S_A}"); q = 3
            a(f"s_add_u32 s98, s98, {q << kvgs}")
        a(f"s_mul_i32 s{S_QS}, s{rnd_sgpr}, s{S_QRND}")
        if not rflip: a(f"s_mov_b32 s101, s{rnd_sgpr}")
        a(f"s_add_u32 s{S_QS}, s{S_QS}, s55")
        a(f"s_cmp_ge_u32 s{rnd_sgpr}, 2")
        a(f"s_cselect_b32 s{S_A}, 0x40000000, 0")
        a(f"s_add_u32 s{S_QS}, s{S_QS}, s{S_A}")
        if rot:
            a("s_mov_b32 s82, s26")
            a(f"s_mul_i32 s{S_A}, s26, s{S_QSTEP}")
            a(f"s_add_u32 s{S_QS}, s{S_QS}, s{S_A}")

    def touch_init(rnd_sgpr):
        if not touch: return
        a(f"s_mul_i32 s98, s{rnd_sgpr}, s{S_QRND}")
        a(f"s_add_u32 s98, s98, s100")
        a(f"s_cmp_ge_u32 s{rnd_sgpr}, 2")
        a(f"s_cselect_b32 s{S_A}, 0x40000000, 0")
        a(f"s_add_u32 s98, s98, s{S_A}")
        tstate["t"] = 0
    def kread(f, slot):
        if anrd and state.get("inat"): return
        kt, s = f >> 2, f & 3
        a.lds(f"ds_read_b128 {vr(V_KF+4*f,4)}, v{V_KA} offset:{slot*TILE+kt*512+s*64}", "K")
    def vread(l, slot):
        if anrd and state.get("inat"): return
        for v in range(2):
            a.lds(f"ds_read_b64_tr_b16 {vr(V_VF+4*l+2*v,2)}, v{V_VA} offset:{slot*TILE+v*512+l*32}", "V")
    def wread(l, slot):
        for v in range(2):
            a.lds(f"ds_read_b64_tr_b16 {vr(V_VF+4*l+2*v,2)}, v{V_WA} offset:{slot*TILE+v*256+l*32}", "W")
    def bbuf(buf, qt): return (V_KF if buf == 0 else V_CI) + 4 * qt
    def bread(buf, qt, slot):
        a.lds(f"ds_read_b128 {vr(bbuf(buf,qt),4)}, v{V_BA} offset:{slot*TILE+qt*1024}", "B")
    def oreg(l, qt):
        return vr(V_OK + 28 * l + 4 * qt, 4) if l < 4 else ar(A_OS + 28 * (l - 4) + 4 * qt, 4)

    def barrier(dyn=False, vn=16, xt=0):
        vn += xt
        if dyn:
            n = len(a.lines)
            a(f"s_cmp_eq_u32 s{S_AS}, 0")
            a(f"s_cbranch_scc1 L_bw1_{n}")
            a(f"s_sub_u32 s{S_AS}, s{S_AS}, 1")
            a(f"s_waitcnt vmcnt({44 + xt}) lgkmcnt(0)")
            a(f"s_branch L_bw2_{n}")
            a.label(f"L_bw1_{n}")
            a(f"s_waitcnt vmcnt({vn}) lgkmcnt(0)")
            a.label(f"L_bw2_{n}")
        else:
            a(f"s_waitcnt vmcnt({vn}) lgkmcnt(0)")
        a.lds_q = []
        a("s_barrier")

    def cap(fn):
        n0 = len(a.lines); q0 = list(a.lds_q)
        fn()
        ls = a.lines[n0:]; del a.lines[n0:]; a.lds_q = q0
        return ls
    def is_scalar(ln):
        return ln.strip().startswith("s_")
    class Gaps:
        def __init__(self, n):
            self.n = n; self.S = [[] for _ in range(n)]; self.V = [[] for _ in range(n)]; self.c = [0] * n
        def putS(self, ln, lo, hi=None):
            for g in range(lo, self.n):
                if len(self.S[g]) == 0:
                    self.S[g].append(ln); return g
            self.S[self.n - 1].append(ln); return self.n - 1
        def putV(self, ln, lo, cost=1, cap_=2):
            for g in range(lo, self.n):
                if self.c[g] + cost <= cap_:
                    self.V[g].append(ln); self.c[g] += cost; return g
            self.V[self.n - 1].append(ln); self.c[self.n - 1] += cost; return self.n - 1
        def atV(self, ln, g, cost=1):
            self.V[g].append(ln); self.c[g] += cost
        def atS(self, ln, g):
            self.S[g].append(ln)
    DITEMS = [(qt, T) for qt in range(7) for T in range(4)]
    DS = {}
    if defer:
        ntl = (28 - 8 - 4 * dnp) // 4
        assert 4 * dnp + 8 + 4 * ntl == 28
        k_ = 0
        for i in range(4): DS[("P", i)] = DITEMS[k_:k_ + dnp]; k_ += dnp
        for i in (1, 0, 3, 2): DS[("L", i)] = DITEMS[k_:k_ + 2]; k_ += 2
        for i in range(4): DS[("T", i)] = DITEMS[k_:k_ + ntl]; k_ += ntl
    DLIVE = {1: 0, 0: 1, 3: 1, 2: 2}
    def dcount(code):
        if not defer or code is None: return 0
        kind, i = code
        n = lambda c: len(DS.get(c, []))
        if kind == "P": return sum(n(("P", t)) for t in (i - 2, i - 1) if t >= 0)
        prev = lambda k, t: (k, t) if t >= 0 else None
        if kind == "L":
            if i >= 2: return n(("L", i - 2)) + n(("L", i - 1))
            if i == 1: return min(n(("P", 3)), n(("L", 3))) + n(("L", 0))
            return min(n(("P", 2)) + n(("P", 3)), n(("L", 2)) + n(("L", 3)))
        if kind in ("T", "B"):
            m = lambda t: n((kind, t)) if t >= 0 else n(("L", 4 + t))
            return m(i - 2) + m(i - 1)
    def qp_stage2(sm, first, dma, last, chk, after_store, vn, nok, sidx, code=None):
        buf = sm & 1; nslot = (sm + 1) & 3
        BAR = qbar
        G = Gaps(56)
        su = cap(lambda: dma_setup(sm, dma))
        g = BAR - 1
        g = 0
        for ln in su:
            g = G.putS(ln, g) + 1
        prev = g
        for i in range(8):
            ls = cap(lambda: dma_one(False))
            tg = max(qd0 + qdstep * i, prev)
            pre_ = [l for l in ls if is_scalar(l) and "m0" not in l]
            ld = [l for l in ls if not is_scalar(l)]
            post = [l for l in ls if is_scalar(l) and "m0" in l]
            for l in pre_: tg = G.putS(l, tg)
            for l in ld: G.atV(l, tg)
            prev = tg + 1
            for l in post: prev = G.putS(l, tg + 1) + 1
        dstate["i"] = 8
        if code in DS:
            its = DS[code]; lastq = None
            for n_, (qt_, T_) in enumerate(its):
                tg = qd0 + 3 + n_ * 2 * qdstep
                if qt_ != lastq:
                    if code[0] == "L":
                        G.atS(f"    s_cmp_eq_u32 s{S_CNT}, {DLIVE[code[1]]}", tg - 2)
                        G.atS(f"    s_cselect_b32 s99, s98, 0x40000000", tg - 2)
                        G.atS(f"    s_add_u32 s99, s99, {qt_*4096}", tg - 1)
                    else:
                        G.atS(f"    s_add_u32 s99, s98, {qt_*4096}", tg - 1)
                    lastq = qt_
                G.atV(f"    buffer_store_dwordx4 {ar(A_Q+16*qt_+4*T_,4)}, v{V_XA}, s[{S_W}:{S_W+3}], s99 offen offset:{1024*T_} {dpol}".rstrip(), tg)
        if tch(sidx):
            k_ = sidx // tper
            tg = min(prev + 1, 54)
            G.atV(f"    buffer_load_dword v{V_S+12}, v{V_LIN}, s[{S_LD}:{S_LD+3}], s98 offen {tpol}".rstrip(), tg)
            G.putS(f"    s_add_u32 s98, s98, {tinc(k_)}", tg + 1)
        if qnrd: pass
        elif not last:
            lo = BAR - 1
            for ln in cap(lambda: wread(0, nslot)): lo = G.putV(ln, lo, cap_=1)
            for qt in range(7):
                for ln in cap(lambda: bread(buf ^ 1, qt, nslot)): lo = G.putV(ln, lo, cap_=1)
            for l in range(1, 8):
                lo = max(lo, min(7 * (l + 1) - 1, 55))
                for ln in cap(lambda: wread(l, nslot)): lo = G.putV(ln, lo, cap_=(1 if l < 7 else 2))
        elif not nok:
            lo = BAR - 1
            for f in range(8):
                for ln in cap(lambda: kread(f, nslot)): lo = G.putV(ln, lo, cap_=1)
        a("s_waitcnt lgkmcnt(14)")
        j = 0
        for l in range(8):
            for qt in range(7):
                c = "0" if first else oreg(l, qt)
                if qt == 0 and l > 0 and j < BAR: a(f"s_waitcnt lgkmcnt({14-2*l})")
                a(f"{MFMA} {oreg(l, qt)}, {vr(V_VF+4*l,4)}, {vr(bbuf(buf,qt),4)}, {c}")
                for ln in G.S[j]: a.lines.append(ln)
                if j == BAR - 1:
                    if not qnbar: barrier(after_store, 16, tvn(sidx) + dcount(code))
                    if chk: flagcheck()
                for ln in G.V[j]: a.lines.append(ln)
                j += 1
    def qp_stage(sm, first=False, dma="QP", last=False, chk=False, after_store=False, kt_=False, vn=16, nok=False, role=None, ntouch=0, sidx=None, code=None):
        buf = sm & 1; nslot = (sm + 1) & 3
        if qps:
            return qp_stage2(sm, first, dma, last, chk, after_store, vn, nok, sidx, code)
        a("s_waitcnt lgkmcnt(14)")
        fq = []
        def cap(fn):
            n0 = len(a.lines); q0 = len(a.lds_q)
            fn()
            ls = a.lines[n0:]; del a.lines[n0:]; del a.lds_q[q0:]
            return ls
        BAR = 7
        if role != "T":
            for ln in cap(lambda: dma_setup(sm, dma)): fq.append((BAR, ln))
        if dma == "QP" and roll:
            fq.append((BAR, f"    s_lshl2_add_u32 s{S_B}, s{S_QSTEP}, s{S_DOFF}"))
            fq.append((BAR, f"    buffer_load_dword v0, v{V_T0}, s[{S_QP}:{S_QP+3}], s{S_B} offen{' nt' if tnt else ''}"))
        if kvt and kt_:
            fq.append((BAR, f"    buffer_load_dword v0, v{V_T3}, s[{S_LD}:{S_LD+3}], s101 offen{' nt' if kvtnt else ''}"))
            fq.append((BAR, f"    s_add_u32 s101, s101, 8192"))
        if not last:
            for ln in cap(lambda: wread(0, nslot)): fq.append((BAR, ln))
            for qt in range(7):
                for ln in cap(lambda: bread(buf ^ 1, qt, nslot)): fq.append((BAR, ln))
        elif not nok:
            for f in range(8):
                for ln in cap(lambda: kread(f, nslot)): fq.append((BAR, ln))
        for l in range(1, 8):
            if not last:
                for ln in cap(lambda: wread(l, nslot)): fq.append((7 * (l + 1), ln))
            if role == "T":
                if l == 1:
                    for _ in range(ntouch):
                        fq.append((BAR, f"    buffer_load_dword v0, v{V_T0}, s[60:63], s98 offen"))
                        fq.append((BAR, f"    s_add_u32 s98, s98, {32*8192}"))
                        fq.append((BAR, f"    buffer_load_dword v0, v{V_T1}, s[{S_QP}:{S_QP+3}], s99 offen"))
                        fq.append((BAR, f"    s_add_u32 s99, s99, 64"))
                continue
            for ln in cap(lambda: dma_one(True)): fq.append((BAR, ln))
            if role == "X":
                if l == 7:
                    fq.append((BAR, f"    s_add_u32 m0, s{S_LDB}, {AREA+sm*TILE}"))
                    fq.append((BAR, f"    s_add_u32 s{S_DOFF}, s{S_DOFF}, {112*1280}"))
                    for i in range(7):
                        fq.append((BAR, f"    s_add_u32 s{S_A}, s{S_DOFF}, s{S_TAB+i}"))
                        fq.append((BAR, f"    buffer_load_dwordx4 v{V_QD}, s[{S_QP}:{S_QP+3}], s{S_A} offen{' nt' if qnt else ''} lds"))
                        if i < 6: fq.append((BAR, f"    s_add_u32 m0, m0, 1024"))
            elif l == 7:
                for ln in cap(lambda: dma_one(True)): fq.append((BAR, ln))
        j = 0
        for l in range(8):
            for qt in range(7):
                c = "0" if first else oreg(l, qt)
                a(f"{MFMA} {oreg(l, qt)}, {vr(V_VF+4*l,4)}, {vr(bbuf(buf,qt),4)}, {c}")
                j += 1
                if j == BAR:
                    barrier(after_store, vn if (roll or role) else 16)
                    if chk: flagcheck()
                    if trace:
                        a("s_memtime s[78:79]")
                        a("s_waitcnt lgkmcnt(0)")
                        a(f"v_cmp_eq_u32 vcc, s77, v{V_LANE}")
                        a(f"v_mov_b32 v{V_T2}, s78")
                        a("s_nop 1")
                        a(f"v_cndmask_b32 v{V_T3}, v{V_T3}, v{V_T2}, vcc")
                        a("s_add_u32 s77, s77, 1")
                k = 0; idx = 0
                rem_gaps = 56 - j + 1
                quota = 1 if len(fq) <= rem_gaps else 2
                while k < quota and idx < len(fq):
                    if fq[idx][0] <= j and (idx == 0 or "ds_read" in fq[idx][1] or all("ds_read" in x[1] for x in fq[:idx])):
                        a.lines.append(fq[idx][1]); del fq[idx]; k += 1
                    else:
                        idx += 1
        for _, ln in fq: a.lines.append(ln)
        assert role in ("X", "T") or dstate["i"] == 8

    def sm_ops(par, i, first):
        S = V_S + 8 * par; P = V_P + 4 * par; L = V_L + 2 * i
        ops = []
        if first:
            T0, T1 = V_T0, V_T1
            ops += [f"v_max3_f32 v{T0}, v{S}, v{S+1}, v{L}", f"v_max3_f32 v{T1}, v{S+2}, v{S+3}, v{S+4}",
                    f"v_max3_f32 v{T0}, v{S+5}, v{S+6}, v{T0}", f"v_max3_f32 v{T0}, v{S+7}, v{T0}, v{T1}",
                    f"v_mov_b32 v{T1}, v{T0}", "s_nop 1", f"v_permlane16_swap_b32 v{T0}, v{T1}", "s_nop 1", f"v_max_f32 v{T0}, v{T0}, v{T1}",
                    f"v_mov_b32 v{T1}, v{T0}", "s_nop 1", f"v_permlane32_swap_b32 v{T0}, v{T1}", "s_nop 1", f"v_max_f32 v{T0}, v{T0}, v{T1}",
                    f"v_mov_b32 v{L}, 0", f"v_mov_b32 v{L+1}, 0"]
            ops += [f"v_sub_f32 v{S+r}, v{S+r}, v{T0}" for r in range(8)]
            ops += [f"v_sub_f32 v{V_CI+4*i+r}, 0, v{T0}" for r in range(4)]
        e = lambda r: ops.append(f"v_exp_f32 v{S+r}, v{S+r}")
        e(0); e(1)
        for r in range(0, 8, 2):
            if r + 2 < 8: e(r + 2); e(r + 3)
            if not ones:
                ops.append(f"v_add_f32 v{L}, v{L}, v{S+r}")
                ops.append(f"v_add_f32 v{L+1}, v{L+1}, v{S+r+1}")
            ops.append(f"v_cvt_pk_bf16_f32 v{P+r//2}, v{S+r}, v{S+r+1}")
        return ops

    def qk_items(qt, par, czero, kr):
        it = []
        for f in range(8):
            kt, s = f >> 2, f & 3
            D = vr(V_S + 8 * par + 4 * kt, 4)
            c = ("0" if czero else vr(V_CI + 4 * qt, 4)) if s == 0 else D
            it.append(("K" if f == 0 else None, f"{MFMA} {D}, {vr(V_KF+4*f,4)}, {ar(A_Q+16*qt+4*s,4)}, {c}",
                       (lambda f=f: kread(f, kr)) if kr is not None else None))
        return it
    def pv_items(qt, par, czero, vrd):
        it = []
        for l in range(8):
            c = "0" if czero else oreg(l, qt)
            it.append(("V" if l == 0 else None, f"{MFMA} {oreg(l, qt)}, {vr(V_VF+4*l,4)}, {vr(V_P+4*par,4)}, {c}",
                       (lambda l=l: vread(l, vrd)) if vrd is not None else None))
        for _ in range(xmfma):
            D = ar(A_LS + 4 * qt, 4)
            it.append((None, f"{MFMA} {D}, {vr(V_VF,4)}, {vr(V_P+4*par,4)}, {D}", None))
        if ones:
            D = ar(A_LS + 4 * qt, 4)
            it.append((None, f"{MFMA} {D}, {ar(A_ONE,4)}, {vr(V_P+4*par,4)}, {'0' if czero else D}", None))
        return it

    def capture(fn):
        n0 = len(a.lines)
        fn()
        ls = a.lines[n0:]; del a.lines[n0:]
        return ls
    def emit(items, va, fill=None, nfill=0):
        cost = lambda op: 2 if "v_exp" in op else 1
        tot = sum(cost(o) for o in va); acc = 0; k = 0; ng = len(items)
        pos = [int((i + 0.5) * ng / max(nfill, 1)) for i in range(nfill)]
        for j, (need, m, post) in enumerate(items):
            if m:
                if need: a.lds_wait({need})
                a(m)
            if post: post()
            for _ in range(pos.count(j)):
                if fill: a.lines.append(fill.pop(0))
            while k < len(va) and acc + cost(va[k]) <= tot * (j + 1) / ng + 0.01:
                a(va[k]); acc += cost(va[k]); k += 1
        assert k == len(va)

    def dma_lines(slot, kind, pad=False):
        def f():
            dma_setup(slot, kind)
            for _ in range(8): dma_one(pad)
            if xmem and kind == "KV":
                a(f"s_mul_i32 s{S_A}, s{S_WAVE}, 7168")
                a(f"s_add_u32 m0, s{S_A}, {4*AREA+5120}")
                a(f"s_add_u32 s{S_A}, s{S_DOFF}, s76")
                for i in range(xmem):
                    a(f"buffer_load_dwordx4 v{V_DMA}, s[72:75], s{S_A} offen offset:{256*i} nt lds")
        return capture(f)
    def step(jm, first=False, last=False, dma="KV", nt_=0, tr_=False, dyn=False):
        fill = [] if (first or early) else dma_lines((jm + 3) & 3, dma)
        nf = (len(fill) + 3) // 4
        for i in range(7):
            if strace and tr_:
                pr = [36, 38, 40, 42, 56, 58, 60, 62]
                a(f"s_memtime s[{pr[i]}:{pr[i]+1}]")
            if i in (1, 2, 3)[:nt_]: touch_one()
            n = state["n"]; par = n & 1
            items = []
            nfill = nf if 1 <= i <= 4 else 0
            if i == 5:
                assert not fill
                if not (anbar and state.get("inat")): barrier(dyn)
                if first: flagcheck()
                if last or early:
                    fill = dma_lines(jm, dma, True if last else False); nf = (len(fill) + 1) // 2
            if (last or early) and i >= 5: nfill = nf
            if i < 6:
                items += qk_items(i + 1, par ^ 1, first, ((jm + 1) & 3) if (i == 5 and (not last or dma == "KV")) else None)
            elif not last:
                items += qk_items(0, par ^ 1, False, None)
            else:
                if dma == "KV": qreload()
                a("s_nop 1")
            if i > 0:
                items += pv_items(i - 1, par ^ 1, first, None)
            elif not first:
                items += pv_items(6, par ^ 1, False, jm)
            else:
                items += [(None, None, (lambda l=l: vread(l, jm))) for l in range(8)]
            ops_ = sm_ops(par, i, first)
            if state.get("inat") and anva:
                ops_ = [o for o in ops_ if not any(o.startswith(x) for x in anva.split(","))]
            emit(items, ops_, fill, nfill)
            state["n"] = n + 1
        assert not fill

    def qstash_off():
        a(f"s_lshl_b32 s{S_C}, s2, 2")
        a(f"s_add_u32 s{S_C}, s{S_C}, s{S_WAVE}")
        a(f"s_mul_i32 s{S_C}, s{S_C}, 28672")
        a(f"v_lshlrev_b32 v{V_T2}, 4, v{V_LANE}")
    def qreload():
        qstash_off()
        for i in range(7):
            for s_ in range(4):
                a(f"buffer_load_dwordx4 {ar(A_Q+16*i+4*s_,4)}, v{V_T2}, s[{S_W}:{S_W+3}], s{S_C} offen offset:{1024*s_}")
            if i < 6: a(f"s_add_u32 s{S_C}, s{S_C}, 4096")

    def flagcheck():
        lab = f"L_at_nofb_{len(a.lines)}"
        a(f"s_cmp_le_u32 s{S_T}, s{S_T0}")
        a(f"s_cbranch_scc1 {lab}")
        a(f"s_sub_u32 s{S_A}, s{S_T}, 1")
        a(f"s_cmp_eq_u32 s{S_A}, s{S_NOFB}")
        a(f"s_cbranch_scc1 {lab}")
        a(f"s_lshl_b32 s{S_B}, s{S_A}, 2")
        a(f"s_add_u32 s{S_B}, s{S_B}, {LDS_FLAG}")
        a(f"v_mov_b32 v{V_T2}, s{S_B}")
        a(f"ds_read_b32 v{V_T2}, v{V_T2}")
        a("s_waitcnt lgkmcnt(0)")
        a(f"v_readfirstlane_b32 s{S_B}, v{V_T2}")
        a("s_nop 3")
        a(f"s_cmp_lg_u32 s{S_B}, 0")
        a(f"s_cbranch_scc1 L_at_fallback")
        a.label(lab)

    def wo_issue(ps):
        D = V_S
        a(f"s_mov_b32 s{S_A}, 6554")
        for i in range(5):
            a(f"v_add_u32 v{V_T0}, {64*i}, v{V_LANE}")
            a(f"v_mul_u32_u24 v{V_T1}, s{S_A}, v{V_T0}")
            a(f"v_lshrrev_b32 v{V_T1}, 16, v{V_T1}")
            a(f"v_mul_u32_u24 v{V_T2}, 10, v{V_T1}")
            a(f"v_sub_u32 v{V_T2}, v{V_T0}, v{V_T2}")
            a(f"v_mul_u32_u24 v{V_T1}, 1280, v{V_T1}")
            a(f"v_lshl_add_u32 v{D+i}, v{V_T2}, 4, v{V_T1}")
        a(f"s_and_b32 s{S_A}, s2, 127")
        a(f"s_mul_i32 s{S_A}, s{S_A}, {32*1280}")
        a(f"s_mul_i32 s{S_B}, s{S_WAVE}, 320")
        a(f"s_add_u32 s{S_A}, s{S_A}, s{S_B}")
        a(f"s_add_u32 s{S_A}, s{S_A}, {160*ps}")
        a(f"s_mul_i32 s{S_D}, s{S_WAVE}, 7168")
        a(f"s_add_u32 s{S_D}, s{S_D}, {4*AREA}")
        for i in range(5):
            a(f"s_add_u32 m0, s{S_D}, {1024*i}")
            a("s_nop 0")
            a(f"buffer_load_dwordx4 v{D+i}, s[84:87], s{S_A} offen{' nt' if wont else ''} lds")
    def wo_finish(ps):
        a(f"v_lshrrev_b32 v{V_T0}, 4, v{V_LANE}")
        a(f"v_bfe_u32 v{V_T1}, v{V_LANE}, 2, 2")
        a(f"v_lshl_add_u32 v{V_T1}, v{V_T0}, 3, v{V_T1}")
        a(f"v_mul_u32_u24 v{V_T1}, 160, v{V_T1}")
        a(f"v_and_b32 v{V_T2}, 3, v{V_LANE}")
        a(f"v_lshl_add_u32 v{V_T1}, v{V_T2}, 3, v{V_T1}")
        a(f"s_mul_i32 s{S_D}, s{S_WAVE}, 7168")
        a(f"s_add_u32 s{S_D}, s{S_D}, {4*AREA}")
        a(f"v_add_u32 v{V_T1}, s{S_D}, v{V_T1}")
        a(f"v_lshlrev_b32 v{V_T2}, 4, v{V_LANE}")
        a(f"s_mul_i32 s{S_A}, s2, {40*1024}")
        a(f"s_mul_i32 s{S_B}, s{S_WAVE}, {10*1024}")
        a(f"s_add_u32 s{S_A}, s{S_A}, s{S_B}")
        a(f"s_add_u32 s{S_A}, s{S_A}, {WS_W+5120*ps}")
        R = V_VF
        for t in range(5):
            for v in range(2):
                a(f"ds_read_b64_tr_b16 {vr(R+4*t+2*v,2)}, v{V_T1} offset:{v*640+t*32}")
        a("s_waitcnt lgkmcnt(0)")
        for f in range(5):
            if f == 4: a(f"s_add_u32 s{S_A}, s{S_A}, 4096")
            a(f"buffer_store_dwordx4 {vr(R+4*f,4)}, v{V_T2}, s[{S_W}:{S_W+3}], s{S_A} offen offset:{1024*(f&3)} {wpol}".rstrip())
        a("s_nop 1")

    def rt_setup():
        a(f"s_bfe_u32 s{S_A}, s2, 0x20003")
        a(f"s_lshl_b32 s{S_A}, s{S_A}, 3")
        a(f"v_lshrrev_b32 v{V_T0}, 3, v{V_LANE}")
        a(f"v_add_u32 v{V_T0}, s{S_A}, v{V_T0}")
        a(f"v_lshlrev_b32 v{V_T0}, 13, v{V_T0}")
        a(f"v_and_b32 v{V_T2}, 7, v{V_LANE}")
        a(f"v_lshl_add_u32 v{V_T0}, v{V_T2}, 5, v{V_T0}")
        a(f"v_bfe_u32 v{V_T1}, v{V_LANE}, 1, 4")
        a(f"v_min_u32 v{V_T1}, 13, v{V_T1}")
        a(f"s_and_b32 s{S_A}, s2, 7")
        a(f"s_mul_i32 s{S_A}, s{S_A}, 14")
        a(f"v_add_u32 v{V_T1}, s{S_A}, v{V_T1}")
        a(f"v_mul_u32_u24 v{V_T1}, 1280, v{V_T1}")
        a(f"v_and_b32 v{V_T2}, 1, v{V_LANE}")
        a(f"v_lshl_add_u32 v{V_T1}, v{V_T2}, 5, v{V_T1}")
        a(f"s_cmp_eq_u32 s{S_QH}, 0")
        a("s_cselect_b64 vcc, -1, 0")
        a("s_nop 1")
        a(f"v_cndmask_b32 v{V_T0}, v{V_T1}, v{V_T0}, vcc")
    def dly(us, tag):
        a("s_memrealtime s[78:79]")
        a("s_waitcnt lgkmcnt(0)")
        a(f"s_add_u32 s77, s78, {us*100}")
        a.label(f"L_dl{tag}")
        a("s_sleep 4")
        a("s_memrealtime s[78:79]")
        a("s_waitcnt lgkmcnt(0)")
        a("s_sub_u32 s79, s78, s77")
        a("s_cmp_lt_i32 s79, 0")
        a(f"s_cbranch_scc1 L_dl{tag}")
    def st(k):
        if pst:
            a("s_memrealtime s[78:79]")
            a("s_memtime s[80:81]")
            a("s_waitcnt lgkmcnt(0)")
            a("s_mov_b32 m0, s77"); a("s_nop 0"); a("v_writelane_b32 v0, s78, m0")
            a("s_add_u32 m0, s77, 30"); a("s_nop 0"); a("v_writelane_b32 v0, s80, m0")
            a("s_add_u32 s77, s77, 1")
        if stamp:
            if st0:
                n = len(a.lines)
                a(f"s_cmp_ge_u32 s{S_T}, {1 if k < 3 else 2}")
                a(f"s_cbranch_scc1 L_st_{n}")
            a(f"s_memtime s[{72+2*k}:{73+2*k}]")
            if st0: a.label(f"L_st_{n}")
    if pst:
        a("s_memrealtime s[78:79]")
        a("s_memtime s[80:81]")
        a("s_waitcnt lgkmcnt(0)")
        a("v_mov_b32 v0, 0")
        a("v_writelane_b32 v0, s78, 0")
        a("v_writelane_b32 v0, s80, 30")
        a("s_mov_b32 s77, 1")
    if delay:
        a("s_bitcmp1_b32 s2, 0")
        a("s_cbranch_scc0 L_nodelay")
        a("s_memrealtime s[78:79]")
        a("s_waitcnt lgkmcnt(0)")
        a(f"s_add_u32 s77, s78, {delay*100}")
        a.label("L_dl")
        a("s_sleep 8")
        a("s_memrealtime s[78:79]")
        a("s_waitcnt lgkmcnt(0)")
        a("s_sub_u32 s79, s78, s77")
        a("s_cmp_lt_i32 s79, 0")
        a("s_cbranch_scc1 L_dl")
        a.label("L_nodelay")
    a.label("L_at_start")
    if trace:
        a("s_mov_b32 s77, 1")
        a(f"v_mov_b32 v{V_T3}, s64")
        a("s_memtime s[78:79]")
        a("s_waitcnt lgkmcnt(0)")
        a(f"v_cmp_eq_u32 vcc, s77, v{V_LANE}")
        a(f"v_mov_b32 v{V_T2}, s78")
        a("s_nop 1")
        a(f"v_cndmask_b32 v{V_T3}, v{V_T3}, v{V_T2}, vcc")
        a("s_add_u32 s77, s77, 1")
    a(f"s_mov_b32 s{S_T}, s{S_T0}")
    a(f"s_lshl_b32 s{S_DJ}, s{S_T0}, 5")
    a(f"s_add_u32 s{S_D}, s{S_T}, s{S_PRE}")
    qs_init(S_D, "pre")
    if roll:
        rt_setup()
        for sl in range(2):
            dma_setup(sl, "QP")
            for _ in range(8): dma_one(True)
        a(f"s_mov_b32 s{S_B}, s{S_QS}")
        for _ in range(6):
            a(f"buffer_load_dword v0, v{V_T0}, s[{S_QP}:{S_QP+3}], s{S_B} offen{' nt' if tnt else ''}")
            a(f"s_add_u32 s{S_B}, s{S_B}, s{S_QSTEP}")
        for sl in range(2, 4):
            dma_setup(sl, "QP")
            for _ in range(8): dma_one(True)
        a(f"s_waitcnt vmcnt(30) lgkmcnt(0)")
    else:
        for sl in range(4):
            dma_setup(sl, "QP")
            for _ in range(8): dma_one(True)
        if tlbw:
            a(f"v_lshlrev_b32 v{V_S+13}, 12, v{V_LANE}")
            a(f"buffer_load_dword v{V_S+12}, v{V_S+13}, s[{S_LD}:{S_LD+3}], 0 offen nt")
            if tlbw > 1:
                a(f"s_mov_b32 s{S_A}, 0x80000")
                a(f"buffer_load_dword v{V_S+12}, v{V_S+13}, s[{S_LD}:{S_LD+3}], s{S_A} offen nt")
        if bulk0 and touch:
            touch_init(S_D)
            for _ in range(5): touch_one()
        if cpf and cpflate:
            for k in range(cpf // 16):
                a(f"s_mov_b32 s76, {k*16384}")
                a("buffer_load_dword v104, v105, s[72:75], s76 offen")
        a(f"s_waitcnt vmcnt({(29 if (bulk0 and touch) else 24) + (cpf // 16 if cpflate else 0)}) lgkmcnt(0)")
    a("s_barrier")
    a.label("L_at_round")
    st(0)
    if roll: rt_setup()
    for l in range(8): wread(l, 0)
    for qt in range(7): bread(0, qt, 0)
    a.lds_wait_all()
    def qp_body(role):
        sfx = role or ""
        vns = {None: (22, 17, 18, 18, 18), "W": (16, 16, 16, 16, 16), "X": (16, 22, 28, 28, 28), "T": (16, 20, 20, 63, 63)}[role]
        nts = (6, 4, 4, 2)
        qp_stage(0, first=True, chk=True, after_store=True, vn=vns[0], role=role, ntouch=nts[0], sidx=0, code=("P", 0))
        qp_stage(1, after_store=True, vn=vns[1], role=role, ntouch=nts[1], sidx=1, code=("P", 1))
        qp_stage(2, after_store=True, vn=vns[2], role=role, ntouch=nts[2], sidx=2, code=("P", 2))
        qp_stage(3, vn=vns[3], role=role, ntouch=nts[3], sidx=3, code=("P", 3))
        a(f"s_cmp_lg_u32 s{S_WO}, 0")
        a(f"s_cbranch_scc1 L_at_nowo0{sfx}")
        a(f"s_mov_b32 s{S_WO}, 1")
        wo_issue(0)
        if roll: rt_setup()
        a.label(f"L_at_nowo0{sfx}")
        a(f"s_mov_b32 s{S_CNT}, 0")
        a.label(f"L_at_qploop{sfx}")
        a.lds_q = []
        for sm in range(4): qp_stage(sm, vn=vns[4], role=role, sidx=4+sm, code=("L", sm))
        a(f"s_add_u32 s{S_CNT}, s{S_CNT}, 1")
        a(f"s_cmp_lt_u32 s{S_CNT}, 3")
        a(f"s_cbranch_scc1 L_at_qploop{sfx}")
    if not roles:
        qp_body(None)
    else:
        a(f"s_cmp_eq_u32 s{S_WAVE}, 1")
        a("s_cbranch_scc1 L_at_qpX")
        a(f"s_cmp_eq_u32 s{S_WAVE}, 3")
        a("s_cbranch_scc1 L_at_qpT")
        qp_body("W")
        a("s_branch L_at_qpjoin")
        a.label("L_at_qpX")
        qp_body("X")
        a("s_branch L_at_qpjoin")
        a.label("L_at_qpT")
        a(f"s_bfe_u32 s{S_A}, s2, 0x20003")
        a(f"s_lshl_b32 s{S_A}, s{S_A}, 3")
        a(f"v_lshrrev_b32 v{V_T0}, 3, v{V_LANE}")
        a(f"v_add_u32 v{V_T0}, s{S_A}, v{V_T0}")
        a(f"v_lshlrev_b32 v{V_T0}, 13, v{V_T0}")
        a(f"v_and_b32 v{V_T1}, 7, v{V_LANE}")
        a(f"v_lshl_add_u32 v{V_T0}, v{V_T1}, 6, v{V_T0}")
        a(f"v_min_u32 v{V_T1}, 27, v{V_LANE}")
        a(f"s_and_b32 s{S_A}, s2, 7")
        a(f"s_mul_i32 s{S_B}, s{S_A}, 28")
        a(f"v_add_u32 v{V_T1}, s{S_B}, v{V_T1}")
        a(f"v_mul_u32_u24 v{V_T1}, 1280, v{V_T1}")
        a(f"s_lshl_b32 s{S_A}, s{S_A}, 10")
        a(f"s_lshl_b32 s{S_B}, s101, 9")
        a(f"s_add_u32 s98, s{S_A}, s{S_B}")
        a(f"s_add_u32 s98, s98, {4*32*8192}")
        a(f"s_bfe_u32 s{S_A}, s2, 0x40003")
        a(f"s_mul_i32 s99, s{S_A}, {224*1280}")
        a(f"s_add_u32 s99, s99, {4*64}")
        qp_body("T")
        a.label("L_at_qpjoin")
    a(f"s_cmp_lg_u32 s{S_PRE}, 0")
    a("s_cbranch_scc1 L_at_qptailB")
    for sm in range(4): qp_stage(sm, dma="KV", last=(sm == 3), vn=(18, 17, 16, 16)[sm], sidx=16+sm, code=("T", sm))
    a("s_branch L_at_qpepi")
    a.label("L_at_qptailB")
    qs_init(S_T)
    a.lds_q = []
    for sm in range(4): qp_stage(sm, dma="QP", last=(sm == 3), vn=18, nok=True, sidx=16+sm, code=("B", sm))
    a.label("L_at_qpepi")
    if qdelay: dly(qdelay, "q")
    st(1)
    if trace:
        a("s_cmp_lg_u32 s2, 5")
        a("s_cbranch_scc1 L_tr_skip")
        a(f"s_cmp_lg_u32 s{S_T}, 0")
        a("s_cbranch_scc1 L_tr_skip")
        a(f"s_cmp_lg_u32 s{S_WAVE}, 0")
        a("s_cbranch_scc1 L_tr_skip")
        a("s_mov_b32 s80, s46"); a("s_mov_b32 s81, s47"); a("s_mov_b32 s82, 256"); a("s_mov_b32 s83, 0x20000")
        a(f"v_lshlrev_b32 v{V_T2}, 2, v{V_LANE}")
        a(f"v_add_u32 v{V_T2}, 128, v{V_T2}")
        a(f"buffer_store_dword v{V_T3}, v{V_T2}, s[80:83], 0 offen")
        a.label("L_tr_skip")
    if defer: a("s_mov_b32 s98, 0x40000000")
    a(f"v_mov_b32 v{V_T2}, s{S_CS}")
    a(f"v_mov_b32 v{V_T3}, s{S_CS}")
    a("s_nop 6")
    TMP = V_S
    for T in range(4):
        if T < 2:
            base = lambda e, qt: V_OK + 28 * (2 * T + e) + 4 * qt
        else:
            base = lambda e, qt: V_OK + 28 * (2 * (T - 2) + e) + 4 * qt
            for e in range(2):
                for qt in range(7):
                    for r in range(4):
                        a(f"v_accvgpr_read_b32 v{base(e,qt)+r}, a{A_OS+28*(2*(T-2)+e)+4*qt+r}")
        for e in range(2):
            for qt in range(7):
                o = base(e, qt)
                for h in range(2):
                    a(f"v_pk_mul_f32 {vr(o+2*h,2)}, {vr(o+2*h,2)}, {vr(V_T2,2)}")
        pk = lambda qt: TMP + 28 * (T & 1) + 4 * qt
        for qt in range(7):
            oe = base(0, qt); oo = base(1, qt); p = pk(qt)
            a(f"v_cvt_pk_bf16_f32 v{p}, v{oe}, v{oe+1}")
            a(f"v_cvt_pk_bf16_f32 v{p+1}, v{oe+2}, v{oe+3}")
            a(f"v_cvt_pk_bf16_f32 v{p+2}, v{oo}, v{oo+1}")
            a(f"v_cvt_pk_bf16_f32 v{p+3}, v{oo+2}, v{oo+3}")
        a("s_nop 1")
        for qt in range(7):
            p = pk(qt)
            a(f"v_permlane16_swap_b32 v{p}, v{p+2}")
            a(f"v_permlane16_swap_b32 v{p+1}, v{p+3}")
        for qt in range(7):
            for r in range(4):
                a(f"v_accvgpr_write_b32 a{A_Q+16*qt+4*T+r}, v{pk(qt)+r}")
    a(f"s_cmp_eq_u32 s{S_PRE}, 0")
    a("s_cbranch_scc1 L_at_nostash")
    a(f"s_mov_b32 s{S_PRE}, 0")
    qstash_off()
    for i in range(7):
        for s_ in range(4):
            a(f"buffer_store_dwordx4 {ar(A_Q+16*i+4*s_,4)}, v{V_T2}, s[{S_W}:{S_W+3}], s{S_C} offen offset:{1024*s_} {qpol}".rstrip())
        if i < 6: a(f"s_add_u32 s{S_C}, s{S_C}, 4096")
    a(f"s_mov_b32 s{S_AS}, 3")
    a("s_branch L_at_round")
    a.label("L_at_nostash")
    a(f"s_cmp_lg_u32 s{S_MP}, 0")
    a("s_cbranch_scc1 L_at_maxpass")
    a.label("L_at_pre")
    a(f"s_cmp_lg_u32 s{S_WO}, 1")
    a("s_cbranch_scc1 L_at_nowo1")
    a(f"s_mov_b32 s{S_WO}, 2")
    wo_finish(0)
    wo_issue(1)
    a.label("L_at_nowo1")
    st(2)
    a.lds_q = ["K"]
    state["n"] = 0
    z = []
    for l in range(8):
        for r in range(4):
            z.append(f"v_mov_b32 v{V_OK+28*l+24+r}, 0" if l < 4 else f"v_accvgpr_write_b32 a{A_OS+28*(l-4)+24+r}, 0")
    if ones: z += [f"v_accvgpr_write_b32 a{A_LS+24+r}, 0" for r in range(4)]
    emit(qk_items(0, 0, True, None), z[:16])
    for o in z[16:]: a(o)
    step(0, first=True, dyn=True)
    a(f"s_mov_b32 s{S_CNT}, 0")
    if align:
        a.lines.append(".p2align 6")
        if align == 2: a("s_nop 0")
    a.label("L_at_loop")
    q0 = list(a.lds_q)
    state["inat"] = True
    for jm in (1, 2, 3, 0): step(jm, dyn=(jm in (1, 2)))
    state["inat"] = False
    assert q0 == a.lds_q, (q0, a.lds_q)
    if pstl:
        a("s_memrealtime s[78:79]")
        a("s_memtime s[80:81]")
        a("s_waitcnt lgkmcnt(0)")
        a("s_mov_b32 s76, m0")
        a("s_mov_b32 m0, s77"); a("s_nop 0"); a("v_writelane_b32 v0, s78, m0")
        a("s_add_u32 m0, s77, 30"); a("s_nop 0"); a("v_writelane_b32 v0, s80, m0")
        a("s_add_u32 s77, s77, 1")
        a("s_mov_b32 m0, s76")
    a(f"s_add_u32 s{S_CNT}, s{S_CNT}, 1")
    a(f"s_cmp_lt_u32 s{S_CNT}, 6")
    a("s_cbranch_scc1 L_at_loop")
    a(f"s_add_u32 s{S_T}, s{S_T}, 1")
    touch_init(S_T)
    step(1, nt_=3); step(2, nt_=2); step(3, tr_=True)
    if strace: a("s_memtime s[62:63]")
    qs_init(S_T)
    if not early: step(0)
    a(f"s_cmp_lg_u32 s{S_TY}, 0")
    a("s_cbranch_scc1 L_at_atailB")
    n0 = state["n"]; q0 = list(a.lds_q)
    if early: step(0, dma="QP")
    step(1, dma="QP"); step(2, dma="QP"); step(3, dma="QP", last=True)
    a("s_branch L_at_aepi")
    a.label("L_at_atailB")
    state["n"] = n0; a.lds_q = q0
    if early: step(0)
    step(1); step(2); step(3, last=True)
    a.label("L_at_aepi")
    if adelay: dly(adelay, "a")
    a.lds_q = ["V"]
    st(3)
    E = V_S
    red = [f"v_add_f32 v{V_L+2*i}, v{V_L+2*i}, v{V_L+2*i+1}" for i in range(7)]
    red += [f"v_mov_b32 v{E+i}, v{V_L+2*i}" for i in range(7)]
    red += [f"v_permlane16_swap_b32 v{V_L+2*i}, v{E+i}" for i in range(7)]
    red += [f"v_add_f32 v{V_L+2*i}, v{V_L+2*i}, v{E+i}" for i in range(7)]
    red += [f"v_mov_b32 v{E+i}, v{V_L+2*i}" for i in range(7)]
    red += [f"v_permlane32_swap_b32 v{V_L+2*i}, v{E+i}" for i in range(7)]
    red += [f"v_add_f32 v{V_L+2*i}, v{V_L+2*i}, v{E+i}" for i in range(7)]
    a("s_nop 1")
    if ones:
        emit(pv_items(6, 1, False, None), [])
        a("s_nop 7")
        for i in range(7): a(f"v_accvgpr_read_b32 v{V_L+2*i}, a{A_LS+4*i}")
    else:
        emit(pv_items(6, 1, False, None), red)
    for i in range(7): a(f"v_rcp_f32 v{V_CI+4*i}, v{V_L+2*i}")
    a(f"v_add_f32 v{E+2}, v{V_L}, v{V_L+2}")
    a(f"v_add_f32 v{E+3}, v{V_L+4}, v{V_L+6}")
    a(f"v_add_f32 v{E+4}, v{V_L+8}, v{V_L+10}")
    a(f"v_add_f32 v{E+2}, v{E+2}, v{V_L+12}")
    a(f"v_add_f32 v{E+3}, v{E+3}, v{E+4}")
    a(f"v_add_f32 v{E+2}, v{E+2}, v{E+3}")
    a(f"v_cmp_nge_f32 vcc, s{S_THR}, v{E+2}")
    for i in range(7): a(f"v_mov_b32 v{V_L+2*i}, 0xff800000")
    a("s_cmp_eq_u64 vcc, 0")
    a("s_cbranch_scc1 L_at_noflag")
    if nofb: a("s_branch L_at_noflag")
    a(f"s_lshl_b32 s{S_B}, s{S_T}, 2")
    a(f"s_add_u32 s{S_B}, s{S_B}, {LDS_FLAG-4}")
    a(f"v_mov_b32 v{E+2}, s{S_B}")
    a(f"v_mov_b32 v{E+3}, 1")
    a(f"ds_write_b32 v{E+2}, v{E+3}")
    a.label("L_at_noflag")
    if rflip:
        a(f"s_sub_u32 s{S_D}, s{S_T}, 1")
        a(f"s_mul_i32 s{S_D}, s{S_D}, s99")
        a(f"s_add_u32 s{S_D}, s{S_D}, s{S_OOFF}")
    else:
        a(f"s_mul_i32 s{S_D}, s{S_T}, {2*PAIRB}")
        a(f"s_add_u32 s{S_D}, s{S_D}, s{S_OOFF}")
        a(f"s_sub_u32 s{S_D}, s{S_D}, {2*PAIRB}")
    if defer:
        a(f"s_cmp_lt_u32 s{S_T}, 2")
        a(f"s_cselect_b32 s99, 1, 0")
        a(f"s_cmp_eq_u32 s{S_TY}, 0")
        a(f"s_cselect_b32 s99, s99, 0")
        a(f"s_cmp_lg_u32 s99, 0")
        a(f"s_cselect_b32 s98, s{S_D}, s98")
    for T in range(4):
        if T < 2:
            base = lambda e, qt: V_OK + 28 * (2 * T + e) + 4 * qt
        else:
            base = lambda e, qt: V_OK + 28 * (2 * (T - 2) + e) + 4 * qt
            for e in range(2):
                for qt in range(7):
                    for r in range(4):
                        a(f"v_accvgpr_read_b32 v{base(e,qt)+r}, a{A_OS+28*(2*(T-2)+e)+4*qt+r}")
        for e in range(2):
            for qt in range(7):
                o = base(e, qt)
                for h in range(2):
                    a(f"v_pk_mul_f32 {vr(o+2*h,2)}, {vr(o+2*h,2)}, {vr(V_CI+4*qt,2)} op_sel_hi:[1,0]")
        pk = lambda qt: V_S + 28 * (T & 1) + 4 * qt
        for qt in range(7):
            oe = base(0, qt); oo = base(1, qt); p = pk(qt)
            a(f"v_cvt_pk_bf16_f32 v{p}, v{oe}, v{oe+1}")
            a(f"v_cvt_pk_bf16_f32 v{p+1}, v{oe+2}, v{oe+3}")
            a(f"v_cvt_pk_bf16_f32 v{p+2}, v{oo}, v{oo+1}")
            a(f"v_cvt_pk_bf16_f32 v{p+3}, v{oo+2}, v{oo+3}")
        a("s_nop 1")
        for qt in range(7):
            p = pk(qt)
            a(f"v_permlane16_swap_b32 v{p}, v{p+2}")
            a(f"v_permlane16_swap_b32 v{p+1}, v{p+3}")
        if defer:
            a(f"s_cmp_lg_u32 s99, 0")
            a(f"s_cbranch_scc1 L_at_dfr{T}")
        a(f"s_mov_b32 s{S_A}, s{S_D}")
        for qt in range(7):
            if not nost: a(f"buffer_store_dwordx4 {vr(pk(qt),4)}, v{V_XA}, s[{S_W}:{S_W+3}], s{S_A} offen offset:{1024*T} {stpol}".rstrip())
            if dupst:
                a(f"s_sub_u32 s{S_B}, s{S_A}, {WS_O - 30000000}")
                a(f"buffer_store_dwordx4 {vr(pk(qt),4)}, v{V_XA}, s[72:75], s{S_B} offen offset:{1024*T}")
            if qt < 6: a(f"s_add_u32 s{S_A}, s{S_A}, 4096")
        if defer:
            a(f"s_branch L_at_dfj{T}")
            a.label(f"L_at_dfr{T}")
            for qt in range(7):
                for r in range(4):
                    a(f"v_accvgpr_write_b32 a{A_Q+16*qt+4*T+r}, v{pk(qt)+r}")
            a.label(f"L_at_dfj{T}")
    a("s_nop 1")
    a(f"s_cmp_lg_u32 s{S_WO}, 2")
    a("s_cbranch_scc1 L_at_nowo2")
    a(f"s_mov_b32 s{S_WO}, 3")
    wo_finish(1)
    a.label("L_at_nowo2")
    a(f"s_mov_b32 s{S_AS}, 3")
    if defer:
        a("s_cmp_lg_u32 s99, 0")
        a(f"s_cselect_b32 s{S_AS}, 0, 3")
    st(4)
    a.lds_q = []
    a(f"s_cmp_ge_u32 s{S_T}, 2")
    a("s_cbranch_scc1 L_at_fin")
    a(f"s_cmp_eq_u32 s{S_TY}, 0")
    a("s_cbranch_scc1 L_at_round")
    a(f"s_waitcnt vmcnt({56 if dupst else 28})")
    a("s_branch L_at_pre")
    a.label("L_at_fin")
    a("s_waitcnt lgkmcnt(0)")
    a("s_barrier")
    flagcheck()
    if pst:
        a("s_memrealtime s[78:79]")
        a("s_memtime s[80:81]")
        a("s_waitcnt lgkmcnt(0)")
        a("s_mov_b32 m0, s77"); a("s_nop 0"); a("v_writelane_b32 v0, s78, m0")
        a("s_add_u32 m0, s77, 30"); a("s_nop 0"); a("v_writelane_b32 v0, s80, m0")
        a("s_getreg_b32 s62, hwreg(HW_REG_XCC_ID)")
        a("v_writelane_b32 v0, s62, 63")
        a(f"v_writelane_b32 v0, s{S_TY}, 62")
        a(f"s_cmp_lg_u32 s{S_WAVE}, 0")
        a("s_cbranch_scc1 L_at_end")
        a("s_lshl_b32 s62, s2, 8"); a("s_add_u32 s62, s62, 50000000")
        a(f"v_lshlrev_b32 v2, 2, v{V_LANE}")
        a(f"buffer_store_dword v0, v2, s[{S_W}:{S_W+3}], s62 offen")
    if stamp:
        a("s_memtime s[56:57]")
        a("s_memrealtime s[58:59]")
        a("s_waitcnt lgkmcnt(0)")
        if allst:
            a("v_mov_b32 v2, s66"); a("v_mov_b32 v3, s58")
            a("s_sub_u32 s62, s56, s64"); a("v_mov_b32 v4, s62")
            a("s_getreg_b32 s62, hwreg(HW_REG_XCC_ID)"); a("v_mov_b32 v5, s62")
            a("s_lshl_b32 s62, s2, 4"); a("s_add_u32 s62, s62, 50000000"); a("v_mov_b32 v6, s62")
            a(f"buffer_store_dwordx4 v[2:5], v6, s[{S_W}:{S_W+3}], 0 offen")
        a(f"s_cmp_lg_u32 s2, {stwg}")
        a("s_cbranch_scc1 L_at_end")
        a("s_sub_u32 s56, s56, s64")
        a("s_sub_u32 s58, s58, s66")
        a("s_mov_b32 s84, s46")
        a("s_mov_b32 s85, s47")
        a("s_mov_b32 s86, 256")
        a("s_mov_b32 s87, 0x20000")
        a("v_mov_b32 v2, s56")
        a("v_mov_b32 v3, s58")
        a(f"s_lshl_b32 s62, s{S_WAVE}, 3")
        a("v_mov_b32 v4, s62")
        a("buffer_store_dwordx2 v[2:3], v4, s[84:87], 0 offen")
        if strace:
            pr = [36, 38, 40, 42, 56, 58, 60, 62]
            for i in range(7):
                a(f"s_sub_u32 s78, s{pr[i+1]}, s{pr[i]}")
                a("v_mov_b32 v2, s78")
                a(f"v_mov_b32 v4, {160+4*i}")
                a("buffer_store_dword v2, v4, s[84:87], 0 offen")
        a("s_sub_u32 s62, s72, s64")
        a("v_mov_b32 v2, s62")
        a(f"v_mov_b32 v4, {DBO+4*5}")
        a("buffer_store_dword v2, v4, s[84:87], 0 offen")
        for k in range(1, 5):
            a(f"s_sub_u32 s62, s{72+2*k}, s{70+2*k}")
            a("v_mov_b32 v2, s62")
            a(f"v_mov_b32 v4, {DBO+4*k}")
            a("buffer_store_dword v2, v4, s[84:87], 0 offen")
    a("s_branch L_at_end")

    a.label("L_at_fallback")
    a(f"s_sub_u32 s{S_T0}, s{S_T}, 1")
    a(f"s_mov_b32 s{S_NOFB}, s{S_T0}")
    a(f"s_mov_b32 s{S_MP}, 1")
    a(f"s_mov_b32 s{S_TY}, 0")
    a(f"s_mov_b32 s{S_PRE}, 0")
    a(f"s_mov_b32 s{S_AS}, 0")
    if defer: a("s_mov_b32 s98, 0x40000000")
    for i in range(7): a(f"v_mov_b32 v{V_L+2*i}, 0xff800000")
    a("s_waitcnt vmcnt(0) lgkmcnt(0)")
    a("s_barrier")
    a("s_branch L_at_start")
    a.label("L_at_maxpass")
    a(f"s_mov_b32 s{S_MP}, 0")
    a("s_waitcnt lgkmcnt(0)")
    a(f"v_and_b32 v{V_T0}, 15, v{V_LANE}")
    a(f"v_lshlrev_b32 v{V_T0}, 8, v{V_T0}")
    a(f"v_bfe_u32 v{V_T1}, v{V_LANE}, 4, 1")
    a(f"v_lshl_add_u32 v{V_T0}, v{V_T1}, 5, v{V_T0}")
    a(f"v_bfe_u32 v{V_T1}, v{V_LANE}, 5, 1")
    a(f"v_lshl_add_u32 v{V_T2}, v{V_T1}, 4, v{V_T0}")
    a(f"v_add_u32 v{V_T3}, 4096, v{V_T2}")
    a(f"s_lshl_b32 s{S_B}, s{S_T}, 19")
    if rflip: a(f"s_xor_b32 s{S_B}, s{S_B}, s101")
    a(f"s_mov_b32 s{S_CNT}, 0")
    a.label("L_at_mp")
    for f in range(8):
        a(f"buffer_load_dwordx4 {vr(V_VF+4*f,4)}, v{V_T2 + (f>>2)}, s[{S_K}:{S_K+3}], s{S_B} offen offset:{64*(f&3)}")
    a("s_waitcnt vmcnt(0)")
    for i in range(7):
        for f in range(8):
            kt, s = f >> 2, f & 3
            D = vr(V_S + 4 * kt, 4)
            a(f"{MFMA} {D}, {vr(V_VF+4*f,4)}, {ar(A_Q+16*i+4*s,4)}, {'0' if s == 0 else D}")
        a("s_nop 9")
        for r in range(0, 8, 2):
            a(f"v_max3_f32 v{V_L+2*i}, v{V_S+r}, v{V_S+r+1}, v{V_L+2*i}")
        a("s_nop 3")
    a(f"s_add_u32 s{S_B}, s{S_B}, 8192")
    a(f"s_add_u32 s{S_CNT}, s{S_CNT}, 1")
    a(f"s_cmp_lt_u32 s{S_CNT}, 32")
    a("s_cbranch_scc1 L_at_mp")
    a("s_branch L_at_pre")
    a.label("L_at_end")
    a("s_endpgm")
    return a.text()

if __name__ == "__main__":
    import sys
    name = "fused_kernel"
    opts = dict(x.split("=") for x in sys.argv[2:])
    opts = {k: bool(int(v)) for k, v in opts.items()}
    body = gen_fused(name, **opts)
    out = f"; @launch kernel={name} grid=(256,1,1) block=(256,1,1) lds={LDS_BYTES}\n"
    out += '.amdgcn_target "amdgcn-amd-amdhsa--gfx950"\n.text\n' + kernel_header(name) + body
    out += '.section .rodata,"a"\n.p2align 6\n' + kernel_desc(name, 512, accum=256)
    open(sys.argv[1], "w").write(out)
```

```python
from gen_common import *
NQB = 3584 * 4096 * 2
WS_O = 2 * NQB
WS_W = 4 * NQB
WS_BYTES = 4 * NQB + 2 * 4096 * 640 * 2
PAIRB = 224 * 128 * 2
LDS_BYTES = 163840
BUF = 10240
MFMA = "v_mfma_f32_16x16x32_bf16"
V_LANE, V_T0, V_T1, V_T2, V_T3, V_LIN, V_AE, V_AO, V_ST = 1, 2, 3, 4, 5, 6, 7, 8, 9
V_D = 10
V_ACC = 20
V_A = 44
V_B = 84
V_R = 196
S_O, S_WO, S_OUT = 4, 8, 12
S_WAVE, S_CNT, S_A, S_B, S_C, S_BOFF, S_WOFF, S_LDB = 20, 21, 22, 23, 24, 25, 26, 27
def ar(a, n=1):
    return f"a{a}" if n == 1 else f"a[{a}:{a+n-1}]"
def acc(nt, qt):
    i = nt * 7 + qt
    return ar(4 * i, 4) if i < 64 else vr(V_ACC + 4 * (i - 64), 4)

def gen_op(name, stamp=False, ont=False, wnt=False, noo=False, now=False, wsbase=0, skipb=False, skipd=False, pst=False, cpf=0, opol='', oalias=0, bdma=False, walias=0):
    a = Asm()
    a("s_cmp_ge_u32 s2, 256")
    a("s_cbranch_scc1 L_op_end")
    if cpf:
        a("s_getpc_b64 s[72:73]")
        a.label("L_pc1")
        a(f"s_mov_b32 s74, L_code_end - L_pc1")
        a("s_mov_b32 s75, 0x20000")
        a("v_lshlrev_b32 v201, 6, v0")
        for k in range(cpf // 16):
            a(f"s_mov_b32 s76, {k*16384}")
            a("buffer_load_dword v200, v201, s[72:75], s76 offen")
    def pstamp(i):
        if pst:
            a("s_memrealtime s[78:79]")
            a("s_memtime s[80:81]")
            a("s_waitcnt lgkmcnt(0)")
            a(f"v_writelane_b32 v252, s78, {i}")
            a(f"v_writelane_b32 v252, s80, {16+i}")
    if pst: a("v_mov_b32 v252, 0")
    pstamp(0)
    a("s_load_dwordx2 s[36:37], s[0:1], 32")
    a("s_load_dwordx2 s[38:39], s[0:1], 72")
    a("s_load_dwordx2 s[40:41], s[0:1], 80")
    a("s_load_dwordx2 s[44:45], s[0:1], 96")
    a(f"v_and_b32 v{V_LANE}, 63, v0")
    a(f"v_lshrrev_b32 v{V_T0}, 6, v0")
    a("s_nop 0")
    a(f"v_readfirstlane_b32 s{S_WAVE}, v{V_T0}")
    a("s_and_b32 s3, s2, 7")
    a("s_lshl_b32 s3, s3, 3")
    a("s_lshr_b32 s30, s2, 5")
    a("s_add_u32 s3, s3, s30")
    a("s_bfe_u32 s31, s2, 0x20003")
    a("s_waitcnt lgkmcnt(0)")
    a("s_cmp_ge_u32 s3, 32")
    a(f"s_add_u32 s44, s44, {wsbase}")
    a(f"s_addc_u32 s45, s45, 0")
    a(f"s_mov_b32 s{S_WO}, s44")
    a(f"s_mov_b32 s{S_WO+1}, s45")
    a(f"s_mov_b32 s{S_WO+2}, {0 if now else WS_BYTES}")
    a(f"s_mov_b32 s{S_WO+3}, 0x20000")
    a(f"s_mov_b32 s{S_O}, s44")
    a(f"s_mov_b32 s{S_O+1}, s45")
    a(f"s_mov_b32 s{S_O+2}, {0 if noo else WS_BYTES}")
    a(f"s_mov_b32 s{S_O+3}, 0x20000")
    a(f"s_mov_b32 s{S_OUT}, s40")
    a(f"s_mov_b32 s{S_OUT+1}, s41")
    a(f"s_mov_b32 s{S_OUT+2}, {3584*1280*2}")
    a(f"s_mov_b32 s{S_OUT+3}, 0x20000")
    a(f"s_lshr_b32 s{S_A}, s3, 1")
    a(f"s_mul_i32 s{S_A}, s{S_A}, {32*PAIRB}")
    a(f"s_and_b32 s{S_B}, s3, 1")
    a(f"s_mul_i32 s{S_B}, s{S_B}, {7*4096}")
    a(f"s_add_u32 s{S_A}, s{S_A}, s{S_B}")
    a(f"s_lshl_b32 s{S_B}, s{S_WAVE}, 10")
    a(f"s_add_u32 s{S_A}, s{S_A}, s{S_B}")
    a(f"s_add_u32 s{S_BOFF}, s{S_A}, {WS_O}")
    if oalias == 1:
        a(f"s_lshl_b32 s{S_B}, s{S_WAVE}, 10"); a(f"s_add_u32 s{S_BOFF}, s{S_B}, {WS_O}")
    a(f"s_lshr_b32 s{S_A}, s3, 5")
    a(f"s_lshl_b32 s{S_A}, s{S_A}, 7")
    a(f"s_add_u32 s{S_A}, s{S_A}, s{S_WAVE}")
    a(f"s_mul_i32 s{S_A}, s{S_A}, 40960")
    a(f"s_mul_i32 s{S_B}, s31, 10240")
    a(f"s_add_u32 s{S_A}, s{S_A}, s{S_B}")
    a(f"s_add_u32 s{S_WOFF}, s{S_A}, {WS_W}")
    a(f"s_mul_i32 s{S_LDB}, s{S_WAVE}, {4*BUF}")
    if stamp:
        a("s_memtime s[64:65]")
        a("s_memrealtime s[66:67]")
        a("s_load_dwordx2 s[46:47], s[0:1], 88")
        a("s_waitcnt lgkmcnt(0)")
    a(f"v_lshlrev_b32 v{V_LIN}, 4, v{V_LANE}")
    a(f"v_add_u32 v{V_AE}, s{S_LDB}, v{V_LIN}")
    a(f"v_bfe_u32 v{V_T2}, v{V_LANE}, 4, 1")
    a(f"v_lshlrev_b32 v{V_T2}, 5, v{V_T2}")
    a(f"v_and_b32 v{V_T0}, 15, v{V_LANE}")
    a(f"v_mul_u32_u24 v{V_T0}, 2560, v{V_T0}")
    a(f"v_add_u32 v{V_T0}, v{V_T0}, v{V_T2}")
    a(f"v_bfe_u32 v{V_T2}, v{V_LANE}, 5, 1")
    a(f"v_lshl_add_u32 v{V_ST}, v{V_T2}, 4, v{V_T0}")

    def bloads(buf):
        ls = []
        ls.append(f"s_mov_b32 s{S_A}, s{S_BOFF}")
        for qt in range(7):
            if bdma:
                ls.append(f"s_add_u32 m0, s{S_LDB}, {buf*BUF}")
                ls.append(f"buffer_load_dwordx4 v{V_LIN}, s[{S_O}:{S_O+3}], s{S_A} offen lds")
            elif not skipb: ls.append(f"buffer_load_dwordx4 {vr(V_B+28*buf+4*qt,4)}, v{V_LIN}, s[{S_O}:{S_O+3}], s{S_A} offen{' nt' if ont else ''}")
            if qt < 6: ls.append(f"s_add_u32 s{S_A}, s{S_A}, 4096")
        ls.append(f"s_add_u32 s{S_BOFF}, s{S_BOFF}, {PAIRB}")
        return ls
    def dmas(buf):
        ls = []
        for i in range(10):
            if i & 3 == 0:
                ls.append(f"s_add_u32 m0, s{S_LDB}, {buf*BUF+4096*(i>>2)}")
                if i == 0: ls.append(f"s_mov_b32 s{S_B}, s{S_WOFF}")
                else: ls.append(f"s_add_u32 s{S_B}, s{S_B}, 4096")
            if not skipd: ls.append(f"buffer_load_dwordx4 v{V_LIN}, s[{S_WO}:{S_WO+3}], s{S_B} offen offset:{1024*(i&3)}{' nt' if wnt else ''} lds")
        ls.append(f"s_add_u32 s{S_WOFF}, s{S_WOFF}, {4*40960}")
        return ls
    def areads(nt, buf):
        return [f"ds_read_b128 {vr(V_A+4*nt,4)}, v{V_AE} offset:{buf*BUF+nt*1024}"]

    for ln in dmas(0): a(ln)
    for ln in bloads(0): a(ln)
    for ln in dmas(1): a(ln)
    a(f"s_lshl_b32 s{S_A}, s{S_WAVE}, 11")
    a(f"v_add_u32 v{V_T0}, s{S_A}, v{V_LIN}")
    a(f"v_add_u32 v{V_T1}, {40960}, v{V_T0}")
    a(f"v_add_u32 v{V_T2}, {2*40960}, v{V_T0}")
    a(f"v_add_u32 v{V_T3}, {3*40960}, v{V_T0}")
    a(f"s_and_b32 s{S_A}, s3, 31")
    a(f"s_mul_i32 s{S_A}, s{S_A}, {112*2560}")
    a(f"s_lshr_b32 s32, s3, 5")
    a(f"s_mul_i32 s32, s32, 1280")
    a(f"s_add_u32 s{S_A}, s{S_A}, s32")
    a(f"s_mul_i32 s32, s31, 320")
    a(f"s_add_u32 s{S_C}, s{S_A}, s32")
    a("s_waitcnt vmcnt(17)")
    for nt in range(10):
        for ln in areads(nt, 0): a(ln)

    def uwrite(u, ul):
        P, qt = u // 7, u % 7
        return [f"ds_write_b128 v{V_AE}, {acc(2*P+e, qt)} offset:{ul*2048+1024*e}" for e in range(2)]

    def iteration(im, first=False, groups=None, vn=34, last=False):
        a(f"s_waitcnt vmcnt({vn}) lgkmcnt(7)")
        if groups is None: groups = [("B", (im + 3) & 3), ("D", im)]
        fq = []
        for kind, buf in groups:
            fq += [(1 if kind == "B" else 15, ln) for ln in (bloads(buf) if kind == "B" else dmas(buf))]
        if last:
            for u in range(20):
                P, qt = u // 7, u % 7
                for ln in uwrite(u, u): fq.append(((2 * P + 1) * 7 + qt + 1 + 8, ln))
        j = 0
        for nt in range(10):
            for qt in range(7):
                if nt == 2 and qt == 0: a(f"s_waitcnt lgkmcnt({0 if last else 2})")
                c = "0" if first else acc(nt, qt)
                a(f"{MFMA} {acc(nt, qt)}, {vr(V_A+4*nt,4)}, {vr(V_B+28*im+4*qt,4)}, {c}")
                j += 1
                if qt == 6 and not last:
                    for ln in areads(nt, (im + 1) & 3): a(ln)
                elif fq and fq[0][0] <= j:
                    a(fq.pop(0)[1])
        for _, ln in fq: a(ln)
    if stamp: a("s_memtime s[68:69]")
    pstamp(1)
    iteration(0, first=True, groups=[("B", 1), ("D", 2), ("B", 2)], vn=0)
    iteration(1, groups=[("D", 3), ("B", 3), ("D", 0)], vn=7)
    iteration(2, groups=[("B", 0), ("D", 1), ("B", 1)], vn=17)
    iteration(3, groups=[("D", 2), ("B", 2), ("D", 3)], vn=24)
    a(f"s_mov_b32 s{S_CNT}, 0")
    a.label("L_op_loop")
    for im in range(4): iteration(im)
    a(f"s_add_u32 s{S_CNT}, s{S_CNT}, 1")
    a(f"s_cmp_lt_u32 s{S_CNT}, 6")
    a("s_cbranch_scc1 L_op_loop")
    iteration(0, groups=[("B", 3)])
    iteration(1, groups=[], vn=24)
    iteration(2, groups=[], vn=7)
    iteration(3, groups=[], vn=0, last=True)
    if stamp: a("s_memtime s[70:71]")
    pstamp(2)
    R0 = V_A
    def rreads(nk):
        for k in range(nk):
            for src in range(4):
                va = V_T0 + src
                for e in range(2):
                    a(f"ds_read_b128 {vr(R0+32*k+8*src+4*e,4)}, v{va} offset:{k*8192+1024*e}")
    def rproc(k, ubase, nunits, tag):
        R = R0 + 32 * k
        ls = []
        for h in range(4):
            ls.append(f"v_pk_add_f32 {vr(R+2*h,2)}, {vr(R+2*h,2)}, {vr(R+8+2*h,2)}")
            ls.append(f"v_pk_add_f32 {vr(R+16+2*h,2)}, {vr(R+16+2*h,2)}, {vr(R+24+2*h,2)}")
        for h in range(4):
            ls.append(f"v_pk_add_f32 {vr(R+2*h,2)}, {vr(R+2*h,2)}, {vr(R+16+2*h,2)}")
        for h in range(4):
            ls.append(f"v_cvt_pk_bf16_f32 v{R+8+h}, v{R+2*h}, v{R+2*h+1}")
        ls.append(f"s_add_u32 s{S_A}, s{S_WAVE}, {ubase+4*k}")
        ls.append(f"s_mul_i32 s{S_B}, s{S_A}, 9363")
        ls.append(f"s_lshr_b32 s{S_B}, s{S_B}, 16")
        ls.append(f"v_permlane16_swap_b32 v{R+8}, v{R+10}")
        ls.append(f"v_permlane16_swap_b32 v{R+9}, v{R+11}")
        ls.append(f"s_mul_i32 s30, s{S_B}, 7")
        ls.append(f"s_sub_u32 s30, s{S_A}, s30")
        ls.append(f"s_mul_i32 s30, s30, {16*2560}")
        ls.append(f"s_lshl_b32 s{S_B}, s{S_B}, 6")
        ls.append(f"s_add_u32 s30, s30, s{S_B}")
        ls.append(f"s_add_u32 s30, s30, s{S_C}")
        if 4 * k + 3 >= nunits:
            ls.append(f"s_cmp_ge_u32 s{S_A}, {ubase+nunits}")
            ls.append(f"s_cselect_b32 s{S_B}, 0x40000000, 0")
            ls.append(f"s_add_u32 s30, s30, s{S_B}")
        ls.append(f"buffer_store_dwordx4 {vr(R+8,4)}, v{V_ST}, s[{S_OUT}:{S_OUT+3}], s30 offen {opol}".rstrip())
        return ls
    a("s_waitcnt lgkmcnt(0)")
    a("s_barrier")
    rreads(5)
    a("s_waitcnt lgkmcnt(0)")
    a("s_barrier")
    wr = []
    for u in range(20, 35): wr += uwrite(u, u - 20)
    pr = []
    for k in range(5): pr += rproc(k, 0, 20, "a")
    step = max(1, len(pr) // len(wr))
    for i, ln in enumerate(pr):
        if i % step == 0 and wr: a(wr.pop(0))
        a(ln)
    for ln in wr: a(ln)
    a("s_waitcnt lgkmcnt(0)")
    a("s_barrier")
    rreads(4)
    for k in range(4):
        a(f"s_waitcnt lgkmcnt({min(15, 8*(3-k))})")
        for ln in rproc(k, 20, 15, "b"): a(ln)
    if pst:
        pstamp(3)
        a("s_getreg_b32 s62, hwreg(HW_REG_XCC_ID)")
        a("v_writelane_b32 v252, s62, 63")
        a(f"s_cmp_lg_u32 s{S_WAVE}, 0")
        a("s_cbranch_scc1 L_op_end")
        a("s_lshl_b32 s62, s2, 8"); a("s_add_u32 s62, s62, 50065536")
        a(f"v_lshlrev_b32 v2, 2, v{V_LANE}")
        a("s_mov_b32 s72, s44"); a("s_mov_b32 s73, s45"); a(f"s_mov_b32 s74, {WS_BYTES}"); a("s_mov_b32 s75, 0x20000")
        a(f"buffer_store_dword v252, v2, s[72:75], s62 offen")
    if stamp:
        a("s_memtime s[80:81]")
        a("s_memrealtime s[82:83]")
        a("s_waitcnt lgkmcnt(0)")
        a("s_cmp_lg_u32 s2, 5")
        a("s_cbranch_scc1 L_op_end")
        a("s_sub_u32 s72, s80, s70")
        a("s_sub_u32 s70, s70, s68")
        a("s_sub_u32 s68, s68, s64")
        a("s_sub_u32 s80, s80, s64")
        a("s_sub_u32 s82, s82, s66")
        a("s_mov_b32 s84, s46"); a("s_mov_b32 s85, s47"); a("s_mov_b32 s86, 256"); a("s_mov_b32 s87, 0x20000")
        a("v_mov_b32 v2, s80"); a("v_mov_b32 v3, s82")
        a(f"s_lshl_b32 s78, s{S_WAVE}, 3")
        a("v_mov_b32 v4, s78")
        a("buffer_store_dwordx2 v[2:3], v4, s[84:87], 0 offen")
        for k, r in enumerate((68, 70, 72)):
            a(f"v_mov_b32 v2, s{r}"); a(f"v_mov_b32 v4, {68+4*k}")
            a("buffer_store_dword v2, v4, s[84:87], 0 offen")
    a.label("L_op_end")
    a("s_endpgm")
    return a.text()

if __name__ == "__main__":
    import sys
    name = "op_kernel"
    opts = dict(x.split("=") for x in sys.argv[2:])
    opts = {k: bool(int(v)) for k, v in opts.items()}
    body = gen_op(name, **opts)
    out = f"; @launch kernel={name} grid=(256,1,1) block=(256,1,1) lds={LDS_BYTES}\n"
    out += '.amdgcn_target "amdgcn-amd-amdhsa--gfx950"\n.text\n' + kernel_header(name) + body
    out += '.section .rodata,"a"\n.p2align 6\n' + kernel_desc(name, 512, accum=256)
    open(sys.argv[1], "w").write(out)
```

```python
from gen_common import *
import math

NQB = 3584 * 4096 * 2
WS_O = 2 * NQB
WS_W = 4 * NQB
WS_BYTES = 4 * NQB + 2 * 4096 * 640 * 2
PAIRB = 224 * 128 * 2

TILE = 8448
RING = 4
AREA = RING * TILE
LDS_BYTES = 163840
LDS_FLAG = 2 * AREA + 1024
LDS_FLAG = 2 * AREA + 8416

def kpad(i): return 1024 * i + 16 * ((i & 1) + 4 * (i >> 1))

V_LANE, V_T0, V_T1, V_T2, V_T3, V_LIN, V_DMA = 1, 2, 3, 4, 5, 6, 7
V_KA, V_VA, V_XA, V_WA = 8, 9, 10, 11
V_L = 12
V_QD, V_BA = 26, 27
V_CI = 28
V_KF = 56
V_S = 88
V_P = 104
V_VF = 112
V_OK = 144
A_Q = 0
A_OS = 112
A_LS = 224
A_ONE = 252
S_LD, S_K, S_W, S_QP = 4, 8, 12, 16
S_WAVE, S_T, S_CNT, S_NOFB, S_OOFF, S_MP, S_T0 = 20, 21, 22, 23, 24, 25, 27
S_A, S_B, S_C, S_D = 28, 29, 30, 31
S_THR, S_LDB, S_DJ, S_PJ, S_QH, S_DOFF = 32, 33, 34, 35, 48, 49
S_QS, S_QSTEP, S_QRND, S_MSTEP, S_CS = 50, 51, 52, 53, 54
S_TAB = 88
S_AS, S_TY, S_PRE, S_WO = 68, 69, 70, 71
MFMA = "v_mfma_f32_16x16x32_bf16"
def ar(a, n=1):
    return f"a{a}" if n == 1 else f"a[{a}:{a+n-1}]"

def gen_fused(name, nt=True, stamp=False, nofb=False, noload=False, nost=False, nox=False, now=False, st0=False, touch=False, kvt=False, kvtnt=False, nowo=False, tnt=False, qnt=False, wont=False, trace=False, DBO=64, ones=False, strace=False, xmem=0, xmfma=0, delay=0, tymask=1, stwg=4, roll=False, bulk0=True, wsbase=0, rot=True, rsh=1, dupst=False, allst=False, align=0, roles=False, fakex=False, early=False, qdelay=0, adelay=0, kvpol=None, xf=False, pst=False, kvl2=False, xq=False, pstl=False, kv0=False, qpnl=False, cpf=0, cpflate=False, qps=False, tymode=0, tyinv=False, xswap=False, qnrd=False, qnbar=False, qbar=7, qd0=9, qdstep=6, kvrot=0, kvgs=11, kvt2=0, kvts=64, tper=1, tpol='', tlbw=0, rflip=0, stpol='', defer=False, dpol='', dnp=3, wpol='', qpol='', anbar=False, anrd=False, anva='', ansu=False, cpf2=0, cpfo=0, pro1=0, rotn=4, spread='', dsl='1234', lp7=False, inv=False, wo2=False, wo3=0, wo4=0, wo5=0, wtl=0, wo6=''):
    a = Asm()
    if spread: early = True
    if wo6: wo5 = 2
    if wo5: wo4 = 2
    if wo3 or wo4: wo2 = True
    NT = " nt" if nt else ""
    if kvpol: NT = " " + kvpol
    if pst: a("s_memrealtime s[74:75]")
    a("s_cmp_ge_u32 s2, 256")
    a("s_cbranch_scc1 L_at_end")
    if cpf:
        a("s_getpc_b64 s[72:73]")
        a.label("L_pc0")
        a(f"s_mov_b32 s74, L_code_end - L_pc0")
        a("s_mov_b32 s75, 0x20000")
        a("v_lshlrev_b32 v105, 6, v0")
        if not cpflate:
          for k in range(cpf // 16):
            a(f"s_mov_b32 s76, {k*16384}")
            a("buffer_load_dword v104, v105, s[72:75], s76 offen")
    a("s_and_b32 s3, s2, 7")
    a("s_lshl_b32 s3, s3, 5")
    a("s_lshr_b32 s36, s2, 6")
    a("s_lshl_b32 s36, s36, 3")
    a("s_or_b32 s3, s3, s36")
    a("s_bfe_u32 s36, s2, 0x30003")
    a("s_or_b32 s2, s3, s36")
    if xswap: a("s_xor_b32 s2, s2, 32"); a("s_nop 0")
    a("s_load_dwordx8 s[36:43], s[0:1], 0")
    a("s_load_dwordx8 s[56:63], s[0:1], 40")
    a("s_load_dwordx2 s[44:45], s[0:1], 96")
    a("s_load_dwordx2 s[84:85], s[0:1], 32")
    a("s_load_dwordx2 s[86:87], s[0:1], 72")
    if cpf2:
        a("s_getpc_b64 s[72:73]")
        a.label("L_pc0")
        a("v_lshlrev_b32 v105, 7, v0")
        for k in range(cpf2):
            a(f"v_add_u32 v104, {cpfo + k*32768}, v105")
            a("v_min_u32 v104, L_code_end - L_pc0 - 4, v104")
            a("v_mov_b32 v107, s73")
            a("v_add_co_u32 v106, vcc, s72, v104")
            a("v_addc_co_u32 v107, vcc, 0, v107, vcc")
            a(f"global_load_dword v108, v[106:107], off")
    a(f"v_and_b32 v{V_LANE}, 63, v0")
    a(f"v_lshrrev_b32 v{V_T0}, 6, v0")
    a("s_nop 0")
    a(f"v_readfirstlane_b32 s{S_WAVE}, v{V_T0}")
    a("s_waitcnt lgkmcnt(0)")
    a(f"s_and_b32 s{S_QH}, s{S_WAVE}, 1")
    a(f"s_lshr_b32 s{S_PJ}, s{S_WAVE}, 1")
    a("s_cmp_ge_u32 s2, 128")
    for k in range(8):
        a(f"s_cselect_b32 s{36+k}, s{56+k}, s{36+k}")
    a("s_cselect_b32 s84, s86, s84")
    a("s_cselect_b32 s85, s87, s85")
    a(f"s_mov_b32 s86, {4096*640*2}")
    a("s_mov_b32 s87, 0x20000")
    a(f"s_and_b32 s{S_A}, s2, 127")
    a(f"s_lshl_b32 s{S_B}, s{S_A}, 20")
    a(f"s_lshl_b32 s{S_C}, s{S_PJ}, 18")
    a(f"s_add_u32 s{S_B}, s{S_B}, s{S_C}")
    a(f"s_add_u32 s38, s38, s{S_B}")
    a("s_addc_u32 s39, s39, 0")
    a(f"s_add_u32 s40, s40, s{S_B}")
    a("s_addc_u32 s41, s41, 0")
    a(f"s_sub_u32 s{S_C}, 0x100000, s{S_C}")
    a(f"s_mov_b32 s{S_K}, s38")
    a(f"s_mov_b32 s{S_K+1}, s39")
    a(f"s_mov_b32 s{S_K+2}, s{S_C}")
    a(f"s_mov_b32 s{S_K+3}, 0x20000")
    a(f"s_cmp_eq_u32 s{S_QH}, 0")
    a(f"s_cselect_b32 s{S_LD}, s38, s40")
    a(f"s_cselect_b32 s{S_LD+1}, s39, s41")
    a(f"s_mov_b32 s{S_LD+2}, {'0' if kv0 else 's'+str(S_C)}")
    a(f"s_mov_b32 s{S_LD+3}, 0x20000")
    if xf:
        a(f"s_add_u32 s36, s44, {4*NQB + 2*4096*640*2}")
        a("s_addc_u32 s37, s45, 0")
        a(f"s_cmp_eq_u32 s{S_QH}, 0")
    a(f"s_cselect_b32 s{S_QP}, s42, s36")
    a(f"s_cselect_b32 s{S_QP+1}, s43, s37")
    a(f"s_mov_b32 s{S_A}, {0 if now else 640*4096*2}")
    a(f"s_mov_b32 s{S_B}, {0 if nox else (2*3584*640*2 if xf else 3584*640*2)}")
    a(f"s_cselect_b32 s{S_QP+2}, s{S_A}, s{S_B}")
    a(f"s_mov_b32 s{S_QP+3}, 0x20000")
    a(f"s_mov_b32 s{S_A}, {32*8192}")
    a(f"s_mov_b32 s{S_B}, {7168 if (fakex or xf) else 64}")
    a(f"s_cselect_b32 s{S_QSTEP}, s{S_A}, s{S_B}")
    a(f"s_cselect_b32 s{S_QRND}, 512, 0")
    a(f"s_mov_b32 s{S_A}, 1056")
    a(f"s_mov_b32 s{S_B}, 1024")
    a(f"s_cselect_b32 s{S_MSTEP}, s{S_A}, s{S_B}")
    for i in range(8):
        a(f"s_mov_b32 s{S_A}, {((i&3)+8*(i>>2))*8192}")
        a(f"s_mov_b32 s{S_B}, {(1024*i if (fakex or xf) else 20480*i) if i < 7 else 0x40000000}")
        a(f"s_cselect_b32 s{S_TAB+i}, s{S_A}, s{S_B}")
    a(f"s_and_b32 s{S_A}, s2, 7")
    a(f"s_lshl_b32 s{S_A}, s{S_A}, 2")
    a(f"s_add_u32 s{S_A}, s{S_A}, s{S_PJ}")
    a(f"s_lshl_b32 s{S_A}, s{S_A}, 8")
    a(f"s_bfe_u32 s{S_B}, s2, {0x50003 if xf else 0x40003}")
    a(f"s_lshl_b32 s{S_B}, s{S_B}, 1")
    a(f"s_add_u32 s{S_B}, s{S_B}, s{S_PJ}")
    a(f"s_mul_i32 s{S_B}, s{S_B}, {112*1280}")
    a(f"s_cmp_eq_u32 s{S_QH}, 0")
    a(f"s_cselect_b32 s55, s{S_A}, s{S_B}")
    a(f"s_add_u32 s{S_W}, s44, {wsbase}")
    a(f"s_addc_u32 s{S_W+1}, s45, 0")
    a(f"s_mov_b32 s{S_W+2}, {WS_BYTES}")
    a(f"s_mov_b32 s{S_W+3}, 0x20000")
    a(f"s_lshl_b32 s{S_A}, s2, 2")
    a(f"s_add_u32 s{S_A}, s{S_A}, s{S_PJ}")
    a(f"s_mul_i32 s{S_OOFF}, s{S_A}, {PAIRB}")
    a(f"s_mul_i32 s{S_A}, s{S_QH}, {7*4096}")
    a(f"s_add_u32 s{S_OOFF}, s{S_OOFF}, s{S_A}")
    a(f"s_add_u32 s{S_OOFF}, s{S_OOFF}, {WS_O}")
    a(f"s_mov_b32 s{S_NOFB}, -1")
    a("s_mov_b32 s60, s42"); a("s_mov_b32 s61, s43"); a(f"s_mov_b32 s62, {640*4096*2}"); a("s_mov_b32 s63, 0x20000")
    a(f"s_mov_b32 s{S_T0}, 0")
    a(f"s_mov_b32 s{S_MP}, 0")
    a(f"s_mov_b32 s{S_AS}, 0")
    if defer: a("s_mov_b32 s98, 0x40000000")
    a(f"s_mov_b32 s{S_WO}, {(4 if (wo3 or wo4) else 3) if nowo else 0}")
    a(f"s_lshr_b32 s26, s2, 3")
    a(f"s_lshr_b32 s{S_A}, s2, {rsh}")
    a(f"s_add_u32 s26, s26, s{S_A}")
    if rotn in (1, 2, 4):
        a(f"s_and_b32 s26, s26, {rotn-1}")
        a(f"s_mul_i32 s26, s26, {20//rotn}")
    elif rotn == 22:
        a("s_and_b32 s26, s26, 1"); a("s_mul_i32 s26, s26, 4")
    elif rotn == 23:
        a("s_and_b32 s26, s26, 1"); a("s_mul_i32 s26, s26, 6")
    a(f"s_mul_i32 s83, s{S_QSTEP}, 20")
    a(f"s_and_b32 s{S_TY}, s2, {tymask}")
    a(f"s_min_u32 s{S_TY}, s{S_TY}, 1")
    if tyinv: a(f"s_xor_b32 s{S_TY}, s{S_TY}, 1"); a("s_nop 0")
    if tymode == 1:
        a("s_bfe_u32 s3, s2, 0x10005"); a("s_xor_b32 s3, s3, 1"); a(f"s_and_b32 s{S_TY}, s2, s3"); a("s_nop 0")
    if tymode == 2:
        a("s_bfe_u32 s3, s2, 0x10005"); a("s_xor_b32 s3, s3, 1"); a(f"s_and_b32 s{S_TY}, s2, 3"); a(f"s_min_u32 s{S_TY}, s{S_TY}, 1"); a(f"s_and_b32 s{S_TY}, s{S_TY}, s3")
    if tymode == 3:
        a("s_bfe_u32 s3, s2, 0x10005"); a("s_xor_b32 s3, s3, 1"); a(f"s_and_b32 s{S_TY}, s2, 3"); a(f"s_cmp_eq_u32 s{S_TY}, 0"); a(f"s_cselect_b32 s{S_TY}, 1, 0"); a(f"s_or_b32 s{S_TY}, s{S_TY}, s3")
    a(f"s_mov_b32 s{S_PRE}, s{S_TY}")
    a(f"s_mov_b32 s{S_THR}, 0x4e800000")
    import struct
    cs = struct.unpack("<I", struct.pack("<f", (128 ** -0.5) * 1.4426950408889634))[0]
    a(f"s_mov_b32 s{S_CS}, {cs:#x}")
    a(f"s_lshl_b32 s{S_A}, s{S_QH}, 1")
    a(f"s_add_u32 s{S_A}, s{S_A}, s{S_PJ}")
    a(f"s_mul_i32 s{S_LDB}, s{S_A}, {AREA}")
    if stamp:
        a("s_memtime s[64:65]")
        a("s_memrealtime s[66:67]")
        a("s_load_dwordx2 s[46:47], s[0:1], 88")
        a("s_waitcnt lgkmcnt(0)")
    G, N = V_T0, V_T1
    a(f"v_lshlrev_b32 v{V_LIN}, 4, v{V_LANE}")
    a(f"v_lshrrev_b32 v{G}, 4, v{V_LANE}")
    a(f"v_and_b32 v{N}, 15, v{V_LANE}")
    a(f"v_lshlrev_b32 v{V_T2}, 4, v{N}")
    a(f"v_lshl_add_u32 v{V_DMA}, v{G}, {kvgs}, v{V_T2}")
    a(f"v_bfe_u32 v{V_T3}, v{V_LANE}, 4, 1")
    a(f"v_lshl_add_u32 v{V_QD}, v{V_T3}, 15, v{V_T2}")
    a(f"v_bfe_u32 v{V_T3}, v{V_LANE}, 5, 1")
    a(f"v_lshl_add_u32 v{V_QD}, v{V_T3}, 17, v{V_QD}")
    a(f"v_mul_u32_u24 v{V_BA}, 1280, v{N}")
    a(f"v_lshl_add_u32 v{V_BA}, v{G}, 4, v{V_BA}")
    if fakex or xf: a(f"v_mov_b32 v{V_BA}, v{V_LIN}")
    if xq:
        a(f"v_lshrrev_b32 v{V_T3}, 4, v{V_LANE}")
        a(f"v_and_b32 v{V_BA}, 1, v{V_T3}")
        a(f"v_lshlrev_b32 v{V_BA}, 1, v{V_BA}")
        a(f"v_lshrrev_b32 v{V_T3}, 1, v{V_T3}")
        a(f"v_mul_u32_u24 v{V_T3}, 3, v{V_T3}")
        a(f"v_xor_b32 v{V_BA}, v{V_BA}, v{V_T3}")
        a(f"v_and_b32 v{V_T3}, 3, v{V_LANE}")
        a(f"v_xor_b32 v{V_BA}, v{V_BA}, v{V_T3}")
        a(f"v_lshlrev_b32 v{V_BA}, 4, v{V_BA}")
        a(f"v_lshrrev_b32 v{V_T3}, 2, v{V_LANE}")
        a(f"v_mul_u32_u24 v{V_T3}, 1280, v{V_T3}")
        a(f"v_add_u32 v{V_BA}, v{V_BA}, v{V_T3}")
    a(f"s_cmp_eq_u32 s{S_QH}, 0")
    a("s_cselect_b64 vcc, -1, 0")
    a("s_nop 1")
    a(f"v_cndmask_b32 v{V_QD}, v{V_BA}, v{V_QD}, vcc")
    a(f"s_add_u32 s{S_A}, s{S_QH}, 2")
    a(f"s_mul_i32 s{S_A}, s{S_A}, {AREA}")
    if xq:
        a(f"v_bfe_u32 v{V_T3}, v{V_LANE}, 2, 2")
        a(f"v_and_b32 v{V_BA}, 1, v{V_T3}")
        a(f"v_lshlrev_b32 v{V_BA}, 1, v{V_BA}")
        a(f"v_lshrrev_b32 v{V_T3}, 1, v{V_T3}")
        a(f"v_mul_u32_u24 v{V_T3}, 3, v{V_T3}")
        a(f"v_xor_b32 v{V_BA}, v{V_BA}, v{V_T3}")
        a(f"v_xor_b32 v{V_BA}, v{V_BA}, v{G}")
        a(f"v_lshlrev_b32 v{V_BA}, 4, v{V_BA}")
        a(f"v_lshl_add_u32 v{V_BA}, v{N}, 6, v{V_BA}")
        a(f"v_add_u32 v{V_BA}, s{S_A}, v{V_BA}")
    else:
        a(f"v_add_u32 v{V_BA}, s{S_A}, v{V_LIN}")
    a(f"v_bfe_u32 v{V_T3}, v{V_LANE}, 4, 1")
    a(f"v_lshl_add_u32 v{V_T2}, v{V_T3}, 9, v{V_T2}")
    a(f"v_bfe_u32 v{V_T3}, v{V_LANE}, 5, 1")
    a(f"v_lshl_add_u32 v{V_XA}, v{V_T3}, 8, v{V_T2}")
    a(f"v_and_b32 v{V_T2}, 7, v{N}")
    a(f"v_lshlrev_b32 v{V_KA}, 10, v{V_T2}")
    a(f"v_and_b32 v{V_T3}, 1, v{N}")
    a(f"v_lshl_add_u32 v{V_KA}, v{V_T3}, 4, v{V_KA}")
    a(f"v_bfe_u32 v{V_T3}, v{N}, 1, 2")
    a(f"v_lshl_add_u32 v{V_KA}, v{V_T3}, 6, v{V_KA}")
    a(f"v_lshrrev_b32 v{V_T3}, 3, v{N}")
    a(f"v_lshl_add_u32 v{V_KA}, v{V_T3}, 8, v{V_KA}")
    a(f"v_bfe_u32 v{V_T3}, v{V_LANE}, 4, 1")
    a(f"v_lshl_add_u32 v{V_KA}, v{V_T3}, 5, v{V_KA}")
    a(f"v_bfe_u32 v{V_T3}, v{V_LANE}, 5, 1")
    a(f"v_lshl_add_u32 v{V_KA}, v{V_T3}, 4, v{V_KA}")
    a(f"s_mul_i32 s{S_A}, s{S_PJ}, {AREA}")
    a(f"v_add_u32 v{V_KA}, s{S_A}, v{V_KA}")
    a(f"v_bfe_u32 v{N}, v{V_LANE}, 2, 2")
    a(f"v_bfe_u32 v{V_T3}, v{V_LANE}, 4, 1")
    a(f"v_lshl_add_u32 v{V_T2}, v{V_T3}, 2, v{N}")
    a(f"v_mul_u32_u24 v{V_T2}, 1056, v{V_T2}")
    a(f"v_bfe_u32 v{V_T3}, v{V_LANE}, 5, 1")
    a(f"v_lshl_add_u32 v{V_T2}, v{V_T3}, 9, v{V_T2}")
    a(f"v_and_b32 v{V_T3}, 3, v{V_LANE}")
    a(f"v_lshl_add_u32 v{V_T2}, v{V_T3}, 3, v{V_T2}")
    a(f"v_add_u32 v{V_WA}, s{S_A}, v{V_T2}")
    a(f"v_lshl_add_u32 v{N}, v{G}, 2, v{N}")
    a(f"v_and_b32 v{V_T2}, 7, v{N}")
    a(f"v_mul_u32_u24 v{V_T2}, 1056, v{V_T2}")
    a(f"v_lshrrev_b32 v{V_T3}, 3, v{N}")
    a(f"v_lshl_add_u32 v{V_T2}, v{V_T3}, 8, v{V_T2}")
    a(f"v_and_b32 v{V_T3}, 3, v{V_LANE}")
    a(f"v_lshl_add_u32 v{V_T2}, v{V_T3}, 3, v{V_T2}")
    a(f"s_add_u32 s{S_A}, s{S_A}, {2*AREA}")
    a(f"v_add_u32 v{V_VA}, s{S_A}, v{V_T2}")
    for i in range(7):
        a(f"v_mov_b32 v{V_L+2*i}, 0xff800000")
    a(f"v_mov_b32 v{V_T0}, 0x3f803f80")
    for i in range(4): a(f"v_accvgpr_write_b32 a{A_ONE+i}, v{V_T0}")
    a(f"v_and_b32 v{V_T0}, 3, v{V_LANE}")
    a(f"v_lshlrev_b32 v{V_T0}, 2, v{V_T0}")
    a(f"v_add_u32 v{V_T0}, {LDS_FLAG}, v{V_T0}")
    a(f"v_mov_b32 v{V_T1}, 0")
    a(f"ds_write_b32 v{V_T0}, v{V_T1}")
    a(f"s_cmp_eq_u32 s{S_QH}, 0")
    a(f"s_mov_b32 s{S_A}, {kpad(1)-kpad(0)-256}")
    a(f"s_mov_b32 s{S_B}, 800")
    a(f"s_cselect_b32 s96, s{S_A}, s{S_B}")
    a(f"s_mov_b32 s{S_A}, {kpad(2)-kpad(1)-256}")
    a(f"s_cselect_b32 s97, s{S_A}, s{S_B}")

    a(f"v_lshrrev_b32 v{V_T0}, 1, v{V_LANE}")
    a(f"v_lshlrev_b32 v{V_T0}, 13, v{V_T0}")
    a(f"v_and_b32 v{V_T1}, 1, v{V_LANE}")
    a(f"v_lshl_add_u32 v{V_T0}, v{V_T1}, 7, v{V_T0}")
    a(f"v_lshlrev_b32 v{V_T1}, 7, v{V_LANE}")
    a(f"s_bfe_u32 s{S_A}, s2, 0x20003")
    a(f"s_lshl_b32 s{S_A}, s{S_A}, 18")
    a(f"s_and_b32 s{S_B}, s2, 7")
    a(f"s_mul_i32 s{S_B}, s{S_B}, 17920")
    a(f"s_cmp_eq_u32 s{S_QH}, 0")
    a("s_cselect_b64 vcc, -1, 0")
    a(f"s_cselect_b32 s100, s{S_A}, s{S_B}")
    a(f"s_add_u32 s100, s100, s55")
    a(f"s_cmp_eq_u32 s{S_QH}, 0")
    a(f"s_mov_b32 s{S_A}, {4*32*8192}")
    a(f"s_mov_b32 s{S_B}, 8192")
    a(f"s_cselect_b32 s99, s{S_A}, s{S_B}")
    a(f"v_cndmask_b32 v{V_LIN}, v{V_T1}, v{V_T0}, vcc")
    def tf0(u): return (u & ((1 << kvgs) - 1)) | ((u >> kvgs) << (kvgs + 2))
    if kvt2:
        lb = kvgs - int(math.log2(kvts))
        if lb >= 6:
            a(f"v_mul_u32_u24 v{V_LIN}, {kvts}, v{V_LANE}")
        else:
            a(f"v_and_b32 v{V_T0}, {(1 << lb) - 1}, v{V_LANE}")
            a(f"v_mul_u32_u24 v{V_T0}, {kvts}, v{V_T0}")
            a(f"v_lshrrev_b32 v{V_T1}, {lb}, v{V_LANE}")
            a(f"v_lshl_add_u32 v{V_LIN}, v{V_T1}, {kvgs + 2}, v{V_T0}")
    def tch(s_): return bool(kvt2) and s_ < 16 and s_ % tper == 0
    def tvn(s_): return sum(1 for t in range(max(0, s_ - 3), s_) if tch(t))
    def tinc(k): return tf0((k + 1) * 64 * kvts) - tf0(k * 64 * kvts)
    if kvrot == 0 and kvgs != 11: a("s_mov_b32 s100, 0")
    if kvrot == 1:
        a("s_and_b32 s100, s2, 31")
    if kvrot == 2:
        a("s_mul_i32 s100, s2, 11"); a(f"s_lshr_b32 s{S_A}, s2, 5"); a(f"s_mul_i32 s{S_A}, s{S_A}, 7"); a(f"s_add_u32 s100, s100, s{S_A}")
        a(f"s_lshl_b32 s{S_A}, s{S_PJ}, 4"); a(f"s_add_u32 s100, s100, s{S_A}"); a("s_and_b32 s100, s100, 31")
    if kvrot == 3:
        a("s_lshr_b32 s100, s2, 5"); a("s_lshl_b32 s100, s100, 2")
    if rflip:
        if rflip == 1: a(f"s_bfe_u32 s{S_A}, s2, 0x10005")
        if rflip == 2: a(f"s_bfe_u32 s{S_A}, s2, 0x10006")
        if rflip == 3: a(f"s_bfe_u32 s{S_A}, s2, 0x10007")
        if rflip == 4: a(f"s_bfe_u32 s{S_A}, s2, 0x10003")
        a(f"s_lshl_b32 s101, s{S_A}, 19")
        a(f"s_mul_i32 s{S_B}, s{S_A}, s{S_QRND}")
        a(f"s_add_u32 s55, s55, s{S_B}")
        a(f"s_sub_u32 s{S_B}, 0, s{S_QRND}")
        a(f"s_cmp_lg_u32 s{S_A}, 0")
        a(f"s_cselect_b32 s{S_QRND}, s{S_B}, s{S_QRND}")
        a(f"s_mov_b32 s99, {2*PAIRB}")
        a(f"s_cselect_b32 s99, {-2*PAIRB & 0xffffffff:#x}, s99")
        a(f"s_mul_i32 s{S_B}, s{S_A}, {2*PAIRB}")
        a(f"s_add_u32 s{S_OOFF}, s{S_OOFF}, s{S_B}")
    tstate = {"t": 0}
    def touch_one():
        if not touch: return
        a(f"buffer_load_dword v0, v{V_LIN}, s[{S_QP}:{S_QP+3}], s98 offen{' nt' if tnt else ''}")
        a(f"s_add_u32 s98, s98, s99")
        tstate["t"] += 1
    if xmem or dupst:
        a("s_add_u32 s72, s44, 0x8000000"); a("s_addc_u32 s73, s45, 0"); a("s_mov_b32 s74, 0x18000000"); a("s_mov_b32 s75, 0x20000")
        a("s_lshl_b32 s76, s2, 2"); a(f"s_add_u32 s76, s76, s{S_WAVE}"); a("s_mul_i32 s76, s76, 0x60000")
    dstate = {"i": 0, "kind": None}
    state = {"n": 0}
    def dma_setup(slot, kind):
        if kind == "KV":
            if kvgs != 11:
                ln_ = kvgs - 11
                a(f"s_add_u32 s{S_B}, s{S_DJ}, s100")
                a(f"s_bfe_u32 s{S_A}, s{S_B}, {((5 - ln_) << 16) | ln_:#x}")
                a(f"s_lshl_b32 s{S_A}, s{S_A}, {kvgs + 2}")
                a(f"s_and_b32 s{S_B}, s{S_B}, {(1 << ln_) - 1}")
                a(f"s_lshl_b32 s{S_B}, s{S_B}, 11")
                a(f"s_add_u32 s{S_B}, s{S_A}, s{S_B}")
                a(f"s_lshr_b32 s{S_A}, s{S_DJ}, 5")
                a(f"s_lshl_b32 s{S_A}, s{S_A}, 19")
                if rflip: a(f"s_xor_b32 s{S_A}, s{S_A}, s101")
                a(f"s_add_u32 s{S_DOFF}, s{S_A}, s{S_B}")
            elif kvrot:
                a(f"s_lshr_b32 s{S_A}, s{S_DJ}, 5")
                a(f"s_lshl_b32 s{S_A}, s{S_A}, 19")
                if rflip: a(f"s_xor_b32 s{S_A}, s{S_A}, s101")
                a(f"s_add_u32 s{S_B}, s{S_DJ}, s100")
                a(f"s_and_b32 s{S_B}, s{S_B}, 31")
                a(f"s_lshl_b32 s{S_B}, s{S_B}, 13")
                a(f"s_add_u32 s{S_DOFF}, s{S_A}, s{S_B}")
            else:
                a(f"s_lshr_b32 s{S_A}, s{S_DJ}, 5")
                a(f"s_lshl_b32 s{S_A}, s{S_A}, 18")
                a(f"s_lshl_b32 s{S_B}, s{S_DJ}, 13")
                a(f"s_add_u32 s{S_DOFF}, s{S_A}, s{S_B}")
            if kvl2: a(f"s_and_b32 s{S_DOFF}, s{S_DOFF}, {0x7fff if kvl2 is True else kvl2 - 1}")
            a(f"s_add_u32 m0, s{S_LDB}, {slot*TILE}")
            a(f"s_add_u32 s{S_DJ}, s{S_DJ}, 1")
        else:
            a(f"s_add_u32 m0, s{S_LDB}, {slot*TILE}")
            a(f"s_mov_b32 s{S_DOFF}, s{S_QS}")
            a(f"s_add_u32 s{S_QS}, s{S_QS}, s{S_QSTEP}")
            if rot:
                a("s_add_u32 s82, s82, 1")
                a("s_cmp_eq_u32 s82, 20")
                a(f"s_cselect_b32 s{S_B}, s83, 0")
                a(f"s_sub_u32 s{S_QS}, s{S_QS}, s{S_B}")
        dstate["i"] = 0; dstate["kind"] = kind
    def dma_one(pad=False):
        i = dstate["i"]
        if dstate["kind"] == "KV":
            if pad: a("s_nop 0")
            if not noload:
                a(f"buffer_load_dwordx4 v{V_DMA}, s[{S_LD}:{S_LD+3}], s{S_DOFF} offen offset:{256*i}{NT} lds")
            if i < 7: a(f"s_add_u32 m0, m0, s{96+(i&1)}")
        else:
            a(f"s_add_u32 s{S_A}, s{S_DOFF}, s{S_TAB+i}")
            if not qpnl: a(f"buffer_load_dwordx4 v{V_QD}, s[{S_QP}:{S_QP+3}], s{S_A} offen{' nt' if qnt else ''} lds")
            if i < 7: a(f"s_add_u32 m0, m0, s{S_MSTEP}")
        dstate["i"] = i + 1
    def qs_init(rnd_sgpr, q=3):
        if kvt2:
            a(f"s_lshl_b32 s98, s{S_T}, 19")
            if q == "pre":
                a(f"s_lshl_b32 s{S_A}, s{S_PRE}, {kvgs}"); a(f"s_sub_u32 s98, s98, s{S_A}"); q = 3
            a(f"s_add_u32 s98, s98, {q << kvgs}")
        a(f"s_mul_i32 s{S_QS}, s{rnd_sgpr}, s{S_QRND}")
        if not rflip: a(f"s_mov_b32 s101, s{rnd_sgpr}")
        a(f"s_add_u32 s{S_QS}, s{S_QS}, s55")
        a(f"s_cmp_ge_u32 s{rnd_sgpr}, 2")
        a(f"s_cselect_b32 s{S_A}, 0x40000000, 0")
        a(f"s_add_u32 s{S_QS}, s{S_QS}, s{S_A}")
        if rot:
            a("s_mov_b32 s82, s26")
            a(f"s_mul_i32 s{S_A}, s26, s{S_QSTEP}")
            a(f"s_add_u32 s{S_QS}, s{S_QS}, s{S_A}")

    def touch_init(rnd_sgpr):
        if not touch: return
        a(f"s_mul_i32 s98, s{rnd_sgpr}, s{S_QRND}")
        a(f"s_add_u32 s98, s98, s100")
        a(f"s_cmp_ge_u32 s{rnd_sgpr}, 2")
        a(f"s_cselect_b32 s{S_A}, 0x40000000, 0")
        a(f"s_add_u32 s98, s98, s{S_A}")
        tstate["t"] = 0
    def kread(f, slot):
        if anrd and state.get("inat"): return
        kt, s = f >> 2, f & 3
        a.lds(f"ds_read_b128 {vr(V_KF+4*f,4)}, v{V_KA} offset:{slot*TILE+kt*512+s*64}", "K")
    def vread(l, slot):
        if anrd and state.get("inat"): return
        for v in range(2):
            a.lds(f"ds_read_b64_tr_b16 {vr(V_VF+4*l+2*v,2)}, v{V_VA} offset:{slot*TILE+v*512+l*32}", "V")
    def wread(l, slot):
        for v in range(2):
            a.lds(f"ds_read_b64_tr_b16 {vr(V_VF+4*l+2*v,2)}, v{V_WA} offset:{slot*TILE+v*256+l*32}", "W")
    def bbuf(buf, qt): return (V_KF if buf == 0 else V_CI) + 4 * qt
    def bread(buf, qt, slot):
        a.lds(f"ds_read_b128 {vr(bbuf(buf,qt),4)}, v{V_BA} offset:{slot*TILE+qt*1024}", "B")
    def oreg(l, qt):
        return vr(V_OK + 28 * l + 4 * qt, 4) if l < 4 else ar(A_OS + 28 * (l - 4) + 4 * qt, 4)

    def barrier(dyn=False, vn=16, xt=0):
        vn += xt
        if dyn:
            n = len(a.lines)
            a(f"s_cmp_eq_u32 s{S_AS}, 0")
            if inv:
                a(f"s_cbranch_scc0 L_bw1_{n}")
                a(f"s_waitcnt vmcnt({vn}) lgkmcnt(0)")
                a.label(f"L_bw2_{n}")
                if wo2:
                    state.setdefault("ool", []).extend([f"L_bw1_{n}:", f"    s_sub_u32 s{S_AS}, s{S_AS}, 1", f"    s_bitcmp1_b32 s{S_AS}, 8", f"    s_cbranch_scc1 L_bw3_{n}",
                        f"    s_waitcnt vmcnt({44 + xt}) lgkmcnt(0)", f"    s_branch L_bw2_{n}",
                        f"L_bw3_{n}:", f"    s_bitcmp1_b32 s{S_AS}, 9", f"    s_cbranch_scc1 L_bw4_{n}",
                        f"    s_and_b32 s99, s{S_AS}, 0xff", f"    s_cselect_b32 s{S_AS}, s{S_AS}, 0",
                        f"    s_waitcnt vmcnt({21 + xt}) lgkmcnt(0)", f"    s_branch L_bw2_{n}",
                        f"L_bw4_{n}:", f"    s_and_b32 s99, s{S_AS}, 0xff", f"    s_cselect_b32 s{S_AS}, s{S_AS}, 0",
                        f"    s_waitcnt vmcnt({54 + xt}) lgkmcnt(0)", f"    s_branch L_bw2_{n}"])
                else:
                    state.setdefault("ool", []).extend([f"L_bw1_{n}:", f"    s_sub_u32 s{S_AS}, s{S_AS}, 1", f"    s_waitcnt vmcnt({44 + xt}) lgkmcnt(0)", f"    s_branch L_bw2_{n}"])
                a.lds_q = []
                a("s_barrier")
                return
            a(f"s_cbranch_scc1 L_bw1_{n}")
            a(f"s_sub_u32 s{S_AS}, s{S_AS}, 1")
            a(f"s_waitcnt vmcnt({44 + xt}) lgkmcnt(0)")
            a(f"s_branch L_bw2_{n}")
            a.label(f"L_bw1_{n}")
            a(f"s_waitcnt vmcnt({vn}) lgkmcnt(0)")
            a.label(f"L_bw2_{n}")
        else:
            a(f"s_waitcnt vmcnt({vn}) lgkmcnt(0)")
        a.lds_q = []
        a("s_barrier")

    def cap(fn):
        n0 = len(a.lines); q0 = list(a.lds_q)
        fn()
        ls = a.lines[n0:]; del a.lines[n0:]; a.lds_q = q0
        return ls
    def is_scalar(ln):
        return ln.strip().startswith("s_")
    class Gaps:
        def __init__(self, n):
            self.n = n; self.S = [[] for _ in range(n)]; self.V = [[] for _ in range(n)]; self.c = [0] * n
        def putS(self, ln, lo, hi=None):
            for g in range(lo, self.n):
                if len(self.S[g]) == 0:
                    self.S[g].append(ln); return g
            self.S[self.n - 1].append(ln); return self.n - 1
        def putV(self, ln, lo, cost=1, cap_=2):
            for g in range(lo, self.n):
                if self.c[g] + cost <= cap_:
                    self.V[g].append(ln); self.c[g] += cost; return g
            self.V[self.n - 1].append(ln); self.c[self.n - 1] += cost; return self.n - 1
        def atV(self, ln, g, cost=1):
            self.V[g].append(ln); self.c[g] += cost
        def atS(self, ln, g):
            self.S[g].append(ln)
    DITEMS = [(qt, T) for qt in range(7) for T in range(4)]
    DS = {}
    if defer:
        ntl = (28 - 8 - 4 * dnp) // 4
        assert 4 * dnp + 8 + 4 * ntl == 28
        k_ = 0
        for i in range(4): DS[("P", i)] = DITEMS[k_:k_ + dnp]; k_ += dnp
        for i in (1, 0, 3, 2): DS[("L", i)] = DITEMS[k_:k_ + 2]; k_ += 2
        for i in range(4): DS[("T", i)] = DITEMS[k_:k_ + ntl]; k_ += ntl
    DLIVE = {1: 0, 0: 1, 3: 1, 2: 2}
    def dcount(code):
        if not defer or code is None: return 0
        kind, i = code
        n = lambda c: len(DS.get(c, []))
        if kind == "P": return sum(n(("P", t)) for t in (i - 2, i - 1) if t >= 0)
        prev = lambda k, t: (k, t) if t >= 0 else None
        if kind == "L":
            if i >= 2: return n(("L", i - 2)) + n(("L", i - 1))
            if i == 1: return min(n(("P", 3)), n(("L", 3))) + n(("L", 0))
            return min(n(("P", 2)) + n(("P", 3)), n(("L", 2)) + n(("L", 3)))
        if kind in ("T", "B"):
            m = lambda t: n((kind, t)) if t >= 0 else n(("L", 4 + t))
            return m(i - 2) + m(i - 1)
    def qp_stage2(sm, first, dma, last, chk, after_store, vn, nok, sidx, code=None):
        buf = sm & 1; nslot = (sm + 1) & 3
        BAR = qbar
        G = Gaps(56)
        su = cap(lambda: dma_setup(sm, dma))
        g = BAR - 1
        g = 0
        for ln in su:
            g = G.putS(ln, g) + 1
        prev = g
        w5 = wo5 == 1 and code == ("T", 0)
        for i in range(8):
            ls = cap(lambda: dma_one(False))
            tg = max(qd0 + (4 if w5 else qdstep) * i, prev)
            pre_ = [l for l in ls if is_scalar(l) and "m0" not in l]
            ld = [l for l in ls if not is_scalar(l)]
            post = [l for l in ls if is_scalar(l) and "m0" in l]
            for l in pre_: tg = G.putS(l, tg)
            for l in ld: G.atV(l, tg)
            prev = tg + 1
            for l in post: prev = G.putS(l, tg + 1) + 1
        dstate["i"] = 8
        if w5:
            assert prev <= 39, prev
            for i in range(5): G.atV(f"    v_accvgpr_read_b32 v{V_S+i}, a{244+i}", i)
            G.atS(f"    s_cmp_eq_u32 s{S_WO}, 0", 39)
            G.atS(f"    s_cselect_b32 s57, s56, 0x40000000", 39)
            for i in range(5):
                G.atS(f"    s_add_u32 m0, s58, {1024*i}", 40 + 3*i)
                G.atV(f"    buffer_load_dwordx4 v{V_S+i}, s[84:87], s57 offen lds", 41 + 3*i)
        if code in DS:
            its = DS[code]; lastq = None
            for n_, (qt_, T_) in enumerate(its):
                tg = qd0 + 3 + n_ * 2 * qdstep
                if qt_ != lastq:
                    if code[0] == "L":
                        G.atS(f"    s_cmp_eq_u32 s{S_CNT}, {DLIVE[code[1]]}", tg - 2)
                        G.atS(f"    s_cselect_b32 s99, s98, 0x40000000", tg - 2)
                        G.atS(f"    s_add_u32 s99, s99, {qt_*4096}", tg - 1)
                    else:
                        G.atS(f"    s_add_u32 s99, s98, {qt_*4096}", tg - 1)
                    lastq = qt_
                G.atV(f"    buffer_store_dwordx4 {ar(A_Q+16*qt_+4*T_,4)}, v{V_XA}, s[{S_W}:{S_W+3}], s99 offen offset:{1024*T_} {dpol}".rstrip(), tg)
        if tch(sidx):
            k_ = sidx // tper
            tg = min(prev + 1, 54)
            G.atV(f"    buffer_load_dword v{V_S+12}, v{V_LIN}, s[{S_LD}:{S_LD+3}], s98 offen {tpol}".rstrip(), tg)
            G.putS(f"    s_add_u32 s98, s98, {tinc(k_)}", tg + 1)
        if qnrd: pass
        elif not last:
            lo = BAR - 1
            for ln in cap(lambda: wread(0, nslot)): lo = G.putV(ln, lo, cap_=1)
            for qt in range(7):
                for ln in cap(lambda: bread(buf ^ 1, qt, nslot)): lo = G.putV(ln, lo, cap_=1)
            for l in range(1, 8):
                lo = max(lo, min(7 * (l + 1) - 1, 55))
                for ln in cap(lambda: wread(l, nslot)): lo = G.putV(ln, lo, cap_=(1 if l < 7 else 2))
        elif not nok:
            lo = BAR - 1
            for f in range(8):
                for ln in cap(lambda: kread(f, nslot)): lo = G.putV(ln, lo, cap_=1)
        a("s_waitcnt lgkmcnt(14)")
        j = 0
        for l in range(8):
            for qt in range(7):
                c = "0" if first else oreg(l, qt)
                if qt == 0 and l > 0 and j < BAR: a(f"s_waitcnt lgkmcnt({14-2*l})")
                a(f"{MFMA} {oreg(l, qt)}, {vr(V_VF+4*l,4)}, {vr(bbuf(buf,qt),4)}, {c}")
                for ln in G.S[j]: a.lines.append(ln)
                if j == BAR - 1:
                    if not qnbar: barrier(after_store, 16, tvn(sidx) + dcount(code) + (5 if (wo5 == 1 and code in (("T", 1), ("T", 2), ("T", 3))) else 0))
                    if chk: flagcheck()
                for ln in G.V[j]: a.lines.append(ln)
                j += 1
    def qp_stage(sm, first=False, dma="QP", last=False, chk=False, after_store=False, kt_=False, vn=16, nok=False, role=None, ntouch=0, sidx=None, code=None):
        buf = sm & 1; nslot = (sm + 1) & 3
        if qps:
            return qp_stage2(sm, first, dma, last, chk, after_store, vn, nok, sidx, code)
        a("s_waitcnt lgkmcnt(14)")
        fq = []
        def cap(fn):
            n0 = len(a.lines); q0 = len(a.lds_q)
            fn()
            ls = a.lines[n0:]; del a.lines[n0:]; del a.lds_q[q0:]
            return ls
        BAR = 7
        if role != "T":
            for ln in cap(lambda: dma_setup(sm, dma)): fq.append((BAR, ln))
        if dma == "QP" and roll:
            fq.append((BAR, f"    s_lshl2_add_u32 s{S_B}, s{S_QSTEP}, s{S_DOFF}"))
            fq.append((BAR, f"    buffer_load_dword v0, v{V_T0}, s[{S_QP}:{S_QP+3}], s{S_B} offen{' nt' if tnt else ''}"))
        if kvt and kt_:
            fq.append((BAR, f"    buffer_load_dword v0, v{V_T3}, s[{S_LD}:{S_LD+3}], s101 offen{' nt' if kvtnt else ''}"))
            fq.append((BAR, f"    s_add_u32 s101, s101, 8192"))
        if not last:
            for ln in cap(lambda: wread(0, nslot)): fq.append((BAR, ln))
            for qt in range(7):
                for ln in cap(lambda: bread(buf ^ 1, qt, nslot)): fq.append((BAR, ln))
        elif not nok:
            for f in range(8):
                for ln in cap(lambda: kread(f, nslot)): fq.append((BAR, ln))
        for l in range(1, 8):
            if not last:
                for ln in cap(lambda: wread(l, nslot)): fq.append((7 * (l + 1), ln))
            if role == "T":
                if l == 1:
                    for _ in range(ntouch):
                        fq.append((BAR, f"    buffer_load_dword v0, v{V_T0}, s[60:63], s98 offen"))
                        fq.append((BAR, f"    s_add_u32 s98, s98, {32*8192}"))
                        fq.append((BAR, f"    buffer_load_dword v0, v{V_T1}, s[{S_QP}:{S_QP+3}], s99 offen"))
                        fq.append((BAR, f"    s_add_u32 s99, s99, 64"))
                continue
            for ln in cap(lambda: dma_one(True)): fq.append((BAR, ln))
            if role == "X":
                if l == 7:
                    fq.append((BAR, f"    s_add_u32 m0, s{S_LDB}, {AREA+sm*TILE}"))
                    fq.append((BAR, f"    s_add_u32 s{S_DOFF}, s{S_DOFF}, {112*1280}"))
                    for i in range(7):
                        fq.append((BAR, f"    s_add_u32 s{S_A}, s{S_DOFF}, s{S_TAB+i}"))
                        fq.append((BAR, f"    buffer_load_dwordx4 v{V_QD}, s[{S_QP}:{S_QP+3}], s{S_A} offen{' nt' if qnt else ''} lds"))
                        if i < 6: fq.append((BAR, f"    s_add_u32 m0, m0, 1024"))
            elif l == 7:
                for ln in cap(lambda: dma_one(True)): fq.append((BAR, ln))
        j = 0
        for l in range(8):
            for qt in range(7):
                c = "0" if first else oreg(l, qt)
                a(f"{MFMA} {oreg(l, qt)}, {vr(V_VF+4*l,4)}, {vr(bbuf(buf,qt),4)}, {c}")
                j += 1
                if j == BAR:
                    barrier(after_store, vn if (roll or role) else 16)
                    if chk: flagcheck()
                    if trace:
                        a("s_memtime s[78:79]")
                        a("s_waitcnt lgkmcnt(0)")
                        a(f"v_cmp_eq_u32 vcc, s77, v{V_LANE}")
                        a(f"v_mov_b32 v{V_T2}, s78")
                        a("s_nop 1")
                        a(f"v_cndmask_b32 v{V_T3}, v{V_T3}, v{V_T2}, vcc")
                        a("s_add_u32 s77, s77, 1")
                k = 0; idx = 0
                rem_gaps = 56 - j + 1
                quota = 1 if len(fq) <= rem_gaps else 2
                while k < quota and idx < len(fq):
                    if fq[idx][0] <= j and (idx == 0 or "ds_read" in fq[idx][1] or all("ds_read" in x[1] for x in fq[:idx])):
                        a.lines.append(fq[idx][1]); del fq[idx]; k += 1
                    else:
                        idx += 1
        for _, ln in fq: a.lines.append(ln)
        assert role in ("X", "T") or dstate["i"] == 8

    def sm_ops(par, i, first):
        S = V_S + 8 * par; P = V_P + 4 * par; L = V_L + 2 * i
        ops = []
        if first:
            T0, T1 = V_T0, V_T1
            ops += [f"v_max3_f32 v{T0}, v{S}, v{S+1}, v{L}", f"v_max3_f32 v{T1}, v{S+2}, v{S+3}, v{S+4}",
                    f"v_max3_f32 v{T0}, v{S+5}, v{S+6}, v{T0}", f"v_max3_f32 v{T0}, v{S+7}, v{T0}, v{T1}",
                    f"v_mov_b32 v{T1}, v{T0}", "s_nop 1", f"v_permlane16_swap_b32 v{T0}, v{T1}", "s_nop 1", f"v_max_f32 v{T0}, v{T0}, v{T1}",
                    f"v_mov_b32 v{T1}, v{T0}", "s_nop 1", f"v_permlane32_swap_b32 v{T0}, v{T1}", "s_nop 1", f"v_max_f32 v{T0}, v{T0}, v{T1}",
                    f"v_mov_b32 v{L}, 0", f"v_mov_b32 v{L+1}, 0"]
            ops += [f"v_sub_f32 v{S+r}, v{S+r}, v{T0}" for r in range(8)]
            ops += [f"v_sub_f32 v{V_CI+4*i+r}, 0, v{T0}" for r in range(4)]
        e = lambda r: ops.append(f"v_exp_f32 v{S+r}, v{S+r}")
        e(0); e(1)
        for r in range(0, 8, 2):
            if r + 2 < 8: e(r + 2); e(r + 3)
            if not ones:
                ops.append(f"v_add_f32 v{L}, v{L}, v{S+r}")
                ops.append(f"v_add_f32 v{L+1}, v{L+1}, v{S+r+1}")
            ops.append(f"v_cvt_pk_bf16_f32 v{P+r//2}, v{S+r}, v{S+r+1}")
        return ops

    def qk_items(qt, par, czero, kr):
        it = []
        for f in range(8):
            kt, s = f >> 2, f & 3
            D = vr(V_S + 8 * par + 4 * kt, 4)
            c = ("0" if czero else vr(V_CI + 4 * qt, 4)) if s == 0 else D
            it.append(("K" if f == 0 else None, f"{MFMA} {D}, {vr(V_KF+4*f,4)}, {ar(A_Q+16*qt+4*s,4)}, {c}",
                       (lambda f=f: kread(f, kr)) if kr is not None else None))
        return it
    def pv_items(qt, par, czero, vrd):
        it = []
        for l in range(8):
            c = "0" if czero else oreg(l, qt)
            it.append(("V" if l == 0 else None, f"{MFMA} {oreg(l, qt)}, {vr(V_VF+4*l,4)}, {vr(V_P+4*par,4)}, {c}",
                       (lambda l=l: vread(l, vrd)) if vrd is not None else None))
        for _ in range(xmfma):
            D = ar(A_LS + 4 * qt, 4)
            it.append((None, f"{MFMA} {D}, {vr(V_VF,4)}, {vr(V_P+4*par,4)}, {D}", None))
        if ones:
            D = ar(A_LS + 4 * qt, 4)
            it.append((None, f"{MFMA} {D}, {ar(A_ONE,4)}, {vr(V_P+4*par,4)}, {'0' if czero else D}", None))
        return it

    def capture(fn):
        n0 = len(a.lines)
        fn()
        ls = a.lines[n0:]; del a.lines[n0:]
        return ls
    def emit(items, va, fill=None, nfill=0):
        cost = lambda op: 2 if "v_exp" in op else 1
        tot = sum(cost(o) for o in va); acc = 0; k = 0; ng = len(items)
        pos = [int((i + 0.5) * ng / max(nfill, 1)) for i in range(nfill)]
        for j, (need, m, post) in enumerate(items):
            if m:
                if need: a.lds_wait({need})
                a(m)
            if post: post()
            for _ in range(pos.count(j)):
                if fill: a.lines.append(fill.pop(0))
            while k < len(va) and acc + cost(va[k]) <= tot * (j + 1) / ng + 0.01:
                a(va[k]); acc += cost(va[k]); k += 1
        assert k == len(va)

    def dma_lines(slot, kind, pad=False):
        def f():
            dma_setup(slot, kind)
            for _ in range(8): dma_one(pad)
            if xmem and kind == "KV":
                a(f"s_mul_i32 s{S_A}, s{S_WAVE}, 7168")
                a(f"s_add_u32 m0, s{S_A}, {4*AREA+5120}")
                a(f"s_add_u32 s{S_A}, s{S_DOFF}, s76")
                for i in range(xmem):
                    a(f"buffer_load_dwordx4 v{V_DMA}, s[72:75], s{S_A} offen offset:{256*i} nt lds")
        return capture(f)
    def split_fill(fill, quota):
        out = []; idx = 0
        for q in quota:
            ch = []; n = 0
            while idx < len(fill) and n < q:
                ln = fill[idx]; ch.append(ln); idx += 1
                if "buffer_load" in ln:
                    n += 1
                    if idx < len(fill) and "m0, m0" in fill[idx]: ch.append(fill[idx]); idx += 1
            out.append(ch)
        out[-1] += fill[idx:]
        return out
    def step(jm, first=False, last=False, dma="KV", nt_=0, tr_=False, dyn=False):
        fill = [] if (first or early) else dma_lines((jm + 3) & 3, dma)
        nf = (len(fill) + len(dsl) - 1) // len(dsl)
        chunks = state.get("carry") or [[] for _ in range(5)]
        state["carry"] = None
        for i in range(7):
            if strace and tr_:
                pr = [36, 38, 40, 42, 56, 58, 60, 62]
                a(f"s_memtime s[{pr[i]}:{pr[i]+1}]")
            if i in (1, 2, 3)[:nt_]: touch_one()
            n = state["n"]; par = n & 1
            items = []
            nfill = nf if (str(i) in dsl and i <= 4) else 0
            if spread and i <= 4:
                fill = list(chunks[i]); nfill = len(fill)
            if i == 5:
                assert not fill
                if not (anbar and state.get("inat")): barrier(dyn)
                if first: flagcheck()
                if last or early:
                    fill = dma_lines(jm, dma, True if last else False); nf = (len(fill) + 1) // 2
                    if spread and not last:
                        ch = split_fill(fill, [int(c) for c in spread])
                        assert len(ch) == 7
                        nxt = ch; fill = list(ch[0]); state["carry"] = ch[2:]
            if (last or early) and i >= 5: nfill = nf
            if spread and not last and i == 5: nfill = len(fill)
            if spread and not last and i == 6: fill = list(nxt[1]); nfill = len(fill)
            if i < 6:
                items += qk_items(i + 1, par ^ 1, first, ((jm + 1) & 3) if (i == 5 and (not last or dma == "KV")) else None)
            elif not last:
                items += qk_items(0, par ^ 1, False, None)
            else:
                if dma == "KV": qreload()
                a("s_nop 1")
            if i > 0:
                items += pv_items(i - 1, par ^ 1, first, None)
            elif not first:
                items += pv_items(6, par ^ 1, False, jm)
            else:
                items += [(None, None, (lambda l=l: vread(l, jm))) for l in range(8)]
            ops_ = sm_ops(par, i, first)
            if state.get("inat") and anva:
                ops_ = [o for o in ops_ if not any(o.startswith(x) for x in anva.split(","))]
            emit(items, ops_, fill, nfill)
            state["n"] = n + 1
        assert not fill

    def qstash_off():
        a(f"s_lshl_b32 s{S_C}, s2, 2")
        a(f"s_add_u32 s{S_C}, s{S_C}, s{S_WAVE}")
        a(f"s_mul_i32 s{S_C}, s{S_C}, 28672")
        a(f"v_lshlrev_b32 v{V_T2}, 4, v{V_LANE}")
    def qreload():
        qstash_off()
        for i in range(7):
            for s_ in range(4):
                a(f"buffer_load_dwordx4 {ar(A_Q+16*i+4*s_,4)}, v{V_T2}, s[{S_W}:{S_W+3}], s{S_C} offen offset:{1024*s_}")
            if i < 6: a(f"s_add_u32 s{S_C}, s{S_C}, 4096")

    def flagcheck():
        lab = f"L_at_nofb_{len(a.lines)}"
        a(f"s_cmp_le_u32 s{S_T}, s{S_T0}")
        a(f"s_cbranch_scc1 {lab}")
        a(f"s_sub_u32 s{S_A}, s{S_T}, 1")
        a(f"s_cmp_eq_u32 s{S_A}, s{S_NOFB}")
        a(f"s_cbranch_scc1 {lab}")
        a(f"s_lshl_b32 s{S_B}, s{S_A}, 2")
        a(f"s_add_u32 s{S_B}, s{S_B}, {LDS_FLAG}")
        a(f"v_mov_b32 v{V_T2}, s{S_B}")
        a(f"ds_read_b32 v{V_T2}, v{V_T2}")
        a("s_waitcnt lgkmcnt(0)")
        a(f"v_readfirstlane_b32 s{S_B}, v{V_T2}")
        a("s_nop 3")
        a(f"s_cmp_lg_u32 s{S_B}, 0")
        a(f"s_cbranch_scc1 L_at_fallback")
        a.label(lab)

    def wo_issue_a(ps):
        a(f"s_and_b32 s{S_B}, s2, 127")
        a(f"s_mul_i32 s{S_B}, s{S_B}, {32*1280}")
        a(f"s_mul_i32 s{S_D}, s{S_WAVE}, 320")
        a(f"s_add_u32 s{S_B}, s{S_B}, s{S_D}")
        a(f"s_add_u32 s{S_B}, s{S_B}, {160*ps}")
        a(f"s_mul_i32 s{S_D}, s{S_WAVE}, 7168")
        a(f"s_add_u32 s{S_D}, s{S_D}, {4*AREA}")
        a(f"s_mov_b32 s{S_A}, 6554")
        for i in range(5):
            a(f"v_add_u32 v{V_T0}, {64*i}, v{V_LANE}")
            a(f"v_mul_u32_u24 v{V_T1}, s{S_A}, v{V_T0}")
            a(f"v_lshrrev_b32 v{V_T1}, 16, v{V_T1}")
            a(f"v_mul_u32_u24 v{V_T2}, 10, v{V_T1}")
            a(f"v_sub_u32 v{V_T2}, v{V_T0}, v{V_T2}")
            a(f"v_mul_u32_u24 v{V_T1}, 1280, v{V_T1}")
            a(f"s_add_u32 m0, s{S_D}, {1024*i}")
            a(f"v_lshl_add_u32 v{V_T3}, v{V_T2}, 4, v{V_T1}")
            a(f"buffer_load_dwordx4 v{V_T3}, s[84:87], s{S_B} offen lds")
    def wo_read_a():
        a(f"v_lshrrev_b32 v{V_T0}, 4, v{V_LANE}")
        a(f"v_bfe_u32 v{V_T1}, v{V_LANE}, 2, 2")
        a(f"v_lshl_add_u32 v{V_T1}, v{V_T0}, 3, v{V_T1}")
        a(f"v_mul_u32_u24 v{V_T1}, 160, v{V_T1}")
        a(f"v_and_b32 v{V_T2}, 3, v{V_LANE}")
        a(f"v_lshl_add_u32 v{V_T1}, v{V_T2}, 3, v{V_T1}")
        a(f"s_mul_i32 s{S_D}, s{S_WAVE}, 7168")
        a(f"s_add_u32 s{S_D}, s{S_D}, {4*AREA}")
        a(f"v_add_u32 v{V_T1}, s{S_D}, v{V_T1}")
        R = A_LS
        for t in range(5):
            for v in range(2):
                a(f"ds_read_b64_tr_b16 {ar(R+4*t+2*v,2)}, v{V_T1} offset:{v*640+t*32}")
    def wo_store_a(ps):
        R = A_LS
        a(f"v_lshlrev_b32 v{V_T2}, 4, v{V_LANE}")
        a(f"s_mul_i32 s{S_A}, s2, {40*1024}")
        a(f"s_mul_i32 s{S_B}, s{S_WAVE}, {10*1024}")
        a(f"s_add_u32 s{S_A}, s{S_A}, s{S_B}")
        a(f"s_add_u32 s{S_A}, s{S_A}, {WS_W+5120*ps}")
        a("s_waitcnt lgkmcnt(0)")
        for f in range(5):
            if f == 4: a(f"s_add_u32 s{S_A}, s{S_A}, 4096")
            a(f"buffer_store_dwordx4 {ar(R+4*f,4)}, v{V_T2}, s[{S_W}:{S_W+3}], s{S_A} offen offset:{1024*(f&3)} {wpol}".rstrip())
    def wo_finish_a(ps):
        wo_read_a(); wo_store_a(ps)
    def wo_issue(ps):
        D = V_S
        a(f"s_mov_b32 s{S_A}, 6554")
        for i in range(5):
            a(f"v_add_u32 v{V_T0}, {64*i}, v{V_LANE}")
            a(f"v_mul_u32_u24 v{V_T1}, s{S_A}, v{V_T0}")
            a(f"v_lshrrev_b32 v{V_T1}, 16, v{V_T1}")
            a(f"v_mul_u32_u24 v{V_T2}, 10, v{V_T1}")
            a(f"v_sub_u32 v{V_T2}, v{V_T0}, v{V_T2}")
            a(f"v_mul_u32_u24 v{V_T1}, 1280, v{V_T1}")
            a(f"v_lshl_add_u32 v{D+i}, v{V_T2}, 4, v{V_T1}")
        a(f"s_and_b32 s{S_A}, s2, 127")
        a(f"s_mul_i32 s{S_A}, s{S_A}, {32*1280}")
        a(f"s_mul_i32 s{S_B}, s{S_WAVE}, 320")
        a(f"s_add_u32 s{S_A}, s{S_A}, s{S_B}")
        a(f"s_add_u32 s{S_A}, s{S_A}, {160*ps}")
        a(f"s_mul_i32 s{S_D}, s{S_WAVE}, 7168")
        a(f"s_add_u32 s{S_D}, s{S_D}, {4*AREA}")
        for i in range(5):
            a(f"s_add_u32 m0, s{S_D}, {1024*i}")
            a("s_nop 0")
            a(f"buffer_load_dwordx4 v{D+i}, s[84:87], s{S_A} offen{' nt' if wont else ''} lds")
    def wo_finish(ps):
        if wo5:
            a(f"v_accvgpr_read_b32 v{V_T1}, a249")
        else:
            a(f"v_lshrrev_b32 v{V_T0}, 4, v{V_LANE}")
            a(f"v_bfe_u32 v{V_T1}, v{V_LANE}, 2, 2")
            a(f"v_lshl_add_u32 v{V_T1}, v{V_T0}, 3, v{V_T1}")
            a(f"v_mul_u32_u24 v{V_T1}, 160, v{V_T1}")
            a(f"v_and_b32 v{V_T2}, 3, v{V_LANE}")
            a(f"v_lshl_add_u32 v{V_T1}, v{V_T2}, 3, v{V_T1}")
            a(f"s_mul_i32 s{S_D}, s{S_WAVE}, 7168")
            a(f"s_add_u32 s{S_D}, s{S_D}, {4*AREA}")
            a(f"v_add_u32 v{V_T1}, s{S_D}, v{V_T1}")
        a(f"v_lshlrev_b32 v{V_T2}, 4, v{V_LANE}")
        a(f"s_mul_i32 s{S_A}, s2, {40*1024}")
        a(f"s_mul_i32 s{S_B}, s{S_WAVE}, {10*1024}")
        a(f"s_add_u32 s{S_A}, s{S_A}, s{S_B}")
        a(f"s_add_u32 s{S_A}, s{S_A}, {WS_W+5120*ps}")
        R = V_VF
        for t in range(5):
            for v in range(2):
                a(f"ds_read_b64_tr_b16 {vr(R+4*t+2*v,2)}, v{V_T1} offset:{v*640+t*32}")
        a("s_waitcnt lgkmcnt(0)")
        for f in range(5):
            if f == 4: a(f"s_add_u32 s{S_A}, s{S_A}, 4096")
            a(f"buffer_store_dwordx4 {vr(R+4*f,4)}, v{V_T2}, s[{S_W}:{S_W+3}], s{S_A} offen offset:{1024*(f&3)} {wpol}".rstrip())
        a("s_nop 1")

    def rt_setup():
        a(f"s_bfe_u32 s{S_A}, s2, 0x20003")
        a(f"s_lshl_b32 s{S_A}, s{S_A}, 3")
        a(f"v_lshrrev_b32 v{V_T0}, 3, v{V_LANE}")
        a(f"v_add_u32 v{V_T0}, s{S_A}, v{V_T0}")
        a(f"v_lshlrev_b32 v{V_T0}, 13, v{V_T0}")
        a(f"v_and_b32 v{V_T2}, 7, v{V_LANE}")
        a(f"v_lshl_add_u32 v{V_T0}, v{V_T2}, 5, v{V_T0}")
        a(f"v_bfe_u32 v{V_T1}, v{V_LANE}, 1, 4")
        a(f"v_min_u32 v{V_T1}, 13, v{V_T1}")
        a(f"s_and_b32 s{S_A}, s2, 7")
        a(f"s_mul_i32 s{S_A}, s{S_A}, 14")
        a(f"v_add_u32 v{V_T1}, s{S_A}, v{V_T1}")
        a(f"v_mul_u32_u24 v{V_T1}, 1280, v{V_T1}")
        a(f"v_and_b32 v{V_T2}, 1, v{V_LANE}")
        a(f"v_lshl_add_u32 v{V_T1}, v{V_T2}, 5, v{V_T1}")
        a(f"s_cmp_eq_u32 s{S_QH}, 0")
        a("s_cselect_b64 vcc, -1, 0")
        a("s_nop 1")
        a(f"v_cndmask_b32 v{V_T0}, v{V_T1}, v{V_T0}, vcc")
    def dly(us, tag):
        a("s_memrealtime s[78:79]")
        a("s_waitcnt lgkmcnt(0)")
        a(f"s_add_u32 s77, s78, {us*100}")
        a.label(f"L_dl{tag}")
        a("s_sleep 4")
        a("s_memrealtime s[78:79]")
        a("s_waitcnt lgkmcnt(0)")
        a("s_sub_u32 s79, s78, s77")
        a("s_cmp_lt_i32 s79, 0")
        a(f"s_cbranch_scc1 L_dl{tag}")
    def st(k):
        if pst:
            a("s_memrealtime s[78:79]")
            a("s_memtime s[80:81]")
            a("s_waitcnt lgkmcnt(0)")
            a("s_mov_b32 m0, s77"); a("s_nop 0"); a("v_writelane_b32 v0, s78, m0")
            a("s_add_u32 m0, s77, 30"); a("s_nop 0"); a("v_writelane_b32 v0, s80, m0")
            a("s_add_u32 s77, s77, 1")
        if stamp:
            if st0:
                n = len(a.lines)
                a(f"s_cmp_ge_u32 s{S_T}, {1 if k < 3 else 2}")
                a(f"s_cbranch_scc1 L_st_{n}")
            a(f"s_memtime s[{72+2*k}:{73+2*k}]")
            if st0: a.label(f"L_st_{n}")
    if pst:
        a("s_memrealtime s[78:79]")
        a("s_memtime s[80:81]")
        a("s_waitcnt lgkmcnt(0)")
        a("v_mov_b32 v0, 0")
        a("v_writelane_b32 v0, s78, 0")
        a("v_writelane_b32 v0, s80, 30")
        a("v_writelane_b32 v0, s74, 61")
        a("s_mov_b32 s77, 1")
    if delay:
        a("s_bitcmp1_b32 s2, 0")
        a("s_cbranch_scc0 L_nodelay")
        a("s_memrealtime s[78:79]")
        a("s_waitcnt lgkmcnt(0)")
        a(f"s_add_u32 s77, s78, {delay*100}")
        a.label("L_dl")
        a("s_sleep 8")
        a("s_memrealtime s[78:79]")
        a("s_waitcnt lgkmcnt(0)")
        a("s_sub_u32 s79, s78, s77")
        a("s_cmp_lt_i32 s79, 0")
        a("s_cbranch_scc1 L_dl")
        a.label("L_nodelay")
    a.label("L_at_start")
    if trace:
        a("s_mov_b32 s77, 1")
        a(f"v_mov_b32 v{V_T3}, s64")
        a("s_memtime s[78:79]")
        a("s_waitcnt lgkmcnt(0)")
        a(f"v_cmp_eq_u32 vcc, s77, v{V_LANE}")
        a(f"v_mov_b32 v{V_T2}, s78")
        a("s_nop 1")
        a(f"v_cndmask_b32 v{V_T3}, v{V_T3}, v{V_T2}, vcc")
        a("s_add_u32 s77, s77, 1")
    a(f"s_mov_b32 s{S_T}, s{S_T0}")
    a(f"s_lshl_b32 s{S_DJ}, s{S_T0}, 5")
    a(f"s_add_u32 s{S_D}, s{S_T}, s{S_PRE}")
    qs_init(S_D, "pre")
    if roll:
        rt_setup()
        for sl in range(2):
            dma_setup(sl, "QP")
            for _ in range(8): dma_one(True)
        a(f"s_mov_b32 s{S_B}, s{S_QS}")
        for _ in range(6):
            a(f"buffer_load_dword v0, v{V_T0}, s[{S_QP}:{S_QP+3}], s{S_B} offen{' nt' if tnt else ''}")
            a(f"s_add_u32 s{S_B}, s{S_B}, s{S_QSTEP}")
        for sl in range(2, 4):
            dma_setup(sl, "QP")
            for _ in range(8): dma_one(True)
        a(f"s_waitcnt vmcnt(30) lgkmcnt(0)")
    else:
        if wtl:
            a(f"s_and_b32 s56, s2, 127")
            a(f"s_mul_i32 s56, s56, {32*1280}")
            a(f"v_mov_b32 v{V_S+14}, 0")
            if wtl == 2: a(f"v_mul_u32_u24 v{V_S+14}, 640, v{V_LANE}")
            a(f"buffer_load_dword v{V_S+15}, v{V_S+14}, s[84:87], s56 offen")
        for sl in range(4):
            dma_setup(sl, "QP")
            for _ in range(8): dma_one(True)
            if pro1 and sl == 0:
                st(9)
                a("s_waitcnt vmcnt(0)")
                st(9)
        if wo5:
            a(f"s_and_b32 s56, s2, 127")
            a(f"s_mul_i32 s56, s56, {32*1280}")
            a(f"s_mul_i32 s58, s{S_WAVE}, 320")
            a(f"s_add_u32 s56, s56, s58")
            a(f"s_mul_i32 s58, s{S_WAVE}, 7168")
            a(f"s_add_u32 s58, s58, {4*AREA}")
            a(f"s_mov_b32 s{S_A}, 6554")
            for i in range(5):
                a(f"v_add_u32 v{V_T0}, {64*i}, v{V_LANE}")
                a(f"v_mul_u32_u24 v{V_T1}, s{S_A}, v{V_T0}")
                a(f"v_lshrrev_b32 v{V_T1}, 16, v{V_T1}")
                a(f"v_mul_u32_u24 v{V_T2}, 10, v{V_T1}")
                a(f"v_sub_u32 v{V_T2}, v{V_T0}, v{V_T2}")
                a(f"v_mul_u32_u24 v{V_T1}, 1280, v{V_T1}")
                a(f"v_lshl_add_u32 v{V_T3}, v{V_T2}, 4, v{V_T1}")
                a(f"v_accvgpr_write_b32 a{244+i}, v{V_T3}")
            a(f"v_lshrrev_b32 v{V_T0}, 4, v{V_LANE}")
            a(f"v_bfe_u32 v{V_T1}, v{V_LANE}, 2, 2")
            a(f"v_lshl_add_u32 v{V_T1}, v{V_T0}, 3, v{V_T1}")
            a(f"v_mul_u32_u24 v{V_T1}, 160, v{V_T1}")
            a(f"v_and_b32 v{V_T2}, 3, v{V_LANE}")
            a(f"v_lshl_add_u32 v{V_T1}, v{V_T2}, 3, v{V_T1}")
            a(f"v_add_u32 v{V_T1}, s58, v{V_T1}")
            a(f"v_accvgpr_write_b32 a249, v{V_T1}")
        if tlbw:
            a(f"v_lshlrev_b32 v{V_S+13}, 12, v{V_LANE}")
            a(f"buffer_load_dword v{V_S+12}, v{V_S+13}, s[{S_LD}:{S_LD+3}], 0 offen nt")
            if tlbw > 1:
                a(f"s_mov_b32 s{S_A}, 0x80000")
                a(f"buffer_load_dword v{V_S+12}, v{V_S+13}, s[{S_LD}:{S_LD+3}], s{S_A} offen nt")
        if bulk0 and touch:
            touch_init(S_D)
            for _ in range(5): touch_one()
        if cpf and cpflate:
            for k in range(cpf // 16):
                a(f"s_mov_b32 s76, {k*16384}")
                a("buffer_load_dword v104, v105, s[72:75], s76 offen")
        a(f"s_waitcnt vmcnt({(29 if (bulk0 and touch) else 24) + (cpf // 16 if cpflate else 0)}) lgkmcnt(0)")
    a("s_barrier")
    a.label("L_at_round")
    st(0)
    if roll: rt_setup()
    for l in range(8): wread(l, 0)
    for qt in range(7): bread(0, qt, 0)
    a.lds_wait_all()
    def qp_body(role):
        sfx = role or ""
        vns = {None: (22, 17, 18, 18, 18), "W": (16, 16, 16, 16, 16), "X": (16, 22, 28, 28, 28), "T": (16, 20, 20, 63, 63)}[role]
        nts = (6, 4, 4, 2)
        qp_stage(0, first=True, chk=True, after_store=True, vn=vns[0], role=role, ntouch=nts[0], sidx=0, code=("P", 0))
        qp_stage(1, after_store=True, vn=vns[1], role=role, ntouch=nts[1], sidx=1, code=("P", 1))
        qp_stage(2, after_store=True, vn=vns[2], role=role, ntouch=nts[2], sidx=2, code=("P", 2))
        qp_stage(3, vn=vns[3], role=role, ntouch=nts[3], sidx=3, code=("P", 3))
        if not wo2:
            a(f"s_cmp_lg_u32 s{S_WO}, 0")
            a(f"s_cbranch_scc1 L_at_nowo0{sfx}")
            a(f"s_mov_b32 s{S_WO}, 1")
            wo_issue(0)
            if roll: rt_setup()
            a.label(f"L_at_nowo0{sfx}")
        a(f"s_mov_b32 s{S_CNT}, 0")
        a.label(f"L_at_qploop{sfx}")
        a.lds_q = []
        if wo6:
            a(f"s_lshl3_add_u32 s{S_A}, s{S_WO}, s{S_CNT}")
            a(f"s_cmp_eq_u32 s{S_A}, {int(wo6[0])}")
            a("s_cbranch_scc1 L_at_wh0")
            a(f"s_cmp_eq_u32 s{S_A}, {8 + int(wo6[1])}")
            a("s_cbranch_scc1 L_at_wh1")
            a.label("L_at_whr")
            def h0():
                a(f"s_mov_b32 s{S_WO}, 1")
                for i in range(5):
                    a(f"s_add_u32 m0, s58, {1024*i}")
                    a(f"v_accvgpr_read_b32 v{V_T3}, a{244+i}")
                    a(f"buffer_load_dwordx4 v{V_T3}, s[84:87], s56 offen lds")
                a("s_branch L_at_whr")
            def h1():
                a(f"s_mov_b32 s{S_WO}, 2")
                a(f"v_accvgpr_read_b32 v{V_T1}, a249")
                a("s_add_u32 s57, s56, 160")
                for t in range(5):
                    for v in range(2):
                        a(f"ds_read_b64_tr_b16 {ar(A_LS+4*t+2*v,2)}, v{V_T1} offset:{v*640+t*32}")
                a("s_waitcnt lgkmcnt(0)")
                for i in range(5):
                    a(f"s_add_u32 m0, s58, {1024*i}")
                    a(f"v_accvgpr_read_b32 v{V_T3}, a{244+i}")
                    a(f"buffer_load_dwordx4 v{V_T3}, s[84:87], s57 offen lds")
                a("s_branch L_at_whr")
            state.setdefault("ool", []).extend(["L_at_wh0:"] + capture(h0) + ["L_at_wh1:"] + capture(h1))
        for sm in range(4): qp_stage(sm, vn=vns[4], role=role, sidx=4+sm, code=("L", sm))
        a(f"s_add_u32 s{S_CNT}, s{S_CNT}, 1")
        a(f"s_cmp_lt_u32 s{S_CNT}, 3")
        a(f"s_cbranch_scc1 L_at_qploop{sfx}")
    if not roles:
        qp_body(None)
    else:
        a(f"s_cmp_eq_u32 s{S_WAVE}, 1")
        a("s_cbranch_scc1 L_at_qpX")
        a(f"s_cmp_eq_u32 s{S_WAVE}, 3")
        a("s_cbranch_scc1 L_at_qpT")
        qp_body("W")
        a("s_branch L_at_qpjoin")
        a.label("L_at_qpX")
        qp_body("X")
        a("s_branch L_at_qpjoin")
        a.label("L_at_qpT")
        a(f"s_bfe_u32 s{S_A}, s2, 0x20003")
        a(f"s_lshl_b32 s{S_A}, s{S_A}, 3")
        a(f"v_lshrrev_b32 v{V_T0}, 3, v{V_LANE}")
        a(f"v_add_u32 v{V_T0}, s{S_A}, v{V_T0}")
        a(f"v_lshlrev_b32 v{V_T0}, 13, v{V_T0}")
        a(f"v_and_b32 v{V_T1}, 7, v{V_LANE}")
        a(f"v_lshl_add_u32 v{V_T0}, v{V_T1}, 6, v{V_T0}")
        a(f"v_min_u32 v{V_T1}, 27, v{V_LANE}")
        a(f"s_and_b32 s{S_A}, s2, 7")
        a(f"s_mul_i32 s{S_B}, s{S_A}, 28")
        a(f"v_add_u32 v{V_T1}, s{S_B}, v{V_T1}")
        a(f"v_mul_u32_u24 v{V_T1}, 1280, v{V_T1}")
        a(f"s_lshl_b32 s{S_A}, s{S_A}, 10")
        a(f"s_lshl_b32 s{S_B}, s101, 9")
        a(f"s_add_u32 s98, s{S_A}, s{S_B}")
        a(f"s_add_u32 s98, s98, {4*32*8192}")
        a(f"s_bfe_u32 s{S_A}, s2, 0x40003")
        a(f"s_mul_i32 s99, s{S_A}, {224*1280}")
        a(f"s_add_u32 s99, s99, {4*64}")
        qp_body("T")
        a.label("L_at_qpjoin")
    a(f"s_cmp_lg_u32 s{S_PRE}, 0")
    a("s_cbranch_scc1 L_at_qptailB")
    for sm in range(4): qp_stage(sm, dma="KV", last=(sm == 3), vn=(18, 17, 16, 16)[sm], sidx=16+sm, code=("T", sm))
    a("s_branch L_at_qpepi")
    a.label("L_at_qptailB")
    qs_init(S_T)
    a.lds_q = []
    for sm in range(4): qp_stage(sm, dma="QP", last=(sm == 3), vn=18, nok=True, sidx=16+sm, code=("B", sm))
    a.label("L_at_qpepi")
    if qdelay: dly(qdelay, "q")
    st(1)
    if trace:
        a("s_cmp_lg_u32 s2, 5")
        a("s_cbranch_scc1 L_tr_skip")
        a(f"s_cmp_lg_u32 s{S_T}, 0")
        a("s_cbranch_scc1 L_tr_skip")
        a(f"s_cmp_lg_u32 s{S_WAVE}, 0")
        a("s_cbranch_scc1 L_tr_skip")
        a("s_mov_b32 s80, s46"); a("s_mov_b32 s81, s47"); a("s_mov_b32 s82, 256"); a("s_mov_b32 s83, 0x20000")
        a(f"v_lshlrev_b32 v{V_T2}, 2, v{V_LANE}")
        a(f"v_add_u32 v{V_T2}, 128, v{V_T2}")
        a(f"buffer_store_dword v{V_T3}, v{V_T2}, s[80:83], 0 offen")
        a.label("L_tr_skip")
    if defer: a("s_mov_b32 s98, 0x40000000")
    a(f"v_mov_b32 v{V_T2}, s{S_CS}")
    a(f"v_mov_b32 v{V_T3}, s{S_CS}")
    a("s_nop 6")
    TMP = V_S
    for T in range(4):
        if T < 2:
            base = lambda e, qt: V_OK + 28 * (2 * T + e) + 4 * qt
        else:
            base = lambda e, qt: V_OK + 28 * (2 * (T - 2) + e) + 4 * qt
            for e in range(2):
                for qt in range(7):
                    for r in range(4):
                        a(f"v_accvgpr_read_b32 v{base(e,qt)+r}, a{A_OS+28*(2*(T-2)+e)+4*qt+r}")
        for e in range(2):
            for qt in range(7):
                o = base(e, qt)
                for h in range(2):
                    a(f"v_pk_mul_f32 {vr(o+2*h,2)}, {vr(o+2*h,2)}, {vr(V_T2,2)}")
        pk = lambda qt: TMP + 28 * (T & 1) + 4 * qt
        for qt in range(7):
            oe = base(0, qt); oo = base(1, qt); p = pk(qt)
            a(f"v_cvt_pk_bf16_f32 v{p}, v{oe}, v{oe+1}")
            a(f"v_cvt_pk_bf16_f32 v{p+1}, v{oe+2}, v{oe+3}")
            a(f"v_cvt_pk_bf16_f32 v{p+2}, v{oo}, v{oo+1}")
            a(f"v_cvt_pk_bf16_f32 v{p+3}, v{oo+2}, v{oo+3}")
        a("s_nop 1")
        for qt in range(7):
            p = pk(qt)
            a(f"v_permlane16_swap_b32 v{p}, v{p+2}")
            a(f"v_permlane16_swap_b32 v{p+1}, v{p+3}")
        for qt in range(7):
            for r in range(4):
                a(f"v_accvgpr_write_b32 a{A_Q+16*qt+4*T+r}, v{pk(qt)+r}")
    a(f"s_cmp_eq_u32 s{S_PRE}, 0")
    a("s_cbranch_scc1 L_at_nostash")
    a(f"s_mov_b32 s{S_PRE}, 0")
    qstash_off()
    for i in range(7):
        for s_ in range(4):
            a(f"buffer_store_dwordx4 {ar(A_Q+16*i+4*s_,4)}, v{V_T2}, s[{S_W}:{S_W+3}], s{S_C} offen offset:{1024*s_} {qpol}".rstrip())
        if i < 6: a(f"s_add_u32 s{S_C}, s{S_C}, 4096")
    a(f"s_mov_b32 s{S_AS}, 3")
    a("s_branch L_at_round")
    a.label("L_at_nostash")
    a(f"s_cmp_lg_u32 s{S_MP}, 0")
    a("s_cbranch_scc1 L_at_maxpass")
    a.label("L_at_pre")
    if wo6:
        pass
    elif wo2:
        assert inv
        a(f"s_cmp_lg_u32 s{S_WO}, 0")
        a("s_cbranch_scc1 L_at_nowo1a")
        a(f"s_mov_b32 s{S_WO}, {2 if wo5 else 1}")
        a(f"s_mov_b32 s{S_AS}, 0x103")
        if wo5:
            a(f"v_accvgpr_read_b32 v{V_T1}, a249")
            a("s_add_u32 s57, s56, 160")
            a("s_waitcnt vmcnt(24)")
            for t in range(5):
                for v in range(2):
                    a(f"ds_read_b64_tr_b16 {ar(A_LS+4*t+2*v,2)}, v{V_T1} offset:{v*640+t*32}")
            a("s_waitcnt lgkmcnt(0)")
            for i in range(5):
                a(f"s_add_u32 m0, s58, {1024*i}")
                a(f"v_accvgpr_read_b32 v{V_T3}, a{244+i}")
                a(f"buffer_load_dwordx4 v{V_T3}, s[84:87], s57 offen lds")
        else:
            wo_issue(0)
        if not (wo3 or wo4): a("s_branch L_at_nowo1")
        a.label("L_at_nowo1a")
        if not (wo3 or wo4):
            a(f"s_cmp_lg_u32 s{S_WO}, 2")
            a("s_cbranch_scc1 L_at_nowo1")
            a(f"s_cmp_lg_u32 s{S_TY}, 0")
            a("s_cbranch_scc1 L_at_nowo1")
            a(f"s_mov_b32 s{S_WO}, 3")
            a(f"s_mov_b32 s{S_AS}, 0x103")
            wo_finish(1)
    else:
        a(f"s_cmp_lg_u32 s{S_WO}, 1")
        a("s_cbranch_scc1 L_at_nowo1")
        a(f"s_mov_b32 s{S_WO}, 2")
        wo_finish(0)
        wo_issue(1)
    a.label("L_at_nowo1")
    st(2)
    a.lds_q = ["K"]
    state["n"] = 0
    z = []
    for l in range(8):
        for r in range(4):
            z.append(f"v_mov_b32 v{V_OK+28*l+24+r}, 0" if l < 4 else f"v_accvgpr_write_b32 a{A_OS+28*(l-4)+24+r}, 0")
    if ones: z += [f"v_accvgpr_write_b32 a{A_LS+24+r}, 0" for r in range(4)]
    emit(qk_items(0, 0, True, None), z[:16])
    for o in z[16:]: a(o)
    step(0, first=True, dyn=True)
    a(f"s_mov_b32 s{S_CNT}, 0")
    if align:
        a.lines.append(".p2align 6")
        if align == 2: a("s_nop 0")
    a.label("L_at_loop")
    q0 = list(a.lds_q)
    state["inat"] = True
    for jm in (1, 2, 3, 0): step(jm, dyn=(jm in (1, 2)))
    state["inat"] = False
    assert q0 == a.lds_q, (q0, a.lds_q)
    if pstl:
        a("s_memrealtime s[78:79]")
        a("s_memtime s[80:81]")
        a("s_waitcnt lgkmcnt(0)")
        a("s_mov_b32 s76, m0")
        a("s_mov_b32 m0, s77"); a("s_nop 0"); a("v_writelane_b32 v0, s78, m0")
        a("s_add_u32 m0, s77, 30"); a("s_nop 0"); a("v_writelane_b32 v0, s80, m0")
        a("s_add_u32 s77, s77, 1")
        a("s_mov_b32 m0, s76")
    a(f"s_add_u32 s{S_CNT}, s{S_CNT}, 1")
    if wo3:
        assert lp7 and not ones
        a(f"s_lshl3_add_u32 s{S_A}, s{S_WO}, s{S_CNT}")
        a(f"s_cmp_eq_u32 s{S_A}, {8 + wo3}")
        a("s_cbranch_scc1 L_at_wof0")
        a.label("L_at_wof0r")
    a(f"s_cmp_lt_u32 s{S_CNT}, {7 if lp7 else 6}")
    a("s_cbranch_scc1 L_at_loop")
    if wo4 and not wo5:
        assert lp7 and not ones
        a(f"s_cmp_lg_u32 s{S_WO}, 1")
        a("s_cbranch_scc1 L_at_nowoi1")
        a(f"s_mov_b32 s{S_WO}, 2")
        a(f"s_mov_b32 s{S_AS}, 0x102")
        wo_read_a()
        a("s_waitcnt lgkmcnt(0)")
        wo_issue_a(1)
        a.label("L_at_nowoi1")
    if wo3:
        a(f"s_cmp_lg_u32 s{S_WO}, 2")
        a("s_cbranch_scc1 L_at_nowoi1")
        a(f"s_mov_b32 s{S_WO}, 3")
        a(f"s_mov_b32 s{S_AS}, 0x102")
        wo_issue_a(1)
        a.label("L_at_nowoi1")
        ls = capture(lambda: (wo_finish_a(0), a(f"s_mov_b32 s{S_WO}, 2"), a(f"s_mov_b32 s{S_AS}, 0x102"), a("s_branch L_at_wof0r")))
        state.setdefault("ool", []).extend(["L_at_wof0:"] + ls)
    a(f"s_add_u32 s{S_T}, s{S_T}, 1")
    touch_init(S_T)
    assert not (lp7 and early)
    if not lp7:
        step(1, nt_=3); step(2, nt_=2); step(3, tr_=True)
    if strace: a("s_memtime s[62:63]")
    qs_init(S_T)
    if not early and not lp7: step(0)
    a(f"s_cmp_lg_u32 s{S_TY}, 0")
    a("s_cbranch_scc1 L_at_atailB")
    n0 = state["n"]; q0 = list(a.lds_q); c0 = state.get("carry")
    if early: step(0, dma="QP")
    step(1, dma="QP", dyn=bool((wo3 or wo4) and not wo5)); step(2, dma="QP", dyn=bool((wo3 or wo4) and not wo5)); step(3, dma="QP", last=True)
    a("s_branch L_at_aepi")
    a.label("L_at_atailB")
    state["n"] = n0; a.lds_q = q0; state["carry"] = c0
    if early: step(0)
    step(1, dyn=bool((wo3 or wo4) and not wo5)); step(2, dyn=bool((wo3 or wo4) and not wo5)); step(3, last=True)
    a.label("L_at_aepi")
    if adelay: dly(adelay, "a")
    a.lds_q = ["V"]
    st(3)
    E = V_S
    red = [f"v_add_f32 v{V_L+2*i}, v{V_L+2*i}, v{V_L+2*i+1}" for i in range(7)]
    red += [f"v_mov_b32 v{E+i}, v{V_L+2*i}" for i in range(7)]
    red += [f"v_permlane16_swap_b32 v{V_L+2*i}, v{E+i}" for i in range(7)]
    red += [f"v_add_f32 v{V_L+2*i}, v{V_L+2*i}, v{E+i}" for i in range(7)]
    red += [f"v_mov_b32 v{E+i}, v{V_L+2*i}" for i in range(7)]
    red += [f"v_permlane32_swap_b32 v{V_L+2*i}, v{E+i}" for i in range(7)]
    red += [f"v_add_f32 v{V_L+2*i}, v{V_L+2*i}, v{E+i}" for i in range(7)]
    a("s_nop 1")
    if ones:
        emit(pv_items(6, 1, False, None), [])
        a("s_nop 7")
        for i in range(7): a(f"v_accvgpr_read_b32 v{V_L+2*i}, a{A_LS+4*i}")
    else:
        emit(pv_items(6, 1, False, None), red)
    for i in range(7): a(f"v_rcp_f32 v{V_CI+4*i}, v{V_L+2*i}")
    a(f"v_add_f32 v{E+2}, v{V_L}, v{V_L+2}")
    a(f"v_add_f32 v{E+3}, v{V_L+4}, v{V_L+6}")
    a(f"v_add_f32 v{E+4}, v{V_L+8}, v{V_L+10}")
    a(f"v_add_f32 v{E+2}, v{E+2}, v{V_L+12}")
    a(f"v_add_f32 v{E+3}, v{E+3}, v{E+4}")
    a(f"v_add_f32 v{E+2}, v{E+2}, v{E+3}")
    a(f"v_cmp_nge_f32 vcc, s{S_THR}, v{E+2}")
    for i in range(7): a(f"v_mov_b32 v{V_L+2*i}, 0xff800000")
    a("s_cmp_eq_u64 vcc, 0")
    a("s_cbranch_scc1 L_at_noflag")
    if nofb: a("s_branch L_at_noflag")
    a(f"s_lshl_b32 s{S_B}, s{S_T}, 2")
    a(f"s_add_u32 s{S_B}, s{S_B}, {LDS_FLAG-4}")
    a(f"v_mov_b32 v{E+2}, s{S_B}")
    a(f"v_mov_b32 v{E+3}, 1")
    a(f"ds_write_b32 v{E+2}, v{E+3}")
    a.label("L_at_noflag")
    if rflip:
        a(f"s_sub_u32 s{S_D}, s{S_T}, 1")
        a(f"s_mul_i32 s{S_D}, s{S_D}, s99")
        a(f"s_add_u32 s{S_D}, s{S_D}, s{S_OOFF}")
    else:
        a(f"s_mul_i32 s{S_D}, s{S_T}, {2*PAIRB}")
        a(f"s_add_u32 s{S_D}, s{S_D}, s{S_OOFF}")
        a(f"s_sub_u32 s{S_D}, s{S_D}, {2*PAIRB}")
    if defer:
        a(f"s_cmp_lt_u32 s{S_T}, 2")
        a(f"s_cselect_b32 s99, 1, 0")
        a(f"s_cmp_eq_u32 s{S_TY}, 0")
        a(f"s_cselect_b32 s99, s99, 0")
        a(f"s_cmp_lg_u32 s99, 0")
        a(f"s_cselect_b32 s98, s{S_D}, s98")
    for T in range(4):
        if T < 2:
            base = lambda e, qt: V_OK + 28 * (2 * T + e) + 4 * qt
        else:
            base = lambda e, qt: V_OK + 28 * (2 * (T - 2) + e) + 4 * qt
            for e in range(2):
                for qt in range(7):
                    for r in range(4):
                        a(f"v_accvgpr_read_b32 v{base(e,qt)+r}, a{A_OS+28*(2*(T-2)+e)+4*qt+r}")
        for e in range(2):
            for qt in range(7):
                o = base(e, qt)
                for h in range(2):
                    a(f"v_pk_mul_f32 {vr(o+2*h,2)}, {vr(o+2*h,2)}, {vr(V_CI+4*qt,2)} op_sel_hi:[1,0]")
        pk = lambda qt: V_S + 28 * (T & 1) + 4 * qt
        for qt in range(7):
            oe = base(0, qt); oo = base(1, qt); p = pk(qt)
            a(f"v_cvt_pk_bf16_f32 v{p}, v{oe}, v{oe+1}")
            a(f"v_cvt_pk_bf16_f32 v{p+1}, v{oe+2}, v{oe+3}")
            a(f"v_cvt_pk_bf16_f32 v{p+2}, v{oo}, v{oo+1}")
            a(f"v_cvt_pk_bf16_f32 v{p+3}, v{oo+2}, v{oo+3}")
        a("s_nop 1")
        for qt in range(7):
            p = pk(qt)
            a(f"v_permlane16_swap_b32 v{p}, v{p+2}")
            a(f"v_permlane16_swap_b32 v{p+1}, v{p+3}")
        if defer:
            a(f"s_cmp_lg_u32 s99, 0")
            a(f"s_cbranch_scc1 L_at_dfr{T}")
        a(f"s_mov_b32 s{S_A}, s{S_D}")
        for qt in range(7):
            if not nost: a(f"buffer_store_dwordx4 {vr(pk(qt),4)}, v{V_XA}, s[{S_W}:{S_W+3}], s{S_A} offen offset:{1024*T} {stpol}".rstrip())
            if dupst:
                a(f"s_sub_u32 s{S_B}, s{S_A}, {WS_O - 30000000}")
                a(f"buffer_store_dwordx4 {vr(pk(qt),4)}, v{V_XA}, s[72:75], s{S_B} offen offset:{1024*T}")
            if qt < 6: a(f"s_add_u32 s{S_A}, s{S_A}, 4096")
        if defer:
            a(f"s_branch L_at_dfj{T}")
            a.label(f"L_at_dfr{T}")
            for qt in range(7):
                for r in range(4):
                    a(f"v_accvgpr_write_b32 a{A_Q+16*qt+4*T+r}, v{pk(qt)+r}")
            a.label(f"L_at_dfj{T}")
    a("s_nop 1")
    if wo4:
        a(f"s_mov_b32 s{S_AS}, 3")
        a(f"s_cmp_lg_u32 s{S_WO}, 2")
        a("s_cbranch_scc1 L_at_nowo2")
        a(f"s_mov_b32 s{S_WO}, 4")
        a(f"s_mov_b32 s{S_AS}, 0x303")
        if wo5:
            a(f"v_accvgpr_read_b32 v{V_T1}, a249")
            a(f"v_lshlrev_b32 v{V_T2}, 4, v{V_LANE}")
            a(f"s_mul_i32 s{S_A}, s2, {40*1024}")
            a(f"s_mul_i32 s{S_B}, s{S_WAVE}, {10*1024}")
            a(f"s_add_u32 s{S_A}, s{S_A}, s{S_B}")
            a(f"s_add_u32 s{S_A}, s{S_A}, {WS_W}")
            R = V_VF
            for t in range(5):
                for v in range(2):
                    a(f"ds_read_b64_tr_b16 {vr(R+4*t+2*v,2)}, v{V_T1} offset:{v*640+t*32}")
            for f in range(5):
                if f == 4: a(f"s_add_u32 s{S_A}, s{S_A}, 4096")
                a(f"buffer_store_dwordx4 {ar(A_LS+4*f,4)}, v{V_T2}, s[{S_W}:{S_W+3}], s{S_A} offen offset:{1024*(f&3)} {wpol}".rstrip())
            a(f"s_add_u32 s{S_A}, s{S_A}, 1024")
            a("s_waitcnt lgkmcnt(0)")
            for f in range(5):
                if f == 4: a(f"s_add_u32 s{S_A}, s{S_A}, 4096")
                a(f"buffer_store_dwordx4 {vr(R+4*f,4)}, v{V_T2}, s[{S_W}:{S_W+3}], s{S_A} offen offset:{1024*(f&3)} {wpol}".rstrip())
            a("s_nop 1")
        else:
            wo_store_a(0)
            wo_finish(1)
    elif wo2 and not wo3:
        a(f"s_cmp_lg_u32 s{S_WO}, 1")
        a("s_cbranch_scc1 L_at_nowo2a")
        a(f"s_mov_b32 s{S_WO}, 2")
        wo_finish(0)
        wo_issue(1)
        a("s_branch L_at_nowo2")
        a.label("L_at_nowo2a")
    if not wo4:
        a(f"s_cmp_lg_u32 s{S_WO}, {3 if wo3 else 2}")
        a("s_cbranch_scc1 L_at_nowo2")
        a(f"s_mov_b32 s{S_WO}, {4 if wo3 else 3}")
        wo_finish(1)
    a.label("L_at_nowo2")
    if not wo4: a(f"s_mov_b32 s{S_AS}, 3")
    if defer:
        a("s_cmp_lg_u32 s99, 0")
        a(f"s_cselect_b32 s{S_AS}, 0, 3")
    st(4)
    a.lds_q = []
    a(f"s_cmp_ge_u32 s{S_T}, 2")
    a("s_cbranch_scc1 L_at_fin")
    a(f"s_cmp_eq_u32 s{S_TY}, 0")
    a("s_cbranch_scc1 L_at_round")
    a(f"s_waitcnt vmcnt({56 if dupst else (33 if wo3 else 38 if wo2 else 28)})")
    a("s_branch L_at_pre")
    a.label("L_at_fin")
    a("s_waitcnt lgkmcnt(0)")
    a("s_barrier")
    flagcheck()
    if pst:
        a("s_memrealtime s[78:79]")
        a("s_memtime s[80:81]")
        a("s_waitcnt lgkmcnt(0)")
        a("s_mov_b32 m0, s77"); a("s_nop 0"); a("v_writelane_b32 v0, s78, m0")
        a("s_add_u32 m0, s77, 30"); a("s_nop 0"); a("v_writelane_b32 v0, s80, m0")
        a("s_getreg_b32 s62, hwreg(HW_REG_XCC_ID)")
        a("v_writelane_b32 v0, s62, 63")
        a(f"v_writelane_b32 v0, s{S_TY}, 62")
        a(f"s_cmp_lg_u32 s{S_WAVE}, 0")
        a("s_cbranch_scc1 L_at_end")
        a("s_lshl_b32 s62, s2, 8"); a("s_add_u32 s62, s62, 50000000")
        a(f"v_lshlrev_b32 v2, 2, v{V_LANE}")
        a(f"buffer_store_dword v0, v2, s[{S_W}:{S_W+3}], s62 offen")
    if stamp:
        a("s_memtime s[56:57]")
        a("s_memrealtime s[58:59]")
        a("s_waitcnt lgkmcnt(0)")
        if allst:
            a("v_mov_b32 v2, s66"); a("v_mov_b32 v3, s58")
            a("s_sub_u32 s62, s56, s64"); a("v_mov_b32 v4, s62")
            a("s_getreg_b32 s62, hwreg(HW_REG_XCC_ID)"); a("v_mov_b32 v5, s62")
            a("s_lshl_b32 s62, s2, 4"); a("s_add_u32 s62, s62, 50000000"); a("v_mov_b32 v6, s62")
            a(f"buffer_store_dwordx4 v[2:5], v6, s[{S_W}:{S_W+3}], 0 offen")
        a(f"s_cmp_lg_u32 s2, {stwg}")
        a("s_cbranch_scc1 L_at_end")
        a("s_sub_u32 s56, s56, s64")
        a("s_sub_u32 s58, s58, s66")
        a("s_mov_b32 s84, s46")
        a("s_mov_b32 s85, s47")
        a("s_mov_b32 s86, 256")
        a("s_mov_b32 s87, 0x20000")
        a("v_mov_b32 v2, s56")
        a("v_mov_b32 v3, s58")
        a(f"s_lshl_b32 s62, s{S_WAVE}, 3")
        a("v_mov_b32 v4, s62")
        a("buffer_store_dwordx2 v[2:3], v4, s[84:87], 0 offen")
        if strace:
            pr = [36, 38, 40, 42, 56, 58, 60, 62]
            for i in range(7):
                a(f"s_sub_u32 s78, s{pr[i+1]}, s{pr[i]}")
                a("v_mov_b32 v2, s78")
                a(f"v_mov_b32 v4, {160+4*i}")
                a("buffer_store_dword v2, v4, s[84:87], 0 offen")
        a("s_sub_u32 s62, s72, s64")
        a("v_mov_b32 v2, s62")
        a(f"v_mov_b32 v4, {DBO+4*5}")
        a("buffer_store_dword v2, v4, s[84:87], 0 offen")
        for k in range(1, 5):
            a(f"s_sub_u32 s62, s{72+2*k}, s{70+2*k}")
            a("v_mov_b32 v2, s62")
            a(f"v_mov_b32 v4, {DBO+4*k}")
            a("buffer_store_dword v2, v4, s[84:87], 0 offen")
    a("s_branch L_at_end")
    for ln in state.get("ool", []): a.lines.append(ln)

    a.label("L_at_fallback")
    a(f"s_sub_u32 s{S_T0}, s{S_T}, 1")
    a(f"s_mov_b32 s{S_NOFB}, s{S_T0}")
    a(f"s_mov_b32 s{S_MP}, 1")
    a(f"s_mov_b32 s{S_TY}, 0")
    a(f"s_mov_b32 s{S_PRE}, 0")
    a(f"s_mov_b32 s{S_AS}, 0")
    if defer: a("s_mov_b32 s98, 0x40000000")
    for i in range(7): a(f"v_mov_b32 v{V_L+2*i}, 0xff800000")
    a("s_waitcnt vmcnt(0) lgkmcnt(0)")
    a("s_barrier")
    a("s_branch L_at_start")
    a.label("L_at_maxpass")
    a(f"s_mov_b32 s{S_MP}, 0")
    a("s_waitcnt lgkmcnt(0)")
    a(f"v_and_b32 v{V_T0}, 15, v{V_LANE}")
    a(f"v_lshlrev_b32 v{V_T0}, 8, v{V_T0}")
    a(f"v_bfe_u32 v{V_T1}, v{V_LANE}, 4, 1")
    a(f"v_lshl_add_u32 v{V_T0}, v{V_T1}, 5, v{V_T0}")
    a(f"v_bfe_u32 v{V_T1}, v{V_LANE}, 5, 1")
    a(f"v_lshl_add_u32 v{V_T2}, v{V_T1}, 4, v{V_T0}")
    a(f"v_add_u32 v{V_T3}, 4096, v{V_T2}")
    a(f"s_lshl_b32 s{S_B}, s{S_T}, 19")
    if rflip: a(f"s_xor_b32 s{S_B}, s{S_B}, s101")
    a(f"s_mov_b32 s{S_CNT}, 0")
    a.label("L_at_mp")
    for f in range(8):
        a(f"buffer_load_dwordx4 {vr(V_VF+4*f,4)}, v{V_T2 + (f>>2)}, s[{S_K}:{S_K+3}], s{S_B} offen offset:{64*(f&3)}")
    a("s_waitcnt vmcnt(0)")
    for i in range(7):
        for f in range(8):
            kt, s = f >> 2, f & 3
            D = vr(V_S + 4 * kt, 4)
            a(f"{MFMA} {D}, {vr(V_VF+4*f,4)}, {ar(A_Q+16*i+4*s,4)}, {'0' if s == 0 else D}")
        a("s_nop 9")
        for r in range(0, 8, 2):
            a(f"v_max3_f32 v{V_L+2*i}, v{V_S+r}, v{V_S+r+1}, v{V_L+2*i}")
        a("s_nop 3")
    a(f"s_add_u32 s{S_B}, s{S_B}, 8192")
    a(f"s_add_u32 s{S_CNT}, s{S_CNT}, 1")
    a(f"s_cmp_lt_u32 s{S_CNT}, 32")
    a("s_cbranch_scc1 L_at_mp")
    a("s_branch L_at_pre")
    a.label("L_at_end")
    a("s_endpgm")
    return a.text()

if __name__ == "__main__":
    import sys
    name = "fused_kernel"
    opts = dict(x.split("=") for x in sys.argv[2:])
    opts = {k: bool(int(v)) for k, v in opts.items()}
    body = gen_fused(name, **opts)
    out = f"; @launch kernel={name} grid=(256,1,1) block=(256,1,1) lds={LDS_BYTES}\n"
    out += '.amdgcn_target "amdgcn-amd-amdhsa--gfx950"\n.text\n' + kernel_header(name) + body
    out += '.section .rodata,"a"\n.p2align 6\n' + kernel_desc(name, 512, accum=256)
    open(sys.argv[1], "w").write(out)
```

```python
from gen_common import *
import math

NQB = 3584 * 4096 * 2
WS_O = 2 * NQB
WS_W = 4 * NQB
WS_BYTES = 4 * NQB + 2 * 4096 * 640 * 2
PAIRB = 224 * 128 * 2

TILE = 8448
RING = 4
AREA = RING * TILE
LDS_BYTES = 163840
LDS_FLAG = 2 * AREA + 1024
LDS_FLAG = 2 * AREA + 8416

def kpad(i): return 1024 * i + 16 * ((i & 1) + 4 * (i >> 1))

V_LANE, V_T0, V_T1, V_T2, V_T3, V_LIN, V_DMA = 1, 2, 3, 4, 5, 6, 7
V_KA, V_VA, V_XA, V_WA = 8, 9, 10, 11
V_L = 12
V_QD, V_BA = 26, 27
V_CI = 28
V_KF = 56
V_S = 88
V_P = 104
V_VF = 112
V_OK = 144
A_Q = 0
A_OS = 112
A_LS = 224
A_ONE = 252
S_LD, S_K, S_W, S_QP = 4, 8, 12, 16
S_WAVE, S_T, S_CNT, S_NOFB, S_OOFF, S_MP, S_T0 = 20, 21, 22, 23, 24, 25, 27
S_A, S_B, S_C, S_D = 28, 29, 30, 31
S_THR, S_LDB, S_DJ, S_PJ, S_QH, S_DOFF = 32, 33, 34, 35, 48, 49
S_QS, S_QSTEP, S_QRND, S_MSTEP, S_CS = 50, 51, 52, 53, 54
S_TAB = 88
S_AS, S_TY, S_PRE, S_WO = 68, 69, 70, 71
MFMA = "v_mfma_f32_16x16x32_bf16"
def ar(a, n=1):
    return f"a{a}" if n == 1 else f"a[{a}:{a+n-1}]"

def gen_fused(name, nt=True, stamp=False, nofb=False, noload=False, nost=False, nox=False, now=False, st0=False, touch=False, kvt=False, kvtnt=False, nowo=False, tnt=False, qnt=False, wont=False, trace=False, DBO=64, ones=False, strace=False, xmem=0, xmfma=0, delay=0, tymask=1, stwg=4, roll=False, bulk0=True, wsbase=0, rot=True, rsh=1, dupst=False, allst=False, align=0, roles=False, fakex=False, early=False, qdelay=0, adelay=0, kvpol=None, xf=False, pst=False, kvl2=False, xq=False, pstl=False, kv0=False, qpnl=False, cpf=0, cpflate=False, qps=False, tymode=0, tyinv=False, xswap=False, qnrd=False, qnbar=False, qbar=7, qd0=9, qdstep=6, kvrot=0, kvgs=11, kvt2=0, kvts=64, tper=1, tpol='', tlbw=0, rflip=0, stpol='', defer=False, dpol='', dnp=3, wpol='', qpol='', anbar=False, anrd=False, anva='', ansu=False, cpf2=0, cpfo=0, pro1=0, rotn=4, spread='', dsl='1234', lp7=False, inv=False, wo2=False, wo3=0, wo4=0, wo5=0, wtl=0, wo6='', wo8=0, stpol0=None, wb=0, woff=False, wtch=0):
    a = Asm()
    if spread: early = True
    if wo6: wo5 = 2
    if wo5: wo4 = 2
    if wo3 or wo4: wo2 = True
    NT = " nt" if nt else ""
    if kvpol: NT = " " + kvpol
    if pst: a("s_memrealtime s[74:75]")
    a("s_cmp_ge_u32 s2, 256")
    a("s_cbranch_scc1 L_at_end")
    if cpf:
        a("s_getpc_b64 s[72:73]")
        a.label("L_pc0")
        a(f"s_mov_b32 s74, L_code_end - L_pc0")
        a("s_mov_b32 s75, 0x20000")
        a("v_lshlrev_b32 v105, 6, v0")
        if not cpflate:
          for k in range(cpf // 16):
            a(f"s_mov_b32 s76, {k*16384}")
            a("buffer_load_dword v104, v105, s[72:75], s76 offen")
    a("s_and_b32 s3, s2, 7")
    a("s_lshl_b32 s3, s3, 5")
    a("s_lshr_b32 s36, s2, 6")
    a("s_lshl_b32 s36, s36, 3")
    a("s_or_b32 s3, s3, s36")
    a("s_bfe_u32 s36, s2, 0x30003")
    a("s_or_b32 s2, s3, s36")
    if xswap: a("s_xor_b32 s2, s2, 32"); a("s_nop 0")
    a("s_load_dwordx8 s[36:43], s[0:1], 0")
    a("s_load_dwordx8 s[56:63], s[0:1], 40")
    a("s_load_dwordx2 s[44:45], s[0:1], 96")
    a("s_load_dwordx2 s[84:85], s[0:1], 32")
    a("s_load_dwordx2 s[86:87], s[0:1], 72")
    if cpf2:
        a("s_getpc_b64 s[72:73]")
        a.label("L_pc0")
        a("v_lshlrev_b32 v105, 7, v0")
        for k in range(cpf2):
            a(f"v_add_u32 v104, {cpfo + k*32768}, v105")
            a("v_min_u32 v104, L_code_end - L_pc0 - 4, v104")
            a("v_mov_b32 v107, s73")
            a("v_add_co_u32 v106, vcc, s72, v104")
            a("v_addc_co_u32 v107, vcc, 0, v107, vcc")
            a(f"global_load_dword v108, v[106:107], off")
    a(f"v_and_b32 v{V_LANE}, 63, v0")
    a(f"v_lshrrev_b32 v{V_T0}, 6, v0")
    a("s_nop 0")
    a(f"v_readfirstlane_b32 s{S_WAVE}, v{V_T0}")
    a("s_waitcnt lgkmcnt(0)")
    a(f"s_and_b32 s{S_QH}, s{S_WAVE}, 1")
    a(f"s_lshr_b32 s{S_PJ}, s{S_WAVE}, 1")
    a("s_cmp_ge_u32 s2, 128")
    for k in range(8):
        a(f"s_cselect_b32 s{36+k}, s{56+k}, s{36+k}")
    a("s_cselect_b32 s84, s86, s84")
    a("s_cselect_b32 s85, s87, s85")
    a(f"s_mov_b32 s86, {4096*640*2}")
    a("s_mov_b32 s87, 0x20000")
    a(f"s_and_b32 s{S_A}, s2, 127")
    a(f"s_lshl_b32 s{S_B}, s{S_A}, 20")
    a(f"s_lshl_b32 s{S_C}, s{S_PJ}, 18")
    a(f"s_add_u32 s{S_B}, s{S_B}, s{S_C}")
    a(f"s_add_u32 s38, s38, s{S_B}")
    a("s_addc_u32 s39, s39, 0")
    a(f"s_add_u32 s40, s40, s{S_B}")
    a("s_addc_u32 s41, s41, 0")
    a(f"s_sub_u32 s{S_C}, 0x100000, s{S_C}")
    a(f"s_mov_b32 s{S_K}, s38")
    a(f"s_mov_b32 s{S_K+1}, s39")
    a(f"s_mov_b32 s{S_K+2}, s{S_C}")
    a(f"s_mov_b32 s{S_K+3}, 0x20000")
    a(f"s_cmp_eq_u32 s{S_QH}, 0")
    a(f"s_cselect_b32 s{S_LD}, s38, s40")
    a(f"s_cselect_b32 s{S_LD+1}, s39, s41")
    a(f"s_mov_b32 s{S_LD+2}, {'0' if kv0 else 's'+str(S_C)}")
    a(f"s_mov_b32 s{S_LD+3}, 0x20000")
    if xf:
        a(f"s_add_u32 s36, s44, {4*NQB + 2*4096*640*2}")
        a("s_addc_u32 s37, s45, 0")
        a(f"s_cmp_eq_u32 s{S_QH}, 0")
    a(f"s_cselect_b32 s{S_QP}, s42, s36")
    a(f"s_cselect_b32 s{S_QP+1}, s43, s37")
    a(f"s_mov_b32 s{S_A}, {0 if now else 640*4096*2}")
    a(f"s_mov_b32 s{S_B}, {0 if nox else (2*3584*640*2 if xf else 3584*640*2)}")
    a(f"s_cselect_b32 s{S_QP+2}, s{S_A}, s{S_B}")
    a(f"s_mov_b32 s{S_QP+3}, 0x20000")
    a(f"s_mov_b32 s{S_A}, {32*8192}")
    a(f"s_mov_b32 s{S_B}, {7168 if (fakex or xf) else 64}")
    a(f"s_cselect_b32 s{S_QSTEP}, s{S_A}, s{S_B}")
    a(f"s_cselect_b32 s{S_QRND}, 512, 0")
    a(f"s_mov_b32 s{S_A}, 1056")
    a(f"s_mov_b32 s{S_B}, 1024")
    a(f"s_cselect_b32 s{S_MSTEP}, s{S_A}, s{S_B}")
    for i in range(8):
        a(f"s_mov_b32 s{S_A}, {((i&3)+8*(i>>2))*8192}")
        a(f"s_mov_b32 s{S_B}, {(1024*i if (fakex or xf) else 20480*i) if i < 7 else 0x40000000}")
        a(f"s_cselect_b32 s{S_TAB+i}, s{S_A}, s{S_B}")
    a(f"s_and_b32 s{S_A}, s2, 7")
    a(f"s_lshl_b32 s{S_A}, s{S_A}, 2")
    a(f"s_add_u32 s{S_A}, s{S_A}, s{S_PJ}")
    a(f"s_lshl_b32 s{S_A}, s{S_A}, 8")
    a(f"s_bfe_u32 s{S_B}, s2, {0x50003 if xf else 0x40003}")
    a(f"s_lshl_b32 s{S_B}, s{S_B}, 1")
    a(f"s_add_u32 s{S_B}, s{S_B}, s{S_PJ}")
    a(f"s_mul_i32 s{S_B}, s{S_B}, {112*1280}")
    a(f"s_cmp_eq_u32 s{S_QH}, 0")
    a(f"s_cselect_b32 s55, s{S_A}, s{S_B}")
    a(f"s_add_u32 s{S_W}, s44, {wsbase}")
    a(f"s_addc_u32 s{S_W+1}, s45, 0")
    a(f"s_mov_b32 s{S_W+2}, {WS_BYTES}")
    a(f"s_mov_b32 s{S_W+3}, 0x20000")
    a(f"s_lshl_b32 s{S_A}, s2, 2")
    a(f"s_add_u32 s{S_A}, s{S_A}, s{S_PJ}")
    a(f"s_mul_i32 s{S_OOFF}, s{S_A}, {PAIRB}")
    a(f"s_mul_i32 s{S_A}, s{S_QH}, {7*4096}")
    a(f"s_add_u32 s{S_OOFF}, s{S_OOFF}, s{S_A}")
    a(f"s_add_u32 s{S_OOFF}, s{S_OOFF}, {WS_O}")
    a(f"s_mov_b32 s{S_NOFB}, -1")
    a("s_mov_b32 s60, s42"); a("s_mov_b32 s61, s43"); a(f"s_mov_b32 s62, {640*4096*2}"); a("s_mov_b32 s63, 0x20000")
    a(f"s_mov_b32 s{S_T0}, 0")
    a(f"s_mov_b32 s{S_MP}, 0")
    a(f"s_mov_b32 s{S_AS}, 0")
    if defer: a("s_mov_b32 s98, 0x40000000")
    a(f"s_mov_b32 s{S_WO}, {(4 if (wo3 or wo4 or wo8) else 3) if nowo else 0}")
    a(f"s_lshr_b32 s26, s2, 3")
    a(f"s_lshr_b32 s{S_A}, s2, {rsh}")
    a(f"s_add_u32 s26, s26, s{S_A}")
    if rotn in (1, 2, 4):
        a(f"s_and_b32 s26, s26, {rotn-1}")
        a(f"s_mul_i32 s26, s26, {20//rotn}")
    elif rotn == 22:
        a("s_and_b32 s26, s26, 1"); a("s_mul_i32 s26, s26, 4")
    elif rotn == 23:
        a("s_and_b32 s26, s26, 1"); a("s_mul_i32 s26, s26, 6")
    a(f"s_mul_i32 s83, s{S_QSTEP}, 20")
    a(f"s_and_b32 s{S_TY}, s2, {tymask}")
    a(f"s_min_u32 s{S_TY}, s{S_TY}, 1")
    if tyinv: a(f"s_xor_b32 s{S_TY}, s{S_TY}, 1"); a("s_nop 0")
    if tymode == 1:
        a("s_bfe_u32 s3, s2, 0x10005"); a("s_xor_b32 s3, s3, 1"); a(f"s_and_b32 s{S_TY}, s2, s3"); a("s_nop 0")
    if tymode == 2:
        a("s_bfe_u32 s3, s2, 0x10005"); a("s_xor_b32 s3, s3, 1"); a(f"s_and_b32 s{S_TY}, s2, 3"); a(f"s_min_u32 s{S_TY}, s{S_TY}, 1"); a(f"s_and_b32 s{S_TY}, s{S_TY}, s3")
    if tymode == 3:
        a("s_bfe_u32 s3, s2, 0x10005"); a("s_xor_b32 s3, s3, 1"); a(f"s_and_b32 s{S_TY}, s2, 3"); a(f"s_cmp_eq_u32 s{S_TY}, 0"); a(f"s_cselect_b32 s{S_TY}, 1, 0"); a(f"s_or_b32 s{S_TY}, s{S_TY}, s3")
    a(f"s_mov_b32 s{S_PRE}, s{S_TY}")
    a(f"s_mov_b32 s{S_THR}, 0x4e800000")
    import struct
    cs = struct.unpack("<I", struct.pack("<f", (128 ** -0.5) * 1.4426950408889634))[0]
    a(f"s_mov_b32 s{S_CS}, {cs:#x}")
    a(f"s_lshl_b32 s{S_A}, s{S_QH}, 1")
    a(f"s_add_u32 s{S_A}, s{S_A}, s{S_PJ}")
    a(f"s_mul_i32 s{S_LDB}, s{S_A}, {AREA}")
    if stamp:
        a("s_memtime s[64:65]")
        a("s_memrealtime s[66:67]")
        a("s_load_dwordx2 s[46:47], s[0:1], 88")
        a("s_waitcnt lgkmcnt(0)")
    G, N = V_T0, V_T1
    a(f"v_lshlrev_b32 v{V_LIN}, 4, v{V_LANE}")
    a(f"v_lshrrev_b32 v{G}, 4, v{V_LANE}")
    a(f"v_and_b32 v{N}, 15, v{V_LANE}")
    a(f"v_lshlrev_b32 v{V_T2}, 4, v{N}")
    a(f"v_lshl_add_u32 v{V_DMA}, v{G}, {kvgs}, v{V_T2}")
    a(f"v_bfe_u32 v{V_T3}, v{V_LANE}, 4, 1")
    a(f"v_lshl_add_u32 v{V_QD}, v{V_T3}, 15, v{V_T2}")
    a(f"v_bfe_u32 v{V_T3}, v{V_LANE}, 5, 1")
    a(f"v_lshl_add_u32 v{V_QD}, v{V_T3}, 17, v{V_QD}")
    a(f"v_mul_u32_u24 v{V_BA}, 1280, v{N}")
    a(f"v_lshl_add_u32 v{V_BA}, v{G}, 4, v{V_BA}")
    if fakex or xf: a(f"v_mov_b32 v{V_BA}, v{V_LIN}")
    if xq:
        a(f"v_lshrrev_b32 v{V_T3}, 4, v{V_LANE}")
        a(f"v_and_b32 v{V_BA}, 1, v{V_T3}")
        a(f"v_lshlrev_b32 v{V_BA}, 1, v{V_BA}")
        a(f"v_lshrrev_b32 v{V_T3}, 1, v{V_T3}")
        a(f"v_mul_u32_u24 v{V_T3}, 3, v{V_T3}")
        a(f"v_xor_b32 v{V_BA}, v{V_BA}, v{V_T3}")
        a(f"v_and_b32 v{V_T3}, 3, v{V_LANE}")
        a(f"v_xor_b32 v{V_BA}, v{V_BA}, v{V_T3}")
        a(f"v_lshlrev_b32 v{V_BA}, 4, v{V_BA}")
        a(f"v_lshrrev_b32 v{V_T3}, 2, v{V_LANE}")
        a(f"v_mul_u32_u24 v{V_T3}, 1280, v{V_T3}")
        a(f"v_add_u32 v{V_BA}, v{V_BA}, v{V_T3}")
    a(f"s_cmp_eq_u32 s{S_QH}, 0")
    a("s_cselect_b64 vcc, -1, 0")
    a("s_nop 1")
    a(f"v_cndmask_b32 v{V_QD}, v{V_BA}, v{V_QD}, vcc")
    a(f"s_add_u32 s{S_A}, s{S_QH}, 2")
    a(f"s_mul_i32 s{S_A}, s{S_A}, {AREA}")
    if xq:
        a(f"v_bfe_u32 v{V_T3}, v{V_LANE}, 2, 2")
        a(f"v_and_b32 v{V_BA}, 1, v{V_T3}")
        a(f"v_lshlrev_b32 v{V_BA}, 1, v{V_BA}")
        a(f"v_lshrrev_b32 v{V_T3}, 1, v{V_T3}")
        a(f"v_mul_u32_u24 v{V_T3}, 3, v{V_T3}")
        a(f"v_xor_b32 v{V_BA}, v{V_BA}, v{V_T3}")
        a(f"v_xor_b32 v{V_BA}, v{V_BA}, v{G}")
        a(f"v_lshlrev_b32 v{V_BA}, 4, v{V_BA}")
        a(f"v_lshl_add_u32 v{V_BA}, v{N}, 6, v{V_BA}")
        a(f"v_add_u32 v{V_BA}, s{S_A}, v{V_BA}")
    else:
        a(f"v_add_u32 v{V_BA}, s{S_A}, v{V_LIN}")
    a(f"v_bfe_u32 v{V_T3}, v{V_LANE}, 4, 1")
    a(f"v_lshl_add_u32 v{V_T2}, v{V_T3}, 9, v{V_T2}")
    a(f"v_bfe_u32 v{V_T3}, v{V_LANE}, 5, 1")
    a(f"v_lshl_add_u32 v{V_XA}, v{V_T3}, 8, v{V_T2}")
    a(f"v_and_b32 v{V_T2}, 7, v{N}")
    a(f"v_lshlrev_b32 v{V_KA}, 10, v{V_T2}")
    a(f"v_and_b32 v{V_T3}, 1, v{N}")
    a(f"v_lshl_add_u32 v{V_KA}, v{V_T3}, 4, v{V_KA}")
    a(f"v_bfe_u32 v{V_T3}, v{N}, 1, 2")
    a(f"v_lshl_add_u32 v{V_KA}, v{V_T3}, 6, v{V_KA}")
    a(f"v_lshrrev_b32 v{V_T3}, 3, v{N}")
    a(f"v_lshl_add_u32 v{V_KA}, v{V_T3}, 8, v{V_KA}")
    a(f"v_bfe_u32 v{V_T3}, v{V_LANE}, 4, 1")
    a(f"v_lshl_add_u32 v{V_KA}, v{V_T3}, 5, v{V_KA}")
    a(f"v_bfe_u32 v{V_T3}, v{V_LANE}, 5, 1")
    a(f"v_lshl_add_u32 v{V_KA}, v{V_T3}, 4, v{V_KA}")
    a(f"s_mul_i32 s{S_A}, s{S_PJ}, {AREA}")
    a(f"v_add_u32 v{V_KA}, s{S_A}, v{V_KA}")
    a(f"v_bfe_u32 v{N}, v{V_LANE}, 2, 2")
    a(f"v_bfe_u32 v{V_T3}, v{V_LANE}, 4, 1")
    a(f"v_lshl_add_u32 v{V_T2}, v{V_T3}, 2, v{N}")
    a(f"v_mul_u32_u24 v{V_T2}, 1056, v{V_T2}")
    a(f"v_bfe_u32 v{V_T3}, v{V_LANE}, 5, 1")
    a(f"v_lshl_add_u32 v{V_T2}, v{V_T3}, 9, v{V_T2}")
    a(f"v_and_b32 v{V_T3}, 3, v{V_LANE}")
    a(f"v_lshl_add_u32 v{V_T2}, v{V_T3}, 3, v{V_T2}")
    a(f"v_add_u32 v{V_WA}, s{S_A}, v{V_T2}")
    a(f"v_lshl_add_u32 v{N}, v{G}, 2, v{N}")
    a(f"v_and_b32 v{V_T2}, 7, v{N}")
    a(f"v_mul_u32_u24 v{V_T2}, 1056, v{V_T2}")
    a(f"v_lshrrev_b32 v{V_T3}, 3, v{N}")
    a(f"v_lshl_add_u32 v{V_T2}, v{V_T3}, 8, v{V_T2}")
    a(f"v_and_b32 v{V_T3}, 3, v{V_LANE}")
    a(f"v_lshl_add_u32 v{V_T2}, v{V_T3}, 3, v{V_T2}")
    a(f"s_add_u32 s{S_A}, s{S_A}, {2*AREA}")
    a(f"v_add_u32 v{V_VA}, s{S_A}, v{V_T2}")
    for i in range(7):
        a(f"v_mov_b32 v{V_L+2*i}, 0xff800000")
    a(f"v_mov_b32 v{V_T0}, 0x3f803f80")
    for i in range(4): a(f"v_accvgpr_write_b32 a{A_ONE+i}, v{V_T0}")
    a(f"v_and_b32 v{V_T0}, 3, v{V_LANE}")
    a(f"v_lshlrev_b32 v{V_T0}, 2, v{V_T0}")
    a(f"v_add_u32 v{V_T0}, {LDS_FLAG}, v{V_T0}")
    a(f"v_mov_b32 v{V_T1}, 0")
    a(f"ds_write_b32 v{V_T0}, v{V_T1}")
    a(f"s_cmp_eq_u32 s{S_QH}, 0")
    a(f"s_mov_b32 s{S_A}, {kpad(1)-kpad(0)-256}")
    a(f"s_mov_b32 s{S_B}, 800")
    a(f"s_cselect_b32 s96, s{S_A}, s{S_B}")
    a(f"s_mov_b32 s{S_A}, {kpad(2)-kpad(1)-256}")
    a(f"s_cselect_b32 s97, s{S_A}, s{S_B}")

    a(f"v_lshrrev_b32 v{V_T0}, 1, v{V_LANE}")
    a(f"v_lshlrev_b32 v{V_T0}, 13, v{V_T0}")
    a(f"v_and_b32 v{V_T1}, 1, v{V_LANE}")
    a(f"v_lshl_add_u32 v{V_T0}, v{V_T1}, 7, v{V_T0}")
    a(f"v_lshlrev_b32 v{V_T1}, 7, v{V_LANE}")
    a(f"s_bfe_u32 s{S_A}, s2, 0x20003")
    a(f"s_lshl_b32 s{S_A}, s{S_A}, 18")
    a(f"s_and_b32 s{S_B}, s2, 7")
    a(f"s_mul_i32 s{S_B}, s{S_B}, 17920")
    a(f"s_cmp_eq_u32 s{S_QH}, 0")
    a("s_cselect_b64 vcc, -1, 0")
    a(f"s_cselect_b32 s100, s{S_A}, s{S_B}")
    a(f"s_add_u32 s100, s100, s55")
    a(f"s_cmp_eq_u32 s{S_QH}, 0")
    a(f"s_mov_b32 s{S_A}, {4*32*8192}")
    a(f"s_mov_b32 s{S_B}, 8192")
    a(f"s_cselect_b32 s99, s{S_A}, s{S_B}")
    a(f"v_cndmask_b32 v{V_LIN}, v{V_T1}, v{V_T0}, vcc")
    def tf0(u): return (u & ((1 << kvgs) - 1)) | ((u >> kvgs) << (kvgs + 2))
    if kvt2:
        lb = kvgs - int(math.log2(kvts))
        if lb >= 6:
            a(f"v_mul_u32_u24 v{V_LIN}, {kvts}, v{V_LANE}")
        else:
            a(f"v_and_b32 v{V_T0}, {(1 << lb) - 1}, v{V_LANE}")
            a(f"v_mul_u32_u24 v{V_T0}, {kvts}, v{V_T0}")
            a(f"v_lshrrev_b32 v{V_T1}, {lb}, v{V_LANE}")
            a(f"v_lshl_add_u32 v{V_LIN}, v{V_T1}, {kvgs + 2}, v{V_T0}")
    def tch(s_): return bool(kvt2) and s_ < 16 and s_ % tper == 0
    def tvn(s_): return sum(1 for t in range(max(0, s_ - 3), s_) if tch(t))
    def tinc(k): return tf0((k + 1) * 64 * kvts) - tf0(k * 64 * kvts)
    if kvrot == 0 and kvgs != 11: a("s_mov_b32 s100, 0")
    if kvrot == 1:
        a("s_and_b32 s100, s2, 31")
    if kvrot == 2:
        a("s_mul_i32 s100, s2, 11"); a(f"s_lshr_b32 s{S_A}, s2, 5"); a(f"s_mul_i32 s{S_A}, s{S_A}, 7"); a(f"s_add_u32 s100, s100, s{S_A}")
        a(f"s_lshl_b32 s{S_A}, s{S_PJ}, 4"); a(f"s_add_u32 s100, s100, s{S_A}"); a("s_and_b32 s100, s100, 31")
    if kvrot == 3:
        a("s_lshr_b32 s100, s2, 5"); a("s_lshl_b32 s100, s100, 2")
    if rflip:
        if rflip == 1: a(f"s_bfe_u32 s{S_A}, s2, 0x10005")
        if rflip == 2: a(f"s_bfe_u32 s{S_A}, s2, 0x10006")
        if rflip == 3: a(f"s_bfe_u32 s{S_A}, s2, 0x10007")
        if rflip == 4: a(f"s_bfe_u32 s{S_A}, s2, 0x10003")
        a(f"s_lshl_b32 s101, s{S_A}, 19")
        a(f"s_mul_i32 s{S_B}, s{S_A}, s{S_QRND}")
        a(f"s_add_u32 s55, s55, s{S_B}")
        a(f"s_sub_u32 s{S_B}, 0, s{S_QRND}")
        a(f"s_cmp_lg_u32 s{S_A}, 0")
        a(f"s_cselect_b32 s{S_QRND}, s{S_B}, s{S_QRND}")
        a(f"s_mov_b32 s99, {2*PAIRB}")
        a(f"s_cselect_b32 s99, {-2*PAIRB & 0xffffffff:#x}, s99")
        a(f"s_mul_i32 s{S_B}, s{S_A}, {2*PAIRB}")
        a(f"s_add_u32 s{S_OOFF}, s{S_OOFF}, s{S_B}")
    tstate = {"t": 0}
    def touch_one():
        if not touch: return
        a(f"buffer_load_dword v0, v{V_LIN}, s[{S_QP}:{S_QP+3}], s98 offen{' nt' if tnt else ''}")
        a(f"s_add_u32 s98, s98, s99")
        tstate["t"] += 1
    if xmem or dupst:
        a("s_add_u32 s72, s44, 0x8000000"); a("s_addc_u32 s73, s45, 0"); a("s_mov_b32 s74, 0x18000000"); a("s_mov_b32 s75, 0x20000")
        a("s_lshl_b32 s76, s2, 2"); a(f"s_add_u32 s76, s76, s{S_WAVE}"); a("s_mul_i32 s76, s76, 0x60000")
    dstate = {"i": 0, "kind": None}
    state = {"n": 0}
    def dma_setup(slot, kind):
        if kind == "KV":
            if kvgs != 11:
                ln_ = kvgs - 11
                a(f"s_add_u32 s{S_B}, s{S_DJ}, s100")
                a(f"s_bfe_u32 s{S_A}, s{S_B}, {((5 - ln_) << 16) | ln_:#x}")
                a(f"s_lshl_b32 s{S_A}, s{S_A}, {kvgs + 2}")
                a(f"s_and_b32 s{S_B}, s{S_B}, {(1 << ln_) - 1}")
                a(f"s_lshl_b32 s{S_B}, s{S_B}, 11")
                a(f"s_add_u32 s{S_B}, s{S_A}, s{S_B}")
                a(f"s_lshr_b32 s{S_A}, s{S_DJ}, 5")
                a(f"s_lshl_b32 s{S_A}, s{S_A}, 19")
                if rflip: a(f"s_xor_b32 s{S_A}, s{S_A}, s101")
                a(f"s_add_u32 s{S_DOFF}, s{S_A}, s{S_B}")
            elif kvrot:
                a(f"s_lshr_b32 s{S_A}, s{S_DJ}, 5")
                a(f"s_lshl_b32 s{S_A}, s{S_A}, 19")
                if rflip: a(f"s_xor_b32 s{S_A}, s{S_A}, s101")
                a(f"s_add_u32 s{S_B}, s{S_DJ}, s100")
                a(f"s_and_b32 s{S_B}, s{S_B}, 31")
                a(f"s_lshl_b32 s{S_B}, s{S_B}, 13")
                a(f"s_add_u32 s{S_DOFF}, s{S_A}, s{S_B}")
            else:
                a(f"s_lshr_b32 s{S_A}, s{S_DJ}, 5")
                a(f"s_lshl_b32 s{S_A}, s{S_A}, 18")
                a(f"s_lshl_b32 s{S_B}, s{S_DJ}, 13")
                a(f"s_add_u32 s{S_DOFF}, s{S_A}, s{S_B}")
            if kvl2: a(f"s_and_b32 s{S_DOFF}, s{S_DOFF}, {0x7fff if kvl2 is True else kvl2 - 1}")
            a(f"s_add_u32 m0, s{S_LDB}, {slot*TILE}")
            a(f"s_add_u32 s{S_DJ}, s{S_DJ}, 1")
        else:
            a(f"s_add_u32 m0, s{S_LDB}, {slot*TILE}")
            a(f"s_mov_b32 s{S_DOFF}, s{S_QS}")
            a(f"s_add_u32 s{S_QS}, s{S_QS}, s{S_QSTEP}")
            if rot:
                a("s_add_u32 s82, s82, 1")
                a("s_cmp_eq_u32 s82, 20")
                a(f"s_cselect_b32 s{S_B}, s83, 0")
                a(f"s_sub_u32 s{S_QS}, s{S_QS}, s{S_B}")
        dstate["i"] = 0; dstate["kind"] = kind
    def dma_one(pad=False):
        i = dstate["i"]
        if dstate["kind"] == "KV":
            if pad: a("s_nop 0")
            if not noload:
                a(f"buffer_load_dwordx4 v{V_DMA}, s[{S_LD}:{S_LD+3}], s{S_DOFF} offen offset:{256*i}{NT} lds")
            if i < 7: a(f"s_add_u32 m0, m0, s{96+(i&1)}")
        else:
            a(f"s_add_u32 s{S_A}, s{S_DOFF}, s{S_TAB+i}")
            if not qpnl: a(f"buffer_load_dwordx4 v{V_QD}, s[{S_QP}:{S_QP+3}], s{S_A} offen{' nt' if qnt else ''} lds")
            if i < 7: a(f"s_add_u32 m0, m0, s{S_MSTEP}")
        dstate["i"] = i + 1
    def qs_init(rnd_sgpr, q=3):
        if kvt2:
            a(f"s_lshl_b32 s98, s{S_T}, 19")
            if q == "pre":
                a(f"s_lshl_b32 s{S_A}, s{S_PRE}, {kvgs}"); a(f"s_sub_u32 s98, s98, s{S_A}"); q = 3
            a(f"s_add_u32 s98, s98, {q << kvgs}")
        a(f"s_mul_i32 s{S_QS}, s{rnd_sgpr}, s{S_QRND}")
        if not rflip: a(f"s_mov_b32 s101, s{rnd_sgpr}")
        a(f"s_add_u32 s{S_QS}, s{S_QS}, s55")
        a(f"s_cmp_ge_u32 s{rnd_sgpr}, 2")
        a(f"s_cselect_b32 s{S_A}, 0x40000000, 0")
        a(f"s_add_u32 s{S_QS}, s{S_QS}, s{S_A}")
        if rot:
            a("s_mov_b32 s82, s26")
            a(f"s_mul_i32 s{S_A}, s26, s{S_QSTEP}")
            a(f"s_add_u32 s{S_QS}, s{S_QS}, s{S_A}")

    def touch_init(rnd_sgpr):
        if not touch: return
        a(f"s_mul_i32 s98, s{rnd_sgpr}, s{S_QRND}")
        a(f"s_add_u32 s98, s98, s100")
        a(f"s_cmp_ge_u32 s{rnd_sgpr}, 2")
        a(f"s_cselect_b32 s{S_A}, 0x40000000, 0")
        a(f"s_add_u32 s98, s98, s{S_A}")
        tstate["t"] = 0
    def kread(f, slot):
        if anrd and state.get("inat"): return
        kt, s = f >> 2, f & 3
        a.lds(f"ds_read_b128 {vr(V_KF+4*f,4)}, v{V_KA} offset:{slot*TILE+kt*512+s*64}", "K")
    def vread(l, slot):
        if anrd and state.get("inat"): return
        for v in range(2):
            a.lds(f"ds_read_b64_tr_b16 {vr(V_VF+4*l+2*v,2)}, v{V_VA} offset:{slot*TILE+v*512+l*32}", "V")
    def wread(l, slot):
        for v in range(2):
            a.lds(f"ds_read_b64_tr_b16 {vr(V_VF+4*l+2*v,2)}, v{V_WA} offset:{slot*TILE+v*256+l*32}", "W")
    def bbuf(buf, qt): return (V_KF if buf == 0 else V_CI) + 4 * qt
    def bread(buf, qt, slot):
        a.lds(f"ds_read_b128 {vr(bbuf(buf,qt),4)}, v{V_BA} offset:{slot*TILE+qt*1024}", "B")
    def oreg(l, qt):
        return vr(V_OK + 28 * l + 4 * qt, 4) if l < 4 else ar(A_OS + 28 * (l - 4) + 4 * qt, 4)

    def barrier(dyn=False, vn=16, xt=0):
        vn += xt
        if dyn:
            n = len(a.lines)
            a(f"s_cmp_eq_u32 s{S_AS}, 0")
            if inv:
                a(f"s_cbranch_scc0 L_bw1_{n}")
                a(f"s_waitcnt vmcnt({vn}) lgkmcnt(0)")
                a.label(f"L_bw2_{n}")
                if wo2 or wo8 or wtch in (2, 3):
                    state.setdefault("ool", []).extend([f"L_bw1_{n}:", f"    s_sub_u32 s{S_AS}, s{S_AS}, 1", f"    s_bitcmp1_b32 s{S_AS}, 8", f"    s_cbranch_scc1 L_bw3_{n}",
                        f"    s_waitcnt vmcnt({44 + xt}) lgkmcnt(0)", f"    s_branch L_bw2_{n}",
                        f"L_bw3_{n}:", f"    s_bitcmp1_b32 s{S_AS}, 9", f"    s_cbranch_scc1 L_bw4_{n}",
                        f"    s_and_b32 s99, s{S_AS}, 0xff", f"    s_cselect_b32 s{S_AS}, s{S_AS}, 0",
                        f"    s_waitcnt vmcnt({21 + xt}) lgkmcnt(0)", f"    s_branch L_bw2_{n}",
                        f"L_bw4_{n}:", f"    s_and_b32 s99, s{S_AS}, 0xff", f"    s_cselect_b32 s{S_AS}, s{S_AS}, 0",
                        f"    s_waitcnt vmcnt({54 + xt}) lgkmcnt(0)", f"    s_branch L_bw2_{n}"])
                else:
                    state.setdefault("ool", []).extend([f"L_bw1_{n}:", f"    s_sub_u32 s{S_AS}, s{S_AS}, 1", f"    s_waitcnt vmcnt({44 + xt}) lgkmcnt(0)", f"    s_branch L_bw2_{n}"])
                a.lds_q = []
                a("s_barrier")
                return
            a(f"s_cbranch_scc1 L_bw1_{n}")
            a(f"s_sub_u32 s{S_AS}, s{S_AS}, 1")
            a(f"s_waitcnt vmcnt({44 + xt}) lgkmcnt(0)")
            a(f"s_branch L_bw2_{n}")
            a.label(f"L_bw1_{n}")
            a(f"s_waitcnt vmcnt({vn}) lgkmcnt(0)")
            a.label(f"L_bw2_{n}")
        else:
            a(f"s_waitcnt vmcnt({vn}) lgkmcnt(0)")
        a.lds_q = []
        a("s_barrier")

    def cap(fn):
        n0 = len(a.lines); q0 = list(a.lds_q)
        fn()
        ls = a.lines[n0:]; del a.lines[n0:]; a.lds_q = q0
        return ls
    def is_scalar(ln):
        return ln.strip().startswith("s_")
    class Gaps:
        def __init__(self, n):
            self.n = n; self.S = [[] for _ in range(n)]; self.V = [[] for _ in range(n)]; self.c = [0] * n
        def putS(self, ln, lo, hi=None):
            for g in range(lo, self.n):
                if len(self.S[g]) == 0:
                    self.S[g].append(ln); return g
            self.S[self.n - 1].append(ln); return self.n - 1
        def putV(self, ln, lo, cost=1, cap_=2):
            for g in range(lo, self.n):
                if self.c[g] + cost <= cap_:
                    self.V[g].append(ln); self.c[g] += cost; return g
            self.V[self.n - 1].append(ln); self.c[self.n - 1] += cost; return self.n - 1
        def atV(self, ln, g, cost=1):
            self.V[g].append(ln); self.c[g] += cost
        def atS(self, ln, g):
            self.S[g].append(ln)
    DITEMS = [(qt, T) for qt in range(7) for T in range(4)]
    DS = {}
    if defer:
        ntl = (28 - 8 - 4 * dnp) // 4
        assert 4 * dnp + 8 + 4 * ntl == 28
        k_ = 0
        for i in range(4): DS[("P", i)] = DITEMS[k_:k_ + dnp]; k_ += dnp
        for i in (1, 0, 3, 2): DS[("L", i)] = DITEMS[k_:k_ + 2]; k_ += 2
        for i in range(4): DS[("T", i)] = DITEMS[k_:k_ + ntl]; k_ += ntl
    DLIVE = {1: 0, 0: 1, 3: 1, 2: 2}
    def dcount(code):
        if not defer or code is None: return 0
        kind, i = code
        n = lambda c: len(DS.get(c, []))
        if kind == "P": return sum(n(("P", t)) for t in (i - 2, i - 1) if t >= 0)
        prev = lambda k, t: (k, t) if t >= 0 else None
        if kind == "L":
            if i >= 2: return n(("L", i - 2)) + n(("L", i - 1))
            if i == 1: return min(n(("P", 3)), n(("L", 3))) + n(("L", 0))
            return min(n(("P", 2)) + n(("P", 3)), n(("L", 2)) + n(("L", 3)))
        if kind in ("T", "B"):
            m = lambda t: n((kind, t)) if t >= 0 else n(("L", 4 + t))
            return m(i - 2) + m(i - 1)
    def qp_stage2(sm, first, dma, last, chk, after_store, vn, nok, sidx, code=None):
        buf = sm & 1; nslot = (sm + 1) & 3
        BAR = qbar
        G = Gaps(56)
        su = cap(lambda: dma_setup(sm, dma))
        g = BAR - 1
        g = 0
        for ln in su:
            g = G.putS(ln, g) + 1
        prev = g
        w5 = wo5 == 1 and code == ("T", 0)
        for i in range(8):
            ls = cap(lambda: dma_one(False))
            tg = max(qd0 + (4 if w5 else qdstep) * i, prev)
            pre_ = [l for l in ls if is_scalar(l) and "m0" not in l]
            ld = [l for l in ls if not is_scalar(l)]
            post = [l for l in ls if is_scalar(l) and "m0" in l]
            for l in pre_: tg = G.putS(l, tg)
            for l in ld: G.atV(l, tg)
            prev = tg + 1
            for l in post: prev = G.putS(l, tg + 1) + 1
        dstate["i"] = 8
        if w5:
            assert prev <= 39, prev
            for i in range(5): G.atV(f"    v_accvgpr_read_b32 v{V_S+i}, a{244+i}", i)
            G.atS(f"    s_cmp_eq_u32 s{S_WO}, 0", 39)
            G.atS(f"    s_cselect_b32 s57, s56, 0x40000000", 39)
            for i in range(5):
                G.atS(f"    s_add_u32 m0, s58, {1024*i}", 40 + 3*i)
                G.atV(f"    buffer_load_dwordx4 v{V_S+i}, s[84:87], s57 offen lds", 41 + 3*i)
        if code in DS:
            its = DS[code]; lastq = None
            for n_, (qt_, T_) in enumerate(its):
                tg = qd0 + 3 + n_ * 2 * qdstep
                if qt_ != lastq:
                    if code[0] == "L":
                        G.atS(f"    s_cmp_eq_u32 s{S_CNT}, {DLIVE[code[1]]}", tg - 2)
                        G.atS(f"    s_cselect_b32 s99, s98, 0x40000000", tg - 2)
                        G.atS(f"    s_add_u32 s99, s99, {qt_*4096}", tg - 1)
                    else:
                        G.atS(f"    s_add_u32 s99, s98, {qt_*4096}", tg - 1)
                    lastq = qt_
                G.atV(f"    buffer_store_dwordx4 {ar(A_Q+16*qt_+4*T_,4)}, v{V_XA}, s[{S_W}:{S_W+3}], s99 offen offset:{1024*T_} {dpol}".rstrip(), tg)
        if tch(sidx):
            k_ = sidx // tper
            tg = min(prev + 1, 54)
            G.atV(f"    buffer_load_dword v{V_S+12}, v{V_LIN}, s[{S_LD}:{S_LD+3}], s98 offen {tpol}".rstrip(), tg)
            G.putS(f"    s_add_u32 s98, s98, {tinc(k_)}", tg + 1)
        if qnrd: pass
        elif not last:
            lo = BAR - 1
            for ln in cap(lambda: wread(0, nslot)): lo = G.putV(ln, lo, cap_=1)
            for qt in range(7):
                for ln in cap(lambda: bread(buf ^ 1, qt, nslot)): lo = G.putV(ln, lo, cap_=1)
            for l in range(1, 8):
                lo = max(lo, min(7 * (l + 1) - 1, 55))
                for ln in cap(lambda: wread(l, nslot)): lo = G.putV(ln, lo, cap_=(1 if l < 7 else 2))
        elif not nok:
            lo = BAR - 1
            for f in range(8):
                for ln in cap(lambda: kread(f, nslot)): lo = G.putV(ln, lo, cap_=1)
        a("s_waitcnt lgkmcnt(14)")
        j = 0
        for l in range(8):
            for qt in range(7):
                c = "0" if first else oreg(l, qt)
                if qt == 0 and l > 0 and j < BAR: a(f"s_waitcnt lgkmcnt({14-2*l})")
                a(f"{MFMA} {oreg(l, qt)}, {vr(V_VF+4*l,4)}, {vr(bbuf(buf,qt),4)}, {c}")
                for ln in G.S[j]: a.lines.append(ln)
                if j == BAR - 1:
                    if not qnbar: barrier(after_store, 16, tvn(sidx) + dcount(code) + (5 if (wo5 == 1 and code in (("T", 1), ("T", 2), ("T", 3))) else 0))
                    if chk: flagcheck()
                for ln in G.V[j]: a.lines.append(ln)
                j += 1
    def qp_stage(sm, first=False, dma="QP", last=False, chk=False, after_store=False, kt_=False, vn=16, nok=False, role=None, ntouch=0, sidx=None, code=None):
        buf = sm & 1; nslot = (sm + 1) & 3
        if qps:
            return qp_stage2(sm, first, dma, last, chk, after_store, vn, nok, sidx, code)
        a("s_waitcnt lgkmcnt(14)")
        fq = []
        def cap(fn):
            n0 = len(a.lines); q0 = len(a.lds_q)
            fn()
            ls = a.lines[n0:]; del a.lines[n0:]; del a.lds_q[q0:]
            return ls
        BAR = 7
        if role != "T":
            for ln in cap(lambda: dma_setup(sm, dma)): fq.append((BAR, ln))
        if dma == "QP" and roll:
            fq.append((BAR, f"    s_lshl2_add_u32 s{S_B}, s{S_QSTEP}, s{S_DOFF}"))
            fq.append((BAR, f"    buffer_load_dword v0, v{V_T0}, s[{S_QP}:{S_QP+3}], s{S_B} offen{' nt' if tnt else ''}"))
        if kvt and kt_:
            fq.append((BAR, f"    buffer_load_dword v0, v{V_T3}, s[{S_LD}:{S_LD+3}], s101 offen{' nt' if kvtnt else ''}"))
            fq.append((BAR, f"    s_add_u32 s101, s101, 8192"))
        if not last:
            for ln in cap(lambda: wread(0, nslot)): fq.append((BAR, ln))
            for qt in range(7):
                for ln in cap(lambda: bread(buf ^ 1, qt, nslot)): fq.append((BAR, ln))
        elif not nok:
            for f in range(8):
                for ln in cap(lambda: kread(f, nslot)): fq.append((BAR, ln))
        for l in range(1, 8):
            if not last:
                for ln in cap(lambda: wread(l, nslot)): fq.append((7 * (l + 1), ln))
            if role == "T":
                if l == 1:
                    for _ in range(ntouch):
                        fq.append((BAR, f"    buffer_load_dword v0, v{V_T0}, s[60:63], s98 offen"))
                        fq.append((BAR, f"    s_add_u32 s98, s98, {32*8192}"))
                        fq.append((BAR, f"    buffer_load_dword v0, v{V_T1}, s[{S_QP}:{S_QP+3}], s99 offen"))
                        fq.append((BAR, f"    s_add_u32 s99, s99, 64"))
                continue
            for ln in cap(lambda: dma_one(True)): fq.append((BAR, ln))
            if role == "X":
                if l == 7:
                    fq.append((BAR, f"    s_add_u32 m0, s{S_LDB}, {AREA+sm*TILE}"))
                    fq.append((BAR, f"    s_add_u32 s{S_DOFF}, s{S_DOFF}, {112*1280}"))
                    for i in range(7):
                        fq.append((BAR, f"    s_add_u32 s{S_A}, s{S_DOFF}, s{S_TAB+i}"))
                        fq.append((BAR, f"    buffer_load_dwordx4 v{V_QD}, s[{S_QP}:{S_QP+3}], s{S_A} offen{' nt' if qnt else ''} lds"))
                        if i < 6: fq.append((BAR, f"    s_add_u32 m0, m0, 1024"))
            elif l == 7:
                for ln in cap(lambda: dma_one(True)): fq.append((BAR, ln))
        j = 0
        for l in range(8):
            for qt in range(7):
                c = "0" if first else oreg(l, qt)
                a(f"{MFMA} {oreg(l, qt)}, {vr(V_VF+4*l,4)}, {vr(bbuf(buf,qt),4)}, {c}")
                j += 1
                if j == BAR:
                    barrier(after_store, vn if (roll or role) else 16)
                    if chk: flagcheck()
                    if trace:
                        a("s_memtime s[78:79]")
                        a("s_waitcnt lgkmcnt(0)")
                        a(f"v_cmp_eq_u32 vcc, s77, v{V_LANE}")
                        a(f"v_mov_b32 v{V_T2}, s78")
                        a("s_nop 1")
                        a(f"v_cndmask_b32 v{V_T3}, v{V_T3}, v{V_T2}, vcc")
                        a("s_add_u32 s77, s77, 1")
                k = 0; idx = 0
                rem_gaps = 56 - j + 1
                quota = 1 if len(fq) <= rem_gaps else 2
                while k < quota and idx < len(fq):
                    if fq[idx][0] <= j and (idx == 0 or "ds_read" in fq[idx][1] or all("ds_read" in x[1] for x in fq[:idx])):
                        a.lines.append(fq[idx][1]); del fq[idx]; k += 1
                    else:
                        idx += 1
        for _, ln in fq: a.lines.append(ln)
        assert role in ("X", "T") or dstate["i"] == 8

    def sm_ops(par, i, first):
        S = V_S + 8 * par; P = V_P + 4 * par; L = V_L + 2 * i
        ops = []
        if first:
            T0, T1 = V_T0, V_T1
            ops += [f"v_max3_f32 v{T0}, v{S}, v{S+1}, v{L}", f"v_max3_f32 v{T1}, v{S+2}, v{S+3}, v{S+4}",
                    f"v_max3_f32 v{T0}, v{S+5}, v{S+6}, v{T0}", f"v_max3_f32 v{T0}, v{S+7}, v{T0}, v{T1}",
                    f"v_mov_b32 v{T1}, v{T0}", "s_nop 1", f"v_permlane16_swap_b32 v{T0}, v{T1}", "s_nop 1", f"v_max_f32 v{T0}, v{T0}, v{T1}",
                    f"v_mov_b32 v{T1}, v{T0}", "s_nop 1", f"v_permlane32_swap_b32 v{T0}, v{T1}", "s_nop 1", f"v_max_f32 v{T0}, v{T0}, v{T1}",
                    f"v_mov_b32 v{L}, 0", f"v_mov_b32 v{L+1}, 0"]
            ops += [f"v_sub_f32 v{S+r}, v{S+r}, v{T0}" for r in range(8)]
            ops += [f"v_sub_f32 v{V_CI+4*i+r}, 0, v{T0}" for r in range(4)]
        e = lambda r: ops.append(f"v_exp_f32 v{S+r}, v{S+r}")
        e(0); e(1)
        for r in range(0, 8, 2):
            if r + 2 < 8: e(r + 2); e(r + 3)
            if not ones:
                ops.append(f"v_add_f32 v{L}, v{L}, v{S+r}")
                ops.append(f"v_add_f32 v{L+1}, v{L+1}, v{S+r+1}")
            ops.append(f"v_cvt_pk_bf16_f32 v{P+r//2}, v{S+r}, v{S+r+1}")
        return ops

    def qk_items(qt, par, czero, kr):
        it = []
        for f in range(8):
            kt, s = f >> 2, f & 3
            D = vr(V_S + 8 * par + 4 * kt, 4)
            c = ("0" if czero else vr(V_CI + 4 * qt, 4)) if s == 0 else D
            it.append(("K" if f == 0 else None, f"{MFMA} {D}, {vr(V_KF+4*f,4)}, {ar(A_Q+16*qt+4*s,4)}, {c}",
                       (lambda f=f: kread(f, kr)) if kr is not None else None))
        return it
    def pv_items(qt, par, czero, vrd):
        it = []
        for l in range(8):
            c = "0" if czero else oreg(l, qt)
            it.append(("V" if l == 0 else None, f"{MFMA} {oreg(l, qt)}, {vr(V_VF+4*l,4)}, {vr(V_P+4*par,4)}, {c}",
                       (lambda l=l: vread(l, vrd)) if vrd is not None else None))
        for _ in range(xmfma):
            D = ar(A_LS + 4 * qt, 4)
            it.append((None, f"{MFMA} {D}, {vr(V_VF,4)}, {vr(V_P+4*par,4)}, {D}", None))
        if ones:
            D = ar(A_LS + 4 * qt, 4)
            it.append((None, f"{MFMA} {D}, {ar(A_ONE,4)}, {vr(V_P+4*par,4)}, {'0' if czero else D}", None))
        return it

    def capture(fn):
        n0 = len(a.lines)
        fn()
        ls = a.lines[n0:]; del a.lines[n0:]
        return ls
    def emit(items, va, fill=None, nfill=0):
        cost = lambda op: 2 if "v_exp" in op else 1
        tot = sum(cost(o) for o in va); acc = 0; k = 0; ng = len(items)
        pos = [int((i + 0.5) * ng / max(nfill, 1)) for i in range(nfill)]
        for j, (need, m, post) in enumerate(items):
            if m:
                if need: a.lds_wait({need})
                a(m)
            if post: post()
            for _ in range(pos.count(j)):
                if fill: a.lines.append(fill.pop(0))
            while k < len(va) and acc + cost(va[k]) <= tot * (j + 1) / ng + 0.01:
                a(va[k]); acc += cost(va[k]); k += 1
        assert k == len(va)

    def dma_lines(slot, kind, pad=False):
        def f():
            dma_setup(slot, kind)
            for _ in range(8): dma_one(pad)
            if xmem and kind == "KV":
                a(f"s_mul_i32 s{S_A}, s{S_WAVE}, 7168")
                a(f"s_add_u32 m0, s{S_A}, {4*AREA+5120}")
                a(f"s_add_u32 s{S_A}, s{S_DOFF}, s76")
                for i in range(xmem):
                    a(f"buffer_load_dwordx4 v{V_DMA}, s[72:75], s{S_A} offen offset:{256*i} nt lds")
        return capture(f)
    def split_fill(fill, quota):
        out = []; idx = 0
        for q in quota:
            ch = []; n = 0
            while idx < len(fill) and n < q:
                ln = fill[idx]; ch.append(ln); idx += 1
                if "buffer_load" in ln:
                    n += 1
                    if idx < len(fill) and "m0, m0" in fill[idx]: ch.append(fill[idx]); idx += 1
            out.append(ch)
        out[-1] += fill[idx:]
        return out
    def step(jm, first=False, last=False, dma="KV", nt_=0, tr_=False, dyn=False):
        fill = [] if (first or early) else dma_lines((jm + 3) & 3, dma)
        nf = (len(fill) + len(dsl) - 1) // len(dsl)
        chunks = state.get("carry") or [[] for _ in range(5)]
        state["carry"] = None
        for i in range(7):
            if strace and tr_:
                pr = [36, 38, 40, 42, 56, 58, 60, 62]
                a(f"s_memtime s[{pr[i]}:{pr[i]+1}]")
            if i in (1, 2, 3)[:nt_]: touch_one()
            n = state["n"]; par = n & 1
            items = []
            nfill = nf if (str(i) in dsl and i <= 4) else 0
            if spread and i <= 4:
                fill = list(chunks[i]); nfill = len(fill)
            if i == 5:
                assert not fill
                if not (anbar and state.get("inat")): barrier(dyn)
                if first: flagcheck()
                if last or early:
                    fill = dma_lines(jm, dma, True if last else False); nf = (len(fill) + 1) // 2
                    if spread and not last:
                        ch = split_fill(fill, [int(c) for c in spread])
                        assert len(ch) == 7
                        nxt = ch; fill = list(ch[0]); state["carry"] = ch[2:]
            if (last or early) and i >= 5: nfill = nf
            if spread and not last and i == 5: nfill = len(fill)
            if spread and not last and i == 6: fill = list(nxt[1]); nfill = len(fill)
            if i < 6:
                items += qk_items(i + 1, par ^ 1, first, ((jm + 1) & 3) if (i == 5 and (not last or dma == "KV")) else None)
            elif not last:
                items += qk_items(0, par ^ 1, False, None)
            else:
                if dma == "KV": qreload()
                a("s_nop 1")
            if i > 0:
                items += pv_items(i - 1, par ^ 1, first, None)
            elif not first:
                items += pv_items(6, par ^ 1, False, jm)
            else:
                items += [(None, None, (lambda l=l: vread(l, jm))) for l in range(8)]
            ops_ = sm_ops(par, i, first)
            if state.get("inat") and anva:
                ops_ = [o for o in ops_ if not any(o.startswith(x) for x in anva.split(","))]
            emit(items, ops_, fill, nfill)
            state["n"] = n + 1
        assert not fill

    def qstash_off():
        a(f"s_lshl_b32 s{S_C}, s2, 2")
        a(f"s_add_u32 s{S_C}, s{S_C}, s{S_WAVE}")
        a(f"s_mul_i32 s{S_C}, s{S_C}, 28672")
        a(f"v_lshlrev_b32 v{V_T2}, 4, v{V_LANE}")
    def qreload():
        qstash_off()
        for i in range(7):
            for s_ in range(4):
                a(f"buffer_load_dwordx4 {ar(A_Q+16*i+4*s_,4)}, v{V_T2}, s[{S_W}:{S_W+3}], s{S_C} offen offset:{1024*s_}")
            if i < 6: a(f"s_add_u32 s{S_C}, s{S_C}, 4096")

    def flagcheck():
        lab = f"L_at_nofb_{len(a.lines)}"
        a(f"s_cmp_le_u32 s{S_T}, s{S_T0}")
        a(f"s_cbranch_scc1 {lab}")
        a(f"s_sub_u32 s{S_A}, s{S_T}, 1")
        a(f"s_cmp_eq_u32 s{S_A}, s{S_NOFB}")
        a(f"s_cbranch_scc1 {lab}")
        a(f"s_lshl_b32 s{S_B}, s{S_A}, 2")
        a(f"s_add_u32 s{S_B}, s{S_B}, {LDS_FLAG}")
        a(f"v_mov_b32 v{V_T2}, s{S_B}")
        a(f"ds_read_b32 v{V_T2}, v{V_T2}")
        a("s_waitcnt lgkmcnt(0)")
        a(f"v_readfirstlane_b32 s{S_B}, v{V_T2}")
        a("s_nop 3")
        a(f"s_cmp_lg_u32 s{S_B}, 0")
        a(f"s_cbranch_scc1 L_at_fallback")
        a.label(lab)

    def wo_issue_a(ps):
        a(f"s_and_b32 s{S_B}, s2, 127")
        a(f"s_mul_i32 s{S_B}, s{S_B}, {32*1280}")
        a(f"s_mul_i32 s{S_D}, s{S_WAVE}, 320")
        a(f"s_add_u32 s{S_B}, s{S_B}, s{S_D}")
        a(f"s_add_u32 s{S_B}, s{S_B}, {160*ps}")
        a(f"s_mul_i32 s{S_D}, s{S_WAVE}, 7168")
        a(f"s_add_u32 s{S_D}, s{S_D}, {4*AREA}")
        a(f"s_mov_b32 s{S_A}, 6554")
        for i in range(5):
            a(f"v_add_u32 v{V_T0}, {64*i}, v{V_LANE}")
            a(f"v_mul_u32_u24 v{V_T1}, s{S_A}, v{V_T0}")
            a(f"v_lshrrev_b32 v{V_T1}, 16, v{V_T1}")
            a(f"v_mul_u32_u24 v{V_T2}, 10, v{V_T1}")
            a(f"v_sub_u32 v{V_T2}, v{V_T0}, v{V_T2}")
            a(f"v_mul_u32_u24 v{V_T1}, 1280, v{V_T1}")
            a(f"s_add_u32 m0, s{S_D}, {1024*i}")
            a(f"v_lshl_add_u32 v{V_T3}, v{V_T2}, 4, v{V_T1}")
            a(f"buffer_load_dwordx4 v{V_T3}, s[84:87], s{S_B} offen lds")
    def wo_read_a():
        a(f"v_lshrrev_b32 v{V_T0}, 4, v{V_LANE}")
        a(f"v_bfe_u32 v{V_T1}, v{V_LANE}, 2, 2")
        a(f"v_lshl_add_u32 v{V_T1}, v{V_T0}, 3, v{V_T1}")
        a(f"v_mul_u32_u24 v{V_T1}, 160, v{V_T1}")
        a(f"v_and_b32 v{V_T2}, 3, v{V_LANE}")
        a(f"v_lshl_add_u32 v{V_T1}, v{V_T2}, 3, v{V_T1}")
        a(f"s_mul_i32 s{S_D}, s{S_WAVE}, 7168")
        a(f"s_add_u32 s{S_D}, s{S_D}, {4*AREA}")
        a(f"v_add_u32 v{V_T1}, s{S_D}, v{V_T1}")
        R = A_LS
        for t in range(5):
            for v in range(2):
                a(f"ds_read_b64_tr_b16 {ar(R+4*t+2*v,2)}, v{V_T1} offset:{v*640+t*32}")
    def wo_store_a(ps):
        R = A_LS
        a(f"v_lshlrev_b32 v{V_T2}, 4, v{V_LANE}")
        a(f"s_mul_i32 s{S_A}, s2, {40*1024}")
        a(f"s_mul_i32 s{S_B}, s{S_WAVE}, {10*1024}")
        a(f"s_add_u32 s{S_A}, s{S_A}, s{S_B}")
        a(f"s_add_u32 s{S_A}, s{S_A}, {WS_W+5120*ps}")
        a("s_waitcnt lgkmcnt(0)")
        for f in range(5):
            if f == 4: a(f"s_add_u32 s{S_A}, s{S_A}, 4096")
            a(f"buffer_store_dwordx4 {ar(R+4*f,4)}, v{V_T2}, s[{S_W}:{S_W+3}], s{S_A} offen offset:{1024*(f&3)} {wpol}".rstrip())
    def wo_finish_a(ps):
        wo_read_a(); wo_store_a(ps)
    def wo_issue(ps):
        D = V_S
        a(f"s_mov_b32 s{S_A}, 6554")
        for i in range(5):
            a(f"v_add_u32 v{V_T0}, {64*i}, v{V_LANE}")
            a(f"v_mul_u32_u24 v{V_T1}, s{S_A}, v{V_T0}")
            a(f"v_lshrrev_b32 v{V_T1}, 16, v{V_T1}")
            a(f"v_mul_u32_u24 v{V_T2}, 10, v{V_T1}")
            a(f"v_sub_u32 v{V_T2}, v{V_T0}, v{V_T2}")
            a(f"v_mul_u32_u24 v{V_T1}, 1280, v{V_T1}")
            a(f"v_lshl_add_u32 v{D+i}, v{V_T2}, 4, v{V_T1}")
        a(f"s_and_b32 s{S_A}, s2, 127")
        a(f"s_mul_i32 s{S_A}, s{S_A}, {32*1280}")
        a(f"s_mul_i32 s{S_B}, s{S_WAVE}, 320")
        a(f"s_add_u32 s{S_A}, s{S_A}, s{S_B}")
        a(f"s_add_u32 s{S_A}, s{S_A}, {160*ps}")
        a(f"s_mul_i32 s{S_D}, s{S_WAVE}, 7168")
        a(f"s_add_u32 s{S_D}, s{S_D}, {4*AREA}")
        for i in range(5):
            a(f"s_add_u32 m0, s{S_D}, {1024*i}")
            a("s_nop 0")
            a(f"buffer_load_dwordx4 v{D+i}, s[84:87], s{S_A} offen{' nt' if wont else ''} lds")
    def wo_finish(ps):
        if wo5:
            a(f"v_accvgpr_read_b32 v{V_T1}, a249")
        else:
            a(f"v_lshrrev_b32 v{V_T0}, 4, v{V_LANE}")
            a(f"v_bfe_u32 v{V_T1}, v{V_LANE}, 2, 2")
            a(f"v_lshl_add_u32 v{V_T1}, v{V_T0}, 3, v{V_T1}")
            a(f"v_mul_u32_u24 v{V_T1}, 160, v{V_T1}")
            a(f"v_and_b32 v{V_T2}, 3, v{V_LANE}")
            a(f"v_lshl_add_u32 v{V_T1}, v{V_T2}, 3, v{V_T1}")
            a(f"s_mul_i32 s{S_D}, s{S_WAVE}, 7168")
            a(f"s_add_u32 s{S_D}, s{S_D}, {4*AREA}")
            a(f"v_add_u32 v{V_T1}, s{S_D}, v{V_T1}")
        a(f"v_lshlrev_b32 v{V_T2}, 4, v{V_LANE}")
        a(f"s_mul_i32 s{S_A}, s2, {40*1024}")
        a(f"s_mul_i32 s{S_B}, s{S_WAVE}, {10*1024}")
        a(f"s_add_u32 s{S_A}, s{S_A}, s{S_B}")
        a(f"s_add_u32 s{S_A}, s{S_A}, {WS_W+5120*ps}")
        R = V_VF
        for t in range(5):
            for v in range(2):
                a(f"ds_read_b64_tr_b16 {vr(R+4*t+2*v,2)}, v{V_T1} offset:{v*640+t*32}")
        a("s_waitcnt lgkmcnt(0)")
        for f in range(5):
            if f == 4: a(f"s_add_u32 s{S_A}, s{S_A}, 4096")
            a(f"buffer_store_dwordx4 {vr(R+4*f,4)}, v{V_T2}, s[{S_W}:{S_W+3}], s{S_A} offen offset:{1024*(f&3)} {wpol}".rstrip())
        a("s_nop 1")

    def rt_setup():
        a(f"s_bfe_u32 s{S_A}, s2, 0x20003")
        a(f"s_lshl_b32 s{S_A}, s{S_A}, 3")
        a(f"v_lshrrev_b32 v{V_T0}, 3, v{V_LANE}")
        a(f"v_add_u32 v{V_T0}, s{S_A}, v{V_T0}")
        a(f"v_lshlrev_b32 v{V_T0}, 13, v{V_T0}")
        a(f"v_and_b32 v{V_T2}, 7, v{V_LANE}")
        a(f"v_lshl_add_u32 v{V_T0}, v{V_T2}, 5, v{V_T0}")
        a(f"v_bfe_u32 v{V_T1}, v{V_LANE}, 1, 4")
        a(f"v_min_u32 v{V_T1}, 13, v{V_T1}")
        a(f"s_and_b32 s{S_A}, s2, 7")
        a(f"s_mul_i32 s{S_A}, s{S_A}, 14")
        a(f"v_add_u32 v{V_T1}, s{S_A}, v{V_T1}")
        a(f"v_mul_u32_u24 v{V_T1}, 1280, v{V_T1}")
        a(f"v_and_b32 v{V_T2}, 1, v{V_LANE}")
        a(f"v_lshl_add_u32 v{V_T1}, v{V_T2}, 5, v{V_T1}")
        a(f"s_cmp_eq_u32 s{S_QH}, 0")
        a("s_cselect_b64 vcc, -1, 0")
        a("s_nop 1")
        a(f"v_cndmask_b32 v{V_T0}, v{V_T1}, v{V_T0}, vcc")
    def dly(us, tag):
        a("s_memrealtime s[78:79]")
        a("s_waitcnt lgkmcnt(0)")
        a(f"s_add_u32 s77, s78, {us*100}")
        a.label(f"L_dl{tag}")
        a("s_sleep 4")
        a("s_memrealtime s[78:79]")
        a("s_waitcnt lgkmcnt(0)")
        a("s_sub_u32 s79, s78, s77")
        a("s_cmp_lt_i32 s79, 0")
        a(f"s_cbranch_scc1 L_dl{tag}")
    def st(k):
        if pst:
            a("s_memrealtime s[78:79]")
            a("s_memtime s[80:81]")
            a("s_waitcnt lgkmcnt(0)")
            a("s_mov_b32 m0, s77"); a("s_nop 0"); a("v_writelane_b32 v0, s78, m0")
            a("s_add_u32 m0, s77, 30"); a("s_nop 0"); a("v_writelane_b32 v0, s80, m0")
            a("s_add_u32 s77, s77, 1")
        if stamp:
            if st0:
                n = len(a.lines)
                a(f"s_cmp_ge_u32 s{S_T}, {1 if k < 3 else 2}")
                a(f"s_cbranch_scc1 L_st_{n}")
            a(f"s_memtime s[{72+2*k}:{73+2*k}]")
            if st0: a.label(f"L_st_{n}")
    if pst:
        a("s_memrealtime s[78:79]")
        a("s_memtime s[80:81]")
        a("s_waitcnt lgkmcnt(0)")
        a("v_mov_b32 v0, 0")
        a("v_writelane_b32 v0, s78, 0")
        a("v_writelane_b32 v0, s80, 30")
        a("v_writelane_b32 v0, s74, 61")
        a("s_mov_b32 s77, 1")
    if delay:
        a("s_bitcmp1_b32 s2, 0")
        a("s_cbranch_scc0 L_nodelay")
        a("s_memrealtime s[78:79]")
        a("s_waitcnt lgkmcnt(0)")
        a(f"s_add_u32 s77, s78, {delay*100}")
        a.label("L_dl")
        a("s_sleep 8")
        a("s_memrealtime s[78:79]")
        a("s_waitcnt lgkmcnt(0)")
        a("s_sub_u32 s79, s78, s77")
        a("s_cmp_lt_i32 s79, 0")
        a("s_cbranch_scc1 L_dl")
        a.label("L_nodelay")
    a.label("L_at_start")
    if trace:
        a("s_mov_b32 s77, 1")
        a(f"v_mov_b32 v{V_T3}, s64")
        a("s_memtime s[78:79]")
        a("s_waitcnt lgkmcnt(0)")
        a(f"v_cmp_eq_u32 vcc, s77, v{V_LANE}")
        a(f"v_mov_b32 v{V_T2}, s78")
        a("s_nop 1")
        a(f"v_cndmask_b32 v{V_T3}, v{V_T3}, v{V_T2}, vcc")
        a("s_add_u32 s77, s77, 1")
    a(f"s_mov_b32 s{S_T}, s{S_T0}")
    a(f"s_lshl_b32 s{S_DJ}, s{S_T0}, 5")
    a(f"s_add_u32 s{S_D}, s{S_T}, s{S_PRE}")
    qs_init(S_D, "pre")
    if roll:
        rt_setup()
        for sl in range(2):
            dma_setup(sl, "QP")
            for _ in range(8): dma_one(True)
        a(f"s_mov_b32 s{S_B}, s{S_QS}")
        for _ in range(6):
            a(f"buffer_load_dword v0, v{V_T0}, s[{S_QP}:{S_QP+3}], s{S_B} offen{' nt' if tnt else ''}")
            a(f"s_add_u32 s{S_B}, s{S_B}, s{S_QSTEP}")
        for sl in range(2, 4):
            dma_setup(sl, "QP")
            for _ in range(8): dma_one(True)
        a(f"s_waitcnt vmcnt(30) lgkmcnt(0)")
    else:
        if wtl:
            a(f"s_and_b32 s56, s2, 127")
            a(f"s_mul_i32 s56, s56, {32*1280}")
            a(f"v_mov_b32 v{V_S+14}, 0")
            if wtl == 2: a(f"v_mul_u32_u24 v{V_S+14}, 640, v{V_LANE}")
            a(f"buffer_load_dword v{V_S+15}, v{V_S+14}, s[84:87], s56 offen")
        for sl in range(4):
            dma_setup(sl, "QP")
            for _ in range(8): dma_one(True)
            if pro1 and sl == 0:
                st(9)
                a("s_waitcnt vmcnt(0)")
                st(9)
        if wo5 or wo8:
            a(f"s_and_b32 s56, s2, 127")
            a(f"s_mul_i32 s56, s56, {32*1280}")
            a(f"s_mul_i32 s58, s{S_WAVE}, 320")
            a(f"s_add_u32 s56, s56, s58")
            a(f"s_mul_i32 s58, s{S_WAVE}, 7168")
            a(f"s_add_u32 s58, s58, {4*AREA}")
            a(f"s_mov_b32 s{S_A}, 6554")
            for i in range(5):
                a(f"v_add_u32 v{V_T0}, {64*i}, v{V_LANE}")
                a(f"v_mul_u32_u24 v{V_T1}, s{S_A}, v{V_T0}")
                a(f"v_lshrrev_b32 v{V_T1}, 16, v{V_T1}")
                a(f"v_mul_u32_u24 v{V_T2}, 10, v{V_T1}")
                a(f"v_sub_u32 v{V_T2}, v{V_T0}, v{V_T2}")
                a(f"v_mul_u32_u24 v{V_T1}, 1280, v{V_T1}")
                a(f"v_lshl_add_u32 v{V_T3}, v{V_T2}, 4, v{V_T1}")
                a(f"v_accvgpr_write_b32 a{244+i}, v{V_T3}")
            a(f"v_lshrrev_b32 v{V_T0}, 4, v{V_LANE}")
            a(f"v_bfe_u32 v{V_T1}, v{V_LANE}, 2, 2")
            a(f"v_lshl_add_u32 v{V_T1}, v{V_T0}, 3, v{V_T1}")
            a(f"v_mul_u32_u24 v{V_T1}, 160, v{V_T1}")
            a(f"v_and_b32 v{V_T2}, 3, v{V_LANE}")
            a(f"v_lshl_add_u32 v{V_T1}, v{V_T2}, 3, v{V_T1}")
            a(f"v_add_u32 v{V_T1}, s58, v{V_T1}")
            a(f"v_accvgpr_write_b32 a249, v{V_T1}")
        if tlbw:
            a(f"v_lshlrev_b32 v{V_S+13}, 12, v{V_LANE}")
            a(f"buffer_load_dword v{V_S+12}, v{V_S+13}, s[{S_LD}:{S_LD+3}], 0 offen nt")
            if tlbw > 1:
                a(f"s_mov_b32 s{S_A}, 0x80000")
                a(f"buffer_load_dword v{V_S+12}, v{V_S+13}, s[{S_LD}:{S_LD+3}], s{S_A} offen nt")
        if bulk0 and touch:
            touch_init(S_D)
            for _ in range(5): touch_one()
        if cpf and cpflate:
            for k in range(cpf // 16):
                a(f"s_mov_b32 s76, {k*16384}")
                a("buffer_load_dword v104, v105, s[72:75], s76 offen")
        a(f"s_waitcnt vmcnt({(29 if (bulk0 and touch) else 24) + (cpf // 16 if cpflate else 0)}) lgkmcnt(0)")
    a("s_barrier")
    a.label("L_at_round")
    st(0)
    if roll: rt_setup()
    for l in range(8): wread(l, 0)
    for qt in range(7): bread(0, qt, 0)
    a.lds_wait_all()
    def qp_body(role):
        sfx = role or ""
        vns = {None: (22, 17, 18, 18, 18), "W": (16, 16, 16, 16, 16), "X": (16, 22, 28, 28, 28), "T": (16, 20, 20, 63, 63)}[role]
        nts = (6, 4, 4, 2)
        qp_stage(0, first=True, chk=True, after_store=True, vn=vns[0], role=role, ntouch=nts[0], sidx=0, code=("P", 0))
        qp_stage(1, after_store=True, vn=vns[1], role=role, ntouch=nts[1], sidx=1, code=("P", 1))
        qp_stage(2, after_store=True, vn=vns[2], role=role, ntouch=nts[2], sidx=2, code=("P", 2))
        qp_stage(3, vn=vns[3], role=role, ntouch=nts[3], sidx=3, code=("P", 3))
        if not wo2 and not wo8 and not woff:
            a(f"s_cmp_lg_u32 s{S_WO}, 0")
            a(f"s_cbranch_scc1 L_at_nowo0{sfx}")
            a(f"s_mov_b32 s{S_WO}, 1")
            wo_issue(0)
            if roll: rt_setup()
            a.label(f"L_at_nowo0{sfx}")
        a(f"s_mov_b32 s{S_CNT}, 0")
        a.label(f"L_at_qploop{sfx}")
        a.lds_q = []
        if wo6:
            a(f"s_lshl3_add_u32 s{S_A}, s{S_WO}, s{S_CNT}")
            a(f"s_cmp_eq_u32 s{S_A}, {int(wo6[0])}")
            a("s_cbranch_scc1 L_at_wh0")
            a(f"s_cmp_eq_u32 s{S_A}, {8 + int(wo6[1])}")
            a("s_cbranch_scc1 L_at_wh1")
            a.label("L_at_whr")
            def h0():
                a(f"s_mov_b32 s{S_WO}, 1")
                for i in range(5):
                    a(f"s_add_u32 m0, s58, {1024*i}")
                    a(f"v_accvgpr_read_b32 v{V_T3}, a{244+i}")
                    a(f"buffer_load_dwordx4 v{V_T3}, s[84:87], s56 offen lds")
                a("s_branch L_at_whr")
            def h1():
                a(f"s_mov_b32 s{S_WO}, 2")
                a(f"v_accvgpr_read_b32 v{V_T1}, a249")
                a("s_add_u32 s57, s56, 160")
                for t in range(5):
                    for v in range(2):
                        a(f"ds_read_b64_tr_b16 {ar(A_LS+4*t+2*v,2)}, v{V_T1} offset:{v*640+t*32}")
                a("s_waitcnt lgkmcnt(0)")
                for i in range(5):
                    a(f"s_add_u32 m0, s58, {1024*i}")
                    a(f"v_accvgpr_read_b32 v{V_T3}, a{244+i}")
                    a(f"buffer_load_dwordx4 v{V_T3}, s[84:87], s57 offen lds")
                a("s_branch L_at_whr")
            state.setdefault("ool", []).extend(["L_at_wh0:"] + capture(h0) + ["L_at_wh1:"] + capture(h1))
        for sm in range(4): qp_stage(sm, vn=vns[4], role=role, sidx=4+sm, code=("L", sm))
        a(f"s_add_u32 s{S_CNT}, s{S_CNT}, 1")
        a(f"s_cmp_lt_u32 s{S_CNT}, 3")
        a(f"s_cbranch_scc1 L_at_qploop{sfx}")
    if not roles:
        qp_body(None)
    else:
        a(f"s_cmp_eq_u32 s{S_WAVE}, 1")
        a("s_cbranch_scc1 L_at_qpX")
        a(f"s_cmp_eq_u32 s{S_WAVE}, 3")
        a("s_cbranch_scc1 L_at_qpT")
        qp_body("W")
        a("s_branch L_at_qpjoin")
        a.label("L_at_qpX")
        qp_body("X")
        a("s_branch L_at_qpjoin")
        a.label("L_at_qpT")
        a(f"s_bfe_u32 s{S_A}, s2, 0x20003")
        a(f"s_lshl_b32 s{S_A}, s{S_A}, 3")
        a(f"v_lshrrev_b32 v{V_T0}, 3, v{V_LANE}")
        a(f"v_add_u32 v{V_T0}, s{S_A}, v{V_T0}")
        a(f"v_lshlrev_b32 v{V_T0}, 13, v{V_T0}")
        a(f"v_and_b32 v{V_T1}, 7, v{V_LANE}")
        a(f"v_lshl_add_u32 v{V_T0}, v{V_T1}, 6, v{V_T0}")
        a(f"v_min_u32 v{V_T1}, 27, v{V_LANE}")
        a(f"s_and_b32 s{S_A}, s2, 7")
        a(f"s_mul_i32 s{S_B}, s{S_A}, 28")
        a(f"v_add_u32 v{V_T1}, s{S_B}, v{V_T1}")
        a(f"v_mul_u32_u24 v{V_T1}, 1280, v{V_T1}")
        a(f"s_lshl_b32 s{S_A}, s{S_A}, 10")
        a(f"s_lshl_b32 s{S_B}, s101, 9")
        a(f"s_add_u32 s98, s{S_A}, s{S_B}")
        a(f"s_add_u32 s98, s98, {4*32*8192}")
        a(f"s_bfe_u32 s{S_A}, s2, 0x40003")
        a(f"s_mul_i32 s99, s{S_A}, {224*1280}")
        a(f"s_add_u32 s99, s99, {4*64}")
        qp_body("T")
        a.label("L_at_qpjoin")
    a(f"s_cmp_lg_u32 s{S_PRE}, 0")
    a("s_cbranch_scc1 L_at_qptailB")
    for sm in range(4): qp_stage(sm, dma="KV", last=(sm == 3), vn=(18, 17, 16, 16)[sm], sidx=16+sm, code=("T", sm))
    a("s_branch L_at_qpepi")
    a.label("L_at_qptailB")
    qs_init(S_T)
    a.lds_q = []
    for sm in range(4): qp_stage(sm, dma="QP", last=(sm == 3), vn=18, nok=True, sidx=16+sm, code=("B", sm))
    a.label("L_at_qpepi")
    if qdelay: dly(qdelay, "q")
    st(1)
    if trace:
        a("s_cmp_lg_u32 s2, 5")
        a("s_cbranch_scc1 L_tr_skip")
        a(f"s_cmp_lg_u32 s{S_T}, 0")
        a("s_cbranch_scc1 L_tr_skip")
        a(f"s_cmp_lg_u32 s{S_WAVE}, 0")
        a("s_cbranch_scc1 L_tr_skip")
        a("s_mov_b32 s80, s46"); a("s_mov_b32 s81, s47"); a("s_mov_b32 s82, 256"); a("s_mov_b32 s83, 0x20000")
        a(f"v_lshlrev_b32 v{V_T2}, 2, v{V_LANE}")
        a(f"v_add_u32 v{V_T2}, 128, v{V_T2}")
        a(f"buffer_store_dword v{V_T3}, v{V_T2}, s[80:83], 0 offen")
        a.label("L_tr_skip")
    if defer: a("s_mov_b32 s98, 0x40000000")
    a(f"v_mov_b32 v{V_T2}, s{S_CS}")
    a(f"v_mov_b32 v{V_T3}, s{S_CS}")
    a("s_nop 6")
    TMP = V_S
    for T in range(4):
        if T < 2:
            base = lambda e, qt: V_OK + 28 * (2 * T + e) + 4 * qt
        else:
            base = lambda e, qt: V_OK + 28 * (2 * (T - 2) + e) + 4 * qt
            for e in range(2):
                for qt in range(7):
                    for r in range(4):
                        a(f"v_accvgpr_read_b32 v{base(e,qt)+r}, a{A_OS+28*(2*(T-2)+e)+4*qt+r}")
        for e in range(2):
            for qt in range(7):
                o = base(e, qt)
                for h in range(2):
                    a(f"v_pk_mul_f32 {vr(o+2*h,2)}, {vr(o+2*h,2)}, {vr(V_T2,2)}")
        pk = lambda qt: TMP + 28 * (T & 1) + 4 * qt
        for qt in range(7):
            oe = base(0, qt); oo = base(1, qt); p = pk(qt)
            a(f"v_cvt_pk_bf16_f32 v{p}, v{oe}, v{oe+1}")
            a(f"v_cvt_pk_bf16_f32 v{p+1}, v{oe+2}, v{oe+3}")
            a(f"v_cvt_pk_bf16_f32 v{p+2}, v{oo}, v{oo+1}")
            a(f"v_cvt_pk_bf16_f32 v{p+3}, v{oo+2}, v{oo+3}")
        a("s_nop 1")
        for qt in range(7):
            p = pk(qt)
            a(f"v_permlane16_swap_b32 v{p}, v{p+2}")
            a(f"v_permlane16_swap_b32 v{p+1}, v{p+3}")
        for qt in range(7):
            for r in range(4):
                a(f"v_accvgpr_write_b32 a{A_Q+16*qt+4*T+r}, v{pk(qt)+r}")
    a(f"s_cmp_eq_u32 s{S_PRE}, 0")
    a("s_cbranch_scc1 L_at_nostash")
    a(f"s_mov_b32 s{S_PRE}, 0")
    qstash_off()
    for i in range(7):
        for s_ in range(4):
            a(f"buffer_store_dwordx4 {ar(A_Q+16*i+4*s_,4)}, v{V_T2}, s[{S_W}:{S_W+3}], s{S_C} offen offset:{1024*s_} {qpol}".rstrip())
        if i < 6: a(f"s_add_u32 s{S_C}, s{S_C}, 4096")
    a(f"s_mov_b32 s{S_AS}, 3")
    a("s_branch L_at_round")
    a.label("L_at_nostash")
    a(f"s_cmp_lg_u32 s{S_MP}, 0")
    a("s_cbranch_scc1 L_at_maxpass")
    a.label("L_at_pre")
    if wo6 or wo8 or woff:
        pass
    elif wo2:
        assert inv
        a(f"s_cmp_lg_u32 s{S_WO}, 0")
        a("s_cbranch_scc1 L_at_nowo1a")
        a(f"s_mov_b32 s{S_WO}, {2 if wo5 else 1}")
        a(f"s_mov_b32 s{S_AS}, 0x103")
        if wo5:
            a(f"v_accvgpr_read_b32 v{V_T1}, a249")
            a("s_add_u32 s57, s56, 160")
            a("s_waitcnt vmcnt(24)")
            for t in range(5):
                for v in range(2):
                    a(f"ds_read_b64_tr_b16 {ar(A_LS+4*t+2*v,2)}, v{V_T1} offset:{v*640+t*32}")
            a("s_waitcnt lgkmcnt(0)")
            for i in range(5):
                a(f"s_add_u32 m0, s58, {1024*i}")
                a(f"v_accvgpr_read_b32 v{V_T3}, a{244+i}")
                a(f"buffer_load_dwordx4 v{V_T3}, s[84:87], s57 offen lds")
        else:
            wo_issue(0)
        if not (wo3 or wo4): a("s_branch L_at_nowo1")
        a.label("L_at_nowo1a")
        if not (wo3 or wo4):
            a(f"s_cmp_lg_u32 s{S_WO}, 2")
            a("s_cbranch_scc1 L_at_nowo1")
            a(f"s_cmp_lg_u32 s{S_TY}, 0")
            a("s_cbranch_scc1 L_at_nowo1")
            a(f"s_mov_b32 s{S_WO}, 3")
            a(f"s_mov_b32 s{S_AS}, 0x103")
            wo_finish(1)
    else:
        a(f"s_cmp_lg_u32 s{S_WO}, 1")
        a("s_cbranch_scc1 L_at_nowo1")
        a(f"s_mov_b32 s{S_WO}, 2")
        wo_finish(0)
        wo_issue(1)
    a.label("L_at_nowo1")
    st(2)
    a.lds_q = ["K"]
    state["n"] = 0
    z = []
    for l in range(8):
        for r in range(4):
            z.append(f"v_mov_b32 v{V_OK+28*l+24+r}, 0" if l < 4 else f"v_accvgpr_write_b32 a{A_OS+28*(l-4)+24+r}, 0")
    if ones: z += [f"v_accvgpr_write_b32 a{A_LS+24+r}, 0" for r in range(4)]
    emit(qk_items(0, 0, True, None), z[:16])
    for o in z[16:]: a(o)
    step(0, first=True, dyn=True)
    a(f"s_mov_b32 s{S_CNT}, 0")
    if align:
        a.lines.append(".p2align 6")
        if align == 2: a("s_nop 0")
    a.label("L_at_loop")
    q0 = list(a.lds_q)
    state["inat"] = True
    for jm in (1, 2, 3, 0): step(jm, dyn=(jm in (1, 2)))
    state["inat"] = False
    assert q0 == a.lds_q, (q0, a.lds_q)
    if pstl:
        a("s_memrealtime s[78:79]")
        a("s_memtime s[80:81]")
        a("s_waitcnt lgkmcnt(0)")
        a("s_mov_b32 s76, m0")
        a("s_mov_b32 m0, s77"); a("s_nop 0"); a("v_writelane_b32 v0, s78, m0")
        a("s_add_u32 m0, s77, 30"); a("s_nop 0"); a("v_writelane_b32 v0, s80, m0")
        a("s_add_u32 s77, s77, 1")
        a("s_mov_b32 m0, s76")
    a(f"s_add_u32 s{S_CNT}, s{S_CNT}, 1")
    if wo3:
        assert lp7 and not ones
        a(f"s_lshl3_add_u32 s{S_A}, s{S_WO}, s{S_CNT}")
        a(f"s_cmp_eq_u32 s{S_A}, {8 + wo3}")
        a("s_cbranch_scc1 L_at_wof0")
        a.label("L_at_wof0r")
    a(f"s_cmp_lt_u32 s{S_CNT}, {7 if lp7 else 6}")
    a("s_cbranch_scc1 L_at_loop")
    if wo4 and not wo5:
        assert lp7 and not ones
        a(f"s_cmp_lg_u32 s{S_WO}, 1")
        a("s_cbranch_scc1 L_at_nowoi1")
        a(f"s_mov_b32 s{S_WO}, 2")
        a(f"s_mov_b32 s{S_AS}, 0x102")
        wo_read_a()
        a("s_waitcnt lgkmcnt(0)")
        wo_issue_a(1)
        a.label("L_at_nowoi1")
    if wo3:
        a(f"s_cmp_lg_u32 s{S_WO}, 2")
        a("s_cbranch_scc1 L_at_nowoi1")
        a(f"s_mov_b32 s{S_WO}, 3")
        a(f"s_mov_b32 s{S_AS}, 0x102")
        wo_issue_a(1)
        a.label("L_at_nowoi1")
        ls = capture(lambda: (wo_finish_a(0), a(f"s_mov_b32 s{S_WO}, 2"), a(f"s_mov_b32 s{S_AS}, 0x102"), a("s_branch L_at_wof0r")))
        state.setdefault("ool", []).extend(["L_at_wof0:"] + ls)
    a(f"s_add_u32 s{S_T}, s{S_T}, 1")
    touch_init(S_T)
    assert not (lp7 and early)
    if not lp7:
        step(1, nt_=3); step(2, nt_=2); step(3, tr_=True)
    if strace: a("s_memtime s[62:63]")
    qs_init(S_T)
    if not early and not lp7: step(0)
    def wtouch():
        a(f"s_and_b32 s{S_A}, s2, 127")
        a(f"s_mul_i32 s{S_A}, s{S_A}, {32*1280}")
        a(f"s_mul_i32 s{S_B}, s{S_WAVE}, {80*128}")
        a(f"s_add_u32 s{S_A}, s{S_A}, s{S_B}")
        a(f"v_lshlrev_b32 v{V_T2}, 7, v{V_LANE}")
        a(f"v_and_b32 v{V_T3}, 15, v{V_LANE}")
        a(f"v_lshlrev_b32 v{V_T3}, 7, v{V_T3}")
        a(f"buffer_load_dword a250, v{V_T2}, s[84:87], s{S_A} offen")
        a(f"s_add_u32 s{S_A}, s{S_A}, {64*128}")
        a(f"buffer_load_dword a251, v{V_T3}, s[84:87], s{S_A} offen")
        if wtch in (2, 3):
            a(f"s_mov_b32 s{S_A}, 0x40000000")
            for _ in range(3): a(f"buffer_load_dword a251, v{V_T3}, s[84:87], s{S_A} offen")
            a(f"s_mov_b32 s{S_AS}, {0x103 if wtch == 2 else 0x102}")
    if wtch in (1, 2, 3):
        a(f"s_cmp_eq_u32 s{S_T}, 2")
        a("s_cbranch_scc1 L_at_wt0")
        a.label("L_at_wt0r")
        state.setdefault("ool", []).extend(["L_at_wt0:"] + capture(lambda: (wtouch(), a("s_branch L_at_wt0r"))))
    if wo8:
        assert lp7 and inv
        a(f"s_lshl3_add_u32 s{S_A}, s{S_T}, s{S_WO}")
        a(f"s_cmp_eq_u32 s{S_A}, 16")
        a("s_cbranch_scc1 L_at_w8h0")
        a.label("L_at_w8h0r")
        def h0body():
            a(f"s_mov_b32 s{S_WO}, 1")
            a(f"s_mov_b32 s{S_AS}, 0x102")
            for i in range(5):
                a(f"s_add_u32 m0, s58, {1024*i}")
                a(f"v_accvgpr_read_b32 v{V_T3}, a{244+i}")
                if not wo8 & 16: a(f"buffer_load_dwordx4 v{V_T3}, s[84:87], s56 offen lds")
            a("s_branch L_at_w8h0r")
        state.setdefault("ool", []).extend(["L_at_w8h0:"] + capture(h0body))
    a(f"s_cmp_lg_u32 s{S_TY}, 0")
    a("s_cbranch_scc1 L_at_atailB")
    n0 = state["n"]; q0 = list(a.lds_q); c0 = state.get("carry")
    if early: step(0, dma="QP")
    tdyn = bool((wo3 or wo4) and not wo5) or bool(wo8) or wtch in (2, 3)
    def h1(tag):
        if wtch == 3:
            a(f"s_cmp_eq_u32 s{S_T}, 2")
            a(f"s_cselect_b32 s{S_AS}, 0x301, s{S_AS}")
        if not wo8: return
        a(f"s_cmp_eq_u32 s{S_WO}, 1")
        a(f"s_cbranch_scc1 L_at_w8h1{tag}")
        a.label(f"L_at_w8h1r{tag}")
        def body():
            a(f"s_mov_b32 s{S_WO}, 2")
            a(f"s_mov_b32 s{S_AS}, 0x101")
            a(f"v_accvgpr_read_b32 v{V_T1}, a249")
            a("s_add_u32 s57, s56, 160")
            a(f"v_lshlrev_b32 v{V_T2}, 4, v{V_LANE}")
            a(f"s_mul_i32 s{S_A}, s2, {40*1024}")
            a(f"s_mul_i32 s{S_B}, s{S_WAVE}, {10*1024}")
            a(f"s_add_u32 s{S_A}, s{S_A}, s{S_B}")
            a(f"s_add_u32 s{S_A}, s{S_A}, {WS_W}")
            if not wo8 & 8: a("s_waitcnt vmcnt(16)")
            for t in range(5):
                for v in range(2):
                    a(f"ds_read_b64_tr_b16 {ar(A_LS+4*t+2*v,2)}, v{V_T1} offset:{v*640+t*32}")
            a("s_waitcnt lgkmcnt(0)")
            for i in range(5):
                a(f"s_add_u32 m0, s58, {1024*i}")
                a(f"v_accvgpr_read_b32 v{V_T3}, a{244+i}")
                if not wo8 & 4: a(f"buffer_load_dwordx4 v{V_T3}, s[84:87], s57 offen lds")
            for f in range(5):
                if f == 4: a(f"s_add_u32 s{S_A}, s{S_A}, 4096")
                if not wo8 & 2: a(f"buffer_store_dwordx4 {ar(A_LS+4*f,4)}, v{V_T2}, s[{S_W}:{S_W+3}], s{S_A} offen offset:{1024*(f&3)} {wpol}".rstrip())
            a(f"s_branch L_at_w8h1r{tag}")
        state.setdefault("ool", []).extend([f"L_at_w8h1{tag}:"] + capture(body))
    step(1, dma="QP", dyn=tdyn); step(2, dma="QP", dyn=tdyn); h1("A"); step(3, dma="QP", last=True, dyn=bool(wo8) or wtch in (2, 3))
    a("s_branch L_at_aepi")
    a.label("L_at_atailB")
    state["n"] = n0; a.lds_q = q0; state["carry"] = c0
    if early: step(0)
    step(1, dyn=tdyn); step(2, dyn=tdyn); h1("B"); step(3, last=True, dyn=bool(wo8) or wtch in (2, 3))
    a.label("L_at_aepi")
    if adelay: dly(adelay, "a")
    a.lds_q = ["V"]
    st(3)
    E = V_S
    red = [f"v_add_f32 v{V_L+2*i}, v{V_L+2*i}, v{V_L+2*i+1}" for i in range(7)]
    red += [f"v_mov_b32 v{E+i}, v{V_L+2*i}" for i in range(7)]
    red += [f"v_permlane16_swap_b32 v{V_L+2*i}, v{E+i}" for i in range(7)]
    red += [f"v_add_f32 v{V_L+2*i}, v{V_L+2*i}, v{E+i}" for i in range(7)]
    red += [f"v_mov_b32 v{E+i}, v{V_L+2*i}" for i in range(7)]
    red += [f"v_permlane32_swap_b32 v{V_L+2*i}, v{E+i}" for i in range(7)]
    red += [f"v_add_f32 v{V_L+2*i}, v{V_L+2*i}, v{E+i}" for i in range(7)]
    a("s_nop 1")
    if ones:
        emit(pv_items(6, 1, False, None), [])
        a("s_nop 7")
        for i in range(7): a(f"v_accvgpr_read_b32 v{V_L+2*i}, a{A_LS+4*i}")
    else:
        emit(pv_items(6, 1, False, None), red)
    for i in range(7): a(f"v_rcp_f32 v{V_CI+4*i}, v{V_L+2*i}")
    a(f"v_add_f32 v{E+2}, v{V_L}, v{V_L+2}")
    a(f"v_add_f32 v{E+3}, v{V_L+4}, v{V_L+6}")
    a(f"v_add_f32 v{E+4}, v{V_L+8}, v{V_L+10}")
    a(f"v_add_f32 v{E+2}, v{E+2}, v{V_L+12}")
    a(f"v_add_f32 v{E+3}, v{E+3}, v{E+4}")
    a(f"v_add_f32 v{E+2}, v{E+2}, v{E+3}")
    a(f"v_cmp_nge_f32 vcc, s{S_THR}, v{E+2}")
    for i in range(7): a(f"v_mov_b32 v{V_L+2*i}, 0xff800000")
    a("s_cmp_eq_u64 vcc, 0")
    a("s_cbranch_scc1 L_at_noflag")
    if nofb: a("s_branch L_at_noflag")
    a(f"s_lshl_b32 s{S_B}, s{S_T}, 2")
    a(f"s_add_u32 s{S_B}, s{S_B}, {LDS_FLAG-4}")
    a(f"v_mov_b32 v{E+2}, s{S_B}")
    a(f"v_mov_b32 v{E+3}, 1")
    a(f"ds_write_b32 v{E+2}, v{E+3}")
    a.label("L_at_noflag")
    if rflip:
        a(f"s_sub_u32 s{S_D}, s{S_T}, 1")
        a(f"s_mul_i32 s{S_D}, s{S_D}, s99")
        a(f"s_add_u32 s{S_D}, s{S_D}, s{S_OOFF}")
    else:
        a(f"s_mul_i32 s{S_D}, s{S_T}, {2*PAIRB}")
        a(f"s_add_u32 s{S_D}, s{S_D}, s{S_OOFF}")
        a(f"s_sub_u32 s{S_D}, s{S_D}, {2*PAIRB}")
    if defer:
        a(f"s_cmp_lt_u32 s{S_T}, 2")
        a(f"s_cselect_b32 s99, 1, 0")
        a(f"s_cmp_eq_u32 s{S_TY}, 0")
        a(f"s_cselect_b32 s99, s99, 0")
        a(f"s_cmp_lg_u32 s99, 0")
        a(f"s_cselect_b32 s98, s{S_D}, s98")
    for T in range(4):
        if T < 2:
            base = lambda e, qt: V_OK + 28 * (2 * T + e) + 4 * qt
        else:
            base = lambda e, qt: V_OK + 28 * (2 * (T - 2) + e) + 4 * qt
            for e in range(2):
                for qt in range(7):
                    for r in range(4):
                        a(f"v_accvgpr_read_b32 v{base(e,qt)+r}, a{A_OS+28*(2*(T-2)+e)+4*qt+r}")
        for e in range(2):
            for qt in range(7):
                o = base(e, qt)
                for h in range(2):
                    a(f"v_pk_mul_f32 {vr(o+2*h,2)}, {vr(o+2*h,2)}, {vr(V_CI+4*qt,2)} op_sel_hi:[1,0]")
        pk = lambda qt: V_S + 28 * (T & 1) + 4 * qt
        for qt in range(7):
            oe = base(0, qt); oo = base(1, qt); p = pk(qt)
            a(f"v_cvt_pk_bf16_f32 v{p}, v{oe}, v{oe+1}")
            a(f"v_cvt_pk_bf16_f32 v{p+1}, v{oe+2}, v{oe+3}")
            a(f"v_cvt_pk_bf16_f32 v{p+2}, v{oo}, v{oo+1}")
            a(f"v_cvt_pk_bf16_f32 v{p+3}, v{oo+2}, v{oo+3}")
        a("s_nop 1")
        for qt in range(7):
            p = pk(qt)
            a(f"v_permlane16_swap_b32 v{p}, v{p+2}")
            a(f"v_permlane16_swap_b32 v{p+1}, v{p+3}")
        if defer:
            a(f"s_cmp_lg_u32 s99, 0")
            a(f"s_cbranch_scc1 L_at_dfr{T}")
        a(f"s_mov_b32 s{S_A}, s{S_D}")
        if stpol0 is not None:
            a(f"s_cmp_ge_u32 s{S_T}, 2")
            a(f"s_cbranch_scc1 L_at_sp1_{T}")
            for qt in range(7):
                a(f"buffer_store_dwordx4 {vr(pk(qt),4)}, v{V_XA}, s[{S_W}:{S_W+3}], s{S_A} offen offset:{1024*T} {stpol0}".rstrip())
                if qt < 6: a(f"s_add_u32 s{S_A}, s{S_A}, 4096")
            a(f"s_branch L_at_sp2_{T}")
            a.label(f"L_at_sp1_{T}")
        for qt in range(7):
            if not nost: a(f"buffer_store_dwordx4 {vr(pk(qt),4)}, v{V_XA}, s[{S_W}:{S_W+3}], s{S_A} offen offset:{1024*T} {stpol}".rstrip())
            if dupst:
                a(f"s_sub_u32 s{S_B}, s{S_A}, {WS_O - 30000000}")
                a(f"buffer_store_dwordx4 {vr(pk(qt),4)}, v{V_XA}, s[72:75], s{S_B} offen offset:{1024*T}")
            if qt < 6: a(f"s_add_u32 s{S_A}, s{S_A}, 4096")
        if stpol0 is not None: a.label(f"L_at_sp2_{T}")
        if defer:
            a(f"s_branch L_at_dfj{T}")
            a.label(f"L_at_dfr{T}")
            for qt in range(7):
                for r in range(4):
                    a(f"v_accvgpr_write_b32 a{A_Q+16*qt+4*T+r}, v{pk(qt)+r}")
            a.label(f"L_at_dfj{T}")
    a("s_nop 1")
    if wo8:
        a(f"s_cmp_lg_u32 s{S_WO}, 2")
        a("s_cbranch_scc1 L_at_nowo2")
        a(f"s_mov_b32 s{S_WO}, 4")
        a(f"v_accvgpr_read_b32 v{V_T1}, a249")
        a(f"v_lshlrev_b32 v{V_T2}, 4, v{V_LANE}")
        a(f"s_mul_i32 s{S_A}, s2, {40*1024}")
        a(f"s_mul_i32 s{S_B}, s{S_WAVE}, {10*1024}")
        a(f"s_add_u32 s{S_A}, s{S_A}, s{S_B}")
        a(f"s_add_u32 s{S_A}, s{S_A}, {WS_W+5120}")
        a("s_waitcnt vmcnt(49)")
        R = V_VF
        for t in range(5):
            for v in range(2):
                a(f"ds_read_b64_tr_b16 {vr(R+4*t+2*v,2)}, v{V_T1} offset:{v*640+t*32}")
        a("s_waitcnt lgkmcnt(0)")
        for f in range(5):
            if f == 4: a(f"s_add_u32 s{S_A}, s{S_A}, 4096")
            a(f"buffer_store_dwordx4 {vr(R+4*f,4)}, v{V_T2}, s[{S_W}:{S_W+3}], s{S_A} offen offset:{1024*(f&3)} {wpol}".rstrip())
        a("s_nop 1")
    elif wo4:
        a(f"s_mov_b32 s{S_AS}, 3")
        a(f"s_cmp_lg_u32 s{S_WO}, 2")
        a("s_cbranch_scc1 L_at_nowo2")
        a(f"s_mov_b32 s{S_WO}, 4")
        a(f"s_mov_b32 s{S_AS}, 0x303")
        if wo5:
            a(f"v_accvgpr_read_b32 v{V_T1}, a249")
            a(f"v_lshlrev_b32 v{V_T2}, 4, v{V_LANE}")
            a(f"s_mul_i32 s{S_A}, s2, {40*1024}")
            a(f"s_mul_i32 s{S_B}, s{S_WAVE}, {10*1024}")
            a(f"s_add_u32 s{S_A}, s{S_A}, s{S_B}")
            a(f"s_add_u32 s{S_A}, s{S_A}, {WS_W}")
            R = V_VF
            for t in range(5):
                for v in range(2):
                    a(f"ds_read_b64_tr_b16 {vr(R+4*t+2*v,2)}, v{V_T1} offset:{v*640+t*32}")
            for f in range(5):
                if f == 4: a(f"s_add_u32 s{S_A}, s{S_A}, 4096")
                a(f"buffer_store_dwordx4 {ar(A_LS+4*f,4)}, v{V_T2}, s[{S_W}:{S_W+3}], s{S_A} offen offset:{1024*(f&3)} {wpol}".rstrip())
            a(f"s_add_u32 s{S_A}, s{S_A}, 1024")
            a("s_waitcnt lgkmcnt(0)")
            for f in range(5):
                if f == 4: a(f"s_add_u32 s{S_A}, s{S_A}, 4096")
                a(f"buffer_store_dwordx4 {vr(R+4*f,4)}, v{V_T2}, s[{S_W}:{S_W+3}], s{S_A} offen offset:{1024*(f&3)} {wpol}".rstrip())
            a("s_nop 1")
        else:
            wo_store_a(0)
            wo_finish(1)
    elif wo2 and not wo3:
        a(f"s_cmp_lg_u32 s{S_WO}, 1")
        a("s_cbranch_scc1 L_at_nowo2a")
        a(f"s_mov_b32 s{S_WO}, 2")
        wo_finish(0)
        wo_issue(1)
        a("s_branch L_at_nowo2")
        a.label("L_at_nowo2a")
    if not wo4 and not wo8 and not woff:
        a(f"s_cmp_lg_u32 s{S_WO}, {3 if wo3 else 2}")
        a("s_cbranch_scc1 L_at_nowo2")
        a(f"s_mov_b32 s{S_WO}, {4 if wo3 else 3}")
        wo_finish(1)
    a.label("L_at_nowo2")
    if not wo4: a(f"s_mov_b32 s{S_AS}, 3")
    if defer:
        a("s_cmp_lg_u32 s99, 0")
        a(f"s_cselect_b32 s{S_AS}, 0, 3")
    st(4)
    a.lds_q = []
    a(f"s_cmp_ge_u32 s{S_T}, 2")
    a("s_cbranch_scc1 L_at_fin")
    a(f"s_cmp_eq_u32 s{S_TY}, 0")
    a("s_cbranch_scc1 L_at_round")
    a(f"s_waitcnt vmcnt({56 if dupst else (33 if wo3 else 38 if wo2 else 28)})")
    a("s_branch L_at_pre")
    a.label("L_at_fin")
    if wb == 1:
        a(f"s_cmp_lg_u32 s{S_WAVE}, 0")
        a("s_cbranch_scc1 L_at_nowb")
        a("buffer_wbl2 sc1")
        a.label("L_at_nowb")
    a("s_waitcnt lgkmcnt(0)")
    a("s_barrier")
    flagcheck()
    if pst:
        a("s_memrealtime s[78:79]")
        a("s_memtime s[80:81]")
        a("s_waitcnt lgkmcnt(0)")
        a("s_mov_b32 m0, s77"); a("s_nop 0"); a("v_writelane_b32 v0, s78, m0")
        a("s_add_u32 m0, s77, 30"); a("s_nop 0"); a("v_writelane_b32 v0, s80, m0")
        a("s_getreg_b32 s62, hwreg(HW_REG_XCC_ID)")
        a("v_writelane_b32 v0, s62, 63")
        a(f"v_writelane_b32 v0, s{S_TY}, 62")
        a(f"s_cmp_lg_u32 s{S_WAVE}, 0")
        a("s_cbranch_scc1 L_at_end")
        a("s_lshl_b32 s62, s2, 8"); a("s_add_u32 s62, s62, 50000000")
        a(f"v_lshlrev_b32 v2, 2, v{V_LANE}")
        a(f"buffer_store_dword v0, v2, s[{S_W}:{S_W+3}], s62 offen")
    if stamp:
        a("s_memtime s[56:57]")
        a("s_memrealtime s[58:59]")
        a("s_waitcnt lgkmcnt(0)")
        if allst:
            a("v_mov_b32 v2, s66"); a("v_mov_b32 v3, s58")
            a("s_sub_u32 s62, s56, s64"); a("v_mov_b32 v4, s62")
            a("s_getreg_b32 s62, hwreg(HW_REG_XCC_ID)"); a("v_mov_b32 v5, s62")
            a("s_lshl_b32 s62, s2, 4"); a("s_add_u32 s62, s62, 50000000"); a("v_mov_b32 v6, s62")
            a(f"buffer_store_dwordx4 v[2:5], v6, s[{S_W}:{S_W+3}], 0 offen")
        a(f"s_cmp_lg_u32 s2, {stwg}")
        a("s_cbranch_scc1 L_at_end")
        a("s_sub_u32 s56, s56, s64")
        a("s_sub_u32 s58, s58, s66")
        a("s_mov_b32 s84, s46")
        a("s_mov_b32 s85, s47")
        a("s_mov_b32 s86, 256")
        a("s_mov_b32 s87, 0x20000")
        a("v_mov_b32 v2, s56")
        a("v_mov_b32 v3, s58")
        a(f"s_lshl_b32 s62, s{S_WAVE}, 3")
        a("v_mov_b32 v4, s62")
        a("buffer_store_dwordx2 v[2:3], v4, s[84:87], 0 offen")
        if strace:
            pr = [36, 38, 40, 42, 56, 58, 60, 62]
            for i in range(7):
                a(f"s_sub_u32 s78, s{pr[i+1]}, s{pr[i]}")
                a("v_mov_b32 v2, s78")
                a(f"v_mov_b32 v4, {160+4*i}")
                a("buffer_store_dword v2, v4, s[84:87], 0 offen")
        a("s_sub_u32 s62, s72, s64")
        a("v_mov_b32 v2, s62")
        a(f"v_mov_b32 v4, {DBO+4*5}")
        a("buffer_store_dword v2, v4, s[84:87], 0 offen")
        for k in range(1, 5):
            a(f"s_sub_u32 s62, s{72+2*k}, s{70+2*k}")
            a("v_mov_b32 v2, s62")
            a(f"v_mov_b32 v4, {DBO+4*k}")
            a("buffer_store_dword v2, v4, s[84:87], 0 offen")
    a("s_branch L_at_end")
    for ln in state.get("ool", []): a.lines.append(ln)

    a.label("L_at_fallback")
    a(f"s_sub_u32 s{S_T0}, s{S_T}, 1")
    a(f"s_mov_b32 s{S_NOFB}, s{S_T0}")
    a(f"s_mov_b32 s{S_MP}, 1")
    a(f"s_mov_b32 s{S_TY}, 0")
    a(f"s_mov_b32 s{S_PRE}, 0")
    a(f"s_mov_b32 s{S_AS}, 0")
    if defer: a("s_mov_b32 s98, 0x40000000")
    for i in range(7): a(f"v_mov_b32 v{V_L+2*i}, 0xff800000")
    a("s_waitcnt vmcnt(0) lgkmcnt(0)")
    a("s_barrier")
    a("s_branch L_at_start")
    a.label("L_at_maxpass")
    a(f"s_mov_b32 s{S_MP}, 0")
    a("s_waitcnt lgkmcnt(0)")
    a(f"v_and_b32 v{V_T0}, 15, v{V_LANE}")
    a(f"v_lshlrev_b32 v{V_T0}, 8, v{V_T0}")
    a(f"v_bfe_u32 v{V_T1}, v{V_LANE}, 4, 1")
    a(f"v_lshl_add_u32 v{V_T0}, v{V_T1}, 5, v{V_T0}")
    a(f"v_bfe_u32 v{V_T1}, v{V_LANE}, 5, 1")
    a(f"v_lshl_add_u32 v{V_T2}, v{V_T1}, 4, v{V_T0}")
    a(f"v_add_u32 v{V_T3}, 4096, v{V_T2}")
    a(f"s_lshl_b32 s{S_B}, s{S_T}, 19")
    if rflip: a(f"s_xor_b32 s{S_B}, s{S_B}, s101")
    a(f"s_mov_b32 s{S_CNT}, 0")
    a.label("L_at_mp")
    for f in range(8):
        a(f"buffer_load_dwordx4 {vr(V_VF+4*f,4)}, v{V_T2 + (f>>2)}, s[{S_K}:{S_K+3}], s{S_B} offen offset:{64*(f&3)}")
    a("s_waitcnt vmcnt(0)")
    for i in range(7):
        for f in range(8):
            kt, s = f >> 2, f & 3
            D = vr(V_S + 4 * kt, 4)
            a(f"{MFMA} {D}, {vr(V_VF+4*f,4)}, {ar(A_Q+16*i+4*s,4)}, {'0' if s == 0 else D}")
        a("s_nop 9")
        for r in range(0, 8, 2):
            a(f"v_max3_f32 v{V_L+2*i}, v{V_S+r}, v{V_S+r+1}, v{V_L+2*i}")
        a("s_nop 3")
    a(f"s_add_u32 s{S_B}, s{S_B}, 8192")
    a(f"s_add_u32 s{S_CNT}, s{S_CNT}, 1")
    a(f"s_cmp_lt_u32 s{S_CNT}, 32")
    a("s_cbranch_scc1 L_at_mp")
    a("s_branch L_at_pre")
    a.label("L_at_end")
    a("s_endpgm")
    return a.text()

if __name__ == "__main__":
    import sys
    name = "fused_kernel"
    opts = dict(x.split("=") for x in sys.argv[2:])
    opts = {k: bool(int(v)) for k, v in opts.items()}
    body = gen_fused(name, **opts)
    out = f"; @launch kernel={name} grid=(256,1,1) block=(256,1,1) lds={LDS_BYTES}\n"
    out += '.amdgcn_target "amdgcn-amd-amdhsa--gfx950"\n.text\n' + kernel_header(name) + body
    out += '.section .rodata,"a"\n.p2align 6\n' + kernel_desc(name, 512, accum=256)
    open(sys.argv[1], "w").write(out)
```

```python
from gen_common import *
NQB = 3584 * 4096 * 2
WS_O = 2 * NQB
WS_W = 4 * NQB
WS_BYTES = 4 * NQB + 2 * 4096 * 640 * 2
PAIRB = 224 * 128 * 2
LDS_BYTES = 163840
BUF = 10240
MFMA = "v_mfma_f32_16x16x32_bf16"
V_LANE, V_T0, V_T1, V_T2, V_T3, V_LIN, V_AE, V_AO, V_ST = 1, 2, 3, 4, 5, 6, 7, 8, 9
V_D = 10
V_ACC = 20
V_A = 44
V_B = 84
V_R = 196
S_O, S_WO, S_OUT = 4, 8, 12
S_WAVE, S_CNT, S_A, S_B, S_C, S_BOFF, S_WOFF, S_LDB = 20, 21, 22, 23, 24, 25, 26, 27
def ar(a, n=1):
    return f"a{a}" if n == 1 else f"a[{a}:{a+n-1}]"
def acc(nt, qt):
    i = nt * 7 + qt
    return ar(4 * i, 4) if i < 64 else vr(V_ACC + 4 * (i - 64), 4)

def gen_op(name, stamp=False, ont=False, wnt=False, noo=False, now=False, wsbase=0, skipb=False, skipd=False, pst=False, cpf=0, opol='', oalias=0, bdma=False, walias=0, krot=None, raw=False, rawpol='', rawx=0):
    a = Asm()
    a("s_cmp_ge_u32 s2, 256")
    a("s_cbranch_scc1 L_op_end")
    if cpf:
        a("s_getpc_b64 s[72:73]")
        a.label("L_pc1")
        a(f"s_mov_b32 s74, L_code_end - L_pc1")
        a("s_mov_b32 s75, 0x20000")
        a("v_lshlrev_b32 v201, 6, v0")
        for k in range(cpf // 16):
            a(f"s_mov_b32 s76, {k*16384}")
            a("buffer_load_dword v200, v201, s[72:75], s76 offen")
    def pstamp(i):
        if pst:
            a("s_memrealtime s[78:79]")
            a("s_memtime s[80:81]")
            a("s_waitcnt lgkmcnt(0)")
            a(f"v_writelane_b32 v252, s78, {i}")
            a(f"v_writelane_b32 v252, s80, {16+i}")
    if pst: a("v_mov_b32 v252, 0")
    pstamp(0)
    a("s_load_dwordx2 s[36:37], s[0:1], 32")
    a("s_load_dwordx2 s[38:39], s[0:1], 72")
    a("s_load_dwordx2 s[40:41], s[0:1], 80")
    a("s_load_dwordx2 s[44:45], s[0:1], 96")
    a(f"v_and_b32 v{V_LANE}, 63, v0")
    a(f"v_lshrrev_b32 v{V_T0}, 6, v0")
    a("s_nop 0")
    a(f"v_readfirstlane_b32 s{S_WAVE}, v{V_T0}")
    a("s_and_b32 s3, s2, 7")
    a("s_lshl_b32 s3, s3, 3")
    a("s_lshr_b32 s30, s2, 5")
    a("s_add_u32 s3, s3, s30")
    a("s_bfe_u32 s31, s2, 0x20003")
    a("s_waitcnt lgkmcnt(0)")
    a(f"s_add_u32 s44, s44, {wsbase}")
    a(f"s_addc_u32 s45, s45, 0")
    a("s_cmp_ge_u32 s3, 32")
    if raw:
        a(f"s_cselect_b32 s{S_WO}, s38, s36")
        a(f"s_cselect_b32 s{S_WO+1}, s39, s37")
        a(f"s_mov_b32 s{S_WO+2}, {4096*640*2}")
    else:
        a(f"s_mov_b32 s{S_WO}, s44")
        a(f"s_mov_b32 s{S_WO+1}, s45")
        a(f"s_mov_b32 s{S_WO+2}, {0 if now else WS_BYTES}")
    a(f"s_mov_b32 s{S_WO+3}, 0x20000")
    a(f"s_mov_b32 s{S_O}, s44")
    a(f"s_mov_b32 s{S_O+1}, s45")
    a(f"s_mov_b32 s{S_O+2}, {0 if noo else WS_BYTES}")
    a(f"s_mov_b32 s{S_O+3}, 0x20000")
    a(f"s_mov_b32 s{S_OUT}, s40")
    a(f"s_mov_b32 s{S_OUT+1}, s41")
    a(f"s_mov_b32 s{S_OUT+2}, {3584*1280*2}")
    a(f"s_mov_b32 s{S_OUT+3}, 0x20000")
    a(f"s_lshr_b32 s{S_A}, s3, 1")
    a(f"s_mul_i32 s{S_A}, s{S_A}, {32*PAIRB}")
    a(f"s_and_b32 s{S_B}, s3, 1")
    a(f"s_mul_i32 s{S_B}, s{S_B}, {7*4096}")
    a(f"s_add_u32 s{S_A}, s{S_A}, s{S_B}")
    a(f"s_lshl_b32 s{S_B}, s{S_WAVE}, 10")
    a(f"s_add_u32 s{S_A}, s{S_A}, s{S_B}")
    a(f"s_add_u32 s{S_BOFF}, s{S_A}, {WS_O}")
    if oalias == 1:
        a(f"s_lshl_b32 s{S_B}, s{S_WAVE}, 10"); a(f"s_add_u32 s{S_BOFF}, s{S_B}, {WS_O}")
    a(f"s_lshr_b32 s{S_A}, s3, 5")
    a(f"s_lshl_b32 s{S_A}, s{S_A}, 7")
    a(f"s_add_u32 s{S_A}, s{S_A}, s{S_WAVE}")
    a(f"s_mul_i32 s{S_A}, s{S_A}, 40960")
    a(f"s_mul_i32 s{S_B}, s31, 10240")
    a(f"s_add_u32 s{S_A}, s{S_A}, s{S_B}")
    a(f"s_add_u32 s{S_WOFF}, s{S_A}, {WS_W}")
    if raw:
        a(f"s_mul_i32 s{S_A}, s{S_WAVE}, {32*1280}")
        a(f"s_mul_i32 s{S_B}, s31, {256 if rawx == 3 else 10240 if rawx == 1 else 320}")
        a(f"s_add_u32 s{S_WOFF}, s{S_A}, s{S_B}")
    WSTEP = 128*1280 if raw else 4*40960
    a(f"s_mul_i32 s{S_LDB}, s{S_WAVE}, {4*BUF}")
    S_PB, S_PD, S_BB, S_WB, S_CLS, S_T1 = 48, 49, 50, 51, 52, 53
    def knext(P, OFF, BASE, stride):
        gs, lag, mode = krot
        ls = [f"s_add_u32 s{P}, s{P}, 1"]
        if gs: ls += [f"s_lshr_b32 s{S_T1}, s{P}, {gs}", f"s_sub_u32 s{S_T1}, s{S_T1}, s{S_CLS}"]
        else: ls += [f"s_sub_u32 s{S_T1}, s{P}, s{S_CLS}"]
        ls += [f"s_and_b32 s{S_T1}, s{S_T1}, 3",
               f"s_cselect_b32 s{S_T1}, {lag}, 0",
               f"s_sub_u32 s{S_T1}, s{P}, s{S_T1}",
               f"s_and_b32 s{S_T1}, s{S_T1}, 31",
               f"s_mul_i32 s{S_T1}, s{S_T1}, {stride}",
               f"s_add_u32 s{OFF}, s{BASE}, s{S_T1}"]
        return ls
    if krot:
        gs, lag, mode = krot
        a(f"s_lshr_b32 s{S_CLS}, s2, 5")
        if mode == 0:
            a(f"s_add_u32 s{S_CLS}, s{S_CLS}, s31")
        elif mode == 1:
            a(f"s_mov_b32 s{S_CLS}, s31")
        elif mode == 2:
            a(f"s_mov_b32 s{S_CLS}, 0")
        a(f"s_and_b32 s{S_CLS}, s{S_CLS}, 3")
        a(f"s_mov_b32 s{S_BB}, s{S_BOFF}")
        a(f"s_mov_b32 s{S_WB}, s{S_WOFF}")
        a(f"s_mov_b32 s{S_PB}, -1")
        a(f"s_mov_b32 s{S_PD}, -1")
        for ln in knext(S_PB, S_BOFF, S_BB, PAIRB): a(ln)
        for ln in knext(S_PD, S_WOFF, S_WB, WSTEP): a(ln)
    if stamp:
        a("s_memtime s[64:65]")
        a("s_memrealtime s[66:67]")
        a("s_load_dwordx2 s[46:47], s[0:1], 88")
        a("s_waitcnt lgkmcnt(0)")
    a(f"v_lshlrev_b32 v{V_LIN}, 4, v{V_LANE}")
    if raw:
        a("s_mov_b32 s30, 3277")
        for i in range(10 if rawx not in (1, 3) else 0):
            a(f"v_add_u32 v{V_T0}, {64*i}, v{V_LANE}")
            a(f"v_mul_u32_u24 v{V_T1}, s30, v{V_T0}")
            a(f"v_lshrrev_b32 v{V_T1}, 16, v{V_T1}")
            a(f"v_mul_u32_u24 v{V_T2}, 20, v{V_T1}")
            a(f"v_sub_u32 v{V_T2}, v{V_T0}, v{V_T2}")
            a(f"v_bfe_u32 v{V_T3}, v{V_T1}, 3, 1")
            a(f"v_lshlrev_b32 v{V_T3}, 1, v{V_T3}")
            a(f"v_xor_b32 v{V_T2}, v{V_T2}, v{V_T3}")
            a(f"v_mul_u32_u24 v{V_T1}, 1280, v{V_T1}")
            a(f"v_lshl_add_u32 v{V_T1}, v{V_T2}, 4, v{V_T1}")
            a(f"v_subrev_u32 v{V_D+i}, {1024*(i&3)}, v{V_T1}")
        if rawx == 1:
            for i in range(10):
                a(f"v_add_u32 v{V_D+i}, {4096*(i>>2)}, v{V_LIN}")
        if rawx == 3:
            for i in range(10):
                a(f"v_add_u32 v{V_T0}, {64*i}, v{V_LANE}")
                a(f"v_lshrrev_b32 v{V_T1}, 4, v{V_T0}")
                a(f"v_and_b32 v{V_T2}, 15, v{V_T0}")
                a(f"v_mul_u32_u24 v{V_T1}, 1280, v{V_T1}")
                a(f"v_lshl_add_u32 v{V_T1}, v{V_T2}, 4, v{V_T1}")
                a(f"v_subrev_u32 v{V_D+i}, {1024*(i&3)}, v{V_T1}")
        a(f"v_lshrrev_b32 v{V_T0}, 4, v{V_LANE}")
        a(f"v_bfe_u32 v{V_T1}, v{V_LANE}, 2, 2")
        a(f"v_lshl_add_u32 v{V_T1}, v{V_T0}, 3, v{V_T1}")
        a(f"v_mul_u32_u24 v{V_T1}, 320, v{V_T1}")
        a(f"v_and_b32 v{V_T2}, 3, v{V_LANE}")
        a(f"v_lshl_add_u32 v{V_T1}, v{V_T2}, 3, v{V_T1}")
        a(f"v_add_u32 v{V_T1}, s{S_LDB}, v{V_T1}")
        a(f"v_bfe_u32 v{V_T2}, v{V_LANE}, 4, 1")
        a(f"v_lshlrev_b32 v{V_T2}, 5, v{V_T2}")
        a(f"v_add_u32 v{V_AE}, v{V_T1}, v{V_T2}")
        a(f"v_sub_u32 v{V_AO}, v{V_T1}, v{V_T2}")
    else:
        a(f"v_add_u32 v{V_AE}, s{S_LDB}, v{V_LIN}")
    a(f"v_bfe_u32 v{V_T2}, v{V_LANE}, 4, 1")
    a(f"v_lshlrev_b32 v{V_T2}, 5, v{V_T2}")
    a(f"v_and_b32 v{V_T0}, 15, v{V_LANE}")
    a(f"v_mul_u32_u24 v{V_T0}, 2560, v{V_T0}")
    a(f"v_add_u32 v{V_T0}, v{V_T0}, v{V_T2}")
    a(f"v_bfe_u32 v{V_T2}, v{V_LANE}, 5, 1")
    a(f"v_lshl_add_u32 v{V_ST}, v{V_T2}, 4, v{V_T0}")

    def bloads(buf):
        ls = []
        ls.append(f"s_mov_b32 s{S_A}, s{S_BOFF}")
        for qt in range(7):
            if bdma:
                ls.append(f"s_add_u32 m0, s{S_LDB}, {buf*BUF}")
                ls.append(f"buffer_load_dwordx4 v{V_LIN}, s[{S_O}:{S_O+3}], s{S_A} offen lds")
            elif not skipb: ls.append(f"buffer_load_dwordx4 {vr(V_B+28*buf+4*qt,4)}, v{V_LIN}, s[{S_O}:{S_O+3}], s{S_A} offen{' nt' if ont else ''}")
            if qt < 6: ls.append(f"s_add_u32 s{S_A}, s{S_A}, 4096")
        if krot: ls += knext(S_PB, S_BOFF, S_BB, PAIRB)
        else: ls.append(f"s_add_u32 s{S_BOFF}, s{S_BOFF}, {PAIRB}")
        return ls
    def dmas(buf):
        ls = []
        for i in range(10):
            if i & 3 == 0:
                ls.append(f"s_add_u32 m0, s{S_LDB}, {buf*BUF+4096*(i>>2)}")
                if raw: ls.append("s_nop 0")
                elif i == 0: ls.append(f"s_mov_b32 s{S_B}, s{S_WOFF}")
                else: ls.append(f"s_add_u32 s{S_B}, s{S_B}, 4096")
            if raw: ls.append(f"buffer_load_dwordx4 v{V_D+i}, s[{S_WO}:{S_WO+3}], s{S_WOFF} offen offset:{1024*(i&3)} {rawpol+' ' if rawpol else ''}lds")
            elif not skipd: ls.append(f"buffer_load_dwordx4 v{V_LIN}, s[{S_WO}:{S_WO+3}], s{S_B} offen offset:{1024*(i&3)}{' nt' if wnt else ''} lds")
        if krot: ls += knext(S_PD, S_WOFF, S_WB, WSTEP)
        else: ls.append(f"s_add_u32 s{S_WOFF}, s{S_WOFF}, {WSTEP}")
        return ls
    def areads(nt, buf):
        if raw and rawx == 2:
            return [f"ds_read_b128 {vr(V_A+4*nt,4)}, v{V_D-4} offset:{buf*BUF+nt*1024}", "s_nop 0"]
        if raw:
            va = V_AE if nt & 1 == 0 else V_AO
            return [f"ds_read_b64_tr_b16 {vr(V_A+4*nt+2*v,2)}, v{va} offset:{buf*BUF+v*1280+nt*32}" for v in range(2)]
        return [f"ds_read_b128 {vr(V_A+4*nt,4)}, v{V_AE} offset:{buf*BUF+nt*1024}"]

    for ln in dmas(0): a(ln)
    for ln in bloads(0): a(ln)
    for ln in dmas(1): a(ln)
    a(f"s_lshl_b32 s{S_A}, s{S_WAVE}, 11")
    a(f"v_add_u32 v{V_T0}, s{S_A}, v{V_LIN}")
    a(f"v_add_u32 v{V_T1}, {40960}, v{V_T0}")
    a(f"v_add_u32 v{V_T2}, {2*40960}, v{V_T0}")
    a(f"v_add_u32 v{V_T3}, {3*40960}, v{V_T0}")
    a(f"s_and_b32 s{S_A}, s3, 31")
    a(f"s_mul_i32 s{S_A}, s{S_A}, {112*2560}")
    a(f"s_lshr_b32 s32, s3, 5")
    a(f"s_mul_i32 s32, s32, 1280")
    a(f"s_add_u32 s{S_A}, s{S_A}, s32")
    a(f"s_mul_i32 s32, s31, 320")
    a(f"s_add_u32 s{S_C}, s{S_A}, s32")
    a("s_waitcnt vmcnt(17)")
    for nt in range(10):
        for ln in areads(nt, 0): a(ln)

    def uwrite(u, ul):
        P, qt = u // 7, u % 7
        return [f"ds_write_b128 v{V_D if raw else V_AE}, {acc(2*P+e, qt)} offset:{ul*2048+1024*e}" for e in range(2)]

    def iteration(im, first=False, groups=None, vn=34, last=False):
        a(f"s_waitcnt vmcnt({vn}) lgkmcnt({15 if raw else 7})")
        if groups is None: groups = [("B", (im + 3) & 3), ("D", im)]
        fq = []
        for kind, buf in groups:
            fq += [(1 if kind == "B" else 15, ln) for ln in (bloads(buf) if kind == "B" else dmas(buf))]
        if last:
            for u in range(20):
                P, qt = u // 7, u % 7
                for ln in uwrite(u, u): fq.append(((2 * P + 1) * 7 + qt + 1 + 8, ln))
        j = 0
        for nt in range(10):
            for qt in range(7):
                if nt == 2 and qt == 0: a(f"s_waitcnt lgkmcnt({0 if last else (4 if raw else 2)})")
                c = "0" if first else acc(nt, qt)
                a(f"{MFMA} {acc(nt, qt)}, {vr(V_A+4*nt,4)}, {vr(V_B+28*im+4*qt,4)}, {c}")
                j += 1
                if qt == 6 and not last:
                    for ln in areads(nt, (im + 1) & 3): a(ln)
                elif fq and fq[0][0] <= j:
                    a(fq.pop(0)[1])
        for _, ln in fq: a(ln)
    if stamp: a("s_memtime s[68:69]")
    pstamp(1)
    iteration(0, first=True, groups=[("B", 1), ("D", 2), ("B", 2)], vn=0)
    iteration(1, groups=[("D", 3), ("B", 3), ("D", 0)], vn=7)
    iteration(2, groups=[("B", 0), ("D", 1), ("B", 1)], vn=17)
    iteration(3, groups=[("D", 2), ("B", 2), ("D", 3)], vn=24)
    a(f"s_mov_b32 s{S_CNT}, 0")
    a.label("L_op_loop")
    for im in range(4): iteration(im)
    a(f"s_add_u32 s{S_CNT}, s{S_CNT}, 1")
    a(f"s_cmp_lt_u32 s{S_CNT}, 6")
    a("s_cbranch_scc1 L_op_loop")
    if raw: a(f"v_add_u32 v{V_D}, s{S_LDB}, v{V_LIN}")
    iteration(0, groups=[("B", 3)])
    iteration(1, groups=[], vn=24)
    iteration(2, groups=[], vn=7)
    iteration(3, groups=[], vn=0, last=True)
    if stamp: a("s_memtime s[70:71]")
    pstamp(2)
    R0 = V_A
    def rreads(nk):
        for k in range(nk):
            for src in range(4):
                va = V_T0 + src
                for e in range(2):
                    a(f"ds_read_b128 {vr(R0+32*k+8*src+4*e,4)}, v{va} offset:{k*8192+1024*e}")
    def rproc(k, ubase, nunits, tag):
        R = R0 + 32 * k
        ls = []
        for h in range(4):
            ls.append(f"v_pk_add_f32 {vr(R+2*h,2)}, {vr(R+2*h,2)}, {vr(R+8+2*h,2)}")
            ls.append(f"v_pk_add_f32 {vr(R+16+2*h,2)}, {vr(R+16+2*h,2)}, {vr(R+24+2*h,2)}")
        for h in range(4):
            ls.append(f"v_pk_add_f32 {vr(R+2*h,2)}, {vr(R+2*h,2)}, {vr(R+16+2*h,2)}")
        for h in range(4):
            ls.append(f"v_cvt_pk_bf16_f32 v{R+8+h}, v{R+2*h}, v{R+2*h+1}")
        ls.append(f"s_add_u32 s{S_A}, s{S_WAVE}, {ubase+4*k}")
        ls.append(f"s_mul_i32 s{S_B}, s{S_A}, 9363")
        ls.append(f"s_lshr_b32 s{S_B}, s{S_B}, 16")
        ls.append(f"v_permlane16_swap_b32 v{R+8}, v{R+10}")
        ls.append(f"v_permlane16_swap_b32 v{R+9}, v{R+11}")
        ls.append(f"s_mul_i32 s30, s{S_B}, 7")
        ls.append(f"s_sub_u32 s30, s{S_A}, s30")
        ls.append(f"s_mul_i32 s30, s30, {16*2560}")
        ls.append(f"s_lshl_b32 s{S_B}, s{S_B}, 6")
        ls.append(f"s_add_u32 s30, s30, s{S_B}")
        ls.append(f"s_add_u32 s30, s30, s{S_C}")
        if 4 * k + 3 >= nunits:
            ls.append(f"s_cmp_ge_u32 s{S_A}, {ubase+nunits}")
            ls.append(f"s_cselect_b32 s{S_B}, 0x40000000, 0")
            ls.append(f"s_add_u32 s30, s30, s{S_B}")
        ls.append(f"buffer_store_dwordx4 {vr(R+8,4)}, v{V_ST}, s[{S_OUT}:{S_OUT+3}], s30 offen {opol}".rstrip())
        return ls
    a("s_waitcnt lgkmcnt(0)")
    a("s_barrier")
    rreads(5)
    a("s_waitcnt lgkmcnt(0)")
    a("s_barrier")
    wr = []
    for u in range(20, 35): wr += uwrite(u, u - 20)
    pr = []
    for k in range(5): pr += rproc(k, 0, 20, "a")
    step = max(1, len(pr) // len(wr))
    for i, ln in enumerate(pr):
        if i % step == 0 and wr: a(wr.pop(0))
        a(ln)
    for ln in wr: a(ln)
    a("s_waitcnt lgkmcnt(0)")
    a("s_barrier")
    rreads(4)
    for k in range(4):
        a(f"s_waitcnt lgkmcnt({min(15, 8*(3-k))})")
        for ln in rproc(k, 20, 15, "b"): a(ln)
    if pst:
        pstamp(3)
        a("s_getreg_b32 s62, hwreg(HW_REG_XCC_ID)")
        a("v_writelane_b32 v252, s62, 63")
        a(f"s_cmp_lg_u32 s{S_WAVE}, 0")
        a("s_cbranch_scc1 L_op_end")
        a("s_lshl_b32 s62, s2, 8"); a("s_add_u32 s62, s62, 50065536")
        a(f"v_lshlrev_b32 v2, 2, v{V_LANE}")
        a("s_mov_b32 s72, s44"); a("s_mov_b32 s73, s45"); a(f"s_mov_b32 s74, {WS_BYTES}"); a("s_mov_b32 s75, 0x20000")
        a(f"buffer_store_dword v252, v2, s[72:75], s62 offen")
    if stamp:
        a("s_memtime s[80:81]")
        a("s_memrealtime s[82:83]")
        a("s_waitcnt lgkmcnt(0)")
        a("s_cmp_lg_u32 s2, 5")
        a("s_cbranch_scc1 L_op_end")
        a("s_sub_u32 s72, s80, s70")
        a("s_sub_u32 s70, s70, s68")
        a("s_sub_u32 s68, s68, s64")
        a("s_sub_u32 s80, s80, s64")
        a("s_sub_u32 s82, s82, s66")
        a("s_mov_b32 s84, s46"); a("s_mov_b32 s85, s47"); a("s_mov_b32 s86, 256"); a("s_mov_b32 s87, 0x20000")
        a("v_mov_b32 v2, s80"); a("v_mov_b32 v3, s82")
        a(f"s_lshl_b32 s78, s{S_WAVE}, 3")
        a("v_mov_b32 v4, s78")
        a("buffer_store_dwordx2 v[2:3], v4, s[84:87], 0 offen")
        for k, r in enumerate((68, 70, 72)):
            a(f"v_mov_b32 v2, s{r}"); a(f"v_mov_b32 v4, {68+4*k}")
            a("buffer_store_dword v2, v4, s[84:87], 0 offen")
    a.label("L_op_end")
    a("s_endpgm")
    return a.text()

if __name__ == "__main__":
    import sys
    name = "op_kernel"
    opts = dict(x.split("=") for x in sys.argv[2:])
    opts = {k: bool(int(v)) for k, v in opts.items()}
    body = gen_op(name, **opts)
    out = f"; @launch kernel={name} grid=(256,1,1) block=(256,1,1) lds={LDS_BYTES}\n"
    out += '.amdgcn_target "amdgcn-amd-amdhsa--gfx950"\n.text\n' + kernel_header(name) + body
    out += '.section .rodata,"a"\n.p2align 6\n' + kernel_desc(name, 512, accum=256)
    open(sys.argv[1], "w").write(out)
```

```python
from gen_common import *
NQB = 3584 * 4096 * 2
WS_O = 2 * NQB
WS_BYTES = 4 * NQB + 2 * 4096 * 640 * 2
PAIRB = 224 * 128 * 2
LDS_BYTES = 163840
WST = 40960
BUF = 8192
NQ, NN = 9, 8
MFMA = "v_mfma_f32_16x16x32_bf16"
V_LANE, V_T0, V_T1, V_T2, V_T3, V_LIN, V_BO, V_UW, V_ST = 1, 2, 3, 4, 5, 6, 7, 8, 9
V_D = 10
V_AR = 18
V_ACC = 28
V_A = 60
V_B = 92
S_O, S_WO, S_OUT = 4, 8, 12
S_WAVE, S_CNT, S_A, S_B, S_C, S_BOFF, S_WOFF, S_LDB = 20, 21, 22, 23, 24, 25, 26, 27
S_RB, S_CB, S_BLK, S_GT0 = 28, 29, 30, 31
S_QB = 48
S_PB, S_PD, S_WB, S_CLS, S_T1 = 58, 59, 60, 61, 62
WSTEP = 128 * 1280
def ar(a, n=1):
    return f"a{a}" if n == 1 else f"a[{a}:{a+n-1}]"
def acc(nt, qt):
    i = nt * NQ + qt
    return ar(4 * i, 4) if i < 64 else vr(V_ACC + 4 * (i - 64), 4)

def gen_op2(name, pst=False, opol='', krot=None, wpol='', bpol='', xmap=0):
    a = Asm()
    a("s_cmp_ge_u32 s2, 256")
    a("s_cbranch_scc1 L_op_end")
    a("s_and_b32 s3, s2, 7")
    a("s_lshl_b32 s3, s3, 5")
    a("s_lshr_b32 s30, s2, 3")
    a("s_add_u32 s3, s3, s30")
    a("s_cmp_ge_u32 s3, 250")
    a("s_cbranch_scc1 L_op_end")
    def pstamp(i):
        if pst:
            a("s_memrealtime s[78:79]")
            a("s_memtime s[80:81]")
            a("s_waitcnt lgkmcnt(0)")
            a(f"v_writelane_b32 v252, s78, {i}")
            a(f"v_writelane_b32 v252, s80, {16+i}")
    if pst: a("v_mov_b32 v252, 0")
    pstamp(0)
    a("s_load_dwordx2 s[36:37], s[0:1], 32")
    a("s_load_dwordx2 s[38:39], s[0:1], 72")
    a("s_load_dwordx2 s[40:41], s[0:1], 80")
    a("s_load_dwordx2 s[44:45], s[0:1], 96")
    a(f"v_and_b32 v{V_LANE}, 63, v0")
    a(f"v_lshrrev_b32 v{V_T0}, 6, v0")
    a("s_nop 0")
    a(f"v_readfirstlane_b32 s{S_WAVE}, v{V_T0}")
    a(f"s_mul_i32 s{S_RB}, s3, 13108")
    a(f"s_lshr_b32 s{S_RB}, s{S_RB}, 16")
    a(f"s_mul_i32 s{S_A}, s{S_RB}, 5")
    a(f"s_sub_u32 s{S_CB}, s3, s{S_A}")
    a(f"s_mov_b32 s{S_CLS}, s{S_RB}")
    a(f"s_cmp_ge_u32 s{S_RB}, 25")
    a(f"s_cselect_b32 s{S_BLK}, 1, 0")
    a(f"s_cselect_b32 s{S_A}, 25, 0")
    a(f"s_sub_u32 s{S_RB}, s{S_RB}, s{S_A}")
    a(f"s_mul_i32 s{S_GT0}, s{S_RB}, {NQ}")
    a(f"s_lshl_b32 s{S_C}, s{S_WAVE}, 10")
    a(f"s_add_u32 s{S_C}, s{S_C}, {WS_O}")
    a(f"s_mul_i32 s{S_B}, s{S_BLK}, {16*32*PAIRB}")
    a(f"s_add_u32 s{S_C}, s{S_C}, s{S_B}")
    for qt in range(NQ):
        a(f"s_add_u32 s{S_A}, s{S_GT0}, {qt}")
        a(f"s_mul_i32 s{S_B}, s{S_A}, 4682")
        a(f"s_lshr_b32 s{S_B}, s{S_B}, 16")
        a(f"s_mul_i32 s{S_T1}, s{S_B}, {32*PAIRB - 14*4096}")
        a(f"s_lshl_b32 s{S_QB+qt}, s{S_A}, 12")
        a(f"s_add_u32 s{S_QB+qt}, s{S_QB+qt}, s{S_T1}")
        a(f"s_add_u32 s{S_QB+qt}, s{S_QB+qt}, s{S_C}")
        if qt == NQ - 1:
            a(f"s_cmp_ge_u32 s{S_A}, 224")
            a(f"s_cselect_b32 s{S_T1}, 0x40000000, 0")
            a(f"s_add_u32 s{S_QB+qt}, s{S_QB+qt}, s{S_T1}")
    a(f"v_lshlrev_b32 v{V_LIN}, 4, v{V_LANE}")
    a(f"v_lshrrev_b32 v{V_T0}, 4, v{V_LANE}")
    a(f"v_and_b32 v{V_T1}, 15, v{V_LANE}")
    a(f"v_lshlrev_b32 v{V_T2}, 1, v{V_T0}")
    a(f"v_xor_b32 v{V_T1}, v{V_T1}, v{V_T2}")
    a(f"v_lshlrev_b32 v{V_T1}, 4, v{V_T1}")
    a(f"v_mul_u32_u24 v{V_T2}, 1280, v{V_T0}")
    a(f"v_add_u32 v{V_T3}, v{V_T2}, v{V_T1}")
    a(f"v_xor_b32 v{V_T1}, 128, v{V_T1}")
    a(f"v_add_u32 v{V_T2}, v{V_T2}, v{V_T1}")
    for i in range(8):
        src = V_T3 if ((i >> 1) & 1) == 0 else V_T2
        a(f"v_add_u32 v{V_D+i}, {5120*i - 1024*(i&3)}, v{src}")
    a(f"s_mul_i32 s{S_LDB}, s{S_WAVE}, {WST}")
    a("s_waitcnt lgkmcnt(0)")
    a(f"s_cmp_lg_u32 s{S_BLK}, 0")
    a(f"s_cselect_b32 s{S_WO}, s38, s36")
    a(f"s_cselect_b32 s{S_WO+1}, s39, s37")
    a(f"s_mov_b32 s{S_WO+2}, {4096*640*2}")
    a(f"s_mov_b32 s{S_WO+3}, 0x20000")
    a(f"s_mov_b32 s{S_O}, s44")
    a(f"s_mov_b32 s{S_O+1}, s45")
    a(f"s_mov_b32 s{S_O+2}, {WS_BYTES}")
    a(f"s_mov_b32 s{S_O+3}, 0x20000")
    a(f"s_mov_b32 s{S_OUT}, s40")
    a(f"s_mov_b32 s{S_OUT+1}, s41")
    a(f"s_mov_b32 s{S_OUT+2}, {3584*1280*2}")
    a(f"s_mov_b32 s{S_OUT+3}, 0x20000")
    a(f"s_mul_i32 s{S_A}, s{S_WAVE}, {32*1280}")
    a(f"s_lshl_b32 s{S_B}, s{S_CB}, 8")
    a(f"s_add_u32 s{S_WOFF}, s{S_A}, s{S_B}")
    a(f"s_mov_b32 s{S_BOFF}, 0")
    def knext(P, OFF, BASE, stride):
        gs, lag, mode = krot
        ls = [f"s_add_u32 s{P}, s{P}, 1"]
        if gs: ls += [f"s_lshr_b32 s{S_T1}, s{P}, {gs}", f"s_sub_u32 s{S_T1}, s{S_T1}, s{S_CLS}"]
        else: ls += [f"s_sub_u32 s{S_T1}, s{P}, s{S_CLS}"]
        ls += [f"s_and_b32 s{S_T1}, s{S_T1}, 3",
               f"s_cselect_b32 s{S_T1}, {lag}, 0",
               f"s_sub_u32 s{S_T1}, s{P}, s{S_T1}",
               f"s_and_b32 s{S_T1}, s{S_T1}, 31",
               f"s_mul_i32 s{OFF}, s{S_T1}, {stride}"]
        if BASE is not None: ls += [f"s_add_u32 s{OFF}, s{OFF}, s{BASE}"]
        return ls
    if krot:
        a(f"s_add_u32 s{S_CLS}, s{S_CLS}, s{S_CB}")
        a(f"s_and_b32 s{S_CLS}, s{S_CLS}, 3")
        a(f"s_mov_b32 s{S_WB}, s{S_WOFF}")
        a(f"s_mov_b32 s{S_PB}, -1")
        a(f"s_mov_b32 s{S_PD}, -1")
        for ln in knext(S_PB, S_BOFF, None, PAIRB): a(ln)
        for ln in knext(S_PD, S_WOFF, S_WB, WSTEP): a(ln)
    a(f"v_add_u32 v{V_BO}, s{S_BOFF}, v{V_LIN}")

    def bloads(buf):
        ls = []
        for qt in range(NQ):
            ls.append(f"buffer_load_dwordx4 {vr(V_B+36*buf+4*qt,4)}, v{V_BO}, s[{S_O}:{S_O+3}], s{S_QB+qt} offen {bpol}".rstrip())
        if krot:
            ls += knext(S_PB, S_BOFF, None, PAIRB)
            ls.append(f"v_add_u32 v{V_BO}, s{S_BOFF}, v{V_LIN}")
        else:
            ls.append(f"v_add_u32 v{V_BO}, {PAIRB}, v{V_BO}")
        return ls
    def dmas(buf):
        ls = []
        for i in range(8):
            if i & 3 == 0:
                ls.append(f"s_add_u32 m0, s{S_LDB}, {buf*BUF+4096*(i>>2)}")
                ls.append("s_nop 0")
            ls.append(f"buffer_load_dwordx4 v{V_D+i}, s[{S_WO}:{S_WO+3}], s{S_WOFF} offen offset:{1024*(i&3)} {wpol+' ' if wpol else ''}lds")
        if krot: ls += knext(S_PD, S_WOFF, S_WB, WSTEP)
        else: ls.append(f"s_add_u32 s{S_WOFF}, s{S_WOFF}, {WSTEP}")
        return ls
    def areads(nt, buf):
        return [f"ds_read_b64_tr_b16 {vr(V_A+4*nt+2*v,2)}, v{V_AR+nt} offset:{buf*BUF+v*1024}" for v in range(2)]

    for ln in dmas(0): a(ln)
    for ln in bloads(0): a(ln)
    for ln in dmas(1): a(ln)
    a(f"v_lshrrev_b32 v{V_T0}, 4, v{V_LANE}")
    a(f"v_bfe_u32 v{V_T1}, v{V_LANE}, 2, 2")
    a(f"v_lshl_add_u32 v{V_T2}, v{V_T0}, 3, v{V_T1}")
    a(f"v_lshlrev_b32 v{V_T2}, 8, v{V_T2}")
    a(f"v_and_b32 v{V_T0}, 1, v{V_T0}")
    a(f"v_lshl_add_u32 v{V_T1}, v{V_T0}, 2, v{V_T1}")
    a(f"v_lshl_add_u32 v{V_T2}, v{V_T1}, 5, v{V_T2}")
    a(f"v_and_b32 v{V_T1}, 3, v{V_LANE}")
    a(f"v_lshl_add_u32 v{V_T2}, v{V_T1}, 3, v{V_T2}")
    a(f"v_add_u32 v{V_T2}, s{S_LDB}, v{V_T2}")
    for t in range(8):
        a(f"v_xor_b32 v{V_AR+t}, {32*t}, v{V_T2}")
    a(f"v_add_u32 v{V_UW}, s{S_LDB}, v{V_LIN}")
    a(f"v_bfe_u32 v{V_T2}, v{V_LANE}, 4, 1")
    a(f"v_lshlrev_b32 v{V_T2}, 5, v{V_T2}")
    a(f"v_and_b32 v{V_T0}, 15, v{V_LANE}")
    a(f"v_mul_u32_u24 v{V_T0}, 2560, v{V_T0}")
    a(f"v_add_u32 v{V_T0}, v{V_T0}, v{V_T2}")
    a(f"v_bfe_u32 v{V_T2}, v{V_LANE}, 5, 1")
    a(f"v_lshl_add_u32 v{V_ST}, v{V_T2}, 4, v{V_T0}")
    a(f"s_lshl_b32 s{S_A}, s{S_WAVE}, 11")
    a(f"v_add_u32 v{V_T0}, s{S_A}, v{V_LIN}")
    a(f"v_add_u32 v{V_T1}, {WST}, v{V_T0}")
    a(f"v_add_u32 v{V_T2}, {2*WST}, v{V_T0}")
    a(f"v_add_u32 v{V_T3}, {3*WST}, v{V_T0}")
    a(f"s_mul_i32 s{S_A}, s{S_RB}, {144*2560}")
    a(f"s_mul_i32 s{S_B}, s{S_BLK}, 1280")
    a(f"s_add_u32 s{S_A}, s{S_A}, s{S_B}")
    a(f"s_lshl_b32 s{S_B}, s{S_CB}, 8")
    a(f"s_add_u32 s{S_C}, s{S_A}, s{S_B}")
    a("s_waitcnt vmcnt(17)")
    for nt in range(NN):
        for ln in areads(nt, 0): a(ln)

    def uwrite(u, ul):
        P, qt = u // NQ, u % NQ
        return [f"ds_write_b128 v{V_UW}, {acc(2*P+e, qt)} offset:{ul*2048+1024*e}" for e in range(2)]

    def iteration(im, first=False, groups=None, vn=34, last=False):
        a(f"s_waitcnt vmcnt({vn}) lgkmcnt(12)")
        if groups is None: groups = [("B", (im + 3) & 3), ("D", im)]
        fq = []
        for kind, buf in groups:
            fq += [(1 if kind == "B" else 2 * NQ + 1, ln) for ln in (bloads(buf) if kind == "B" else dmas(buf))]
        if last:
            for u in range(20):
                P, qt = u // NQ, u % NQ
                for ln in uwrite(u, u): fq.append(((2 * P + 1) * NQ + qt + 1 + 8, ln))
        j = 0
        for nt in range(NN):
            for qt in range(NQ):
                if nt == 2 and qt == 0: a(f"s_waitcnt lgkmcnt({0 if last else 4})")
                c = "0" if first else acc(nt, qt)
                a(f"{MFMA} {acc(nt, qt)}, {vr(V_A+4*nt,4)}, {vr(V_B+36*im+4*qt,4)}, {c}")
                j += 1
                if qt == NQ - 1 and not last:
                    for ln in areads(nt, (im + 1) & 3): a(ln)
                elif fq and fq[0][0] <= j:
                    a(fq.pop(0)[1])
        for _, ln in fq: a(ln)
    pstamp(1)
    iteration(0, first=True, groups=[("B", 1), ("D", 2), ("B", 2)], vn=0)
    iteration(1, groups=[("D", 3), ("B", 3), ("D", 0)], vn=9)
    iteration(2, groups=[("B", 0), ("D", 1), ("B", 1)], vn=17)
    iteration(3, groups=[("D", 2), ("B", 2), ("D", 3)], vn=26)
    a(f"s_mov_b32 s{S_CNT}, 0")
    a.label("L_op_loop")
    for im in range(4): iteration(im)
    a(f"s_add_u32 s{S_CNT}, s{S_CNT}, 1")
    a(f"s_cmp_lt_u32 s{S_CNT}, 6")
    a("s_cbranch_scc1 L_op_loop")
    iteration(0, groups=[("B", 3)])
    iteration(1, groups=[], vn=26)
    iteration(2, groups=[], vn=9)
    iteration(3, groups=[], vn=0, last=True)
    pstamp(2)
    R0 = V_A
    def rreads(nk):
        for k in range(nk):
            for src in range(4):
                va = V_T0 + src
                for e in range(2):
                    a(f"ds_read_b128 {vr(R0+32*k+8*src+4*e,4)}, v{va} offset:{k*8192+1024*e}")
    def rproc(k, ubase):
        R = R0 + 32 * k
        ls = []
        for h in range(4):
            ls.append(f"v_pk_add_f32 {vr(R+2*h,2)}, {vr(R+2*h,2)}, {vr(R+8+2*h,2)}")
            ls.append(f"v_pk_add_f32 {vr(R+16+2*h,2)}, {vr(R+16+2*h,2)}, {vr(R+24+2*h,2)}")
        for h in range(4):
            ls.append(f"v_pk_add_f32 {vr(R+2*h,2)}, {vr(R+2*h,2)}, {vr(R+16+2*h,2)}")
        for h in range(4):
            ls.append(f"v_cvt_pk_bf16_f32 v{R+8+h}, v{R+2*h}, v{R+2*h+1}")
        ls.append(f"s_add_u32 s{S_A}, s{S_WAVE}, {ubase+4*k}")
        ls.append(f"s_mul_i32 s{S_B}, s{S_A}, 7282")
        ls.append(f"s_lshr_b32 s{S_B}, s{S_B}, 16")
        ls.append(f"v_permlane16_swap_b32 v{R+8}, v{R+10}")
        ls.append(f"v_permlane16_swap_b32 v{R+9}, v{R+11}")
        ls.append(f"s_mul_i32 s{S_T1}, s{S_B}, {NQ}")
        ls.append(f"s_sub_u32 s{S_A}, s{S_A}, s{S_T1}")
        ls.append(f"s_mul_i32 s{S_T1}, s{S_A}, {16*2560}")
        ls.append(f"s_lshl_b32 s{S_B}, s{S_B}, 6")
        ls.append(f"s_add_u32 s{S_T1}, s{S_T1}, s{S_B}")
        ls.append(f"s_add_u32 s{S_T1}, s{S_T1}, s{S_C}")
        ls.append(f"s_add_u32 s{S_A}, s{S_A}, s{S_GT0}")
        ls.append(f"s_cmp_ge_u32 s{S_A}, 224")
        ls.append(f"s_cselect_b32 s{S_B}, 0x40000000, 0")
        ls.append(f"s_add_u32 s{S_T1}, s{S_T1}, s{S_B}")
        ls.append(f"buffer_store_dwordx4 {vr(R+8,4)}, v{V_ST}, s[{S_OUT}:{S_OUT+3}], s{S_T1} offen {opol}".rstrip())
        return ls
    a("s_waitcnt lgkmcnt(0)")
    a("s_barrier")
    rreads(5)
    a("s_waitcnt lgkmcnt(0)")
    a("s_barrier")
    wr = []
    for u in range(20, 36): wr += uwrite(u, u - 20)
    pr = []
    for k in range(5): pr += rproc(k, 0)
    step = max(1, len(pr) // len(wr))
    for i, ln in enumerate(pr):
        if i % step == 0 and wr: a(wr.pop(0))
        a(ln)
    for ln in wr: a(ln)
    a("s_waitcnt lgkmcnt(0)")
    a("s_barrier")
    rreads(4)
    for k in range(4):
        a(f"s_waitcnt lgkmcnt({min(15, 8*(3-k))})")
        for ln in rproc(k, 20): a(ln)
    if pst:
        pstamp(3)
        a("s_getreg_b32 s62, hwreg(HW_REG_XCC_ID)")
        a("v_writelane_b32 v252, s62, 63")
        a(f"s_cmp_lg_u32 s{S_WAVE}, 0")
        a("s_cbranch_scc1 L_op_end")
        a("s_lshl_b32 s62, s2, 8"); a("s_add_u32 s62, s62, 50065536")
        a(f"v_lshlrev_b32 v2, 2, v{V_LANE}")
        a(f"buffer_store_dword v252, v2, s[{S_O}:{S_O+3}], s62 offen")
    a.label("L_op_end")
    a("s_endpgm")
    return a.text()
```

```python
from gen_common import *
import math

NQB = 3584 * 4096 * 2
WS_O = 2 * NQB
WS_W = 4 * NQB
WS_BYTES = 4 * NQB + 2 * 4096 * 640 * 2
PAIRB = 224 * 128 * 2

TILE = 8448
RING = 4
AREA = RING * TILE
LDS_BYTES = 163840
LDS_FLAG = 2 * AREA + 1024
LDS_FLAG = 2 * AREA + 8416

def kpad(i): return 1024 * i + 16 * ((i & 1) + 4 * (i >> 1))

V_LANE, V_T0, V_T1, V_T2, V_T3, V_LIN, V_DMA = 1, 2, 3, 4, 5, 6, 7
V_KA, V_VA, V_XA, V_WA = 8, 9, 10, 11
V_L = 12
V_QD, V_BA = 26, 27
V_CI = 28
V_KF = 56
V_S = 88
V_P = 104
V_VF = 112
V_OK = 144
A_Q = 0
A_OS = 112
A_LS = 224
A_ONE = 252
S_LD, S_K, S_W, S_QP = 4, 8, 12, 16
S_WAVE, S_T, S_CNT, S_NOFB, S_OOFF, S_MP, S_T0 = 20, 21, 22, 23, 24, 25, 27
S_A, S_B, S_C, S_D = 28, 29, 30, 31
S_THR, S_LDB, S_DJ, S_PJ, S_QH, S_DOFF = 32, 33, 34, 35, 48, 49
S_QS, S_QSTEP, S_QRND, S_MSTEP, S_CS = 50, 51, 52, 53, 54
S_TAB = 88
S_AS, S_TY, S_PRE, S_WO = 68, 69, 70, 71
MFMA = "v_mfma_f32_16x16x32_bf16"
def ar(a, n=1):
    return f"a{a}" if n == 1 else f"a[{a}:{a+n-1}]"

def gen_fused(name, nt=True, stamp=False, nofb=False, noload=False, nost=False, nox=False, now=False, st0=False, touch=False, kvt=False, kvtnt=False, nowo=False, tnt=False, qnt=False, wont=False, trace=False, DBO=64, ones=False, strace=False, xmem=0, xmfma=0, delay=0, tymask=1, stwg=4, roll=False, bulk0=True, wsbase=0, rot=True, rsh=1, dupst=False, allst=False, align=0, roles=False, fakex=False, early=False, qdelay=0, adelay=0, kvpol=None, xf=False, pst=False, kvl2=False, xq=False, pstl=False, kv0=False, qpnl=False, cpf=0, cpflate=False, qps=False, tymode=0, tyinv=False, xswap=False, qnrd=False, qnbar=False, qbar=7, qd0=9, qdstep=6, kvrot=0, kvgs=11, kvt2=0, kvts=64, tper=1, tpol='', tlbw=0, rflip=0, stpol='', defer=False, dpol='', dnp=3, wpol='', qpol='', anbar=False, anrd=False, anva='', ansu=False, cpf2=0, cpfo=0, pro1=0, rotn=4, spread='', dsl='1234', lp7=False, inv=False, wo2=False, wo3=0, wo4=0, wo5=0, wtl=0, wo6='', wo8=0, stpol0=None, wb=0, woff=False, wtch=0):
    a = Asm()
    if spread: early = True
    if wo6: wo5 = 2
    if wo5: wo4 = 2
    if wo3 or wo4: wo2 = True
    NT = " nt" if nt else ""
    if kvpol: NT = " " + kvpol
    if pst: a("s_memrealtime s[74:75]")
    a("s_cmp_ge_u32 s2, 256")
    a("s_cbranch_scc1 L_at_end")
    if cpf:
        a("s_getpc_b64 s[72:73]")
        a.label("L_pc0")
        a(f"s_mov_b32 s74, L_code_end - L_pc0")
        a("s_mov_b32 s75, 0x20000")
        a("v_lshlrev_b32 v105, 6, v0")
        if not cpflate:
          for k in range(cpf // 16):
            a(f"s_mov_b32 s76, {k*16384}")
            a("buffer_load_dword v104, v105, s[72:75], s76 offen")
    a("s_and_b32 s3, s2, 7")
    a("s_lshl_b32 s3, s3, 5")
    a("s_lshr_b32 s36, s2, 6")
    a("s_lshl_b32 s36, s36, 3")
    a("s_or_b32 s3, s3, s36")
    a("s_bfe_u32 s36, s2, 0x30003")
    a("s_or_b32 s2, s3, s36")
    if xswap: a("s_xor_b32 s2, s2, 32"); a("s_nop 0")
    a("s_load_dwordx8 s[36:43], s[0:1], 0")
    a("s_load_dwordx8 s[56:63], s[0:1], 40")
    a("s_load_dwordx2 s[44:45], s[0:1], 96")
    a("s_load_dwordx2 s[84:85], s[0:1], 32")
    a("s_load_dwordx2 s[86:87], s[0:1], 72")
    if cpf2:
        a("s_getpc_b64 s[72:73]")
        a.label("L_pc0")
        a("v_lshlrev_b32 v105, 7, v0")
        for k in range(cpf2):
            a(f"v_add_u32 v104, {cpfo + k*32768}, v105")
            a("v_min_u32 v104, L_code_end - L_pc0 - 4, v104")
            a("v_mov_b32 v107, s73")
            a("v_add_co_u32 v106, vcc, s72, v104")
            a("v_addc_co_u32 v107, vcc, 0, v107, vcc")
            a(f"global_load_dword v108, v[106:107], off")
    a(f"v_and_b32 v{V_LANE}, 63, v0")
    a(f"v_lshrrev_b32 v{V_T0}, 6, v0")
    a("s_nop 0")
    a(f"v_readfirstlane_b32 s{S_WAVE}, v{V_T0}")
    a("s_waitcnt lgkmcnt(0)")
    a(f"s_and_b32 s{S_QH}, s{S_WAVE}, 1")
    a(f"s_lshr_b32 s{S_PJ}, s{S_WAVE}, 1")
    a("s_cmp_ge_u32 s2, 128")
    for k in range(8):
        a(f"s_cselect_b32 s{36+k}, s{56+k}, s{36+k}")
    a("s_cselect_b32 s84, s86, s84")
    a("s_cselect_b32 s85, s87, s85")
    a(f"s_mov_b32 s86, {4096*640*2}")
    a("s_mov_b32 s87, 0x20000")
    a(f"s_and_b32 s{S_A}, s2, 127")
    a(f"s_lshl_b32 s{S_B}, s{S_A}, 20")
    a(f"s_lshl_b32 s{S_C}, s{S_PJ}, 18")
    a(f"s_add_u32 s{S_B}, s{S_B}, s{S_C}")
    a(f"s_add_u32 s38, s38, s{S_B}")
    a("s_addc_u32 s39, s39, 0")
    a(f"s_add_u32 s40, s40, s{S_B}")
    a("s_addc_u32 s41, s41, 0")
    a(f"s_sub_u32 s{S_C}, 0x100000, s{S_C}")
    a(f"s_mov_b32 s{S_K}, s38")
    a(f"s_mov_b32 s{S_K+1}, s39")
    a(f"s_mov_b32 s{S_K+2}, s{S_C}")
    a(f"s_mov_b32 s{S_K+3}, 0x20000")
    a(f"s_cmp_eq_u32 s{S_QH}, 0")
    a(f"s_cselect_b32 s{S_LD}, s38, s40")
    a(f"s_cselect_b32 s{S_LD+1}, s39, s41")
    a(f"s_mov_b32 s{S_LD+2}, {'0' if kv0 else 's'+str(S_C)}")
    a(f"s_mov_b32 s{S_LD+3}, 0x20000")
    if xf:
        a(f"s_add_u32 s36, s44, {4*NQB + 2*4096*640*2}")
        a("s_addc_u32 s37, s45, 0")
        a(f"s_cmp_eq_u32 s{S_QH}, 0")
    a(f"s_cselect_b32 s{S_QP}, s42, s36")
    a(f"s_cselect_b32 s{S_QP+1}, s43, s37")
    a(f"s_mov_b32 s{S_A}, {0 if now else 640*4096*2}")
    a(f"s_mov_b32 s{S_B}, {0 if nox else (2*3584*640*2 if xf else 3584*640*2)}")
    a(f"s_cselect_b32 s{S_QP+2}, s{S_A}, s{S_B}")
    a(f"s_mov_b32 s{S_QP+3}, 0x20000")
    a(f"s_mov_b32 s{S_A}, {32*8192}")
    a(f"s_mov_b32 s{S_B}, {7168 if (fakex or xf) else 64}")
    a(f"s_cselect_b32 s{S_QSTEP}, s{S_A}, s{S_B}")
    a(f"s_cselect_b32 s{S_QRND}, 512, 0")
    a(f"s_mov_b32 s{S_A}, 1056")
    a(f"s_mov_b32 s{S_B}, 1024")
    a(f"s_cselect_b32 s{S_MSTEP}, s{S_A}, s{S_B}")
    for i in range(8):
        a(f"s_mov_b32 s{S_A}, {((i&3)+8*(i>>2))*8192}")
        a(f"s_mov_b32 s{S_B}, {(1024*i if (fakex or xf) else 20480*i) if i < 7 else 0x40000000}")
        a(f"s_cselect_b32 s{S_TAB+i}, s{S_A}, s{S_B}")
    a(f"s_and_b32 s{S_A}, s2, 7")
    a(f"s_lshl_b32 s{S_A}, s{S_A}, 2")
    a(f"s_add_u32 s{S_A}, s{S_A}, s{S_PJ}")
    a(f"s_lshl_b32 s{S_A}, s{S_A}, 8")
    a(f"s_bfe_u32 s{S_B}, s2, {0x50003 if xf else 0x40003}")
    a(f"s_lshl_b32 s{S_B}, s{S_B}, 1")
    a(f"s_add_u32 s{S_B}, s{S_B}, s{S_PJ}")
    a(f"s_mul_i32 s{S_B}, s{S_B}, {112*1280}")
    a(f"s_cmp_eq_u32 s{S_QH}, 0")
    a(f"s_cselect_b32 s55, s{S_A}, s{S_B}")
    a(f"s_add_u32 s{S_W}, s44, {wsbase}")
    a(f"s_addc_u32 s{S_W+1}, s45, 0")
    a(f"s_mov_b32 s{S_W+2}, {WS_BYTES}")
    a(f"s_mov_b32 s{S_W+3}, 0x20000")
    a(f"s_lshl_b32 s{S_A}, s2, 2")
    a(f"s_add_u32 s{S_A}, s{S_A}, s{S_PJ}")
    a(f"s_mul_i32 s{S_OOFF}, s{S_A}, {PAIRB}")
    a(f"s_mul_i32 s{S_A}, s{S_QH}, {7*4096}")
    a(f"s_add_u32 s{S_OOFF}, s{S_OOFF}, s{S_A}")
    a(f"s_add_u32 s{S_OOFF}, s{S_OOFF}, {WS_O}")
    a(f"s_mov_b32 s{S_NOFB}, -1")
    a("s_mov_b32 s60, s42"); a("s_mov_b32 s61, s43"); a(f"s_mov_b32 s62, {640*4096*2}"); a("s_mov_b32 s63, 0x20000")
    a(f"s_mov_b32 s{S_T0}, 0")
    a(f"s_mov_b32 s{S_MP}, 0")
    a(f"s_mov_b32 s{S_AS}, 0")
    if defer: a("s_mov_b32 s98, 0x40000000")
    a(f"s_mov_b32 s{S_WO}, {(4 if (wo3 or wo4 or wo8) else 3) if nowo else 0}")
    a(f"s_lshr_b32 s26, s2, 3")
    a(f"s_lshr_b32 s{S_A}, s2, {rsh}")
    a(f"s_add_u32 s26, s26, s{S_A}")
    if rotn in (1, 2, 4):
        a(f"s_and_b32 s26, s26, {rotn-1}")
        a(f"s_mul_i32 s26, s26, {20//rotn}")
    elif rotn == 22:
        a("s_and_b32 s26, s26, 1"); a("s_mul_i32 s26, s26, 4")
    elif rotn == 23:
        a("s_and_b32 s26, s26, 1"); a("s_mul_i32 s26, s26, 6")
    a(f"s_mul_i32 s83, s{S_QSTEP}, 20")
    a(f"s_and_b32 s{S_TY}, s2, {tymask}")
    a(f"s_min_u32 s{S_TY}, s{S_TY}, 1")
    if tyinv: a(f"s_xor_b32 s{S_TY}, s{S_TY}, 1"); a("s_nop 0")
    if tymode == 1:
        a("s_bfe_u32 s3, s2, 0x10005"); a("s_xor_b32 s3, s3, 1"); a(f"s_and_b32 s{S_TY}, s2, s3"); a("s_nop 0")
    if tymode == 2:
        a("s_bfe_u32 s3, s2, 0x10005"); a("s_xor_b32 s3, s3, 1"); a(f"s_and_b32 s{S_TY}, s2, 3"); a(f"s_min_u32 s{S_TY}, s{S_TY}, 1"); a(f"s_and_b32 s{S_TY}, s{S_TY}, s3")
    if tymode == 3:
        a("s_bfe_u32 s3, s2, 0x10005"); a("s_xor_b32 s3, s3, 1"); a(f"s_and_b32 s{S_TY}, s2, 3"); a(f"s_cmp_eq_u32 s{S_TY}, 0"); a(f"s_cselect_b32 s{S_TY}, 1, 0"); a(f"s_or_b32 s{S_TY}, s{S_TY}, s3")
    if tymode == 4:
        a(f"s_and_b32 s{S_TY}, s2, 3"); a(f"s_cmp_eq_u32 s{S_TY}, 0"); a(f"s_cselect_b32 s{S_TY}, 1, 0"); a("s_nop 0")
    if tymode == 5:
        a(f"s_and_b32 s{S_TY}, s2, 7"); a(f"s_lshr_b32 s3, 0x49, s{S_TY}"); a(f"s_and_b32 s{S_TY}, s3, 1"); a("s_nop 0")
    if tymode == 6:
        a(f"s_and_b32 s{S_TY}, s2, 7"); a(f"s_cmp_eq_u32 s{S_TY}, 0"); a(f"s_cselect_b32 s{S_TY}, 1, 0"); a("s_nop 0")
    if tymode == 7:
        a(f"s_and_b32 s{S_TY}, s2, 3"); a(f"s_min_u32 s{S_TY}, s{S_TY}, 1"); a("s_nop 0")
    a(f"s_mov_b32 s{S_PRE}, s{S_TY}")
    a(f"s_mov_b32 s{S_THR}, 0x4e800000")
    import struct
    cs = struct.unpack("<I", struct.pack("<f", (128 ** -0.5) * 1.4426950408889634))[0]
    a(f"s_mov_b32 s{S_CS}, {cs:#x}")
    a(f"s_lshl_b32 s{S_A}, s{S_QH}, 1")
    a(f"s_add_u32 s{S_A}, s{S_A}, s{S_PJ}")
    a(f"s_mul_i32 s{S_LDB}, s{S_A}, {AREA}")
    if stamp:
        a("s_memtime s[64:65]")
        a("s_memrealtime s[66:67]")
        a("s_load_dwordx2 s[46:47], s[0:1], 88")
        a("s_waitcnt lgkmcnt(0)")
    G, N = V_T0, V_T1
    a(f"v_lshlrev_b32 v{V_LIN}, 4, v{V_LANE}")
    a(f"v_lshrrev_b32 v{G}, 4, v{V_LANE}")
    a(f"v_and_b32 v{N}, 15, v{V_LANE}")
    a(f"v_lshlrev_b32 v{V_T2}, 4, v{N}")
    a(f"v_lshl_add_u32 v{V_DMA}, v{G}, {kvgs}, v{V_T2}")
    a(f"v_bfe_u32 v{V_T3}, v{V_LANE}, 4, 1")
    a(f"v_lshl_add_u32 v{V_QD}, v{V_T3}, 15, v{V_T2}")
    a(f"v_bfe_u32 v{V_T3}, v{V_LANE}, 5, 1")
    a(f"v_lshl_add_u32 v{V_QD}, v{V_T3}, 17, v{V_QD}")
    a(f"v_mul_u32_u24 v{V_BA}, 1280, v{N}")
    a(f"v_lshl_add_u32 v{V_BA}, v{G}, 4, v{V_BA}")
    if fakex or xf: a(f"v_mov_b32 v{V_BA}, v{V_LIN}")
    if xq:
        a(f"v_lshrrev_b32 v{V_T3}, 4, v{V_LANE}")
        a(f"v_and_b32 v{V_BA}, 1, v{V_T3}")
        a(f"v_lshlrev_b32 v{V_BA}, 1, v{V_BA}")
        a(f"v_lshrrev_b32 v{V_T3}, 1, v{V_T3}")
        a(f"v_mul_u32_u24 v{V_T3}, 3, v{V_T3}")
        a(f"v_xor_b32 v{V_BA}, v{V_BA}, v{V_T3}")
        a(f"v_and_b32 v{V_T3}, 3, v{V_LANE}")
        a(f"v_xor_b32 v{V_BA}, v{V_BA}, v{V_T3}")
        a(f"v_lshlrev_b32 v{V_BA}, 4, v{V_BA}")
        a(f"v_lshrrev_b32 v{V_T3}, 2, v{V_LANE}")
        a(f"v_mul_u32_u24 v{V_T3}, 1280, v{V_T3}")
        a(f"v_add_u32 v{V_BA}, v{V_BA}, v{V_T3}")
    a(f"s_cmp_eq_u32 s{S_QH}, 0")
    a("s_cselect_b64 vcc, -1, 0")
    a("s_nop 1")
    a(f"v_cndmask_b32 v{V_QD}, v{V_BA}, v{V_QD}, vcc")
    a(f"s_add_u32 s{S_A}, s{S_QH}, 2")
    a(f"s_mul_i32 s{S_A}, s{S_A}, {AREA}")
    if xq:
        a(f"v_bfe_u32 v{V_T3}, v{V_LANE}, 2, 2")
        a(f"v_and_b32 v{V_BA}, 1, v{V_T3}")
        a(f"v_lshlrev_b32 v{V_BA}, 1, v{V_BA}")
        a(f"v_lshrrev_b32 v{V_T3}, 1, v{V_T3}")
        a(f"v_mul_u32_u24 v{V_T3}, 3, v{V_T3}")
        a(f"v_xor_b32 v{V_BA}, v{V_BA}, v{V_T3}")
        a(f"v_xor_b32 v{V_BA}, v{V_BA}, v{G}")
        a(f"v_lshlrev_b32 v{V_BA}, 4, v{V_BA}")
        a(f"v_lshl_add_u32 v{V_BA}, v{N}, 6, v{V_BA}")
        a(f"v_add_u32 v{V_BA}, s{S_A}, v{V_BA}")
    else:
        a(f"v_add_u32 v{V_BA}, s{S_A}, v{V_LIN}")
    a(f"v_bfe_u32 v{V_T3}, v{V_LANE}, 4, 1")
    a(f"v_lshl_add_u32 v{V_T2}, v{V_T3}, 9, v{V_T2}")
    a(f"v_bfe_u32 v{V_T3}, v{V_LANE}, 5, 1")
    a(f"v_lshl_add_u32 v{V_XA}, v{V_T3}, 8, v{V_T2}")
    a(f"v_and_b32 v{V_T2}, 7, v{N}")
    a(f"v_lshlrev_b32 v{V_KA}, 10, v{V_T2}")
    a(f"v_and_b32 v{V_T3}, 1, v{N}")
    a(f"v_lshl_add_u32 v{V_KA}, v{V_T3}, 4, v{V_KA}")
    a(f"v_bfe_u32 v{V_T3}, v{N}, 1, 2")
    a(f"v_lshl_add_u32 v{V_KA}, v{V_T3}, 6, v{V_KA}")
    a(f"v_lshrrev_b32 v{V_T3}, 3, v{N}")
    a(f"v_lshl_add_u32 v{V_KA}, v{V_T3}, 8, v{V_KA}")
    a(f"v_bfe_u32 v{V_T3}, v{V_LANE}, 4, 1")
    a(f"v_lshl_add_u32 v{V_KA}, v{V_T3}, 5, v{V_KA}")
    a(f"v_bfe_u32 v{V_T3}, v{V_LANE}, 5, 1")
    a(f"v_lshl_add_u32 v{V_KA}, v{V_T3}, 4, v{V_KA}")
    a(f"s_mul_i32 s{S_A}, s{S_PJ}, {AREA}")
    a(f"v_add_u32 v{V_KA}, s{S_A}, v{V_KA}")
    a(f"v_bfe_u32 v{N}, v{V_LANE}, 2, 2")
    a(f"v_bfe_u32 v{V_T3}, v{V_LANE}, 4, 1")
    a(f"v_lshl_add_u32 v{V_T2}, v{V_T3}, 2, v{N}")
    a(f"v_mul_u32_u24 v{V_T2}, 1056, v{V_T2}")
    a(f"v_bfe_u32 v{V_T3}, v{V_LANE}, 5, 1")
    a(f"v_lshl_add_u32 v{V_T2}, v{V_T3}, 9, v{V_T2}")
    a(f"v_and_b32 v{V_T3}, 3, v{V_LANE}")
    a(f"v_lshl_add_u32 v{V_T2}, v{V_T3}, 3, v{V_T2}")
    a(f"v_add_u32 v{V_WA}, s{S_A}, v{V_T2}")
    a(f"v_lshl_add_u32 v{N}, v{G}, 2, v{N}")
    a(f"v_and_b32 v{V_T2}, 7, v{N}")
    a(f"v_mul_u32_u24 v{V_T2}, 1056, v{V_T2}")
    a(f"v_lshrrev_b32 v{V_T3}, 3, v{N}")
    a(f"v_lshl_add_u32 v{V_T2}, v{V_T3}, 8, v{V_T2}")
    a(f"v_and_b32 v{V_T3}, 3, v{V_LANE}")
    a(f"v_lshl_add_u32 v{V_T2}, v{V_T3}, 3, v{V_T2}")
    a(f"s_add_u32 s{S_A}, s{S_A}, {2*AREA}")
    a(f"v_add_u32 v{V_VA}, s{S_A}, v{V_T2}")
    for i in range(7):
        a(f"v_mov_b32 v{V_L+2*i}, 0xff800000")
    a(f"v_mov_b32 v{V_T0}, 0x3f803f80")
    for i in range(4): a(f"v_accvgpr_write_b32 a{A_ONE+i}, v{V_T0}")
    a(f"v_and_b32 v{V_T0}, 3, v{V_LANE}")
    a(f"v_lshlrev_b32 v{V_T0}, 2, v{V_T0}")
    a(f"v_add_u32 v{V_T0}, {LDS_FLAG}, v{V_T0}")
    a(f"v_mov_b32 v{V_T1}, 0")
    a(f"ds_write_b32 v{V_T0}, v{V_T1}")
    a(f"s_cmp_eq_u32 s{S_QH}, 0")
    a(f"s_mov_b32 s{S_A}, {kpad(1)-kpad(0)-256}")
    a(f"s_mov_b32 s{S_B}, 800")
    a(f"s_cselect_b32 s96, s{S_A}, s{S_B}")
    a(f"s_mov_b32 s{S_A}, {kpad(2)-kpad(1)-256}")
    a(f"s_cselect_b32 s97, s{S_A}, s{S_B}")

    a(f"v_lshrrev_b32 v{V_T0}, 1, v{V_LANE}")
    a(f"v_lshlrev_b32 v{V_T0}, 13, v{V_T0}")
    a(f"v_and_b32 v{V_T1}, 1, v{V_LANE}")
    a(f"v_lshl_add_u32 v{V_T0}, v{V_T1}, 7, v{V_T0}")
    a(f"v_lshlrev_b32 v{V_T1}, 7, v{V_LANE}")
    a(f"s_bfe_u32 s{S_A}, s2, 0x20003")
    a(f"s_lshl_b32 s{S_A}, s{S_A}, 18")
    a(f"s_and_b32 s{S_B}, s2, 7")
    a(f"s_mul_i32 s{S_B}, s{S_B}, 17920")
    a(f"s_cmp_eq_u32 s{S_QH}, 0")
    a("s_cselect_b64 vcc, -1, 0")
    a(f"s_cselect_b32 s100, s{S_A}, s{S_B}")
    a(f"s_add_u32 s100, s100, s55")
    a(f"s_cmp_eq_u32 s{S_QH}, 0")
    a(f"s_mov_b32 s{S_A}, {4*32*8192}")
    a(f"s_mov_b32 s{S_B}, 8192")
    a(f"s_cselect_b32 s99, s{S_A}, s{S_B}")
    a(f"v_cndmask_b32 v{V_LIN}, v{V_T1}, v{V_T0}, vcc")
    def tf0(u): return (u & ((1 << kvgs) - 1)) | ((u >> kvgs) << (kvgs + 2))
    if kvt2:
        lb = kvgs - int(math.log2(kvts))
        if lb >= 6:
            a(f"v_mul_u32_u24 v{V_LIN}, {kvts}, v{V_LANE}")
        else:
            a(f"v_and_b32 v{V_T0}, {(1 << lb) - 1}, v{V_LANE}")
            a(f"v_mul_u32_u24 v{V_T0}, {kvts}, v{V_T0}")
            a(f"v_lshrrev_b32 v{V_T1}, {lb}, v{V_LANE}")
            a(f"v_lshl_add_u32 v{V_LIN}, v{V_T1}, {kvgs + 2}, v{V_T0}")
    def tch(s_): return bool(kvt2) and s_ < 16 and s_ % tper == 0
    def tvn(s_): return sum(1 for t in range(max(0, s_ - 3), s_) if tch(t))
    def tinc(k): return tf0((k + 1) * 64 * kvts) - tf0(k * 64 * kvts)
    if kvrot == 0 and kvgs != 11: a("s_mov_b32 s100, 0")
    if kvrot == 1:
        a("s_and_b32 s100, s2, 31")
    if kvrot == 2:
        a("s_mul_i32 s100, s2, 11"); a(f"s_lshr_b32 s{S_A}, s2, 5"); a(f"s_mul_i32 s{S_A}, s{S_A}, 7"); a(f"s_add_u32 s100, s100, s{S_A}")
        a(f"s_lshl_b32 s{S_A}, s{S_PJ}, 4"); a(f"s_add_u32 s100, s100, s{S_A}"); a("s_and_b32 s100, s100, 31")
    if kvrot == 3:
        a("s_lshr_b32 s100, s2, 5"); a("s_lshl_b32 s100, s100, 2")
    if rflip:
        if rflip == 1: a(f"s_bfe_u32 s{S_A}, s2, 0x10005")
        if rflip == 2: a(f"s_bfe_u32 s{S_A}, s2, 0x10006")
        if rflip == 3: a(f"s_bfe_u32 s{S_A}, s2, 0x10007")
        if rflip == 4: a(f"s_bfe_u32 s{S_A}, s2, 0x10003")
        a(f"s_lshl_b32 s101, s{S_A}, 19")
        a(f"s_mul_i32 s{S_B}, s{S_A}, s{S_QRND}")
        a(f"s_add_u32 s55, s55, s{S_B}")
        a(f"s_sub_u32 s{S_B}, 0, s{S_QRND}")
        a(f"s_cmp_lg_u32 s{S_A}, 0")
        a(f"s_cselect_b32 s{S_QRND}, s{S_B}, s{S_QRND}")
        a(f"s_mov_b32 s99, {2*PAIRB}")
        a(f"s_cselect_b32 s99, {-2*PAIRB & 0xffffffff:#x}, s99")
        a(f"s_mul_i32 s{S_B}, s{S_A}, {2*PAIRB}")
        a(f"s_add_u32 s{S_OOFF}, s{S_OOFF}, s{S_B}")
    tstate = {"t": 0}
    def touch_one():
        if not touch: return
        a(f"buffer_load_dword v0, v{V_LIN}, s[{S_QP}:{S_QP+3}], s98 offen{' nt' if tnt else ''}")
        a(f"s_add_u32 s98, s98, s99")
        tstate["t"] += 1
    if xmem or dupst:
        a("s_add_u32 s72, s44, 0x8000000"); a("s_addc_u32 s73, s45, 0"); a("s_mov_b32 s74, 0x18000000"); a("s_mov_b32 s75, 0x20000")
        a("s_lshl_b32 s76, s2, 2"); a(f"s_add_u32 s76, s76, s{S_WAVE}"); a("s_mul_i32 s76, s76, 0x60000")
    dstate = {"i": 0, "kind": None}
    state = {"n": 0}
    def dma_setup(slot, kind):
        if kind == "KV":
            if kvgs != 11:
                ln_ = kvgs - 11
                a(f"s_add_u32 s{S_B}, s{S_DJ}, s100")
                a(f"s_bfe_u32 s{S_A}, s{S_B}, {((5 - ln_) << 16) | ln_:#x}")
                a(f"s_lshl_b32 s{S_A}, s{S_A}, {kvgs + 2}")
                a(f"s_and_b32 s{S_B}, s{S_B}, {(1 << ln_) - 1}")
                a(f"s_lshl_b32 s{S_B}, s{S_B}, 11")
                a(f"s_add_u32 s{S_B}, s{S_A}, s{S_B}")
                a(f"s_lshr_b32 s{S_A}, s{S_DJ}, 5")
                a(f"s_lshl_b32 s{S_A}, s{S_A}, 19")
                if rflip: a(f"s_xor_b32 s{S_A}, s{S_A}, s101")
                a(f"s_add_u32 s{S_DOFF}, s{S_A}, s{S_B}")
            elif kvrot:
                a(f"s_lshr_b32 s{S_A}, s{S_DJ}, 5")
                a(f"s_lshl_b32 s{S_A}, s{S_A}, 19")
                if rflip: a(f"s_xor_b32 s{S_A}, s{S_A}, s101")
                a(f"s_add_u32 s{S_B}, s{S_DJ}, s100")
                a(f"s_and_b32 s{S_B}, s{S_B}, 31")
                a(f"s_lshl_b32 s{S_B}, s{S_B}, 13")
                a(f"s_add_u32 s{S_DOFF}, s{S_A}, s{S_B}")
            else:
                a(f"s_lshr_b32 s{S_A}, s{S_DJ}, 5")
                a(f"s_lshl_b32 s{S_A}, s{S_A}, 18")
                a(f"s_lshl_b32 s{S_B}, s{S_DJ}, 13")
                a(f"s_add_u32 s{S_DOFF}, s{S_A}, s{S_B}")
            if kvl2: a(f"s_and_b32 s{S_DOFF}, s{S_DOFF}, {0x7fff if kvl2 is True else kvl2 - 1}")
            a(f"s_add_u32 m0, s{S_LDB}, {slot*TILE}")
            a(f"s_add_u32 s{S_DJ}, s{S_DJ}, 1")
        else:
            a(f"s_add_u32 m0, s{S_LDB}, {slot*TILE}")
            a(f"s_mov_b32 s{S_DOFF}, s{S_QS}")
            a(f"s_add_u32 s{S_QS}, s{S_QS}, s{S_QSTEP}")
            if rot:
                a("s_add_u32 s82, s82, 1")
                a("s_cmp_eq_u32 s82, 20")
                a(f"s_cselect_b32 s{S_B}, s83, 0")
                a(f"s_sub_u32 s{S_QS}, s{S_QS}, s{S_B}")
        dstate["i"] = 0; dstate["kind"] = kind
    def dma_one(pad=False):
        i = dstate["i"]
        if dstate["kind"] == "KV":
            if pad: a("s_nop 0")
            if not noload:
                a(f"buffer_load_dwordx4 v{V_DMA}, s[{S_LD}:{S_LD+3}], s{S_DOFF} offen offset:{256*i}{NT} lds")
            if i < 7: a(f"s_add_u32 m0, m0, s{96+(i&1)}")
        else:
            a(f"s_add_u32 s{S_A}, s{S_DOFF}, s{S_TAB+i}")
            if not qpnl: a(f"buffer_load_dwordx4 v{V_QD}, s[{S_QP}:{S_QP+3}], s{S_A} offen{' nt' if qnt else ''} lds")
            if i < 7: a(f"s_add_u32 m0, m0, s{S_MSTEP}")
        dstate["i"] = i + 1
    def qs_init(rnd_sgpr, q=3):
        if kvt2:
            a(f"s_lshl_b32 s98, s{S_T}, 19")
            if q == "pre":
                a(f"s_lshl_b32 s{S_A}, s{S_PRE}, {kvgs}"); a(f"s_sub_u32 s98, s98, s{S_A}"); q = 3
            a(f"s_add_u32 s98, s98, {q << kvgs}")
        a(f"s_mul_i32 s{S_QS}, s{rnd_sgpr}, s{S_QRND}")
        if not rflip: a(f"s_mov_b32 s101, s{rnd_sgpr}")
        a(f"s_add_u32 s{S_QS}, s{S_QS}, s55")
        a(f"s_cmp_ge_u32 s{rnd_sgpr}, 2")
        a(f"s_cselect_b32 s{S_A}, 0x40000000, 0")
        a(f"s_add_u32 s{S_QS}, s{S_QS}, s{S_A}")
        if rot:
            a("s_mov_b32 s82, s26")
            a(f"s_mul_i32 s{S_A}, s26, s{S_QSTEP}")
            a(f"s_add_u32 s{S_QS}, s{S_QS}, s{S_A}")

    def touch_init(rnd_sgpr):
        if not touch: return
        a(f"s_mul_i32 s98, s{rnd_sgpr}, s{S_QRND}")
        a(f"s_add_u32 s98, s98, s100")
        a(f"s_cmp_ge_u32 s{rnd_sgpr}, 2")
        a(f"s_cselect_b32 s{S_A}, 0x40000000, 0")
        a(f"s_add_u32 s98, s98, s{S_A}")
        tstate["t"] = 0
    def kread(f, slot):
        if anrd and state.get("inat"): return
        kt, s = f >> 2, f & 3
        a.lds(f"ds_read_b128 {vr(V_KF+4*f,4)}, v{V_KA} offset:{slot*TILE+kt*512+s*64}", "K")
    def vread(l, slot):
        if anrd and state.get("inat"): return
        for v in range(2):
            a.lds(f"ds_read_b64_tr_b16 {vr(V_VF+4*l+2*v,2)}, v{V_VA} offset:{slot*TILE+v*512+l*32}", "V")
    def wread(l, slot):
        for v in range(2):
            a.lds(f"ds_read_b64_tr_b16 {vr(V_VF+4*l+2*v,2)}, v{V_WA} offset:{slot*TILE+v*256+l*32}", "W")
    def bbuf(buf, qt): return (V_KF if buf == 0 else V_CI) + 4 * qt
    def bread(buf, qt, slot):
        a.lds(f"ds_read_b128 {vr(bbuf(buf,qt),4)}, v{V_BA} offset:{slot*TILE+qt*1024}", "B")
    def oreg(l, qt):
        return vr(V_OK + 28 * l + 4 * qt, 4) if l < 4 else ar(A_OS + 28 * (l - 4) + 4 * qt, 4)

    def barrier(dyn=False, vn=16, xt=0):
        vn += xt
        if dyn:
            n = len(a.lines)
            a(f"s_cmp_eq_u32 s{S_AS}, 0")
            if inv:
                a(f"s_cbranch_scc0 L_bw1_{n}")
                a(f"s_waitcnt vmcnt({vn}) lgkmcnt(0)")
                a.label(f"L_bw2_{n}")
                if wo2 or wo8 or wtch in (2, 3):
                    state.setdefault("ool", []).extend([f"L_bw1_{n}:", f"    s_sub_u32 s{S_AS}, s{S_AS}, 1", f"    s_bitcmp1_b32 s{S_AS}, 8", f"    s_cbranch_scc1 L_bw3_{n}",
                        f"    s_waitcnt vmcnt({44 + xt}) lgkmcnt(0)", f"    s_branch L_bw2_{n}",
                        f"L_bw3_{n}:", f"    s_bitcmp1_b32 s{S_AS}, 9", f"    s_cbranch_scc1 L_bw4_{n}",
                        f"    s_and_b32 s99, s{S_AS}, 0xff", f"    s_cselect_b32 s{S_AS}, s{S_AS}, 0",
                        f"    s_waitcnt vmcnt({21 + xt}) lgkmcnt(0)", f"    s_branch L_bw2_{n}",
                        f"L_bw4_{n}:", f"    s_and_b32 s99, s{S_AS}, 0xff", f"    s_cselect_b32 s{S_AS}, s{S_AS}, 0",
                        f"    s_waitcnt vmcnt({54 + xt}) lgkmcnt(0)", f"    s_branch L_bw2_{n}"])
                else:
                    state.setdefault("ool", []).extend([f"L_bw1_{n}:", f"    s_sub_u32 s{S_AS}, s{S_AS}, 1", f"    s_waitcnt vmcnt({44 + xt}) lgkmcnt(0)", f"    s_branch L_bw2_{n}"])
                a.lds_q = []
                a("s_barrier")
                return
            a(f"s_cbranch_scc1 L_bw1_{n}")
            a(f"s_sub_u32 s{S_AS}, s{S_AS}, 1")
            a(f"s_waitcnt vmcnt({44 + xt}) lgkmcnt(0)")
            a(f"s_branch L_bw2_{n}")
            a.label(f"L_bw1_{n}")
            a(f"s_waitcnt vmcnt({vn}) lgkmcnt(0)")
            a.label(f"L_bw2_{n}")
        else:
            a(f"s_waitcnt vmcnt({vn}) lgkmcnt(0)")
        a.lds_q = []
        a("s_barrier")

    def cap(fn):
        n0 = len(a.lines); q0 = list(a.lds_q)
        fn()
        ls = a.lines[n0:]; del a.lines[n0:]; a.lds_q = q0
        return ls
    def is_scalar(ln):
        return ln.strip().startswith("s_")
    class Gaps:
        def __init__(self, n):
            self.n = n; self.S = [[] for _ in range(n)]; self.V = [[] for _ in range(n)]; self.c = [0] * n
        def putS(self, ln, lo, hi=None):
            for g in range(lo, self.n):
                if len(self.S[g]) == 0:
                    self.S[g].append(ln); return g
            self.S[self.n - 1].append(ln); return self.n - 1
        def putV(self, ln, lo, cost=1, cap_=2):
            for g in range(lo, self.n):
                if self.c[g] + cost <= cap_:
                    self.V[g].append(ln); self.c[g] += cost; return g
            self.V[self.n - 1].append(ln); self.c[self.n - 1] += cost; return self.n - 1
        def atV(self, ln, g, cost=1):
            self.V[g].append(ln); self.c[g] += cost
        def atS(self, ln, g):
            self.S[g].append(ln)
    DITEMS = [(qt, T) for qt in range(7) for T in range(4)]
    DS = {}
    if defer:
        ntl = (28 - 8 - 4 * dnp) // 4
        assert 4 * dnp + 8 + 4 * ntl == 28
        k_ = 0
        for i in range(4): DS[("P", i)] = DITEMS[k_:k_ + dnp]; k_ += dnp
        for i in (1, 0, 3, 2): DS[("L", i)] = DITEMS[k_:k_ + 2]; k_ += 2
        for i in range(4): DS[("T", i)] = DITEMS[k_:k_ + ntl]; k_ += ntl
    DLIVE = {1: 0, 0: 1, 3: 1, 2: 2}
    def dcount(code):
        if not defer or code is None: return 0
        kind, i = code
        n = lambda c: len(DS.get(c, []))
        if kind == "P": return sum(n(("P", t)) for t in (i - 2, i - 1) if t >= 0)
        prev = lambda k, t: (k, t) if t >= 0 else None
        if kind == "L":
            if i >= 2: return n(("L", i - 2)) + n(("L", i - 1))
            if i == 1: return min(n(("P", 3)), n(("L", 3))) + n(("L", 0))
            return min(n(("P", 2)) + n(("P", 3)), n(("L", 2)) + n(("L", 3)))
        if kind in ("T", "B"):
            m = lambda t: n((kind, t)) if t >= 0 else n(("L", 4 + t))
            return m(i - 2) + m(i - 1)
    def qp_stage2(sm, first, dma, last, chk, after_store, vn, nok, sidx, code=None):
        buf = sm & 1; nslot = (sm + 1) & 3
        BAR = qbar
        G = Gaps(56)
        su = cap(lambda: dma_setup(sm, dma))
        g = BAR - 1
        g = 0
        for ln in su:
            g = G.putS(ln, g) + 1
        prev = g
        w5 = wo5 == 1 and code == ("T", 0)
        for i in range(8):
            ls = cap(lambda: dma_one(False))
            tg = max(qd0 + (4 if w5 else qdstep) * i, prev)
            pre_ = [l for l in ls if is_scalar(l) and "m0" not in l]
            ld = [l for l in ls if not is_scalar(l)]
            post = [l for l in ls if is_scalar(l) and "m0" in l]
            for l in pre_: tg = G.putS(l, tg)
            for l in ld: G.atV(l, tg)
            prev = tg + 1
            for l in post: prev = G.putS(l, tg + 1) + 1
        dstate["i"] = 8
        if w5:
            assert prev <= 39, prev
            for i in range(5): G.atV(f"    v_accvgpr_read_b32 v{V_S+i}, a{244+i}", i)
            G.atS(f"    s_cmp_eq_u32 s{S_WO}, 0", 39)
            G.atS(f"    s_cselect_b32 s57, s56, 0x40000000", 39)
            for i in range(5):
                G.atS(f"    s_add_u32 m0, s58, {1024*i}", 40 + 3*i)
                G.atV(f"    buffer_load_dwordx4 v{V_S+i}, s[84:87], s57 offen lds", 41 + 3*i)
        if code in DS:
            its = DS[code]; lastq = None
            for n_, (qt_, T_) in enumerate(its):
                tg = qd0 + 3 + n_ * 2 * qdstep
                if qt_ != lastq:
                    if code[0] == "L":
                        G.atS(f"    s_cmp_eq_u32 s{S_CNT}, {DLIVE[code[1]]}", tg - 2)
                        G.atS(f"    s_cselect_b32 s99, s98, 0x40000000", tg - 2)
                        G.atS(f"    s_add_u32 s99, s99, {qt_*4096}", tg - 1)
                    else:
                        G.atS(f"    s_add_u32 s99, s98, {qt_*4096}", tg - 1)
                    lastq = qt_
                G.atV(f"    buffer_store_dwordx4 {ar(A_Q+16*qt_+4*T_,4)}, v{V_XA}, s[{S_W}:{S_W+3}], s99 offen offset:{1024*T_} {dpol}".rstrip(), tg)
        if tch(sidx):
            k_ = sidx // tper
            tg = min(prev + 1, 54)
            G.atV(f"    buffer_load_dword v{V_S+12}, v{V_LIN}, s[{S_LD}:{S_LD+3}], s98 offen {tpol}".rstrip(), tg)
            G.putS(f"    s_add_u32 s98, s98, {tinc(k_)}", tg + 1)
        if qnrd: pass
        elif not last:
            lo = BAR - 1
            for ln in cap(lambda: wread(0, nslot)): lo = G.putV(ln, lo, cap_=1)
            for qt in range(7):
                for ln in cap(lambda: bread(buf ^ 1, qt, nslot)): lo = G.putV(ln, lo, cap_=1)
            for l in range(1, 8):
                lo = max(lo, min(7 * (l + 1) - 1, 55))
                for ln in cap(lambda: wread(l, nslot)): lo = G.putV(ln, lo, cap_=(1 if l < 7 else 2))
        elif not nok:
            lo = BAR - 1
            for f in range(8):
                for ln in cap(lambda: kread(f, nslot)): lo = G.putV(ln, lo, cap_=1)
        a("s_waitcnt lgkmcnt(14)")
        j = 0
        for l in range(8):
            for qt in range(7):
                c = "0" if first else oreg(l, qt)
                if qt == 0 and l > 0 and j < BAR: a(f"s_waitcnt lgkmcnt({14-2*l})")
                a(f"{MFMA} {oreg(l, qt)}, {vr(V_VF+4*l,4)}, {vr(bbuf(buf,qt),4)}, {c}")
                for ln in G.S[j]: a.lines.append(ln)
                if j == BAR - 1:
                    if not qnbar: barrier(after_store, 16, tvn(sidx) + dcount(code) + (5 if (wo5 == 1 and code in (("T", 1), ("T", 2), ("T", 3))) else 0))
                    if chk: flagcheck()
                for ln in G.V[j]: a.lines.append(ln)
                j += 1
    def qp_stage(sm, first=False, dma="QP", last=False, chk=False, after_store=False, kt_=False, vn=16, nok=False, role=None, ntouch=0, sidx=None, code=None):
        buf = sm & 1; nslot = (sm + 1) & 3
        if qps:
            return qp_stage2(sm, first, dma, last, chk, after_store, vn, nok, sidx, code)
        a("s_waitcnt lgkmcnt(14)")
        fq = []
        def cap(fn):
            n0 = len(a.lines); q0 = len(a.lds_q)
            fn()
            ls = a.lines[n0:]; del a.lines[n0:]; del a.lds_q[q0:]
            return ls
        BAR = 7
        if role != "T":
            for ln in cap(lambda: dma_setup(sm, dma)): fq.append((BAR, ln))
        if dma == "QP" and roll:
            fq.append((BAR, f"    s_lshl2_add_u32 s{S_B}, s{S_QSTEP}, s{S_DOFF}"))
            fq.append((BAR, f"    buffer_load_dword v0, v{V_T0}, s[{S_QP}:{S_QP+3}], s{S_B} offen{' nt' if tnt else ''}"))
        if kvt and kt_:
            fq.append((BAR, f"    buffer_load_dword v0, v{V_T3}, s[{S_LD}:{S_LD+3}], s101 offen{' nt' if kvtnt else ''}"))
            fq.append((BAR, f"    s_add_u32 s101, s101, 8192"))
        if not last:
            for ln in cap(lambda: wread(0, nslot)): fq.append((BAR, ln))
            for qt in range(7):
                for ln in cap(lambda: bread(buf ^ 1, qt, nslot)): fq.append((BAR, ln))
        elif not nok:
            for f in range(8):
                for ln in cap(lambda: kread(f, nslot)): fq.append((BAR, ln))
        for l in range(1, 8):
            if not last:
                for ln in cap(lambda: wread(l, nslot)): fq.append((7 * (l + 1), ln))
            if role == "T":
                if l == 1:
                    for _ in range(ntouch):
                        fq.append((BAR, f"    buffer_load_dword v0, v{V_T0}, s[60:63], s98 offen"))
                        fq.append((BAR, f"    s_add_u32 s98, s98, {32*8192}"))
                        fq.append((BAR, f"    buffer_load_dword v0, v{V_T1}, s[{S_QP}:{S_QP+3}], s99 offen"))
                        fq.append((BAR, f"    s_add_u32 s99, s99, 64"))
                continue
            for ln in cap(lambda: dma_one(True)): fq.append((BAR, ln))
            if role == "X":
                if l == 7:
                    fq.append((BAR, f"    s_add_u32 m0, s{S_LDB}, {AREA+sm*TILE}"))
                    fq.append((BAR, f"    s_add_u32 s{S_DOFF}, s{S_DOFF}, {112*1280}"))
                    for i in range(7):
                        fq.append((BAR, f"    s_add_u32 s{S_A}, s{S_DOFF}, s{S_TAB+i}"))
                        fq.append((BAR, f"    buffer_load_dwordx4 v{V_QD}, s[{S_QP}:{S_QP+3}], s{S_A} offen{' nt' if qnt else ''} lds"))
                        if i < 6: fq.append((BAR, f"    s_add_u32 m0, m0, 1024"))
            elif l == 7:
                for ln in cap(lambda: dma_one(True)): fq.append((BAR, ln))
        j = 0
        for l in range(8):
            for qt in range(7):
                c = "0" if first else oreg(l, qt)
                a(f"{MFMA} {oreg(l, qt)}, {vr(V_VF+4*l,4)}, {vr(bbuf(buf,qt),4)}, {c}")
                j += 1
                if j == BAR:
                    barrier(after_store, vn if (roll or role) else 16)
                    if chk: flagcheck()
                    if trace:
                        a("s_memtime s[78:79]")
                        a("s_waitcnt lgkmcnt(0)")
                        a(f"v_cmp_eq_u32 vcc, s77, v{V_LANE}")
                        a(f"v_mov_b32 v{V_T2}, s78")
                        a("s_nop 1")
                        a(f"v_cndmask_b32 v{V_T3}, v{V_T3}, v{V_T2}, vcc")
                        a("s_add_u32 s77, s77, 1")
                k = 0; idx = 0
                rem_gaps = 56 - j + 1
                quota = 1 if len(fq) <= rem_gaps else 2
                while k < quota and idx < len(fq):
                    if fq[idx][0] <= j and (idx == 0 or "ds_read" in fq[idx][1] or all("ds_read" in x[1] for x in fq[:idx])):
                        a.lines.append(fq[idx][1]); del fq[idx]; k += 1
                    else:
                        idx += 1
        for _, ln in fq: a.lines.append(ln)
        assert role in ("X", "T") or dstate["i"] == 8

    def sm_ops(par, i, first):
        S = V_S + 8 * par; P = V_P + 4 * par; L = V_L + 2 * i
        ops = []
        if first:
            T0, T1 = V_T0, V_T1
            ops += [f"v_max3_f32 v{T0}, v{S}, v{S+1}, v{L}", f"v_max3_f32 v{T1}, v{S+2}, v{S+3}, v{S+4}",
                    f"v_max3_f32 v{T0}, v{S+5}, v{S+6}, v{T0}", f"v_max3_f32 v{T0}, v{S+7}, v{T0}, v{T1}",
                    f"v_mov_b32 v{T1}, v{T0}", "s_nop 1", f"v_permlane16_swap_b32 v{T0}, v{T1}", "s_nop 1", f"v_max_f32 v{T0}, v{T0}, v{T1}",
                    f"v_mov_b32 v{T1}, v{T0}", "s_nop 1", f"v_permlane32_swap_b32 v{T0}, v{T1}", "s_nop 1", f"v_max_f32 v{T0}, v{T0}, v{T1}",
                    f"v_mov_b32 v{L}, 0", f"v_mov_b32 v{L+1}, 0"]
            ops += [f"v_sub_f32 v{S+r}, v{S+r}, v{T0}" for r in range(8)]
            ops += [f"v_sub_f32 v{V_CI+4*i+r}, 0, v{T0}" for r in range(4)]
        e = lambda r: ops.append(f"v_exp_f32 v{S+r}, v{S+r}")
        e(0); e(1)
        for r in range(0, 8, 2):
            if r + 2 < 8: e(r + 2); e(r + 3)
            if not ones:
                ops.append(f"v_add_f32 v{L}, v{L}, v{S+r}")
                ops.append(f"v_add_f32 v{L+1}, v{L+1}, v{S+r+1}")
            ops.append(f"v_cvt_pk_bf16_f32 v{P+r//2}, v{S+r}, v{S+r+1}")
        return ops

    def qk_items(qt, par, czero, kr):
        it = []
        for f in range(8):
            kt, s = f >> 2, f & 3
            D = vr(V_S + 8 * par + 4 * kt, 4)
            c = ("0" if czero else vr(V_CI + 4 * qt, 4)) if s == 0 else D
            it.append(("K" if f == 0 else None, f"{MFMA} {D}, {vr(V_KF+4*f,4)}, {ar(A_Q+16*qt+4*s,4)}, {c}",
                       (lambda f=f: kread(f, kr)) if kr is not None else None))
        return it
    def pv_items(qt, par, czero, vrd):
        it = []
        for l in range(8):
            c = "0" if czero else oreg(l, qt)
            it.append(("V" if l == 0 else None, f"{MFMA} {oreg(l, qt)}, {vr(V_VF+4*l,4)}, {vr(V_P+4*par,4)}, {c}",
                       (lambda l=l: vread(l, vrd)) if vrd is not None else None))
        for _ in range(xmfma):
            D = ar(A_LS + 4 * qt, 4)
            it.append((None, f"{MFMA} {D}, {vr(V_VF,4)}, {vr(V_P+4*par,4)}, {D}", None))
        if ones:
            D = ar(A_LS + 4 * qt, 4)
            it.append((None, f"{MFMA} {D}, {ar(A_ONE,4)}, {vr(V_P+4*par,4)}, {'0' if czero else D}", None))
        return it

    def capture(fn):
        n0 = len(a.lines)
        fn()
        ls = a.lines[n0:]; del a.lines[n0:]
        return ls
    def emit(items, va, fill=None, nfill=0):
        cost = lambda op: 2 if "v_exp" in op else 1
        tot = sum(cost(o) for o in va); acc = 0; k = 0; ng = len(items)
        pos = [int((i + 0.5) * ng / max(nfill, 1)) for i in range(nfill)]
        for j, (need, m, post) in enumerate(items):
            if m:
                if need: a.lds_wait({need})
                a(m)
            if post: post()
            for _ in range(pos.count(j)):
                if fill: a.lines.append(fill.pop(0))
            while k < len(va) and acc + cost(va[k]) <= tot * (j + 1) / ng + 0.01:
                a(va[k]); acc += cost(va[k]); k += 1
        assert k == len(va)

    def dma_lines(slot, kind, pad=False):
        def f():
            dma_setup(slot, kind)
            for _ in range(8): dma_one(pad)
            if xmem and kind == "KV":
                a(f"s_mul_i32 s{S_A}, s{S_WAVE}, 7168")
                a(f"s_add_u32 m0, s{S_A}, {4*AREA+5120}")
                a(f"s_add_u32 s{S_A}, s{S_DOFF}, s76")
                for i in range(xmem):
                    a(f"buffer_load_dwordx4 v{V_DMA}, s[72:75], s{S_A} offen offset:{256*i} nt lds")
        return capture(f)
    def split_fill(fill, quota):
        out = []; idx = 0
        for q in quota:
            ch = []; n = 0
            while idx < len(fill) and n < q:
                ln = fill[idx]; ch.append(ln); idx += 1
                if "buffer_load" in ln:
                    n += 1
                    if idx < len(fill) and "m0, m0" in fill[idx]: ch.append(fill[idx]); idx += 1
            out.append(ch)
        out[-1] += fill[idx:]
        return out
    def step(jm, first=False, last=False, dma="KV", nt_=0, tr_=False, dyn=False):
        fill = [] if (first or early) else dma_lines((jm + 3) & 3, dma)
        nf = (len(fill) + len(dsl) - 1) // len(dsl)
        chunks = state.get("carry") or [[] for _ in range(5)]
        state["carry"] = None
        for i in range(7):
            if strace and tr_:
                pr = [36, 38, 40, 42, 56, 58, 60, 62]
                a(f"s_memtime s[{pr[i]}:{pr[i]+1}]")
            if i in (1, 2, 3)[:nt_]: touch_one()
            n = state["n"]; par = n & 1
            items = []
            nfill = nf if (str(i) in dsl and i <= 4) else 0
            if spread and i <= 4:
                fill = list(chunks[i]); nfill = len(fill)
            if i == 5:
                assert not fill
                if not (anbar and state.get("inat")): barrier(dyn)
                if first: flagcheck()
                if last or early:
                    fill = dma_lines(jm, dma, True if last else False); nf = (len(fill) + 1) // 2
                    if spread and not last:
                        ch = split_fill(fill, [int(c) for c in spread])
                        assert len(ch) == 7
                        nxt = ch; fill = list(ch[0]); state["carry"] = ch[2:]
            if (last or early) and i >= 5: nfill = nf
            if spread and not last and i == 5: nfill = len(fill)
            if spread and not last and i == 6: fill = list(nxt[1]); nfill = len(fill)
            if i < 6:
                items += qk_items(i + 1, par ^ 1, first, ((jm + 1) & 3) if (i == 5 and (not last or dma == "KV")) else None)
            elif not last:
                items += qk_items(0, par ^ 1, False, None)
            else:
                if dma == "KV": qreload()
                a("s_nop 1")
            if i > 0:
                items += pv_items(i - 1, par ^ 1, first, None)
            elif not first:
                items += pv_items(6, par ^ 1, False, jm)
            else:
                items += [(None, None, (lambda l=l: vread(l, jm))) for l in range(8)]
            ops_ = sm_ops(par, i, first)
            if state.get("inat") and anva:
                ops_ = [o for o in ops_ if not any(o.startswith(x) for x in anva.split(","))]
            emit(items, ops_, fill, nfill)
            state["n"] = n + 1
        assert not fill

    def qstash_off():
        a(f"s_lshl_b32 s{S_C}, s2, 2")
        a(f"s_add_u32 s{S_C}, s{S_C}, s{S_WAVE}")
        a(f"s_mul_i32 s{S_C}, s{S_C}, 28672")
        a(f"v_lshlrev_b32 v{V_T2}, 4, v{V_LANE}")
    def qreload():
        qstash_off()
        for i in range(7):
            for s_ in range(4):
                a(f"buffer_load_dwordx4 {ar(A_Q+16*i+4*s_,4)}, v{V_T2}, s[{S_W}:{S_W+3}], s{S_C} offen offset:{1024*s_}")
            if i < 6: a(f"s_add_u32 s{S_C}, s{S_C}, 4096")

    def flagcheck():
        lab = f"L_at_nofb_{len(a.lines)}"
        a(f"s_cmp_le_u32 s{S_T}, s{S_T0}")
        a(f"s_cbranch_scc1 {lab}")
        a(f"s_sub_u32 s{S_A}, s{S_T}, 1")
        a(f"s_cmp_eq_u32 s{S_A}, s{S_NOFB}")
        a(f"s_cbranch_scc1 {lab}")
        a(f"s_lshl_b32 s{S_B}, s{S_A}, 2")
        a(f"s_add_u32 s{S_B}, s{S_B}, {LDS_FLAG}")
        a(f"v_mov_b32 v{V_T2}, s{S_B}")
        a(f"ds_read_b32 v{V_T2}, v{V_T2}")
        a("s_waitcnt lgkmcnt(0)")
        a(f"v_readfirstlane_b32 s{S_B}, v{V_T2}")
        a("s_nop 3")
        a(f"s_cmp_lg_u32 s{S_B}, 0")
        a(f"s_cbranch_scc1 L_at_fallback")
        a.label(lab)

    def wo_issue_a(ps):
        a(f"s_and_b32 s{S_B}, s2, 127")
        a(f"s_mul_i32 s{S_B}, s{S_B}, {32*1280}")
        a(f"s_mul_i32 s{S_D}, s{S_WAVE}, 320")
        a(f"s_add_u32 s{S_B}, s{S_B}, s{S_D}")
        a(f"s_add_u32 s{S_B}, s{S_B}, {160*ps}")
        a(f"s_mul_i32 s{S_D}, s{S_WAVE}, 7168")
        a(f"s_add_u32 s{S_D}, s{S_D}, {4*AREA}")
        a(f"s_mov_b32 s{S_A}, 6554")
        for i in range(5):
            a(f"v_add_u32 v{V_T0}, {64*i}, v{V_LANE}")
            a(f"v_mul_u32_u24 v{V_T1}, s{S_A}, v{V_T0}")
            a(f"v_lshrrev_b32 v{V_T1}, 16, v{V_T1}")
            a(f"v_mul_u32_u24 v{V_T2}, 10, v{V_T1}")
            a(f"v_sub_u32 v{V_T2}, v{V_T0}, v{V_T2}")
            a(f"v_mul_u32_u24 v{V_T1}, 1280, v{V_T1}")
            a(f"s_add_u32 m0, s{S_D}, {1024*i}")
            a(f"v_lshl_add_u32 v{V_T3}, v{V_T2}, 4, v{V_T1}")
            a(f"buffer_load_dwordx4 v{V_T3}, s[84:87], s{S_B} offen lds")
    def wo_read_a():
        a(f"v_lshrrev_b32 v{V_T0}, 4, v{V_LANE}")
        a(f"v_bfe_u32 v{V_T1}, v{V_LANE}, 2, 2")
        a(f"v_lshl_add_u32 v{V_T1}, v{V_T0}, 3, v{V_T1}")
        a(f"v_mul_u32_u24 v{V_T1}, 160, v{V_T1}")
        a(f"v_and_b32 v{V_T2}, 3, v{V_LANE}")
        a(f"v_lshl_add_u32 v{V_T1}, v{V_T2}, 3, v{V_T1}")
        a(f"s_mul_i32 s{S_D}, s{S_WAVE}, 7168")
        a(f"s_add_u32 s{S_D}, s{S_D}, {4*AREA}")
        a(f"v_add_u32 v{V_T1}, s{S_D}, v{V_T1}")
        R = A_LS
        for t in range(5):
            for v in range(2):
                a(f"ds_read_b64_tr_b16 {ar(R+4*t+2*v,2)}, v{V_T1} offset:{v*640+t*32}")
    def wo_store_a(ps):
        R = A_LS
        a(f"v_lshlrev_b32 v{V_T2}, 4, v{V_LANE}")
        a(f"s_mul_i32 s{S_A}, s2, {40*1024}")
        a(f"s_mul_i32 s{S_B}, s{S_WAVE}, {10*1024}")
        a(f"s_add_u32 s{S_A}, s{S_A}, s{S_B}")
        a(f"s_add_u32 s{S_A}, s{S_A}, {WS_W+5120*ps}")
        a("s_waitcnt lgkmcnt(0)")
        for f in range(5):
            if f == 4: a(f"s_add_u32 s{S_A}, s{S_A}, 4096")
            a(f"buffer_store_dwordx4 {ar(R+4*f,4)}, v{V_T2}, s[{S_W}:{S_W+3}], s{S_A} offen offset:{1024*(f&3)} {wpol}".rstrip())
    def wo_finish_a(ps):
        wo_read_a(); wo_store_a(ps)
    def wo_issue(ps):
        D = V_S
        a(f"s_mov_b32 s{S_A}, 6554")
        for i in range(5):
            a(f"v_add_u32 v{V_T0}, {64*i}, v{V_LANE}")
            a(f"v_mul_u32_u24 v{V_T1}, s{S_A}, v{V_T0}")
            a(f"v_lshrrev_b32 v{V_T1}, 16, v{V_T1}")
            a(f"v_mul_u32_u24 v{V_T2}, 10, v{V_T1}")
            a(f"v_sub_u32 v{V_T2}, v{V_T0}, v{V_T2}")
            a(f"v_mul_u32_u24 v{V_T1}, 1280, v{V_T1}")
            a(f"v_lshl_add_u32 v{D+i}, v{V_T2}, 4, v{V_T1}")
        a(f"s_and_b32 s{S_A}, s2, 127")
        a(f"s_mul_i32 s{S_A}, s{S_A}, {32*1280}")
        a(f"s_mul_i32 s{S_B}, s{S_WAVE}, 320")
        a(f"s_add_u32 s{S_A}, s{S_A}, s{S_B}")
        a(f"s_add_u32 s{S_A}, s{S_A}, {160*ps}")
        a(f"s_mul_i32 s{S_D}, s{S_WAVE}, 7168")
        a(f"s_add_u32 s{S_D}, s{S_D}, {4*AREA}")
        for i in range(5):
            a(f"s_add_u32 m0, s{S_D}, {1024*i}")
            a("s_nop 0")
            a(f"buffer_load_dwordx4 v{D+i}, s[84:87], s{S_A} offen{' nt' if wont else ''} lds")
    def wo_finish(ps):
        if wo5:
            a(f"v_accvgpr_read_b32 v{V_T1}, a249")
        else:
            a(f"v_lshrrev_b32 v{V_T0}, 4, v{V_LANE}")
            a(f"v_bfe_u32 v{V_T1}, v{V_LANE}, 2, 2")
            a(f"v_lshl_add_u32 v{V_T1}, v{V_T0}, 3, v{V_T1}")
            a(f"v_mul_u32_u24 v{V_T1}, 160, v{V_T1}")
            a(f"v_and_b32 v{V_T2}, 3, v{V_LANE}")
            a(f"v_lshl_add_u32 v{V_T1}, v{V_T2}, 3, v{V_T1}")
            a(f"s_mul_i32 s{S_D}, s{S_WAVE}, 7168")
            a(f"s_add_u32 s{S_D}, s{S_D}, {4*AREA}")
            a(f"v_add_u32 v{V_T1}, s{S_D}, v{V_T1}")
        a(f"v_lshlrev_b32 v{V_T2}, 4, v{V_LANE}")
        a(f"s_mul_i32 s{S_A}, s2, {40*1024}")
        a(f"s_mul_i32 s{S_B}, s{S_WAVE}, {10*1024}")
        a(f"s_add_u32 s{S_A}, s{S_A}, s{S_B}")
        a(f"s_add_u32 s{S_A}, s{S_A}, {WS_W+5120*ps}")
        R = V_VF
        for t in range(5):
            for v in range(2):
                a(f"ds_read_b64_tr_b16 {vr(R+4*t+2*v,2)}, v{V_T1} offset:{v*640+t*32}")
        a("s_waitcnt lgkmcnt(0)")
        for f in range(5):
            if f == 4: a(f"s_add_u32 s{S_A}, s{S_A}, 4096")
            a(f"buffer_store_dwordx4 {vr(R+4*f,4)}, v{V_T2}, s[{S_W}:{S_W+3}], s{S_A} offen offset:{1024*(f&3)} {wpol}".rstrip())
        a("s_nop 1")

    def rt_setup():
        a(f"s_bfe_u32 s{S_A}, s2, 0x20003")
        a(f"s_lshl_b32 s{S_A}, s{S_A}, 3")
        a(f"v_lshrrev_b32 v{V_T0}, 3, v{V_LANE}")
        a(f"v_add_u32 v{V_T0}, s{S_A}, v{V_T0}")
        a(f"v_lshlrev_b32 v{V_T0}, 13, v{V_T0}")
        a(f"v_and_b32 v{V_T2}, 7, v{V_LANE}")
        a(f"v_lshl_add_u32 v{V_T0}, v{V_T2}, 5, v{V_T0}")
        a(f"v_bfe_u32 v{V_T1}, v{V_LANE}, 1, 4")
        a(f"v_min_u32 v{V_T1}, 13, v{V_T1}")
        a(f"s_and_b32 s{S_A}, s2, 7")
        a(f"s_mul_i32 s{S_A}, s{S_A}, 14")
        a(f"v_add_u32 v{V_T1}, s{S_A}, v{V_T1}")
        a(f"v_mul_u32_u24 v{V_T1}, 1280, v{V_T1}")
        a(f"v_and_b32 v{V_T2}, 1, v{V_LANE}")
        a(f"v_lshl_add_u32 v{V_T1}, v{V_T2}, 5, v{V_T1}")
        a(f"s_cmp_eq_u32 s{S_QH}, 0")
        a("s_cselect_b64 vcc, -1, 0")
        a("s_nop 1")
        a(f"v_cndmask_b32 v{V_T0}, v{V_T1}, v{V_T0}, vcc")
    def dly(us, tag):
        a("s_memrealtime s[78:79]")
        a("s_waitcnt lgkmcnt(0)")
        a(f"s_add_u32 s77, s78, {us*100}")
        a.label(f"L_dl{tag}")
        a("s_sleep 4")
        a("s_memrealtime s[78:79]")
        a("s_waitcnt lgkmcnt(0)")
        a("s_sub_u32 s79, s78, s77")
        a("s_cmp_lt_i32 s79, 0")
        a(f"s_cbranch_scc1 L_dl{tag}")
    def st(k):
        if pst:
            a("s_memrealtime s[78:79]")
            a("s_memtime s[80:81]")
            a("s_waitcnt lgkmcnt(0)")
            a("s_mov_b32 m0, s77"); a("s_nop 0"); a("v_writelane_b32 v0, s78, m0")
            a("s_add_u32 m0, s77, 30"); a("s_nop 0"); a("v_writelane_b32 v0, s80, m0")
            a("s_add_u32 s77, s77, 1")
        if stamp:
            if st0:
                n = len(a.lines)
                a(f"s_cmp_ge_u32 s{S_T}, {1 if k < 3 else 2}")
                a(f"s_cbranch_scc1 L_st_{n}")
            a(f"s_memtime s[{72+2*k}:{73+2*k}]")
            if st0: a.label(f"L_st_{n}")
    if pst:
        a("s_memrealtime s[78:79]")
        a("s_memtime s[80:81]")
        a("s_waitcnt lgkmcnt(0)")
        a("v_mov_b32 v0, 0")
        a("v_writelane_b32 v0, s78, 0")
        a("v_writelane_b32 v0, s80, 30")
        a("v_writelane_b32 v0, s74, 61")
        a("s_mov_b32 s77, 1")
    if delay:
        a("s_bitcmp1_b32 s2, 0")
        a("s_cbranch_scc0 L_nodelay")
        a("s_memrealtime s[78:79]")
        a("s_waitcnt lgkmcnt(0)")
        a(f"s_add_u32 s77, s78, {delay*100}")
        a.label("L_dl")
        a("s_sleep 8")
        a("s_memrealtime s[78:79]")
        a("s_waitcnt lgkmcnt(0)")
        a("s_sub_u32 s79, s78, s77")
        a("s_cmp_lt_i32 s79, 0")
        a("s_cbranch_scc1 L_dl")
        a.label("L_nodelay")
    a.label("L_at_start")
    if trace:
        a("s_mov_b32 s77, 1")
        a(f"v_mov_b32 v{V_T3}, s64")
        a("s_memtime s[78:79]")
        a("s_waitcnt lgkmcnt(0)")
        a(f"v_cmp_eq_u32 vcc, s77, v{V_LANE}")
        a(f"v_mov_b32 v{V_T2}, s78")
        a("s_nop 1")
        a(f"v_cndmask_b32 v{V_T3}, v{V_T3}, v{V_T2}, vcc")
        a("s_add_u32 s77, s77, 1")
    a(f"s_mov_b32 s{S_T}, s{S_T0}")
    a(f"s_lshl_b32 s{S_DJ}, s{S_T0}, 5")
    a(f"s_add_u32 s{S_D}, s{S_T}, s{S_PRE}")
    qs_init(S_D, "pre")
    if roll:
        rt_setup()
        for sl in range(2):
            dma_setup(sl, "QP")
            for _ in range(8): dma_one(True)
        a(f"s_mov_b32 s{S_B}, s{S_QS}")
        for _ in range(6):
            a(f"buffer_load_dword v0, v{V_T0}, s[{S_QP}:{S_QP+3}], s{S_B} offen{' nt' if tnt else ''}")
            a(f"s_add_u32 s{S_B}, s{S_B}, s{S_QSTEP}")
        for sl in range(2, 4):
            dma_setup(sl, "QP")
            for _ in range(8): dma_one(True)
        a(f"s_waitcnt vmcnt(30) lgkmcnt(0)")
    else:
        if wtl:
            a(f"s_and_b32 s56, s2, 127")
            a(f"s_mul_i32 s56, s56, {32*1280}")
            a(f"v_mov_b32 v{V_S+14}, 0")
            if wtl == 2: a(f"v_mul_u32_u24 v{V_S+14}, 640, v{V_LANE}")
            a(f"buffer_load_dword v{V_S+15}, v{V_S+14}, s[84:87], s56 offen")
        for sl in range(4):
            dma_setup(sl, "QP")
            for _ in range(8): dma_one(True)
            if pro1 and sl == 0:
                st(9)
                a("s_waitcnt vmcnt(0)")
                st(9)
        if wo5 or wo8:
            a(f"s_and_b32 s56, s2, 127")
            a(f"s_mul_i32 s56, s56, {32*1280}")
            a(f"s_mul_i32 s58, s{S_WAVE}, 320")
            a(f"s_add_u32 s56, s56, s58")
            a(f"s_mul_i32 s58, s{S_WAVE}, 7168")
            a(f"s_add_u32 s58, s58, {4*AREA}")
            a(f"s_mov_b32 s{S_A}, 6554")
            for i in range(5):
                a(f"v_add_u32 v{V_T0}, {64*i}, v{V_LANE}")
                a(f"v_mul_u32_u24 v{V_T1}, s{S_A}, v{V_T0}")
                a(f"v_lshrrev_b32 v{V_T1}, 16, v{V_T1}")
                a(f"v_mul_u32_u24 v{V_T2}, 10, v{V_T1}")
                a(f"v_sub_u32 v{V_T2}, v{V_T0}, v{V_T2}")
                a(f"v_mul_u32_u24 v{V_T1}, 1280, v{V_T1}")
                a(f"v_lshl_add_u32 v{V_T3}, v{V_T2}, 4, v{V_T1}")
                a(f"v_accvgpr_write_b32 a{244+i}, v{V_T3}")
            a(f"v_lshrrev_b32 v{V_T0}, 4, v{V_LANE}")
            a(f"v_bfe_u32 v{V_T1}, v{V_LANE}, 2, 2")
            a(f"v_lshl_add_u32 v{V_T1}, v{V_T0}, 3, v{V_T1}")
            a(f"v_mul_u32_u24 v{V_T1}, 160, v{V_T1}")
            a(f"v_and_b32 v{V_T2}, 3, v{V_LANE}")
            a(f"v_lshl_add_u32 v{V_T1}, v{V_T2}, 3, v{V_T1}")
            a(f"v_add_u32 v{V_T1}, s58, v{V_T1}")
            a(f"v_accvgpr_write_b32 a249, v{V_T1}")
        if tlbw:
            a(f"v_lshlrev_b32 v{V_S+13}, 12, v{V_LANE}")
            a(f"buffer_load_dword v{V_S+12}, v{V_S+13}, s[{S_LD}:{S_LD+3}], 0 offen nt")
            if tlbw > 1:
                a(f"s_mov_b32 s{S_A}, 0x80000")
                a(f"buffer_load_dword v{V_S+12}, v{V_S+13}, s[{S_LD}:{S_LD+3}], s{S_A} offen nt")
        if bulk0 and touch:
            touch_init(S_D)
            for _ in range(5): touch_one()
        if cpf and cpflate:
            for k in range(cpf // 16):
                a(f"s_mov_b32 s76, {k*16384}")
                a("buffer_load_dword v104, v105, s[72:75], s76 offen")
        a(f"s_waitcnt vmcnt({(29 if (bulk0 and touch) else 24) + (cpf // 16 if cpflate else 0)}) lgkmcnt(0)")
    a("s_barrier")
    a.label("L_at_round")
    st(0)
    if roll: rt_setup()
    for l in range(8): wread(l, 0)
    for qt in range(7): bread(0, qt, 0)
    a.lds_wait_all()
    def qp_body(role):
        sfx = role or ""
        vns = {None: (22, 17, 18, 18, 18), "W": (16, 16, 16, 16, 16), "X": (16, 22, 28, 28, 28), "T": (16, 20, 20, 63, 63)}[role]
        nts = (6, 4, 4, 2)
        qp_stage(0, first=True, chk=True, after_store=True, vn=vns[0], role=role, ntouch=nts[0], sidx=0, code=("P", 0))
        qp_stage(1, after_store=True, vn=vns[1], role=role, ntouch=nts[1], sidx=1, code=("P", 1))
        qp_stage(2, after_store=True, vn=vns[2], role=role, ntouch=nts[2], sidx=2, code=("P", 2))
        qp_stage(3, vn=vns[3], role=role, ntouch=nts[3], sidx=3, code=("P", 3))
        if not wo2 and not wo8 and not woff:
            a(f"s_cmp_lg_u32 s{S_WO}, 0")
            a(f"s_cbranch_scc1 L_at_nowo0{sfx}")
            a(f"s_mov_b32 s{S_WO}, 1")
            wo_issue(0)
            if roll: rt_setup()
            a.label(f"L_at_nowo0{sfx}")
        a(f"s_mov_b32 s{S_CNT}, 0")
        a.label(f"L_at_qploop{sfx}")
        a.lds_q = []
        if wo6:
            a(f"s_lshl3_add_u32 s{S_A}, s{S_WO}, s{S_CNT}")
            a(f"s_cmp_eq_u32 s{S_A}, {int(wo6[0])}")
            a("s_cbranch_scc1 L_at_wh0")
            a(f"s_cmp_eq_u32 s{S_A}, {8 + int(wo6[1])}")
            a("s_cbranch_scc1 L_at_wh1")
            a.label("L_at_whr")
            def h0():
                a(f"s_mov_b32 s{S_WO}, 1")
                for i in range(5):
                    a(f"s_add_u32 m0, s58, {1024*i}")
                    a(f"v_accvgpr_read_b32 v{V_T3}, a{244+i}")
                    a(f"buffer_load_dwordx4 v{V_T3}, s[84:87], s56 offen lds")
                a("s_branch L_at_whr")
            def h1():
                a(f"s_mov_b32 s{S_WO}, 2")
                a(f"v_accvgpr_read_b32 v{V_T1}, a249")
                a("s_add_u32 s57, s56, 160")
                for t in range(5):
                    for v in range(2):
                        a(f"ds_read_b64_tr_b16 {ar(A_LS+4*t+2*v,2)}, v{V_T1} offset:{v*640+t*32}")
                a("s_waitcnt lgkmcnt(0)")
                for i in range(5):
                    a(f"s_add_u32 m0, s58, {1024*i}")
                    a(f"v_accvgpr_read_b32 v{V_T3}, a{244+i}")
                    a(f"buffer_load_dwordx4 v{V_T3}, s[84:87], s57 offen lds")
                a("s_branch L_at_whr")
            state.setdefault("ool", []).extend(["L_at_wh0:"] + capture(h0) + ["L_at_wh1:"] + capture(h1))
        for sm in range(4): qp_stage(sm, vn=vns[4], role=role, sidx=4+sm, code=("L", sm))
        a(f"s_add_u32 s{S_CNT}, s{S_CNT}, 1")
        a(f"s_cmp_lt_u32 s{S_CNT}, 3")
        a(f"s_cbranch_scc1 L_at_qploop{sfx}")
    if not roles:
        qp_body(None)
    else:
        a(f"s_cmp_eq_u32 s{S_WAVE}, 1")
        a("s_cbranch_scc1 L_at_qpX")
        a(f"s_cmp_eq_u32 s{S_WAVE}, 3")
        a("s_cbranch_scc1 L_at_qpT")
        qp_body("W")
        a("s_branch L_at_qpjoin")
        a.label("L_at_qpX")
        qp_body("X")
        a("s_branch L_at_qpjoin")
        a.label("L_at_qpT")
        a(f"s_bfe_u32 s{S_A}, s2, 0x20003")
        a(f"s_lshl_b32 s{S_A}, s{S_A}, 3")
        a(f"v_lshrrev_b32 v{V_T0}, 3, v{V_LANE}")
        a(f"v_add_u32 v{V_T0}, s{S_A}, v{V_T0}")
        a(f"v_lshlrev_b32 v{V_T0}, 13, v{V_T0}")
        a(f"v_and_b32 v{V_T1}, 7, v{V_LANE}")
        a(f"v_lshl_add_u32 v{V_T0}, v{V_T1}, 6, v{V_T0}")
        a(f"v_min_u32 v{V_T1}, 27, v{V_LANE}")
        a(f"s_and_b32 s{S_A}, s2, 7")
        a(f"s_mul_i32 s{S_B}, s{S_A}, 28")
        a(f"v_add_u32 v{V_T1}, s{S_B}, v{V_T1}")
        a(f"v_mul_u32_u24 v{V_T1}, 1280, v{V_T1}")
        a(f"s_lshl_b32 s{S_A}, s{S_A}, 10")
        a(f"s_lshl_b32 s{S_B}, s101, 9")
        a(f"s_add_u32 s98, s{S_A}, s{S_B}")
        a(f"s_add_u32 s98, s98, {4*32*8192}")
        a(f"s_bfe_u32 s{S_A}, s2, 0x40003")
        a(f"s_mul_i32 s99, s{S_A}, {224*1280}")
        a(f"s_add_u32 s99, s99, {4*64}")
        qp_body("T")
        a.label("L_at_qpjoin")
    a(f"s_cmp_lg_u32 s{S_PRE}, 0")
    a("s_cbranch_scc1 L_at_qptailB")
    for sm in range(4): qp_stage(sm, dma="KV", last=(sm == 3), vn=(18, 17, 16, 16)[sm], sidx=16+sm, code=("T", sm))
    a("s_branch L_at_qpepi")
    a.label("L_at_qptailB")
    qs_init(S_T)
    a.lds_q = []
    for sm in range(4): qp_stage(sm, dma="QP", last=(sm == 3), vn=18, nok=True, sidx=16+sm, code=("B", sm))
    a.label("L_at_qpepi")
    if qdelay: dly(qdelay, "q")
    st(1)
    if trace:
        a("s_cmp_lg_u32 s2, 5")
        a("s_cbranch_scc1 L_tr_skip")
        a(f"s_cmp_lg_u32 s{S_T}, 0")
        a("s_cbranch_scc1 L_tr_skip")
        a(f"s_cmp_lg_u32 s{S_WAVE}, 0")
        a("s_cbranch_scc1 L_tr_skip")
        a("s_mov_b32 s80, s46"); a("s_mov_b32 s81, s47"); a("s_mov_b32 s82, 256"); a("s_mov_b32 s83, 0x20000")
        a(f"v_lshlrev_b32 v{V_T2}, 2, v{V_LANE}")
        a(f"v_add_u32 v{V_T2}, 128, v{V_T2}")
        a(f"buffer_store_dword v{V_T3}, v{V_T2}, s[80:83], 0 offen")
        a.label("L_tr_skip")
    if defer: a("s_mov_b32 s98, 0x40000000")
    a(f"v_mov_b32 v{V_T2}, s{S_CS}")
    a(f"v_mov_b32 v{V_T3}, s{S_CS}")
    a("s_nop 6")
    TMP = V_S
    for T in range(4):
        if T < 2:
            base = lambda e, qt: V_OK + 28 * (2 * T + e) + 4 * qt
        else:
            base = lambda e, qt: V_OK + 28 * (2 * (T - 2) + e) + 4 * qt
            for e in range(2):
                for qt in range(7):
                    for r in range(4):
                        a(f"v_accvgpr_read_b32 v{base(e,qt)+r}, a{A_OS+28*(2*(T-2)+e)+4*qt+r}")
        for e in range(2):
            for qt in range(7):
                o = base(e, qt)
                for h in range(2):
                    a(f"v_pk_mul_f32 {vr(o+2*h,2)}, {vr(o+2*h,2)}, {vr(V_T2,2)}")
        pk = lambda qt: TMP + 28 * (T & 1) + 4 * qt
        for qt in range(7):
            oe = base(0, qt); oo = base(1, qt); p = pk(qt)
            a(f"v_cvt_pk_bf16_f32 v{p}, v{oe}, v{oe+1}")
            a(f"v_cvt_pk_bf16_f32 v{p+1}, v{oe+2}, v{oe+3}")
            a(f"v_cvt_pk_bf16_f32 v{p+2}, v{oo}, v{oo+1}")
            a(f"v_cvt_pk_bf16_f32 v{p+3}, v{oo+2}, v{oo+3}")
        a("s_nop 1")
        for qt in range(7):
            p = pk(qt)
            a(f"v_permlane16_swap_b32 v{p}, v{p+2}")
            a(f"v_permlane16_swap_b32 v{p+1}, v{p+3}")
        for qt in range(7):
            for r in range(4):
                a(f"v_accvgpr_write_b32 a{A_Q+16*qt+4*T+r}, v{pk(qt)+r}")
    a(f"s_cmp_eq_u32 s{S_PRE}, 0")
    a("s_cbranch_scc1 L_at_nostash")
    a(f"s_mov_b32 s{S_PRE}, 0")
    qstash_off()
    for i in range(7):
        for s_ in range(4):
            a(f"buffer_store_dwordx4 {ar(A_Q+16*i+4*s_,4)}, v{V_T2}, s[{S_W}:{S_W+3}], s{S_C} offen offset:{1024*s_} {qpol}".rstrip())
        if i < 6: a(f"s_add_u32 s{S_C}, s{S_C}, 4096")
    a(f"s_mov_b32 s{S_AS}, 3")
    a("s_branch L_at_round")
    a.label("L_at_nostash")
    a(f"s_cmp_lg_u32 s{S_MP}, 0")
    a("s_cbranch_scc1 L_at_maxpass")
    a.label("L_at_pre")
    if wo6 or wo8 or woff:
        pass
    elif wo2:
        assert inv
        a(f"s_cmp_lg_u32 s{S_WO}, 0")
        a("s_cbranch_scc1 L_at_nowo1a")
        a(f"s_mov_b32 s{S_WO}, {2 if wo5 else 1}")
        a(f"s_mov_b32 s{S_AS}, 0x103")
        if wo5:
            a(f"v_accvgpr_read_b32 v{V_T1}, a249")
            a("s_add_u32 s57, s56, 160")
            a("s_waitcnt vmcnt(24)")
            for t in range(5):
                for v in range(2):
                    a(f"ds_read_b64_tr_b16 {ar(A_LS+4*t+2*v,2)}, v{V_T1} offset:{v*640+t*32}")
            a("s_waitcnt lgkmcnt(0)")
            for i in range(5):
                a(f"s_add_u32 m0, s58, {1024*i}")
                a(f"v_accvgpr_read_b32 v{V_T3}, a{244+i}")
                a(f"buffer_load_dwordx4 v{V_T3}, s[84:87], s57 offen lds")
        else:
            wo_issue(0)
        if not (wo3 or wo4): a("s_branch L_at_nowo1")
        a.label("L_at_nowo1a")
        if not (wo3 or wo4):
            a(f"s_cmp_lg_u32 s{S_WO}, 2")
            a("s_cbranch_scc1 L_at_nowo1")
            a(f"s_cmp_lg_u32 s{S_TY}, 0")
            a("s_cbranch_scc1 L_at_nowo1")
            a(f"s_mov_b32 s{S_WO}, 3")
            a(f"s_mov_b32 s{S_AS}, 0x103")
            wo_finish(1)
    else:
        a(f"s_cmp_lg_u32 s{S_WO}, 1")
        a("s_cbranch_scc1 L_at_nowo1")
        a(f"s_mov_b32 s{S_WO}, 2")
        wo_finish(0)
        wo_issue(1)
    a.label("L_at_nowo1")
    st(2)
    a.lds_q = ["K"]
    state["n"] = 0
    z = []
    for l in range(8):
        for r in range(4):
            z.append(f"v_mov_b32 v{V_OK+28*l+24+r}, 0" if l < 4 else f"v_accvgpr_write_b32 a{A_OS+28*(l-4)+24+r}, 0")
    if ones: z += [f"v_accvgpr_write_b32 a{A_LS+24+r}, 0" for r in range(4)]
    emit(qk_items(0, 0, True, None), z[:16])
    for o in z[16:]: a(o)
    step(0, first=True, dyn=True)
    a(f"s_mov_b32 s{S_CNT}, 0")
    if align:
        a.lines.append(".p2align 6")
        if align == 2: a("s_nop 0")
    a.label("L_at_loop")
    q0 = list(a.lds_q)
    state["inat"] = True
    for jm in (1, 2, 3, 0): step(jm, dyn=(jm in (1, 2)))
    state["inat"] = False
    assert q0 == a.lds_q, (q0, a.lds_q)
    if pstl:
        a("s_memrealtime s[78:79]")
        a("s_memtime s[80:81]")
        a("s_waitcnt lgkmcnt(0)")
        a("s_mov_b32 s76, m0")
        a("s_mov_b32 m0, s77"); a("s_nop 0"); a("v_writelane_b32 v0, s78, m0")
        a("s_add_u32 m0, s77, 30"); a("s_nop 0"); a("v_writelane_b32 v0, s80, m0")
        a("s_add_u32 s77, s77, 1")
        a("s_mov_b32 m0, s76")
    a(f"s_add_u32 s{S_CNT}, s{S_CNT}, 1")
    if wo3:
        assert lp7 and not ones
        a(f"s_lshl3_add_u32 s{S_A}, s{S_WO}, s{S_CNT}")
        a(f"s_cmp_eq_u32 s{S_A}, {8 + wo3}")
        a("s_cbranch_scc1 L_at_wof0")
        a.label("L_at_wof0r")
    a(f"s_cmp_lt_u32 s{S_CNT}, {7 if lp7 else 6}")
    a("s_cbranch_scc1 L_at_loop")
    if wo4 and not wo5:
        assert lp7 and not ones
        a(f"s_cmp_lg_u32 s{S_WO}, 1")
        a("s_cbranch_scc1 L_at_nowoi1")
        a(f"s_mov_b32 s{S_WO}, 2")
        a(f"s_mov_b32 s{S_AS}, 0x102")
        wo_read_a()
        a("s_waitcnt lgkmcnt(0)")
        wo_issue_a(1)
        a.label("L_at_nowoi1")
    if wo3:
        a(f"s_cmp_lg_u32 s{S_WO}, 2")
        a("s_cbranch_scc1 L_at_nowoi1")
        a(f"s_mov_b32 s{S_WO}, 3")
        a(f"s_mov_b32 s{S_AS}, 0x102")
        wo_issue_a(1)
        a.label("L_at_nowoi1")
        ls = capture(lambda: (wo_finish_a(0), a(f"s_mov_b32 s{S_WO}, 2"), a(f"s_mov_b32 s{S_AS}, 0x102"), a("s_branch L_at_wof0r")))
        state.setdefault("ool", []).extend(["L_at_wof0:"] + ls)
    a(f"s_add_u32 s{S_T}, s{S_T}, 1")
    touch_init(S_T)
    assert not (lp7 and early)
    if not lp7:
        step(1, nt_=3); step(2, nt_=2); step(3, tr_=True)
    if strace: a("s_memtime s[62:63]")
    qs_init(S_T)
    if not early and not lp7: step(0)
    def wtouch():
        a(f"s_and_b32 s{S_A}, s2, 127")
        a(f"s_mul_i32 s{S_A}, s{S_A}, {32*1280}")
        a(f"s_mul_i32 s{S_B}, s{S_WAVE}, {80*128}")
        a(f"s_add_u32 s{S_A}, s{S_A}, s{S_B}")
        a(f"v_lshlrev_b32 v{V_T2}, 7, v{V_LANE}")
        a(f"v_and_b32 v{V_T3}, 15, v{V_LANE}")
        a(f"v_lshlrev_b32 v{V_T3}, 7, v{V_T3}")
        a(f"buffer_load_dword a250, v{V_T2}, s[84:87], s{S_A} offen")
        a(f"s_add_u32 s{S_A}, s{S_A}, {64*128}")
        a(f"buffer_load_dword a251, v{V_T3}, s[84:87], s{S_A} offen")
        if wtch in (2, 3):
            a(f"s_mov_b32 s{S_A}, 0x40000000")
            for _ in range(3): a(f"buffer_load_dword a251, v{V_T3}, s[84:87], s{S_A} offen")
            a(f"s_mov_b32 s{S_AS}, {0x103 if wtch == 2 else 0x102}")
    if wtch in (1, 2, 3):
        a(f"s_cmp_eq_u32 s{S_T}, 2")
        a("s_cbranch_scc1 L_at_wt0")
        a.label("L_at_wt0r")
        state.setdefault("ool", []).extend(["L_at_wt0:"] + capture(lambda: (wtouch(), a("s_branch L_at_wt0r"))))
    if wo8:
        assert lp7 and inv
        a(f"s_lshl3_add_u32 s{S_A}, s{S_T}, s{S_WO}")
        a(f"s_cmp_eq_u32 s{S_A}, 16")
        a("s_cbranch_scc1 L_at_w8h0")
        a.label("L_at_w8h0r")
        def h0body():
            a(f"s_mov_b32 s{S_WO}, 1")
            a(f"s_mov_b32 s{S_AS}, 0x102")
            for i in range(5):
                a(f"s_add_u32 m0, s58, {1024*i}")
                a(f"v_accvgpr_read_b32 v{V_T3}, a{244+i}")
                if not wo8 & 16: a(f"buffer_load_dwordx4 v{V_T3}, s[84:87], s56 offen lds")
            a("s_branch L_at_w8h0r")
        state.setdefault("ool", []).extend(["L_at_w8h0:"] + capture(h0body))
    a(f"s_cmp_lg_u32 s{S_TY}, 0")
    a("s_cbranch_scc1 L_at_atailB")
    n0 = state["n"]; q0 = list(a.lds_q); c0 = state.get("carry")
    if early: step(0, dma="QP")
    tdyn = bool((wo3 or wo4) and not wo5) or bool(wo8) or wtch in (2, 3)
    def h1(tag):
        if wtch == 3:
            a(f"s_cmp_eq_u32 s{S_T}, 2")
            a(f"s_cselect_b32 s{S_AS}, 0x301, s{S_AS}")
        if not wo8: return
        a(f"s_cmp_eq_u32 s{S_WO}, 1")
        a(f"s_cbranch_scc1 L_at_w8h1{tag}")
        a.label(f"L_at_w8h1r{tag}")
        def body():
            a(f"s_mov_b32 s{S_WO}, 2")
            a(f"s_mov_b32 s{S_AS}, 0x101")
            a(f"v_accvgpr_read_b32 v{V_T1}, a249")
            a("s_add_u32 s57, s56, 160")
            a(f"v_lshlrev_b32 v{V_T2}, 4, v{V_LANE}")
            a(f"s_mul_i32 s{S_A}, s2, {40*1024}")
            a(f"s_mul_i32 s{S_B}, s{S_WAVE}, {10*1024}")
            a(f"s_add_u32 s{S_A}, s{S_A}, s{S_B}")
            a(f"s_add_u32 s{S_A}, s{S_A}, {WS_W}")
            if not wo8 & 8: a("s_waitcnt vmcnt(16)")
            for t in range(5):
                for v in range(2):
                    a(f"ds_read_b64_tr_b16 {ar(A_LS+4*t+2*v,2)}, v{V_T1} offset:{v*640+t*32}")
            a("s_waitcnt lgkmcnt(0)")
            for i in range(5):
                a(f"s_add_u32 m0, s58, {1024*i}")
                a(f"v_accvgpr_read_b32 v{V_T3}, a{244+i}")
                if not wo8 & 4: a(f"buffer_load_dwordx4 v{V_T3}, s[84:87], s57 offen lds")
            for f in range(5):
                if f == 4: a(f"s_add_u32 s{S_A}, s{S_A}, 4096")
                if not wo8 & 2: a(f"buffer_store_dwordx4 {ar(A_LS+4*f,4)}, v{V_T2}, s[{S_W}:{S_W+3}], s{S_A} offen offset:{1024*(f&3)} {wpol}".rstrip())
            a(f"s_branch L_at_w8h1r{tag}")
        state.setdefault("ool", []).extend([f"L_at_w8h1{tag}:"] + capture(body))
    step(1, dma="QP", dyn=tdyn); step(2, dma="QP", dyn=tdyn); h1("A"); step(3, dma="QP", last=True, dyn=bool(wo8) or wtch in (2, 3))
    a("s_branch L_at_aepi")
    a.label("L_at_atailB")
    state["n"] = n0; a.lds_q = q0; state["carry"] = c0
    if early: step(0)
    step(1, dyn=tdyn); step(2, dyn=tdyn); h1("B"); step(3, last=True, dyn=bool(wo8) or wtch in (2, 3))
    a.label("L_at_aepi")
    if adelay: dly(adelay, "a")
    a.lds_q = ["V"]
    st(3)
    E = V_S
    red = [f"v_add_f32 v{V_L+2*i}, v{V_L+2*i}, v{V_L+2*i+1}" for i in range(7)]
    red += [f"v_mov_b32 v{E+i}, v{V_L+2*i}" for i in range(7)]
    red += [f"v_permlane16_swap_b32 v{V_L+2*i}, v{E+i}" for i in range(7)]
    red += [f"v_add_f32 v{V_L+2*i}, v{V_L+2*i}, v{E+i}" for i in range(7)]
    red += [f"v_mov_b32 v{E+i}, v{V_L+2*i}" for i in range(7)]
    red += [f"v_permlane32_swap_b32 v{V_L+2*i}, v{E+i}" for i in range(7)]
    red += [f"v_add_f32 v{V_L+2*i}, v{V_L+2*i}, v{E+i}" for i in range(7)]
    a("s_nop 1")
    if ones:
        emit(pv_items(6, 1, False, None), [])
        a("s_nop 7")
        for i in range(7): a(f"v_accvgpr_read_b32 v{V_L+2*i}, a{A_LS+4*i}")
    else:
        emit(pv_items(6, 1, False, None), red)
    for i in range(7): a(f"v_rcp_f32 v{V_CI+4*i}, v{V_L+2*i}")
    a(f"v_add_f32 v{E+2}, v{V_L}, v{V_L+2}")
    a(f"v_add_f32 v{E+3}, v{V_L+4}, v{V_L+6}")
    a(f"v_add_f32 v{E+4}, v{V_L+8}, v{V_L+10}")
    a(f"v_add_f32 v{E+2}, v{E+2}, v{V_L+12}")
    a(f"v_add_f32 v{E+3}, v{E+3}, v{E+4}")
    a(f"v_add_f32 v{E+2}, v{E+2}, v{E+3}")
    a(f"v_cmp_nge_f32 vcc, s{S_THR}, v{E+2}")
    for i in range(7): a(f"v_mov_b32 v{V_L+2*i}, 0xff800000")
    a("s_cmp_eq_u64 vcc, 0")
    a("s_cbranch_scc1 L_at_noflag")
    if nofb: a("s_branch L_at_noflag")
    a(f"s_lshl_b32 s{S_B}, s{S_T}, 2")
    a(f"s_add_u32 s{S_B}, s{S_B}, {LDS_FLAG-4}")
    a(f"v_mov_b32 v{E+2}, s{S_B}")
    a(f"v_mov_b32 v{E+3}, 1")
    a(f"ds_write_b32 v{E+2}, v{E+3}")
    a.label("L_at_noflag")
    if rflip:
        a(f"s_sub_u32 s{S_D}, s{S_T}, 1")
        a(f"s_mul_i32 s{S_D}, s{S_D}, s99")
        a(f"s_add_u32 s{S_D}, s{S_D}, s{S_OOFF}")
    else:
        a(f"s_mul_i32 s{S_D}, s{S_T}, {2*PAIRB}")
        a(f"s_add_u32 s{S_D}, s{S_D}, s{S_OOFF}")
        a(f"s_sub_u32 s{S_D}, s{S_D}, {2*PAIRB}")
    if defer:
        a(f"s_cmp_lt_u32 s{S_T}, 2")
        a(f"s_cselect_b32 s99, 1, 0")
        a(f"s_cmp_eq_u32 s{S_TY}, 0")
        a(f"s_cselect_b32 s99, s99, 0")
        a(f"s_cmp_lg_u32 s99, 0")
        a(f"s_cselect_b32 s98, s{S_D}, s98")
    for T in range(4):
        if T < 2:
            base = lambda e, qt: V_OK + 28 * (2 * T + e) + 4 * qt
        else:
            base = lambda e, qt: V_OK + 28 * (2 * (T - 2) + e) + 4 * qt
            for e in range(2):
                for qt in range(7):
                    for r in range(4):
                        a(f"v_accvgpr_read_b32 v{base(e,qt)+r}, a{A_OS+28*(2*(T-2)+e)+4*qt+r}")
        for e in range(2):
            for qt in range(7):
                o = base(e, qt)
                for h in range(2):
                    a(f"v_pk_mul_f32 {vr(o+2*h,2)}, {vr(o+2*h,2)}, {vr(V_CI+4*qt,2)} op_sel_hi:[1,0]")
        pk = lambda qt: V_S + 28 * (T & 1) + 4 * qt
        for qt in range(7):
            oe = base(0, qt); oo = base(1, qt); p = pk(qt)
            a(f"v_cvt_pk_bf16_f32 v{p}, v{oe}, v{oe+1}")
            a(f"v_cvt_pk_bf16_f32 v{p+1}, v{oe+2}, v{oe+3}")
            a(f"v_cvt_pk_bf16_f32 v{p+2}, v{oo}, v{oo+1}")
            a(f"v_cvt_pk_bf16_f32 v{p+3}, v{oo+2}, v{oo+3}")
        a("s_nop 1")
        for qt in range(7):
            p = pk(qt)
            a(f"v_permlane16_swap_b32 v{p}, v{p+2}")
            a(f"v_permlane16_swap_b32 v{p+1}, v{p+3}")
        if defer:
            a(f"s_cmp_lg_u32 s99, 0")
            a(f"s_cbranch_scc1 L_at_dfr{T}")
        a(f"s_mov_b32 s{S_A}, s{S_D}")
        if stpol0 is not None:
            a(f"s_cmp_ge_u32 s{S_T}, 2")
            a(f"s_cbranch_scc1 L_at_sp1_{T}")
            for qt in range(7):
                a(f"buffer_store_dwordx4 {vr(pk(qt),4)}, v{V_XA}, s[{S_W}:{S_W+3}], s{S_A} offen offset:{1024*T} {stpol0}".rstrip())
                if qt < 6: a(f"s_add_u32 s{S_A}, s{S_A}, 4096")
            a(f"s_branch L_at_sp2_{T}")
            a.label(f"L_at_sp1_{T}")
        for qt in range(7):
            if not nost: a(f"buffer_store_dwordx4 {vr(pk(qt),4)}, v{V_XA}, s[{S_W}:{S_W+3}], s{S_A} offen offset:{1024*T} {stpol}".rstrip())
            if dupst:
                a(f"s_sub_u32 s{S_B}, s{S_A}, {WS_O - 30000000}")
                a(f"buffer_store_dwordx4 {vr(pk(qt),4)}, v{V_XA}, s[72:75], s{S_B} offen offset:{1024*T}")
            if qt < 6: a(f"s_add_u32 s{S_A}, s{S_A}, 4096")
        if stpol0 is not None: a.label(f"L_at_sp2_{T}")
        if defer:
            a(f"s_branch L_at_dfj{T}")
            a.label(f"L_at_dfr{T}")
            for qt in range(7):
                for r in range(4):
                    a(f"v_accvgpr_write_b32 a{A_Q+16*qt+4*T+r}, v{pk(qt)+r}")
            a.label(f"L_at_dfj{T}")
    a("s_nop 1")
    if wo8:
        a(f"s_cmp_lg_u32 s{S_WO}, 2")
        a("s_cbranch_scc1 L_at_nowo2")
        a(f"s_mov_b32 s{S_WO}, 4")
        a(f"v_accvgpr_read_b32 v{V_T1}, a249")
        a(f"v_lshlrev_b32 v{V_T2}, 4, v{V_LANE}")
        a(f"s_mul_i32 s{S_A}, s2, {40*1024}")
        a(f"s_mul_i32 s{S_B}, s{S_WAVE}, {10*1024}")
        a(f"s_add_u32 s{S_A}, s{S_A}, s{S_B}")
        a(f"s_add_u32 s{S_A}, s{S_A}, {WS_W+5120}")
        a("s_waitcnt vmcnt(49)")
        R = V_VF
        for t in range(5):
            for v in range(2):
                a(f"ds_read_b64_tr_b16 {vr(R+4*t+2*v,2)}, v{V_T1} offset:{v*640+t*32}")
        a("s_waitcnt lgkmcnt(0)")
        for f in range(5):
            if f == 4: a(f"s_add_u32 s{S_A}, s{S_A}, 4096")
            a(f"buffer_store_dwordx4 {vr(R+4*f,4)}, v{V_T2}, s[{S_W}:{S_W+3}], s{S_A} offen offset:{1024*(f&3)} {wpol}".rstrip())
        a("s_nop 1")
    elif wo4:
        a(f"s_mov_b32 s{S_AS}, 3")
        a(f"s_cmp_lg_u32 s{S_WO}, 2")
        a("s_cbranch_scc1 L_at_nowo2")
        a(f"s_mov_b32 s{S_WO}, 4")
        a(f"s_mov_b32 s{S_AS}, 0x303")
        if wo5:
            a(f"v_accvgpr_read_b32 v{V_T1}, a249")
            a(f"v_lshlrev_b32 v{V_T2}, 4, v{V_LANE}")
            a(f"s_mul_i32 s{S_A}, s2, {40*1024}")
            a(f"s_mul_i32 s{S_B}, s{S_WAVE}, {10*1024}")
            a(f"s_add_u32 s{S_A}, s{S_A}, s{S_B}")
            a(f"s_add_u32 s{S_A}, s{S_A}, {WS_W}")
            R = V_VF
            for t in range(5):
                for v in range(2):
                    a(f"ds_read_b64_tr_b16 {vr(R+4*t+2*v,2)}, v{V_T1} offset:{v*640+t*32}")
            for f in range(5):
                if f == 4: a(f"s_add_u32 s{S_A}, s{S_A}, 4096")
                a(f"buffer_store_dwordx4 {ar(A_LS+4*f,4)}, v{V_T2}, s[{S_W}:{S_W+3}], s{S_A} offen offset:{1024*(f&3)} {wpol}".rstrip())
            a(f"s_add_u32 s{S_A}, s{S_A}, 1024")
            a("s_waitcnt lgkmcnt(0)")
            for f in range(5):
                if f == 4: a(f"s_add_u32 s{S_A}, s{S_A}, 4096")
                a(f"buffer_store_dwordx4 {vr(R+4*f,4)}, v{V_T2}, s[{S_W}:{S_W+3}], s{S_A} offen offset:{1024*(f&3)} {wpol}".rstrip())
            a("s_nop 1")
        else:
            wo_store_a(0)
            wo_finish(1)
    elif wo2 and not wo3:
        a(f"s_cmp_lg_u32 s{S_WO}, 1")
        a("s_cbranch_scc1 L_at_nowo2a")
        a(f"s_mov_b32 s{S_WO}, 2")
        wo_finish(0)
        wo_issue(1)
        a("s_branch L_at_nowo2")
        a.label("L_at_nowo2a")
    if not wo4 and not wo8 and not woff:
        a(f"s_cmp_lg_u32 s{S_WO}, {3 if wo3 else 2}")
        a("s_cbranch_scc1 L_at_nowo2")
        a(f"s_mov_b32 s{S_WO}, {4 if wo3 else 3}")
        wo_finish(1)
    a.label("L_at_nowo2")
    if not wo4: a(f"s_mov_b32 s{S_AS}, 3")
    if defer:
        a("s_cmp_lg_u32 s99, 0")
        a(f"s_cselect_b32 s{S_AS}, 0, 3")
    st(4)
    a.lds_q = []
    a(f"s_cmp_ge_u32 s{S_T}, 2")
    a("s_cbranch_scc1 L_at_fin")
    a(f"s_cmp_eq_u32 s{S_TY}, 0")
    a("s_cbranch_scc1 L_at_round")
    a(f"s_waitcnt vmcnt({56 if dupst else (33 if wo3 else 38 if wo2 else 28)})")
    a("s_branch L_at_pre")
    a.label("L_at_fin")
    if wb == 1:
        a(f"s_cmp_lg_u32 s{S_WAVE}, 0")
        a("s_cbranch_scc1 L_at_nowb")
        a("buffer_wbl2 sc1")
        a.label("L_at_nowb")
    a("s_waitcnt lgkmcnt(0)")
    a("s_barrier")
    flagcheck()
    if pst:
        a("s_memrealtime s[78:79]")
        a("s_memtime s[80:81]")
        a("s_waitcnt lgkmcnt(0)")
        a("s_mov_b32 m0, s77"); a("s_nop 0"); a("v_writelane_b32 v0, s78, m0")
        a("s_add_u32 m0, s77, 30"); a("s_nop 0"); a("v_writelane_b32 v0, s80, m0")
        a("s_getreg_b32 s62, hwreg(HW_REG_XCC_ID)")
        a("v_writelane_b32 v0, s62, 63")
        a(f"v_writelane_b32 v0, s{S_TY}, 62")
        a(f"s_cmp_lg_u32 s{S_WAVE}, 0")
        a("s_cbranch_scc1 L_at_end")
        a("s_lshl_b32 s62, s2, 8"); a("s_add_u32 s62, s62, 50000000")
        a(f"v_lshlrev_b32 v2, 2, v{V_LANE}")
        a(f"buffer_store_dword v0, v2, s[{S_W}:{S_W+3}], s62 offen")
    if stamp:
        a("s_memtime s[56:57]")
        a("s_memrealtime s[58:59]")
        a("s_waitcnt lgkmcnt(0)")
        if allst:
            a("v_mov_b32 v2, s66"); a("v_mov_b32 v3, s58")
            a("s_sub_u32 s62, s56, s64"); a("v_mov_b32 v4, s62")
            a("s_getreg_b32 s62, hwreg(HW_REG_XCC_ID)"); a("v_mov_b32 v5, s62")
            a("s_lshl_b32 s62, s2, 4"); a("s_add_u32 s62, s62, 50000000"); a("v_mov_b32 v6, s62")
            a(f"buffer_store_dwordx4 v[2:5], v6, s[{S_W}:{S_W+3}], 0 offen")
        a(f"s_cmp_lg_u32 s2, {stwg}")
        a("s_cbranch_scc1 L_at_end")
        a("s_sub_u32 s56, s56, s64")
        a("s_sub_u32 s58, s58, s66")
        a("s_mov_b32 s84, s46")
        a("s_mov_b32 s85, s47")
        a("s_mov_b32 s86, 256")
        a("s_mov_b32 s87, 0x20000")
        a("v_mov_b32 v2, s56")
        a("v_mov_b32 v3, s58")
        a(f"s_lshl_b32 s62, s{S_WAVE}, 3")
        a("v_mov_b32 v4, s62")
        a("buffer_store_dwordx2 v[2:3], v4, s[84:87], 0 offen")
        if strace:
            pr = [36, 38, 40, 42, 56, 58, 60, 62]
            for i in range(7):
                a(f"s_sub_u32 s78, s{pr[i+1]}, s{pr[i]}")
                a("v_mov_b32 v2, s78")
                a(f"v_mov_b32 v4, {160+4*i}")
                a("buffer_store_dword v2, v4, s[84:87], 0 offen")
        a("s_sub_u32 s62, s72, s64")
        a("v_mov_b32 v2, s62")
        a(f"v_mov_b32 v4, {DBO+4*5}")
        a("buffer_store_dword v2, v4, s[84:87], 0 offen")
        for k in range(1, 5):
            a(f"s_sub_u32 s62, s{72+2*k}, s{70+2*k}")
            a("v_mov_b32 v2, s62")
            a(f"v_mov_b32 v4, {DBO+4*k}")
            a("buffer_store_dword v2, v4, s[84:87], 0 offen")
    a("s_branch L_at_end")
    for ln in state.get("ool", []): a.lines.append(ln)

    a.label("L_at_fallback")
    a(f"s_sub_u32 s{S_T0}, s{S_T}, 1")
    a(f"s_mov_b32 s{S_NOFB}, s{S_T0}")
    a(f"s_mov_b32 s{S_MP}, 1")
    a(f"s_mov_b32 s{S_TY}, 0")
    a(f"s_mov_b32 s{S_PRE}, 0")
    a(f"s_mov_b32 s{S_AS}, 0")
    if defer: a("s_mov_b32 s98, 0x40000000")
    for i in range(7): a(f"v_mov_b32 v{V_L+2*i}, 0xff800000")
    a("s_waitcnt vmcnt(0) lgkmcnt(0)")
    a("s_barrier")
    a("s_branch L_at_start")
    a.label("L_at_maxpass")
    a(f"s_mov_b32 s{S_MP}, 0")
    a("s_waitcnt lgkmcnt(0)")
    a(f"v_and_b32 v{V_T0}, 15, v{V_LANE}")
    a(f"v_lshlrev_b32 v{V_T0}, 8, v{V_T0}")
    a(f"v_bfe_u32 v{V_T1}, v{V_LANE}, 4, 1")
    a(f"v_lshl_add_u32 v{V_T0}, v{V_T1}, 5, v{V_T0}")
    a(f"v_bfe_u32 v{V_T1}, v{V_LANE}, 5, 1")
    a(f"v_lshl_add_u32 v{V_T2}, v{V_T1}, 4, v{V_T0}")
    a(f"v_add_u32 v{V_T3}, 4096, v{V_T2}")
    a(f"s_lshl_b32 s{S_B}, s{S_T}, 19")
    if rflip: a(f"s_xor_b32 s{S_B}, s{S_B}, s101")
    a(f"s_mov_b32 s{S_CNT}, 0")
    a.label("L_at_mp")
    for f in range(8):
        a(f"buffer_load_dwordx4 {vr(V_VF+4*f,4)}, v{V_T2 + (f>>2)}, s[{S_K}:{S_K+3}], s{S_B} offen offset:{64*(f&3)}")
    a("s_waitcnt vmcnt(0)")
    for i in range(7):
        for f in range(8):
            kt, s = f >> 2, f & 3
            D = vr(V_S + 4 * kt, 4)
            a(f"{MFMA} {D}, {vr(V_VF+4*f,4)}, {ar(A_Q+16*i+4*s,4)}, {'0' if s == 0 else D}")
        a("s_nop 9")
        for r in range(0, 8, 2):
            a(f"v_max3_f32 v{V_L+2*i}, v{V_S+r}, v{V_S+r+1}, v{V_L+2*i}")
        a("s_nop 3")
    a(f"s_add_u32 s{S_B}, s{S_B}, 8192")
    a(f"s_add_u32 s{S_CNT}, s{S_CNT}, 1")
    a(f"s_cmp_lt_u32 s{S_CNT}, 32")
    a("s_cbranch_scc1 L_at_mp")
    a("s_branch L_at_pre")
    a.label("L_at_end")
    a("s_endpgm")
    return a.text()

if __name__ == "__main__":
    import sys
    name = "fused_kernel"
    opts = dict(x.split("=") for x in sys.argv[2:])
    opts = {k: bool(int(v)) for k, v in opts.items()}
    body = gen_fused(name, **opts)
    out = f"; @launch kernel={name} grid=(256,1,1) block=(256,1,1) lds={LDS_BYTES}\n"
    out += '.amdgcn_target "amdgcn-amd-amdhsa--gfx950"\n.text\n' + kernel_header(name) + body
    out += '.section .rodata,"a"\n.p2align 6\n' + kernel_desc(name, 512, accum=256)
    open(sys.argv[1], "w").write(out)
```

```python
from gen_common import *
import sys
import math

NQB = 3584 * 4096 * 2
WS_O = 2 * NQB
WS_W = 4 * NQB
WS_BYTES = 4 * NQB + 2 * 4096 * 640 * 2
PAIRB = 224 * 128 * 2

TILE = 8448
RING = 4
AREA = RING * TILE
LDS_BYTES = 163840
LDS_FLAG = 2 * AREA + 1024
LDS_FLAG = 2 * AREA + 8416

def kpad(i): return 1024 * i + 16 * ((i & 1) + 4 * (i >> 1))

V_LANE, V_T0, V_T1, V_T2, V_T3, V_LIN, V_DMA = 1, 2, 3, 4, 5, 6, 7
V_KA, V_VA, V_XA, V_WA = 8, 9, 10, 11
V_L = 12
V_QD, V_BA = 26, 27
V_CI = 28
V_KF = 56
V_S = 88
V_P = 104
V_VF = 112
V_OK = 144
A_Q = 0
A_OS = 112
A_LS = 224
A_ONE = 252
S_LD, S_K, S_W, S_QP = 4, 8, 12, 16
S_WAVE, S_T, S_CNT, S_NOFB, S_OOFF, S_MP, S_T0 = 20, 21, 22, 23, 24, 25, 27
S_A, S_B, S_C, S_D = 28, 29, 30, 31
S_THR, S_LDB, S_DJ, S_PJ, S_QH, S_DOFF = 32, 33, 34, 35, 48, 49
S_QS, S_QSTEP, S_QRND, S_MSTEP, S_CS = 50, 51, 52, 53, 54
S_TAB = 88
S_AS, S_TY, S_PRE, S_WO = 68, 69, 70, 71
MFMA = "v_mfma_f32_16x16x32_bf16"
def ar(a, n=1):
    return f"a{a}" if n == 1 else f"a[{a}:{a+n-1}]"

def gen_fused(name, nt=True, stamp=False, nofb=False, noload=False, nost=False, nox=False, now=False, st0=False, touch=False, kvt=False, kvtnt=False, nowo=False, tnt=False, qnt=False, wont=False, trace=False, DBO=64, ones=False, strace=False, xmem=0, xmfma=0, delay=0, tymask=1, stwg=4, roll=False, bulk0=True, wsbase=0, rot=True, rsh=1, dupst=False, allst=False, align=0, roles=False, fakex=False, early=False, qdelay=0, adelay=0, kvpol=None, xf=False, pst=False, kvl2=False, xq=False, pstl=False, kv0=False, qpnl=False, cpf=0, cpflate=False, qps=False, tymode=0, tyinv=False, xswap=False, qnrd=False, qnbar=False, qbar=7, qd0=9, qdstep=6, kvrot=0, kvgs=11, kvt2=0, kvts=64, tper=1, tpol='', tlbw=0, rflip=0, stpol='', defer=False, dpol='', dnp=3, wpol='', qpol='', anbar=False, anrd=False, anva='', ansu=False, cpf2=0, cpfo=0, pro1=0, rotn=4, spread='', dsl='1234', lp7=False, inv=False, wo2=False, wo3=0, wo4=0, wo5=0, wtl=0, wo6='', wo8=0, stpol0=None, wb=0, woff=False, wtch=0, eep=0):
    a = Asm()
    if spread: early = True
    if wo6: wo5 = 2
    if wo5: wo4 = 2
    if wo3 or wo4: wo2 = True
    NT = " nt" if nt else ""
    if kvpol: NT = " " + kvpol
    if pst: a("s_memrealtime s[74:75]")
    a("s_cmp_ge_u32 s2, 256")
    a("s_cbranch_scc1 L_at_end")
    if cpf:
        a("s_getpc_b64 s[72:73]")
        a.label("L_pc0")
        a(f"s_mov_b32 s74, L_code_end - L_pc0")
        a("s_mov_b32 s75, 0x20000")
        a("v_lshlrev_b32 v105, 6, v0")
        if not cpflate:
          for k in range(cpf // 16):
            a(f"s_mov_b32 s76, {k*16384}")
            a("buffer_load_dword v104, v105, s[72:75], s76 offen")
    a("s_and_b32 s3, s2, 7")
    a("s_lshl_b32 s3, s3, 5")
    a("s_lshr_b32 s36, s2, 6")
    a("s_lshl_b32 s36, s36, 3")
    a("s_or_b32 s3, s3, s36")
    a("s_bfe_u32 s36, s2, 0x30003")
    a("s_or_b32 s2, s3, s36")
    if xswap: a("s_xor_b32 s2, s2, 32"); a("s_nop 0")
    a("s_load_dwordx8 s[36:43], s[0:1], 0")
    a("s_load_dwordx8 s[56:63], s[0:1], 40")
    a("s_load_dwordx2 s[44:45], s[0:1], 96")
    a("s_load_dwordx2 s[84:85], s[0:1], 32")
    a("s_load_dwordx2 s[86:87], s[0:1], 72")
    if cpf2:
        a("s_getpc_b64 s[72:73]")
        a.label("L_pc0")
        a("v_lshlrev_b32 v105, 7, v0")
        for k in range(cpf2):
            a(f"v_add_u32 v104, {cpfo + k*32768}, v105")
            a("v_min_u32 v104, L_code_end - L_pc0 - 4, v104")
            a("v_mov_b32 v107, s73")
            a("v_add_co_u32 v106, vcc, s72, v104")
            a("v_addc_co_u32 v107, vcc, 0, v107, vcc")
            a(f"global_load_dword v108, v[106:107], off")
    a(f"v_and_b32 v{V_LANE}, 63, v0")
    a(f"v_lshrrev_b32 v{V_T0}, 6, v0")
    a("s_nop 0")
    a(f"v_readfirstlane_b32 s{S_WAVE}, v{V_T0}")
    a("s_waitcnt lgkmcnt(0)")
    a(f"s_and_b32 s{S_QH}, s{S_WAVE}, 1")
    a(f"s_lshr_b32 s{S_PJ}, s{S_WAVE}, 1")
    a("s_cmp_ge_u32 s2, 128")
    for k in range(8):
        a(f"s_cselect_b32 s{36+k}, s{56+k}, s{36+k}")
    a("s_cselect_b32 s84, s86, s84")
    a("s_cselect_b32 s85, s87, s85")
    a(f"s_mov_b32 s86, {4096*640*2}")
    a("s_mov_b32 s87, 0x20000")
    a(f"s_and_b32 s{S_A}, s2, 127")
    a(f"s_lshl_b32 s{S_B}, s{S_A}, 20")
    a(f"s_lshl_b32 s{S_C}, s{S_PJ}, 18")
    a(f"s_add_u32 s{S_B}, s{S_B}, s{S_C}")
    a(f"s_add_u32 s38, s38, s{S_B}")
    a("s_addc_u32 s39, s39, 0")
    a(f"s_add_u32 s40, s40, s{S_B}")
    a("s_addc_u32 s41, s41, 0")
    a(f"s_sub_u32 s{S_C}, 0x100000, s{S_C}")
    a(f"s_mov_b32 s{S_K}, s38")
    a(f"s_mov_b32 s{S_K+1}, s39")
    a(f"s_mov_b32 s{S_K+2}, s{S_C}")
    a(f"s_mov_b32 s{S_K+3}, 0x20000")
    a(f"s_cmp_eq_u32 s{S_QH}, 0")
    a(f"s_cselect_b32 s{S_LD}, s38, s40")
    a(f"s_cselect_b32 s{S_LD+1}, s39, s41")
    a(f"s_mov_b32 s{S_LD+2}, {'0' if kv0 else 's'+str(S_C)}")
    a(f"s_mov_b32 s{S_LD+3}, 0x20000")
    if xf:
        a(f"s_add_u32 s36, s44, {4*NQB + 2*4096*640*2}")
        a("s_addc_u32 s37, s45, 0")
        a(f"s_cmp_eq_u32 s{S_QH}, 0")
    a(f"s_cselect_b32 s{S_QP}, s42, s36")
    a(f"s_cselect_b32 s{S_QP+1}, s43, s37")
    a(f"s_mov_b32 s{S_A}, {0 if now else 640*4096*2}")
    a(f"s_mov_b32 s{S_B}, {0 if nox else (2*3584*640*2 if xf else 3584*640*2)}")
    a(f"s_cselect_b32 s{S_QP+2}, s{S_A}, s{S_B}")
    a(f"s_mov_b32 s{S_QP+3}, 0x20000")
    a(f"s_mov_b32 s{S_A}, {32*8192}")
    a(f"s_mov_b32 s{S_B}, {7168 if (fakex or xf) else 64}")
    a(f"s_cselect_b32 s{S_QSTEP}, s{S_A}, s{S_B}")
    a(f"s_cselect_b32 s{S_QRND}, 512, 0")
    a(f"s_mov_b32 s{S_A}, 1056")
    a(f"s_mov_b32 s{S_B}, 1024")
    a(f"s_cselect_b32 s{S_MSTEP}, s{S_A}, s{S_B}")
    for i in range(8):
        a(f"s_mov_b32 s{S_A}, {((i&3)+8*(i>>2))*8192}")
        a(f"s_mov_b32 s{S_B}, {(1024*i if (fakex or xf) else 20480*i) if i < 7 else 0x40000000}")
        a(f"s_cselect_b32 s{S_TAB+i}, s{S_A}, s{S_B}")
    a(f"s_and_b32 s{S_A}, s2, 7")
    a(f"s_lshl_b32 s{S_A}, s{S_A}, 2")
    a(f"s_add_u32 s{S_A}, s{S_A}, s{S_PJ}")
    a(f"s_lshl_b32 s{S_A}, s{S_A}, 8")
    a(f"s_bfe_u32 s{S_B}, s2, {0x50003 if xf else 0x40003}")
    a(f"s_lshl_b32 s{S_B}, s{S_B}, 1")
    a(f"s_add_u32 s{S_B}, s{S_B}, s{S_PJ}")
    a(f"s_mul_i32 s{S_B}, s{S_B}, {112*1280}")
    a(f"s_cmp_eq_u32 s{S_QH}, 0")
    a(f"s_cselect_b32 s55, s{S_A}, s{S_B}")
    a(f"s_add_u32 s{S_W}, s44, {wsbase}")
    a(f"s_addc_u32 s{S_W+1}, s45, 0")
    a(f"s_mov_b32 s{S_W+2}, {WS_BYTES}")
    a(f"s_mov_b32 s{S_W+3}, 0x20000")
    a(f"s_lshl_b32 s{S_A}, s2, 2")
    a(f"s_add_u32 s{S_A}, s{S_A}, s{S_PJ}")
    a(f"s_mul_i32 s{S_OOFF}, s{S_A}, {PAIRB}")
    a(f"s_mul_i32 s{S_A}, s{S_QH}, {7*4096}")
    a(f"s_add_u32 s{S_OOFF}, s{S_OOFF}, s{S_A}")
    a(f"s_add_u32 s{S_OOFF}, s{S_OOFF}, {WS_O}")
    a(f"s_mov_b32 s{S_NOFB}, -1")
    a("s_mov_b32 s60, s42"); a("s_mov_b32 s61, s43"); a(f"s_mov_b32 s62, {640*4096*2}"); a("s_mov_b32 s63, 0x20000")
    a(f"s_mov_b32 s{S_T0}, 0")
    a(f"s_mov_b32 s{S_MP}, 0")
    a(f"s_mov_b32 s{S_AS}, 0")
    if defer: a("s_mov_b32 s98, 0x40000000")
    a(f"s_mov_b32 s{S_WO}, {(4 if (wo3 or wo4 or wo8) else 3) if nowo else 0}")
    a(f"s_lshr_b32 s26, s2, 3")
    a(f"s_lshr_b32 s{S_A}, s2, {rsh}")
    a(f"s_add_u32 s26, s26, s{S_A}")
    if rotn in (1, 2, 4):
        a(f"s_and_b32 s26, s26, {rotn-1}")
        a(f"s_mul_i32 s26, s26, {20//rotn}")
    elif rotn == 22:
        a("s_and_b32 s26, s26, 1"); a("s_mul_i32 s26, s26, 4")
    elif rotn == 23:
        a("s_and_b32 s26, s26, 1"); a("s_mul_i32 s26, s26, 6")
    a(f"s_mul_i32 s83, s{S_QSTEP}, 20")
    a(f"s_and_b32 s{S_TY}, s2, {tymask}")
    a(f"s_min_u32 s{S_TY}, s{S_TY}, 1")
    if tyinv: a(f"s_xor_b32 s{S_TY}, s{S_TY}, 1"); a("s_nop 0")
    if tymode == 1:
        a("s_bfe_u32 s3, s2, 0x10005"); a("s_xor_b32 s3, s3, 1"); a(f"s_and_b32 s{S_TY}, s2, s3"); a("s_nop 0")
    if tymode == 2:
        a("s_bfe_u32 s3, s2, 0x10005"); a("s_xor_b32 s3, s3, 1"); a(f"s_and_b32 s{S_TY}, s2, 3"); a(f"s_min_u32 s{S_TY}, s{S_TY}, 1"); a(f"s_and_b32 s{S_TY}, s{S_TY}, s3")
    if tymode == 3:
        a("s_bfe_u32 s3, s2, 0x10005"); a("s_xor_b32 s3, s3, 1"); a(f"s_and_b32 s{S_TY}, s2, 3"); a(f"s_cmp_eq_u32 s{S_TY}, 0"); a(f"s_cselect_b32 s{S_TY}, 1, 0"); a(f"s_or_b32 s{S_TY}, s{S_TY}, s3")
    if tymode == 4:
        a(f"s_and_b32 s{S_TY}, s2, 3"); a(f"s_cmp_eq_u32 s{S_TY}, 0"); a(f"s_cselect_b32 s{S_TY}, 1, 0"); a("s_nop 0")
    if tymode == 5:
        a(f"s_and_b32 s{S_TY}, s2, 7"); a(f"s_lshr_b32 s3, 0x49, s{S_TY}"); a(f"s_and_b32 s{S_TY}, s3, 1"); a("s_nop 0")
    if tymode == 6:
        a(f"s_and_b32 s{S_TY}, s2, 7"); a(f"s_cmp_eq_u32 s{S_TY}, 0"); a(f"s_cselect_b32 s{S_TY}, 1, 0"); a("s_nop 0")
    if tymode == 7:
        a(f"s_and_b32 s{S_TY}, s2, 3"); a(f"s_min_u32 s{S_TY}, s{S_TY}, 1"); a("s_nop 0")
    a(f"s_mov_b32 s{S_PRE}, s{S_TY}")
    a(f"s_mov_b32 s{S_THR}, 0x4e800000")
    import struct
    cs = struct.unpack("<I", struct.pack("<f", (128 ** -0.5) * 1.4426950408889634))[0]
    a(f"s_mov_b32 s{S_CS}, {cs:#x}")
    a(f"s_lshl_b32 s{S_A}, s{S_QH}, 1")
    a(f"s_add_u32 s{S_A}, s{S_A}, s{S_PJ}")
    a(f"s_mul_i32 s{S_LDB}, s{S_A}, {AREA}")
    if stamp:
        a("s_memtime s[64:65]")
        a("s_memrealtime s[66:67]")
        a("s_load_dwordx2 s[46:47], s[0:1], 88")
        a("s_waitcnt lgkmcnt(0)")
    G, N = V_T0, V_T1
    a(f"v_lshlrev_b32 v{V_LIN}, 4, v{V_LANE}")
    a(f"v_lshrrev_b32 v{G}, 4, v{V_LANE}")
    a(f"v_and_b32 v{N}, 15, v{V_LANE}")
    a(f"v_lshlrev_b32 v{V_T2}, 4, v{N}")
    a(f"v_lshl_add_u32 v{V_DMA}, v{G}, {kvgs}, v{V_T2}")
    a(f"v_bfe_u32 v{V_T3}, v{V_LANE}, 4, 1")
    a(f"v_lshl_add_u32 v{V_QD}, v{V_T3}, 15, v{V_T2}")
    a(f"v_bfe_u32 v{V_T3}, v{V_LANE}, 5, 1")
    a(f"v_lshl_add_u32 v{V_QD}, v{V_T3}, 17, v{V_QD}")
    a(f"v_mul_u32_u24 v{V_BA}, 1280, v{N}")
    a(f"v_lshl_add_u32 v{V_BA}, v{G}, 4, v{V_BA}")
    if fakex or xf: a(f"v_mov_b32 v{V_BA}, v{V_LIN}")
    if xq:
        a(f"v_lshrrev_b32 v{V_T3}, 4, v{V_LANE}")
        a(f"v_and_b32 v{V_BA}, 1, v{V_T3}")
        a(f"v_lshlrev_b32 v{V_BA}, 1, v{V_BA}")
        a(f"v_lshrrev_b32 v{V_T3}, 1, v{V_T3}")
        a(f"v_mul_u32_u24 v{V_T3}, 3, v{V_T3}")
        a(f"v_xor_b32 v{V_BA}, v{V_BA}, v{V_T3}")
        a(f"v_and_b32 v{V_T3}, 3, v{V_LANE}")
        a(f"v_xor_b32 v{V_BA}, v{V_BA}, v{V_T3}")
        a(f"v_lshlrev_b32 v{V_BA}, 4, v{V_BA}")
        a(f"v_lshrrev_b32 v{V_T3}, 2, v{V_LANE}")
        a(f"v_mul_u32_u24 v{V_T3}, 1280, v{V_T3}")
        a(f"v_add_u32 v{V_BA}, v{V_BA}, v{V_T3}")
    a(f"s_cmp_eq_u32 s{S_QH}, 0")
    a("s_cselect_b64 vcc, -1, 0")
    a("s_nop 1")
    a(f"v_cndmask_b32 v{V_QD}, v{V_BA}, v{V_QD}, vcc")
    a(f"s_add_u32 s{S_A}, s{S_QH}, 2")
    a(f"s_mul_i32 s{S_A}, s{S_A}, {AREA}")
    if xq:
        a(f"v_bfe_u32 v{V_T3}, v{V_LANE}, 2, 2")
        a(f"v_and_b32 v{V_BA}, 1, v{V_T3}")
        a(f"v_lshlrev_b32 v{V_BA}, 1, v{V_BA}")
        a(f"v_lshrrev_b32 v{V_T3}, 1, v{V_T3}")
        a(f"v_mul_u32_u24 v{V_T3}, 3, v{V_T3}")
        a(f"v_xor_b32 v{V_BA}, v{V_BA}, v{V_T3}")
        a(f"v_xor_b32 v{V_BA}, v{V_BA}, v{G}")
        a(f"v_lshlrev_b32 v{V_BA}, 4, v{V_BA}")
        a(f"v_lshl_add_u32 v{V_BA}, v{N}, 6, v{V_BA}")
        a(f"v_add_u32 v{V_BA}, s{S_A}, v{V_BA}")
    else:
        a(f"v_add_u32 v{V_BA}, s{S_A}, v{V_LIN}")
    a(f"v_bfe_u32 v{V_T3}, v{V_LANE}, 4, 1")
    a(f"v_lshl_add_u32 v{V_T2}, v{V_T3}, 9, v{V_T2}")
    a(f"v_bfe_u32 v{V_T3}, v{V_LANE}, 5, 1")
    a(f"v_lshl_add_u32 v{V_XA}, v{V_T3}, 8, v{V_T2}")
    a(f"v_and_b32 v{V_T2}, 7, v{N}")
    a(f"v_lshlrev_b32 v{V_KA}, 10, v{V_T2}")
    a(f"v_and_b32 v{V_T3}, 1, v{N}")
    a(f"v_lshl_add_u32 v{V_KA}, v{V_T3}, 4, v{V_KA}")
    a(f"v_bfe_u32 v{V_T3}, v{N}, 1, 2")
    a(f"v_lshl_add_u32 v{V_KA}, v{V_T3}, 6, v{V_KA}")
    a(f"v_lshrrev_b32 v{V_T3}, 3, v{N}")
    a(f"v_lshl_add_u32 v{V_KA}, v{V_T3}, 8, v{V_KA}")
    a(f"v_bfe_u32 v{V_T3}, v{V_LANE}, 4, 1")
    a(f"v_lshl_add_u32 v{V_KA}, v{V_T3}, 5, v{V_KA}")
    a(f"v_bfe_u32 v{V_T3}, v{V_LANE}, 5, 1")
    a(f"v_lshl_add_u32 v{V_KA}, v{V_T3}, 4, v{V_KA}")
    a(f"s_mul_i32 s{S_A}, s{S_PJ}, {AREA}")
    a(f"v_add_u32 v{V_KA}, s{S_A}, v{V_KA}")
    a(f"v_bfe_u32 v{N}, v{V_LANE}, 2, 2")
    a(f"v_bfe_u32 v{V_T3}, v{V_LANE}, 4, 1")
    a(f"v_lshl_add_u32 v{V_T2}, v{V_T3}, 2, v{N}")
    a(f"v_mul_u32_u24 v{V_T2}, 1056, v{V_T2}")
    a(f"v_bfe_u32 v{V_T3}, v{V_LANE}, 5, 1")
    a(f"v_lshl_add_u32 v{V_T2}, v{V_T3}, 9, v{V_T2}")
    a(f"v_and_b32 v{V_T3}, 3, v{V_LANE}")
    a(f"v_lshl_add_u32 v{V_T2}, v{V_T3}, 3, v{V_T2}")
    a(f"v_add_u32 v{V_WA}, s{S_A}, v{V_T2}")
    a(f"v_lshl_add_u32 v{N}, v{G}, 2, v{N}")
    a(f"v_and_b32 v{V_T2}, 7, v{N}")
    a(f"v_mul_u32_u24 v{V_T2}, 1056, v{V_T2}")
    a(f"v_lshrrev_b32 v{V_T3}, 3, v{N}")
    a(f"v_lshl_add_u32 v{V_T2}, v{V_T3}, 8, v{V_T2}")
    a(f"v_and_b32 v{V_T3}, 3, v{V_LANE}")
    a(f"v_lshl_add_u32 v{V_T2}, v{V_T3}, 3, v{V_T2}")
    a(f"s_add_u32 s{S_A}, s{S_A}, {2*AREA}")
    a(f"v_add_u32 v{V_VA}, s{S_A}, v{V_T2}")
    for i in range(7):
        a(f"v_mov_b32 v{V_L+2*i}, 0xff800000")
    a(f"v_mov_b32 v{V_T0}, 0x3f803f80")
    for i in range(4): a(f"v_accvgpr_write_b32 a{A_ONE+i}, v{V_T0}")
    a(f"v_and_b32 v{V_T0}, 3, v{V_LANE}")
    a(f"v_lshlrev_b32 v{V_T0}, 2, v{V_T0}")
    a(f"v_add_u32 v{V_T0}, {LDS_FLAG}, v{V_T0}")
    a(f"v_mov_b32 v{V_T1}, 0")
    a(f"ds_write_b32 v{V_T0}, v{V_T1}")
    a(f"s_cmp_eq_u32 s{S_QH}, 0")
    a(f"s_mov_b32 s{S_A}, {kpad(1)-kpad(0)-256}")
    a(f"s_mov_b32 s{S_B}, 800")
    a(f"s_cselect_b32 s96, s{S_A}, s{S_B}")
    a(f"s_mov_b32 s{S_A}, {kpad(2)-kpad(1)-256}")
    a(f"s_cselect_b32 s97, s{S_A}, s{S_B}")

    a(f"v_lshrrev_b32 v{V_T0}, 1, v{V_LANE}")
    a(f"v_lshlrev_b32 v{V_T0}, 13, v{V_T0}")
    a(f"v_and_b32 v{V_T1}, 1, v{V_LANE}")
    a(f"v_lshl_add_u32 v{V_T0}, v{V_T1}, 7, v{V_T0}")
    a(f"v_lshlrev_b32 v{V_T1}, 7, v{V_LANE}")
    a(f"s_bfe_u32 s{S_A}, s2, 0x20003")
    a(f"s_lshl_b32 s{S_A}, s{S_A}, 18")
    a(f"s_and_b32 s{S_B}, s2, 7")
    a(f"s_mul_i32 s{S_B}, s{S_B}, 17920")
    a(f"s_cmp_eq_u32 s{S_QH}, 0")
    a("s_cselect_b64 vcc, -1, 0")
    a(f"s_cselect_b32 s100, s{S_A}, s{S_B}")
    a(f"s_add_u32 s100, s100, s55")
    a(f"s_cmp_eq_u32 s{S_QH}, 0")
    a(f"s_mov_b32 s{S_A}, {4*32*8192}")
    a(f"s_mov_b32 s{S_B}, 8192")
    a(f"s_cselect_b32 s99, s{S_A}, s{S_B}")
    a(f"v_cndmask_b32 v{V_LIN}, v{V_T1}, v{V_T0}, vcc")
    def tf0(u): return (u & ((1 << kvgs) - 1)) | ((u >> kvgs) << (kvgs + 2))
    if kvt2:
        lb = kvgs - int(math.log2(kvts))
        if lb >= 6:
            a(f"v_mul_u32_u24 v{V_LIN}, {kvts}, v{V_LANE}")
        else:
            a(f"v_and_b32 v{V_T0}, {(1 << lb) - 1}, v{V_LANE}")
            a(f"v_mul_u32_u24 v{V_T0}, {kvts}, v{V_T0}")
            a(f"v_lshrrev_b32 v{V_T1}, {lb}, v{V_LANE}")
            a(f"v_lshl_add_u32 v{V_LIN}, v{V_T1}, {kvgs + 2}, v{V_T0}")
    def tch(s_): return bool(kvt2) and s_ < 16 and s_ % tper == 0
    def tvn(s_): return sum(1 for t in range(max(0, s_ - 3), s_) if tch(t))
    def tinc(k): return tf0((k + 1) * 64 * kvts) - tf0(k * 64 * kvts)
    if kvrot == 0 and kvgs != 11: a("s_mov_b32 s100, 0")
    if kvrot == 1:
        a("s_and_b32 s100, s2, 31")
    if kvrot == 2:
        a("s_mul_i32 s100, s2, 11"); a(f"s_lshr_b32 s{S_A}, s2, 5"); a(f"s_mul_i32 s{S_A}, s{S_A}, 7"); a(f"s_add_u32 s100, s100, s{S_A}")
        a(f"s_lshl_b32 s{S_A}, s{S_PJ}, 4"); a(f"s_add_u32 s100, s100, s{S_A}"); a("s_and_b32 s100, s100, 31")
    if kvrot == 3:
        a("s_lshr_b32 s100, s2, 5"); a("s_lshl_b32 s100, s100, 2")
    if rflip:
        if rflip == 1: a(f"s_bfe_u32 s{S_A}, s2, 0x10005")
        if rflip == 2: a(f"s_bfe_u32 s{S_A}, s2, 0x10006")
        if rflip == 3: a(f"s_bfe_u32 s{S_A}, s2, 0x10007")
        if rflip == 4: a(f"s_bfe_u32 s{S_A}, s2, 0x10003")
        a(f"s_lshl_b32 s101, s{S_A}, 19")
        a(f"s_mul_i32 s{S_B}, s{S_A}, s{S_QRND}")
        a(f"s_add_u32 s55, s55, s{S_B}")
        a(f"s_sub_u32 s{S_B}, 0, s{S_QRND}")
        a(f"s_cmp_lg_u32 s{S_A}, 0")
        a(f"s_cselect_b32 s{S_QRND}, s{S_B}, s{S_QRND}")
        a(f"s_mov_b32 s99, {2*PAIRB}")
        a(f"s_cselect_b32 s99, {-2*PAIRB & 0xffffffff:#x}, s99")
        a(f"s_mul_i32 s{S_B}, s{S_A}, {2*PAIRB}")
        a(f"s_add_u32 s{S_OOFF}, s{S_OOFF}, s{S_B}")
    tstate = {"t": 0}
    def touch_one():
        if not touch: return
        a(f"buffer_load_dword v0, v{V_LIN}, s[{S_QP}:{S_QP+3}], s98 offen{' nt' if tnt else ''}")
        a(f"s_add_u32 s98, s98, s99")
        tstate["t"] += 1
    if xmem or dupst:
        a("s_add_u32 s72, s44, 0x8000000"); a("s_addc_u32 s73, s45, 0"); a("s_mov_b32 s74, 0x18000000"); a("s_mov_b32 s75, 0x20000")
        a("s_lshl_b32 s76, s2, 2"); a(f"s_add_u32 s76, s76, s{S_WAVE}"); a("s_mul_i32 s76, s76, 0x60000")
    dstate = {"i": 0, "kind": None}
    state = {"n": 0}
    def dma_setup(slot, kind):
        if kind == "KV":
            if kvgs != 11:
                ln_ = kvgs - 11
                a(f"s_add_u32 s{S_B}, s{S_DJ}, s100")
                a(f"s_bfe_u32 s{S_A}, s{S_B}, {((5 - ln_) << 16) | ln_:#x}")
                a(f"s_lshl_b32 s{S_A}, s{S_A}, {kvgs + 2}")
                a(f"s_and_b32 s{S_B}, s{S_B}, {(1 << ln_) - 1}")
                a(f"s_lshl_b32 s{S_B}, s{S_B}, 11")
                a(f"s_add_u32 s{S_B}, s{S_A}, s{S_B}")
                a(f"s_lshr_b32 s{S_A}, s{S_DJ}, 5")
                a(f"s_lshl_b32 s{S_A}, s{S_A}, 19")
                if rflip: a(f"s_xor_b32 s{S_A}, s{S_A}, s101")
                a(f"s_add_u32 s{S_DOFF}, s{S_A}, s{S_B}")
            elif kvrot:
                a(f"s_lshr_b32 s{S_A}, s{S_DJ}, 5")
                a(f"s_lshl_b32 s{S_A}, s{S_A}, 19")
                if rflip: a(f"s_xor_b32 s{S_A}, s{S_A}, s101")
                a(f"s_add_u32 s{S_B}, s{S_DJ}, s100")
                a(f"s_and_b32 s{S_B}, s{S_B}, 31")
                a(f"s_lshl_b32 s{S_B}, s{S_B}, 13")
                a(f"s_add_u32 s{S_DOFF}, s{S_A}, s{S_B}")
            else:
                a(f"s_lshr_b32 s{S_A}, s{S_DJ}, 5")
                a(f"s_lshl_b32 s{S_A}, s{S_A}, 18")
                a(f"s_lshl_b32 s{S_B}, s{S_DJ}, 13")
                a(f"s_add_u32 s{S_DOFF}, s{S_A}, s{S_B}")
            if kvl2: a(f"s_and_b32 s{S_DOFF}, s{S_DOFF}, {0x7fff if kvl2 is True else kvl2 - 1}")
            a(f"s_add_u32 m0, s{S_LDB}, {slot*TILE}")
            a(f"s_add_u32 s{S_DJ}, s{S_DJ}, 1")
        else:
            a(f"s_add_u32 m0, s{S_LDB}, {slot*TILE}")
            a(f"s_mov_b32 s{S_DOFF}, s{S_QS}")
            a(f"s_add_u32 s{S_QS}, s{S_QS}, s{S_QSTEP}")
            if rot:
                a("s_add_u32 s82, s82, 1")
                a("s_cmp_eq_u32 s82, 20")
                a(f"s_cselect_b32 s{S_B}, s83, 0")
                a(f"s_sub_u32 s{S_QS}, s{S_QS}, s{S_B}")
        dstate["i"] = 0; dstate["kind"] = kind
    def dma_one(pad=False):
        i = dstate["i"]
        if dstate["kind"] == "KV":
            if pad: a("s_nop 0")
            if not noload:
                a(f"buffer_load_dwordx4 v{V_DMA}, s[{S_LD}:{S_LD+3}], s{S_DOFF} offen offset:{256*i}{NT} lds")
            if i < 7: a(f"s_add_u32 m0, m0, s{96+(i&1)}")
        else:
            a(f"s_add_u32 s{S_A}, s{S_DOFF}, s{S_TAB+i}")
            if not qpnl: a(f"buffer_load_dwordx4 v{V_QD}, s[{S_QP}:{S_QP+3}], s{S_A} offen{' nt' if qnt else ''} lds")
            if i < 7: a(f"s_add_u32 m0, m0, s{S_MSTEP}")
        dstate["i"] = i + 1
    def qs_init(rnd_sgpr, q=3):
        if kvt2:
            a(f"s_lshl_b32 s98, s{S_T}, 19")
            if q == "pre":
                a(f"s_lshl_b32 s{S_A}, s{S_PRE}, {kvgs}"); a(f"s_sub_u32 s98, s98, s{S_A}"); q = 3
            a(f"s_add_u32 s98, s98, {q << kvgs}")
        a(f"s_mul_i32 s{S_QS}, s{rnd_sgpr}, s{S_QRND}")
        if not rflip: a(f"s_mov_b32 s101, s{rnd_sgpr}")
        a(f"s_add_u32 s{S_QS}, s{S_QS}, s55")
        a(f"s_cmp_ge_u32 s{rnd_sgpr}, 2")
        a(f"s_cselect_b32 s{S_A}, 0x40000000, 0")
        a(f"s_add_u32 s{S_QS}, s{S_QS}, s{S_A}")
        if rot:
            a("s_mov_b32 s82, s26")
            a(f"s_mul_i32 s{S_A}, s26, s{S_QSTEP}")
            a(f"s_add_u32 s{S_QS}, s{S_QS}, s{S_A}")

    def touch_init(rnd_sgpr):
        if not touch: return
        a(f"s_mul_i32 s98, s{rnd_sgpr}, s{S_QRND}")
        a(f"s_add_u32 s98, s98, s100")
        a(f"s_cmp_ge_u32 s{rnd_sgpr}, 2")
        a(f"s_cselect_b32 s{S_A}, 0x40000000, 0")
        a(f"s_add_u32 s98, s98, s{S_A}")
        tstate["t"] = 0
    def kread(f, slot):
        if anrd and state.get("inat"): return
        kt, s = f >> 2, f & 3
        a.lds(f"ds_read_b128 {vr(V_KF+4*f,4)}, v{V_KA} offset:{slot*TILE+kt*512+s*64}", "K")
    def vread(l, slot):
        if anrd and state.get("inat"): return
        for v in range(2):
            a.lds(f"ds_read_b64_tr_b16 {vr(V_VF+4*l+2*v,2)}, v{V_VA} offset:{slot*TILE+v*512+l*32}", "V")
    def wread(l, slot):
        for v in range(2):
            a.lds(f"ds_read_b64_tr_b16 {vr(V_VF+4*l+2*v,2)}, v{V_WA} offset:{slot*TILE+v*256+l*32}", "W")
    def bbuf(buf, qt): return (V_KF if buf == 0 else V_CI) + 4 * qt
    def bread(buf, qt, slot):
        a.lds(f"ds_read_b128 {vr(bbuf(buf,qt),4)}, v{V_BA} offset:{slot*TILE+qt*1024}", "B")
    def oreg(l, qt):
        return vr(V_OK + 28 * l + 4 * qt, 4) if l < 4 else ar(A_OS + 28 * (l - 4) + 4 * qt, 4)

    def barrier(dyn=False, vn=16, xt=0):
        vn += xt
        if dyn:
            n = len(a.lines)
            a(f"s_cmp_eq_u32 s{S_AS}, 0")
            if inv:
                a(f"s_cbranch_scc0 L_bw1_{n}")
                a(f"s_waitcnt vmcnt({vn}) lgkmcnt(0)")
                a.label(f"L_bw2_{n}")
                if wo2 or wo8 or wtch in (2, 3):
                    state.setdefault("ool", []).extend([f"L_bw1_{n}:", f"    s_sub_u32 s{S_AS}, s{S_AS}, 1", f"    s_bitcmp1_b32 s{S_AS}, 8", f"    s_cbranch_scc1 L_bw3_{n}",
                        f"    s_waitcnt vmcnt({44 + xt}) lgkmcnt(0)", f"    s_branch L_bw2_{n}",
                        f"L_bw3_{n}:", f"    s_bitcmp1_b32 s{S_AS}, 9", f"    s_cbranch_scc1 L_bw4_{n}",
                        f"    s_and_b32 s99, s{S_AS}, 0xff", f"    s_cselect_b32 s{S_AS}, s{S_AS}, 0",
                        f"    s_waitcnt vmcnt({21 + xt}) lgkmcnt(0)", f"    s_branch L_bw2_{n}",
                        f"L_bw4_{n}:", f"    s_and_b32 s99, s{S_AS}, 0xff", f"    s_cselect_b32 s{S_AS}, s{S_AS}, 0",
                        f"    s_waitcnt vmcnt({54 + xt}) lgkmcnt(0)", f"    s_branch L_bw2_{n}"])
                elif eep:
                    assert xt == 0
                    state.setdefault("ool", []).extend([f"L_bw1_{n}:", f"    s_sub_u32 s{S_AS}, s{S_AS}, 1",
                        f"    s_cmp_eq_u32 s{S_AS}, 0x101", f"    s_cbranch_scc1 L_bw3_{n}",
                        f"    s_cmp_eq_u32 s{S_AS}, 0x100", f"    s_cbranch_scc1 L_bw4_{n}",
                        f"    s_cmp_eq_u32 s{S_AS}, 0x200", f"    s_cbranch_scc1 L_bw5_{n}",
                        f"    s_waitcnt vmcnt(44) lgkmcnt(0)", f"    s_branch L_bw2_{n}",
                        f"L_bw3_{n}:", f"    s_waitcnt vmcnt(@NA1@) lgkmcnt(0)", f"    s_branch L_bw2_{n}",
                        f"L_bw4_{n}:", f"    s_mov_b32 s{S_AS}, 0", f"    s_waitcnt vmcnt(@NA2@) lgkmcnt(0)", f"    s_branch L_bw2_{n}",
                        f"L_bw5_{n}:", f"    s_mov_b32 s{S_AS}, 0", f"    s_waitcnt vmcnt(@NB2@) lgkmcnt(0)", f"    s_branch L_bw2_{n}"])
                else:
                    state.setdefault("ool", []).extend([f"L_bw1_{n}:", f"    s_sub_u32 s{S_AS}, s{S_AS}, 1", f"    s_waitcnt vmcnt({44 + xt}) lgkmcnt(0)", f"    s_branch L_bw2_{n}"])
                a.lds_q = []
                a("s_barrier")
                return
            a(f"s_cbranch_scc1 L_bw1_{n}")
            a(f"s_sub_u32 s{S_AS}, s{S_AS}, 1")
            a(f"s_waitcnt vmcnt({44 + xt}) lgkmcnt(0)")
            a(f"s_branch L_bw2_{n}")
            a.label(f"L_bw1_{n}")
            a(f"s_waitcnt vmcnt({vn}) lgkmcnt(0)")
            a.label(f"L_bw2_{n}")
        else:
            a(f"s_waitcnt vmcnt({vn}) lgkmcnt(0)")
        a.lds_q = []
        a("s_barrier")

    def cap(fn):
        n0 = len(a.lines); q0 = list(a.lds_q)
        fn()
        ls = a.lines[n0:]; del a.lines[n0:]; a.lds_q = q0
        return ls
    def is_scalar(ln):
        return ln.strip().startswith("s_")
    class Gaps:
        def __init__(self, n):
            self.n = n; self.S = [[] for _ in range(n)]; self.V = [[] for _ in range(n)]; self.c = [0] * n
        def putS(self, ln, lo, hi=None):
            for g in range(lo, self.n):
                if len(self.S[g]) == 0:
                    self.S[g].append(ln); return g
            self.S[self.n - 1].append(ln); return self.n - 1
        def putV(self, ln, lo, cost=1, cap_=2):
            for g in range(lo, self.n):
                if self.c[g] + cost <= cap_:
                    self.V[g].append(ln); self.c[g] += cost; return g
            self.V[self.n - 1].append(ln); self.c[self.n - 1] += cost; return self.n - 1
        def atV(self, ln, g, cost=1):
            self.V[g].append(ln); self.c[g] += cost
        def atS(self, ln, g):
            self.S[g].append(ln)
    DITEMS = [(qt, T) for qt in range(7) for T in range(4)]
    DS = {}
    if defer:
        ntl = (28 - 8 - 4 * dnp) // 4
        assert 4 * dnp + 8 + 4 * ntl == 28
        k_ = 0
        for i in range(4): DS[("P", i)] = DITEMS[k_:k_ + dnp]; k_ += dnp
        for i in (1, 0, 3, 2): DS[("L", i)] = DITEMS[k_:k_ + 2]; k_ += 2
        for i in range(4): DS[("T", i)] = DITEMS[k_:k_ + ntl]; k_ += ntl
    DLIVE = {1: 0, 0: 1, 3: 1, 2: 2}
    def dcount(code):
        if not defer or code is None: return 0
        kind, i = code
        n = lambda c: len(DS.get(c, []))
        if kind == "P": return sum(n(("P", t)) for t in (i - 2, i - 1) if t >= 0)
        prev = lambda k, t: (k, t) if t >= 0 else None
        if kind == "L":
            if i >= 2: return n(("L", i - 2)) + n(("L", i - 1))
            if i == 1: return min(n(("P", 3)), n(("L", 3))) + n(("L", 0))
            return min(n(("P", 2)) + n(("P", 3)), n(("L", 2)) + n(("L", 3)))
        if kind in ("T", "B"):
            m = lambda t: n((kind, t)) if t >= 0 else n(("L", 4 + t))
            return m(i - 2) + m(i - 1)
    def qp_stage2(sm, first, dma, last, chk, after_store, vn, nok, sidx, code=None):
        buf = sm & 1; nslot = (sm + 1) & 3
        BAR = qbar
        G = Gaps(56)
        su = cap(lambda: dma_setup(sm, dma))
        g = BAR - 1
        g = 0
        for ln in su:
            g = G.putS(ln, g) + 1
        prev = g
        w5 = wo5 == 1 and code == ("T", 0)
        for i in range(8):
            ls = cap(lambda: dma_one(False))
            tg = max(qd0 + (4 if w5 else qdstep) * i, prev)
            pre_ = [l for l in ls if is_scalar(l) and "m0" not in l]
            ld = [l for l in ls if not is_scalar(l)]
            post = [l for l in ls if is_scalar(l) and "m0" in l]
            for l in pre_: tg = G.putS(l, tg)
            for l in ld: G.atV(l, tg)
            prev = tg + 1
            for l in post: prev = G.putS(l, tg + 1) + 1
        dstate["i"] = 8
        if w5:
            assert prev <= 39, prev
            for i in range(5): G.atV(f"    v_accvgpr_read_b32 v{V_S+i}, a{244+i}", i)
            G.atS(f"    s_cmp_eq_u32 s{S_WO}, 0", 39)
            G.atS(f"    s_cselect_b32 s57, s56, 0x40000000", 39)
            for i in range(5):
                G.atS(f"    s_add_u32 m0, s58, {1024*i}", 40 + 3*i)
                G.atV(f"    buffer_load_dwordx4 v{V_S+i}, s[84:87], s57 offen lds", 41 + 3*i)
        if code in DS:
            its = DS[code]; lastq = None
            for n_, (qt_, T_) in enumerate(its):
                tg = qd0 + 3 + n_ * 2 * qdstep
                if qt_ != lastq:
                    if code[0] == "L":
                        G.atS(f"    s_cmp_eq_u32 s{S_CNT}, {DLIVE[code[1]]}", tg - 2)
                        G.atS(f"    s_cselect_b32 s99, s98, 0x40000000", tg - 2)
                        G.atS(f"    s_add_u32 s99, s99, {qt_*4096}", tg - 1)
                    else:
                        G.atS(f"    s_add_u32 s99, s98, {qt_*4096}", tg - 1)
                    lastq = qt_
                G.atV(f"    buffer_store_dwordx4 {ar(A_Q+16*qt_+4*T_,4)}, v{V_XA}, s[{S_W}:{S_W+3}], s99 offen offset:{1024*T_} {dpol}".rstrip(), tg)
        if tch(sidx):
            k_ = sidx // tper
            tg = min(prev + 1, 54)
            G.atV(f"    buffer_load_dword v{V_S+12}, v{V_LIN}, s[{S_LD}:{S_LD+3}], s98 offen {tpol}".rstrip(), tg)
            G.putS(f"    s_add_u32 s98, s98, {tinc(k_)}", tg + 1)
        if qnrd: pass
        elif not last:
            lo = BAR - 1
            for ln in cap(lambda: wread(0, nslot)): lo = G.putV(ln, lo, cap_=1)
            for qt in range(7):
                for ln in cap(lambda: bread(buf ^ 1, qt, nslot)): lo = G.putV(ln, lo, cap_=1)
            for l in range(1, 8):
                lo = max(lo, min(7 * (l + 1) - 1, 55))
                for ln in cap(lambda: wread(l, nslot)): lo = G.putV(ln, lo, cap_=(1 if l < 7 else 2))
        elif not nok:
            lo = BAR - 1
            for f in range(8):
                for ln in cap(lambda: kread(f, nslot)): lo = G.putV(ln, lo, cap_=1)
        a("s_waitcnt lgkmcnt(14)")
        j = 0
        for l in range(8):
            for qt in range(7):
                c = "0" if first else oreg(l, qt)
                if qt == 0 and l > 0 and j < BAR: a(f"s_waitcnt lgkmcnt({14-2*l})")
                a(f"{MFMA} {oreg(l, qt)}, {vr(V_VF+4*l,4)}, {vr(bbuf(buf,qt),4)}, {c}")
                for ln in G.S[j]: a.lines.append(ln)
                if j == BAR - 1:
                    if not qnbar: barrier(after_store, 16, tvn(sidx) + dcount(code) + (5 if (wo5 == 1 and code in (("T", 1), ("T", 2), ("T", 3))) else 0))
                    if chk: flagcheck()
                for ln in G.V[j]: a.lines.append(ln)
                j += 1
    def qp_stage(sm, first=False, dma="QP", last=False, chk=False, after_store=False, kt_=False, vn=16, nok=False, role=None, ntouch=0, sidx=None, code=None):
        buf = sm & 1; nslot = (sm + 1) & 3
        if qps:
            return qp_stage2(sm, first, dma, last, chk, after_store, vn, nok, sidx, code)
        a("s_waitcnt lgkmcnt(14)")
        fq = []
        def cap(fn):
            n0 = len(a.lines); q0 = len(a.lds_q)
            fn()
            ls = a.lines[n0:]; del a.lines[n0:]; del a.lds_q[q0:]
            return ls
        BAR = 7
        if role != "T":
            for ln in cap(lambda: dma_setup(sm, dma)): fq.append((BAR, ln))
        if dma == "QP" and roll:
            fq.append((BAR, f"    s_lshl2_add_u32 s{S_B}, s{S_QSTEP}, s{S_DOFF}"))
            fq.append((BAR, f"    buffer_load_dword v0, v{V_T0}, s[{S_QP}:{S_QP+3}], s{S_B} offen{' nt' if tnt else ''}"))
        if kvt and kt_:
            fq.append((BAR, f"    buffer_load_dword v0, v{V_T3}, s[{S_LD}:{S_LD+3}], s101 offen{' nt' if kvtnt else ''}"))
            fq.append((BAR, f"    s_add_u32 s101, s101, 8192"))
        if not last:
            for ln in cap(lambda: wread(0, nslot)): fq.append((BAR, ln))
            for qt in range(7):
                for ln in cap(lambda: bread(buf ^ 1, qt, nslot)): fq.append((BAR, ln))
        elif not nok:
            for f in range(8):
                for ln in cap(lambda: kread(f, nslot)): fq.append((BAR, ln))
        for l in range(1, 8):
            if not last:
                for ln in cap(lambda: wread(l, nslot)): fq.append((7 * (l + 1), ln))
            if role == "T":
                if l == 1:
                    for _ in range(ntouch):
                        fq.append((BAR, f"    buffer_load_dword v0, v{V_T0}, s[60:63], s98 offen"))
                        fq.append((BAR, f"    s_add_u32 s98, s98, {32*8192}"))
                        fq.append((BAR, f"    buffer_load_dword v0, v{V_T1}, s[{S_QP}:{S_QP+3}], s99 offen"))
                        fq.append((BAR, f"    s_add_u32 s99, s99, 64"))
                continue
            for ln in cap(lambda: dma_one(True)): fq.append((BAR, ln))
            if role == "X":
                if l == 7:
                    fq.append((BAR, f"    s_add_u32 m0, s{S_LDB}, {AREA+sm*TILE}"))
                    fq.append((BAR, f"    s_add_u32 s{S_DOFF}, s{S_DOFF}, {112*1280}"))
                    for i in range(7):
                        fq.append((BAR, f"    s_add_u32 s{S_A}, s{S_DOFF}, s{S_TAB+i}"))
                        fq.append((BAR, f"    buffer_load_dwordx4 v{V_QD}, s[{S_QP}:{S_QP+3}], s{S_A} offen{' nt' if qnt else ''} lds"))
                        if i < 6: fq.append((BAR, f"    s_add_u32 m0, m0, 1024"))
            elif l == 7:
                for ln in cap(lambda: dma_one(True)): fq.append((BAR, ln))
        j = 0
        for l in range(8):
            for qt in range(7):
                c = "0" if first else oreg(l, qt)
                a(f"{MFMA} {oreg(l, qt)}, {vr(V_VF+4*l,4)}, {vr(bbuf(buf,qt),4)}, {c}")
                j += 1
                if j == BAR:
                    barrier(after_store, vn if (roll or role) else 16)
                    if chk: flagcheck()
                    if trace:
                        a("s_memtime s[78:79]")
                        a("s_waitcnt lgkmcnt(0)")
                        a(f"v_cmp_eq_u32 vcc, s77, v{V_LANE}")
                        a(f"v_mov_b32 v{V_T2}, s78")
                        a("s_nop 1")
                        a(f"v_cndmask_b32 v{V_T3}, v{V_T3}, v{V_T2}, vcc")
                        a("s_add_u32 s77, s77, 1")
                k = 0; idx = 0
                rem_gaps = 56 - j + 1
                quota = 1 if len(fq) <= rem_gaps else 2
                while k < quota and idx < len(fq):
                    if fq[idx][0] <= j and (idx == 0 or "ds_read" in fq[idx][1] or all("ds_read" in x[1] for x in fq[:idx])):
                        a.lines.append(fq[idx][1]); del fq[idx]; k += 1
                    else:
                        idx += 1
        for _, ln in fq: a.lines.append(ln)
        assert role in ("X", "T") or dstate["i"] == 8

    def sm_ops(par, i, first):
        S = V_S + 8 * par; P = V_P + 4 * par; L = V_L + 2 * i
        ops = []
        if first:
            T0, T1 = V_T0, V_T1
            ops += [f"v_max3_f32 v{T0}, v{S}, v{S+1}, v{L}", f"v_max3_f32 v{T1}, v{S+2}, v{S+3}, v{S+4}",
                    f"v_max3_f32 v{T0}, v{S+5}, v{S+6}, v{T0}", f"v_max3_f32 v{T0}, v{S+7}, v{T0}, v{T1}",
                    f"v_mov_b32 v{T1}, v{T0}", "s_nop 1", f"v_permlane16_swap_b32 v{T0}, v{T1}", "s_nop 1", f"v_max_f32 v{T0}, v{T0}, v{T1}",
                    f"v_mov_b32 v{T1}, v{T0}", "s_nop 1", f"v_permlane32_swap_b32 v{T0}, v{T1}", "s_nop 1", f"v_max_f32 v{T0}, v{T0}, v{T1}",
                    f"v_mov_b32 v{L}, 0", f"v_mov_b32 v{L+1}, 0"]
            ops += [f"v_sub_f32 v{S+r}, v{S+r}, v{T0}" for r in range(8)]
            ops += [f"v_sub_f32 v{V_CI+4*i+r}, 0, v{T0}" for r in range(4)]
        e = lambda r: ops.append(f"v_exp_f32 v{S+r}, v{S+r}")
        e(0); e(1)
        for r in range(0, 8, 2):
            if r + 2 < 8: e(r + 2); e(r + 3)
            if not ones:
                ops.append(f"v_add_f32 v{L}, v{L}, v{S+r}")
                ops.append(f"v_add_f32 v{L+1}, v{L+1}, v{S+r+1}")
            ops.append(f"v_cvt_pk_bf16_f32 v{P+r//2}, v{S+r}, v{S+r+1}")
        return ops

    def qk_items(qt, par, czero, kr):
        it = []
        for f in range(8):
            kt, s = f >> 2, f & 3
            D = vr(V_S + 8 * par + 4 * kt, 4)
            c = ("0" if czero else vr(V_CI + 4 * qt, 4)) if s == 0 else D
            it.append(("K" if f == 0 else None, f"{MFMA} {D}, {vr(V_KF+4*f,4)}, {ar(A_Q+16*qt+4*s,4)}, {c}",
                       (lambda f=f: kread(f, kr)) if kr is not None else None))
        return it
    def pv_items(qt, par, czero, vrd):
        it = []
        for l in range(8):
            c = "0" if czero else oreg(l, qt)
            it.append(("V" if l == 0 else None, f"{MFMA} {oreg(l, qt)}, {vr(V_VF+4*l,4)}, {vr(V_P+4*par,4)}, {c}",
                       (lambda l=l: vread(l, vrd)) if vrd is not None else None))
        for _ in range(xmfma):
            D = ar(A_LS + 4 * qt, 4)
            it.append((None, f"{MFMA} {D}, {vr(V_VF,4)}, {vr(V_P+4*par,4)}, {D}", None))
        if ones:
            D = ar(A_LS + 4 * qt, 4)
            it.append((None, f"{MFMA} {D}, {ar(A_ONE,4)}, {vr(V_P+4*par,4)}, {'0' if czero else D}", None))
        return it

    def capture(fn):
        n0 = len(a.lines)
        fn()
        ls = a.lines[n0:]; del a.lines[n0:]
        return ls
    def emit(items, va, fill=None, nfill=0):
        cost = lambda op: 2 if "v_exp" in op else 1
        tot = sum(cost(o) for o in va); acc = 0; k = 0; ng = len(items)
        pos = [int((i + 0.5) * ng / max(nfill, 1)) for i in range(nfill)]
        for j, (need, m, post) in enumerate(items):
            if m:
                if need: a.lds_wait({need})
                a(m)
            if post: post()
            for _ in range(pos.count(j)):
                if fill: a.lines.append(fill.pop(0))
            while k < len(va) and acc + cost(va[k]) <= tot * (j + 1) / ng + 0.01:
                a(va[k]); acc += cost(va[k]); k += 1
        assert k == len(va)

    def dma_lines(slot, kind, pad=False):
        def f():
            dma_setup(slot, kind)
            for _ in range(8): dma_one(pad)
            if xmem and kind == "KV":
                a(f"s_mul_i32 s{S_A}, s{S_WAVE}, 7168")
                a(f"s_add_u32 m0, s{S_A}, {4*AREA+5120}")
                a(f"s_add_u32 s{S_A}, s{S_DOFF}, s76")
                for i in range(xmem):
                    a(f"buffer_load_dwordx4 v{V_DMA}, s[72:75], s{S_A} offen offset:{256*i} nt lds")
        return capture(f)
    def split_fill(fill, quota):
        out = []; idx = 0
        for q in quota:
            ch = []; n = 0
            while idx < len(fill) and n < q:
                ln = fill[idx]; ch.append(ln); idx += 1
                if "buffer_load" in ln:
                    n += 1
                    if idx < len(fill) and "m0, m0" in fill[idx]: ch.append(fill[idx]); idx += 1
            out.append(ch)
        out[-1] += fill[idx:]
        return out
    def ep_red(j):
        L = V_L + 2 * j; t = V_CI + 4 * j + 1; r = V_CI + 4 * j
        return [f"v_add_f32 v{L}, v{L}, v{L+1}", f"v_mov_b32 v{t}, v{L}", "s_nop 1", f"v_permlane16_swap_b32 v{L}, v{t}", "s_nop 1", f"v_add_f32 v{L}, v{L}, v{t}",
                f"v_mov_b32 v{t}, v{L}", "s_nop 1", f"v_permlane32_swap_b32 v{L}, v{t}", "s_nop 1", f"v_add_f32 v{L}, v{L}, v{t}", f"v_rcp_f32 v{r}, v{L}"]
    def ep_tile(j, pk_):
        r = V_CI + 4 * j
        q = lambda l: V_OK + 28 * l + 4 * j
        ops = [f"s_add_u32 s98, s{S_D}, {4096*j}"]
        for T in range(4):
            if T < 2: x, y = q(2 * T), q(2 * T + 1)
            else:
                x, y = (q(1), q(3)) if T == 2 else (q(0), q(3))
                for e, dst in ((0, x), (1, y)):
                    for k in range(4): ops.append(f"v_accvgpr_read_b32 v{dst+k}, a{A_OS+28*(2*(T-2)+e)+4*j+k}")
            for dst in (x, y):
                if pk_:
                    for h in range(2): ops.append(f"v_pk_mul_f32 {vr(dst+2*h,2)}, {vr(dst+2*h,2)}, {vr(r,2)} op_sel_hi:[1,0]")
                else:
                    for k in range(4): ops.append(f"v_mul_f32 v{dst+k}, v{dst+k}, v{r}")
            ops.append(f"v_cvt_pk_bf16_f32 v{x}, v{x}, v{x+1}")
            ops.append(f"v_cvt_pk_bf16_f32 v{x+1}, v{x+2}, v{x+3}")
            ops.append(f"v_cvt_pk_bf16_f32 v{x+2}, v{y}, v{y+1}")
            ops.append(f"v_cvt_pk_bf16_f32 v{x+3}, v{y+2}, v{y+3}")
            ops.append("s_nop 1")
            ops.append(f"v_permlane16_swap_b32 v{x}, v{x+2}")
            ops.append(f"v_permlane16_swap_b32 v{x+1}, v{x+3}")
            if not nost: ops.append(f"buffer_store_dwordx4 {vr(x,4)}, v{V_XA}, s[{S_W}:{S_W+3}], s98 offen offset:{1024*T} {stpol}".rstrip())
        return ops
    def ep_merge(sm, ep):
        sm = list(sm); out = []
        nn = sum(1 for o in ep if o == "s_nop 1")
        rest = len(sm) - 2 * nn
        body = [o for o in ep]
        n_other = len(body) - nn
        per = rest / max(n_other, 1) if rest > 0 else 0
        acc = 0.0
        for o in body:
            if o == "s_nop 1":
                if len(sm) >= 2: out.append(sm.pop(0)); out.append(sm.pop(0))
                else: out.append(o)
                continue
            out.append(o)
            acc += per
            while acc >= 1 and sm:
                out.append(sm.pop(0)); acc -= 1
        return out + sm
    def step(jm, first=False, last=False, dma="KV", nt_=0, tr_=False, dyn=False):
        fill = [] if (first or early) else dma_lines((jm + 3) & 3, dma)
        nf = (len(fill) + len(dsl) - 1) // len(dsl)
        chunks = state.get("carry") or [[] for _ in range(5)]
        state["carry"] = None
        for i in range(7):
            if strace and tr_:
                pr = [36, 38, 40, 42, 56, 58, 60, 62]
                a(f"s_memtime s[{pr[i]}:{pr[i]+1}]")
            if i in (1, 2, 3)[:nt_]: touch_one()
            n = state["n"]; par = n & 1
            items = []
            nfill = nf if (str(i) in dsl and i <= 4) else 0
            if spread and i <= 4:
                fill = list(chunks[i]); nfill = len(fill)
            if eep and last and dma == "KV":
                if i == 0: qstash_off()
                for s_ in range(4):
                    a(f"buffer_load_dwordx4 {ar(A_Q+16*i+4*s_,4)}, v{V_T2}, s[{S_W}:{S_W+3}], s{S_C} offen offset:{1024*s_}")
                if i < 6: a(f"s_add_u32 s{S_C}, s{S_C}, 4096")
            if i == 5:
                assert not fill
                if eep and last:
                    a(f"s_waitcnt vmcnt(@LB{'A' if dma == 'QP' else 'B'}@) lgkmcnt(0)")
                    a.lds_q = []
                    a("s_barrier")
                elif not (anbar and state.get("inat")): barrier(dyn)
                if first: flagcheck()
                if last or early:
                    fill = dma_lines(jm, dma, True if last else False); nf = (len(fill) + 1) // 2
                    if spread and not last:
                        ch = split_fill(fill, [int(c) for c in spread])
                        assert len(ch) == 7
                        nxt = ch; fill = list(ch[0]); state["carry"] = ch[2:]
            if (last or early) and i >= 5: nfill = nf
            if spread and not last and i == 5: nfill = len(fill)
            if spread and not last and i == 6: fill = list(nxt[1]); nfill = len(fill)
            if i < 6:
                items += qk_items(i + 1, par ^ 1, first, ((jm + 1) & 3) if (i == 5 and (not last or dma == "KV")) else None)
            elif not last:
                items += qk_items(0, par ^ 1, False, None)
            else:
                if dma == "KV" and not eep: qreload()
                a("s_nop 1")
            if i > 0:
                items += pv_items(i - 1, par ^ 1, first, None)
            elif not first:
                items += pv_items(6, par ^ 1, False, jm)
            else:
                items += [(None, None, (lambda l=l: vread(l, jm))) for l in range(8)]
            ops_ = sm_ops(par, i, first)
            if state.get("inat") and anva:
                ops_ = [o for o in ops_ if not any(o.startswith(x) for x in anva.split(","))]
            if eep and last and i >= 2:
                ops_ = ep_merge(ops_, ep_red(i - 2) + ep_tile(i - 2, eep == 2))
            emit(items, ops_, fill, nfill)
            state["n"] = n + 1
        assert not fill

    def qstash_off():
        a(f"s_lshl_b32 s{S_C}, s2, 2")
        a(f"s_add_u32 s{S_C}, s{S_C}, s{S_WAVE}")
        a(f"s_mul_i32 s{S_C}, s{S_C}, 28672")
        a(f"v_lshlrev_b32 v{V_T2}, 4, v{V_LANE}")
    def qreload():
        qstash_off()
        for i in range(7):
            for s_ in range(4):
                a(f"buffer_load_dwordx4 {ar(A_Q+16*i+4*s_,4)}, v{V_T2}, s[{S_W}:{S_W+3}], s{S_C} offen offset:{1024*s_}")
            if i < 6: a(f"s_add_u32 s{S_C}, s{S_C}, 4096")

    def flagcheck():
        lab = f"L_at_nofb_{len(a.lines)}"
        a(f"s_cmp_le_u32 s{S_T}, s{S_T0}")
        a(f"s_cbranch_scc1 {lab}")
        a(f"s_sub_u32 s{S_A}, s{S_T}, 1")
        a(f"s_cmp_eq_u32 s{S_A}, s{S_NOFB}")
        a(f"s_cbranch_scc1 {lab}")
        a(f"s_lshl_b32 s{S_B}, s{S_A}, 2")
        a(f"s_add_u32 s{S_B}, s{S_B}, {LDS_FLAG}")
        a(f"v_mov_b32 v{V_T2}, s{S_B}")
        a(f"ds_read_b32 v{V_T2}, v{V_T2}")
        a("s_waitcnt lgkmcnt(0)")
        a(f"v_readfirstlane_b32 s{S_B}, v{V_T2}")
        a("s_nop 3")
        a(f"s_cmp_lg_u32 s{S_B}, 0")
        a(f"s_cbranch_scc1 L_at_fallback")
        a.label(lab)

    def wo_issue_a(ps):
        a(f"s_and_b32 s{S_B}, s2, 127")
        a(f"s_mul_i32 s{S_B}, s{S_B}, {32*1280}")
        a(f"s_mul_i32 s{S_D}, s{S_WAVE}, 320")
        a(f"s_add_u32 s{S_B}, s{S_B}, s{S_D}")
        a(f"s_add_u32 s{S_B}, s{S_B}, {160*ps}")
        a(f"s_mul_i32 s{S_D}, s{S_WAVE}, 7168")
        a(f"s_add_u32 s{S_D}, s{S_D}, {4*AREA}")
        a(f"s_mov_b32 s{S_A}, 6554")
        for i in range(5):
            a(f"v_add_u32 v{V_T0}, {64*i}, v{V_LANE}")
            a(f"v_mul_u32_u24 v{V_T1}, s{S_A}, v{V_T0}")
            a(f"v_lshrrev_b32 v{V_T1}, 16, v{V_T1}")
            a(f"v_mul_u32_u24 v{V_T2}, 10, v{V_T1}")
            a(f"v_sub_u32 v{V_T2}, v{V_T0}, v{V_T2}")
            a(f"v_mul_u32_u24 v{V_T1}, 1280, v{V_T1}")
            a(f"s_add_u32 m0, s{S_D}, {1024*i}")
            a(f"v_lshl_add_u32 v{V_T3}, v{V_T2}, 4, v{V_T1}")
            a(f"buffer_load_dwordx4 v{V_T3}, s[84:87], s{S_B} offen lds")
    def wo_read_a():
        a(f"v_lshrrev_b32 v{V_T0}, 4, v{V_LANE}")
        a(f"v_bfe_u32 v{V_T1}, v{V_LANE}, 2, 2")
        a(f"v_lshl_add_u32 v{V_T1}, v{V_T0}, 3, v{V_T1}")
        a(f"v_mul_u32_u24 v{V_T1}, 160, v{V_T1}")
        a(f"v_and_b32 v{V_T2}, 3, v{V_LANE}")
        a(f"v_lshl_add_u32 v{V_T1}, v{V_T2}, 3, v{V_T1}")
        a(f"s_mul_i32 s{S_D}, s{S_WAVE}, 7168")
        a(f"s_add_u32 s{S_D}, s{S_D}, {4*AREA}")
        a(f"v_add_u32 v{V_T1}, s{S_D}, v{V_T1}")
        R = A_LS
        for t in range(5):
            for v in range(2):
                a(f"ds_read_b64_tr_b16 {ar(R+4*t+2*v,2)}, v{V_T1} offset:{v*640+t*32}")
    def wo_store_a(ps):
        R = A_LS
        a(f"v_lshlrev_b32 v{V_T2}, 4, v{V_LANE}")
        a(f"s_mul_i32 s{S_A}, s2, {40*1024}")
        a(f"s_mul_i32 s{S_B}, s{S_WAVE}, {10*1024}")
        a(f"s_add_u32 s{S_A}, s{S_A}, s{S_B}")
        a(f"s_add_u32 s{S_A}, s{S_A}, {WS_W+5120*ps}")
        a("s_waitcnt lgkmcnt(0)")
        for f in range(5):
            if f == 4: a(f"s_add_u32 s{S_A}, s{S_A}, 4096")
            a(f"buffer_store_dwordx4 {ar(R+4*f,4)}, v{V_T2}, s[{S_W}:{S_W+3}], s{S_A} offen offset:{1024*(f&3)} {wpol}".rstrip())
    def wo_finish_a(ps):
        wo_read_a(); wo_store_a(ps)
    def wo_issue(ps):
        D = V_S
        a(f"s_mov_b32 s{S_A}, 6554")
        for i in range(5):
            a(f"v_add_u32 v{V_T0}, {64*i}, v{V_LANE}")
            a(f"v_mul_u32_u24 v{V_T1}, s{S_A}, v{V_T0}")
            a(f"v_lshrrev_b32 v{V_T1}, 16, v{V_T1}")
            a(f"v_mul_u32_u24 v{V_T2}, 10, v{V_T1}")
            a(f"v_sub_u32 v{V_T2}, v{V_T0}, v{V_T2}")
            a(f"v_mul_u32_u24 v{V_T1}, 1280, v{V_T1}")
            a(f"v_lshl_add_u32 v{D+i}, v{V_T2}, 4, v{V_T1}")
        a(f"s_and_b32 s{S_A}, s2, 127")
        a(f"s_mul_i32 s{S_A}, s{S_A}, {32*1280}")
        a(f"s_mul_i32 s{S_B}, s{S_WAVE}, 320")
        a(f"s_add_u32 s{S_A}, s{S_A}, s{S_B}")
        a(f"s_add_u32 s{S_A}, s{S_A}, {160*ps}")
        a(f"s_mul_i32 s{S_D}, s{S_WAVE}, 7168")
        a(f"s_add_u32 s{S_D}, s{S_D}, {4*AREA}")
        for i in range(5):
            a(f"s_add_u32 m0, s{S_D}, {1024*i}")
            a("s_nop 0")
            a(f"buffer_load_dwordx4 v{D+i}, s[84:87], s{S_A} offen{' nt' if wont else ''} lds")
    def wo_finish(ps):
        if wo5:
            a(f"v_accvgpr_read_b32 v{V_T1}, a249")
        else:
            a(f"v_lshrrev_b32 v{V_T0}, 4, v{V_LANE}")
            a(f"v_bfe_u32 v{V_T1}, v{V_LANE}, 2, 2")
            a(f"v_lshl_add_u32 v{V_T1}, v{V_T0}, 3, v{V_T1}")
            a(f"v_mul_u32_u24 v{V_T1}, 160, v{V_T1}")
            a(f"v_and_b32 v{V_T2}, 3, v{V_LANE}")
            a(f"v_lshl_add_u32 v{V_T1}, v{V_T2}, 3, v{V_T1}")
            a(f"s_mul_i32 s{S_D}, s{S_WAVE}, 7168")
            a(f"s_add_u32 s{S_D}, s{S_D}, {4*AREA}")
            a(f"v_add_u32 v{V_T1}, s{S_D}, v{V_T1}")
        a(f"v_lshlrev_b32 v{V_T2}, 4, v{V_LANE}")
        a(f"s_mul_i32 s{S_A}, s2, {40*1024}")
        a(f"s_mul_i32 s{S_B}, s{S_WAVE}, {10*1024}")
        a(f"s_add_u32 s{S_A}, s{S_A}, s{S_B}")
        a(f"s_add_u32 s{S_A}, s{S_A}, {WS_W+5120*ps}")
        R = V_VF
        for t in range(5):
            for v in range(2):
                a(f"ds_read_b64_tr_b16 {vr(R+4*t+2*v,2)}, v{V_T1} offset:{v*640+t*32}")
        a("s_waitcnt lgkmcnt(0)")
        for f in range(5):
            if f == 4: a(f"s_add_u32 s{S_A}, s{S_A}, 4096")
            a(f"buffer_store_dwordx4 {vr(R+4*f,4)}, v{V_T2}, s[{S_W}:{S_W+3}], s{S_A} offen offset:{1024*(f&3)} {wpol}".rstrip())
        a("s_nop 1")

    def rt_setup():
        a(f"s_bfe_u32 s{S_A}, s2, 0x20003")
        a(f"s_lshl_b32 s{S_A}, s{S_A}, 3")
        a(f"v_lshrrev_b32 v{V_T0}, 3, v{V_LANE}")
        a(f"v_add_u32 v{V_T0}, s{S_A}, v{V_T0}")
        a(f"v_lshlrev_b32 v{V_T0}, 13, v{V_T0}")
        a(f"v_and_b32 v{V_T2}, 7, v{V_LANE}")
        a(f"v_lshl_add_u32 v{V_T0}, v{V_T2}, 5, v{V_T0}")
        a(f"v_bfe_u32 v{V_T1}, v{V_LANE}, 1, 4")
        a(f"v_min_u32 v{V_T1}, 13, v{V_T1}")
        a(f"s_and_b32 s{S_A}, s2, 7")
        a(f"s_mul_i32 s{S_A}, s{S_A}, 14")
        a(f"v_add_u32 v{V_T1}, s{S_A}, v{V_T1}")
        a(f"v_mul_u32_u24 v{V_T1}, 1280, v{V_T1}")
        a(f"v_and_b32 v{V_T2}, 1, v{V_LANE}")
        a(f"v_lshl_add_u32 v{V_T1}, v{V_T2}, 5, v{V_T1}")
        a(f"s_cmp_eq_u32 s{S_QH}, 0")
        a("s_cselect_b64 vcc, -1, 0")
        a("s_nop 1")
        a(f"v_cndmask_b32 v{V_T0}, v{V_T1}, v{V_T0}, vcc")
    def dly(us, tag):
        a("s_memrealtime s[78:79]")
        a("s_waitcnt lgkmcnt(0)")
        a(f"s_add_u32 s77, s78, {us*100}")
        a.label(f"L_dl{tag}")
        a("s_sleep 4")
        a("s_memrealtime s[78:79]")
        a("s_waitcnt lgkmcnt(0)")
        a("s_sub_u32 s79, s78, s77")
        a("s_cmp_lt_i32 s79, 0")
        a(f"s_cbranch_scc1 L_dl{tag}")
    def st(k):
        if pst:
            a("s_memrealtime s[78:79]")
            a("s_memtime s[80:81]")
            a("s_waitcnt lgkmcnt(0)")
            a("s_mov_b32 m0, s77"); a("s_nop 0"); a("v_writelane_b32 v0, s78, m0")
            a("s_add_u32 m0, s77, 30"); a("s_nop 0"); a("v_writelane_b32 v0, s80, m0")
            a("s_add_u32 s77, s77, 1")
        if stamp:
            if st0:
                n = len(a.lines)
                a(f"s_cmp_ge_u32 s{S_T}, {1 if k < 3 else 2}")
                a(f"s_cbranch_scc1 L_st_{n}")
            a(f"s_memtime s[{72+2*k}:{73+2*k}]")
            if st0: a.label(f"L_st_{n}")
    if pst:
        a("s_memrealtime s[78:79]")
        a("s_memtime s[80:81]")
        a("s_waitcnt lgkmcnt(0)")
        a("v_mov_b32 v0, 0")
        a("v_writelane_b32 v0, s78, 0")
        a("v_writelane_b32 v0, s80, 30")
        a("v_writelane_b32 v0, s74, 61")
        a("s_mov_b32 s77, 1")
    if delay:
        a("s_bitcmp1_b32 s2, 0")
        a("s_cbranch_scc0 L_nodelay")
        a("s_memrealtime s[78:79]")
        a("s_waitcnt lgkmcnt(0)")
        a(f"s_add_u32 s77, s78, {delay*100}")
        a.label("L_dl")
        a("s_sleep 8")
        a("s_memrealtime s[78:79]")
        a("s_waitcnt lgkmcnt(0)")
        a("s_sub_u32 s79, s78, s77")
        a("s_cmp_lt_i32 s79, 0")
        a("s_cbranch_scc1 L_dl")
        a.label("L_nodelay")
    a.label("L_at_start")
    if trace:
        a("s_mov_b32 s77, 1")
        a(f"v_mov_b32 v{V_T3}, s64")
        a("s_memtime s[78:79]")
        a("s_waitcnt lgkmcnt(0)")
        a(f"v_cmp_eq_u32 vcc, s77, v{V_LANE}")
        a(f"v_mov_b32 v{V_T2}, s78")
        a("s_nop 1")
        a(f"v_cndmask_b32 v{V_T3}, v{V_T3}, v{V_T2}, vcc")
        a("s_add_u32 s77, s77, 1")
    a(f"s_mov_b32 s{S_T}, s{S_T0}")
    a(f"s_lshl_b32 s{S_DJ}, s{S_T0}, 5")
    a(f"s_add_u32 s{S_D}, s{S_T}, s{S_PRE}")
    qs_init(S_D, "pre")
    if roll:
        rt_setup()
        for sl in range(2):
            dma_setup(sl, "QP")
            for _ in range(8): dma_one(True)
        a(f"s_mov_b32 s{S_B}, s{S_QS}")
        for _ in range(6):
            a(f"buffer_load_dword v0, v{V_T0}, s[{S_QP}:{S_QP+3}], s{S_B} offen{' nt' if tnt else ''}")
            a(f"s_add_u32 s{S_B}, s{S_B}, s{S_QSTEP}")
        for sl in range(2, 4):
            dma_setup(sl, "QP")
            for _ in range(8): dma_one(True)
        a(f"s_waitcnt vmcnt(30) lgkmcnt(0)")
    else:
        if wtl:
            a(f"s_and_b32 s56, s2, 127")
            a(f"s_mul_i32 s56, s56, {32*1280}")
            a(f"v_mov_b32 v{V_S+14}, 0")
            if wtl == 2: a(f"v_mul_u32_u24 v{V_S+14}, 640, v{V_LANE}")
            a(f"buffer_load_dword v{V_S+15}, v{V_S+14}, s[84:87], s56 offen")
        for sl in range(4):
            dma_setup(sl, "QP")
            for _ in range(8): dma_one(True)
            if pro1 and sl == 0:
                st(9)
                a("s_waitcnt vmcnt(0)")
                st(9)
        if wo5 or wo8:
            a(f"s_and_b32 s56, s2, 127")
            a(f"s_mul_i32 s56, s56, {32*1280}")
            a(f"s_mul_i32 s58, s{S_WAVE}, 320")
            a(f"s_add_u32 s56, s56, s58")
            a(f"s_mul_i32 s58, s{S_WAVE}, 7168")
            a(f"s_add_u32 s58, s58, {4*AREA}")
            a(f"s_mov_b32 s{S_A}, 6554")
            for i in range(5):
                a(f"v_add_u32 v{V_T0}, {64*i}, v{V_LANE}")
                a(f"v_mul_u32_u24 v{V_T1}, s{S_A}, v{V_T0}")
                a(f"v_lshrrev_b32 v{V_T1}, 16, v{V_T1}")
                a(f"v_mul_u32_u24 v{V_T2}, 10, v{V_T1}")
                a(f"v_sub_u32 v{V_T2}, v{V_T0}, v{V_T2}")
                a(f"v_mul_u32_u24 v{V_T1}, 1280, v{V_T1}")
                a(f"v_lshl_add_u32 v{V_T3}, v{V_T2}, 4, v{V_T1}")
                a(f"v_accvgpr_write_b32 a{244+i}, v{V_T3}")
            a(f"v_lshrrev_b32 v{V_T0}, 4, v{V_LANE}")
            a(f"v_bfe_u32 v{V_T1}, v{V_LANE}, 2, 2")
            a(f"v_lshl_add_u32 v{V_T1}, v{V_T0}, 3, v{V_T1}")
            a(f"v_mul_u32_u24 v{V_T1}, 160, v{V_T1}")
            a(f"v_and_b32 v{V_T2}, 3, v{V_LANE}")
            a(f"v_lshl_add_u32 v{V_T1}, v{V_T2}, 3, v{V_T1}")
            a(f"v_add_u32 v{V_T1}, s58, v{V_T1}")
            a(f"v_accvgpr_write_b32 a249, v{V_T1}")
        if tlbw:
            a(f"v_lshlrev_b32 v{V_S+13}, 12, v{V_LANE}")
            a(f"buffer_load_dword v{V_S+12}, v{V_S+13}, s[{S_LD}:{S_LD+3}], 0 offen nt")
            if tlbw > 1:
                a(f"s_mov_b32 s{S_A}, 0x80000")
                a(f"buffer_load_dword v{V_S+12}, v{V_S+13}, s[{S_LD}:{S_LD+3}], s{S_A} offen nt")
        if bulk0 and touch:
            touch_init(S_D)
            for _ in range(5): touch_one()
        if cpf and cpflate:
            for k in range(cpf // 16):
                a(f"s_mov_b32 s76, {k*16384}")
                a("buffer_load_dword v104, v105, s[72:75], s76 offen")
        a(f"s_waitcnt vmcnt({(29 if (bulk0 and touch) else 24) + (cpf // 16 if cpflate else 0)}) lgkmcnt(0)")
    a("s_barrier")
    a.label("L_at_round")
    st(0)
    if roll: rt_setup()
    for l in range(8): wread(l, 0)
    for qt in range(7): bread(0, qt, 0)
    a.lds_wait_all()
    def qp_body(role):
        sfx = role or ""
        vns = {None: (22, 17, 18, 18, 18), "W": (16, 16, 16, 16, 16), "X": (16, 22, 28, 28, 28), "T": (16, 20, 20, 63, 63)}[role]
        nts = (6, 4, 4, 2)
        qp_stage(0, first=True, chk=True, after_store=True, vn=vns[0], role=role, ntouch=nts[0], sidx=0, code=("P", 0))
        qp_stage(1, after_store=True, vn=vns[1], role=role, ntouch=nts[1], sidx=1, code=("P", 1))
        qp_stage(2, after_store=True, vn=vns[2], role=role, ntouch=nts[2], sidx=2, code=("P", 2))
        qp_stage(3, vn=vns[3], role=role, ntouch=nts[3], sidx=3, code=("P", 3))
        if not wo2 and not wo8 and not woff:
            a(f"s_cmp_lg_u32 s{S_WO}, 0")
            a(f"s_cbranch_scc1 L_at_nowo0{sfx}")
            a(f"s_mov_b32 s{S_WO}, 1")
            wo_issue(0)
            if roll: rt_setup()
            a.label(f"L_at_nowo0{sfx}")
        a(f"s_mov_b32 s{S_CNT}, 0")
        a.label(f"L_at_qploop{sfx}")
        a.lds_q = []
        if wo6:
            a(f"s_lshl3_add_u32 s{S_A}, s{S_WO}, s{S_CNT}")
            a(f"s_cmp_eq_u32 s{S_A}, {int(wo6[0])}")
            a("s_cbranch_scc1 L_at_wh0")
            a(f"s_cmp_eq_u32 s{S_A}, {8 + int(wo6[1])}")
            a("s_cbranch_scc1 L_at_wh1")
            a.label("L_at_whr")
            def h0():
                a(f"s_mov_b32 s{S_WO}, 1")
                for i in range(5):
                    a(f"s_add_u32 m0, s58, {1024*i}")
                    a(f"v_accvgpr_read_b32 v{V_T3}, a{244+i}")
                    a(f"buffer_load_dwordx4 v{V_T3}, s[84:87], s56 offen lds")
                a("s_branch L_at_whr")
            def h1():
                a(f"s_mov_b32 s{S_WO}, 2")
                a(f"v_accvgpr_read_b32 v{V_T1}, a249")
                a("s_add_u32 s57, s56, 160")
                for t in range(5):
                    for v in range(2):
                        a(f"ds_read_b64_tr_b16 {ar(A_LS+4*t+2*v,2)}, v{V_T1} offset:{v*640+t*32}")
                a("s_waitcnt lgkmcnt(0)")
                for i in range(5):
                    a(f"s_add_u32 m0, s58, {1024*i}")
                    a(f"v_accvgpr_read_b32 v{V_T3}, a{244+i}")
                    a(f"buffer_load_dwordx4 v{V_T3}, s[84:87], s57 offen lds")
                a("s_branch L_at_whr")
            state.setdefault("ool", []).extend(["L_at_wh0:"] + capture(h0) + ["L_at_wh1:"] + capture(h1))
        for sm in range(4): qp_stage(sm, vn=vns[4], role=role, sidx=4+sm, code=("L", sm))
        a(f"s_add_u32 s{S_CNT}, s{S_CNT}, 1")
        a(f"s_cmp_lt_u32 s{S_CNT}, 3")
        a(f"s_cbranch_scc1 L_at_qploop{sfx}")
    if not roles:
        qp_body(None)
    else:
        a(f"s_cmp_eq_u32 s{S_WAVE}, 1")
        a("s_cbranch_scc1 L_at_qpX")
        a(f"s_cmp_eq_u32 s{S_WAVE}, 3")
        a("s_cbranch_scc1 L_at_qpT")
        qp_body("W")
        a("s_branch L_at_qpjoin")
        a.label("L_at_qpX")
        qp_body("X")
        a("s_branch L_at_qpjoin")
        a.label("L_at_qpT")
        a(f"s_bfe_u32 s{S_A}, s2, 0x20003")
        a(f"s_lshl_b32 s{S_A}, s{S_A}, 3")
        a(f"v_lshrrev_b32 v{V_T0}, 3, v{V_LANE}")
        a(f"v_add_u32 v{V_T0}, s{S_A}, v{V_T0}")
        a(f"v_lshlrev_b32 v{V_T0}, 13, v{V_T0}")
        a(f"v_and_b32 v{V_T1}, 7, v{V_LANE}")
        a(f"v_lshl_add_u32 v{V_T0}, v{V_T1}, 6, v{V_T0}")
        a(f"v_min_u32 v{V_T1}, 27, v{V_LANE}")
        a(f"s_and_b32 s{S_A}, s2, 7")
        a(f"s_mul_i32 s{S_B}, s{S_A}, 28")
        a(f"v_add_u32 v{V_T1}, s{S_B}, v{V_T1}")
        a(f"v_mul_u32_u24 v{V_T1}, 1280, v{V_T1}")
        a(f"s_lshl_b32 s{S_A}, s{S_A}, 10")
        a(f"s_lshl_b32 s{S_B}, s101, 9")
        a(f"s_add_u32 s98, s{S_A}, s{S_B}")
        a(f"s_add_u32 s98, s98, {4*32*8192}")
        a(f"s_bfe_u32 s{S_A}, s2, 0x40003")
        a(f"s_mul_i32 s99, s{S_A}, {224*1280}")
        a(f"s_add_u32 s99, s99, {4*64}")
        qp_body("T")
        a.label("L_at_qpjoin")
    a(f"s_cmp_lg_u32 s{S_PRE}, 0")
    a("s_cbranch_scc1 L_at_qptailB")
    for sm in range(4): qp_stage(sm, dma="KV", last=(sm == 3), vn=(18, 17, 16, 16)[sm], sidx=16+sm, code=("T", sm))
    a("s_branch L_at_qpepi")
    a.label("L_at_qptailB")
    qs_init(S_T)
    a.lds_q = []
    for sm in range(4): qp_stage(sm, dma="QP", last=(sm == 3), vn=18, nok=True, sidx=16+sm, code=("B", sm))
    a.label("L_at_qpepi")
    if qdelay: dly(qdelay, "q")
    st(1)
    if trace:
        a("s_cmp_lg_u32 s2, 5")
        a("s_cbranch_scc1 L_tr_skip")
        a(f"s_cmp_lg_u32 s{S_T}, 0")
        a("s_cbranch_scc1 L_tr_skip")
        a(f"s_cmp_lg_u32 s{S_WAVE}, 0")
        a("s_cbranch_scc1 L_tr_skip")
        a("s_mov_b32 s80, s46"); a("s_mov_b32 s81, s47"); a("s_mov_b32 s82, 256"); a("s_mov_b32 s83, 0x20000")
        a(f"v_lshlrev_b32 v{V_T2}, 2, v{V_LANE}")
        a(f"v_add_u32 v{V_T2}, 128, v{V_T2}")
        a(f"buffer_store_dword v{V_T3}, v{V_T2}, s[80:83], 0 offen")
        a.label("L_tr_skip")
    if defer: a("s_mov_b32 s98, 0x40000000")
    a(f"v_mov_b32 v{V_T2}, s{S_CS}")
    a(f"v_mov_b32 v{V_T3}, s{S_CS}")
    a("s_nop 6")
    TMP = V_S
    for T in range(4):
        if T < 2:
            base = lambda e, qt: V_OK + 28 * (2 * T + e) + 4 * qt
        else:
            base = lambda e, qt: V_OK + 28 * (2 * (T - 2) + e) + 4 * qt
            for e in range(2):
                for qt in range(7):
                    for r in range(4):
                        a(f"v_accvgpr_read_b32 v{base(e,qt)+r}, a{A_OS+28*(2*(T-2)+e)+4*qt+r}")
        for e in range(2):
            for qt in range(7):
                o = base(e, qt)
                for h in range(2):
                    a(f"v_pk_mul_f32 {vr(o+2*h,2)}, {vr(o+2*h,2)}, {vr(V_T2,2)}")
        pk = lambda qt: TMP + 28 * (T & 1) + 4 * qt
        for qt in range(7):
            oe = base(0, qt); oo = base(1, qt); p = pk(qt)
            a(f"v_cvt_pk_bf16_f32 v{p}, v{oe}, v{oe+1}")
            a(f"v_cvt_pk_bf16_f32 v{p+1}, v{oe+2}, v{oe+3}")
            a(f"v_cvt_pk_bf16_f32 v{p+2}, v{oo}, v{oo+1}")
            a(f"v_cvt_pk_bf16_f32 v{p+3}, v{oo+2}, v{oo+3}")
        a("s_nop 1")
        for qt in range(7):
            p = pk(qt)
            a(f"v_permlane16_swap_b32 v{p}, v{p+2}")
            a(f"v_permlane16_swap_b32 v{p+1}, v{p+3}")
        for qt in range(7):
            for r in range(4):
                a(f"v_accvgpr_write_b32 a{A_Q+16*qt+4*T+r}, v{pk(qt)+r}")
    a(f"s_cmp_eq_u32 s{S_PRE}, 0")
    a("s_cbranch_scc1 L_at_nostash")
    a(f"s_mov_b32 s{S_PRE}, 0")
    qstash_off()
    for i in range(7):
        for s_ in range(4):
            a(f"buffer_store_dwordx4 {ar(A_Q+16*i+4*s_,4)}, v{V_T2}, s[{S_W}:{S_W+3}], s{S_C} offen offset:{1024*s_} {qpol}".rstrip())
        if i < 6: a(f"s_add_u32 s{S_C}, s{S_C}, 4096")
    a(f"s_mov_b32 s{S_AS}, 3")
    a("s_branch L_at_round")
    a.label("L_at_nostash")
    a(f"s_cmp_lg_u32 s{S_MP}, 0")
    a("s_cbranch_scc1 L_at_maxpass")
    a.label("L_at_pre")
    if wo6 or wo8 or woff:
        pass
    elif wo2:
        assert inv
        a(f"s_cmp_lg_u32 s{S_WO}, 0")
        a("s_cbranch_scc1 L_at_nowo1a")
        a(f"s_mov_b32 s{S_WO}, {2 if wo5 else 1}")
        a(f"s_mov_b32 s{S_AS}, 0x103")
        if wo5:
            a(f"v_accvgpr_read_b32 v{V_T1}, a249")
            a("s_add_u32 s57, s56, 160")
            a("s_waitcnt vmcnt(24)")
            for t in range(5):
                for v in range(2):
                    a(f"ds_read_b64_tr_b16 {ar(A_LS+4*t+2*v,2)}, v{V_T1} offset:{v*640+t*32}")
            a("s_waitcnt lgkmcnt(0)")
            for i in range(5):
                a(f"s_add_u32 m0, s58, {1024*i}")
                a(f"v_accvgpr_read_b32 v{V_T3}, a{244+i}")
                a(f"buffer_load_dwordx4 v{V_T3}, s[84:87], s57 offen lds")
        else:
            wo_issue(0)
        if not (wo3 or wo4): a("s_branch L_at_nowo1")
        a.label("L_at_nowo1a")
        if not (wo3 or wo4):
            a(f"s_cmp_lg_u32 s{S_WO}, 2")
            a("s_cbranch_scc1 L_at_nowo1")
            a(f"s_cmp_lg_u32 s{S_TY}, 0")
            a("s_cbranch_scc1 L_at_nowo1")
            a(f"s_mov_b32 s{S_WO}, 3")
            a(f"s_mov_b32 s{S_AS}, 0x103")
            wo_finish(1)
    else:
        a(f"s_cmp_lg_u32 s{S_WO}, 1")
        a("s_cbranch_scc1 L_at_nowo1")
        a(f"s_mov_b32 s{S_WO}, 2")
        wo_finish(0)
        wo_issue(1)
    a.label("L_at_nowo1")
    st(2)
    a.lds_q = ["K"]
    state["n"] = 0
    z = []
    for l in range(8):
        for r in range(4):
            z.append(f"v_mov_b32 v{V_OK+28*l+24+r}, 0" if l < 4 else f"v_accvgpr_write_b32 a{A_OS+28*(l-4)+24+r}, 0")
    if ones: z += [f"v_accvgpr_write_b32 a{A_LS+24+r}, 0" for r in range(4)]
    emit(qk_items(0, 0, True, None), z[:16])
    for o in z[16:]: a(o)
    step(0, first=True, dyn=True)
    a(f"s_mov_b32 s{S_CNT}, 0")
    if align:
        a.lines.append(".p2align 6")
        if align == 2: a("s_nop 0")
    a.label("L_at_loop")
    q0 = list(a.lds_q)
    state["inat"] = True
    for jm in (1, 2, 3, 0): step(jm, dyn=(jm in (1, 2)))
    state["inat"] = False
    assert q0 == a.lds_q, (q0, a.lds_q)
    if pstl:
        a("s_memrealtime s[78:79]")
        a("s_memtime s[80:81]")
        a("s_waitcnt lgkmcnt(0)")
        a("s_mov_b32 s76, m0")
        a("s_mov_b32 m0, s77"); a("s_nop 0"); a("v_writelane_b32 v0, s78, m0")
        a("s_add_u32 m0, s77, 30"); a("s_nop 0"); a("v_writelane_b32 v0, s80, m0")
        a("s_add_u32 s77, s77, 1")
        a("s_mov_b32 m0, s76")
    a(f"s_add_u32 s{S_CNT}, s{S_CNT}, 1")
    if wo3:
        assert lp7 and not ones
        a(f"s_lshl3_add_u32 s{S_A}, s{S_WO}, s{S_CNT}")
        a(f"s_cmp_eq_u32 s{S_A}, {8 + wo3}")
        a("s_cbranch_scc1 L_at_wof0")
        a.label("L_at_wof0r")
    a(f"s_cmp_lt_u32 s{S_CNT}, {7 if lp7 else 6}")
    a("s_cbranch_scc1 L_at_loop")
    if wo4 and not wo5:
        assert lp7 and not ones
        a(f"s_cmp_lg_u32 s{S_WO}, 1")
        a("s_cbranch_scc1 L_at_nowoi1")
        a(f"s_mov_b32 s{S_WO}, 2")
        a(f"s_mov_b32 s{S_AS}, 0x102")
        wo_read_a()
        a("s_waitcnt lgkmcnt(0)")
        wo_issue_a(1)
        a.label("L_at_nowoi1")
    if wo3:
        a(f"s_cmp_lg_u32 s{S_WO}, 2")
        a("s_cbranch_scc1 L_at_nowoi1")
        a(f"s_mov_b32 s{S_WO}, 3")
        a(f"s_mov_b32 s{S_AS}, 0x102")
        wo_issue_a(1)
        a.label("L_at_nowoi1")
        ls = capture(lambda: (wo_finish_a(0), a(f"s_mov_b32 s{S_WO}, 2"), a(f"s_mov_b32 s{S_AS}, 0x102"), a("s_branch L_at_wof0r")))
        state.setdefault("ool", []).extend(["L_at_wof0:"] + ls)
    a(f"s_add_u32 s{S_T}, s{S_T}, 1")
    touch_init(S_T)
    assert not (lp7 and early)
    if not lp7:
        step(1, nt_=3); step(2, nt_=2); step(3, tr_=True)
    if strace: a("s_memtime s[62:63]")
    qs_init(S_T)
    if not early and not lp7: step(0)
    def wtouch():
        a(f"s_and_b32 s{S_A}, s2, 127")
        a(f"s_mul_i32 s{S_A}, s{S_A}, {32*1280}")
        a(f"s_mul_i32 s{S_B}, s{S_WAVE}, {80*128}")
        a(f"s_add_u32 s{S_A}, s{S_A}, s{S_B}")
        a(f"v_lshlrev_b32 v{V_T2}, 7, v{V_LANE}")
        a(f"v_and_b32 v{V_T3}, 15, v{V_LANE}")
        a(f"v_lshlrev_b32 v{V_T3}, 7, v{V_T3}")
        a(f"buffer_load_dword a250, v{V_T2}, s[84:87], s{S_A} offen")
        a(f"s_add_u32 s{S_A}, s{S_A}, {64*128}")
        a(f"buffer_load_dword a251, v{V_T3}, s[84:87], s{S_A} offen")
        if wtch in (2, 3):
            a(f"s_mov_b32 s{S_A}, 0x40000000")
            for _ in range(3): a(f"buffer_load_dword a251, v{V_T3}, s[84:87], s{S_A} offen")
            a(f"s_mov_b32 s{S_AS}, {0x103 if wtch == 2 else 0x102}")
    if wtch in (1, 2, 3):
        a(f"s_cmp_eq_u32 s{S_T}, 2")
        a("s_cbranch_scc1 L_at_wt0")
        a.label("L_at_wt0r")
        state.setdefault("ool", []).extend(["L_at_wt0:"] + capture(lambda: (wtouch(), a("s_branch L_at_wt0r"))))
    if wo8:
        assert lp7 and inv
        a(f"s_lshl3_add_u32 s{S_A}, s{S_T}, s{S_WO}")
        a(f"s_cmp_eq_u32 s{S_A}, 16")
        a("s_cbranch_scc1 L_at_w8h0")
        a.label("L_at_w8h0r")
        def h0body():
            a(f"s_mov_b32 s{S_WO}, 1")
            a(f"s_mov_b32 s{S_AS}, 0x102")
            for i in range(5):
                a(f"s_add_u32 m0, s58, {1024*i}")
                a(f"v_accvgpr_read_b32 v{V_T3}, a{244+i}")
                if not wo8 & 16: a(f"buffer_load_dwordx4 v{V_T3}, s[84:87], s56 offen lds")
            a("s_branch L_at_w8h0r")
        state.setdefault("ool", []).extend(["L_at_w8h0:"] + capture(h0body))
    if eep:
        assert not (rflip or defer or ones or early or wo2 or wo8 or touch or kvt2 or stpol0 is not None) and inv and lp7 and wtch in (0, 1)
        a(f"s_mul_i32 s{S_D}, s{S_T}, {2*PAIRB}")
        a(f"s_add_u32 s{S_D}, s{S_D}, s{S_OOFF}")
        a(f"s_sub_u32 s{S_D}, s{S_D}, {2*PAIRB}")
    a(f"s_cmp_lg_u32 s{S_TY}, 0")
    a("s_cbranch_scc1 L_at_atailB")
    n0 = state["n"]; q0 = list(a.lds_q); c0 = state.get("carry")
    if early: step(0, dma="QP")
    tdyn = bool((wo3 or wo4) and not wo5) or bool(wo8) or wtch in (2, 3)
    def h1(tag):
        if wtch == 3:
            a(f"s_cmp_eq_u32 s{S_T}, 2")
            a(f"s_cselect_b32 s{S_AS}, 0x301, s{S_AS}")
        if not wo8: return
        a(f"s_cmp_eq_u32 s{S_WO}, 1")
        a(f"s_cbranch_scc1 L_at_w8h1{tag}")
        a.label(f"L_at_w8h1r{tag}")
        def body():
            a(f"s_mov_b32 s{S_WO}, 2")
            a(f"s_mov_b32 s{S_AS}, 0x101")
            a(f"v_accvgpr_read_b32 v{V_T1}, a249")
            a("s_add_u32 s57, s56, 160")
            a(f"v_lshlrev_b32 v{V_T2}, 4, v{V_LANE}")
            a(f"s_mul_i32 s{S_A}, s2, {40*1024}")
            a(f"s_mul_i32 s{S_B}, s{S_WAVE}, {10*1024}")
            a(f"s_add_u32 s{S_A}, s{S_A}, s{S_B}")
            a(f"s_add_u32 s{S_A}, s{S_A}, {WS_W}")
            if not wo8 & 8: a("s_waitcnt vmcnt(16)")
            for t in range(5):
                for v in range(2):
                    a(f"ds_read_b64_tr_b16 {ar(A_LS+4*t+2*v,2)}, v{V_T1} offset:{v*640+t*32}")
            a("s_waitcnt lgkmcnt(0)")
            for i in range(5):
                a(f"s_add_u32 m0, s58, {1024*i}")
                a(f"v_accvgpr_read_b32 v{V_T3}, a{244+i}")
                if not wo8 & 4: a(f"buffer_load_dwordx4 v{V_T3}, s[84:87], s57 offen lds")
            for f in range(5):
                if f == 4: a(f"s_add_u32 s{S_A}, s{S_A}, 4096")
                if not wo8 & 2: a(f"buffer_store_dwordx4 {ar(A_LS+4*f,4)}, v{V_T2}, s[{S_W}:{S_W+3}], s{S_A} offen offset:{1024*(f&3)} {wpol}".rstrip())
            a(f"s_branch L_at_w8h1r{tag}")
        state.setdefault("ool", []).extend([f"L_at_w8h1{tag}:"] + capture(body))
    ixA0 = len(a.lines)
    step(1, dma="QP", dyn=tdyn); step(2, dma="QP", dyn=tdyn); h1("A"); step(3, dma="QP", last=True, dyn=bool(wo8) or wtch in (2, 3))
    ixA1 = len(a.lines)
    a("s_branch L_at_aepi")
    a.label("L_at_atailB")
    state["n"] = n0; a.lds_q = q0; state["carry"] = c0
    if early: step(0)
    ixB0 = len(a.lines)
    step(1, dyn=tdyn); step(2, dyn=tdyn); h1("B"); step(3, last=True, dyn=bool(wo8) or wtch in (2, 3))
    ixB1 = len(a.lines)
    a.label("L_at_aepi")
    if adelay: dly(adelay, "a")
    a.lds_q = ["V"]
    st(3)
    E = V_S
    red = [f"v_add_f32 v{V_L+2*i}, v{V_L+2*i}, v{V_L+2*i+1}" for i in range(7)]
    red += [f"v_mov_b32 v{E+i}, v{V_L+2*i}" for i in range(7)]
    red += [f"v_permlane16_swap_b32 v{V_L+2*i}, v{E+i}" for i in range(7)]
    red += [f"v_add_f32 v{V_L+2*i}, v{V_L+2*i}, v{E+i}" for i in range(7)]
    red += [f"v_mov_b32 v{E+i}, v{V_L+2*i}" for i in range(7)]
    red += [f"v_permlane32_swap_b32 v{V_L+2*i}, v{E+i}" for i in range(7)]
    red += [f"v_add_f32 v{V_L+2*i}, v{V_L+2*i}, v{E+i}" for i in range(7)]
    a("s_nop 1")
    ixP0 = len(a.lines)
    if eep:
        emit(pv_items(6, 1, False, None), ep_merge(ep_red(6), ep_red(5) + ep_tile(5, eep == 2)))
    elif ones:
        emit(pv_items(6, 1, False, None), [])
        a("s_nop 7")
        for i in range(7): a(f"v_accvgpr_read_b32 v{V_L+2*i}, a{A_LS+4*i}")
    else:
        emit(pv_items(6, 1, False, None), red)
    if not eep:
        for i in range(7): a(f"v_rcp_f32 v{V_CI+4*i}, v{V_L+2*i}")
    a(f"v_add_f32 v{E+2}, v{V_L}, v{V_L+2}")
    a(f"v_add_f32 v{E+3}, v{V_L+4}, v{V_L+6}")
    a(f"v_add_f32 v{E+4}, v{V_L+8}, v{V_L+10}")
    a(f"v_add_f32 v{E+2}, v{E+2}, v{V_L+12}")
    a(f"v_add_f32 v{E+3}, v{E+3}, v{E+4}")
    a(f"v_add_f32 v{E+2}, v{E+2}, v{E+3}")
    a(f"v_cmp_nge_f32 vcc, s{S_THR}, v{E+2}")
    for i in range(7): a(f"v_mov_b32 v{V_L+2*i}, 0xff800000")
    a("s_cmp_eq_u64 vcc, 0")
    a("s_cbranch_scc1 L_at_noflag")
    if nofb: a("s_branch L_at_noflag")
    a(f"s_lshl_b32 s{S_B}, s{S_T}, 2")
    a(f"s_add_u32 s{S_B}, s{S_B}, {LDS_FLAG-4}")
    a(f"v_mov_b32 v{E+2}, s{S_B}")
    a(f"v_mov_b32 v{E+3}, 1")
    a(f"ds_write_b32 v{E+2}, v{E+3}")
    a.label("L_at_noflag")
    if eep:
        for o in ep_tile(6, True): a(o)
    elif rflip:
        a(f"s_sub_u32 s{S_D}, s{S_T}, 1")
        a(f"s_mul_i32 s{S_D}, s{S_D}, s99")
        a(f"s_add_u32 s{S_D}, s{S_D}, s{S_OOFF}")
    else:
        a(f"s_mul_i32 s{S_D}, s{S_T}, {2*PAIRB}")
        a(f"s_add_u32 s{S_D}, s{S_D}, s{S_OOFF}")
        a(f"s_sub_u32 s{S_D}, s{S_D}, {2*PAIRB}")
    if defer:
        a(f"s_cmp_lt_u32 s{S_T}, 2")
        a(f"s_cselect_b32 s99, 1, 0")
        a(f"s_cmp_eq_u32 s{S_TY}, 0")
        a(f"s_cselect_b32 s99, s99, 0")
        a(f"s_cmp_lg_u32 s99, 0")
        a(f"s_cselect_b32 s98, s{S_D}, s98")
    for T in range(0 if eep else 4):
        if T < 2:
            base = lambda e, qt: V_OK + 28 * (2 * T + e) + 4 * qt
        else:
            base = lambda e, qt: V_OK + 28 * (2 * (T - 2) + e) + 4 * qt
            for e in range(2):
                for qt in range(7):
                    for r in range(4):
                        a(f"v_accvgpr_read_b32 v{base(e,qt)+r}, a{A_OS+28*(2*(T-2)+e)+4*qt+r}")
        for e in range(2):
            for qt in range(7):
                o = base(e, qt)
                for h in range(2):
                    a(f"v_pk_mul_f32 {vr(o+2*h,2)}, {vr(o+2*h,2)}, {vr(V_CI+4*qt,2)} op_sel_hi:[1,0]")
        pk = lambda qt: V_S + 28 * (T & 1) + 4 * qt
        for qt in range(7):
            oe = base(0, qt); oo = base(1, qt); p = pk(qt)
            a(f"v_cvt_pk_bf16_f32 v{p}, v{oe}, v{oe+1}")
            a(f"v_cvt_pk_bf16_f32 v{p+1}, v{oe+2}, v{oe+3}")
            a(f"v_cvt_pk_bf16_f32 v{p+2}, v{oo}, v{oo+1}")
            a(f"v_cvt_pk_bf16_f32 v{p+3}, v{oo+2}, v{oo+3}")
        a("s_nop 1")
        for qt in range(7):
            p = pk(qt)
            a(f"v_permlane16_swap_b32 v{p}, v{p+2}")
            a(f"v_permlane16_swap_b32 v{p+1}, v{p+3}")
        if defer:
            a(f"s_cmp_lg_u32 s99, 0")
            a(f"s_cbranch_scc1 L_at_dfr{T}")
        a(f"s_mov_b32 s{S_A}, s{S_D}")
        if stpol0 is not None:
            a(f"s_cmp_ge_u32 s{S_T}, 2")
            a(f"s_cbranch_scc1 L_at_sp1_{T}")
            for qt in range(7):
                a(f"buffer_store_dwordx4 {vr(pk(qt),4)}, v{V_XA}, s[{S_W}:{S_W+3}], s{S_A} offen offset:{1024*T} {stpol0}".rstrip())
                if qt < 6: a(f"s_add_u32 s{S_A}, s{S_A}, 4096")
            a(f"s_branch L_at_sp2_{T}")
            a.label(f"L_at_sp1_{T}")
        for qt in range(7):
            if not nost: a(f"buffer_store_dwordx4 {vr(pk(qt),4)}, v{V_XA}, s[{S_W}:{S_W+3}], s{S_A} offen offset:{1024*T} {stpol}".rstrip())
            if dupst:
                a(f"s_sub_u32 s{S_B}, s{S_A}, {WS_O - 30000000}")
                a(f"buffer_store_dwordx4 {vr(pk(qt),4)}, v{V_XA}, s[72:75], s{S_B} offen offset:{1024*T}")
            if qt < 6: a(f"s_add_u32 s{S_A}, s{S_A}, 4096")
        if stpol0 is not None: a.label(f"L_at_sp2_{T}")
        if defer:
            a(f"s_branch L_at_dfj{T}")
            a.label(f"L_at_dfr{T}")
            for qt in range(7):
                for r in range(4):
                    a(f"v_accvgpr_write_b32 a{A_Q+16*qt+4*T+r}, v{pk(qt)+r}")
            a.label(f"L_at_dfj{T}")
    a("s_nop 1")
    if wo8:
        a(f"s_cmp_lg_u32 s{S_WO}, 2")
        a("s_cbranch_scc1 L_at_nowo2")
        a(f"s_mov_b32 s{S_WO}, 4")
        a(f"v_accvgpr_read_b32 v{V_T1}, a249")
        a(f"v_lshlrev_b32 v{V_T2}, 4, v{V_LANE}")
        a(f"s_mul_i32 s{S_A}, s2, {40*1024}")
        a(f"s_mul_i32 s{S_B}, s{S_WAVE}, {10*1024}")
        a(f"s_add_u32 s{S_A}, s{S_A}, s{S_B}")
        a(f"s_add_u32 s{S_A}, s{S_A}, {WS_W+5120}")
        a("s_waitcnt vmcnt(49)")
        R = V_VF
        for t in range(5):
            for v in range(2):
                a(f"ds_read_b64_tr_b16 {vr(R+4*t+2*v,2)}, v{V_T1} offset:{v*640+t*32}")
        a("s_waitcnt lgkmcnt(0)")
        for f in range(5):
            if f == 4: a(f"s_add_u32 s{S_A}, s{S_A}, 4096")
            a(f"buffer_store_dwordx4 {vr(R+4*f,4)}, v{V_T2}, s[{S_W}:{S_W+3}], s{S_A} offen offset:{1024*(f&3)} {wpol}".rstrip())
        a("s_nop 1")
    elif wo4:
        a(f"s_mov_b32 s{S_AS}, 3")
        a(f"s_cmp_lg_u32 s{S_WO}, 2")
        a("s_cbranch_scc1 L_at_nowo2")
        a(f"s_mov_b32 s{S_WO}, 4")
        a(f"s_mov_b32 s{S_AS}, 0x303")
        if wo5:
            a(f"v_accvgpr_read_b32 v{V_T1}, a249")
            a(f"v_lshlrev_b32 v{V_T2}, 4, v{V_LANE}")
            a(f"s_mul_i32 s{S_A}, s2, {40*1024}")
            a(f"s_mul_i32 s{S_B}, s{S_WAVE}, {10*1024}")
            a(f"s_add_u32 s{S_A}, s{S_A}, s{S_B}")
            a(f"s_add_u32 s{S_A}, s{S_A}, {WS_W}")
            R = V_VF
            for t in range(5):
                for v in range(2):
                    a(f"ds_read_b64_tr_b16 {vr(R+4*t+2*v,2)}, v{V_T1} offset:{v*640+t*32}")
            for f in range(5):
                if f == 4: a(f"s_add_u32 s{S_A}, s{S_A}, 4096")
                a(f"buffer_store_dwordx4 {ar(A_LS+4*f,4)}, v{V_T2}, s[{S_W}:{S_W+3}], s{S_A} offen offset:{1024*(f&3)} {wpol}".rstrip())
            a(f"s_add_u32 s{S_A}, s{S_A}, 1024")
            a("s_waitcnt lgkmcnt(0)")
            for f in range(5):
                if f == 4: a(f"s_add_u32 s{S_A}, s{S_A}, 4096")
                a(f"buffer_store_dwordx4 {vr(R+4*f,4)}, v{V_T2}, s[{S_W}:{S_W+3}], s{S_A} offen offset:{1024*(f&3)} {wpol}".rstrip())
            a("s_nop 1")
        else:
            wo_store_a(0)
            wo_finish(1)
    elif wo2 and not wo3:
        a(f"s_cmp_lg_u32 s{S_WO}, 1")
        a("s_cbranch_scc1 L_at_nowo2a")
        a(f"s_mov_b32 s{S_WO}, 2")
        wo_finish(0)
        wo_issue(1)
        a("s_branch L_at_nowo2")
        a.label("L_at_nowo2a")
    if not wo4 and not wo8 and not woff:
        a(f"s_cmp_lg_u32 s{S_WO}, {3 if wo3 else 2}")
        a("s_cbranch_scc1 L_at_nowo2")
        a(f"s_mov_b32 s{S_WO}, {4 if wo3 else 3}")
        wo_finish(1)
    a.label("L_at_nowo2")
    if not wo4: a(f"s_mov_b32 s{S_AS}, 3")
    if defer:
        a("s_cmp_lg_u32 s99, 0")
        a(f"s_cselect_b32 s{S_AS}, 0, 3")
    st(4)
    a.lds_q = []
    ixP1 = len(a.lines)
    a(f"s_cmp_ge_u32 s{S_T}, 2")
    a("s_cbranch_scc1 L_at_fin")
    a(f"s_cmp_eq_u32 s{S_TY}, 0")
    if eep: a(f"s_mov_b32 s{S_AS}, 0x103")
    a("s_cbranch_scc1 L_at_round")
    if eep:
        a(f"s_mov_b32 s{S_AS}, 0x203")
        a("s_waitcnt vmcnt(@NBQ@)")
    else:
        a(f"s_waitcnt vmcnt({56 if dupst else (33 if wo3 else 38 if wo2 else 28)})")
    a("s_branch L_at_pre")
    if eep:
        def vm(ls):
            out = []
            for k_, l_ in enumerate(ls):
                t_ = l_.strip()
                if t_.startswith("buffer_") or t_.startswith("global_"):
                    out.append("D" if t_.endswith("lds") else "S" if t_.startswith("buffer_store") else "R")
                elif "@LB" in t_: out.append("|")
            return out
        post = vm(a.lines[ixP0:ixP1])
        res = {}
        for nm, i0, i1 in (("A", ixA0, ixA1), ("B", ixB0, ixB1)):
            sq = vm(a.lines[i0:i1]) + post
            bar = sq.index("|"); sq2 = [x for x in sq if x != "|"]
            dpos = [k_ for k_, x in enumerate(sq2) if x == "D"]
            assert len(dpos) == 32 and (nost or sq2.count("S") == 28), (dpos, sq2)
            res["LB" + nm] = bar - (dpos[7] + 1)
            after = lambda k_: len(sq2) - (k_ + 1)
            if nm == "A":
                assert nost or after(dpos[15]) == 44
                res["NA1"] = after(dpos[23]) + 8; res["NA2"] = after(dpos[31]) + 16
            else:
                rpos = [k_ for k_, x in enumerate(sq2) if x == "R"]
                assert len(rpos) == 28 and rpos[-1] > dpos[23]
                res["NBQ"] = after(rpos[-1]); res["NB2"] = after(dpos[31]) + 16
                assert res["NBQ"] <= 44 and res["NBQ"] + 8 <= 44 + 8
            print("eep seq", nm, "".join(sq), file=sys.stderr)
        print("eep counts", res, file=sys.stderr)
        assert all(0 <= v <= 63 for v in res.values())
        state["eepres"] = res
    a.label("L_at_fin")
    if wb == 1:
        a(f"s_cmp_lg_u32 s{S_WAVE}, 0")
        a("s_cbranch_scc1 L_at_nowb")
        a("buffer_wbl2 sc1")
        a.label("L_at_nowb")
    a("s_waitcnt lgkmcnt(0)")
    a("s_barrier")
    flagcheck()
    if pst:
        a("s_memrealtime s[78:79]")
        a("s_memtime s[80:81]")
        a("s_waitcnt lgkmcnt(0)")
        a("s_mov_b32 m0, s77"); a("s_nop 0"); a("v_writelane_b32 v0, s78, m0")
        a("s_add_u32 m0, s77, 30"); a("s_nop 0"); a("v_writelane_b32 v0, s80, m0")
        a("s_getreg_b32 s62, hwreg(HW_REG_XCC_ID)")
        a("v_writelane_b32 v0, s62, 63")
        a(f"v_writelane_b32 v0, s{S_TY}, 62")
        a(f"s_cmp_lg_u32 s{S_WAVE}, 0")
        a("s_cbranch_scc1 L_at_end")
        a("s_lshl_b32 s62, s2, 8"); a("s_add_u32 s62, s62, 50000000")
        a(f"v_lshlrev_b32 v2, 2, v{V_LANE}")
        a(f"buffer_store_dword v0, v2, s[{S_W}:{S_W+3}], s62 offen")
    if stamp:
        a("s_memtime s[56:57]")
        a("s_memrealtime s[58:59]")
        a("s_waitcnt lgkmcnt(0)")
        if allst:
            a("v_mov_b32 v2, s66"); a("v_mov_b32 v3, s58")
            a("s_sub_u32 s62, s56, s64"); a("v_mov_b32 v4, s62")
            a("s_getreg_b32 s62, hwreg(HW_REG_XCC_ID)"); a("v_mov_b32 v5, s62")
            a("s_lshl_b32 s62, s2, 4"); a("s_add_u32 s62, s62, 50000000"); a("v_mov_b32 v6, s62")
            a(f"buffer_store_dwordx4 v[2:5], v6, s[{S_W}:{S_W+3}], 0 offen")
        a(f"s_cmp_lg_u32 s2, {stwg}")
        a("s_cbranch_scc1 L_at_end")
        a("s_sub_u32 s56, s56, s64")
        a("s_sub_u32 s58, s58, s66")
        a("s_mov_b32 s84, s46")
        a("s_mov_b32 s85, s47")
        a("s_mov_b32 s86, 256")
        a("s_mov_b32 s87, 0x20000")
        a("v_mov_b32 v2, s56")
        a("v_mov_b32 v3, s58")
        a(f"s_lshl_b32 s62, s{S_WAVE}, 3")
        a("v_mov_b32 v4, s62")
        a("buffer_store_dwordx2 v[2:3], v4, s[84:87], 0 offen")
        if strace:
            pr = [36, 38, 40, 42, 56, 58, 60, 62]
            for i in range(7):
                a(f"s_sub_u32 s78, s{pr[i+1]}, s{pr[i]}")
                a("v_mov_b32 v2, s78")
                a(f"v_mov_b32 v4, {160+4*i}")
                a("buffer_store_dword v2, v4, s[84:87], 0 offen")
        a("s_sub_u32 s62, s72, s64")
        a("v_mov_b32 v2, s62")
        a(f"v_mov_b32 v4, {DBO+4*5}")
        a("buffer_store_dword v2, v4, s[84:87], 0 offen")
        for k in range(1, 5):
            a(f"s_sub_u32 s62, s{72+2*k}, s{70+2*k}")
            a("v_mov_b32 v2, s62")
            a(f"v_mov_b32 v4, {DBO+4*k}")
            a("buffer_store_dword v2, v4, s[84:87], 0 offen")
    a("s_branch L_at_end")
    for ln in state.get("ool", []): a.lines.append(ln)

    a.label("L_at_fallback")
    a(f"s_sub_u32 s{S_T0}, s{S_T}, 1")
    a(f"s_mov_b32 s{S_NOFB}, s{S_T0}")
    a(f"s_mov_b32 s{S_MP}, 1")
    a(f"s_mov_b32 s{S_TY}, 0")
    a(f"s_mov_b32 s{S_PRE}, 0")
    a(f"s_mov_b32 s{S_AS}, 0")
    if defer: a("s_mov_b32 s98, 0x40000000")
    for i in range(7): a(f"v_mov_b32 v{V_L+2*i}, 0xff800000")
    a("s_waitcnt vmcnt(0) lgkmcnt(0)")
    a("s_barrier")
    a("s_branch L_at_start")
    a.label("L_at_maxpass")
    a(f"s_mov_b32 s{S_MP}, 0")
    a("s_waitcnt lgkmcnt(0)")
    a(f"v_and_b32 v{V_T0}, 15, v{V_LANE}")
    a(f"v_lshlrev_b32 v{V_T0}, 8, v{V_T0}")
    a(f"v_bfe_u32 v{V_T1}, v{V_LANE}, 4, 1")
    a(f"v_lshl_add_u32 v{V_T0}, v{V_T1}, 5, v{V_T0}")
    a(f"v_bfe_u32 v{V_T1}, v{V_LANE}, 5, 1")
    a(f"v_lshl_add_u32 v{V_T2}, v{V_T1}, 4, v{V_T0}")
    a(f"v_add_u32 v{V_T3}, 4096, v{V_T2}")
    a(f"s_lshl_b32 s{S_B}, s{S_T}, 19")
    if rflip: a(f"s_xor_b32 s{S_B}, s{S_B}, s101")
    a(f"s_mov_b32 s{S_CNT}, 0")
    a.label("L_at_mp")
    for f in range(8):
        a(f"buffer_load_dwordx4 {vr(V_VF+4*f,4)}, v{V_T2 + (f>>2)}, s[{S_K}:{S_K+3}], s{S_B} offen offset:{64*(f&3)}")
    a("s_waitcnt vmcnt(0)")
    for i in range(7):
        for f in range(8):
            kt, s = f >> 2, f & 3
            D = vr(V_S + 4 * kt, 4)
            a(f"{MFMA} {D}, {vr(V_VF+4*f,4)}, {ar(A_Q+16*i+4*s,4)}, {'0' if s == 0 else D}")
        a("s_nop 9")
        for r in range(0, 8, 2):
            a(f"v_max3_f32 v{V_L+2*i}, v{V_S+r}, v{V_S+r+1}, v{V_L+2*i}")
        a("s_nop 3")
    a(f"s_add_u32 s{S_B}, s{S_B}, 8192")
    a(f"s_add_u32 s{S_CNT}, s{S_CNT}, 1")
    a(f"s_cmp_lt_u32 s{S_CNT}, 32")
    a("s_cbranch_scc1 L_at_mp")
    a("s_branch L_at_pre")
    a.label("L_at_end")
    a("s_endpgm")
    txt = a.text()
    if eep:
        for k_, v_ in state["eepres"].items(): txt = txt.replace(f"@{k_}@", str(v_))
        assert "@" not in txt
    return txt

if __name__ == "__main__":
    import sys
    name = "fused_kernel"
    opts = dict(x.split("=") for x in sys.argv[2:])
    opts = {k: bool(int(v)) for k, v in opts.items()}
    body = gen_fused(name, **opts)
    out = f"; @launch kernel={name} grid=(256,1,1) block=(256,1,1) lds={LDS_BYTES}\n"
    out += '.amdgcn_target "amdgcn-amd-amdhsa--gfx950"\n.text\n' + kernel_header(name) + body
    out += '.section .rodata,"a"\n.p2align 6\n' + kernel_desc(name, 512, accum=256)
    open(sys.argv[1], "w").write(out)
```

```python
from gen_common import *
NQB = 3584 * 4096 * 2
WS_O = 2 * NQB
WS_BYTES = 4 * NQB + 2 * 4096 * 640 * 2
PAIRB = 224 * 128 * 2
LDS_BYTES = 163840
WST = 40960
BUF = 8192
NQ, NN = 9, 8
MFMA = "v_mfma_f32_16x16x32_bf16"
V_LANE, V_T0, V_T1, V_T2, V_T3, V_LIN, V_BO, V_UW, V_ST = 1, 2, 3, 4, 5, 6, 7, 8, 9
V_D = 10
V_AR = 18
V_ACC = 28
V_A = 60
V_B = 92
S_O, S_WO, S_OUT = 4, 8, 12
S_WAVE, S_CNT, S_A, S_B, S_C, S_BOFF, S_WOFF, S_LDB = 20, 21, 22, 23, 24, 25, 26, 27
S_RB, S_CB, S_BLK, S_GT0 = 28, 29, 30, 31
S_QB = 48
S_PB, S_PD, S_WB, S_CLS, S_T1 = 58, 59, 60, 61, 62
WSTEP = 128 * 1280
def ar(a, n=1):
    return f"a{a}" if n == 1 else f"a[{a}:{a+n-1}]"
def acc(nt, qt):
    i = nt * NQ + qt
    return ar(4 * i, 4) if i < 64 else vr(V_ACC + 4 * (i - 64), 4)

def gen_op2(name, pst=False, opol='', krot=None, wpol='', bpol='', xmap=0, vnx=34, ch2=False, dgrp=5, ramp=False):
    a = Asm()
    a("s_cmp_ge_u32 s2, 256")
    a("s_cbranch_scc1 L_op_end")
    a("s_and_b32 s3, s2, 7")
    a("s_lshl_b32 s3, s3, 5")
    a("s_lshr_b32 s30, s2, 3")
    a("s_add_u32 s3, s3, s30")
    a("s_cmp_ge_u32 s3, 250")
    a("s_cbranch_scc1 L_op_end")
    def pstamp(i):
        if pst:
            a("s_memrealtime s[78:79]")
            a("s_memtime s[80:81]")
            a("s_waitcnt lgkmcnt(0)")
            a(f"v_writelane_b32 v252, s78, {i}")
            a(f"v_writelane_b32 v252, s80, {16+i}")
    if pst: a("v_mov_b32 v252, 0")
    pstamp(0)
    a("s_load_dwordx2 s[36:37], s[0:1], 32")
    a("s_load_dwordx2 s[38:39], s[0:1], 72")
    a("s_load_dwordx2 s[40:41], s[0:1], 80")
    a("s_load_dwordx2 s[44:45], s[0:1], 96")
    a(f"v_and_b32 v{V_LANE}, 63, v0")
    a(f"v_lshrrev_b32 v{V_T0}, 6, v0")
    a("s_nop 0")
    a(f"v_readfirstlane_b32 s{S_WAVE}, v{V_T0}")
    a(f"s_mul_i32 s{S_RB}, s3, 13108")
    a(f"s_lshr_b32 s{S_RB}, s{S_RB}, 16")
    a(f"s_mul_i32 s{S_A}, s{S_RB}, 5")
    a(f"s_sub_u32 s{S_CB}, s3, s{S_A}")
    a(f"s_mov_b32 s{S_CLS}, s{S_RB}")
    a(f"s_cmp_ge_u32 s{S_RB}, 25")
    a(f"s_cselect_b32 s{S_BLK}, 1, 0")
    a(f"s_cselect_b32 s{S_A}, 25, 0")
    a(f"s_sub_u32 s{S_RB}, s{S_RB}, s{S_A}")
    a(f"s_mul_i32 s{S_GT0}, s{S_RB}, {NQ}")
    a(f"s_lshl_b32 s{S_C}, s{S_WAVE}, 10")
    a(f"s_add_u32 s{S_C}, s{S_C}, {WS_O}")
    a(f"s_mul_i32 s{S_B}, s{S_BLK}, {16*32*PAIRB}")
    a(f"s_add_u32 s{S_C}, s{S_C}, s{S_B}")
    for qt in range(NQ):
        a(f"s_add_u32 s{S_A}, s{S_GT0}, {qt}")
        a(f"s_mul_i32 s{S_B}, s{S_A}, 4682")
        a(f"s_lshr_b32 s{S_B}, s{S_B}, 16")
        a(f"s_mul_i32 s{S_T1}, s{S_B}, {32*PAIRB - 14*4096}")
        a(f"s_lshl_b32 s{S_QB+qt}, s{S_A}, 12")
        a(f"s_add_u32 s{S_QB+qt}, s{S_QB+qt}, s{S_T1}")
        a(f"s_add_u32 s{S_QB+qt}, s{S_QB+qt}, s{S_C}")
        if qt == NQ - 1:
            a(f"s_cmp_ge_u32 s{S_A}, 224")
            a(f"s_cselect_b32 s{S_T1}, 0x40000000, 0")
            a(f"s_add_u32 s{S_QB+qt}, s{S_QB+qt}, s{S_T1}")
    a(f"v_lshlrev_b32 v{V_LIN}, 4, v{V_LANE}")
    a(f"v_lshrrev_b32 v{V_T0}, 4, v{V_LANE}")
    a(f"v_and_b32 v{V_T1}, 15, v{V_LANE}")
    a(f"v_lshlrev_b32 v{V_T2}, 1, v{V_T0}")
    a(f"v_xor_b32 v{V_T1}, v{V_T1}, v{V_T2}")
    a(f"v_lshlrev_b32 v{V_T1}, 4, v{V_T1}")
    a(f"v_mul_u32_u24 v{V_T2}, 1280, v{V_T0}")
    a(f"v_add_u32 v{V_T3}, v{V_T2}, v{V_T1}")
    a(f"v_xor_b32 v{V_T1}, 128, v{V_T1}")
    a(f"v_add_u32 v{V_T2}, v{V_T2}, v{V_T1}")
    for i in range(8):
        src = V_T3 if ((i >> 1) & 1) == 0 else V_T2
        a(f"v_add_u32 v{V_D+i}, {5120*i - 1024*(i&3)}, v{src}")
    a(f"s_mul_i32 s{S_LDB}, s{S_WAVE}, {WST}")
    a("s_waitcnt lgkmcnt(0)")
    a(f"s_cmp_lg_u32 s{S_BLK}, 0")
    a(f"s_cselect_b32 s{S_WO}, s38, s36")
    a(f"s_cselect_b32 s{S_WO+1}, s39, s37")
    a(f"s_mov_b32 s{S_WO+2}, {4096*640*2}")
    a(f"s_mov_b32 s{S_WO+3}, 0x20000")
    a(f"s_mov_b32 s{S_O}, s44")
    a(f"s_mov_b32 s{S_O+1}, s45")
    a(f"s_mov_b32 s{S_O+2}, {WS_BYTES}")
    a(f"s_mov_b32 s{S_O+3}, 0x20000")
    a(f"s_mov_b32 s{S_OUT}, s40")
    a(f"s_mov_b32 s{S_OUT+1}, s41")
    a(f"s_mov_b32 s{S_OUT+2}, {3584*1280*2}")
    a(f"s_mov_b32 s{S_OUT+3}, 0x20000")
    a(f"s_mul_i32 s{S_A}, s{S_WAVE}, {32*1280}")
    a(f"s_lshl_b32 s{S_B}, s{S_CB}, 8")
    a(f"s_add_u32 s{S_WOFF}, s{S_A}, s{S_B}")
    a(f"s_mov_b32 s{S_BOFF}, 0")
    def knext(P, OFF, BASE, stride):
        gs, lag, mode = krot
        ls = [f"s_add_u32 s{P}, s{P}, 1"]
        if gs: ls += [f"s_lshr_b32 s{S_T1}, s{P}, {gs}", f"s_sub_u32 s{S_T1}, s{S_T1}, s{S_CLS}"]
        else: ls += [f"s_sub_u32 s{S_T1}, s{P}, s{S_CLS}"]
        ls += [f"s_and_b32 s{S_T1}, s{S_T1}, 3",
               f"s_cselect_b32 s{S_T1}, {lag}, 0",
               f"s_sub_u32 s{S_T1}, s{P}, s{S_T1}",
               f"s_and_b32 s{S_T1}, s{S_T1}, 31",
               f"s_mul_i32 s{OFF}, s{S_T1}, {stride}"]
        if BASE is not None: ls += [f"s_add_u32 s{OFF}, s{OFF}, s{BASE}"]
        return ls
    if krot:
        a(f"s_add_u32 s{S_CLS}, s{S_CLS}, s{S_CB}")
        a(f"s_and_b32 s{S_CLS}, s{S_CLS}, 3")
        a(f"s_mov_b32 s{S_WB}, s{S_WOFF}")
        a(f"s_mov_b32 s{S_PB}, -1")
        a(f"s_mov_b32 s{S_PD}, -1")
        for ln in knext(S_PB, S_BOFF, None, PAIRB): a(ln)
        for ln in knext(S_PD, S_WOFF, S_WB, WSTEP): a(ln)
    a(f"v_add_u32 v{V_BO}, s{S_BOFF}, v{V_LIN}")

    def bloads(buf):
        ls = []
        for qt in range(NQ):
            ls.append(f"buffer_load_dwordx4 {vr(V_B+36*buf+4*qt,4)}, v{V_BO}, s[{S_O}:{S_O+3}], s{S_QB+qt} offen {bpol}".rstrip())
        if krot:
            ls += knext(S_PB, S_BOFF, None, PAIRB)
            ls.append(f"v_add_u32 v{V_BO}, s{S_BOFF}, v{V_LIN}")
        else:
            ls.append(f"v_add_u32 v{V_BO}, {PAIRB}, v{V_BO}")
        return ls
    def dmas(buf):
        ls = []
        for i in range(8):
            if i & 3 == 0:
                ls.append(f"s_add_u32 m0, s{S_LDB}, {buf*BUF+4096*(i>>2)}")
                ls.append("s_nop 0")
            ls.append(f"buffer_load_dwordx4 v{V_D+i}, s[{S_WO}:{S_WO+3}], s{S_WOFF} offen offset:{1024*(i&3)} {wpol+' ' if wpol else ''}lds")
        if krot: ls += knext(S_PD, S_WOFF, S_WB, WSTEP)
        else: ls.append(f"s_add_u32 s{S_WOFF}, s{S_WOFF}, {WSTEP}")
        return ls
    def areads(nt, buf):
        return [f"ds_read_b64_tr_b16 {vr(V_A+4*nt+2*v,2)}, v{V_AR+nt} offset:{buf*BUF+v*1024}" for v in range(2)]

    if ch2 and ramp:
        for ln in dmas(0): a(ln)
        for ln in bloads(0): a(ln)
        for ln in dmas(1): a(ln)
    elif ch2:
        for ln in dmas(0) + dmas(1): a(ln)
        for ln in bloads(0) + bloads(1): a(ln)
        for ln in dmas(2) + dmas(3): a(ln)
    else:
        for ln in dmas(0): a(ln)
        for ln in bloads(0): a(ln)
        for ln in dmas(1): a(ln)
    a(f"v_lshrrev_b32 v{V_T0}, 4, v{V_LANE}")
    a(f"v_bfe_u32 v{V_T1}, v{V_LANE}, 2, 2")
    a(f"v_lshl_add_u32 v{V_T2}, v{V_T0}, 3, v{V_T1}")
    a(f"v_lshlrev_b32 v{V_T2}, 8, v{V_T2}")
    a(f"v_and_b32 v{V_T0}, 1, v{V_T0}")
    a(f"v_lshl_add_u32 v{V_T1}, v{V_T0}, 2, v{V_T1}")
    a(f"v_lshl_add_u32 v{V_T2}, v{V_T1}, 5, v{V_T2}")
    a(f"v_and_b32 v{V_T1}, 3, v{V_LANE}")
    a(f"v_lshl_add_u32 v{V_T2}, v{V_T1}, 3, v{V_T2}")
    a(f"v_add_u32 v{V_T2}, s{S_LDB}, v{V_T2}")
    for t in range(8):
        a(f"v_xor_b32 v{V_AR+t}, {32*t}, v{V_T2}")
    a(f"v_add_u32 v{V_UW}, s{S_LDB}, v{V_LIN}")
    a(f"v_bfe_u32 v{V_T2}, v{V_LANE}, 4, 1")
    a(f"v_lshlrev_b32 v{V_T2}, 5, v{V_T2}")
    a(f"v_and_b32 v{V_T0}, 15, v{V_LANE}")
    a(f"v_mul_u32_u24 v{V_T0}, 2560, v{V_T0}")
    a(f"v_add_u32 v{V_T0}, v{V_T0}, v{V_T2}")
    a(f"v_bfe_u32 v{V_T2}, v{V_LANE}, 5, 1")
    a(f"v_lshl_add_u32 v{V_ST}, v{V_T2}, 4, v{V_T0}")
    a(f"s_lshl_b32 s{S_A}, s{S_WAVE}, 11")
    a(f"v_add_u32 v{V_T0}, s{S_A}, v{V_LIN}")
    a(f"v_add_u32 v{V_T1}, {WST}, v{V_T0}")
    a(f"v_add_u32 v{V_T2}, {2*WST}, v{V_T0}")
    a(f"v_add_u32 v{V_T3}, {3*WST}, v{V_T0}")
    a(f"s_mul_i32 s{S_A}, s{S_RB}, {144*2560}")
    a(f"s_mul_i32 s{S_B}, s{S_BLK}, 1280")
    a(f"s_add_u32 s{S_A}, s{S_A}, s{S_B}")
    a(f"s_lshl_b32 s{S_B}, s{S_CB}, 8")
    a(f"s_add_u32 s{S_C}, s{S_A}, s{S_B}")
    def areads2(nt, p, dst=None):
        base = V_A + 8 * (nt & 3) if dst is None else dst
        return [f"ds_read_b64_tr_b16 {vr(base+4*k+2*v,2)}, v{V_AR+nt} offset:{(2*p+k)*BUF+v*1024}" for k in range(2) for v in range(2)]
    if ch2 and not ramp:
        a("s_waitcnt vmcnt(34)")
        for nt in range(4):
            for ln in areads2(nt, 0): a(ln)
    else:
        a("s_waitcnt vmcnt(17)")
        for nt in range(NN):
            for ln in areads(nt, 0): a(ln)

    def uwrite(u, ul):
        P, qt = u // NQ, u % NQ
        return [f"ds_write_b128 v{V_UW}, {acc(2*P+e, qt)} offset:{ul*2048+1024*e}" for e in range(2)]

    def iteration(im, first=False, groups=None, vn=34, last=False):
        if vn == 34: vn = vnx
        a(f"s_waitcnt vmcnt({vn}) lgkmcnt(12)")
        if groups is None: groups = [("B", (im + 3) & 3), ("D", im)]
        fq = []
        for kind, buf in groups:
            fq += [(1 if kind == "B" else 2 * NQ + 1, ln) for ln in (bloads(buf) if kind == "B" else dmas(buf))]
        if last:
            for u in range(20):
                P, qt = u // NQ, u % NQ
                for ln in uwrite(u, u): fq.append(((2 * P + 1) * NQ + qt + 1 + 8, ln))
        j = 0
        for nt in range(NN):
            for qt in range(NQ):
                if nt == 2 and qt == 0: a(f"s_waitcnt lgkmcnt({0 if last else 4})")
                c = "0" if first else acc(nt, qt)
                a(f"{MFMA} {acc(nt, qt)}, {vr(V_A+4*nt,4)}, {vr(V_B+36*im+4*qt,4)}, {c}")
                j += 1
                if qt == NQ - 1 and not last:
                    for ln in areads(nt, (im + 1) & 3): a(ln)
                elif fq and fq[0][0] <= j:
                    a(fq.pop(0)[1])
        for _, ln in fq: a(ln)
    def super_it(S, first=False, doB=True, doD=True, last=False, vtop=16):
        p = S & 1; pn = p ^ 1
        a(f"s_waitcnt vmcnt({vtop}) lgkmcnt(12)")
        fq = []
        if last:
            for nt in range(4, 8):
                for ln in areads2(nt, p, V_B + 36 * 2 * pn + 8 * (nt - 4)): fq.append((1, ln))
            for u in range(20):
                P, qt = u // NQ, u % NQ
                for ln in uwrite(u, u): fq.append((max(2 * ((2 * P + 1) * NQ + qt + 1) + 8, 2 * 2 * NQ + 1), ln))
        if doB: fq += [(1, ln) for ln in bloads(2 * pn) + bloads(2 * pn + 1)]
        if doD: fq += [(2 * NQ * dgrp + 1, ln) for ln in dmas(2 * p) + dmas(2 * p + 1)]
        j = 0
        for nt in range(NN):
            if nt > 0:
                if last:
                    if nt == 1: a("s_waitcnt lgkmcnt(15)")
                    if nt == 2: a("s_waitcnt lgkmcnt(0)")
                elif nt == dgrp and doD: a(f"s_waitcnt lgkmcnt({4 * (dgrp - 4)})")
                else: a("s_waitcnt lgkmcnt(12)")
            Ab = V_A + 8 * (nt & 3)
            if last and nt >= 4: Ab = V_B + 36 * 2 * pn + 8 * (nt - 4)
            for qt in range(NQ):
                for k in range(2):
                    c = "0" if (first and k == 0) else acc(nt, qt)
                    a(f"{MFMA} {acc(nt, qt)}, {vr(Ab+4*k,4)}, {vr(V_B+36*(2*p+k)+4*qt,4)}, {c}")
                    j += 1
                    if qt == NQ - 1 and k == 1 and not last:
                        if nt == 4: a(f"s_waitcnt vmcnt({18 if doB else 0})")
                        for ln in (areads2(nt + 4, p) if nt < 4 else areads2(nt - 4, pn)): a(ln)
                    elif fq and fq[0][0] <= j:
                        a(fq.pop(0)[1])
        for _, ln in fq: a(ln)
    pstamp(1)
    if ch2:
        assert not krot and 5 <= dgrp <= 6
        if ramp:
            a("s_waitcnt vmcnt(0) lgkmcnt(12)")
            fq = bloads(1) + dmas(2) + dmas(3) + bloads(2) + bloads(3)
            for nt in range(NN):
                if nt == 2: a("s_waitcnt lgkmcnt(4)")
                for qt in range(NQ):
                    a(f"{MFMA} {acc(nt, qt)}, {vr(V_A+4*nt,4)}, {vr(V_B+4*qt,4)}, 0")
                    if qt == NQ - 1:
                        for ln in areads(nt, 1): a(ln)
                    elif fq: a(fq.pop(0))
            assert not fq
            a("s_waitcnt vmcnt(34) lgkmcnt(12)")
            fq = dmas(0) + dmas(1)
            for nt in range(NN):
                if nt == 2: a("s_waitcnt lgkmcnt(4)")
                for qt in range(NQ):
                    a(f"{MFMA} {acc(nt, qt)}, {vr(V_A+4*nt,4)}, {vr(V_B+36+4*qt,4)}, {acc(nt, qt)}")
                    if qt == NQ - 1 and (nt & 1):
                        if nt == 1: a("s_waitcnt vmcnt(18)")
                        for ln in areads2(nt >> 1, 1): a(ln)
                    elif fq and nt >= 2: a(fq.pop(0))
            assert not fq
        else:
            super_it(0, first=True)
        super_it(1)
        a(f"s_mov_b32 s{S_CNT}, 0")
        a.label("L_op_loop")
        super_it(2); super_it(3)
        a(f"s_add_u32 s{S_CNT}, s{S_CNT}, 1")
        a(f"s_cmp_lt_u32 s{S_CNT}, 6")
        a("s_cbranch_scc1 L_op_loop")
        super_it(14, doD=False)
        super_it(15, doB=False, doD=False, last=True, vtop=0)
    else:
      iteration(0, first=True, groups=[("B", 1), ("D", 2), ("B", 2)], vn=0)
      iteration(1, groups=[("D", 3), ("B", 3), ("D", 0)], vn=9)
      iteration(2, groups=[("B", 0), ("D", 1), ("B", 1)], vn=17)
      iteration(3, groups=[("D", 2), ("B", 2), ("D", 3)], vn=26)
      a(f"s_mov_b32 s{S_CNT}, 0")
      a.label("L_op_loop")
      for im in range(4): iteration(im)
      a(f"s_add_u32 s{S_CNT}, s{S_CNT}, 1")
      a(f"s_cmp_lt_u32 s{S_CNT}, 6")
      a("s_cbranch_scc1 L_op_loop")
      iteration(0, groups=[("B", 3)])
      iteration(1, groups=[], vn=26)
      iteration(2, groups=[], vn=9)
      iteration(3, groups=[], vn=0, last=True)
    pstamp(2)
    R0 = V_A
    def rreads(nk):
        for k in range(nk):
            for src in range(4):
                va = V_T0 + src
                for e in range(2):
                    a(f"ds_read_b128 {vr(R0+32*k+8*src+4*e,4)}, v{va} offset:{k*8192+1024*e}")
    def rproc(k, ubase):
        R = R0 + 32 * k
        ls = []
        for h in range(4):
            ls.append(f"v_pk_add_f32 {vr(R+2*h,2)}, {vr(R+2*h,2)}, {vr(R+8+2*h,2)}")
            ls.append(f"v_pk_add_f32 {vr(R+16+2*h,2)}, {vr(R+16+2*h,2)}, {vr(R+24+2*h,2)}")
        for h in range(4):
            ls.append(f"v_pk_add_f32 {vr(R+2*h,2)}, {vr(R+2*h,2)}, {vr(R+16+2*h,2)}")
        for h in range(4):
            ls.append(f"v_cvt_pk_bf16_f32 v{R+8+h}, v{R+2*h}, v{R+2*h+1}")
        ls.append(f"s_add_u32 s{S_A}, s{S_WAVE}, {ubase+4*k}")
        ls.append(f"s_mul_i32 s{S_B}, s{S_A}, 7282")
        ls.append(f"s_lshr_b32 s{S_B}, s{S_B}, 16")
        ls.append(f"v_permlane16_swap_b32 v{R+8}, v{R+10}")
        ls.append(f"v_permlane16_swap_b32 v{R+9}, v{R+11}")
        ls.append(f"s_mul_i32 s{S_T1}, s{S_B}, {NQ}")
        ls.append(f"s_sub_u32 s{S_A}, s{S_A}, s{S_T1}")
        ls.append(f"s_mul_i32 s{S_T1}, s{S_A}, {16*2560}")
        ls.append(f"s_lshl_b32 s{S_B}, s{S_B}, 6")
        ls.append(f"s_add_u32 s{S_T1}, s{S_T1}, s{S_B}")
        ls.append(f"s_add_u32 s{S_T1}, s{S_T1}, s{S_C}")
        ls.append(f"s_add_u32 s{S_A}, s{S_A}, s{S_GT0}")
        ls.append(f"s_cmp_ge_u32 s{S_A}, 224")
        ls.append(f"s_cselect_b32 s{S_B}, 0x40000000, 0")
        ls.append(f"s_add_u32 s{S_T1}, s{S_T1}, s{S_B}")
        ls.append(f"buffer_store_dwordx4 {vr(R+8,4)}, v{V_ST}, s[{S_OUT}:{S_OUT+3}], s{S_T1} offen {opol}".rstrip())
        return ls
    a("s_waitcnt lgkmcnt(0)")
    a("s_barrier")
    rreads(5)
    a("s_waitcnt lgkmcnt(0)")
    a("s_barrier")
    wr = []
    for u in range(20, 36): wr += uwrite(u, u - 20)
    pr = []
    for k in range(5): pr += rproc(k, 0)
    step = max(1, len(pr) // len(wr))
    for i, ln in enumerate(pr):
        if i % step == 0 and wr: a(wr.pop(0))
        a(ln)
    for ln in wr: a(ln)
    a("s_waitcnt lgkmcnt(0)")
    a("s_barrier")
    rreads(4)
    for k in range(4):
        a(f"s_waitcnt lgkmcnt({min(15, 8*(3-k))})")
        for ln in rproc(k, 20): a(ln)
    if pst:
        pstamp(3)
        a("s_getreg_b32 s62, hwreg(HW_REG_XCC_ID)")
        a("v_writelane_b32 v252, s62, 63")
        a(f"s_cmp_lg_u32 s{S_WAVE}, 0")
        a("s_cbranch_scc1 L_op_end")
        a("s_lshl_b32 s62, s2, 8"); a("s_add_u32 s62, s62, 50065536")
        a(f"v_lshlrev_b32 v2, 2, v{V_LANE}")
        a(f"buffer_store_dword v252, v2, s[{S_O}:{S_O+3}], s62 offen")
    a.label("L_op_end")
    a("s_endpgm")
    return a.text()
```

```python
from gen_common import *
import sys
import math

NQB = 3584 * 4096 * 2
WS_O = 2 * NQB
WS_W = 4 * NQB
WS_BYTES = 4 * NQB + 2 * 4096 * 640 * 2
PAIRB = 224 * 128 * 2

TILE = 8448
RING = 4
AREA = RING * TILE
LDS_BYTES = 163840
LDS_FLAG = 2 * AREA + 1024
LDS_FLAG = 2 * AREA + 8416

def kpad(i): return 1024 * i + 16 * ((i & 1) + 4 * (i >> 1))

V_LANE, V_T0, V_T1, V_T2, V_T3, V_LIN, V_DMA = 1, 2, 3, 4, 5, 6, 7
V_KA, V_VA, V_XA, V_WA = 8, 9, 10, 11
V_L = 12
V_QD, V_BA = 26, 27
V_CI = 28
V_KF = 56
V_S = 88
V_P = 104
V_VF = 112
V_OK = 144
A_Q = 0
A_OS = 112
A_LS = 224
A_ONE = 252
S_LD, S_K, S_W, S_QP = 4, 8, 12, 16
S_WAVE, S_T, S_CNT, S_NOFB, S_OOFF, S_MP, S_T0 = 20, 21, 22, 23, 24, 25, 27
S_A, S_B, S_C, S_D = 28, 29, 30, 31
S_THR, S_LDB, S_DJ, S_PJ, S_QH, S_DOFF = 32, 33, 34, 35, 48, 49
S_QS, S_QSTEP, S_QRND, S_MSTEP, S_CS = 50, 51, 52, 53, 54
S_TAB = 88
S_AS, S_TY, S_PRE, S_WO = 68, 69, 70, 71
MFMA = "v_mfma_f32_16x16x32_bf16"
def ar(a, n=1):
    return f"a{a}" if n == 1 else f"a[{a}:{a+n-1}]"

def gen_fused(name, nt=True, stamp=False, nofb=False, noload=False, nost=False, nox=False, now=False, st0=False, touch=False, kvt=False, kvtnt=False, nowo=False, tnt=False, qnt=False, wont=False, trace=False, DBO=64, ones=False, strace=False, xmem=0, xmfma=0, delay=0, tymask=1, stwg=4, roll=False, bulk0=True, wsbase=0, rot=True, rsh=1, dupst=False, allst=False, align=0, roles=False, fakex=False, early=False, qdelay=0, adelay=0, kvpol=None, xf=False, pst=False, kvl2=False, xq=False, pstl=False, kv0=False, qpnl=False, cpf=0, cpflate=False, qps=False, tymode=0, tyinv=False, xswap=False, qnrd=False, qnbar=False, qbar=7, qd0=9, qdstep=6, kvrot=0, kvgs=11, kvt2=0, kvts=64, tper=1, tpol='', tlbw=0, rflip=0, stpol='', defer=False, dpol='', dnp=3, wpol='', qpol='', anbar=False, anrd=False, anva='', ansu=False, cpf2=0, cpfo=0, pro1=0, rotn=4, spread='', dsl='1234', lp7=False, inv=False, wo2=False, wo3=0, wo4=0, wo5=0, wtl=0, wo6='', wo8=0, stpol0=None, wb=0, woff=False, wtch=0, eep=0, qch2=False, qkrev=False):
    a = Asm()
    if spread: early = True
    if wo6: wo5 = 2
    if wo5: wo4 = 2
    if wo3 or wo4: wo2 = True
    NT = " nt" if nt else ""
    if kvpol: NT = " " + kvpol
    if pst: a("s_memrealtime s[74:75]")
    a("s_cmp_ge_u32 s2, 256")
    a("s_cbranch_scc1 L_at_end")
    if cpf:
        a("s_getpc_b64 s[72:73]")
        a.label("L_pc0")
        a(f"s_mov_b32 s74, L_code_end - L_pc0")
        a("s_mov_b32 s75, 0x20000")
        a("v_lshlrev_b32 v105, 6, v0")
        if not cpflate:
          for k in range(cpf // 16):
            a(f"s_mov_b32 s76, {k*16384}")
            a("buffer_load_dword v104, v105, s[72:75], s76 offen")
    a("s_and_b32 s3, s2, 7")
    a("s_lshl_b32 s3, s3, 5")
    a("s_lshr_b32 s36, s2, 6")
    a("s_lshl_b32 s36, s36, 3")
    a("s_or_b32 s3, s3, s36")
    a("s_bfe_u32 s36, s2, 0x30003")
    a("s_or_b32 s2, s3, s36")
    if xswap: a("s_xor_b32 s2, s2, 32"); a("s_nop 0")
    a("s_load_dwordx8 s[36:43], s[0:1], 0")
    a("s_load_dwordx8 s[56:63], s[0:1], 40")
    a("s_load_dwordx2 s[44:45], s[0:1], 96")
    a("s_load_dwordx2 s[84:85], s[0:1], 32")
    a("s_load_dwordx2 s[86:87], s[0:1], 72")
    if cpf2:
        a("s_getpc_b64 s[72:73]")
        a.label("L_pc0")
        a("v_lshlrev_b32 v105, 7, v0")
        for k in range(cpf2):
            a(f"v_add_u32 v104, {cpfo + k*32768}, v105")
            a("v_min_u32 v104, L_code_end - L_pc0 - 4, v104")
            a("v_mov_b32 v107, s73")
            a("v_add_co_u32 v106, vcc, s72, v104")
            a("v_addc_co_u32 v107, vcc, 0, v107, vcc")
            a(f"global_load_dword v108, v[106:107], off")
    a(f"v_and_b32 v{V_LANE}, 63, v0")
    a(f"v_lshrrev_b32 v{V_T0}, 6, v0")
    a("s_nop 0")
    a(f"v_readfirstlane_b32 s{S_WAVE}, v{V_T0}")
    a("s_waitcnt lgkmcnt(0)")
    a(f"s_and_b32 s{S_QH}, s{S_WAVE}, 1")
    a(f"s_lshr_b32 s{S_PJ}, s{S_WAVE}, 1")
    a("s_cmp_ge_u32 s2, 128")
    for k in range(8):
        a(f"s_cselect_b32 s{36+k}, s{56+k}, s{36+k}")
    a("s_cselect_b32 s84, s86, s84")
    a("s_cselect_b32 s85, s87, s85")
    a(f"s_mov_b32 s86, {4096*640*2}")
    a("s_mov_b32 s87, 0x20000")
    a(f"s_and_b32 s{S_A}, s2, 127")
    a(f"s_lshl_b32 s{S_B}, s{S_A}, 20")
    a(f"s_lshl_b32 s{S_C}, s{S_PJ}, 18")
    a(f"s_add_u32 s{S_B}, s{S_B}, s{S_C}")
    a(f"s_add_u32 s38, s38, s{S_B}")
    a("s_addc_u32 s39, s39, 0")
    a(f"s_add_u32 s40, s40, s{S_B}")
    a("s_addc_u32 s41, s41, 0")
    a(f"s_sub_u32 s{S_C}, 0x100000, s{S_C}")
    a(f"s_mov_b32 s{S_K}, s38")
    a(f"s_mov_b32 s{S_K+1}, s39")
    a(f"s_mov_b32 s{S_K+2}, s{S_C}")
    a(f"s_mov_b32 s{S_K+3}, 0x20000")
    a(f"s_cmp_eq_u32 s{S_QH}, 0")
    a(f"s_cselect_b32 s{S_LD}, s38, s40")
    a(f"s_cselect_b32 s{S_LD+1}, s39, s41")
    a(f"s_mov_b32 s{S_LD+2}, {'0' if kv0 else 's'+str(S_C)}")
    a(f"s_mov_b32 s{S_LD+3}, 0x20000")
    if xf:
        a(f"s_add_u32 s36, s44, {4*NQB + 2*4096*640*2}")
        a("s_addc_u32 s37, s45, 0")
        a(f"s_cmp_eq_u32 s{S_QH}, 0")
    a(f"s_cselect_b32 s{S_QP}, s42, s36")
    a(f"s_cselect_b32 s{S_QP+1}, s43, s37")
    a(f"s_mov_b32 s{S_A}, {0 if now else 640*4096*2}")
    a(f"s_mov_b32 s{S_B}, {0 if nox else (2*3584*640*2 if xf else 3584*640*2)}")
    a(f"s_cselect_b32 s{S_QP+2}, s{S_A}, s{S_B}")
    a(f"s_mov_b32 s{S_QP+3}, 0x20000")
    a(f"s_mov_b32 s{S_A}, {32*8192}")
    a(f"s_mov_b32 s{S_B}, {7168 if (fakex or xf) else 64}")
    a(f"s_cselect_b32 s{S_QSTEP}, s{S_A}, s{S_B}")
    a(f"s_cselect_b32 s{S_QRND}, 512, 0")
    if qch2:
        assert xq and qps and not (xf or fakex or roll or roles or touch or defer or wo2 or wo8 or kvt2 or eep)
        a(f"s_cselect_b32 s46, 128, 64")
    a(f"s_mov_b32 s{S_A}, 1056")
    a(f"s_mov_b32 s{S_B}, 1024")
    a(f"s_cselect_b32 s{S_MSTEP}, s{S_A}, s{S_B}")
    for i in range(8):
        a(f"s_mov_b32 s{S_A}, {((i&3)+8*(i>>2))*8192}")
        a(f"s_mov_b32 s{S_B}, {(1024*i if (fakex or xf) else 20480*i) if i < 7 else 0x40000000}")
        a(f"s_cselect_b32 s{S_TAB+i}, s{S_A}, s{S_B}")
    a(f"s_and_b32 s{S_A}, s2, 7")
    a(f"s_lshl_b32 s{S_A}, s{S_A}, 2")
    a(f"s_add_u32 s{S_A}, s{S_A}, s{S_PJ}")
    a(f"s_lshl_b32 s{S_A}, s{S_A}, 8")
    a(f"s_bfe_u32 s{S_B}, s2, {0x50003 if xf else 0x40003}")
    a(f"s_lshl_b32 s{S_B}, s{S_B}, 1")
    a(f"s_add_u32 s{S_B}, s{S_B}, s{S_PJ}")
    a(f"s_mul_i32 s{S_B}, s{S_B}, {112*1280}")
    a(f"s_cmp_eq_u32 s{S_QH}, 0")
    a(f"s_cselect_b32 s55, s{S_A}, s{S_B}")
    a(f"s_add_u32 s{S_W}, s44, {wsbase}")
    a(f"s_addc_u32 s{S_W+1}, s45, 0")
    a(f"s_mov_b32 s{S_W+2}, {WS_BYTES}")
    a(f"s_mov_b32 s{S_W+3}, 0x20000")
    a(f"s_lshl_b32 s{S_A}, s2, 2")
    a(f"s_add_u32 s{S_A}, s{S_A}, s{S_PJ}")
    a(f"s_mul_i32 s{S_OOFF}, s{S_A}, {PAIRB}")
    a(f"s_mul_i32 s{S_A}, s{S_QH}, {7*4096}")
    a(f"s_add_u32 s{S_OOFF}, s{S_OOFF}, s{S_A}")
    a(f"s_add_u32 s{S_OOFF}, s{S_OOFF}, {WS_O}")
    a(f"s_mov_b32 s{S_NOFB}, -1")
    a("s_mov_b32 s60, s42"); a("s_mov_b32 s61, s43"); a(f"s_mov_b32 s62, {640*4096*2}"); a("s_mov_b32 s63, 0x20000")
    a(f"s_mov_b32 s{S_T0}, 0")
    a(f"s_mov_b32 s{S_MP}, 0")
    a(f"s_mov_b32 s{S_AS}, 0")
    if defer: a("s_mov_b32 s98, 0x40000000")
    a(f"s_mov_b32 s{S_WO}, {(4 if (wo3 or wo4 or wo8) else 3) if nowo else 0}")
    a(f"s_lshr_b32 s26, s2, 3")
    a(f"s_lshr_b32 s{S_A}, s2, {rsh}")
    a(f"s_add_u32 s26, s26, s{S_A}")
    if rotn in (1, 2, 4):
        a(f"s_and_b32 s26, s26, {rotn-1}")
        a(f"s_mul_i32 s26, s26, {20//rotn}")
        if qch2: a("s_and_b32 s26, s26, 30")
    elif rotn == 22:
        a("s_and_b32 s26, s26, 1"); a("s_mul_i32 s26, s26, 4")
    elif rotn == 23:
        a("s_and_b32 s26, s26, 1"); a("s_mul_i32 s26, s26, 6")
    a(f"s_mul_i32 s83, s{S_QSTEP}, 20")
    a(f"s_and_b32 s{S_TY}, s2, {tymask}")
    a(f"s_min_u32 s{S_TY}, s{S_TY}, 1")
    if tyinv: a(f"s_xor_b32 s{S_TY}, s{S_TY}, 1"); a("s_nop 0")
    if tymode == 1:
        a("s_bfe_u32 s3, s2, 0x10005"); a("s_xor_b32 s3, s3, 1"); a(f"s_and_b32 s{S_TY}, s2, s3"); a("s_nop 0")
    if tymode == 2:
        a("s_bfe_u32 s3, s2, 0x10005"); a("s_xor_b32 s3, s3, 1"); a(f"s_and_b32 s{S_TY}, s2, 3"); a(f"s_min_u32 s{S_TY}, s{S_TY}, 1"); a(f"s_and_b32 s{S_TY}, s{S_TY}, s3")
    if tymode == 3:
        a("s_bfe_u32 s3, s2, 0x10005"); a("s_xor_b32 s3, s3, 1"); a(f"s_and_b32 s{S_TY}, s2, 3"); a(f"s_cmp_eq_u32 s{S_TY}, 0"); a(f"s_cselect_b32 s{S_TY}, 1, 0"); a(f"s_or_b32 s{S_TY}, s{S_TY}, s3")
    if tymode == 4:
        a(f"s_and_b32 s{S_TY}, s2, 3"); a(f"s_cmp_eq_u32 s{S_TY}, 0"); a(f"s_cselect_b32 s{S_TY}, 1, 0"); a("s_nop 0")
    if tymode == 5:
        a(f"s_and_b32 s{S_TY}, s2, 7"); a(f"s_lshr_b32 s3, 0x49, s{S_TY}"); a(f"s_and_b32 s{S_TY}, s3, 1"); a("s_nop 0")
    if tymode == 6:
        a(f"s_and_b32 s{S_TY}, s2, 7"); a(f"s_cmp_eq_u32 s{S_TY}, 0"); a(f"s_cselect_b32 s{S_TY}, 1, 0"); a("s_nop 0")
    if tymode == 7:
        a(f"s_and_b32 s{S_TY}, s2, 3"); a(f"s_min_u32 s{S_TY}, s{S_TY}, 1"); a("s_nop 0")
    a(f"s_mov_b32 s{S_PRE}, s{S_TY}")
    a(f"s_mov_b32 s{S_THR}, 0x4e800000")
    import struct
    cs = struct.unpack("<I", struct.pack("<f", (128 ** -0.5) * 1.4426950408889634))[0]
    a(f"s_mov_b32 s{S_CS}, {cs:#x}")
    a(f"s_lshl_b32 s{S_A}, s{S_QH}, 1")
    a(f"s_add_u32 s{S_A}, s{S_A}, s{S_PJ}")
    a(f"s_mul_i32 s{S_LDB}, s{S_A}, {AREA}")
    if stamp:
        a("s_memtime s[64:65]")
        a("s_memrealtime s[66:67]")
        a("s_load_dwordx2 s[46:47], s[0:1], 88")
        a("s_waitcnt lgkmcnt(0)")
    G, N = V_T0, V_T1
    a(f"v_lshlrev_b32 v{V_LIN}, 4, v{V_LANE}")
    a(f"v_lshrrev_b32 v{G}, 4, v{V_LANE}")
    a(f"v_and_b32 v{N}, 15, v{V_LANE}")
    a(f"v_lshlrev_b32 v{V_T2}, 4, v{N}")
    a(f"v_lshl_add_u32 v{V_DMA}, v{G}, {kvgs}, v{V_T2}")
    if qch2:
        a(f"v_and_b32 v{V_QD}, 7, v{V_LANE}")
        a(f"v_lshlrev_b32 v{V_QD}, 4, v{V_QD}")
        a(f"v_bfe_u32 v{V_T3}, v{V_LANE}, 3, 1")
        a(f"v_lshl_add_u32 v{V_QD}, v{V_T3}, 15, v{V_QD}")
        a(f"v_bfe_u32 v{V_T3}, v{V_LANE}, 4, 1")
        a(f"v_lshl_add_u32 v{V_QD}, v{V_T3}, 17, v{V_QD}")
        a(f"v_bfe_u32 v{V_T3}, v{V_LANE}, 5, 1")
        a(f"v_lshl_add_u32 v{V_QD}, v{V_T3}, 18, v{V_QD}")
    else:
        a(f"v_bfe_u32 v{V_T3}, v{V_LANE}, 4, 1")
        a(f"v_lshl_add_u32 v{V_QD}, v{V_T3}, 15, v{V_T2}")
        a(f"v_bfe_u32 v{V_T3}, v{V_LANE}, 5, 1")
        a(f"v_lshl_add_u32 v{V_QD}, v{V_T3}, 17, v{V_QD}")
    a(f"v_mul_u32_u24 v{V_BA}, 1280, v{N}")
    a(f"v_lshl_add_u32 v{V_BA}, v{G}, 4, v{V_BA}")
    if fakex or xf: a(f"v_mov_b32 v{V_BA}, v{V_LIN}")
    if xq:
        a(f"v_lshrrev_b32 v{V_T3}, 4, v{V_LANE}")
        a(f"v_and_b32 v{V_BA}, 1, v{V_T3}")
        a(f"v_lshlrev_b32 v{V_BA}, 1, v{V_BA}")
        a(f"v_lshrrev_b32 v{V_T3}, 1, v{V_T3}")
        a(f"v_mul_u32_u24 v{V_T3}, 3, v{V_T3}")
        a(f"v_xor_b32 v{V_BA}, v{V_BA}, v{V_T3}")
        a(f"v_and_b32 v{V_T3}, 3, v{V_LANE}")
        a(f"v_xor_b32 v{V_BA}, v{V_BA}, v{V_T3}")
        a(f"v_lshlrev_b32 v{V_BA}, 4, v{V_BA}")
        a(f"v_lshrrev_b32 v{V_T3}, 2, v{V_LANE}")
        a(f"v_mul_u32_u24 v{V_T3}, 1280, v{V_T3}")
        a(f"v_add_u32 v{V_BA}, v{V_BA}, v{V_T3}")
    a(f"s_cmp_eq_u32 s{S_QH}, 0")
    a("s_cselect_b64 vcc, -1, 0")
    a("s_nop 1")
    a(f"v_cndmask_b32 v{V_QD}, v{V_BA}, v{V_QD}, vcc")
    a(f"s_add_u32 s{S_A}, s{S_QH}, 2")
    a(f"s_mul_i32 s{S_A}, s{S_A}, {AREA}")
    if xq:
        a(f"v_bfe_u32 v{V_T3}, v{V_LANE}, 2, 2")
        a(f"v_and_b32 v{V_BA}, 1, v{V_T3}")
        a(f"v_lshlrev_b32 v{V_BA}, 1, v{V_BA}")
        a(f"v_lshrrev_b32 v{V_T3}, 1, v{V_T3}")
        a(f"v_mul_u32_u24 v{V_T3}, 3, v{V_T3}")
        a(f"v_xor_b32 v{V_BA}, v{V_BA}, v{V_T3}")
        a(f"v_xor_b32 v{V_BA}, v{V_BA}, v{G}")
        a(f"v_lshlrev_b32 v{V_BA}, 4, v{V_BA}")
        a(f"v_lshl_add_u32 v{V_BA}, v{N}, 6, v{V_BA}")
        a(f"v_add_u32 v{V_BA}, s{S_A}, v{V_BA}")
    else:
        a(f"v_add_u32 v{V_BA}, s{S_A}, v{V_LIN}")
    a(f"v_bfe_u32 v{V_T3}, v{V_LANE}, 4, 1")
    a(f"v_lshl_add_u32 v{V_T2}, v{V_T3}, 9, v{V_T2}")
    a(f"v_bfe_u32 v{V_T3}, v{V_LANE}, 5, 1")
    a(f"v_lshl_add_u32 v{V_XA}, v{V_T3}, 8, v{V_T2}")
    a(f"v_and_b32 v{V_T2}, 7, v{N}")
    a(f"v_lshlrev_b32 v{V_KA}, 10, v{V_T2}")
    a(f"v_and_b32 v{V_T3}, 1, v{N}")
    a(f"v_lshl_add_u32 v{V_KA}, v{V_T3}, 4, v{V_KA}")
    a(f"v_bfe_u32 v{V_T3}, v{N}, 1, 2")
    a(f"v_lshl_add_u32 v{V_KA}, v{V_T3}, 6, v{V_KA}")
    a(f"v_lshrrev_b32 v{V_T3}, 3, v{N}")
    a(f"v_lshl_add_u32 v{V_KA}, v{V_T3}, 8, v{V_KA}")
    a(f"v_bfe_u32 v{V_T3}, v{V_LANE}, 4, 1")
    a(f"v_lshl_add_u32 v{V_KA}, v{V_T3}, 5, v{V_KA}")
    a(f"v_bfe_u32 v{V_T3}, v{V_LANE}, 5, 1")
    a(f"v_lshl_add_u32 v{V_KA}, v{V_T3}, 4, v{V_KA}")
    a(f"s_mul_i32 s{S_A}, s{S_PJ}, {AREA}")
    a(f"v_add_u32 v{V_KA}, s{S_A}, v{V_KA}")
    a(f"v_bfe_u32 v{N}, v{V_LANE}, 2, 2")
    a(f"v_bfe_u32 v{V_T3}, v{V_LANE}, 4, 1")
    a(f"v_lshl_add_u32 v{V_T2}, v{V_T3}, 2, v{N}")
    a(f"v_mul_u32_u24 v{V_T2}, 1056, v{V_T2}")
    a(f"v_bfe_u32 v{V_T3}, v{V_LANE}, 5, 1")
    a(f"v_lshl_add_u32 v{V_T2}, v{V_T3}, {8 if qch2 else 9}, v{V_T2}")
    a(f"v_and_b32 v{V_T3}, 3, v{V_LANE}")
    a(f"v_lshl_add_u32 v{V_T2}, v{V_T3}, 3, v{V_T2}")
    a(f"v_add_u32 v{V_WA}, s{S_A}, v{V_T2}")
    a(f"v_lshl_add_u32 v{N}, v{G}, 2, v{N}")
    a(f"v_and_b32 v{V_T2}, 7, v{N}")
    a(f"v_mul_u32_u24 v{V_T2}, 1056, v{V_T2}")
    a(f"v_lshrrev_b32 v{V_T3}, 3, v{N}")
    a(f"v_lshl_add_u32 v{V_T2}, v{V_T3}, 8, v{V_T2}")
    a(f"v_and_b32 v{V_T3}, 3, v{V_LANE}")
    a(f"v_lshl_add_u32 v{V_T2}, v{V_T3}, 3, v{V_T2}")
    a(f"s_add_u32 s{S_A}, s{S_A}, {2*AREA}")
    a(f"v_add_u32 v{V_VA}, s{S_A}, v{V_T2}")
    for i in range(7):
        a(f"v_mov_b32 v{V_L+2*i}, 0xff800000")
    a(f"v_mov_b32 v{V_T0}, 0x3f803f80")
    for i in range(4): a(f"v_accvgpr_write_b32 a{A_ONE+i}, v{V_T0}")
    a(f"v_and_b32 v{V_T0}, 3, v{V_LANE}")
    a(f"v_lshlrev_b32 v{V_T0}, 2, v{V_T0}")
    a(f"v_add_u32 v{V_T0}, {LDS_FLAG}, v{V_T0}")
    a(f"v_mov_b32 v{V_T1}, 0")
    a(f"ds_write_b32 v{V_T0}, v{V_T1}")
    a(f"s_cmp_eq_u32 s{S_QH}, 0")
    a(f"s_mov_b32 s{S_A}, {kpad(1)-kpad(0)-256}")
    a(f"s_mov_b32 s{S_B}, 800")
    a(f"s_cselect_b32 s96, s{S_A}, s{S_B}")
    a(f"s_mov_b32 s{S_A}, {kpad(2)-kpad(1)-256}")
    a(f"s_cselect_b32 s97, s{S_A}, s{S_B}")

    a(f"v_lshrrev_b32 v{V_T0}, 1, v{V_LANE}")
    a(f"v_lshlrev_b32 v{V_T0}, 13, v{V_T0}")
    a(f"v_and_b32 v{V_T1}, 1, v{V_LANE}")
    a(f"v_lshl_add_u32 v{V_T0}, v{V_T1}, 7, v{V_T0}")
    a(f"v_lshlrev_b32 v{V_T1}, 7, v{V_LANE}")
    a(f"s_bfe_u32 s{S_A}, s2, 0x20003")
    a(f"s_lshl_b32 s{S_A}, s{S_A}, 18")
    a(f"s_and_b32 s{S_B}, s2, 7")
    a(f"s_mul_i32 s{S_B}, s{S_B}, 17920")
    a(f"s_cmp_eq_u32 s{S_QH}, 0")
    a("s_cselect_b64 vcc, -1, 0")
    a(f"s_cselect_b32 s100, s{S_A}, s{S_B}")
    a(f"s_add_u32 s100, s100, s55")
    a(f"s_cmp_eq_u32 s{S_QH}, 0")
    a(f"s_mov_b32 s{S_A}, {4*32*8192}")
    a(f"s_mov_b32 s{S_B}, 8192")
    a(f"s_cselect_b32 s99, s{S_A}, s{S_B}")
    a(f"v_cndmask_b32 v{V_LIN}, v{V_T1}, v{V_T0}, vcc")
    def tf0(u): return (u & ((1 << kvgs) - 1)) | ((u >> kvgs) << (kvgs + 2))
    if kvt2:
        lb = kvgs - int(math.log2(kvts))
        if lb >= 6:
            a(f"v_mul_u32_u24 v{V_LIN}, {kvts}, v{V_LANE}")
        else:
            a(f"v_and_b32 v{V_T0}, {(1 << lb) - 1}, v{V_LANE}")
            a(f"v_mul_u32_u24 v{V_T0}, {kvts}, v{V_T0}")
            a(f"v_lshrrev_b32 v{V_T1}, {lb}, v{V_LANE}")
            a(f"v_lshl_add_u32 v{V_LIN}, v{V_T1}, {kvgs + 2}, v{V_T0}")
    def tch(s_): return bool(kvt2) and s_ < 16 and s_ % tper == 0
    def tvn(s_): return sum(1 for t in range(max(0, s_ - 3), s_) if tch(t))
    def tinc(k): return tf0((k + 1) * 64 * kvts) - tf0(k * 64 * kvts)
    if kvrot == 0 and kvgs != 11: a("s_mov_b32 s100, 0")
    if kvrot == 1:
        a("s_and_b32 s100, s2, 31")
    if kvrot == 2:
        a("s_mul_i32 s100, s2, 11"); a(f"s_lshr_b32 s{S_A}, s2, 5"); a(f"s_mul_i32 s{S_A}, s{S_A}, 7"); a(f"s_add_u32 s100, s100, s{S_A}")
        a(f"s_lshl_b32 s{S_A}, s{S_PJ}, 4"); a(f"s_add_u32 s100, s100, s{S_A}"); a("s_and_b32 s100, s100, 31")
    if kvrot == 3:
        a("s_lshr_b32 s100, s2, 5"); a("s_lshl_b32 s100, s100, 2")
    if rflip:
        if rflip == 1: a(f"s_bfe_u32 s{S_A}, s2, 0x10005")
        if rflip == 2: a(f"s_bfe_u32 s{S_A}, s2, 0x10006")
        if rflip == 3: a(f"s_bfe_u32 s{S_A}, s2, 0x10007")
        if rflip == 4: a(f"s_bfe_u32 s{S_A}, s2, 0x10003")
        a(f"s_lshl_b32 s101, s{S_A}, 19")
        a(f"s_mul_i32 s{S_B}, s{S_A}, s{S_QRND}")
        a(f"s_add_u32 s55, s55, s{S_B}")
        a(f"s_sub_u32 s{S_B}, 0, s{S_QRND}")
        a(f"s_cmp_lg_u32 s{S_A}, 0")
        a(f"s_cselect_b32 s{S_QRND}, s{S_B}, s{S_QRND}")
        a(f"s_mov_b32 s99, {2*PAIRB}")
        a(f"s_cselect_b32 s99, {-2*PAIRB & 0xffffffff:#x}, s99")
        a(f"s_mul_i32 s{S_B}, s{S_A}, {2*PAIRB}")
        a(f"s_add_u32 s{S_OOFF}, s{S_OOFF}, s{S_B}")
    tstate = {"t": 0}
    def touch_one():
        if not touch: return
        a(f"buffer_load_dword v0, v{V_LIN}, s[{S_QP}:{S_QP+3}], s98 offen{' nt' if tnt else ''}")
        a(f"s_add_u32 s98, s98, s99")
        tstate["t"] += 1
    if xmem or dupst:
        a("s_add_u32 s72, s44, 0x8000000"); a("s_addc_u32 s73, s45, 0"); a("s_mov_b32 s74, 0x18000000"); a("s_mov_b32 s75, 0x20000")
        a("s_lshl_b32 s76, s2, 2"); a(f"s_add_u32 s76, s76, s{S_WAVE}"); a("s_mul_i32 s76, s76, 0x60000")
    dstate = {"i": 0, "kind": None}
    state = {"n": 0}
    def dma_setup(slot, kind):
        if kind == "KV":
            if kvgs != 11:
                ln_ = kvgs - 11
                a(f"s_add_u32 s{S_B}, s{S_DJ}, s100")
                a(f"s_bfe_u32 s{S_A}, s{S_B}, {((5 - ln_) << 16) | ln_:#x}")
                a(f"s_lshl_b32 s{S_A}, s{S_A}, {kvgs + 2}")
                a(f"s_and_b32 s{S_B}, s{S_B}, {(1 << ln_) - 1}")
                a(f"s_lshl_b32 s{S_B}, s{S_B}, 11")
                a(f"s_add_u32 s{S_B}, s{S_A}, s{S_B}")
                a(f"s_lshr_b32 s{S_A}, s{S_DJ}, 5")
                a(f"s_lshl_b32 s{S_A}, s{S_A}, 19")
                if rflip: a(f"s_xor_b32 s{S_A}, s{S_A}, s101")
                a(f"s_add_u32 s{S_DOFF}, s{S_A}, s{S_B}")
            elif kvrot:
                a(f"s_lshr_b32 s{S_A}, s{S_DJ}, 5")
                a(f"s_lshl_b32 s{S_A}, s{S_A}, 19")
                if rflip: a(f"s_xor_b32 s{S_A}, s{S_A}, s101")
                a(f"s_add_u32 s{S_B}, s{S_DJ}, s100")
                a(f"s_and_b32 s{S_B}, s{S_B}, 31")
                a(f"s_lshl_b32 s{S_B}, s{S_B}, 13")
                a(f"s_add_u32 s{S_DOFF}, s{S_A}, s{S_B}")
            else:
                a(f"s_lshr_b32 s{S_A}, s{S_DJ}, 5")
                a(f"s_lshl_b32 s{S_A}, s{S_A}, 18")
                a(f"s_lshl_b32 s{S_B}, s{S_DJ}, 13")
                a(f"s_add_u32 s{S_DOFF}, s{S_A}, s{S_B}")
            if kvl2: a(f"s_and_b32 s{S_DOFF}, s{S_DOFF}, {0x7fff if kvl2 is True else kvl2 - 1}")
            a(f"s_add_u32 m0, s{S_LDB}, {slot*TILE}")
            a(f"s_add_u32 s{S_DJ}, s{S_DJ}, 1")
        elif qch2:
            a(f"s_add_u32 m0, s{S_LDB}, {slot*TILE}")
            if slot & 1 == 0:
                a(f"s_mov_b32 s{S_DOFF}, s{S_QS}")
            else:
                a(f"s_add_u32 s{S_DOFF}, s{S_QS}, s46")
                a(f"s_lshl1_add_u32 s{S_QS}, s{S_QSTEP}, s{S_QS}")
                if rot:
                    a("s_add_u32 s82, s82, 2")
                    a("s_cmp_eq_u32 s82, 20")
                    a(f"s_cselect_b32 s{S_B}, s83, 0")
                    a(f"s_sub_u32 s{S_QS}, s{S_QS}, s{S_B}")
        else:
            a(f"s_add_u32 m0, s{S_LDB}, {slot*TILE}")
            a(f"s_mov_b32 s{S_DOFF}, s{S_QS}")
            a(f"s_add_u32 s{S_QS}, s{S_QS}, s{S_QSTEP}")
            if rot:
                a("s_add_u32 s82, s82, 1")
                a("s_cmp_eq_u32 s82, 20")
                a(f"s_cselect_b32 s{S_B}, s83, 0")
                a(f"s_sub_u32 s{S_QS}, s{S_QS}, s{S_B}")
        dstate["i"] = 0; dstate["kind"] = kind
    def dma_one(pad=False):
        i = dstate["i"]
        if dstate["kind"] == "KV":
            if pad: a("s_nop 0")
            if not noload:
                a(f"buffer_load_dwordx4 v{V_DMA}, s[{S_LD}:{S_LD+3}], s{S_DOFF} offen offset:{256*i}{NT} lds")
            if i < 7: a(f"s_add_u32 m0, m0, s{96+(i&1)}")
        else:
            a(f"s_add_u32 s{S_A}, s{S_DOFF}, s{S_TAB+i}")
            if not qpnl: a(f"buffer_load_dwordx4 v{V_QD}, s[{S_QP}:{S_QP+3}], s{S_A} offen{' nt' if qnt else ''} lds")
            if i < 7: a(f"s_add_u32 m0, m0, s{S_MSTEP}")
        dstate["i"] = i + 1
    def qs_init(rnd_sgpr, q=3):
        if kvt2:
            a(f"s_lshl_b32 s98, s{S_T}, 19")
            if q == "pre":
                a(f"s_lshl_b32 s{S_A}, s{S_PRE}, {kvgs}"); a(f"s_sub_u32 s98, s98, s{S_A}"); q = 3
            a(f"s_add_u32 s98, s98, {q << kvgs}")
        a(f"s_mul_i32 s{S_QS}, s{rnd_sgpr}, s{S_QRND}")
        if not rflip: a(f"s_mov_b32 s101, s{rnd_sgpr}")
        a(f"s_add_u32 s{S_QS}, s{S_QS}, s55")
        a(f"s_cmp_ge_u32 s{rnd_sgpr}, 2")
        a(f"s_cselect_b32 s{S_A}, 0x40000000, 0")
        a(f"s_add_u32 s{S_QS}, s{S_QS}, s{S_A}")
        if rot:
            a("s_mov_b32 s82, s26")
            a(f"s_mul_i32 s{S_A}, s26, s{S_QSTEP}")
            a(f"s_add_u32 s{S_QS}, s{S_QS}, s{S_A}")

    def touch_init(rnd_sgpr):
        if not touch: return
        a(f"s_mul_i32 s98, s{rnd_sgpr}, s{S_QRND}")
        a(f"s_add_u32 s98, s98, s100")
        a(f"s_cmp_ge_u32 s{rnd_sgpr}, 2")
        a(f"s_cselect_b32 s{S_A}, 0x40000000, 0")
        a(f"s_add_u32 s98, s98, s{S_A}")
        tstate["t"] = 0
    def kread(f, slot):
        if anrd and state.get("inat"): return
        kt, s = f >> 2, f & 3
        a.lds(f"ds_read_b128 {vr(V_KF+4*f,4)}, v{V_KA} offset:{slot*TILE+kt*512+s*64}", "K")
    def vread(l, slot):
        if anrd and state.get("inat"): return
        for v in range(2):
            a.lds(f"ds_read_b64_tr_b16 {vr(V_VF+4*l+2*v,2)}, v{V_VA} offset:{slot*TILE+v*512+l*32}", "V")
    def wread(l, slot):
        for v in range(2):
            a.lds(f"ds_read_b64_tr_b16 {vr(V_VF+4*l+2*v,2)}, v{V_WA} offset:{slot*TILE+v*256+l*32}", "W")
    def wread2(lp, kk, slot):
        for v in range(2):
            a.lds(f"ds_read_b64_tr_b16 {vr(V_VF+8*lp+4*kk+2*v,2)}, v{V_WA} offset:{slot*TILE+kk*512+v*128+lp*32}", "W")
    def bset(st_, kk, qt):
        if st_ == 0: return vr((V_CI if kk == 0 else V_KF) + 4 * qt, 4)
        return ar(A_Q + 28 * kk + 4 * qt, 4)
    def bread2(st_, kk, qt, slot):
        a.lds(f"ds_read_b128 {bset(st_, kk, qt)}, v{V_BA} offset:{slot*TILE+qt*1024}", "B")
    def bbuf(buf, qt): return (V_KF if buf == 0 else V_CI) + 4 * qt
    def bread(buf, qt, slot):
        a.lds(f"ds_read_b128 {vr(bbuf(buf,qt),4)}, v{V_BA} offset:{slot*TILE+qt*1024}", "B")
    def oreg(l, qt):
        return vr(V_OK + 28 * l + 4 * qt, 4) if l < 4 else ar(A_OS + 28 * (l - 4) + 4 * qt, 4)

    def barrier(dyn=False, vn=16, xt=0):
        vn += xt
        if dyn:
            n = len(a.lines)
            a(f"s_cmp_eq_u32 s{S_AS}, 0")
            if inv:
                a(f"s_cbranch_scc0 L_bw1_{n}")
                a(f"s_waitcnt vmcnt({vn}) lgkmcnt(0)")
                a.label(f"L_bw2_{n}")
                if wo2 or wo8 or wtch in (2, 3):
                    state.setdefault("ool", []).extend([f"L_bw1_{n}:", f"    s_sub_u32 s{S_AS}, s{S_AS}, 1", f"    s_bitcmp1_b32 s{S_AS}, 8", f"    s_cbranch_scc1 L_bw3_{n}",
                        f"    s_waitcnt vmcnt({44 + xt}) lgkmcnt(0)", f"    s_branch L_bw2_{n}",
                        f"L_bw3_{n}:", f"    s_bitcmp1_b32 s{S_AS}, 9", f"    s_cbranch_scc1 L_bw4_{n}",
                        f"    s_and_b32 s99, s{S_AS}, 0xff", f"    s_cselect_b32 s{S_AS}, s{S_AS}, 0",
                        f"    s_waitcnt vmcnt({21 + xt}) lgkmcnt(0)", f"    s_branch L_bw2_{n}",
                        f"L_bw4_{n}:", f"    s_and_b32 s99, s{S_AS}, 0xff", f"    s_cselect_b32 s{S_AS}, s{S_AS}, 0",
                        f"    s_waitcnt vmcnt({54 + xt}) lgkmcnt(0)", f"    s_branch L_bw2_{n}"])
                elif eep:
                    assert xt == 0
                    state.setdefault("ool", []).extend([f"L_bw1_{n}:", f"    s_sub_u32 s{S_AS}, s{S_AS}, 1",
                        f"    s_cmp_eq_u32 s{S_AS}, 0x101", f"    s_cbranch_scc1 L_bw3_{n}",
                        f"    s_cmp_eq_u32 s{S_AS}, 0x100", f"    s_cbranch_scc1 L_bw4_{n}",
                        f"    s_cmp_eq_u32 s{S_AS}, 0x200", f"    s_cbranch_scc1 L_bw5_{n}",
                        f"    s_waitcnt vmcnt(44) lgkmcnt(0)", f"    s_branch L_bw2_{n}",
                        f"L_bw3_{n}:", f"    s_waitcnt vmcnt(@NA1@) lgkmcnt(0)", f"    s_branch L_bw2_{n}",
                        f"L_bw4_{n}:", f"    s_mov_b32 s{S_AS}, 0", f"    s_waitcnt vmcnt(@NA2@) lgkmcnt(0)", f"    s_branch L_bw2_{n}",
                        f"L_bw5_{n}:", f"    s_mov_b32 s{S_AS}, 0", f"    s_waitcnt vmcnt(@NB2@) lgkmcnt(0)", f"    s_branch L_bw2_{n}"])
                else:
                    state.setdefault("ool", []).extend([f"L_bw1_{n}:", f"    s_sub_u32 s{S_AS}, s{S_AS}, 1", f"    s_waitcnt vmcnt({28 + vn}) lgkmcnt(0)", f"    s_branch L_bw2_{n}"])
                a.lds_q = []
                a("s_barrier")
                return
            a(f"s_cbranch_scc1 L_bw1_{n}")
            a(f"s_sub_u32 s{S_AS}, s{S_AS}, 1")
            a(f"s_waitcnt vmcnt({44 + xt}) lgkmcnt(0)")
            a(f"s_branch L_bw2_{n}")
            a.label(f"L_bw1_{n}")
            a(f"s_waitcnt vmcnt({vn}) lgkmcnt(0)")
            a.label(f"L_bw2_{n}")
        else:
            a(f"s_waitcnt vmcnt({vn}) lgkmcnt(0)")
        a.lds_q = []
        a("s_barrier")

    def cap(fn):
        n0 = len(a.lines); q0 = list(a.lds_q)
        fn()
        ls = a.lines[n0:]; del a.lines[n0:]; a.lds_q = q0
        return ls
    def is_scalar(ln):
        return ln.strip().startswith("s_")
    class Gaps:
        def __init__(self, n):
            self.n = n; self.S = [[] for _ in range(n)]; self.V = [[] for _ in range(n)]; self.c = [0] * n
        def putS(self, ln, lo, hi=None):
            for g in range(lo, self.n):
                if len(self.S[g]) == 0:
                    self.S[g].append(ln); return g
            self.S[self.n - 1].append(ln); return self.n - 1
        def putV(self, ln, lo, cost=1, cap_=2):
            for g in range(lo, self.n):
                if self.c[g] + cost <= cap_:
                    self.V[g].append(ln); self.c[g] += cost; return g
            self.V[self.n - 1].append(ln); self.c[self.n - 1] += cost; return self.n - 1
        def atV(self, ln, g, cost=1):
            self.V[g].append(ln); self.c[g] += cost
        def atS(self, ln, g):
            self.S[g].append(ln)
    DITEMS = [(qt, T) for qt in range(7) for T in range(4)]
    DS = {}
    if defer:
        ntl = (28 - 8 - 4 * dnp) // 4
        assert 4 * dnp + 8 + 4 * ntl == 28
        k_ = 0
        for i in range(4): DS[("P", i)] = DITEMS[k_:k_ + dnp]; k_ += dnp
        for i in (1, 0, 3, 2): DS[("L", i)] = DITEMS[k_:k_ + 2]; k_ += 2
        for i in range(4): DS[("T", i)] = DITEMS[k_:k_ + ntl]; k_ += ntl
    DLIVE = {1: 0, 0: 1, 3: 1, 2: 2}
    def dcount(code):
        if not defer or code is None: return 0
        kind, i = code
        n = lambda c: len(DS.get(c, []))
        if kind == "P": return sum(n(("P", t)) for t in (i - 2, i - 1) if t >= 0)
        prev = lambda k, t: (k, t) if t >= 0 else None
        if kind == "L":
            if i >= 2: return n(("L", i - 2)) + n(("L", i - 1))
            if i == 1: return min(n(("P", 3)), n(("L", 3))) + n(("L", 0))
            return min(n(("P", 2)) + n(("P", 3)), n(("L", 2)) + n(("L", 3)))
        if kind in ("T", "B"):
            m = lambda t: n((kind, t)) if t >= 0 else n(("L", 4 + t))
            return m(i - 2) + m(i - 1)
    def qp_stage2(sm, first, dma, last, chk, after_store, vn, nok, sidx, code=None):
        buf = sm & 1; nslot = (sm + 1) & 3
        BAR = qbar
        G = Gaps(56)
        su = cap(lambda: dma_setup(sm, dma))
        g = BAR - 1
        g = 0
        for ln in su:
            g = G.putS(ln, g) + 1
        prev = g
        w5 = wo5 == 1 and code == ("T", 0)
        for i in range(8):
            ls = cap(lambda: dma_one(False))
            tg = max(qd0 + (4 if w5 else qdstep) * i, prev)
            pre_ = [l for l in ls if is_scalar(l) and "m0" not in l]
            ld = [l for l in ls if not is_scalar(l)]
            post = [l for l in ls if is_scalar(l) and "m0" in l]
            for l in pre_: tg = G.putS(l, tg)
            for l in ld: G.atV(l, tg)
            prev = tg + 1
            for l in post: prev = G.putS(l, tg + 1) + 1
        dstate["i"] = 8
        if w5:
            assert prev <= 39, prev
            for i in range(5): G.atV(f"    v_accvgpr_read_b32 v{V_S+i}, a{244+i}", i)
            G.atS(f"    s_cmp_eq_u32 s{S_WO}, 0", 39)
            G.atS(f"    s_cselect_b32 s57, s56, 0x40000000", 39)
            for i in range(5):
                G.atS(f"    s_add_u32 m0, s58, {1024*i}", 40 + 3*i)
                G.atV(f"    buffer_load_dwordx4 v{V_S+i}, s[84:87], s57 offen lds", 41 + 3*i)
        if code in DS:
            its = DS[code]; lastq = None
            for n_, (qt_, T_) in enumerate(its):
                tg = qd0 + 3 + n_ * 2 * qdstep
                if qt_ != lastq:
                    if code[0] == "L":
                        G.atS(f"    s_cmp_eq_u32 s{S_CNT}, {DLIVE[code[1]]}", tg - 2)
                        G.atS(f"    s_cselect_b32 s99, s98, 0x40000000", tg - 2)
                        G.atS(f"    s_add_u32 s99, s99, {qt_*4096}", tg - 1)
                    else:
                        G.atS(f"    s_add_u32 s99, s98, {qt_*4096}", tg - 1)
                    lastq = qt_
                G.atV(f"    buffer_store_dwordx4 {ar(A_Q+16*qt_+4*T_,4)}, v{V_XA}, s[{S_W}:{S_W+3}], s99 offen offset:{1024*T_} {dpol}".rstrip(), tg)
        if tch(sidx):
            k_ = sidx // tper
            tg = min(prev + 1, 54)
            G.atV(f"    buffer_load_dword v{V_S+12}, v{V_LIN}, s[{S_LD}:{S_LD+3}], s98 offen {tpol}".rstrip(), tg)
            G.putS(f"    s_add_u32 s98, s98, {tinc(k_)}", tg + 1)
        if qnrd: pass
        elif not last:
            lo = BAR - 1
            for ln in cap(lambda: wread(0, nslot)): lo = G.putV(ln, lo, cap_=1)
            for qt in range(7):
                for ln in cap(lambda: bread(buf ^ 1, qt, nslot)): lo = G.putV(ln, lo, cap_=1)
            for l in range(1, 8):
                lo = max(lo, min(7 * (l + 1) - 1, 55))
                for ln in cap(lambda: wread(l, nslot)): lo = G.putV(ln, lo, cap_=(1 if l < 7 else 2))
        elif not nok:
            lo = BAR - 1
            for f in range(8):
                for ln in cap(lambda: kread(f, nslot)): lo = G.putV(ln, lo, cap_=1)
        a("s_waitcnt lgkmcnt(14)")
        j = 0
        for l in range(8):
            for qt in range(7):
                c = "0" if first else oreg(l, qt)
                if qt == 0 and l > 0 and j < BAR: a(f"s_waitcnt lgkmcnt({14-2*l})")
                a(f"{MFMA} {oreg(l, qt)}, {vr(V_VF+4*l,4)}, {vr(bbuf(buf,qt),4)}, {c}")
                for ln in G.S[j]: a.lines.append(ln)
                if j == BAR - 1:
                    if not qnbar: barrier(after_store, 16, tvn(sidx) + dcount(code) + (5 if (wo5 == 1 and code in (("T", 1), ("T", 2), ("T", 3))) else 0))
                    if chk: flagcheck()
                for ln in G.V[j]: a.lines.append(ln)
                j += 1
    def qp_stage3(sm, first, dma, last, chk, after_store, nok):
        h = sm & 1; cur = (sm >> 1) & 1; nslot = (sm + 1) & 3
        BAR = qbar
        G = Gaps(56)
        su = cap(lambda: dma_setup(sm, dma))
        g = 0
        for ln in su:
            g = G.putS(ln, g) + 1
        prev = g
        for i in range(8):
            ls = cap(lambda: dma_one(False))
            tg = max(qd0 + qdstep * i, prev)
            pre_ = [l for l in ls if is_scalar(l) and "m0" not in l]
            ld = [l for l in ls if not is_scalar(l)]
            post = [l for l in ls if is_scalar(l) and "m0" in l]
            for l in pre_: tg = G.putS(l, tg)
            for l in ld: G.atV(l, tg)
            prev = tg + 1
            for l in post: prev = G.putS(l, tg + 1) + 1
        dstate["i"] = 8
        if not last:
            lo = BAR - 1
            if h == 1:
                for kk in range(2):
                    for qt in range(7):
                        for ln in cap(lambda: bread2(cur ^ 1, kk, qt, (sm + 1 + kk) & 3)): lo = G.putV(ln, lo, cap_=1)
            for lp in range(4):
                lo = max(lo, 14 * (lp + 1) - 1)
                if lp < 3:
                    for kk in range(2):
                        for ln in cap(lambda: wread2(lp, kk, nslot)): lo = G.putV(ln, lo, cap_=1)
                else:
                    for kk in range(2):
                        for ln in cap(lambda: wread2(lp, kk, nslot)): G.atV(ln, 55)
        elif not nok:
            lo = BAR - 1
            for f in range(8):
                for ln in cap(lambda: kread(f, nslot)): lo = G.putV(ln, lo, cap_=1)
        vn_ = 8 if (h == 1 and not (last and dma == "KV")) else 16
        a("s_waitcnt lgkmcnt(8)")
        j = 0
        for lp in range(4):
            for qt in range(7):
                for kk in range(2):
                    c = "0" if (first and kk == 0) else oreg(4 * h + lp, qt)
                    a(f"{MFMA} {oreg(4 * h + lp, qt)}, {vr(V_VF+8*lp+4*kk,4)}, {bset(cur, kk, qt)}, {c}")
                    for ln in G.S[j]: a.lines.append(ln)
                    if j == BAR - 1:
                        barrier(after_store, vn_)
                        if chk: flagcheck()
                    for ln in G.V[j]: a.lines.append(ln)
                    j += 1
    def qp_stage(sm, first=False, dma="QP", last=False, chk=False, after_store=False, kt_=False, vn=16, nok=False, role=None, ntouch=0, sidx=None, code=None):
        buf = sm & 1; nslot = (sm + 1) & 3
        if qch2:
            return qp_stage3(sm, first, dma, last, chk, after_store, nok)
        if qps:
            return qp_stage2(sm, first, dma, last, chk, after_store, vn, nok, sidx, code)
        a("s_waitcnt lgkmcnt(14)")
        fq = []
        def cap(fn):
            n0 = len(a.lines); q0 = len(a.lds_q)
            fn()
            ls = a.lines[n0:]; del a.lines[n0:]; del a.lds_q[q0:]
            return ls
        BAR = 7
        if role != "T":
            for ln in cap(lambda: dma_setup(sm, dma)): fq.append((BAR, ln))
        if dma == "QP" and roll:
            fq.append((BAR, f"    s_lshl2_add_u32 s{S_B}, s{S_QSTEP}, s{S_DOFF}"))
            fq.append((BAR, f"    buffer_load_dword v0, v{V_T0}, s[{S_QP}:{S_QP+3}], s{S_B} offen{' nt' if tnt else ''}"))
        if kvt and kt_:
            fq.append((BAR, f"    buffer_load_dword v0, v{V_T3}, s[{S_LD}:{S_LD+3}], s101 offen{' nt' if kvtnt else ''}"))
            fq.append((BAR, f"    s_add_u32 s101, s101, 8192"))
        if not last:
            for ln in cap(lambda: wread(0, nslot)): fq.append((BAR, ln))
            for qt in range(7):
                for ln in cap(lambda: bread(buf ^ 1, qt, nslot)): fq.append((BAR, ln))
        elif not nok:
            for f in range(8):
                for ln in cap(lambda: kread(f, nslot)): fq.append((BAR, ln))
        for l in range(1, 8):
            if not last:
                for ln in cap(lambda: wread(l, nslot)): fq.append((7 * (l + 1), ln))
            if role == "T":
                if l == 1:
                    for _ in range(ntouch):
                        fq.append((BAR, f"    buffer_load_dword v0, v{V_T0}, s[60:63], s98 offen"))
                        fq.append((BAR, f"    s_add_u32 s98, s98, {32*8192}"))
                        fq.append((BAR, f"    buffer_load_dword v0, v{V_T1}, s[{S_QP}:{S_QP+3}], s99 offen"))
                        fq.append((BAR, f"    s_add_u32 s99, s99, 64"))
                continue
            for ln in cap(lambda: dma_one(True)): fq.append((BAR, ln))
            if role == "X":
                if l == 7:
                    fq.append((BAR, f"    s_add_u32 m0, s{S_LDB}, {AREA+sm*TILE}"))
                    fq.append((BAR, f"    s_add_u32 s{S_DOFF}, s{S_DOFF}, {112*1280}"))
                    for i in range(7):
                        fq.append((BAR, f"    s_add_u32 s{S_A}, s{S_DOFF}, s{S_TAB+i}"))
                        fq.append((BAR, f"    buffer_load_dwordx4 v{V_QD}, s[{S_QP}:{S_QP+3}], s{S_A} offen{' nt' if qnt else ''} lds"))
                        if i < 6: fq.append((BAR, f"    s_add_u32 m0, m0, 1024"))
            elif l == 7:
                for ln in cap(lambda: dma_one(True)): fq.append((BAR, ln))
        j = 0
        for l in range(8):
            for qt in range(7):
                c = "0" if first else oreg(l, qt)
                a(f"{MFMA} {oreg(l, qt)}, {vr(V_VF+4*l,4)}, {vr(bbuf(buf,qt),4)}, {c}")
                j += 1
                if j == BAR:
                    barrier(after_store, vn if (roll or role) else 16)
                    if chk: flagcheck()
                    if trace:
                        a("s_memtime s[78:79]")
                        a("s_waitcnt lgkmcnt(0)")
                        a(f"v_cmp_eq_u32 vcc, s77, v{V_LANE}")
                        a(f"v_mov_b32 v{V_T2}, s78")
                        a("s_nop 1")
                        a(f"v_cndmask_b32 v{V_T3}, v{V_T3}, v{V_T2}, vcc")
                        a("s_add_u32 s77, s77, 1")
                k = 0; idx = 0
                rem_gaps = 56 - j + 1
                quota = 1 if len(fq) <= rem_gaps else 2
                while k < quota and idx < len(fq):
                    if fq[idx][0] <= j and (idx == 0 or "ds_read" in fq[idx][1] or all("ds_read" in x[1] for x in fq[:idx])):
                        a.lines.append(fq[idx][1]); del fq[idx]; k += 1
                    else:
                        idx += 1
        for _, ln in fq: a.lines.append(ln)
        assert role in ("X", "T") or dstate["i"] == 8

    def sm_ops(par, i, first):
        S = V_S + 8 * par; P = V_P + 4 * par; L = V_L + 2 * i
        ops = []
        if first:
            T0, T1 = V_T0, V_T1
            ops += [f"v_max3_f32 v{T0}, v{S}, v{S+1}, v{L}", f"v_max3_f32 v{T1}, v{S+2}, v{S+3}, v{S+4}",
                    f"v_max3_f32 v{T0}, v{S+5}, v{S+6}, v{T0}", f"v_max3_f32 v{T0}, v{S+7}, v{T0}, v{T1}",
                    f"v_mov_b32 v{T1}, v{T0}", "s_nop 1", f"v_permlane16_swap_b32 v{T0}, v{T1}", "s_nop 1", f"v_max_f32 v{T0}, v{T0}, v{T1}",
                    f"v_mov_b32 v{T1}, v{T0}", "s_nop 1", f"v_permlane32_swap_b32 v{T0}, v{T1}", "s_nop 1", f"v_max_f32 v{T0}, v{T0}, v{T1}",
                    f"v_mov_b32 v{L}, 0", f"v_mov_b32 v{L+1}, 0"]
            ops += [f"v_sub_f32 v{S+r}, v{S+r}, v{T0}" for r in range(8)]
            ops += [f"v_sub_f32 v{V_CI+4*i+r}, 0, v{T0}" for r in range(4)]
        e = lambda r: ops.append(f"v_exp_f32 v{S+r}, v{S+r}")
        e(0); e(1)
        for r in range(0, 8, 2):
            if r + 2 < 8: e(r + 2); e(r + 3)
            if not ones:
                ops.append(f"v_add_f32 v{L}, v{L}, v{S+r}")
                ops.append(f"v_add_f32 v{L+1}, v{L+1}, v{S+r+1}")
            ops.append(f"v_cvt_pk_bf16_f32 v{P+r//2}, v{S+r}, v{S+r+1}")
        return ops

    def qk_items(qt, par, czero, kr):
        it = []
        for f in ([0, 1, 2, 3, 7, 6, 5, 4] if qkrev else range(8)):
            kt, s = f >> 2, f & 3
            D = vr(V_S + 8 * par + 4 * kt, 4)
            c = ("0" if czero else vr(V_CI + 4 * qt, 4)) if f in ((0, 7) if qkrev else (0, 4)) else D
            it.append(("K" if f == 0 else None, f"{MFMA} {D}, {vr(V_KF+4*f,4)}, {ar(A_Q+16*qt+4*s,4)}, {c}",
                       (lambda f=f: kread(f, kr)) if kr is not None else None))
        return it
    def pv_items(qt, par, czero, vrd):
        it = []
        for l in range(8):
            c = "0" if czero else oreg(l, qt)
            it.append(("V" if l == 0 else None, f"{MFMA} {oreg(l, qt)}, {vr(V_VF+4*l,4)}, {vr(V_P+4*par,4)}, {c}",
                       (lambda l=l: vread(l, vrd)) if vrd is not None else None))
        for _ in range(xmfma):
            D = ar(A_LS + 4 * qt, 4)
            it.append((None, f"{MFMA} {D}, {vr(V_VF,4)}, {vr(V_P+4*par,4)}, {D}", None))
        if ones:
            D = ar(A_LS + 4 * qt, 4)
            it.append((None, f"{MFMA} {D}, {ar(A_ONE,4)}, {vr(V_P+4*par,4)}, {'0' if czero else D}", None))
        return it

    def capture(fn):
        n0 = len(a.lines)
        fn()
        ls = a.lines[n0:]; del a.lines[n0:]
        return ls
    def emit(items, va, fill=None, nfill=0):
        cost = lambda op: 2 if "v_exp" in op else 1
        tot = sum(cost(o) for o in va); acc = 0; k = 0; ng = len(items)
        pos = [int((i + 0.5) * ng / max(nfill, 1)) for i in range(nfill)]
        for j, (need, m, post) in enumerate(items):
            if m:
                if need: a.lds_wait({need})
                a(m)
            if post: post()
            for _ in range(pos.count(j)):
                if fill: a.lines.append(fill.pop(0))
            while k < len(va) and acc + cost(va[k]) <= tot * (j + 1) / ng + 0.01:
                a(va[k]); acc += cost(va[k]); k += 1
        assert k == len(va)

    def dma_lines(slot, kind, pad=False):
        def f():
            dma_setup(slot, kind)
            for _ in range(8): dma_one(pad)
            if xmem and kind == "KV":
                a(f"s_mul_i32 s{S_A}, s{S_WAVE}, 7168")
                a(f"s_add_u32 m0, s{S_A}, {4*AREA+5120}")
                a(f"s_add_u32 s{S_A}, s{S_DOFF}, s76")
                for i in range(xmem):
                    a(f"buffer_load_dwordx4 v{V_DMA}, s[72:75], s{S_A} offen offset:{256*i} nt lds")
        return capture(f)
    def split_fill(fill, quota):
        out = []; idx = 0
        for q in quota:
            ch = []; n = 0
            while idx < len(fill) and n < q:
                ln = fill[idx]; ch.append(ln); idx += 1
                if "buffer_load" in ln:
                    n += 1
                    if idx < len(fill) and "m0, m0" in fill[idx]: ch.append(fill[idx]); idx += 1
            out.append(ch)
        out[-1] += fill[idx:]
        return out
    def ep_red(j):
        L = V_L + 2 * j; t = V_CI + 4 * j + 1; r = V_CI + 4 * j
        return [f"v_add_f32 v{L}, v{L}, v{L+1}", f"v_mov_b32 v{t}, v{L}", "s_nop 1", f"v_permlane16_swap_b32 v{L}, v{t}", "s_nop 1", f"v_add_f32 v{L}, v{L}, v{t}",
                f"v_mov_b32 v{t}, v{L}", "s_nop 1", f"v_permlane32_swap_b32 v{L}, v{t}", "s_nop 1", f"v_add_f32 v{L}, v{L}, v{t}", f"v_rcp_f32 v{r}, v{L}"]
    def ep_tile(j, pk_):
        r = V_CI + 4 * j
        q = lambda l: V_OK + 28 * l + 4 * j
        ops = [f"s_add_u32 s98, s{S_D}, {4096*j}"]
        for T in range(4):
            if T < 2: x, y = q(2 * T), q(2 * T + 1)
            else:
                x, y = (q(1), q(3)) if T == 2 else (q(0), q(3))
                for e, dst in ((0, x), (1, y)):
                    for k in range(4): ops.append(f"v_accvgpr_read_b32 v{dst+k}, a{A_OS+28*(2*(T-2)+e)+4*j+k}")
            for dst in (x, y):
                if pk_:
                    for h in range(2): ops.append(f"v_pk_mul_f32 {vr(dst+2*h,2)}, {vr(dst+2*h,2)}, {vr(r,2)} op_sel_hi:[1,0]")
                else:
                    for k in range(4): ops.append(f"v_mul_f32 v{dst+k}, v{dst+k}, v{r}")
            ops.append(f"v_cvt_pk_bf16_f32 v{x}, v{x}, v{x+1}")
            ops.append(f"v_cvt_pk_bf16_f32 v{x+1}, v{x+2}, v{x+3}")
            ops.append(f"v_cvt_pk_bf16_f32 v{x+2}, v{y}, v{y+1}")
            ops.append(f"v_cvt_pk_bf16_f32 v{x+3}, v{y+2}, v{y+3}")
            ops.append("s_nop 1")
            ops.append(f"v_permlane16_swap_b32 v{x}, v{x+2}")
            ops.append(f"v_permlane16_swap_b32 v{x+1}, v{x+3}")
            if not nost: ops.append(f"buffer_store_dwordx4 {vr(x,4)}, v{V_XA}, s[{S_W}:{S_W+3}], s98 offen offset:{1024*T} {stpol}".rstrip())
        return ops
    def ep_merge(sm, ep):
        sm = list(sm); out = []
        nn = sum(1 for o in ep if o == "s_nop 1")
        rest = len(sm) - 2 * nn
        body = [o for o in ep]
        n_other = len(body) - nn
        per = rest / max(n_other, 1) if rest > 0 else 0
        acc = 0.0
        for o in body:
            if o == "s_nop 1":
                if len(sm) >= 2: out.append(sm.pop(0)); out.append(sm.pop(0))
                else: out.append(o)
                continue
            out.append(o)
            acc += per
            while acc >= 1 and sm:
                out.append(sm.pop(0)); acc -= 1
        return out + sm
    def step(jm, first=False, last=False, dma="KV", nt_=0, tr_=False, dyn=False):
        fill = [] if (first or early) else dma_lines((jm + 3) & 3, dma)
        nf = (len(fill) + len(dsl) - 1) // len(dsl)
        chunks = state.get("carry") or [[] for _ in range(5)]
        state["carry"] = None
        for i in range(7):
            if strace and tr_:
                pr = [36, 38, 40, 42, 56, 58, 60, 62]
                a(f"s_memtime s[{pr[i]}:{pr[i]+1}]")
            if i in (1, 2, 3)[:nt_]: touch_one()
            n = state["n"]; par = n & 1
            items = []
            nfill = nf if (str(i) in dsl and i <= 4) else 0
            if spread and i <= 4:
                fill = list(chunks[i]); nfill = len(fill)
            if eep and last and dma == "KV":
                if i == 0: qstash_off()
                for s_ in range(4):
                    a(f"buffer_load_dwordx4 {ar(A_Q+16*i+4*s_,4)}, v{V_T2}, s[{S_W}:{S_W+3}], s{S_C} offen offset:{1024*s_}")
                if i < 6: a(f"s_add_u32 s{S_C}, s{S_C}, 4096")
            if i == 5:
                assert not fill
                if eep and last:
                    a(f"s_waitcnt vmcnt(@LB{'A' if dma == 'QP' else 'B'}@) lgkmcnt(0)")
                    a.lds_q = []
                    a("s_barrier")
                elif not (anbar and state.get("inat")): barrier(dyn, 8 if (qch2 and last and dma == "QP") else 16)
                if first: flagcheck()
                if last or early:
                    fill = dma_lines(jm, dma, True if last else False); nf = (len(fill) + 1) // 2
                    if spread and not last:
                        ch = split_fill(fill, [int(c) for c in spread])
                        assert len(ch) == 7
                        nxt = ch; fill = list(ch[0]); state["carry"] = ch[2:]
            if (last or early) and i >= 5: nfill = nf
            if spread and not last and i == 5: nfill = len(fill)
            if spread and not last and i == 6: fill = list(nxt[1]); nfill = len(fill)
            if i < 6:
                items += qk_items(i + 1, par ^ 1, first, ((jm + 1) & 3) if (i == 5 and (not last or dma == "KV")) else None)
            elif not last:
                items += qk_items(0, par ^ 1, False, None)
            else:
                if dma == "KV" and not eep: qreload()
                a("s_nop 1")
            if i > 0:
                items += pv_items(i - 1, par ^ 1, first, None)
            elif not first:
                items += pv_items(6, par ^ 1, False, jm)
            else:
                items += [(None, None, (lambda l=l: vread(l, jm))) for l in range(8)]
            ops_ = sm_ops(par, i, first)
            if state.get("inat") and anva:
                ops_ = [o for o in ops_ if not any(o.startswith(x) for x in anva.split(","))]
            if eep and last and i >= 2:
                ops_ = ep_merge(ops_, ep_red(i - 2) + ep_tile(i - 2, eep == 2))
            emit(items, ops_, fill, nfill)
            state["n"] = n + 1
        assert not fill

    def qstash_off():
        a(f"s_lshl_b32 s{S_C}, s2, 2")
        a(f"s_add_u32 s{S_C}, s{S_C}, s{S_WAVE}")
        a(f"s_mul_i32 s{S_C}, s{S_C}, 28672")
        a(f"v_lshlrev_b32 v{V_T2}, 4, v{V_LANE}")
    def qreload():
        qstash_off()
        for i in range(7):
            for s_ in range(4):
                a(f"buffer_load_dwordx4 {ar(A_Q+16*i+4*s_,4)}, v{V_T2}, s[{S_W}:{S_W+3}], s{S_C} offen offset:{1024*s_}")
            if i < 6: a(f"s_add_u32 s{S_C}, s{S_C}, 4096")

    def flagcheck():
        lab = f"L_at_nofb_{len(a.lines)}"
        a(f"s_cmp_le_u32 s{S_T}, s{S_T0}")
        a(f"s_cbranch_scc1 {lab}")
        a(f"s_sub_u32 s{S_A}, s{S_T}, 1")
        a(f"s_cmp_eq_u32 s{S_A}, s{S_NOFB}")
        a(f"s_cbranch_scc1 {lab}")
        a(f"s_lshl_b32 s{S_B}, s{S_A}, 2")
        a(f"s_add_u32 s{S_B}, s{S_B}, {LDS_FLAG}")
        a(f"v_mov_b32 v{V_T2}, s{S_B}")
        a(f"ds_read_b32 v{V_T2}, v{V_T2}")
        a("s_waitcnt lgkmcnt(0)")
        a(f"v_readfirstlane_b32 s{S_B}, v{V_T2}")
        a("s_nop 3")
        a(f"s_cmp_lg_u32 s{S_B}, 0")
        a(f"s_cbranch_scc1 L_at_fallback")
        a.label(lab)

    def wo_issue_a(ps):
        a(f"s_and_b32 s{S_B}, s2, 127")
        a(f"s_mul_i32 s{S_B}, s{S_B}, {32*1280}")
        a(f"s_mul_i32 s{S_D}, s{S_WAVE}, 320")
        a(f"s_add_u32 s{S_B}, s{S_B}, s{S_D}")
        a(f"s_add_u32 s{S_B}, s{S_B}, {160*ps}")
        a(f"s_mul_i32 s{S_D}, s{S_WAVE}, 7168")
        a(f"s_add_u32 s{S_D}, s{S_D}, {4*AREA}")
        a(f"s_mov_b32 s{S_A}, 6554")
        for i in range(5):
            a(f"v_add_u32 v{V_T0}, {64*i}, v{V_LANE}")
            a(f"v_mul_u32_u24 v{V_T1}, s{S_A}, v{V_T0}")
            a(f"v_lshrrev_b32 v{V_T1}, 16, v{V_T1}")
            a(f"v_mul_u32_u24 v{V_T2}, 10, v{V_T1}")
            a(f"v_sub_u32 v{V_T2}, v{V_T0}, v{V_T2}")
            a(f"v_mul_u32_u24 v{V_T1}, 1280, v{V_T1}")
            a(f"s_add_u32 m0, s{S_D}, {1024*i}")
            a(f"v_lshl_add_u32 v{V_T3}, v{V_T2}, 4, v{V_T1}")
            a(f"buffer_load_dwordx4 v{V_T3}, s[84:87], s{S_B} offen lds")
    def wo_read_a():
        a(f"v_lshrrev_b32 v{V_T0}, 4, v{V_LANE}")
        a(f"v_bfe_u32 v{V_T1}, v{V_LANE}, 2, 2")
        a(f"v_lshl_add_u32 v{V_T1}, v{V_T0}, 3, v{V_T1}")
        a(f"v_mul_u32_u24 v{V_T1}, 160, v{V_T1}")
        a(f"v_and_b32 v{V_T2}, 3, v{V_LANE}")
        a(f"v_lshl_add_u32 v{V_T1}, v{V_T2}, 3, v{V_T1}")
        a(f"s_mul_i32 s{S_D}, s{S_WAVE}, 7168")
        a(f"s_add_u32 s{S_D}, s{S_D}, {4*AREA}")
        a(f"v_add_u32 v{V_T1}, s{S_D}, v{V_T1}")
        R = A_LS
        for t in range(5):
            for v in range(2):
                a(f"ds_read_b64_tr_b16 {ar(R+4*t+2*v,2)}, v{V_T1} offset:{v*640+t*32}")
    def wo_store_a(ps):
        R = A_LS
        a(f"v_lshlrev_b32 v{V_T2}, 4, v{V_LANE}")
        a(f"s_mul_i32 s{S_A}, s2, {40*1024}")
        a(f"s_mul_i32 s{S_B}, s{S_WAVE}, {10*1024}")
        a(f"s_add_u32 s{S_A}, s{S_A}, s{S_B}")
        a(f"s_add_u32 s{S_A}, s{S_A}, {WS_W+5120*ps}")
        a("s_waitcnt lgkmcnt(0)")
        for f in range(5):
            if f == 4: a(f"s_add_u32 s{S_A}, s{S_A}, 4096")
            a(f"buffer_store_dwordx4 {ar(R+4*f,4)}, v{V_T2}, s[{S_W}:{S_W+3}], s{S_A} offen offset:{1024*(f&3)} {wpol}".rstrip())
    def wo_finish_a(ps):
        wo_read_a(); wo_store_a(ps)
    def wo_issue(ps):
        D = V_S
        a(f"s_mov_b32 s{S_A}, 6554")
        for i in range(5):
            a(f"v_add_u32 v{V_T0}, {64*i}, v{V_LANE}")
            a(f"v_mul_u32_u24 v{V_T1}, s{S_A}, v{V_T0}")
            a(f"v_lshrrev_b32 v{V_T1}, 16, v{V_T1}")
            a(f"v_mul_u32_u24 v{V_T2}, 10, v{V_T1}")
            a(f"v_sub_u32 v{V_T2}, v{V_T0}, v{V_T2}")
            a(f"v_mul_u32_u24 v{V_T1}, 1280, v{V_T1}")
            a(f"v_lshl_add_u32 v{D+i}, v{V_T2}, 4, v{V_T1}")
        a(f"s_and_b32 s{S_A}, s2, 127")
        a(f"s_mul_i32 s{S_A}, s{S_A}, {32*1280}")
        a(f"s_mul_i32 s{S_B}, s{S_WAVE}, 320")
        a(f"s_add_u32 s{S_A}, s{S_A}, s{S_B}")
        a(f"s_add_u32 s{S_A}, s{S_A}, {160*ps}")
        a(f"s_mul_i32 s{S_D}, s{S_WAVE}, 7168")
        a(f"s_add_u32 s{S_D}, s{S_D}, {4*AREA}")
        for i in range(5):
            a(f"s_add_u32 m0, s{S_D}, {1024*i}")
            a("s_nop 0")
            a(f"buffer_load_dwordx4 v{D+i}, s[84:87], s{S_A} offen{' nt' if wont else ''} lds")
    def wo_finish(ps):
        if wo5:
            a(f"v_accvgpr_read_b32 v{V_T1}, a249")
        else:
            a(f"v_lshrrev_b32 v{V_T0}, 4, v{V_LANE}")
            a(f"v_bfe_u32 v{V_T1}, v{V_LANE}, 2, 2")
            a(f"v_lshl_add_u32 v{V_T1}, v{V_T0}, 3, v{V_T1}")
            a(f"v_mul_u32_u24 v{V_T1}, 160, v{V_T1}")
            a(f"v_and_b32 v{V_T2}, 3, v{V_LANE}")
            a(f"v_lshl_add_u32 v{V_T1}, v{V_T2}, 3, v{V_T1}")
            a(f"s_mul_i32 s{S_D}, s{S_WAVE}, 7168")
            a(f"s_add_u32 s{S_D}, s{S_D}, {4*AREA}")
            a(f"v_add_u32 v{V_T1}, s{S_D}, v{V_T1}")
        a(f"v_lshlrev_b32 v{V_T2}, 4, v{V_LANE}")
        a(f"s_mul_i32 s{S_A}, s2, {40*1024}")
        a(f"s_mul_i32 s{S_B}, s{S_WAVE}, {10*1024}")
        a(f"s_add_u32 s{S_A}, s{S_A}, s{S_B}")
        a(f"s_add_u32 s{S_A}, s{S_A}, {WS_W+5120*ps}")
        R = V_VF
        for t in range(5):
            for v in range(2):
                a(f"ds_read_b64_tr_b16 {vr(R+4*t+2*v,2)}, v{V_T1} offset:{v*640+t*32}")
        a("s_waitcnt lgkmcnt(0)")
        for f in range(5):
            if f == 4: a(f"s_add_u32 s{S_A}, s{S_A}, 4096")
            a(f"buffer_store_dwordx4 {vr(R+4*f,4)}, v{V_T2}, s[{S_W}:{S_W+3}], s{S_A} offen offset:{1024*(f&3)} {wpol}".rstrip())
        a("s_nop 1")

    def rt_setup():
        a(f"s_bfe_u32 s{S_A}, s2, 0x20003")
        a(f"s_lshl_b32 s{S_A}, s{S_A}, 3")
        a(f"v_lshrrev_b32 v{V_T0}, 3, v{V_LANE}")
        a(f"v_add_u32 v{V_T0}, s{S_A}, v{V_T0}")
        a(f"v_lshlrev_b32 v{V_T0}, 13, v{V_T0}")
        a(f"v_and_b32 v{V_T2}, 7, v{V_LANE}")
        a(f"v_lshl_add_u32 v{V_T0}, v{V_T2}, 5, v{V_T0}")
        a(f"v_bfe_u32 v{V_T1}, v{V_LANE}, 1, 4")
        a(f"v_min_u32 v{V_T1}, 13, v{V_T1}")
        a(f"s_and_b32 s{S_A}, s2, 7")
        a(f"s_mul_i32 s{S_A}, s{S_A}, 14")
        a(f"v_add_u32 v{V_T1}, s{S_A}, v{V_T1}")
        a(f"v_mul_u32_u24 v{V_T1}, 1280, v{V_T1}")
        a(f"v_and_b32 v{V_T2}, 1, v{V_LANE}")
        a(f"v_lshl_add_u32 v{V_T1}, v{V_T2}, 5, v{V_T1}")
        a(f"s_cmp_eq_u32 s{S_QH}, 0")
        a("s_cselect_b64 vcc, -1, 0")
        a("s_nop 1")
        a(f"v_cndmask_b32 v{V_T0}, v{V_T1}, v{V_T0}, vcc")
    def dly(us, tag):
        a("s_memrealtime s[78:79]")
        a("s_waitcnt lgkmcnt(0)")
        a(f"s_add_u32 s77, s78, {us*100}")
        a.label(f"L_dl{tag}")
        a("s_sleep 4")
        a("s_memrealtime s[78:79]")
        a("s_waitcnt lgkmcnt(0)")
        a("s_sub_u32 s79, s78, s77")
        a("s_cmp_lt_i32 s79, 0")
        a(f"s_cbranch_scc1 L_dl{tag}")
    def st(k):
        if pst:
            a("s_memrealtime s[78:79]")
            a("s_memtime s[80:81]")
            a("s_waitcnt lgkmcnt(0)")
            a("s_mov_b32 m0, s77"); a("s_nop 0"); a("v_writelane_b32 v0, s78, m0")
            a("s_add_u32 m0, s77, 30"); a("s_nop 0"); a("v_writelane_b32 v0, s80, m0")
            a("s_add_u32 s77, s77, 1")
        if stamp:
            if st0:
                n = len(a.lines)
                a(f"s_cmp_ge_u32 s{S_T}, {1 if k < 3 else 2}")
                a(f"s_cbranch_scc1 L_st_{n}")
            a(f"s_memtime s[{72+2*k}:{73+2*k}]")
            if st0: a.label(f"L_st_{n}")
    if pst:
        a("s_memrealtime s[78:79]")
        a("s_memtime s[80:81]")
        a("s_waitcnt lgkmcnt(0)")
        a("v_mov_b32 v0, 0")
        a("v_writelane_b32 v0, s78, 0")
        a("v_writelane_b32 v0, s80, 30")
        a("v_writelane_b32 v0, s74, 61")
        a("s_mov_b32 s77, 1")
    if delay:
        a("s_bitcmp1_b32 s2, 0")
        a("s_cbranch_scc0 L_nodelay")
        a("s_memrealtime s[78:79]")
        a("s_waitcnt lgkmcnt(0)")
        a(f"s_add_u32 s77, s78, {delay*100}")
        a.label("L_dl")
        a("s_sleep 8")
        a("s_memrealtime s[78:79]")
        a("s_waitcnt lgkmcnt(0)")
        a("s_sub_u32 s79, s78, s77")
        a("s_cmp_lt_i32 s79, 0")
        a("s_cbranch_scc1 L_dl")
        a.label("L_nodelay")
    a.label("L_at_start")
    if trace:
        a("s_mov_b32 s77, 1")
        a(f"v_mov_b32 v{V_T3}, s64")
        a("s_memtime s[78:79]")
        a("s_waitcnt lgkmcnt(0)")
        a(f"v_cmp_eq_u32 vcc, s77, v{V_LANE}")
        a(f"v_mov_b32 v{V_T2}, s78")
        a("s_nop 1")
        a(f"v_cndmask_b32 v{V_T3}, v{V_T3}, v{V_T2}, vcc")
        a("s_add_u32 s77, s77, 1")
    a(f"s_mov_b32 s{S_T}, s{S_T0}")
    a(f"s_lshl_b32 s{S_DJ}, s{S_T0}, 5")
    a(f"s_add_u32 s{S_D}, s{S_T}, s{S_PRE}")
    qs_init(S_D, "pre")
    if roll:
        rt_setup()
        for sl in range(2):
            dma_setup(sl, "QP")
            for _ in range(8): dma_one(True)
        a(f"s_mov_b32 s{S_B}, s{S_QS}")
        for _ in range(6):
            a(f"buffer_load_dword v0, v{V_T0}, s[{S_QP}:{S_QP+3}], s{S_B} offen{' nt' if tnt else ''}")
            a(f"s_add_u32 s{S_B}, s{S_B}, s{S_QSTEP}")
        for sl in range(2, 4):
            dma_setup(sl, "QP")
            for _ in range(8): dma_one(True)
        a(f"s_waitcnt vmcnt(30) lgkmcnt(0)")
    else:
        if wtl:
            a(f"s_and_b32 s56, s2, 127")
            a(f"s_mul_i32 s56, s56, {32*1280}")
            a(f"v_mov_b32 v{V_S+14}, 0")
            if wtl == 2: a(f"v_mul_u32_u24 v{V_S+14}, 640, v{V_LANE}")
            a(f"buffer_load_dword v{V_S+15}, v{V_S+14}, s[84:87], s56 offen")
        for sl in range(4):
            dma_setup(sl, "QP")
            for _ in range(8): dma_one(True)
            if pro1 and sl == 0:
                st(9)
                a("s_waitcnt vmcnt(0)")
                st(9)
        if wo5 or wo8:
            a(f"s_and_b32 s56, s2, 127")
            a(f"s_mul_i32 s56, s56, {32*1280}")
            a(f"s_mul_i32 s58, s{S_WAVE}, 320")
            a(f"s_add_u32 s56, s56, s58")
            a(f"s_mul_i32 s58, s{S_WAVE}, 7168")
            a(f"s_add_u32 s58, s58, {4*AREA}")
            a(f"s_mov_b32 s{S_A}, 6554")
            for i in range(5):
                a(f"v_add_u32 v{V_T0}, {64*i}, v{V_LANE}")
                a(f"v_mul_u32_u24 v{V_T1}, s{S_A}, v{V_T0}")
                a(f"v_lshrrev_b32 v{V_T1}, 16, v{V_T1}")
                a(f"v_mul_u32_u24 v{V_T2}, 10, v{V_T1}")
                a(f"v_sub_u32 v{V_T2}, v{V_T0}, v{V_T2}")
                a(f"v_mul_u32_u24 v{V_T1}, 1280, v{V_T1}")
                a(f"v_lshl_add_u32 v{V_T3}, v{V_T2}, 4, v{V_T1}")
                a(f"v_accvgpr_write_b32 a{244+i}, v{V_T3}")
            a(f"v_lshrrev_b32 v{V_T0}, 4, v{V_LANE}")
            a(f"v_bfe_u32 v{V_T1}, v{V_LANE}, 2, 2")
            a(f"v_lshl_add_u32 v{V_T1}, v{V_T0}, 3, v{V_T1}")
            a(f"v_mul_u32_u24 v{V_T1}, 160, v{V_T1}")
            a(f"v_and_b32 v{V_T2}, 3, v{V_LANE}")
            a(f"v_lshl_add_u32 v{V_T1}, v{V_T2}, 3, v{V_T1}")
            a(f"v_add_u32 v{V_T1}, s58, v{V_T1}")
            a(f"v_accvgpr_write_b32 a249, v{V_T1}")
        if tlbw:
            a(f"v_lshlrev_b32 v{V_S+13}, 12, v{V_LANE}")
            a(f"buffer_load_dword v{V_S+12}, v{V_S+13}, s[{S_LD}:{S_LD+3}], 0 offen nt")
            if tlbw > 1:
                a(f"s_mov_b32 s{S_A}, 0x80000")
                a(f"buffer_load_dword v{V_S+12}, v{V_S+13}, s[{S_LD}:{S_LD+3}], s{S_A} offen nt")
        if bulk0 and touch:
            touch_init(S_D)
            for _ in range(5): touch_one()
        if cpf and cpflate:
            for k in range(cpf // 16):
                a(f"s_mov_b32 s76, {k*16384}")
                a("buffer_load_dword v104, v105, s[72:75], s76 offen")
        a(f"s_waitcnt vmcnt({(29 if (bulk0 and touch) else 16 if qch2 else 24) + (cpf // 16 if cpflate else 0)}) lgkmcnt(0)")
    a("s_barrier")
    a.label("L_at_round")
    st(0)
    if roll: rt_setup()
    if qch2:
        for lp in range(4):
            for kk in range(2): wread2(lp, kk, 0)
        for kk in range(2):
            for qt in range(7): bread2(0, kk, qt, kk)
    else:
        for l in range(8): wread(l, 0)
        for qt in range(7): bread(0, qt, 0)
    a.lds_wait_all()
    def qp_body(role):
        sfx = role or ""
        vns = {None: (22, 17, 18, 18, 18), "W": (16, 16, 16, 16, 16), "X": (16, 22, 28, 28, 28), "T": (16, 20, 20, 63, 63)}[role]
        nts = (6, 4, 4, 2)
        qp_stage(0, first=True, chk=True, after_store=True, vn=vns[0], role=role, ntouch=nts[0], sidx=0, code=("P", 0))
        qp_stage(1, first=qch2, after_store=True, vn=vns[1], role=role, ntouch=nts[1], sidx=1, code=("P", 1))
        qp_stage(2, after_store=True, vn=vns[2], role=role, ntouch=nts[2], sidx=2, code=("P", 2))
        qp_stage(3, vn=vns[3], role=role, ntouch=nts[3], sidx=3, code=("P", 3))
        if not wo2 and not wo8 and not woff:
            a(f"s_cmp_lg_u32 s{S_WO}, 0")
            a(f"s_cbranch_scc1 L_at_nowo0{sfx}")
            a(f"s_mov_b32 s{S_WO}, 1")
            wo_issue(0)
            if roll: rt_setup()
            a.label(f"L_at_nowo0{sfx}")
        a(f"s_mov_b32 s{S_CNT}, 0")
        a.label(f"L_at_qploop{sfx}")
        a.lds_q = []
        if wo6:
            a(f"s_lshl3_add_u32 s{S_A}, s{S_WO}, s{S_CNT}")
            a(f"s_cmp_eq_u32 s{S_A}, {int(wo6[0])}")
            a("s_cbranch_scc1 L_at_wh0")
            a(f"s_cmp_eq_u32 s{S_A}, {8 + int(wo6[1])}")
            a("s_cbranch_scc1 L_at_wh1")
            a.label("L_at_whr")
            def h0():
                a(f"s_mov_b32 s{S_WO}, 1")
                for i in range(5):
                    a(f"s_add_u32 m0, s58, {1024*i}")
                    a(f"v_accvgpr_read_b32 v{V_T3}, a{244+i}")
                    a(f"buffer_load_dwordx4 v{V_T3}, s[84:87], s56 offen lds")
                a("s_branch L_at_whr")
            def h1():
                a(f"s_mov_b32 s{S_WO}, 2")
                a(f"v_accvgpr_read_b32 v{V_T1}, a249")
                a("s_add_u32 s57, s56, 160")
                for t in range(5):
                    for v in range(2):
                        a(f"ds_read_b64_tr_b16 {ar(A_LS+4*t+2*v,2)}, v{V_T1} offset:{v*640+t*32}")
                a("s_waitcnt lgkmcnt(0)")
                for i in range(5):
                    a(f"s_add_u32 m0, s58, {1024*i}")
                    a(f"v_accvgpr_read_b32 v{V_T3}, a{244+i}")
                    a(f"buffer_load_dwordx4 v{V_T3}, s[84:87], s57 offen lds")
                a("s_branch L_at_whr")
            state.setdefault("ool", []).extend(["L_at_wh0:"] + capture(h0) + ["L_at_wh1:"] + capture(h1))
        for sm in range(4): qp_stage(sm, vn=vns[4], role=role, sidx=4+sm, code=("L", sm))
        a(f"s_add_u32 s{S_CNT}, s{S_CNT}, 1")
        a(f"s_cmp_lt_u32 s{S_CNT}, 3")
        a(f"s_cbranch_scc1 L_at_qploop{sfx}")
    if not roles:
        qp_body(None)
    else:
        a(f"s_cmp_eq_u32 s{S_WAVE}, 1")
        a("s_cbranch_scc1 L_at_qpX")
        a(f"s_cmp_eq_u32 s{S_WAVE}, 3")
        a("s_cbranch_scc1 L_at_qpT")
        qp_body("W")
        a("s_branch L_at_qpjoin")
        a.label("L_at_qpX")
        qp_body("X")
        a("s_branch L_at_qpjoin")
        a.label("L_at_qpT")
        a(f"s_bfe_u32 s{S_A}, s2, 0x20003")
        a(f"s_lshl_b32 s{S_A}, s{S_A}, 3")
        a(f"v_lshrrev_b32 v{V_T0}, 3, v{V_LANE}")
        a(f"v_add_u32 v{V_T0}, s{S_A}, v{V_T0}")
        a(f"v_lshlrev_b32 v{V_T0}, 13, v{V_T0}")
        a(f"v_and_b32 v{V_T1}, 7, v{V_LANE}")
        a(f"v_lshl_add_u32 v{V_T0}, v{V_T1}, 6, v{V_T0}")
        a(f"v_min_u32 v{V_T1}, 27, v{V_LANE}")
        a(f"s_and_b32 s{S_A}, s2, 7")
        a(f"s_mul_i32 s{S_B}, s{S_A}, 28")
        a(f"v_add_u32 v{V_T1}, s{S_B}, v{V_T1}")
        a(f"v_mul_u32_u24 v{V_T1}, 1280, v{V_T1}")
        a(f"s_lshl_b32 s{S_A}, s{S_A}, 10")
        a(f"s_lshl_b32 s{S_B}, s101, 9")
        a(f"s_add_u32 s98, s{S_A}, s{S_B}")
        a(f"s_add_u32 s98, s98, {4*32*8192}")
        a(f"s_bfe_u32 s{S_A}, s2, 0x40003")
        a(f"s_mul_i32 s99, s{S_A}, {224*1280}")
        a(f"s_add_u32 s99, s99, {4*64}")
        qp_body("T")
        a.label("L_at_qpjoin")
    a(f"s_cmp_lg_u32 s{S_PRE}, 0")
    a("s_cbranch_scc1 L_at_qptailB")
    for sm in range(4): qp_stage(sm, dma="KV", last=(sm == 3), vn=(18, 17, 16, 16)[sm], sidx=16+sm, code=("T", sm))
    a("s_branch L_at_qpepi")
    a.label("L_at_qptailB")
    qs_init(S_T)
    a.lds_q = []
    for sm in range(4): qp_stage(sm, dma="QP", last=(sm == 3), vn=18, nok=True, sidx=16+sm, code=("B", sm))
    a.label("L_at_qpepi")
    if qdelay: dly(qdelay, "q")
    st(1)
    if trace:
        a("s_cmp_lg_u32 s2, 5")
        a("s_cbranch_scc1 L_tr_skip")
        a(f"s_cmp_lg_u32 s{S_T}, 0")
        a("s_cbranch_scc1 L_tr_skip")
        a(f"s_cmp_lg_u32 s{S_WAVE}, 0")
        a("s_cbranch_scc1 L_tr_skip")
        a("s_mov_b32 s80, s46"); a("s_mov_b32 s81, s47"); a("s_mov_b32 s82, 256"); a("s_mov_b32 s83, 0x20000")
        a(f"v_lshlrev_b32 v{V_T2}, 2, v{V_LANE}")
        a(f"v_add_u32 v{V_T2}, 128, v{V_T2}")
        a(f"buffer_store_dword v{V_T3}, v{V_T2}, s[80:83], 0 offen")
        a.label("L_tr_skip")
    if defer: a("s_mov_b32 s98, 0x40000000")
    a(f"v_mov_b32 v{V_T2}, s{S_CS}")
    a(f"v_mov_b32 v{V_T3}, s{S_CS}")
    a("s_nop 6")
    TMP = V_S
    for T in range(4):
        if T < 2:
            base = lambda e, qt: V_OK + 28 * (2 * T + e) + 4 * qt
        else:
            base = lambda e, qt: V_OK + 28 * (2 * (T - 2) + e) + 4 * qt
            for e in range(2):
                for qt in range(7):
                    for r in range(4):
                        a(f"v_accvgpr_read_b32 v{base(e,qt)+r}, a{A_OS+28*(2*(T-2)+e)+4*qt+r}")
        for e in range(2):
            for qt in range(7):
                o = base(e, qt)
                for h in range(2):
                    a(f"v_pk_mul_f32 {vr(o+2*h,2)}, {vr(o+2*h,2)}, {vr(V_T2,2)}")
        pk = lambda qt: TMP + 28 * (T & 1) + 4 * qt
        for qt in range(7):
            oe = base(0, qt); oo = base(1, qt); p = pk(qt)
            a(f"v_cvt_pk_bf16_f32 v{p}, v{oe}, v{oe+1}")
            a(f"v_cvt_pk_bf16_f32 v{p+1}, v{oe+2}, v{oe+3}")
            a(f"v_cvt_pk_bf16_f32 v{p+2}, v{oo}, v{oo+1}")
            a(f"v_cvt_pk_bf16_f32 v{p+3}, v{oo+2}, v{oo+3}")
        a("s_nop 1")
        for qt in range(7):
            p = pk(qt)
            a(f"v_permlane16_swap_b32 v{p}, v{p+2}")
            a(f"v_permlane16_swap_b32 v{p+1}, v{p+3}")
        for qt in range(7):
            for r in range(4):
                a(f"v_accvgpr_write_b32 a{A_Q+16*qt+4*T+r}, v{pk(qt)+r}")
    a(f"s_cmp_eq_u32 s{S_PRE}, 0")
    a("s_cbranch_scc1 L_at_nostash")
    a(f"s_mov_b32 s{S_PRE}, 0")
    qstash_off()
    for i in range(7):
        for s_ in range(4):
            a(f"buffer_store_dwordx4 {ar(A_Q+16*i+4*s_,4)}, v{V_T2}, s[{S_W}:{S_W+3}], s{S_C} offen offset:{1024*s_} {qpol}".rstrip())
        if i < 6: a(f"s_add_u32 s{S_C}, s{S_C}, 4096")
    a(f"s_mov_b32 s{S_AS}, 3")
    a("s_branch L_at_round")
    a.label("L_at_nostash")
    a(f"s_cmp_lg_u32 s{S_MP}, 0")
    a("s_cbranch_scc1 L_at_maxpass")
    a.label("L_at_pre")
    if wo6 or wo8 or woff:
        pass
    elif wo2:
        assert inv
        a(f"s_cmp_lg_u32 s{S_WO}, 0")
        a("s_cbranch_scc1 L_at_nowo1a")
        a(f"s_mov_b32 s{S_WO}, {2 if wo5 else 1}")
        a(f"s_mov_b32 s{S_AS}, 0x103")
        if wo5:
            a(f"v_accvgpr_read_b32 v{V_T1}, a249")
            a("s_add_u32 s57, s56, 160")
            a("s_waitcnt vmcnt(24)")
            for t in range(5):
                for v in range(2):
                    a(f"ds_read_b64_tr_b16 {ar(A_LS+4*t+2*v,2)}, v{V_T1} offset:{v*640+t*32}")
            a("s_waitcnt lgkmcnt(0)")
            for i in range(5):
                a(f"s_add_u32 m0, s58, {1024*i}")
                a(f"v_accvgpr_read_b32 v{V_T3}, a{244+i}")
                a(f"buffer_load_dwordx4 v{V_T3}, s[84:87], s57 offen lds")
        else:
            wo_issue(0)
        if not (wo3 or wo4): a("s_branch L_at_nowo1")
        a.label("L_at_nowo1a")
        if not (wo3 or wo4):
            a(f"s_cmp_lg_u32 s{S_WO}, 2")
            a("s_cbranch_scc1 L_at_nowo1")
            a(f"s_cmp_lg_u32 s{S_TY}, 0")
            a("s_cbranch_scc1 L_at_nowo1")
            a(f"s_mov_b32 s{S_WO}, 3")
            a(f"s_mov_b32 s{S_AS}, 0x103")
            wo_finish(1)
    else:
        a(f"s_cmp_lg_u32 s{S_WO}, 1")
        a("s_cbranch_scc1 L_at_nowo1")
        a(f"s_mov_b32 s{S_WO}, 2")
        wo_finish(0)
        wo_issue(1)
    a.label("L_at_nowo1")
    st(2)
    a.lds_q = ["K"]
    state["n"] = 0
    z = []
    for l in range(8):
        for r in range(4):
            z.append(f"v_mov_b32 v{V_OK+28*l+24+r}, 0" if l < 4 else f"v_accvgpr_write_b32 a{A_OS+28*(l-4)+24+r}, 0")
    if ones: z += [f"v_accvgpr_write_b32 a{A_LS+24+r}, 0" for r in range(4)]
    emit(qk_items(0, 0, True, None), z[:16])
    for o in z[16:]: a(o)
    step(0, first=True, dyn=True)
    a(f"s_mov_b32 s{S_CNT}, 0")
    if align:
        a.lines.append(".p2align 6")
        if align == 2: a("s_nop 0")
    a.label("L_at_loop")
    q0 = list(a.lds_q)
    state["inat"] = True
    for jm in (1, 2, 3, 0): step(jm, dyn=(jm in (1, 2)))
    state["inat"] = False
    assert q0 == a.lds_q, (q0, a.lds_q)
    if pstl:
        a("s_memrealtime s[78:79]")
        a("s_memtime s[80:81]")
        a("s_waitcnt lgkmcnt(0)")
        a("s_mov_b32 s76, m0")
        a("s_mov_b32 m0, s77"); a("s_nop 0"); a("v_writelane_b32 v0, s78, m0")
        a("s_add_u32 m0, s77, 30"); a("s_nop 0"); a("v_writelane_b32 v0, s80, m0")
        a("s_add_u32 s77, s77, 1")
        a("s_mov_b32 m0, s76")
    a(f"s_add_u32 s{S_CNT}, s{S_CNT}, 1")
    if wo3:
        assert lp7 and not ones
        a(f"s_lshl3_add_u32 s{S_A}, s{S_WO}, s{S_CNT}")
        a(f"s_cmp_eq_u32 s{S_A}, {8 + wo3}")
        a("s_cbranch_scc1 L_at_wof0")
        a.label("L_at_wof0r")
    a(f"s_cmp_lt_u32 s{S_CNT}, {7 if lp7 else 6}")
    a("s_cbranch_scc1 L_at_loop")
    if wo4 and not wo5:
        assert lp7 and not ones
        a(f"s_cmp_lg_u32 s{S_WO}, 1")
        a("s_cbranch_scc1 L_at_nowoi1")
        a(f"s_mov_b32 s{S_WO}, 2")
        a(f"s_mov_b32 s{S_AS}, 0x102")
        wo_read_a()
        a("s_waitcnt lgkmcnt(0)")
        wo_issue_a(1)
        a.label("L_at_nowoi1")
    if wo3:
        a(f"s_cmp_lg_u32 s{S_WO}, 2")
        a("s_cbranch_scc1 L_at_nowoi1")
        a(f"s_mov_b32 s{S_WO}, 3")
        a(f"s_mov_b32 s{S_AS}, 0x102")
        wo_issue_a(1)
        a.label("L_at_nowoi1")
        ls = capture(lambda: (wo_finish_a(0), a(f"s_mov_b32 s{S_WO}, 2"), a(f"s_mov_b32 s{S_AS}, 0x102"), a("s_branch L_at_wof0r")))
        state.setdefault("ool", []).extend(["L_at_wof0:"] + ls)
    a(f"s_add_u32 s{S_T}, s{S_T}, 1")
    touch_init(S_T)
    assert not (lp7 and early)
    if not lp7:
        step(1, nt_=3); step(2, nt_=2); step(3, tr_=True)
    if strace: a("s_memtime s[62:63]")
    qs_init(S_T)
    if not early and not lp7: step(0)
    def wtouch():
        a(f"s_and_b32 s{S_A}, s2, 127")
        a(f"s_mul_i32 s{S_A}, s{S_A}, {32*1280}")
        a(f"s_mul_i32 s{S_B}, s{S_WAVE}, {80*128}")
        a(f"s_add_u32 s{S_A}, s{S_A}, s{S_B}")
        a(f"v_lshlrev_b32 v{V_T2}, 7, v{V_LANE}")
        a(f"v_and_b32 v{V_T3}, 15, v{V_LANE}")
        a(f"v_lshlrev_b32 v{V_T3}, 7, v{V_T3}")
        a(f"buffer_load_dword a250, v{V_T2}, s[84:87], s{S_A} offen")
        a(f"s_add_u32 s{S_A}, s{S_A}, {64*128}")
        a(f"buffer_load_dword a251, v{V_T3}, s[84:87], s{S_A} offen")
        if wtch in (2, 3):
            a(f"s_mov_b32 s{S_A}, 0x40000000")
            for _ in range(3): a(f"buffer_load_dword a251, v{V_T3}, s[84:87], s{S_A} offen")
            a(f"s_mov_b32 s{S_AS}, {0x103 if wtch == 2 else 0x102}")
    if wtch in (1, 2, 3):
        a(f"s_cmp_eq_u32 s{S_T}, 2")
        a("s_cbranch_scc1 L_at_wt0")
        a.label("L_at_wt0r")
        state.setdefault("ool", []).extend(["L_at_wt0:"] + capture(lambda: (wtouch(), a("s_branch L_at_wt0r"))))
    if wo8:
        assert lp7 and inv
        a(f"s_lshl3_add_u32 s{S_A}, s{S_T}, s{S_WO}")
        a(f"s_cmp_eq_u32 s{S_A}, 16")
        a("s_cbranch_scc1 L_at_w8h0")
        a.label("L_at_w8h0r")
        def h0body():
            a(f"s_mov_b32 s{S_WO}, 1")
            a(f"s_mov_b32 s{S_AS}, 0x102")
            for i in range(5):
                a(f"s_add_u32 m0, s58, {1024*i}")
                a(f"v_accvgpr_read_b32 v{V_T3}, a{244+i}")
                if not wo8 & 16: a(f"buffer_load_dwordx4 v{V_T3}, s[84:87], s56 offen lds")
            a("s_branch L_at_w8h0r")
        state.setdefault("ool", []).extend(["L_at_w8h0:"] + capture(h0body))
    if eep:
        assert not (rflip or defer or ones or early or wo2 or wo8 or touch or kvt2 or stpol0 is not None) and inv and lp7 and wtch in (0, 1)
        a(f"s_mul_i32 s{S_D}, s{S_T}, {2*PAIRB}")
        a(f"s_add_u32 s{S_D}, s{S_D}, s{S_OOFF}")
        a(f"s_sub_u32 s{S_D}, s{S_D}, {2*PAIRB}")
    a(f"s_cmp_lg_u32 s{S_TY}, 0")
    a("s_cbranch_scc1 L_at_atailB")
    n0 = state["n"]; q0 = list(a.lds_q); c0 = state.get("carry")
    if early: step(0, dma="QP")
    tdyn = bool((wo3 or wo4) and not wo5) or bool(wo8) or wtch in (2, 3)
    def h1(tag):
        if wtch == 3:
            a(f"s_cmp_eq_u32 s{S_T}, 2")
            a(f"s_cselect_b32 s{S_AS}, 0x301, s{S_AS}")
        if not wo8: return
        a(f"s_cmp_eq_u32 s{S_WO}, 1")
        a(f"s_cbranch_scc1 L_at_w8h1{tag}")
        a.label(f"L_at_w8h1r{tag}")
        def body():
            a(f"s_mov_b32 s{S_WO}, 2")
            a(f"s_mov_b32 s{S_AS}, 0x101")
            a(f"v_accvgpr_read_b32 v{V_T1}, a249")
            a("s_add_u32 s57, s56, 160")
            a(f"v_lshlrev_b32 v{V_T2}, 4, v{V_LANE}")
            a(f"s_mul_i32 s{S_A}, s2, {40*1024}")
            a(f"s_mul_i32 s{S_B}, s{S_WAVE}, {10*1024}")
            a(f"s_add_u32 s{S_A}, s{S_A}, s{S_B}")
            a(f"s_add_u32 s{S_A}, s{S_A}, {WS_W}")
            if not wo8 & 8: a("s_waitcnt vmcnt(16)")
            for t in range(5):
                for v in range(2):
                    a(f"ds_read_b64_tr_b16 {ar(A_LS+4*t+2*v,2)}, v{V_T1} offset:{v*640+t*32}")
            a("s_waitcnt lgkmcnt(0)")
            for i in range(5):
                a(f"s_add_u32 m0, s58, {1024*i}")
                a(f"v_accvgpr_read_b32 v{V_T3}, a{244+i}")
                if not wo8 & 4: a(f"buffer_load_dwordx4 v{V_T3}, s[84:87], s57 offen lds")
            for f in range(5):
                if f == 4: a(f"s_add_u32 s{S_A}, s{S_A}, 4096")
                if not wo8 & 2: a(f"buffer_store_dwordx4 {ar(A_LS+4*f,4)}, v{V_T2}, s[{S_W}:{S_W+3}], s{S_A} offen offset:{1024*(f&3)} {wpol}".rstrip())
            a(f"s_branch L_at_w8h1r{tag}")
        state.setdefault("ool", []).extend([f"L_at_w8h1{tag}:"] + capture(body))
    ixA0 = len(a.lines)
    step(1, dma="QP", dyn=tdyn); step(2, dma="QP", dyn=tdyn); h1("A"); step(3, dma="QP", last=True, dyn=bool(wo8) or wtch in (2, 3))
    ixA1 = len(a.lines)
    a("s_branch L_at_aepi")
    a.label("L_at_atailB")
    state["n"] = n0; a.lds_q = q0; state["carry"] = c0
    if early: step(0)
    ixB0 = len(a.lines)
    step(1, dyn=tdyn); step(2, dyn=tdyn); h1("B"); step(3, last=True, dyn=bool(wo8) or wtch in (2, 3))
    ixB1 = len(a.lines)
    a.label("L_at_aepi")
    if adelay: dly(adelay, "a")
    a.lds_q = ["V"]
    st(3)
    E = V_S
    red = [f"v_add_f32 v{V_L+2*i}, v{V_L+2*i}, v{V_L+2*i+1}" for i in range(7)]
    red += [f"v_mov_b32 v{E+i}, v{V_L+2*i}" for i in range(7)]
    red += [f"v_permlane16_swap_b32 v{V_L+2*i}, v{E+i}" for i in range(7)]
    red += [f"v_add_f32 v{V_L+2*i}, v{V_L+2*i}, v{E+i}" for i in range(7)]
    red += [f"v_mov_b32 v{E+i}, v{V_L+2*i}" for i in range(7)]
    red += [f"v_permlane32_swap_b32 v{V_L+2*i}, v{E+i}" for i in range(7)]
    red += [f"v_add_f32 v{V_L+2*i}, v{V_L+2*i}, v{E+i}" for i in range(7)]
    a("s_nop 1")
    ixP0 = len(a.lines)
    if eep:
        emit(pv_items(6, 1, False, None), ep_merge(ep_red(6), ep_red(5) + ep_tile(5, eep == 2)))
    elif ones:
        emit(pv_items(6, 1, False, None), [])
        a("s_nop 7")
        for i in range(7): a(f"v_accvgpr_read_b32 v{V_L+2*i}, a{A_LS+4*i}")
    else:
        emit(pv_items(6, 1, False, None), red)
    if not eep:
        for i in range(7): a(f"v_rcp_f32 v{V_CI+4*i}, v{V_L+2*i}")
    a(f"v_add_f32 v{E+2}, v{V_L}, v{V_L+2}")
    a(f"v_add_f32 v{E+3}, v{V_L+4}, v{V_L+6}")
    a(f"v_add_f32 v{E+4}, v{V_L+8}, v{V_L+10}")
    a(f"v_add_f32 v{E+2}, v{E+2}, v{V_L+12}")
    a(f"v_add_f32 v{E+3}, v{E+3}, v{E+4}")
    a(f"v_add_f32 v{E+2}, v{E+2}, v{E+3}")
    a(f"v_cmp_nge_f32 vcc, s{S_THR}, v{E+2}")
    for i in range(7): a(f"v_mov_b32 v{V_L+2*i}, 0xff800000")
    a("s_cmp_eq_u64 vcc, 0")
    a("s_cbranch_scc1 L_at_noflag")
    if nofb: a("s_branch L_at_noflag")
    a(f"s_lshl_b32 s{S_B}, s{S_T}, 2")
    a(f"s_add_u32 s{S_B}, s{S_B}, {LDS_FLAG-4}")
    a(f"v_mov_b32 v{E+2}, s{S_B}")
    a(f"v_mov_b32 v{E+3}, 1")
    a(f"ds_write_b32 v{E+2}, v{E+3}")
    a.label("L_at_noflag")
    if eep:
        for o in ep_tile(6, True): a(o)
    elif rflip:
        a(f"s_sub_u32 s{S_D}, s{S_T}, 1")
        a(f"s_mul_i32 s{S_D}, s{S_D}, s99")
        a(f"s_add_u32 s{S_D}, s{S_D}, s{S_OOFF}")
    else:
        a(f"s_mul_i32 s{S_D}, s{S_T}, {2*PAIRB}")
        a(f"s_add_u32 s{S_D}, s{S_D}, s{S_OOFF}")
        a(f"s_sub_u32 s{S_D}, s{S_D}, {2*PAIRB}")
    if defer:
        a(f"s_cmp_lt_u32 s{S_T}, 2")
        a(f"s_cselect_b32 s99, 1, 0")
        a(f"s_cmp_eq_u32 s{S_TY}, 0")
        a(f"s_cselect_b32 s99, s99, 0")
        a(f"s_cmp_lg_u32 s99, 0")
        a(f"s_cselect_b32 s98, s{S_D}, s98")
    for T in range(0 if eep else 4):
        if T < 2:
            base = lambda e, qt: V_OK + 28 * (2 * T + e) + 4 * qt
        else:
            base = lambda e, qt: V_OK + 28 * (2 * (T - 2) + e) + 4 * qt
            for e in range(2):
                for qt in range(7):
                    for r in range(4):
                        a(f"v_accvgpr_read_b32 v{base(e,qt)+r}, a{A_OS+28*(2*(T-2)+e)+4*qt+r}")
        for e in range(2):
            for qt in range(7):
                o = base(e, qt)
                for h in range(2):
                    a(f"v_pk_mul_f32 {vr(o+2*h,2)}, {vr(o+2*h,2)}, {vr(V_CI+4*qt,2)} op_sel_hi:[1,0]")
        pk = lambda qt: V_S + 28 * (T & 1) + 4 * qt
        for qt in range(7):
            oe = base(0, qt); oo = base(1, qt); p = pk(qt)
            a(f"v_cvt_pk_bf16_f32 v{p}, v{oe}, v{oe+1}")
            a(f"v_cvt_pk_bf16_f32 v{p+1}, v{oe+2}, v{oe+3}")
            a(f"v_cvt_pk_bf16_f32 v{p+2}, v{oo}, v{oo+1}")
            a(f"v_cvt_pk_bf16_f32 v{p+3}, v{oo+2}, v{oo+3}")
        a("s_nop 1")
        for qt in range(7):
            p = pk(qt)
            a(f"v_permlane16_swap_b32 v{p}, v{p+2}")
            a(f"v_permlane16_swap_b32 v{p+1}, v{p+3}")
        if defer:
            a(f"s_cmp_lg_u32 s99, 0")
            a(f"s_cbranch_scc1 L_at_dfr{T}")
        a(f"s_mov_b32 s{S_A}, s{S_D}")
        if stpol0 is not None:
            a(f"s_cmp_ge_u32 s{S_T}, 2")
            a(f"s_cbranch_scc1 L_at_sp1_{T}")
            for qt in range(7):
                a(f"buffer_store_dwordx4 {vr(pk(qt),4)}, v{V_XA}, s[{S_W}:{S_W+3}], s{S_A} offen offset:{1024*T} {stpol0}".rstrip())
                if qt < 6: a(f"s_add_u32 s{S_A}, s{S_A}, 4096")
            a(f"s_branch L_at_sp2_{T}")
            a.label(f"L_at_sp1_{T}")
        for qt in range(7):
            if not nost: a(f"buffer_store_dwordx4 {vr(pk(qt),4)}, v{V_XA}, s[{S_W}:{S_W+3}], s{S_A} offen offset:{1024*T} {stpol}".rstrip())
            if dupst:
                a(f"s_sub_u32 s{S_B}, s{S_A}, {WS_O - 30000000}")
                a(f"buffer_store_dwordx4 {vr(pk(qt),4)}, v{V_XA}, s[72:75], s{S_B} offen offset:{1024*T}")
            if qt < 6: a(f"s_add_u32 s{S_A}, s{S_A}, 4096")
        if stpol0 is not None: a.label(f"L_at_sp2_{T}")
        if defer:
            a(f"s_branch L_at_dfj{T}")
            a.label(f"L_at_dfr{T}")
            for qt in range(7):
                for r in range(4):
                    a(f"v_accvgpr_write_b32 a{A_Q+16*qt+4*T+r}, v{pk(qt)+r}")
            a.label(f"L_at_dfj{T}")
    a("s_nop 1")
    if wo8:
        a(f"s_cmp_lg_u32 s{S_WO}, 2")
        a("s_cbranch_scc1 L_at_nowo2")
        a(f"s_mov_b32 s{S_WO}, 4")
        a(f"v_accvgpr_read_b32 v{V_T1}, a249")
        a(f"v_lshlrev_b32 v{V_T2}, 4, v{V_LANE}")
        a(f"s_mul_i32 s{S_A}, s2, {40*1024}")
        a(f"s_mul_i32 s{S_B}, s{S_WAVE}, {10*1024}")
        a(f"s_add_u32 s{S_A}, s{S_A}, s{S_B}")
        a(f"s_add_u32 s{S_A}, s{S_A}, {WS_W+5120}")
        a("s_waitcnt vmcnt(49)")
        R = V_VF
        for t in range(5):
            for v in range(2):
                a(f"ds_read_b64_tr_b16 {vr(R+4*t+2*v,2)}, v{V_T1} offset:{v*640+t*32}")
        a("s_waitcnt lgkmcnt(0)")
        for f in range(5):
            if f == 4: a(f"s_add_u32 s{S_A}, s{S_A}, 4096")
            a(f"buffer_store_dwordx4 {vr(R+4*f,4)}, v{V_T2}, s[{S_W}:{S_W+3}], s{S_A} offen offset:{1024*(f&3)} {wpol}".rstrip())
        a("s_nop 1")
    elif wo4:
        a(f"s_mov_b32 s{S_AS}, 3")
        a(f"s_cmp_lg_u32 s{S_WO}, 2")
        a("s_cbranch_scc1 L_at_nowo2")
        a(f"s_mov_b32 s{S_WO}, 4")
        a(f"s_mov_b32 s{S_AS}, 0x303")
        if wo5:
            a(f"v_accvgpr_read_b32 v{V_T1}, a249")
            a(f"v_lshlrev_b32 v{V_T2}, 4, v{V_LANE}")
            a(f"s_mul_i32 s{S_A}, s2, {40*1024}")
            a(f"s_mul_i32 s{S_B}, s{S_WAVE}, {10*1024}")
            a(f"s_add_u32 s{S_A}, s{S_A}, s{S_B}")
            a(f"s_add_u32 s{S_A}, s{S_A}, {WS_W}")
            R = V_VF
            for t in range(5):
                for v in range(2):
                    a(f"ds_read_b64_tr_b16 {vr(R+4*t+2*v,2)}, v{V_T1} offset:{v*640+t*32}")
            for f in range(5):
                if f == 4: a(f"s_add_u32 s{S_A}, s{S_A}, 4096")
                a(f"buffer_store_dwordx4 {ar(A_LS+4*f,4)}, v{V_T2}, s[{S_W}:{S_W+3}], s{S_A} offen offset:{1024*(f&3)} {wpol}".rstrip())
            a(f"s_add_u32 s{S_A}, s{S_A}, 1024")
            a("s_waitcnt lgkmcnt(0)")
            for f in range(5):
                if f == 4: a(f"s_add_u32 s{S_A}, s{S_A}, 4096")
                a(f"buffer_store_dwordx4 {vr(R+4*f,4)}, v{V_T2}, s[{S_W}:{S_W+3}], s{S_A} offen offset:{1024*(f&3)} {wpol}".rstrip())
            a("s_nop 1")
        else:
            wo_store_a(0)
            wo_finish(1)
    elif wo2 and not wo3:
        a(f"s_cmp_lg_u32 s{S_WO}, 1")
        a("s_cbranch_scc1 L_at_nowo2a")
        a(f"s_mov_b32 s{S_WO}, 2")
        wo_finish(0)
        wo_issue(1)
        a("s_branch L_at_nowo2")
        a.label("L_at_nowo2a")
    if not wo4 and not wo8 and not woff:
        a(f"s_cmp_lg_u32 s{S_WO}, {3 if wo3 else 2}")
        a("s_cbranch_scc1 L_at_nowo2")
        a(f"s_mov_b32 s{S_WO}, {4 if wo3 else 3}")
        wo_finish(1)
    a.label("L_at_nowo2")
    if not wo4: a(f"s_mov_b32 s{S_AS}, 3")
    if defer:
        a("s_cmp_lg_u32 s99, 0")
        a(f"s_cselect_b32 s{S_AS}, 0, 3")
    st(4)
    a.lds_q = []
    ixP1 = len(a.lines)
    a(f"s_cmp_ge_u32 s{S_T}, 2")
    a("s_cbranch_scc1 L_at_fin")
    a(f"s_cmp_eq_u32 s{S_TY}, 0")
    if eep: a(f"s_mov_b32 s{S_AS}, 0x103")
    a("s_cbranch_scc1 L_at_round")
    if eep:
        a(f"s_mov_b32 s{S_AS}, 0x203")
        a("s_waitcnt vmcnt(@NBQ@)")
    else:
        a(f"s_waitcnt vmcnt({56 if dupst else (33 if wo3 else 38 if wo2 else 28)})")
    a("s_branch L_at_pre")
    if eep:
        def vm(ls):
            out = []
            for k_, l_ in enumerate(ls):
                t_ = l_.strip()
                if t_.startswith("buffer_") or t_.startswith("global_"):
                    out.append("D" if t_.endswith("lds") else "S" if t_.startswith("buffer_store") else "R")
                elif "@LB" in t_: out.append("|")
            return out
        post = vm(a.lines[ixP0:ixP1])
        res = {}
        for nm, i0, i1 in (("A", ixA0, ixA1), ("B", ixB0, ixB1)):
            sq = vm(a.lines[i0:i1]) + post
            bar = sq.index("|"); sq2 = [x for x in sq if x != "|"]
            dpos = [k_ for k_, x in enumerate(sq2) if x == "D"]
            assert len(dpos) == 32 and (nost or sq2.count("S") == 28), (dpos, sq2)
            res["LB" + nm] = bar - (dpos[7] + 1)
            after = lambda k_: len(sq2) - (k_ + 1)
            if nm == "A":
                assert nost or after(dpos[15]) == 44
                res["NA1"] = after(dpos[23]) + 8; res["NA2"] = after(dpos[31]) + 16
            else:
                rpos = [k_ for k_, x in enumerate(sq2) if x == "R"]
                assert len(rpos) == 28 and rpos[-1] > dpos[23]
                res["NBQ"] = after(rpos[-1]); res["NB2"] = after(dpos[31]) + 16
                assert res["NBQ"] <= 44 and res["NBQ"] + 8 <= 44 + 8
            print("eep seq", nm, "".join(sq), file=sys.stderr)
        print("eep counts", res, file=sys.stderr)
        assert all(0 <= v <= 63 for v in res.values())
        state["eepres"] = res
    a.label("L_at_fin")
    if wb == 1:
        a(f"s_cmp_lg_u32 s{S_WAVE}, 0")
        a("s_cbranch_scc1 L_at_nowb")
        a("buffer_wbl2 sc1")
        a.label("L_at_nowb")
    a("s_waitcnt lgkmcnt(0)")
    a("s_barrier")
    flagcheck()
    if pst:
        a("s_memrealtime s[78:79]")
        a("s_memtime s[80:81]")
        a("s_waitcnt lgkmcnt(0)")
        a("s_mov_b32 m0, s77"); a("s_nop 0"); a("v_writelane_b32 v0, s78, m0")
        a("s_add_u32 m0, s77, 30"); a("s_nop 0"); a("v_writelane_b32 v0, s80, m0")
        a("s_getreg_b32 s62, hwreg(HW_REG_XCC_ID)")
        a("v_writelane_b32 v0, s62, 63")
        a(f"v_writelane_b32 v0, s{S_TY}, 62")
        a(f"s_cmp_lg_u32 s{S_WAVE}, 0")
        a("s_cbranch_scc1 L_at_end")
        a("s_lshl_b32 s62, s2, 8"); a("s_add_u32 s62, s62, 50000000")
        a(f"v_lshlrev_b32 v2, 2, v{V_LANE}")
        a(f"buffer_store_dword v0, v2, s[{S_W}:{S_W+3}], s62 offen")
    if stamp:
        a("s_memtime s[56:57]")
        a("s_memrealtime s[58:59]")
        a("s_waitcnt lgkmcnt(0)")
        if allst:
            a("v_mov_b32 v2, s66"); a("v_mov_b32 v3, s58")
            a("s_sub_u32 s62, s56, s64"); a("v_mov_b32 v4, s62")
            a("s_getreg_b32 s62, hwreg(HW_REG_XCC_ID)"); a("v_mov_b32 v5, s62")
            a("s_lshl_b32 s62, s2, 4"); a("s_add_u32 s62, s62, 50000000"); a("v_mov_b32 v6, s62")
            a(f"buffer_store_dwordx4 v[2:5], v6, s[{S_W}:{S_W+3}], 0 offen")
        a(f"s_cmp_lg_u32 s2, {stwg}")
        a("s_cbranch_scc1 L_at_end")
        a("s_sub_u32 s56, s56, s64")
        a("s_sub_u32 s58, s58, s66")
        a("s_mov_b32 s84, s46")
        a("s_mov_b32 s85, s47")
        a("s_mov_b32 s86, 256")
        a("s_mov_b32 s87, 0x20000")
        a("v_mov_b32 v2, s56")
        a("v_mov_b32 v3, s58")
        a(f"s_lshl_b32 s62, s{S_WAVE}, 3")
        a("v_mov_b32 v4, s62")
        a("buffer_store_dwordx2 v[2:3], v4, s[84:87], 0 offen")
        if strace:
            pr = [36, 38, 40, 42, 56, 58, 60, 62]
            for i in range(7):
                a(f"s_sub_u32 s78, s{pr[i+1]}, s{pr[i]}")
                a("v_mov_b32 v2, s78")
                a(f"v_mov_b32 v4, {160+4*i}")
                a("buffer_store_dword v2, v4, s[84:87], 0 offen")
        a("s_sub_u32 s62, s72, s64")
        a("v_mov_b32 v2, s62")
        a(f"v_mov_b32 v4, {DBO+4*5}")
        a("buffer_store_dword v2, v4, s[84:87], 0 offen")
        for k in range(1, 5):
            a(f"s_sub_u32 s62, s{72+2*k}, s{70+2*k}")
            a("v_mov_b32 v2, s62")
            a(f"v_mov_b32 v4, {DBO+4*k}")
            a("buffer_store_dword v2, v4, s[84:87], 0 offen")
    a("s_branch L_at_end")
    for ln in state.get("ool", []): a.lines.append(ln)

    a.label("L_at_fallback")
    a(f"s_sub_u32 s{S_T0}, s{S_T}, 1")
    a(f"s_mov_b32 s{S_NOFB}, s{S_T0}")
    a(f"s_mov_b32 s{S_MP}, 1")
    a(f"s_mov_b32 s{S_TY}, 0")
    a(f"s_mov_b32 s{S_PRE}, 0")
    a(f"s_mov_b32 s{S_AS}, 0")
    if defer: a("s_mov_b32 s98, 0x40000000")
    for i in range(7): a(f"v_mov_b32 v{V_L+2*i}, 0xff800000")
    a("s_waitcnt vmcnt(0) lgkmcnt(0)")
    a("s_barrier")
    a("s_branch L_at_start")
    a.label("L_at_maxpass")
    a(f"s_mov_b32 s{S_MP}, 0")
    a("s_waitcnt lgkmcnt(0)")
    a(f"v_and_b32 v{V_T0}, 15, v{V_LANE}")
    a(f"v_lshlrev_b32 v{V_T0}, 8, v{V_T0}")
    a(f"v_bfe_u32 v{V_T1}, v{V_LANE}, 4, 1")
    a(f"v_lshl_add_u32 v{V_T0}, v{V_T1}, 5, v{V_T0}")
    a(f"v_bfe_u32 v{V_T1}, v{V_LANE}, 5, 1")
    a(f"v_lshl_add_u32 v{V_T2}, v{V_T1}, 4, v{V_T0}")
    a(f"v_add_u32 v{V_T3}, 4096, v{V_T2}")
    a(f"s_lshl_b32 s{S_B}, s{S_T}, 19")
    if rflip: a(f"s_xor_b32 s{S_B}, s{S_B}, s101")
    a(f"s_mov_b32 s{S_CNT}, 0")
    a.label("L_at_mp")
    for f in range(8):
        a(f"buffer_load_dwordx4 {vr(V_VF+4*f,4)}, v{V_T2 + (f>>2)}, s[{S_K}:{S_K+3}], s{S_B} offen offset:{64*(f&3)}")
    a("s_waitcnt vmcnt(0)")
    for i in range(7):
        for f in range(8):
            kt, s = f >> 2, f & 3
            D = vr(V_S + 4 * kt, 4)
            a(f"{MFMA} {D}, {vr(V_VF+4*f,4)}, {ar(A_Q+16*i+4*s,4)}, {'0' if s == 0 else D}")
        a("s_nop 9")
        for r in range(0, 8, 2):
            a(f"v_max3_f32 v{V_L+2*i}, v{V_S+r}, v{V_S+r+1}, v{V_L+2*i}")
        a("s_nop 3")
    a(f"s_add_u32 s{S_B}, s{S_B}, 8192")
    a(f"s_add_u32 s{S_CNT}, s{S_CNT}, 1")
    a(f"s_cmp_lt_u32 s{S_CNT}, 32")
    a("s_cbranch_scc1 L_at_mp")
    a("s_branch L_at_pre")
    a.label("L_at_end")
    a("s_endpgm")
    txt = a.text()
    if eep:
        for k_, v_ in state["eepres"].items(): txt = txt.replace(f"@{k_}@", str(v_))
        assert "@" not in txt
    return txt

if __name__ == "__main__":
    import sys
    name = "fused_kernel"
    opts = dict(x.split("=") for x in sys.argv[2:])
    opts = {k: bool(int(v)) for k, v in opts.items()}
    body = gen_fused(name, **opts)
    out = f"; @launch kernel={name} grid=(256,1,1) block=(256,1,1) lds={LDS_BYTES}\n"
    out += '.amdgcn_target "amdgcn-amd-amdhsa--gfx950"\n.text\n' + kernel_header(name) + body
    out += '.section .rodata,"a"\n.p2align 6\n' + kernel_desc(name, 512, accum=256)
    open(sys.argv[1], "w").write(out)
```

```python
from gen_common import *
import sys
import math

NQB = 3584 * 4096 * 2
WS_O = 2 * NQB
WS_W = 4 * NQB
WS_BYTES = 4 * NQB + 2 * 4096 * 640 * 2
PAIRB = 224 * 128 * 2

TILE = 8448
RING = 4
AREA = RING * TILE
LDS_BYTES = 163840
LDS_FLAG = 2 * AREA + 1024
LDS_FLAG = 2 * AREA + 8416

def kpad(i): return 1024 * i + 16 * ((i & 1) + 4 * (i >> 1))

V_LANE, V_T0, V_T1, V_T2, V_T3, V_LIN, V_DMA = 1, 2, 3, 4, 5, 6, 7
V_KA, V_VA, V_XA, V_WA = 8, 9, 10, 11
V_L = 12
V_QD, V_BA = 26, 27
V_CI = 28
V_KF = 56
V_S = 88
V_P = 104
V_VF = 112
V_OK = 144
A_Q = 0
A_OS = 112
A_LS = 224
A_ONE = 252
S_LD, S_K, S_W, S_QP = 4, 8, 12, 16
S_WAVE, S_T, S_CNT, S_NOFB, S_OOFF, S_MP, S_T0 = 20, 21, 22, 23, 24, 25, 27
S_A, S_B, S_C, S_D = 28, 29, 30, 31
S_THR, S_LDB, S_DJ, S_PJ, S_QH, S_DOFF = 32, 33, 34, 35, 48, 49
S_QS, S_QSTEP, S_QRND, S_MSTEP, S_CS = 50, 51, 52, 53, 54
S_TAB = 88
S_AS, S_TY, S_PRE, S_WO = 68, 69, 70, 71
MFMA = "v_mfma_f32_16x16x32_bf16"
def ar(a, n=1):
    return f"a{a}" if n == 1 else f"a[{a}:{a+n-1}]"

def gen_fused(name, nt=True, stamp=False, nofb=False, noload=False, nost=False, nox=False, now=False, st0=False, touch=False, kvt=False, kvtnt=False, nowo=False, tnt=False, qnt=False, wont=False, trace=False, DBO=64, ones=False, strace=False, xmem=0, xmfma=0, delay=0, tymask=1, stwg=4, roll=False, bulk0=True, wsbase=0, rot=True, rsh=1, dupst=False, allst=False, align=0, roles=False, fakex=False, early=False, qdelay=0, adelay=0, kvpol=None, xf=False, pst=False, kvl2=False, xq=False, pstl=False, kv0=False, qpnl=False, cpf=0, cpflate=False, qps=False, tymode=0, tyinv=False, xswap=False, qnrd=False, qnbar=False, qbar=7, qd0=9, qdstep=6, kvrot=0, kvgs=11, kvt2=0, kvts=64, tper=1, tpol='', tlbw=0, rflip=0, stpol='', defer=False, dpol='', dnp=3, wpol='', qpol='', anbar=False, anrd=False, anva='', ansu=False, cpf2=0, cpfo=0, pro1=0, rotn=4, spread='', dsl='1234', lp7=False, inv=False, wo2=False, wo3=0, wo4=0, wo5=0, wtl=0, wo6='', wo8=0, stpol0=None, wb=0, woff=False, wtch=0, eep=0, qch2=False, qkrev=False, operm=False):
    a = Asm()
    if spread: early = True
    if wo6: wo5 = 2
    if wo5: wo4 = 2
    if wo3 or wo4: wo2 = True
    NT = " nt" if nt else ""
    if kvpol: NT = " " + kvpol
    if pst: a("s_memrealtime s[74:75]")
    a("s_cmp_ge_u32 s2, 256")
    a("s_cbranch_scc1 L_at_end")
    if cpf:
        a("s_getpc_b64 s[72:73]")
        a.label("L_pc0")
        a(f"s_mov_b32 s74, L_code_end - L_pc0")
        a("s_mov_b32 s75, 0x20000")
        a("v_lshlrev_b32 v105, 6, v0")
        if not cpflate:
          for k in range(cpf // 16):
            a(f"s_mov_b32 s76, {k*16384}")
            a("buffer_load_dword v104, v105, s[72:75], s76 offen")
    a("s_and_b32 s3, s2, 7")
    a("s_lshl_b32 s3, s3, 5")
    a("s_lshr_b32 s36, s2, 6")
    a("s_lshl_b32 s36, s36, 3")
    a("s_or_b32 s3, s3, s36")
    a("s_bfe_u32 s36, s2, 0x30003")
    a("s_or_b32 s2, s3, s36")
    if xswap: a("s_xor_b32 s2, s2, 32"); a("s_nop 0")
    a("s_load_dwordx8 s[36:43], s[0:1], 0")
    a("s_load_dwordx8 s[56:63], s[0:1], 40")
    a("s_load_dwordx2 s[44:45], s[0:1], 96")
    a("s_load_dwordx2 s[84:85], s[0:1], 32")
    a("s_load_dwordx2 s[86:87], s[0:1], 72")
    if cpf2:
        a("s_getpc_b64 s[72:73]")
        a.label("L_pc0")
        a("v_lshlrev_b32 v105, 7, v0")
        for k in range(cpf2):
            a(f"v_add_u32 v104, {cpfo + k*32768}, v105")
            a("v_min_u32 v104, L_code_end - L_pc0 - 4, v104")
            a("v_mov_b32 v107, s73")
            a("v_add_co_u32 v106, vcc, s72, v104")
            a("v_addc_co_u32 v107, vcc, 0, v107, vcc")
            a(f"global_load_dword v108, v[106:107], off")
    a(f"v_and_b32 v{V_LANE}, 63, v0")
    a(f"v_lshrrev_b32 v{V_T0}, 6, v0")
    a("s_nop 0")
    a(f"v_readfirstlane_b32 s{S_WAVE}, v{V_T0}")
    a("s_waitcnt lgkmcnt(0)")
    a(f"s_and_b32 s{S_QH}, s{S_WAVE}, 1")
    a(f"s_lshr_b32 s{S_PJ}, s{S_WAVE}, 1")
    a("s_cmp_ge_u32 s2, 128")
    for k in range(8):
        a(f"s_cselect_b32 s{36+k}, s{56+k}, s{36+k}")
    a("s_cselect_b32 s84, s86, s84")
    a("s_cselect_b32 s85, s87, s85")
    a(f"s_mov_b32 s86, {4096*640*2}")
    a("s_mov_b32 s87, 0x20000")
    a(f"s_and_b32 s{S_A}, s2, 127")
    a(f"s_lshl_b32 s{S_B}, s{S_A}, 20")
    a(f"s_lshl_b32 s{S_C}, s{S_PJ}, 18")
    a(f"s_add_u32 s{S_B}, s{S_B}, s{S_C}")
    a(f"s_add_u32 s38, s38, s{S_B}")
    a("s_addc_u32 s39, s39, 0")
    a(f"s_add_u32 s40, s40, s{S_B}")
    a("s_addc_u32 s41, s41, 0")
    a(f"s_sub_u32 s{S_C}, 0x100000, s{S_C}")
    a(f"s_mov_b32 s{S_K}, s38")
    a(f"s_mov_b32 s{S_K+1}, s39")
    a(f"s_mov_b32 s{S_K+2}, s{S_C}")
    a(f"s_mov_b32 s{S_K+3}, 0x20000")
    a(f"s_cmp_eq_u32 s{S_QH}, 0")
    a(f"s_cselect_b32 s{S_LD}, s38, s40")
    a(f"s_cselect_b32 s{S_LD+1}, s39, s41")
    a(f"s_mov_b32 s{S_LD+2}, {'0' if kv0 else 's'+str(S_C)}")
    a(f"s_mov_b32 s{S_LD+3}, 0x20000")
    if xf:
        a(f"s_add_u32 s36, s44, {4*NQB + 2*4096*640*2}")
        a("s_addc_u32 s37, s45, 0")
        a(f"s_cmp_eq_u32 s{S_QH}, 0")
    a(f"s_cselect_b32 s{S_QP}, s42, s36")
    a(f"s_cselect_b32 s{S_QP+1}, s43, s37")
    a(f"s_mov_b32 s{S_A}, {0 if now else 640*4096*2}")
    a(f"s_mov_b32 s{S_B}, {0 if nox else (2*3584*640*2 if xf else 3584*640*2)}")
    a(f"s_cselect_b32 s{S_QP+2}, s{S_A}, s{S_B}")
    a(f"s_mov_b32 s{S_QP+3}, 0x20000")
    a(f"s_mov_b32 s{S_A}, {32*8192}")
    a(f"s_mov_b32 s{S_B}, {7168 if (fakex or xf) else 64}")
    a(f"s_cselect_b32 s{S_QSTEP}, s{S_A}, s{S_B}")
    a(f"s_cselect_b32 s{S_QRND}, 512, 0")
    if qch2:
        assert xq and qps and not (xf or fakex or roll or roles or touch or defer or wo2 or wo8 or kvt2 or eep)
        a(f"s_cselect_b32 s46, 128, 64")
    a(f"s_mov_b32 s{S_A}, 1056")
    a(f"s_mov_b32 s{S_B}, 1024")
    a(f"s_cselect_b32 s{S_MSTEP}, s{S_A}, s{S_B}")
    for i in range(8):
        a(f"s_mov_b32 s{S_A}, {((i&3)+8*(i>>2))*8192}")
        a(f"s_mov_b32 s{S_B}, {(1024*i if (fakex or xf) else 20480*i) if i < 7 else 0x40000000}")
        a(f"s_cselect_b32 s{S_TAB+i}, s{S_A}, s{S_B}")
    a(f"s_and_b32 s{S_A}, s2, 7")
    a(f"s_lshl_b32 s{S_A}, s{S_A}, 2")
    a(f"s_add_u32 s{S_A}, s{S_A}, s{S_PJ}")
    a(f"s_lshl_b32 s{S_A}, s{S_A}, 8")
    a(f"s_bfe_u32 s{S_B}, s2, {0x50003 if xf else 0x40003}")
    a(f"s_lshl_b32 s{S_B}, s{S_B}, 1")
    a(f"s_add_u32 s{S_B}, s{S_B}, s{S_PJ}")
    a(f"s_mul_i32 s{S_B}, s{S_B}, {112*1280}")
    a(f"s_cmp_eq_u32 s{S_QH}, 0")
    a(f"s_cselect_b32 s55, s{S_A}, s{S_B}")
    a(f"s_add_u32 s{S_W}, s44, {wsbase}")
    a(f"s_addc_u32 s{S_W+1}, s45, 0")
    a(f"s_mov_b32 s{S_W+2}, {WS_BYTES}")
    a(f"s_mov_b32 s{S_W+3}, 0x20000")
    a(f"s_lshl_b32 s{S_A}, s2, 2")
    a(f"s_add_u32 s{S_A}, s{S_A}, s{S_PJ}")
    a(f"s_mul_i32 s{S_OOFF}, s{S_A}, {PAIRB}")
    a(f"s_mul_i32 s{S_A}, s{S_QH}, {7*4096}")
    a(f"s_add_u32 s{S_OOFF}, s{S_OOFF}, s{S_A}")
    a(f"s_add_u32 s{S_OOFF}, s{S_OOFF}, {WS_O}")
    a(f"s_mov_b32 s{S_NOFB}, -1")
    a("s_mov_b32 s60, s42"); a("s_mov_b32 s61, s43"); a(f"s_mov_b32 s62, {640*4096*2}"); a("s_mov_b32 s63, 0x20000")
    a(f"s_mov_b32 s{S_T0}, 0")
    a(f"s_mov_b32 s{S_MP}, 0")
    a(f"s_mov_b32 s{S_AS}, 0")
    if defer: a("s_mov_b32 s98, 0x40000000")
    a(f"s_mov_b32 s{S_WO}, {(4 if (wo3 or wo4 or wo8) else 3) if nowo else 0}")
    a(f"s_lshr_b32 s26, s2, 3")
    a(f"s_lshr_b32 s{S_A}, s2, {rsh}")
    a(f"s_add_u32 s26, s26, s{S_A}")
    if rotn in (1, 2, 4):
        a(f"s_and_b32 s26, s26, {rotn-1}")
        a(f"s_mul_i32 s26, s26, {20//rotn}")
        if qch2: a("s_and_b32 s26, s26, 30")
    elif rotn == 22:
        a("s_and_b32 s26, s26, 1"); a("s_mul_i32 s26, s26, 4")
    elif rotn == 23:
        a("s_and_b32 s26, s26, 1"); a("s_mul_i32 s26, s26, 6")
    a(f"s_mul_i32 s83, s{S_QSTEP}, 20")
    a(f"s_and_b32 s{S_TY}, s2, {tymask}")
    a(f"s_min_u32 s{S_TY}, s{S_TY}, 1")
    if tyinv: a(f"s_xor_b32 s{S_TY}, s{S_TY}, 1"); a("s_nop 0")
    if tymode == 1:
        a("s_bfe_u32 s3, s2, 0x10005"); a("s_xor_b32 s3, s3, 1"); a(f"s_and_b32 s{S_TY}, s2, s3"); a("s_nop 0")
    if tymode == 2:
        a("s_bfe_u32 s3, s2, 0x10005"); a("s_xor_b32 s3, s3, 1"); a(f"s_and_b32 s{S_TY}, s2, 3"); a(f"s_min_u32 s{S_TY}, s{S_TY}, 1"); a(f"s_and_b32 s{S_TY}, s{S_TY}, s3")
    if tymode == 3:
        a("s_bfe_u32 s3, s2, 0x10005"); a("s_xor_b32 s3, s3, 1"); a(f"s_and_b32 s{S_TY}, s2, 3"); a(f"s_cmp_eq_u32 s{S_TY}, 0"); a(f"s_cselect_b32 s{S_TY}, 1, 0"); a(f"s_or_b32 s{S_TY}, s{S_TY}, s3")
    if tymode == 4:
        a(f"s_and_b32 s{S_TY}, s2, 3"); a(f"s_cmp_eq_u32 s{S_TY}, 0"); a(f"s_cselect_b32 s{S_TY}, 1, 0"); a("s_nop 0")
    if tymode == 5:
        a(f"s_and_b32 s{S_TY}, s2, 7"); a(f"s_lshr_b32 s3, 0x49, s{S_TY}"); a(f"s_and_b32 s{S_TY}, s3, 1"); a("s_nop 0")
    if tymode == 6:
        a(f"s_and_b32 s{S_TY}, s2, 7"); a(f"s_cmp_eq_u32 s{S_TY}, 0"); a(f"s_cselect_b32 s{S_TY}, 1, 0"); a("s_nop 0")
    if tymode == 7:
        a(f"s_and_b32 s{S_TY}, s2, 3"); a(f"s_min_u32 s{S_TY}, s{S_TY}, 1"); a("s_nop 0")
    a(f"s_mov_b32 s{S_PRE}, s{S_TY}")
    a(f"s_mov_b32 s{S_THR}, 0x4e800000")
    import struct
    cs = struct.unpack("<I", struct.pack("<f", (128 ** -0.5) * 1.4426950408889634))[0]
    a(f"s_mov_b32 s{S_CS}, {cs:#x}")
    a(f"s_lshl_b32 s{S_A}, s{S_QH}, 1")
    a(f"s_add_u32 s{S_A}, s{S_A}, s{S_PJ}")
    a(f"s_mul_i32 s{S_LDB}, s{S_A}, {AREA}")
    if stamp:
        a("s_memtime s[64:65]")
        a("s_memrealtime s[66:67]")
        a("s_load_dwordx2 s[46:47], s[0:1], 88")
        a("s_waitcnt lgkmcnt(0)")
    G, N = V_T0, V_T1
    a(f"v_lshlrev_b32 v{V_LIN}, 4, v{V_LANE}")
    a(f"v_lshrrev_b32 v{G}, 4, v{V_LANE}")
    a(f"v_and_b32 v{N}, 15, v{V_LANE}")
    a(f"v_lshlrev_b32 v{V_T2}, 4, v{N}")
    a(f"v_lshl_add_u32 v{V_DMA}, v{G}, {kvgs}, v{V_T2}")
    if qch2:
        a(f"v_and_b32 v{V_QD}, 7, v{V_LANE}")
        a(f"v_lshlrev_b32 v{V_QD}, 4, v{V_QD}")
        a(f"v_bfe_u32 v{V_T3}, v{V_LANE}, 3, 1")
        a(f"v_lshl_add_u32 v{V_QD}, v{V_T3}, 15, v{V_QD}")
        a(f"v_bfe_u32 v{V_T3}, v{V_LANE}, 4, 1")
        a(f"v_lshl_add_u32 v{V_QD}, v{V_T3}, 17, v{V_QD}")
        a(f"v_bfe_u32 v{V_T3}, v{V_LANE}, 5, 1")
        a(f"v_lshl_add_u32 v{V_QD}, v{V_T3}, 18, v{V_QD}")
    else:
        a(f"v_bfe_u32 v{V_T3}, v{V_LANE}, 4, 1")
        a(f"v_lshl_add_u32 v{V_QD}, v{V_T3}, 15, v{V_T2}")
        a(f"v_bfe_u32 v{V_T3}, v{V_LANE}, 5, 1")
        a(f"v_lshl_add_u32 v{V_QD}, v{V_T3}, 17, v{V_QD}")
    a(f"v_mul_u32_u24 v{V_BA}, 1280, v{N}")
    a(f"v_lshl_add_u32 v{V_BA}, v{G}, 4, v{V_BA}")
    if fakex or xf: a(f"v_mov_b32 v{V_BA}, v{V_LIN}")
    if xq:
        a(f"v_lshrrev_b32 v{V_T3}, 4, v{V_LANE}")
        a(f"v_and_b32 v{V_BA}, 1, v{V_T3}")
        a(f"v_lshlrev_b32 v{V_BA}, 1, v{V_BA}")
        a(f"v_lshrrev_b32 v{V_T3}, 1, v{V_T3}")
        a(f"v_mul_u32_u24 v{V_T3}, 3, v{V_T3}")
        a(f"v_xor_b32 v{V_BA}, v{V_BA}, v{V_T3}")
        a(f"v_and_b32 v{V_T3}, 3, v{V_LANE}")
        a(f"v_xor_b32 v{V_BA}, v{V_BA}, v{V_T3}")
        a(f"v_lshlrev_b32 v{V_BA}, 4, v{V_BA}")
        a(f"v_lshrrev_b32 v{V_T3}, 2, v{V_LANE}")
        a(f"v_mul_u32_u24 v{V_T3}, 1280, v{V_T3}")
        a(f"v_add_u32 v{V_BA}, v{V_BA}, v{V_T3}")
    a(f"s_cmp_eq_u32 s{S_QH}, 0")
    a("s_cselect_b64 vcc, -1, 0")
    a("s_nop 1")
    a(f"v_cndmask_b32 v{V_QD}, v{V_BA}, v{V_QD}, vcc")
    a(f"s_add_u32 s{S_A}, s{S_QH}, 2")
    a(f"s_mul_i32 s{S_A}, s{S_A}, {AREA}")
    if xq:
        a(f"v_bfe_u32 v{V_T3}, v{V_LANE}, 2, 2")
        a(f"v_and_b32 v{V_BA}, 1, v{V_T3}")
        a(f"v_lshlrev_b32 v{V_BA}, 1, v{V_BA}")
        a(f"v_lshrrev_b32 v{V_T3}, 1, v{V_T3}")
        a(f"v_mul_u32_u24 v{V_T3}, 3, v{V_T3}")
        a(f"v_xor_b32 v{V_BA}, v{V_BA}, v{V_T3}")
        a(f"v_xor_b32 v{V_BA}, v{V_BA}, v{G}")
        a(f"v_lshlrev_b32 v{V_BA}, 4, v{V_BA}")
        a(f"v_lshl_add_u32 v{V_BA}, v{N}, 6, v{V_BA}")
        a(f"v_add_u32 v{V_BA}, s{S_A}, v{V_BA}")
    else:
        a(f"v_add_u32 v{V_BA}, s{S_A}, v{V_LIN}")
    a(f"v_bfe_u32 v{V_T3}, v{V_LANE}, 4, 1")
    a(f"v_lshl_add_u32 v{V_T2}, v{V_T3}, 9, v{V_T2}")
    a(f"v_bfe_u32 v{V_T3}, v{V_LANE}, 5, 1")
    a(f"v_lshl_add_u32 v{V_XA}, v{V_T3}, 8, v{V_T2}")
    a(f"v_and_b32 v{V_T2}, 7, v{N}")
    a(f"v_lshlrev_b32 v{V_KA}, 10, v{V_T2}")
    a(f"v_and_b32 v{V_T3}, 1, v{N}")
    a(f"v_lshl_add_u32 v{V_KA}, v{V_T3}, 4, v{V_KA}")
    a(f"v_bfe_u32 v{V_T3}, v{N}, 1, 2")
    a(f"v_lshl_add_u32 v{V_KA}, v{V_T3}, 6, v{V_KA}")
    a(f"v_lshrrev_b32 v{V_T3}, 3, v{N}")
    a(f"v_lshl_add_u32 v{V_KA}, v{V_T3}, 8, v{V_KA}")
    a(f"v_bfe_u32 v{V_T3}, v{V_LANE}, 4, 1")
    a(f"v_lshl_add_u32 v{V_KA}, v{V_T3}, 5, v{V_KA}")
    a(f"v_bfe_u32 v{V_T3}, v{V_LANE}, 5, 1")
    a(f"v_lshl_add_u32 v{V_KA}, v{V_T3}, 4, v{V_KA}")
    a(f"s_mul_i32 s{S_A}, s{S_PJ}, {AREA}")
    a(f"v_add_u32 v{V_KA}, s{S_A}, v{V_KA}")
    a(f"v_bfe_u32 v{N}, v{V_LANE}, 2, 2")
    a(f"v_bfe_u32 v{V_T3}, v{V_LANE}, 4, 1")
    a(f"v_lshl_add_u32 v{V_T2}, v{V_T3}, 2, v{N}")
    a(f"v_mul_u32_u24 v{V_T2}, 1056, v{V_T2}")
    a(f"v_bfe_u32 v{V_T3}, v{V_LANE}, 5, 1")
    a(f"v_lshl_add_u32 v{V_T2}, v{V_T3}, {8 if qch2 else 9}, v{V_T2}")
    a(f"v_and_b32 v{V_T3}, 3, v{V_LANE}")
    a(f"v_lshl_add_u32 v{V_T2}, v{V_T3}, 3, v{V_T2}")
    a(f"v_add_u32 v{V_WA}, s{S_A}, v{V_T2}")
    a(f"v_lshl_add_u32 v{N}, v{G}, 2, v{N}")
    a(f"v_and_b32 v{V_T2}, 7, v{N}")
    a(f"v_mul_u32_u24 v{V_T2}, 1056, v{V_T2}")
    a(f"v_lshrrev_b32 v{V_T3}, 3, v{N}")
    a(f"v_lshl_add_u32 v{V_T2}, v{V_T3}, 8, v{V_T2}")
    a(f"v_and_b32 v{V_T3}, 3, v{V_LANE}")
    a(f"v_lshl_add_u32 v{V_T2}, v{V_T3}, 3, v{V_T2}")
    a(f"s_add_u32 s{S_A}, s{S_A}, {2*AREA}")
    a(f"v_add_u32 v{V_VA}, s{S_A}, v{V_T2}")
    for i in range(7):
        a(f"v_mov_b32 v{V_L+2*i}, 0xff800000")
    a(f"v_mov_b32 v{V_T0}, 0x3f803f80")
    for i in range(4): a(f"v_accvgpr_write_b32 a{A_ONE+i}, v{V_T0}")
    a(f"v_and_b32 v{V_T0}, 3, v{V_LANE}")
    a(f"v_lshlrev_b32 v{V_T0}, 2, v{V_T0}")
    a(f"v_add_u32 v{V_T0}, {LDS_FLAG}, v{V_T0}")
    a(f"v_mov_b32 v{V_T1}, 0")
    a(f"ds_write_b32 v{V_T0}, v{V_T1}")
    a(f"s_cmp_eq_u32 s{S_QH}, 0")
    a(f"s_mov_b32 s{S_A}, {kpad(1)-kpad(0)-256}")
    a(f"s_mov_b32 s{S_B}, 800")
    a(f"s_cselect_b32 s96, s{S_A}, s{S_B}")
    a(f"s_mov_b32 s{S_A}, {kpad(2)-kpad(1)-256}")
    a(f"s_cselect_b32 s97, s{S_A}, s{S_B}")

    a(f"v_lshrrev_b32 v{V_T0}, 1, v{V_LANE}")
    a(f"v_lshlrev_b32 v{V_T0}, 13, v{V_T0}")
    a(f"v_and_b32 v{V_T1}, 1, v{V_LANE}")
    a(f"v_lshl_add_u32 v{V_T0}, v{V_T1}, 7, v{V_T0}")
    a(f"v_lshlrev_b32 v{V_T1}, 7, v{V_LANE}")
    a(f"s_bfe_u32 s{S_A}, s2, 0x20003")
    a(f"s_lshl_b32 s{S_A}, s{S_A}, 18")
    a(f"s_and_b32 s{S_B}, s2, 7")
    a(f"s_mul_i32 s{S_B}, s{S_B}, 17920")
    a(f"s_cmp_eq_u32 s{S_QH}, 0")
    a("s_cselect_b64 vcc, -1, 0")
    a(f"s_cselect_b32 s100, s{S_A}, s{S_B}")
    a(f"s_add_u32 s100, s100, s55")
    a(f"s_cmp_eq_u32 s{S_QH}, 0")
    a(f"s_mov_b32 s{S_A}, {4*32*8192}")
    a(f"s_mov_b32 s{S_B}, 8192")
    a(f"s_cselect_b32 s99, s{S_A}, s{S_B}")
    a(f"v_cndmask_b32 v{V_LIN}, v{V_T1}, v{V_T0}, vcc")
    def tf0(u): return (u & ((1 << kvgs) - 1)) | ((u >> kvgs) << (kvgs + 2))
    if kvt2:
        lb = kvgs - int(math.log2(kvts))
        if lb >= 6:
            a(f"v_mul_u32_u24 v{V_LIN}, {kvts}, v{V_LANE}")
        else:
            a(f"v_and_b32 v{V_T0}, {(1 << lb) - 1}, v{V_LANE}")
            a(f"v_mul_u32_u24 v{V_T0}, {kvts}, v{V_T0}")
            a(f"v_lshrrev_b32 v{V_T1}, {lb}, v{V_LANE}")
            a(f"v_lshl_add_u32 v{V_LIN}, v{V_T1}, {kvgs + 2}, v{V_T0}")
    def tch(s_): return bool(kvt2) and s_ < 16 and s_ % tper == 0
    def tvn(s_): return sum(1 for t in range(max(0, s_ - 3), s_) if tch(t))
    def tinc(k): return tf0((k + 1) * 64 * kvts) - tf0(k * 64 * kvts)
    if kvrot == 0 and kvgs != 11: a("s_mov_b32 s100, 0")
    if kvrot == 1:
        a("s_and_b32 s100, s2, 31")
    if kvrot == 2:
        a("s_mul_i32 s100, s2, 11"); a(f"s_lshr_b32 s{S_A}, s2, 5"); a(f"s_mul_i32 s{S_A}, s{S_A}, 7"); a(f"s_add_u32 s100, s100, s{S_A}")
        a(f"s_lshl_b32 s{S_A}, s{S_PJ}, 4"); a(f"s_add_u32 s100, s100, s{S_A}"); a("s_and_b32 s100, s100, 31")
    if kvrot == 3:
        a("s_lshr_b32 s100, s2, 5"); a("s_lshl_b32 s100, s100, 2")
    if rflip:
        if rflip == 1: a(f"s_bfe_u32 s{S_A}, s2, 0x10005")
        if rflip == 2: a(f"s_bfe_u32 s{S_A}, s2, 0x10006")
        if rflip == 3: a(f"s_bfe_u32 s{S_A}, s2, 0x10007")
        if rflip == 4: a(f"s_bfe_u32 s{S_A}, s2, 0x10003")
        a(f"s_lshl_b32 s101, s{S_A}, 19")
        a(f"s_mul_i32 s{S_B}, s{S_A}, s{S_QRND}")
        a(f"s_add_u32 s55, s55, s{S_B}")
        a(f"s_sub_u32 s{S_B}, 0, s{S_QRND}")
        a(f"s_cmp_lg_u32 s{S_A}, 0")
        a(f"s_cselect_b32 s{S_QRND}, s{S_B}, s{S_QRND}")
        a(f"s_mov_b32 s99, {2*PAIRB}")
        a(f"s_cselect_b32 s99, {-2*PAIRB & 0xffffffff:#x}, s99")
        a(f"s_mul_i32 s{S_B}, s{S_A}, {2*PAIRB}")
        a(f"s_add_u32 s{S_OOFF}, s{S_OOFF}, s{S_B}")
    tstate = {"t": 0}
    def touch_one():
        if not touch: return
        a(f"buffer_load_dword v0, v{V_LIN}, s[{S_QP}:{S_QP+3}], s98 offen{' nt' if tnt else ''}")
        a(f"s_add_u32 s98, s98, s99")
        tstate["t"] += 1
    if xmem or dupst:
        a("s_add_u32 s72, s44, 0x8000000"); a("s_addc_u32 s73, s45, 0"); a("s_mov_b32 s74, 0x18000000"); a("s_mov_b32 s75, 0x20000")
        a("s_lshl_b32 s76, s2, 2"); a(f"s_add_u32 s76, s76, s{S_WAVE}"); a("s_mul_i32 s76, s76, 0x60000")
    dstate = {"i": 0, "kind": None}
    state = {"n": 0}
    def dma_setup(slot, kind):
        if kind == "KV":
            if kvgs != 11:
                ln_ = kvgs - 11
                a(f"s_add_u32 s{S_B}, s{S_DJ}, s100")
                a(f"s_bfe_u32 s{S_A}, s{S_B}, {((5 - ln_) << 16) | ln_:#x}")
                a(f"s_lshl_b32 s{S_A}, s{S_A}, {kvgs + 2}")
                a(f"s_and_b32 s{S_B}, s{S_B}, {(1 << ln_) - 1}")
                a(f"s_lshl_b32 s{S_B}, s{S_B}, 11")
                a(f"s_add_u32 s{S_B}, s{S_A}, s{S_B}")
                a(f"s_lshr_b32 s{S_A}, s{S_DJ}, 5")
                a(f"s_lshl_b32 s{S_A}, s{S_A}, 19")
                if rflip: a(f"s_xor_b32 s{S_A}, s{S_A}, s101")
                a(f"s_add_u32 s{S_DOFF}, s{S_A}, s{S_B}")
            elif kvrot:
                a(f"s_lshr_b32 s{S_A}, s{S_DJ}, 5")
                a(f"s_lshl_b32 s{S_A}, s{S_A}, 19")
                if rflip: a(f"s_xor_b32 s{S_A}, s{S_A}, s101")
                a(f"s_add_u32 s{S_B}, s{S_DJ}, s100")
                a(f"s_and_b32 s{S_B}, s{S_B}, 31")
                a(f"s_lshl_b32 s{S_B}, s{S_B}, 13")
                a(f"s_add_u32 s{S_DOFF}, s{S_A}, s{S_B}")
            else:
                a(f"s_lshr_b32 s{S_A}, s{S_DJ}, 5")
                a(f"s_lshl_b32 s{S_A}, s{S_A}, 18")
                a(f"s_lshl_b32 s{S_B}, s{S_DJ}, 13")
                a(f"s_add_u32 s{S_DOFF}, s{S_A}, s{S_B}")
            if kvl2: a(f"s_and_b32 s{S_DOFF}, s{S_DOFF}, {0x7fff if kvl2 is True else kvl2 - 1}")
            a(f"s_add_u32 m0, s{S_LDB}, {slot*TILE}")
            a(f"s_add_u32 s{S_DJ}, s{S_DJ}, 1")
        elif qch2:
            a(f"s_add_u32 m0, s{S_LDB}, {slot*TILE}")
            if slot & 1 == 0:
                a(f"s_mov_b32 s{S_DOFF}, s{S_QS}")
            else:
                a(f"s_add_u32 s{S_DOFF}, s{S_QS}, s46")
                a(f"s_lshl1_add_u32 s{S_QS}, s{S_QSTEP}, s{S_QS}")
                if rot:
                    a("s_add_u32 s82, s82, 2")
                    a("s_cmp_eq_u32 s82, 20")
                    a(f"s_cselect_b32 s{S_B}, s83, 0")
                    a(f"s_sub_u32 s{S_QS}, s{S_QS}, s{S_B}")
        else:
            a(f"s_add_u32 m0, s{S_LDB}, {slot*TILE}")
            a(f"s_mov_b32 s{S_DOFF}, s{S_QS}")
            a(f"s_add_u32 s{S_QS}, s{S_QS}, s{S_QSTEP}")
            if rot:
                a("s_add_u32 s82, s82, 1")
                a("s_cmp_eq_u32 s82, 20")
                a(f"s_cselect_b32 s{S_B}, s83, 0")
                a(f"s_sub_u32 s{S_QS}, s{S_QS}, s{S_B}")
        dstate["i"] = 0; dstate["kind"] = kind
    def dma_one(pad=False):
        i = dstate["i"]
        if dstate["kind"] == "KV":
            if pad: a("s_nop 0")
            if not noload:
                a(f"buffer_load_dwordx4 v{V_DMA}, s[{S_LD}:{S_LD+3}], s{S_DOFF} offen offset:{256*i}{NT} lds")
            if i < 7: a(f"s_add_u32 m0, m0, s{96+(i&1)}")
        else:
            a(f"s_add_u32 s{S_A}, s{S_DOFF}, s{S_TAB+i}")
            if not qpnl: a(f"buffer_load_dwordx4 v{V_QD}, s[{S_QP}:{S_QP+3}], s{S_A} offen{' nt' if qnt else ''} lds")
            if i < 7: a(f"s_add_u32 m0, m0, s{S_MSTEP}")
        dstate["i"] = i + 1
    def qs_init(rnd_sgpr, q=3):
        if kvt2:
            a(f"s_lshl_b32 s98, s{S_T}, 19")
            if q == "pre":
                a(f"s_lshl_b32 s{S_A}, s{S_PRE}, {kvgs}"); a(f"s_sub_u32 s98, s98, s{S_A}"); q = 3
            a(f"s_add_u32 s98, s98, {q << kvgs}")
        a(f"s_mul_i32 s{S_QS}, s{rnd_sgpr}, s{S_QRND}")
        if not rflip: a(f"s_mov_b32 s101, s{rnd_sgpr}")
        a(f"s_add_u32 s{S_QS}, s{S_QS}, s55")
        a(f"s_cmp_ge_u32 s{rnd_sgpr}, 2")
        a(f"s_cselect_b32 s{S_A}, 0x40000000, 0")
        a(f"s_add_u32 s{S_QS}, s{S_QS}, s{S_A}")
        if rot:
            a("s_mov_b32 s82, s26")
            a(f"s_mul_i32 s{S_A}, s26, s{S_QSTEP}")
            a(f"s_add_u32 s{S_QS}, s{S_QS}, s{S_A}")

    def touch_init(rnd_sgpr):
        if not touch: return
        a(f"s_mul_i32 s98, s{rnd_sgpr}, s{S_QRND}")
        a(f"s_add_u32 s98, s98, s100")
        a(f"s_cmp_ge_u32 s{rnd_sgpr}, 2")
        a(f"s_cselect_b32 s{S_A}, 0x40000000, 0")
        a(f"s_add_u32 s98, s98, s{S_A}")
        tstate["t"] = 0
    def kread(f, slot):
        if anrd and state.get("inat"): return
        kt, s = f >> 2, f & 3
        a.lds(f"ds_read_b128 {vr(V_KF+4*f,4)}, v{V_KA} offset:{slot*TILE+kt*512+s*64}", "K")
    def vread(l, slot):
        if anrd and state.get("inat"): return
        for v in range(2):
            a.lds(f"ds_read_b64_tr_b16 {vr(V_VF+4*l+2*v,2)}, v{V_VA} offset:{slot*TILE+v*512+l*32}", "V")
    def wread(l, slot):
        for v in range(2):
            a.lds(f"ds_read_b64_tr_b16 {vr(V_VF+4*l+2*v,2)}, v{V_WA} offset:{slot*TILE+v*256+l*32}", "W")
    def wread2(lp, kk, slot):
        for v in range(2):
            a.lds(f"ds_read_b64_tr_b16 {vr(V_VF+8*lp+4*kk+2*v,2)}, v{V_WA} offset:{slot*TILE+kk*512+v*128+lp*32}", "W")
    def bset(st_, kk, qt):
        if st_ == 0: return vr((V_CI if kk == 0 else V_KF) + 4 * qt, 4)
        return ar(A_Q + 28 * kk + 4 * qt, 4)
    def bread2(st_, kk, qt, slot):
        a.lds(f"ds_read_b128 {bset(st_, kk, qt)}, v{V_BA} offset:{slot*TILE+qt*1024}", "B")
    def bbuf(buf, qt): return (V_KF if buf == 0 else V_CI) + 4 * qt
    def bread(buf, qt, slot):
        a.lds(f"ds_read_b128 {vr(bbuf(buf,qt),4)}, v{V_BA} offset:{slot*TILE+qt*1024}", "B")
    def oreg(l, qt):
        return vr(V_OK + 28 * l + 4 * qt, 4) if l < 4 else ar(A_OS + 28 * (l - 4) + 4 * qt, 4)

    def barrier(dyn=False, vn=16, xt=0):
        vn += xt
        if dyn:
            n = len(a.lines)
            a(f"s_cmp_eq_u32 s{S_AS}, 0")
            if inv:
                a(f"s_cbranch_scc0 L_bw1_{n}")
                a(f"s_waitcnt vmcnt({vn}) lgkmcnt(0)")
                a.label(f"L_bw2_{n}")
                if wo2 or wo8 or wtch in (2, 3):
                    state.setdefault("ool", []).extend([f"L_bw1_{n}:", f"    s_sub_u32 s{S_AS}, s{S_AS}, 1", f"    s_bitcmp1_b32 s{S_AS}, 8", f"    s_cbranch_scc1 L_bw3_{n}",
                        f"    s_waitcnt vmcnt({44 + xt}) lgkmcnt(0)", f"    s_branch L_bw2_{n}",
                        f"L_bw3_{n}:", f"    s_bitcmp1_b32 s{S_AS}, 9", f"    s_cbranch_scc1 L_bw4_{n}",
                        f"    s_and_b32 s99, s{S_AS}, 0xff", f"    s_cselect_b32 s{S_AS}, s{S_AS}, 0",
                        f"    s_waitcnt vmcnt({21 + xt}) lgkmcnt(0)", f"    s_branch L_bw2_{n}",
                        f"L_bw4_{n}:", f"    s_and_b32 s99, s{S_AS}, 0xff", f"    s_cselect_b32 s{S_AS}, s{S_AS}, 0",
                        f"    s_waitcnt vmcnt({54 + xt}) lgkmcnt(0)", f"    s_branch L_bw2_{n}"])
                elif eep:
                    assert xt == 0
                    state.setdefault("ool", []).extend([f"L_bw1_{n}:", f"    s_sub_u32 s{S_AS}, s{S_AS}, 1",
                        f"    s_cmp_eq_u32 s{S_AS}, 0x101", f"    s_cbranch_scc1 L_bw3_{n}",
                        f"    s_cmp_eq_u32 s{S_AS}, 0x100", f"    s_cbranch_scc1 L_bw4_{n}",
                        f"    s_cmp_eq_u32 s{S_AS}, 0x200", f"    s_cbranch_scc1 L_bw5_{n}",
                        f"    s_waitcnt vmcnt(44) lgkmcnt(0)", f"    s_branch L_bw2_{n}",
                        f"L_bw3_{n}:", f"    s_waitcnt vmcnt(@NA1@) lgkmcnt(0)", f"    s_branch L_bw2_{n}",
                        f"L_bw4_{n}:", f"    s_mov_b32 s{S_AS}, 0", f"    s_waitcnt vmcnt(@NA2@) lgkmcnt(0)", f"    s_branch L_bw2_{n}",
                        f"L_bw5_{n}:", f"    s_mov_b32 s{S_AS}, 0", f"    s_waitcnt vmcnt(@NB2@) lgkmcnt(0)", f"    s_branch L_bw2_{n}"])
                else:
                    state.setdefault("ool", []).extend([f"L_bw1_{n}:", f"    s_sub_u32 s{S_AS}, s{S_AS}, 1", f"    s_waitcnt vmcnt({28 + vn}) lgkmcnt(0)", f"    s_branch L_bw2_{n}"])
                a.lds_q = []
                a("s_barrier")
                return
            a(f"s_cbranch_scc1 L_bw1_{n}")
            a(f"s_sub_u32 s{S_AS}, s{S_AS}, 1")
            a(f"s_waitcnt vmcnt({44 + xt}) lgkmcnt(0)")
            a(f"s_branch L_bw2_{n}")
            a.label(f"L_bw1_{n}")
            a(f"s_waitcnt vmcnt({vn}) lgkmcnt(0)")
            a.label(f"L_bw2_{n}")
        else:
            a(f"s_waitcnt vmcnt({vn}) lgkmcnt(0)")
        a.lds_q = []
        a("s_barrier")

    def cap(fn):
        n0 = len(a.lines); q0 = list(a.lds_q)
        fn()
        ls = a.lines[n0:]; del a.lines[n0:]; a.lds_q = q0
        return ls
    def is_scalar(ln):
        return ln.strip().startswith("s_")
    class Gaps:
        def __init__(self, n):
            self.n = n; self.S = [[] for _ in range(n)]; self.V = [[] for _ in range(n)]; self.c = [0] * n
        def putS(self, ln, lo, hi=None):
            for g in range(lo, self.n):
                if len(self.S[g]) == 0:
                    self.S[g].append(ln); return g
            self.S[self.n - 1].append(ln); return self.n - 1
        def putV(self, ln, lo, cost=1, cap_=2):
            for g in range(lo, self.n):
                if self.c[g] + cost <= cap_:
                    self.V[g].append(ln); self.c[g] += cost; return g
            self.V[self.n - 1].append(ln); self.c[self.n - 1] += cost; return self.n - 1
        def atV(self, ln, g, cost=1):
            self.V[g].append(ln); self.c[g] += cost
        def atS(self, ln, g):
            self.S[g].append(ln)
    DITEMS = [(qt, T) for qt in range(7) for T in range(4)]
    DS = {}
    if defer:
        ntl = (28 - 8 - 4 * dnp) // 4
        assert 4 * dnp + 8 + 4 * ntl == 28
        k_ = 0
        for i in range(4): DS[("P", i)] = DITEMS[k_:k_ + dnp]; k_ += dnp
        for i in (1, 0, 3, 2): DS[("L", i)] = DITEMS[k_:k_ + 2]; k_ += 2
        for i in range(4): DS[("T", i)] = DITEMS[k_:k_ + ntl]; k_ += ntl
    DLIVE = {1: 0, 0: 1, 3: 1, 2: 2}
    def dcount(code):
        if not defer or code is None: return 0
        kind, i = code
        n = lambda c: len(DS.get(c, []))
        if kind == "P": return sum(n(("P", t)) for t in (i - 2, i - 1) if t >= 0)
        prev = lambda k, t: (k, t) if t >= 0 else None
        if kind == "L":
            if i >= 2: return n(("L", i - 2)) + n(("L", i - 1))
            if i == 1: return min(n(("P", 3)), n(("L", 3))) + n(("L", 0))
            return min(n(("P", 2)) + n(("P", 3)), n(("L", 2)) + n(("L", 3)))
        if kind in ("T", "B"):
            m = lambda t: n((kind, t)) if t >= 0 else n(("L", 4 + t))
            return m(i - 2) + m(i - 1)
    def qp_stage2(sm, first, dma, last, chk, after_store, vn, nok, sidx, code=None):
        buf = sm & 1; nslot = (sm + 1) & 3
        BAR = qbar
        G = Gaps(56)
        su = cap(lambda: dma_setup(sm, dma))
        g = BAR - 1
        g = 0
        for ln in su:
            g = G.putS(ln, g) + 1
        prev = g
        w5 = wo5 == 1 and code == ("T", 0)
        for i in range(8):
            ls = cap(lambda: dma_one(False))
            tg = max(qd0 + (4 if w5 else qdstep) * i, prev)
            pre_ = [l for l in ls if is_scalar(l) and "m0" not in l]
            ld = [l for l in ls if not is_scalar(l)]
            post = [l for l in ls if is_scalar(l) and "m0" in l]
            for l in pre_: tg = G.putS(l, tg)
            for l in ld: G.atV(l, tg)
            prev = tg + 1
            for l in post: prev = G.putS(l, tg + 1) + 1
        dstate["i"] = 8
        if w5:
            assert prev <= 39, prev
            for i in range(5): G.atV(f"    v_accvgpr_read_b32 v{V_S+i}, a{244+i}", i)
            G.atS(f"    s_cmp_eq_u32 s{S_WO}, 0", 39)
            G.atS(f"    s_cselect_b32 s57, s56, 0x40000000", 39)
            for i in range(5):
                G.atS(f"    s_add_u32 m0, s58, {1024*i}", 40 + 3*i)
                G.atV(f"    buffer_load_dwordx4 v{V_S+i}, s[84:87], s57 offen lds", 41 + 3*i)
        if code in DS:
            its = DS[code]; lastq = None
            for n_, (qt_, T_) in enumerate(its):
                tg = qd0 + 3 + n_ * 2 * qdstep
                if qt_ != lastq:
                    if code[0] == "L":
                        G.atS(f"    s_cmp_eq_u32 s{S_CNT}, {DLIVE[code[1]]}", tg - 2)
                        G.atS(f"    s_cselect_b32 s99, s98, 0x40000000", tg - 2)
                        G.atS(f"    s_add_u32 s99, s99, {qt_*4096}", tg - 1)
                    else:
                        G.atS(f"    s_add_u32 s99, s98, {qt_*4096}", tg - 1)
                    lastq = qt_
                G.atV(f"    buffer_store_dwordx4 {ar(A_Q+16*qt_+4*T_,4)}, v{V_XA}, s[{S_W}:{S_W+3}], s99 offen offset:{1024*T_} {dpol}".rstrip(), tg)
        if tch(sidx):
            k_ = sidx // tper
            tg = min(prev + 1, 54)
            G.atV(f"    buffer_load_dword v{V_S+12}, v{V_LIN}, s[{S_LD}:{S_LD+3}], s98 offen {tpol}".rstrip(), tg)
            G.putS(f"    s_add_u32 s98, s98, {tinc(k_)}", tg + 1)
        if qnrd: pass
        elif not last:
            lo = BAR - 1
            for ln in cap(lambda: wread(0, nslot)): lo = G.putV(ln, lo, cap_=1)
            for qt in range(7):
                for ln in cap(lambda: bread(buf ^ 1, qt, nslot)): lo = G.putV(ln, lo, cap_=1)
            for l in range(1, 8):
                lo = max(lo, min(7 * (l + 1) - 1, 55))
                for ln in cap(lambda: wread(l, nslot)): lo = G.putV(ln, lo, cap_=(1 if l < 7 else 2))
        elif not nok:
            lo = BAR - 1
            for f in range(8):
                for ln in cap(lambda: kread(f, nslot)): lo = G.putV(ln, lo, cap_=1)
        a("s_waitcnt lgkmcnt(14)")
        j = 0
        for l in range(8):
            for qt in range(7):
                c = "0" if first else oreg(l, qt)
                if qt == 0 and l > 0 and j < BAR: a(f"s_waitcnt lgkmcnt({14-2*l})")
                a(f"{MFMA} {oreg(l, qt)}, {vr(V_VF+4*l,4)}, {vr(bbuf(buf,qt),4)}, {c}")
                for ln in G.S[j]: a.lines.append(ln)
                if j == BAR - 1:
                    if not qnbar: barrier(after_store, 16, tvn(sidx) + dcount(code) + (5 if (wo5 == 1 and code in (("T", 1), ("T", 2), ("T", 3))) else 0))
                    if chk: flagcheck()
                for ln in G.V[j]: a.lines.append(ln)
                j += 1
    def qp_stage3(sm, first, dma, last, chk, after_store, nok):
        h = sm & 1; cur = (sm >> 1) & 1; nslot = (sm + 1) & 3
        BAR = qbar
        G = Gaps(56)
        su = cap(lambda: dma_setup(sm, dma))
        g = 0
        for ln in su:
            g = G.putS(ln, g) + 1
        prev = g
        for i in range(8):
            ls = cap(lambda: dma_one(False))
            tg = max(qd0 + qdstep * i, prev)
            pre_ = [l for l in ls if is_scalar(l) and "m0" not in l]
            ld = [l for l in ls if not is_scalar(l)]
            post = [l for l in ls if is_scalar(l) and "m0" in l]
            for l in pre_: tg = G.putS(l, tg)
            for l in ld: G.atV(l, tg)
            prev = tg + 1
            for l in post: prev = G.putS(l, tg + 1) + 1
        dstate["i"] = 8
        if not last:
            lo = BAR - 1
            if h == 1:
                for kk in range(2):
                    for qt in range(7):
                        for ln in cap(lambda: bread2(cur ^ 1, kk, qt, (sm + 1 + kk) & 3)): lo = G.putV(ln, lo, cap_=1)
            for lp in range(4):
                lo = max(lo, 14 * (lp + 1) - 1)
                if lp < 3:
                    for kk in range(2):
                        for ln in cap(lambda: wread2(lp, kk, nslot)): lo = G.putV(ln, lo, cap_=1)
                else:
                    for kk in range(2):
                        for ln in cap(lambda: wread2(lp, kk, nslot)): G.atV(ln, 55)
        elif not nok:
            lo = BAR - 1
            for f in range(8):
                for ln in cap(lambda: kread(f, nslot)): lo = G.putV(ln, lo, cap_=1)
        vn_ = 8 if (h == 1 and not (last and dma == "KV")) else 16
        a("s_waitcnt lgkmcnt(8)")
        j = 0
        for lp in range(4):
            for qt in range(7):
                for kk in range(2):
                    c = "0" if (first and kk == 0) else oreg(4 * h + lp, qt)
                    a(f"{MFMA} {oreg(4 * h + lp, qt)}, {vr(V_VF+8*lp+4*kk,4)}, {bset(cur, kk, qt)}, {c}")
                    for ln in G.S[j]: a.lines.append(ln)
                    if j == BAR - 1:
                        barrier(after_store, vn_)
                        if chk: flagcheck()
                    for ln in G.V[j]: a.lines.append(ln)
                    j += 1
    def qp_stage(sm, first=False, dma="QP", last=False, chk=False, after_store=False, kt_=False, vn=16, nok=False, role=None, ntouch=0, sidx=None, code=None):
        buf = sm & 1; nslot = (sm + 1) & 3
        if qch2:
            return qp_stage3(sm, first, dma, last, chk, after_store, nok)
        if qps:
            return qp_stage2(sm, first, dma, last, chk, after_store, vn, nok, sidx, code)
        a("s_waitcnt lgkmcnt(14)")
        fq = []
        def cap(fn):
            n0 = len(a.lines); q0 = len(a.lds_q)
            fn()
            ls = a.lines[n0:]; del a.lines[n0:]; del a.lds_q[q0:]
            return ls
        BAR = 7
        if role != "T":
            for ln in cap(lambda: dma_setup(sm, dma)): fq.append((BAR, ln))
        if dma == "QP" and roll:
            fq.append((BAR, f"    s_lshl2_add_u32 s{S_B}, s{S_QSTEP}, s{S_DOFF}"))
            fq.append((BAR, f"    buffer_load_dword v0, v{V_T0}, s[{S_QP}:{S_QP+3}], s{S_B} offen{' nt' if tnt else ''}"))
        if kvt and kt_:
            fq.append((BAR, f"    buffer_load_dword v0, v{V_T3}, s[{S_LD}:{S_LD+3}], s101 offen{' nt' if kvtnt else ''}"))
            fq.append((BAR, f"    s_add_u32 s101, s101, 8192"))
        if not last:
            for ln in cap(lambda: wread(0, nslot)): fq.append((BAR, ln))
            for qt in range(7):
                for ln in cap(lambda: bread(buf ^ 1, qt, nslot)): fq.append((BAR, ln))
        elif not nok:
            for f in range(8):
                for ln in cap(lambda: kread(f, nslot)): fq.append((BAR, ln))
        for l in range(1, 8):
            if not last:
                for ln in cap(lambda: wread(l, nslot)): fq.append((7 * (l + 1), ln))
            if role == "T":
                if l == 1:
                    for _ in range(ntouch):
                        fq.append((BAR, f"    buffer_load_dword v0, v{V_T0}, s[60:63], s98 offen"))
                        fq.append((BAR, f"    s_add_u32 s98, s98, {32*8192}"))
                        fq.append((BAR, f"    buffer_load_dword v0, v{V_T1}, s[{S_QP}:{S_QP+3}], s99 offen"))
                        fq.append((BAR, f"    s_add_u32 s99, s99, 64"))
                continue
            for ln in cap(lambda: dma_one(True)): fq.append((BAR, ln))
            if role == "X":
                if l == 7:
                    fq.append((BAR, f"    s_add_u32 m0, s{S_LDB}, {AREA+sm*TILE}"))
                    fq.append((BAR, f"    s_add_u32 s{S_DOFF}, s{S_DOFF}, {112*1280}"))
                    for i in range(7):
                        fq.append((BAR, f"    s_add_u32 s{S_A}, s{S_DOFF}, s{S_TAB+i}"))
                        fq.append((BAR, f"    buffer_load_dwordx4 v{V_QD}, s[{S_QP}:{S_QP+3}], s{S_A} offen{' nt' if qnt else ''} lds"))
                        if i < 6: fq.append((BAR, f"    s_add_u32 m0, m0, 1024"))
            elif l == 7:
                for ln in cap(lambda: dma_one(True)): fq.append((BAR, ln))
        j = 0
        for l in range(8):
            for qt in range(7):
                c = "0" if first else oreg(l, qt)
                a(f"{MFMA} {oreg(l, qt)}, {vr(V_VF+4*l,4)}, {vr(bbuf(buf,qt),4)}, {c}")
                j += 1
                if j == BAR:
                    barrier(after_store, vn if (roll or role) else 16)
                    if chk: flagcheck()
                    if trace:
                        a("s_memtime s[78:79]")
                        a("s_waitcnt lgkmcnt(0)")
                        a(f"v_cmp_eq_u32 vcc, s77, v{V_LANE}")
                        a(f"v_mov_b32 v{V_T2}, s78")
                        a("s_nop 1")
                        a(f"v_cndmask_b32 v{V_T3}, v{V_T3}, v{V_T2}, vcc")
                        a("s_add_u32 s77, s77, 1")
                k = 0; idx = 0
                rem_gaps = 56 - j + 1
                quota = 1 if len(fq) <= rem_gaps else 2
                while k < quota and idx < len(fq):
                    if fq[idx][0] <= j and (idx == 0 or "ds_read" in fq[idx][1] or all("ds_read" in x[1] for x in fq[:idx])):
                        a.lines.append(fq[idx][1]); del fq[idx]; k += 1
                    else:
                        idx += 1
        for _, ln in fq: a.lines.append(ln)
        assert role in ("X", "T") or dstate["i"] == 8

    def sm_ops(par, i, first):
        S = V_S + 8 * par; P = V_P + 4 * par; L = V_L + 2 * i
        ops = []
        if first:
            T0, T1 = V_T0, V_T1
            ops += [f"v_max3_f32 v{T0}, v{S}, v{S+1}, v{L}", f"v_max3_f32 v{T1}, v{S+2}, v{S+3}, v{S+4}",
                    f"v_max3_f32 v{T0}, v{S+5}, v{S+6}, v{T0}", f"v_max3_f32 v{T0}, v{S+7}, v{T0}, v{T1}",
                    f"v_mov_b32 v{T1}, v{T0}", "s_nop 1", f"v_permlane16_swap_b32 v{T0}, v{T1}", "s_nop 1", f"v_max_f32 v{T0}, v{T0}, v{T1}",
                    f"v_mov_b32 v{T1}, v{T0}", "s_nop 1", f"v_permlane32_swap_b32 v{T0}, v{T1}", "s_nop 1", f"v_max_f32 v{T0}, v{T0}, v{T1}",
                    f"v_mov_b32 v{L}, 0", f"v_mov_b32 v{L+1}, 0"]
            ops += [f"v_sub_f32 v{S+r}, v{S+r}, v{T0}" for r in range(8)]
            ops += [f"v_sub_f32 v{V_CI+4*i+r}, 0, v{T0}" for r in range(4)]
        e = lambda r: ops.append(f"v_exp_f32 v{S+r}, v{S+r}")
        e(0); e(1)
        for r in range(0, 8, 2):
            if r + 2 < 8: e(r + 2); e(r + 3)
            if not ones:
                ops.append(f"v_add_f32 v{L}, v{L}, v{S+r}")
                ops.append(f"v_add_f32 v{L+1}, v{L+1}, v{S+r+1}")
            ops.append(f"v_cvt_pk_bf16_f32 v{P+r//2}, v{S+r}, v{S+r+1}")
        return ops

    def qk_items(qt, par, czero, kr):
        it = []
        for f in ([0, 1, 2, 3, 7, 6, 5, 4] if qkrev else range(8)):
            kt, s = f >> 2, f & 3
            D = vr(V_S + 8 * par + 4 * kt, 4)
            c = ("0" if czero else vr(V_CI + 4 * qt, 4)) if f in ((0, 7) if qkrev else (0, 4)) else D
            it.append(("K" if f == 0 else None, f"{MFMA} {D}, {vr(V_KF+4*f,4)}, {ar(A_Q+16*qt+4*s,4)}, {c}",
                       (lambda f=f: kread(f, kr)) if kr is not None else None))
        return it
    def pv_items(qt, par, czero, vrd):
        it = []
        for l in range(8):
            c = "0" if czero else oreg(l, qt)
            it.append(("V" if l == 0 else None, f"{MFMA} {oreg(l, qt)}, {vr(V_VF+4*l,4)}, {vr(V_P+4*par,4)}, {c}",
                       (lambda l=l: vread(l, vrd)) if vrd is not None else None))
        for _ in range(xmfma):
            D = ar(A_LS + 4 * qt, 4)
            it.append((None, f"{MFMA} {D}, {vr(V_VF,4)}, {vr(V_P+4*par,4)}, {D}", None))
        if ones:
            D = ar(A_LS + 4 * qt, 4)
            it.append((None, f"{MFMA} {D}, {ar(A_ONE,4)}, {vr(V_P+4*par,4)}, {'0' if czero else D}", None))
        return it

    def capture(fn):
        n0 = len(a.lines)
        fn()
        ls = a.lines[n0:]; del a.lines[n0:]
        return ls
    def emit(items, va, fill=None, nfill=0):
        cost = lambda op: 2 if "v_exp" in op else 1
        tot = sum(cost(o) for o in va); acc = 0; k = 0; ng = len(items)
        pos = [int((i + 0.5) * ng / max(nfill, 1)) for i in range(nfill)]
        for j, (need, m, post) in enumerate(items):
            if m:
                if need: a.lds_wait({need})
                a(m)
            if post: post()
            for _ in range(pos.count(j)):
                if fill: a.lines.append(fill.pop(0))
            while k < len(va) and acc + cost(va[k]) <= tot * (j + 1) / ng + 0.01:
                a(va[k]); acc += cost(va[k]); k += 1
        assert k == len(va)

    def dma_lines(slot, kind, pad=False):
        def f():
            dma_setup(slot, kind)
            for _ in range(8): dma_one(pad)
            if xmem and kind == "KV":
                a(f"s_mul_i32 s{S_A}, s{S_WAVE}, 7168")
                a(f"s_add_u32 m0, s{S_A}, {4*AREA+5120}")
                a(f"s_add_u32 s{S_A}, s{S_DOFF}, s76")
                for i in range(xmem):
                    a(f"buffer_load_dwordx4 v{V_DMA}, s[72:75], s{S_A} offen offset:{256*i} nt lds")
        return capture(f)
    def split_fill(fill, quota):
        out = []; idx = 0
        for q in quota:
            ch = []; n = 0
            while idx < len(fill) and n < q:
                ln = fill[idx]; ch.append(ln); idx += 1
                if "buffer_load" in ln:
                    n += 1
                    if idx < len(fill) and "m0, m0" in fill[idx]: ch.append(fill[idx]); idx += 1
            out.append(ch)
        out[-1] += fill[idx:]
        return out
    def ep_red(j):
        L = V_L + 2 * j; t = V_CI + 4 * j + 1; r = V_CI + 4 * j
        return [f"v_add_f32 v{L}, v{L}, v{L+1}", f"v_mov_b32 v{t}, v{L}", "s_nop 1", f"v_permlane16_swap_b32 v{L}, v{t}", "s_nop 1", f"v_add_f32 v{L}, v{L}, v{t}",
                f"v_mov_b32 v{t}, v{L}", "s_nop 1", f"v_permlane32_swap_b32 v{L}, v{t}", "s_nop 1", f"v_add_f32 v{L}, v{L}, v{t}", f"v_rcp_f32 v{r}, v{L}"]
    def ep_tile(j, pk_):
        r = V_CI + 4 * j
        q = lambda l: V_OK + 28 * l + 4 * j
        ops = [f"s_add_u32 s98, s{S_D}, {4096*j}"]
        for T in range(4):
            if T < 2: x, y = q(2 * T), q(2 * T + 1)
            else:
                x, y = (q(1), q(3)) if T == 2 else (q(0), q(3))
                for e, dst in ((0, x), (1, y)):
                    for k in range(4): ops.append(f"v_accvgpr_read_b32 v{dst+k}, a{A_OS+28*(2*(T-2)+e)+4*j+k}")
            for dst in (x, y):
                if pk_:
                    for h in range(2): ops.append(f"v_pk_mul_f32 {vr(dst+2*h,2)}, {vr(dst+2*h,2)}, {vr(r,2)} op_sel_hi:[1,0]")
                else:
                    for k in range(4): ops.append(f"v_mul_f32 v{dst+k}, v{dst+k}, v{r}")
            ops.append(f"v_cvt_pk_bf16_f32 v{x}, v{x}, v{x+1}")
            ops.append(f"v_cvt_pk_bf16_f32 v{x+1}, v{x+2}, v{x+3}")
            ops.append(f"v_cvt_pk_bf16_f32 v{x+2}, v{y}, v{y+1}")
            ops.append(f"v_cvt_pk_bf16_f32 v{x+3}, v{y+2}, v{y+3}")
            ops.append("s_nop 1")
            ops.append(f"v_permlane16_swap_b32 v{x}, v{x+2}")
            ops.append(f"v_permlane16_swap_b32 v{x+1}, v{x+3}")
            if not nost: ops.append(f"buffer_store_dwordx4 {vr(x,4)}, v{V_XA}, s[{S_W}:{S_W+3}], s98 offen offset:{1024*T} {stpol}".rstrip())
        return ops
    def ep_merge(sm, ep):
        sm = list(sm); out = []
        nn = sum(1 for o in ep if o == "s_nop 1")
        rest = len(sm) - 2 * nn
        body = [o for o in ep]
        n_other = len(body) - nn
        per = rest / max(n_other, 1) if rest > 0 else 0
        acc = 0.0
        for o in body:
            if o == "s_nop 1":
                if len(sm) >= 2: out.append(sm.pop(0)); out.append(sm.pop(0))
                else: out.append(o)
                continue
            out.append(o)
            acc += per
            while acc >= 1 and sm:
                out.append(sm.pop(0)); acc -= 1
        return out + sm
    def step(jm, first=False, last=False, dma="KV", nt_=0, tr_=False, dyn=False):
        fill = [] if (first or early) else dma_lines((jm + 3) & 3, dma)
        nf = (len(fill) + len(dsl) - 1) // len(dsl)
        chunks = state.get("carry") or [[] for _ in range(5)]
        state["carry"] = None
        for i in range(7):
            if strace and tr_:
                pr = [36, 38, 40, 42, 56, 58, 60, 62]
                a(f"s_memtime s[{pr[i]}:{pr[i]+1}]")
            if i in (1, 2, 3)[:nt_]: touch_one()
            n = state["n"]; par = n & 1
            items = []
            nfill = nf if (str(i) in dsl and i <= 4) else 0
            if spread and i <= 4:
                fill = list(chunks[i]); nfill = len(fill)
            if eep and last and dma == "KV":
                if i == 0: qstash_off()
                for s_ in range(4):
                    a(f"buffer_load_dwordx4 {ar(A_Q+16*i+4*s_,4)}, v{V_T2}, s[{S_W}:{S_W+3}], s{S_C} offen offset:{1024*s_}")
                if i < 6: a(f"s_add_u32 s{S_C}, s{S_C}, 4096")
            if i == 5:
                assert not fill
                if eep and last:
                    a(f"s_waitcnt vmcnt(@LB{'A' if dma == 'QP' else 'B'}@) lgkmcnt(0)")
                    a.lds_q = []
                    a("s_barrier")
                elif not (anbar and state.get("inat")): barrier(dyn, 8 if (qch2 and last and dma == "QP") else 16)
                if first: flagcheck()
                if last or early:
                    fill = dma_lines(jm, dma, True if last else False); nf = (len(fill) + 1) // 2
                    if spread and not last:
                        ch = split_fill(fill, [int(c) for c in spread])
                        assert len(ch) == 7
                        nxt = ch; fill = list(ch[0]); state["carry"] = ch[2:]
            if (last or early) and i >= 5: nfill = nf
            if spread and not last and i == 5: nfill = len(fill)
            if spread and not last and i == 6: fill = list(nxt[1]); nfill = len(fill)
            if i < 6:
                items += qk_items(i + 1, par ^ 1, first, ((jm + 1) & 3) if (i == 5 and (not last or dma == "KV")) else None)
            elif not last:
                items += qk_items(0, par ^ 1, False, None)
            else:
                if dma == "KV" and not eep: qreload()
                a("s_nop 1")
            if i > 0:
                items += pv_items(i - 1, par ^ 1, first, None)
            elif not first:
                items += pv_items(6, par ^ 1, False, jm)
            else:
                items += [(None, None, (lambda l=l: vread(l, jm))) for l in range(8)]
            ops_ = sm_ops(par, i, first)
            if state.get("inat") and anva:
                ops_ = [o for o in ops_ if not any(o.startswith(x) for x in anva.split(","))]
            if eep and last and i >= 2:
                ops_ = ep_merge(ops_, ep_red(i - 2) + ep_tile(i - 2, eep == 2))
            emit(items, ops_, fill, nfill)
            state["n"] = n + 1
        assert not fill

    def qstash_off():
        a(f"s_lshl_b32 s{S_C}, s2, 2")
        a(f"s_add_u32 s{S_C}, s{S_C}, s{S_WAVE}")
        a(f"s_mul_i32 s{S_C}, s{S_C}, 28672")
        a(f"v_lshlrev_b32 v{V_T2}, 4, v{V_LANE}")
    def qreload():
        qstash_off()
        for i in range(7):
            for s_ in range(4):
                a(f"buffer_load_dwordx4 {ar(A_Q+16*i+4*s_,4)}, v{V_T2}, s[{S_W}:{S_W+3}], s{S_C} offen offset:{1024*s_}")
            if i < 6: a(f"s_add_u32 s{S_C}, s{S_C}, 4096")

    def flagcheck():
        lab = f"L_at_nofb_{len(a.lines)}"
        a(f"s_cmp_le_u32 s{S_T}, s{S_T0}")
        a(f"s_cbranch_scc1 {lab}")
        a(f"s_sub_u32 s{S_A}, s{S_T}, 1")
        a(f"s_cmp_eq_u32 s{S_A}, s{S_NOFB}")
        a(f"s_cbranch_scc1 {lab}")
        a(f"s_lshl_b32 s{S_B}, s{S_A}, 2")
        a(f"s_add_u32 s{S_B}, s{S_B}, {LDS_FLAG}")
        a(f"v_mov_b32 v{V_T2}, s{S_B}")
        a(f"ds_read_b32 v{V_T2}, v{V_T2}")
        a("s_waitcnt lgkmcnt(0)")
        a(f"v_readfirstlane_b32 s{S_B}, v{V_T2}")
        a("s_nop 3")
        a(f"s_cmp_lg_u32 s{S_B}, 0")
        a(f"s_cbranch_scc1 L_at_fallback")
        a.label(lab)

    def wo_issue_a(ps):
        a(f"s_and_b32 s{S_B}, s2, 127")
        a(f"s_mul_i32 s{S_B}, s{S_B}, {32*1280}")
        a(f"s_mul_i32 s{S_D}, s{S_WAVE}, 320")
        a(f"s_add_u32 s{S_B}, s{S_B}, s{S_D}")
        a(f"s_add_u32 s{S_B}, s{S_B}, {160*ps}")
        a(f"s_mul_i32 s{S_D}, s{S_WAVE}, 7168")
        a(f"s_add_u32 s{S_D}, s{S_D}, {4*AREA}")
        a(f"s_mov_b32 s{S_A}, 6554")
        for i in range(5):
            a(f"v_add_u32 v{V_T0}, {64*i}, v{V_LANE}")
            a(f"v_mul_u32_u24 v{V_T1}, s{S_A}, v{V_T0}")
            a(f"v_lshrrev_b32 v{V_T1}, 16, v{V_T1}")
            a(f"v_mul_u32_u24 v{V_T2}, 10, v{V_T1}")
            a(f"v_sub_u32 v{V_T2}, v{V_T0}, v{V_T2}")
            a(f"v_mul_u32_u24 v{V_T1}, 1280, v{V_T1}")
            a(f"s_add_u32 m0, s{S_D}, {1024*i}")
            a(f"v_lshl_add_u32 v{V_T3}, v{V_T2}, 4, v{V_T1}")
            a(f"buffer_load_dwordx4 v{V_T3}, s[84:87], s{S_B} offen lds")
    def wo_read_a():
        a(f"v_lshrrev_b32 v{V_T0}, 4, v{V_LANE}")
        a(f"v_bfe_u32 v{V_T1}, v{V_LANE}, 2, 2")
        a(f"v_lshl_add_u32 v{V_T1}, v{V_T0}, 3, v{V_T1}")
        a(f"v_mul_u32_u24 v{V_T1}, 160, v{V_T1}")
        a(f"v_and_b32 v{V_T2}, 3, v{V_LANE}")
        a(f"v_lshl_add_u32 v{V_T1}, v{V_T2}, 3, v{V_T1}")
        a(f"s_mul_i32 s{S_D}, s{S_WAVE}, 7168")
        a(f"s_add_u32 s{S_D}, s{S_D}, {4*AREA}")
        a(f"v_add_u32 v{V_T1}, s{S_D}, v{V_T1}")
        R = A_LS
        for t in range(5):
            for v in range(2):
                a(f"ds_read_b64_tr_b16 {ar(R+4*t+2*v,2)}, v{V_T1} offset:{v*640+t*32}")
    def wo_store_a(ps):
        R = A_LS
        a(f"v_lshlrev_b32 v{V_T2}, 4, v{V_LANE}")
        a(f"s_mul_i32 s{S_A}, s2, {40*1024}")
        a(f"s_mul_i32 s{S_B}, s{S_WAVE}, {10*1024}")
        a(f"s_add_u32 s{S_A}, s{S_A}, s{S_B}")
        a(f"s_add_u32 s{S_A}, s{S_A}, {WS_W+5120*ps}")
        a("s_waitcnt lgkmcnt(0)")
        for f in range(5):
            if f == 4: a(f"s_add_u32 s{S_A}, s{S_A}, 4096")
            a(f"buffer_store_dwordx4 {ar(R+4*f,4)}, v{V_T2}, s[{S_W}:{S_W+3}], s{S_A} offen offset:{1024*(f&3)} {wpol}".rstrip())
    def wo_finish_a(ps):
        wo_read_a(); wo_store_a(ps)
    def wo_issue(ps):
        D = V_S
        a(f"s_mov_b32 s{S_A}, 6554")
        for i in range(5):
            a(f"v_add_u32 v{V_T0}, {64*i}, v{V_LANE}")
            a(f"v_mul_u32_u24 v{V_T1}, s{S_A}, v{V_T0}")
            a(f"v_lshrrev_b32 v{V_T1}, 16, v{V_T1}")
            a(f"v_mul_u32_u24 v{V_T2}, 10, v{V_T1}")
            a(f"v_sub_u32 v{V_T2}, v{V_T0}, v{V_T2}")
            a(f"v_mul_u32_u24 v{V_T1}, 1280, v{V_T1}")
            a(f"v_lshl_add_u32 v{D+i}, v{V_T2}, 4, v{V_T1}")
        a(f"s_and_b32 s{S_A}, s2, 127")
        a(f"s_mul_i32 s{S_A}, s{S_A}, {32*1280}")
        a(f"s_mul_i32 s{S_B}, s{S_WAVE}, 320")
        a(f"s_add_u32 s{S_A}, s{S_A}, s{S_B}")
        a(f"s_add_u32 s{S_A}, s{S_A}, {160*ps}")
        a(f"s_mul_i32 s{S_D}, s{S_WAVE}, 7168")
        a(f"s_add_u32 s{S_D}, s{S_D}, {4*AREA}")
        for i in range(5):
            a(f"s_add_u32 m0, s{S_D}, {1024*i}")
            a("s_nop 0")
            a(f"buffer_load_dwordx4 v{D+i}, s[84:87], s{S_A} offen{' nt' if wont else ''} lds")
    def wo_finish(ps):
        if wo5:
            a(f"v_accvgpr_read_b32 v{V_T1}, a249")
        else:
            a(f"v_lshrrev_b32 v{V_T0}, 4, v{V_LANE}")
            a(f"v_bfe_u32 v{V_T1}, v{V_LANE}, 2, 2")
            a(f"v_lshl_add_u32 v{V_T1}, v{V_T0}, 3, v{V_T1}")
            a(f"v_mul_u32_u24 v{V_T1}, 160, v{V_T1}")
            a(f"v_and_b32 v{V_T2}, 3, v{V_LANE}")
            a(f"v_lshl_add_u32 v{V_T1}, v{V_T2}, 3, v{V_T1}")
            a(f"s_mul_i32 s{S_D}, s{S_WAVE}, 7168")
            a(f"s_add_u32 s{S_D}, s{S_D}, {4*AREA}")
            a(f"v_add_u32 v{V_T1}, s{S_D}, v{V_T1}")
        a(f"v_lshlrev_b32 v{V_T2}, 4, v{V_LANE}")
        a(f"s_mul_i32 s{S_A}, s2, {40*1024}")
        a(f"s_mul_i32 s{S_B}, s{S_WAVE}, {10*1024}")
        a(f"s_add_u32 s{S_A}, s{S_A}, s{S_B}")
        a(f"s_add_u32 s{S_A}, s{S_A}, {WS_W+5120*ps}")
        R = V_VF
        for t in range(5):
            for v in range(2):
                a(f"ds_read_b64_tr_b16 {vr(R+4*t+2*v,2)}, v{V_T1} offset:{v*640+t*32}")
        a("s_waitcnt lgkmcnt(0)")
        for f in range(5):
            if f == 4: a(f"s_add_u32 s{S_A}, s{S_A}, 4096")
            a(f"buffer_store_dwordx4 {vr(R+4*f,4)}, v{V_T2}, s[{S_W}:{S_W+3}], s{S_A} offen offset:{1024*(f&3)} {wpol}".rstrip())
        a("s_nop 1")

    def rt_setup():
        a(f"s_bfe_u32 s{S_A}, s2, 0x20003")
        a(f"s_lshl_b32 s{S_A}, s{S_A}, 3")
        a(f"v_lshrrev_b32 v{V_T0}, 3, v{V_LANE}")
        a(f"v_add_u32 v{V_T0}, s{S_A}, v{V_T0}")
        a(f"v_lshlrev_b32 v{V_T0}, 13, v{V_T0}")
        a(f"v_and_b32 v{V_T2}, 7, v{V_LANE}")
        a(f"v_lshl_add_u32 v{V_T0}, v{V_T2}, 5, v{V_T0}")
        a(f"v_bfe_u32 v{V_T1}, v{V_LANE}, 1, 4")
        a(f"v_min_u32 v{V_T1}, 13, v{V_T1}")
        a(f"s_and_b32 s{S_A}, s2, 7")
        a(f"s_mul_i32 s{S_A}, s{S_A}, 14")
        a(f"v_add_u32 v{V_T1}, s{S_A}, v{V_T1}")
        a(f"v_mul_u32_u24 v{V_T1}, 1280, v{V_T1}")
        a(f"v_and_b32 v{V_T2}, 1, v{V_LANE}")
        a(f"v_lshl_add_u32 v{V_T1}, v{V_T2}, 5, v{V_T1}")
        a(f"s_cmp_eq_u32 s{S_QH}, 0")
        a("s_cselect_b64 vcc, -1, 0")
        a("s_nop 1")
        a(f"v_cndmask_b32 v{V_T0}, v{V_T1}, v{V_T0}, vcc")
    def dly(us, tag):
        a("s_memrealtime s[78:79]")
        a("s_waitcnt lgkmcnt(0)")
        a(f"s_add_u32 s77, s78, {us*100}")
        a.label(f"L_dl{tag}")
        a("s_sleep 4")
        a("s_memrealtime s[78:79]")
        a("s_waitcnt lgkmcnt(0)")
        a("s_sub_u32 s79, s78, s77")
        a("s_cmp_lt_i32 s79, 0")
        a(f"s_cbranch_scc1 L_dl{tag}")
    def st(k):
        if pst:
            a("s_memrealtime s[78:79]")
            a("s_memtime s[80:81]")
            a("s_waitcnt lgkmcnt(0)")
            a("s_mov_b32 m0, s77"); a("s_nop 0"); a("v_writelane_b32 v0, s78, m0")
            a("s_add_u32 m0, s77, 30"); a("s_nop 0"); a("v_writelane_b32 v0, s80, m0")
            a("s_add_u32 s77, s77, 1")
        if stamp:
            if st0:
                n = len(a.lines)
                a(f"s_cmp_ge_u32 s{S_T}, {1 if k < 3 else 2}")
                a(f"s_cbranch_scc1 L_st_{n}")
            a(f"s_memtime s[{72+2*k}:{73+2*k}]")
            if st0: a.label(f"L_st_{n}")
    if pst:
        a("s_memrealtime s[78:79]")
        a("s_memtime s[80:81]")
        a("s_waitcnt lgkmcnt(0)")
        a("v_mov_b32 v0, 0")
        a("v_writelane_b32 v0, s78, 0")
        a("v_writelane_b32 v0, s80, 30")
        a("v_writelane_b32 v0, s74, 61")
        a("s_mov_b32 s77, 1")
    if delay:
        a("s_bitcmp1_b32 s2, 0")
        a("s_cbranch_scc0 L_nodelay")
        a("s_memrealtime s[78:79]")
        a("s_waitcnt lgkmcnt(0)")
        a(f"s_add_u32 s77, s78, {delay*100}")
        a.label("L_dl")
        a("s_sleep 8")
        a("s_memrealtime s[78:79]")
        a("s_waitcnt lgkmcnt(0)")
        a("s_sub_u32 s79, s78, s77")
        a("s_cmp_lt_i32 s79, 0")
        a("s_cbranch_scc1 L_dl")
        a.label("L_nodelay")
    a.label("L_at_start")
    if trace:
        a("s_mov_b32 s77, 1")
        a(f"v_mov_b32 v{V_T3}, s64")
        a("s_memtime s[78:79]")
        a("s_waitcnt lgkmcnt(0)")
        a(f"v_cmp_eq_u32 vcc, s77, v{V_LANE}")
        a(f"v_mov_b32 v{V_T2}, s78")
        a("s_nop 1")
        a(f"v_cndmask_b32 v{V_T3}, v{V_T3}, v{V_T2}, vcc")
        a("s_add_u32 s77, s77, 1")
    a(f"s_mov_b32 s{S_T}, s{S_T0}")
    a(f"s_lshl_b32 s{S_DJ}, s{S_T0}, 5")
    a(f"s_add_u32 s{S_D}, s{S_T}, s{S_PRE}")
    qs_init(S_D, "pre")
    if roll:
        rt_setup()
        for sl in range(2):
            dma_setup(sl, "QP")
            for _ in range(8): dma_one(True)
        a(f"s_mov_b32 s{S_B}, s{S_QS}")
        for _ in range(6):
            a(f"buffer_load_dword v0, v{V_T0}, s[{S_QP}:{S_QP+3}], s{S_B} offen{' nt' if tnt else ''}")
            a(f"s_add_u32 s{S_B}, s{S_B}, s{S_QSTEP}")
        for sl in range(2, 4):
            dma_setup(sl, "QP")
            for _ in range(8): dma_one(True)
        a(f"s_waitcnt vmcnt(30) lgkmcnt(0)")
    else:
        if wtl:
            a(f"s_and_b32 s56, s2, 127")
            a(f"s_mul_i32 s56, s56, {32*1280}")
            a(f"v_mov_b32 v{V_S+14}, 0")
            if wtl == 2: a(f"v_mul_u32_u24 v{V_S+14}, 640, v{V_LANE}")
            a(f"buffer_load_dword v{V_S+15}, v{V_S+14}, s[84:87], s56 offen")
        for sl in range(4):
            dma_setup(sl, "QP")
            for _ in range(8): dma_one(True)
            if pro1 and sl == 0:
                st(9)
                a("s_waitcnt vmcnt(0)")
                st(9)
        if wo5 or wo8:
            a(f"s_and_b32 s56, s2, 127")
            a(f"s_mul_i32 s56, s56, {32*1280}")
            a(f"s_mul_i32 s58, s{S_WAVE}, 320")
            a(f"s_add_u32 s56, s56, s58")
            a(f"s_mul_i32 s58, s{S_WAVE}, 7168")
            a(f"s_add_u32 s58, s58, {4*AREA}")
            a(f"s_mov_b32 s{S_A}, 6554")
            for i in range(5):
                a(f"v_add_u32 v{V_T0}, {64*i}, v{V_LANE}")
                a(f"v_mul_u32_u24 v{V_T1}, s{S_A}, v{V_T0}")
                a(f"v_lshrrev_b32 v{V_T1}, 16, v{V_T1}")
                a(f"v_mul_u32_u24 v{V_T2}, 10, v{V_T1}")
                a(f"v_sub_u32 v{V_T2}, v{V_T0}, v{V_T2}")
                a(f"v_mul_u32_u24 v{V_T1}, 1280, v{V_T1}")
                a(f"v_lshl_add_u32 v{V_T3}, v{V_T2}, 4, v{V_T1}")
                a(f"v_accvgpr_write_b32 a{244+i}, v{V_T3}")
            a(f"v_lshrrev_b32 v{V_T0}, 4, v{V_LANE}")
            a(f"v_bfe_u32 v{V_T1}, v{V_LANE}, 2, 2")
            a(f"v_lshl_add_u32 v{V_T1}, v{V_T0}, 3, v{V_T1}")
            a(f"v_mul_u32_u24 v{V_T1}, 160, v{V_T1}")
            a(f"v_and_b32 v{V_T2}, 3, v{V_LANE}")
            a(f"v_lshl_add_u32 v{V_T1}, v{V_T2}, 3, v{V_T1}")
            a(f"v_add_u32 v{V_T1}, s58, v{V_T1}")
            a(f"v_accvgpr_write_b32 a249, v{V_T1}")
        if tlbw:
            a(f"v_lshlrev_b32 v{V_S+13}, 12, v{V_LANE}")
            a(f"buffer_load_dword v{V_S+12}, v{V_S+13}, s[{S_LD}:{S_LD+3}], 0 offen nt")
            if tlbw > 1:
                a(f"s_mov_b32 s{S_A}, 0x80000")
                a(f"buffer_load_dword v{V_S+12}, v{V_S+13}, s[{S_LD}:{S_LD+3}], s{S_A} offen nt")
        if bulk0 and touch:
            touch_init(S_D)
            for _ in range(5): touch_one()
        if cpf and cpflate:
            for k in range(cpf // 16):
                a(f"s_mov_b32 s76, {k*16384}")
                a("buffer_load_dword v104, v105, s[72:75], s76 offen")
        a(f"s_waitcnt vmcnt({(29 if (bulk0 and touch) else 16 if qch2 else 24) + (cpf // 16 if cpflate else 0)}) lgkmcnt(0)")
    a("s_barrier")
    a.label("L_at_round")
    st(0)
    if roll: rt_setup()
    if qch2:
        for lp in range(4):
            for kk in range(2): wread2(lp, kk, 0)
        for kk in range(2):
            for qt in range(7): bread2(0, kk, qt, kk)
    else:
        for l in range(8): wread(l, 0)
        for qt in range(7): bread(0, qt, 0)
    a.lds_wait_all()
    def qp_body(role):
        sfx = role or ""
        vns = {None: (22, 17, 18, 18, 18), "W": (16, 16, 16, 16, 16), "X": (16, 22, 28, 28, 28), "T": (16, 20, 20, 63, 63)}[role]
        nts = (6, 4, 4, 2)
        qp_stage(0, first=True, chk=True, after_store=True, vn=vns[0], role=role, ntouch=nts[0], sidx=0, code=("P", 0))
        qp_stage(1, first=qch2, after_store=True, vn=vns[1], role=role, ntouch=nts[1], sidx=1, code=("P", 1))
        qp_stage(2, after_store=True, vn=vns[2], role=role, ntouch=nts[2], sidx=2, code=("P", 2))
        qp_stage(3, vn=vns[3], role=role, ntouch=nts[3], sidx=3, code=("P", 3))
        if not wo2 and not wo8 and not woff:
            a(f"s_cmp_lg_u32 s{S_WO}, 0")
            a(f"s_cbranch_scc1 L_at_nowo0{sfx}")
            a(f"s_mov_b32 s{S_WO}, 1")
            wo_issue(0)
            if roll: rt_setup()
            a.label(f"L_at_nowo0{sfx}")
        a(f"s_mov_b32 s{S_CNT}, 0")
        a.label(f"L_at_qploop{sfx}")
        a.lds_q = []
        if wo6:
            a(f"s_lshl3_add_u32 s{S_A}, s{S_WO}, s{S_CNT}")
            a(f"s_cmp_eq_u32 s{S_A}, {int(wo6[0])}")
            a("s_cbranch_scc1 L_at_wh0")
            a(f"s_cmp_eq_u32 s{S_A}, {8 + int(wo6[1])}")
            a("s_cbranch_scc1 L_at_wh1")
            a.label("L_at_whr")
            def h0():
                a(f"s_mov_b32 s{S_WO}, 1")
                for i in range(5):
                    a(f"s_add_u32 m0, s58, {1024*i}")
                    a(f"v_accvgpr_read_b32 v{V_T3}, a{244+i}")
                    a(f"buffer_load_dwordx4 v{V_T3}, s[84:87], s56 offen lds")
                a("s_branch L_at_whr")
            def h1():
                a(f"s_mov_b32 s{S_WO}, 2")
                a(f"v_accvgpr_read_b32 v{V_T1}, a249")
                a("s_add_u32 s57, s56, 160")
                for t in range(5):
                    for v in range(2):
                        a(f"ds_read_b64_tr_b16 {ar(A_LS+4*t+2*v,2)}, v{V_T1} offset:{v*640+t*32}")
                a("s_waitcnt lgkmcnt(0)")
                for i in range(5):
                    a(f"s_add_u32 m0, s58, {1024*i}")
                    a(f"v_accvgpr_read_b32 v{V_T3}, a{244+i}")
                    a(f"buffer_load_dwordx4 v{V_T3}, s[84:87], s57 offen lds")
                a("s_branch L_at_whr")
            state.setdefault("ool", []).extend(["L_at_wh0:"] + capture(h0) + ["L_at_wh1:"] + capture(h1))
        for sm in range(4): qp_stage(sm, vn=vns[4], role=role, sidx=4+sm, code=("L", sm))
        a(f"s_add_u32 s{S_CNT}, s{S_CNT}, 1")
        a(f"s_cmp_lt_u32 s{S_CNT}, 3")
        a(f"s_cbranch_scc1 L_at_qploop{sfx}")
    if not roles:
        qp_body(None)
    else:
        a(f"s_cmp_eq_u32 s{S_WAVE}, 1")
        a("s_cbranch_scc1 L_at_qpX")
        a(f"s_cmp_eq_u32 s{S_WAVE}, 3")
        a("s_cbranch_scc1 L_at_qpT")
        qp_body("W")
        a("s_branch L_at_qpjoin")
        a.label("L_at_qpX")
        qp_body("X")
        a("s_branch L_at_qpjoin")
        a.label("L_at_qpT")
        a(f"s_bfe_u32 s{S_A}, s2, 0x20003")
        a(f"s_lshl_b32 s{S_A}, s{S_A}, 3")
        a(f"v_lshrrev_b32 v{V_T0}, 3, v{V_LANE}")
        a(f"v_add_u32 v{V_T0}, s{S_A}, v{V_T0}")
        a(f"v_lshlrev_b32 v{V_T0}, 13, v{V_T0}")
        a(f"v_and_b32 v{V_T1}, 7, v{V_LANE}")
        a(f"v_lshl_add_u32 v{V_T0}, v{V_T1}, 6, v{V_T0}")
        a(f"v_min_u32 v{V_T1}, 27, v{V_LANE}")
        a(f"s_and_b32 s{S_A}, s2, 7")
        a(f"s_mul_i32 s{S_B}, s{S_A}, 28")
        a(f"v_add_u32 v{V_T1}, s{S_B}, v{V_T1}")
        a(f"v_mul_u32_u24 v{V_T1}, 1280, v{V_T1}")
        a(f"s_lshl_b32 s{S_A}, s{S_A}, 10")
        a(f"s_lshl_b32 s{S_B}, s101, 9")
        a(f"s_add_u32 s98, s{S_A}, s{S_B}")
        a(f"s_add_u32 s98, s98, {4*32*8192}")
        a(f"s_bfe_u32 s{S_A}, s2, 0x40003")
        a(f"s_mul_i32 s99, s{S_A}, {224*1280}")
        a(f"s_add_u32 s99, s99, {4*64}")
        qp_body("T")
        a.label("L_at_qpjoin")
    a(f"s_cmp_lg_u32 s{S_PRE}, 0")
    a("s_cbranch_scc1 L_at_qptailB")
    for sm in range(4): qp_stage(sm, dma="KV", last=(sm == 3), vn=(18, 17, 16, 16)[sm], sidx=16+sm, code=("T", sm))
    a("s_branch L_at_qpepi")
    a.label("L_at_qptailB")
    qs_init(S_T)
    a.lds_q = []
    for sm in range(4): qp_stage(sm, dma="QP", last=(sm == 3), vn=18, nok=True, sidx=16+sm, code=("B", sm))
    a.label("L_at_qpepi")
    if qdelay: dly(qdelay, "q")
    st(1)
    if trace:
        a("s_cmp_lg_u32 s2, 5")
        a("s_cbranch_scc1 L_tr_skip")
        a(f"s_cmp_lg_u32 s{S_T}, 0")
        a("s_cbranch_scc1 L_tr_skip")
        a(f"s_cmp_lg_u32 s{S_WAVE}, 0")
        a("s_cbranch_scc1 L_tr_skip")
        a("s_mov_b32 s80, s46"); a("s_mov_b32 s81, s47"); a("s_mov_b32 s82, 256"); a("s_mov_b32 s83, 0x20000")
        a(f"v_lshlrev_b32 v{V_T2}, 2, v{V_LANE}")
        a(f"v_add_u32 v{V_T2}, 128, v{V_T2}")
        a(f"buffer_store_dword v{V_T3}, v{V_T2}, s[80:83], 0 offen")
        a.label("L_tr_skip")
    if defer: a("s_mov_b32 s98, 0x40000000")
    a(f"v_mov_b32 v{V_T2}, s{S_CS}")
    a(f"v_mov_b32 v{V_T3}, s{S_CS}")
    a("s_nop 6")
    TMP = V_S
    for T in range(4):
        if T < 2:
            base = lambda e, qt: V_OK + 28 * (2 * T + e) + 4 * qt
        else:
            base = lambda e, qt: V_OK + 28 * (2 * (T - 2) + e) + 4 * qt
            for e in range(2):
                for qt in range(7):
                    for r in range(4):
                        a(f"v_accvgpr_read_b32 v{base(e,qt)+r}, a{A_OS+28*(2*(T-2)+e)+4*qt+r}")
        for e in range(2):
            for qt in range(7):
                o = base(e, qt)
                for h in range(2):
                    a(f"v_pk_mul_f32 {vr(o+2*h,2)}, {vr(o+2*h,2)}, {vr(V_T2,2)}")
        pk = lambda qt: TMP + 28 * (T & 1) + 4 * qt
        for qt in range(7):
            oe = base(0, qt); oo = base(1, qt); p = pk(qt)
            a(f"v_cvt_pk_bf16_f32 v{p}, v{oe}, v{oe+1}")
            a(f"v_cvt_pk_bf16_f32 v{p+1}, v{oe+2}, v{oe+3}")
            a(f"v_cvt_pk_bf16_f32 v{p+2}, v{oo}, v{oo+1}")
            a(f"v_cvt_pk_bf16_f32 v{p+3}, v{oo+2}, v{oo+3}")
        a("s_nop 1")
        for qt in range(7):
            p = pk(qt)
            a(f"v_permlane16_swap_b32 v{p}, v{p+2}")
            a(f"v_permlane16_swap_b32 v{p+1}, v{p+3}")
        for qt in range(7):
            for r in range(4):
                a(f"v_accvgpr_write_b32 a{A_Q+16*qt+4*T+r}, v{pk(qt)+r}")
    a(f"s_cmp_eq_u32 s{S_PRE}, 0")
    a("s_cbranch_scc1 L_at_nostash")
    a(f"s_mov_b32 s{S_PRE}, 0")
    qstash_off()
    for i in range(7):
        for s_ in range(4):
            a(f"buffer_store_dwordx4 {ar(A_Q+16*i+4*s_,4)}, v{V_T2}, s[{S_W}:{S_W+3}], s{S_C} offen offset:{1024*s_} {qpol}".rstrip())
        if i < 6: a(f"s_add_u32 s{S_C}, s{S_C}, 4096")
    a(f"s_mov_b32 s{S_AS}, 3")
    a("s_branch L_at_round")
    a.label("L_at_nostash")
    a(f"s_cmp_lg_u32 s{S_MP}, 0")
    a("s_cbranch_scc1 L_at_maxpass")
    a.label("L_at_pre")
    if wo6 or wo8 or woff:
        pass
    elif wo2:
        assert inv
        a(f"s_cmp_lg_u32 s{S_WO}, 0")
        a("s_cbranch_scc1 L_at_nowo1a")
        a(f"s_mov_b32 s{S_WO}, {2 if wo5 else 1}")
        a(f"s_mov_b32 s{S_AS}, 0x103")
        if wo5:
            a(f"v_accvgpr_read_b32 v{V_T1}, a249")
            a("s_add_u32 s57, s56, 160")
            a("s_waitcnt vmcnt(24)")
            for t in range(5):
                for v in range(2):
                    a(f"ds_read_b64_tr_b16 {ar(A_LS+4*t+2*v,2)}, v{V_T1} offset:{v*640+t*32}")
            a("s_waitcnt lgkmcnt(0)")
            for i in range(5):
                a(f"s_add_u32 m0, s58, {1024*i}")
                a(f"v_accvgpr_read_b32 v{V_T3}, a{244+i}")
                a(f"buffer_load_dwordx4 v{V_T3}, s[84:87], s57 offen lds")
        else:
            wo_issue(0)
        if not (wo3 or wo4): a("s_branch L_at_nowo1")
        a.label("L_at_nowo1a")
        if not (wo3 or wo4):
            a(f"s_cmp_lg_u32 s{S_WO}, 2")
            a("s_cbranch_scc1 L_at_nowo1")
            a(f"s_cmp_lg_u32 s{S_TY}, 0")
            a("s_cbranch_scc1 L_at_nowo1")
            a(f"s_mov_b32 s{S_WO}, 3")
            a(f"s_mov_b32 s{S_AS}, 0x103")
            wo_finish(1)
    else:
        a(f"s_cmp_lg_u32 s{S_WO}, 1")
        a("s_cbranch_scc1 L_at_nowo1")
        a(f"s_mov_b32 s{S_WO}, 2")
        wo_finish(0)
        wo_issue(1)
    a.label("L_at_nowo1")
    st(2)
    a.lds_q = ["K"]
    state["n"] = 0
    z = []
    for l in range(8):
        for r in range(4):
            z.append(f"v_mov_b32 v{V_OK+28*l+24+r}, 0" if l < 4 else f"v_accvgpr_write_b32 a{A_OS+28*(l-4)+24+r}, 0")
    if ones: z += [f"v_accvgpr_write_b32 a{A_LS+24+r}, 0" for r in range(4)]
    emit(qk_items(0, 0, True, None), z[:16])
    for o in z[16:]: a(o)
    step(0, first=True, dyn=True)
    a(f"s_mov_b32 s{S_CNT}, 0")
    if align:
        a.lines.append(".p2align 6")
        if align == 2: a("s_nop 0")
    a.label("L_at_loop")
    q0 = list(a.lds_q)
    state["inat"] = True
    for jm in (1, 2, 3, 0): step(jm, dyn=(jm in (1, 2)))
    state["inat"] = False
    assert q0 == a.lds_q, (q0, a.lds_q)
    if pstl:
        a("s_memrealtime s[78:79]")
        a("s_memtime s[80:81]")
        a("s_waitcnt lgkmcnt(0)")
        a("s_mov_b32 s76, m0")
        a("s_mov_b32 m0, s77"); a("s_nop 0"); a("v_writelane_b32 v0, s78, m0")
        a("s_add_u32 m0, s77, 30"); a("s_nop 0"); a("v_writelane_b32 v0, s80, m0")
        a("s_add_u32 s77, s77, 1")
        a("s_mov_b32 m0, s76")
    a(f"s_add_u32 s{S_CNT}, s{S_CNT}, 1")
    if wo3:
        assert lp7 and not ones
        a(f"s_lshl3_add_u32 s{S_A}, s{S_WO}, s{S_CNT}")
        a(f"s_cmp_eq_u32 s{S_A}, {8 + wo3}")
        a("s_cbranch_scc1 L_at_wof0")
        a.label("L_at_wof0r")
    a(f"s_cmp_lt_u32 s{S_CNT}, {7 if lp7 else 6}")
    a("s_cbranch_scc1 L_at_loop")
    if wo4 and not wo5:
        assert lp7 and not ones
        a(f"s_cmp_lg_u32 s{S_WO}, 1")
        a("s_cbranch_scc1 L_at_nowoi1")
        a(f"s_mov_b32 s{S_WO}, 2")
        a(f"s_mov_b32 s{S_AS}, 0x102")
        wo_read_a()
        a("s_waitcnt lgkmcnt(0)")
        wo_issue_a(1)
        a.label("L_at_nowoi1")
    if wo3:
        a(f"s_cmp_lg_u32 s{S_WO}, 2")
        a("s_cbranch_scc1 L_at_nowoi1")
        a(f"s_mov_b32 s{S_WO}, 3")
        a(f"s_mov_b32 s{S_AS}, 0x102")
        wo_issue_a(1)
        a.label("L_at_nowoi1")
        ls = capture(lambda: (wo_finish_a(0), a(f"s_mov_b32 s{S_WO}, 2"), a(f"s_mov_b32 s{S_AS}, 0x102"), a("s_branch L_at_wof0r")))
        state.setdefault("ool", []).extend(["L_at_wof0:"] + ls)
    a(f"s_add_u32 s{S_T}, s{S_T}, 1")
    touch_init(S_T)
    assert not (lp7 and early)
    if not lp7:
        step(1, nt_=3); step(2, nt_=2); step(3, tr_=True)
    if strace: a("s_memtime s[62:63]")
    qs_init(S_T)
    if not early and not lp7: step(0)
    def wtouch():
        a(f"s_and_b32 s{S_A}, s2, 127")
        a(f"s_mul_i32 s{S_A}, s{S_A}, {32*1280}")
        a(f"s_mul_i32 s{S_B}, s{S_WAVE}, {80*128}")
        a(f"s_add_u32 s{S_A}, s{S_A}, s{S_B}")
        a(f"v_lshlrev_b32 v{V_T2}, 7, v{V_LANE}")
        a(f"v_and_b32 v{V_T3}, 15, v{V_LANE}")
        a(f"v_lshlrev_b32 v{V_T3}, 7, v{V_T3}")
        a(f"buffer_load_dword a250, v{V_T2}, s[84:87], s{S_A} offen")
        a(f"s_add_u32 s{S_A}, s{S_A}, {64*128}")
        a(f"buffer_load_dword a251, v{V_T3}, s[84:87], s{S_A} offen")
        if wtch in (2, 3):
            a(f"s_mov_b32 s{S_A}, 0x40000000")
            for _ in range(3): a(f"buffer_load_dword a251, v{V_T3}, s[84:87], s{S_A} offen")
            a(f"s_mov_b32 s{S_AS}, {0x103 if wtch == 2 else 0x102}")
    if wtch in (1, 2, 3):
        a(f"s_cmp_eq_u32 s{S_T}, 2")
        a("s_cbranch_scc1 L_at_wt0")
        a.label("L_at_wt0r")
        state.setdefault("ool", []).extend(["L_at_wt0:"] + capture(lambda: (wtouch(), a("s_branch L_at_wt0r"))))
    if wo8:
        assert lp7 and inv
        a(f"s_lshl3_add_u32 s{S_A}, s{S_T}, s{S_WO}")
        a(f"s_cmp_eq_u32 s{S_A}, 16")
        a("s_cbranch_scc1 L_at_w8h0")
        a.label("L_at_w8h0r")
        def h0body():
            a(f"s_mov_b32 s{S_WO}, 1")
            a(f"s_mov_b32 s{S_AS}, 0x102")
            for i in range(5):
                a(f"s_add_u32 m0, s58, {1024*i}")
                a(f"v_accvgpr_read_b32 v{V_T3}, a{244+i}")
                if not wo8 & 16: a(f"buffer_load_dwordx4 v{V_T3}, s[84:87], s56 offen lds")
            a("s_branch L_at_w8h0r")
        state.setdefault("ool", []).extend(["L_at_w8h0:"] + capture(h0body))
    if eep:
        assert not (rflip or defer or ones or early or wo2 or wo8 or touch or kvt2 or stpol0 is not None) and inv and lp7 and wtch in (0, 1)
        a(f"s_mul_i32 s{S_D}, s{S_T}, {2*PAIRB}")
        a(f"s_add_u32 s{S_D}, s{S_D}, s{S_OOFF}")
        a(f"s_sub_u32 s{S_D}, s{S_D}, {2*PAIRB}")
    a(f"s_cmp_lg_u32 s{S_TY}, 0")
    a("s_cbranch_scc1 L_at_atailB")
    n0 = state["n"]; q0 = list(a.lds_q); c0 = state.get("carry")
    if early: step(0, dma="QP")
    tdyn = bool((wo3 or wo4) and not wo5) or bool(wo8) or wtch in (2, 3)
    def h1(tag):
        if wtch == 3:
            a(f"s_cmp_eq_u32 s{S_T}, 2")
            a(f"s_cselect_b32 s{S_AS}, 0x301, s{S_AS}")
        if not wo8: return
        a(f"s_cmp_eq_u32 s{S_WO}, 1")
        a(f"s_cbranch_scc1 L_at_w8h1{tag}")
        a.label(f"L_at_w8h1r{tag}")
        def body():
            a(f"s_mov_b32 s{S_WO}, 2")
            a(f"s_mov_b32 s{S_AS}, 0x101")
            a(f"v_accvgpr_read_b32 v{V_T1}, a249")
            a("s_add_u32 s57, s56, 160")
            a(f"v_lshlrev_b32 v{V_T2}, 4, v{V_LANE}")
            a(f"s_mul_i32 s{S_A}, s2, {40*1024}")
            a(f"s_mul_i32 s{S_B}, s{S_WAVE}, {10*1024}")
            a(f"s_add_u32 s{S_A}, s{S_A}, s{S_B}")
            a(f"s_add_u32 s{S_A}, s{S_A}, {WS_W}")
            if not wo8 & 8: a("s_waitcnt vmcnt(16)")
            for t in range(5):
                for v in range(2):
                    a(f"ds_read_b64_tr_b16 {ar(A_LS+4*t+2*v,2)}, v{V_T1} offset:{v*640+t*32}")
            a("s_waitcnt lgkmcnt(0)")
            for i in range(5):
                a(f"s_add_u32 m0, s58, {1024*i}")
                a(f"v_accvgpr_read_b32 v{V_T3}, a{244+i}")
                if not wo8 & 4: a(f"buffer_load_dwordx4 v{V_T3}, s[84:87], s57 offen lds")
            for f in range(5):
                if f == 4: a(f"s_add_u32 s{S_A}, s{S_A}, 4096")
                if not wo8 & 2: a(f"buffer_store_dwordx4 {ar(A_LS+4*f,4)}, v{V_T2}, s[{S_W}:{S_W+3}], s{S_A} offen offset:{1024*(f&3)} {wpol}".rstrip())
            a(f"s_branch L_at_w8h1r{tag}")
        state.setdefault("ool", []).extend([f"L_at_w8h1{tag}:"] + capture(body))
    ixA0 = len(a.lines)
    step(1, dma="QP", dyn=tdyn); step(2, dma="QP", dyn=tdyn); h1("A"); step(3, dma="QP", last=True, dyn=bool(wo8) or wtch in (2, 3))
    ixA1 = len(a.lines)
    a("s_branch L_at_aepi")
    a.label("L_at_atailB")
    state["n"] = n0; a.lds_q = q0; state["carry"] = c0
    if early: step(0)
    ixB0 = len(a.lines)
    step(1, dyn=tdyn); step(2, dyn=tdyn); h1("B"); step(3, last=True, dyn=bool(wo8) or wtch in (2, 3))
    ixB1 = len(a.lines)
    a.label("L_at_aepi")
    if adelay: dly(adelay, "a")
    a.lds_q = ["V"]
    st(3)
    E = V_S
    red = [f"v_add_f32 v{V_L+2*i}, v{V_L+2*i}, v{V_L+2*i+1}" for i in range(7)]
    red += [f"v_mov_b32 v{E+i}, v{V_L+2*i}" for i in range(7)]
    red += [f"v_permlane16_swap_b32 v{V_L+2*i}, v{E+i}" for i in range(7)]
    red += [f"v_add_f32 v{V_L+2*i}, v{V_L+2*i}, v{E+i}" for i in range(7)]
    red += [f"v_mov_b32 v{E+i}, v{V_L+2*i}" for i in range(7)]
    red += [f"v_permlane32_swap_b32 v{V_L+2*i}, v{E+i}" for i in range(7)]
    red += [f"v_add_f32 v{V_L+2*i}, v{V_L+2*i}, v{E+i}" for i in range(7)]
    a("s_nop 1")
    ixP0 = len(a.lines)
    if eep:
        emit(pv_items(6, 1, False, None), ep_merge(ep_red(6), ep_red(5) + ep_tile(5, eep == 2)))
    elif ones:
        emit(pv_items(6, 1, False, None), [])
        a("s_nop 7")
        for i in range(7): a(f"v_accvgpr_read_b32 v{V_L+2*i}, a{A_LS+4*i}")
    else:
        emit(pv_items(6, 1, False, None), red)
    if not eep:
        for i in range(7): a(f"v_rcp_f32 v{V_CI+4*i}, v{V_L+2*i}")
    a(f"v_add_f32 v{E+2}, v{V_L}, v{V_L+2}")
    a(f"v_add_f32 v{E+3}, v{V_L+4}, v{V_L+6}")
    a(f"v_add_f32 v{E+4}, v{V_L+8}, v{V_L+10}")
    a(f"v_add_f32 v{E+2}, v{E+2}, v{V_L+12}")
    a(f"v_add_f32 v{E+3}, v{E+3}, v{E+4}")
    a(f"v_add_f32 v{E+2}, v{E+2}, v{E+3}")
    a(f"v_cmp_nge_f32 vcc, s{S_THR}, v{E+2}")
    for i in range(7): a(f"v_mov_b32 v{V_L+2*i}, 0xff800000")
    a("s_cmp_eq_u64 vcc, 0")
    a("s_cbranch_scc1 L_at_noflag")
    if nofb: a("s_branch L_at_noflag")
    a(f"s_lshl_b32 s{S_B}, s{S_T}, 2")
    a(f"s_add_u32 s{S_B}, s{S_B}, {LDS_FLAG-4}")
    a(f"v_mov_b32 v{E+2}, s{S_B}")
    a(f"v_mov_b32 v{E+3}, 1")
    a(f"ds_write_b32 v{E+2}, v{E+3}")
    a.label("L_at_noflag")
    if eep:
        for o in ep_tile(6, True): a(o)
    elif rflip:
        a(f"s_sub_u32 s{S_D}, s{S_T}, 1")
        a(f"s_mul_i32 s{S_D}, s{S_D}, s99")
        a(f"s_add_u32 s{S_D}, s{S_D}, s{S_OOFF}")
    else:
        a(f"s_mul_i32 s{S_D}, s{S_T}, {2*PAIRB}")
        a(f"s_add_u32 s{S_D}, s{S_D}, s{S_OOFF}")
        a(f"s_sub_u32 s{S_D}, s{S_D}, {2*PAIRB}")
    if defer:
        a(f"s_cmp_lt_u32 s{S_T}, 2")
        a(f"s_cselect_b32 s99, 1, 0")
        a(f"s_cmp_eq_u32 s{S_TY}, 0")
        a(f"s_cselect_b32 s99, s99, 0")
        a(f"s_cmp_lg_u32 s99, 0")
        a(f"s_cselect_b32 s98, s{S_D}, s98")
    for T in range(0 if eep else 4):
        if T < 2:
            base = lambda e, qt: V_OK + 28 * (2 * T + e) + 4 * qt
        else:
            base = lambda e, qt: V_OK + 28 * (2 * (T - 2) + e) + 4 * qt
            for e in range(2):
                for qt in range(7):
                    for r in range(4):
                        a(f"v_accvgpr_read_b32 v{base(e,qt)+r}, a{A_OS+28*(2*(T-2)+e)+4*qt+r}")
        for e in range(2):
            for qt in range(7):
                o = base(e, qt)
                for h in range(2):
                    a(f"v_pk_mul_f32 {vr(o+2*h,2)}, {vr(o+2*h,2)}, {vr(V_CI+4*qt,2)} op_sel_hi:[1,0]")
        pk = lambda qt: V_S + 28 * (T & 1) + 4 * qt
        for qt in range(7):
            oe = base(0, qt); oo = base(1, qt); p = pk(qt)
            a(f"v_cvt_pk_bf16_f32 v{p}, v{oe}, v{oe+1}")
            a(f"v_cvt_pk_bf16_f32 v{p+1}, v{oe+2}, v{oe+3}")
            a(f"v_cvt_pk_bf16_f32 v{p+2}, v{oo}, v{oo+1}")
            a(f"v_cvt_pk_bf16_f32 v{p+3}, v{oo+2}, v{oo+3}")
        if not operm:
            a("s_nop 1")
            for qt in range(7):
                p = pk(qt)
                a(f"v_permlane16_swap_b32 v{p}, v{p+2}")
                a(f"v_permlane16_swap_b32 v{p+1}, v{p+3}")
        if defer:
            a(f"s_cmp_lg_u32 s99, 0")
            a(f"s_cbranch_scc1 L_at_dfr{T}")
        a(f"s_mov_b32 s{S_A}, s{S_D}")
        if stpol0 is not None:
            a(f"s_cmp_ge_u32 s{S_T}, 2")
            a(f"s_cbranch_scc1 L_at_sp1_{T}")
            for qt in range(7):
                a(f"buffer_store_dwordx4 {vr(pk(qt),4)}, v{V_XA}, s[{S_W}:{S_W+3}], s{S_A} offen offset:{1024*T} {stpol0}".rstrip())
                if qt < 6: a(f"s_add_u32 s{S_A}, s{S_A}, 4096")
            a(f"s_branch L_at_sp2_{T}")
            a.label(f"L_at_sp1_{T}")
        for qt in range(7):
            if not nost: a(f"buffer_store_dwordx4 {vr(pk(qt),4)}, v{V_XA}, s[{S_W}:{S_W+3}], s{S_A} offen offset:{1024*T} {stpol}".rstrip())
            if dupst:
                a(f"s_sub_u32 s{S_B}, s{S_A}, {WS_O - 30000000}")
                a(f"buffer_store_dwordx4 {vr(pk(qt),4)}, v{V_XA}, s[72:75], s{S_B} offen offset:{1024*T}")
            if qt < 6: a(f"s_add_u32 s{S_A}, s{S_A}, 4096")
        if stpol0 is not None: a.label(f"L_at_sp2_{T}")
        if defer:
            a(f"s_branch L_at_dfj{T}")
            a.label(f"L_at_dfr{T}")
            for qt in range(7):
                for r in range(4):
                    a(f"v_accvgpr_write_b32 a{A_Q+16*qt+4*T+r}, v{pk(qt)+r}")
            a.label(f"L_at_dfj{T}")
    a("s_nop 1")
    if wo8:
        a(f"s_cmp_lg_u32 s{S_WO}, 2")
        a("s_cbranch_scc1 L_at_nowo2")
        a(f"s_mov_b32 s{S_WO}, 4")
        a(f"v_accvgpr_read_b32 v{V_T1}, a249")
        a(f"v_lshlrev_b32 v{V_T2}, 4, v{V_LANE}")
        a(f"s_mul_i32 s{S_A}, s2, {40*1024}")
        a(f"s_mul_i32 s{S_B}, s{S_WAVE}, {10*1024}")
        a(f"s_add_u32 s{S_A}, s{S_A}, s{S_B}")
        a(f"s_add_u32 s{S_A}, s{S_A}, {WS_W+5120}")
        a("s_waitcnt vmcnt(49)")
        R = V_VF
        for t in range(5):
            for v in range(2):
                a(f"ds_read_b64_tr_b16 {vr(R+4*t+2*v,2)}, v{V_T1} offset:{v*640+t*32}")
        a("s_waitcnt lgkmcnt(0)")
        for f in range(5):
            if f == 4: a(f"s_add_u32 s{S_A}, s{S_A}, 4096")
            a(f"buffer_store_dwordx4 {vr(R+4*f,4)}, v{V_T2}, s[{S_W}:{S_W+3}], s{S_A} offen offset:{1024*(f&3)} {wpol}".rstrip())
        a("s_nop 1")
    elif wo4:
        a(f"s_mov_b32 s{S_AS}, 3")
        a(f"s_cmp_lg_u32 s{S_WO}, 2")
        a("s_cbranch_scc1 L_at_nowo2")
        a(f"s_mov_b32 s{S_WO}, 4")
        a(f"s_mov_b32 s{S_AS}, 0x303")
        if wo5:
            a(f"v_accvgpr_read_b32 v{V_T1}, a249")
            a(f"v_lshlrev_b32 v{V_T2}, 4, v{V_LANE}")
            a(f"s_mul_i32 s{S_A}, s2, {40*1024}")
            a(f"s_mul_i32 s{S_B}, s{S_WAVE}, {10*1024}")
            a(f"s_add_u32 s{S_A}, s{S_A}, s{S_B}")
            a(f"s_add_u32 s{S_A}, s{S_A}, {WS_W}")
            R = V_VF
            for t in range(5):
                for v in range(2):
                    a(f"ds_read_b64_tr_b16 {vr(R+4*t+2*v,2)}, v{V_T1} offset:{v*640+t*32}")
            for f in range(5):
                if f == 4: a(f"s_add_u32 s{S_A}, s{S_A}, 4096")
                a(f"buffer_store_dwordx4 {ar(A_LS+4*f,4)}, v{V_T2}, s[{S_W}:{S_W+3}], s{S_A} offen offset:{1024*(f&3)} {wpol}".rstrip())
            a(f"s_add_u32 s{S_A}, s{S_A}, 1024")
            a("s_waitcnt lgkmcnt(0)")
            for f in range(5):
                if f == 4: a(f"s_add_u32 s{S_A}, s{S_A}, 4096")
                a(f"buffer_store_dwordx4 {vr(R+4*f,4)}, v{V_T2}, s[{S_W}:{S_W+3}], s{S_A} offen offset:{1024*(f&3)} {wpol}".rstrip())
            a("s_nop 1")
        else:
            wo_store_a(0)
            wo_finish(1)
    elif wo2 and not wo3:
        a(f"s_cmp_lg_u32 s{S_WO}, 1")
        a("s_cbranch_scc1 L_at_nowo2a")
        a(f"s_mov_b32 s{S_WO}, 2")
        wo_finish(0)
        wo_issue(1)
        a("s_branch L_at_nowo2")
        a.label("L_at_nowo2a")
    if not wo4 and not wo8 and not woff:
        a(f"s_cmp_lg_u32 s{S_WO}, {3 if wo3 else 2}")
        a("s_cbranch_scc1 L_at_nowo2")
        a(f"s_mov_b32 s{S_WO}, {4 if wo3 else 3}")
        wo_finish(1)
    a.label("L_at_nowo2")
    if not wo4: a(f"s_mov_b32 s{S_AS}, 3")
    if defer:
        a("s_cmp_lg_u32 s99, 0")
        a(f"s_cselect_b32 s{S_AS}, 0, 3")
    st(4)
    a.lds_q = []
    ixP1 = len(a.lines)
    a(f"s_cmp_ge_u32 s{S_T}, 2")
    a("s_cbranch_scc1 L_at_fin")
    a(f"s_cmp_eq_u32 s{S_TY}, 0")
    if eep: a(f"s_mov_b32 s{S_AS}, 0x103")
    a("s_cbranch_scc1 L_at_round")
    if eep:
        a(f"s_mov_b32 s{S_AS}, 0x203")
        a("s_waitcnt vmcnt(@NBQ@)")
    else:
        a(f"s_waitcnt vmcnt({56 if dupst else (33 if wo3 else 38 if wo2 else 28)})")
    a("s_branch L_at_pre")
    if eep:
        def vm(ls):
            out = []
            for k_, l_ in enumerate(ls):
                t_ = l_.strip()
                if t_.startswith("buffer_") or t_.startswith("global_"):
                    out.append("D" if t_.endswith("lds") else "S" if t_.startswith("buffer_store") else "R")
                elif "@LB" in t_: out.append("|")
            return out
        post = vm(a.lines[ixP0:ixP1])
        res = {}
        for nm, i0, i1 in (("A", ixA0, ixA1), ("B", ixB0, ixB1)):
            sq = vm(a.lines[i0:i1]) + post
            bar = sq.index("|"); sq2 = [x for x in sq if x != "|"]
            dpos = [k_ for k_, x in enumerate(sq2) if x == "D"]
            assert len(dpos) == 32 and (nost or sq2.count("S") == 28), (dpos, sq2)
            res["LB" + nm] = bar - (dpos[7] + 1)
            after = lambda k_: len(sq2) - (k_ + 1)
            if nm == "A":
                assert nost or after(dpos[15]) == 44
                res["NA1"] = after(dpos[23]) + 8; res["NA2"] = after(dpos[31]) + 16
            else:
                rpos = [k_ for k_, x in enumerate(sq2) if x == "R"]
                assert len(rpos) == 28 and rpos[-1] > dpos[23]
                res["NBQ"] = after(rpos[-1]); res["NB2"] = after(dpos[31]) + 16
                assert res["NBQ"] <= 44 and res["NBQ"] + 8 <= 44 + 8
            print("eep seq", nm, "".join(sq), file=sys.stderr)
        print("eep counts", res, file=sys.stderr)
        assert all(0 <= v <= 63 for v in res.values())
        state["eepres"] = res
    a.label("L_at_fin")
    if wb == 1:
        a(f"s_cmp_lg_u32 s{S_WAVE}, 0")
        a("s_cbranch_scc1 L_at_nowb")
        a("buffer_wbl2 sc1")
        a.label("L_at_nowb")
    a("s_waitcnt lgkmcnt(0)")
    a("s_barrier")
    flagcheck()
    if pst:
        a("s_memrealtime s[78:79]")
        a("s_memtime s[80:81]")
        a("s_waitcnt lgkmcnt(0)")
        a("s_mov_b32 m0, s77"); a("s_nop 0"); a("v_writelane_b32 v0, s78, m0")
        a("s_add_u32 m0, s77, 30"); a("s_nop 0"); a("v_writelane_b32 v0, s80, m0")
        a("s_getreg_b32 s62, hwreg(HW_REG_XCC_ID)")
        a("v_writelane_b32 v0, s62, 63")
        a(f"v_writelane_b32 v0, s{S_TY}, 62")
        a(f"s_cmp_lg_u32 s{S_WAVE}, 0")
        a("s_cbranch_scc1 L_at_end")
        a("s_lshl_b32 s62, s2, 8"); a("s_add_u32 s62, s62, 50000000")
        a(f"v_lshlrev_b32 v2, 2, v{V_LANE}")
        a(f"buffer_store_dword v0, v2, s[{S_W}:{S_W+3}], s62 offen")
    if stamp:
        a("s_memtime s[56:57]")
        a("s_memrealtime s[58:59]")
        a("s_waitcnt lgkmcnt(0)")
        if allst:
            a("v_mov_b32 v2, s66"); a("v_mov_b32 v3, s58")
            a("s_sub_u32 s62, s56, s64"); a("v_mov_b32 v4, s62")
            a("s_getreg_b32 s62, hwreg(HW_REG_XCC_ID)"); a("v_mov_b32 v5, s62")
            a("s_lshl_b32 s62, s2, 4"); a("s_add_u32 s62, s62, 50000000"); a("v_mov_b32 v6, s62")
            a(f"buffer_store_dwordx4 v[2:5], v6, s[{S_W}:{S_W+3}], 0 offen")
        a(f"s_cmp_lg_u32 s2, {stwg}")
        a("s_cbranch_scc1 L_at_end")
        a("s_sub_u32 s56, s56, s64")
        a("s_sub_u32 s58, s58, s66")
        a("s_mov_b32 s84, s46")
        a("s_mov_b32 s85, s47")
        a("s_mov_b32 s86, 256")
        a("s_mov_b32 s87, 0x20000")
        a("v_mov_b32 v2, s56")
        a("v_mov_b32 v3, s58")
        a(f"s_lshl_b32 s62, s{S_WAVE}, 3")
        a("v_mov_b32 v4, s62")
        a("buffer_store_dwordx2 v[2:3], v4, s[84:87], 0 offen")
        if strace:
            pr = [36, 38, 40, 42, 56, 58, 60, 62]
            for i in range(7):
                a(f"s_sub_u32 s78, s{pr[i+1]}, s{pr[i]}")
                a("v_mov_b32 v2, s78")
                a(f"v_mov_b32 v4, {160+4*i}")
                a("buffer_store_dword v2, v4, s[84:87], 0 offen")
        a("s_sub_u32 s62, s72, s64")
        a("v_mov_b32 v2, s62")
        a(f"v_mov_b32 v4, {DBO+4*5}")
        a("buffer_store_dword v2, v4, s[84:87], 0 offen")
        for k in range(1, 5):
            a(f"s_sub_u32 s62, s{72+2*k}, s{70+2*k}")
            a("v_mov_b32 v2, s62")
            a(f"v_mov_b32 v4, {DBO+4*k}")
            a("buffer_store_dword v2, v4, s[84:87], 0 offen")
    a("s_branch L_at_end")
    for ln in state.get("ool", []): a.lines.append(ln)

    a.label("L_at_fallback")
    a(f"s_sub_u32 s{S_T0}, s{S_T}, 1")
    a(f"s_mov_b32 s{S_NOFB}, s{S_T0}")
    a(f"s_mov_b32 s{S_MP}, 1")
    a(f"s_mov_b32 s{S_TY}, 0")
    a(f"s_mov_b32 s{S_PRE}, 0")
    a(f"s_mov_b32 s{S_AS}, 0")
    if defer: a("s_mov_b32 s98, 0x40000000")
    for i in range(7): a(f"v_mov_b32 v{V_L+2*i}, 0xff800000")
    a("s_waitcnt vmcnt(0) lgkmcnt(0)")
    a("s_barrier")
    a("s_branch L_at_start")
    a.label("L_at_maxpass")
    a(f"s_mov_b32 s{S_MP}, 0")
    a("s_waitcnt lgkmcnt(0)")
    a(f"v_and_b32 v{V_T0}, 15, v{V_LANE}")
    a(f"v_lshlrev_b32 v{V_T0}, 8, v{V_T0}")
    a(f"v_bfe_u32 v{V_T1}, v{V_LANE}, 4, 1")
    a(f"v_lshl_add_u32 v{V_T0}, v{V_T1}, 5, v{V_T0}")
    a(f"v_bfe_u32 v{V_T1}, v{V_LANE}, 5, 1")
    a(f"v_lshl_add_u32 v{V_T2}, v{V_T1}, 4, v{V_T0}")
    a(f"v_add_u32 v{V_T3}, 4096, v{V_T2}")
    a(f"s_lshl_b32 s{S_B}, s{S_T}, 19")
    if rflip: a(f"s_xor_b32 s{S_B}, s{S_B}, s101")
    a(f"s_mov_b32 s{S_CNT}, 0")
    a.label("L_at_mp")
    for f in range(8):
        a(f"buffer_load_dwordx4 {vr(V_VF+4*f,4)}, v{V_T2 + (f>>2)}, s[{S_K}:{S_K+3}], s{S_B} offen offset:{64*(f&3)}")
    a("s_waitcnt vmcnt(0)")
    for i in range(7):
        for f in range(8):
            kt, s = f >> 2, f & 3
            D = vr(V_S + 4 * kt, 4)
            a(f"{MFMA} {D}, {vr(V_VF+4*f,4)}, {ar(A_Q+16*i+4*s,4)}, {'0' if s == 0 else D}")
        a("s_nop 9")
        for r in range(0, 8, 2):
            a(f"v_max3_f32 v{V_L+2*i}, v{V_S+r}, v{V_S+r+1}, v{V_L+2*i}")
        a("s_nop 3")
    a(f"s_add_u32 s{S_B}, s{S_B}, 8192")
    a(f"s_add_u32 s{S_CNT}, s{S_CNT}, 1")
    a(f"s_cmp_lt_u32 s{S_CNT}, 32")
    a("s_cbranch_scc1 L_at_mp")
    a("s_branch L_at_pre")
    a.label("L_at_end")
    a("s_endpgm")
    txt = a.text()
    if eep:
        for k_, v_ in state["eepres"].items(): txt = txt.replace(f"@{k_}@", str(v_))
        assert "@" not in txt
    return txt

if __name__ == "__main__":
    import sys
    name = "fused_kernel"
    opts = dict(x.split("=") for x in sys.argv[2:])
    opts = {k: bool(int(v)) for k, v in opts.items()}
    body = gen_fused(name, **opts)
    out = f"; @launch kernel={name} grid=(256,1,1) block=(256,1,1) lds={LDS_BYTES}\n"
    out += '.amdgcn_target "amdgcn-amd-amdhsa--gfx950"\n.text\n' + kernel_header(name) + body
    out += '.section .rodata,"a"\n.p2align 6\n' + kernel_desc(name, 512, accum=256)
    open(sys.argv[1], "w").write(out)
```

```python
from gen_common import *
NQB = 3584 * 4096 * 2
WS_O = 2 * NQB
WS_BYTES = 4 * NQB + 2 * 4096 * 640 * 2
PAIRB = 224 * 128 * 2
LDS_BYTES = 163840
WST = 40960
BUF = 8192
NQ, NN = 9, 8
MFMA = "v_mfma_f32_16x16x32_bf16"
V_LANE, V_T0, V_T1, V_T2, V_T3, V_LIN, V_BO, V_UW, V_ST = 1, 2, 3, 4, 5, 6, 7, 8, 9
V_D = 10
V_AR = 18
V_ACC = 28
V_A = 60
V_B = 92
S_O, S_WO, S_OUT = 4, 8, 12
S_WAVE, S_CNT, S_A, S_B, S_C, S_BOFF, S_WOFF, S_LDB = 20, 21, 22, 23, 24, 25, 26, 27
S_RB, S_CB, S_BLK, S_GT0 = 28, 29, 30, 31
S_QB = 48
S_PB, S_PD, S_WB, S_CLS, S_T1 = 58, 59, 60, 61, 62
WSTEP = 128 * 1280
def ar(a, n=1):
    return f"a{a}" if n == 1 else f"a[{a}:{a+n-1}]"
def acc(nt, qt):
    i = nt * NQ + qt
    return ar(4 * i, 4) if i < 64 else vr(V_ACC + 4 * (i - 64), 4)

def gen_op2(name, pst=False, opol='', krot=None, wpol='', bpol='', xmap=0, vnx=34, ch2=False, dgrp=5, ramp=False, rot4=False, operm=False, wpace=3, w0=17, pw=0, tpf=0, xnost=False, xst=0, xlin=0, rot5=False, w5=9, dpace=2):
    a = Asm()
    def rslot(r):
        return (4 + (r & 3), r >> 2) if r < 16 else (6 + r - 16, None)
    def snd(g, r):
        ntp, d = rslot(r)
        if g == 0: return ((ntp - 4) ^ 2, 4 if d is None else d)
        if g == 1: return (ntp - 4, 4 if d is None else 5 + d)
        if g == 2: return (ntp ^ 2, 4 if d is None else d)
        return (ntp, 4 if d is None else 5 + d)
    AMAP = {}
    if rot5:
        assert ch2 and ramp and not krot and not rot4 and not tpf
        vl = [28 + 4 * i for i in range(8)] + [236 + 4 * i for i in range(4)]
        for r in range(6, 18): AMAP[snd(3, r)] = vr(vl[r - 6], 4)
        k_ = 0
        for nt_ in range(NN):
            for qt_ in range(NQ):
                if (nt_, qt_) not in AMAP:
                    AMAP[(nt_, qt_)] = ar(4 * k_, 4); k_ += 1
        assert k_ == 60
    acc0 = globals()["acc"]
    def acc(nt, qt): return AMAP[(nt, qt)] if rot5 else acc0(nt, qt)
    a("s_cmp_ge_u32 s2, 256")
    a("s_cbranch_scc1 L_op_end")
    a("s_and_b32 s3, s2, 7")
    a("s_lshl_b32 s3, s3, 5")
    a("s_lshr_b32 s30, s2, 3")
    a("s_add_u32 s3, s3, s30")
    a("s_cmp_ge_u32 s3, 250")
    a("s_cbranch_scc1 L_op_end")
    def pstamp(i):
        if pst:
            a("s_memrealtime s[78:79]")
            a("s_memtime s[80:81]")
            a("s_waitcnt lgkmcnt(0)")
            a(f"v_writelane_b32 v252, s78, {i}")
            a(f"v_writelane_b32 v252, s80, {16+i}")
    if pst: a("v_mov_b32 v252, 0")
    pstamp(0)
    a("s_load_dwordx2 s[36:37], s[0:1], 32")
    a("s_load_dwordx2 s[38:39], s[0:1], 72")
    a("s_load_dwordx2 s[40:41], s[0:1], 80")
    a("s_load_dwordx2 s[44:45], s[0:1], 96")
    a(f"v_and_b32 v{V_LANE}, 63, v0")
    a(f"v_lshrrev_b32 v{V_T0}, 6, v0")
    a("s_nop 0")
    a(f"v_readfirstlane_b32 s{S_WAVE}, v{V_T0}")
    a(f"s_mul_i32 s{S_RB}, s3, 13108")
    a(f"s_lshr_b32 s{S_RB}, s{S_RB}, 16")
    a(f"s_mul_i32 s{S_A}, s{S_RB}, 5")
    a(f"s_sub_u32 s{S_CB}, s3, s{S_A}")
    a(f"s_mov_b32 s{S_CLS}, s{S_RB}")
    a(f"s_cmp_ge_u32 s{S_RB}, 25")
    a(f"s_cselect_b32 s{S_BLK}, 1, 0")
    a(f"s_cselect_b32 s{S_A}, 25, 0")
    a(f"s_sub_u32 s{S_RB}, s{S_RB}, s{S_A}")
    a(f"s_mul_i32 s{S_GT0}, s{S_RB}, {NQ}")
    a(f"s_lshl_b32 s{S_C}, s{S_WAVE}, 10")
    a(f"s_add_u32 s{S_C}, s{S_C}, {WS_O}")
    a(f"s_mul_i32 s{S_B}, s{S_BLK}, {16*32*PAIRB}")
    a(f"s_add_u32 s{S_C}, s{S_C}, s{S_B}")
    if rot5:
        a(f"s_cmp_lt_u32 s{S_WAVE}, 2")
        a(f"s_cselect_b32 s{S_PB}, 5, 0")
    for qt in range(NQ):
        a(f"s_add_u32 s{S_A}, s{S_GT0}, {qt}")
        if rot5 and qt < 4: a(f"s_add_u32 s{S_A}, s{S_A}, s{S_PB}")
        if rot5 and qt > 4: a(f"s_sub_u32 s{S_A}, s{S_A}, s{S_PB}")
        a(f"s_mul_i32 s{S_B}, s{S_A}, 4682")
        a(f"s_lshr_b32 s{S_B}, s{S_B}, 16")
        a(f"s_mul_i32 s{S_T1}, s{S_B}, {32*PAIRB - 14*4096}")
        a(f"s_lshl_b32 s{S_QB+qt}, s{S_A}, 12")
        a(f"s_add_u32 s{S_QB+qt}, s{S_QB+qt}, s{S_T1}")
        a(f"s_add_u32 s{S_QB+qt}, s{S_QB+qt}, s{S_C}")
        if qt == NQ - 1 or (rot5 and qt == 3):
            a(f"s_cmp_ge_u32 s{S_A}, 224")
            a(f"s_cselect_b32 s{S_T1}, 0x40000000, 0")
            a(f"s_add_u32 s{S_QB+qt}, s{S_QB+qt}, s{S_T1}")
    a(f"v_lshlrev_b32 v{V_LIN}, 4, v{V_LANE}")
    a(f"v_lshrrev_b32 v{V_T0}, 4, v{V_LANE}")
    a(f"v_and_b32 v{V_T1}, 15, v{V_LANE}")
    a(f"v_lshlrev_b32 v{V_T2}, 1, v{V_T0}")
    a(f"v_xor_b32 v{V_T1}, v{V_T1}, v{V_T2}")
    a(f"v_lshlrev_b32 v{V_T1}, 4, v{V_T1}")
    a(f"v_mul_u32_u24 v{V_T2}, 1280, v{V_T0}")
    a(f"v_add_u32 v{V_T3}, v{V_T2}, v{V_T1}")
    a(f"v_xor_b32 v{V_T1}, 128, v{V_T1}")
    a(f"v_add_u32 v{V_T2}, v{V_T2}, v{V_T1}")
    for i in range(8):
        src = V_T3 if (((i if operm else i >> 1)) & 1) == 0 else V_T2
        a(f"v_add_u32 v{V_D+i}, {5120*i - 1024*(i&3)}, v{src}")
    a(f"s_mul_i32 s{S_LDB}, s{S_WAVE}, {WST}")
    a("s_waitcnt lgkmcnt(0)")
    a(f"s_cmp_lg_u32 s{S_BLK}, 0")
    a(f"s_cselect_b32 s{S_WO}, s38, s36")
    a(f"s_cselect_b32 s{S_WO+1}, s39, s37")
    a(f"s_mov_b32 s{S_WO+2}, {4096*640*2}")
    a(f"s_mov_b32 s{S_WO+3}, 0x20000")
    a(f"s_mov_b32 s{S_O}, s44")
    a(f"s_mov_b32 s{S_O+1}, s45")
    a(f"s_mov_b32 s{S_O+2}, {WS_BYTES}")
    a(f"s_mov_b32 s{S_O+3}, 0x20000")
    a(f"s_mov_b32 s{S_OUT}, s40")
    a(f"s_mov_b32 s{S_OUT+1}, s41")
    a(f"s_mov_b32 s{S_OUT+2}, {3584*1280*2}")
    a(f"s_mov_b32 s{S_OUT+3}, 0x20000")
    a(f"s_mul_i32 s{S_A}, s{S_WAVE}, {32*1280}")
    a(f"s_lshl_b32 s{S_B}, s{S_CB}, 8")
    a(f"s_add_u32 s{S_WOFF}, s{S_A}, s{S_B}")
    a(f"s_mov_b32 s{S_BOFF}, 0")
    def knext(P, OFF, BASE, stride):
        gs, lag, mode = krot
        ls = [f"s_add_u32 s{P}, s{P}, 1"]
        if gs: ls += [f"s_lshr_b32 s{S_T1}, s{P}, {gs}", f"s_sub_u32 s{S_T1}, s{S_T1}, s{S_CLS}"]
        else: ls += [f"s_sub_u32 s{S_T1}, s{P}, s{S_CLS}"]
        ls += [f"s_and_b32 s{S_T1}, s{S_T1}, 3",
               f"s_cselect_b32 s{S_T1}, {lag}, 0",
               f"s_sub_u32 s{S_T1}, s{P}, s{S_T1}",
               f"s_and_b32 s{S_T1}, s{S_T1}, 31",
               f"s_mul_i32 s{OFF}, s{S_T1}, {stride}"]
        if BASE is not None: ls += [f"s_add_u32 s{OFF}, s{OFF}, s{BASE}"]
        return ls
    if krot:
        a(f"s_add_u32 s{S_CLS}, s{S_CLS}, s{S_CB}")
        a(f"s_and_b32 s{S_CLS}, s{S_CLS}, 3")
        a(f"s_mov_b32 s{S_WB}, s{S_WOFF}")
        a(f"s_mov_b32 s{S_PB}, -1")
        a(f"s_mov_b32 s{S_PD}, -1")
        for ln in knext(S_PB, S_BOFF, None, PAIRB): a(ln)
        for ln in knext(S_PD, S_WOFF, S_WB, WSTEP): a(ln)
    a(f"v_add_u32 v{V_BO}, s{S_BOFF}, v{V_LIN}")

    def bloads(buf):
        ls = []
        for qt in range(NQ):
            ls.append(f"buffer_load_dwordx4 {vr(V_B+36*buf+4*qt,4)}, v{V_BO}, s[{S_O}:{S_O+3}], s{S_QB+qt} offen {bpol}".rstrip())
        if krot:
            ls += knext(S_PB, S_BOFF, None, PAIRB)
            ls.append(f"v_add_u32 v{V_BO}, s{S_BOFF}, v{V_LIN}")
        else:
            ls.append(f"v_add_u32 v{V_BO}, {PAIRB}, v{V_BO}")
        return ls
    def dmas(buf):
        ls = []
        for i in range(8):
            if i & 3 == 0:
                ls.append(f"s_add_u32 m0, s{S_LDB}, {buf*BUF+4096*(i>>2)}")
                ls.append("s_nop 0")
            ls.append(f"buffer_load_dwordx4 v{V_D+i}, s[{S_WO}:{S_WO+3}], s{S_WOFF} offen offset:{1024*(i&3)} {wpol+' ' if wpol else ''}lds")
        if krot: ls += knext(S_PD, S_WOFF, S_WB, WSTEP)
        else: ls.append(f"s_add_u32 s{S_WOFF}, s{S_WOFF}, {WSTEP}")
        return ls
    VOFF = 4096 if operm else 1024
    def areads(nt, buf):
        return [f"ds_read_b64_tr_b16 {vr(V_A+4*nt+2*v,2)}, v{V_AR+nt} offset:{buf*BUF+v*VOFF}" for v in range(2)]

    if ch2 and ramp:
        for ln in dmas(0): a(ln)
        for ln in bloads(0): a(ln)
        for ln in dmas(1): a(ln)
    elif ch2:
        for ln in dmas(0) + dmas(1): a(ln)
        for ln in bloads(0) + bloads(1): a(ln)
        for ln in dmas(2) + dmas(3): a(ln)
    else:
        for ln in dmas(0): a(ln)
        for ln in bloads(0): a(ln)
        for ln in dmas(1): a(ln)
    a(f"v_lshrrev_b32 v{V_T0}, 4, v{V_LANE}")
    a(f"v_bfe_u32 v{V_T1}, v{V_LANE}, 2, 2")
    a(f"v_lshl_add_u32 v{V_T2}, v{V_T0}, {2 if operm else 3}, v{V_T1}")
    a(f"v_lshlrev_b32 v{V_T2}, 8, v{V_T2}")
    a(f"v_and_b32 v{V_T0}, 1, v{V_T0}")
    a(f"v_lshl_add_u32 v{V_T1}, v{V_T0}, 2, v{V_T1}")
    a(f"v_lshl_add_u32 v{V_T2}, v{V_T1}, 5, v{V_T2}")
    a(f"v_and_b32 v{V_T1}, 3, v{V_LANE}")
    a(f"v_lshl_add_u32 v{V_T2}, v{V_T1}, 3, v{V_T2}")
    a(f"v_add_u32 v{V_T2}, s{S_LDB}, v{V_T2}")
    if rot5:
        a(f"s_and_b32 s{S_T1}, s{S_WAVE}, 1")
        a(f"s_lshl_b32 s{S_T1}, s{S_T1}, 1")
        a(f"s_lshr_b32 s{S_PD}, s{S_WAVE}, 1")
        a(f"s_add_u32 s{S_PD}, s{S_PD}, s{S_T1}")
        a(f"s_lshl_b32 s{S_PD}, s{S_PD}, 6")
    for t in range(8):
        if rot5:
            a(f"s_xor_b32 s{S_T1}, s{S_PD}, {((3 - (t >> 1)) << 6) | ((t & 1) << 5)}")
            a(f"v_xor_b32 v{V_AR+t}, s{S_T1}, v{V_T2}")
        elif rot4:
            a(f"s_lshl_b32 s{S_T1}, s{S_WAVE}, 1")
            a(f"s_add_u32 s{S_T1}, s{S_T1}, {t+2}")
            a(f"s_and_b32 s{S_T1}, s{S_T1}, 7")
            a(f"s_lshl_b32 s{S_T1}, s{S_T1}, 5")
            a(f"v_xor_b32 v{V_AR+t}, s{S_T1}, v{V_T2}")
        else:
            a(f"v_xor_b32 v{V_AR+t}, {32*t}, v{V_T2}")
    a(f"v_add_u32 v{V_UW}, s{S_LDB}, v{V_LIN}")
    if tpf:
        a("s_getpc_b64 s[72:73]")
        a.label("L_op_pc")
        a(f"v_lshlrev_b32 v26, 7, v{V_LANE}")
        a("v_add_u32 v26, L_op_tail - L_op_pc, v26")
        a("v_min_u32 v26, L_code_end - L_op_pc - 4, v26")
        a("v_mov_b32 v27, s73")
        a("v_add_co_u32 v26, vcc, s72, v26")
        a("v_addc_co_u32 v27, vcc, 0, v27, vcc")
    a(f"v_bfe_u32 v{V_T2}, v{V_LANE}, 4, 1")
    a(f"v_lshlrev_b32 v{V_T2}, 5, v{V_T2}")
    a(f"v_and_b32 v{V_T0}, 15, v{V_LANE}")
    a(f"v_mul_u32_u24 v{V_T0}, 2560, v{V_T0}")
    a(f"v_add_u32 v{V_T0}, v{V_T0}, v{V_T2}")
    a(f"v_bfe_u32 v{V_T2}, v{V_LANE}, 5, 1")
    a(f"v_lshl_add_u32 v{V_ST}, v{V_T2}, 4, v{V_T0}")
    if rot5:
        for j, x in enumerate((3, 1, 2)):
            a(f"s_xor_b32 s{S_A}, s{S_WAVE}, {x}")
            a(f"s_mul_i32 s{S_A}, s{S_A}, {WST}")
            a(f"v_add_u32 v{V_T0+j}, s{S_A}, v{V_LIN}")
        a(f"v_and_b32 v26, 7, v{V_LANE}")
        a(f"v_mul_u32_u24 v26, 2560, v26")
        a(f"v_bfe_u32 v27, v{V_LANE}, 3, 1")
        a(f"s_lshr_b32 s{S_A}, s{S_WAVE}, 1")
        a(f"s_xor_b32 s{S_A}, s{S_A}, 1")
        a(f"v_xor_b32 v27, s{S_A}, v27")
        a(f"v_lshl_add_u32 v26, v27, 6, v26")
        a(f"v_bfe_u32 v27, v{V_LANE}, 4, 1")
        a(f"v_lshl_add_u32 v26, v27, 5, v26")
        a(f"v_bfe_u32 v27, v{V_LANE}, 5, 1")
        a(f"v_lshl_add_u32 v26, v27, 4, v26")
        a(f"v_xor_b32 v27, 64, v26")
        a(f"v_add_u32 v27, {8*2560}, v27")
        a("s_mov_b32 s64, 0x00ff00ff"); a("s_mov_b32 s65, 0x00ff00ff")
        a("s_mov_b32 s66, 0xff00ff00"); a("s_mov_b32 s67, 0xff00ff00")
    elif rot4:
        for j in range(3):
            a(f"s_sub_u32 s{S_A}, s{S_WAVE}, {j+1}")
            a(f"s_and_b32 s{S_A}, s{S_A}, 3")
            a(f"s_mul_i32 s{S_A}, s{S_A}, {WST}")
            if j: a(f"s_add_u32 s{S_A}, s{S_A}, {j*NQ*2048}")
            a(f"v_add_u32 v{V_T0+j}, s{S_A}, v{V_LIN}")
    else:
        a(f"s_lshl_b32 s{S_A}, s{S_WAVE}, 11")
        a(f"v_add_u32 v{V_T0}, s{S_A}, v{V_LIN}")
        a(f"v_add_u32 v{V_T1}, {WST}, v{V_T0}")
        a(f"v_add_u32 v{V_T2}, {2*WST}, v{V_T0}")
        a(f"v_add_u32 v{V_T3}, {3*WST}, v{V_T0}")
    a(f"s_mul_i32 s{S_A}, s{S_RB}, {144*2560}")
    a(f"s_mul_i32 s{S_B}, s{S_BLK}, 1280")
    a(f"s_add_u32 s{S_A}, s{S_A}, s{S_B}")
    a(f"s_lshl_b32 s{S_B}, s{S_CB}, 8")
    a(f"s_add_u32 s{S_C}, s{S_A}, s{S_B}")
    def areads2(nt, p, dst=None):
        base = V_A + 8 * (nt & 3) if dst is None else dst
        return [f"ds_read_b64_tr_b16 {vr(base+4*k+2*v,2)}, v{V_AR+nt} offset:{(2*p+k)*BUF+v*VOFF}" for k in range(2) for v in range(2)]
    if ch2 and not ramp:
        a("s_waitcnt vmcnt(34)")
        for nt in range(4):
            for ln in areads2(nt, 0): a(ln)
    else:
        a("s_waitcnt vmcnt(17)")
        for nt in range(NN):
            for ln in areads(nt, 0): a(ln)

    def uwrite(u, ul):
        P, qt = u // NQ, u % NQ
        return [f"ds_write_b128 v{V_UW}, {acc(2*P+e, qt)} offset:{ul*2048+1024*e}" for e in range(2)]

    def iteration(im, first=False, groups=None, vn=34, last=False):
        if vn == 34: vn = vnx
        a(f"s_waitcnt vmcnt({vn}) lgkmcnt(12)")
        if groups is None: groups = [("B", (im + 3) & 3), ("D", im)]
        fq = []
        for kind, buf in groups:
            fq += [(1 if kind == "B" else 2 * NQ + 1, ln) for ln in (bloads(buf) if kind == "B" else dmas(buf))]
        if last:
            for u in range(20):
                P, qt = u // NQ, u % NQ
                for ln in uwrite(u, u): fq.append(((2 * P + 1) * NQ + qt + 1 + 8, ln))
        j = 0
        for nt in range(NN):
            for qt in range(NQ):
                if nt == 2 and qt == 0: a(f"s_waitcnt lgkmcnt({0 if last else 4})")
                c = "0" if first else acc(nt, qt)
                a(f"{MFMA} {acc(nt, qt)}, {vr(V_A+4*nt,4)}, {vr(V_B+36*im+4*qt,4)}, {c}")
                j += 1
                if qt == NQ - 1 and not last:
                    for ln in areads(nt, (im + 1) & 3): a(ln)
                elif fq and fq[0][0] <= j:
                    a(fq.pop(0)[1])
        for _, ln in fq: a(ln)
    def super_it(S, first=False, doB=True, doD=True, last=False, vtop=16, pf=False):
        p = S & 1; pn = p ^ 1
        a(f"s_waitcnt vmcnt({vtop}) lgkmcnt(12)")
        fq = []
        if last:
            for nt in range(4, 8):
                for ln in areads2(nt, p, V_B + 36 * 2 * pn + 8 * (nt - 4)): fq.append((1, ln))
            for u in range(20):
                P, qt = u // NQ, u % NQ
                for ln in uwrite(u, u): fq.append((max(2 * ((2 * P + 1) * NQ + qt + 1) + 8, 2 * 2 * NQ + 1), ln))
        if doB: fq += [(1, ln) for ln in bloads(2 * pn) + bloads(2 * pn + 1)]
        if pf: fq += [(1, "global_load_dword v236, v[26:27], off")]
        if doD: fq += [(2 * NQ * dgrp + 1, ln) for ln in dmas(2 * p) + dmas(2 * p + 1)]
        j = 0
        for nt in range(NN):
            if nt > 0:
                if last:
                    if nt == 1: a("s_waitcnt lgkmcnt(15)")
                    if nt == 2: a("s_waitcnt lgkmcnt(0)")
                elif nt == dgrp and doD: a(f"s_waitcnt lgkmcnt({4 * (dgrp - 4)})")
                else: a("s_waitcnt lgkmcnt(12)")
            Ab = V_A + 8 * (nt & 3)
            if last and nt >= 4: Ab = V_B + 36 * 2 * pn + 8 * (nt - 4)
            for qt in range(NQ):
                for k in range(2):
                    c = "0" if (first and k == 0) else acc(nt, qt)
                    a(f"{MFMA} {acc(nt, qt)}, {vr(Ab+4*k,4)}, {vr(V_B+36*(2*p+k)+4*qt,4)}, {c}")
                    j += 1
                    if qt == NQ - 1 and k == 1 and not last:
                        if nt == 4: a(f"s_waitcnt vmcnt({(18 if doB else 0) + (1 if pf else 0)})")
                        for ln in (areads2(nt + 4, p) if nt < 4 else areads2(nt - 4, pn)): a(ln)
                    elif fq and fq[0][0] <= j:
                        a(fq.pop(0)[1])
        for _, ln in fq: a(ln)
    def last_rot(S):
        p = S & 1; pn = p ^ 1
        a("s_waitcnt vmcnt(0) lgkmcnt(8)")
        rd = []
        for nt in range(4, 8): rd += areads2(nt, p, V_B + 36 * 2 * pn + 8 * (nt - 4))
        wr = []
        for u in range(20): wr += [(u, ln) for ln in uwrite(u, u)]
        j = 0; nxt = w0
        for P in range(4):
            for qt in range(NQ):
                for e in range(2):
                    nt = 2 * P + e
                    Ab = V_A + 8 * nt if nt < 4 else V_B + 36 * 2 * pn + 8 * (nt - 4)
                    for k in range(2):
                        a(f"{MFMA} {acc(nt, qt)}, {vr(Ab+4*k,4)}, {vr(V_B+36*(2*p+k)+4*qt,4)}, {acc(nt, qt)}")
                        j += 1
                        if rd:
                            a(rd.pop(0)); a(rd.pop(0))
                        elif j == w0 - 1: a("s_waitcnt lgkmcnt(0)")
                        elif wr and j >= nxt and j >= 4 * (wr[0][0] + 1) + 4:
                            a(wr.pop(0)[1]); nxt = j + wpace
        for _, ln in wr: a(ln)
    def reduce_rot():
        S0, S1, S2 = V_A, V_A + 72, V_A + 144
        OT = [220 + 4 * i for i in range(8)] + [10, 14]
        def own(e, qt):
            i = (6 + e) * NQ + qt
            return OT[i - 54] if i < 64 else V_ACC + 4 * (i - 64)
        def rd(base, va, pos, qt): return [f"ds_read_b128 {vr(base+8*qt+4*e,4)}, v{va} offset:{pos*2048+1024*e}" for e in range(2)]
        def add(dst, src): return [f"v_pk_add_f32 {vr(dst+2*h,2)}, {vr(dst+2*h,2)}, {vr(src+2*h,2)}" for h in range(2)]
        ar_ = [f"v_accvgpr_read_b32 v{OT[i-54]+r}, a{4*i+r}" for i in range(54, 64) for r in range(4)]
        a(f"s_lshl_b32 s{S_B}, s{S_WAVE}, 6")
        a(f"s_add_u32 s{S_B}, s{S_B}, s{S_C}")
        a(f"s_add_u32 s{S_T1}, s{S_GT0}, 8")
        a(f"s_cmp_ge_u32 s{S_T1}, 224")
        a(f"s_cselect_b32 s{S_A}, 0x40000000, 0")
        a(f"s_add_u32 s{S_A}, s{S_A}, {8*16*2560}")
        a(f"s_add_u32 s{S_A}, s{S_A}, s{S_B}")
        if xlin == 1:
            a(f"s_lshl_b32 s{S_B}, s3, 2")
            a(f"s_add_u32 s{S_B}, s{S_B}, s{S_WAVE}")
            a(f"s_mul_i32 s{S_B}, s{S_B}, 9216")
            a(f"v_lshlrev_b32 v{V_ST}, 4, v{V_LANE}")
        if xlin == 2:
            a(f"s_lshl_b32 s{S_B}, s3, 2")
            a(f"s_add_u32 s{S_B}, s{S_B}, s{S_WAVE}")
            a(f"s_mul_i32 s{S_B}, s{S_B}, 9216")
            a(f"v_lshlrev_b32 v{V_ST}, 4, v{V_LANE}")
        if xlin == 3:
            a(f"v_lshrrev_b32 v{V_ST}, 3, v{V_LANE}")
            a(f"v_mul_u32_u24 v{V_ST}, 2560, v{V_ST}")
            a(f"v_and_b32 v26, 7, v{V_LANE}")
            a(f"v_lshl_add_u32 v{V_ST}, v26, 4, v{V_ST}")
            a(f"s_lshl_b32 s{S_B}, s{S_WAVE}, 7")
            a(f"s_and_b32 s{S_B}, s{S_B}, 128")
            a(f"s_lshr_b32 s{S_A}, s{S_WAVE}, 1")
            a(f"s_mul_i32 s{S_A}, s{S_A}, {72*2560}")
            a(f"s_add_u32 s{S_B}, s{S_B}, s{S_A}")
            a(f"s_add_u32 s{S_B}, s{S_B}, s{S_C}")
        a("s_waitcnt lgkmcnt(0)")
        a("s_barrier")
        if pst == 1: pstamp(4)
        for qt in range(7):
            for ln in rd(S0, V_T0, qt, qt): a(ln)
        wr = []
        for qt in range(2, NQ):
            wr += [f"ds_write_b128 v{V_T0}, {acc(4+e, qt)} offset:{(qt-2)*2048+1024*e}" for e in range(2)]
        for ln in wr:
            a(ln)
            for _ in range(3):
                if ar_: a(ar_.pop(0))
        assert not ar_
        for qt in range(6):
            for ln in rd(S1, V_T1, qt, qt): a(ln)
        a("s_waitcnt lgkmcnt(12)")
        a("s_barrier")
        if pst == 1: a("s_waitcnt lgkmcnt(0)")
        if pst == 1: pstamp(5)
        for qt in (7, 8):
            for ln in rd(S0, V_T0, qt, qt): a(ln)
        for qt in (6, 7, 8):
            for ln in rd(S1, V_T1, qt, qt): a(ln)
        for qt in (0, 1):
            for ln in rd(S2, V_T2, qt, qt): a(ln)
        for qt in range(7):
            for e in range(2):
                for ln in add(own(e, qt), S0 + 8 * qt + 4 * e): a(ln)
        for qt in range(2, NQ):
            for ln in rd(S0 - 16, V_UW, qt - 2, qt): a(ln)
        def fin(qt, last):
            ls = []
            for e in range(2): ls += add(own(e, qt), last + 4 * e)
            x = last
            ls += [f"v_cvt_pk_bf16_f32 v{x}, v{own(0,qt)}, v{own(0,qt)+1}", f"v_cvt_pk_bf16_f32 v{x+1}, v{own(0,qt)+2}, v{own(0,qt)+3}",
                   f"v_cvt_pk_bf16_f32 v{x+2}, v{own(1,qt)}, v{own(1,qt)+1}", f"v_cvt_pk_bf16_f32 v{x+3}, v{own(1,qt)+2}, v{own(1,qt)+3}"]
            if xlin: ls.append(f"s_add_u32 s{S_T1}, s{S_B}, {qt*(1024 if xlin < 3 else 8*2560)}")
            elif qt < 8: ls.append(f"s_add_u32 s{S_T1}, s{S_B}, {qt*16*2560}")
            else: ls.append(f"s_mov_b32 s{S_T1}, s{S_A}")
            ls.append("s_nop 0")
            ls += [f"v_permlane16_swap_b32 v{x}, v{x+2}", f"v_permlane16_swap_b32 v{x+1}, v{x+3}"]
            if not xnost: ls.append(f"buffer_store_dwordx4 {vr(x,4)}, v{V_ST}, s[{S_OUT}:{S_OUT+3}], s{S_T1} offen {opol}".rstrip())
            return ls
        a("s_waitcnt lgkmcnt(15)")
        for qt in range(7):
            for e in range(2):
                for ln in add(own(e, qt), S1 + 8 * qt + 4 * e): a(ln)
        a("s_waitcnt lgkmcnt(14)")
        for qt in (7, 8):
            for e in range(2):
                for ln in add(own(e, qt), S0 + 8 * qt + 4 * e) + add(own(e, qt), S1 + 8 * qt + 4 * e): a(ln)
        if xst: pstamp(6)
        for qt in (0, 1):
            for ln in fin(qt, S2 + 8 * qt): a(ln)
        for qt in range(2, NQ):
            a(f"s_waitcnt lgkmcnt({2*(NQ-1-qt)})")
            for ln in fin(qt, S0 + 8 * (qt - 2)): a(ln)
    R1G = [list(range(14)), list(range(13)), list(range(13))]
    R2G = [list(range(14, 18)), list(range(13, 18)), list(range(13, 18))]
    POS1 = [0, 14, 27]
    def pos2(g, r): return [0, 4, 9][g] + R2G[g].index(r)
    def last_rot5(S):
        p = S & 1; pn = p ^ 1
        a("s_waitcnt vmcnt(0) lgkmcnt(12)")
        rd = []
        for nt in range(4, 8): rd += areads2(nt, p, V_B + 36 * 2 * pn + 8 * (nt - 4))
        ph1 = sorted([(snd(g, r), POS1[g] + r) for g in (0, 1) for r in R1G[g]])
        ph2 = [(snd(2, r), POS1[2] + r) for r in R1G[2]]
        ph3 = [(snd(g, r), None) for g in range(3) for r in R2G[g]]
        ph4 = [(snd(3, r), None) for r in range(18)]
        tiles = ph1 + ph2 + ph3 + ph4
        assert len(tiles) == 72 and len(set(t[0] for t in tiles)) == 72
        wr = [f"ds_write_b128 v{V_UW}, {acc(*t)} offset:{ps*1024}" for t, ps in ph1 + ph2]
        j = 0; nxt = w5; nw = 0; seenA = {0}; nafter = 0; hi = False
        for n_, ((nt, qt), ps) in enumerate(tiles):
            if nt not in seenA:
                if nt < 4 and len(seenA) == 1:
                    assert not rd
                    a("s_waitcnt lgkmcnt(15)"); assert 16 + nw >= 15
                    seenA |= {1, 2, 3}
                elif nt >= 4:
                    a(f"s_waitcnt lgkmcnt({min(15, nw)})")
                    seenA |= {4, 5, 6, 7}
            Ab = V_A + 8 * nt if nt < 4 else V_B + 36 * 2 * pn + 8 * (nt - 4)
            for k in range(2):
                a(f"{MFMA} {acc(nt, qt)}, {vr(Ab+4*k,4)}, {vr(V_B+36*(2*p+k)+4*qt,4)}, {acc(nt, qt)}")
                j += 1
                if rd:
                    a(rd.pop(0)); a(rd.pop(0))
                elif nw < len(wr) and j >= nxt and j >= 2 * (nw + 1) + 4:
                    a(wr[nw]); nw += 1; nxt = j + wpace
        for ln in wr[nw:]: a(ln)
    def reduce_rot5():
        R1 = lambda k: V_A + 4 * k
        OT = [220, 224, 228, 232, 10, 14]
        def own(r):
            x = acc(*snd(3, r))
            return OT[r] if r < 6 else int(x[2:x.index(":")])
        kidx = {}
        k = 0
        for d in range(3):
            for g in range(3):
                for e in range(4): kidx[(g, 4 * d + e)] = k; k += 1
        for g, r in ((0, 12), (1, 12), (2, 12), (0, 13)): kidx[(g, r)] = k; k += 1
        assert k == 40
        free2 = [4, 5, 6, 7, 8, 9, 10, 11, 16, 17, 18, 19, 20, 21]
        order2 = [(1, 13), (2, 13), (0, 14), (1, 14), (2, 14), (0, 15), (1, 15), (2, 15), (0, 16), (1, 16), (2, 16), (0, 17), (1, 17), (2, 17)]
        for i_, gr in enumerate(order2): kidx[gr] = free2[i_]
        RA = [V_T0, V_T1, V_T2]
        def rd1(g, r): return f"ds_read_b128 {vr(R1(kidx[(g, r)]), 4)}, v{RA[g]} offset:{(POS1[g] + r) * 1024}"
        def rd2(g, r): return f"ds_read_b128 {vr(R1(kidx[(g, r)]), 4)}, v{[V_UW, V_T2, V_T1][g]} offset:{pos2(g, r) * 1024}"
        def add(dst, src): return [f"v_pk_add_f32 {vr(dst+2*h,2)}, {vr(dst+2*h,2)}, {vr(src+2*h,2)}" for h in range(2)]
        def sums(rs):
            ls = []
            for r in rs: ls += add(R1(kidx[(1, r)]), R1(kidx[(2, r)]))
            for r in rs: ls += add(own(r), R1(kidx[(0, r)]))
            for r in rs: ls += add(own(r), R1(kidx[(1, r)]))
            return ls
        def pack(x, r0, r1):
            return [f"v_cvt_pk_bf16_f32 v{x}, v{own(r0)}, v{own(r0)+1}", f"v_cvt_pk_bf16_f32 v{x+1}, v{own(r0)+2}, v{own(r0)+3}",
                    f"v_cvt_pk_bf16_f32 v{x+2}, v{own(r1)}, v{own(r1)+1}", f"v_cvt_pk_bf16_f32 v{x+3}, v{own(r1)+2}, v{own(r1)+3}"]
        def swp(x): return [f"v_permlane16_swap_b32 v{x}, v{x+2}", f"v_permlane16_swap_b32 v{x+1}, v{x+3}"]
        st = lambda x, va, so: [] if xnost else [f"buffer_store_dwordx4 {vr(x,4)}, v{va}, s[{S_OUT}:{S_OUT+3}], s{so} offen {opol}".rstrip()]
        def fin_du(d, T):
            X, Y, A_, B_ = T
            ls = pack(X, 4 * d, 4 * d + 1) + pack(Y, 4 * d + 2, 4 * d + 3)
            ls += [(f"s_add_u32 s{S_T1}, s{S_B}, {d*16*2560}" if d < 3 else f"s_mov_b32 s{S_T1}, s{S_A}")]
            ls += swp(X) + swp(Y)
            ls += ["s_mov_b64 vcc, s[64:65]", "s_nop 0"]
            ls += [f"v_cndmask_b32_dpp v{A_+i}, v{Y+i}, v{X+i}, vcc row_ror:8 row_mask:0xf bank_mask:0xf" for i in range(4)]
            ls += ["s_mov_b64 vcc, s[66:67]"] + st(A_, 26, S_T1)
            ls += [f"v_cndmask_b32_dpp v{B_+i}, v{Y+i}, v{X+i}, vcc row_ror:8 row_mask:0xf bank_mask:0xf" for i in range(4)]
            ls += st(B_, 27, S_T1)
            return ls
        def mix(va, fill, every):
            fill = list(fill); n = 0
            for ln in va:
                a(ln); n += 1
                if fill and n % every == 0: a(fill.pop(0))
            for ln in fill: a(ln)
        a(f"s_and_b32 s{S_T1}, s{S_WAVE}, 1")
        a(f"s_lshl_b32 s{S_T1}, s{S_T1}, 7")
        a(f"s_add_u32 s{S_B}, s{S_C}, s{S_T1}")
        a(f"s_lshr_b32 s{S_T1}, s{S_WAVE}, 1")
        a(f"s_lshl_b32 s{S_PD}, s{S_T1}, 6")
        a(f"s_add_u32 s{S_PD}, s{S_PD}, s{S_B}")
        a(f"s_add_u32 s{S_PD}, s{S_PD}, {4*16*2560}")
        a(f"s_mul_i32 s{S_T1}, s{S_T1}, 5")
        a(f"s_mul_i32 s{S_A}, s{S_T1}, {16*2560}")
        a(f"s_add_u32 s{S_B}, s{S_B}, s{S_A}")
        a(f"s_add_u32 s{S_T1}, s{S_T1}, s{S_GT0}")
        a(f"s_add_u32 s{S_T1}, s{S_T1}, 3")
        a(f"s_cmp_ge_u32 s{S_T1}, 224")
        a(f"s_cselect_b32 s{S_A}, 0x40000000, 0")
        a(f"s_add_u32 s{S_A}, s{S_A}, {3*16*2560}")
        a(f"s_add_u32 s{S_A}, s{S_A}, s{S_B}")
        a("s_waitcnt lgkmcnt(0)")
        a("s_barrier")
        if pst == 1: pstamp(4)
        du = lambda d: [rd1(g, 4 * d + e) for g in range(3) for e in range(4)]
        for ln in du(0): a(ln)
        for r in range(6):
            x = acc(*snd(3, r)); b0 = int(x[2:x.index(":")])
            for i in range(4): a(f"v_accvgpr_read_b32 v{OT[r]+i}, a{b0+i}")
        for ln in du(1): a(ln)
        a("s_waitcnt lgkmcnt(12)")
        T = lambda d: [R1(kidx[(0, 4 * d + e)]) for e in range(4)]
        mix(sums(range(0, 4)), du(2), dpace)
        mix(fin_du(0, T(0)), [rd1(0, 12), rd1(1, 12), rd1(2, 12), rd1(0, 13)], 3)
        a("s_waitcnt lgkmcnt(15)")
        wr = [f"ds_write_b128 v{V_T0}, {acc(*snd(g, r))} offset:{pos2(g, r) * 1024}" for g in range(3) for r in R2G[g]]
        mix(sums(range(4, 8)) + fin_du(1, T(1)), wr, 3)
        a("s_waitcnt lgkmcnt(15)")
        for ln in sums(range(8, 12)) + fin_du(2, T(2)): a(ln)
        a("s_waitcnt lgkmcnt(14)")
        for ln in sums([12]) + add(own(13), R1(kidx[(0, 13)])): a(ln)
        a("s_waitcnt lgkmcnt(0)")
        a("s_barrier")
        if pst == 1: pstamp(5)
        for g, r in order2: a(rd2(g, r))
        a("s_waitcnt lgkmcnt(6)")
        for ln in add(R1(kidx[(1, 13)]), R1(kidx[(2, 13)])) + add(own(13), R1(kidx[(1, 13)])) + sums([14, 15]): a(ln)
        for ln in fin_du(3, [R1(36), R1(37), R1(38), R1(39)]): a(ln)
        a("s_waitcnt lgkmcnt(0)")
        for ln in sums([16, 17]): a(ln)
        X = R1(0)
        for ln in pack(X, 16, 17) + [f"s_nop 1"] + swp(X) + st(X, V_ST, S_PD): a(ln)
    pstamp(1)
    if ch2:
        assert not krot and 5 <= dgrp <= 6
        if ramp:
            a("s_waitcnt vmcnt(0) lgkmcnt(12)")
            fq = bloads(1) + dmas(2) + dmas(3) + bloads(2) + bloads(3)
            for nt in range(NN):
                if nt == 2: a("s_waitcnt lgkmcnt(4)")
                for qt in range(NQ):
                    a(f"{MFMA} {acc(nt, qt)}, {vr(V_A+4*nt,4)}, {vr(V_B+4*qt,4)}, 0")
                    if qt == NQ - 1:
                        for ln in areads(nt, 1): a(ln)
                    elif fq: a(fq.pop(0))
            assert not fq
            a("s_waitcnt vmcnt(34) lgkmcnt(12)")
            fq = dmas(0) + dmas(1)
            for nt in range(NN):
                if nt == 2: a("s_waitcnt lgkmcnt(4)")
                for qt in range(NQ):
                    a(f"{MFMA} {acc(nt, qt)}, {vr(V_A+4*nt,4)}, {vr(V_B+36+4*qt,4)}, {acc(nt, qt)}")
                    if qt == NQ - 1 and (nt & 1):
                        if nt == 1: a("s_waitcnt vmcnt(18)")
                        for ln in areads2(nt >> 1, 1): a(ln)
                    elif fq and nt >= 2: a(fq.pop(0))
            assert not fq
        else:
            super_it(0, first=True)
        super_it(1)
        a(f"s_mov_b32 s{S_CNT}, 0")
        a.label("L_op_loop")
        super_it(2); super_it(3)
        a(f"s_add_u32 s{S_CNT}, s{S_CNT}, 1")
        a(f"s_cmp_lt_u32 s{S_CNT}, 6")
        a("s_cbranch_scc1 L_op_loop")
        super_it(14, doD=False, pf=bool(tpf))
        if tpf: a.label("L_op_tail")
        if rot5: last_rot5(15)
        elif rot4: last_rot(15)
        else: super_it(15, doB=False, doD=False, last=True, vtop=0)
    else:
      iteration(0, first=True, groups=[("B", 1), ("D", 2), ("B", 2)], vn=0)
      iteration(1, groups=[("D", 3), ("B", 3), ("D", 0)], vn=9)
      iteration(2, groups=[("B", 0), ("D", 1), ("B", 1)], vn=17)
      iteration(3, groups=[("D", 2), ("B", 2), ("D", 3)], vn=26)
      a(f"s_mov_b32 s{S_CNT}, 0")
      a.label("L_op_loop")
      for im in range(4): iteration(im)
      a(f"s_add_u32 s{S_CNT}, s{S_CNT}, 1")
      a(f"s_cmp_lt_u32 s{S_CNT}, 6")
      a("s_cbranch_scc1 L_op_loop")
      iteration(0, groups=[("B", 3)])
      iteration(1, groups=[], vn=26)
      iteration(2, groups=[], vn=9)
      iteration(3, groups=[], vn=0, last=True)
    pstamp(2)
    R0 = V_A
    def rreads(nk):
        for k in range(nk):
            for src in range(4):
                va = V_T0 + src
                for e in range(2):
                    a(f"ds_read_b128 {vr(R0+32*k+8*src+4*e,4)}, v{va} offset:{k*8192+1024*e}")
    def rproc(k, ubase):
        R = R0 + 32 * k
        ls = []
        for h in range(4):
            ls.append(f"v_pk_add_f32 {vr(R+2*h,2)}, {vr(R+2*h,2)}, {vr(R+8+2*h,2)}")
            ls.append(f"v_pk_add_f32 {vr(R+16+2*h,2)}, {vr(R+16+2*h,2)}, {vr(R+24+2*h,2)}")
        for h in range(4):
            ls.append(f"v_pk_add_f32 {vr(R+2*h,2)}, {vr(R+2*h,2)}, {vr(R+16+2*h,2)}")
        for h in range(4):
            ls.append(f"v_cvt_pk_bf16_f32 v{R+8+h}, v{R+2*h}, v{R+2*h+1}")
        ls.append(f"s_add_u32 s{S_A}, s{S_WAVE}, {ubase+4*k}")
        ls.append(f"s_mul_i32 s{S_B}, s{S_A}, 7282")
        ls.append(f"s_lshr_b32 s{S_B}, s{S_B}, 16")
        ls.append(f"v_permlane16_swap_b32 v{R+8}, v{R+10}")
        ls.append(f"v_permlane16_swap_b32 v{R+9}, v{R+11}")
        ls.append(f"s_mul_i32 s{S_T1}, s{S_B}, {NQ}")
        ls.append(f"s_sub_u32 s{S_A}, s{S_A}, s{S_T1}")
        ls.append(f"s_mul_i32 s{S_T1}, s{S_A}, {16*2560}")
        ls.append(f"s_lshl_b32 s{S_B}, s{S_B}, 6")
        ls.append(f"s_add_u32 s{S_T1}, s{S_T1}, s{S_B}")
        ls.append(f"s_add_u32 s{S_T1}, s{S_T1}, s{S_C}")
        ls.append(f"s_add_u32 s{S_A}, s{S_A}, s{S_GT0}")
        ls.append(f"s_cmp_ge_u32 s{S_A}, 224")
        ls.append(f"s_cselect_b32 s{S_B}, 0x40000000, 0")
        ls.append(f"s_add_u32 s{S_T1}, s{S_T1}, s{S_B}")
        ls.append(f"buffer_store_dwordx4 {vr(R+8,4)}, v{V_ST}, s[{S_OUT}:{S_OUT+3}], s{S_T1} offen {opol}".rstrip())
        return ls
    if rot5: reduce_rot5()
    elif rot4: reduce_rot()
    else:
        a("s_waitcnt lgkmcnt(0)")
        a("s_barrier")
        rreads(5)
        a("s_waitcnt lgkmcnt(0)")
        a("s_barrier")
        wr = []
        for u in range(20, 36): wr += uwrite(u, u - 20)
        pr = []
        for k in range(5): pr += rproc(k, 0)
        step = max(1, len(pr) // len(wr))
        for i, ln in enumerate(pr):
            if i % step == 0 and wr: a(wr.pop(0))
            a(ln)
        for ln in wr: a(ln)
        a("s_waitcnt lgkmcnt(0)")
        a("s_barrier")
        rreads(4)
        for k in range(4):
            a(f"s_waitcnt lgkmcnt({min(15, 8*(3-k))})")
            for ln in rproc(k, 20): a(ln)
    if pst:
        if pst == 2: a("s_waitcnt vmcnt(0)")
        pstamp(3)
        a("s_getreg_b32 s62, hwreg(HW_REG_XCC_ID)")
        a("v_writelane_b32 v252, s62, 63")
        a(f"s_cmp_lg_u32 s{S_WAVE}, {pw}")
        a("s_cbranch_scc1 L_op_end")
        a("s_lshl_b32 s62, s2, 8"); a("s_add_u32 s62, s62, 50065536")
        a(f"v_lshlrev_b32 v2, 2, v{V_LANE}")
        a(f"buffer_store_dword v252, v2, s[{S_O}:{S_O+3}], s62 offen")
    a.label("L_op_end")
    a("s_endpgm")
    return a.text()
```

```python
from gen_common import *
import sys
import math

NQB = 3584 * 4096 * 2
WS_O = 2 * NQB
WS_W = 4 * NQB
WS_BYTES = 4 * NQB + 2 * 4096 * 640 * 2
PAIRB = 224 * 128 * 2

TILE = 8448
RING = 4
AREA = RING * TILE
LDS_BYTES = 163840
LDS_FLAG = 2 * AREA + 1024
LDS_FLAG = 2 * AREA + 8416

def kpad(i): return 1024 * i + 16 * ((i & 1) + 4 * (i >> 1))

V_LANE, V_T0, V_T1, V_T2, V_T3, V_LIN, V_DMA = 1, 2, 3, 4, 5, 6, 7
V_KA, V_VA, V_XA, V_WA = 8, 9, 10, 11
V_L = 12
V_QD, V_BA = 26, 27
V_CI = 28
V_KF = 56
V_S = 88
V_P = 104
V_VF = 112
V_OK = 144
A_Q = 0
A_OS = 112
A_LS = 224
A_ONE = 252
S_LD, S_K, S_W, S_QP = 4, 8, 12, 16
S_WAVE, S_T, S_CNT, S_NOFB, S_OOFF, S_MP, S_T0 = 20, 21, 22, 23, 24, 25, 27
S_A, S_B, S_C, S_D = 28, 29, 30, 31
S_THR, S_LDB, S_DJ, S_PJ, S_QH, S_DOFF = 32, 33, 34, 35, 48, 49
S_QS, S_QSTEP, S_QRND, S_MSTEP, S_CS = 50, 51, 52, 53, 54
S_TAB = 88
S_AS, S_TY, S_PRE, S_WO = 68, 69, 70, 71
MFMA = "v_mfma_f32_16x16x32_bf16"
def ar(a, n=1):
    return f"a{a}" if n == 1 else f"a[{a}:{a+n-1}]"

def gen_fused(name, nt=True, stamp=False, nofb=False, noload=False, nost=False, nox=False, now=False, st0=False, touch=False, kvt=False, kvtnt=False, nowo=False, tnt=False, qnt=False, wont=False, trace=False, DBO=64, ones=False, strace=False, xmem=0, xmfma=0, delay=0, tymask=1, stwg=4, roll=False, bulk0=True, wsbase=0, rot=True, rsh=1, dupst=False, allst=False, align=0, roles=False, fakex=False, early=False, qdelay=0, adelay=0, kvpol=None, xf=False, pst=False, kvl2=False, xq=False, pstl=False, kv0=False, qpnl=False, cpf=0, cpflate=False, qps=False, tymode=0, tyinv=False, xswap=False, qnrd=False, qnbar=False, qbar=7, qd0=9, qdstep=6, kvrot=0, kvgs=11, kvt2=0, kvts=64, tper=1, tpol='', tlbw=0, rflip=0, stpol='', defer=False, dpol='', dnp=3, wpol='', qpol='', anbar=False, anrd=False, anva='', ansu=False, cpf2=0, cpfo=0, pro1=0, rotn=4, spread='', dsl='1234', lp7=False, inv=False, wo2=False, wo3=0, wo4=0, wo5=0, wtl=0, wo6='', wo8=0, stpol0=None, wb=0, woff=False, wtch=0, eep=0, qch2=False, qkrev=False, operm=False, x128=False, pro2=False, cpo=0):
    a = Asm()
    if spread: early = True
    if wo6: wo5 = 2
    if wo5: wo4 = 2
    if wo3 or wo4: wo2 = True
    NT = " nt" if nt else ""
    if kvpol: NT = " " + kvpol
    if pst: a("s_memrealtime s[74:75]")
    a("s_cmp_ge_u32 s2, 256")
    a("s_cbranch_scc1 L_at_end")
    if cpf:
        a("s_getpc_b64 s[72:73]")
        a.label("L_pc0")
        a(f"s_mov_b32 s74, L_code_end - L_pc0")
        a("s_mov_b32 s75, 0x20000")
        a("v_lshlrev_b32 v105, 6, v0")
        if not cpflate:
          for k in range(cpf // 16):
            a(f"s_mov_b32 s76, {k*16384}")
            a("buffer_load_dword v104, v105, s[72:75], s76 offen")
    a("s_and_b32 s3, s2, 7")
    a("s_lshl_b32 s3, s3, 5")
    a("s_lshr_b32 s36, s2, 6")
    a("s_lshl_b32 s36, s36, 3")
    a("s_or_b32 s3, s3, s36")
    a("s_bfe_u32 s36, s2, 0x30003")
    a("s_or_b32 s2, s3, s36")
    if xswap: a("s_xor_b32 s2, s2, 32"); a("s_nop 0")
    a("s_load_dwordx8 s[36:43], s[0:1], 0")
    a("s_load_dwordx8 s[56:63], s[0:1], 40")
    a("s_load_dwordx2 s[44:45], s[0:1], 96")
    a("s_load_dwordx2 s[84:85], s[0:1], 32")
    a("s_load_dwordx2 s[86:87], s[0:1], 72")
    if cpf2:
        a("s_getpc_b64 s[72:73]")
        a.label("L_pc0")
        a("v_lshlrev_b32 v105, 7, v0")
        for k in range(cpf2):
            a(f"v_add_u32 v104, {cpfo + k*32768}, v105")
            a("v_min_u32 v104, L_code_end - L_pc0 - 4, v104")
            a("v_mov_b32 v107, s73")
            a("v_add_co_u32 v106, vcc, s72, v104")
            a("v_addc_co_u32 v107, vcc, 0, v107, vcc")
            a(f"global_load_dword v108, v[106:107], off")
    a(f"v_and_b32 v{V_LANE}, 63, v0")
    a(f"v_lshrrev_b32 v{V_T0}, 6, v0")
    a("s_nop 0")
    a(f"v_readfirstlane_b32 s{S_WAVE}, v{V_T0}")
    marks = {}
    def mark(n): marks[n] = len(a.lines)
    mark("W0")
    a("s_waitcnt lgkmcnt(0)")
    mark("P2")
    a(f"s_and_b32 s{S_QH}, s{S_WAVE}, 1")
    a(f"s_lshr_b32 s{S_PJ}, s{S_WAVE}, 1")
    mark("K1")
    a("s_cmp_ge_u32 s2, 128")
    for k in range(8):
        a(f"s_cselect_b32 s{36+k}, s{56+k}, s{36+k}")
    a("s_cselect_b32 s84, s86, s84")
    a("s_cselect_b32 s85, s87, s85")
    a(f"s_mov_b32 s86, {4096*640*2}")
    a("s_mov_b32 s87, 0x20000")
    mark("K2")
    a(f"s_and_b32 s{S_A}, s2, 127")
    a(f"s_lshl_b32 s{S_B}, s{S_A}, 20")
    a(f"s_lshl_b32 s{S_C}, s{S_PJ}, 18")
    a(f"s_add_u32 s{S_B}, s{S_B}, s{S_C}")
    a(f"s_add_u32 s38, s38, s{S_B}")
    a("s_addc_u32 s39, s39, 0")
    a(f"s_add_u32 s40, s40, s{S_B}")
    a("s_addc_u32 s41, s41, 0")
    a(f"s_sub_u32 s{S_C}, 0x100000, s{S_C}")
    a(f"s_mov_b32 s{S_K}, s38")
    a(f"s_mov_b32 s{S_K+1}, s39")
    a(f"s_mov_b32 s{S_K+2}, s{S_C}")
    a(f"s_mov_b32 s{S_K+3}, 0x20000")
    a(f"s_cmp_eq_u32 s{S_QH}, 0")
    a(f"s_cselect_b32 s{S_LD}, s38, s40")
    a(f"s_cselect_b32 s{S_LD+1}, s39, s41")
    a(f"s_mov_b32 s{S_LD+2}, {'0' if kv0 else 's'+str(S_C)}")
    a(f"s_mov_b32 s{S_LD+3}, 0x20000")
    if xf:
        a(f"s_add_u32 s36, s44, {4*NQB + 2*4096*640*2}")
        a("s_addc_u32 s37, s45, 0")
        a(f"s_cmp_eq_u32 s{S_QH}, 0")
    mark("K3")
    a(f"s_cselect_b32 s{S_QP}, s42, s36")
    a(f"s_cselect_b32 s{S_QP+1}, s43, s37")
    a(f"s_mov_b32 s{S_A}, {0 if now else 640*4096*2}")
    a(f"s_mov_b32 s{S_B}, {0 if nox else (2*3584*640*2 if xf else 3584*640*2)}")
    a(f"s_cselect_b32 s{S_QP+2}, s{S_A}, s{S_B}")
    a(f"s_mov_b32 s{S_QP+3}, 0x20000")
    mark("T1")
    a(f"s_mov_b32 s{S_A}, {32*8192}")
    a(f"s_mov_b32 s{S_B}, {7168 if (fakex or xf) else 64}")
    a(f"s_cselect_b32 s{S_QSTEP}, s{S_A}, s{S_B}")
    a(f"s_cselect_b32 s{S_QRND}, 512, 0")
    if qch2:
        assert xq and qps and not (xf or fakex or roll or roles or touch or defer or wo2 or wo8 or kvt2 or eep)
        if x128:
            a(f"s_mov_b32 s{S_A}, {64*1280}")
            a(f"s_cselect_b32 s46, 128, s{S_A}")
            a(f"s_mov_b32 s{S_A}, {((6&3)+8*(6>>2))*8192}")
            a(f"s_cselect_b32 s47, s{S_A}, 0x40000000")
            a(f"s_mov_b32 s{S_A}, {((7&3)+8*(7>>2))*8192}")
            a(f"s_cselect_b32 s98, s{S_A}, 0x40000000")
        else:
            a(f"s_cselect_b32 s46, 128, 64")
    a(f"s_mov_b32 s{S_A}, 1056")
    a(f"s_mov_b32 s{S_B}, 1024")
    a(f"s_cselect_b32 s{S_MSTEP}, s{S_A}, s{S_B}")
    for i in range(8):
        a(f"s_mov_b32 s{S_A}, {((i&3)+8*(i>>2))*8192}")
        a(f"s_mov_b32 s{S_B}, {10240*i if x128 else (1024*i if (fakex or xf) else 20480*i) if i < 7 else 0x40000000}")
        a(f"s_cselect_b32 s{S_TAB+i}, s{S_A}, s{S_B}")
    a(f"s_and_b32 s{S_A}, s2, 7")
    a(f"s_lshl_b32 s{S_A}, s{S_A}, 2")
    a(f"s_add_u32 s{S_A}, s{S_A}, s{S_PJ}")
    a(f"s_lshl_b32 s{S_A}, s{S_A}, 8")
    a(f"s_bfe_u32 s{S_B}, s2, {0x50003 if xf else 0x40003}")
    a(f"s_lshl_b32 s{S_B}, s{S_B}, 1")
    a(f"s_add_u32 s{S_B}, s{S_B}, s{S_PJ}")
    a(f"s_mul_i32 s{S_B}, s{S_B}, {112*1280}")
    a(f"s_cmp_eq_u32 s{S_QH}, 0")
    a(f"s_cselect_b32 s55, s{S_A}, s{S_B}")
    mark("K4")
    a(f"s_add_u32 s{S_W}, s44, {wsbase}")
    a(f"s_addc_u32 s{S_W+1}, s45, 0")
    a(f"s_mov_b32 s{S_W+2}, {WS_BYTES}")
    a(f"s_mov_b32 s{S_W+3}, 0x20000")
    a(f"s_lshl_b32 s{S_A}, s2, 2")
    a(f"s_add_u32 s{S_A}, s{S_A}, s{S_PJ}")
    a(f"s_mul_i32 s{S_OOFF}, s{S_A}, {PAIRB}")
    a(f"s_mul_i32 s{S_A}, s{S_QH}, {7*4096}")
    a(f"s_add_u32 s{S_OOFF}, s{S_OOFF}, s{S_A}")
    a(f"s_add_u32 s{S_OOFF}, s{S_OOFF}, {WS_O}")
    a(f"s_mov_b32 s{S_NOFB}, -1")
    a("s_mov_b32 s60, s42"); a("s_mov_b32 s61, s43"); a(f"s_mov_b32 s62, {640*4096*2}"); a("s_mov_b32 s63, 0x20000")
    a(f"s_mov_b32 s{S_T0}, 0")
    a(f"s_mov_b32 s{S_MP}, 0")
    a(f"s_mov_b32 s{S_AS}, 0")
    if defer: a("s_mov_b32 s98, 0x40000000")
    a(f"s_mov_b32 s{S_WO}, {(4 if (wo3 or wo4 or wo8) else 3) if nowo else 0}")
    mark("T3")
    a(f"s_lshr_b32 s26, s2, 3")
    a(f"s_lshr_b32 s{S_A}, s2, {rsh}")
    a(f"s_add_u32 s26, s26, s{S_A}")
    if rotn in (1, 2, 4):
        a(f"s_and_b32 s26, s26, {rotn-1}")
        a(f"s_mul_i32 s26, s26, {20//rotn}")
        if qch2: a("s_and_b32 s26, s26, 30")
    elif rotn == 22:
        a("s_and_b32 s26, s26, 1"); a("s_mul_i32 s26, s26, 4")
    elif rotn == 23:
        a("s_and_b32 s26, s26, 1"); a("s_mul_i32 s26, s26, 6")
    a(f"s_mul_i32 s83, s{S_QSTEP}, 20")
    a(f"s_and_b32 s{S_TY}, s2, {tymask}")
    a(f"s_min_u32 s{S_TY}, s{S_TY}, 1")
    if tyinv: a(f"s_xor_b32 s{S_TY}, s{S_TY}, 1"); a("s_nop 0")
    if tymode == 1:
        a("s_bfe_u32 s3, s2, 0x10005"); a("s_xor_b32 s3, s3, 1"); a(f"s_and_b32 s{S_TY}, s2, s3"); a("s_nop 0")
    if tymode == 2:
        a("s_bfe_u32 s3, s2, 0x10005"); a("s_xor_b32 s3, s3, 1"); a(f"s_and_b32 s{S_TY}, s2, 3"); a(f"s_min_u32 s{S_TY}, s{S_TY}, 1"); a(f"s_and_b32 s{S_TY}, s{S_TY}, s3")
    if tymode == 3:
        a("s_bfe_u32 s3, s2, 0x10005"); a("s_xor_b32 s3, s3, 1"); a(f"s_and_b32 s{S_TY}, s2, 3"); a(f"s_cmp_eq_u32 s{S_TY}, 0"); a(f"s_cselect_b32 s{S_TY}, 1, 0"); a(f"s_or_b32 s{S_TY}, s{S_TY}, s3")
    if tymode == 4:
        a(f"s_and_b32 s{S_TY}, s2, 3"); a(f"s_cmp_eq_u32 s{S_TY}, 0"); a(f"s_cselect_b32 s{S_TY}, 1, 0"); a("s_nop 0")
    if tymode == 5:
        a(f"s_and_b32 s{S_TY}, s2, 7"); a(f"s_lshr_b32 s3, 0x49, s{S_TY}"); a(f"s_and_b32 s{S_TY}, s3, 1"); a("s_nop 0")
    if tymode == 6:
        a(f"s_and_b32 s{S_TY}, s2, 7"); a(f"s_cmp_eq_u32 s{S_TY}, 0"); a(f"s_cselect_b32 s{S_TY}, 1, 0"); a("s_nop 0")
    if tymode == 7:
        a(f"s_and_b32 s{S_TY}, s2, 3"); a(f"s_min_u32 s{S_TY}, s{S_TY}, 1"); a("s_nop 0")
    a(f"s_mov_b32 s{S_PRE}, s{S_TY}")
    mark("T3b")
    a(f"s_mov_b32 s{S_THR}, 0x4e800000")
    import struct
    cs = struct.unpack("<I", struct.pack("<f", (128 ** -0.5) * 1.4426950408889634))[0]
    a(f"s_mov_b32 s{S_CS}, {cs:#x}")
    mark("T4")
    a(f"s_lshl_b32 s{S_A}, s{S_QH}, 1")
    a(f"s_add_u32 s{S_A}, s{S_A}, s{S_PJ}")
    a(f"s_mul_i32 s{S_LDB}, s{S_A}, {AREA}")
    mark("T4e")
    if stamp:
        a("s_memtime s[64:65]")
        a("s_memrealtime s[66:67]")
        a("s_load_dwordx2 s[46:47], s[0:1], 88")
        a("s_waitcnt lgkmcnt(0)")
    G, N = V_T0, V_T1
    a(f"v_lshlrev_b32 v{V_LIN}, 4, v{V_LANE}")
    a(f"v_lshrrev_b32 v{G}, 4, v{V_LANE}")
    a(f"v_and_b32 v{N}, 15, v{V_LANE}")
    a(f"v_lshlrev_b32 v{V_T2}, 4, v{N}")
    a(f"v_lshl_add_u32 v{V_DMA}, v{G}, {kvgs}, v{V_T2}")
    mark("Vw")
    if qch2:
        a(f"v_and_b32 v{V_QD}, 7, v{V_LANE}")
        a(f"v_lshlrev_b32 v{V_QD}, 4, v{V_QD}")
        a(f"v_bfe_u32 v{V_T3}, v{V_LANE}, 3, 1")
        a(f"v_lshl_add_u32 v{V_QD}, v{V_T3}, 15, v{V_QD}")
        a(f"v_bfe_u32 v{V_T3}, v{V_LANE}, 4, 1")
        a(f"v_lshl_add_u32 v{V_QD}, v{V_T3}, 17, v{V_QD}")
        a(f"v_bfe_u32 v{V_T3}, v{V_LANE}, 5, 1")
        a(f"v_lshl_add_u32 v{V_QD}, v{V_T3}, 18, v{V_QD}")
    else:
        a(f"v_bfe_u32 v{V_T3}, v{V_LANE}, 4, 1")
        a(f"v_lshl_add_u32 v{V_QD}, v{V_T3}, 15, v{V_T2}")
        a(f"v_bfe_u32 v{V_T3}, v{V_LANE}, 5, 1")
        a(f"v_lshl_add_u32 v{V_QD}, v{V_T3}, 17, v{V_QD}")
    mark("Vd")
    a(f"v_mul_u32_u24 v{V_BA}, 1280, v{N}")
    a(f"v_lshl_add_u32 v{V_BA}, v{G}, 4, v{V_BA}")
    mark("Vx")
    if fakex or xf: a(f"v_mov_b32 v{V_BA}, v{V_LIN}")
    if x128:
        a(f"v_lshrrev_b32 v{V_T3}, 3, v{V_LANE}")
        a(f"v_and_b32 v{V_BA}, 6, v{V_T3}")
        a(f"v_xor_b32 v{V_BA}, v{V_BA}, v{V_LANE}")
        a(f"v_and_b32 v{V_BA}, 7, v{V_BA}")
        a(f"v_lshlrev_b32 v{V_BA}, 4, v{V_BA}")
        a(f"v_mul_u32_u24 v{V_T3}, 1280, v{V_T3}")
        a(f"v_add_u32 v{V_BA}, v{V_BA}, v{V_T3}")
    elif xq:
        a(f"v_lshrrev_b32 v{V_T3}, 4, v{V_LANE}")
        a(f"v_and_b32 v{V_BA}, 1, v{V_T3}")
        a(f"v_lshlrev_b32 v{V_BA}, 1, v{V_BA}")
        a(f"v_lshrrev_b32 v{V_T3}, 1, v{V_T3}")
        a(f"v_mul_u32_u24 v{V_T3}, 3, v{V_T3}")
        a(f"v_xor_b32 v{V_BA}, v{V_BA}, v{V_T3}")
        a(f"v_and_b32 v{V_T3}, 3, v{V_LANE}")
        a(f"v_xor_b32 v{V_BA}, v{V_BA}, v{V_T3}")
        a(f"v_lshlrev_b32 v{V_BA}, 4, v{V_BA}")
        a(f"v_lshrrev_b32 v{V_T3}, 2, v{V_LANE}")
        a(f"v_mul_u32_u24 v{V_T3}, 1280, v{V_T3}")
        a(f"v_add_u32 v{V_BA}, v{V_BA}, v{V_T3}")
    a(f"s_cmp_eq_u32 s{S_QH}, 0")
    a("s_cselect_b64 vcc, -1, 0")
    a("s_nop 1")
    a(f"v_cndmask_b32 v{V_QD}, v{V_BA}, v{V_QD}, vcc")
    mark("Vxe")
    a(f"s_add_u32 s{S_A}, s{S_QH}, 2")
    a(f"s_mul_i32 s{S_A}, s{S_A}, {AREA}")
    if x128:
        a(f"v_and_b32 v{V_BA}, 6, v{N}")
        a(f"v_xor_b32 v{V_BA}, v{V_BA}, v{G}")
        a(f"v_lshlrev_b32 v{V_BA}, 4, v{V_BA}")
        a(f"v_and_b32 v{V_T3}, 7, v{N}")
        a(f"v_lshl_add_u32 v{V_BA}, v{V_T3}, 7, v{V_BA}")
        a(f"v_lshrrev_b32 v{V_T3}, 3, v{N}")
        a(f"v_lshl_add_u32 v{V_BA}, v{V_T3}, 10, v{V_BA}")
        a(f"v_add_u32 v{V_BA}, s{S_A}, v{V_BA}")
    elif xq:
        a(f"v_bfe_u32 v{V_T3}, v{V_LANE}, 2, 2")
        a(f"v_and_b32 v{V_BA}, 1, v{V_T3}")
        a(f"v_lshlrev_b32 v{V_BA}, 1, v{V_BA}")
        a(f"v_lshrrev_b32 v{V_T3}, 1, v{V_T3}")
        a(f"v_mul_u32_u24 v{V_T3}, 3, v{V_T3}")
        a(f"v_xor_b32 v{V_BA}, v{V_BA}, v{V_T3}")
        a(f"v_xor_b32 v{V_BA}, v{V_BA}, v{G}")
        a(f"v_lshlrev_b32 v{V_BA}, 4, v{V_BA}")
        a(f"v_lshl_add_u32 v{V_BA}, v{N}, 6, v{V_BA}")
        a(f"v_add_u32 v{V_BA}, s{S_A}, v{V_BA}")
    else:
        a(f"v_add_u32 v{V_BA}, s{S_A}, v{V_LIN}")
    if operm:
        a(f"v_lshl_add_u32 v{V_XA}, v{G}, 8, v{V_T2}")
    else:
        a(f"v_bfe_u32 v{V_T3}, v{V_LANE}, 4, 1")
        a(f"v_lshl_add_u32 v{V_T2}, v{V_T3}, 9, v{V_T2}")
        a(f"v_bfe_u32 v{V_T3}, v{V_LANE}, 5, 1")
        a(f"v_lshl_add_u32 v{V_XA}, v{V_T3}, 8, v{V_T2}")
    a(f"v_and_b32 v{V_T2}, 7, v{N}")
    a(f"v_lshlrev_b32 v{V_KA}, 10, v{V_T2}")
    a(f"v_and_b32 v{V_T3}, 1, v{N}")
    a(f"v_lshl_add_u32 v{V_KA}, v{V_T3}, 4, v{V_KA}")
    a(f"v_bfe_u32 v{V_T3}, v{N}, 1, 2")
    a(f"v_lshl_add_u32 v{V_KA}, v{V_T3}, 6, v{V_KA}")
    a(f"v_lshrrev_b32 v{V_T3}, 3, v{N}")
    a(f"v_lshl_add_u32 v{V_KA}, v{V_T3}, 8, v{V_KA}")
    a(f"v_bfe_u32 v{V_T3}, v{V_LANE}, 4, 1")
    a(f"v_lshl_add_u32 v{V_KA}, v{V_T3}, 5, v{V_KA}")
    a(f"v_bfe_u32 v{V_T3}, v{V_LANE}, 5, 1")
    a(f"v_lshl_add_u32 v{V_KA}, v{V_T3}, 4, v{V_KA}")
    a(f"s_mul_i32 s{S_A}, s{S_PJ}, {AREA}")
    a(f"v_add_u32 v{V_KA}, s{S_A}, v{V_KA}")
    a(f"v_bfe_u32 v{N}, v{V_LANE}, 2, 2")
    a(f"v_bfe_u32 v{V_T3}, v{V_LANE}, 4, 1")
    a(f"v_lshl_add_u32 v{V_T2}, v{V_T3}, 2, v{N}")
    a(f"v_mul_u32_u24 v{V_T2}, 1056, v{V_T2}")
    a(f"v_bfe_u32 v{V_T3}, v{V_LANE}, 5, 1")
    a(f"v_lshl_add_u32 v{V_T2}, v{V_T3}, {8 if qch2 else 9}, v{V_T2}")
    a(f"v_and_b32 v{V_T3}, 3, v{V_LANE}")
    a(f"v_lshl_add_u32 v{V_T2}, v{V_T3}, 3, v{V_T2}")
    a(f"v_add_u32 v{V_WA}, s{S_A}, v{V_T2}")
    a(f"v_lshl_add_u32 v{N}, v{G}, 2, v{N}")
    a(f"v_and_b32 v{V_T2}, 7, v{N}")
    a(f"v_mul_u32_u24 v{V_T2}, 1056, v{V_T2}")
    a(f"v_lshrrev_b32 v{V_T3}, 3, v{N}")
    a(f"v_lshl_add_u32 v{V_T2}, v{V_T3}, 8, v{V_T2}")
    a(f"v_and_b32 v{V_T3}, 3, v{V_LANE}")
    a(f"v_lshl_add_u32 v{V_T2}, v{V_T3}, 3, v{V_T2}")
    a(f"s_add_u32 s{S_A}, s{S_A}, {2*AREA}")
    a(f"v_add_u32 v{V_VA}, s{S_A}, v{V_T2}")
    for i in range(7):
        a(f"v_mov_b32 v{V_L+2*i}, 0xff800000")
    a(f"v_mov_b32 v{V_T0}, 0x3f803f80")
    for i in range(4): a(f"v_accvgpr_write_b32 a{A_ONE+i}, v{V_T0}")
    a(f"v_and_b32 v{V_T0}, 3, v{V_LANE}")
    a(f"v_lshlrev_b32 v{V_T0}, 2, v{V_T0}")
    a(f"v_add_u32 v{V_T0}, {LDS_FLAG}, v{V_T0}")
    a(f"v_mov_b32 v{V_T1}, 0")
    a(f"ds_write_b32 v{V_T0}, v{V_T1}")
    a(f"s_cmp_eq_u32 s{S_QH}, 0")
    a(f"s_mov_b32 s{S_A}, {kpad(1)-kpad(0)-256}")
    a(f"s_mov_b32 s{S_B}, 800")
    a(f"s_cselect_b32 s96, s{S_A}, s{S_B}")
    a(f"s_mov_b32 s{S_A}, {kpad(2)-kpad(1)-256}")
    a(f"s_cselect_b32 s97, s{S_A}, s{S_B}")

    a(f"v_lshrrev_b32 v{V_T0}, 1, v{V_LANE}")
    a(f"v_lshlrev_b32 v{V_T0}, 13, v{V_T0}")
    a(f"v_and_b32 v{V_T1}, 1, v{V_LANE}")
    a(f"v_lshl_add_u32 v{V_T0}, v{V_T1}, 7, v{V_T0}")
    a(f"v_lshlrev_b32 v{V_T1}, 7, v{V_LANE}")
    a(f"s_bfe_u32 s{S_A}, s2, 0x20003")
    a(f"s_lshl_b32 s{S_A}, s{S_A}, 18")
    a(f"s_and_b32 s{S_B}, s2, 7")
    a(f"s_mul_i32 s{S_B}, s{S_B}, 17920")
    a(f"s_cmp_eq_u32 s{S_QH}, 0")
    a("s_cselect_b64 vcc, -1, 0")
    a(f"s_cselect_b32 s100, s{S_A}, s{S_B}")
    a(f"s_add_u32 s100, s100, s55")
    a(f"s_cmp_eq_u32 s{S_QH}, 0")
    a(f"s_mov_b32 s{S_A}, {4*32*8192}")
    a(f"s_mov_b32 s{S_B}, 8192")
    a(f"s_cselect_b32 s99, s{S_A}, s{S_B}")
    a(f"v_cndmask_b32 v{V_LIN}, v{V_T1}, v{V_T0}, vcc")
    if x128:
        assert qch2 and not kvt2
        a(f"v_xor_b32 v{V_LIN}, 64, v{V_BA}")
    def tf0(u): return (u & ((1 << kvgs) - 1)) | ((u >> kvgs) << (kvgs + 2))
    if kvt2:
        lb = kvgs - int(math.log2(kvts))
        if lb >= 6:
            a(f"v_mul_u32_u24 v{V_LIN}, {kvts}, v{V_LANE}")
        else:
            a(f"v_and_b32 v{V_T0}, {(1 << lb) - 1}, v{V_LANE}")
            a(f"v_mul_u32_u24 v{V_T0}, {kvts}, v{V_T0}")
            a(f"v_lshrrev_b32 v{V_T1}, {lb}, v{V_LANE}")
            a(f"v_lshl_add_u32 v{V_LIN}, v{V_T1}, {kvgs + 2}, v{V_T0}")
    def tch(s_): return bool(kvt2) and s_ < 16 and s_ % tper == 0
    def tvn(s_): return sum(1 for t in range(max(0, s_ - 3), s_) if tch(t))
    def tinc(k): return tf0((k + 1) * 64 * kvts) - tf0(k * 64 * kvts)
    if kvrot == 0 and kvgs != 11: a("s_mov_b32 s100, 0")
    if kvrot == 1:
        a("s_and_b32 s100, s2, 31")
    if kvrot == 2:
        a("s_mul_i32 s100, s2, 11"); a(f"s_lshr_b32 s{S_A}, s2, 5"); a(f"s_mul_i32 s{S_A}, s{S_A}, 7"); a(f"s_add_u32 s100, s100, s{S_A}")
        a(f"s_lshl_b32 s{S_A}, s{S_PJ}, 4"); a(f"s_add_u32 s100, s100, s{S_A}"); a("s_and_b32 s100, s100, 31")
    if kvrot == 3:
        a("s_lshr_b32 s100, s2, 5"); a("s_lshl_b32 s100, s100, 2")
    if rflip:
        if rflip == 1: a(f"s_bfe_u32 s{S_A}, s2, 0x10005")
        if rflip == 2: a(f"s_bfe_u32 s{S_A}, s2, 0x10006")
        if rflip == 3: a(f"s_bfe_u32 s{S_A}, s2, 0x10007")
        if rflip == 4: a(f"s_bfe_u32 s{S_A}, s2, 0x10003")
        a(f"s_lshl_b32 s101, s{S_A}, 19")
        a(f"s_mul_i32 s{S_B}, s{S_A}, s{S_QRND}")
        a(f"s_add_u32 s55, s55, s{S_B}")
        a(f"s_sub_u32 s{S_B}, 0, s{S_QRND}")
        a(f"s_cmp_lg_u32 s{S_A}, 0")
        a(f"s_cselect_b32 s{S_QRND}, s{S_B}, s{S_QRND}")
        a(f"s_mov_b32 s99, {2*PAIRB}")
        a(f"s_cselect_b32 s99, {-2*PAIRB & 0xffffffff:#x}, s99")
        a(f"s_mul_i32 s{S_B}, s{S_A}, {2*PAIRB}")
        a(f"s_add_u32 s{S_OOFF}, s{S_OOFF}, s{S_B}")
    tstate = {"t": 0}
    def touch_one():
        if not touch: return
        a(f"buffer_load_dword v0, v{V_LIN}, s[{S_QP}:{S_QP+3}], s98 offen{' nt' if tnt else ''}")
        a(f"s_add_u32 s98, s98, s99")
        tstate["t"] += 1
    if xmem or dupst:
        a("s_add_u32 s72, s44, 0x8000000"); a("s_addc_u32 s73, s45, 0"); a("s_mov_b32 s74, 0x18000000"); a("s_mov_b32 s75, 0x20000")
        a("s_lshl_b32 s76, s2, 2"); a(f"s_add_u32 s76, s76, s{S_WAVE}"); a("s_mul_i32 s76, s76, 0x60000")
    dstate = {"i": 0, "kind": None}
    state = {"n": 0}
    def dma_setup(slot, kind):
        if kind == "KV":
            if kvgs != 11:
                ln_ = kvgs - 11
                a(f"s_add_u32 s{S_B}, s{S_DJ}, s100")
                a(f"s_bfe_u32 s{S_A}, s{S_B}, {((5 - ln_) << 16) | ln_:#x}")
                a(f"s_lshl_b32 s{S_A}, s{S_A}, {kvgs + 2}")
                a(f"s_and_b32 s{S_B}, s{S_B}, {(1 << ln_) - 1}")
                a(f"s_lshl_b32 s{S_B}, s{S_B}, 11")
                a(f"s_add_u32 s{S_B}, s{S_A}, s{S_B}")
                a(f"s_lshr_b32 s{S_A}, s{S_DJ}, 5")
                a(f"s_lshl_b32 s{S_A}, s{S_A}, 19")
                if rflip: a(f"s_xor_b32 s{S_A}, s{S_A}, s101")
                a(f"s_add_u32 s{S_DOFF}, s{S_A}, s{S_B}")
            elif kvrot:
                a(f"s_lshr_b32 s{S_A}, s{S_DJ}, 5")
                a(f"s_lshl_b32 s{S_A}, s{S_A}, 19")
                if rflip: a(f"s_xor_b32 s{S_A}, s{S_A}, s101")
                a(f"s_add_u32 s{S_B}, s{S_DJ}, s100")
                a(f"s_and_b32 s{S_B}, s{S_B}, 31")
                a(f"s_lshl_b32 s{S_B}, s{S_B}, 13")
                a(f"s_add_u32 s{S_DOFF}, s{S_A}, s{S_B}")
            else:
                a(f"s_lshr_b32 s{S_A}, s{S_DJ}, 5")
                a(f"s_lshl_b32 s{S_A}, s{S_A}, 18")
                a(f"s_lshl_b32 s{S_B}, s{S_DJ}, 13")
                a(f"s_add_u32 s{S_DOFF}, s{S_A}, s{S_B}")
            if kvl2: a(f"s_and_b32 s{S_DOFF}, s{S_DOFF}, {0x7fff if kvl2 is True else kvl2 - 1}")
            a(f"s_add_u32 m0, s{S_LDB}, {slot*TILE}")
            a(f"s_add_u32 s{S_DJ}, s{S_DJ}, 1")
        elif qch2:
            a(f"s_add_u32 m0, s{S_LDB}, {slot*TILE}")
            if slot & 1 == 0:
                a(f"s_mov_b32 s{S_DOFF}, s{S_QS}")
            else:
                a(f"s_add_u32 s{S_DOFF}, s{S_QS}, s46")
                a(f"s_lshl1_add_u32 s{S_QS}, s{S_QSTEP}, s{S_QS}")
                if rot:
                    a("s_add_u32 s82, s82, 2")
                    a("s_cmp_eq_u32 s82, 20")
                    a(f"s_cselect_b32 s{S_B}, s83, 0")
                    a(f"s_sub_u32 s{S_QS}, s{S_QS}, s{S_B}")
        else:
            a(f"s_add_u32 m0, s{S_LDB}, {slot*TILE}")
            a(f"s_mov_b32 s{S_DOFF}, s{S_QS}")
            a(f"s_add_u32 s{S_QS}, s{S_QS}, s{S_QSTEP}")
            if rot:
                a("s_add_u32 s82, s82, 1")
                a("s_cmp_eq_u32 s82, 20")
                a(f"s_cselect_b32 s{S_B}, s83, 0")
                a(f"s_sub_u32 s{S_QS}, s{S_QS}, s{S_B}")
        dstate["i"] = 0; dstate["kind"] = kind; dstate["odd"] = slot & 1
    def dma_one(pad=False):
        i = dstate["i"]
        if dstate["kind"] == "KV":
            if pad: a("s_nop 0")
            if not noload:
                a(f"buffer_load_dwordx4 v{V_DMA}, s[{S_LD}:{S_LD+3}], s{S_DOFF} offen offset:{256*i}{NT} lds")
            if i < 7: a(f"s_add_u32 m0, m0, s{96+(i&1)}")
        else:
            tab = [47, 98][i - 6] if (x128 and dstate["odd"] and i >= 6) else S_TAB + i
            a(f"s_add_u32 s{S_A}, s{S_DOFF}, s{tab}")
            if not qpnl: a(f"buffer_load_dwordx4 v{V_QD}, s[{S_QP}:{S_QP+3}], s{S_A} offen{' nt' if qnt else ''} lds")
            if i < 7: a(f"s_add_u32 m0, m0, s{S_MSTEP}")
        dstate["i"] = i + 1
    def qs_init(rnd_sgpr, q=3):
        if kvt2:
            a(f"s_lshl_b32 s98, s{S_T}, 19")
            if q == "pre":
                a(f"s_lshl_b32 s{S_A}, s{S_PRE}, {kvgs}"); a(f"s_sub_u32 s98, s98, s{S_A}"); q = 3
            a(f"s_add_u32 s98, s98, {q << kvgs}")
        a(f"s_mul_i32 s{S_QS}, s{rnd_sgpr}, s{S_QRND}")
        if not rflip: a(f"s_mov_b32 s101, s{rnd_sgpr}")
        a(f"s_add_u32 s{S_QS}, s{S_QS}, s55")
        a(f"s_cmp_ge_u32 s{rnd_sgpr}, 2")
        a(f"s_cselect_b32 s{S_A}, 0x40000000, 0")
        a(f"s_add_u32 s{S_QS}, s{S_QS}, s{S_A}")
        if rot:
            a("s_mov_b32 s82, s26")
            a(f"s_mul_i32 s{S_A}, s26, s{S_QSTEP}")
            a(f"s_add_u32 s{S_QS}, s{S_QS}, s{S_A}")

    def touch_init(rnd_sgpr):
        if not touch: return
        a(f"s_mul_i32 s98, s{rnd_sgpr}, s{S_QRND}")
        a(f"s_add_u32 s98, s98, s100")
        a(f"s_cmp_ge_u32 s{rnd_sgpr}, 2")
        a(f"s_cselect_b32 s{S_A}, 0x40000000, 0")
        a(f"s_add_u32 s98, s98, s{S_A}")
        tstate["t"] = 0
    def kread(f, slot):
        if anrd and state.get("inat"): return
        kt, s = f >> 2, f & 3
        a.lds(f"ds_read_b128 {vr(V_KF+4*f,4)}, v{V_KA} offset:{slot*TILE+kt*512+s*64}", "K")
    def vread(l, slot):
        if anrd and state.get("inat"): return
        for v in range(2):
            a.lds(f"ds_read_b64_tr_b16 {vr(V_VF+4*l+2*v,2)}, v{V_VA} offset:{slot*TILE+v*512+l*32}", "V")
    def wread(l, slot):
        for v in range(2):
            a.lds(f"ds_read_b64_tr_b16 {vr(V_VF+4*l+2*v,2)}, v{V_WA} offset:{slot*TILE+v*256+l*32}", "W")
    def wread2(lp, kk, slot):
        for v in range(2):
            a.lds(f"ds_read_b64_tr_b16 {vr(V_VF+8*lp+4*kk+2*v,2)}, v{V_WA} offset:{slot*TILE+kk*512+v*128+lp*32}", "W")
    def bset(st_, kk, qt):
        if st_ == 0: return vr((V_CI if kk == 0 else V_KF) + 4 * qt, 4)
        return ar(A_Q + 28 * kk + 4 * qt, 4)
    def bread2(st_, kk, qt, slot):
        if x128:
            sl = ((slot - kk) + (qt >> 2)) & 3
            a.lds(f"ds_read_b128 {bset(st_, kk, qt)}, v{V_LIN if kk else V_BA} offset:{sl*TILE+(qt&3)*2048}", "B")
            return
        a.lds(f"ds_read_b128 {bset(st_, kk, qt)}, v{V_BA} offset:{slot*TILE+qt*1024}", "B")
    def bbuf(buf, qt): return (V_KF if buf == 0 else V_CI) + 4 * qt
    def bread(buf, qt, slot):
        a.lds(f"ds_read_b128 {vr(bbuf(buf,qt),4)}, v{V_BA} offset:{slot*TILE+qt*1024}", "B")
    def oreg(l, qt):
        return vr(V_OK + 28 * l + 4 * qt, 4) if l < 4 else ar(A_OS + 28 * (l - 4) + 4 * qt, 4)

    def barrier(dyn=False, vn=16, xt=0):
        vn += xt
        if dyn:
            n = len(a.lines)
            a(f"s_cmp_eq_u32 s{S_AS}, 0")
            if inv:
                a(f"s_cbranch_scc0 L_bw1_{n}")
                a(f"s_waitcnt vmcnt({vn}) lgkmcnt(0)")
                a.label(f"L_bw2_{n}")
                if wo2 or wo8 or wtch in (2, 3):
                    state.setdefault("ool", []).extend([f"L_bw1_{n}:", f"    s_sub_u32 s{S_AS}, s{S_AS}, 1", f"    s_bitcmp1_b32 s{S_AS}, 8", f"    s_cbranch_scc1 L_bw3_{n}",
                        f"    s_waitcnt vmcnt({44 + xt}) lgkmcnt(0)", f"    s_branch L_bw2_{n}",
                        f"L_bw3_{n}:", f"    s_bitcmp1_b32 s{S_AS}, 9", f"    s_cbranch_scc1 L_bw4_{n}",
                        f"    s_and_b32 s99, s{S_AS}, 0xff", f"    s_cselect_b32 s{S_AS}, s{S_AS}, 0",
                        f"    s_waitcnt vmcnt({21 + xt}) lgkmcnt(0)", f"    s_branch L_bw2_{n}",
                        f"L_bw4_{n}:", f"    s_and_b32 s99, s{S_AS}, 0xff", f"    s_cselect_b32 s{S_AS}, s{S_AS}, 0",
                        f"    s_waitcnt vmcnt({54 + xt}) lgkmcnt(0)", f"    s_branch L_bw2_{n}"])
                elif eep:
                    assert xt == 0
                    state.setdefault("ool", []).extend([f"L_bw1_{n}:", f"    s_sub_u32 s{S_AS}, s{S_AS}, 1",
                        f"    s_cmp_eq_u32 s{S_AS}, 0x101", f"    s_cbranch_scc1 L_bw3_{n}",
                        f"    s_cmp_eq_u32 s{S_AS}, 0x100", f"    s_cbranch_scc1 L_bw4_{n}",
                        f"    s_cmp_eq_u32 s{S_AS}, 0x200", f"    s_cbranch_scc1 L_bw5_{n}",
                        f"    s_waitcnt vmcnt(44) lgkmcnt(0)", f"    s_branch L_bw2_{n}",
                        f"L_bw3_{n}:", f"    s_waitcnt vmcnt(@NA1@) lgkmcnt(0)", f"    s_branch L_bw2_{n}",
                        f"L_bw4_{n}:", f"    s_mov_b32 s{S_AS}, 0", f"    s_waitcnt vmcnt(@NA2@) lgkmcnt(0)", f"    s_branch L_bw2_{n}",
                        f"L_bw5_{n}:", f"    s_mov_b32 s{S_AS}, 0", f"    s_waitcnt vmcnt(@NB2@) lgkmcnt(0)", f"    s_branch L_bw2_{n}"])
                else:
                    state.setdefault("ool", []).extend([f"L_bw1_{n}:", f"    s_sub_u32 s{S_AS}, s{S_AS}, 1", f"    s_waitcnt vmcnt({28 + vn}) lgkmcnt(0)", f"    s_branch L_bw2_{n}"])
                a.lds_q = []
                a("s_barrier")
                return
            a(f"s_cbranch_scc1 L_bw1_{n}")
            a(f"s_sub_u32 s{S_AS}, s{S_AS}, 1")
            a(f"s_waitcnt vmcnt({44 + xt}) lgkmcnt(0)")
            a(f"s_branch L_bw2_{n}")
            a.label(f"L_bw1_{n}")
            a(f"s_waitcnt vmcnt({vn}) lgkmcnt(0)")
            a.label(f"L_bw2_{n}")
        else:
            a(f"s_waitcnt vmcnt({vn}) lgkmcnt(0)")
        a.lds_q = []
        a("s_barrier")

    def cap(fn):
        n0 = len(a.lines); q0 = list(a.lds_q)
        fn()
        ls = a.lines[n0:]; del a.lines[n0:]; a.lds_q = q0
        return ls
    def is_scalar(ln):
        return ln.strip().startswith("s_")
    class Gaps:
        def __init__(self, n):
            self.n = n; self.S = [[] for _ in range(n)]; self.V = [[] for _ in range(n)]; self.c = [0] * n
        def putS(self, ln, lo, hi=None):
            for g in range(lo, self.n):
                if len(self.S[g]) == 0:
                    self.S[g].append(ln); return g
            self.S[self.n - 1].append(ln); return self.n - 1
        def putV(self, ln, lo, cost=1, cap_=2):
            for g in range(lo, self.n):
                if self.c[g] + cost <= cap_:
                    self.V[g].append(ln); self.c[g] += cost; return g
            self.V[self.n - 1].append(ln); self.c[self.n - 1] += cost; return self.n - 1
        def atV(self, ln, g, cost=1):
            self.V[g].append(ln); self.c[g] += cost
        def atS(self, ln, g):
            self.S[g].append(ln)
    DITEMS = [(qt, T) for qt in range(7) for T in range(4)]
    DS = {}
    if defer:
        ntl = (28 - 8 - 4 * dnp) // 4
        assert 4 * dnp + 8 + 4 * ntl == 28
        k_ = 0
        for i in range(4): DS[("P", i)] = DITEMS[k_:k_ + dnp]; k_ += dnp
        for i in (1, 0, 3, 2): DS[("L", i)] = DITEMS[k_:k_ + 2]; k_ += 2
        for i in range(4): DS[("T", i)] = DITEMS[k_:k_ + ntl]; k_ += ntl
    DLIVE = {1: 0, 0: 1, 3: 1, 2: 2}
    def dcount(code):
        if not defer or code is None: return 0
        kind, i = code
        n = lambda c: len(DS.get(c, []))
        if kind == "P": return sum(n(("P", t)) for t in (i - 2, i - 1) if t >= 0)
        prev = lambda k, t: (k, t) if t >= 0 else None
        if kind == "L":
            if i >= 2: return n(("L", i - 2)) + n(("L", i - 1))
            if i == 1: return min(n(("P", 3)), n(("L", 3))) + n(("L", 0))
            return min(n(("P", 2)) + n(("P", 3)), n(("L", 2)) + n(("L", 3)))
        if kind in ("T", "B"):
            m = lambda t: n((kind, t)) if t >= 0 else n(("L", 4 + t))
            return m(i - 2) + m(i - 1)
    def qp_stage2(sm, first, dma, last, chk, after_store, vn, nok, sidx, code=None):
        buf = sm & 1; nslot = (sm + 1) & 3
        BAR = qbar
        G = Gaps(56)
        su = cap(lambda: dma_setup(sm, dma))
        g = BAR - 1
        g = 0
        for ln in su:
            g = G.putS(ln, g) + 1
        prev = g
        w5 = wo5 == 1 and code == ("T", 0)
        for i in range(8):
            ls = cap(lambda: dma_one(False))
            tg = max(qd0 + (4 if w5 else qdstep) * i, prev)
            pre_ = [l for l in ls if is_scalar(l) and "m0" not in l]
            ld = [l for l in ls if not is_scalar(l)]
            post = [l for l in ls if is_scalar(l) and "m0" in l]
            for l in pre_: tg = G.putS(l, tg)
            for l in ld: G.atV(l, tg)
            prev = tg + 1
            for l in post: prev = G.putS(l, tg + 1) + 1
        dstate["i"] = 8
        if w5:
            assert prev <= 39, prev
            for i in range(5): G.atV(f"    v_accvgpr_read_b32 v{V_S+i}, a{244+i}", i)
            G.atS(f"    s_cmp_eq_u32 s{S_WO}, 0", 39)
            G.atS(f"    s_cselect_b32 s57, s56, 0x40000000", 39)
            for i in range(5):
                G.atS(f"    s_add_u32 m0, s58, {1024*i}", 40 + 3*i)
                G.atV(f"    buffer_load_dwordx4 v{V_S+i}, s[84:87], s57 offen lds", 41 + 3*i)
        if code in DS:
            its = DS[code]; lastq = None
            for n_, (qt_, T_) in enumerate(its):
                tg = qd0 + 3 + n_ * 2 * qdstep
                if qt_ != lastq:
                    if code[0] == "L":
                        G.atS(f"    s_cmp_eq_u32 s{S_CNT}, {DLIVE[code[1]]}", tg - 2)
                        G.atS(f"    s_cselect_b32 s99, s98, 0x40000000", tg - 2)
                        G.atS(f"    s_add_u32 s99, s99, {qt_*4096}", tg - 1)
                    else:
                        G.atS(f"    s_add_u32 s99, s98, {qt_*4096}", tg - 1)
                    lastq = qt_
                G.atV(f"    buffer_store_dwordx4 {ar(A_Q+16*qt_+4*T_,4)}, v{V_XA}, s[{S_W}:{S_W+3}], s99 offen offset:{1024*T_} {dpol}".rstrip(), tg)
        if tch(sidx):
            k_ = sidx // tper
            tg = min(prev + 1, 54)
            G.atV(f"    buffer_load_dword v{V_S+12}, v{V_LIN}, s[{S_LD}:{S_LD+3}], s98 offen {tpol}".rstrip(), tg)
            G.putS(f"    s_add_u32 s98, s98, {tinc(k_)}", tg + 1)
        if qnrd: pass
        elif not last:
            lo = BAR - 1
            for ln in cap(lambda: wread(0, nslot)): lo = G.putV(ln, lo, cap_=1)
            for qt in range(7):
                for ln in cap(lambda: bread(buf ^ 1, qt, nslot)): lo = G.putV(ln, lo, cap_=1)
            for l in range(1, 8):
                lo = max(lo, min(7 * (l + 1) - 1, 55))
                for ln in cap(lambda: wread(l, nslot)): lo = G.putV(ln, lo, cap_=(1 if l < 7 else 2))
        elif not nok:
            lo = BAR - 1
            for f in range(8):
                for ln in cap(lambda: kread(f, nslot)): lo = G.putV(ln, lo, cap_=1)
        a("s_waitcnt lgkmcnt(14)")
        j = 0
        for l in range(8):
            for qt in range(7):
                c = "0" if first else oreg(l, qt)
                if qt == 0 and l > 0 and j < BAR: a(f"s_waitcnt lgkmcnt({14-2*l})")
                a(f"{MFMA} {oreg(l, qt)}, {vr(V_VF+4*l,4)}, {vr(bbuf(buf,qt),4)}, {c}")
                for ln in G.S[j]: a.lines.append(ln)
                if j == BAR - 1:
                    if not qnbar: barrier(after_store, 16, tvn(sidx) + dcount(code) + (5 if (wo5 == 1 and code in (("T", 1), ("T", 2), ("T", 3))) else 0))
                    if chk: flagcheck()
                for ln in G.V[j]: a.lines.append(ln)
                j += 1
    def qp_stage3(sm, first, dma, last, chk, after_store, nok):
        h = sm & 1; cur = (sm >> 1) & 1; nslot = (sm + 1) & 3
        BAR = qbar
        G = Gaps(56)
        su = cap(lambda: dma_setup(sm, dma))
        g = 0
        for ln in su:
            g = G.putS(ln, g) + 1
        prev = g
        for i in range(8):
            ls = cap(lambda: dma_one(False))
            tg = max(qd0 + qdstep * i, prev)
            pre_ = [l for l in ls if is_scalar(l) and "m0" not in l]
            ld = [l for l in ls if not is_scalar(l)]
            post = [l for l in ls if is_scalar(l) and "m0" in l]
            for l in pre_: tg = G.putS(l, tg)
            for l in ld: G.atV(l, tg)
            prev = tg + 1
            for l in post: prev = G.putS(l, tg + 1) + 1
        dstate["i"] = 8
        if not last:
            lo = BAR - 1
            if h == 1:
                for kk in range(2):
                    for qt in range(7):
                        for ln in cap(lambda: bread2(cur ^ 1, kk, qt, (sm + 1 + kk) & 3)): lo = G.putV(ln, lo, cap_=1)
            for lp in range(4):
                lo = max(lo, 14 * (lp + 1) - 1)
                if lp < 3:
                    for kk in range(2):
                        for ln in cap(lambda: wread2(lp, kk, nslot)): lo = G.putV(ln, lo, cap_=1)
                else:
                    for kk in range(2):
                        for ln in cap(lambda: wread2(lp, kk, nslot)): G.atV(ln, 55)
        elif not nok:
            lo = BAR - 1
            for f in range(8):
                for ln in cap(lambda: kread(f, nslot)): lo = G.putV(ln, lo, cap_=1)
        vn_ = 8 if (h == 1 and not (last and dma == "KV")) else 16
        a("s_waitcnt lgkmcnt(8)")
        j = 0
        for lp in range(4):
            for qt in range(7):
                for kk in range(2):
                    c = "0" if (first and kk == 0) else oreg(4 * h + lp, qt)
                    a(f"{MFMA} {oreg(4 * h + lp, qt)}, {vr(V_VF+8*lp+4*kk,4)}, {bset(cur, kk, qt)}, {c}")
                    for ln in G.S[j]: a.lines.append(ln)
                    if j == BAR - 1:
                        barrier(after_store, vn_)
                        if chk: flagcheck()
                    for ln in G.V[j]: a.lines.append(ln)
                    j += 1
    def qp_stage(sm, first=False, dma="QP", last=False, chk=False, after_store=False, kt_=False, vn=16, nok=False, role=None, ntouch=0, sidx=None, code=None):
        buf = sm & 1; nslot = (sm + 1) & 3
        if qch2:
            return qp_stage3(sm, first, dma, last, chk, after_store, nok)
        if qps:
            return qp_stage2(sm, first, dma, last, chk, after_store, vn, nok, sidx, code)
        a("s_waitcnt lgkmcnt(14)")
        fq = []
        def cap(fn):
            n0 = len(a.lines); q0 = len(a.lds_q)
            fn()
            ls = a.lines[n0:]; del a.lines[n0:]; del a.lds_q[q0:]
            return ls
        BAR = 7
        if role != "T":
            for ln in cap(lambda: dma_setup(sm, dma)): fq.append((BAR, ln))
        if dma == "QP" and roll:
            fq.append((BAR, f"    s_lshl2_add_u32 s{S_B}, s{S_QSTEP}, s{S_DOFF}"))
            fq.append((BAR, f"    buffer_load_dword v0, v{V_T0}, s[{S_QP}:{S_QP+3}], s{S_B} offen{' nt' if tnt else ''}"))
        if kvt and kt_:
            fq.append((BAR, f"    buffer_load_dword v0, v{V_T3}, s[{S_LD}:{S_LD+3}], s101 offen{' nt' if kvtnt else ''}"))
            fq.append((BAR, f"    s_add_u32 s101, s101, 8192"))
        if not last:
            for ln in cap(lambda: wread(0, nslot)): fq.append((BAR, ln))
            for qt in range(7):
                for ln in cap(lambda: bread(buf ^ 1, qt, nslot)): fq.append((BAR, ln))
        elif not nok:
            for f in range(8):
                for ln in cap(lambda: kread(f, nslot)): fq.append((BAR, ln))
        for l in range(1, 8):
            if not last:
                for ln in cap(lambda: wread(l, nslot)): fq.append((7 * (l + 1), ln))
            if role == "T":
                if l == 1:
                    for _ in range(ntouch):
                        fq.append((BAR, f"    buffer_load_dword v0, v{V_T0}, s[60:63], s98 offen"))
                        fq.append((BAR, f"    s_add_u32 s98, s98, {32*8192}"))
                        fq.append((BAR, f"    buffer_load_dword v0, v{V_T1}, s[{S_QP}:{S_QP+3}], s99 offen"))
                        fq.append((BAR, f"    s_add_u32 s99, s99, 64"))
                continue
            for ln in cap(lambda: dma_one(True)): fq.append((BAR, ln))
            if role == "X":
                if l == 7:
                    fq.append((BAR, f"    s_add_u32 m0, s{S_LDB}, {AREA+sm*TILE}"))
                    fq.append((BAR, f"    s_add_u32 s{S_DOFF}, s{S_DOFF}, {112*1280}"))
                    for i in range(7):
                        fq.append((BAR, f"    s_add_u32 s{S_A}, s{S_DOFF}, s{S_TAB+i}"))
                        fq.append((BAR, f"    buffer_load_dwordx4 v{V_QD}, s[{S_QP}:{S_QP+3}], s{S_A} offen{' nt' if qnt else ''} lds"))
                        if i < 6: fq.append((BAR, f"    s_add_u32 m0, m0, 1024"))
            elif l == 7:
                for ln in cap(lambda: dma_one(True)): fq.append((BAR, ln))
        j = 0
        for l in range(8):
            for qt in range(7):
                c = "0" if first else oreg(l, qt)
                a(f"{MFMA} {oreg(l, qt)}, {vr(V_VF+4*l,4)}, {vr(bbuf(buf,qt),4)}, {c}")
                j += 1
                if j == BAR:
                    barrier(after_store, vn if (roll or role) else 16)
                    if chk: flagcheck()
                    if trace:
                        a("s_memtime s[78:79]")
                        a("s_waitcnt lgkmcnt(0)")
                        a(f"v_cmp_eq_u32 vcc, s77, v{V_LANE}")
                        a(f"v_mov_b32 v{V_T2}, s78")
                        a("s_nop 1")
                        a(f"v_cndmask_b32 v{V_T3}, v{V_T3}, v{V_T2}, vcc")
                        a("s_add_u32 s77, s77, 1")
                k = 0; idx = 0
                rem_gaps = 56 - j + 1
                quota = 1 if len(fq) <= rem_gaps else 2
                while k < quota and idx < len(fq):
                    if fq[idx][0] <= j and (idx == 0 or "ds_read" in fq[idx][1] or all("ds_read" in x[1] for x in fq[:idx])):
                        a.lines.append(fq[idx][1]); del fq[idx]; k += 1
                    else:
                        idx += 1
        for _, ln in fq: a.lines.append(ln)
        assert role in ("X", "T") or dstate["i"] == 8

    def sm_ops(par, i, first):
        S = V_S + 8 * par; P = V_P + 4 * par; L = V_L + 2 * i
        ops = []
        if first:
            T0, T1 = V_T0, V_T1
            ops += [f"v_max3_f32 v{T0}, v{S}, v{S+1}, v{L}", f"v_max3_f32 v{T1}, v{S+2}, v{S+3}, v{S+4}",
                    f"v_max3_f32 v{T0}, v{S+5}, v{S+6}, v{T0}", f"v_max3_f32 v{T0}, v{S+7}, v{T0}, v{T1}",
                    f"v_mov_b32 v{T1}, v{T0}", "s_nop 1", f"v_permlane16_swap_b32 v{T0}, v{T1}", "s_nop 1", f"v_max_f32 v{T0}, v{T0}, v{T1}",
                    f"v_mov_b32 v{T1}, v{T0}", "s_nop 1", f"v_permlane32_swap_b32 v{T0}, v{T1}", "s_nop 1", f"v_max_f32 v{T0}, v{T0}, v{T1}",
                    f"v_mov_b32 v{L}, 0", f"v_mov_b32 v{L+1}, 0"]
            ops += [f"v_sub_f32 v{S+r}, v{S+r}, v{T0}" for r in range(8)]
            ops += [f"v_sub_f32 v{V_CI+4*i+r}, 0, v{T0}" for r in range(4)]
        e = lambda r: ops.append(f"v_exp_f32 v{S+r}, v{S+r}")
        e(0); e(1)
        for r in range(0, 8, 2):
            if r + 2 < 8: e(r + 2); e(r + 3)
            if not ones:
                ops.append(f"v_add_f32 v{L}, v{L}, v{S+r}")
                ops.append(f"v_add_f32 v{L+1}, v{L+1}, v{S+r+1}")
            ops.append(f"v_cvt_pk_bf16_f32 v{P+r//2}, v{S+r}, v{S+r+1}")
        return ops

    def qk_items(qt, par, czero, kr):
        it = []
        for f in ([0, 1, 2, 3, 7, 6, 5, 4] if qkrev else range(8)):
            kt, s = f >> 2, f & 3
            D = vr(V_S + 8 * par + 4 * kt, 4)
            c = ("0" if czero else vr(V_CI + 4 * qt, 4)) if f in ((0, 7) if qkrev else (0, 4)) else D
            it.append(("K" if f == 0 else None, f"{MFMA} {D}, {vr(V_KF+4*f,4)}, {ar(A_Q+16*qt+4*s,4)}, {c}",
                       (lambda f=f: kread(f, kr)) if kr is not None else None))
        return it
    def pv_items(qt, par, czero, vrd):
        it = []
        for l in range(8):
            c = "0" if czero else oreg(l, qt)
            it.append(("V" if l == 0 else None, f"{MFMA} {oreg(l, qt)}, {vr(V_VF+4*l,4)}, {vr(V_P+4*par,4)}, {c}",
                       (lambda l=l: vread(l, vrd)) if vrd is not None else None))
        for _ in range(xmfma):
            D = ar(A_LS + 4 * qt, 4)
            it.append((None, f"{MFMA} {D}, {vr(V_VF,4)}, {vr(V_P+4*par,4)}, {D}", None))
        if ones:
            D = ar(A_LS + 4 * qt, 4)
            it.append((None, f"{MFMA} {D}, {ar(A_ONE,4)}, {vr(V_P+4*par,4)}, {'0' if czero else D}", None))
        return it

    def capture(fn):
        n0 = len(a.lines)
        fn()
        ls = a.lines[n0:]; del a.lines[n0:]
        return ls
    def emit(items, va, fill=None, nfill=0):
        cost = lambda op: 2 if "v_exp" in op else 1
        tot = sum(cost(o) for o in va); acc = 0; k = 0; ng = len(items)
        pos = [int((i + 0.5) * ng / max(nfill, 1)) for i in range(nfill)]
        for j, (need, m, post) in enumerate(items):
            if m:
                if need: a.lds_wait({need})
                a(m)
            if post: post()
            for _ in range(pos.count(j)):
                if fill: a.lines.append(fill.pop(0))
            while k < len(va) and acc + cost(va[k]) <= tot * (j + 1) / ng + 0.01:
                a(va[k]); acc += cost(va[k]); k += 1
        assert k == len(va)

    def dma_lines(slot, kind, pad=False):
        def f():
            dma_setup(slot, kind)
            for _ in range(8): dma_one(pad)
            if xmem and kind == "KV":
                a(f"s_mul_i32 s{S_A}, s{S_WAVE}, 7168")
                a(f"s_add_u32 m0, s{S_A}, {4*AREA+5120}")
                a(f"s_add_u32 s{S_A}, s{S_DOFF}, s76")
                for i in range(xmem):
                    a(f"buffer_load_dwordx4 v{V_DMA}, s[72:75], s{S_A} offen offset:{256*i} nt lds")
        return capture(f)
    def split_fill(fill, quota):
        out = []; idx = 0
        for q in quota:
            ch = []; n = 0
            while idx < len(fill) and n < q:
                ln = fill[idx]; ch.append(ln); idx += 1
                if "buffer_load" in ln:
                    n += 1
                    if idx < len(fill) and "m0, m0" in fill[idx]: ch.append(fill[idx]); idx += 1
            out.append(ch)
        out[-1] += fill[idx:]
        return out
    def ep_red(j):
        L = V_L + 2 * j; t = V_CI + 4 * j + 1; r = V_CI + 4 * j
        return [f"v_add_f32 v{L}, v{L}, v{L+1}", f"v_mov_b32 v{t}, v{L}", "s_nop 1", f"v_permlane16_swap_b32 v{L}, v{t}", "s_nop 1", f"v_add_f32 v{L}, v{L}, v{t}",
                f"v_mov_b32 v{t}, v{L}", "s_nop 1", f"v_permlane32_swap_b32 v{L}, v{t}", "s_nop 1", f"v_add_f32 v{L}, v{L}, v{t}", f"v_rcp_f32 v{r}, v{L}"]
    def ep_tile(j, pk_):
        r = V_CI + 4 * j
        q = lambda l: V_OK + 28 * l + 4 * j
        ops = [f"s_add_u32 s98, s{S_D}, {4096*j}"]
        for T in range(4):
            if T < 2: x, y = q(2 * T), q(2 * T + 1)
            else:
                x, y = (q(1), q(3)) if T == 2 else (q(0), q(3))
                for e, dst in ((0, x), (1, y)):
                    for k in range(4): ops.append(f"v_accvgpr_read_b32 v{dst+k}, a{A_OS+28*(2*(T-2)+e)+4*j+k}")
            for dst in (x, y):
                if pk_:
                    for h in range(2): ops.append(f"v_pk_mul_f32 {vr(dst+2*h,2)}, {vr(dst+2*h,2)}, {vr(r,2)} op_sel_hi:[1,0]")
                else:
                    for k in range(4): ops.append(f"v_mul_f32 v{dst+k}, v{dst+k}, v{r}")
            ops.append(f"v_cvt_pk_bf16_f32 v{x}, v{x}, v{x+1}")
            ops.append(f"v_cvt_pk_bf16_f32 v{x+1}, v{x+2}, v{x+3}")
            ops.append(f"v_cvt_pk_bf16_f32 v{x+2}, v{y}, v{y+1}")
            ops.append(f"v_cvt_pk_bf16_f32 v{x+3}, v{y+2}, v{y+3}")
            ops.append("s_nop 1")
            ops.append(f"v_permlane16_swap_b32 v{x}, v{x+2}")
            ops.append(f"v_permlane16_swap_b32 v{x+1}, v{x+3}")
            if not nost: ops.append(f"buffer_store_dwordx4 {vr(x,4)}, v{V_XA}, s[{S_W}:{S_W+3}], s98 offen offset:{1024*T} {stpol}".rstrip())
        return ops
    def ep_merge(sm, ep):
        sm = list(sm); out = []
        nn = sum(1 for o in ep if o == "s_nop 1")
        rest = len(sm) - 2 * nn
        body = [o for o in ep]
        n_other = len(body) - nn
        per = rest / max(n_other, 1) if rest > 0 else 0
        acc = 0.0
        for o in body:
            if o == "s_nop 1":
                if len(sm) >= 2: out.append(sm.pop(0)); out.append(sm.pop(0))
                else: out.append(o)
                continue
            out.append(o)
            acc += per
            while acc >= 1 and sm:
                out.append(sm.pop(0)); acc -= 1
        return out + sm
    def step(jm, first=False, last=False, dma="KV", nt_=0, tr_=False, dyn=False):
        fill = [] if (first or early) else dma_lines((jm + 3) & 3, dma)
        nf = (len(fill) + len(dsl) - 1) // len(dsl)
        chunks = state.get("carry") or [[] for _ in range(5)]
        state["carry"] = None
        for i in range(7):
            if strace and tr_:
                pr = [36, 38, 40, 42, 56, 58, 60, 62]
                a(f"s_memtime s[{pr[i]}:{pr[i]+1}]")
            if i in (1, 2, 3)[:nt_]: touch_one()
            n = state["n"]; par = n & 1
            items = []
            nfill = nf if (str(i) in dsl and i <= 4) else 0
            if spread and i <= 4:
                fill = list(chunks[i]); nfill = len(fill)
            if eep and last and dma == "KV":
                if i == 0: qstash_off()
                for s_ in range(4):
                    a(f"buffer_load_dwordx4 {ar(A_Q+16*i+4*s_,4)}, v{V_T2}, s[{S_W}:{S_W+3}], s{S_C} offen offset:{1024*s_}")
                if i < 6: a(f"s_add_u32 s{S_C}, s{S_C}, 4096")
            if i == 5:
                assert not fill
                if eep and last:
                    a(f"s_waitcnt vmcnt(@LB{'A' if dma == 'QP' else 'B'}@) lgkmcnt(0)")
                    a.lds_q = []
                    a("s_barrier")
                elif not (anbar and state.get("inat")): barrier(dyn, 8 if (qch2 and last and dma == "QP") else 16)
                if first: flagcheck()
                if last or early:
                    fill = dma_lines(jm, dma, True if last else False); nf = (len(fill) + 1) // 2
                    if spread and not last:
                        ch = split_fill(fill, [int(c) for c in spread])
                        assert len(ch) == 7
                        nxt = ch; fill = list(ch[0]); state["carry"] = ch[2:]
            if (last or early) and i >= 5: nfill = nf
            if spread and not last and i == 5: nfill = len(fill)
            if spread and not last and i == 6: fill = list(nxt[1]); nfill = len(fill)
            if i < 6:
                items += qk_items(i + 1, par ^ 1, first, ((jm + 1) & 3) if (i == 5 and (not last or dma == "KV")) else None)
            elif not last:
                items += qk_items(0, par ^ 1, False, None)
            else:
                if dma == "KV" and not eep: qreload()
                a("s_nop 1")
            if i > 0:
                items += pv_items(i - 1, par ^ 1, first, None)
            elif not first:
                items += pv_items(6, par ^ 1, False, jm)
            else:
                items += [(None, None, (lambda l=l: vread(l, jm))) for l in range(8)]
            ops_ = sm_ops(par, i, first)
            if state.get("inat") and anva:
                ops_ = [o for o in ops_ if not any(o.startswith(x) for x in anva.split(","))]
            if eep and last and i >= 2:
                ops_ = ep_merge(ops_, ep_red(i - 2) + ep_tile(i - 2, eep == 2))
            emit(items, ops_, fill, nfill)
            state["n"] = n + 1
        assert not fill

    def qstash_off():
        a(f"s_lshl_b32 s{S_C}, s2, 2")
        a(f"s_add_u32 s{S_C}, s{S_C}, s{S_WAVE}")
        a(f"s_mul_i32 s{S_C}, s{S_C}, 28672")
        a(f"v_lshlrev_b32 v{V_T2}, 4, v{V_LANE}")
    def qreload():
        qstash_off()
        for i in range(7):
            for s_ in range(4):
                a(f"buffer_load_dwordx4 {ar(A_Q+16*i+4*s_,4)}, v{V_T2}, s[{S_W}:{S_W+3}], s{S_C} offen offset:{1024*s_}")
            if i < 6: a(f"s_add_u32 s{S_C}, s{S_C}, 4096")

    def flagcheck():
        lab = f"L_at_nofb_{len(a.lines)}"
        a(f"s_cmp_le_u32 s{S_T}, s{S_T0}")
        a(f"s_cbranch_scc1 {lab}")
        a(f"s_sub_u32 s{S_A}, s{S_T}, 1")
        a(f"s_cmp_eq_u32 s{S_A}, s{S_NOFB}")
        a(f"s_cbranch_scc1 {lab}")
        a(f"s_lshl_b32 s{S_B}, s{S_A}, 2")
        a(f"s_add_u32 s{S_B}, s{S_B}, {LDS_FLAG}")
        a(f"v_mov_b32 v{V_T2}, s{S_B}")
        a(f"ds_read_b32 v{V_T2}, v{V_T2}")
        a("s_waitcnt lgkmcnt(0)")
        a(f"v_readfirstlane_b32 s{S_B}, v{V_T2}")
        a("s_nop 3")
        a(f"s_cmp_lg_u32 s{S_B}, 0")
        a(f"s_cbranch_scc1 L_at_fallback")
        a.label(lab)

    def wo_issue_a(ps):
        a(f"s_and_b32 s{S_B}, s2, 127")
        a(f"s_mul_i32 s{S_B}, s{S_B}, {32*1280}")
        a(f"s_mul_i32 s{S_D}, s{S_WAVE}, 320")
        a(f"s_add_u32 s{S_B}, s{S_B}, s{S_D}")
        a(f"s_add_u32 s{S_B}, s{S_B}, {160*ps}")
        a(f"s_mul_i32 s{S_D}, s{S_WAVE}, 7168")
        a(f"s_add_u32 s{S_D}, s{S_D}, {4*AREA}")
        a(f"s_mov_b32 s{S_A}, 6554")
        for i in range(5):
            a(f"v_add_u32 v{V_T0}, {64*i}, v{V_LANE}")
            a(f"v_mul_u32_u24 v{V_T1}, s{S_A}, v{V_T0}")
            a(f"v_lshrrev_b32 v{V_T1}, 16, v{V_T1}")
            a(f"v_mul_u32_u24 v{V_T2}, 10, v{V_T1}")
            a(f"v_sub_u32 v{V_T2}, v{V_T0}, v{V_T2}")
            a(f"v_mul_u32_u24 v{V_T1}, 1280, v{V_T1}")
            a(f"s_add_u32 m0, s{S_D}, {1024*i}")
            a(f"v_lshl_add_u32 v{V_T3}, v{V_T2}, 4, v{V_T1}")
            a(f"buffer_load_dwordx4 v{V_T3}, s[84:87], s{S_B} offen lds")
    def wo_read_a():
        a(f"v_lshrrev_b32 v{V_T0}, 4, v{V_LANE}")
        a(f"v_bfe_u32 v{V_T1}, v{V_LANE}, 2, 2")
        a(f"v_lshl_add_u32 v{V_T1}, v{V_T0}, 3, v{V_T1}")
        a(f"v_mul_u32_u24 v{V_T1}, 160, v{V_T1}")
        a(f"v_and_b32 v{V_T2}, 3, v{V_LANE}")
        a(f"v_lshl_add_u32 v{V_T1}, v{V_T2}, 3, v{V_T1}")
        a(f"s_mul_i32 s{S_D}, s{S_WAVE}, 7168")
        a(f"s_add_u32 s{S_D}, s{S_D}, {4*AREA}")
        a(f"v_add_u32 v{V_T1}, s{S_D}, v{V_T1}")
        R = A_LS
        for t in range(5):
            for v in range(2):
                a(f"ds_read_b64_tr_b16 {ar(R+4*t+2*v,2)}, v{V_T1} offset:{v*640+t*32}")
    def wo_store_a(ps):
        R = A_LS
        a(f"v_lshlrev_b32 v{V_T2}, 4, v{V_LANE}")
        a(f"s_mul_i32 s{S_A}, s2, {40*1024}")
        a(f"s_mul_i32 s{S_B}, s{S_WAVE}, {10*1024}")
        a(f"s_add_u32 s{S_A}, s{S_A}, s{S_B}")
        a(f"s_add_u32 s{S_A}, s{S_A}, {WS_W+5120*ps}")
        a("s_waitcnt lgkmcnt(0)")
        for f in range(5):
            if f == 4: a(f"s_add_u32 s{S_A}, s{S_A}, 4096")
            a(f"buffer_store_dwordx4 {ar(R+4*f,4)}, v{V_T2}, s[{S_W}:{S_W+3}], s{S_A} offen offset:{1024*(f&3)} {wpol}".rstrip())
    def wo_finish_a(ps):
        wo_read_a(); wo_store_a(ps)
    def wo_issue(ps):
        D = V_S
        a(f"s_mov_b32 s{S_A}, 6554")
        for i in range(5):
            a(f"v_add_u32 v{V_T0}, {64*i}, v{V_LANE}")
            a(f"v_mul_u32_u24 v{V_T1}, s{S_A}, v{V_T0}")
            a(f"v_lshrrev_b32 v{V_T1}, 16, v{V_T1}")
            a(f"v_mul_u32_u24 v{V_T2}, 10, v{V_T1}")
            a(f"v_sub_u32 v{V_T2}, v{V_T0}, v{V_T2}")
            a(f"v_mul_u32_u24 v{V_T1}, 1280, v{V_T1}")
            a(f"v_lshl_add_u32 v{D+i}, v{V_T2}, 4, v{V_T1}")
        a(f"s_and_b32 s{S_A}, s2, 127")
        a(f"s_mul_i32 s{S_A}, s{S_A}, {32*1280}")
        a(f"s_mul_i32 s{S_B}, s{S_WAVE}, 320")
        a(f"s_add_u32 s{S_A}, s{S_A}, s{S_B}")
        a(f"s_add_u32 s{S_A}, s{S_A}, {160*ps}")
        a(f"s_mul_i32 s{S_D}, s{S_WAVE}, 7168")
        a(f"s_add_u32 s{S_D}, s{S_D}, {4*AREA}")
        for i in range(5):
            a(f"s_add_u32 m0, s{S_D}, {1024*i}")
            a("s_nop 0")
            a(f"buffer_load_dwordx4 v{D+i}, s[84:87], s{S_A} offen{' nt' if wont else ''} lds")
    def wo_finish(ps):
        if wo5:
            a(f"v_accvgpr_read_b32 v{V_T1}, a249")
        else:
            a(f"v_lshrrev_b32 v{V_T0}, 4, v{V_LANE}")
            a(f"v_bfe_u32 v{V_T1}, v{V_LANE}, 2, 2")
            a(f"v_lshl_add_u32 v{V_T1}, v{V_T0}, 3, v{V_T1}")
            a(f"v_mul_u32_u24 v{V_T1}, 160, v{V_T1}")
            a(f"v_and_b32 v{V_T2}, 3, v{V_LANE}")
            a(f"v_lshl_add_u32 v{V_T1}, v{V_T2}, 3, v{V_T1}")
            a(f"s_mul_i32 s{S_D}, s{S_WAVE}, 7168")
            a(f"s_add_u32 s{S_D}, s{S_D}, {4*AREA}")
            a(f"v_add_u32 v{V_T1}, s{S_D}, v{V_T1}")
        a(f"v_lshlrev_b32 v{V_T2}, 4, v{V_LANE}")
        a(f"s_mul_i32 s{S_A}, s2, {40*1024}")
        a(f"s_mul_i32 s{S_B}, s{S_WAVE}, {10*1024}")
        a(f"s_add_u32 s{S_A}, s{S_A}, s{S_B}")
        a(f"s_add_u32 s{S_A}, s{S_A}, {WS_W+5120*ps}")
        R = V_VF
        for t in range(5):
            for v in range(2):
                a(f"ds_read_b64_tr_b16 {vr(R+4*t+2*v,2)}, v{V_T1} offset:{v*640+t*32}")
        a("s_waitcnt lgkmcnt(0)")
        for f in range(5):
            if f == 4: a(f"s_add_u32 s{S_A}, s{S_A}, 4096")
            a(f"buffer_store_dwordx4 {vr(R+4*f,4)}, v{V_T2}, s[{S_W}:{S_W+3}], s{S_A} offen offset:{1024*(f&3)} {wpol}".rstrip())
        a("s_nop 1")

    def rt_setup():
        a(f"s_bfe_u32 s{S_A}, s2, 0x20003")
        a(f"s_lshl_b32 s{S_A}, s{S_A}, 3")
        a(f"v_lshrrev_b32 v{V_T0}, 3, v{V_LANE}")
        a(f"v_add_u32 v{V_T0}, s{S_A}, v{V_T0}")
        a(f"v_lshlrev_b32 v{V_T0}, 13, v{V_T0}")
        a(f"v_and_b32 v{V_T2}, 7, v{V_LANE}")
        a(f"v_lshl_add_u32 v{V_T0}, v{V_T2}, 5, v{V_T0}")
        a(f"v_bfe_u32 v{V_T1}, v{V_LANE}, 1, 4")
        a(f"v_min_u32 v{V_T1}, 13, v{V_T1}")
        a(f"s_and_b32 s{S_A}, s2, 7")
        a(f"s_mul_i32 s{S_A}, s{S_A}, 14")
        a(f"v_add_u32 v{V_T1}, s{S_A}, v{V_T1}")
        a(f"v_mul_u32_u24 v{V_T1}, 1280, v{V_T1}")
        a(f"v_and_b32 v{V_T2}, 1, v{V_LANE}")
        a(f"v_lshl_add_u32 v{V_T1}, v{V_T2}, 5, v{V_T1}")
        a(f"s_cmp_eq_u32 s{S_QH}, 0")
        a("s_cselect_b64 vcc, -1, 0")
        a("s_nop 1")
        a(f"v_cndmask_b32 v{V_T0}, v{V_T1}, v{V_T0}, vcc")
    def dly(us, tag):
        a("s_memrealtime s[78:79]")
        a("s_waitcnt lgkmcnt(0)")
        a(f"s_add_u32 s77, s78, {us*100}")
        a.label(f"L_dl{tag}")
        a("s_sleep 4")
        a("s_memrealtime s[78:79]")
        a("s_waitcnt lgkmcnt(0)")
        a("s_sub_u32 s79, s78, s77")
        a("s_cmp_lt_i32 s79, 0")
        a(f"s_cbranch_scc1 L_dl{tag}")
    def st(k):
        if pst:
            a("s_memrealtime s[78:79]")
            a("s_memtime s[80:81]")
            a("s_waitcnt lgkmcnt(0)")
            a("s_mov_b32 m0, s77"); a("s_nop 0"); a("v_writelane_b32 v0, s78, m0")
            a("s_add_u32 m0, s77, 30"); a("s_nop 0"); a("v_writelane_b32 v0, s80, m0")
            a("s_add_u32 s77, s77, 1")
        if stamp:
            if st0:
                n = len(a.lines)
                a(f"s_cmp_ge_u32 s{S_T}, {1 if k < 3 else 2}")
                a(f"s_cbranch_scc1 L_st_{n}")
            a(f"s_memtime s[{72+2*k}:{73+2*k}]")
            if st0: a.label(f"L_st_{n}")
    mark("ST0")
    if pst:
        a("s_memrealtime s[78:79]")
        a("s_memtime s[80:81]")
        a("s_waitcnt lgkmcnt(0)")
        a("v_mov_b32 v0, 0")
        a("v_writelane_b32 v0, s78, 0")
        a("v_writelane_b32 v0, s80, 30")
        a("v_writelane_b32 v0, s74, 61")
        a("s_mov_b32 s77, 1")
    if delay:
        a("s_bitcmp1_b32 s2, 0")
        a("s_cbranch_scc0 L_nodelay")
        a("s_memrealtime s[78:79]")
        a("s_waitcnt lgkmcnt(0)")
        a(f"s_add_u32 s77, s78, {delay*100}")
        a.label("L_dl")
        a("s_sleep 8")
        a("s_memrealtime s[78:79]")
        a("s_waitcnt lgkmcnt(0)")
        a("s_sub_u32 s79, s78, s77")
        a("s_cmp_lt_i32 s79, 0")
        a("s_cbranch_scc1 L_dl")
        a.label("L_nodelay")
    mark("ST0e")
    a.label("L_at_start")
    if trace:
        a("s_mov_b32 s77, 1")
        a(f"v_mov_b32 v{V_T3}, s64")
        a("s_memtime s[78:79]")
        a("s_waitcnt lgkmcnt(0)")
        a(f"v_cmp_eq_u32 vcc, s77, v{V_LANE}")
        a(f"v_mov_b32 v{V_T2}, s78")
        a("s_nop 1")
        a(f"v_cndmask_b32 v{V_T3}, v{V_T3}, v{V_T2}, vcc")
        a("s_add_u32 s77, s77, 1")
    a(f"s_mov_b32 s{S_T}, s{S_T0}")
    a(f"s_lshl_b32 s{S_DJ}, s{S_T0}, 5")
    a(f"s_add_u32 s{S_D}, s{S_T}, s{S_PRE}")
    qs_init(S_D, "pre")
    if roll:
        rt_setup()
        for sl in range(2):
            dma_setup(sl, "QP")
            for _ in range(8): dma_one(True)
        a(f"s_mov_b32 s{S_B}, s{S_QS}")
        for _ in range(6):
            a(f"buffer_load_dword v0, v{V_T0}, s[{S_QP}:{S_QP+3}], s{S_B} offen{' nt' if tnt else ''}")
            a(f"s_add_u32 s{S_B}, s{S_B}, s{S_QSTEP}")
        for sl in range(2, 4):
            dma_setup(sl, "QP")
            for _ in range(8): dma_one(True)
        a(f"s_waitcnt vmcnt(30) lgkmcnt(0)")
    else:
        if wtl:
            a(f"s_and_b32 s56, s2, 127")
            a(f"s_mul_i32 s56, s56, {32*1280}")
            a(f"v_mov_b32 v{V_S+14}, 0")
            if wtl == 2: a(f"v_mul_u32_u24 v{V_S+14}, 640, v{V_LANE}")
            a(f"buffer_load_dword v{V_S+15}, v{V_S+14}, s[84:87], s56 offen")
        for sl in range(4):
            if sl == 2: marks["SL2"] = len(a.lines)
            dma_setup(sl, "QP")
            for _ in range(8): dma_one(True)
            if pro1 and sl == 0:
                st(9)
                a("s_waitcnt vmcnt(0)")
                st(9)
        if wo5 or wo8:
            a(f"s_and_b32 s56, s2, 127")
            a(f"s_mul_i32 s56, s56, {32*1280}")
            a(f"s_mul_i32 s58, s{S_WAVE}, 320")
            a(f"s_add_u32 s56, s56, s58")
            a(f"s_mul_i32 s58, s{S_WAVE}, 7168")
            a(f"s_add_u32 s58, s58, {4*AREA}")
            a(f"s_mov_b32 s{S_A}, 6554")
            for i in range(5):
                a(f"v_add_u32 v{V_T0}, {64*i}, v{V_LANE}")
                a(f"v_mul_u32_u24 v{V_T1}, s{S_A}, v{V_T0}")
                a(f"v_lshrrev_b32 v{V_T1}, 16, v{V_T1}")
                a(f"v_mul_u32_u24 v{V_T2}, 10, v{V_T1}")
                a(f"v_sub_u32 v{V_T2}, v{V_T0}, v{V_T2}")
                a(f"v_mul_u32_u24 v{V_T1}, 1280, v{V_T1}")
                a(f"v_lshl_add_u32 v{V_T3}, v{V_T2}, 4, v{V_T1}")
                a(f"v_accvgpr_write_b32 a{244+i}, v{V_T3}")
            a(f"v_lshrrev_b32 v{V_T0}, 4, v{V_LANE}")
            a(f"v_bfe_u32 v{V_T1}, v{V_LANE}, 2, 2")
            a(f"v_lshl_add_u32 v{V_T1}, v{V_T0}, 3, v{V_T1}")
            a(f"v_mul_u32_u24 v{V_T1}, 160, v{V_T1}")
            a(f"v_and_b32 v{V_T2}, 3, v{V_LANE}")
            a(f"v_lshl_add_u32 v{V_T1}, v{V_T2}, 3, v{V_T1}")
            a(f"v_add_u32 v{V_T1}, s58, v{V_T1}")
            a(f"v_accvgpr_write_b32 a249, v{V_T1}")
        if tlbw:
            a(f"v_lshlrev_b32 v{V_S+13}, 12, v{V_LANE}")
            a(f"buffer_load_dword v{V_S+12}, v{V_S+13}, s[{S_LD}:{S_LD+3}], 0 offen nt")
            if tlbw > 1:
                a(f"s_mov_b32 s{S_A}, 0x80000")
                a(f"buffer_load_dword v{V_S+12}, v{V_S+13}, s[{S_LD}:{S_LD+3}], s{S_A} offen nt")
        if bulk0 and touch:
            touch_init(S_D)
            for _ in range(5): touch_one()
        if cpf and cpflate:
            for k in range(cpf // 16):
                a(f"s_mov_b32 s76, {k*16384}")
                a("buffer_load_dword v104, v105, s[72:75], s76 offen")
        if pro2:
            assert x128 and qch2 and not (trace or roll or wtl or pro1 or wo5 or wo8 or tlbw or touch or cpf or stamp or delay or rflip or defer or xf or fakex)
            L = a.lines
            sl = lambda x, y: L[marks[x]:marks[y]]
            body = L[marks["ST0e"] + 1:]
            cmpq = [f"    s_cmp_eq_u32 s{S_QH}, 0"]
            early_ = (sl("P2", "K1") + cmpq + sl("T1", "K4") + [f"    s_mov_b32 s{S_T0}, 0"] + sl("T3", "T3b") + sl("T4", "T4e")
                      + sl("Vw", "Vd") + sl("Vx", "Vxe") + sl("W0", "P2") + sl("K1", "K2") + cmpq + sl("K3", "T1") + sl("ST0", "ST0e"))
            rest = (sl("K2", "K3") + sl("K4", "T3") + sl("T3b", "T4") + sl("T4e", "Vw") + sl("Vxe", "ST0"))
            if pro2 == 2:
                b1 = L[marks["ST0e"] + 1:marks["SL2"]]; b2 = L[marks["SL2"]:]
                a.lines = L[:marks["W0"]] + early_ + b1 + rest + ["    s_branch L_pro_mid", "L_at_start:"] + b1 + ["L_pro_mid:"] + b2
            else:
                a.lines = L[:marks["W0"]] + early_ + body + rest + ["    s_branch L_pro_wait", "L_at_start:"] + body + ["L_pro_wait:"]
        a(f"s_waitcnt vmcnt({(29 if (bulk0 and touch) else 16 if qch2 else 24) + (cpf // 16 if cpflate else 0)}) lgkmcnt(0)")
    a("s_barrier")
    a.label("L_at_round")
    st(0)
    if roll: rt_setup()
    if qch2:
        for lp in range(4):
            for kk in range(2): wread2(lp, kk, 0)
        for kk in range(2):
            for qt in range(7): bread2(0, kk, qt, kk)
    else:
        for l in range(8): wread(l, 0)
        for qt in range(7): bread(0, qt, 0)
    a.lds_wait_all()
    def qp_body(role):
        sfx = role or ""
        vns = {None: (22, 17, 18, 18, 18), "W": (16, 16, 16, 16, 16), "X": (16, 22, 28, 28, 28), "T": (16, 20, 20, 63, 63)}[role]
        nts = (6, 4, 4, 2)
        qp_stage(0, first=True, chk=True, after_store=True, vn=vns[0], role=role, ntouch=nts[0], sidx=0, code=("P", 0))
        qp_stage(1, first=qch2, after_store=True, vn=vns[1], role=role, ntouch=nts[1], sidx=1, code=("P", 1))
        qp_stage(2, after_store=True, vn=vns[2], role=role, ntouch=nts[2], sidx=2, code=("P", 2))
        qp_stage(3, vn=vns[3], role=role, ntouch=nts[3], sidx=3, code=("P", 3))
        if not wo2 and not wo8 and not woff:
            a(f"s_cmp_lg_u32 s{S_WO}, 0")
            a(f"s_cbranch_scc1 L_at_nowo0{sfx}")
            a(f"s_mov_b32 s{S_WO}, 1")
            wo_issue(0)
            if roll: rt_setup()
            a.label(f"L_at_nowo0{sfx}")
        a(f"s_mov_b32 s{S_CNT}, 0")
        a.label(f"L_at_qploop{sfx}")
        a.lds_q = []
        if wo6:
            a(f"s_lshl3_add_u32 s{S_A}, s{S_WO}, s{S_CNT}")
            a(f"s_cmp_eq_u32 s{S_A}, {int(wo6[0])}")
            a("s_cbranch_scc1 L_at_wh0")
            a(f"s_cmp_eq_u32 s{S_A}, {8 + int(wo6[1])}")
            a("s_cbranch_scc1 L_at_wh1")
            a.label("L_at_whr")
            def h0():
                a(f"s_mov_b32 s{S_WO}, 1")
                for i in range(5):
                    a(f"s_add_u32 m0, s58, {1024*i}")
                    a(f"v_accvgpr_read_b32 v{V_T3}, a{244+i}")
                    a(f"buffer_load_dwordx4 v{V_T3}, s[84:87], s56 offen lds")
                a("s_branch L_at_whr")
            def h1():
                a(f"s_mov_b32 s{S_WO}, 2")
                a(f"v_accvgpr_read_b32 v{V_T1}, a249")
                a("s_add_u32 s57, s56, 160")
                for t in range(5):
                    for v in range(2):
                        a(f"ds_read_b64_tr_b16 {ar(A_LS+4*t+2*v,2)}, v{V_T1} offset:{v*640+t*32}")
                a("s_waitcnt lgkmcnt(0)")
                for i in range(5):
                    a(f"s_add_u32 m0, s58, {1024*i}")
                    a(f"v_accvgpr_read_b32 v{V_T3}, a{244+i}")
                    a(f"buffer_load_dwordx4 v{V_T3}, s[84:87], s57 offen lds")
                a("s_branch L_at_whr")
            state.setdefault("ool", []).extend(["L_at_wh0:"] + capture(h0) + ["L_at_wh1:"] + capture(h1))
        for sm in range(4): qp_stage(sm, vn=vns[4], role=role, sidx=4+sm, code=("L", sm))
        a(f"s_add_u32 s{S_CNT}, s{S_CNT}, 1")
        a(f"s_cmp_lt_u32 s{S_CNT}, 3")
        a(f"s_cbranch_scc1 L_at_qploop{sfx}")
    if not roles:
        qp_body(None)
    else:
        a(f"s_cmp_eq_u32 s{S_WAVE}, 1")
        a("s_cbranch_scc1 L_at_qpX")
        a(f"s_cmp_eq_u32 s{S_WAVE}, 3")
        a("s_cbranch_scc1 L_at_qpT")
        qp_body("W")
        a("s_branch L_at_qpjoin")
        a.label("L_at_qpX")
        qp_body("X")
        a("s_branch L_at_qpjoin")
        a.label("L_at_qpT")
        a(f"s_bfe_u32 s{S_A}, s2, 0x20003")
        a(f"s_lshl_b32 s{S_A}, s{S_A}, 3")
        a(f"v_lshrrev_b32 v{V_T0}, 3, v{V_LANE}")
        a(f"v_add_u32 v{V_T0}, s{S_A}, v{V_T0}")
        a(f"v_lshlrev_b32 v{V_T0}, 13, v{V_T0}")
        a(f"v_and_b32 v{V_T1}, 7, v{V_LANE}")
        a(f"v_lshl_add_u32 v{V_T0}, v{V_T1}, 6, v{V_T0}")
        a(f"v_min_u32 v{V_T1}, 27, v{V_LANE}")
        a(f"s_and_b32 s{S_A}, s2, 7")
        a(f"s_mul_i32 s{S_B}, s{S_A}, 28")
        a(f"v_add_u32 v{V_T1}, s{S_B}, v{V_T1}")
        a(f"v_mul_u32_u24 v{V_T1}, 1280, v{V_T1}")
        a(f"s_lshl_b32 s{S_A}, s{S_A}, 10")
        a(f"s_lshl_b32 s{S_B}, s101, 9")
        a(f"s_add_u32 s98, s{S_A}, s{S_B}")
        a(f"s_add_u32 s98, s98, {4*32*8192}")
        a(f"s_bfe_u32 s{S_A}, s2, 0x40003")
        a(f"s_mul_i32 s99, s{S_A}, {224*1280}")
        a(f"s_add_u32 s99, s99, {4*64}")
        qp_body("T")
        a.label("L_at_qpjoin")
    a(f"s_cmp_lg_u32 s{S_PRE}, 0")
    a("s_cbranch_scc1 L_at_qptailB")
    for sm in range(4): qp_stage(sm, dma="KV", last=(sm == 3), vn=(18, 17, 16, 16)[sm], sidx=16+sm, code=("T", sm))
    a("s_branch L_at_qpepi")
    a.label("L_at_qptailB")
    qs_init(S_T)
    a.lds_q = []
    for sm in range(4): qp_stage(sm, dma="QP", last=(sm == 3), vn=18, nok=True, sidx=16+sm, code=("B", sm))
    a.label("L_at_qpepi")
    if qdelay: dly(qdelay, "q")
    st(1)
    if trace:
        a("s_cmp_lg_u32 s2, 5")
        a("s_cbranch_scc1 L_tr_skip")
        a(f"s_cmp_lg_u32 s{S_T}, 0")
        a("s_cbranch_scc1 L_tr_skip")
        a(f"s_cmp_lg_u32 s{S_WAVE}, 0")
        a("s_cbranch_scc1 L_tr_skip")
        a("s_mov_b32 s80, s46"); a("s_mov_b32 s81, s47"); a("s_mov_b32 s82, 256"); a("s_mov_b32 s83, 0x20000")
        a(f"v_lshlrev_b32 v{V_T2}, 2, v{V_LANE}")
        a(f"v_add_u32 v{V_T2}, 128, v{V_T2}")
        a(f"buffer_store_dword v{V_T3}, v{V_T2}, s[80:83], 0 offen")
        a.label("L_tr_skip")
    if defer: a("s_mov_b32 s98, 0x40000000")
    a(f"v_mov_b32 v{V_T2}, s{S_CS}")
    a(f"v_mov_b32 v{V_T3}, s{S_CS}")
    a("s_nop 6")
    TMP = V_S
    for T in range(4):
        if T < 2:
            base = lambda e, qt: V_OK + 28 * (2 * T + e) + 4 * qt
        else:
            base = lambda e, qt: V_OK + 28 * (2 * (T - 2) + e) + 4 * qt
            for e in range(2):
                for qt in range(7):
                    for r in range(4):
                        a(f"v_accvgpr_read_b32 v{base(e,qt)+r}, a{A_OS+28*(2*(T-2)+e)+4*qt+r}")
        for e in range(2):
            for qt in range(7):
                o = base(e, qt)
                for h in range(2):
                    a(f"v_pk_mul_f32 {vr(o+2*h,2)}, {vr(o+2*h,2)}, {vr(V_T2,2)}")
        pk = lambda qt: TMP + 28 * (T & 1) + 4 * qt
        for qt in range(7):
            oe = base(0, qt); oo = base(1, qt); p = pk(qt)
            a(f"v_cvt_pk_bf16_f32 v{p}, v{oe}, v{oe+1}")
            a(f"v_cvt_pk_bf16_f32 v{p+1}, v{oe+2}, v{oe+3}")
            a(f"v_cvt_pk_bf16_f32 v{p+2}, v{oo}, v{oo+1}")
            a(f"v_cvt_pk_bf16_f32 v{p+3}, v{oo+2}, v{oo+3}")
        a("s_nop 1")
        for qt in range(7):
            p = pk(qt)
            a(f"v_permlane16_swap_b32 v{p}, v{p+2}")
            a(f"v_permlane16_swap_b32 v{p+1}, v{p+3}")
        for qt in range(7):
            for r in range(4):
                a(f"v_accvgpr_write_b32 a{A_Q+16*qt+4*T+r}, v{pk(qt)+r}")
    a(f"s_cmp_eq_u32 s{S_PRE}, 0")
    a("s_cbranch_scc1 L_at_nostash")
    a(f"s_mov_b32 s{S_PRE}, 0")
    qstash_off()
    for i in range(7):
        for s_ in range(4):
            a(f"buffer_store_dwordx4 {ar(A_Q+16*i+4*s_,4)}, v{V_T2}, s[{S_W}:{S_W+3}], s{S_C} offen offset:{1024*s_} {qpol}".rstrip())
        if i < 6: a(f"s_add_u32 s{S_C}, s{S_C}, 4096")
    a(f"s_mov_b32 s{S_AS}, 3")
    a("s_branch L_at_round")
    a.label("L_at_nostash")
    a(f"s_cmp_lg_u32 s{S_MP}, 0")
    a("s_cbranch_scc1 L_at_maxpass")
    a.label("L_at_pre")
    if wo6 or wo8 or woff:
        pass
    elif wo2:
        assert inv
        a(f"s_cmp_lg_u32 s{S_WO}, 0")
        a("s_cbranch_scc1 L_at_nowo1a")
        a(f"s_mov_b32 s{S_WO}, {2 if wo5 else 1}")
        a(f"s_mov_b32 s{S_AS}, 0x103")
        if wo5:
            a(f"v_accvgpr_read_b32 v{V_T1}, a249")
            a("s_add_u32 s57, s56, 160")
            a("s_waitcnt vmcnt(24)")
            for t in range(5):
                for v in range(2):
                    a(f"ds_read_b64_tr_b16 {ar(A_LS+4*t+2*v,2)}, v{V_T1} offset:{v*640+t*32}")
            a("s_waitcnt lgkmcnt(0)")
            for i in range(5):
                a(f"s_add_u32 m0, s58, {1024*i}")
                a(f"v_accvgpr_read_b32 v{V_T3}, a{244+i}")
                a(f"buffer_load_dwordx4 v{V_T3}, s[84:87], s57 offen lds")
        else:
            wo_issue(0)
        if not (wo3 or wo4): a("s_branch L_at_nowo1")
        a.label("L_at_nowo1a")
        if not (wo3 or wo4):
            a(f"s_cmp_lg_u32 s{S_WO}, 2")
            a("s_cbranch_scc1 L_at_nowo1")
            a(f"s_cmp_lg_u32 s{S_TY}, 0")
            a("s_cbranch_scc1 L_at_nowo1")
            a(f"s_mov_b32 s{S_WO}, 3")
            a(f"s_mov_b32 s{S_AS}, 0x103")
            wo_finish(1)
    else:
        a(f"s_cmp_lg_u32 s{S_WO}, 1")
        a("s_cbranch_scc1 L_at_nowo1")
        a(f"s_mov_b32 s{S_WO}, 2")
        wo_finish(0)
        wo_issue(1)
    a.label("L_at_nowo1")
    st(2)
    a.lds_q = ["K"]
    state["n"] = 0
    z = []
    for l in range(8):
        for r in range(4):
            z.append(f"v_mov_b32 v{V_OK+28*l+24+r}, 0" if l < 4 else f"v_accvgpr_write_b32 a{A_OS+28*(l-4)+24+r}, 0")
    if ones: z += [f"v_accvgpr_write_b32 a{A_LS+24+r}, 0" for r in range(4)]
    emit(qk_items(0, 0, True, None), z[:16])
    for o in z[16:]: a(o)
    step(0, first=True, dyn=True)
    a(f"s_mov_b32 s{S_CNT}, 0")
    if align:
        a.lines.append(".p2align 6")
        if align == 2: a("s_nop 0")
    a.label("L_at_loop")
    q0 = list(a.lds_q)
    state["inat"] = True
    for jm in (1, 2, 3, 0): step(jm, dyn=(jm in (1, 2)))
    state["inat"] = False
    assert q0 == a.lds_q, (q0, a.lds_q)
    if pstl:
        a("s_memrealtime s[78:79]")
        a("s_memtime s[80:81]")
        a("s_waitcnt lgkmcnt(0)")
        a("s_mov_b32 s76, m0")
        a("s_mov_b32 m0, s77"); a("s_nop 0"); a("v_writelane_b32 v0, s78, m0")
        a("s_add_u32 m0, s77, 30"); a("s_nop 0"); a("v_writelane_b32 v0, s80, m0")
        a("s_add_u32 s77, s77, 1")
        a("s_mov_b32 m0, s76")
    a(f"s_add_u32 s{S_CNT}, s{S_CNT}, 1")
    if wo3:
        assert lp7 and not ones
        a(f"s_lshl3_add_u32 s{S_A}, s{S_WO}, s{S_CNT}")
        a(f"s_cmp_eq_u32 s{S_A}, {8 + wo3}")
        a("s_cbranch_scc1 L_at_wof0")
        a.label("L_at_wof0r")
    a(f"s_cmp_lt_u32 s{S_CNT}, {7 if lp7 else 6}")
    a("s_cbranch_scc1 L_at_loop")
    if wo4 and not wo5:
        assert lp7 and not ones
        a(f"s_cmp_lg_u32 s{S_WO}, 1")
        a("s_cbranch_scc1 L_at_nowoi1")
        a(f"s_mov_b32 s{S_WO}, 2")
        a(f"s_mov_b32 s{S_AS}, 0x102")
        wo_read_a()
        a("s_waitcnt lgkmcnt(0)")
        wo_issue_a(1)
        a.label("L_at_nowoi1")
    if wo3:
        a(f"s_cmp_lg_u32 s{S_WO}, 2")
        a("s_cbranch_scc1 L_at_nowoi1")
        a(f"s_mov_b32 s{S_WO}, 3")
        a(f"s_mov_b32 s{S_AS}, 0x102")
        wo_issue_a(1)
        a.label("L_at_nowoi1")
        ls = capture(lambda: (wo_finish_a(0), a(f"s_mov_b32 s{S_WO}, 2"), a(f"s_mov_b32 s{S_AS}, 0x102"), a("s_branch L_at_wof0r")))
        state.setdefault("ool", []).extend(["L_at_wof0:"] + ls)
    a(f"s_add_u32 s{S_T}, s{S_T}, 1")
    touch_init(S_T)
    assert not (lp7 and early)
    if not lp7:
        step(1, nt_=3); step(2, nt_=2); step(3, tr_=True)
    if strace: a("s_memtime s[62:63]")
    qs_init(S_T)
    if not early and not lp7: step(0)
    def wtouch():
        a(f"s_and_b32 s{S_A}, s2, 127")
        a(f"s_mul_i32 s{S_A}, s{S_A}, {32*1280}")
        a(f"s_mul_i32 s{S_B}, s{S_WAVE}, {80*128}")
        a(f"s_add_u32 s{S_A}, s{S_A}, s{S_B}")
        a(f"v_lshlrev_b32 v{V_T2}, 7, v{V_LANE}")
        a(f"v_and_b32 v{V_T3}, 15, v{V_LANE}")
        a(f"v_lshlrev_b32 v{V_T3}, 7, v{V_T3}")
        a(f"buffer_load_dword a250, v{V_T2}, s[84:87], s{S_A} offen")
        a(f"s_add_u32 s{S_A}, s{S_A}, {64*128}")
        a(f"buffer_load_dword a251, v{V_T3}, s[84:87], s{S_A} offen")
        if cpo:
            assert cpf2 and V_T2 % 2 == 0 and V_T3 == V_T2 + 1
            a(f"s_lshl_b32 s{S_A}, s{S_WAVE}, 13")
            a(f"v_lshlrev_b32 v{V_T2}, 7, v{V_LANE}")
            a(f"v_add_u32 v{V_T2}, s{S_A}, v{V_T2}")
            a(f"v_add_u32 v{V_T2}, op_kernel - L_pc0, v{V_T2}")
            a(f"v_min_u32 v{V_T2}, L_code_end - L_pc0 - 4, v{V_T2}")
            a(f"v_mov_b32 v{V_T3}, s73")
            a(f"v_add_co_u32 v{V_T2}, vcc, s72, v{V_T2}")
            a(f"v_addc_co_u32 v{V_T3}, vcc, 0, v{V_T3}, vcc")
            a(f"global_load_dword a250, v[{V_T2}:{V_T3}], off")
        if wtch in (2, 3):
            a(f"s_mov_b32 s{S_A}, 0x40000000")
            for _ in range(3): a(f"buffer_load_dword a251, v{V_T3}, s[84:87], s{S_A} offen")
            a(f"s_mov_b32 s{S_AS}, {0x103 if wtch == 2 else 0x102}")
    if wtch in (1, 2, 3):
        a(f"s_cmp_eq_u32 s{S_T}, 2")
        a("s_cbranch_scc1 L_at_wt0")
        a.label("L_at_wt0r")
        state.setdefault("ool", []).extend(["L_at_wt0:"] + capture(lambda: (wtouch(), a("s_branch L_at_wt0r"))))
    if wo8:
        assert lp7 and inv
        a(f"s_lshl3_add_u32 s{S_A}, s{S_T}, s{S_WO}")
        a(f"s_cmp_eq_u32 s{S_A}, 16")
        a("s_cbranch_scc1 L_at_w8h0")
        a.label("L_at_w8h0r")
        def h0body():
            a(f"s_mov_b32 s{S_WO}, 1")
            a(f"s_mov_b32 s{S_AS}, 0x102")
            for i in range(5):
                a(f"s_add_u32 m0, s58, {1024*i}")
                a(f"v_accvgpr_read_b32 v{V_T3}, a{244+i}")
                if not wo8 & 16: a(f"buffer_load_dwordx4 v{V_T3}, s[84:87], s56 offen lds")
            a("s_branch L_at_w8h0r")
        state.setdefault("ool", []).extend(["L_at_w8h0:"] + capture(h0body))
    if eep:
        assert not (rflip or defer or ones or early or wo2 or wo8 or touch or kvt2 or stpol0 is not None) and inv and lp7 and wtch in (0, 1)
        a(f"s_mul_i32 s{S_D}, s{S_T}, {2*PAIRB}")
        a(f"s_add_u32 s{S_D}, s{S_D}, s{S_OOFF}")
        a(f"s_sub_u32 s{S_D}, s{S_D}, {2*PAIRB}")
    a(f"s_cmp_lg_u32 s{S_TY}, 0")
    a("s_cbranch_scc1 L_at_atailB")
    n0 = state["n"]; q0 = list(a.lds_q); c0 = state.get("carry")
    if early: step(0, dma="QP")
    tdyn = bool((wo3 or wo4) and not wo5) or bool(wo8) or wtch in (2, 3)
    def h1(tag):
        if wtch == 3:
            a(f"s_cmp_eq_u32 s{S_T}, 2")
            a(f"s_cselect_b32 s{S_AS}, 0x301, s{S_AS}")
        if not wo8: return
        a(f"s_cmp_eq_u32 s{S_WO}, 1")
        a(f"s_cbranch_scc1 L_at_w8h1{tag}")
        a.label(f"L_at_w8h1r{tag}")
        def body():
            a(f"s_mov_b32 s{S_WO}, 2")
            a(f"s_mov_b32 s{S_AS}, 0x101")
            a(f"v_accvgpr_read_b32 v{V_T1}, a249")
            a("s_add_u32 s57, s56, 160")
            a(f"v_lshlrev_b32 v{V_T2}, 4, v{V_LANE}")
            a(f"s_mul_i32 s{S_A}, s2, {40*1024}")
            a(f"s_mul_i32 s{S_B}, s{S_WAVE}, {10*1024}")
            a(f"s_add_u32 s{S_A}, s{S_A}, s{S_B}")
            a(f"s_add_u32 s{S_A}, s{S_A}, {WS_W}")
            if not wo8 & 8: a("s_waitcnt vmcnt(16)")
            for t in range(5):
                for v in range(2):
                    a(f"ds_read_b64_tr_b16 {ar(A_LS+4*t+2*v,2)}, v{V_T1} offset:{v*640+t*32}")
            a("s_waitcnt lgkmcnt(0)")
            for i in range(5):
                a(f"s_add_u32 m0, s58, {1024*i}")
                a(f"v_accvgpr_read_b32 v{V_T3}, a{244+i}")
                if not wo8 & 4: a(f"buffer_load_dwordx4 v{V_T3}, s[84:87], s57 offen lds")
            for f in range(5):
                if f == 4: a(f"s_add_u32 s{S_A}, s{S_A}, 4096")
                if not wo8 & 2: a(f"buffer_store_dwordx4 {ar(A_LS+4*f,4)}, v{V_T2}, s[{S_W}:{S_W+3}], s{S_A} offen offset:{1024*(f&3)} {wpol}".rstrip())
            a(f"s_branch L_at_w8h1r{tag}")
        state.setdefault("ool", []).extend([f"L_at_w8h1{tag}:"] + capture(body))
    ixA0 = len(a.lines)
    step(1, dma="QP", dyn=tdyn); step(2, dma="QP", dyn=tdyn); h1("A"); step(3, dma="QP", last=True, dyn=bool(wo8) or wtch in (2, 3))
    ixA1 = len(a.lines)
    a("s_branch L_at_aepi")
    a.label("L_at_atailB")
    state["n"] = n0; a.lds_q = q0; state["carry"] = c0
    if early: step(0)
    ixB0 = len(a.lines)
    step(1, dyn=tdyn); step(2, dyn=tdyn); h1("B"); step(3, last=True, dyn=bool(wo8) or wtch in (2, 3))
    ixB1 = len(a.lines)
    a.label("L_at_aepi")
    if adelay: dly(adelay, "a")
    a.lds_q = ["V"]
    st(3)
    E = V_S
    red = [f"v_add_f32 v{V_L+2*i}, v{V_L+2*i}, v{V_L+2*i+1}" for i in range(7)]
    red += [f"v_mov_b32 v{E+i}, v{V_L+2*i}" for i in range(7)]
    red += [f"v_permlane16_swap_b32 v{V_L+2*i}, v{E+i}" for i in range(7)]
    red += [f"v_add_f32 v{V_L+2*i}, v{V_L+2*i}, v{E+i}" for i in range(7)]
    red += [f"v_mov_b32 v{E+i}, v{V_L+2*i}" for i in range(7)]
    red += [f"v_permlane32_swap_b32 v{V_L+2*i}, v{E+i}" for i in range(7)]
    red += [f"v_add_f32 v{V_L+2*i}, v{V_L+2*i}, v{E+i}" for i in range(7)]
    a("s_nop 1")
    ixP0 = len(a.lines)
    if eep:
        emit(pv_items(6, 1, False, None), ep_merge(ep_red(6), ep_red(5) + ep_tile(5, eep == 2)))
    elif ones:
        emit(pv_items(6, 1, False, None), [])
        a("s_nop 7")
        for i in range(7): a(f"v_accvgpr_read_b32 v{V_L+2*i}, a{A_LS+4*i}")
    else:
        emit(pv_items(6, 1, False, None), red)
    if not eep:
        for i in range(7): a(f"v_rcp_f32 v{V_CI+4*i}, v{V_L+2*i}")
    a(f"v_add_f32 v{E+2}, v{V_L}, v{V_L+2}")
    a(f"v_add_f32 v{E+3}, v{V_L+4}, v{V_L+6}")
    a(f"v_add_f32 v{E+4}, v{V_L+8}, v{V_L+10}")
    a(f"v_add_f32 v{E+2}, v{E+2}, v{V_L+12}")
    a(f"v_add_f32 v{E+3}, v{E+3}, v{E+4}")
    a(f"v_add_f32 v{E+2}, v{E+2}, v{E+3}")
    a(f"v_cmp_nge_f32 vcc, s{S_THR}, v{E+2}")
    for i in range(7): a(f"v_mov_b32 v{V_L+2*i}, 0xff800000")
    a("s_cmp_eq_u64 vcc, 0")
    a("s_cbranch_scc1 L_at_noflag")
    if nofb: a("s_branch L_at_noflag")
    a(f"s_lshl_b32 s{S_B}, s{S_T}, 2")
    a(f"s_add_u32 s{S_B}, s{S_B}, {LDS_FLAG-4}")
    a(f"v_mov_b32 v{E+2}, s{S_B}")
    a(f"v_mov_b32 v{E+3}, 1")
    a(f"ds_write_b32 v{E+2}, v{E+3}")
    a.label("L_at_noflag")
    if eep:
        for o in ep_tile(6, True): a(o)
    elif rflip:
        a(f"s_sub_u32 s{S_D}, s{S_T}, 1")
        a(f"s_mul_i32 s{S_D}, s{S_D}, s99")
        a(f"s_add_u32 s{S_D}, s{S_D}, s{S_OOFF}")
    else:
        a(f"s_mul_i32 s{S_D}, s{S_T}, {2*PAIRB}")
        a(f"s_add_u32 s{S_D}, s{S_D}, s{S_OOFF}")
        a(f"s_sub_u32 s{S_D}, s{S_D}, {2*PAIRB}")
    if defer:
        a(f"s_cmp_lt_u32 s{S_T}, 2")
        a(f"s_cselect_b32 s99, 1, 0")
        a(f"s_cmp_eq_u32 s{S_TY}, 0")
        a(f"s_cselect_b32 s99, s99, 0")
        a(f"s_cmp_lg_u32 s99, 0")
        a(f"s_cselect_b32 s98, s{S_D}, s98")
    for T in range(0 if eep else 4):
        if T < 2:
            base = lambda e, qt: V_OK + 28 * (2 * T + e) + 4 * qt
        else:
            base = lambda e, qt: V_OK + 28 * (2 * (T - 2) + e) + 4 * qt
            for e in range(2):
                for qt in range(7):
                    for r in range(4):
                        a(f"v_accvgpr_read_b32 v{base(e,qt)+r}, a{A_OS+28*(2*(T-2)+e)+4*qt+r}")
        for e in range(2):
            for qt in range(7):
                o = base(e, qt)
                for h in range(2):
                    a(f"v_pk_mul_f32 {vr(o+2*h,2)}, {vr(o+2*h,2)}, {vr(V_CI+4*qt,2)} op_sel_hi:[1,0]")
        pk = lambda qt: V_S + 28 * (T & 1) + 4 * qt
        for qt in range(7):
            oe = base(0, qt); oo = base(1, qt); p = pk(qt)
            a(f"v_cvt_pk_bf16_f32 v{p}, v{oe}, v{oe+1}")
            a(f"v_cvt_pk_bf16_f32 v{p+1}, v{oe+2}, v{oe+3}")
            a(f"v_cvt_pk_bf16_f32 v{p+2}, v{oo}, v{oo+1}")
            a(f"v_cvt_pk_bf16_f32 v{p+3}, v{oo+2}, v{oo+3}")
        if not operm:
            a("s_nop 1")
            for qt in range(7):
                p = pk(qt)
                a(f"v_permlane16_swap_b32 v{p}, v{p+2}")
                a(f"v_permlane16_swap_b32 v{p+1}, v{p+3}")
        if defer:
            a(f"s_cmp_lg_u32 s99, 0")
            a(f"s_cbranch_scc1 L_at_dfr{T}")
        a(f"s_mov_b32 s{S_A}, s{S_D}")
        if stpol0 is not None:
            a(f"s_cmp_ge_u32 s{S_T}, 2")
            a(f"s_cbranch_scc1 L_at_sp1_{T}")
            for qt in range(7):
                a(f"buffer_store_dwordx4 {vr(pk(qt),4)}, v{V_XA}, s[{S_W}:{S_W+3}], s{S_A} offen offset:{1024*T} {stpol0}".rstrip())
                if qt < 6: a(f"s_add_u32 s{S_A}, s{S_A}, 4096")
            a(f"s_branch L_at_sp2_{T}")
            a.label(f"L_at_sp1_{T}")
        for qt in range(7):
            if not nost: a(f"buffer_store_dwordx4 {vr(pk(qt),4)}, v{V_XA}, s[{S_W}:{S_W+3}], s{S_A} offen offset:{1024*T} {stpol}".rstrip())
            if dupst:
                a(f"s_sub_u32 s{S_B}, s{S_A}, {WS_O - 30000000}")
                a(f"buffer_store_dwordx4 {vr(pk(qt),4)}, v{V_XA}, s[72:75], s{S_B} offen offset:{1024*T}")
            if qt < 6: a(f"s_add_u32 s{S_A}, s{S_A}, 4096")
        if stpol0 is not None: a.label(f"L_at_sp2_{T}")
        if defer:
            a(f"s_branch L_at_dfj{T}")
            a.label(f"L_at_dfr{T}")
            for qt in range(7):
                for r in range(4):
                    a(f"v_accvgpr_write_b32 a{A_Q+16*qt+4*T+r}, v{pk(qt)+r}")
            a.label(f"L_at_dfj{T}")
    a("s_nop 1")
    if wo8:
        a(f"s_cmp_lg_u32 s{S_WO}, 2")
        a("s_cbranch_scc1 L_at_nowo2")
        a(f"s_mov_b32 s{S_WO}, 4")
        a(f"v_accvgpr_read_b32 v{V_T1}, a249")
        a(f"v_lshlrev_b32 v{V_T2}, 4, v{V_LANE}")
        a(f"s_mul_i32 s{S_A}, s2, {40*1024}")
        a(f"s_mul_i32 s{S_B}, s{S_WAVE}, {10*1024}")
        a(f"s_add_u32 s{S_A}, s{S_A}, s{S_B}")
        a(f"s_add_u32 s{S_A}, s{S_A}, {WS_W+5120}")
        a("s_waitcnt vmcnt(49)")
        R = V_VF
        for t in range(5):
            for v in range(2):
                a(f"ds_read_b64_tr_b16 {vr(R+4*t+2*v,2)}, v{V_T1} offset:{v*640+t*32}")
        a("s_waitcnt lgkmcnt(0)")
        for f in range(5):
            if f == 4: a(f"s_add_u32 s{S_A}, s{S_A}, 4096")
            a(f"buffer_store_dwordx4 {vr(R+4*f,4)}, v{V_T2}, s[{S_W}:{S_W+3}], s{S_A} offen offset:{1024*(f&3)} {wpol}".rstrip())
        a("s_nop 1")
    elif wo4:
        a(f"s_mov_b32 s{S_AS}, 3")
        a(f"s_cmp_lg_u32 s{S_WO}, 2")
        a("s_cbranch_scc1 L_at_nowo2")
        a(f"s_mov_b32 s{S_WO}, 4")
        a(f"s_mov_b32 s{S_AS}, 0x303")
        if wo5:
            a(f"v_accvgpr_read_b32 v{V_T1}, a249")
            a(f"v_lshlrev_b32 v{V_T2}, 4, v{V_LANE}")
            a(f"s_mul_i32 s{S_A}, s2, {40*1024}")
            a(f"s_mul_i32 s{S_B}, s{S_WAVE}, {10*1024}")
            a(f"s_add_u32 s{S_A}, s{S_A}, s{S_B}")
            a(f"s_add_u32 s{S_A}, s{S_A}, {WS_W}")
            R = V_VF
            for t in range(5):
                for v in range(2):
                    a(f"ds_read_b64_tr_b16 {vr(R+4*t+2*v,2)}, v{V_T1} offset:{v*640+t*32}")
            for f in range(5):
                if f == 4: a(f"s_add_u32 s{S_A}, s{S_A}, 4096")
                a(f"buffer_store_dwordx4 {ar(A_LS+4*f,4)}, v{V_T2}, s[{S_W}:{S_W+3}], s{S_A} offen offset:{1024*(f&3)} {wpol}".rstrip())
            a(f"s_add_u32 s{S_A}, s{S_A}, 1024")
            a("s_waitcnt lgkmcnt(0)")
            for f in range(5):
                if f == 4: a(f"s_add_u32 s{S_A}, s{S_A}, 4096")
                a(f"buffer_store_dwordx4 {vr(R+4*f,4)}, v{V_T2}, s[{S_W}:{S_W+3}], s{S_A} offen offset:{1024*(f&3)} {wpol}".rstrip())
            a("s_nop 1")
        else:
            wo_store_a(0)
            wo_finish(1)
    elif wo2 and not wo3:
        a(f"s_cmp_lg_u32 s{S_WO}, 1")
        a("s_cbranch_scc1 L_at_nowo2a")
        a(f"s_mov_b32 s{S_WO}, 2")
        wo_finish(0)
        wo_issue(1)
        a("s_branch L_at_nowo2")
        a.label("L_at_nowo2a")
    if not wo4 and not wo8 and not woff:
        a(f"s_cmp_lg_u32 s{S_WO}, {3 if wo3 else 2}")
        a("s_cbranch_scc1 L_at_nowo2")
        a(f"s_mov_b32 s{S_WO}, {4 if wo3 else 3}")
        wo_finish(1)
    a.label("L_at_nowo2")
    if not wo4: a(f"s_mov_b32 s{S_AS}, 3")
    if defer:
        a("s_cmp_lg_u32 s99, 0")
        a(f"s_cselect_b32 s{S_AS}, 0, 3")
    st(4)
    a.lds_q = []
    ixP1 = len(a.lines)
    a(f"s_cmp_ge_u32 s{S_T}, 2")
    a("s_cbranch_scc1 L_at_fin")
    a(f"s_cmp_eq_u32 s{S_TY}, 0")
    if eep: a(f"s_mov_b32 s{S_AS}, 0x103")
    a("s_cbranch_scc1 L_at_round")
    if eep:
        a(f"s_mov_b32 s{S_AS}, 0x203")
        a("s_waitcnt vmcnt(@NBQ@)")
    else:
        a(f"s_waitcnt vmcnt({56 if dupst else (33 if wo3 else 38 if wo2 else 28)})")
    a("s_branch L_at_pre")
    if eep:
        def vm(ls):
            out = []
            for k_, l_ in enumerate(ls):
                t_ = l_.strip()
                if t_.startswith("buffer_") or t_.startswith("global_"):
                    out.append("D" if t_.endswith("lds") else "S" if t_.startswith("buffer_store") else "R")
                elif "@LB" in t_: out.append("|")
            return out
        post = vm(a.lines[ixP0:ixP1])
        res = {}
        for nm, i0, i1 in (("A", ixA0, ixA1), ("B", ixB0, ixB1)):
            sq = vm(a.lines[i0:i1]) + post
            bar = sq.index("|"); sq2 = [x for x in sq if x != "|"]
            dpos = [k_ for k_, x in enumerate(sq2) if x == "D"]
            assert len(dpos) == 32 and (nost or sq2.count("S") == 28), (dpos, sq2)
            res["LB" + nm] = bar - (dpos[7] + 1)
            after = lambda k_: len(sq2) - (k_ + 1)
            if nm == "A":
                assert nost or after(dpos[15]) == 44
                res["NA1"] = after(dpos[23]) + 8; res["NA2"] = after(dpos[31]) + 16
            else:
                rpos = [k_ for k_, x in enumerate(sq2) if x == "R"]
                assert len(rpos) == 28 and rpos[-1] > dpos[23]
                res["NBQ"] = after(rpos[-1]); res["NB2"] = after(dpos[31]) + 16
                assert res["NBQ"] <= 44 and res["NBQ"] + 8 <= 44 + 8
            print("eep seq", nm, "".join(sq), file=sys.stderr)
        print("eep counts", res, file=sys.stderr)
        assert all(0 <= v <= 63 for v in res.values())
        state["eepres"] = res
    a.label("L_at_fin")
    if wb == 1:
        a(f"s_cmp_lg_u32 s{S_WAVE}, 0")
        a("s_cbranch_scc1 L_at_nowb")
        a("buffer_wbl2 sc1")
        a.label("L_at_nowb")
    a("s_waitcnt lgkmcnt(0)")
    a("s_barrier")
    flagcheck()
    if pst:
        a("s_memrealtime s[78:79]")
        a("s_memtime s[80:81]")
        a("s_waitcnt lgkmcnt(0)")
        a("s_mov_b32 m0, s77"); a("s_nop 0"); a("v_writelane_b32 v0, s78, m0")
        a("s_add_u32 m0, s77, 30"); a("s_nop 0"); a("v_writelane_b32 v0, s80, m0")
        a("s_getreg_b32 s62, hwreg(HW_REG_XCC_ID)")
        a("v_writelane_b32 v0, s62, 63")
        a(f"v_writelane_b32 v0, s{S_TY}, 62")
        a(f"s_cmp_lg_u32 s{S_WAVE}, 0")
        a("s_cbranch_scc1 L_at_end")
        a("s_lshl_b32 s62, s2, 8"); a("s_add_u32 s62, s62, 50000000")
        a(f"v_lshlrev_b32 v2, 2, v{V_LANE}")
        a(f"buffer_store_dword v0, v2, s[{S_W}:{S_W+3}], s62 offen")
    if stamp:
        a("s_memtime s[56:57]")
        a("s_memrealtime s[58:59]")
        a("s_waitcnt lgkmcnt(0)")
        if allst:
            a("v_mov_b32 v2, s66"); a("v_mov_b32 v3, s58")
            a("s_sub_u32 s62, s56, s64"); a("v_mov_b32 v4, s62")
            a("s_getreg_b32 s62, hwreg(HW_REG_XCC_ID)"); a("v_mov_b32 v5, s62")
            a("s_lshl_b32 s62, s2, 4"); a("s_add_u32 s62, s62, 50000000"); a("v_mov_b32 v6, s62")
            a(f"buffer_store_dwordx4 v[2:5], v6, s[{S_W}:{S_W+3}], 0 offen")
        a(f"s_cmp_lg_u32 s2, {stwg}")
        a("s_cbranch_scc1 L_at_end")
        a("s_sub_u32 s56, s56, s64")
        a("s_sub_u32 s58, s58, s66")
        a("s_mov_b32 s84, s46")
        a("s_mov_b32 s85, s47")
        a("s_mov_b32 s86, 256")
        a("s_mov_b32 s87, 0x20000")
        a("v_mov_b32 v2, s56")
        a("v_mov_b32 v3, s58")
        a(f"s_lshl_b32 s62, s{S_WAVE}, 3")
        a("v_mov_b32 v4, s62")
        a("buffer_store_dwordx2 v[2:3], v4, s[84:87], 0 offen")
        if strace:
            pr = [36, 38, 40, 42, 56, 58, 60, 62]
            for i in range(7):
                a(f"s_sub_u32 s78, s{pr[i+1]}, s{pr[i]}")
                a("v_mov_b32 v2, s78")
                a(f"v_mov_b32 v4, {160+4*i}")
                a("buffer_store_dword v2, v4, s[84:87], 0 offen")
        a("s_sub_u32 s62, s72, s64")
        a("v_mov_b32 v2, s62")
        a(f"v_mov_b32 v4, {DBO+4*5}")
        a("buffer_store_dword v2, v4, s[84:87], 0 offen")
        for k in range(1, 5):
            a(f"s_sub_u32 s62, s{72+2*k}, s{70+2*k}")
            a("v_mov_b32 v2, s62")
            a(f"v_mov_b32 v4, {DBO+4*k}")
            a("buffer_store_dword v2, v4, s[84:87], 0 offen")
    a("s_branch L_at_end")
    for ln in state.get("ool", []): a.lines.append(ln)

    a.label("L_at_fallback")
    a(f"s_sub_u32 s{S_T0}, s{S_T}, 1")
    a(f"s_mov_b32 s{S_NOFB}, s{S_T0}")
    a(f"s_mov_b32 s{S_MP}, 1")
    a(f"s_mov_b32 s{S_TY}, 0")
    a(f"s_mov_b32 s{S_PRE}, 0")
    a(f"s_mov_b32 s{S_AS}, 0")
    if defer: a("s_mov_b32 s98, 0x40000000")
    for i in range(7): a(f"v_mov_b32 v{V_L+2*i}, 0xff800000")
    a("s_waitcnt vmcnt(0) lgkmcnt(0)")
    a("s_barrier")
    a("s_branch L_at_start")
    a.label("L_at_maxpass")
    a(f"s_mov_b32 s{S_MP}, 0")
    a("s_waitcnt lgkmcnt(0)")
    a(f"v_and_b32 v{V_T0}, 15, v{V_LANE}")
    a(f"v_lshlrev_b32 v{V_T0}, 8, v{V_T0}")
    a(f"v_bfe_u32 v{V_T1}, v{V_LANE}, 4, 1")
    a(f"v_lshl_add_u32 v{V_T0}, v{V_T1}, 5, v{V_T0}")
    a(f"v_bfe_u32 v{V_T1}, v{V_LANE}, 5, 1")
    a(f"v_lshl_add_u32 v{V_T2}, v{V_T1}, 4, v{V_T0}")
    a(f"v_add_u32 v{V_T3}, 4096, v{V_T2}")
    a(f"s_lshl_b32 s{S_B}, s{S_T}, 19")
    if rflip: a(f"s_xor_b32 s{S_B}, s{S_B}, s101")
    a(f"s_mov_b32 s{S_CNT}, 0")
    a.label("L_at_mp")
    for f in range(8):
        a(f"buffer_load_dwordx4 {vr(V_VF+4*f,4)}, v{V_T2 + (f>>2)}, s[{S_K}:{S_K+3}], s{S_B} offen offset:{64*(f&3)}")
    a("s_waitcnt vmcnt(0)")
    for i in range(7):
        for f in range(8):
            kt, s = f >> 2, f & 3
            D = vr(V_S + 4 * kt, 4)
            a(f"{MFMA} {D}, {vr(V_VF+4*f,4)}, {ar(A_Q+16*i+4*s,4)}, {'0' if s == 0 else D}")
        a("s_nop 9")
        for r in range(0, 8, 2):
            a(f"v_max3_f32 v{V_L+2*i}, v{V_S+r}, v{V_S+r+1}, v{V_L+2*i}")
        a("s_nop 3")
    a(f"s_add_u32 s{S_B}, s{S_B}, 8192")
    a(f"s_add_u32 s{S_CNT}, s{S_CNT}, 1")
    a(f"s_cmp_lt_u32 s{S_CNT}, 32")
    a("s_cbranch_scc1 L_at_mp")
    a("s_branch L_at_pre")
    a.label("L_at_end")
    a("s_endpgm")
    txt = a.text()
    if eep:
        for k_, v_ in state["eepres"].items(): txt = txt.replace(f"@{k_}@", str(v_))
        assert "@" not in txt
    return txt

if __name__ == "__main__":
    import sys
    name = "fused_kernel"
    opts = dict(x.split("=") for x in sys.argv[2:])
    opts = {k: bool(int(v)) for k, v in opts.items()}
    body = gen_fused(name, **opts)
    out = f"; @launch kernel={name} grid=(256,1,1) block=(256,1,1) lds={LDS_BYTES}\n"
    out += '.amdgcn_target "amdgcn-amd-amdhsa--gfx950"\n.text\n' + kernel_header(name) + body
    out += '.section .rodata,"a"\n.p2align 6\n' + kernel_desc(name, 512, accum=256)
    open(sys.argv[1], "w").write(out)
```

```python
from gen_common import *
NQB = 3584 * 4096 * 2
WS_O = 2 * NQB
WS_BYTES = 4 * NQB + 2 * 4096 * 640 * 2
PAIRB = 224 * 128 * 2
LDS_BYTES = 163840
WST = 40960
BUF = 8192
NQ, NN = 9, 8
MFMA = "v_mfma_f32_16x16x32_bf16"
V_LANE, V_T0, V_T1, V_T2, V_T3, V_LIN, V_BO, V_UW, V_ST = 1, 2, 3, 4, 5, 6, 7, 8, 9
V_D = 10
V_AR = 18
V_ACC = 28
V_A = 60
V_B = 92
S_O, S_WO, S_OUT = 4, 8, 12
S_WAVE, S_CNT, S_A, S_B, S_C, S_BOFF, S_WOFF, S_LDB = 20, 21, 22, 23, 24, 25, 26, 27
S_RB, S_CB, S_BLK, S_GT0 = 28, 29, 30, 31
S_QB = 48
S_PB, S_PD, S_WB, S_CLS, S_T1 = 58, 59, 60, 61, 62
WSTEP = 128 * 1280
def ar(a, n=1):
    return f"a{a}" if n == 1 else f"a[{a}:{a+n-1}]"
def acc(nt, qt):
    i = nt * NQ + qt
    return ar(4 * i, 4) if i < 64 else vr(V_ACC + 4 * (i - 64), 4)

def iwarm(lines, step, pre, swave, nw=4):
    e = [i for i, l in enumerate(lines) if "@IWENTRY@" in l]; assert len(e) == 1; e = e[0]
    out = []; pos = []; n = 0
    body = lines[e + 1:]
    res = []
    k = 0
    for i, l in enumerate(body):
        res.append(l)
        t = l.strip()
        if t and not t.endswith(":") and not t.startswith(";"): n += 1
        if n >= step and i < len(body) - 8 and not t.endswith(":") and not t.startswith("s_cbranch") and not t.startswith("s_branch") and not t.startswith("s_cmp") and not t.startswith("s_bitcmp"):
            res.append(f"@STUB{k}@"); k += 1; n = 0
    nst = k
    fin = []
    for l in res:
        if l.startswith("@STUB"):
            j = int(l[5:-1])
            fin.append(f"{pre}{j}:")
            fin.append(f"    s_cbranch_execz {pre}{j + nw}" if j + nw < nst else f"    s_cbranch_execz {pre}_ret")
        else: fin.append(l)
    ent = ["    s_mov_b64 exec, 0"]
    for w in range(min(nw, nst)):
        if w < min(nw, nst) - 1:
            ent += [f"    s_cmp_eq_u32 s{swave}, {w}", f"    s_cbranch_scc1 {pre}{w}"]
        else: ent += [f"    s_branch {pre}{w}"]
    ent += [f"{pre}_ret:", "    s_mov_b64 exec, -1"]
    return lines[:e] + ent + fin

def gen_op2(name, pst=False, opol='', krot=None, wpol='', bpol='', xmap=0, vnx=34, ch2=False, dgrp=5, ramp=False, rot4=False, operm=False, wpace=3, w0=17, pw=0, tpf=0, xnost=False, xst=0, xlin=0, rot5=False, w5=9, dpace=2, iw=0, iwpos=0, rmp2=0, erl=False):
    a = Asm()
    def rslot(r):
        return (4 + (r & 3), r >> 2) if r < 16 else (6 + r - 16, None)
    def snd(g, r):
        ntp, d = rslot(r)
        if g == 0: return ((ntp - 4) ^ 2, 4 if d is None else d)
        if g == 1: return (ntp - 4, 4 if d is None else 5 + d)
        if g == 2: return (ntp ^ 2, 4 if d is None else d)
        return (ntp, 4 if d is None else 5 + d)
    AMAP = {}
    if rot5:
        assert ch2 and ramp and not krot and not rot4 and not tpf
        vl = [28 + 4 * i for i in range(8)] + [236 + 4 * i for i in range(4)]
        for r in range(6, 18): AMAP[snd(3, r)] = vr(vl[r - 6], 4)
        k_ = 0
        for nt_ in range(NN):
            for qt_ in range(NQ):
                if (nt_, qt_) not in AMAP:
                    AMAP[(nt_, qt_)] = ar(4 * k_, 4); k_ += 1
        assert k_ == 60
    acc0 = globals()["acc"]
    def acc(nt, qt): return AMAP[(nt, qt)] if rot5 else acc0(nt, qt)
    a("s_cmp_ge_u32 s2, 256")
    a("s_cbranch_scc1 L_op_end")
    a("s_and_b32 s3, s2, 7")
    a("s_lshl_b32 s3, s3, 5")
    a("s_lshr_b32 s30, s2, 3")
    a("s_add_u32 s3, s3, s30")
    a("s_cmp_ge_u32 s3, 250")
    a("s_cbranch_scc1 L_op_end")
    def pstamp(i):
        if pst:
            a("s_memrealtime s[78:79]")
            a("s_memtime s[80:81]")
            a("s_waitcnt lgkmcnt(0)")
            a(f"v_writelane_b32 v252, s78, {i}")
            a(f"v_writelane_b32 v252, s80, {16+i}")
    if pst: a("v_mov_b32 v252, 0")
    if pst:
        a("s_getpc_b64 s[72:73]")
        a("v_writelane_b32 v252, s72, 40")
        a("v_writelane_b32 v252, s73, 41")
    pstamp(0)
    a("s_load_dwordx2 s[36:37], s[0:1], 32")
    a("s_load_dwordx2 s[38:39], s[0:1], 72")
    a("s_load_dwordx2 s[40:41], s[0:1], 80")
    a("s_load_dwordx2 s[44:45], s[0:1], 96")
    a(f"v_and_b32 v{V_LANE}, 63, v0")
    a(f"v_lshrrev_b32 v{V_T0}, 6, v0")
    a("s_nop 0")
    a(f"v_readfirstlane_b32 s{S_WAVE}, v{V_T0}")
    a(f"s_mul_i32 s{S_RB}, s3, 13108")
    a(f"s_lshr_b32 s{S_RB}, s{S_RB}, 16")
    a(f"s_mul_i32 s{S_A}, s{S_RB}, 5")
    a(f"s_sub_u32 s{S_CB}, s3, s{S_A}")
    a(f"s_mov_b32 s{S_CLS}, s{S_RB}")
    a(f"s_cmp_ge_u32 s{S_RB}, 25")
    a(f"s_cselect_b32 s{S_BLK}, 1, 0")
    a(f"s_cselect_b32 s{S_A}, 25, 0")
    a(f"s_sub_u32 s{S_RB}, s{S_RB}, s{S_A}")
    a(f"s_mul_i32 s{S_GT0}, s{S_RB}, {NQ}")
    qb0 = len(a.lines)
    a(f"s_lshl_b32 s{S_C}, s{S_WAVE}, 10")
    a(f"s_add_u32 s{S_C}, s{S_C}, {WS_O}")
    a(f"s_mul_i32 s{S_B}, s{S_BLK}, {16*32*PAIRB}")
    a(f"s_add_u32 s{S_C}, s{S_C}, s{S_B}")
    if rot5:
        a(f"s_cmp_lt_u32 s{S_WAVE}, 2")
        a(f"s_cselect_b32 s{S_PB}, 5, 0")
    for qt in range(NQ):
        a(f"s_add_u32 s{S_A}, s{S_GT0}, {qt}")
        if rot5 and qt < 4: a(f"s_add_u32 s{S_A}, s{S_A}, s{S_PB}")
        if rot5 and qt > 4: a(f"s_sub_u32 s{S_A}, s{S_A}, s{S_PB}")
        a(f"s_mul_i32 s{S_B}, s{S_A}, 4682")
        a(f"s_lshr_b32 s{S_B}, s{S_B}, 16")
        a(f"s_mul_i32 s{S_T1}, s{S_B}, {32*PAIRB - 14*4096}")
        a(f"s_lshl_b32 s{S_QB+qt}, s{S_A}, 12")
        a(f"s_add_u32 s{S_QB+qt}, s{S_QB+qt}, s{S_T1}")
        a(f"s_add_u32 s{S_QB+qt}, s{S_QB+qt}, s{S_C}")
        if qt == NQ - 1 or (rot5 and qt == 3):
            a(f"s_cmp_ge_u32 s{S_A}, 224")
            a(f"s_cselect_b32 s{S_T1}, 0x40000000, 0")
            a(f"s_add_u32 s{S_QB+qt}, s{S_QB+qt}, s{S_T1}")
    qbl = []
    if erl:
        qbl = a.lines[qb0:]; del a.lines[qb0:]
    a(f"v_lshlrev_b32 v{V_LIN}, 4, v{V_LANE}")
    a(f"v_lshrrev_b32 v{V_T0}, 4, v{V_LANE}")
    a(f"v_and_b32 v{V_T1}, 15, v{V_LANE}")
    a(f"v_lshlrev_b32 v{V_T2}, 1, v{V_T0}")
    a(f"v_xor_b32 v{V_T1}, v{V_T1}, v{V_T2}")
    a(f"v_lshlrev_b32 v{V_T1}, 4, v{V_T1}")
    a(f"v_mul_u32_u24 v{V_T2}, 1280, v{V_T0}")
    a(f"v_add_u32 v{V_T3}, v{V_T2}, v{V_T1}")
    a(f"v_xor_b32 v{V_T1}, 128, v{V_T1}")
    a(f"v_add_u32 v{V_T2}, v{V_T2}, v{V_T1}")
    for i in range(8):
        src = V_T3 if (((i if operm else i >> 1)) & 1) == 0 else V_T2
        a(f"v_add_u32 v{V_D+i}, {5120*i - 1024*(i&3)}, v{src}")
    a(f"s_mul_i32 s{S_LDB}, s{S_WAVE}, {WST}")
    if pst == 3: pstamp(7)
    a("s_waitcnt lgkmcnt(0)")
    if pst == 3: pstamp(4)
    a(f"s_cmp_lg_u32 s{S_BLK}, 0")
    a(f"s_cselect_b32 s{S_WO}, s38, s36")
    a(f"s_cselect_b32 s{S_WO+1}, s39, s37")
    a(f"s_mov_b32 s{S_WO+2}, {4096*640*2}")
    a(f"s_mov_b32 s{S_WO+3}, 0x20000")
    a(f"s_mov_b32 s{S_O}, s44")
    a(f"s_mov_b32 s{S_O+1}, s45")
    a(f"s_mov_b32 s{S_O+2}, {WS_BYTES}")
    a(f"s_mov_b32 s{S_O+3}, 0x20000")
    a(f"s_mov_b32 s{S_OUT}, s40")
    a(f"s_mov_b32 s{S_OUT+1}, s41")
    a(f"s_mov_b32 s{S_OUT+2}, {3584*1280*2}")
    a(f"s_mov_b32 s{S_OUT+3}, 0x20000")
    a(f"s_mul_i32 s{S_A}, s{S_WAVE}, {32*1280}")
    a(f"s_lshl_b32 s{S_B}, s{S_CB}, 8")
    a(f"s_add_u32 s{S_WOFF}, s{S_A}, s{S_B}")
    a(f"s_mov_b32 s{S_BOFF}, 0")
    def knext(P, OFF, BASE, stride):
        gs, lag, mode = krot
        ls = [f"s_add_u32 s{P}, s{P}, 1"]
        if gs: ls += [f"s_lshr_b32 s{S_T1}, s{P}, {gs}", f"s_sub_u32 s{S_T1}, s{S_T1}, s{S_CLS}"]
        else: ls += [f"s_sub_u32 s{S_T1}, s{P}, s{S_CLS}"]
        ls += [f"s_and_b32 s{S_T1}, s{S_T1}, 3",
               f"s_cselect_b32 s{S_T1}, {lag}, 0",
               f"s_sub_u32 s{S_T1}, s{P}, s{S_T1}",
               f"s_and_b32 s{S_T1}, s{S_T1}, 31",
               f"s_mul_i32 s{OFF}, s{S_T1}, {stride}"]
        if BASE is not None: ls += [f"s_add_u32 s{OFF}, s{OFF}, s{BASE}"]
        return ls
    if krot:
        a(f"s_add_u32 s{S_CLS}, s{S_CLS}, s{S_CB}")
        a(f"s_and_b32 s{S_CLS}, s{S_CLS}, 3")
        a(f"s_mov_b32 s{S_WB}, s{S_WOFF}")
        a(f"s_mov_b32 s{S_PB}, -1")
        a(f"s_mov_b32 s{S_PD}, -1")
        for ln in knext(S_PB, S_BOFF, None, PAIRB): a(ln)
        for ln in knext(S_PD, S_WOFF, S_WB, WSTEP): a(ln)
    a(f"v_add_u32 v{V_BO}, s{S_BOFF}, v{V_LIN}")

    def bloads(buf):
        ls = []
        for qt in range(NQ):
            ls.append(f"buffer_load_dwordx4 {vr(V_B+36*buf+4*qt,4)}, v{V_BO}, s[{S_O}:{S_O+3}], s{S_QB+qt} offen {bpol}".rstrip())
        if krot:
            ls += knext(S_PB, S_BOFF, None, PAIRB)
            ls.append(f"v_add_u32 v{V_BO}, s{S_BOFF}, v{V_LIN}")
        else:
            ls.append(f"v_add_u32 v{V_BO}, {PAIRB}, v{V_BO}")
        return ls
    def dmas(buf):
        ls = []
        for i in range(8):
            if i & 3 == 0:
                ls.append(f"s_add_u32 m0, s{S_LDB}, {buf*BUF+4096*(i>>2)}")
                ls.append("s_nop 0")
            ls.append(f"buffer_load_dwordx4 v{V_D+i}, s[{S_WO}:{S_WO+3}], s{S_WOFF} offen offset:{1024*(i&3)} {wpol+' ' if wpol else ''}lds")
        if krot: ls += knext(S_PD, S_WOFF, S_WB, WSTEP)
        else: ls.append(f"s_add_u32 s{S_WOFF}, s{S_WOFF}, {WSTEP}")
        return ls
    VOFF = 4096 if operm else 1024
    def areads(nt, buf):
        return [f"ds_read_b64_tr_b16 {vr(V_A+4*nt+2*v,2)}, v{V_AR+nt} offset:{buf*BUF+v*VOFF}" for v in range(2)]

    if ch2 and ramp:
        for ln in dmas(0): a(ln)
        a.lines += qbl
        for ln in bloads(0): a(ln)
        for ln in dmas(1): a(ln)
    elif ch2:
        for ln in dmas(0) + dmas(1): a(ln)
        for ln in bloads(0) + bloads(1): a(ln)
        for ln in dmas(2) + dmas(3): a(ln)
    else:
        for ln in dmas(0): a(ln)
        for ln in bloads(0): a(ln)
        for ln in dmas(1): a(ln)
    if pst == 3: pstamp(5)
    if iw and iwpos == 0: a("@IWENTRY@")
    a(f"v_lshrrev_b32 v{V_T0}, 4, v{V_LANE}")
    a(f"v_bfe_u32 v{V_T1}, v{V_LANE}, 2, 2")
    a(f"v_lshl_add_u32 v{V_T2}, v{V_T0}, {2 if operm else 3}, v{V_T1}")
    a(f"v_lshlrev_b32 v{V_T2}, 8, v{V_T2}")
    a(f"v_and_b32 v{V_T0}, 1, v{V_T0}")
    a(f"v_lshl_add_u32 v{V_T1}, v{V_T0}, 2, v{V_T1}")
    a(f"v_lshl_add_u32 v{V_T2}, v{V_T1}, 5, v{V_T2}")
    a(f"v_and_b32 v{V_T1}, 3, v{V_LANE}")
    a(f"v_lshl_add_u32 v{V_T2}, v{V_T1}, 3, v{V_T2}")
    a(f"v_add_u32 v{V_T2}, s{S_LDB}, v{V_T2}")
    if rot5:
        a(f"s_and_b32 s{S_T1}, s{S_WAVE}, 1")
        a(f"s_lshl_b32 s{S_T1}, s{S_T1}, 1")
        a(f"s_lshr_b32 s{S_PD}, s{S_WAVE}, 1")
        a(f"s_add_u32 s{S_PD}, s{S_PD}, s{S_T1}")
        a(f"s_lshl_b32 s{S_PD}, s{S_PD}, 6")
    for t in range(8):
        if rot5:
            a(f"s_xor_b32 s{S_T1}, s{S_PD}, {((3 - (t >> 1)) << 6) | ((t & 1) << 5)}")
            a(f"v_xor_b32 v{V_AR+t}, s{S_T1}, v{V_T2}")
        elif rot4:
            a(f"s_lshl_b32 s{S_T1}, s{S_WAVE}, 1")
            a(f"s_add_u32 s{S_T1}, s{S_T1}, {t+2}")
            a(f"s_and_b32 s{S_T1}, s{S_T1}, 7")
            a(f"s_lshl_b32 s{S_T1}, s{S_T1}, 5")
            a(f"v_xor_b32 v{V_AR+t}, s{S_T1}, v{V_T2}")
        else:
            a(f"v_xor_b32 v{V_AR+t}, {32*t}, v{V_T2}")
    a(f"v_add_u32 v{V_UW}, s{S_LDB}, v{V_LIN}")
    if tpf:
        a("s_getpc_b64 s[72:73]")
        a.label("L_op_pc")
        a(f"v_lshlrev_b32 v26, 7, v{V_LANE}")
        a("v_add_u32 v26, L_op_tail - L_op_pc, v26")
        a("v_min_u32 v26, L_code_end - L_op_pc - 4, v26")
        a("v_mov_b32 v27, s73")
        a("v_add_co_u32 v26, vcc, s72, v26")
        a("v_addc_co_u32 v27, vcc, 0, v27, vcc")
    a(f"v_bfe_u32 v{V_T2}, v{V_LANE}, 4, 1")
    a(f"v_lshlrev_b32 v{V_T2}, 5, v{V_T2}")
    a(f"v_and_b32 v{V_T0}, 15, v{V_LANE}")
    a(f"v_mul_u32_u24 v{V_T0}, 2560, v{V_T0}")
    a(f"v_add_u32 v{V_T0}, v{V_T0}, v{V_T2}")
    a(f"v_bfe_u32 v{V_T2}, v{V_LANE}, 5, 1")
    a(f"v_lshl_add_u32 v{V_ST}, v{V_T2}, 4, v{V_T0}")
    if rot5:
        for j, x in enumerate((3, 1, 2)):
            a(f"s_xor_b32 s{S_A}, s{S_WAVE}, {x}")
            a(f"s_mul_i32 s{S_A}, s{S_A}, {WST}")
            a(f"v_add_u32 v{V_T0+j}, s{S_A}, v{V_LIN}")
        a(f"v_and_b32 v26, 7, v{V_LANE}")
        a(f"v_mul_u32_u24 v26, 2560, v26")
        a(f"v_bfe_u32 v27, v{V_LANE}, 3, 1")
        a(f"s_lshr_b32 s{S_A}, s{S_WAVE}, 1")
        a(f"s_xor_b32 s{S_A}, s{S_A}, 1")
        a(f"v_xor_b32 v27, s{S_A}, v27")
        a(f"v_lshl_add_u32 v26, v27, 6, v26")
        a(f"v_bfe_u32 v27, v{V_LANE}, 4, 1")
        a(f"v_lshl_add_u32 v26, v27, 5, v26")
        a(f"v_bfe_u32 v27, v{V_LANE}, 5, 1")
        a(f"v_lshl_add_u32 v26, v27, 4, v26")
        a(f"v_xor_b32 v27, 64, v26")
        a(f"v_add_u32 v27, {8*2560}, v27")
        a("s_mov_b32 s64, 0x00ff00ff"); a("s_mov_b32 s65, 0x00ff00ff")
        a("s_mov_b32 s66, 0xff00ff00"); a("s_mov_b32 s67, 0xff00ff00")
    elif rot4:
        for j in range(3):
            a(f"s_sub_u32 s{S_A}, s{S_WAVE}, {j+1}")
            a(f"s_and_b32 s{S_A}, s{S_A}, 3")
            a(f"s_mul_i32 s{S_A}, s{S_A}, {WST}")
            if j: a(f"s_add_u32 s{S_A}, s{S_A}, {j*NQ*2048}")
            a(f"v_add_u32 v{V_T0+j}, s{S_A}, v{V_LIN}")
    else:
        a(f"s_lshl_b32 s{S_A}, s{S_WAVE}, 11")
        a(f"v_add_u32 v{V_T0}, s{S_A}, v{V_LIN}")
        a(f"v_add_u32 v{V_T1}, {WST}, v{V_T0}")
        a(f"v_add_u32 v{V_T2}, {2*WST}, v{V_T0}")
        a(f"v_add_u32 v{V_T3}, {3*WST}, v{V_T0}")
    a(f"s_mul_i32 s{S_A}, s{S_RB}, {144*2560}")
    a(f"s_mul_i32 s{S_B}, s{S_BLK}, 1280")
    a(f"s_add_u32 s{S_A}, s{S_A}, s{S_B}")
    a(f"s_lshl_b32 s{S_B}, s{S_CB}, 8")
    a(f"s_add_u32 s{S_C}, s{S_A}, s{S_B}")
    def areads2(nt, p, dst=None):
        base = V_A + 8 * (nt & 3) if dst is None else dst
        return [f"ds_read_b64_tr_b16 {vr(base+4*k+2*v,2)}, v{V_AR+nt} offset:{(2*p+k)*BUF+v*VOFF}" for k in range(2) for v in range(2)]
    if ch2 and not ramp:
        a("s_waitcnt vmcnt(34)")
        for nt in range(4):
            for ln in areads2(nt, 0): a(ln)
    else:
        a("s_waitcnt vmcnt(17)")
        for nt in range(NN):
            for ln in areads(nt, 0): a(ln)

    def uwrite(u, ul):
        P, qt = u // NQ, u % NQ
        return [f"ds_write_b128 v{V_UW}, {acc(2*P+e, qt)} offset:{ul*2048+1024*e}" for e in range(2)]

    def iteration(im, first=False, groups=None, vn=34, last=False):
        if vn == 34: vn = vnx
        a(f"s_waitcnt vmcnt({vn}) lgkmcnt(12)")
        if groups is None: groups = [("B", (im + 3) & 3), ("D", im)]
        fq = []
        for kind, buf in groups:
            fq += [(1 if kind == "B" else 2 * NQ + 1, ln) for ln in (bloads(buf) if kind == "B" else dmas(buf))]
        if last:
            for u in range(20):
                P, qt = u // NQ, u % NQ
                for ln in uwrite(u, u): fq.append(((2 * P + 1) * NQ + qt + 1 + 8, ln))
        j = 0
        for nt in range(NN):
            for qt in range(NQ):
                if nt == 2 and qt == 0: a(f"s_waitcnt lgkmcnt({0 if last else 4})")
                c = "0" if first else acc(nt, qt)
                a(f"{MFMA} {acc(nt, qt)}, {vr(V_A+4*nt,4)}, {vr(V_B+36*im+4*qt,4)}, {c}")
                j += 1
                if qt == NQ - 1 and not last:
                    for ln in areads(nt, (im + 1) & 3): a(ln)
                elif fq and fq[0][0] <= j:
                    a(fq.pop(0)[1])
        for _, ln in fq: a(ln)
    def super_it(S, first=False, doB=True, doD=True, last=False, vtop=16, pf=False):
        p = S & 1; pn = p ^ 1
        a(f"s_waitcnt vmcnt({vtop}) lgkmcnt(12)")
        fq = []
        if last:
            for nt in range(4, 8):
                for ln in areads2(nt, p, V_B + 36 * 2 * pn + 8 * (nt - 4)): fq.append((1, ln))
            for u in range(20):
                P, qt = u // NQ, u % NQ
                for ln in uwrite(u, u): fq.append((max(2 * ((2 * P + 1) * NQ + qt + 1) + 8, 2 * 2 * NQ + 1), ln))
        if doB: fq += [(1, ln) for ln in bloads(2 * pn) + bloads(2 * pn + 1)]
        if pf: fq += [(1, "global_load_dword v236, v[26:27], off")]
        if doD: fq += [(2 * NQ * dgrp + 1, ln) for ln in dmas(2 * p) + dmas(2 * p + 1)]
        j = 0
        for nt in range(NN):
            if nt > 0:
                if last:
                    if nt == 1: a("s_waitcnt lgkmcnt(15)")
                    if nt == 2: a("s_waitcnt lgkmcnt(0)")
                elif nt == dgrp and doD: a(f"s_waitcnt lgkmcnt({4 * (dgrp - 4)})")
                else: a("s_waitcnt lgkmcnt(12)")
            Ab = V_A + 8 * (nt & 3)
            if last and nt >= 4: Ab = V_B + 36 * 2 * pn + 8 * (nt - 4)
            for qt in range(NQ):
                for k in range(2):
                    c = "0" if (first and k == 0) else acc(nt, qt)
                    a(f"{MFMA} {acc(nt, qt)}, {vr(Ab+4*k,4)}, {vr(V_B+36*(2*p+k)+4*qt,4)}, {c}")
                    j += 1
                    if qt == NQ - 1 and k == 1 and not last:
                        if nt == 4: a(f"s_waitcnt vmcnt({(18 if doB else 0) + (1 if pf else 0)})")
                        for ln in (areads2(nt + 4, p) if nt < 4 else areads2(nt - 4, pn)): a(ln)
                    elif fq and fq[0][0] <= j:
                        a(fq.pop(0)[1])
        for _, ln in fq: a(ln)
    def last_rot(S):
        p = S & 1; pn = p ^ 1
        a("s_waitcnt vmcnt(0) lgkmcnt(8)")
        rd = []
        for nt in range(4, 8): rd += areads2(nt, p, V_B + 36 * 2 * pn + 8 * (nt - 4))
        wr = []
        for u in range(20): wr += [(u, ln) for ln in uwrite(u, u)]
        j = 0; nxt = w0
        for P in range(4):
            for qt in range(NQ):
                for e in range(2):
                    nt = 2 * P + e
                    Ab = V_A + 8 * nt if nt < 4 else V_B + 36 * 2 * pn + 8 * (nt - 4)
                    for k in range(2):
                        a(f"{MFMA} {acc(nt, qt)}, {vr(Ab+4*k,4)}, {vr(V_B+36*(2*p+k)+4*qt,4)}, {acc(nt, qt)}")
                        j += 1
                        if rd:
                            a(rd.pop(0)); a(rd.pop(0))
                        elif j == w0 - 1: a("s_waitcnt lgkmcnt(0)")
                        elif wr and j >= nxt and j >= 4 * (wr[0][0] + 1) + 4:
                            a(wr.pop(0)[1]); nxt = j + wpace
        for _, ln in wr: a(ln)
    def reduce_rot():
        S0, S1, S2 = V_A, V_A + 72, V_A + 144
        OT = [220 + 4 * i for i in range(8)] + [10, 14]
        def own(e, qt):
            i = (6 + e) * NQ + qt
            return OT[i - 54] if i < 64 else V_ACC + 4 * (i - 64)
        def rd(base, va, pos, qt): return [f"ds_read_b128 {vr(base+8*qt+4*e,4)}, v{va} offset:{pos*2048+1024*e}" for e in range(2)]
        def add(dst, src): return [f"v_pk_add_f32 {vr(dst+2*h,2)}, {vr(dst+2*h,2)}, {vr(src+2*h,2)}" for h in range(2)]
        ar_ = [f"v_accvgpr_read_b32 v{OT[i-54]+r}, a{4*i+r}" for i in range(54, 64) for r in range(4)]
        a(f"s_lshl_b32 s{S_B}, s{S_WAVE}, 6")
        a(f"s_add_u32 s{S_B}, s{S_B}, s{S_C}")
        a(f"s_add_u32 s{S_T1}, s{S_GT0}, 8")
        a(f"s_cmp_ge_u32 s{S_T1}, 224")
        a(f"s_cselect_b32 s{S_A}, 0x40000000, 0")
        a(f"s_add_u32 s{S_A}, s{S_A}, {8*16*2560}")
        a(f"s_add_u32 s{S_A}, s{S_A}, s{S_B}")
        if xlin == 1:
            a(f"s_lshl_b32 s{S_B}, s3, 2")
            a(f"s_add_u32 s{S_B}, s{S_B}, s{S_WAVE}")
            a(f"s_mul_i32 s{S_B}, s{S_B}, 9216")
            a(f"v_lshlrev_b32 v{V_ST}, 4, v{V_LANE}")
        if xlin == 2:
            a(f"s_lshl_b32 s{S_B}, s3, 2")
            a(f"s_add_u32 s{S_B}, s{S_B}, s{S_WAVE}")
            a(f"s_mul_i32 s{S_B}, s{S_B}, 9216")
            a(f"v_lshlrev_b32 v{V_ST}, 4, v{V_LANE}")
        if xlin == 3:
            a(f"v_lshrrev_b32 v{V_ST}, 3, v{V_LANE}")
            a(f"v_mul_u32_u24 v{V_ST}, 2560, v{V_ST}")
            a(f"v_and_b32 v26, 7, v{V_LANE}")
            a(f"v_lshl_add_u32 v{V_ST}, v26, 4, v{V_ST}")
            a(f"s_lshl_b32 s{S_B}, s{S_WAVE}, 7")
            a(f"s_and_b32 s{S_B}, s{S_B}, 128")
            a(f"s_lshr_b32 s{S_A}, s{S_WAVE}, 1")
            a(f"s_mul_i32 s{S_A}, s{S_A}, {72*2560}")
            a(f"s_add_u32 s{S_B}, s{S_B}, s{S_A}")
            a(f"s_add_u32 s{S_B}, s{S_B}, s{S_C}")
        a("s_waitcnt lgkmcnt(0)")
        a("s_barrier")
        if pst == 1: pstamp(4)
        for qt in range(7):
            for ln in rd(S0, V_T0, qt, qt): a(ln)
        wr = []
        for qt in range(2, NQ):
            wr += [f"ds_write_b128 v{V_T0}, {acc(4+e, qt)} offset:{(qt-2)*2048+1024*e}" for e in range(2)]
        for ln in wr:
            a(ln)
            for _ in range(3):
                if ar_: a(ar_.pop(0))
        assert not ar_
        for qt in range(6):
            for ln in rd(S1, V_T1, qt, qt): a(ln)
        a("s_waitcnt lgkmcnt(12)")
        a("s_barrier")
        if pst == 1: a("s_waitcnt lgkmcnt(0)")
        if pst == 1: pstamp(5)
        for qt in (7, 8):
            for ln in rd(S0, V_T0, qt, qt): a(ln)
        for qt in (6, 7, 8):
            for ln in rd(S1, V_T1, qt, qt): a(ln)
        for qt in (0, 1):
            for ln in rd(S2, V_T2, qt, qt): a(ln)
        for qt in range(7):
            for e in range(2):
                for ln in add(own(e, qt), S0 + 8 * qt + 4 * e): a(ln)
        for qt in range(2, NQ):
            for ln in rd(S0 - 16, V_UW, qt - 2, qt): a(ln)
        def fin(qt, last):
            ls = []
            for e in range(2): ls += add(own(e, qt), last + 4 * e)
            x = last
            ls += [f"v_cvt_pk_bf16_f32 v{x}, v{own(0,qt)}, v{own(0,qt)+1}", f"v_cvt_pk_bf16_f32 v{x+1}, v{own(0,qt)+2}, v{own(0,qt)+3}",
                   f"v_cvt_pk_bf16_f32 v{x+2}, v{own(1,qt)}, v{own(1,qt)+1}", f"v_cvt_pk_bf16_f32 v{x+3}, v{own(1,qt)+2}, v{own(1,qt)+3}"]
            if xlin: ls.append(f"s_add_u32 s{S_T1}, s{S_B}, {qt*(1024 if xlin < 3 else 8*2560)}")
            elif qt < 8: ls.append(f"s_add_u32 s{S_T1}, s{S_B}, {qt*16*2560}")
            else: ls.append(f"s_mov_b32 s{S_T1}, s{S_A}")
            ls.append("s_nop 0")
            ls += [f"v_permlane16_swap_b32 v{x}, v{x+2}", f"v_permlane16_swap_b32 v{x+1}, v{x+3}"]
            if not xnost: ls.append(f"buffer_store_dwordx4 {vr(x,4)}, v{V_ST}, s[{S_OUT}:{S_OUT+3}], s{S_T1} offen {opol}".rstrip())
            return ls
        a("s_waitcnt lgkmcnt(15)")
        for qt in range(7):
            for e in range(2):
                for ln in add(own(e, qt), S1 + 8 * qt + 4 * e): a(ln)
        a("s_waitcnt lgkmcnt(14)")
        for qt in (7, 8):
            for e in range(2):
                for ln in add(own(e, qt), S0 + 8 * qt + 4 * e) + add(own(e, qt), S1 + 8 * qt + 4 * e): a(ln)
        if xst: pstamp(6)
        for qt in (0, 1):
            for ln in fin(qt, S2 + 8 * qt): a(ln)
        for qt in range(2, NQ):
            a(f"s_waitcnt lgkmcnt({2*(NQ-1-qt)})")
            for ln in fin(qt, S0 + 8 * (qt - 2)): a(ln)
    R1G = [list(range(14)), list(range(13)), list(range(13))]
    R2G = [list(range(14, 18)), list(range(13, 18)), list(range(13, 18))]
    POS1 = [0, 14, 27]
    def pos2(g, r): return [0, 4, 9][g] + R2G[g].index(r)
    def last_rot5(S):
        p = S & 1; pn = p ^ 1
        a("s_waitcnt vmcnt(0) lgkmcnt(12)")
        rd = []
        for nt in range(4, 8): rd += areads2(nt, p, V_B + 36 * 2 * pn + 8 * (nt - 4))
        ph1 = sorted([(snd(g, r), POS1[g] + r) for g in (0, 1) for r in R1G[g]])
        ph2 = [(snd(2, r), POS1[2] + r) for r in R1G[2]]
        ph3 = [(snd(g, r), None) for g in range(3) for r in R2G[g]]
        ph4 = [(snd(3, r), None) for r in range(18)]
        tiles = ph1 + ph2 + ph3 + ph4
        assert len(tiles) == 72 and len(set(t[0] for t in tiles)) == 72
        wr = [f"ds_write_b128 v{V_UW}, {acc(*t)} offset:{ps*1024}" for t, ps in ph1 + ph2]
        j = 0; nxt = w5; nw = 0; seenA = {0}; nafter = 0; hi = False
        for n_, ((nt, qt), ps) in enumerate(tiles):
            if nt not in seenA:
                if nt < 4 and len(seenA) == 1:
                    assert not rd
                    a("s_waitcnt lgkmcnt(15)"); assert 16 + nw >= 15
                    seenA |= {1, 2, 3}
                elif nt >= 4:
                    a(f"s_waitcnt lgkmcnt({min(15, nw)})")
                    seenA |= {4, 5, 6, 7}
            Ab = V_A + 8 * nt if nt < 4 else V_B + 36 * 2 * pn + 8 * (nt - 4)
            for k in range(2):
                a(f"{MFMA} {acc(nt, qt)}, {vr(Ab+4*k,4)}, {vr(V_B+36*(2*p+k)+4*qt,4)}, {acc(nt, qt)}")
                j += 1
                if rd:
                    a(rd.pop(0)); a(rd.pop(0))
                elif nw < len(wr) and j >= nxt and j >= 2 * (nw + 1) + 4:
                    a(wr[nw]); nw += 1; nxt = j + wpace
        for ln in wr[nw:]: a(ln)
    def reduce_rot5():
        R1 = lambda k: V_A + 4 * k
        OT = [220, 224, 228, 232, 10, 14]
        def own(r):
            x = acc(*snd(3, r))
            return OT[r] if r < 6 else int(x[2:x.index(":")])
        kidx = {}
        k = 0
        for d in range(3):
            for g in range(3):
                for e in range(4): kidx[(g, 4 * d + e)] = k; k += 1
        for g, r in ((0, 12), (1, 12), (2, 12), (0, 13)): kidx[(g, r)] = k; k += 1
        assert k == 40
        free2 = [4, 5, 6, 7, 8, 9, 10, 11, 16, 17, 18, 19, 20, 21]
        order2 = [(1, 13), (2, 13), (0, 14), (1, 14), (2, 14), (0, 15), (1, 15), (2, 15), (0, 16), (1, 16), (2, 16), (0, 17), (1, 17), (2, 17)]
        for i_, gr in enumerate(order2): kidx[gr] = free2[i_]
        RA = [V_T0, V_T1, V_T2]
        def rd1(g, r): return f"ds_read_b128 {vr(R1(kidx[(g, r)]), 4)}, v{RA[g]} offset:{(POS1[g] + r) * 1024}"
        def rd2(g, r): return f"ds_read_b128 {vr(R1(kidx[(g, r)]), 4)}, v{[V_UW, V_T2, V_T1][g]} offset:{pos2(g, r) * 1024}"
        def add(dst, src): return [f"v_pk_add_f32 {vr(dst+2*h,2)}, {vr(dst+2*h,2)}, {vr(src+2*h,2)}" for h in range(2)]
        def sums(rs):
            ls = []
            for r in rs: ls += add(R1(kidx[(1, r)]), R1(kidx[(2, r)]))
            for r in rs: ls += add(own(r), R1(kidx[(0, r)]))
            for r in rs: ls += add(own(r), R1(kidx[(1, r)]))
            return ls
        def pack(x, r0, r1):
            return [f"v_cvt_pk_bf16_f32 v{x}, v{own(r0)}, v{own(r0)+1}", f"v_cvt_pk_bf16_f32 v{x+1}, v{own(r0)+2}, v{own(r0)+3}",
                    f"v_cvt_pk_bf16_f32 v{x+2}, v{own(r1)}, v{own(r1)+1}", f"v_cvt_pk_bf16_f32 v{x+3}, v{own(r1)+2}, v{own(r1)+3}"]
        def swp(x): return [f"v_permlane16_swap_b32 v{x}, v{x+2}", f"v_permlane16_swap_b32 v{x+1}, v{x+3}"]
        st = lambda x, va, so: [] if xnost else [f"buffer_store_dwordx4 {vr(x,4)}, v{va}, s[{S_OUT}:{S_OUT+3}], s{so} offen {opol}".rstrip()]
        def fin_du(d, T):
            X, Y, A_, B_ = T
            ls = pack(X, 4 * d, 4 * d + 1) + pack(Y, 4 * d + 2, 4 * d + 3)
            ls += [(f"s_add_u32 s{S_T1}, s{S_B}, {d*16*2560}" if d < 3 else f"s_mov_b32 s{S_T1}, s{S_A}")]
            ls += swp(X) + swp(Y)
            ls += ["s_mov_b64 vcc, s[64:65]", "s_nop 0"]
            ls += [f"v_cndmask_b32_dpp v{A_+i}, v{Y+i}, v{X+i}, vcc row_ror:8 row_mask:0xf bank_mask:0xf" for i in range(4)]
            ls += ["s_mov_b64 vcc, s[66:67]"] + st(A_, 26, S_T1)
            ls += [f"v_cndmask_b32_dpp v{B_+i}, v{Y+i}, v{X+i}, vcc row_ror:8 row_mask:0xf bank_mask:0xf" for i in range(4)]
            ls += st(B_, 27, S_T1)
            return ls
        def mix(va, fill, every):
            fill = list(fill); n = 0
            for ln in va:
                a(ln); n += 1
                if fill and n % every == 0: a(fill.pop(0))
            for ln in fill: a(ln)
        a(f"s_and_b32 s{S_T1}, s{S_WAVE}, 1")
        a(f"s_lshl_b32 s{S_T1}, s{S_T1}, 7")
        a(f"s_add_u32 s{S_B}, s{S_C}, s{S_T1}")
        a(f"s_lshr_b32 s{S_T1}, s{S_WAVE}, 1")
        a(f"s_lshl_b32 s{S_PD}, s{S_T1}, 6")
        a(f"s_add_u32 s{S_PD}, s{S_PD}, s{S_B}")
        a(f"s_add_u32 s{S_PD}, s{S_PD}, {4*16*2560}")
        a(f"s_mul_i32 s{S_T1}, s{S_T1}, 5")
        a(f"s_mul_i32 s{S_A}, s{S_T1}, {16*2560}")
        a(f"s_add_u32 s{S_B}, s{S_B}, s{S_A}")
        a(f"s_add_u32 s{S_T1}, s{S_T1}, s{S_GT0}")
        a(f"s_add_u32 s{S_T1}, s{S_T1}, 3")
        a(f"s_cmp_ge_u32 s{S_T1}, 224")
        a(f"s_cselect_b32 s{S_A}, 0x40000000, 0")
        a(f"s_add_u32 s{S_A}, s{S_A}, {3*16*2560}")
        a(f"s_add_u32 s{S_A}, s{S_A}, s{S_B}")
        a("s_waitcnt lgkmcnt(0)")
        a("s_barrier")
        if pst == 1: pstamp(4)
        du = lambda d: [rd1(g, 4 * d + e) for g in range(3) for e in range(4)]
        for ln in du(0): a(ln)
        for r in range(6):
            x = acc(*snd(3, r)); b0 = int(x[2:x.index(":")])
            for i in range(4): a(f"v_accvgpr_read_b32 v{OT[r]+i}, a{b0+i}")
        for ln in du(1): a(ln)
        a("s_waitcnt lgkmcnt(12)")
        T = lambda d: [R1(kidx[(0, 4 * d + e)]) for e in range(4)]
        mix(sums(range(0, 4)), du(2), dpace)
        mix(fin_du(0, T(0)), [rd1(0, 12), rd1(1, 12), rd1(2, 12), rd1(0, 13)], 3)
        a("s_waitcnt lgkmcnt(15)")
        wr = [f"ds_write_b128 v{V_T0}, {acc(*snd(g, r))} offset:{pos2(g, r) * 1024}" for g in range(3) for r in R2G[g]]
        mix(sums(range(4, 8)) + fin_du(1, T(1)), wr, 3)
        a("s_waitcnt lgkmcnt(15)")
        for ln in sums(range(8, 12)) + fin_du(2, T(2)): a(ln)
        a("s_waitcnt lgkmcnt(14)")
        for ln in sums([12]) + add(own(13), R1(kidx[(0, 13)])): a(ln)
        a("s_waitcnt lgkmcnt(0)")
        a("s_barrier")
        if pst == 1: pstamp(5)
        for g, r in order2: a(rd2(g, r))
        a("s_waitcnt lgkmcnt(6)")
        for ln in add(R1(kidx[(1, 13)]), R1(kidx[(2, 13)])) + add(own(13), R1(kidx[(1, 13)])) + sums([14, 15]): a(ln)
        for ln in fin_du(3, [R1(36), R1(37), R1(38), R1(39)]): a(ln)
        a("s_waitcnt lgkmcnt(0)")
        for ln in sums([16, 17]): a(ln)
        X = R1(0)
        for ln in pack(X, 16, 17) + [f"s_nop 1"] + swp(X) + st(X, V_ST, S_PD): a(ln)
    if iw and iwpos == 1: a("@IWENTRY@")
    pstamp(1)
    if ch2:
        assert not krot and 5 <= dgrp <= 6
        if ramp:
            a(f"s_waitcnt vmcnt({8 if rmp2 else 0}) lgkmcnt(12)")
            if pst == 3: pstamp(6)
            fq = bloads(1) + dmas(2) + dmas(3) + bloads(2) + bloads(3)
            nvm = 0; pend = list(range(NN))
            for nt in range(NN):
                if nt == 2: a("s_waitcnt lgkmcnt(4)" if not rmp2 else "s_waitcnt lgkmcnt(0)")
                for qt in range(NQ):
                    a(f"{MFMA} {acc(nt, qt)}, {vr(V_A+4*nt,4)}, {vr(V_B+4*qt,4)}, 0")
                    if qt == NQ - 1:
                        if not rmp2:
                            for ln in areads(nt, 1): a(ln)
                        elif nt >= rmp2:
                            if nt == rmp2: a(f"s_waitcnt vmcnt({nvm})")
                            k_ = 0
                            while pend and pend[0] <= nt and (k_ < 2 or nt == NN - 1):
                                for ln in areads(pend.pop(0), 1): a(ln)
                                k_ += 1
                        elif fq:
                            ln = fq.pop(0); a(ln); nvm += ln.startswith("buffer_load")
                    elif fq:
                        ln = fq.pop(0); a(ln); nvm += ln.startswith("buffer_load")
            assert not fq and (not rmp2 or not pend)
            a("s_waitcnt vmcnt(34) lgkmcnt(12)")
            fq = dmas(0) + dmas(1)
            for nt in range(NN):
                if nt == 2: a("s_waitcnt lgkmcnt(4)")
                for qt in range(NQ):
                    a(f"{MFMA} {acc(nt, qt)}, {vr(V_A+4*nt,4)}, {vr(V_B+36+4*qt,4)}, {acc(nt, qt)}")
                    if qt == NQ - 1 and (nt & 1):
                        if nt == 1: a("s_waitcnt vmcnt(18)")
                        for ln in areads2(nt >> 1, 1): a(ln)
                    elif fq and nt >= 2: a(fq.pop(0))
            assert not fq
        else:
            super_it(0, first=True)
        super_it(1)
        a(f"s_mov_b32 s{S_CNT}, 0")
        a.label("L_op_loop")
        super_it(2); super_it(3)
        a(f"s_add_u32 s{S_CNT}, s{S_CNT}, 1")
        a(f"s_cmp_lt_u32 s{S_CNT}, 6")
        a("s_cbranch_scc1 L_op_loop")
        super_it(14, doD=False, pf=bool(tpf))
        if tpf: a.label("L_op_tail")
        if rot5: last_rot5(15)
        elif rot4: last_rot(15)
        else: super_it(15, doB=False, doD=False, last=True, vtop=0)
    else:
      iteration(0, first=True, groups=[("B", 1), ("D", 2), ("B", 2)], vn=0)
      iteration(1, groups=[("D", 3), ("B", 3), ("D", 0)], vn=9)
      iteration(2, groups=[("B", 0), ("D", 1), ("B", 1)], vn=17)
      iteration(3, groups=[("D", 2), ("B", 2), ("D", 3)], vn=26)
      a(f"s_mov_b32 s{S_CNT}, 0")
      a.label("L_op_loop")
      for im in range(4): iteration(im)
      a(f"s_add_u32 s{S_CNT}, s{S_CNT}, 1")
      a(f"s_cmp_lt_u32 s{S_CNT}, 6")
      a("s_cbranch_scc1 L_op_loop")
      iteration(0, groups=[("B", 3)])
      iteration(1, groups=[], vn=26)
      iteration(2, groups=[], vn=9)
      iteration(3, groups=[], vn=0, last=True)
    pstamp(2)
    R0 = V_A
    def rreads(nk):
        for k in range(nk):
            for src in range(4):
                va = V_T0 + src
                for e in range(2):
                    a(f"ds_read_b128 {vr(R0+32*k+8*src+4*e,4)}, v{va} offset:{k*8192+1024*e}")
    def rproc(k, ubase):
        R = R0 + 32 * k
        ls = []
        for h in range(4):
            ls.append(f"v_pk_add_f32 {vr(R+2*h,2)}, {vr(R+2*h,2)}, {vr(R+8+2*h,2)}")
            ls.append(f"v_pk_add_f32 {vr(R+16+2*h,2)}, {vr(R+16+2*h,2)}, {vr(R+24+2*h,2)}")
        for h in range(4):
            ls.append(f"v_pk_add_f32 {vr(R+2*h,2)}, {vr(R+2*h,2)}, {vr(R+16+2*h,2)}")
        for h in range(4):
            ls.append(f"v_cvt_pk_bf16_f32 v{R+8+h}, v{R+2*h}, v{R+2*h+1}")
        ls.append(f"s_add_u32 s{S_A}, s{S_WAVE}, {ubase+4*k}")
        ls.append(f"s_mul_i32 s{S_B}, s{S_A}, 7282")
        ls.append(f"s_lshr_b32 s{S_B}, s{S_B}, 16")
        ls.append(f"v_permlane16_swap_b32 v{R+8}, v{R+10}")
        ls.append(f"v_permlane16_swap_b32 v{R+9}, v{R+11}")
        ls.append(f"s_mul_i32 s{S_T1}, s{S_B}, {NQ}")
        ls.append(f"s_sub_u32 s{S_A}, s{S_A}, s{S_T1}")
        ls.append(f"s_mul_i32 s{S_T1}, s{S_A}, {16*2560}")
        ls.append(f"s_lshl_b32 s{S_B}, s{S_B}, 6")
        ls.append(f"s_add_u32 s{S_T1}, s{S_T1}, s{S_B}")
        ls.append(f"s_add_u32 s{S_T1}, s{S_T1}, s{S_C}")
        ls.append(f"s_add_u32 s{S_A}, s{S_A}, s{S_GT0}")
        ls.append(f"s_cmp_ge_u32 s{S_A}, 224")
        ls.append(f"s_cselect_b32 s{S_B}, 0x40000000, 0")
        ls.append(f"s_add_u32 s{S_T1}, s{S_T1}, s{S_B}")
        ls.append(f"buffer_store_dwordx4 {vr(R+8,4)}, v{V_ST}, s[{S_OUT}:{S_OUT+3}], s{S_T1} offen {opol}".rstrip())
        return ls
    if rot5: reduce_rot5()
    elif rot4: reduce_rot()
    else:
        a("s_waitcnt lgkmcnt(0)")
        a("s_barrier")
        rreads(5)
        a("s_waitcnt lgkmcnt(0)")
        a("s_barrier")
        wr = []
        for u in range(20, 36): wr += uwrite(u, u - 20)
        pr = []
        for k in range(5): pr += rproc(k, 0)
        step = max(1, len(pr) // len(wr))
        for i, ln in enumerate(pr):
            if i % step == 0 and wr: a(wr.pop(0))
            a(ln)
        for ln in wr: a(ln)
        a("s_waitcnt lgkmcnt(0)")
        a("s_barrier")
        rreads(4)
        for k in range(4):
            a(f"s_waitcnt lgkmcnt({min(15, 8*(3-k))})")
            for ln in rproc(k, 20): a(ln)
    if pst:
        if pst >= 2: a("s_waitcnt vmcnt(0)")
        pstamp(3)
        a("s_getreg_b32 s62, hwreg(HW_REG_XCC_ID)")
        a("v_writelane_b32 v252, s62, 63")
        a(f"s_cmp_lg_u32 s{S_WAVE}, {pw}")
        a("s_cbranch_scc1 L_op_end")
        a("s_lshl_b32 s62, s2, 8"); a("s_add_u32 s62, s62, 50065536")
        a(f"v_lshlrev_b32 v2, 2, v{V_LANE}")
        a(f"buffer_store_dword v252, v2, s[{S_O}:{S_O+3}], s62 offen")
    a.label("L_op_end")
    a("s_endpgm")
    if iw: a.lines = iwarm(a.lines, iw, "L_opw", S_WAVE)
    return a.text()
```

```python
from gen_common import *
import sys
import math

NQB = 3584 * 4096 * 2
WS_O = 2 * NQB
WS_W = 4 * NQB
WS_BYTES = 4 * NQB + 2 * 4096 * 640 * 2
PAIRB = 224 * 128 * 2

TILE = 8448
RING = 4
AREA = RING * TILE
LDS_BYTES = 163840
LDS_FLAG = 2 * AREA + 1024
LDS_FLAG = 2 * AREA + 8416

def kpad(i): return 1024 * i + 16 * ((i & 1) + 4 * (i >> 1))

V_LANE, V_T0, V_T1, V_T2, V_T3, V_LIN, V_DMA = 1, 2, 3, 4, 5, 6, 7
V_KA, V_VA, V_XA, V_WA = 8, 9, 10, 11
V_L = 12
V_QD, V_BA = 26, 27
V_CI = 28
V_KF = 56
V_S = 88
V_P = 104
V_VF = 112
V_OK = 144
A_Q = 0
A_OS = 112
A_LS = 224
A_ONE = 252
S_LD, S_K, S_W, S_QP = 4, 8, 12, 16
S_WAVE, S_T, S_CNT, S_NOFB, S_OOFF, S_MP, S_T0 = 20, 21, 22, 23, 24, 25, 27
S_A, S_B, S_C, S_D = 28, 29, 30, 31
S_THR, S_LDB, S_DJ, S_PJ, S_QH, S_DOFF = 32, 33, 34, 35, 48, 49
S_QS, S_QSTEP, S_QRND, S_MSTEP, S_CS = 50, 51, 52, 53, 54
S_TAB = 88
S_AS, S_TY, S_PRE, S_WO = 68, 69, 70, 71
MFMA = "v_mfma_f32_16x16x32_bf16"
def ar(a, n=1):
    return f"a{a}" if n == 1 else f"a[{a}:{a+n-1}]"

def gen_fused(name, nt=True, stamp=False, nofb=False, noload=False, nost=False, nox=False, now=False, st0=False, touch=False, kvt=False, kvtnt=False, nowo=False, tnt=False, qnt=False, wont=False, trace=False, DBO=64, ones=False, strace=False, xmem=0, xmfma=0, delay=0, tymask=1, stwg=4, roll=False, bulk0=True, wsbase=0, rot=True, rsh=1, dupst=False, allst=False, align=0, roles=False, fakex=False, early=False, qdelay=0, adelay=0, kvpol=None, xf=False, pst=False, kvl2=False, xq=False, pstl=False, kv0=False, qpnl=False, cpf=0, cpflate=False, qps=False, tymode=0, tyinv=False, xswap=False, qnrd=False, qnbar=False, qbar=7, qd0=9, qdstep=6, kvrot=0, kvgs=11, kvt2=0, kvts=64, tper=1, tpol='', tlbw=0, rflip=0, stpol='', defer=False, dpol='', dnp=3, wpol='', qpol='', anbar=False, anrd=False, anva='', ansu=False, cpf2=0, cpfo=0, pro1=0, rotn=4, spread='', dsl='1234', lp7=False, inv=False, wo2=False, wo3=0, wo4=0, wo5=0, wtl=0, wo6='', wo8=0, stpol0=None, wb=0, woff=False, wtch=0, eep=0, qch2=False, qkrev=False, operm=False, x128=False, pro2=False, cpo=0, sea=0, gkv=0, slk=0, slkd=8, pstq=False, klate=0, tdef=0):
    a = Asm()
    if spread: early = True
    if wo6: wo5 = 2
    if wo5: wo4 = 2
    if wo3 or wo4: wo2 = True
    NT = " nt" if nt else ""
    if kvpol: NT = " " + kvpol
    if pst: a("s_memrealtime s[74:75]")
    a("s_cmp_ge_u32 s2, 256")
    a("s_cbranch_scc1 L_at_end")
    if cpf:
        a("s_getpc_b64 s[72:73]")
        a.label("L_pc0")
        a(f"s_mov_b32 s74, L_code_end - L_pc0")
        a("s_mov_b32 s75, 0x20000")
        a("v_lshlrev_b32 v105, 6, v0")
        if not cpflate:
          for k in range(cpf // 16):
            a(f"s_mov_b32 s76, {k*16384}")
            a("buffer_load_dword v104, v105, s[72:75], s76 offen")
    a("s_and_b32 s3, s2, 7")
    a("s_lshl_b32 s3, s3, 5")
    a("s_lshr_b32 s36, s2, 6")
    a("s_lshl_b32 s36, s36, 3")
    a("s_or_b32 s3, s3, s36")
    a("s_bfe_u32 s36, s2, 0x30003")
    a("s_or_b32 s2, s3, s36")
    if xswap: a("s_xor_b32 s2, s2, 32"); a("s_nop 0")
    a("s_load_dwordx8 s[36:43], s[0:1], 0")
    a("s_load_dwordx8 s[56:63], s[0:1], 40")
    a("s_load_dwordx2 s[44:45], s[0:1], 96")
    a("s_load_dwordx2 s[84:85], s[0:1], 32")
    a("s_load_dwordx2 s[86:87], s[0:1], 72")
    if cpf2:
        a("s_getpc_b64 s[72:73]")
        a.label("L_pc0")
        a("v_lshlrev_b32 v105, 7, v0")
        for k in range(cpf2):
            a(f"v_add_u32 v104, {cpfo + k*32768}, v105")
            a("v_min_u32 v104, L_code_end - L_pc0 - 4, v104")
            a("v_mov_b32 v107, s73")
            a("v_add_co_u32 v106, vcc, s72, v104")
            a("v_addc_co_u32 v107, vcc, 0, v107, vcc")
            a(f"global_load_dword v108, v[106:107], off")
    a(f"v_and_b32 v{V_LANE}, 63, v0")
    a(f"v_lshrrev_b32 v{V_T0}, 6, v0")
    a("s_nop 0")
    a(f"v_readfirstlane_b32 s{S_WAVE}, v{V_T0}")
    marks = {}
    def mark(n): marks[n] = len(a.lines)
    mark("W0")
    a("s_waitcnt lgkmcnt(0)")
    mark("P2")
    a(f"s_and_b32 s{S_QH}, s{S_WAVE}, 1")
    a(f"s_lshr_b32 s{S_PJ}, s{S_WAVE}, 1")
    mark("K1")
    a("s_cmp_ge_u32 s2, 128")
    for k in range(8):
        a(f"s_cselect_b32 s{36+k}, s{56+k}, s{36+k}")
    a("s_cselect_b32 s84, s86, s84")
    a("s_cselect_b32 s85, s87, s85")
    a(f"s_mov_b32 s86, {4096*640*2}")
    a("s_mov_b32 s87, 0x20000")
    mark("K2")
    a(f"s_and_b32 s{S_A}, s2, 127")
    a(f"s_lshl_b32 s{S_B}, s{S_A}, 20")
    a(f"s_lshl_b32 s{S_C}, s{S_PJ}, 18")
    a(f"s_add_u32 s{S_B}, s{S_B}, s{S_C}")
    a(f"s_add_u32 s38, s38, s{S_B}")
    a("s_addc_u32 s39, s39, 0")
    a(f"s_add_u32 s40, s40, s{S_B}")
    a("s_addc_u32 s41, s41, 0")
    a(f"s_sub_u32 s{S_C}, 0x100000, s{S_C}")
    a(f"s_mov_b32 s{S_K}, s38")
    a(f"s_mov_b32 s{S_K+1}, s39")
    a(f"s_mov_b32 s{S_K+2}, s{S_C}")
    a(f"s_mov_b32 s{S_K+3}, 0x20000")
    a(f"s_cmp_eq_u32 s{S_QH}, 0")
    a(f"s_cselect_b32 s{S_LD}, s38, s40")
    a(f"s_cselect_b32 s{S_LD+1}, s39, s41")
    a(f"s_mov_b32 s{S_LD+2}, {'0' if kv0 else 's'+str(S_C)}")
    a(f"s_mov_b32 s{S_LD+3}, 0x20000")
    if xf:
        a(f"s_add_u32 s36, s44, {4*NQB + 2*4096*640*2}")
        a("s_addc_u32 s37, s45, 0")
        a(f"s_cmp_eq_u32 s{S_QH}, 0")
    mark("K3")
    a(f"s_cselect_b32 s{S_QP}, s42, s36")
    a(f"s_cselect_b32 s{S_QP+1}, s43, s37")
    a(f"s_mov_b32 s{S_A}, {0 if now else 640*4096*2}")
    a(f"s_mov_b32 s{S_B}, {0 if nox else (2*3584*640*2 if xf else 3584*640*2)}")
    a(f"s_cselect_b32 s{S_QP+2}, s{S_A}, s{S_B}")
    a(f"s_mov_b32 s{S_QP+3}, 0x20000")
    mark("T1")
    a(f"s_mov_b32 s{S_A}, {32*8192}")
    a(f"s_mov_b32 s{S_B}, {7168 if (fakex or xf) else 64}")
    a(f"s_cselect_b32 s{S_QSTEP}, s{S_A}, s{S_B}")
    a(f"s_cselect_b32 s{S_QRND}, 512, 0")
    if qch2:
        assert xq and qps and not (xf or fakex or roll or roles or touch or defer or wo2 or wo8 or kvt2 or eep)
        if x128:
            a(f"s_mov_b32 s{S_A}, {64*1280}")
            a(f"s_cselect_b32 s46, 128, s{S_A}")
            a(f"s_mov_b32 s{S_A}, {((6&3)+8*(6>>2))*8192}")
            a(f"s_cselect_b32 s47, s{S_A}, 0x40000000")
            a(f"s_mov_b32 s{S_A}, {((7&3)+8*(7>>2))*8192}")
            a(f"s_cselect_b32 s98, s{S_A}, 0x40000000")
        else:
            a(f"s_cselect_b32 s46, 128, 64")
    a(f"s_mov_b32 s{S_A}, 1056")
    a(f"s_mov_b32 s{S_B}, 1024")
    a(f"s_cselect_b32 s{S_MSTEP}, s{S_A}, s{S_B}")
    for i in range(8):
        a(f"s_mov_b32 s{S_A}, {((i&3)+8*(i>>2))*8192}")
        a(f"s_mov_b32 s{S_B}, {10240*i if x128 else (1024*i if (fakex or xf) else 20480*i) if i < 7 else 0x40000000}")
        a(f"s_cselect_b32 s{S_TAB+i}, s{S_A}, s{S_B}")
    a(f"s_and_b32 s{S_A}, s2, 7")
    a(f"s_lshl_b32 s{S_A}, s{S_A}, 2")
    a(f"s_add_u32 s{S_A}, s{S_A}, s{S_PJ}")
    a(f"s_lshl_b32 s{S_A}, s{S_A}, 8")
    a(f"s_bfe_u32 s{S_B}, s2, {0x50003 if xf else 0x40003}")
    a(f"s_lshl_b32 s{S_B}, s{S_B}, 1")
    a(f"s_add_u32 s{S_B}, s{S_B}, s{S_PJ}")
    a(f"s_mul_i32 s{S_B}, s{S_B}, {112*1280}")
    a(f"s_cmp_eq_u32 s{S_QH}, 0")
    a(f"s_cselect_b32 s55, s{S_A}, s{S_B}")
    mark("K4")
    a(f"s_add_u32 s{S_W}, s44, {wsbase}")
    a(f"s_addc_u32 s{S_W+1}, s45, 0")
    a(f"s_mov_b32 s{S_W+2}, {WS_BYTES}")
    a(f"s_mov_b32 s{S_W+3}, 0x20000")
    a(f"s_lshl_b32 s{S_A}, s2, 2")
    a(f"s_add_u32 s{S_A}, s{S_A}, s{S_PJ}")
    a(f"s_mul_i32 s{S_OOFF}, s{S_A}, {PAIRB}")
    a(f"s_mul_i32 s{S_A}, s{S_QH}, {7*4096}")
    a(f"s_add_u32 s{S_OOFF}, s{S_OOFF}, s{S_A}")
    a(f"s_add_u32 s{S_OOFF}, s{S_OOFF}, {WS_O}")
    a(f"s_mov_b32 s{S_NOFB}, -1")
    a("s_mov_b32 s60, s42"); a("s_mov_b32 s61, s43"); a(f"s_mov_b32 s62, {640*4096*2}"); a("s_mov_b32 s63, 0x20000")
    a(f"s_mov_b32 s{S_T0}, 0")
    a(f"s_mov_b32 s{S_MP}, 0")
    a(f"s_mov_b32 s{S_AS}, 0")
    if defer: a("s_mov_b32 s98, 0x40000000")
    a(f"s_mov_b32 s{S_WO}, {(4 if (wo3 or wo4 or wo8) else 3) if nowo else 0}")
    mark("T3")
    a(f"s_lshr_b32 s26, s2, 3")
    a(f"s_lshr_b32 s{S_A}, s2, {rsh}")
    a(f"s_add_u32 s26, s26, s{S_A}")
    if rotn in (1, 2, 4):
        a(f"s_and_b32 s26, s26, {rotn-1}")
        a(f"s_mul_i32 s26, s26, {20//rotn}")
        if qch2: a("s_and_b32 s26, s26, 30")
    elif rotn == 22:
        a("s_and_b32 s26, s26, 1"); a("s_mul_i32 s26, s26, 4")
    elif rotn == 23:
        a("s_and_b32 s26, s26, 1"); a("s_mul_i32 s26, s26, 6")
    a(f"s_mul_i32 s83, s{S_QSTEP}, 20")
    a(f"s_and_b32 s{S_TY}, s2, {tymask}")
    a(f"s_min_u32 s{S_TY}, s{S_TY}, 1")
    if tyinv: a(f"s_xor_b32 s{S_TY}, s{S_TY}, 1"); a("s_nop 0")
    if tymode == 1:
        a("s_bfe_u32 s3, s2, 0x10005"); a("s_xor_b32 s3, s3, 1"); a(f"s_and_b32 s{S_TY}, s2, s3"); a("s_nop 0")
    if tymode == 2:
        a("s_bfe_u32 s3, s2, 0x10005"); a("s_xor_b32 s3, s3, 1"); a(f"s_and_b32 s{S_TY}, s2, 3"); a(f"s_min_u32 s{S_TY}, s{S_TY}, 1"); a(f"s_and_b32 s{S_TY}, s{S_TY}, s3")
    if tymode == 3:
        a("s_bfe_u32 s3, s2, 0x10005"); a("s_xor_b32 s3, s3, 1"); a(f"s_and_b32 s{S_TY}, s2, 3"); a(f"s_cmp_eq_u32 s{S_TY}, 0"); a(f"s_cselect_b32 s{S_TY}, 1, 0"); a(f"s_or_b32 s{S_TY}, s{S_TY}, s3")
    if tymode == 4:
        a(f"s_and_b32 s{S_TY}, s2, 3"); a(f"s_cmp_eq_u32 s{S_TY}, 0"); a(f"s_cselect_b32 s{S_TY}, 1, 0"); a("s_nop 0")
    if tymode == 5:
        a(f"s_and_b32 s{S_TY}, s2, 7"); a(f"s_lshr_b32 s3, 0x49, s{S_TY}"); a(f"s_and_b32 s{S_TY}, s3, 1"); a("s_nop 0")
    if tymode == 6:
        a(f"s_and_b32 s{S_TY}, s2, 7"); a(f"s_cmp_eq_u32 s{S_TY}, 0"); a(f"s_cselect_b32 s{S_TY}, 1, 0"); a("s_nop 0")
    if tymode == 7:
        a(f"s_and_b32 s{S_TY}, s2, 3"); a(f"s_min_u32 s{S_TY}, s{S_TY}, 1"); a("s_nop 0")
    a(f"s_mov_b32 s{S_PRE}, s{S_TY}")
    mark("T3b")
    a(f"s_mov_b32 s{S_THR}, 0x4e800000")
    import struct
    cs = struct.unpack("<I", struct.pack("<f", (128 ** -0.5) * 1.4426950408889634))[0]
    a(f"s_mov_b32 s{S_CS}, {cs:#x}")
    mark("T4")
    a(f"s_lshl_b32 s{S_A}, s{S_QH}, 1")
    a(f"s_add_u32 s{S_A}, s{S_A}, s{S_PJ}")
    a(f"s_mul_i32 s{S_LDB}, s{S_A}, {AREA}")
    mark("T4e")
    if stamp:
        a("s_memtime s[64:65]")
        a("s_memrealtime s[66:67]")
        a("s_load_dwordx2 s[46:47], s[0:1], 88")
        a("s_waitcnt lgkmcnt(0)")
    G, N = V_T0, V_T1
    a(f"v_lshlrev_b32 v{V_LIN}, 4, v{V_LANE}")
    a(f"v_lshrrev_b32 v{G}, 4, v{V_LANE}")
    a(f"v_and_b32 v{N}, 15, v{V_LANE}")
    a(f"v_lshlrev_b32 v{V_T2}, 4, v{N}")
    a(f"v_lshl_add_u32 v{V_DMA}, v{G}, {kvgs}, v{V_T2}")
    mark("Vw")
    if qch2:
        a(f"v_and_b32 v{V_QD}, 7, v{V_LANE}")
        a(f"v_lshlrev_b32 v{V_QD}, 4, v{V_QD}")
        a(f"v_bfe_u32 v{V_T3}, v{V_LANE}, 3, 1")
        a(f"v_lshl_add_u32 v{V_QD}, v{V_T3}, 15, v{V_QD}")
        a(f"v_bfe_u32 v{V_T3}, v{V_LANE}, 4, 1")
        a(f"v_lshl_add_u32 v{V_QD}, v{V_T3}, 17, v{V_QD}")
        a(f"v_bfe_u32 v{V_T3}, v{V_LANE}, 5, 1")
        a(f"v_lshl_add_u32 v{V_QD}, v{V_T3}, 18, v{V_QD}")
    else:
        a(f"v_bfe_u32 v{V_T3}, v{V_LANE}, 4, 1")
        a(f"v_lshl_add_u32 v{V_QD}, v{V_T3}, 15, v{V_T2}")
        a(f"v_bfe_u32 v{V_T3}, v{V_LANE}, 5, 1")
        a(f"v_lshl_add_u32 v{V_QD}, v{V_T3}, 17, v{V_QD}")
    mark("Vd")
    a(f"v_mul_u32_u24 v{V_BA}, 1280, v{N}")
    a(f"v_lshl_add_u32 v{V_BA}, v{G}, 4, v{V_BA}")
    mark("Vx")
    if fakex or xf: a(f"v_mov_b32 v{V_BA}, v{V_LIN}")
    if x128:
        a(f"v_lshrrev_b32 v{V_T3}, 3, v{V_LANE}")
        a(f"v_and_b32 v{V_BA}, 6, v{V_T3}")
        a(f"v_xor_b32 v{V_BA}, v{V_BA}, v{V_LANE}")
        a(f"v_and_b32 v{V_BA}, 7, v{V_BA}")
        a(f"v_lshlrev_b32 v{V_BA}, 4, v{V_BA}")
        a(f"v_mul_u32_u24 v{V_T3}, 1280, v{V_T3}")
        a(f"v_add_u32 v{V_BA}, v{V_BA}, v{V_T3}")
    elif xq:
        a(f"v_lshrrev_b32 v{V_T3}, 4, v{V_LANE}")
        a(f"v_and_b32 v{V_BA}, 1, v{V_T3}")
        a(f"v_lshlrev_b32 v{V_BA}, 1, v{V_BA}")
        a(f"v_lshrrev_b32 v{V_T3}, 1, v{V_T3}")
        a(f"v_mul_u32_u24 v{V_T3}, 3, v{V_T3}")
        a(f"v_xor_b32 v{V_BA}, v{V_BA}, v{V_T3}")
        a(f"v_and_b32 v{V_T3}, 3, v{V_LANE}")
        a(f"v_xor_b32 v{V_BA}, v{V_BA}, v{V_T3}")
        a(f"v_lshlrev_b32 v{V_BA}, 4, v{V_BA}")
        a(f"v_lshrrev_b32 v{V_T3}, 2, v{V_LANE}")
        a(f"v_mul_u32_u24 v{V_T3}, 1280, v{V_T3}")
        a(f"v_add_u32 v{V_BA}, v{V_BA}, v{V_T3}")
    a(f"s_cmp_eq_u32 s{S_QH}, 0")
    a("s_cselect_b64 vcc, -1, 0")
    a("s_nop 1")
    a(f"v_cndmask_b32 v{V_QD}, v{V_BA}, v{V_QD}, vcc")
    mark("Vxe")
    a(f"s_add_u32 s{S_A}, s{S_QH}, 2")
    a(f"s_mul_i32 s{S_A}, s{S_A}, {AREA}")
    if x128:
        a(f"v_and_b32 v{V_BA}, 6, v{N}")
        a(f"v_xor_b32 v{V_BA}, v{V_BA}, v{G}")
        a(f"v_lshlrev_b32 v{V_BA}, 4, v{V_BA}")
        a(f"v_and_b32 v{V_T3}, 7, v{N}")
        a(f"v_lshl_add_u32 v{V_BA}, v{V_T3}, 7, v{V_BA}")
        a(f"v_lshrrev_b32 v{V_T3}, 3, v{N}")
        a(f"v_lshl_add_u32 v{V_BA}, v{V_T3}, 10, v{V_BA}")
        a(f"v_add_u32 v{V_BA}, s{S_A}, v{V_BA}")
    elif xq:
        a(f"v_bfe_u32 v{V_T3}, v{V_LANE}, 2, 2")
        a(f"v_and_b32 v{V_BA}, 1, v{V_T3}")
        a(f"v_lshlrev_b32 v{V_BA}, 1, v{V_BA}")
        a(f"v_lshrrev_b32 v{V_T3}, 1, v{V_T3}")
        a(f"v_mul_u32_u24 v{V_T3}, 3, v{V_T3}")
        a(f"v_xor_b32 v{V_BA}, v{V_BA}, v{V_T3}")
        a(f"v_xor_b32 v{V_BA}, v{V_BA}, v{G}")
        a(f"v_lshlrev_b32 v{V_BA}, 4, v{V_BA}")
        a(f"v_lshl_add_u32 v{V_BA}, v{N}, 6, v{V_BA}")
        a(f"v_add_u32 v{V_BA}, s{S_A}, v{V_BA}")
    else:
        a(f"v_add_u32 v{V_BA}, s{S_A}, v{V_LIN}")
    if operm:
        a(f"v_lshl_add_u32 v{V_XA}, v{G}, 8, v{V_T2}")
    else:
        a(f"v_bfe_u32 v{V_T3}, v{V_LANE}, 4, 1")
        a(f"v_lshl_add_u32 v{V_T2}, v{V_T3}, 9, v{V_T2}")
        a(f"v_bfe_u32 v{V_T3}, v{V_LANE}, 5, 1")
        a(f"v_lshl_add_u32 v{V_XA}, v{V_T3}, 8, v{V_T2}")
    a(f"v_and_b32 v{V_T2}, 7, v{N}")
    a(f"v_lshlrev_b32 v{V_KA}, 10, v{V_T2}")
    a(f"v_and_b32 v{V_T3}, 1, v{N}")
    a(f"v_lshl_add_u32 v{V_KA}, v{V_T3}, 4, v{V_KA}")
    a(f"v_bfe_u32 v{V_T3}, v{N}, 1, 2")
    a(f"v_lshl_add_u32 v{V_KA}, v{V_T3}, 6, v{V_KA}")
    a(f"v_lshrrev_b32 v{V_T3}, 3, v{N}")
    a(f"v_lshl_add_u32 v{V_KA}, v{V_T3}, 8, v{V_KA}")
    a(f"v_bfe_u32 v{V_T3}, v{V_LANE}, 4, 1")
    a(f"v_lshl_add_u32 v{V_KA}, v{V_T3}, 5, v{V_KA}")
    a(f"v_bfe_u32 v{V_T3}, v{V_LANE}, 5, 1")
    a(f"v_lshl_add_u32 v{V_KA}, v{V_T3}, 4, v{V_KA}")
    a(f"s_mul_i32 s{S_A}, s{S_PJ}, {AREA}")
    a(f"v_add_u32 v{V_KA}, s{S_A}, v{V_KA}")
    a(f"v_bfe_u32 v{N}, v{V_LANE}, 2, 2")
    a(f"v_bfe_u32 v{V_T3}, v{V_LANE}, 4, 1")
    a(f"v_lshl_add_u32 v{V_T2}, v{V_T3}, 2, v{N}")
    a(f"v_mul_u32_u24 v{V_T2}, 1056, v{V_T2}")
    a(f"v_bfe_u32 v{V_T3}, v{V_LANE}, 5, 1")
    a(f"v_lshl_add_u32 v{V_T2}, v{V_T3}, {8 if qch2 else 9}, v{V_T2}")
    a(f"v_and_b32 v{V_T3}, 3, v{V_LANE}")
    a(f"v_lshl_add_u32 v{V_T2}, v{V_T3}, 3, v{V_T2}")
    a(f"v_add_u32 v{V_WA}, s{S_A}, v{V_T2}")
    a(f"v_lshl_add_u32 v{N}, v{G}, 2, v{N}")
    a(f"v_and_b32 v{V_T2}, 7, v{N}")
    a(f"v_mul_u32_u24 v{V_T2}, 1056, v{V_T2}")
    a(f"v_lshrrev_b32 v{V_T3}, 3, v{N}")
    a(f"v_lshl_add_u32 v{V_T2}, v{V_T3}, 8, v{V_T2}")
    a(f"v_and_b32 v{V_T3}, 3, v{V_LANE}")
    a(f"v_lshl_add_u32 v{V_T2}, v{V_T3}, 3, v{V_T2}")
    a(f"s_add_u32 s{S_A}, s{S_A}, {2*AREA}")
    a(f"v_add_u32 v{V_VA}, s{S_A}, v{V_T2}")
    for i in range(7):
        a(f"v_mov_b32 v{V_L+2*i}, 0xff800000")
    a(f"v_mov_b32 v{V_T0}, 0x3f803f80")
    for i in range(4): a(f"v_accvgpr_write_b32 a{A_ONE+i}, v{V_T0}")
    a(f"v_and_b32 v{V_T0}, 3, v{V_LANE}")
    a(f"v_lshlrev_b32 v{V_T0}, 2, v{V_T0}")
    a(f"v_add_u32 v{V_T0}, {LDS_FLAG}, v{V_T0}")
    a(f"v_mov_b32 v{V_T1}, 0")
    a(f"ds_write_b32 v{V_T0}, v{V_T1}")
    a(f"s_cmp_eq_u32 s{S_QH}, 0")
    a(f"s_mov_b32 s{S_A}, {kpad(1)-kpad(0)-256}")
    a(f"s_mov_b32 s{S_B}, 800")
    a(f"s_cselect_b32 s96, s{S_A}, s{S_B}")
    a(f"s_mov_b32 s{S_A}, {kpad(2)-kpad(1)-256}")
    a(f"s_cselect_b32 s97, s{S_A}, s{S_B}")

    a(f"v_lshrrev_b32 v{V_T0}, 1, v{V_LANE}")
    a(f"v_lshlrev_b32 v{V_T0}, 13, v{V_T0}")
    a(f"v_and_b32 v{V_T1}, 1, v{V_LANE}")
    a(f"v_lshl_add_u32 v{V_T0}, v{V_T1}, 7, v{V_T0}")
    a(f"v_lshlrev_b32 v{V_T1}, 7, v{V_LANE}")
    a(f"s_bfe_u32 s{S_A}, s2, 0x20003")
    a(f"s_lshl_b32 s{S_A}, s{S_A}, 18")
    a(f"s_and_b32 s{S_B}, s2, 7")
    a(f"s_mul_i32 s{S_B}, s{S_B}, 17920")
    a(f"s_cmp_eq_u32 s{S_QH}, 0")
    a("s_cselect_b64 vcc, -1, 0")
    a(f"s_cselect_b32 s100, s{S_A}, s{S_B}")
    a(f"s_add_u32 s100, s100, s55")
    a(f"s_cmp_eq_u32 s{S_QH}, 0")
    a(f"s_mov_b32 s{S_A}, {4*32*8192}")
    a(f"s_mov_b32 s{S_B}, 8192")
    a(f"s_cselect_b32 s99, s{S_A}, s{S_B}")
    a(f"v_cndmask_b32 v{V_LIN}, v{V_T1}, v{V_T0}, vcc")
    if x128:
        assert qch2 and not kvt2
        a(f"v_xor_b32 v{V_LIN}, 64, v{V_BA}")
    def tf0(u): return (u & ((1 << kvgs) - 1)) | ((u >> kvgs) << (kvgs + 2))
    if kvt2:
        lb = kvgs - int(math.log2(kvts))
        if lb >= 6:
            a(f"v_mul_u32_u24 v{V_LIN}, {kvts}, v{V_LANE}")
        else:
            a(f"v_and_b32 v{V_T0}, {(1 << lb) - 1}, v{V_LANE}")
            a(f"v_mul_u32_u24 v{V_T0}, {kvts}, v{V_T0}")
            a(f"v_lshrrev_b32 v{V_T1}, {lb}, v{V_LANE}")
            a(f"v_lshl_add_u32 v{V_LIN}, v{V_T1}, {kvgs + 2}, v{V_T0}")
    def tch(s_): return bool(kvt2) and s_ < 16 and s_ % tper == 0
    def tvn(s_): return sum(1 for t in range(max(0, s_ - 3), s_) if tch(t))
    def tinc(k): return tf0((k + 1) * 64 * kvts) - tf0(k * 64 * kvts)
    if kvrot == 0 and kvgs != 11: a("s_mov_b32 s100, 0")
    if kvrot == 1:
        a("s_and_b32 s100, s2, 31")
    if kvrot == 2:
        a("s_mul_i32 s100, s2, 11"); a(f"s_lshr_b32 s{S_A}, s2, 5"); a(f"s_mul_i32 s{S_A}, s{S_A}, 7"); a(f"s_add_u32 s100, s100, s{S_A}")
        a(f"s_lshl_b32 s{S_A}, s{S_PJ}, 4"); a(f"s_add_u32 s100, s100, s{S_A}"); a(f"s_and_b32 s76, s100, 3") if gkv in (2, 4) else None; a(f"s_and_b32 s100, s100, {28 if gkv in (1, 2, 4) else 31}")
    if kvrot == 3:
        a("s_lshr_b32 s100, s2, 5"); a("s_lshl_b32 s100, s100, 2")
    if rflip:
        if rflip == 1: a(f"s_bfe_u32 s{S_A}, s2, 0x10005")
        if rflip == 2: a(f"s_bfe_u32 s{S_A}, s2, 0x10006")
        if rflip == 3: a(f"s_bfe_u32 s{S_A}, s2, 0x10007")
        if rflip == 4: a(f"s_bfe_u32 s{S_A}, s2, 0x10003")
        a(f"s_lshl_b32 s101, s{S_A}, 19")
        a(f"s_mul_i32 s{S_B}, s{S_A}, s{S_QRND}")
        a(f"s_add_u32 s55, s55, s{S_B}")
        a(f"s_sub_u32 s{S_B}, 0, s{S_QRND}")
        a(f"s_cmp_lg_u32 s{S_A}, 0")
        a(f"s_cselect_b32 s{S_QRND}, s{S_B}, s{S_QRND}")
        a(f"s_mov_b32 s99, {2*PAIRB}")
        a(f"s_cselect_b32 s99, {-2*PAIRB & 0xffffffff:#x}, s99")
        a(f"s_mul_i32 s{S_B}, s{S_A}, {2*PAIRB}")
        a(f"s_add_u32 s{S_OOFF}, s{S_OOFF}, s{S_B}")
    tstate = {"t": 0}
    def touch_one():
        if not touch: return
        a(f"buffer_load_dword v0, v{V_LIN}, s[{S_QP}:{S_QP+3}], s98 offen{' nt' if tnt else ''}")
        a(f"s_add_u32 s98, s98, s99")
        tstate["t"] += 1
    if xmem or dupst:
        a("s_add_u32 s72, s44, 0x8000000"); a("s_addc_u32 s73, s45, 0"); a("s_mov_b32 s74, 0x18000000"); a("s_mov_b32 s75, 0x20000")
        a("s_lshl_b32 s76, s2, 2"); a(f"s_add_u32 s76, s76, s{S_WAVE}"); a("s_mul_i32 s76, s76, 0x60000")
    dstate = {"i": 0, "kind": None}
    state = {"n": 0}
    def dma_setup(slot, kind):
        if kind == "KV":
            if kvgs != 11:
                ln_ = kvgs - 11
                a(f"s_add_u32 s{S_B}, s{S_DJ}, s100")
                if gkv in (2, 4): a(f"s_xor_b32 s{S_B}, s{S_B}, s76")
                a(f"s_bfe_u32 s{S_A}, s{S_B}, {((5 - ln_) << 16) | ln_:#x}")
                a(f"s_lshl_b32 s{S_A}, s{S_A}, {kvgs + 2}")
                a(f"s_and_b32 s{S_B}, s{S_B}, {(1 << ln_) - 1}")
                a(f"s_lshl_b32 s{S_B}, s{S_B}, 11")
                a(f"s_add_u32 s{S_B}, s{S_A}, s{S_B}")
                a(f"s_lshr_b32 s{S_A}, s{S_DJ}, 5")
                a(f"s_lshl_b32 s{S_A}, s{S_A}, 19")
                if rflip: a(f"s_xor_b32 s{S_A}, s{S_A}, s101")
                a(f"s_add_u32 s{S_DOFF}, s{S_A}, s{S_B}")
            elif kvrot:
                a(f"s_lshr_b32 s{S_A}, s{S_DJ}, 5")
                a(f"s_lshl_b32 s{S_A}, s{S_A}, 19")
                if rflip: a(f"s_xor_b32 s{S_A}, s{S_A}, s101")
                a(f"s_add_u32 s{S_B}, s{S_DJ}, s100")
                a(f"s_and_b32 s{S_B}, s{S_B}, 31")
                a(f"s_lshl_b32 s{S_B}, s{S_B}, 13")
                a(f"s_add_u32 s{S_DOFF}, s{S_A}, s{S_B}")
            else:
                a(f"s_lshr_b32 s{S_A}, s{S_DJ}, 5")
                a(f"s_lshl_b32 s{S_A}, s{S_A}, 18")
                a(f"s_lshl_b32 s{S_B}, s{S_DJ}, 13")
                a(f"s_add_u32 s{S_DOFF}, s{S_A}, s{S_B}")
            if kvl2: a(f"s_and_b32 s{S_DOFF}, s{S_DOFF}, {0x7fff if kvl2 is True else kvl2 - 1}")
            a(f"s_add_u32 m0, s{S_LDB}, {slot*TILE}")
            a(f"s_add_u32 s{S_DJ}, s{S_DJ}, 1")
        elif qch2:
            a(f"s_add_u32 m0, s{S_LDB}, {slot*TILE}")
            if slot & 1 == 0:
                a(f"s_mov_b32 s{S_DOFF}, s{S_QS}")
            else:
                a(f"s_add_u32 s{S_DOFF}, s{S_QS}, s46")
                a(f"s_lshl1_add_u32 s{S_QS}, s{S_QSTEP}, s{S_QS}")
                if rot:
                    a("s_add_u32 s82, s82, 2")
                    a("s_cmp_eq_u32 s82, 20")
                    a(f"s_cselect_b32 s{S_B}, s83, 0")
                    a(f"s_sub_u32 s{S_QS}, s{S_QS}, s{S_B}")
        else:
            a(f"s_add_u32 m0, s{S_LDB}, {slot*TILE}")
            a(f"s_mov_b32 s{S_DOFF}, s{S_QS}")
            a(f"s_add_u32 s{S_QS}, s{S_QS}, s{S_QSTEP}")
            if rot:
                a("s_add_u32 s82, s82, 1")
                a("s_cmp_eq_u32 s82, 20")
                a(f"s_cselect_b32 s{S_B}, s83, 0")
                a(f"s_sub_u32 s{S_QS}, s{S_QS}, s{S_B}")
        dstate["i"] = 0; dstate["kind"] = kind; dstate["odd"] = slot & 1
    def dma_one(pad=False):
        i = dstate["i"]
        if dstate["kind"] == "KV":
            if pad: a("s_nop 0")
            if not noload:
                a(f"buffer_load_dwordx4 v{V_DMA}, s[{S_LD}:{S_LD+3}], s{S_DOFF} offen offset:{256*i}{NT} lds")
            if i < 7: a(f"s_add_u32 m0, m0, s{96+(i&1)}")
        else:
            tab = [47, 98][i - 6] if (x128 and dstate["odd"] and i >= 6) else S_TAB + i
            if sea >= 4 and dstate.get("qe") and not (x128 and dstate["odd"] and i >= 6):
                assert x128
                if not qpnl: a(f"global_load_lds_dwordx4 v{V_S+i}, s[64:65]")
            elif sea >= 2 and dstate.get("qe"):
                if not qpnl: a(f"buffer_load_dwordx4 v{V_P}, s[{S_QP}:{S_QP+3}], s{tab} offen{' nt' if qnt else ''} lds")
            else:
                a(f"s_add_u32 s{S_A}, s{S_DOFF}, s{tab}")
                if not qpnl: a(f"buffer_load_dwordx4 v{V_QD}, s[{S_QP}:{S_QP+3}], s{S_A} offen{' nt' if qnt else ''} lds")
            if i < 7: a(f"s_add_u32 m0, m0, s{S_MSTEP}")
        dstate["i"] = i + 1
    def qs_init(rnd_sgpr, q=3):
        if kvt2:
            a(f"s_lshl_b32 s98, s{S_T}, 19")
            if q == "pre":
                a(f"s_lshl_b32 s{S_A}, s{S_PRE}, {kvgs}"); a(f"s_sub_u32 s98, s98, s{S_A}"); q = 3
            a(f"s_add_u32 s98, s98, {q << kvgs}")
        a(f"s_mul_i32 s{S_QS}, s{rnd_sgpr}, s{S_QRND}")
        if not rflip: a(f"s_mov_b32 s101, s{rnd_sgpr}")
        a(f"s_add_u32 s{S_QS}, s{S_QS}, s55")
        a(f"s_cmp_ge_u32 s{rnd_sgpr}, 2")
        a(f"s_cselect_b32 s{S_A}, 0x40000000, 0")
        a(f"s_add_u32 s{S_QS}, s{S_QS}, s{S_A}")
        if rot:
            a("s_mov_b32 s82, s26")
            a(f"s_mul_i32 s{S_A}, s26, s{S_QSTEP}")
            a(f"s_add_u32 s{S_QS}, s{S_QS}, s{S_A}")

    def touch_init(rnd_sgpr):
        if not touch: return
        a(f"s_mul_i32 s98, s{rnd_sgpr}, s{S_QRND}")
        a(f"s_add_u32 s98, s98, s100")
        a(f"s_cmp_ge_u32 s{rnd_sgpr}, 2")
        a(f"s_cselect_b32 s{S_A}, 0x40000000, 0")
        a(f"s_add_u32 s98, s98, s{S_A}")
        tstate["t"] = 0
    def kread(f, slot):
        if anrd and state.get("inat"): return
        kt, s = f >> 2, f & 3
        a.lds(f"ds_read_b128 {vr(V_KF+4*f,4)}, v{V_KA} offset:{slot*TILE+kt*512+s*64}", "K")
    def vread(l, slot):
        if anrd and state.get("inat"): return
        for v in range(2):
            a.lds(f"ds_read_b64_tr_b16 {vr(V_VF+4*l+2*v,2)}, v{V_VA} offset:{slot*TILE+v*512+l*32}", "V")
    def wread(l, slot):
        for v in range(2):
            a.lds(f"ds_read_b64_tr_b16 {vr(V_VF+4*l+2*v,2)}, v{V_WA} offset:{slot*TILE+v*256+l*32}", "W")
    def wread2(lp, kk, slot):
        for v in range(2):
            a.lds(f"ds_read_b64_tr_b16 {vr(V_VF+8*lp+4*kk+2*v,2)}, v{V_WA} offset:{slot*TILE+kk*512+v*128+lp*32}", "W")
    def bset(st_, kk, qt):
        if st_ == 0: return vr((V_CI if kk == 0 else V_KF) + 4 * qt, 4)
        return ar(A_Q + 28 * kk + 4 * qt, 4)
    def bread2(st_, kk, qt, slot):
        if x128:
            sl = ((slot - kk) + (qt >> 2)) & 3
            a.lds(f"ds_read_b128 {bset(st_, kk, qt)}, v{V_LIN if kk else V_BA} offset:{sl*TILE+(qt&3)*2048}", "B")
            return
        a.lds(f"ds_read_b128 {bset(st_, kk, qt)}, v{V_BA} offset:{slot*TILE+qt*1024}", "B")
    def bbuf(buf, qt): return (V_KF if buf == 0 else V_CI) + 4 * qt
    def bread(buf, qt, slot):
        a.lds(f"ds_read_b128 {vr(bbuf(buf,qt),4)}, v{V_BA} offset:{slot*TILE+qt*1024}", "B")
    def oreg(l, qt):
        return vr(V_OK + 28 * l + 4 * qt, 4) if l < 4 else ar(A_OS + 28 * (l - 4) + 4 * qt, 4)

    def barrier(dyn=False, vn=16, xt=0):
        vn += xt
        if dyn:
            n = len(a.lines)
            a(f"s_cmp_eq_u32 s{S_AS}, 0")
            if inv:
                a(f"s_cbranch_scc0 L_bw1_{n}")
                a(f"s_waitcnt vmcnt({vn}) lgkmcnt(0)")
                a.label(f"L_bw2_{n}")
                if wo2 or wo8 or wtch in (2, 3):
                    state.setdefault("ool", []).extend([f"L_bw1_{n}:", f"    s_sub_u32 s{S_AS}, s{S_AS}, 1", f"    s_bitcmp1_b32 s{S_AS}, 8", f"    s_cbranch_scc1 L_bw3_{n}",
                        f"    s_waitcnt vmcnt({44 + xt}) lgkmcnt(0)", f"    s_branch L_bw2_{n}",
                        f"L_bw3_{n}:", f"    s_bitcmp1_b32 s{S_AS}, 9", f"    s_cbranch_scc1 L_bw4_{n}",
                        f"    s_and_b32 s99, s{S_AS}, 0xff", f"    s_cselect_b32 s{S_AS}, s{S_AS}, 0",
                        f"    s_waitcnt vmcnt({21 + xt}) lgkmcnt(0)", f"    s_branch L_bw2_{n}",
                        f"L_bw4_{n}:", f"    s_and_b32 s99, s{S_AS}, 0xff", f"    s_cselect_b32 s{S_AS}, s{S_AS}, 0",
                        f"    s_waitcnt vmcnt({54 + xt}) lgkmcnt(0)", f"    s_branch L_bw2_{n}"])
                elif eep:
                    assert xt == 0
                    state.setdefault("ool", []).extend([f"L_bw1_{n}:", f"    s_sub_u32 s{S_AS}, s{S_AS}, 1",
                        f"    s_cmp_eq_u32 s{S_AS}, 0x101", f"    s_cbranch_scc1 L_bw3_{n}",
                        f"    s_cmp_eq_u32 s{S_AS}, 0x100", f"    s_cbranch_scc1 L_bw4_{n}",
                        f"    s_cmp_eq_u32 s{S_AS}, 0x200", f"    s_cbranch_scc1 L_bw5_{n}",
                        f"    s_waitcnt vmcnt(44) lgkmcnt(0)", f"    s_branch L_bw2_{n}",
                        f"L_bw3_{n}:", f"    s_waitcnt vmcnt(@NA1@) lgkmcnt(0)", f"    s_branch L_bw2_{n}",
                        f"L_bw4_{n}:", f"    s_mov_b32 s{S_AS}, 0", f"    s_waitcnt vmcnt(@NA2@) lgkmcnt(0)", f"    s_branch L_bw2_{n}",
                        f"L_bw5_{n}:", f"    s_mov_b32 s{S_AS}, 0", f"    s_waitcnt vmcnt(@NB2@) lgkmcnt(0)", f"    s_branch L_bw2_{n}"])
                else:
                    state.setdefault("ool", []).extend([f"L_bw1_{n}:", f"    s_sub_u32 s{S_AS}, s{S_AS}, 1", f"    s_waitcnt vmcnt({28 + vn}) lgkmcnt(0)", f"    s_branch L_bw2_{n}"])
                a.lds_q = []
                a("s_barrier")
                return
            a(f"s_cbranch_scc1 L_bw1_{n}")
            a(f"s_sub_u32 s{S_AS}, s{S_AS}, 1")
            a(f"s_waitcnt vmcnt({44 + xt}) lgkmcnt(0)")
            a(f"s_branch L_bw2_{n}")
            a.label(f"L_bw1_{n}")
            a(f"s_waitcnt vmcnt({vn}) lgkmcnt(0)")
            a.label(f"L_bw2_{n}")
        else:
            a(f"s_waitcnt vmcnt({vn}) lgkmcnt(0)")
        a.lds_q = []
        a("s_barrier")

    def cap(fn):
        n0 = len(a.lines); q0 = list(a.lds_q)
        fn()
        ls = a.lines[n0:]; del a.lines[n0:]; a.lds_q = q0
        return ls
    def is_scalar(ln):
        return ln.strip().startswith("s_")
    class Gaps:
        def __init__(self, n):
            self.n = n; self.S = [[] for _ in range(n)]; self.V = [[] for _ in range(n)]; self.c = [0] * n
        def putS(self, ln, lo, hi=None):
            for g in range(lo, self.n):
                if len(self.S[g]) == 0:
                    self.S[g].append(ln); return g
            self.S[self.n - 1].append(ln); return self.n - 1
        def putV(self, ln, lo, cost=1, cap_=2):
            for g in range(lo, self.n):
                if self.c[g] + cost <= cap_:
                    self.V[g].append(ln); self.c[g] += cost; return g
            self.V[self.n - 1].append(ln); self.c[self.n - 1] += cost; return self.n - 1
        def atV(self, ln, g, cost=1):
            self.V[g].append(ln); self.c[g] += cost
        def atS(self, ln, g):
            self.S[g].append(ln)
    DITEMS = [(qt, T) for qt in range(7) for T in range(4)]
    DS = {}
    if defer:
        ntl = (28 - 8 - 4 * dnp) // 4
        assert 4 * dnp + 8 + 4 * ntl == 28
        k_ = 0
        for i in range(4): DS[("P", i)] = DITEMS[k_:k_ + dnp]; k_ += dnp
        for i in (1, 0, 3, 2): DS[("L", i)] = DITEMS[k_:k_ + 2]; k_ += 2
        for i in range(4): DS[("T", i)] = DITEMS[k_:k_ + ntl]; k_ += ntl
    DLIVE = {1: 0, 0: 1, 3: 1, 2: 2}
    def dcount(code):
        if not defer or code is None: return 0
        kind, i = code
        n = lambda c: len(DS.get(c, []))
        if kind == "P": return sum(n(("P", t)) for t in (i - 2, i - 1) if t >= 0)
        prev = lambda k, t: (k, t) if t >= 0 else None
        if kind == "L":
            if i >= 2: return n(("L", i - 2)) + n(("L", i - 1))
            if i == 1: return min(n(("P", 3)), n(("L", 3))) + n(("L", 0))
            return min(n(("P", 2)) + n(("P", 3)), n(("L", 2)) + n(("L", 3)))
        if kind in ("T", "B"):
            m = lambda t: n((kind, t)) if t >= 0 else n(("L", 4 + t))
            return m(i - 2) + m(i - 1)
    def qp_stage2(sm, first, dma, last, chk, after_store, vn, nok, sidx, code=None):
        buf = sm & 1; nslot = (sm + 1) & 3
        BAR = qbar
        G = Gaps(56)
        su = cap(lambda: dma_setup(sm, dma))
        g = BAR - 1
        g = 0
        for ln in su:
            g = G.putS(ln, g) + 1
        prev = g
        w5 = wo5 == 1 and code == ("T", 0)
        for i in range(8):
            ls = cap(lambda: dma_one(False))
            tg = max(qd0 + (4 if w5 else qdstep) * i, prev)
            pre_ = [l for l in ls if is_scalar(l) and "m0" not in l]
            ld = [l for l in ls if not is_scalar(l)]
            post = [l for l in ls if is_scalar(l) and "m0" in l]
            for l in pre_: tg = G.putS(l, tg)
            for l in ld: G.atV(l, tg)
            prev = tg + 1
            for l in post: prev = G.putS(l, tg + 1) + 1
        dstate["i"] = 8
        if w5:
            assert prev <= 39, prev
            for i in range(5): G.atV(f"    v_accvgpr_read_b32 v{V_S+i}, a{244+i}", i)
            G.atS(f"    s_cmp_eq_u32 s{S_WO}, 0", 39)
            G.atS(f"    s_cselect_b32 s57, s56, 0x40000000", 39)
            for i in range(5):
                G.atS(f"    s_add_u32 m0, s58, {1024*i}", 40 + 3*i)
                G.atV(f"    buffer_load_dwordx4 v{V_S+i}, s[84:87], s57 offen lds", 41 + 3*i)
        if code in DS:
            its = DS[code]; lastq = None
            for n_, (qt_, T_) in enumerate(its):
                tg = qd0 + 3 + n_ * 2 * qdstep
                if qt_ != lastq:
                    if code[0] == "L":
                        G.atS(f"    s_cmp_eq_u32 s{S_CNT}, {DLIVE[code[1]]}", tg - 2)
                        G.atS(f"    s_cselect_b32 s99, s98, 0x40000000", tg - 2)
                        G.atS(f"    s_add_u32 s99, s99, {qt_*4096}", tg - 1)
                    else:
                        G.atS(f"    s_add_u32 s99, s98, {qt_*4096}", tg - 1)
                    lastq = qt_
                G.atV(f"    buffer_store_dwordx4 {ar(A_Q+16*qt_+4*T_,4)}, v{V_XA}, s[{S_W}:{S_W+3}], s99 offen offset:{1024*T_} {dpol}".rstrip(), tg)
        if tch(sidx):
            k_ = sidx // tper
            tg = min(prev + 1, 54)
            G.atV(f"    buffer_load_dword v{V_S+12}, v{V_LIN}, s[{S_LD}:{S_LD+3}], s98 offen {tpol}".rstrip(), tg)
            G.putS(f"    s_add_u32 s98, s98, {tinc(k_)}", tg + 1)
        if qnrd: pass
        elif not last:
            lo = BAR - 1
            for ln in cap(lambda: wread(0, nslot)): lo = G.putV(ln, lo, cap_=1)
            for qt in range(7):
                for ln in cap(lambda: bread(buf ^ 1, qt, nslot)): lo = G.putV(ln, lo, cap_=1)
            for l in range(1, 8):
                lo = max(lo, min(7 * (l + 1) - 1, 55))
                for ln in cap(lambda: wread(l, nslot)): lo = G.putV(ln, lo, cap_=(1 if l < 7 else 2))
        elif not nok:
            lo = BAR - 1
            for f in range(8):
                for ln in cap(lambda: kread(f, nslot)): lo = G.putV(ln, lo, cap_=1)
        a("s_waitcnt lgkmcnt(14)")
        j = 0
        for l in range(8):
            for qt in range(7):
                c = "0" if first else oreg(l, qt)
                if qt == 0 and l > 0 and j < BAR: a(f"s_waitcnt lgkmcnt({14-2*l})")
                a(f"{MFMA} {oreg(l, qt)}, {vr(V_VF+4*l,4)}, {vr(bbuf(buf,qt),4)}, {c}")
                for ln in G.S[j]: a.lines.append(ln)
                if j == BAR - 1:
                    if not qnbar: barrier(after_store, 16, tvn(sidx) + dcount(code) + (5 if (wo5 == 1 and code in (("T", 1), ("T", 2), ("T", 3))) else 0))
                    if chk: flagcheck()
                for ln in G.V[j]: a.lines.append(ln)
                j += 1
    def qp_stage3(sm, first, dma, last, chk, after_store, nok):
        h = sm & 1; cur = (sm >> 1) & 1; nslot = (sm + 1) & 3
        BAR = qbar
        G = Gaps(56)
        nodma = tdef and dma == "KV" and sm >= (2 if tdef >= 3 else 4 - tdef)
        half = tdef == 5 and dma == "KV"
        if half: nodma = False
        su = [] if (nodma or (half and (sm & 1))) else cap(lambda: dma_setup(sm >> 1 if half else sm, dma))
        if half and (sm & 1): dstate["i"] = 4
        g = 0
        for ln in su:
            g = G.putS(ln, g) + 1
            if sea >= 2 and dma != "KV" and f"s{S_DOFF}, s{S_QS}" in ln and not ln.strip().startswith("s_lshl1") and (sea < 4 or (sm & 1)):
                G.atV(f"    v_add_u32 v{V_P}, s{S_DOFF}, v{V_QD}", g)
        if sea >= 4 and dma != "KV":
            g = G.putS(f"    s_add_u32 s64, s{S_QP}, s{S_DOFF}", g) + 1
            assert not (BAR - 1 < g <= BAR), g
            g = G.putS(f"    s_addc_u32 s65, s{S_QP+1}, 0", g) + 1
        prev = g
        dstate["qe"] = True
        for i in range(0 if nodma else 4 if half else 8):
            ls = cap(lambda: dma_one(False))
            tg = max(qd0 + (2 * qdstep if half else qdstep) * i + (3 if half else 0), prev + (1 if sea == 1 else 0))
            pre_ = [l for l in ls if is_scalar(l) and "m0" not in l]
            ld = [l for l in ls if not is_scalar(l)]
            post = [l for l in ls if is_scalar(l) and "m0" in l]
            if sea == 1:
                for l in pre_:
                    t_ = G.putS(l, tg - 1); assert t_ == tg - 1, (t_, tg)
            else:
                for l in pre_: tg = G.putS(l, tg)
            for l in ld: G.atV(l, tg)
            prev = tg + 1
            for l in post: prev = G.putS(l, tg + 1) + 1
        dstate["i"] = 8
        dstate["qe"] = False
        if qnrd and not last: pass
        elif not last:
            lo = BAR - 1
            if h == 1:
                for kk in range(2):
                    for qt in range(7):
                        for ln in cap(lambda: bread2(cur ^ 1, kk, qt, (sm + 1 + kk) & 3)): lo = G.putV(ln, lo, cap_=1)
            for lp in range(4):
                lo_prev = lo
                lo = max(lo, 14 * (lp + 1) - 1)
                if lp < 3:
                    for kk in range(2):
                        for ln in cap(lambda: wread2(lp, kk, nslot)): lo = G.putV(ln, lo, cap_=1)
                else:
                    if sea >= 3:
                        assert lo_prev <= 50, lo_prev
                        G.atS(f"    s_waitcnt lgkmcnt(4)", 52)
                    for kk in range(2):
                        for ln in cap(lambda: wread2(lp, kk, nslot)): G.atV(ln, (54 + kk) if sea >= 3 else 55)
        elif not nok and not klate:
            lo = BAR - 1
            for f in range(8):
                for ln in cap(lambda: kread(f, nslot)): lo = G.putV(ln, lo, cap_=1)
        vn_ = 8 if (h == 1 and not (last and dma == "KV")) else 16
        if klate and last and dma == "KV": vn_ = 63
        if half: vn_ = (16, 4, 63, 63)[sm]
        if sea < 3: a("s_waitcnt lgkmcnt(8)")
        j = 0
        for lp in range(4):
            for qt in range(7):
                for kk in range(2):
                    c = "0" if (first and kk == 0) else oreg(4 * h + lp, qt)
                    a(f"{MFMA} {oreg(4 * h + lp, qt)}, {vr(V_VF+8*lp+4*kk,4)}, {bset(cur, kk, qt)}, {c}")
                    for ln in G.S[j]: a.lines.append(ln)
                    if j == BAR - 1:
                        if not qnbar: barrier(after_store, vn_)
                        if chk: flagcheck()
                    for ln in G.V[j]: a.lines.append(ln)
                    j += 1
    def qp_stage(sm, first=False, dma="QP", last=False, chk=False, after_store=False, kt_=False, vn=16, nok=False, role=None, ntouch=0, sidx=None, code=None):
        buf = sm & 1; nslot = (sm + 1) & 3
        if qch2:
            return qp_stage3(sm, first, dma, last, chk, after_store, nok)
        if qps:
            return qp_stage2(sm, first, dma, last, chk, after_store, vn, nok, sidx, code)
        a("s_waitcnt lgkmcnt(14)")
        fq = []
        def cap(fn):
            n0 = len(a.lines); q0 = len(a.lds_q)
            fn()
            ls = a.lines[n0:]; del a.lines[n0:]; del a.lds_q[q0:]
            return ls
        BAR = 7
        if role != "T":
            for ln in cap(lambda: dma_setup(sm, dma)): fq.append((BAR, ln))
        if dma == "QP" and roll:
            fq.append((BAR, f"    s_lshl2_add_u32 s{S_B}, s{S_QSTEP}, s{S_DOFF}"))
            fq.append((BAR, f"    buffer_load_dword v0, v{V_T0}, s[{S_QP}:{S_QP+3}], s{S_B} offen{' nt' if tnt else ''}"))
        if kvt and kt_:
            fq.append((BAR, f"    buffer_load_dword v0, v{V_T3}, s[{S_LD}:{S_LD+3}], s101 offen{' nt' if kvtnt else ''}"))
            fq.append((BAR, f"    s_add_u32 s101, s101, 8192"))
        if not last:
            for ln in cap(lambda: wread(0, nslot)): fq.append((BAR, ln))
            for qt in range(7):
                for ln in cap(lambda: bread(buf ^ 1, qt, nslot)): fq.append((BAR, ln))
        elif not nok:
            for f in range(8):
                for ln in cap(lambda: kread(f, nslot)): fq.append((BAR, ln))
        for l in range(1, 8):
            if not last:
                for ln in cap(lambda: wread(l, nslot)): fq.append((7 * (l + 1), ln))
            if role == "T":
                if l == 1:
                    for _ in range(ntouch):
                        fq.append((BAR, f"    buffer_load_dword v0, v{V_T0}, s[60:63], s98 offen"))
                        fq.append((BAR, f"    s_add_u32 s98, s98, {32*8192}"))
                        fq.append((BAR, f"    buffer_load_dword v0, v{V_T1}, s[{S_QP}:{S_QP+3}], s99 offen"))
                        fq.append((BAR, f"    s_add_u32 s99, s99, 64"))
                continue
            for ln in cap(lambda: dma_one(True)): fq.append((BAR, ln))
            if role == "X":
                if l == 7:
                    fq.append((BAR, f"    s_add_u32 m0, s{S_LDB}, {AREA+sm*TILE}"))
                    fq.append((BAR, f"    s_add_u32 s{S_DOFF}, s{S_DOFF}, {112*1280}"))
                    for i in range(7):
                        fq.append((BAR, f"    s_add_u32 s{S_A}, s{S_DOFF}, s{S_TAB+i}"))
                        fq.append((BAR, f"    buffer_load_dwordx4 v{V_QD}, s[{S_QP}:{S_QP+3}], s{S_A} offen{' nt' if qnt else ''} lds"))
                        if i < 6: fq.append((BAR, f"    s_add_u32 m0, m0, 1024"))
            elif l == 7:
                for ln in cap(lambda: dma_one(True)): fq.append((BAR, ln))
        j = 0
        for l in range(8):
            for qt in range(7):
                c = "0" if first else oreg(l, qt)
                a(f"{MFMA} {oreg(l, qt)}, {vr(V_VF+4*l,4)}, {vr(bbuf(buf,qt),4)}, {c}")
                j += 1
                if j == BAR:
                    barrier(after_store, vn if (roll or role) else 16)
                    if chk: flagcheck()
                    if trace:
                        a("s_memtime s[78:79]")
                        a("s_waitcnt lgkmcnt(0)")
                        a(f"v_cmp_eq_u32 vcc, s77, v{V_LANE}")
                        a(f"v_mov_b32 v{V_T2}, s78")
                        a("s_nop 1")
                        a(f"v_cndmask_b32 v{V_T3}, v{V_T3}, v{V_T2}, vcc")
                        a("s_add_u32 s77, s77, 1")
                k = 0; idx = 0
                rem_gaps = 56 - j + 1
                quota = 1 if len(fq) <= rem_gaps else 2
                while k < quota and idx < len(fq):
                    if fq[idx][0] <= j and (idx == 0 or "ds_read" in fq[idx][1] or all("ds_read" in x[1] for x in fq[:idx])):
                        a.lines.append(fq[idx][1]); del fq[idx]; k += 1
                    else:
                        idx += 1
        for _, ln in fq: a.lines.append(ln)
        assert role in ("X", "T") or dstate["i"] == 8

    def sm_ops(par, i, first):
        S = V_S + 8 * par; P = V_P + 4 * par; L = V_L + 2 * i
        ops = []
        if first:
            T0, T1 = V_T0, V_T1
            ops += [f"v_max3_f32 v{T0}, v{S}, v{S+1}, v{L}", f"v_max3_f32 v{T1}, v{S+2}, v{S+3}, v{S+4}",
                    f"v_max3_f32 v{T0}, v{S+5}, v{S+6}, v{T0}", f"v_max3_f32 v{T0}, v{S+7}, v{T0}, v{T1}",
                    f"v_mov_b32 v{T1}, v{T0}", "s_nop 1", f"v_permlane16_swap_b32 v{T0}, v{T1}", "s_nop 1", f"v_max_f32 v{T0}, v{T0}, v{T1}",
                    f"v_mov_b32 v{T1}, v{T0}", "s_nop 1", f"v_permlane32_swap_b32 v{T0}, v{T1}", "s_nop 1", f"v_max_f32 v{T0}, v{T0}, v{T1}",
                    f"v_mov_b32 v{L}, 0", f"v_mov_b32 v{L+1}, 0"]
            ops += [f"v_sub_f32 v{S+r}, v{S+r}, v{T0}" for r in range(8)]
            ops += [f"v_sub_f32 v{V_CI+4*i+r}, 0, v{T0}" for r in range(4)]
        e = lambda r: ops.append(f"v_exp_f32 v{S+r}, v{S+r}")
        e(0); e(1)
        for r in range(0, 8, 2):
            if r + 2 < 8: e(r + 2); e(r + 3)
            if not ones:
                ops.append(f"v_add_f32 v{L}, v{L}, v{S+r}")
                ops.append(f"v_add_f32 v{L+1}, v{L+1}, v{S+r+1}")
            ops.append(f"v_cvt_pk_bf16_f32 v{P+r//2}, v{S+r}, v{S+r+1}")
        return ops

    def qk_items(qt, par, czero, kr):
        it = []
        for f in ([0, 1, 2, 3, 7, 6, 5, 4] if qkrev else range(8)):
            kt, s = f >> 2, f & 3
            D = vr(V_S + 8 * par + 4 * kt, 4)
            c = ("0" if czero else vr(V_CI + 4 * qt, 4)) if f in ((0, 7) if qkrev else (0, 4)) else D
            it.append(("K" if f == 0 else None, f"{MFMA} {D}, {vr(V_KF+4*f,4)}, {ar(A_Q+16*qt+4*s,4)}, {c}",
                       (lambda f=f: kread(f, kr)) if kr is not None else None))
        return it
    def pv_items(qt, par, czero, vrd):
        it = []
        for l in range(8):
            c = "0" if czero else oreg(l, qt)
            it.append(("V" if l == 0 else None, f"{MFMA} {oreg(l, qt)}, {vr(V_VF+4*l,4)}, {vr(V_P+4*par,4)}, {c}",
                       (lambda l=l: vread(l, vrd)) if vrd is not None else None))
        for _ in range(xmfma):
            D = ar(A_LS + 4 * qt, 4)
            it.append((None, f"{MFMA} {D}, {vr(V_VF,4)}, {vr(V_P+4*par,4)}, {D}", None))
        if ones:
            D = ar(A_LS + 4 * qt, 4)
            it.append((None, f"{MFMA} {D}, {ar(A_ONE,4)}, {vr(V_P+4*par,4)}, {'0' if czero else D}", None))
        return it

    def capture(fn):
        n0 = len(a.lines)
        fn()
        ls = a.lines[n0:]; del a.lines[n0:]
        return ls
    def emit(items, va, fill=None, nfill=0):
        cost = lambda op: 2 if "v_exp" in op else 1
        tot = sum(cost(o) for o in va); acc = 0; k = 0; ng = len(items)
        if slk and state.get("inat") and all(m for _, m, _ in items):
            n0 = len(a.lines); q0 = list(a.lds_q)
            base = [0] * ng
            for j, (need, m, post) in enumerate(items):
                n1 = len(a.lines)
                if need: a.lds_wait({need})
                if j > 0: base[j - 1] += 4 * (len(a.lines) - n1)
                n1 = len(a.lines)
                if post: post()
                base[j] += 4 * (len(a.lines) - n1)
            del a.lines[n0:]; a.lds_q[:] = q0
            fl = [fill[i] for i in range(min(nfill, len(fill) if fill else 0))]
            vc = [8 if "v_exp" in o else 4 for o in va]
            isd = [("load_lds" in l or " lds" in l) for l in fl]
            fc = [(slkd if d else 4 * (l.count("\n") + 1)) for l, d in zip(fl, isd)]
            ism0 = [("m0," in l.split("\n")[-1].split()[1]) for l in fl]
            import functools
            nv, nfl = len(va), len(fl)
            @functools.lru_cache(None)
            def best(j, k_, f_):
                if j == ng: return (0.0, None) if (k_ == nv and f_ == nfl) else (1e9, None)
                r = (1e9, None)
                cf = 0
                for df in range(0, min(3, nfl - f_) + 1):
                    if df:
                        x = f_ + df - 1
                        cf += fc[x]
                        if isd[x] and df > 1 and ism0[x - 1]: break
                    pen = sum(0.02 * abs(j - (x + 0.5) * ng / nfl) for x in range(f_, f_ + df) if isd[x])
                    cv = 0
                    for dk in range(0, min(4, nv - k_) + 1):
                        if dk: cv += vc[k_ + dk - 1]
                        done = sum(vc[:k_ + dk]); ideal = sum(vc) * (j + 1) / ng
                        pv = 0.002 * abs(done - ideal)
                        c = max(0, base[j] + cf + cv - 8) + pen + pv + best(j + 1, k_ + dk, f_ + df)[0]
                        if c < r[0]: r = (c, (df, dk))
                return r
            k_ = f_ = 0
            for j, (need, m, post) in enumerate(items):
                df, dk = best(j, k_, f_)[1]
                if need: a.lds_wait({need})
                a(m)
                if post: post()
                for _ in range(df): a.lines.append(fill.pop(0))
                for o in va[k_:k_ + dk]: a(o)
                k_ += dk; f_ += df
            assert k_ == nv and f_ == nfl
            return
        pos = [int((i + 0.5) * ng / max(nfill, 1)) for i in range(nfill)]
        for j, (need, m, post) in enumerate(items):
            if m:
                if need: a.lds_wait({need})
                a(m)
            if post: post()
            for _ in range(pos.count(j)):
                if fill: a.lines.append(fill.pop(0))
            while k < len(va) and acc + cost(va[k]) <= tot * (j + 1) / ng + 0.01:
                a(va[k]); acc += cost(va[k]); k += 1
        assert k == len(va)

    def dma_lines(slot, kind, pad=False):
        def f():
            dma_setup(slot, kind)
            for _ in range(8): dma_one(pad)
            if xmem and kind == "KV":
                a(f"s_mul_i32 s{S_A}, s{S_WAVE}, 7168")
                a(f"s_add_u32 m0, s{S_A}, {4*AREA+5120}")
                a(f"s_add_u32 s{S_A}, s{S_DOFF}, s76")
                for i in range(xmem):
                    a(f"buffer_load_dwordx4 v{V_DMA}, s[72:75], s{S_A} offen offset:{256*i} nt lds")
        return capture(f)
    def gkv_lines(slot):
        assert kvgs == 14 and kvrot == 2 and not (noload or rflip or spread or xmem)
        L = []
        if gkv in (5, 6):
            src = "s64"
            if kvl2:
                L.append(f"    s_and_b32 s66, s64, {0x7fff if kvl2 is True else kvl2 - 1}"); src = "s66"
            if gkv == 6: L.append(f"    s_add_u32 s66, s{S_LD}, {src}\n    s_addc_u32 s67, s{S_LD+1}, 0")
            L.append(f"    s_add_u32 m0, s{S_LDB}, {slot*TILE}")
            upd = [f"    s_or_b32 s64, s64, 0xc000", f"    s_add_u32 s64, s64, 0x800", f"    s_and_b32 s64, s64, 0xfffb3fff"]
            for i in range(8):
                if gkv == 6: L.append(f"    global_load_lds_dwordx4 v{V_DMA}, s[66:67] offset:{256*i}{NT}")
                else: L.append(f"    buffer_load_dwordx4 v{V_DMA}, s[{S_LD}:{S_LD+3}], {src} offen offset:{256*i}{NT} lds")
                if i < 7: L.append(f"    s_add_u32 m0, m0, s{96+(i&1)}")
                if gkv == 6 and i in (1, 3, 5): L.append(upd.pop(0))
            return L + upd
        if gkv == 4:
            src = "s64"
            if slot:
                L.append(f"    s_xor_b32 s66, s64, {slot << 11}"); src = "s66"
            if kvl2:
                L.append(f"    s_and_b32 s66, {src}, {0x7fff if kvl2 is True else kvl2 - 1}"); src = "s66"
            L.append(f"    s_add_u32 m0, s{S_LDB}, {slot*TILE}")
            for i in range(8):
                L.append(f"    buffer_load_dwordx4 v{V_DMA}, s[{S_LD}:{S_LD+3}], {src} offen offset:{256*i}{NT} lds")
                if i < 7: L.append(f"    s_add_u32 m0, m0, s{96+(i&1)}")
            if slot == 3:
                L += [f"    s_or_b32 s64, s64, 0xc000", f"    s_add_u32 s64, s64, 0x2000", f"    s_and_b32 s64, s64, 0xfffb3fff"]
            return L
        if gkv == 3:
            ls = dma_lines(slot, "KV")
            for ln in ls:
                if "buffer_load" in ln:
                    off = ln.split("offset:")[1].split()[0]
                    L.append(f"    global_load_lds_dwordx4 v{V_DMA}, s[66:67] offset:{off}{NT}")
                else:
                    L.append(ln)
                    if f"s_add_u32 s{S_DOFF}, s{S_A}, s{S_B}" in ln or (kvl2 and f"s_and_b32 s{S_DOFF}" in ln):
                        L.append(f"    s_add_u32 s66, s{S_LD}, s{S_DOFF}\n    s_addc_u32 s67, s{S_LD+1}, 0")
            return L
        if gkv == 2:
            src = "s64"
            if slot:
                L.append(f"    s_xor_b32 s{S_A}, s64, {slot << 11}"); src = f"s{S_A}"
            if kvl2:
                L.append(f"    s_and_b32 s{S_A}, {src}, {0x7fff if kvl2 is True else kvl2 - 1}"); src = f"s{S_A}"
            L.append(f"    s_add_u32 s66, s{S_LD}, {src}\n    s_addc_u32 s67, s{S_LD+1}, 0")
            L.append(f"    s_add_u32 m0, s{S_LDB}, {slot*TILE}")
            for i in range(8):
                L.append(f"    global_load_lds_dwordx4 v{V_DMA}, s[66:67] offset:{256*i}{NT}")
                if i < 7: L.append(f"    s_add_u32 m0, m0, s{96+(i&1)}")
            if slot == 3:
                L += [f"    s_or_b32 s64, s64, 0xc000", f"    s_add_u32 s64, s64, 0x2000", f"    s_and_b32 s64, s64, 0xfffb3fff"]
            return L
        if slot == 0:
            if kvl2:
                L.append(f"    s_and_b32 s{S_A}, s64, {0x7fff if kvl2 is True else kvl2 - 1}")
                L.append(f"    s_add_u32 s66, s{S_LD}, s{S_A}\n    s_addc_u32 s67, s{S_LD+1}, 0")
            else:
                L.append(f"    s_add_u32 s66, s{S_LD}, s64\n    s_addc_u32 s67, s{S_LD+1}, 0")
        if slot == 2:
            L.append(f"    s_add_u32 s66, s66, 4096\n    s_addc_u32 s67, s67, 0")
        L.append(f"    s_add_u32 m0, s{S_LDB}, {slot*TILE - 2048*(slot&1)}")
        for i in range(8):
            L.append(f"    global_load_lds_dwordx4 v{V_DMA}, s[66:67] offset:{2048*(slot&1) + 256*i}{NT}")
            if i < 7: L.append(f"    s_add_u32 m0, m0, s{96+(i&1)}")
        if slot == 3:
            L += [f"    s_or_b32 s64, s64, 0xc000", f"    s_add_u32 s64, s64, 0x2000", f"    s_and_b32 s64, s64, 0xfffb3fff"]
        return L
    def split_fill(fill, quota):
        out = []; idx = 0
        for q in quota:
            ch = []; n = 0
            while idx < len(fill) and n < q:
                ln = fill[idx]; ch.append(ln); idx += 1
                if "buffer_load" in ln:
                    n += 1
                    if idx < len(fill) and "m0, m0" in fill[idx]: ch.append(fill[idx]); idx += 1
            out.append(ch)
        out[-1] += fill[idx:]
        return out
    def ep_red(j):
        L = V_L + 2 * j; t = V_CI + 4 * j + 1; r = V_CI + 4 * j
        return [f"v_add_f32 v{L}, v{L}, v{L+1}", f"v_mov_b32 v{t}, v{L}", "s_nop 1", f"v_permlane16_swap_b32 v{L}, v{t}", "s_nop 1", f"v_add_f32 v{L}, v{L}, v{t}",
                f"v_mov_b32 v{t}, v{L}", "s_nop 1", f"v_permlane32_swap_b32 v{L}, v{t}", "s_nop 1", f"v_add_f32 v{L}, v{L}, v{t}", f"v_rcp_f32 v{r}, v{L}"]
    def ep_tile(j, pk_):
        r = V_CI + 4 * j
        q = lambda l: V_OK + 28 * l + 4 * j
        ops = [f"s_add_u32 s98, s{S_D}, {4096*j}"]
        for T in range(4):
            if T < 2: x, y = q(2 * T), q(2 * T + 1)
            else:
                x, y = (q(1), q(3)) if T == 2 else (q(0), q(3))
                for e, dst in ((0, x), (1, y)):
                    for k in range(4): ops.append(f"v_accvgpr_read_b32 v{dst+k}, a{A_OS+28*(2*(T-2)+e)+4*j+k}")
            for dst in (x, y):
                if pk_:
                    for h in range(2): ops.append(f"v_pk_mul_f32 {vr(dst+2*h,2)}, {vr(dst+2*h,2)}, {vr(r,2)} op_sel_hi:[1,0]")
                else:
                    for k in range(4): ops.append(f"v_mul_f32 v{dst+k}, v{dst+k}, v{r}")
            ops.append(f"v_cvt_pk_bf16_f32 v{x}, v{x}, v{x+1}")
            ops.append(f"v_cvt_pk_bf16_f32 v{x+1}, v{x+2}, v{x+3}")
            ops.append(f"v_cvt_pk_bf16_f32 v{x+2}, v{y}, v{y+1}")
            ops.append(f"v_cvt_pk_bf16_f32 v{x+3}, v{y+2}, v{y+3}")
            ops.append("s_nop 1")
            ops.append(f"v_permlane16_swap_b32 v{x}, v{x+2}")
            ops.append(f"v_permlane16_swap_b32 v{x+1}, v{x+3}")
            if not nost: ops.append(f"buffer_store_dwordx4 {vr(x,4)}, v{V_XA}, s[{S_W}:{S_W+3}], s98 offen offset:{1024*T} {stpol}".rstrip())
        return ops
    def ep_merge(sm, ep):
        sm = list(sm); out = []
        nn = sum(1 for o in ep if o == "s_nop 1")
        rest = len(sm) - 2 * nn
        body = [o for o in ep]
        n_other = len(body) - nn
        per = rest / max(n_other, 1) if rest > 0 else 0
        acc = 0.0
        for o in body:
            if o == "s_nop 1":
                if len(sm) >= 2: out.append(sm.pop(0)); out.append(sm.pop(0))
                else: out.append(o)
                continue
            out.append(o)
            acc += per
            while acc >= 1 and sm:
                out.append(sm.pop(0)); acc -= 1
        return out + sm
    def step(jm, first=False, last=False, dma="KV", nt_=0, tr_=False, dyn=False):
        fill = [] if ((first and tdef < 3) or early) else (gkv_lines((jm + 3) & 3) if (gkv and state.get("inat")) else dma_lines((jm + 3) & 3, dma))
        nf = (len(fill) + len(dsl) - 1) // len(dsl)
        chunks = state.get("carry") or [[] for _ in range(5)]
        state["carry"] = None
        for i in range(7):
            if strace and tr_:
                pr = [36, 38, 40, 42, 56, 58, 60, 62]
                a(f"s_memtime s[{pr[i]}:{pr[i]+1}]")
            if i in (1, 2, 3)[:nt_]: touch_one()
            n = state["n"]; par = n & 1
            items = []
            nfill = nf if (str(i) in dsl and i <= 4) else 0
            if spread and i <= 4:
                fill = list(chunks[i]); nfill = len(fill)
            if eep and last and dma == "KV":
                if i == 0: qstash_off()
                for s_ in range(4):
                    a(f"buffer_load_dwordx4 {ar(A_Q+16*i+4*s_,4)}, v{V_T2}, s[{S_W}:{S_W+3}], s{S_C} offen offset:{1024*s_}")
                if i < 6: a(f"s_add_u32 s{S_C}, s{S_C}, 4096")
            if i == 5:
                assert not fill
                if eep and last:
                    a(f"s_waitcnt vmcnt(@LB{'A' if dma == 'QP' else 'B'}@) lgkmcnt(0)")
                    a.lds_q = []
                    a("s_barrier")
                elif not (anbar and state.get("inat")): barrier(dyn, 8 if (qch2 and last and dma == "QP") else 16)
                if first: flagcheck()
                if (last or early) and not (tdef >= 3 and dma == "KV"):
                    fill = dma_lines(jm, dma, True if last else False); nf = (len(fill) + 1) // 2
                    if spread and not last:
                        ch = split_fill(fill, [int(c) for c in spread])
                        assert len(ch) == 7
                        nxt = ch; fill = list(ch[0]); state["carry"] = ch[2:]
            if (last or early) and i >= 5: nfill = nf
            if spread and not last and i == 5: nfill = len(fill)
            if spread and not last and i == 6: fill = list(nxt[1]); nfill = len(fill)
            if i < 6:
                items += qk_items(i + 1, par ^ 1, first, ((jm + 1) & 3) if (i == 5 and (not last or dma == "KV")) else None)
            elif not last:
                items += qk_items(0, par ^ 1, False, None)
            else:
                if dma == "KV" and not eep: qreload()
                a("s_nop 1")
            if i > 0:
                items += pv_items(i - 1, par ^ 1, first, None)
            elif not first:
                items += pv_items(6, par ^ 1, False, jm)
            else:
                items += [(None, None, (lambda l=l: vread(l, jm))) for l in range(8)]
            ops_ = sm_ops(par, i, first)
            if state.get("inat") and anva:
                ops_ = [o for o in ops_ if not any(o.startswith(x) for x in anva.split(","))]
            if eep and last and i >= 2:
                ops_ = ep_merge(ops_, ep_red(i - 2) + ep_tile(i - 2, eep == 2))
            emit(items, ops_, fill, nfill)
            state["n"] = n + 1
        assert not fill

    def qstash_off():
        a(f"s_lshl_b32 s{S_C}, s2, 2")
        a(f"s_add_u32 s{S_C}, s{S_C}, s{S_WAVE}")
        a(f"s_mul_i32 s{S_C}, s{S_C}, 28672")
        a(f"v_lshlrev_b32 v{V_T2}, 4, v{V_LANE}")
    def qreload():
        qstash_off()
        for i in range(7):
            for s_ in range(4):
                a(f"buffer_load_dwordx4 {ar(A_Q+16*i+4*s_,4)}, v{V_T2}, s[{S_W}:{S_W+3}], s{S_C} offen offset:{1024*s_}")
            if i < 6: a(f"s_add_u32 s{S_C}, s{S_C}, 4096")

    def flagcheck():
        lab = f"L_at_nofb_{len(a.lines)}"
        a(f"s_cmp_le_u32 s{S_T}, s{S_T0}")
        a(f"s_cbranch_scc1 {lab}")
        a(f"s_sub_u32 s{S_A}, s{S_T}, 1")
        a(f"s_cmp_eq_u32 s{S_A}, s{S_NOFB}")
        a(f"s_cbranch_scc1 {lab}")
        a(f"s_lshl_b32 s{S_B}, s{S_A}, 2")
        a(f"s_add_u32 s{S_B}, s{S_B}, {LDS_FLAG}")
        a(f"v_mov_b32 v{V_T2}, s{S_B}")
        a(f"ds_read_b32 v{V_T2}, v{V_T2}")
        a("s_waitcnt lgkmcnt(0)")
        a(f"v_readfirstlane_b32 s{S_B}, v{V_T2}")
        a("s_nop 3")
        a(f"s_cmp_lg_u32 s{S_B}, 0")
        a(f"s_cbranch_scc1 L_at_fallback")
        a.label(lab)

    def wo_issue_a(ps):
        a(f"s_and_b32 s{S_B}, s2, 127")
        a(f"s_mul_i32 s{S_B}, s{S_B}, {32*1280}")
        a(f"s_mul_i32 s{S_D}, s{S_WAVE}, 320")
        a(f"s_add_u32 s{S_B}, s{S_B}, s{S_D}")
        a(f"s_add_u32 s{S_B}, s{S_B}, {160*ps}")
        a(f"s_mul_i32 s{S_D}, s{S_WAVE}, 7168")
        a(f"s_add_u32 s{S_D}, s{S_D}, {4*AREA}")
        a(f"s_mov_b32 s{S_A}, 6554")
        for i in range(5):
            a(f"v_add_u32 v{V_T0}, {64*i}, v{V_LANE}")
            a(f"v_mul_u32_u24 v{V_T1}, s{S_A}, v{V_T0}")
            a(f"v_lshrrev_b32 v{V_T1}, 16, v{V_T1}")
            a(f"v_mul_u32_u24 v{V_T2}, 10, v{V_T1}")
            a(f"v_sub_u32 v{V_T2}, v{V_T0}, v{V_T2}")
            a(f"v_mul_u32_u24 v{V_T1}, 1280, v{V_T1}")
            a(f"s_add_u32 m0, s{S_D}, {1024*i}")
            a(f"v_lshl_add_u32 v{V_T3}, v{V_T2}, 4, v{V_T1}")
            a(f"buffer_load_dwordx4 v{V_T3}, s[84:87], s{S_B} offen lds")
    def wo_read_a():
        a(f"v_lshrrev_b32 v{V_T0}, 4, v{V_LANE}")
        a(f"v_bfe_u32 v{V_T1}, v{V_LANE}, 2, 2")
        a(f"v_lshl_add_u32 v{V_T1}, v{V_T0}, 3, v{V_T1}")
        a(f"v_mul_u32_u24 v{V_T1}, 160, v{V_T1}")
        a(f"v_and_b32 v{V_T2}, 3, v{V_LANE}")
        a(f"v_lshl_add_u32 v{V_T1}, v{V_T2}, 3, v{V_T1}")
        a(f"s_mul_i32 s{S_D}, s{S_WAVE}, 7168")
        a(f"s_add_u32 s{S_D}, s{S_D}, {4*AREA}")
        a(f"v_add_u32 v{V_T1}, s{S_D}, v{V_T1}")
        R = A_LS
        for t in range(5):
            for v in range(2):
                a(f"ds_read_b64_tr_b16 {ar(R+4*t+2*v,2)}, v{V_T1} offset:{v*640+t*32}")
    def wo_store_a(ps):
        R = A_LS
        a(f"v_lshlrev_b32 v{V_T2}, 4, v{V_LANE}")
        a(f"s_mul_i32 s{S_A}, s2, {40*1024}")
        a(f"s_mul_i32 s{S_B}, s{S_WAVE}, {10*1024}")
        a(f"s_add_u32 s{S_A}, s{S_A}, s{S_B}")
        a(f"s_add_u32 s{S_A}, s{S_A}, {WS_W+5120*ps}")
        a("s_waitcnt lgkmcnt(0)")
        for f in range(5):
            if f == 4: a(f"s_add_u32 s{S_A}, s{S_A}, 4096")
            a(f"buffer_store_dwordx4 {ar(R+4*f,4)}, v{V_T2}, s[{S_W}:{S_W+3}], s{S_A} offen offset:{1024*(f&3)} {wpol}".rstrip())
    def wo_finish_a(ps):
        wo_read_a(); wo_store_a(ps)
    def wo_issue(ps):
        D = V_S
        a(f"s_mov_b32 s{S_A}, 6554")
        for i in range(5):
            a(f"v_add_u32 v{V_T0}, {64*i}, v{V_LANE}")
            a(f"v_mul_u32_u24 v{V_T1}, s{S_A}, v{V_T0}")
            a(f"v_lshrrev_b32 v{V_T1}, 16, v{V_T1}")
            a(f"v_mul_u32_u24 v{V_T2}, 10, v{V_T1}")
            a(f"v_sub_u32 v{V_T2}, v{V_T0}, v{V_T2}")
            a(f"v_mul_u32_u24 v{V_T1}, 1280, v{V_T1}")
            a(f"v_lshl_add_u32 v{D+i}, v{V_T2}, 4, v{V_T1}")
        a(f"s_and_b32 s{S_A}, s2, 127")
        a(f"s_mul_i32 s{S_A}, s{S_A}, {32*1280}")
        a(f"s_mul_i32 s{S_B}, s{S_WAVE}, 320")
        a(f"s_add_u32 s{S_A}, s{S_A}, s{S_B}")
        a(f"s_add_u32 s{S_A}, s{S_A}, {160*ps}")
        a(f"s_mul_i32 s{S_D}, s{S_WAVE}, 7168")
        a(f"s_add_u32 s{S_D}, s{S_D}, {4*AREA}")
        for i in range(5):
            a(f"s_add_u32 m0, s{S_D}, {1024*i}")
            a("s_nop 0")
            a(f"buffer_load_dwordx4 v{D+i}, s[84:87], s{S_A} offen{' nt' if wont else ''} lds")
    def wo_finish(ps):
        if wo5:
            a(f"v_accvgpr_read_b32 v{V_T1}, a249")
        else:
            a(f"v_lshrrev_b32 v{V_T0}, 4, v{V_LANE}")
            a(f"v_bfe_u32 v{V_T1}, v{V_LANE}, 2, 2")
            a(f"v_lshl_add_u32 v{V_T1}, v{V_T0}, 3, v{V_T1}")
            a(f"v_mul_u32_u24 v{V_T1}, 160, v{V_T1}")
            a(f"v_and_b32 v{V_T2}, 3, v{V_LANE}")
            a(f"v_lshl_add_u32 v{V_T1}, v{V_T2}, 3, v{V_T1}")
            a(f"s_mul_i32 s{S_D}, s{S_WAVE}, 7168")
            a(f"s_add_u32 s{S_D}, s{S_D}, {4*AREA}")
            a(f"v_add_u32 v{V_T1}, s{S_D}, v{V_T1}")
        a(f"v_lshlrev_b32 v{V_T2}, 4, v{V_LANE}")
        a(f"s_mul_i32 s{S_A}, s2, {40*1024}")
        a(f"s_mul_i32 s{S_B}, s{S_WAVE}, {10*1024}")
        a(f"s_add_u32 s{S_A}, s{S_A}, s{S_B}")
        a(f"s_add_u32 s{S_A}, s{S_A}, {WS_W+5120*ps}")
        R = V_VF
        for t in range(5):
            for v in range(2):
                a(f"ds_read_b64_tr_b16 {vr(R+4*t+2*v,2)}, v{V_T1} offset:{v*640+t*32}")
        a("s_waitcnt lgkmcnt(0)")
        for f in range(5):
            if f == 4: a(f"s_add_u32 s{S_A}, s{S_A}, 4096")
            a(f"buffer_store_dwordx4 {vr(R+4*f,4)}, v{V_T2}, s[{S_W}:{S_W+3}], s{S_A} offen offset:{1024*(f&3)} {wpol}".rstrip())
        a("s_nop 1")

    def rt_setup():
        a(f"s_bfe_u32 s{S_A}, s2, 0x20003")
        a(f"s_lshl_b32 s{S_A}, s{S_A}, 3")
        a(f"v_lshrrev_b32 v{V_T0}, 3, v{V_LANE}")
        a(f"v_add_u32 v{V_T0}, s{S_A}, v{V_T0}")
        a(f"v_lshlrev_b32 v{V_T0}, 13, v{V_T0}")
        a(f"v_and_b32 v{V_T2}, 7, v{V_LANE}")
        a(f"v_lshl_add_u32 v{V_T0}, v{V_T2}, 5, v{V_T0}")
        a(f"v_bfe_u32 v{V_T1}, v{V_LANE}, 1, 4")
        a(f"v_min_u32 v{V_T1}, 13, v{V_T1}")
        a(f"s_and_b32 s{S_A}, s2, 7")
        a(f"s_mul_i32 s{S_A}, s{S_A}, 14")
        a(f"v_add_u32 v{V_T1}, s{S_A}, v{V_T1}")
        a(f"v_mul_u32_u24 v{V_T1}, 1280, v{V_T1}")
        a(f"v_and_b32 v{V_T2}, 1, v{V_LANE}")
        a(f"v_lshl_add_u32 v{V_T1}, v{V_T2}, 5, v{V_T1}")
        a(f"s_cmp_eq_u32 s{S_QH}, 0")
        a("s_cselect_b64 vcc, -1, 0")
        a("s_nop 1")
        a(f"v_cndmask_b32 v{V_T0}, v{V_T1}, v{V_T0}, vcc")
    def dly(us, tag):
        a("s_memrealtime s[78:79]")
        a("s_waitcnt lgkmcnt(0)")
        a(f"s_add_u32 s77, s78, {us*100}")
        a.label(f"L_dl{tag}")
        a("s_sleep 4")
        a("s_memrealtime s[78:79]")
        a("s_waitcnt lgkmcnt(0)")
        a("s_sub_u32 s79, s78, s77")
        a("s_cmp_lt_i32 s79, 0")
        a(f"s_cbranch_scc1 L_dl{tag}")
    def st(k):
        if pst:
            a("s_memrealtime s[78:79]")
            a("s_memtime s[80:81]")
            a("s_waitcnt lgkmcnt(0)")
            a("s_mov_b32 m0, s77"); a("s_nop 0"); a("v_writelane_b32 v0, s78, m0")
            a("s_add_u32 m0, s77, 30"); a("s_nop 0"); a("v_writelane_b32 v0, s80, m0")
            a("s_add_u32 s77, s77, 1")
        if stamp:
            if st0:
                n = len(a.lines)
                a(f"s_cmp_ge_u32 s{S_T}, {1 if k < 3 else 2}")
                a(f"s_cbranch_scc1 L_st_{n}")
            a(f"s_memtime s[{72+2*k}:{73+2*k}]")
            if st0: a.label(f"L_st_{n}")
    mark("ST0")
    if pst:
        a("s_memrealtime s[78:79]")
        a("s_memtime s[80:81]")
        a("s_waitcnt lgkmcnt(0)")
        a("v_mov_b32 v0, 0")
        a("v_writelane_b32 v0, s78, 0")
        a("v_writelane_b32 v0, s80, 30")
        a("v_writelane_b32 v0, s74, 61")
        a("s_mov_b32 s77, 1")
    if delay:
        a("s_bitcmp1_b32 s2, 0")
        a("s_cbranch_scc0 L_nodelay")
        a("s_memrealtime s[78:79]")
        a("s_waitcnt lgkmcnt(0)")
        a(f"s_add_u32 s77, s78, {delay*100}")
        a.label("L_dl")
        a("s_sleep 8")
        a("s_memrealtime s[78:79]")
        a("s_waitcnt lgkmcnt(0)")
        a("s_sub_u32 s79, s78, s77")
        a("s_cmp_lt_i32 s79, 0")
        a("s_cbranch_scc1 L_dl")
        a.label("L_nodelay")
    mark("ST0e")
    a.label("L_at_start")
    if trace:
        a("s_mov_b32 s77, 1")
        a(f"v_mov_b32 v{V_T3}, s64")
        a("s_memtime s[78:79]")
        a("s_waitcnt lgkmcnt(0)")
        a(f"v_cmp_eq_u32 vcc, s77, v{V_LANE}")
        a(f"v_mov_b32 v{V_T2}, s78")
        a("s_nop 1")
        a(f"v_cndmask_b32 v{V_T3}, v{V_T3}, v{V_T2}, vcc")
        a("s_add_u32 s77, s77, 1")
    a(f"s_mov_b32 s{S_T}, s{S_T0}")
    a(f"s_lshl_b32 s{S_DJ}, s{S_T0}, 5")
    a(f"s_add_u32 s{S_D}, s{S_T}, s{S_PRE}")
    qs_init(S_D, "pre")
    if roll:
        rt_setup()
        for sl in range(2):
            dma_setup(sl, "QP")
            for _ in range(8): dma_one(True)
        a(f"s_mov_b32 s{S_B}, s{S_QS}")
        for _ in range(6):
            a(f"buffer_load_dword v0, v{V_T0}, s[{S_QP}:{S_QP+3}], s{S_B} offen{' nt' if tnt else ''}")
            a(f"s_add_u32 s{S_B}, s{S_B}, s{S_QSTEP}")
        for sl in range(2, 4):
            dma_setup(sl, "QP")
            for _ in range(8): dma_one(True)
        a(f"s_waitcnt vmcnt(30) lgkmcnt(0)")
    else:
        if wtl:
            a(f"s_and_b32 s56, s2, 127")
            a(f"s_mul_i32 s56, s56, {32*1280}")
            a(f"v_mov_b32 v{V_S+14}, 0")
            if wtl == 2: a(f"v_mul_u32_u24 v{V_S+14}, 640, v{V_LANE}")
            a(f"buffer_load_dword v{V_S+15}, v{V_S+14}, s[84:87], s56 offen")
        for sl in range(4):
            if sl == 2: marks["SL2"] = len(a.lines)
            dma_setup(sl, "QP")
            for _ in range(8): dma_one(True)
            if pro1 and sl == 0:
                st(9)
                a("s_waitcnt vmcnt(0)")
                st(9)
        if wo5 or wo8:
            a(f"s_and_b32 s56, s2, 127")
            a(f"s_mul_i32 s56, s56, {32*1280}")
            a(f"s_mul_i32 s58, s{S_WAVE}, 320")
            a(f"s_add_u32 s56, s56, s58")
            a(f"s_mul_i32 s58, s{S_WAVE}, 7168")
            a(f"s_add_u32 s58, s58, {4*AREA}")
            a(f"s_mov_b32 s{S_A}, 6554")
            for i in range(5):
                a(f"v_add_u32 v{V_T0}, {64*i}, v{V_LANE}")
                a(f"v_mul_u32_u24 v{V_T1}, s{S_A}, v{V_T0}")
                a(f"v_lshrrev_b32 v{V_T1}, 16, v{V_T1}")
                a(f"v_mul_u32_u24 v{V_T2}, 10, v{V_T1}")
                a(f"v_sub_u32 v{V_T2}, v{V_T0}, v{V_T2}")
                a(f"v_mul_u32_u24 v{V_T1}, 1280, v{V_T1}")
                a(f"v_lshl_add_u32 v{V_T3}, v{V_T2}, 4, v{V_T1}")
                a(f"v_accvgpr_write_b32 a{244+i}, v{V_T3}")
            a(f"v_lshrrev_b32 v{V_T0}, 4, v{V_LANE}")
            a(f"v_bfe_u32 v{V_T1}, v{V_LANE}, 2, 2")
            a(f"v_lshl_add_u32 v{V_T1}, v{V_T0}, 3, v{V_T1}")
            a(f"v_mul_u32_u24 v{V_T1}, 160, v{V_T1}")
            a(f"v_and_b32 v{V_T2}, 3, v{V_LANE}")
            a(f"v_lshl_add_u32 v{V_T1}, v{V_T2}, 3, v{V_T1}")
            a(f"v_add_u32 v{V_T1}, s58, v{V_T1}")
            a(f"v_accvgpr_write_b32 a249, v{V_T1}")
        if tlbw:
            a(f"v_lshlrev_b32 v{V_S+13}, 12, v{V_LANE}")
            a(f"buffer_load_dword v{V_S+12}, v{V_S+13}, s[{S_LD}:{S_LD+3}], 0 offen nt")
            if tlbw > 1:
                a(f"s_mov_b32 s{S_A}, 0x80000")
                a(f"buffer_load_dword v{V_S+12}, v{V_S+13}, s[{S_LD}:{S_LD+3}], s{S_A} offen nt")
        if bulk0 and touch:
            touch_init(S_D)
            for _ in range(5): touch_one()
        if cpf and cpflate:
            for k in range(cpf // 16):
                a(f"s_mov_b32 s76, {k*16384}")
                a("buffer_load_dword v104, v105, s[72:75], s76 offen")
        if pro2:
            assert x128 and qch2 and not (trace or roll or wtl or pro1 or wo5 or wo8 or tlbw or touch or cpf or stamp or delay or rflip or defer or xf or fakex)
            L = a.lines
            sl = lambda x, y: L[marks[x]:marks[y]]
            body = L[marks["ST0e"] + 1:]
            cmpq = [f"    s_cmp_eq_u32 s{S_QH}, 0"]
            early_ = (sl("P2", "K1") + cmpq + sl("T1", "K4") + [f"    s_mov_b32 s{S_T0}, 0"] + sl("T3", "T3b") + sl("T4", "T4e")
                      + sl("Vw", "Vd") + sl("Vx", "Vxe") + sl("W0", "P2") + sl("K1", "K2") + cmpq + sl("K3", "T1") + sl("ST0", "ST0e"))
            rest = (sl("K2", "K3") + sl("K4", "T3") + sl("T3b", "T4") + sl("T4e", "Vw") + sl("Vxe", "ST0"))
            if pro2 == 2:
                b1 = L[marks["ST0e"] + 1:marks["SL2"]]; b2 = L[marks["SL2"]:]
                a.lines = L[:marks["W0"]] + early_ + b1 + rest + ["    s_branch L_pro_mid", "L_at_start:"] + b1 + ["L_pro_mid:"] + b2
            else:
                a.lines = L[:marks["W0"]] + early_ + body + rest + ["    s_branch L_pro_wait", "L_at_start:"] + body + ["L_pro_wait:"]
        a(f"s_waitcnt vmcnt({(29 if (bulk0 and touch) else 16 if qch2 else 24) + (cpf // 16 if cpflate else 0)}) lgkmcnt(0)")
    a("s_barrier")
    a.label("L_at_round")
    st(0)
    if roll: rt_setup()
    if qch2:
        for lp in range(4):
            for kk in range(2): wread2(lp, kk, 0)
        for kk in range(2):
            for qt in range(7): bread2(0, kk, qt, kk)
        if sea >= 4:
            for i in range(8): a(f"v_add_u32 v{V_S+i}, s{S_TAB+i}, v{V_QD}")
    else:
        for l in range(8): wread(l, 0)
        for qt in range(7): bread(0, qt, 0)
    a.lds_wait_all()
    def qp_body(role):
        sfx = role or ""
        vns = {None: (22, 17, 18, 18, 18), "W": (16, 16, 16, 16, 16), "X": (16, 22, 28, 28, 28), "T": (16, 20, 20, 63, 63)}[role]
        nts = (6, 4, 4, 2)
        qp_stage(0, first=True, chk=True, after_store=True, vn=vns[0], role=role, ntouch=nts[0], sidx=0, code=("P", 0))
        qp_stage(1, first=qch2, after_store=True, vn=vns[1], role=role, ntouch=nts[1], sidx=1, code=("P", 1))
        qp_stage(2, after_store=True, vn=vns[2], role=role, ntouch=nts[2], sidx=2, code=("P", 2))
        qp_stage(3, vn=vns[3], role=role, ntouch=nts[3], sidx=3, code=("P", 3))
        if not wo2 and not wo8 and not woff:
            a(f"s_cmp_lg_u32 s{S_WO}, 0")
            a(f"s_cbranch_scc1 L_at_nowo0{sfx}")
            a(f"s_mov_b32 s{S_WO}, 1")
            wo_issue(0)
            if roll: rt_setup()
            a.label(f"L_at_nowo0{sfx}")
        a(f"s_mov_b32 s{S_CNT}, 0")
        if pstq: st(9)
        a.label(f"L_at_qploop{sfx}")
        a.lds_q = []
        if wo6:
            a(f"s_lshl3_add_u32 s{S_A}, s{S_WO}, s{S_CNT}")
            a(f"s_cmp_eq_u32 s{S_A}, {int(wo6[0])}")
            a("s_cbranch_scc1 L_at_wh0")
            a(f"s_cmp_eq_u32 s{S_A}, {8 + int(wo6[1])}")
            a("s_cbranch_scc1 L_at_wh1")
            a.label("L_at_whr")
            def h0():
                a(f"s_mov_b32 s{S_WO}, 1")
                for i in range(5):
                    a(f"s_add_u32 m0, s58, {1024*i}")
                    a(f"v_accvgpr_read_b32 v{V_T3}, a{244+i}")
                    a(f"buffer_load_dwordx4 v{V_T3}, s[84:87], s56 offen lds")
                a("s_branch L_at_whr")
            def h1():
                a(f"s_mov_b32 s{S_WO}, 2")
                a(f"v_accvgpr_read_b32 v{V_T1}, a249")
                a("s_add_u32 s57, s56, 160")
                for t in range(5):
                    for v in range(2):
                        a(f"ds_read_b64_tr_b16 {ar(A_LS+4*t+2*v,2)}, v{V_T1} offset:{v*640+t*32}")
                a("s_waitcnt lgkmcnt(0)")
                for i in range(5):
                    a(f"s_add_u32 m0, s58, {1024*i}")
                    a(f"v_accvgpr_read_b32 v{V_T3}, a{244+i}")
                    a(f"buffer_load_dwordx4 v{V_T3}, s[84:87], s57 offen lds")
                a("s_branch L_at_whr")
            state.setdefault("ool", []).extend(["L_at_wh0:"] + capture(h0) + ["L_at_wh1:"] + capture(h1))
        for sm in range(4): qp_stage(sm, vn=vns[4], role=role, sidx=4+sm, code=("L", sm))
        if pstq: st(9)
        a(f"s_add_u32 s{S_CNT}, s{S_CNT}, 1")
        a(f"s_cmp_lt_u32 s{S_CNT}, 3")
        a(f"s_cbranch_scc1 L_at_qploop{sfx}")
    if not roles:
        qp_body(None)
    else:
        a(f"s_cmp_eq_u32 s{S_WAVE}, 1")
        a("s_cbranch_scc1 L_at_qpX")
        a(f"s_cmp_eq_u32 s{S_WAVE}, 3")
        a("s_cbranch_scc1 L_at_qpT")
        qp_body("W")
        a("s_branch L_at_qpjoin")
        a.label("L_at_qpX")
        qp_body("X")
        a("s_branch L_at_qpjoin")
        a.label("L_at_qpT")
        a(f"s_bfe_u32 s{S_A}, s2, 0x20003")
        a(f"s_lshl_b32 s{S_A}, s{S_A}, 3")
        a(f"v_lshrrev_b32 v{V_T0}, 3, v{V_LANE}")
        a(f"v_add_u32 v{V_T0}, s{S_A}, v{V_T0}")
        a(f"v_lshlrev_b32 v{V_T0}, 13, v{V_T0}")
        a(f"v_and_b32 v{V_T1}, 7, v{V_LANE}")
        a(f"v_lshl_add_u32 v{V_T0}, v{V_T1}, 6, v{V_T0}")
        a(f"v_min_u32 v{V_T1}, 27, v{V_LANE}")
        a(f"s_and_b32 s{S_A}, s2, 7")
        a(f"s_mul_i32 s{S_B}, s{S_A}, 28")
        a(f"v_add_u32 v{V_T1}, s{S_B}, v{V_T1}")
        a(f"v_mul_u32_u24 v{V_T1}, 1280, v{V_T1}")
        a(f"s_lshl_b32 s{S_A}, s{S_A}, 10")
        a(f"s_lshl_b32 s{S_B}, s101, 9")
        a(f"s_add_u32 s98, s{S_A}, s{S_B}")
        a(f"s_add_u32 s98, s98, {4*32*8192}")
        a(f"s_bfe_u32 s{S_A}, s2, 0x40003")
        a(f"s_mul_i32 s99, s{S_A}, {224*1280}")
        a(f"s_add_u32 s99, s99, {4*64}")
        qp_body("T")
        a.label("L_at_qpjoin")
    a(f"s_cmp_lg_u32 s{S_PRE}, 0")
    a("s_cbranch_scc1 L_at_qptailB")
    for sm in range(4): qp_stage(sm, dma="KV", last=(sm == 3), vn=(18, 17, 16, 16)[sm], sidx=16+sm, code=("T", sm))
    a("s_branch L_at_qpepi")
    a.label("L_at_qptailB")
    qs_init(S_T)
    a.lds_q = []
    for sm in range(4): qp_stage(sm, dma="QP", last=(sm == 3), vn=18, nok=True, sidx=16+sm, code=("B", sm))
    a.label("L_at_qpepi")
    if qdelay: dly(qdelay, "q")
    st(1)
    if trace:
        a("s_cmp_lg_u32 s2, 5")
        a("s_cbranch_scc1 L_tr_skip")
        a(f"s_cmp_lg_u32 s{S_T}, 0")
        a("s_cbranch_scc1 L_tr_skip")
        a(f"s_cmp_lg_u32 s{S_WAVE}, 0")
        a("s_cbranch_scc1 L_tr_skip")
        a("s_mov_b32 s80, s46"); a("s_mov_b32 s81, s47"); a("s_mov_b32 s82, 256"); a("s_mov_b32 s83, 0x20000")
        a(f"v_lshlrev_b32 v{V_T2}, 2, v{V_LANE}")
        a(f"v_add_u32 v{V_T2}, 128, v{V_T2}")
        a(f"buffer_store_dword v{V_T3}, v{V_T2}, s[80:83], 0 offen")
        a.label("L_tr_skip")
    if defer: a("s_mov_b32 s98, 0x40000000")
    a(f"v_mov_b32 v{V_T2}, s{S_CS}")
    a(f"v_mov_b32 v{V_T3}, s{S_CS}")
    a("s_nop 6")
    TMP = V_S
    if tdef:
        assert (klate == 3 and tdef in (1, 2, 3, 5)) or (klate == 2 and tdef == 4)
        a(f"s_cmp_lg_u32 s{S_PRE}, 0")
        a("s_cselect_b64 vcc, -1, 0")
    for T in range(4):
        n_ep = len(a.lines)
        if T < 2:
            base = lambda e, qt: V_OK + 28 * (2 * T + e) + 4 * qt
        else:
            base = lambda e, qt: V_OK + 28 * (2 * (T - 2) + e) + 4 * qt
            for e in range(2):
                for qt in range(7):
                    for r in range(4):
                        a(f"v_accvgpr_read_b32 v{base(e,qt)+r}, a{A_OS+28*(2*(T-2)+e)+4*qt+r}")
        for e in range(2):
            for qt in range(7):
                o = base(e, qt)
                for h in range(2):
                    a(f"v_pk_mul_f32 {vr(o+2*h,2)}, {vr(o+2*h,2)}, {vr(V_T2,2)}")
        pk = lambda qt: TMP + 28 * (T & 1) + 4 * qt
        for qt in range(7):
            oe = base(0, qt); oo = base(1, qt); p = pk(qt)
            a(f"v_cvt_pk_bf16_f32 v{p}, v{oe}, v{oe+1}")
            a(f"v_cvt_pk_bf16_f32 v{p+1}, v{oe+2}, v{oe+3}")
            a(f"v_cvt_pk_bf16_f32 v{p+2}, v{oo}, v{oo+1}")
            a(f"v_cvt_pk_bf16_f32 v{p+3}, v{oo+2}, v{oo+3}")
        a("s_nop 1")
        for qt in range(7):
            p = pk(qt)
            a(f"v_permlane16_swap_b32 v{p}, v{p+2}")
            a(f"v_permlane16_swap_b32 v{p+1}, v{p+3}")
        for qt in range(7):
            for r in range(4):
                a(f"v_accvgpr_write_b32 a{A_Q+16*qt+4*T+r}, v{pk(qt)+r}")
        if tdef and ((T < tdef) if tdef < 3 else (T == klate)):
            slot_ = 4 - tdef + T if tdef < 3 else 2
            dl_ = dma_lines(slot_, "KV")
            grp = []; cur_ = []
            for ln in dl_:
                if "buffer_load" in ln: cur_.append(ln); grp.append(cur_); cur_ = []
                elif "m0, m0" in ln: grp[-1].append(ln)
                else: cur_.append(ln)
            assert len(grp) == 8 and not cur_
            body_ = a.lines[n_ep:]; del a.lines[n_ep:]
            stp = len(body_) // 8
            for k_ in range(8):
                lab = f"L_at_td{T}_{k_}"
                a.lines += [f"    s_cbranch_vccnz {lab}"] + grp[k_] + [f"{lab}:"]
                a.lines += body_[k_ * stp:(k_ + 1) * stp if k_ < 7 else len(body_)]
        if klate and T == klate - 1:
            assert qch2
            a(f"s_cmp_lg_u32 s{S_PRE}, 0")
            a("s_cbranch_scc1 L_at_klskip")
            a(f"s_waitcnt vmcnt({8 if tdef >= 3 else 24})")
            a("s_barrier")
            for f in range(8): kread(f, 0)
            a.label("L_at_klskip")
    a(f"s_cmp_eq_u32 s{S_PRE}, 0")
    a("s_cbranch_scc1 L_at_nostash")
    a(f"s_mov_b32 s{S_PRE}, 0")
    qstash_off()
    for i in range(7):
        for s_ in range(4):
            a(f"buffer_store_dwordx4 {ar(A_Q+16*i+4*s_,4)}, v{V_T2}, s[{S_W}:{S_W+3}], s{S_C} offen offset:{1024*s_} {qpol}".rstrip())
        if i < 6: a(f"s_add_u32 s{S_C}, s{S_C}, 4096")
    a(f"s_mov_b32 s{S_AS}, 3")
    a("s_branch L_at_round")
    a.label("L_at_nostash")
    a(f"s_cmp_lg_u32 s{S_MP}, 0")
    a("s_cbranch_scc1 L_at_maxpass")
    a.label("L_at_pre")
    if wo6 or wo8 or woff:
        pass
    elif wo2:
        assert inv
        a(f"s_cmp_lg_u32 s{S_WO}, 0")
        a("s_cbranch_scc1 L_at_nowo1a")
        a(f"s_mov_b32 s{S_WO}, {2 if wo5 else 1}")
        a(f"s_mov_b32 s{S_AS}, 0x103")
        if wo5:
            a(f"v_accvgpr_read_b32 v{V_T1}, a249")
            a("s_add_u32 s57, s56, 160")
            a("s_waitcnt vmcnt(24)")
            for t in range(5):
                for v in range(2):
                    a(f"ds_read_b64_tr_b16 {ar(A_LS+4*t+2*v,2)}, v{V_T1} offset:{v*640+t*32}")
            a("s_waitcnt lgkmcnt(0)")
            for i in range(5):
                a(f"s_add_u32 m0, s58, {1024*i}")
                a(f"v_accvgpr_read_b32 v{V_T3}, a{244+i}")
                a(f"buffer_load_dwordx4 v{V_T3}, s[84:87], s57 offen lds")
        else:
            wo_issue(0)
        if not (wo3 or wo4): a("s_branch L_at_nowo1")
        a.label("L_at_nowo1a")
        if not (wo3 or wo4):
            a(f"s_cmp_lg_u32 s{S_WO}, 2")
            a("s_cbranch_scc1 L_at_nowo1")
            a(f"s_cmp_lg_u32 s{S_TY}, 0")
            a("s_cbranch_scc1 L_at_nowo1")
            a(f"s_mov_b32 s{S_WO}, 3")
            a(f"s_mov_b32 s{S_AS}, 0x103")
            wo_finish(1)
    else:
        a(f"s_cmp_lg_u32 s{S_WO}, 1")
        a("s_cbranch_scc1 L_at_nowo1")
        a(f"s_mov_b32 s{S_WO}, 2")
        wo_finish(0)
        wo_issue(1)
    a.label("L_at_nowo1")
    st(2)
    a.lds_q = ["K"]
    state["n"] = 0
    z = []
    for l in range(8):
        for r in range(4):
            z.append(f"v_mov_b32 v{V_OK+28*l+24+r}, 0" if l < 4 else f"v_accvgpr_write_b32 a{A_OS+28*(l-4)+24+r}, 0")
    if ones: z += [f"v_accvgpr_write_b32 a{A_LS+24+r}, 0" for r in range(4)]
    emit(qk_items(0, 0, True, None), z[:16])
    for o in z[16:]: a(o)
    if gkv and gkv != 3:
        assert lp7 and not early
        a(f"s_add_u32 s{S_B}, s{S_DJ}, s100")
        if gkv in (2, 4): a(f"s_xor_b32 s{S_B}, s{S_B}, s76")
        a(f"s_bfe_u32 s{S_A}, s{S_B}, 0x20003")
        a(f"s_lshl_b32 s{S_A}, s{S_A}, 16")
        a(f"s_and_b32 s{S_B}, s{S_B}, 7")
        a(f"s_lshl_b32 s{S_B}, s{S_B}, 11")
        a(f"s_add_u32 s{S_B}, s{S_A}, s{S_B}")
        a(f"s_lshr_b32 s{S_A}, s{S_DJ}, 5")
        a(f"s_lshl_b32 s{S_A}, s{S_A}, 19")
        a(f"s_add_u32 s64, s{S_A}, s{S_B}")
        a(f"s_add_u32 s{S_DJ}, s{S_DJ}, 28")
    step(0, first=True, dyn=True)
    a(f"s_mov_b32 s{S_CNT}, 0")
    if align:
        a.lines.append(".p2align 6")
        if align == 2: a("s_nop 0")
    a.label("L_at_loop")
    q0 = list(a.lds_q)
    state["inat"] = True
    for jm in (1, 2, 3, 0): step(jm, dyn=(jm in (1, 2)))
    state["inat"] = False
    assert q0 == a.lds_q, (q0, a.lds_q)
    if pstl:
        a("s_memrealtime s[78:79]")
        a("s_memtime s[80:81]")
        a("s_waitcnt lgkmcnt(0)")
        a("s_mov_b32 s76, m0")
        a("s_mov_b32 m0, s77"); a("s_nop 0"); a("v_writelane_b32 v0, s78, m0")
        a("s_add_u32 m0, s77, 30"); a("s_nop 0"); a("v_writelane_b32 v0, s80, m0")
        a("s_add_u32 s77, s77, 1")
        a("s_mov_b32 m0, s76")
    a(f"s_add_u32 s{S_CNT}, s{S_CNT}, 1")
    if wo3:
        assert lp7 and not ones
        a(f"s_lshl3_add_u32 s{S_A}, s{S_WO}, s{S_CNT}")
        a(f"s_cmp_eq_u32 s{S_A}, {8 + wo3}")
        a("s_cbranch_scc1 L_at_wof0")
        a.label("L_at_wof0r")
    a(f"s_cmp_lt_u32 s{S_CNT}, {7 if lp7 else 6}")
    a("s_cbranch_scc1 L_at_loop")
    if wo4 and not wo5:
        assert lp7 and not ones
        a(f"s_cmp_lg_u32 s{S_WO}, 1")
        a("s_cbranch_scc1 L_at_nowoi1")
        a(f"s_mov_b32 s{S_WO}, 2")
        a(f"s_mov_b32 s{S_AS}, 0x102")
        wo_read_a()
        a("s_waitcnt lgkmcnt(0)")
        wo_issue_a(1)
        a.label("L_at_nowoi1")
    if wo3:
        a(f"s_cmp_lg_u32 s{S_WO}, 2")
        a("s_cbranch_scc1 L_at_nowoi1")
        a(f"s_mov_b32 s{S_WO}, 3")
        a(f"s_mov_b32 s{S_AS}, 0x102")
        wo_issue_a(1)
        a.label("L_at_nowoi1")
        ls = capture(lambda: (wo_finish_a(0), a(f"s_mov_b32 s{S_WO}, 2"), a(f"s_mov_b32 s{S_AS}, 0x102"), a("s_branch L_at_wof0r")))
        state.setdefault("ool", []).extend(["L_at_wof0:"] + ls)
    a(f"s_add_u32 s{S_T}, s{S_T}, 1")
    touch_init(S_T)
    assert not (lp7 and early)
    if not lp7:
        step(1, nt_=3); step(2, nt_=2); step(3, tr_=True)
    if strace: a("s_memtime s[62:63]")
    qs_init(S_T)
    if not early and not lp7: step(0)
    def wtouch():
        a(f"s_and_b32 s{S_A}, s2, 127")
        a(f"s_mul_i32 s{S_A}, s{S_A}, {32*1280}")
        a(f"s_mul_i32 s{S_B}, s{S_WAVE}, {80*128}")
        a(f"s_add_u32 s{S_A}, s{S_A}, s{S_B}")
        a(f"v_lshlrev_b32 v{V_T2}, 7, v{V_LANE}")
        a(f"v_and_b32 v{V_T3}, 15, v{V_LANE}")
        a(f"v_lshlrev_b32 v{V_T3}, 7, v{V_T3}")
        a(f"buffer_load_dword a250, v{V_T2}, s[84:87], s{S_A} offen")
        a(f"s_add_u32 s{S_A}, s{S_A}, {64*128}")
        a(f"buffer_load_dword a251, v{V_T3}, s[84:87], s{S_A} offen")
        if cpo:
            assert cpf2 and V_T2 % 2 == 0 and V_T3 == V_T2 + 1
            a(f"s_lshl_b32 s{S_A}, s{S_WAVE}, 13")
            a(f"v_lshlrev_b32 v{V_T2}, 7, v{V_LANE}")
            a(f"v_add_u32 v{V_T2}, s{S_A}, v{V_T2}")
            a(f"v_add_u32 v{V_T2}, op_kernel - L_pc0, v{V_T2}")
            a(f"v_min_u32 v{V_T2}, L_code_end - L_pc0 - 4, v{V_T2}")
            a(f"v_mov_b32 v{V_T3}, s73")
            a(f"v_add_co_u32 v{V_T2}, vcc, s72, v{V_T2}")
            a(f"v_addc_co_u32 v{V_T3}, vcc, 0, v{V_T3}, vcc")
            a(f"global_load_dword a250, v[{V_T2}:{V_T3}], off")
        if wtch in (2, 3):
            a(f"s_mov_b32 s{S_A}, 0x40000000")
            for _ in range(3): a(f"buffer_load_dword a251, v{V_T3}, s[84:87], s{S_A} offen")
            a(f"s_mov_b32 s{S_AS}, {0x103 if wtch == 2 else 0x102}")
    if wtch in (1, 2, 3):
        a(f"s_cmp_eq_u32 s{S_T}, 2")
        a("s_cbranch_scc1 L_at_wt0")
        a.label("L_at_wt0r")
        state.setdefault("ool", []).extend(["L_at_wt0:"] + capture(lambda: (wtouch(), a("s_branch L_at_wt0r"))))
    if wo8:
        assert lp7 and inv
        a(f"s_lshl3_add_u32 s{S_A}, s{S_T}, s{S_WO}")
        a(f"s_cmp_eq_u32 s{S_A}, 16")
        a("s_cbranch_scc1 L_at_w8h0")
        a.label("L_at_w8h0r")
        def h0body():
            a(f"s_mov_b32 s{S_WO}, 1")
            a(f"s_mov_b32 s{S_AS}, 0x102")
            for i in range(5):
                a(f"s_add_u32 m0, s58, {1024*i}")
                a(f"v_accvgpr_read_b32 v{V_T3}, a{244+i}")
                if not wo8 & 16: a(f"buffer_load_dwordx4 v{V_T3}, s[84:87], s56 offen lds")
            a("s_branch L_at_w8h0r")
        state.setdefault("ool", []).extend(["L_at_w8h0:"] + capture(h0body))
    if eep:
        assert not (rflip or defer or ones or early or wo2 or wo8 or touch or kvt2 or stpol0 is not None) and inv and lp7 and wtch in (0, 1)
        a(f"s_mul_i32 s{S_D}, s{S_T}, {2*PAIRB}")
        a(f"s_add_u32 s{S_D}, s{S_D}, s{S_OOFF}")
        a(f"s_sub_u32 s{S_D}, s{S_D}, {2*PAIRB}")
    a(f"s_cmp_lg_u32 s{S_TY}, 0")
    a("s_cbranch_scc1 L_at_atailB")
    n0 = state["n"]; q0 = list(a.lds_q); c0 = state.get("carry")
    if early: step(0, dma="QP")
    tdyn = bool((wo3 or wo4) and not wo5) or bool(wo8) or wtch in (2, 3)
    def h1(tag):
        if wtch == 3:
            a(f"s_cmp_eq_u32 s{S_T}, 2")
            a(f"s_cselect_b32 s{S_AS}, 0x301, s{S_AS}")
        if not wo8: return
        a(f"s_cmp_eq_u32 s{S_WO}, 1")
        a(f"s_cbranch_scc1 L_at_w8h1{tag}")
        a.label(f"L_at_w8h1r{tag}")
        def body():
            a(f"s_mov_b32 s{S_WO}, 2")
            a(f"s_mov_b32 s{S_AS}, 0x101")
            a(f"v_accvgpr_read_b32 v{V_T1}, a249")
            a("s_add_u32 s57, s56, 160")
            a(f"v_lshlrev_b32 v{V_T2}, 4, v{V_LANE}")
            a(f"s_mul_i32 s{S_A}, s2, {40*1024}")
            a(f"s_mul_i32 s{S_B}, s{S_WAVE}, {10*1024}")
            a(f"s_add_u32 s{S_A}, s{S_A}, s{S_B}")
            a(f"s_add_u32 s{S_A}, s{S_A}, {WS_W}")
            if not wo8 & 8: a("s_waitcnt vmcnt(16)")
            for t in range(5):
                for v in range(2):
                    a(f"ds_read_b64_tr_b16 {ar(A_LS+4*t+2*v,2)}, v{V_T1} offset:{v*640+t*32}")
            a("s_waitcnt lgkmcnt(0)")
            for i in range(5):
                a(f"s_add_u32 m0, s58, {1024*i}")
                a(f"v_accvgpr_read_b32 v{V_T3}, a{244+i}")
                if not wo8 & 4: a(f"buffer_load_dwordx4 v{V_T3}, s[84:87], s57 offen lds")
            for f in range(5):
                if f == 4: a(f"s_add_u32 s{S_A}, s{S_A}, 4096")
                if not wo8 & 2: a(f"buffer_store_dwordx4 {ar(A_LS+4*f,4)}, v{V_T2}, s[{S_W}:{S_W+3}], s{S_A} offen offset:{1024*(f&3)} {wpol}".rstrip())
            a(f"s_branch L_at_w8h1r{tag}")
        state.setdefault("ool", []).extend([f"L_at_w8h1{tag}:"] + capture(body))
    ixA0 = len(a.lines)
    step(1, dma="QP", dyn=tdyn); step(2, dma="QP", dyn=tdyn); h1("A"); step(3, dma="QP", last=True, dyn=bool(wo8) or wtch in (2, 3))
    ixA1 = len(a.lines)
    a("s_branch L_at_aepi")
    a.label("L_at_atailB")
    state["n"] = n0; a.lds_q = q0; state["carry"] = c0
    if early: step(0)
    ixB0 = len(a.lines)
    step(1, dyn=tdyn); step(2, dyn=tdyn); h1("B"); step(3, last=True, dyn=bool(wo8) or wtch in (2, 3))
    ixB1 = len(a.lines)
    a.label("L_at_aepi")
    if adelay: dly(adelay, "a")
    a.lds_q = ["V"]
    st(3)
    E = V_S
    red = [f"v_add_f32 v{V_L+2*i}, v{V_L+2*i}, v{V_L+2*i+1}" for i in range(7)]
    red += [f"v_mov_b32 v{E+i}, v{V_L+2*i}" for i in range(7)]
    red += [f"v_permlane16_swap_b32 v{V_L+2*i}, v{E+i}" for i in range(7)]
    red += [f"v_add_f32 v{V_L+2*i}, v{V_L+2*i}, v{E+i}" for i in range(7)]
    red += [f"v_mov_b32 v{E+i}, v{V_L+2*i}" for i in range(7)]
    red += [f"v_permlane32_swap_b32 v{V_L+2*i}, v{E+i}" for i in range(7)]
    red += [f"v_add_f32 v{V_L+2*i}, v{V_L+2*i}, v{E+i}" for i in range(7)]
    a("s_nop 1")
    ixP0 = len(a.lines)
    if eep:
        emit(pv_items(6, 1, False, None), ep_merge(ep_red(6), ep_red(5) + ep_tile(5, eep == 2)))
    elif ones:
        emit(pv_items(6, 1, False, None), [])
        a("s_nop 7")
        for i in range(7): a(f"v_accvgpr_read_b32 v{V_L+2*i}, a{A_LS+4*i}")
    else:
        emit(pv_items(6, 1, False, None), red)
    if not eep:
        for i in range(7): a(f"v_rcp_f32 v{V_CI+4*i}, v{V_L+2*i}")
    a(f"v_add_f32 v{E+2}, v{V_L}, v{V_L+2}")
    a(f"v_add_f32 v{E+3}, v{V_L+4}, v{V_L+6}")
    a(f"v_add_f32 v{E+4}, v{V_L+8}, v{V_L+10}")
    a(f"v_add_f32 v{E+2}, v{E+2}, v{V_L+12}")
    a(f"v_add_f32 v{E+3}, v{E+3}, v{E+4}")
    a(f"v_add_f32 v{E+2}, v{E+2}, v{E+3}")
    a(f"v_cmp_nge_f32 vcc, s{S_THR}, v{E+2}")
    for i in range(7): a(f"v_mov_b32 v{V_L+2*i}, 0xff800000")
    a("s_cmp_eq_u64 vcc, 0")
    a("s_cbranch_scc1 L_at_noflag")
    if nofb: a("s_branch L_at_noflag")
    a(f"s_lshl_b32 s{S_B}, s{S_T}, 2")
    a(f"s_add_u32 s{S_B}, s{S_B}, {LDS_FLAG-4}")
    a(f"v_mov_b32 v{E+2}, s{S_B}")
    a(f"v_mov_b32 v{E+3}, 1")
    a(f"ds_write_b32 v{E+2}, v{E+3}")
    a.label("L_at_noflag")
    if eep:
        for o in ep_tile(6, True): a(o)
    elif rflip:
        a(f"s_sub_u32 s{S_D}, s{S_T}, 1")
        a(f"s_mul_i32 s{S_D}, s{S_D}, s99")
        a(f"s_add_u32 s{S_D}, s{S_D}, s{S_OOFF}")
    else:
        a(f"s_mul_i32 s{S_D}, s{S_T}, {2*PAIRB}")
        a(f"s_add_u32 s{S_D}, s{S_D}, s{S_OOFF}")
        a(f"s_sub_u32 s{S_D}, s{S_D}, {2*PAIRB}")
    if defer:
        a(f"s_cmp_lt_u32 s{S_T}, 2")
        a(f"s_cselect_b32 s99, 1, 0")
        a(f"s_cmp_eq_u32 s{S_TY}, 0")
        a(f"s_cselect_b32 s99, s99, 0")
        a(f"s_cmp_lg_u32 s99, 0")
        a(f"s_cselect_b32 s98, s{S_D}, s98")
    for T in range(0 if eep else 4):
        if T < 2:
            base = lambda e, qt: V_OK + 28 * (2 * T + e) + 4 * qt
        else:
            base = lambda e, qt: V_OK + 28 * (2 * (T - 2) + e) + 4 * qt
            for e in range(2):
                for qt in range(7):
                    for r in range(4):
                        a(f"v_accvgpr_read_b32 v{base(e,qt)+r}, a{A_OS+28*(2*(T-2)+e)+4*qt+r}")
        for e in range(2):
            for qt in range(7):
                o = base(e, qt)
                for h in range(2):
                    a(f"v_pk_mul_f32 {vr(o+2*h,2)}, {vr(o+2*h,2)}, {vr(V_CI+4*qt,2)} op_sel_hi:[1,0]")
        pk = lambda qt: V_S + 28 * (T & 1) + 4 * qt
        for qt in range(7):
            oe = base(0, qt); oo = base(1, qt); p = pk(qt)
            a(f"v_cvt_pk_bf16_f32 v{p}, v{oe}, v{oe+1}")
            a(f"v_cvt_pk_bf16_f32 v{p+1}, v{oe+2}, v{oe+3}")
            a(f"v_cvt_pk_bf16_f32 v{p+2}, v{oo}, v{oo+1}")
            a(f"v_cvt_pk_bf16_f32 v{p+3}, v{oo+2}, v{oo+3}")
        if not operm:
            a("s_nop 1")
            for qt in range(7):
                p = pk(qt)
                a(f"v_permlane16_swap_b32 v{p}, v{p+2}")
                a(f"v_permlane16_swap_b32 v{p+1}, v{p+3}")
        if defer:
            a(f"s_cmp_lg_u32 s99, 0")
            a(f"s_cbranch_scc1 L_at_dfr{T}")
        a(f"s_mov_b32 s{S_A}, s{S_D}")
        if stpol0 is not None:
            a(f"s_cmp_ge_u32 s{S_T}, 2")
            a(f"s_cbranch_scc1 L_at_sp1_{T}")
            for qt in range(7):
                a(f"buffer_store_dwordx4 {vr(pk(qt),4)}, v{V_XA}, s[{S_W}:{S_W+3}], s{S_A} offen offset:{1024*T} {stpol0}".rstrip())
                if qt < 6: a(f"s_add_u32 s{S_A}, s{S_A}, 4096")
            a(f"s_branch L_at_sp2_{T}")
            a.label(f"L_at_sp1_{T}")
        for qt in range(7):
            if not nost: a(f"buffer_store_dwordx4 {vr(pk(qt),4)}, v{V_XA}, s[{S_W}:{S_W+3}], s{S_A} offen offset:{1024*T} {stpol}".rstrip())
            if dupst:
                a(f"s_sub_u32 s{S_B}, s{S_A}, {WS_O - 30000000}")
                a(f"buffer_store_dwordx4 {vr(pk(qt),4)}, v{V_XA}, s[72:75], s{S_B} offen offset:{1024*T}")
            if qt < 6: a(f"s_add_u32 s{S_A}, s{S_A}, 4096")
        if stpol0 is not None: a.label(f"L_at_sp2_{T}")
        if defer:
            a(f"s_branch L_at_dfj{T}")
            a.label(f"L_at_dfr{T}")
            for qt in range(7):
                for r in range(4):
                    a(f"v_accvgpr_write_b32 a{A_Q+16*qt+4*T+r}, v{pk(qt)+r}")
            a.label(f"L_at_dfj{T}")
    a("s_nop 1")
    if wo8:
        a(f"s_cmp_lg_u32 s{S_WO}, 2")
        a("s_cbranch_scc1 L_at_nowo2")
        a(f"s_mov_b32 s{S_WO}, 4")
        a(f"v_accvgpr_read_b32 v{V_T1}, a249")
        a(f"v_lshlrev_b32 v{V_T2}, 4, v{V_LANE}")
        a(f"s_mul_i32 s{S_A}, s2, {40*1024}")
        a(f"s_mul_i32 s{S_B}, s{S_WAVE}, {10*1024}")
        a(f"s_add_u32 s{S_A}, s{S_A}, s{S_B}")
        a(f"s_add_u32 s{S_A}, s{S_A}, {WS_W+5120}")
        a("s_waitcnt vmcnt(49)")
        R = V_VF
        for t in range(5):
            for v in range(2):
                a(f"ds_read_b64_tr_b16 {vr(R+4*t+2*v,2)}, v{V_T1} offset:{v*640+t*32}")
        a("s_waitcnt lgkmcnt(0)")
        for f in range(5):
            if f == 4: a(f"s_add_u32 s{S_A}, s{S_A}, 4096")
            a(f"buffer_store_dwordx4 {vr(R+4*f,4)}, v{V_T2}, s[{S_W}:{S_W+3}], s{S_A} offen offset:{1024*(f&3)} {wpol}".rstrip())
        a("s_nop 1")
    elif wo4:
        a(f"s_mov_b32 s{S_AS}, 3")
        a(f"s_cmp_lg_u32 s{S_WO}, 2")
        a("s_cbranch_scc1 L_at_nowo2")
        a(f"s_mov_b32 s{S_WO}, 4")
        a(f"s_mov_b32 s{S_AS}, 0x303")
        if wo5:
            a(f"v_accvgpr_read_b32 v{V_T1}, a249")
            a(f"v_lshlrev_b32 v{V_T2}, 4, v{V_LANE}")
            a(f"s_mul_i32 s{S_A}, s2, {40*1024}")
            a(f"s_mul_i32 s{S_B}, s{S_WAVE}, {10*1024}")
            a(f"s_add_u32 s{S_A}, s{S_A}, s{S_B}")
            a(f"s_add_u32 s{S_A}, s{S_A}, {WS_W}")
            R = V_VF
            for t in range(5):
                for v in range(2):
                    a(f"ds_read_b64_tr_b16 {vr(R+4*t+2*v,2)}, v{V_T1} offset:{v*640+t*32}")
            for f in range(5):
                if f == 4: a(f"s_add_u32 s{S_A}, s{S_A}, 4096")
                a(f"buffer_store_dwordx4 {ar(A_LS+4*f,4)}, v{V_T2}, s[{S_W}:{S_W+3}], s{S_A} offen offset:{1024*(f&3)} {wpol}".rstrip())
            a(f"s_add_u32 s{S_A}, s{S_A}, 1024")
            a("s_waitcnt lgkmcnt(0)")
            for f in range(5):
                if f == 4: a(f"s_add_u32 s{S_A}, s{S_A}, 4096")
                a(f"buffer_store_dwordx4 {vr(R+4*f,4)}, v{V_T2}, s[{S_W}:{S_W+3}], s{S_A} offen offset:{1024*(f&3)} {wpol}".rstrip())
            a("s_nop 1")
        else:
            wo_store_a(0)
            wo_finish(1)
    elif wo2 and not wo3:
        a(f"s_cmp_lg_u32 s{S_WO}, 1")
        a("s_cbranch_scc1 L_at_nowo2a")
        a(f"s_mov_b32 s{S_WO}, 2")
        wo_finish(0)
        wo_issue(1)
        a("s_branch L_at_nowo2")
        a.label("L_at_nowo2a")
    if not wo4 and not wo8 and not woff:
        a(f"s_cmp_lg_u32 s{S_WO}, {3 if wo3 else 2}")
        a("s_cbranch_scc1 L_at_nowo2")
        a(f"s_mov_b32 s{S_WO}, {4 if wo3 else 3}")
        wo_finish(1)
    a.label("L_at_nowo2")
    if not wo4: a(f"s_mov_b32 s{S_AS}, 3")
    if defer:
        a("s_cmp_lg_u32 s99, 0")
        a(f"s_cselect_b32 s{S_AS}, 0, 3")
    st(4)
    a.lds_q = []
    ixP1 = len(a.lines)
    a(f"s_cmp_ge_u32 s{S_T}, 2")
    a("s_cbranch_scc1 L_at_fin")
    a(f"s_cmp_eq_u32 s{S_TY}, 0")
    if eep: a(f"s_mov_b32 s{S_AS}, 0x103")
    a("s_cbranch_scc1 L_at_round")
    if eep:
        a(f"s_mov_b32 s{S_AS}, 0x203")
        a("s_waitcnt vmcnt(@NBQ@)")
    else:
        a(f"s_waitcnt vmcnt({56 if dupst else (33 if wo3 else 38 if wo2 else 28)})")
    a("s_branch L_at_pre")
    if eep:
        def vm(ls):
            out = []
            for k_, l_ in enumerate(ls):
                t_ = l_.strip()
                if t_.startswith("buffer_") or t_.startswith("global_"):
                    out.append("D" if t_.endswith("lds") else "S" if t_.startswith("buffer_store") else "R")
                elif "@LB" in t_: out.append("|")
            return out
        post = vm(a.lines[ixP0:ixP1])
        res = {}
        for nm, i0, i1 in (("A", ixA0, ixA1), ("B", ixB0, ixB1)):
            sq = vm(a.lines[i0:i1]) + post
            bar = sq.index("|"); sq2 = [x for x in sq if x != "|"]
            dpos = [k_ for k_, x in enumerate(sq2) if x == "D"]
            assert len(dpos) == 32 and (nost or sq2.count("S") == 28), (dpos, sq2)
            res["LB" + nm] = bar - (dpos[7] + 1)
            after = lambda k_: len(sq2) - (k_ + 1)
            if nm == "A":
                assert nost or after(dpos[15]) == 44
                res["NA1"] = after(dpos[23]) + 8; res["NA2"] = after(dpos[31]) + 16
            else:
                rpos = [k_ for k_, x in enumerate(sq2) if x == "R"]
                assert len(rpos) == 28 and rpos[-1] > dpos[23]
                res["NBQ"] = after(rpos[-1]); res["NB2"] = after(dpos[31]) + 16
                assert res["NBQ"] <= 44 and res["NBQ"] + 8 <= 44 + 8
            print("eep seq", nm, "".join(sq), file=sys.stderr)
        print("eep counts", res, file=sys.stderr)
        assert all(0 <= v <= 63 for v in res.values())
        state["eepres"] = res
    a.label("L_at_fin")
    if wb == 1:
        a(f"s_cmp_lg_u32 s{S_WAVE}, 0")
        a("s_cbranch_scc1 L_at_nowb")
        a("buffer_wbl2 sc1")
        a.label("L_at_nowb")
    a("s_waitcnt lgkmcnt(0)")
    a("s_barrier")
    flagcheck()
    if pst:
        a("s_memrealtime s[78:79]")
        a("s_memtime s[80:81]")
        a("s_waitcnt lgkmcnt(0)")
        a("s_mov_b32 m0, s77"); a("s_nop 0"); a("v_writelane_b32 v0, s78, m0")
        a("s_add_u32 m0, s77, 30"); a("s_nop 0"); a("v_writelane_b32 v0, s80, m0")
        a("s_getreg_b32 s62, hwreg(HW_REG_XCC_ID)")
        a("v_writelane_b32 v0, s62, 63")
        a(f"v_writelane_b32 v0, s{S_TY}, 62")
        a(f"s_cmp_lg_u32 s{S_WAVE}, 0")
        a("s_cbranch_scc1 L_at_end")
        a("s_lshl_b32 s62, s2, 8"); a("s_add_u32 s62, s62, 50000000")
        a(f"v_lshlrev_b32 v2, 2, v{V_LANE}")
        a(f"buffer_store_dword v0, v2, s[{S_W}:{S_W+3}], s62 offen")
    if stamp:
        a("s_memtime s[56:57]")
        a("s_memrealtime s[58:59]")
        a("s_waitcnt lgkmcnt(0)")
        if allst:
            a("v_mov_b32 v2, s66"); a("v_mov_b32 v3, s58")
            a("s_sub_u32 s62, s56, s64"); a("v_mov_b32 v4, s62")
            a("s_getreg_b32 s62, hwreg(HW_REG_XCC_ID)"); a("v_mov_b32 v5, s62")
            a("s_lshl_b32 s62, s2, 4"); a("s_add_u32 s62, s62, 50000000"); a("v_mov_b32 v6, s62")
            a(f"buffer_store_dwordx4 v[2:5], v6, s[{S_W}:{S_W+3}], 0 offen")
        a(f"s_cmp_lg_u32 s2, {stwg}")
        a("s_cbranch_scc1 L_at_end")
        a("s_sub_u32 s56, s56, s64")
        a("s_sub_u32 s58, s58, s66")
        a("s_mov_b32 s84, s46")
        a("s_mov_b32 s85, s47")
        a("s_mov_b32 s86, 256")
        a("s_mov_b32 s87, 0x20000")
        a("v_mov_b32 v2, s56")
        a("v_mov_b32 v3, s58")
        a(f"s_lshl_b32 s62, s{S_WAVE}, 3")
        a("v_mov_b32 v4, s62")
        a("buffer_store_dwordx2 v[2:3], v4, s[84:87], 0 offen")
        if strace:
            pr = [36, 38, 40, 42, 56, 58, 60, 62]
            for i in range(7):
                a(f"s_sub_u32 s78, s{pr[i+1]}, s{pr[i]}")
                a("v_mov_b32 v2, s78")
                a(f"v_mov_b32 v4, {160+4*i}")
                a("buffer_store_dword v2, v4, s[84:87], 0 offen")
        a("s_sub_u32 s62, s72, s64")
        a("v_mov_b32 v2, s62")
        a(f"v_mov_b32 v4, {DBO+4*5}")
        a("buffer_store_dword v2, v4, s[84:87], 0 offen")
        for k in range(1, 5):
            a(f"s_sub_u32 s62, s{72+2*k}, s{70+2*k}")
            a("v_mov_b32 v2, s62")
            a(f"v_mov_b32 v4, {DBO+4*k}")
            a("buffer_store_dword v2, v4, s[84:87], 0 offen")
    a("s_branch L_at_end")
    for ln in state.get("ool", []): a.lines.append(ln)

    a.label("L_at_fallback")
    a(f"s_sub_u32 s{S_T0}, s{S_T}, 1")
    a(f"s_mov_b32 s{S_NOFB}, s{S_T0}")
    a(f"s_mov_b32 s{S_MP}, 1")
    a(f"s_mov_b32 s{S_TY}, 0")
    a(f"s_mov_b32 s{S_PRE}, 0")
    a(f"s_mov_b32 s{S_AS}, 0")
    if defer: a("s_mov_b32 s98, 0x40000000")
    for i in range(7): a(f"v_mov_b32 v{V_L+2*i}, 0xff800000")
    a("s_waitcnt vmcnt(0) lgkmcnt(0)")
    a("s_barrier")
    a("s_branch L_at_start")
    a.label("L_at_maxpass")
    a(f"s_mov_b32 s{S_MP}, 0")
    a("s_waitcnt lgkmcnt(0)")
    a(f"v_and_b32 v{V_T0}, 15, v{V_LANE}")
    a(f"v_lshlrev_b32 v{V_T0}, 8, v{V_T0}")
    a(f"v_bfe_u32 v{V_T1}, v{V_LANE}, 4, 1")
    a(f"v_lshl_add_u32 v{V_T0}, v{V_T1}, 5, v{V_T0}")
    a(f"v_bfe_u32 v{V_T1}, v{V_LANE}, 5, 1")
    a(f"v_lshl_add_u32 v{V_T2}, v{V_T1}, 4, v{V_T0}")
    a(f"v_add_u32 v{V_T3}, 4096, v{V_T2}")
    a(f"s_lshl_b32 s{S_B}, s{S_T}, 19")
    if rflip: a(f"s_xor_b32 s{S_B}, s{S_B}, s101")
    a(f"s_mov_b32 s{S_CNT}, 0")
    a.label("L_at_mp")
    for f in range(8):
        a(f"buffer_load_dwordx4 {vr(V_VF+4*f,4)}, v{V_T2 + (f>>2)}, s[{S_K}:{S_K+3}], s{S_B} offen offset:{64*(f&3)}")
    a("s_waitcnt vmcnt(0)")
    for i in range(7):
        for f in range(8):
            kt, s = f >> 2, f & 3
            D = vr(V_S + 4 * kt, 4)
            a(f"{MFMA} {D}, {vr(V_VF+4*f,4)}, {ar(A_Q+16*i+4*s,4)}, {'0' if s == 0 else D}")
        a("s_nop 9")
        for r in range(0, 8, 2):
            a(f"v_max3_f32 v{V_L+2*i}, v{V_S+r}, v{V_S+r+1}, v{V_L+2*i}")
        a("s_nop 3")
    a(f"s_add_u32 s{S_B}, s{S_B}, 8192")
    a(f"s_add_u32 s{S_CNT}, s{S_CNT}, 1")
    a(f"s_cmp_lt_u32 s{S_CNT}, 32")
    a("s_cbranch_scc1 L_at_mp")
    a("s_branch L_at_pre")
    a.label("L_at_end")
    a("s_endpgm")
    txt = a.text()
    if eep:
        for k_, v_ in state["eepres"].items(): txt = txt.replace(f"@{k_}@", str(v_))
        assert "@" not in txt
    return txt

if __name__ == "__main__":
    import sys
    name = "fused_kernel"
    opts = dict(x.split("=") for x in sys.argv[2:])
    opts = {k: bool(int(v)) for k, v in opts.items()}
    body = gen_fused(name, **opts)
    out = f"; @launch kernel={name} grid=(256,1,1) block=(256,1,1) lds={LDS_BYTES}\n"
    out += '.amdgcn_target "amdgcn-amd-amdhsa--gfx950"\n.text\n' + kernel_header(name) + body
    out += '.section .rodata,"a"\n.p2align 6\n' + kernel_desc(name, 512, accum=256)
    open(sys.argv[1], "w").write(out)
```

```python
from gen_common import *
import sys
import math

NQB = 3584 * 4096 * 2
WS_O = 2 * NQB
WS_W = 4 * NQB
WS_BYTES = 4 * NQB + 2 * 4096 * 640 * 2
PAIRB = 224 * 128 * 2

TILE = 8448
RING = 4
AREA = RING * TILE
LDS_BYTES = 163840
LDS_FLAG = 2 * AREA + 1024
LDS_FLAG = 2 * AREA + 8416

def kpad(i): return 1024 * i + 16 * ((i & 1) + 4 * (i >> 1))

V_LANE, V_T0, V_T1, V_T2, V_T3, V_LIN, V_DMA = 1, 2, 3, 4, 5, 6, 7
V_KA, V_VA, V_XA, V_WA = 8, 9, 10, 11
V_L = 12
V_QD, V_BA = 26, 27
V_CI = 28
V_KF = 56
V_S = 88
V_P = 104
V_VF = 112
V_OK = 144
A_Q = 0
A_OS = 112
A_LS = 224
A_ONE = 252
S_LD, S_K, S_W, S_QP = 4, 8, 12, 16
S_WAVE, S_T, S_CNT, S_NOFB, S_OOFF, S_MP, S_T0 = 20, 21, 22, 23, 24, 25, 27
S_A, S_B, S_C, S_D = 28, 29, 30, 31
S_THR, S_LDB, S_DJ, S_PJ, S_QH, S_DOFF = 32, 33, 34, 35, 48, 49
S_QS, S_QSTEP, S_QRND, S_MSTEP, S_CS = 50, 51, 52, 53, 54
S_TAB = 88
S_AS, S_TY, S_PRE, S_WO = 68, 69, 70, 71
MFMA = "v_mfma_f32_16x16x32_bf16"
def ar(a, n=1):
    return f"a{a}" if n == 1 else f"a[{a}:{a+n-1}]"

def gen_fused(name, nt=True, stamp=False, nofb=False, noload=False, nost=False, nox=False, now=False, st0=False, touch=False, kvt=False, kvtnt=False, nowo=False, tnt=False, qnt=False, wont=False, trace=False, DBO=64, ones=False, strace=False, xmem=0, xmfma=0, delay=0, tymask=1, stwg=4, roll=False, bulk0=True, wsbase=0, rot=True, rsh=1, dupst=False, allst=False, align=0, roles=False, fakex=False, early=False, qdelay=0, adelay=0, kvpol=None, xf=False, pst=False, kvl2=False, xq=False, pstl=False, kv0=False, qpnl=False, cpf=0, cpflate=False, qps=False, tymode=0, tyinv=False, xswap=False, qnrd=False, qnbar=False, qbar=7, qd0=9, qdstep=6, kvrot=0, kvgs=11, kvt2=0, kvts=64, tper=1, tpol='', tlbw=0, rflip=0, stpol='', defer=False, dpol='', dnp=3, wpol='', qpol='', anbar=False, anrd=False, anva='', ansu=False, cpf2=0, cpfo=0, pro1=0, rotn=4, spread='', dsl='1234', lp7=False, inv=False, wo2=False, wo3=0, wo4=0, wo5=0, wtl=0, wo6='', wo8=0, stpol0=None, wb=0, woff=False, wtch=0, eep=0, qch2=False, qkrev=False, operm=False, x128=False, pro2=False, cpo=0, sea=0, gkv=0, slk=0, slkd=8, pstq=False, klate=0, tdef=0, tym=0):
    a = Asm()
    if spread: early = True
    if wo6: wo5 = 2
    if wo5: wo4 = 2
    if wo3 or wo4: wo2 = True
    NT = " nt" if nt else ""
    if kvpol: NT = " " + kvpol
    if pst: a("s_memrealtime s[74:75]")
    a("s_cmp_ge_u32 s2, 256")
    a("s_cbranch_scc1 L_at_end")
    if cpf:
        a("s_getpc_b64 s[72:73]")
        a.label("L_pc0")
        a(f"s_mov_b32 s74, L_code_end - L_pc0")
        a("s_mov_b32 s75, 0x20000")
        a("v_lshlrev_b32 v105, 6, v0")
        if not cpflate:
          for k in range(cpf // 16):
            a(f"s_mov_b32 s76, {k*16384}")
            a("buffer_load_dword v104, v105, s[72:75], s76 offen")
    a("s_and_b32 s3, s2, 7")
    a("s_lshl_b32 s3, s3, 5")
    a("s_lshr_b32 s36, s2, 6")
    a("s_lshl_b32 s36, s36, 3")
    a("s_or_b32 s3, s3, s36")
    a("s_bfe_u32 s36, s2, 0x30003")
    a("s_or_b32 s2, s3, s36")
    if xswap: a("s_xor_b32 s2, s2, 32"); a("s_nop 0")
    a("s_load_dwordx8 s[36:43], s[0:1], 0")
    a("s_load_dwordx8 s[56:63], s[0:1], 40")
    a("s_load_dwordx2 s[44:45], s[0:1], 96")
    a("s_load_dwordx2 s[84:85], s[0:1], 32")
    a("s_load_dwordx2 s[86:87], s[0:1], 72")
    if cpf2:
        a("s_getpc_b64 s[72:73]")
        a.label("L_pc0")
        a("v_lshlrev_b32 v105, 7, v0")
        for k in range(cpf2):
            a(f"v_add_u32 v104, {cpfo + k*32768}, v105")
            a("v_min_u32 v104, L_code_end - L_pc0 - 4, v104")
            a("v_mov_b32 v107, s73")
            a("v_add_co_u32 v106, vcc, s72, v104")
            a("v_addc_co_u32 v107, vcc, 0, v107, vcc")
            a(f"global_load_dword v108, v[106:107], off")
    a(f"v_and_b32 v{V_LANE}, 63, v0")
    a(f"v_lshrrev_b32 v{V_T0}, 6, v0")
    a("s_nop 0")
    a(f"v_readfirstlane_b32 s{S_WAVE}, v{V_T0}")
    marks = {}
    def mark(n): marks[n] = len(a.lines)
    mark("W0")
    a("s_waitcnt lgkmcnt(0)")
    mark("P2")
    a(f"s_and_b32 s{S_QH}, s{S_WAVE}, 1")
    a(f"s_lshr_b32 s{S_PJ}, s{S_WAVE}, 1")
    mark("K1")
    a("s_cmp_ge_u32 s2, 128")
    for k in range(8):
        a(f"s_cselect_b32 s{36+k}, s{56+k}, s{36+k}")
    a("s_cselect_b32 s84, s86, s84")
    a("s_cselect_b32 s85, s87, s85")
    a(f"s_mov_b32 s86, {4096*640*2}")
    a("s_mov_b32 s87, 0x20000")
    mark("K2")
    a(f"s_and_b32 s{S_A}, s2, 127")
    a(f"s_lshl_b32 s{S_B}, s{S_A}, 20")
    a(f"s_lshl_b32 s{S_C}, s{S_PJ}, 18")
    a(f"s_add_u32 s{S_B}, s{S_B}, s{S_C}")
    a(f"s_add_u32 s38, s38, s{S_B}")
    a("s_addc_u32 s39, s39, 0")
    a(f"s_add_u32 s40, s40, s{S_B}")
    a("s_addc_u32 s41, s41, 0")
    a(f"s_sub_u32 s{S_C}, 0x100000, s{S_C}")
    a(f"s_mov_b32 s{S_K}, s38")
    a(f"s_mov_b32 s{S_K+1}, s39")
    a(f"s_mov_b32 s{S_K+2}, s{S_C}")
    a(f"s_mov_b32 s{S_K+3}, 0x20000")
    a(f"s_cmp_eq_u32 s{S_QH}, 0")
    a(f"s_cselect_b32 s{S_LD}, s38, s40")
    a(f"s_cselect_b32 s{S_LD+1}, s39, s41")
    a(f"s_mov_b32 s{S_LD+2}, {'0' if kv0 else 's'+str(S_C)}")
    a(f"s_mov_b32 s{S_LD+3}, 0x20000")
    if xf:
        a(f"s_add_u32 s36, s44, {4*NQB + 2*4096*640*2}")
        a("s_addc_u32 s37, s45, 0")
        a(f"s_cmp_eq_u32 s{S_QH}, 0")
    mark("K3")
    a(f"s_cselect_b32 s{S_QP}, s42, s36")
    a(f"s_cselect_b32 s{S_QP+1}, s43, s37")
    a(f"s_mov_b32 s{S_A}, {0 if now else 640*4096*2}")
    a(f"s_mov_b32 s{S_B}, {0 if nox else (2*3584*640*2 if xf else 3584*640*2)}")
    a(f"s_cselect_b32 s{S_QP+2}, s{S_A}, s{S_B}")
    a(f"s_mov_b32 s{S_QP+3}, 0x20000")
    mark("T1")
    a(f"s_mov_b32 s{S_A}, {32*8192}")
    a(f"s_mov_b32 s{S_B}, {7168 if (fakex or xf) else 64}")
    a(f"s_cselect_b32 s{S_QSTEP}, s{S_A}, s{S_B}")
    a(f"s_cselect_b32 s{S_QRND}, 512, 0")
    if qch2:
        assert xq and qps and not (xf or fakex or roll or roles or touch or defer or wo2 or wo8 or kvt2 or eep)
        if x128:
            a(f"s_mov_b32 s{S_A}, {64*1280}")
            a(f"s_cselect_b32 s46, 128, s{S_A}")
            a(f"s_mov_b32 s{S_A}, {((6&3)+8*(6>>2))*8192}")
            a(f"s_cselect_b32 s47, s{S_A}, 0x40000000")
            a(f"s_mov_b32 s{S_A}, {((7&3)+8*(7>>2))*8192}")
            a(f"s_cselect_b32 s98, s{S_A}, 0x40000000")
        else:
            a(f"s_cselect_b32 s46, 128, 64")
    a(f"s_mov_b32 s{S_A}, 1056")
    a(f"s_mov_b32 s{S_B}, 1024")
    a(f"s_cselect_b32 s{S_MSTEP}, s{S_A}, s{S_B}")
    for i in range(8):
        a(f"s_mov_b32 s{S_A}, {((i&3)+8*(i>>2))*8192}")
        a(f"s_mov_b32 s{S_B}, {10240*i if x128 else (1024*i if (fakex or xf) else 20480*i) if i < 7 else 0x40000000}")
        a(f"s_cselect_b32 s{S_TAB+i}, s{S_A}, s{S_B}")
    a(f"s_and_b32 s{S_A}, s2, 7")
    a(f"s_lshl_b32 s{S_A}, s{S_A}, 2")
    a(f"s_add_u32 s{S_A}, s{S_A}, s{S_PJ}")
    a(f"s_lshl_b32 s{S_A}, s{S_A}, 8")
    a(f"s_bfe_u32 s{S_B}, s2, {0x50003 if xf else 0x40003}")
    a(f"s_lshl_b32 s{S_B}, s{S_B}, 1")
    a(f"s_add_u32 s{S_B}, s{S_B}, s{S_PJ}")
    a(f"s_mul_i32 s{S_B}, s{S_B}, {112*1280}")
    a(f"s_cmp_eq_u32 s{S_QH}, 0")
    a(f"s_cselect_b32 s55, s{S_A}, s{S_B}")
    mark("K4")
    a(f"s_add_u32 s{S_W}, s44, {wsbase}")
    a(f"s_addc_u32 s{S_W+1}, s45, 0")
    a(f"s_mov_b32 s{S_W+2}, {WS_BYTES}")
    a(f"s_mov_b32 s{S_W+3}, 0x20000")
    a(f"s_lshl_b32 s{S_A}, s2, 2")
    a(f"s_add_u32 s{S_A}, s{S_A}, s{S_PJ}")
    a(f"s_mul_i32 s{S_OOFF}, s{S_A}, {PAIRB}")
    a(f"s_mul_i32 s{S_A}, s{S_QH}, {7*4096}")
    a(f"s_add_u32 s{S_OOFF}, s{S_OOFF}, s{S_A}")
    a(f"s_add_u32 s{S_OOFF}, s{S_OOFF}, {WS_O}")
    a(f"s_mov_b32 s{S_NOFB}, -1")
    a("s_mov_b32 s60, s42"); a("s_mov_b32 s61, s43"); a(f"s_mov_b32 s62, {640*4096*2}"); a("s_mov_b32 s63, 0x20000")
    a(f"s_mov_b32 s{S_T0}, 0")
    a(f"s_mov_b32 s{S_MP}, 0")
    a(f"s_mov_b32 s{S_AS}, 0")
    if defer: a("s_mov_b32 s98, 0x40000000")
    a(f"s_mov_b32 s{S_WO}, {(4 if (wo3 or wo4 or wo8) else 3) if nowo else 0}")
    mark("T3")
    a(f"s_lshr_b32 s26, s2, 3")
    a(f"s_lshr_b32 s{S_A}, s2, {rsh}")
    a(f"s_add_u32 s26, s26, s{S_A}")
    if rotn in (1, 2, 4):
        a(f"s_and_b32 s26, s26, {rotn-1}")
        a(f"s_mul_i32 s26, s26, {20//rotn}")
        if qch2: a("s_and_b32 s26, s26, 30")
    elif rotn == 22:
        a("s_and_b32 s26, s26, 1"); a("s_mul_i32 s26, s26, 4")
    elif rotn == 23:
        a("s_and_b32 s26, s26, 1"); a("s_mul_i32 s26, s26, 6")
    a(f"s_mul_i32 s83, s{S_QSTEP}, 20")
    a(f"s_and_b32 s{S_TY}, s2, {tymask}")
    a(f"s_min_u32 s{S_TY}, s{S_TY}, 1")
    if tyinv: a(f"s_xor_b32 s{S_TY}, s{S_TY}, 1"); a("s_nop 0")
    if tymode == 1:
        a("s_bfe_u32 s3, s2, 0x10005"); a("s_xor_b32 s3, s3, 1"); a(f"s_and_b32 s{S_TY}, s2, s3"); a("s_nop 0")
    if tymode == 2:
        a("s_bfe_u32 s3, s2, 0x10005"); a("s_xor_b32 s3, s3, 1"); a(f"s_and_b32 s{S_TY}, s2, 3"); a(f"s_min_u32 s{S_TY}, s{S_TY}, 1"); a(f"s_and_b32 s{S_TY}, s{S_TY}, s3")
    if tymode == 3:
        a("s_bfe_u32 s3, s2, 0x10005"); a("s_xor_b32 s3, s3, 1"); a(f"s_and_b32 s{S_TY}, s2, 3"); a(f"s_cmp_eq_u32 s{S_TY}, 0"); a(f"s_cselect_b32 s{S_TY}, 1, 0"); a(f"s_or_b32 s{S_TY}, s{S_TY}, s3")
    if tymode == 4:
        a(f"s_and_b32 s{S_TY}, s2, 3"); a(f"s_cmp_eq_u32 s{S_TY}, 0"); a(f"s_cselect_b32 s{S_TY}, 1, 0"); a("s_nop 0")
    if tymode == 5:
        a(f"s_and_b32 s{S_TY}, s2, 7"); a(f"s_lshr_b32 s3, 0x49, s{S_TY}"); a(f"s_and_b32 s{S_TY}, s3, 1"); a("s_nop 0")
    if tymode == 6:
        a(f"s_and_b32 s{S_TY}, s2, 7"); a(f"s_cmp_eq_u32 s{S_TY}, 0"); a(f"s_cselect_b32 s{S_TY}, 1, 0"); a("s_nop 0")
    if tymode == 7:
        a(f"s_and_b32 s{S_TY}, s2, 3"); a(f"s_min_u32 s{S_TY}, s{S_TY}, 1"); a("s_nop 0")
    if tymode == 8:
        a("s_bfe_u32 s3, s2, 0x10005"); a("s_lshl_b32 s3, s3, 3"); a(f"s_and_b32 s{S_TY}, s2, 7"); a(f"s_add_u32 s{S_TY}, s{S_TY}, s3")
        a(f"s_lshr_b32 s3, {tym:#x}, s{S_TY}"); a(f"s_and_b32 s{S_TY}, s3, 1")
    a(f"s_mov_b32 s{S_PRE}, s{S_TY}")
    mark("T3b")
    a(f"s_mov_b32 s{S_THR}, 0x4e800000")
    import struct
    cs = struct.unpack("<I", struct.pack("<f", (128 ** -0.5) * 1.4426950408889634))[0]
    a(f"s_mov_b32 s{S_CS}, {cs:#x}")
    mark("T4")
    a(f"s_lshl_b32 s{S_A}, s{S_QH}, 1")
    a(f"s_add_u32 s{S_A}, s{S_A}, s{S_PJ}")
    a(f"s_mul_i32 s{S_LDB}, s{S_A}, {AREA}")
    mark("T4e")
    if stamp:
        a("s_memtime s[64:65]")
        a("s_memrealtime s[66:67]")
        a("s_load_dwordx2 s[46:47], s[0:1], 88")
        a("s_waitcnt lgkmcnt(0)")
    G, N = V_T0, V_T1
    a(f"v_lshlrev_b32 v{V_LIN}, 4, v{V_LANE}")
    a(f"v_lshrrev_b32 v{G}, 4, v{V_LANE}")
    a(f"v_and_b32 v{N}, 15, v{V_LANE}")
    a(f"v_lshlrev_b32 v{V_T2}, 4, v{N}")
    a(f"v_lshl_add_u32 v{V_DMA}, v{G}, {kvgs}, v{V_T2}")
    mark("Vw")
    if qch2:
        a(f"v_and_b32 v{V_QD}, 7, v{V_LANE}")
        a(f"v_lshlrev_b32 v{V_QD}, 4, v{V_QD}")
        a(f"v_bfe_u32 v{V_T3}, v{V_LANE}, 3, 1")
        a(f"v_lshl_add_u32 v{V_QD}, v{V_T3}, 15, v{V_QD}")
        a(f"v_bfe_u32 v{V_T3}, v{V_LANE}, 4, 1")
        a(f"v_lshl_add_u32 v{V_QD}, v{V_T3}, 17, v{V_QD}")
        a(f"v_bfe_u32 v{V_T3}, v{V_LANE}, 5, 1")
        a(f"v_lshl_add_u32 v{V_QD}, v{V_T3}, 18, v{V_QD}")
    else:
        a(f"v_bfe_u32 v{V_T3}, v{V_LANE}, 4, 1")
        a(f"v_lshl_add_u32 v{V_QD}, v{V_T3}, 15, v{V_T2}")
        a(f"v_bfe_u32 v{V_T3}, v{V_LANE}, 5, 1")
        a(f"v_lshl_add_u32 v{V_QD}, v{V_T3}, 17, v{V_QD}")
    mark("Vd")
    a(f"v_mul_u32_u24 v{V_BA}, 1280, v{N}")
    a(f"v_lshl_add_u32 v{V_BA}, v{G}, 4, v{V_BA}")
    mark("Vx")
    if fakex or xf: a(f"v_mov_b32 v{V_BA}, v{V_LIN}")
    if x128:
        a(f"v_lshrrev_b32 v{V_T3}, 3, v{V_LANE}")
        a(f"v_and_b32 v{V_BA}, 6, v{V_T3}")
        a(f"v_xor_b32 v{V_BA}, v{V_BA}, v{V_LANE}")
        a(f"v_and_b32 v{V_BA}, 7, v{V_BA}")
        a(f"v_lshlrev_b32 v{V_BA}, 4, v{V_BA}")
        a(f"v_mul_u32_u24 v{V_T3}, 1280, v{V_T3}")
        a(f"v_add_u32 v{V_BA}, v{V_BA}, v{V_T3}")
    elif xq:
        a(f"v_lshrrev_b32 v{V_T3}, 4, v{V_LANE}")
        a(f"v_and_b32 v{V_BA}, 1, v{V_T3}")
        a(f"v_lshlrev_b32 v{V_BA}, 1, v{V_BA}")
        a(f"v_lshrrev_b32 v{V_T3}, 1, v{V_T3}")
        a(f"v_mul_u32_u24 v{V_T3}, 3, v{V_T3}")
        a(f"v_xor_b32 v{V_BA}, v{V_BA}, v{V_T3}")
        a(f"v_and_b32 v{V_T3}, 3, v{V_LANE}")
        a(f"v_xor_b32 v{V_BA}, v{V_BA}, v{V_T3}")
        a(f"v_lshlrev_b32 v{V_BA}, 4, v{V_BA}")
        a(f"v_lshrrev_b32 v{V_T3}, 2, v{V_LANE}")
        a(f"v_mul_u32_u24 v{V_T3}, 1280, v{V_T3}")
        a(f"v_add_u32 v{V_BA}, v{V_BA}, v{V_T3}")
    a(f"s_cmp_eq_u32 s{S_QH}, 0")
    a("s_cselect_b64 vcc, -1, 0")
    a("s_nop 1")
    a(f"v_cndmask_b32 v{V_QD}, v{V_BA}, v{V_QD}, vcc")
    mark("Vxe")
    a(f"s_add_u32 s{S_A}, s{S_QH}, 2")
    a(f"s_mul_i32 s{S_A}, s{S_A}, {AREA}")
    if x128:
        a(f"v_and_b32 v{V_BA}, 6, v{N}")
        a(f"v_xor_b32 v{V_BA}, v{V_BA}, v{G}")
        a(f"v_lshlrev_b32 v{V_BA}, 4, v{V_BA}")
        a(f"v_and_b32 v{V_T3}, 7, v{N}")
        a(f"v_lshl_add_u32 v{V_BA}, v{V_T3}, 7, v{V_BA}")
        a(f"v_lshrrev_b32 v{V_T3}, 3, v{N}")
        a(f"v_lshl_add_u32 v{V_BA}, v{V_T3}, 10, v{V_BA}")
        a(f"v_add_u32 v{V_BA}, s{S_A}, v{V_BA}")
    elif xq:
        a(f"v_bfe_u32 v{V_T3}, v{V_LANE}, 2, 2")
        a(f"v_and_b32 v{V_BA}, 1, v{V_T3}")
        a(f"v_lshlrev_b32 v{V_BA}, 1, v{V_BA}")
        a(f"v_lshrrev_b32 v{V_T3}, 1, v{V_T3}")
        a(f"v_mul_u32_u24 v{V_T3}, 3, v{V_T3}")
        a(f"v_xor_b32 v{V_BA}, v{V_BA}, v{V_T3}")
        a(f"v_xor_b32 v{V_BA}, v{V_BA}, v{G}")
        a(f"v_lshlrev_b32 v{V_BA}, 4, v{V_BA}")
        a(f"v_lshl_add_u32 v{V_BA}, v{N}, 6, v{V_BA}")
        a(f"v_add_u32 v{V_BA}, s{S_A}, v{V_BA}")
    else:
        a(f"v_add_u32 v{V_BA}, s{S_A}, v{V_LIN}")
    if operm:
        a(f"v_lshl_add_u32 v{V_XA}, v{G}, 8, v{V_T2}")
    else:
        a(f"v_bfe_u32 v{V_T3}, v{V_LANE}, 4, 1")
        a(f"v_lshl_add_u32 v{V_T2}, v{V_T3}, 9, v{V_T2}")
        a(f"v_bfe_u32 v{V_T3}, v{V_LANE}, 5, 1")
        a(f"v_lshl_add_u32 v{V_XA}, v{V_T3}, 8, v{V_T2}")
    a(f"v_and_b32 v{V_T2}, 7, v{N}")
    a(f"v_lshlrev_b32 v{V_KA}, 10, v{V_T2}")
    a(f"v_and_b32 v{V_T3}, 1, v{N}")
    a(f"v_lshl_add_u32 v{V_KA}, v{V_T3}, 4, v{V_KA}")
    a(f"v_bfe_u32 v{V_T3}, v{N}, 1, 2")
    a(f"v_lshl_add_u32 v{V_KA}, v{V_T3}, 6, v{V_KA}")
    a(f"v_lshrrev_b32 v{V_T3}, 3, v{N}")
    a(f"v_lshl_add_u32 v{V_KA}, v{V_T3}, 8, v{V_KA}")
    a(f"v_bfe_u32 v{V_T3}, v{V_LANE}, 4, 1")
    a(f"v_lshl_add_u32 v{V_KA}, v{V_T3}, 5, v{V_KA}")
    a(f"v_bfe_u32 v{V_T3}, v{V_LANE}, 5, 1")
    a(f"v_lshl_add_u32 v{V_KA}, v{V_T3}, 4, v{V_KA}")
    a(f"s_mul_i32 s{S_A}, s{S_PJ}, {AREA}")
    a(f"v_add_u32 v{V_KA}, s{S_A}, v{V_KA}")
    a(f"v_bfe_u32 v{N}, v{V_LANE}, 2, 2")
    a(f"v_bfe_u32 v{V_T3}, v{V_LANE}, 4, 1")
    a(f"v_lshl_add_u32 v{V_T2}, v{V_T3}, 2, v{N}")
    a(f"v_mul_u32_u24 v{V_T2}, 1056, v{V_T2}")
    a(f"v_bfe_u32 v{V_T3}, v{V_LANE}, 5, 1")
    a(f"v_lshl_add_u32 v{V_T2}, v{V_T3}, {8 if qch2 else 9}, v{V_T2}")
    a(f"v_and_b32 v{V_T3}, 3, v{V_LANE}")
    a(f"v_lshl_add_u32 v{V_T2}, v{V_T3}, 3, v{V_T2}")
    a(f"v_add_u32 v{V_WA}, s{S_A}, v{V_T2}")
    a(f"v_lshl_add_u32 v{N}, v{G}, 2, v{N}")
    a(f"v_and_b32 v{V_T2}, 7, v{N}")
    a(f"v_mul_u32_u24 v{V_T2}, 1056, v{V_T2}")
    a(f"v_lshrrev_b32 v{V_T3}, 3, v{N}")
    a(f"v_lshl_add_u32 v{V_T2}, v{V_T3}, 8, v{V_T2}")
    a(f"v_and_b32 v{V_T3}, 3, v{V_LANE}")
    a(f"v_lshl_add_u32 v{V_T2}, v{V_T3}, 3, v{V_T2}")
    a(f"s_add_u32 s{S_A}, s{S_A}, {2*AREA}")
    a(f"v_add_u32 v{V_VA}, s{S_A}, v{V_T2}")
    for i in range(7):
        a(f"v_mov_b32 v{V_L+2*i}, 0xff800000")
    a(f"v_mov_b32 v{V_T0}, 0x3f803f80")
    for i in range(4): a(f"v_accvgpr_write_b32 a{A_ONE+i}, v{V_T0}")
    a(f"v_and_b32 v{V_T0}, 3, v{V_LANE}")
    a(f"v_lshlrev_b32 v{V_T0}, 2, v{V_T0}")
    a(f"v_add_u32 v{V_T0}, {LDS_FLAG}, v{V_T0}")
    a(f"v_mov_b32 v{V_T1}, 0")
    a(f"ds_write_b32 v{V_T0}, v{V_T1}")
    a(f"s_cmp_eq_u32 s{S_QH}, 0")
    a(f"s_mov_b32 s{S_A}, {kpad(1)-kpad(0)-256}")
    a(f"s_mov_b32 s{S_B}, 800")
    a(f"s_cselect_b32 s96, s{S_A}, s{S_B}")
    a(f"s_mov_b32 s{S_A}, {kpad(2)-kpad(1)-256}")
    a(f"s_cselect_b32 s97, s{S_A}, s{S_B}")

    a(f"v_lshrrev_b32 v{V_T0}, 1, v{V_LANE}")
    a(f"v_lshlrev_b32 v{V_T0}, 13, v{V_T0}")
    a(f"v_and_b32 v{V_T1}, 1, v{V_LANE}")
    a(f"v_lshl_add_u32 v{V_T0}, v{V_T1}, 7, v{V_T0}")
    a(f"v_lshlrev_b32 v{V_T1}, 7, v{V_LANE}")
    a(f"s_bfe_u32 s{S_A}, s2, 0x20003")
    a(f"s_lshl_b32 s{S_A}, s{S_A}, 18")
    a(f"s_and_b32 s{S_B}, s2, 7")
    a(f"s_mul_i32 s{S_B}, s{S_B}, 17920")
    a(f"s_cmp_eq_u32 s{S_QH}, 0")
    a("s_cselect_b64 vcc, -1, 0")
    a(f"s_cselect_b32 s100, s{S_A}, s{S_B}")
    a(f"s_add_u32 s100, s100, s55")
    a(f"s_cmp_eq_u32 s{S_QH}, 0")
    a(f"s_mov_b32 s{S_A}, {4*32*8192}")
    a(f"s_mov_b32 s{S_B}, 8192")
    a(f"s_cselect_b32 s99, s{S_A}, s{S_B}")
    a(f"v_cndmask_b32 v{V_LIN}, v{V_T1}, v{V_T0}, vcc")
    if x128:
        assert qch2 and not kvt2
        a(f"v_xor_b32 v{V_LIN}, 64, v{V_BA}")
    def tf0(u): return (u & ((1 << kvgs) - 1)) | ((u >> kvgs) << (kvgs + 2))
    if kvt2:
        lb = kvgs - int(math.log2(kvts))
        if lb >= 6:
            a(f"v_mul_u32_u24 v{V_LIN}, {kvts}, v{V_LANE}")
        else:
            a(f"v_and_b32 v{V_T0}, {(1 << lb) - 1}, v{V_LANE}")
            a(f"v_mul_u32_u24 v{V_T0}, {kvts}, v{V_T0}")
            a(f"v_lshrrev_b32 v{V_T1}, {lb}, v{V_LANE}")
            a(f"v_lshl_add_u32 v{V_LIN}, v{V_T1}, {kvgs + 2}, v{V_T0}")
    def tch(s_): return bool(kvt2) and s_ < 16 and s_ % tper == 0
    def tvn(s_): return sum(1 for t in range(max(0, s_ - 3), s_) if tch(t))
    def tinc(k): return tf0((k + 1) * 64 * kvts) - tf0(k * 64 * kvts)
    if kvrot == 0 and kvgs != 11: a("s_mov_b32 s100, 0")
    if kvrot == 1:
        a("s_and_b32 s100, s2, 31")
    if kvrot == 2:
        a("s_mul_i32 s100, s2, 11"); a(f"s_lshr_b32 s{S_A}, s2, 5"); a(f"s_mul_i32 s{S_A}, s{S_A}, 7"); a(f"s_add_u32 s100, s100, s{S_A}")
        a(f"s_lshl_b32 s{S_A}, s{S_PJ}, 4"); a(f"s_add_u32 s100, s100, s{S_A}"); a(f"s_and_b32 s76, s100, 3") if gkv in (2, 4) else None; a(f"s_and_b32 s100, s100, {28 if gkv in (1, 2, 4) else 31}")
    if kvrot == 3:
        a("s_lshr_b32 s100, s2, 5"); a("s_lshl_b32 s100, s100, 2")
    if rflip:
        if rflip == 1: a(f"s_bfe_u32 s{S_A}, s2, 0x10005")
        if rflip == 2: a(f"s_bfe_u32 s{S_A}, s2, 0x10006")
        if rflip == 3: a(f"s_bfe_u32 s{S_A}, s2, 0x10007")
        if rflip == 4: a(f"s_bfe_u32 s{S_A}, s2, 0x10003")
        a(f"s_lshl_b32 s101, s{S_A}, 19")
        a(f"s_mul_i32 s{S_B}, s{S_A}, s{S_QRND}")
        a(f"s_add_u32 s55, s55, s{S_B}")
        a(f"s_sub_u32 s{S_B}, 0, s{S_QRND}")
        a(f"s_cmp_lg_u32 s{S_A}, 0")
        a(f"s_cselect_b32 s{S_QRND}, s{S_B}, s{S_QRND}")
        a(f"s_mov_b32 s99, {2*PAIRB}")
        a(f"s_cselect_b32 s99, {-2*PAIRB & 0xffffffff:#x}, s99")
        a(f"s_mul_i32 s{S_B}, s{S_A}, {2*PAIRB}")
        a(f"s_add_u32 s{S_OOFF}, s{S_OOFF}, s{S_B}")
    tstate = {"t": 0}
    def touch_one():
        if not touch: return
        a(f"buffer_load_dword v0, v{V_LIN}, s[{S_QP}:{S_QP+3}], s98 offen{' nt' if tnt else ''}")
        a(f"s_add_u32 s98, s98, s99")
        tstate["t"] += 1
    if xmem or dupst:
        a("s_add_u32 s72, s44, 0x8000000"); a("s_addc_u32 s73, s45, 0"); a("s_mov_b32 s74, 0x18000000"); a("s_mov_b32 s75, 0x20000")
        a("s_lshl_b32 s76, s2, 2"); a(f"s_add_u32 s76, s76, s{S_WAVE}"); a("s_mul_i32 s76, s76, 0x60000")
    dstate = {"i": 0, "kind": None}
    state = {"n": 0}
    def dma_setup(slot, kind):
        if kind == "KV":
            if kvgs != 11:
                ln_ = kvgs - 11
                a(f"s_add_u32 s{S_B}, s{S_DJ}, s100")
                if gkv in (2, 4): a(f"s_xor_b32 s{S_B}, s{S_B}, s76")
                a(f"s_bfe_u32 s{S_A}, s{S_B}, {((5 - ln_) << 16) | ln_:#x}")
                a(f"s_lshl_b32 s{S_A}, s{S_A}, {kvgs + 2}")
                a(f"s_and_b32 s{S_B}, s{S_B}, {(1 << ln_) - 1}")
                a(f"s_lshl_b32 s{S_B}, s{S_B}, 11")
                a(f"s_add_u32 s{S_B}, s{S_A}, s{S_B}")
                a(f"s_lshr_b32 s{S_A}, s{S_DJ}, 5")
                a(f"s_lshl_b32 s{S_A}, s{S_A}, 19")
                if rflip: a(f"s_xor_b32 s{S_A}, s{S_A}, s101")
                a(f"s_add_u32 s{S_DOFF}, s{S_A}, s{S_B}")
            elif kvrot:
                a(f"s_lshr_b32 s{S_A}, s{S_DJ}, 5")
                a(f"s_lshl_b32 s{S_A}, s{S_A}, 19")
                if rflip: a(f"s_xor_b32 s{S_A}, s{S_A}, s101")
                a(f"s_add_u32 s{S_B}, s{S_DJ}, s100")
                a(f"s_and_b32 s{S_B}, s{S_B}, 31")
                a(f"s_lshl_b32 s{S_B}, s{S_B}, 13")
                a(f"s_add_u32 s{S_DOFF}, s{S_A}, s{S_B}")
            else:
                a(f"s_lshr_b32 s{S_A}, s{S_DJ}, 5")
                a(f"s_lshl_b32 s{S_A}, s{S_A}, 18")
                a(f"s_lshl_b32 s{S_B}, s{S_DJ}, 13")
                a(f"s_add_u32 s{S_DOFF}, s{S_A}, s{S_B}")
            if kvl2: a(f"s_and_b32 s{S_DOFF}, s{S_DOFF}, {0x7fff if kvl2 is True else kvl2 - 1}")
            a(f"s_add_u32 m0, s{S_LDB}, {slot*TILE}")
            a(f"s_add_u32 s{S_DJ}, s{S_DJ}, 1")
        elif qch2:
            a(f"s_add_u32 m0, s{S_LDB}, {slot*TILE}")
            if slot & 1 == 0:
                a(f"s_mov_b32 s{S_DOFF}, s{S_QS}")
            else:
                a(f"s_add_u32 s{S_DOFF}, s{S_QS}, s46")
                a(f"s_lshl1_add_u32 s{S_QS}, s{S_QSTEP}, s{S_QS}")
                if rot:
                    a("s_add_u32 s82, s82, 2")
                    a("s_cmp_eq_u32 s82, 20")
                    a(f"s_cselect_b32 s{S_B}, s83, 0")
                    a(f"s_sub_u32 s{S_QS}, s{S_QS}, s{S_B}")
        else:
            a(f"s_add_u32 m0, s{S_LDB}, {slot*TILE}")
            a(f"s_mov_b32 s{S_DOFF}, s{S_QS}")
            a(f"s_add_u32 s{S_QS}, s{S_QS}, s{S_QSTEP}")
            if rot:
                a("s_add_u32 s82, s82, 1")
                a("s_cmp_eq_u32 s82, 20")
                a(f"s_cselect_b32 s{S_B}, s83, 0")
                a(f"s_sub_u32 s{S_QS}, s{S_QS}, s{S_B}")
        dstate["i"] = 0; dstate["kind"] = kind; dstate["odd"] = slot & 1
    def dma_one(pad=False):
        i = dstate["i"]
        if dstate["kind"] == "KV":
            if pad: a("s_nop 0")
            if not noload:
                a(f"buffer_load_dwordx4 v{V_DMA}, s[{S_LD}:{S_LD+3}], s{S_DOFF} offen offset:{256*i}{NT} lds")
            if i < 7: a(f"s_add_u32 m0, m0, s{96+(i&1)}")
        else:
            tab = [47, 98][i - 6] if (x128 and dstate["odd"] and i >= 6) else S_TAB + i
            if sea >= 4 and dstate.get("qe") and not (x128 and dstate["odd"] and i >= 6):
                assert x128
                if not qpnl: a(f"global_load_lds_dwordx4 v{V_S+i}, s[64:65]")
            elif sea >= 2 and dstate.get("qe"):
                if not qpnl: a(f"buffer_load_dwordx4 v{V_P}, s[{S_QP}:{S_QP+3}], s{tab} offen{' nt' if qnt else ''} lds")
            else:
                a(f"s_add_u32 s{S_A}, s{S_DOFF}, s{tab}")
                if not qpnl: a(f"buffer_load_dwordx4 v{V_QD}, s[{S_QP}:{S_QP+3}], s{S_A} offen{' nt' if qnt else ''} lds")
            if i < 7: a(f"s_add_u32 m0, m0, s{S_MSTEP}")
        dstate["i"] = i + 1
    def qs_init(rnd_sgpr, q=3):
        if kvt2:
            a(f"s_lshl_b32 s98, s{S_T}, 19")
            if q == "pre":
                a(f"s_lshl_b32 s{S_A}, s{S_PRE}, {kvgs}"); a(f"s_sub_u32 s98, s98, s{S_A}"); q = 3
            a(f"s_add_u32 s98, s98, {q << kvgs}")
        a(f"s_mul_i32 s{S_QS}, s{rnd_sgpr}, s{S_QRND}")
        if not rflip: a(f"s_mov_b32 s101, s{rnd_sgpr}")
        a(f"s_add_u32 s{S_QS}, s{S_QS}, s55")
        a(f"s_cmp_ge_u32 s{rnd_sgpr}, 2")
        a(f"s_cselect_b32 s{S_A}, 0x40000000, 0")
        a(f"s_add_u32 s{S_QS}, s{S_QS}, s{S_A}")
        if rot:
            a("s_mov_b32 s82, s26")
            a(f"s_mul_i32 s{S_A}, s26, s{S_QSTEP}")
            a(f"s_add_u32 s{S_QS}, s{S_QS}, s{S_A}")

    def touch_init(rnd_sgpr):
        if not touch: return
        a(f"s_mul_i32 s98, s{rnd_sgpr}, s{S_QRND}")
        a(f"s_add_u32 s98, s98, s100")
        a(f"s_cmp_ge_u32 s{rnd_sgpr}, 2")
        a(f"s_cselect_b32 s{S_A}, 0x40000000, 0")
        a(f"s_add_u32 s98, s98, s{S_A}")
        tstate["t"] = 0
    def kread(f, slot):
        if anrd and state.get("inat"): return
        kt, s = f >> 2, f & 3
        a.lds(f"ds_read_b128 {vr(V_KF+4*f,4)}, v{V_KA} offset:{slot*TILE+kt*512+s*64}", "K")
    def vread(l, slot):
        if anrd and state.get("inat"): return
        for v in range(2):
            a.lds(f"ds_read_b64_tr_b16 {vr(V_VF+4*l+2*v,2)}, v{V_VA} offset:{slot*TILE+v*512+l*32}", "V")
    def wread(l, slot):
        for v in range(2):
            a.lds(f"ds_read_b64_tr_b16 {vr(V_VF+4*l+2*v,2)}, v{V_WA} offset:{slot*TILE+v*256+l*32}", "W")
    def wread2(lp, kk, slot):
        for v in range(2):
            a.lds(f"ds_read_b64_tr_b16 {vr(V_VF+8*lp+4*kk+2*v,2)}, v{V_WA} offset:{slot*TILE+kk*512+v*128+lp*32}", "W")
    def bset(st_, kk, qt):
        if st_ == 0: return vr((V_CI if kk == 0 else V_KF) + 4 * qt, 4)
        return ar(A_Q + 28 * kk + 4 * qt, 4)
    def bread2(st_, kk, qt, slot):
        if x128:
            sl = ((slot - kk) + (qt >> 2)) & 3
            a.lds(f"ds_read_b128 {bset(st_, kk, qt)}, v{V_LIN if kk else V_BA} offset:{sl*TILE+(qt&3)*2048}", "B")
            return
        a.lds(f"ds_read_b128 {bset(st_, kk, qt)}, v{V_BA} offset:{slot*TILE+qt*1024}", "B")
    def bbuf(buf, qt): return (V_KF if buf == 0 else V_CI) + 4 * qt
    def bread(buf, qt, slot):
        a.lds(f"ds_read_b128 {vr(bbuf(buf,qt),4)}, v{V_BA} offset:{slot*TILE+qt*1024}", "B")
    def oreg(l, qt):
        return vr(V_OK + 28 * l + 4 * qt, 4) if l < 4 else ar(A_OS + 28 * (l - 4) + 4 * qt, 4)

    def barrier(dyn=False, vn=16, xt=0):
        vn += xt
        if dyn:
            n = len(a.lines)
            a(f"s_cmp_eq_u32 s{S_AS}, 0")
            if inv:
                a(f"s_cbranch_scc0 L_bw1_{n}")
                a(f"s_waitcnt vmcnt({vn}) lgkmcnt(0)")
                a.label(f"L_bw2_{n}")
                if wo2 or wo8 or wtch in (2, 3):
                    state.setdefault("ool", []).extend([f"L_bw1_{n}:", f"    s_sub_u32 s{S_AS}, s{S_AS}, 1", f"    s_bitcmp1_b32 s{S_AS}, 8", f"    s_cbranch_scc1 L_bw3_{n}",
                        f"    s_waitcnt vmcnt({44 + xt}) lgkmcnt(0)", f"    s_branch L_bw2_{n}",
                        f"L_bw3_{n}:", f"    s_bitcmp1_b32 s{S_AS}, 9", f"    s_cbranch_scc1 L_bw4_{n}",
                        f"    s_and_b32 s99, s{S_AS}, 0xff", f"    s_cselect_b32 s{S_AS}, s{S_AS}, 0",
                        f"    s_waitcnt vmcnt({21 + xt}) lgkmcnt(0)", f"    s_branch L_bw2_{n}",
                        f"L_bw4_{n}:", f"    s_and_b32 s99, s{S_AS}, 0xff", f"    s_cselect_b32 s{S_AS}, s{S_AS}, 0",
                        f"    s_waitcnt vmcnt({54 + xt}) lgkmcnt(0)", f"    s_branch L_bw2_{n}"])
                elif eep:
                    assert xt == 0
                    state.setdefault("ool", []).extend([f"L_bw1_{n}:", f"    s_sub_u32 s{S_AS}, s{S_AS}, 1",
                        f"    s_cmp_eq_u32 s{S_AS}, 0x101", f"    s_cbranch_scc1 L_bw3_{n}",
                        f"    s_cmp_eq_u32 s{S_AS}, 0x100", f"    s_cbranch_scc1 L_bw4_{n}",
                        f"    s_cmp_eq_u32 s{S_AS}, 0x200", f"    s_cbranch_scc1 L_bw5_{n}",
                        f"    s_waitcnt vmcnt(44) lgkmcnt(0)", f"    s_branch L_bw2_{n}",
                        f"L_bw3_{n}:", f"    s_waitcnt vmcnt(@NA1@) lgkmcnt(0)", f"    s_branch L_bw2_{n}",
                        f"L_bw4_{n}:", f"    s_mov_b32 s{S_AS}, 0", f"    s_waitcnt vmcnt(@NA2@) lgkmcnt(0)", f"    s_branch L_bw2_{n}",
                        f"L_bw5_{n}:", f"    s_mov_b32 s{S_AS}, 0", f"    s_waitcnt vmcnt(@NB2@) lgkmcnt(0)", f"    s_branch L_bw2_{n}"])
                else:
                    state.setdefault("ool", []).extend([f"L_bw1_{n}:", f"    s_sub_u32 s{S_AS}, s{S_AS}, 1", f"    s_waitcnt vmcnt({28 + vn}) lgkmcnt(0)", f"    s_branch L_bw2_{n}"])
                a.lds_q = []
                a("s_barrier")
                return
            a(f"s_cbranch_scc1 L_bw1_{n}")
            a(f"s_sub_u32 s{S_AS}, s{S_AS}, 1")
            a(f"s_waitcnt vmcnt({44 + xt}) lgkmcnt(0)")
            a(f"s_branch L_bw2_{n}")
            a.label(f"L_bw1_{n}")
            a(f"s_waitcnt vmcnt({vn}) lgkmcnt(0)")
            a.label(f"L_bw2_{n}")
        else:
            a(f"s_waitcnt vmcnt({vn}) lgkmcnt(0)")
        a.lds_q = []
        a("s_barrier")

    def cap(fn):
        n0 = len(a.lines); q0 = list(a.lds_q)
        fn()
        ls = a.lines[n0:]; del a.lines[n0:]; a.lds_q = q0
        return ls
    def is_scalar(ln):
        return ln.strip().startswith("s_")
    class Gaps:
        def __init__(self, n):
            self.n = n; self.S = [[] for _ in range(n)]; self.V = [[] for _ in range(n)]; self.c = [0] * n
        def putS(self, ln, lo, hi=None):
            for g in range(lo, self.n):
                if len(self.S[g]) == 0:
                    self.S[g].append(ln); return g
            self.S[self.n - 1].append(ln); return self.n - 1
        def putV(self, ln, lo, cost=1, cap_=2):
            for g in range(lo, self.n):
                if self.c[g] + cost <= cap_:
                    self.V[g].append(ln); self.c[g] += cost; return g
            self.V[self.n - 1].append(ln); self.c[self.n - 1] += cost; return self.n - 1
        def atV(self, ln, g, cost=1):
            self.V[g].append(ln); self.c[g] += cost
        def atS(self, ln, g):
            self.S[g].append(ln)
    DITEMS = [(qt, T) for qt in range(7) for T in range(4)]
    DS = {}
    if defer:
        ntl = (28 - 8 - 4 * dnp) // 4
        assert 4 * dnp + 8 + 4 * ntl == 28
        k_ = 0
        for i in range(4): DS[("P", i)] = DITEMS[k_:k_ + dnp]; k_ += dnp
        for i in (1, 0, 3, 2): DS[("L", i)] = DITEMS[k_:k_ + 2]; k_ += 2
        for i in range(4): DS[("T", i)] = DITEMS[k_:k_ + ntl]; k_ += ntl
    DLIVE = {1: 0, 0: 1, 3: 1, 2: 2}
    def dcount(code):
        if not defer or code is None: return 0
        kind, i = code
        n = lambda c: len(DS.get(c, []))
        if kind == "P": return sum(n(("P", t)) for t in (i - 2, i - 1) if t >= 0)
        prev = lambda k, t: (k, t) if t >= 0 else None
        if kind == "L":
            if i >= 2: return n(("L", i - 2)) + n(("L", i - 1))
            if i == 1: return min(n(("P", 3)), n(("L", 3))) + n(("L", 0))
            return min(n(("P", 2)) + n(("P", 3)), n(("L", 2)) + n(("L", 3)))
        if kind in ("T", "B"):
            m = lambda t: n((kind, t)) if t >= 0 else n(("L", 4 + t))
            return m(i - 2) + m(i - 1)
    def qp_stage2(sm, first, dma, last, chk, after_store, vn, nok, sidx, code=None):
        buf = sm & 1; nslot = (sm + 1) & 3
        BAR = qbar
        G = Gaps(56)
        su = cap(lambda: dma_setup(sm, dma))
        g = BAR - 1
        g = 0
        for ln in su:
            g = G.putS(ln, g) + 1
        prev = g
        w5 = wo5 == 1 and code == ("T", 0)
        for i in range(8):
            ls = cap(lambda: dma_one(False))
            tg = max(qd0 + (4 if w5 else qdstep) * i, prev)
            pre_ = [l for l in ls if is_scalar(l) and "m0" not in l]
            ld = [l for l in ls if not is_scalar(l)]
            post = [l for l in ls if is_scalar(l) and "m0" in l]
            for l in pre_: tg = G.putS(l, tg)
            for l in ld: G.atV(l, tg)
            prev = tg + 1
            for l in post: prev = G.putS(l, tg + 1) + 1
        dstate["i"] = 8
        if w5:
            assert prev <= 39, prev
            for i in range(5): G.atV(f"    v_accvgpr_read_b32 v{V_S+i}, a{244+i}", i)
            G.atS(f"    s_cmp_eq_u32 s{S_WO}, 0", 39)
            G.atS(f"    s_cselect_b32 s57, s56, 0x40000000", 39)
            for i in range(5):
                G.atS(f"    s_add_u32 m0, s58, {1024*i}", 40 + 3*i)
                G.atV(f"    buffer_load_dwordx4 v{V_S+i}, s[84:87], s57 offen lds", 41 + 3*i)
        if code in DS:
            its = DS[code]; lastq = None
            for n_, (qt_, T_) in enumerate(its):
                tg = qd0 + 3 + n_ * 2 * qdstep
                if qt_ != lastq:
                    if code[0] == "L":
                        G.atS(f"    s_cmp_eq_u32 s{S_CNT}, {DLIVE[code[1]]}", tg - 2)
                        G.atS(f"    s_cselect_b32 s99, s98, 0x40000000", tg - 2)
                        G.atS(f"    s_add_u32 s99, s99, {qt_*4096}", tg - 1)
                    else:
                        G.atS(f"    s_add_u32 s99, s98, {qt_*4096}", tg - 1)
                    lastq = qt_
                G.atV(f"    buffer_store_dwordx4 {ar(A_Q+16*qt_+4*T_,4)}, v{V_XA}, s[{S_W}:{S_W+3}], s99 offen offset:{1024*T_} {dpol}".rstrip(), tg)
        if tch(sidx):
            k_ = sidx // tper
            tg = min(prev + 1, 54)
            G.atV(f"    buffer_load_dword v{V_S+12}, v{V_LIN}, s[{S_LD}:{S_LD+3}], s98 offen {tpol}".rstrip(), tg)
            G.putS(f"    s_add_u32 s98, s98, {tinc(k_)}", tg + 1)
        if qnrd: pass
        elif not last:
            lo = BAR - 1
            for ln in cap(lambda: wread(0, nslot)): lo = G.putV(ln, lo, cap_=1)
            for qt in range(7):
                for ln in cap(lambda: bread(buf ^ 1, qt, nslot)): lo = G.putV(ln, lo, cap_=1)
            for l in range(1, 8):
                lo = max(lo, min(7 * (l + 1) - 1, 55))
                for ln in cap(lambda: wread(l, nslot)): lo = G.putV(ln, lo, cap_=(1 if l < 7 else 2))
        elif not nok:
            lo = BAR - 1
            for f in range(8):
                for ln in cap(lambda: kread(f, nslot)): lo = G.putV(ln, lo, cap_=1)
        a("s_waitcnt lgkmcnt(14)")
        j = 0
        for l in range(8):
            for qt in range(7):
                c = "0" if first else oreg(l, qt)
                if qt == 0 and l > 0 and j < BAR: a(f"s_waitcnt lgkmcnt({14-2*l})")
                a(f"{MFMA} {oreg(l, qt)}, {vr(V_VF+4*l,4)}, {vr(bbuf(buf,qt),4)}, {c}")
                for ln in G.S[j]: a.lines.append(ln)
                if j == BAR - 1:
                    if not qnbar: barrier(after_store, 16, tvn(sidx) + dcount(code) + (5 if (wo5 == 1 and code in (("T", 1), ("T", 2), ("T", 3))) else 0))
                    if chk: flagcheck()
                for ln in G.V[j]: a.lines.append(ln)
                j += 1
    def qp_stage3(sm, first, dma, last, chk, after_store, nok):
        h = sm & 1; cur = (sm >> 1) & 1; nslot = (sm + 1) & 3
        BAR = qbar
        G = Gaps(56)
        nodma = tdef and dma == "KV" and sm >= (2 if tdef >= 3 else 4 - tdef)
        half = tdef == 5 and dma == "KV"
        if half: nodma = False
        su = [] if (nodma or (half and (sm & 1))) else cap(lambda: dma_setup(sm >> 1 if half else sm, dma))
        if half and (sm & 1): dstate["i"] = 4
        g = 0
        for ln in su:
            g = G.putS(ln, g) + 1
            if sea >= 2 and dma != "KV" and f"s{S_DOFF}, s{S_QS}" in ln and not ln.strip().startswith("s_lshl1") and (sea < 4 or (sm & 1)):
                G.atV(f"    v_add_u32 v{V_P}, s{S_DOFF}, v{V_QD}", g)
        if sea >= 4 and dma != "KV":
            g = G.putS(f"    s_add_u32 s64, s{S_QP}, s{S_DOFF}", g) + 1
            assert not (BAR - 1 < g <= BAR), g
            g = G.putS(f"    s_addc_u32 s65, s{S_QP+1}, 0", g) + 1
        prev = g
        dstate["qe"] = True
        for i in range(0 if nodma else 4 if half else 8):
            ls = cap(lambda: dma_one(False))
            tg = max(qd0 + (2 * qdstep if half else qdstep) * i + (3 if half else 0), prev + (1 if sea == 1 else 0))
            pre_ = [l for l in ls if is_scalar(l) and "m0" not in l]
            ld = [l for l in ls if not is_scalar(l)]
            post = [l for l in ls if is_scalar(l) and "m0" in l]
            if sea == 1:
                for l in pre_:
                    t_ = G.putS(l, tg - 1); assert t_ == tg - 1, (t_, tg)
            else:
                for l in pre_: tg = G.putS(l, tg)
            for l in ld: G.atV(l, tg)
            prev = tg + 1
            for l in post: prev = G.putS(l, tg + 1) + 1
        dstate["i"] = 8
        dstate["qe"] = False
        if qnrd and not last: pass
        elif not last:
            lo = BAR - 1
            if h == 1:
                for kk in range(2):
                    for qt in range(7):
                        for ln in cap(lambda: bread2(cur ^ 1, kk, qt, (sm + 1 + kk) & 3)): lo = G.putV(ln, lo, cap_=1)
            for lp in range(4):
                lo_prev = lo
                lo = max(lo, 14 * (lp + 1) - 1)
                if lp < 3:
                    for kk in range(2):
                        for ln in cap(lambda: wread2(lp, kk, nslot)): lo = G.putV(ln, lo, cap_=1)
                else:
                    if sea >= 3:
                        assert lo_prev <= 50, lo_prev
                        G.atS(f"    s_waitcnt lgkmcnt(4)", 52)
                    for kk in range(2):
                        for ln in cap(lambda: wread2(lp, kk, nslot)): G.atV(ln, (54 + kk) if sea >= 3 else 55)
        elif not nok and not klate:
            lo = BAR - 1
            for f in range(8):
                for ln in cap(lambda: kread(f, nslot)): lo = G.putV(ln, lo, cap_=1)
        vn_ = 8 if (h == 1 and not (last and dma == "KV")) else 16
        if klate and last and dma == "KV": vn_ = 63
        if half: vn_ = (16, 4, 63, 63)[sm]
        if sea < 3: a("s_waitcnt lgkmcnt(8)")
        j = 0
        for lp in range(4):
            for qt in range(7):
                for kk in range(2):
                    c = "0" if (first and kk == 0) else oreg(4 * h + lp, qt)
                    a(f"{MFMA} {oreg(4 * h + lp, qt)}, {vr(V_VF+8*lp+4*kk,4)}, {bset(cur, kk, qt)}, {c}")
                    for ln in G.S[j]: a.lines.append(ln)
                    if j == BAR - 1:
                        if not qnbar: barrier(after_store, vn_)
                        if chk: flagcheck()
                    for ln in G.V[j]: a.lines.append(ln)
                    j += 1
    def qp_stage(sm, first=False, dma="QP", last=False, chk=False, after_store=False, kt_=False, vn=16, nok=False, role=None, ntouch=0, sidx=None, code=None):
        buf = sm & 1; nslot = (sm + 1) & 3
        if qch2:
            return qp_stage3(sm, first, dma, last, chk, after_store, nok)
        if qps:
            return qp_stage2(sm, first, dma, last, chk, after_store, vn, nok, sidx, code)
        a("s_waitcnt lgkmcnt(14)")
        fq = []
        def cap(fn):
            n0 = len(a.lines); q0 = len(a.lds_q)
            fn()
            ls = a.lines[n0:]; del a.lines[n0:]; del a.lds_q[q0:]
            return ls
        BAR = 7
        if role != "T":
            for ln in cap(lambda: dma_setup(sm, dma)): fq.append((BAR, ln))
        if dma == "QP" and roll:
            fq.append((BAR, f"    s_lshl2_add_u32 s{S_B}, s{S_QSTEP}, s{S_DOFF}"))
            fq.append((BAR, f"    buffer_load_dword v0, v{V_T0}, s[{S_QP}:{S_QP+3}], s{S_B} offen{' nt' if tnt else ''}"))
        if kvt and kt_:
            fq.append((BAR, f"    buffer_load_dword v0, v{V_T3}, s[{S_LD}:{S_LD+3}], s101 offen{' nt' if kvtnt else ''}"))
            fq.append((BAR, f"    s_add_u32 s101, s101, 8192"))
        if not last:
            for ln in cap(lambda: wread(0, nslot)): fq.append((BAR, ln))
            for qt in range(7):
                for ln in cap(lambda: bread(buf ^ 1, qt, nslot)): fq.append((BAR, ln))
        elif not nok:
            for f in range(8):
                for ln in cap(lambda: kread(f, nslot)): fq.append((BAR, ln))
        for l in range(1, 8):
            if not last:
                for ln in cap(lambda: wread(l, nslot)): fq.append((7 * (l + 1), ln))
            if role == "T":
                if l == 1:
                    for _ in range(ntouch):
                        fq.append((BAR, f"    buffer_load_dword v0, v{V_T0}, s[60:63], s98 offen"))
                        fq.append((BAR, f"    s_add_u32 s98, s98, {32*8192}"))
                        fq.append((BAR, f"    buffer_load_dword v0, v{V_T1}, s[{S_QP}:{S_QP+3}], s99 offen"))
                        fq.append((BAR, f"    s_add_u32 s99, s99, 64"))
                continue
            for ln in cap(lambda: dma_one(True)): fq.append((BAR, ln))
            if role == "X":
                if l == 7:
                    fq.append((BAR, f"    s_add_u32 m0, s{S_LDB}, {AREA+sm*TILE}"))
                    fq.append((BAR, f"    s_add_u32 s{S_DOFF}, s{S_DOFF}, {112*1280}"))
                    for i in range(7):
                        fq.append((BAR, f"    s_add_u32 s{S_A}, s{S_DOFF}, s{S_TAB+i}"))
                        fq.append((BAR, f"    buffer_load_dwordx4 v{V_QD}, s[{S_QP}:{S_QP+3}], s{S_A} offen{' nt' if qnt else ''} lds"))
                        if i < 6: fq.append((BAR, f"    s_add_u32 m0, m0, 1024"))
            elif l == 7:
                for ln in cap(lambda: dma_one(True)): fq.append((BAR, ln))
        j = 0
        for l in range(8):
            for qt in range(7):
                c = "0" if first else oreg(l, qt)
                a(f"{MFMA} {oreg(l, qt)}, {vr(V_VF+4*l,4)}, {vr(bbuf(buf,qt),4)}, {c}")
                j += 1
                if j == BAR:
                    barrier(after_store, vn if (roll or role) else 16)
                    if chk: flagcheck()
                    if trace:
                        a("s_memtime s[78:79]")
                        a("s_waitcnt lgkmcnt(0)")
                        a(f"v_cmp_eq_u32 vcc, s77, v{V_LANE}")
                        a(f"v_mov_b32 v{V_T2}, s78")
                        a("s_nop 1")
                        a(f"v_cndmask_b32 v{V_T3}, v{V_T3}, v{V_T2}, vcc")
                        a("s_add_u32 s77, s77, 1")
                k = 0; idx = 0
                rem_gaps = 56 - j + 1
                quota = 1 if len(fq) <= rem_gaps else 2
                while k < quota and idx < len(fq):
                    if fq[idx][0] <= j and (idx == 0 or "ds_read" in fq[idx][1] or all("ds_read" in x[1] for x in fq[:idx])):
                        a.lines.append(fq[idx][1]); del fq[idx]; k += 1
                    else:
                        idx += 1
        for _, ln in fq: a.lines.append(ln)
        assert role in ("X", "T") or dstate["i"] == 8

    def sm_ops(par, i, first):
        S = V_S + 8 * par; P = V_P + 4 * par; L = V_L + 2 * i
        ops = []
        if first:
            T0, T1 = V_T0, V_T1
            ops += [f"v_max3_f32 v{T0}, v{S}, v{S+1}, v{L}", f"v_max3_f32 v{T1}, v{S+2}, v{S+3}, v{S+4}",
                    f"v_max3_f32 v{T0}, v{S+5}, v{S+6}, v{T0}", f"v_max3_f32 v{T0}, v{S+7}, v{T0}, v{T1}",
                    f"v_mov_b32 v{T1}, v{T0}", "s_nop 1", f"v_permlane16_swap_b32 v{T0}, v{T1}", "s_nop 1", f"v_max_f32 v{T0}, v{T0}, v{T1}",
                    f"v_mov_b32 v{T1}, v{T0}", "s_nop 1", f"v_permlane32_swap_b32 v{T0}, v{T1}", "s_nop 1", f"v_max_f32 v{T0}, v{T0}, v{T1}",
                    f"v_mov_b32 v{L}, 0", f"v_mov_b32 v{L+1}, 0"]
            ops += [f"v_sub_f32 v{S+r}, v{S+r}, v{T0}" for r in range(8)]
            ops += [f"v_sub_f32 v{V_CI+4*i+r}, 0, v{T0}" for r in range(4)]
        e = lambda r: ops.append(f"v_exp_f32 v{S+r}, v{S+r}")
        e(0); e(1)
        for r in range(0, 8, 2):
            if r + 2 < 8: e(r + 2); e(r + 3)
            if not ones:
                ops.append(f"v_add_f32 v{L}, v{L}, v{S+r}")
                ops.append(f"v_add_f32 v{L+1}, v{L+1}, v{S+r+1}")
            ops.append(f"v_cvt_pk_bf16_f32 v{P+r//2}, v{S+r}, v{S+r+1}")
        return ops

    def qk_items(qt, par, czero, kr):
        it = []
        for f in ([0, 1, 2, 3, 7, 6, 5, 4] if qkrev else range(8)):
            kt, s = f >> 2, f & 3
            D = vr(V_S + 8 * par + 4 * kt, 4)
            c = ("0" if czero else vr(V_CI + 4 * qt, 4)) if f in ((0, 7) if qkrev else (0, 4)) else D
            it.append(("K" if f == 0 else None, f"{MFMA} {D}, {vr(V_KF+4*f,4)}, {ar(A_Q+16*qt+4*s,4)}, {c}",
                       (lambda f=f: kread(f, kr)) if kr is not None else None))
        return it
    def pv_items(qt, par, czero, vrd):
        it = []
        for l in range(8):
            c = "0" if czero else oreg(l, qt)
            it.append(("V" if l == 0 else None, f"{MFMA} {oreg(l, qt)}, {vr(V_VF+4*l,4)}, {vr(V_P+4*par,4)}, {c}",
                       (lambda l=l: vread(l, vrd)) if vrd is not None else None))
        for _ in range(xmfma):
            D = ar(A_LS + 4 * qt, 4)
            it.append((None, f"{MFMA} {D}, {vr(V_VF,4)}, {vr(V_P+4*par,4)}, {D}", None))
        if ones:
            D = ar(A_LS + 4 * qt, 4)
            it.append((None, f"{MFMA} {D}, {ar(A_ONE,4)}, {vr(V_P+4*par,4)}, {'0' if czero else D}", None))
        return it

    def capture(fn):
        n0 = len(a.lines)
        fn()
        ls = a.lines[n0:]; del a.lines[n0:]
        return ls
    def emit(items, va, fill=None, nfill=0):
        cost = lambda op: 2 if "v_exp" in op else 1
        tot = sum(cost(o) for o in va); acc = 0; k = 0; ng = len(items)
        if slk and state.get("inat") and all(m for _, m, _ in items):
            n0 = len(a.lines); q0 = list(a.lds_q)
            base = [0] * ng
            for j, (need, m, post) in enumerate(items):
                n1 = len(a.lines)
                if need: a.lds_wait({need})
                if j > 0: base[j - 1] += 4 * (len(a.lines) - n1)
                n1 = len(a.lines)
                if post: post()
                base[j] += 4 * (len(a.lines) - n1)
            del a.lines[n0:]; a.lds_q[:] = q0
            fl = [fill[i] for i in range(min(nfill, len(fill) if fill else 0))]
            vc = [8 if "v_exp" in o else 4 for o in va]
            isd = [("load_lds" in l or " lds" in l) for l in fl]
            fc = [(slkd if d else 4 * (l.count("\n") + 1)) for l, d in zip(fl, isd)]
            ism0 = [("m0," in l.split("\n")[-1].split()[1]) for l in fl]
            import functools
            nv, nfl = len(va), len(fl)
            @functools.lru_cache(None)
            def best(j, k_, f_):
                if j == ng: return (0.0, None) if (k_ == nv and f_ == nfl) else (1e9, None)
                r = (1e9, None)
                cf = 0
                for df in range(0, min(3, nfl - f_) + 1):
                    if df:
                        x = f_ + df - 1
                        cf += fc[x]
                        if isd[x] and df > 1 and ism0[x - 1]: break
                    pen = sum(0.02 * abs(j - (x + 0.5) * ng / nfl) for x in range(f_, f_ + df) if isd[x])
                    cv = 0
                    for dk in range(0, min(4, nv - k_) + 1):
                        if dk: cv += vc[k_ + dk - 1]
                        done = sum(vc[:k_ + dk]); ideal = sum(vc) * (j + 1) / ng
                        pv = 0.002 * abs(done - ideal)
                        c = max(0, base[j] + cf + cv - 8) + pen + pv + best(j + 1, k_ + dk, f_ + df)[0]
                        if c < r[0]: r = (c, (df, dk))
                return r
            k_ = f_ = 0
            for j, (need, m, post) in enumerate(items):
                df, dk = best(j, k_, f_)[1]
                if need: a.lds_wait({need})
                a(m)
                if post: post()
                for _ in range(df): a.lines.append(fill.pop(0))
                for o in va[k_:k_ + dk]: a(o)
                k_ += dk; f_ += df
            assert k_ == nv and f_ == nfl
            return
        pos = [int((i + 0.5) * ng / max(nfill, 1)) for i in range(nfill)]
        for j, (need, m, post) in enumerate(items):
            if m:
                if need: a.lds_wait({need})
                a(m)
            if post: post()
            for _ in range(pos.count(j)):
                if fill: a.lines.append(fill.pop(0))
            while k < len(va) and acc + cost(va[k]) <= tot * (j + 1) / ng + 0.01:
                a(va[k]); acc += cost(va[k]); k += 1
        assert k == len(va)

    def dma_lines(slot, kind, pad=False):
        def f():
            dma_setup(slot, kind)
            for _ in range(8): dma_one(pad)
            if xmem and kind == "KV":
                a(f"s_mul_i32 s{S_A}, s{S_WAVE}, 7168")
                a(f"s_add_u32 m0, s{S_A}, {4*AREA+5120}")
                a(f"s_add_u32 s{S_A}, s{S_DOFF}, s76")
                for i in range(xmem):
                    a(f"buffer_load_dwordx4 v{V_DMA}, s[72:75], s{S_A} offen offset:{256*i} nt lds")
        return capture(f)
    def gkv_lines(slot):
        assert kvgs == 14 and kvrot == 2 and not (noload or rflip or spread or xmem)
        L = []
        if gkv in (5, 6):
            src = "s64"
            if kvl2:
                L.append(f"    s_and_b32 s66, s64, {0x7fff if kvl2 is True else kvl2 - 1}"); src = "s66"
            if gkv == 6: L.append(f"    s_add_u32 s66, s{S_LD}, {src}\n    s_addc_u32 s67, s{S_LD+1}, 0")
            L.append(f"    s_add_u32 m0, s{S_LDB}, {slot*TILE}")
            upd = [f"    s_or_b32 s64, s64, 0xc000", f"    s_add_u32 s64, s64, 0x800", f"    s_and_b32 s64, s64, 0xfffb3fff"]
            for i in range(8):
                if gkv == 6: L.append(f"    global_load_lds_dwordx4 v{V_DMA}, s[66:67] offset:{256*i}{NT}")
                else: L.append(f"    buffer_load_dwordx4 v{V_DMA}, s[{S_LD}:{S_LD+3}], {src} offen offset:{256*i}{NT} lds")
                if i < 7: L.append(f"    s_add_u32 m0, m0, s{96+(i&1)}")
                if gkv == 6 and i in (1, 3, 5): L.append(upd.pop(0))
            return L + upd
        if gkv == 4:
            src = "s64"
            if slot:
                L.append(f"    s_xor_b32 s66, s64, {slot << 11}"); src = "s66"
            if kvl2:
                L.append(f"    s_and_b32 s66, {src}, {0x7fff if kvl2 is True else kvl2 - 1}"); src = "s66"
            L.append(f"    s_add_u32 m0, s{S_LDB}, {slot*TILE}")
            for i in range(8):
                L.append(f"    buffer_load_dwordx4 v{V_DMA}, s[{S_LD}:{S_LD+3}], {src} offen offset:{256*i}{NT} lds")
                if i < 7: L.append(f"    s_add_u32 m0, m0, s{96+(i&1)}")
            if slot == 3:
                L += [f"    s_or_b32 s64, s64, 0xc000", f"    s_add_u32 s64, s64, 0x2000", f"    s_and_b32 s64, s64, 0xfffb3fff"]
            return L
        if gkv == 3:
            ls = dma_lines(slot, "KV")
            for ln in ls:
                if "buffer_load" in ln:
                    off = ln.split("offset:")[1].split()[0]
                    L.append(f"    global_load_lds_dwordx4 v{V_DMA}, s[66:67] offset:{off}{NT}")
                else:
                    L.append(ln)
                    if f"s_add_u32 s{S_DOFF}, s{S_A}, s{S_B}" in ln or (kvl2 and f"s_and_b32 s{S_DOFF}" in ln):
                        L.append(f"    s_add_u32 s66, s{S_LD}, s{S_DOFF}\n    s_addc_u32 s67, s{S_LD+1}, 0")
            return L
        if gkv == 2:
            src = "s64"
            if slot:
                L.append(f"    s_xor_b32 s{S_A}, s64, {slot << 11}"); src = f"s{S_A}"
            if kvl2:
                L.append(f"    s_and_b32 s{S_A}, {src}, {0x7fff if kvl2 is True else kvl2 - 1}"); src = f"s{S_A}"
            L.append(f"    s_add_u32 s66, s{S_LD}, {src}\n    s_addc_u32 s67, s{S_LD+1}, 0")
            L.append(f"    s_add_u32 m0, s{S_LDB}, {slot*TILE}")
            for i in range(8):
                L.append(f"    global_load_lds_dwordx4 v{V_DMA}, s[66:67] offset:{256*i}{NT}")
                if i < 7: L.append(f"    s_add_u32 m0, m0, s{96+(i&1)}")
            if slot == 3:
                L += [f"    s_or_b32 s64, s64, 0xc000", f"    s_add_u32 s64, s64, 0x2000", f"    s_and_b32 s64, s64, 0xfffb3fff"]
            return L
        if slot == 0:
            if kvl2:
                L.append(f"    s_and_b32 s{S_A}, s64, {0x7fff if kvl2 is True else kvl2 - 1}")
                L.append(f"    s_add_u32 s66, s{S_LD}, s{S_A}\n    s_addc_u32 s67, s{S_LD+1}, 0")
            else:
                L.append(f"    s_add_u32 s66, s{S_LD}, s64\n    s_addc_u32 s67, s{S_LD+1}, 0")
        if slot == 2:
            L.append(f"    s_add_u32 s66, s66, 4096\n    s_addc_u32 s67, s67, 0")
        L.append(f"    s_add_u32 m0, s{S_LDB}, {slot*TILE - 2048*(slot&1)}")
        for i in range(8):
            L.append(f"    global_load_lds_dwordx4 v{V_DMA}, s[66:67] offset:{2048*(slot&1) + 256*i}{NT}")
            if i < 7: L.append(f"    s_add_u32 m0, m0, s{96+(i&1)}")
        if slot == 3:
            L += [f"    s_or_b32 s64, s64, 0xc000", f"    s_add_u32 s64, s64, 0x2000", f"    s_and_b32 s64, s64, 0xfffb3fff"]
        return L
    def split_fill(fill, quota):
        out = []; idx = 0
        for q in quota:
            ch = []; n = 0
            while idx < len(fill) and n < q:
                ln = fill[idx]; ch.append(ln); idx += 1
                if "buffer_load" in ln:
                    n += 1
                    if idx < len(fill) and "m0, m0" in fill[idx]: ch.append(fill[idx]); idx += 1
            out.append(ch)
        out[-1] += fill[idx:]
        return out
    def ep_red(j):
        L = V_L + 2 * j; t = V_CI + 4 * j + 1; r = V_CI + 4 * j
        return [f"v_add_f32 v{L}, v{L}, v{L+1}", f"v_mov_b32 v{t}, v{L}", "s_nop 1", f"v_permlane16_swap_b32 v{L}, v{t}", "s_nop 1", f"v_add_f32 v{L}, v{L}, v{t}",
                f"v_mov_b32 v{t}, v{L}", "s_nop 1", f"v_permlane32_swap_b32 v{L}, v{t}", "s_nop 1", f"v_add_f32 v{L}, v{L}, v{t}", f"v_rcp_f32 v{r}, v{L}"]
    def ep_tile(j, pk_):
        r = V_CI + 4 * j
        q = lambda l: V_OK + 28 * l + 4 * j
        ops = [f"s_add_u32 s98, s{S_D}, {4096*j}"]
        for T in range(4):
            if T < 2: x, y = q(2 * T), q(2 * T + 1)
            else:
                x, y = (q(1), q(3)) if T == 2 else (q(0), q(3))
                for e, dst in ((0, x), (1, y)):
                    for k in range(4): ops.append(f"v_accvgpr_read_b32 v{dst+k}, a{A_OS+28*(2*(T-2)+e)+4*j+k}")
            for dst in (x, y):
                if pk_:
                    for h in range(2): ops.append(f"v_pk_mul_f32 {vr(dst+2*h,2)}, {vr(dst+2*h,2)}, {vr(r,2)} op_sel_hi:[1,0]")
                else:
                    for k in range(4): ops.append(f"v_mul_f32 v{dst+k}, v{dst+k}, v{r}")
            ops.append(f"v_cvt_pk_bf16_f32 v{x}, v{x}, v{x+1}")
            ops.append(f"v_cvt_pk_bf16_f32 v{x+1}, v{x+2}, v{x+3}")
            ops.append(f"v_cvt_pk_bf16_f32 v{x+2}, v{y}, v{y+1}")
            ops.append(f"v_cvt_pk_bf16_f32 v{x+3}, v{y+2}, v{y+3}")
            ops.append("s_nop 1")
            ops.append(f"v_permlane16_swap_b32 v{x}, v{x+2}")
            ops.append(f"v_permlane16_swap_b32 v{x+1}, v{x+3}")
            if not nost: ops.append(f"buffer_store_dwordx4 {vr(x,4)}, v{V_XA}, s[{S_W}:{S_W+3}], s98 offen offset:{1024*T} {stpol}".rstrip())
        return ops
    def ep_merge(sm, ep):
        sm = list(sm); out = []
        nn = sum(1 for o in ep if o == "s_nop 1")
        rest = len(sm) - 2 * nn
        body = [o for o in ep]
        n_other = len(body) - nn
        per = rest / max(n_other, 1) if rest > 0 else 0
        acc = 0.0
        for o in body:
            if o == "s_nop 1":
                if len(sm) >= 2: out.append(sm.pop(0)); out.append(sm.pop(0))
                else: out.append(o)
                continue
            out.append(o)
            acc += per
            while acc >= 1 and sm:
                out.append(sm.pop(0)); acc -= 1
        return out + sm
    def step(jm, first=False, last=False, dma="KV", nt_=0, tr_=False, dyn=False):
        fill = [] if ((first and tdef < 3) or early) else (gkv_lines((jm + 3) & 3) if (gkv and state.get("inat")) else dma_lines((jm + 3) & 3, dma))
        nf = (len(fill) + len(dsl) - 1) // len(dsl)
        chunks = state.get("carry") or [[] for _ in range(5)]
        state["carry"] = None
        for i in range(7):
            if strace and tr_:
                pr = [36, 38, 40, 42, 56, 58, 60, 62]
                a(f"s_memtime s[{pr[i]}:{pr[i]+1}]")
            if i in (1, 2, 3)[:nt_]: touch_one()
            n = state["n"]; par = n & 1
            items = []
            nfill = nf if (str(i) in dsl and i <= 4) else 0
            if spread and i <= 4:
                fill = list(chunks[i]); nfill = len(fill)
            if eep and last and dma == "KV":
                if i == 0: qstash_off()
                for s_ in range(4):
                    a(f"buffer_load_dwordx4 {ar(A_Q+16*i+4*s_,4)}, v{V_T2}, s[{S_W}:{S_W+3}], s{S_C} offen offset:{1024*s_}")
                if i < 6: a(f"s_add_u32 s{S_C}, s{S_C}, 4096")
            if i == 5:
                assert not fill
                if eep and last:
                    a(f"s_waitcnt vmcnt(@LB{'A' if dma == 'QP' else 'B'}@) lgkmcnt(0)")
                    a.lds_q = []
                    a("s_barrier")
                elif not (anbar and state.get("inat")): barrier(dyn, 8 if (qch2 and last and dma == "QP") else 16)
                if first: flagcheck()
                if (last or early) and not (tdef >= 3 and dma == "KV"):
                    fill = dma_lines(jm, dma, True if last else False); nf = (len(fill) + 1) // 2
                    if spread and not last:
                        ch = split_fill(fill, [int(c) for c in spread])
                        assert len(ch) == 7
                        nxt = ch; fill = list(ch[0]); state["carry"] = ch[2:]
            if (last or early) and i >= 5: nfill = nf
            if spread and not last and i == 5: nfill = len(fill)
            if spread and not last and i == 6: fill = list(nxt[1]); nfill = len(fill)
            if i < 6:
                items += qk_items(i + 1, par ^ 1, first, ((jm + 1) & 3) if (i == 5 and (not last or dma == "KV")) else None)
            elif not last:
                items += qk_items(0, par ^ 1, False, None)
            else:
                if dma == "KV" and not eep: qreload()
                a("s_nop 1")
            if i > 0:
                items += pv_items(i - 1, par ^ 1, first, None)
            elif not first:
                items += pv_items(6, par ^ 1, False, jm)
            else:
                items += [(None, None, (lambda l=l: vread(l, jm))) for l in range(8)]
            ops_ = sm_ops(par, i, first)
            if state.get("inat") and anva:
                ops_ = [o for o in ops_ if not any(o.startswith(x) for x in anva.split(","))]
            if eep and last and i >= 2:
                ops_ = ep_merge(ops_, ep_red(i - 2) + ep_tile(i - 2, eep == 2))
            emit(items, ops_, fill, nfill)
            state["n"] = n + 1
        assert not fill

    def qstash_off():
        a(f"s_lshl_b32 s{S_C}, s2, 2")
        a(f"s_add_u32 s{S_C}, s{S_C}, s{S_WAVE}")
        a(f"s_mul_i32 s{S_C}, s{S_C}, 28672")
        a(f"v_lshlrev_b32 v{V_T2}, 4, v{V_LANE}")
    def qreload():
        qstash_off()
        for i in range(7):
            for s_ in range(4):
                a(f"buffer_load_dwordx4 {ar(A_Q+16*i+4*s_,4)}, v{V_T2}, s[{S_W}:{S_W+3}], s{S_C} offen offset:{1024*s_}")
            if i < 6: a(f"s_add_u32 s{S_C}, s{S_C}, 4096")

    def flagcheck():
        lab = f"L_at_nofb_{len(a.lines)}"
        a(f"s_cmp_le_u32 s{S_T}, s{S_T0}")
        a(f"s_cbranch_scc1 {lab}")
        a(f"s_sub_u32 s{S_A}, s{S_T}, 1")
        a(f"s_cmp_eq_u32 s{S_A}, s{S_NOFB}")
        a(f"s_cbranch_scc1 {lab}")
        a(f"s_lshl_b32 s{S_B}, s{S_A}, 2")
        a(f"s_add_u32 s{S_B}, s{S_B}, {LDS_FLAG}")
        a(f"v_mov_b32 v{V_T2}, s{S_B}")
        a(f"ds_read_b32 v{V_T2}, v{V_T2}")
        a("s_waitcnt lgkmcnt(0)")
        a(f"v_readfirstlane_b32 s{S_B}, v{V_T2}")
        a("s_nop 3")
        a(f"s_cmp_lg_u32 s{S_B}, 0")
        a(f"s_cbranch_scc1 L_at_fallback")
        a.label(lab)

    def wo_issue_a(ps):
        a(f"s_and_b32 s{S_B}, s2, 127")
        a(f"s_mul_i32 s{S_B}, s{S_B}, {32*1280}")
        a(f"s_mul_i32 s{S_D}, s{S_WAVE}, 320")
        a(f"s_add_u32 s{S_B}, s{S_B}, s{S_D}")
        a(f"s_add_u32 s{S_B}, s{S_B}, {160*ps}")
        a(f"s_mul_i32 s{S_D}, s{S_WAVE}, 7168")
        a(f"s_add_u32 s{S_D}, s{S_D}, {4*AREA}")
        a(f"s_mov_b32 s{S_A}, 6554")
        for i in range(5):
            a(f"v_add_u32 v{V_T0}, {64*i}, v{V_LANE}")
            a(f"v_mul_u32_u24 v{V_T1}, s{S_A}, v{V_T0}")
            a(f"v_lshrrev_b32 v{V_T1}, 16, v{V_T1}")
            a(f"v_mul_u32_u24 v{V_T2}, 10, v{V_T1}")
            a(f"v_sub_u32 v{V_T2}, v{V_T0}, v{V_T2}")
            a(f"v_mul_u32_u24 v{V_T1}, 1280, v{V_T1}")
            a(f"s_add_u32 m0, s{S_D}, {1024*i}")
            a(f"v_lshl_add_u32 v{V_T3}, v{V_T2}, 4, v{V_T1}")
            a(f"buffer_load_dwordx4 v{V_T3}, s[84:87], s{S_B} offen lds")
    def wo_read_a():
        a(f"v_lshrrev_b32 v{V_T0}, 4, v{V_LANE}")
        a(f"v_bfe_u32 v{V_T1}, v{V_LANE}, 2, 2")
        a(f"v_lshl_add_u32 v{V_T1}, v{V_T0}, 3, v{V_T1}")
        a(f"v_mul_u32_u24 v{V_T1}, 160, v{V_T1}")
        a(f"v_and_b32 v{V_T2}, 3, v{V_LANE}")
        a(f"v_lshl_add_u32 v{V_T1}, v{V_T2}, 3, v{V_T1}")
        a(f"s_mul_i32 s{S_D}, s{S_WAVE}, 7168")
        a(f"s_add_u32 s{S_D}, s{S_D}, {4*AREA}")
        a(f"v_add_u32 v{V_T1}, s{S_D}, v{V_T1}")
        R = A_LS
        for t in range(5):
            for v in range(2):
                a(f"ds_read_b64_tr_b16 {ar(R+4*t+2*v,2)}, v{V_T1} offset:{v*640+t*32}")
    def wo_store_a(ps):
        R = A_LS
        a(f"v_lshlrev_b32 v{V_T2}, 4, v{V_LANE}")
        a(f"s_mul_i32 s{S_A}, s2, {40*1024}")
        a(f"s_mul_i32 s{S_B}, s{S_WAVE}, {10*1024}")
        a(f"s_add_u32 s{S_A}, s{S_A}, s{S_B}")
        a(f"s_add_u32 s{S_A}, s{S_A}, {WS_W+5120*ps}")
        a("s_waitcnt lgkmcnt(0)")
        for f in range(5):
            if f == 4: a(f"s_add_u32 s{S_A}, s{S_A}, 4096")
            a(f"buffer_store_dwordx4 {ar(R+4*f,4)}, v{V_T2}, s[{S_W}:{S_W+3}], s{S_A} offen offset:{1024*(f&3)} {wpol}".rstrip())
    def wo_finish_a(ps):
        wo_read_a(); wo_store_a(ps)
    def wo_issue(ps):
        D = V_S
        a(f"s_mov_b32 s{S_A}, 6554")
        for i in range(5):
            a(f"v_add_u32 v{V_T0}, {64*i}, v{V_LANE}")
            a(f"v_mul_u32_u24 v{V_T1}, s{S_A}, v{V_T0}")
            a(f"v_lshrrev_b32 v{V_T1}, 16, v{V_T1}")
            a(f"v_mul_u32_u24 v{V_T2}, 10, v{V_T1}")
            a(f"v_sub_u32 v{V_T2}, v{V_T0}, v{V_T2}")
            a(f"v_mul_u32_u24 v{V_T1}, 1280, v{V_T1}")
            a(f"v_lshl_add_u32 v{D+i}, v{V_T2}, 4, v{V_T1}")
        a(f"s_and_b32 s{S_A}, s2, 127")
        a(f"s_mul_i32 s{S_A}, s{S_A}, {32*1280}")
        a(f"s_mul_i32 s{S_B}, s{S_WAVE}, 320")
        a(f"s_add_u32 s{S_A}, s{S_A}, s{S_B}")
        a(f"s_add_u32 s{S_A}, s{S_A}, {160*ps}")
        a(f"s_mul_i32 s{S_D}, s{S_WAVE}, 7168")
        a(f"s_add_u32 s{S_D}, s{S_D}, {4*AREA}")
        for i in range(5):
            a(f"s_add_u32 m0, s{S_D}, {1024*i}")
            a("s_nop 0")
            a(f"buffer_load_dwordx4 v{D+i}, s[84:87], s{S_A} offen{' nt' if wont else ''} lds")
    def wo_finish(ps):
        if wo5:
            a(f"v_accvgpr_read_b32 v{V_T1}, a249")
        else:
            a(f"v_lshrrev_b32 v{V_T0}, 4, v{V_LANE}")
            a(f"v_bfe_u32 v{V_T1}, v{V_LANE}, 2, 2")
            a(f"v_lshl_add_u32 v{V_T1}, v{V_T0}, 3, v{V_T1}")
            a(f"v_mul_u32_u24 v{V_T1}, 160, v{V_T1}")
            a(f"v_and_b32 v{V_T2}, 3, v{V_LANE}")
            a(f"v_lshl_add_u32 v{V_T1}, v{V_T2}, 3, v{V_T1}")
            a(f"s_mul_i32 s{S_D}, s{S_WAVE}, 7168")
            a(f"s_add_u32 s{S_D}, s{S_D}, {4*AREA}")
            a(f"v_add_u32 v{V_T1}, s{S_D}, v{V_T1}")
        a(f"v_lshlrev_b32 v{V_T2}, 4, v{V_LANE}")
        a(f"s_mul_i32 s{S_A}, s2, {40*1024}")
        a(f"s_mul_i32 s{S_B}, s{S_WAVE}, {10*1024}")
        a(f"s_add_u32 s{S_A}, s{S_A}, s{S_B}")
        a(f"s_add_u32 s{S_A}, s{S_A}, {WS_W+5120*ps}")
        R = V_VF
        for t in range(5):
            for v in range(2):
                a(f"ds_read_b64_tr_b16 {vr(R+4*t+2*v,2)}, v{V_T1} offset:{v*640+t*32}")
        a("s_waitcnt lgkmcnt(0)")
        for f in range(5):
            if f == 4: a(f"s_add_u32 s{S_A}, s{S_A}, 4096")
            a(f"buffer_store_dwordx4 {vr(R+4*f,4)}, v{V_T2}, s[{S_W}:{S_W+3}], s{S_A} offen offset:{1024*(f&3)} {wpol}".rstrip())
        a("s_nop 1")

    def rt_setup():
        a(f"s_bfe_u32 s{S_A}, s2, 0x20003")
        a(f"s_lshl_b32 s{S_A}, s{S_A}, 3")
        a(f"v_lshrrev_b32 v{V_T0}, 3, v{V_LANE}")
        a(f"v_add_u32 v{V_T0}, s{S_A}, v{V_T0}")
        a(f"v_lshlrev_b32 v{V_T0}, 13, v{V_T0}")
        a(f"v_and_b32 v{V_T2}, 7, v{V_LANE}")
        a(f"v_lshl_add_u32 v{V_T0}, v{V_T2}, 5, v{V_T0}")
        a(f"v_bfe_u32 v{V_T1}, v{V_LANE}, 1, 4")
        a(f"v_min_u32 v{V_T1}, 13, v{V_T1}")
        a(f"s_and_b32 s{S_A}, s2, 7")
        a(f"s_mul_i32 s{S_A}, s{S_A}, 14")
        a(f"v_add_u32 v{V_T1}, s{S_A}, v{V_T1}")
        a(f"v_mul_u32_u24 v{V_T1}, 1280, v{V_T1}")
        a(f"v_and_b32 v{V_T2}, 1, v{V_LANE}")
        a(f"v_lshl_add_u32 v{V_T1}, v{V_T2}, 5, v{V_T1}")
        a(f"s_cmp_eq_u32 s{S_QH}, 0")
        a("s_cselect_b64 vcc, -1, 0")
        a("s_nop 1")
        a(f"v_cndmask_b32 v{V_T0}, v{V_T1}, v{V_T0}, vcc")
    def dly(us, tag):
        a("s_memrealtime s[78:79]")
        a("s_waitcnt lgkmcnt(0)")
        a(f"s_add_u32 s77, s78, {us*100}")
        a.label(f"L_dl{tag}")
        a("s_sleep 4")
        a("s_memrealtime s[78:79]")
        a("s_waitcnt lgkmcnt(0)")
        a("s_sub_u32 s79, s78, s77")
        a("s_cmp_lt_i32 s79, 0")
        a(f"s_cbranch_scc1 L_dl{tag}")
    def st(k):
        if pst:
            a("s_memrealtime s[78:79]")
            a("s_memtime s[80:81]")
            a("s_waitcnt lgkmcnt(0)")
            a("s_mov_b32 m0, s77"); a("s_nop 0"); a("v_writelane_b32 v0, s78, m0")
            a("s_add_u32 m0, s77, 30"); a("s_nop 0"); a("v_writelane_b32 v0, s80, m0")
            a("s_add_u32 s77, s77, 1")
        if stamp:
            if st0:
                n = len(a.lines)
                a(f"s_cmp_ge_u32 s{S_T}, {1 if k < 3 else 2}")
                a(f"s_cbranch_scc1 L_st_{n}")
            a(f"s_memtime s[{72+2*k}:{73+2*k}]")
            if st0: a.label(f"L_st_{n}")
    mark("ST0")
    if pst:
        a("s_memrealtime s[78:79]")
        a("s_memtime s[80:81]")
        a("s_waitcnt lgkmcnt(0)")
        a("v_mov_b32 v0, 0")
        a("v_writelane_b32 v0, s78, 0")
        a("v_writelane_b32 v0, s80, 30")
        a("v_writelane_b32 v0, s74, 61")
        a("s_mov_b32 s77, 1")
    if delay:
        a("s_bitcmp1_b32 s2, 0")
        a("s_cbranch_scc0 L_nodelay")
        a("s_memrealtime s[78:79]")
        a("s_waitcnt lgkmcnt(0)")
        a(f"s_add_u32 s77, s78, {delay*100}")
        a.label("L_dl")
        a("s_sleep 8")
        a("s_memrealtime s[78:79]")
        a("s_waitcnt lgkmcnt(0)")
        a("s_sub_u32 s79, s78, s77")
        a("s_cmp_lt_i32 s79, 0")
        a("s_cbranch_scc1 L_dl")
        a.label("L_nodelay")
    mark("ST0e")
    a.label("L_at_start")
    if trace:
        a("s_mov_b32 s77, 1")
        a(f"v_mov_b32 v{V_T3}, s64")
        a("s_memtime s[78:79]")
        a("s_waitcnt lgkmcnt(0)")
        a(f"v_cmp_eq_u32 vcc, s77, v{V_LANE}")
        a(f"v_mov_b32 v{V_T2}, s78")
        a("s_nop 1")
        a(f"v_cndmask_b32 v{V_T3}, v{V_T3}, v{V_T2}, vcc")
        a("s_add_u32 s77, s77, 1")
    a(f"s_mov_b32 s{S_T}, s{S_T0}")
    a(f"s_lshl_b32 s{S_DJ}, s{S_T0}, 5")
    a(f"s_add_u32 s{S_D}, s{S_T}, s{S_PRE}")
    qs_init(S_D, "pre")
    if roll:
        rt_setup()
        for sl in range(2):
            dma_setup(sl, "QP")
            for _ in range(8): dma_one(True)
        a(f"s_mov_b32 s{S_B}, s{S_QS}")
        for _ in range(6):
            a(f"buffer_load_dword v0, v{V_T0}, s[{S_QP}:{S_QP+3}], s{S_B} offen{' nt' if tnt else ''}")
            a(f"s_add_u32 s{S_B}, s{S_B}, s{S_QSTEP}")
        for sl in range(2, 4):
            dma_setup(sl, "QP")
            for _ in range(8): dma_one(True)
        a(f"s_waitcnt vmcnt(30) lgkmcnt(0)")
    else:
        if wtl:
            a(f"s_and_b32 s56, s2, 127")
            a(f"s_mul_i32 s56, s56, {32*1280}")
            a(f"v_mov_b32 v{V_S+14}, 0")
            if wtl == 2: a(f"v_mul_u32_u24 v{V_S+14}, 640, v{V_LANE}")
            a(f"buffer_load_dword v{V_S+15}, v{V_S+14}, s[84:87], s56 offen")
        for sl in range(4):
            if sl == 2: marks["SL2"] = len(a.lines)
            dma_setup(sl, "QP")
            for _ in range(8): dma_one(True)
            if pro1 and sl == 0:
                st(9)
                a("s_waitcnt vmcnt(0)")
                st(9)
        if wo5 or wo8:
            a(f"s_and_b32 s56, s2, 127")
            a(f"s_mul_i32 s56, s56, {32*1280}")
            a(f"s_mul_i32 s58, s{S_WAVE}, 320")
            a(f"s_add_u32 s56, s56, s58")
            a(f"s_mul_i32 s58, s{S_WAVE}, 7168")
            a(f"s_add_u32 s58, s58, {4*AREA}")
            a(f"s_mov_b32 s{S_A}, 6554")
            for i in range(5):
                a(f"v_add_u32 v{V_T0}, {64*i}, v{V_LANE}")
                a(f"v_mul_u32_u24 v{V_T1}, s{S_A}, v{V_T0}")
                a(f"v_lshrrev_b32 v{V_T1}, 16, v{V_T1}")
                a(f"v_mul_u32_u24 v{V_T2}, 10, v{V_T1}")
                a(f"v_sub_u32 v{V_T2}, v{V_T0}, v{V_T2}")
                a(f"v_mul_u32_u24 v{V_T1}, 1280, v{V_T1}")
                a(f"v_lshl_add_u32 v{V_T3}, v{V_T2}, 4, v{V_T1}")
                a(f"v_accvgpr_write_b32 a{244+i}, v{V_T3}")
            a(f"v_lshrrev_b32 v{V_T0}, 4, v{V_LANE}")
            a(f"v_bfe_u32 v{V_T1}, v{V_LANE}, 2, 2")
            a(f"v_lshl_add_u32 v{V_T1}, v{V_T0}, 3, v{V_T1}")
            a(f"v_mul_u32_u24 v{V_T1}, 160, v{V_T1}")
            a(f"v_and_b32 v{V_T2}, 3, v{V_LANE}")
            a(f"v_lshl_add_u32 v{V_T1}, v{V_T2}, 3, v{V_T1}")
            a(f"v_add_u32 v{V_T1}, s58, v{V_T1}")
            a(f"v_accvgpr_write_b32 a249, v{V_T1}")
        if tlbw:
            a(f"v_lshlrev_b32 v{V_S+13}, 12, v{V_LANE}")
            a(f"buffer_load_dword v{V_S+12}, v{V_S+13}, s[{S_LD}:{S_LD+3}], 0 offen nt")
            if tlbw > 1:
                a(f"s_mov_b32 s{S_A}, 0x80000")
                a(f"buffer_load_dword v{V_S+12}, v{V_S+13}, s[{S_LD}:{S_LD+3}], s{S_A} offen nt")
        if bulk0 and touch:
            touch_init(S_D)
            for _ in range(5): touch_one()
        if cpf and cpflate:
            for k in range(cpf // 16):
                a(f"s_mov_b32 s76, {k*16384}")
                a("buffer_load_dword v104, v105, s[72:75], s76 offen")
        if pro2:
            assert x128 and qch2 and not (trace or roll or wtl or pro1 or wo5 or wo8 or tlbw or touch or cpf or stamp or delay or rflip or defer or xf or fakex)
            L = a.lines
            sl = lambda x, y: L[marks[x]:marks[y]]
            body = L[marks["ST0e"] + 1:]
            cmpq = [f"    s_cmp_eq_u32 s{S_QH}, 0"]
            early_ = (sl("P2", "K1") + cmpq + sl("T1", "K4") + [f"    s_mov_b32 s{S_T0}, 0"] + sl("T3", "T3b") + sl("T4", "T4e")
                      + sl("Vw", "Vd") + sl("Vx", "Vxe") + sl("W0", "P2") + sl("K1", "K2") + cmpq + sl("K3", "T1") + sl("ST0", "ST0e"))
            rest = (sl("K2", "K3") + sl("K4", "T3") + sl("T3b", "T4") + sl("T4e", "Vw") + sl("Vxe", "ST0"))
            if pro2 == 2:
                b1 = L[marks["ST0e"] + 1:marks["SL2"]]; b2 = L[marks["SL2"]:]
                a.lines = L[:marks["W0"]] + early_ + b1 + rest + ["    s_branch L_pro_mid", "L_at_start:"] + b1 + ["L_pro_mid:"] + b2
            else:
                a.lines = L[:marks["W0"]] + early_ + body + rest + ["    s_branch L_pro_wait", "L_at_start:"] + body + ["L_pro_wait:"]
        a(f"s_waitcnt vmcnt({(29 if (bulk0 and touch) else 16 if qch2 else 24) + (cpf // 16 if cpflate else 0)}) lgkmcnt(0)")
    a("s_barrier")
    a.label("L_at_round")
    st(0)
    if roll: rt_setup()
    if qch2:
        for lp in range(4):
            for kk in range(2): wread2(lp, kk, 0)
        for kk in range(2):
            for qt in range(7): bread2(0, kk, qt, kk)
        if sea >= 4:
            for i in range(8): a(f"v_add_u32 v{V_S+i}, s{S_TAB+i}, v{V_QD}")
    else:
        for l in range(8): wread(l, 0)
        for qt in range(7): bread(0, qt, 0)
    a.lds_wait_all()
    def qp_body(role):
        sfx = role or ""
        vns = {None: (22, 17, 18, 18, 18), "W": (16, 16, 16, 16, 16), "X": (16, 22, 28, 28, 28), "T": (16, 20, 20, 63, 63)}[role]
        nts = (6, 4, 4, 2)
        qp_stage(0, first=True, chk=True, after_store=True, vn=vns[0], role=role, ntouch=nts[0], sidx=0, code=("P", 0))
        qp_stage(1, first=qch2, after_store=True, vn=vns[1], role=role, ntouch=nts[1], sidx=1, code=("P", 1))
        qp_stage(2, after_store=True, vn=vns[2], role=role, ntouch=nts[2], sidx=2, code=("P", 2))
        qp_stage(3, vn=vns[3], role=role, ntouch=nts[3], sidx=3, code=("P", 3))
        if not wo2 and not wo8 and not woff:
            a(f"s_cmp_lg_u32 s{S_WO}, 0")
            a(f"s_cbranch_scc1 L_at_nowo0{sfx}")
            a(f"s_mov_b32 s{S_WO}, 1")
            wo_issue(0)
            if roll: rt_setup()
            a.label(f"L_at_nowo0{sfx}")
        a(f"s_mov_b32 s{S_CNT}, 0")
        if pstq: st(9)
        a.label(f"L_at_qploop{sfx}")
        a.lds_q = []
        if wo6:
            a(f"s_lshl3_add_u32 s{S_A}, s{S_WO}, s{S_CNT}")
            a(f"s_cmp_eq_u32 s{S_A}, {int(wo6[0])}")
            a("s_cbranch_scc1 L_at_wh0")
            a(f"s_cmp_eq_u32 s{S_A}, {8 + int(wo6[1])}")
            a("s_cbranch_scc1 L_at_wh1")
            a.label("L_at_whr")
            def h0():
                a(f"s_mov_b32 s{S_WO}, 1")
                for i in range(5):
                    a(f"s_add_u32 m0, s58, {1024*i}")
                    a(f"v_accvgpr_read_b32 v{V_T3}, a{244+i}")
                    a(f"buffer_load_dwordx4 v{V_T3}, s[84:87], s56 offen lds")
                a("s_branch L_at_whr")
            def h1():
                a(f"s_mov_b32 s{S_WO}, 2")
                a(f"v_accvgpr_read_b32 v{V_T1}, a249")
                a("s_add_u32 s57, s56, 160")
                for t in range(5):
                    for v in range(2):
                        a(f"ds_read_b64_tr_b16 {ar(A_LS+4*t+2*v,2)}, v{V_T1} offset:{v*640+t*32}")
                a("s_waitcnt lgkmcnt(0)")
                for i in range(5):
                    a(f"s_add_u32 m0, s58, {1024*i}")
                    a(f"v_accvgpr_read_b32 v{V_T3}, a{244+i}")
                    a(f"buffer_load_dwordx4 v{V_T3}, s[84:87], s57 offen lds")
                a("s_branch L_at_whr")
            state.setdefault("ool", []).extend(["L_at_wh0:"] + capture(h0) + ["L_at_wh1:"] + capture(h1))
        for sm in range(4): qp_stage(sm, vn=vns[4], role=role, sidx=4+sm, code=("L", sm))
        if pstq: st(9)
        a(f"s_add_u32 s{S_CNT}, s{S_CNT}, 1")
        a(f"s_cmp_lt_u32 s{S_CNT}, 3")
        a(f"s_cbranch_scc1 L_at_qploop{sfx}")
    if not roles:
        qp_body(None)
    else:
        a(f"s_cmp_eq_u32 s{S_WAVE}, 1")
        a("s_cbranch_scc1 L_at_qpX")
        a(f"s_cmp_eq_u32 s{S_WAVE}, 3")
        a("s_cbranch_scc1 L_at_qpT")
        qp_body("W")
        a("s_branch L_at_qpjoin")
        a.label("L_at_qpX")
        qp_body("X")
        a("s_branch L_at_qpjoin")
        a.label("L_at_qpT")
        a(f"s_bfe_u32 s{S_A}, s2, 0x20003")
        a(f"s_lshl_b32 s{S_A}, s{S_A}, 3")
        a(f"v_lshrrev_b32 v{V_T0}, 3, v{V_LANE}")
        a(f"v_add_u32 v{V_T0}, s{S_A}, v{V_T0}")
        a(f"v_lshlrev_b32 v{V_T0}, 13, v{V_T0}")
        a(f"v_and_b32 v{V_T1}, 7, v{V_LANE}")
        a(f"v_lshl_add_u32 v{V_T0}, v{V_T1}, 6, v{V_T0}")
        a(f"v_min_u32 v{V_T1}, 27, v{V_LANE}")
        a(f"s_and_b32 s{S_A}, s2, 7")
        a(f"s_mul_i32 s{S_B}, s{S_A}, 28")
        a(f"v_add_u32 v{V_T1}, s{S_B}, v{V_T1}")
        a(f"v_mul_u32_u24 v{V_T1}, 1280, v{V_T1}")
        a(f"s_lshl_b32 s{S_A}, s{S_A}, 10")
        a(f"s_lshl_b32 s{S_B}, s101, 9")
        a(f"s_add_u32 s98, s{S_A}, s{S_B}")
        a(f"s_add_u32 s98, s98, {4*32*8192}")
        a(f"s_bfe_u32 s{S_A}, s2, 0x40003")
        a(f"s_mul_i32 s99, s{S_A}, {224*1280}")
        a(f"s_add_u32 s99, s99, {4*64}")
        qp_body("T")
        a.label("L_at_qpjoin")
    a(f"s_cmp_lg_u32 s{S_PRE}, 0")
    a("s_cbranch_scc1 L_at_qptailB")
    for sm in range(4): qp_stage(sm, dma="KV", last=(sm == 3), vn=(18, 17, 16, 16)[sm], sidx=16+sm, code=("T", sm))
    a("s_branch L_at_qpepi")
    a.label("L_at_qptailB")
    qs_init(S_T)
    a.lds_q = []
    for sm in range(4): qp_stage(sm, dma="QP", last=(sm == 3), vn=18, nok=True, sidx=16+sm, code=("B", sm))
    a.label("L_at_qpepi")
    if qdelay: dly(qdelay, "q")
    st(1)
    if trace:
        a("s_cmp_lg_u32 s2, 5")
        a("s_cbranch_scc1 L_tr_skip")
        a(f"s_cmp_lg_u32 s{S_T}, 0")
        a("s_cbranch_scc1 L_tr_skip")
        a(f"s_cmp_lg_u32 s{S_WAVE}, 0")
        a("s_cbranch_scc1 L_tr_skip")
        a("s_mov_b32 s80, s46"); a("s_mov_b32 s81, s47"); a("s_mov_b32 s82, 256"); a("s_mov_b32 s83, 0x20000")
        a(f"v_lshlrev_b32 v{V_T2}, 2, v{V_LANE}")
        a(f"v_add_u32 v{V_T2}, 128, v{V_T2}")
        a(f"buffer_store_dword v{V_T3}, v{V_T2}, s[80:83], 0 offen")
        a.label("L_tr_skip")
    if defer: a("s_mov_b32 s98, 0x40000000")
    a(f"v_mov_b32 v{V_T2}, s{S_CS}")
    a(f"v_mov_b32 v{V_T3}, s{S_CS}")
    a("s_nop 6")
    TMP = V_S
    if tdef:
        assert (klate == 3 and tdef in (1, 2, 3, 5)) or (klate == 2 and tdef == 4)
        a(f"s_cmp_lg_u32 s{S_PRE}, 0")
        a("s_cselect_b64 vcc, -1, 0")
    for T in range(4):
        n_ep = len(a.lines)
        if T < 2:
            base = lambda e, qt: V_OK + 28 * (2 * T + e) + 4 * qt
        else:
            base = lambda e, qt: V_OK + 28 * (2 * (T - 2) + e) + 4 * qt
            for e in range(2):
                for qt in range(7):
                    for r in range(4):
                        a(f"v_accvgpr_read_b32 v{base(e,qt)+r}, a{A_OS+28*(2*(T-2)+e)+4*qt+r}")
        for e in range(2):
            for qt in range(7):
                o = base(e, qt)
                for h in range(2):
                    a(f"v_pk_mul_f32 {vr(o+2*h,2)}, {vr(o+2*h,2)}, {vr(V_T2,2)}")
        pk = lambda qt: TMP + 28 * (T & 1) + 4 * qt
        for qt in range(7):
            oe = base(0, qt); oo = base(1, qt); p = pk(qt)
            a(f"v_cvt_pk_bf16_f32 v{p}, v{oe}, v{oe+1}")
            a(f"v_cvt_pk_bf16_f32 v{p+1}, v{oe+2}, v{oe+3}")
            a(f"v_cvt_pk_bf16_f32 v{p+2}, v{oo}, v{oo+1}")
            a(f"v_cvt_pk_bf16_f32 v{p+3}, v{oo+2}, v{oo+3}")
        a("s_nop 1")
        for qt in range(7):
            p = pk(qt)
            a(f"v_permlane16_swap_b32 v{p}, v{p+2}")
            a(f"v_permlane16_swap_b32 v{p+1}, v{p+3}")
        for qt in range(7):
            for r in range(4):
                a(f"v_accvgpr_write_b32 a{A_Q+16*qt+4*T+r}, v{pk(qt)+r}")
        if tdef and ((T < tdef) if tdef < 3 else (T == klate)):
            slot_ = 4 - tdef + T if tdef < 3 else 2
            dl_ = dma_lines(slot_, "KV")
            grp = []; cur_ = []
            for ln in dl_:
                if "buffer_load" in ln: cur_.append(ln); grp.append(cur_); cur_ = []
                elif "m0, m0" in ln: grp[-1].append(ln)
                else: cur_.append(ln)
            assert len(grp) == 8 and not cur_
            body_ = a.lines[n_ep:]; del a.lines[n_ep:]
            stp = len(body_) // 8
            for k_ in range(8):
                lab = f"L_at_td{T}_{k_}"
                a.lines += [f"    s_cbranch_vccnz {lab}"] + grp[k_] + [f"{lab}:"]
                a.lines += body_[k_ * stp:(k_ + 1) * stp if k_ < 7 else len(body_)]
        if klate and T == klate - 1:
            assert qch2
            a(f"s_cmp_lg_u32 s{S_PRE}, 0")
            a("s_cbranch_scc1 L_at_klskip")
            a(f"s_waitcnt vmcnt({8 if tdef >= 3 else 24})")
            a("s_barrier")
            for f in range(8): kread(f, 0)
            a.label("L_at_klskip")
    a(f"s_cmp_eq_u32 s{S_PRE}, 0")
    a("s_cbranch_scc1 L_at_nostash")
    a(f"s_mov_b32 s{S_PRE}, 0")
    qstash_off()
    for i in range(7):
        for s_ in range(4):
            a(f"buffer_store_dwordx4 {ar(A_Q+16*i+4*s_,4)}, v{V_T2}, s[{S_W}:{S_W+3}], s{S_C} offen offset:{1024*s_} {qpol}".rstrip())
        if i < 6: a(f"s_add_u32 s{S_C}, s{S_C}, 4096")
    a(f"s_mov_b32 s{S_AS}, 3")
    a("s_branch L_at_round")
    a.label("L_at_nostash")
    a(f"s_cmp_lg_u32 s{S_MP}, 0")
    a("s_cbranch_scc1 L_at_maxpass")
    a.label("L_at_pre")
    if wo6 or wo8 or woff:
        pass
    elif wo2:
        assert inv
        a(f"s_cmp_lg_u32 s{S_WO}, 0")
        a("s_cbranch_scc1 L_at_nowo1a")
        a(f"s_mov_b32 s{S_WO}, {2 if wo5 else 1}")
        a(f"s_mov_b32 s{S_AS}, 0x103")
        if wo5:
            a(f"v_accvgpr_read_b32 v{V_T1}, a249")
            a("s_add_u32 s57, s56, 160")
            a("s_waitcnt vmcnt(24)")
            for t in range(5):
                for v in range(2):
                    a(f"ds_read_b64_tr_b16 {ar(A_LS+4*t+2*v,2)}, v{V_T1} offset:{v*640+t*32}")
            a("s_waitcnt lgkmcnt(0)")
            for i in range(5):
                a(f"s_add_u32 m0, s58, {1024*i}")
                a(f"v_accvgpr_read_b32 v{V_T3}, a{244+i}")
                a(f"buffer_load_dwordx4 v{V_T3}, s[84:87], s57 offen lds")
        else:
            wo_issue(0)
        if not (wo3 or wo4): a("s_branch L_at_nowo1")
        a.label("L_at_nowo1a")
        if not (wo3 or wo4):
            a(f"s_cmp_lg_u32 s{S_WO}, 2")
            a("s_cbranch_scc1 L_at_nowo1")
            a(f"s_cmp_lg_u32 s{S_TY}, 0")
            a("s_cbranch_scc1 L_at_nowo1")
            a(f"s_mov_b32 s{S_WO}, 3")
            a(f"s_mov_b32 s{S_AS}, 0x103")
            wo_finish(1)
    else:
        a(f"s_cmp_lg_u32 s{S_WO}, 1")
        a("s_cbranch_scc1 L_at_nowo1")
        a(f"s_mov_b32 s{S_WO}, 2")
        wo_finish(0)
        wo_issue(1)
    a.label("L_at_nowo1")
    st(2)
    a.lds_q = ["K"]
    state["n"] = 0
    z = []
    for l in range(8):
        for r in range(4):
            z.append(f"v_mov_b32 v{V_OK+28*l+24+r}, 0" if l < 4 else f"v_accvgpr_write_b32 a{A_OS+28*(l-4)+24+r}, 0")
    if ones: z += [f"v_accvgpr_write_b32 a{A_LS+24+r}, 0" for r in range(4)]
    emit(qk_items(0, 0, True, None), z[:16])
    for o in z[16:]: a(o)
    if gkv and gkv != 3:
        assert lp7 and not early
        a(f"s_add_u32 s{S_B}, s{S_DJ}, s100")
        if gkv in (2, 4): a(f"s_xor_b32 s{S_B}, s{S_B}, s76")
        a(f"s_bfe_u32 s{S_A}, s{S_B}, 0x20003")
        a(f"s_lshl_b32 s{S_A}, s{S_A}, 16")
        a(f"s_and_b32 s{S_B}, s{S_B}, 7")
        a(f"s_lshl_b32 s{S_B}, s{S_B}, 11")
        a(f"s_add_u32 s{S_B}, s{S_A}, s{S_B}")
        a(f"s_lshr_b32 s{S_A}, s{S_DJ}, 5")
        a(f"s_lshl_b32 s{S_A}, s{S_A}, 19")
        a(f"s_add_u32 s64, s{S_A}, s{S_B}")
        a(f"s_add_u32 s{S_DJ}, s{S_DJ}, 28")
    step(0, first=True, dyn=True)
    a(f"s_mov_b32 s{S_CNT}, 0")
    if align:
        a.lines.append(".p2align 6")
        if align == 2: a("s_nop 0")
    a.label("L_at_loop")
    q0 = list(a.lds_q)
    state["inat"] = True
    for jm in (1, 2, 3, 0): step(jm, dyn=(jm in (1, 2)))
    state["inat"] = False
    assert q0 == a.lds_q, (q0, a.lds_q)
    if pstl:
        a("s_memrealtime s[78:79]")
        a("s_memtime s[80:81]")
        a("s_waitcnt lgkmcnt(0)")
        a("s_mov_b32 s76, m0")
        a("s_mov_b32 m0, s77"); a("s_nop 0"); a("v_writelane_b32 v0, s78, m0")
        a("s_add_u32 m0, s77, 30"); a("s_nop 0"); a("v_writelane_b32 v0, s80, m0")
        a("s_add_u32 s77, s77, 1")
        a("s_mov_b32 m0, s76")
    a(f"s_add_u32 s{S_CNT}, s{S_CNT}, 1")
    if wo3:
        assert lp7 and not ones
        a(f"s_lshl3_add_u32 s{S_A}, s{S_WO}, s{S_CNT}")
        a(f"s_cmp_eq_u32 s{S_A}, {8 + wo3}")
        a("s_cbranch_scc1 L_at_wof0")
        a.label("L_at_wof0r")
    a(f"s_cmp_lt_u32 s{S_CNT}, {7 if lp7 else 6}")
    a("s_cbranch_scc1 L_at_loop")
    if wo4 and not wo5:
        assert lp7 and not ones
        a(f"s_cmp_lg_u32 s{S_WO}, 1")
        a("s_cbranch_scc1 L_at_nowoi1")
        a(f"s_mov_b32 s{S_WO}, 2")
        a(f"s_mov_b32 s{S_AS}, 0x102")
        wo_read_a()
        a("s_waitcnt lgkmcnt(0)")
        wo_issue_a(1)
        a.label("L_at_nowoi1")
    if wo3:
        a(f"s_cmp_lg_u32 s{S_WO}, 2")
        a("s_cbranch_scc1 L_at_nowoi1")
        a(f"s_mov_b32 s{S_WO}, 3")
        a(f"s_mov_b32 s{S_AS}, 0x102")
        wo_issue_a(1)
        a.label("L_at_nowoi1")
        ls = capture(lambda: (wo_finish_a(0), a(f"s_mov_b32 s{S_WO}, 2"), a(f"s_mov_b32 s{S_AS}, 0x102"), a("s_branch L_at_wof0r")))
        state.setdefault("ool", []).extend(["L_at_wof0:"] + ls)
    a(f"s_add_u32 s{S_T}, s{S_T}, 1")
    touch_init(S_T)
    assert not (lp7 and early)
    if not lp7:
        step(1, nt_=3); step(2, nt_=2); step(3, tr_=True)
    if strace: a("s_memtime s[62:63]")
    qs_init(S_T)
    if not early and not lp7: step(0)
    def wtouch():
        a(f"s_and_b32 s{S_A}, s2, 127")
        a(f"s_mul_i32 s{S_A}, s{S_A}, {32*1280}")
        a(f"s_mul_i32 s{S_B}, s{S_WAVE}, {80*128}")
        a(f"s_add_u32 s{S_A}, s{S_A}, s{S_B}")
        a(f"v_lshlrev_b32 v{V_T2}, 7, v{V_LANE}")
        a(f"v_and_b32 v{V_T3}, 15, v{V_LANE}")
        a(f"v_lshlrev_b32 v{V_T3}, 7, v{V_T3}")
        a(f"buffer_load_dword a250, v{V_T2}, s[84:87], s{S_A} offen")
        a(f"s_add_u32 s{S_A}, s{S_A}, {64*128}")
        a(f"buffer_load_dword a251, v{V_T3}, s[84:87], s{S_A} offen")
        if cpo:
            assert cpf2 and V_T2 % 2 == 0 and V_T3 == V_T2 + 1
            a(f"s_lshl_b32 s{S_A}, s{S_WAVE}, 13")
            a(f"v_lshlrev_b32 v{V_T2}, 7, v{V_LANE}")
            a(f"v_add_u32 v{V_T2}, s{S_A}, v{V_T2}")
            a(f"v_add_u32 v{V_T2}, op_kernel - L_pc0, v{V_T2}")
            a(f"v_min_u32 v{V_T2}, L_code_end - L_pc0 - 4, v{V_T2}")
            a(f"v_mov_b32 v{V_T3}, s73")
            a(f"v_add_co_u32 v{V_T2}, vcc, s72, v{V_T2}")
            a(f"v_addc_co_u32 v{V_T3}, vcc, 0, v{V_T3}, vcc")
            a(f"global_load_dword a250, v[{V_T2}:{V_T3}], off")
        if wtch in (2, 3):
            a(f"s_mov_b32 s{S_A}, 0x40000000")
            for _ in range(3): a(f"buffer_load_dword a251, v{V_T3}, s[84:87], s{S_A} offen")
            a(f"s_mov_b32 s{S_AS}, {0x103 if wtch == 2 else 0x102}")
    if wtch in (1, 2, 3):
        a(f"s_cmp_eq_u32 s{S_T}, 2")
        a("s_cbranch_scc1 L_at_wt0")
        a.label("L_at_wt0r")
        state.setdefault("ool", []).extend(["L_at_wt0:"] + capture(lambda: (wtouch(), a("s_branch L_at_wt0r"))))
    if wo8:
        assert lp7 and inv
        a(f"s_lshl3_add_u32 s{S_A}, s{S_T}, s{S_WO}")
        a(f"s_cmp_eq_u32 s{S_A}, 16")
        a("s_cbranch_scc1 L_at_w8h0")
        a.label("L_at_w8h0r")
        def h0body():
            a(f"s_mov_b32 s{S_WO}, 1")
            a(f"s_mov_b32 s{S_AS}, 0x102")
            for i in range(5):
                a(f"s_add_u32 m0, s58, {1024*i}")
                a(f"v_accvgpr_read_b32 v{V_T3}, a{244+i}")
                if not wo8 & 16: a(f"buffer_load_dwordx4 v{V_T3}, s[84:87], s56 offen lds")
            a("s_branch L_at_w8h0r")
        state.setdefault("ool", []).extend(["L_at_w8h0:"] + capture(h0body))
    if eep:
        assert not (rflip or defer or ones or early or wo2 or wo8 or touch or kvt2 or stpol0 is not None) and inv and lp7 and wtch in (0, 1)
        a(f"s_mul_i32 s{S_D}, s{S_T}, {2*PAIRB}")
        a(f"s_add_u32 s{S_D}, s{S_D}, s{S_OOFF}")
        a(f"s_sub_u32 s{S_D}, s{S_D}, {2*PAIRB}")
    a(f"s_cmp_lg_u32 s{S_TY}, 0")
    a("s_cbranch_scc1 L_at_atailB")
    n0 = state["n"]; q0 = list(a.lds_q); c0 = state.get("carry")
    if early: step(0, dma="QP")
    tdyn = bool((wo3 or wo4) and not wo5) or bool(wo8) or wtch in (2, 3)
    def h1(tag):
        if wtch == 3:
            a(f"s_cmp_eq_u32 s{S_T}, 2")
            a(f"s_cselect_b32 s{S_AS}, 0x301, s{S_AS}")
        if not wo8: return
        a(f"s_cmp_eq_u32 s{S_WO}, 1")
        a(f"s_cbranch_scc1 L_at_w8h1{tag}")
        a.label(f"L_at_w8h1r{tag}")
        def body():
            a(f"s_mov_b32 s{S_WO}, 2")
            a(f"s_mov_b32 s{S_AS}, 0x101")
            a(f"v_accvgpr_read_b32 v{V_T1}, a249")
            a("s_add_u32 s57, s56, 160")
            a(f"v_lshlrev_b32 v{V_T2}, 4, v{V_LANE}")
            a(f"s_mul_i32 s{S_A}, s2, {40*1024}")
            a(f"s_mul_i32 s{S_B}, s{S_WAVE}, {10*1024}")
            a(f"s_add_u32 s{S_A}, s{S_A}, s{S_B}")
            a(f"s_add_u32 s{S_A}, s{S_A}, {WS_W}")
            if not wo8 & 8: a("s_waitcnt vmcnt(16)")
            for t in range(5):
                for v in range(2):
                    a(f"ds_read_b64_tr_b16 {ar(A_LS+4*t+2*v,2)}, v{V_T1} offset:{v*640+t*32}")
            a("s_waitcnt lgkmcnt(0)")
            for i in range(5):
                a(f"s_add_u32 m0, s58, {1024*i}")
                a(f"v_accvgpr_read_b32 v{V_T3}, a{244+i}")
                if not wo8 & 4: a(f"buffer_load_dwordx4 v{V_T3}, s[84:87], s57 offen lds")
            for f in range(5):
                if f == 4: a(f"s_add_u32 s{S_A}, s{S_A}, 4096")
                if not wo8 & 2: a(f"buffer_store_dwordx4 {ar(A_LS+4*f,4)}, v{V_T2}, s[{S_W}:{S_W+3}], s{S_A} offen offset:{1024*(f&3)} {wpol}".rstrip())
            a(f"s_branch L_at_w8h1r{tag}")
        state.setdefault("ool", []).extend([f"L_at_w8h1{tag}:"] + capture(body))
    ixA0 = len(a.lines)
    step(1, dma="QP", dyn=tdyn); step(2, dma="QP", dyn=tdyn); h1("A"); step(3, dma="QP", last=True, dyn=bool(wo8) or wtch in (2, 3))
    ixA1 = len(a.lines)
    a("s_branch L_at_aepi")
    a.label("L_at_atailB")
    state["n"] = n0; a.lds_q = q0; state["carry"] = c0
    if early: step(0)
    ixB0 = len(a.lines)
    step(1, dyn=tdyn); step(2, dyn=tdyn); h1("B"); step(3, last=True, dyn=bool(wo8) or wtch in (2, 3))
    ixB1 = len(a.lines)
    a.label("L_at_aepi")
    if adelay: dly(adelay, "a")
    a.lds_q = ["V"]
    st(3)
    E = V_S
    red = [f"v_add_f32 v{V_L+2*i}, v{V_L+2*i}, v{V_L+2*i+1}" for i in range(7)]
    red += [f"v_mov_b32 v{E+i}, v{V_L+2*i}" for i in range(7)]
    red += [f"v_permlane16_swap_b32 v{V_L+2*i}, v{E+i}" for i in range(7)]
    red += [f"v_add_f32 v{V_L+2*i}, v{V_L+2*i}, v{E+i}" for i in range(7)]
    red += [f"v_mov_b32 v{E+i}, v{V_L+2*i}" for i in range(7)]
    red += [f"v_permlane32_swap_b32 v{V_L+2*i}, v{E+i}" for i in range(7)]
    red += [f"v_add_f32 v{V_L+2*i}, v{V_L+2*i}, v{E+i}" for i in range(7)]
    a("s_nop 1")
    ixP0 = len(a.lines)
    if eep:
        emit(pv_items(6, 1, False, None), ep_merge(ep_red(6), ep_red(5) + ep_tile(5, eep == 2)))
    elif ones:
        emit(pv_items(6, 1, False, None), [])
        a("s_nop 7")
        for i in range(7): a(f"v_accvgpr_read_b32 v{V_L+2*i}, a{A_LS+4*i}")
    else:
        emit(pv_items(6, 1, False, None), red)
    if not eep:
        for i in range(7): a(f"v_rcp_f32 v{V_CI+4*i}, v{V_L+2*i}")
    a(f"v_add_f32 v{E+2}, v{V_L}, v{V_L+2}")
    a(f"v_add_f32 v{E+3}, v{V_L+4}, v{V_L+6}")
    a(f"v_add_f32 v{E+4}, v{V_L+8}, v{V_L+10}")
    a(f"v_add_f32 v{E+2}, v{E+2}, v{V_L+12}")
    a(f"v_add_f32 v{E+3}, v{E+3}, v{E+4}")
    a(f"v_add_f32 v{E+2}, v{E+2}, v{E+3}")
    a(f"v_cmp_nge_f32 vcc, s{S_THR}, v{E+2}")
    for i in range(7): a(f"v_mov_b32 v{V_L+2*i}, 0xff800000")
    a("s_cmp_eq_u64 vcc, 0")
    a("s_cbranch_scc1 L_at_noflag")
    if nofb: a("s_branch L_at_noflag")
    a(f"s_lshl_b32 s{S_B}, s{S_T}, 2")
    a(f"s_add_u32 s{S_B}, s{S_B}, {LDS_FLAG-4}")
    a(f"v_mov_b32 v{E+2}, s{S_B}")
    a(f"v_mov_b32 v{E+3}, 1")
    a(f"ds_write_b32 v{E+2}, v{E+3}")
    a.label("L_at_noflag")
    if eep:
        for o in ep_tile(6, True): a(o)
    elif rflip:
        a(f"s_sub_u32 s{S_D}, s{S_T}, 1")
        a(f"s_mul_i32 s{S_D}, s{S_D}, s99")
        a(f"s_add_u32 s{S_D}, s{S_D}, s{S_OOFF}")
    else:
        a(f"s_mul_i32 s{S_D}, s{S_T}, {2*PAIRB}")
        a(f"s_add_u32 s{S_D}, s{S_D}, s{S_OOFF}")
        a(f"s_sub_u32 s{S_D}, s{S_D}, {2*PAIRB}")
    if defer:
        a(f"s_cmp_lt_u32 s{S_T}, 2")
        a(f"s_cselect_b32 s99, 1, 0")
        a(f"s_cmp_eq_u32 s{S_TY}, 0")
        a(f"s_cselect_b32 s99, s99, 0")
        a(f"s_cmp_lg_u32 s99, 0")
        a(f"s_cselect_b32 s98, s{S_D}, s98")
    for T in range(0 if eep else 4):
        if T < 2:
            base = lambda e, qt: V_OK + 28 * (2 * T + e) + 4 * qt
        else:
            base = lambda e, qt: V_OK + 28 * (2 * (T - 2) + e) + 4 * qt
            for e in range(2):
                for qt in range(7):
                    for r in range(4):
                        a(f"v_accvgpr_read_b32 v{base(e,qt)+r}, a{A_OS+28*(2*(T-2)+e)+4*qt+r}")
        for e in range(2):
            for qt in range(7):
                o = base(e, qt)
                for h in range(2):
                    a(f"v_pk_mul_f32 {vr(o+2*h,2)}, {vr(o+2*h,2)}, {vr(V_CI+4*qt,2)} op_sel_hi:[1,0]")
        pk = lambda qt: V_S + 28 * (T & 1) + 4 * qt
        for qt in range(7):
            oe = base(0, qt); oo = base(1, qt); p = pk(qt)
            a(f"v_cvt_pk_bf16_f32 v{p}, v{oe}, v{oe+1}")
            a(f"v_cvt_pk_bf16_f32 v{p+1}, v{oe+2}, v{oe+3}")
            a(f"v_cvt_pk_bf16_f32 v{p+2}, v{oo}, v{oo+1}")
            a(f"v_cvt_pk_bf16_f32 v{p+3}, v{oo+2}, v{oo+3}")
        if not operm:
            a("s_nop 1")
            for qt in range(7):
                p = pk(qt)
                a(f"v_permlane16_swap_b32 v{p}, v{p+2}")
                a(f"v_permlane16_swap_b32 v{p+1}, v{p+3}")
        if defer:
            a(f"s_cmp_lg_u32 s99, 0")
            a(f"s_cbranch_scc1 L_at_dfr{T}")
        a(f"s_mov_b32 s{S_A}, s{S_D}")
        if stpol0 is not None:
            a(f"s_cmp_ge_u32 s{S_T}, 2")
            a(f"s_cbranch_scc1 L_at_sp1_{T}")
            for qt in range(7):
                a(f"buffer_store_dwordx4 {vr(pk(qt),4)}, v{V_XA}, s[{S_W}:{S_W+3}], s{S_A} offen offset:{1024*T} {stpol0}".rstrip())
                if qt < 6: a(f"s_add_u32 s{S_A}, s{S_A}, 4096")
            a(f"s_branch L_at_sp2_{T}")
            a.label(f"L_at_sp1_{T}")
        for qt in range(7):
            if not nost: a(f"buffer_store_dwordx4 {vr(pk(qt),4)}, v{V_XA}, s[{S_W}:{S_W+3}], s{S_A} offen offset:{1024*T} {stpol}".rstrip())
            if dupst:
                a(f"s_sub_u32 s{S_B}, s{S_A}, {WS_O - 30000000}")
                a(f"buffer_store_dwordx4 {vr(pk(qt),4)}, v{V_XA}, s[72:75], s{S_B} offen offset:{1024*T}")
            if qt < 6: a(f"s_add_u32 s{S_A}, s{S_A}, 4096")
        if stpol0 is not None: a.label(f"L_at_sp2_{T}")
        if defer:
            a(f"s_branch L_at_dfj{T}")
            a.label(f"L_at_dfr{T}")
            for qt in range(7):
                for r in range(4):
                    a(f"v_accvgpr_write_b32 a{A_Q+16*qt+4*T+r}, v{pk(qt)+r}")
            a.label(f"L_at_dfj{T}")
    a("s_nop 1")
    if wo8:
        a(f"s_cmp_lg_u32 s{S_WO}, 2")
        a("s_cbranch_scc1 L_at_nowo2")
        a(f"s_mov_b32 s{S_WO}, 4")
        a(f"v_accvgpr_read_b32 v{V_T1}, a249")
        a(f"v_lshlrev_b32 v{V_T2}, 4, v{V_LANE}")
        a(f"s_mul_i32 s{S_A}, s2, {40*1024}")
        a(f"s_mul_i32 s{S_B}, s{S_WAVE}, {10*1024}")
        a(f"s_add_u32 s{S_A}, s{S_A}, s{S_B}")
        a(f"s_add_u32 s{S_A}, s{S_A}, {WS_W+5120}")
        a("s_waitcnt vmcnt(49)")
        R = V_VF
        for t in range(5):
            for v in range(2):
                a(f"ds_read_b64_tr_b16 {vr(R+4*t+2*v,2)}, v{V_T1} offset:{v*640+t*32}")
        a("s_waitcnt lgkmcnt(0)")
        for f in range(5):
            if f == 4: a(f"s_add_u32 s{S_A}, s{S_A}, 4096")
            a(f"buffer_store_dwordx4 {vr(R+4*f,4)}, v{V_T2}, s[{S_W}:{S_W+3}], s{S_A} offen offset:{1024*(f&3)} {wpol}".rstrip())
        a("s_nop 1")
    elif wo4:
        a(f"s_mov_b32 s{S_AS}, 3")
        a(f"s_cmp_lg_u32 s{S_WO}, 2")
        a("s_cbranch_scc1 L_at_nowo2")
        a(f"s_mov_b32 s{S_WO}, 4")
        a(f"s_mov_b32 s{S_AS}, 0x303")
        if wo5:
            a(f"v_accvgpr_read_b32 v{V_T1}, a249")
            a(f"v_lshlrev_b32 v{V_T2}, 4, v{V_LANE}")
            a(f"s_mul_i32 s{S_A}, s2, {40*1024}")
            a(f"s_mul_i32 s{S_B}, s{S_WAVE}, {10*1024}")
            a(f"s_add_u32 s{S_A}, s{S_A}, s{S_B}")
            a(f"s_add_u32 s{S_A}, s{S_A}, {WS_W}")
            R = V_VF
            for t in range(5):
                for v in range(2):
                    a(f"ds_read_b64_tr_b16 {vr(R+4*t+2*v,2)}, v{V_T1} offset:{v*640+t*32}")
            for f in range(5):
                if f == 4: a(f"s_add_u32 s{S_A}, s{S_A}, 4096")
                a(f"buffer_store_dwordx4 {ar(A_LS+4*f,4)}, v{V_T2}, s[{S_W}:{S_W+3}], s{S_A} offen offset:{1024*(f&3)} {wpol}".rstrip())
            a(f"s_add_u32 s{S_A}, s{S_A}, 1024")
            a("s_waitcnt lgkmcnt(0)")
            for f in range(5):
                if f == 4: a(f"s_add_u32 s{S_A}, s{S_A}, 4096")
                a(f"buffer_store_dwordx4 {vr(R+4*f,4)}, v{V_T2}, s[{S_W}:{S_W+3}], s{S_A} offen offset:{1024*(f&3)} {wpol}".rstrip())
            a("s_nop 1")
        else:
            wo_store_a(0)
            wo_finish(1)
    elif wo2 and not wo3:
        a(f"s_cmp_lg_u32 s{S_WO}, 1")
        a("s_cbranch_scc1 L_at_nowo2a")
        a(f"s_mov_b32 s{S_WO}, 2")
        wo_finish(0)
        wo_issue(1)
        a("s_branch L_at_nowo2")
        a.label("L_at_nowo2a")
    if not wo4 and not wo8 and not woff:
        a(f"s_cmp_lg_u32 s{S_WO}, {3 if wo3 else 2}")
        a("s_cbranch_scc1 L_at_nowo2")
        a(f"s_mov_b32 s{S_WO}, {4 if wo3 else 3}")
        wo_finish(1)
    a.label("L_at_nowo2")
    if not wo4: a(f"s_mov_b32 s{S_AS}, 3")
    if defer:
        a("s_cmp_lg_u32 s99, 0")
        a(f"s_cselect_b32 s{S_AS}, 0, 3")
    st(4)
    a.lds_q = []
    ixP1 = len(a.lines)
    a(f"s_cmp_ge_u32 s{S_T}, 2")
    a("s_cbranch_scc1 L_at_fin")
    a(f"s_cmp_eq_u32 s{S_TY}, 0")
    if eep: a(f"s_mov_b32 s{S_AS}, 0x103")
    a("s_cbranch_scc1 L_at_round")
    if eep:
        a(f"s_mov_b32 s{S_AS}, 0x203")
        a("s_waitcnt vmcnt(@NBQ@)")
    else:
        a(f"s_waitcnt vmcnt({56 if dupst else (33 if wo3 else 38 if wo2 else 28)})")
    a("s_branch L_at_pre")
    if eep:
        def vm(ls):
            out = []
            for k_, l_ in enumerate(ls):
                t_ = l_.strip()
                if t_.startswith("buffer_") or t_.startswith("global_"):
                    out.append("D" if t_.endswith("lds") else "S" if t_.startswith("buffer_store") else "R")
                elif "@LB" in t_: out.append("|")
            return out
        post = vm(a.lines[ixP0:ixP1])
        res = {}
        for nm, i0, i1 in (("A", ixA0, ixA1), ("B", ixB0, ixB1)):
            sq = vm(a.lines[i0:i1]) + post
            bar = sq.index("|"); sq2 = [x for x in sq if x != "|"]
            dpos = [k_ for k_, x in enumerate(sq2) if x == "D"]
            assert len(dpos) == 32 and (nost or sq2.count("S") == 28), (dpos, sq2)
            res["LB" + nm] = bar - (dpos[7] + 1)
            after = lambda k_: len(sq2) - (k_ + 1)
            if nm == "A":
                assert nost or after(dpos[15]) == 44
                res["NA1"] = after(dpos[23]) + 8; res["NA2"] = after(dpos[31]) + 16
            else:
                rpos = [k_ for k_, x in enumerate(sq2) if x == "R"]
                assert len(rpos) == 28 and rpos[-1] > dpos[23]
                res["NBQ"] = after(rpos[-1]); res["NB2"] = after(dpos[31]) + 16
                assert res["NBQ"] <= 44 and res["NBQ"] + 8 <= 44 + 8
            print("eep seq", nm, "".join(sq), file=sys.stderr)
        print("eep counts", res, file=sys.stderr)
        assert all(0 <= v <= 63 for v in res.values())
        state["eepres"] = res
    a.label("L_at_fin")
    if wb == 1:
        a(f"s_cmp_lg_u32 s{S_WAVE}, 0")
        a("s_cbranch_scc1 L_at_nowb")
        a("buffer_wbl2 sc1")
        a.label("L_at_nowb")
    a("s_waitcnt lgkmcnt(0)")
    a("s_barrier")
    flagcheck()
    if pst:
        a("s_memrealtime s[78:79]")
        a("s_memtime s[80:81]")
        a("s_waitcnt lgkmcnt(0)")
        a("s_mov_b32 m0, s77"); a("s_nop 0"); a("v_writelane_b32 v0, s78, m0")
        a("s_add_u32 m0, s77, 30"); a("s_nop 0"); a("v_writelane_b32 v0, s80, m0")
        a("s_getreg_b32 s62, hwreg(HW_REG_XCC_ID)")
        a("v_writelane_b32 v0, s62, 63")
        a(f"v_writelane_b32 v0, s{S_TY}, 62")
        a(f"s_cmp_lg_u32 s{S_WAVE}, 0")
        a("s_cbranch_scc1 L_at_end")
        a("s_lshl_b32 s62, s2, 8"); a("s_add_u32 s62, s62, 50000000")
        a(f"v_lshlrev_b32 v2, 2, v{V_LANE}")
        a(f"buffer_store_dword v0, v2, s[{S_W}:{S_W+3}], s62 offen")
    if stamp:
        a("s_memtime s[56:57]")
        a("s_memrealtime s[58:59]")
        a("s_waitcnt lgkmcnt(0)")
        if allst:
            a("v_mov_b32 v2, s66"); a("v_mov_b32 v3, s58")
            a("s_sub_u32 s62, s56, s64"); a("v_mov_b32 v4, s62")
            a("s_getreg_b32 s62, hwreg(HW_REG_XCC_ID)"); a("v_mov_b32 v5, s62")
            a("s_lshl_b32 s62, s2, 4"); a("s_add_u32 s62, s62, 50000000"); a("v_mov_b32 v6, s62")
            a(f"buffer_store_dwordx4 v[2:5], v6, s[{S_W}:{S_W+3}], 0 offen")
        a(f"s_cmp_lg_u32 s2, {stwg}")
        a("s_cbranch_scc1 L_at_end")
        a("s_sub_u32 s56, s56, s64")
        a("s_sub_u32 s58, s58, s66")
        a("s_mov_b32 s84, s46")
        a("s_mov_b32 s85, s47")
        a("s_mov_b32 s86, 256")
        a("s_mov_b32 s87, 0x20000")
        a("v_mov_b32 v2, s56")
        a("v_mov_b32 v3, s58")
        a(f"s_lshl_b32 s62, s{S_WAVE}, 3")
        a("v_mov_b32 v4, s62")
        a("buffer_store_dwordx2 v[2:3], v4, s[84:87], 0 offen")
        if strace:
            pr = [36, 38, 40, 42, 56, 58, 60, 62]
            for i in range(7):
                a(f"s_sub_u32 s78, s{pr[i+1]}, s{pr[i]}")
                a("v_mov_b32 v2, s78")
                a(f"v_mov_b32 v4, {160+4*i}")
                a("buffer_store_dword v2, v4, s[84:87], 0 offen")
        a("s_sub_u32 s62, s72, s64")
        a("v_mov_b32 v2, s62")
        a(f"v_mov_b32 v4, {DBO+4*5}")
        a("buffer_store_dword v2, v4, s[84:87], 0 offen")
        for k in range(1, 5):
            a(f"s_sub_u32 s62, s{72+2*k}, s{70+2*k}")
            a("v_mov_b32 v2, s62")
            a(f"v_mov_b32 v4, {DBO+4*k}")
            a("buffer_store_dword v2, v4, s[84:87], 0 offen")
    a("s_branch L_at_end")
    for ln in state.get("ool", []): a.lines.append(ln)

    a.label("L_at_fallback")
    a(f"s_sub_u32 s{S_T0}, s{S_T}, 1")
    a(f"s_mov_b32 s{S_NOFB}, s{S_T0}")
    a(f"s_mov_b32 s{S_MP}, 1")
    a(f"s_mov_b32 s{S_TY}, 0")
    a(f"s_mov_b32 s{S_PRE}, 0")
    a(f"s_mov_b32 s{S_AS}, 0")
    if defer: a("s_mov_b32 s98, 0x40000000")
    for i in range(7): a(f"v_mov_b32 v{V_L+2*i}, 0xff800000")
    a("s_waitcnt vmcnt(0) lgkmcnt(0)")
    a("s_barrier")
    a("s_branch L_at_start")
    a.label("L_at_maxpass")
    a(f"s_mov_b32 s{S_MP}, 0")
    a("s_waitcnt lgkmcnt(0)")
    a(f"v_and_b32 v{V_T0}, 15, v{V_LANE}")
    a(f"v_lshlrev_b32 v{V_T0}, 8, v{V_T0}")
    a(f"v_bfe_u32 v{V_T1}, v{V_LANE}, 4, 1")
    a(f"v_lshl_add_u32 v{V_T0}, v{V_T1}, 5, v{V_T0}")
    a(f"v_bfe_u32 v{V_T1}, v{V_LANE}, 5, 1")
    a(f"v_lshl_add_u32 v{V_T2}, v{V_T1}, 4, v{V_T0}")
    a(f"v_add_u32 v{V_T3}, 4096, v{V_T2}")
    a(f"s_lshl_b32 s{S_B}, s{S_T}, 19")
    if rflip: a(f"s_xor_b32 s{S_B}, s{S_B}, s101")
    a(f"s_mov_b32 s{S_CNT}, 0")
    a.label("L_at_mp")
    for f in range(8):
        a(f"buffer_load_dwordx4 {vr(V_VF+4*f,4)}, v{V_T2 + (f>>2)}, s[{S_K}:{S_K+3}], s{S_B} offen offset:{64*(f&3)}")
    a("s_waitcnt vmcnt(0)")
    for i in range(7):
        for f in range(8):
            kt, s = f >> 2, f & 3
            D = vr(V_S + 4 * kt, 4)
            a(f"{MFMA} {D}, {vr(V_VF+4*f,4)}, {ar(A_Q+16*i+4*s,4)}, {'0' if s == 0 else D}")
        a("s_nop 9")
        for r in range(0, 8, 2):
            a(f"v_max3_f32 v{V_L+2*i}, v{V_S+r}, v{V_S+r+1}, v{V_L+2*i}")
        a("s_nop 3")
    a(f"s_add_u32 s{S_B}, s{S_B}, 8192")
    a(f"s_add_u32 s{S_CNT}, s{S_CNT}, 1")
    a(f"s_cmp_lt_u32 s{S_CNT}, 32")
    a("s_cbranch_scc1 L_at_mp")
    a("s_branch L_at_pre")
    a.label("L_at_end")
    a("s_endpgm")
    txt = a.text()
    if eep:
        for k_, v_ in state["eepres"].items(): txt = txt.replace(f"@{k_}@", str(v_))
        assert "@" not in txt
    return txt

if __name__ == "__main__":
    import sys
    name = "fused_kernel"
    opts = dict(x.split("=") for x in sys.argv[2:])
    opts = {k: bool(int(v)) for k, v in opts.items()}
    body = gen_fused(name, **opts)
    out = f"; @launch kernel={name} grid=(256,1,1) block=(256,1,1) lds={LDS_BYTES}\n"
    out += '.amdgcn_target "amdgcn-amd-amdhsa--gfx950"\n.text\n' + kernel_header(name) + body
    out += '.section .rodata,"a"\n.p2align 6\n' + kernel_desc(name, 512, accum=256)
    open(sys.argv[1], "w").write(out)
```
